```python
import torch

def _softmax(x, axis=-1):
    return torch.softmax(x, dim=axis)
def _gelu(x):
    return torch.nn.functional.gelu(x, approximate="tanh")
def _silu(x):
    return torch.nn.functional.silu(x)
def _sigmoid(x):
    return torch.sigmoid(x)
def _layernorm(x, axis=-1, eps=1e-5):
    m = x.mean(dim=axis, keepdim=True)
    v = x.var(dim=axis, keepdim=True, unbiased=False)
    return (x - m) / torch.sqrt(v + eps)
def _scatter_add(tgt, idx, src, axis=0):
    return tgt.clone().index_add_(axis, idx, src)
def _segment_sum(src, seg, n):
    out = torch.zeros((n,) + src.shape[1:], dtype=src.dtype)
    return out.index_add_(0, seg, src)
def _pad(x, pw):
    flat = tuple(v for pair in reversed(pw) for v in pair)
    return torch.nn.functional.pad(x, flat)

kernel_name = 'recurrent_scan__sliding_block__glu_gated_bilinear__prompt'

def setup_inputs():

    _w = (lambda a: (lambda t: t.to(torch.bfloat16) if t.is_floating_point() else t)(torch.as_tensor(a)))
    def _A_setup():
        B, S, D = 1, 2048, 576
        return {
            "x": _w((lambda *s: torch.randn(*s, dtype=torch.bfloat16) * 0.05)(B, S, D)),
            "wqkv": _w((lambda *s: torch.randn(*s, dtype=torch.bfloat16) * 0.2)(D, 3 * D)),
            "wo": _w((lambda *s: torch.randn(*s, dtype=torch.bfloat16) * 0.2)(D, D)),
        }
    _A_in = _A_setup()

    def _B_setup():
        B, S, D, F = 1, 2048, 576, 4608
        return {
            "x": _w((lambda *s: torch.randn(*s, dtype=torch.bfloat16) * 0.05)(B, S, D)),
            "w_gate": _w((lambda *s: torch.randn(*s, dtype=torch.bfloat16) * 0.1)(D, F) * (D ** -0.5)),
            "w_up": _w((lambda *s: torch.randn(*s, dtype=torch.bfloat16) * 0.1)(D, F) * (D ** -0.5)),
            "w_down": _w((lambda *s: torch.randn(*s, dtype=torch.bfloat16) * 0.1)(F, D) * (F ** -0.5)),
        }
    _B_in = _B_setup()

    return {
        "A_x": _A_in["x"],
        "A_wqkv": _A_in["wqkv"],
        "A_wo": _A_in["wo"],
        "B_x": _B_in["x"],
        "B_w_gate": _B_in["w_gate"],
        "B_w_up": _B_in["w_up"],
        "B_w_down": _B_in["w_down"],
    }

def reference(A_x, A_wqkv, A_wo, B_x, B_w_gate, B_w_up, B_w_down):
    def _A_ref(x, wqkv, wo):
        B, S, D = x.shape
        H = 32; Dh = D // H; W = 256
        qkv = (lambda x, *d: x.permute(*d))((x @ wqkv).reshape(B, S, 3, H, Dh), 2, 0, 3, 1, 4)
        q, k, v = qkv[0], qkv[1], qkv[2]
        scores = torch.einsum("bhqd,bhkd->bhqk", q, k) * (Dh ** -0.5)
        idx = torch.arange(S)
        mask = (idx[:, None] - idx[None, :] >= 0) & (idx[:, None] - idx[None, :] < W)
        scores = torch.where(mask[None, None], scores, -1e9)
        p = _softmax(scores, axis=-1)
        o = torch.einsum("bhqk,bhkd->bhqd", p, v)
        return (lambda x, *d: x.permute(*d))(o, 0, 2, 1, 3).reshape(B, S, D) @ wo

    def _B_ref(x, w_gate, w_up, w_down):
        g = torch.einsum("bsd,df->bsf", x, w_gate)
        u = torch.einsum("bsd,df->bsf", x, w_up)
        h = g * u
        return torch.einsum("bsf,fd->bsd", h, w_down)

    x = A_x
    xn = _layernorm(x, axis=-1)
    s = _A_ref(xn, A_wqkv, A_wo)
    g = _silu(_B_ref(xn, B_w_gate, B_w_up, B_w_down))
    return x + s * g
```

```python
KN = 'recurrent_scan__sliding_block__glu_gated_bilinear__prompt_kernel'
STAMP_OFF = 200 << 20

class Asm:
    def __init__(self):
        self.lines = []
        self.nlabel = 0
    def __call__(self, s):
        for l in s.strip('\n').split('\n'):
            self.lines.append('    ' + l.strip())
    def label(self, name):
        self.lines.append(name + ':')
    def newlabel(self, p='L'):
        self.nlabel += 1
        return '%s_%d' % (p, self.nlabel)
    def raw(self, s):
        self.lines.append(s)
    def text(self):
        return '\n'.join(self.lines) + '\n'

def kernel_begin(a, name):
    a.raw('.globl %s' % name)
    a.raw('.p2align 8')
    a.raw('.type %s,@function' % name)
    a.label(name)

def kernel_desc(name, vgpr, sgpr=102, accum=None):
    if accum is None:
        accum = (vgpr + 3) // 4 * 4
    return '''.amdhsa_kernel %s
  .amdhsa_next_free_vgpr %d
  .amdhsa_next_free_sgpr %d
  .amdhsa_accum_offset %d
  .amdhsa_group_segment_fixed_size 0
  .amdhsa_kernarg_size 80
  .amdhsa_user_sgpr_count 2
  .amdhsa_user_sgpr_kernarg_segment_ptr 1
  .amdhsa_system_sgpr_workgroup_id_x 1
.end_amdhsa_kernel
''' % (name, vgpr, sgpr, accum)

def srd(a, d, b, nbytes):
    a('s_mov_b32 s%d, s%d' % (d, b))
    a('s_mov_b32 s%d, s%d' % (d + 1, b + 1))
    a('s_mov_b32 s%d, 0x%x' % (d + 2, nbytes))
    a('s_mov_b32 s%d, 0x00020000' % (d + 3))
```

```python
import re

class Ins:
    __slots__ = ('text', 'needs', 'kind', 'cost', 'wr', 'rd', 'op', 'cnt', 'srcC', 'srcAB')
    def __init__(self, text, needs=(), cost=None):
        self.text = text.strip()
        self.needs = [n for n in needs if n is not None]
        self.op = self.text.split()[0]
        self.kind = classify(self.op)
        self.cost = cost if cost is not None else (2 if self.op in TRANS or self.kind == 'vmem' else 1)
        self.cnt = None
        parse_regs(self)

TRANS = {'v_exp_f32', 'v_log_f32', 'v_rcp_f32', 'v_rsq_f32', 'v_sqrt_f32', 'v_sin_f32', 'v_cos_f32'}

def classify(op):
    if op.endswith(':'): return 'label'
    if op.startswith('v_mfma'): return 'mfma'
    if op.startswith('v_'): return 'valu'
    if op.startswith('ds_'): return 'ds'
    if op.startswith('buffer_') or op.startswith('global_'): return 'vmem'
    if op.startswith('s_load') or op.startswith('s_mem'): return 'smem'
    if op.startswith('s_'): return 'salu'
    return 'other'

_R = re.compile(r'^-?(?:abs\()?([vas])(?:\[(\d+):(\d+)\]|(\d+))\)?$')
def regset(tok):
    tok = tok.strip()
    if tok == 'vcc': return {('s', 106), ('s', 107)}
    if tok == 'exec': return {('s', 126), ('s', 127)}
    if tok == 'm0': return {('s', 124)}
    m = _R.match(tok)
    if not m: return set()
    c = m.group(1)
    if m.group(4) is not None: return {(c, int(m.group(4)))}
    return {(c, r) for r in range(int(m.group(2)), int(m.group(3)) + 1)}

def parse_regs(I):
    I.wr = set(); I.rd = set(); I.srcC = set(); I.srcAB = set()
    if I.kind in ('label', 'other'): return
    rest = I.text[len(I.op):].strip()
    ops = [o.strip() for o in rest.split(',')] if rest else []
    ops = [(o.split()[0] if o.split() else '') for o in ops]
    sets = [regset(o) for o in ops]
    op = I.op
    if I.kind == 'mfma':
        I.wr = sets[0]; I.srcAB = sets[1] | sets[2]; I.srcC = sets[3]; I.rd = I.srcAB | I.srcC
    elif I.kind == 'valu':
        if 'permlane' in op and 'swap' in op:
            I.wr = sets[0] | sets[1]; I.rd = sets[0] | sets[1]
        elif op.startswith('v_add_co') or op.startswith('v_addc_co') or op.startswith('v_sub_co'):
            I.wr = sets[0] | sets[1]; I.rd = set().union(*sets[2:])
        else:
            I.wr = sets[0]; I.rd = set().union(*sets[1:]) if len(sets) > 1 else set()
            if op.startswith('v_fmac') or op.startswith('v_dot2c'):
                I.rd |= sets[0]; I.srcC = sets[0]; I.srcAB = set().union(*sets[1:])
            if op.startswith('v_dot2_'):
                I.srcC = sets[3]; I.srcAB = sets[1] | sets[2]
    elif I.kind == 'ds':
        if op.startswith('ds_read') or op.startswith('ds_bpermute'):
            I.wr = sets[0]; I.rd = set().union(*sets[1:])
        else:
            I.rd = set().union(*sets)
    elif I.kind == 'vmem':
        toks = I.text.split()
        if toks[-1] == 'lds' or ' lds' in I.text:
            I.rd = set().union(*sets) | {('s', 124)}
        elif 'load' in op:
            I.wr = sets[0]; I.rd = set().union(*sets[1:])
        else:
            I.rd = set().union(*sets)
            I.srcC = sets[0]
    elif I.kind in ('salu', 'smem'):
        if op.startswith('s_cmp') or op.startswith('s_bitcmp') or op.startswith('s_cbranch') or op.startswith('s_branch') or op in ('s_waitcnt', 's_barrier', 's_nop', 's_endpgm', 's_sleep', 's_setprio'):
            I.rd = set().union(*sets) if sets else set()
        else:
            I.wr = sets[0] if sets else set(); I.rd = set().union(*sets[1:]) if len(sets) > 1 else set()

def states(I):
    if I.kind == 'label': return 0
    if I.op == 's_nop': return int(I.text.split()[1]) + 1
    return 1

def required(P, C):
    n = 0
    vw = lambda s: {r for r in s if r[0] in 'va'}
    sw = lambda s: {r for r in s if r[0] == 's'}
    if P.kind == 'valu':
        isdot = P.op.startswith('v_dot2')
        w = vw(P.wr)
        if w:
            if C.kind == 'mfma' and w & C.rd: n = max(n, 3 if isdot else 2)
            if C.kind == 'valu':
                if ('permlane' in C.op or '_dpp' in C.op) and w & C.rd: n = max(n, 2)
                if C.op.startswith('v_readlane') or C.op.startswith('v_readfirstlane'):
                    if w & C.rd: n = max(n, 1)
                if P.op in TRANS and C.op not in TRANS and w & C.rd: n = max(n, 1)
            if isdot:
                if C.op == P.op:
                    if w & C.srcAB: n = max(n, 3)
                elif w & (C.rd | C.wr): n = max(n, 3)
        s = sw(P.wr)
        if s:
            if C.kind == 'valu' and s & C.rd: n = max(n, 4 if C.op.startswith('v_readlane') else 2)
            if C.kind == 'valu' and C.op.startswith('v_cndmask') and ('s', 106) in s and 'vcc' in C.text: n = max(n, 2)
            if C.kind == 'vmem' and s & C.rd: n = max(n, 5)
            if C.kind == 'salu' and s & C.rd: n = max(n, 1)
    elif P.kind == 'mfma':
        big = '32x32' in P.op
        full = 12 if big else 8
        if C.kind == 'mfma':
            if P.wr & C.srcAB: n = max(n, full)
            if P.wr & C.srcC and P.wr != C.srcC: n = max(n, full - 2)
            if P.wr & C.wr and not (P.wr == C.srcC): n = max(n, full)
        elif C.kind in ('valu', 'ds', 'vmem'):
            if P.wr & (C.rd | C.wr): n = max(n, full)
            if C.kind == 'valu' and P.srcC & C.wr: n = max(n, 7 if big else 3)
    elif P.kind == 'salu':
        if ('s', 124) in P.wr and C.kind == 'vmem' and ('s', 124) in C.rd: n = max(n, 1)
    elif P.kind == 'vmem':
        if ('store_dwordx3' in P.op or 'store_dwordx4' in P.op) and P.srcC & C.wr:
            n = max(n, 2 if C.kind in ('valu', 'mfma') else 1)
    return n

class Prog:
    def __init__(self):
        self.out = []
        self.lg = 0; self.lg_done = 0
        self.vm = 0; self.vm_done = 0
        self.nnop = 0
    def _push(self, I):
        dist = 0; need = 0
        for P in reversed(self.out[-24:]):
            r = required(P, I)
            if r > dist: need = max(need, r - dist)
            dist += states(P)
            if dist >= 12: break
        if need:
            self.out.append(Ins('s_nop %d' % (need - 1))); self.nnop += need
        self.out.append(I)
    def wait_for(self, needs):
        lgn = None; vmn = None
        for t in needs:
            assert t.cnt is not None, 'dependency not yet emitted: ' + t.text
            if t.kind == 'ds':
                if t.cnt > self.lg_done:
                    n = min(15, self.lg - t.cnt); lgn = n if lgn is None else min(lgn, n)
            elif t.kind == 'vmem':
                if t.cnt > self.vm_done:
                    n = min(63, self.vm - t.cnt); vmn = n if vmn is None else min(vmn, n)
        if lgn is not None or vmn is not None:
            s = 's_waitcnt'
            if vmn is not None: s += ' vmcnt(%d)' % vmn; self.vm_done = self.vm - vmn
            if lgn is not None: s += ' lgkmcnt(%d)' % lgn; self.lg_done = self.lg - lgn
            self._push(Ins(s))
    def emit(self, I, needs=()):
        if isinstance(I, str):
            r = None
            for l in I.strip().split('\n'):
                if l.strip(): r = self.emit(Ins(l, needs))
            return r
        self.wait_for(I.needs)
        self._push(I)
        if I.kind == 'ds': self.lg += 1; I.cnt = self.lg
        elif I.kind == 'vmem': self.vm += 1; I.cnt = self.vm
        elif I.op == 's_waitcnt':
            m = re.search(r'vmcnt\((\d+)\)', I.text)
            if m: self.vm_done = max(self.vm_done, self.vm - int(m.group(1)))
            m = re.search(r'lgkmcnt\((\d+)\)', I.text)
            if m: self.lg_done = max(self.lg_done, self.lg - int(m.group(1)))
        return I
    __call__ = emit
    def label(self, name):
        self.out.append(Ins(name + ':'))
    def text(self):
        return '\n'.join((I.text if I.kind == 'label' else '    ' + I.text) for I in self.out) + '\n'
```

```python
import sys
sys.path.insert(0, 'gen')
from prog import *
from asmlib import kernel_desc, STAMP_OFF

HOFF = 0x0000000
POFF = 0x1200000
KOFF = 0x2400000
VOFF = 0x2800000
OOFF = 0x2C00000
ROFF = 0x2F00000
FOFF = 0x2F10000
WSB = 256 << 20
OOB = 0x10000000
NEG = 0xF149F2CA
SCALE = 0.2357022603955158 * 1.4426950408889634
import struct
def f2u(x): return struct.unpack('<I', struct.pack('<f', x))[0]

SLOT = 16384; NRING = 9
XB = 5 * SLOT
RT = 155648
VSCR = RT + 512
JUNK = VSCR + 2048

def vr(b, n=4): return 'v[%d:%d]' % (b, b + n - 1)
def ar(b, n=4): return 'a[%d:%d]' % (b, b + n - 1)
def sr(b, n=4): return 's[%d:%d]' % (b, b + n - 1)

class Frag:
    def __init__(s, base, imm0, imm1, acc, b, first, swap=False):
        s.base, s.imm, s.acc, s.b, s.first, s.swap = base, (imm0, imm1), acc, b, first, swap
class Slot:
    def __init__(s, groups, dma):
        s.groups, s.dma = groups, dma
        s.loads = None

def gen_k1(JX=4, stamps=False, prefetch=True):
    P = Prog()
    SX, SQ, SG, SU, SD, SW, SB, SL = 24, 28, 32, 36, 40, 44, 48, 52
    sI, sJ, sWv, sRG, sFH, sE, sPp = 56, 57, 58, 59, 60, 61, 62
    sT0, sT1, sT2 = 63, 64, 65
    sOFF = 66
    sW4096, sW3072 = 67, 68
    sBQ, sBP, sBL1, sBD, sBL2 = 69, 70, 71, 72, 73
    sHB, sPB = 74, 75
    sST = 76
    sKO = 77
    sVO = 82
    sKB = 87
    sFHM = 92
    sR1M = 94
    sONE2, sLO, sHI = 96, 97, 98
    sC = 99
    sNEED = 100; sNEED2 = 101
    sOB = 4; sOR = 5; sMYF = 6; sPF = 7; sDB = 8; sSP = 9; sHL = 10; sR2 = 11
    sTS = 12
    vL, vL16 = 1, 2
    vDQ = [3, 4, 5, 6]; vDP = [7, 8]; vDL1 = 9; vDD = [10, 11, 12, 13]; vDL2 = 14
    vTQ = [15, 16, 17, 18]; vTP = [19, 20]; vTL1 = 21; vTD = [22, 23]; vTL2 = 24
    vVW, vVR, vRL, vRV, vOR, vFL, vDG = 25, 26, 27, 28, 29, 30, 31
    XT, QF, FR, ACCA, ACCB, SP = 32, 64, 80, 112, 176, 240
    nst = [0]
    def stamp():
        if stamps:
            P('s_memrealtime %s' % sr(sTS + 2 * nst[0], 2)); nst[0] += 1
    def breg(pos, mt):
        i = pos * 4 + mt
        return ar(4 * i) if i < 64 else vr(XT + 4 * (i - 64))

    P('s_cmp_ge_u32 s2, 256')
    P('s_cbranch_scc1 K1_end')
    P('s_load_dwordx16 s[4:19], s[0:1], 0')
    P('s_load_dwordx4 s[20:23], s[0:1], 64')
    if stamps: P('s_memrealtime s[90:91]')
    P('v_and_b32 v%d, 63, v0' % vL)
    P('v_lshrrev_b32 v80, 6, v0')
    P('v_readfirstlane_b32 s%d, v80' % sWv)
    ng = 16 // JX
    lg = lambda x: x.bit_length() - 1
    P('s_and_b32 s%d, s2, 7' % sT0)
    P('s_lshr_b32 s%d, s2, 3' % sT1)
    P('s_and_b32 s%d, s%d, %d' % (sJ, sT0, ng - 1))
    P('s_lshl_b32 s%d, s%d, %d' % (sJ, sJ, lg(JX)))
    P('s_and_b32 s%d, s%d, %d' % (sT2, sT1, JX - 1))
    P('s_or_b32 s%d, s%d, s%d' % (sJ, sJ, sT2))
    P('s_lshr_b32 s%d, s%d, %d' % (sI, sT0, lg(ng)))
    P('s_lshl_b32 s%d, s%d, %d' % (sI, sI, lg(32 // JX)))
    P('s_lshr_b32 s%d, s%d, %d' % (sT2, sT1, lg(JX)))
    P('s_or_b32 s%d, s%d, s%d' % (sI, sI, sT2))
    P('s_and_b32 s%d, s%d, 1' % (sRG, sWv))
    P('s_lshr_b32 s%d, s%d, 1' % (sFH, sWv))
    P('s_and_b32 s%d, s%d, 1' % (sE, sJ))
    P('s_lshr_b32 s%d, s%d, 1' % (sPp, sJ))
    P('v_lshrrev_b32 v82, 3, v%d' % vL)
    P('v_and_b32 v83, 7, v%d' % vL)
    P('v_mul_u32_u24 v81, 1152, v82')
    P('v_lshl_add_u32 v81, v83, 4, v81')
    P('s_lshl_b32 s%d, s%d, 3' % (sT0, sI))
    P('s_lshl_b32 s%d, s%d, 2' % (sT1, sRG))
    P('s_add_u32 s%d, s%d, s%d' % (sT0, sT0, sT1))
    P('s_add_u32 s%d, s%d, s%d' % (sT1, sT0, sFH))
    P('s_mul_i32 s%d, s%d, %d' % (sT1, sT1, 16 * 1152))
    P('s_waitcnt lgkmcnt(0)')
    def srd(d, b, nbytes, shift=0):
        if shift:
            P('s_sub_u32 s%d, s%d, %d' % (d, b, shift))
            P('s_subb_u32 s%d, s%d, 0' % (d + 1, b + 1))
        else:
            P('s_mov_b32 s%d, s%d' % (d, b))
            P('s_mov_b32 s%d, s%d' % (d + 1, b + 1))
        P('s_mov_b32 s%d, 0x%x' % (d + 2, nbytes + shift))
        P('s_mov_b32 s%d, 0x00020000' % (d + 3))
    srd(SX, 4, 2048 * 1152)
    XR = 112
    xl = []
    for blk in range(4):
        rho, bb = divmod(blk, 2)
        P('s_add_u32 s%d, s%d, %d' % (sOFF, sT1, (32 * rho + 8 * bb) * 1152))
        xl.append([P('buffer_load_dwordx4 %s, v81, %s, s%d offen offset:%d' % (vr(XR + 36 * blk + 4 * l), sr(SX), sOFF, 128 * l)) for l in range(9)])
    srd(SQ, 6, 576 * 3456)
    P('v_lshrrev_b32 v84, 4, v%d' % vL)
    P('v_and_b32 v85, 15, v%d' % vL)
    for hh in range(2):
        P('v_lshlrev_b32 v86, 1, v84')
        P('v_sub_u32 v86, v85, v86')
        if hh: P('v_subrev_u32 v86, 8, v86')
        P('v_and_b32 v86, 15, v86')
        P('v_min_u32 v86, 14, v86')
        P('v_lshlrev_b32 v87, 4, v86')
        P('v_cmp_le_u32 vcc, 5, v86')
        P('v_add_u32 v88, %d, v87' % (1152 - 80))
        P('v_cndmask_b32 v87, v87, v88, vcc')
        P('v_cmp_le_u32 vcc, 10, v86')
        P('v_add_u32 v88, %d, v87' % (1152 - 88))
        P('v_cndmask_b32 v87, v87, v88, vcc')
        P('v_mul_u32_u24 v88, 3456, v84')
        P('v_add_u32 v87, v87, v88')
        for t in (2 * hh, 2 * hh + 1):
            P('v_add_u32 v%d, %d, v87' % (vDQ[t], t * (4 * 3456 - 1024)))
    P('s_lshl_b32 s%d, s%d, 12' % (sW4096, sWv))
    P('s_mul_i32 s%d, s%d, 3072' % (sW3072, sWv))
    P('s_mul_i32 s%d, s%d, 72' % (sBQ, sJ))
    P('s_mul_i32 s%d, s%d, %d' % (sT2, sWv, 16 * 3456))
    P('s_add_u32 s%d, s%d, s%d' % (sBQ, sBQ, sT2))

    slots = []
    def dma4(srds, voffs, sbase, add):
        def f(rp):
            g = [[Ins('s_add_u32 s%d, s%d, %d' % (sOFF, sbase, add)), Ins('s_add_u32 m0, s%d, %d' % (sW4096, rp * SLOT))]]
            for t in range(4):
                g.append([Ins('buffer_load_dwordx4 v%d, %s, s%d offen offset:%d lds' % (voffs[t], sr(srds[t]), sOFF, 1024 * t))])
            return g
        return f
    def dma3(srd_, voff, sbase, add, step):
        def f(rp):
            g = []
            for t in range(3):
                pre = [Ins('s_add_u32 s%d, s%d, %d' % (sOFF, sbase, add + t * (step - 1024)))]
                if t == 0: pre.append(Ins('s_add_u32 m0, s%d, %d' % (sW3072, rp * SLOT)))
                g.append(pre)
                g.append([Ins('buffer_load_dwordx4 v%d, %s, s%d offen offset:%d lds' % (voff, sr(srd_), sOFF, 1024 * t))])
            return g
        return f
    def accf(base, tile): return lambda mt: base + (tile * 4 + mt) * 4
    def bf(pos): return lambda mt: breg(pos, mt)
    for s in range(9):
        gs = [[Frag(vTQ[t], ks * 8192, ks * 8192 + 1024, accf(ACCA, t), bf(2 * s + ks), s == 0 and ks == 0, swap=(t == 2)) for ks in range(2)] for t in range(4)]
        slots.append(Slot(gs, dma4([SQ] * 4, vDQ, sBQ, s * 64 * 3456)))
    for q in range(4):
        acc = [ACCB, ACCA][q & 1]
        for s in range(9):
            gs = [[Frag(vTP[ft], ks * 8192 + m * 2048, ks * 8192 + m * 2048 + 512, accf(acc, 2 * m + ft), bf(2 * s + ks), s == 0 and ks == 0) for ks in range(2)] for m in range(2) for ft in range(2)]
            slots.append(Slot(gs, dma4([SG, SG, SU, SU], [vDP[0], vDP[1], vDP[0], vDP[1]], sBP, q * 128 + s * 64 * 9216)))
    for s in range(6):
        gs = [[Frag(vTL1, m * 6144 + ks * 2048, m * 6144 + ks * 2048 + 256, accf(ACCB, m), bf(3 * s + ks), s == 0 and ks == 0) for ks in range(3)] for m in range(2)]
        slots.append(Slot(gs, dma3(SL, vDL1, sBL1, s * 96 * 9216, 16 * 9216)))
    NSEG1 = len(slots)
    early = [0, 1, 2, 3, 4, 5, 10, 11, 12, 13, 14, 15]
    late = [6, 7, 16, 17, 8, 9]
    hpos = {}
    for n, k in enumerate(early): hpos[k] = 5 + n
    for n, k in enumerate(late): hpos[k] = [17, 0, 1, 2, 3, 4][n]
    lorder = [0, 1, 2, 5, 6, 7, 3, 8, 4]
    for q in range(2):
        acc = [ACCA, ACCB][q]
        for n, ln in enumerate(lorder):
            gs = [[Frag(vTD[ft], ks * 8192 + c * 2048, ks * 8192 + c * 2048 + 4096, accf(acc, 2 * c + ft), bf(hpos[2 * ln + ks]), n == 0 and ks == 0) for ks in range(2)] for c in range(2) for ft in range(2)]
            slots.append(Slot(gs, dma4([SD] * 4, vDD, sBD, q * 256 + ln * 64 * 1152)))
    for s in range(3):
        gs = [[Frag(vTL2, ks * 2048, ks * 2048 + 1024, accf(ACCA, 0), bf(hpos[6 * s + ks]), s == 0 and ks == 0) for ks in range(3 * hg, 3 * hg + 3)] for hg in range(2)]
        slots.append(Slot(gs, dma3(SD, vDL2, sBL2, s * 192 * 1152, 16 * 1152)))
    NS = len(slots)
    assert NS == 72
    def dma_groups(n):
        g = slots[n].dma(n % NRING)
        slots[n].loads = [x for grp in g for x in grp if x.kind == 'vmem']
        return g
    def dma_now(n):
        for grp in dma_groups(n):
            for x in grp: P(x)
    for n in range(5): dma_now(n)

    srd(SG, 12, 576 * 9216)
    srd(SU, 14, 576 * 9216, shift=2048)
    srd(SD, 16, 4608 * 1152, shift=2048)
    srd(SW, 22, WSB)
    srd(SB, 20, 256)
    P('s_cmp_ge_u32 s%d, 2' % sWv)
    P('s_cselect_b32 s%d, s14, s12' % SL)
    P('s_cselect_b32 s%d, s15, s13' % (SL + 1))
    P('s_mov_b32 s%d, 0x%x' % (SL + 2, 576 * 9216))
    P('s_mov_b32 s%d, 0x00020000' % (SL + 3))
    if stamps:
        P('s_mov_b32 s%d, s90' % sTS); P('s_mov_b32 s%d, s91' % (sTS + 1)); nst[0] = 1
    P('v_lshlrev_b32 v%d, 4, v%d' % (vL16, vL))
    P('v_mov_b32 v86, 0x%x' % OOB)
    P('v_cmp_eq_u32 vcc, 0, v0')
    P('v_cndmask_b32 v%d, v86, 0, vcc' % vFL)
    P('s_lshl_b32 s%d, s%d, 4' % (sT2, sI))
    P('s_add_u32 s%d, s%d, s%d' % (sT2, sT2, sJ))
    P('s_lshl_b32 s%d, s%d, 7' % (sMYF, sT2))
    P('s_add_u32 s%d, s%d, 0x%x' % (sMYF, sMYF, FOFF))
    P('s_xor_b32 s%d, s%d, 128' % (sPF, sMYF))
    P('v_mov_b32 v87, 0')
    freset = P('buffer_store_dword v87, v%d, %s, s%d offen sc1' % (vFL, sr(SW), sMYF))
    P('s_mul_i32 s%d, s%d, 640' % (sT2, sE))
    P('s_mul_i32 s%d, s%d, 1152' % (sBP, sPp))
    P('s_add_u32 s%d, s%d, s%d' % (sBP, sBP, sT2))
    P('s_mul_i32 s%d, s%d, %d' % (sOFF, sWv, 16 * 9216))
    P('s_add_u32 s%d, s%d, s%d' % (sBP, sBP, sOFF))
    P('s_mul_i32 s%d, s%d, %d' % (sBD, sPp, 576 * 1152))
    P('s_add_u32 s%d, s%d, s%d' % (sBD, sBD, sT2))
    P('s_mul_i32 s%d, s%d, %d' % (sOFF, sWv, 16 * 1152))
    P('s_add_u32 s%d, s%d, s%d' % (sBD, sBD, sOFF))
    P('s_lshl_b32 s%d, s%d, 6' % (sT2, sE))
    P('s_add_u32 s%d, s%d, 512' % (sT2, sT2))
    P('s_mul_i32 s%d, s%d, 1152' % (sBL1, sPp))
    P('s_add_u32 s%d, s%d, s%d' % (sBL1, sBL1, sT2))
    P('s_mul_i32 s%d, s%d, %d' % (sOFF, sRG, 48 * 9216))
    P('s_add_u32 s%d, s%d, s%d' % (sBL1, sBL1, sOFF))
    P('s_mul_i32 s%d, s%d, %d' % (sBL2, sPp, 576 * 1152))
    P('s_add_u32 s%d, s%d, s%d' % (sBL2, sBL2, sT2))
    P('s_mul_i32 s%d, s%d, %d' % (sOFF, sWv, 48 * 1152))
    P('s_add_u32 s%d, s%d, s%d' % (sBL2, sBL2, sOFF))
    P('s_add_u32 s%d, s%d, 2048' % (sBL2, sBL2))
    P('s_lshl_b32 s%d, s%d, 3' % (sT2, sI))
    P('s_add_u32 s%d, s%d, s%d' % (sT2, sT2, sPp))
    P('s_mul_i32 s%d, s%d, %d' % (sHL, sT2, 18 * 8192))
    P('s_lshl_b32 s%d, s%d, 12' % (sT2, sRG))
    P('s_add_u32 s%d, s%d, s%d' % (sHL, sHL, sT2))
    P('s_mul_i32 s%d, s%d, 10' % (sT2, sE))
    P('s_add_u32 s%d, s%d, s%d' % (sT2, sT2, sFH))
    P('s_lshl_b32 s%d, s%d, 13' % (sT2, sT2))
    P('s_add_u32 s%d, s%d, s%d' % (sHB, sHL, sT2))
    P('s_add_u32 s%d, s%d, 8' % (sT2, sE))
    P('s_lshl_b32 s%d, s%d, 13' % (sT2, sT2))
    P('s_add_u32 s%d, s%d, s%d' % (sPB, sHL, sT2))
    P('s_lshl_b32 s%d, s%d, 3' % (sT2, sFH))
    P('s_add_u32 s%d, s%d, s%d' % (sPB, sPB, sT2))
    P('s_lshl_b32 s%d, s%d, 1' % (sT2, sJ))
    P('s_add_u32 s%d, s%d, s%d' % (sT2, sT2, sFH))
    P('s_lshl_b32 s%d, s%d, 7' % (sT2, sT2))
    P('s_add_u32 s%d, s%d, s%d' % (sT2, sT2, sT0))
    P('s_lshl_b32 s%d, s%d, 10' % (sT2, sT2))
    for a_ in range(5):
        P('s_add_u32 s%d, s%d, 0x%x' % (sKO + a_, sT2, KOFF + (4 * a_ - 16) * 1024))
        P('s_add_u32 s%d, s%d, 0x%x' % (sVO + a_, sT2, VOFF + (4 * a_ - 16) * 1024))
        if a_ < 4:
            P('s_cmp_ge_u32 s%d, %d' % (sT0, 16 - 4 * a_))
            P('s_cselect_b32 s%d, s%d, 0x%x' % (sKO + a_, sKO + a_, OOB))
            P('s_cselect_b32 s%d, s%d, 0x%x' % (sVO + a_, sVO + a_, OOB))
            P('s_cselect_b32 s%d, 0, 0xf149' % (sKB + a_))
    P('s_mul_i32 s%d, s%d, %d' % (sOB, sT0, 18432))
    P('s_add_u32 s%d, s%d, 0x%x' % (sOB, sOB, OOFF))
    P('s_lshr_b32 s%d, s%d, 3' % (sT2, sJ))
    P('s_add_u32 s%d, s%d, 16' % (sT2, sT2))
    P('s_lshl_b32 s%d, s%d, 10' % (sT2, sT2))
    P('s_add_u32 s%d, s%d, s%d' % (sOR, sOB, sT2))
    P('s_and_b32 s%d, s%d, 3' % (sT2, sJ))
    P('s_lshl_b32 s%d, s%d, 8' % (sT2, sT2))
    P('s_add_u32 s%d, s%d, s%d' % (sOR, sOR, sT2))
    P('s_and_b32 s%d, s%d, 4' % (sT2, sJ))
    P('s_lshl_b32 s%d, s%d, 1' % (sT2, sT2))
    P('s_add_u32 s%d, s%d, s%d' % (sOR, sOR, sT2))
    P('s_lshl_b32 s%d, s%d, 2' % (sT2, sFH))
    P('s_add_u32 s%d, s%d, s%d' % (sOR, sOR, sT2))
    P('s_lshl_b32 s%d, s%d, 10' % (sT2, sJ))
    P('s_add_u32 s%d, s%d, s%d' % (sOB, sOB, sT2))
    P('s_lshl_b32 s%d, s%d, 3' % (sT2, sFH))
    P('s_add_u32 s%d, s%d, s%d' % (sOB, sOB, sT2))
    P('s_lshl_b32 s%d, s%d, 9' % (sR2, sI))
    P('s_add_u32 s%d, s%d, 0x%x' % (sR2, sR2, ROFF - RT))
    P('s_cmp_eq_u32 s%d, 0' % sJ)
    P('s_cselect_b32 s%d, s%d, 0x%x' % (sR2, sR2, OOB))
    P('s_cmp_eq_u32 s%d, 1' % sFH)
    P('s_cselect_b64 %s, -1, 0' % sr(sFHM, 2))
    P('s_mov_b32 s%d, 0xffff0000' % sR1M)
    P('s_mov_b32 s%d, 0' % (sR1M + 1))
    P('s_mov_b32 s%d, 0x3f803f80' % sONE2)
    P('s_mov_b32 s%d, 0x00003f80' % sLO)
    P('s_mov_b32 s%d, 0x3f800000' % sHI)
    P('s_mov_b32 s%d, 0x%x' % (sC, f2u(SCALE)))
    P('s_lshl_b32 s%d, 3, s%d' % (sT2, sI))
    P('s_lshr_b32 s%d, s%d, 2' % (sT2, sT2))
    P('s_lshl_b32 s%d, 1, s%d' % (sOFF, sI))
    P('s_cmp_eq_u32 s%d, 0' % sE)
    P('s_cselect_b32 s%d, s%d, s%d' % (sNEED, sT2, sOFF))
    P('s_cselect_b32 s%d, s%d, s%d' % (sNEED2, sOFF, sT2))
    P('s_lshl_b32 s%d, s%d, 2' % (sDB, sJ))
    P('v_lshlrev_b32 v86, 1, v82')
    P('v_and_b32 v86, 4, v86')
    P('v_xor_b32 v86, v83, v86')
    P('v_mul_u32_u24 v87, 9216, v82')
    P('v_lshl_add_u32 v%d, v86, 4, v87' % vDP[0])
    P('v_xor_b32 v86, 2, v86')
    P('v_lshl_add_u32 v%d, v86, 4, v87' % vDP[1])
    P('v_add_u32 v%d, %d, v%d' % (vDP[1], 8 * 9216 - 1024, vDP[1]))
    P('v_and_b32 v86, 6, v82')
    P('v_xor_b32 v86, v83, v86')
    P('v_mul_u32_u24 v87, 1152, v82')
    P('v_lshl_add_u32 v87, v86, 4, v87')
    for t in range(4):
        P('v_add_u32 v%d, %d, v87' % (vDD[t], (t & 1) * (8 * 1152 - 1024) + (t >> 1) * (128 - 2048) + 2048))
    P('v_lshrrev_b32 v86, 2, v%d' % vL)
    P('v_and_b32 v87, 3, v%d' % vL)
    P('v_and_b32 v88, 2, v84')
    P('v_xor_b32 v88, v87, v88')
    P('v_mul_u32_u24 v89, 9216, v86')
    P('v_lshl_add_u32 v%d, v88, 4, v89' % vDL1)
    P('v_and_b32 v88, 1, v84')
    P('v_lshlrev_b32 v88, 1, v88')
    P('v_xor_b32 v88, v87, v88')
    P('v_mul_u32_u24 v89, 1152, v86')
    P('v_lshl_add_u32 v%d, v88, 4, v89' % vDL2)
    P('v_lshrrev_b32 v86, 2, v85')
    P('v_and_b32 v88, 1, v84')
    P('v_lshrrev_b32 v89, 1, v84')
    P('v_lshl_add_u32 v90, v84, 3, v86')
    P('v_lshlrev_b32 v90, 8, v90')
    P('v_lshl_add_u32 v91, v88, 2, v86')
    P('v_lshlrev_b32 v91, 5, v91')
    P('s_mul_i32 s%d, s%d, 40' % (sT2, sFH))
    P('v_lshl_add_u32 v92, v87, 3, v91')
    P('v_add_u32 v92, s%d, v92' % sT2)
    for t, cb in enumerate((0, 80, 168)):
        P('v_add_u32 v93, %d, v92' % cb)
        P('v_and_b32 v93, 255, v93')
        P('v_add_u32 v%d, v93, v90' % vTQ[t])
    P('s_mov_b32 s%d, 0x%x' % (sT2, 32 | 112 << 8 | 200 << 16 | 24 << 24))
    P('v_lshlrev_b32 v93, 3, v87')
    P('v_lshrrev_b32 v93, v93, s%d' % sT2)
    P('v_add_u32 v93, v93, v91')
    P('v_and_b32 v93, 255, v93')
    P('v_add_u32 v%d, v93, v90' % vTQ[3])
    P('v_lshlrev_b32 v90, 12, v89')
    P('v_lshl_add_u32 v90, v88, 10, v90')
    P('v_lshl_add_u32 v90, v86, 7, v90')
    P('v_lshrrev_b32 v91, 1, v86')
    P('v_xor_b32 v91, s%d, v91' % sFH)
    P('v_lshl_add_u32 v90, v91, 6, v90')
    P('v_lshl_add_u32 v90, v88, 5, v90')
    P('v_lshl_add_u32 v%d, v87, 3, v90' % vTP[0])
    P('v_xor_b32 v%d, 32, v%d' % (vTP[1], vTP[0]))
    P('v_lshl_add_u32 v90, v84, 3, v86')
    P('v_lshlrev_b32 v90, 6, v90')
    P('v_xor_b32 v91, s%d, v88' % sFH)
    P('v_lshl_add_u32 v90, v91, 5, v90')
    P('v_lshl_add_u32 v%d, v87, 3, v90' % vTL1)
    P('v_lshl_add_u32 v90, v84, 2, v86')
    P('v_lshlrev_b32 v90, 6, v90')
    P('v_lshl_add_u32 v90, v91, 5, v90')
    P('v_lshl_add_u32 v%d, v87, 3, v90' % vTL2)
    P('v_lshl_add_u32 v90, v88, 2, v86')
    P('v_lshrrev_b32 v91, 1, v90')
    P('s_lshl_b32 s%d, s%d, 1' % (sT2, sFH))
    P('v_xor_b32 v91, s%d, v91' % sT2)
    P('v_lshlrev_b32 v90, 7, v90')
    P('v_lshl_add_u32 v90, v89, 10, v90')
    P('v_lshl_add_u32 v90, v91, 5, v90')
    P('v_lshl_add_u32 v%d, v87, 3, v90' % vTD[0])
    P('v_xor_b32 v%d, 32, v%d' % (vTD[1], vTD[0]))
    P('s_lshl_b32 s%d, s%d, 9' % (sT2, sWv))
    P('s_add_u32 s%d, s%d, %d' % (sT2, sT2, VSCR))
    P('v_lshlrev_b32 v90, 1, v85')
    P('v_add_u32 v90, s%d, v90' % sT2)
    P('v_lshlrev_b32 v91, 1, v%d' % vL)
    P('v_add_u32 v91, %d, v91' % JUNK)
    P('v_cmp_eq_u32 vcc, 3, v84')
    P('v_cndmask_b32 v%d, v91, v90, vcc' % vVW)
    P('v_mov_b32 v90, 3')
    P('v_cmp_eq_u32 vcc, 2, v87')
    P('v_cndmask_b32 v90, v90, 2, vcc')
    P('v_cmp_gt_u32 vcc, 2, v85')
    P('v_cndmask_b32 v90, v90, v85, vcc')
    P('v_lshlrev_b32 v90, 7, v90')
    P('v_lshl_add_u32 v90, v84, 3, v90')
    P('v_add_u32 v%d, s%d, v90' % (vVR, sT2))
    P('v_lshlrev_b32 v90, 2, v%d' % vL)
    P('v_add_u32 v90, s%d, v90' % sT2)
    P('v_mov_b32 v91, 0x3f803f80')
    P('v_cmp_gt_u32 vcc, 32, v%d' % vL)
    P('v_cndmask_b32 v91, 0, v91, vcc')
    P('ds_write_b32 v90, v91 offset:256')
    P('s_lshl_b32 s%d, s%d, 8' % (sT2, sRG))
    P('s_add_u32 s%d, s%d, %d' % (sT2, sT2, RT))
    P('v_lshlrev_b32 v90, 2, v85')
    P('v_add_u32 v%d, s%d, v90' % (vRL, sT2))
    P('v_lshlrev_b32 v90, 4, v84')
    P('v_add_u32 v%d, s%d, v90' % (vRV, sT2))
    P('v_mov_b32 v91, 0x%x' % OOB)
    P('v_cmp_eq_u32 vcc, 0, v84')
    P('v_cndmask_b32 v%d, v91, v%d, vcc' % (vOR, vL16))
    P('v_lshlrev_b32 v90, 2, v84')
    P('v_sub_u32 v%d, v90, v85' % vDG)
    wslot = sT1
    P('s_lshl_b32 s%d, s%d, 1' % (wslot, sRG))
    P('s_mul_i32 s%d, s%d, 18432' % (sOFF, wslot))
    P('s_add_u32 s%d, s%d, %d' % (sOFF, sOFF, XB))
    P('v_xor_b32 v90, v85, v84')
    P('v_lshlrev_b32 v90, 4, v90')
    P('v_lshl_add_u32 v90, v84, 8, v90')
    P('v_add_u32 v65, s%d, v90' % sOFF)
    P('v_xor_b32 v66, 64, v65')
    P('s_mul_i32 s%d, s%d, 18432' % (wslot, sFH))
    P('s_add_u32 s%d, s%d, s%d' % (sOFF, sOFF, wslot))
    P('v_xor_b32 v90, v82, v83')
    P('v_lshlrev_b32 v90, 4, v90')
    P('v_lshl_add_u32 v90, v83, 8, v90')
    P('v_add_u32 v64, s%d, v90' % sOFF)
    P('s_lshl_b32 s%d, s%d, 6' % (wslot, sFH))
    P('s_add_u32 s%d, s%d, s%d' % (sT2, sT2, wslot))
    P('v_lshlrev_b32 v90, 2, v82')
    P('v_add_u32 v67, s%d, v90' % sT2)

    def reduce8(r):
        P('v_add_f32_dpp v%d, v%d, v%d quad_perm:[1,0,3,2] row_mask:0xf bank_mask:0xf' % (r, r, r))
        P('v_add_f32_dpp v%d, v%d, v%d quad_perm:[2,3,0,1] row_mask:0xf bank_mask:0xf' % (r, r, r))
        P('v_add_f32_dpp v%d, v%d, v%d row_half_mirror row_mask:0xf bank_mask:0xf' % (r, r, r))
    def ln_block(blk, before_write=None):
        rho, bb = divmod(blk, 2)
        X = XR + 36 * blk
        for t in range(4): P('v_mov_b32 v%d, 0' % (68 + t))
        for t in range(4): P('v_mov_b32 v%d, 0' % (72 + t))
        for n in range(36):
            P(Ins('v_dot2c_f32_bf16 v%d, s%d, v%d' % (68 + n % 4, sONE2, X + n), needs=[xl[blk][n // 4]]))
        P('v_add_f32 v68, v68, v69')
        P('v_add_f32 v70, v70, v71')
        P('v_add_f32 v68, v68, v70')
        reduce8(68)
        P('v_mul_f32 v68, 0x%x, v68' % f2u(-1.0 / 576))
        wr = []
        LAG = 2
        for n in range(36 + LAG + 1):
            if n < 36:
                t = 80 + 2 * (n % 8)
                P('v_dot2_f32_bf16 v%d, v%d, s%d, v68' % (t, X + n, sLO))
                P('v_dot2_f32_bf16 v%d, v%d, s%d, v68' % (t + 1, X + n, sHI))
            m = n - LAG
            if 0 <= m < 36:
                t = 80 + 2 * (m % 8)
                P('v_cvt_pk_bf16_f32 v%d, v%d, v%d' % (X + m, t, t + 1))
            m = n - LAG - 1
            if 0 <= m < 36:
                P('v_dot2c_f32_bf16 v%d, v%d, v%d' % (72 + m % 4, X + m, X + m))
                if m % 4 == 3 and before_write is None:
                    wr.append(P('ds_write_b128 v64, %s offset:%d' % (vr(X + m - 3), (m // 4) * 2048 + bb * 128)))
        if before_write is not None:
            before_write()
            for l in range(9):
                wr.append(P('ds_write_b128 v64, %s offset:%d' % (vr(X + 4 * l), l * 2048 + bb * 128)))
        P('v_add_f32 v72, v72, v73')
        P('v_add_f32 v74, v74, v75')
        P('v_add_f32 v72, v72, v74')
        reduce8(72)
        P('v_mov_b32 v73, 0x%x' % f2u(1e-5))
        P('v_fmac_f32 v73, 0x%x, v72' % f2u(1.0 / 576))
        P('v_rsq_f32 v74, v73')
        P('v_rcp_f32 v75, v73')
        wr.append(P('ds_write_b32 v67, v74 offset:%d' % (rho * 128 + bb * 32)))
        P('buffer_store_dword v75, v67, %s, s%d offen offset:%d sc1' % (sr(SW), sR2, rho * 128 + bb * 32))
        return wr
    def xn_reads(rho):
        rs = []
        for ks in range(18):
            for t in range(2):
                rs.append(P('ds_read_b128 %s, v%d offset:%d' % (breg(ks, 2 * rho + t), 65 + (ks & 1), t * 18432 + ks * 1024)))
        return rs
    w0 = ln_block(0); w1 = ln_block(1)
    stamp()
    P(Ins('s_barrier', needs=w0 + w1))
    r0 = xn_reads(0)
    w2 = ln_block(2, before_write=lambda: P(Ins('s_barrier', needs=r0)))
    w3 = ln_block(3)
    P(Ins('s_barrier', needs=w2 + w3))
    r1 = xn_reads(1)
    P(Ins('s_barrier', needs=r1 + slots[0].loads))
    for n in range(5, 9): dma_now(n)
    stamp()

    window = {}
    AH = 4
    def make_reads(fr, sidx, fi):
        rp = sidx % NRING
        w, o = divmod(rp * SLOT, 65536)
        out = []
        if window.get(fr.base, 0) != w:
            d = (w - window.get(fr.base, 0)) * 65536
            out.append(Ins('v_add_u32 v%d, 0x%x, v%d' % (fr.base, d & 0xffffffff, fr.base)))
            window[fr.base] = w
        f = FR + 4 * (fi % 8)
        fr.reg = f
        fr.rd = [Ins('ds_read_b64_tr_b16 %s, v%d offset:%d' % (vr(f + 2 * h, 2), fr.base, o + fr.imm[h])) for h in range(2)]
        return [out + [fr.rd[0]], [fr.rd[1]]]
    def segment(s0, s1, fillers, bar_extra, first_barrier_done=True, extra_first=()):
        frs = []; groups = []
        for s in range(s0, s1):
            for g in slots[s].groups:
                groups.append((s, len(frs), g))
                for f in g: frs.append((s, f))
        nm = sum(4 * len(g) for _, _, g in groups)
        gaps = [[] for _ in range(nm)]; used = [0] * nm
        mf = []
        issued = 0
        slot_start = {}
        def put(k, items, cost=None):
            gaps[k] += items; used[k] += sum(x.cost for x in items) if cost is None else cost
        while issued < AH:
            s, f = frs[issued]
            for it in make_reads(f, s, issued):
                for x in it: P(x)
            issued += 1
        pend = []
        for (s, f0, g) in groups:
            a = len(mf)
            slot_start.setdefault(s, a)
            n = 4 * len(g)
            for mt in range(4):
                for f in g:
                    mf.append((f, mt))
            if a > 0: used[a - 1] += 1
            items = []
            while issued < min(len(frs), f0 + len(g) + AH):
                s2, f2 = frs[issued]
                r = make_reads(f2, s2, issued)
                if frs[issued - 1][0] != s2:
                    r[0] = ['BAR', s2] + r[0]
                items += r
                issued += 1
            for q, it in enumerate(items):
                k = a + q * n // len(items)
                if it[0] == 'BAR':
                    s2 = it[1]
                    ex = bar_extra.get(s2, ((), ()))
                    b = Ins('s_barrier'); b.needs = ('LAZY', s2, ex[0])
                    put(k, [b], 2); pend.append((k, s2, ex[1]))
                    it = it[2:]
                put(k, it)
        kk = 0
        for (k, s2, post) in pend:
            n = s2 + 7
            kk = max(kk, min(nm - 1, k + 1))
            seq = []
            if n < NS and slots[n].loads is None: seq = dma_groups(n)
            seq = seq + [[x] for x in post]
            for grp in seq:
                c = sum(x.cost for x in grp)
                while kk < nm - 1 and used[kk] + c > 2: kk += 1
                put(kk, grp)
                kk = min(nm - 1, kk + (4 if grp[0].kind == 'vmem' else 1))
        left = []
        for (s, off, lst) in fillers:
            kk = slot_start[s] + off
            for it in lst:
                if isinstance(it, tuple):
                    kk = max(kk, slot_start[it[1]] + it[2]); continue
                if not isinstance(it, list): it = [it]
                c = min(2, sum(x.cost for x in it))
                while kk < nm and used[kk] + c > 2: kk += 1
                if kk >= nm: left += it
                else: put(kk, it)
        for k, (f, mt) in enumerate(mf):
            c = f.acc(mt)
            A, B = vr(f.reg), f.b(mt)
            if f.swap: A, B = B, A
            nd = list(f.rd) + (list(extra_first(f, mt)) if extra_first else [])
            P(Ins('v_mfma_f32_16x16x32_bf16 %s, %s, %s, %s' % (vr(c), A, B, '0' if f.first else vr(c)), needs=nd))
            for x in gaps[k]:
                if x.needs and x.needs[0] == 'LAZY':
                    x.needs = list(slots[x.needs[1]].loads) + list(x.needs[2])
                if x.kind == 'label': P.out.append(x)
                else: P(x)
        return left

    def mul(d, a_, b_): return Ins('v_mul_f32 v%d, v%d, v%d' % (d, a_, b_))
    def cvt(d, a_, b_): return Ins('v_cvt_pk_bf16_f32 v%d, v%d, v%d' % (d, a_, b_))
    kv_stores = []
    def qkv_epi():
        L = []
        rl = [Ins('ds_read_b32 v%d, v%d offset:%d' % (SP + mt, vRL, 64 * mt)) for mt in range(4)]
        L += rl
        rv = [Ins('ds_read_b128 %s, v%d offset:%d' % (vr(SP + 4 + 4 * (mt & 1)), vRV, 64 * mt)) for mt in range(4)]
        L += rv[:2]
        vw = []
        for mt in range(4):
            q = ACCA + mt * 4; k = ACCA + (4 + mt) * 4; v = ACCA + (8 + mt) * 4; r = ACCA + (12 + mt) * 4
            ve = ACCA + (8 + (mt & ~1)) * 4 + 2 * (mt & 1)
            R = SP + mt
            x = mul(q, q, R); x.needs = [rl[mt]]; L.append(x)
            L += [mul(q + t, q + t, R) for t in (1, 2, 3)]
            L += [cvt(QF + 4 * mt, q, q + 1), cvt(QF + 4 * mt + 1, q + 2, q + 3)]
            L += [mul(k + t, k + t, R) for t in range(4)]
            L += [cvt(k, k, k + 1), cvt(k + 1, k + 2, k + 3)]
            L += [Ins('v_cndmask_b32 v%d, v%d, v%d, %s' % (r + t, r + t, r + 2 + t, sr(sFHM, 2))) for t in range(2)]
            L += [mul(r + t, r + t, R) for t in range(2)]
            L += [cvt(k + 2, r, r + 1), Ins('v_mov_b32 v%d, 0' % (SP + 12)), Ins('v_mov_b32 v%d, 0' % (k + 3))]
            x = mul(v, v, SP + 4 + 4 * (mt & 1)); x.needs = [rv[mt]]; L.append(x)
            L += [mul(v + t, v + t, SP + 4 + 4 * (mt & 1) + t) for t in (1, 2, 3)]
            if mt < 2: L.append(rv[mt + 2])
            L.append(Ins('v_permlane16_swap_b32 v%d, v%d' % (SP + 12, k + 2)))
            L += [cvt(ve, v, v + 1), cvt(ve + 1, v + 2, v + 3)]
            w = [Ins('ds_write_b16 v%d, v%d offset:%d' % (vVW, SP + 12, 32 * mt)), Ins('ds_write_b16_d16_hi v%d, v%d offset:%d' % (vVW, SP + 12, 128 + 32 * mt))]
            L += w; vw += w
            L.append(Ins('v_cndmask_b32 v%d, 0, v%d, %s' % (QF + 4 * mt + 2, SP + 12, sr(sR1M, 2))))
            L.append(Ins('v_mov_b32 v%d, 0x3f80' % (QF + 4 * mt + 3)))
            st = Ins('buffer_store_dwordx4 %s, v%d, %s, s%d offen offset:%d sc1' % (vr(k), vL16, sr(SW), sKO + 4, 1024 * mt))
            L.append(st); kv_stores.append(st)
            if mt & 1:
                blk = mt >> 1
                st = Ins('buffer_store_dwordx4 %s, v%d, %s, s%d offen offset:%d sc1' % (vr(ve - 2), vL16, sr(SW), sVO + 4, 2048 * blk))
                L.append(st); kv_stores.append(st)
                rd = Ins('ds_read2_b64 %s, v%d offset0:%d offset1:%d' % (vr(r), vVR, 8 * blk, 8 * blk + 4))
                L.append(rd)
                L += [Ins('s_nop 0')] * 0
                st = Ins('buffer_store_dwordx4 %s, v%d, %s, s%d offen offset:%d sc1' % (vr(r), vL16, sr(SW), sVO + 4, 2048 * blk + 1024), needs=[rd])
                kv_stores.append(st)
                L.append(('DEFER', st))
        out = []; dq = []
        for x in L:
            if isinstance(x, tuple): dq.append([8, x[1]]); continue
            out.append(x)
            for d in dq: d[0] -= 1
            while dq and dq[0][0] <= 0: out.append(dq.pop(0)[1])
        return out, [d[1] for d in dq]
    def pair_epi(acc, q):
        L = [Ins('s_add_u32 s%d, s%d, %d' % (sST, sHB, q * 2 * 8192))]
        sts = []
        for mt in range(4):
            g0 = acc + mt * 4; g1 = acc + (4 + mt) * 4; u0 = acc + (8 + mt) * 4; u1 = acc + (12 + mt) * 4
            L += [mul(g0 + t, g0 + t, u0 + t) for t in range(4)]
            L += [mul(g1 + t, g1 + t, u1 + t) for t in range(4)]
            L += [cvt(u0, g0, g0 + 1), cvt(u0 + 1, g0 + 2, g0 + 3), cvt(u0 + 2, g1, g1 + 1), cvt(u0 + 3, g1 + 2, g1 + 3)]
            st = Ins('buffer_store_dwordx4 %s, v%d, %s, s%d offen offset:%d sc1' % (vr(u0), vL16, sr(SW), sST, 1024 * mt))
            L.append(st); sts.append(st)
        return L, sts
    def d_epi(acc, q):
        L = []
        for c in range(2):
            L.append(Ins('s_add_u32 s%d, s%d, 0x%x' % (sST, sHB, POFF + (2 * q + c) * 2 * 8192)))
            for mt in range(4):
                t0 = acc + (8 * c + mt) * 4; t1 = acc + (8 * c + 4 + mt) * 4
                L += [cvt(t0, t0, t0 + 1), cvt(t0 + 1, t0 + 2, t0 + 3), cvt(t0 + 2, t1, t1 + 1), cvt(t0 + 3, t1 + 2, t1 + 3)]
                L.append(Ins('buffer_store_dwordx4 %s, v%d, %s, s%d offen offset:%d sc1' % (vr(t0), vL16, sr(SW), sST, 1024 * mt)))
        return L

    slow = []
    def poll_check(name, ld, test, reload_):
        g = []
        for n, t in enumerate(test):
            g.append(Ins(t, needs=[ld] if n == 0 else []))
        g.append(Ins('s_cbranch_scc0 %s_slow' % name))
        g.append(Ins('%s_ok:' % name))
        S = Prog()
        S.label('%s_slow' % name)
        S('s_mov_b32 s%d, 400000' % sSP)
        S.label('%s_loop' % name)
        S('s_sleep 2')
        S(reload_)
        S('s_waitcnt vmcnt(0)')
        S('s_sub_u32 s%d, s%d, 1' % (sSP, sSP))
        S('s_cbranch_scc1 %s_ok' % name)
        for t in test: S(t)
        S('s_cbranch_scc0 %s_loop' % name)
        S('s_branch %s_ok' % name)
        slow.append(S.text())
        return g

    qe, qe_tail = qkv_epi()
    pe = [pair_epi([ACCB, ACCA][q & 1], q) for q in range(4)]
    VREG = [112 + 4 * n for n in range(16)] + [208, 212, 216, 220]
    kvld_t = 'buffer_load_dwordx2 %s, off, %s, s%d sc1' % (vr(SP + 14, 2), sr(SB), sT1)
    kvld = Ins(kvld_t)
    kvtest = ['v_readfirstlane_b32 s%d, v%d' % (sT2, SP + 14), 'v_readfirstlane_b32 s%d, v%d' % (sOFF + 25, SP + 15),
              's_and_b32 s%d, s%d, s%d' % (sT2, sT2, sNEED), 's_and_b32 s%d, s%d, s%d' % (sOFF + 25, sOFF + 25, sNEED2),
              's_xor_b32 s%d, s%d, s%d' % (sT2, sT2, sNEED), 's_xor_b32 s%d, s%d, s%d' % (sOFF + 25, sOFF + 25, sNEED2),
              's_or_b32 s%d, s%d, s%d' % (sT2, sT2, sOFF + 25), 's_cmp_eq_u32 s%d, 0' % sT2]
    kld = [Ins('buffer_load_dwordx4 %s, v%d, %s, s%d offen offset:%d sc1' % (ar(4 * u), vL16, sr(SW), sKO + u // 4, 1024 * (u % 4))) for u in range(20)]
    vld = [Ins('buffer_load_dwordx4 %s, v%d, %s, s%d offen offset:%d sc1' % (vr(VREG[u]), vL16, sr(SW), sVO + u // 4, 1024 * (u % 4))) for u in range(20)]
    hf_t = 'buffer_load_dword v%d, off, %s, s%d sc1' % (SP + 14, sr(SW), sPF)
    h1ld = Ins(hf_t)
    def hftest(n): return ['v_readfirstlane_b32 s%d, v%d' % (sT2, SP + 14), 's_cmp_ge_u32 s%d, %d' % (sT2, n)]
    fill1 = [
        (9, 4, qe + qe_tail),
        (18, 4, pe[0][0]), (27, 4, pe[1][0]), (36, 4, pe[2][0]),
        (40, 0, [Ins('s_and_b32 s%d, s%d, -8' % (sT1, sDB)), kvld]),
        (45, 4, pe[3][0] + [poll_check('kv', kvld, kvtest, kvld_t), ('AT', 47, 0)] + kld + vld + [h1ld]),
    ]
    bx1 = {
        18: (kv_stores + [freset], [Ins('s_lshl_b32 s%d, 1, s%d' % (sT2, sI)), Ins('v_mov_b32 v%d, s%d' % (SP + 13, sT2)),
             Ins('buffer_atomic_or v%d, v%d, %s, s%d offen' % (SP + 13, vFL, sr(SB), sDB))]),
        45: (pe[0][1] + pe[1][1] + pe[2][1], [Ins('v_mov_b32 v%d, 1' % (SP + 13)),
             Ins('buffer_store_dword v%d, v%d, %s, s%d offen sc1' % (SP + 13, vFL, sr(SW), sMYF))]),
    }
    left = segment(0, NSEG1, fill1, bx1)
    for x in left:
        if x.kind == 'label': P.out.append(x)
        else: P(x)
    stamp()

    SREG = [224 + 4 * n for n in range(4)] + [80] + [240, 244, 248] + [176 + 4 * n for n in range(8)] + [252]
    PR = [84, 88, 92]; OM, OR_ = 96, 100; MF, ML = 104, 108
    vMX, vMN, vTA, vTB = vDQ[0], vDQ[1], vDQ[2], vDQ[3]
    vNEG = vTQ[0]; vPOLL = vTQ[1]
    P('v_mov_b32 v%d, 0x%x' % (vNEG, NEG))
    for r in range(4):
        P('v_cmp_lt_i32 vcc, %d, v%d' % (-r, vDG))
        P('v_cndmask_b32 v%d, v%d, 0, vcc' % (MF + r, vNEG))
        P('v_cndmask_b32 v%d, 0, v%d, vcc' % (ML + r, vNEG))
    l1st = []
    for mt in range(4):
        g0 = ACCB + mt * 4; u0 = ACCB + (4 + mt) * 4
        for t in range(4): P(mul(g0 + t, g0 + t, u0 + t))
        P(cvt(u0, g0, g0 + 1)); P(cvt(u0 + 1, g0 + 2, g0 + 3))
        l1st.append(P('buffer_store_dwordx2 %s, v%d, %s, s%d offen offset:%d sc1' % (vr(u0, 2), vL16, sr(SW), sPB, 1024 * mt)))
    for x in poll_check('h1', h1ld, hftest(1), hf_t):
        if x.kind == 'label': P.out.append(x)
        else: P(x)
    for u in range(16):
        P(Ins('v_accvgpr_write_b32 a%d, s%d' % (4 * u + 3, sKB + u // 4), needs=[kld[u]]))
    hld = {}
    def hload(k):
        P('s_add_u32 s%d, s%d, %d' % (sST, sHL, k * 8192))
        hld[k] = [P('buffer_load_dwordx4 %s, v%d, %s, s%d offen offset:%d sc1' % (breg(hpos[k], mt), vL16, sr(SW), sST, 1024 * mt)) for mt in range(4)]
    def qk(t, sg):
        u = t + sg
        c = vr(MF) if sg == 0 else (vr(ML) if sg == 16 else '0')
        P(Ins('v_mfma_f32_16x16x32_bf16 %s, %s, %s, %s' % (vr(SREG[sg]), ar(4 * u), vr(QF + 4 * t), c), needs=[kld[u]]))
    def mx(sg, dst):
        s = SREG[sg]
        if sg == 0:
            P('v_max3_f32 v%d, v%d, v%d, v%d' % (dst, s, s + 1, s + 2))
            P('v_max_f32 v%d, v%d, v%d' % (dst, dst, s + 3))
        else:
            P('v_max3_f32 v%d, v%d, v%d, v%d' % (dst, dst, s, s + 1))
            P('v_max3_f32 v%d, v%d, v%d, v%d' % (dst, dst, s + 2, s + 3))
    for sg in range(17):
        qk(0, sg)
        if sg >= 3: mx(sg - 3, vMN)
    for sg in range(14, 17): mx(sg, vMN)
    def o_epi(t):
        P('v_rcp_f32 v%d, v%d' % (vTA, OR_ + 2))
        P('s_add_u32 s%d, s%d, %d' % (sST, sOB, t * 18432))
        for r in range(4): P(mul(OM + r, OM + r, vTA))
        for r in range(2): P(mul(OR_ + r, OR_ + r, vTA))
        P(cvt(OM, OM, OM + 1)); P(cvt(OM + 1, OM + 2, OM + 3)); P(cvt(OR_, OR_, OR_ + 1))
        P('buffer_store_dwordx2 %s, v%d, %s, s%d offen sc1' % (vr(OM, 2), vL16, sr(SW), sST))
        P('s_add_u32 s%d, s%d, %d' % (sST, sOR, t * 18432))
        P('buffer_store_dword v%d, v%d, %s, s%d offen sc1' % (OR_, vOR, sr(SW), sST))
    hq = list(early)
    h2_t = 'buffer_load_dword v%d, off, %s, s%d sc1' % (vPOLL, sr(SW), sPF)
    h2test = ['v_readfirstlane_b32 s%d, v%d' % (sT2, vPOLL), 's_cmp_ge_u32 s%d, 2' % sT2]
    for t in range(4):
        P('v_mov_b32 v%d, v%d' % (vTA, vMN))
        P('v_permlane16_swap_b32 v%d, v%d' % (vTA, vMN))
        P('v_max_f32 v%d, v%d, v%d' % (vMN, vMN, vTA))
        P('v_mov_b32 v%d, v%d' % (vTA, vMN))
        P('v_permlane32_swap_b32 v%d, v%d' % (vTA, vMN))
        P('v_max_f32 v%d, v%d, v%d' % (vMN, vMN, vTA))
        P('v_mul_f32 v%d, s%d, v%d' % (vMX, sC, vMN))
        if t > 0: o_epi(t - 1)
        if t == 1:
            P(Ins('s_barrier', needs=l1st + pe[3][1]))
            P('v_mov_b32 v%d, 2' % vTB)
            P('buffer_store_dword v%d, v%d, %s, s%d offen sc1' % (vTB, vFL, sr(SW), sMYF))
            for n in range(NSEG1, NSEG1 + NRING):
                if slots[n].loads is None: dma_now(n)
        if t == 3:
            for x in poll_check('h2', h2ld, h2test, h2_t):
                if x.kind == 'label': P.out.append(x)
                else: P(x)
            hq = list(late)
        done = []
        mq = []
        for b in range(9):
            v = (t >> 1) + b
            sgs = [2 * v - t, 2 * v + 1 - t]
            p = PR[b % 3]
            for hh, sg in enumerate(sgs):
                if 0 <= sg <= 16:
                    s = SREG[sg]
                    for r in range(4): P('v_fma_f32 v%d, v%d, s%d, -v%d' % (s + r, s + r, sC, vMX))
                    for r in range(4):
                        P('v_exp_f32 v%d, v%d' % (s + r, s + r))
                        if r == 1 and done and t < 3:
                            g_ = done.pop(0); qk(t + 1, g_); mq.append(g_)
                    if len(mq) > 1: mx(mq.pop(0), vMN)
                    P(cvt(p + 2 * hh, s, s + 1)); P(cvt(p + 2 * hh + 1, s + 2, s + 3))
                    done.append(sg)
                else:
                    P('v_mov_b32 v%d, 0' % (p + 2 * hh)); P('v_mov_b32 v%d, 0' % (p + 2 * hh + 1))
            if hq and (t != 0 or b >= 1) and (t == 3 or b % 3 != 2): hload(hq.pop(0))
            P(Ins('v_mfma_f32_16x16x32_bf16 %s, %s, %s, %s' % (vr(OM), vr(VREG[2 * v]), vr(p), '0' if b == 0 else vr(OM)), needs=[vld[2 * v]]))
            P(Ins('v_mfma_f32_16x16x32_bf16 %s, %s, %s, %s' % (vr(OR_), vr(VREG[2 * v + 1]), vr(p), '0' if b == 0 else vr(OR_)), needs=[vld[2 * v + 1]]))
            if t == 2 and b == 4: h2ld = P(h2_t)
        if t < 3:
            while done:
                g_ = done.pop(0); qk(t + 1, g_); mq.append(g_)
            while mq: mx(mq.pop(0), vMN)
        if t == 2: assert not hq
    assert not hq
    o_epi(3)
    stamp()

    P(Ins('s_barrier', needs=slots[NSEG1].loads))
    inv = {v: k for k, v in hpos.items()}
    bmap = {}
    for k in hld:
        for mt in range(4): bmap[breg(hpos[k], mt)] = hld[k][mt]
    fill2 = [(NSEG1 + 9, 4, d_epi(ACCA, 0)), (NSEG1 + 18, 4, d_epi(ACCB, 1))]
    left = segment(NSEG1, NS, fill2, {}, extra_first=lambda f, mt: [bmap[f.b(mt)]])
    for x in left: P(x)
    P('s_add_u32 s%d, s%d, 0x%x' % (sST, sPB, POFF))
    for mt in range(4):
        t0 = ACCA + mt * 4
        P(cvt(t0, t0, t0 + 1)); P(cvt(t0 + 1, t0 + 2, t0 + 3))
        P('buffer_store_dwordx2 %s, v%d, %s, s%d offen offset:%d sc1' % (vr(t0, 2), vL16, sr(SW), sST, 1024 * mt))
    if stamps:
        P('s_waitcnt vmcnt(0)')
        stamp()
        P('s_waitcnt lgkmcnt(0)')
        P('s_lshl_b32 s%d, s2, 7' % sT2)
        P('s_add_u32 s%d, s%d, 0x%x' % (sT2, sT2, STAMP_OFF))
        for n in range(nst[0]):
            P('v_mov_b32 v80, s%d' % (sTS + 2 * n)); P('v_mov_b32 v81, s%d' % (sTS + 2 * n + 1))
            P('buffer_store_dwordx2 v[80:81], v%d, %s, s%d offen offset:%d' % (vFL, sr(SW), sT2, 8 * n))
    P.label('K1_end')
    P('s_endpgm')
    print('K1: instrs', len(P.out), 'nops', P.nnop, file=sys.stderr)
    return P.text() + ''.join(slow)


def gen_k2(stamps=False):
    P = Prog()
    SX, SO, SWO, SW = 24, 28, 32, 36
    sWv, sC, sM, sT0, sT1, sT2, sOFF, sLB = 40, 41, 42, 43, 44, 45, 46, 47
    sLO, sHI = 48, 49
    OF, PT, XR, ACC, SUM, FR = 16, 88, 152, 160, 176, 192
    P('s_cmp_ge_u32 s2, 240')
    P('s_cbranch_scc1 K2_end')
    P('s_and_b32 s%d, s2, 7' % sT0)
    P('s_mul_i32 s%d, s%d, 30' % (sT0, sT0))
    P('s_lshr_b32 s%d, s2, 3' % sT1)
    P('s_add_u32 s%d, s%d, s%d' % (sT0, sT0, sT1))
    P('s_cmp_ge_u32 s%d, 234' % sT0)
    P('s_cbranch_scc1 K2_end')
    P('s_load_dwordx16 s[4:19], s[0:1], 0')
    P('s_load_dwordx2 s[22:23], s[0:1], 72')
    if stamps: P('s_memrealtime s[60:61]')
    P('v_and_b32 v1, 63, v0')
    P('v_lshrrev_b32 v2, 6, v0')
    P('v_readfirstlane_b32 s%d, v2' % sWv)
    P('s_mul_i32 s%d, s%d, 7282' % (sT1, sT0))
    P('s_lshr_b32 s%d, s%d, 16' % (sT1, sT1))
    P('s_mul_i32 s%d, s%d, 9' % (sT2, sT1))
    P('s_sub_u32 s%d, s%d, s%d' % (sC, sT0, sT2))
    P('s_mul_i32 s%d, s%d, 5' % (sM, sT1))
    P('s_add_u32 s%d, s%d, s%d' % (sM, sM, sWv))
    P('v_lshrrev_b32 v3, 3, v1')
    P('v_and_b32 v4, 7, v1')
    P('v_and_b32 v5, 6, v3')
    P('v_xor_b32 v4, v4, v5')
    P('v_lshlrev_b32 v4, 4, v4')
    P('v_mul_u32_u24 v5, 1152, v3')
    P('v_add_u32 v5, v5, v4')
    P('v_lshrrev_b32 v6, 2, v3')
    P('v_mul_u32_u24 v6, %d, v6' % (32 * 1152))
    P('v_add_u32 v6, v6, v5')
    P('v_lshlrev_b32 v2, 4, v1')
    P('s_waitcnt lgkmcnt(0)')
    def srd(d, b, nbytes):
        P('s_mov_b32 s%d, s%d' % (d, b))
        P('s_mov_b32 s%d, s%d' % (d + 1, b + 1))
        P('s_mov_b32 s%d, 0x%x' % (d + 2, nbytes))
        P('s_mov_b32 s%d, 0x00020000' % (d + 3))
    srd(SWO, 8, 576 * 1152)
    srd(SW, 22, WSB)
    P('s_lshl_b32 s%d, s%d, 7' % (sLB, sC))
    dm = []
    for t in range(13):
        P('s_add_u32 s%d, s%d, %d' % (sT0, sWv, 5 * t))
        P('s_lshl_b32 m0, s%d, 10' % sT0)
        P('s_lshr_b32 s%d, s%d, 2' % (sT1, sT0))
        P('s_mul_i32 s%d, s%d, %d' % (sOFF, sT1, 36 * 1152))
        P('s_and_b32 s%d, s%d, 2' % (sT1, sT0))
        P('s_mul_i32 s%d, s%d, %d' % (sT1, sT1, 10 * 1152))
        P('s_add_u32 s%d, s%d, s%d' % (sOFF, sOFF, sT1))
        P('s_and_b32 s%d, s%d, 1' % (sT1, sT0))
        P('s_mul_i32 s%d, s%d, %d' % (sT1, sT1, 8 * 1152))
        P('s_add_u32 s%d, s%d, s%d' % (sOFF, sOFF, sT1))
        P('s_add_u32 s%d, s%d, s%d' % (sOFF, sOFF, sLB))
        dm.append(P('buffer_load_dwordx4 v5, %s, s%d offen lds' % (sr(SWO), sOFF)))
    for t in range(2):
        P('s_add_u32 s%d, s%d, %d' % (sT0, sWv, 5 * t))
        P('s_lshl_b32 s%d, s%d, 10' % (sT1, sT0))
        P('s_add_u32 m0, s%d, %d' % (sT1, 65 * 1024))
        P('s_mul_i32 s%d, s%d, %d' % (sOFF, sT0, 72 * 1152))
        P('s_add_u32 s%d, s%d, %d' % (sOFF, sOFF, 16 * 1152))
        P('s_add_u32 s%d, s%d, s%d' % (sOFF, sOFF, sLB))
        dm.append(P('buffer_load_dwordx4 v6, %s, s%d offen lds' % (sr(SWO), sOFF)))
    P('s_mul_i32 s%d, s%d, 18432' % (sT0, sM))
    ol = []
    for k in range(18):
        if k % 4 == 0: P('s_add_u32 s%d, s%d, 0x%x' % (sOFF, sT0, OOFF + k * 1024))
        ol.append(P('buffer_load_dwordx4 %s, v2, %s, s%d offen offset:%d' % (vr(OF + 4 * k), sr(SW), sOFF, 1024 * (k % 4))))
    P('s_lshr_b32 s%d, s%d, 3' % (sT0, sM))
    P('s_mul_i32 s%d, s%d, %d' % (sT0, sT0, 8 * 18 * 8192))
    P('s_and_b32 s%d, s%d, 7' % (sT1, sM))
    P('s_lshl_b32 s%d, s%d, 10' % (sT1, sT1))
    P('s_add_u32 s%d, s%d, s%d' % (sT0, sT0, sT1))
    P('s_lshl_b32 s%d, s%d, 14' % (sT1, sC))
    P('s_add_u32 s%d, s%d, s%d' % (sT0, sT0, sT1))
    pl = []
    for p in range(8):
        for u in range(2):
            P('s_add_u32 s%d, s%d, 0x%x' % (sOFF, sT0, POFF + p * 18 * 8192 + u * 8192))
            pl.append(P('buffer_load_dwordx4 %s, v2, %s, s%d offen' % (vr(PT + 8 * p + 4 * u), sr(SW), sOFF)))
    srd(SX, 4, 2048 * 1152)
    srd(SO, 18, 2048 * 1152)
    P('v_and_b32 v7, 15, v1')
    P('v_lshrrev_b32 v8, 4, v1')
    P('v_mul_u32_u24 v9, 1152, v7')
    P('v_and_b32 v10, 1, v8')
    P('v_lshl_add_u32 v9, v10, 5, v9')
    P('v_lshrrev_b32 v11, 1, v8')
    P('v_lshl_add_u32 v9, v11, 4, v9')
    P('s_mul_i32 s%d, s%d, 18432' % (sT2, sM))
    P('s_add_u32 s%d, s%d, s%d' % (sT2, sT2, sLB))
    xl = [P('buffer_load_dwordx4 %s, v9, %s, s%d offen offset:%d' % (vr(XR + 4 * u), sr(SX), sT2, 64 * u)) for u in range(2)]
    P('v_lshlrev_b32 v12, 2, v7')
    P('s_lshl_b32 s%d, s%d, 6' % (sT1, sM))
    P('s_add_u32 s%d, s%d, 0x%x' % (sT1, sT1, ROFF))
    rl = P('buffer_load_dword v3, v12, %s, s%d offen' % (sr(SW), sT1))
    P('v_lshrrev_b32 v12, 2, v7')
    P('v_lshl_add_u32 v12, v10, 2, v12')
    P('v_lshrrev_b32 v13, 1, v12')
    P('v_lshlrev_b32 v12, 7, v12')
    P('v_lshl_add_u32 v12, v11, 10, v12')
    P('v_lshl_add_u32 v12, v13, 5, v12')
    P('v_and_b32 v13, 3, v7')
    P('v_lshl_add_u32 v12, v13, 3, v12')
    for dt in range(1, 4): P('v_xor_b32 v%d, %d, v12' % (12 + dt, 32 * dt))
    P('s_mov_b32 s%d, 0x00003f80' % sLO)
    P('s_mov_b32 s%d, 0x3f800000' % sHI)
    for r in range(16): P('v_mov_b32 v%d, 0' % (SUM + r))
    P(Ins('s_barrier', needs=dm))
    rds = {}
    def rd(n):
        k, dt = divmod(n, 4)
        if n == 64:
            for d in range(4): P('v_add_u32 v%d, 0x10000, v%d' % (12 + d, 12 + d))
        off = k * 4096 if k < 16 else (k - 16) * 4096 + 1024
        f = FR + 4 * (n % 8)
        rds[n] = [P('ds_read_b64_tr_b16 %s, v%d offset:%d' % (vr(f + 2 * h, 2), 12 + dt, off + 2048 * h)) for h in range(2)]
    AH = 6
    for n in range(AH): rd(n)
    for n in range(72):
        k, dt = divmod(n, 4)
        P(Ins('v_mfma_f32_16x16x32_bf16 %s, %s, %s, %s' % (vr(ACC + 4 * dt), vr(FR + 4 * (n % 8)), vr(OF + 4 * k), '0' if k == 0 else vr(ACC + 4 * dt)), needs=rds[n] + [ol[k]]))
        if n + AH < 72: rd(n + AH)
    for p in range(8):
        for u in range(2):
            for q in range(4):
                src = PT + 8 * p + 4 * u + q
                P(Ins('v_dot2c_f32_bf16 v%d, s%d, v%d' % (SUM + 8 * u + 2 * q, sLO, src), needs=[pl[2 * p + u]]))
                P('v_dot2c_f32_bf16 v%d, s%d, v%d' % (SUM + 8 * u + 2 * q + 1, sHI, src))
    P(Ins('v_mul_f32 v4, 0x%x, v3' % f2u(-1.4426950408889634), needs=[rl]))
    T = FR
    for r in range(16): P('v_mul_f32 v%d, v%d, v4' % (T + r, SUM + r))
    for r in range(16): P('v_exp_f32 v%d, v%d' % (T + r, T + r))
    for r in range(16): P('v_mul_f32 v%d, v%d, v3' % (SUM + r, SUM + r))
    for r in range(16): P('v_add_f32 v%d, 1.0, v%d' % (T + r, T + r))
    for r in range(16): P('v_rcp_f32 v%d, v%d' % (T + r, T + r))
    for r in range(16): P('v_mul_f32 v%d, v%d, v%d' % (ACC + r, ACC + r, SUM + r))
    for r in range(16): P('v_mul_f32 v%d, v%d, v%d' % (ACC + r, ACC + r, T + r))
    for u in range(2):
        for r in range(4): P('v_permlane16_swap_b32 v%d, v%d' % (ACC + 8 * u + r, ACC + 8 * u + 4 + r))
    for u in range(2):
        for q in range(4):
            P(Ins('v_dot2c_f32_bf16 v%d, s%d, v%d' % (ACC + 8 * u + 2 * q, sLO, XR + 4 * u + q), needs=[xl[u]]))
            P('v_dot2c_f32_bf16 v%d, s%d, v%d' % (ACC + 8 * u + 2 * q + 1, sHI, XR + 4 * u + q))
    for u in range(2):
        for q in range(4):
            P('v_cvt_pk_bf16_f32 v%d, v%d, v%d' % (XR + 4 * u + q, ACC + 8 * u + 2 * q, ACC + 8 * u + 2 * q + 1))
        P('buffer_store_dwordx4 %s, v9, %s, s%d offen offset:%d' % (vr(XR + 4 * u), sr(SO), sT2, 64 * u))
    if stamps:
        P('s_waitcnt vmcnt(0)')
        P('s_memrealtime s[62:63]')
        P('s_waitcnt lgkmcnt(0)')
        P('s_lshl_b32 s%d, s2, 7' % sT2)
        P('s_add_u32 s%d, s%d, 0x%x' % (sT2, sT2, STAMP_OFF + (1 << 18)))
        P('v_mov_b32 v4, 0x%x' % OOB)
        P('v_cmp_eq_u32 vcc, 0, v0')
        P('v_cndmask_b32 v4, v4, 0, vcc')
        for n in range(6):
            P('v_mov_b32 v6, s%d' % (60 + 2 * min(n, 1))); P('v_mov_b32 v7, s%d' % (61 + 2 * min(n, 1)))
            P('buffer_store_dwordx2 v[6:7], v4, %s, s%d offen offset:%d' % (sr(SW), sT2, 8 * n))
    P.label('K2_end')
    P('s_endpgm')
    print('K2: instrs', len(P.out), 'nops', P.nnop, file=sys.stderr)
    return P.text()

HEAD = """; Fused LayerNorm + sliding-window attention + bilinear GLU FFN, gfx950.  Generated by gen/main.py (hand-designed schedule).
; @launch kernel=ffn_attn_kernel grid=(256,1,1) block=(256,1,1) lds=163840
; @launch kernel=final_kernel grid=(240,1,1) block=(320,1,1) lds=76800
.amdgcn_target "amdgcn-amd-amdhsa--gfx950"
.text
"""
def kb(name): return '.globl %s\n.p2align 8\n.type %s,@function\n%s:\n' % (name, name, name)
def build(**kw):
    st = kw.get('stamps', False)
    t = HEAD + kb('ffn_attn_kernel') + gen_k1(**kw) + kb('final_kernel') + gen_k2(stamps=st)
    t += '.section .rodata,"a"\n.p2align 6\n' + kernel_desc('ffn_attn_kernel', 512, accum=256) + '.p2align 6\n' + kernel_desc('final_kernel', 224)
    return t

if __name__ == '__main__':
    open('recurrent_scan__sliding_block__glu_gated_bilinear__prompt.s', 'w').write(build())
    open('k_st.s', 'w').write(build(stamps=True))
```

```python
import sys, struct
sys.path.insert(0, 'gen')
from prog import *
from asmlib import STAMP_OFF

HOFF = 0x0000000
POFF = 0x1200000
BLK = 110592
KOFF = 0x2400000 + BLK
OOFF = 0x2C00000
ROFF = 0x2F00000
FOFF = 0x2F10000
WSB = 256 << 20
OOB = 0x10000000
NEG = 0xF149F2CA
SCALE = 0.2357022603955158 * 1.4426950408889634
def f2u(x): return struct.unpack('<I', struct.pack('<f', x))[0]

SLOT = 16384
XB = 5 * SLOT
HLONE = 9 * SLOT
RT4 = 155648
RTB = RT4 + 2048
NCODE = 80

def vr(b, n=4): return 'v[%d:%d]' % (b, b + n - 1)
def ar(b, n=4): return 'a[%d:%d]' % (b, b + n - 1)
def sr(b, n=4): return 's[%d:%d]' % (b, b + n - 1)
def II(text): return [Ins(l) for l in text.strip().split('\n') if l.strip()]

class Frag:
    def __init__(s, base, imm0, imm1, acc, b, first):
        s.base, s.imm, s.acc, s.b, s.first = base, (imm0, imm1), acc, b, first
class Slot:
    def __init__(s, groups, dma):
        s.groups, s.dma, s.loads = groups, dma, None

def gen_k1(JX=2, stamps=False, opt={}):
    P = Prog()
    SX, SQ, SG, SU, SD, SW, SB, SL = 24, 28, 32, 36, 40, 44, 48, 52
    I, J, Wv, RG, FH, E, Pp, T0, T1, T2, T3, OFF, ST, SPN = range(56, 70)
    W4096, W3072, BP, BL1, BD, SIG = range(70, 76)
    BL2 = 76
    HS, HLN, HL, PS, PLN = range(79, 84)
    C, N0, N1 = 84, 85, 86
    QM, QC, BQ, ONE2, LO, HI, R2, XRO = 87, 91, 92, 93, 94, 95, 96, 97
    KO, KB = 87, 92
    NN = 101
    OB, OR, MYF, PF, PFD, DB = 4, 5, 6, 7, 10, 11
    PFP, J0 = 0, 1
    ROT = 3
    sTS = 12
    vL, vL16 = 1, 2
    vDQ = [3, 4, 5, 6]; vDL2 = 7
    vDP = [8, 9]; vDL1 = 10; vTP = [11, 12]; vTL1 = 13
    vTQ = [14, 15]; vDD = [16, 17, 18, 19]; vTD = [20, 21]; vTL2 = 22
    vQS = [23]; vTB = 24; vRS = 25
    vPFP, vPFS, vHW, vFL, vDG, vOR = 26, 27, 28, 29, 30, 31
    vKM, vKR, vVM, vVR = 3, 4, 5, 6
    QW = 8
    vMX, vMN, vTA, vONES = 14, 15, 23, 25
    XT, QF, FR, ACCA, ACCB, SP = 32, 64, 80, 112, 176, 240
    def stamp(name, ret=False):
        if stamps and name in stamps:
            n = stamps.index(name)
            x = [Ins('s_mov_b32 s%d, s22' % (sTS + n)), Ins('s_memrealtime s[22:23]')]
            if ret: return [x]
            for y in x: P(y)
        return []
    def breg(pos, mt):
        i = pos * 4 + mt
        return ar(4 * i) if i < 64 else vr(XT + 4 * (i - 64))
    def emit_all(lst):
        for x in lst:
            if isinstance(x, list): emit_all(x)
            elif x.kind == 'label': P.out.append(x)
            else: P(x)
    lg = lambda x: x.bit_length() - 1
    ng = 16 // JX

    P('s_cmp_ge_u32 s2, 256')
    P('s_cbranch_scc1 K1_end')
    P('s_load_dwordx16 s[4:19], s[0:1], 0')
    P('s_load_dwordx4 s[20:23], s[0:1], 64')
    if stamps: P('s_memrealtime s[84:85]')
    P('s_getpc_b64 %s' % sr(SL, 2))
    P.label('K1_pc')
    P(f'''s_mov_b32 s{SL+2}, code_end-K1_pc
    s_mov_b32 s{SL+3}, 0x00020000
    s_lshr_b32 s{NN}, s2, 3
    s_and_b32 s{T0}, s{NN}, 7
    s_mul_i32 s{T0}, s{T0}, {NCODE*128}
    v_lshlrev_b32 v80, 7, v0
    v_mov_b32 v89, 0x{OOB:x}
    v_cmp_gt_u32 vcc, {NCODE}, v0
    v_cndmask_b32 v80, v89, v80, vcc
    buffer_load_dword v79, v80, {sr(SL)}, s{T0} offen
    v_and_b32 v{vL}, 63, v0
    v_lshrrev_b32 v80, 6, v0
    v_readfirstlane_b32 s{Wv}, v80
    s_and_b32 s{T0}, s2, 7
    s_and_b32 s{J}, s{T0}, {ng-1}
    s_lshl_b32 s{J}, s{J}, {lg(JX)}
    s_and_b32 s{T2}, s{NN}, {JX-1}
    s_or_b32 s{J}, s{J}, s{T2}
    s_lshr_b32 s{I}, s{T0}, {lg(ng)}
    s_lshl_b32 s{I}, s{I}, {lg(32//JX)}
    s_lshr_b32 s{T2}, s{NN}, {lg(JX)}
    s_or_b32 s{I}, s{I}, s{T2}
    s_and_b32 s{RG}, s{Wv}, 1
    s_lshr_b32 s{FH}, s{Wv}, 1
    s_and_b32 s{E}, s{J}, 1
    s_lshr_b32 s{Pp}, s{J}, 1
    s_and_b32 s{ROT}, s{J}, {min(JX-1, 3)}
    v_lshrrev_b32 v82, 3, v{vL}
    v_and_b32 v83, 7, v{vL}
    v_mul_u32_u24 v100, 1152, v82
    v_lshl_add_u32 v100, v83, 4, v100
    s_lshl_b32 s{T0}, s{I}, 3
    s_lshl_b32 s{T1}, s{RG}, 2
    s_add_u32 s{T0}, s{T0}, s{T1}
    s_add_u32 s{T1}, s{T0}, s{FH}
    s_mul_i32 s{T1}, s{T1}, {16*1152}''')
    if JX == 2: P(f's_lshl_b32 s{ROT}, s{ROT}, 1')
    for blk in range(4):
        P(f'''s_xor_b32 s{T2}, s{ROT}, {blk}
        s_and_b32 s{T3}, s{T2}, 1
        s_lshl_b32 s{T3}, s{T3}, 3
        s_and_b32 s{T2}, s{T2}, 2
        s_lshl_b32 s{T2}, s{T2}, 4
        s_or_b32 s{XRO+blk}, s{T2}, s{T3}''')
    if opt.get('est'): P('s_memrealtime s[76:77]')
    P('s_waitcnt lgkmcnt(0)')
    if opt.get('est'): P('s_memrealtime s[78:79]')
    def srd(d, b, nbytes, shift=0):
        if shift:
            P('s_sub_u32 s%d, s%d, %d' % (d, b, shift))
            P('s_subb_u32 s%d, s%d, 0' % (d + 1, b + 1))
        else:
            P('s_mov_b32 s%d, s%d' % (d, b))
            P('s_mov_b32 s%d, s%d' % (d + 1, b + 1))
        P('s_mov_b32 s%d, 0x%x' % (d + 2, nbytes + shift))
        P('s_mov_b32 s%d, 0x00020000' % (d + 3))
    srd(SX, 4, 2048 * 1152)
    XR = 112
    xl = []
    def xload(blk):
        ld = [Ins('buffer_load_dwordx4 %s, v100, %s, s%d offen offset:%d' % (vr(XR + 36 * blk + 4 * l), sr(SX), OFF, 128 * l)) for l in range(9)]
        xl.append(ld)
        return [II(f's_mul_i32 s{OFF}, s{XRO+blk}, 1152\ns_add_u32 s{OFF}, s{OFF}, s{T1}')] + [[x] for x in ld]
    emit_all(xload(0))
    if opt.get('est'): P('s_memrealtime s[80:81]')
    if opt.get('est') == 2:
        P('s_waitcnt vmcnt(8)')
        P('s_memrealtime s[82:83]')
        P('s_waitcnt vmcnt(0)')
        P('s_memrealtime s[86:87]')
    srd(SQ, 6, 576 * 3456, shift=2048)
    P(f'''s_and_b32 s{J0}, s{J}, {16-JX}
    v_lshrrev_b32 v86, {lg(2*JX)}, v0
    v_and_b32 v87, {2*JX-1}, v0
    v_mul_u32_u24 v88, 3456, v86
    v_lshl_add_u32 v87, v87, 7, v88
    v_cmp_gt_u32 vcc, 18, v86
    v_cndmask_b32 v87, v89, v87, vcc
    s_mul_i32 s{ST}, s{NN}, {18*3456}
    s_lshl_b32 s{T2}, s{J0}, 8
    s_add_u32 s{ST}, s{ST}, s{T2}
    buffer_load_dword v79, v87, {sr(SQ)}, s{ST} offen offset:2048''')
    srd(SG, 12, 576 * 9216)
    srd(SU, 14, 576 * 9216, shift=2048)
    srd(SD, 16, 4608 * 1152, shift=2048)
    srd(SW, 22, WSB)
    srd(SB, 20, 256)
    P(f'''s_cmp_ge_u32 s{Wv}, 2
    s_cselect_b32 s{SL}, s14, s12
    s_cselect_b32 s{SL+1}, s15, s13
    s_mov_b32 s{SL+2}, 0x{576*9216:x}
    s_mov_b32 s{SL+3}, 0x00020000
    s_mul_i32 s{PFP}, s{NN}, {18*9216}
    s_mul_i32 s{T2}, s{RG}, {9*9216}
    s_add_u32 s{PFP}, s{PFP}, s{T2}
    s_mul_i32 s{T2}, s{J0}, 576
    s_add_u32 s{PFP}, s{PFP}, s{T2}''')
    if stamps: P('s_mov_b64 s[22:23], s[84:85]')
    emit_all(xload(1))
    P(f'''s_lshl_b32 s{W4096}, s{Wv}, 12
    s_lshl_b32 s{BQ}, s{J}, 8
    s_mul_i32 s{T2}, s{Wv}, {16*3456}
    s_add_u32 s{BQ}, s{BQ}, s{T2}
    s_cmp_ge_u32 s{J}, 14
    s_cselect_b32 s{BQ}, 0x{OOB:x}, s{BQ}
    s_lshl_b32 s{R2}, s{I}, 9
    s_add_u32 s{R2}, s{R2}, 0x{ROFF:x}
    s_cmp_eq_u32 s{J}, 15
    s_cselect_b32 s{R2}, s{R2}, 0x{OOB:x}
    s_mov_b32 s{ONE2}, 0x3f803f80
    s_mov_b32 s{LO}, 0x00003f80
    s_mov_b32 s{HI}, 0x3f800000
    v_lshrrev_b32 v84, 4, v{vL}
    v_and_b32 v85, 15, v{vL}
    v_cmp_eq_u32 vcc, 0, v0
    v_cndmask_b32 v{vFL}, v89, 0, vcc
    v_lshlrev_b32 v86, 1, v82
    v_and_b32 v86, 4, v86
    v_xor_b32 v86, v83, v86
    v_mul_u32_u24 v87, 9216, v82
    v_lshl_add_u32 v{vDP[0]}, v86, 4, v87
    v_mul_u32_u24 v88, 3456, v82
    v_lshl_add_u32 v90, v86, 4, v88
    v_add_u32 v{vDQ[0]}, 2048, v90
    v_add_u32 v{vDQ[2]}, 128, v90
    v_xor_b32 v86, 2, v86
    v_lshl_add_u32 v{vDP[1]}, v86, 4, v87
    v_add_u32 v{vDP[1]}, {8*9216-1024}, v{vDP[1]}
    v_lshl_add_u32 v90, v86, 4, v88
    v_add_u32 v{vDQ[1]}, {8*3456-1024+2048}, v90
    v_add_u32 v{vDQ[3]}, {8*3456-1024+128}, v90
    s_lshl_b32 s{SIG}, s{E}, 1
    s_sub_u32 s{SIG}, 1, s{SIG}
    s_mul_i32 s{BP}, s{Pp}, 1152
    s_lshl_b32 s{T3}, s{E}, 10
    s_add_u32 s{BP}, s{BP}, s{T3}
    s_mul_i32 s{T3}, s{Wv}, {16*9216}
    s_add_u32 s{BP}, s{BP}, s{T3}
    v_and_b32 v87, 3, v{vL}
    v_lshrrev_b32 v86, 2, v85
    v_and_b32 v88, 1, v84
    v_lshrrev_b32 v92, 1, v84
    v_lshlrev_b32 v90, 12, v92
    v_lshl_add_u32 v90, v88, 10, v90
    v_lshl_add_u32 v90, v86, 7, v90
    v_lshrrev_b32 v91, 1, v86
    v_xor_b32 v91, s{FH}, v91
    v_lshl_add_u32 v90, v91, 6, v90
    v_lshl_add_u32 v90, v88, 5, v90
    v_lshl_add_u32 v{vTQ[0]}, v87, 3, v90
    v_xor_b32 v{vTQ[1]}, 32, v{vTQ[0]}
    s_lshl_b32 s{T2}, s{E}, 6
    v_xor_b32 v{vTP[0]}, s{T2}, v{vTQ[0]}
    v_xor_b32 v{vTP[1]}, s{T2}, v{vTQ[1]}
    s_mul_i32 s{ST}, s{RG}, {2*18432}
    s_add_u32 s{ST}, s{ST}, {XB}
    v_xor_b32 v90, v85, v84
    v_lshlrev_b32 v90, 4, v90
    v_lshl_add_u32 v90, v84, 8, v90
    v_add_u32 v65, s{ST}, v90
    v_xor_b32 v66, 64, v65
    s_mul_i32 s{T2}, s{FH}, 18432
    s_add_u32 s{ST}, s{ST}, s{T2}
    s_and_b32 s{T2}, s{XRO}, 8
    s_lshl_b32 s{T2}, s{T2}, 4
    s_add_u32 s{ST}, s{ST}, s{T2}
    v_xor_b32 v90, v82, v83
    v_lshlrev_b32 v90, 4, v90
    v_lshl_add_u32 v90, v83, 8, v90
    v_add_u32 v64, s{ST}, v90
    v_xor_b32 v76, 128, v64
    s_lshl_b32 s{T2}, s{RG}, 6
    s_lshl_b32 s{T3}, s{FH}, 4
    s_add_u32 s{T2}, s{T2}, s{T3}
    v_add_u32 v67, s{T2}, v82''')
    def G(text): return [II(text)]
    late0 = II(f'''s_mul_i32 s{W3072}, s{Wv}, 3072
    s_lshl_b32 s{T2}, s{I}, 4
    s_add_u32 s{T2}, s{T2}, s{J}
    s_lshl_b32 s{MYF}, s{T2}, 7
    s_add_u32 s{MYF}, s{MYF}, 0x{FOFF:x}
    v_mov_b32 v207, 0''')
    freset = Ins(f'buffer_store_dword v207, v{vFL}, {sr(SW)}, s{MYF} offen sc1')
    late0 += [freset] + II(f'''s_xor_b32 s{PF}, s{MYF}, 128
    s_mul_i32 s{HS}, s{T2}, {9*8192}
    s_xor_b32 s{T2}, s{T2}, 1
    s_mul_i32 s{HL}, s{T2}, {9*8192}
    s_lshl_b32 s{T2}, s{RG}, 12
    s_add_u32 s{HS}, s{HS}, s{T2}
    s_lshl_b32 s{T3}, s{FH}, 11
    s_add_u32 s{HLN}, s{HS}, s{T3}
    s_add_u32 s{HLN}, s{HLN}, {8*8192}
    s_add_u32 s{HL}, s{HL}, s{T2}
    s_lshl_b32 s{T3}, s{FH}, 13
    s_add_u32 s{HS}, s{HS}, s{T3}
    s_mul_i32 s{BL1}, s{Pp}, 1152
    s_lshl_b32 s{T2}, s{E}, 6
    s_add_u32 s{T2}, s{T2}, 512
    s_add_u32 s{BL1}, s{BL1}, s{T2}
    s_mul_i32 s{T3}, s{RG}, {48*9216}
    s_add_u32 s{BL1}, s{BL1}, s{T3}
    s_lshl_b32 s{DB}, s{I}, 2''')
    late0b = II(f'''s_lshl_b32 s{T2}, s{RG}, 12
    s_lshl_b32 s{T3}, s{I}, 3
    s_add_u32 s{T3}, s{T3}, s{Pp}
    s_mul_i32 s{PS}, s{T3}, {18*8192}
    s_add_u32 s{PS}, s{PS}, s{T2}
    s_add_u32 s{PS}, s{PS}, 0x{POFF:x}
    s_add_u32 s{T3}, s{E}, 8
    s_lshl_b32 s{T3}, s{T3}, 13
    s_add_u32 s{PLN}, s{PS}, s{T3}
    s_lshl_b32 s{T3}, s{FH}, 11
    s_add_u32 s{PLN}, s{PLN}, s{T3}
    s_mul_i32 s{T3}, s{E}, 10
    s_add_u32 s{T3}, s{T3}, s{FH}
    s_lshl_b32 s{T3}, s{T3}, 13
    s_add_u32 s{PS}, s{PS}, s{T3}
    s_lshl_b32 s{T2}, s{E}, 6
    s_add_u32 s{T2}, s{T2}, 512
    s_mul_i32 s{T1}, s{Pp}, {576*1152}
    s_mul_i32 s{T3}, s{E}, {17*32*1152}
    s_add_u32 s{T1}, s{T1}, s{T3}
    s_mul_i32 s{BD}, s{E}, 640
    s_add_u32 s{BD}, s{BD}, s{T1}
    s_mul_i32 s{T3}, s{FH}, s{SIG}
    s_mul_i32 s{T3}, s{T3}, {32*1152}
    s_add_u32 s{BD}, s{BD}, s{T3}
    s_mul_i32 s{T3}, s{RG}, {16*1152}
    s_add_u32 s{BD}, s{BD}, s{T3}
    s_add_u32 s{T1}, s{T1}, s{T2}''')
    for t in range(3):
        late0b += II(f'''s_mul_i32 s{T2}, s{Wv}, 3
        s_add_u32 s{T2}, s{T2}, {t}
        s_lshr_b32 s{T3}, s{T2}, 1
        s_mul_i32 s{T3}, s{T3}, s{SIG}
        s_mul_i32 s{T3}, s{T3}, {32*1152}
        s_add_u32 s{BL2+t}, s{T1}, s{T3}
        s_and_b32 s{T2}, s{T2}, 1
        s_mul_i32 s{T2}, s{T2}, {16*1152}
        s_add_u32 s{BL2+t}, s{BL2+t}, s{T2}
        s_add_u32 s{BL2+t}, s{BL2+t}, {2048-1024*t}''')
    late0 += II(f'''s_mul_i32 s{T2}, s{T0}, {BLK//2}
    s_lshl_b32 s{T3}, s{J}, 13
    s_add_u32 s{T2}, s{T2}, s{T3}
    s_lshl_b32 s{T3}, s{FH}, 11
    s_add_u32 s{T2}, s{T2}, s{T3}
    s_add_u32 s{T2}, s{T2}, 0x{KOFF:x}
    s_movk_i32 s{QC}, 4096''')
    late0 += G(f's_cmp_ge_u32 s{J}, 14\ns_cselect_b32 s{QM}, 0x{OOB:x}, s{T2}')
    late0 += G(f's_cmp_eq_u32 s{J}, 13\ns_cselect_b32 s{QC}, 0x{OOB:x}, s{QC}')
    late0b += II(f'''s_lshl_b32 s{T2}, s{FH}, 1
    s_add_u32 s{T2}, s{T2}, s{T0}
    s_mul_i32 s{OB}, s{T2}, 18432
    s_lshl_b32 s{T2}, s{J}, 10
    s_add_u32 s{OB}, s{OB}, s{T2}
    s_add_u32 s{OB}, s{OB}, 0x{OOFF:x}
    s_mul_i32 s{OR}, s{I}, {8*18432}
    s_lshl_b32 s{T2}, s{J}, 7
    s_add_u32 s{OR}, s{OR}, s{T2}
    s_add_u32 s{OR}, s{OR}, 0x{OOFF+16384:x}''')
    late0b += G(f's_cmp_eq_u32 s{Wv}, 0\ns_cselect_b32 s{OR}, s{OR}, 0x{OOB:x}')
    late0b += II(f'''s_mov_b32 s{C}, 0x{f2u(SCALE):x}''')
    late0b += G(f's_cmp_lt_u32 s{I}, 2\ns_cselect_b32 s{N0}, 0xffff, 0') + G(f's_cmp_lt_u32 s{I}, 1\ns_cselect_b32 s{N1}, 0xffff, 0')
    late0b += II(f'''s_mul_i32 s{PFD}, s{J0}, {288*1152}
    s_mul_i32 s{T2}, s{NN}, {9*JX*1152}
    s_add_u32 s{PFD}, s{PFD}, s{T2}
    s_mul_i32 s{T2}, s{Wv}, {41*128}
    s_add_u32 s{PFD}, s{PFD}, s{T2}''')
    late0 += II(f'''v_lshlrev_b32 v{vL16}, 4, v{vL}
    v_lshrrev_b32 v182, 3, v{vL}
    v_and_b32 v183, 7, v{vL}
    v_lshrrev_b32 v184, 4, v{vL}
    v_and_b32 v185, 15, v{vL}
    v_and_b32 v186, 6, v182
    v_xor_b32 v186, v183, v186
    v_mul_u32_u24 v187, 1152, v182
    v_lshl_add_u32 v187, v186, 4, v187''')
    for t in range(4):
        late0 += II('v_add_u32 v%d, %d, v187' % (vDD[t], (t & 1) * (8 * 1152 - 1024) + (t >> 1) * (128 - 2048) + 2048))
    late0 += II(f'''v_lshrrev_b32 v186, 2, v{vL}
    v_and_b32 v187, 3, v{vL}
    v_and_b32 v188, 2, v184
    v_xor_b32 v188, v187, v188
    v_mul_u32_u24 v190, 9216, v186
    v_lshl_add_u32 v{vDL1}, v188, 4, v190
    v_and_b32 v188, 1, v184
    v_lshlrev_b32 v188, 1, v188
    v_xor_b32 v188, v187, v188
    v_mul_u32_u24 v190, 1152, v186
    v_lshl_add_u32 v{vDL2}, v188, 4, v190
    v_lshrrev_b32 v186, 2, v185
    v_and_b32 v188, 1, v184
    v_lshrrev_b32 v192, 1, v184
    v_lshl_add_u32 v190, v184, 3, v186
    v_lshlrev_b32 v190, 6, v190
    v_xor_b32 v191, s{FH}, v188
    v_lshl_add_u32 v190, v191, 5, v190
    v_lshl_add_u32 v{vTL1}, v187, 3, v190
    v_lshl_add_u32 v190, v184, 2, v186
    v_lshlrev_b32 v190, 6, v190
    v_lshl_add_u32 v190, v191, 5, v190
    v_lshl_add_u32 v{vTL2}, v187, 3, v190
    v_lshl_add_u32 v190, v188, 2, v186
    v_lshrrev_b32 v191, 1, v190
    s_lshl_b32 s{T2}, s{FH}, 1
    v_xor_b32 v191, s{T2}, v191
    v_lshlrev_b32 v190, 7, v190
    v_lshl_add_u32 v190, v192, 10, v190
    v_lshl_add_u32 v190, v191, 5, v190
    v_lshl_add_u32 v{vTD[0]}, v187, 3, v190
    v_xor_b32 v{vTD[1]}, 32, v{vTD[0]}
    v_mov_b32 v189, 0x{OOB:x}
    v_cmp_eq_u32 vcc, 0, v184
    v_lshlrev_b32 v190, 2, v184
    v_sub_u32 v{vDG}, v190, v185
    v_cndmask_b32 v{vOR}, v189, v{vL16}, vcc
    s_lshl_b32 s{T2}, s{RG}, 12
    v_add_u32 v{vHW}, s{T2}, v{vL16}''')
    late0 += G(f's_cmp_ge_u32 s{J}, 9\ns_cselect_b64 vcc, -1, 0')
    late0 += II(f'''v_lshlrev_b32 v191, 6, v185
    v_lshl_add_u32 v191, v184, 4, v191
    v_cndmask_b32 v{vQS[0]}, v{vL16}, v191, vcc
    v_lshlrev_b32 v190, 4, v185
    v_add_u32 v190, {RT4}, v190
    v_lshlrev_b32 v191, 4, v184
    v_add_u32 v191, {RTB}, v191
    v_cndmask_b32 v190, v190, v191, vcc
    s_lshl_b32 s{T2}, s{RG}, 10
    v_add_u32 v{vRS}, s{T2}, v190
    v_mov_b32 v204, 0
    v_mov_b32 v205, 0
    v_mov_b32 v206, 0
    s_mul_i32 s{T2}, s{J}, 2304
    s_add_u32 s{T2}, s{T2}, 0x{KOFF-BLK+148*256:x}''')
    late0 += G(f's_cmp_eq_u32 s{I}, 0\ns_cselect_b32 s{T2}, s{T2}, 0x{OOB:x}')
    guard = Ins(f'buffer_store_dwordx4 v[204:207], v{vOR}, {sr(SW)}, s{T2} offen sc1')
    late0 += [guard]

    slots = []
    def dma4(srds, voffs, sbase, add, sadd=0, bump=None):
        def f(rp):
            if bump is not None:
                g = [II((bump + '\n' if bump else '') + f's_add_u32 s{OFF}, s{sbase}, {add}\ns_add_u32 m0, s{W4096}, {rp*SLOT}')]
            elif sadd and not add:
                g = [II(f's_mul_i32 s{OFF}, s{SIG}, {sadd}\ns_add_u32 s{OFF}, s{OFF}, s{sbase}\ns_add_u32 m0, s{W4096}, {rp*SLOT}')]
            elif sadd:
                g = [II(f's_mul_i32 s{OFF}, s{SIG}, {sadd}\ns_add_u32 s{OFF}, s{OFF}, s{sbase}'),
                     II(f's_add_u32 s{OFF}, s{OFF}, {add}\ns_add_u32 m0, s{W4096}, {rp*SLOT}')]
            else:
                g = [II(f's_add_u32 s{OFF}, s{sbase}, {add}\ns_add_u32 m0, s{W4096}, {rp*SLOT}')]
            for t in range(4):
                g.append([Ins('buffer_load_dwordx4 v%d, %s, s%d offen offset:%d lds' % (voffs[t], sr(srds[t]), OFF, 1024 * t))])
            return g
        return f
    def dma_l1(s):
        def f(rp):
            g = []
            for t in range(3):
                pre = II(f's_add_u32 s{OFF}, s{BL1}, {s*96*9216 + t*(16*9216-1024)}')
                if t == 0: pre += II(f's_add_u32 m0, s{W3072}, {rp*SLOT}')
                g.append(pre)
                g.append(II(f'buffer_load_dwordx4 v{vDL1}, {sr(SL)}, s{OFF} offen offset:{1024*t} lds'))
            return g
        return f
    def dma_l2(s):
        def f(rp):
            g = [II(f's_add_u32 m0, s{W3072}, {rp*SLOT}')]
            for t in range(3):
                g.append(II(f's_mul_i32 s{OFF}, s{SIG}, {s*192*1152}\ns_add_u32 s{OFF}, s{OFF}, s{BL2+t}'))
                g.append(II(f'buffer_load_dwordx4 v{vDL2}, {sr(SD)}, s{OFF} offen offset:{1024*t} lds'))
            return g
        return f
    def accf(base, tile): return lambda mt: base + (tile * 4 + mt) * 4
    def bf(pos): return lambda mt: breg(pos, mt)
    def pairlike(vT, acc, s):
        return [[Frag(vT[ft], ks * 8192 + m * 2048, ks * 8192 + m * 2048 + 512, accf(acc, 2 * m + ft), bf(2 * s + ks), s == 0 and ks == 0) for ks in range(2)] for m in range(2) for ft in range(2)]
    for s in range(9):
        slots.append(Slot(pairlike(vTQ, ACCA, s), dma4([SQ] * 4, vDQ, BQ, s * 64 * 3456)))
    PACC = [ACCB, ACCB, ACCA, ACCB]
    def pstep(q):
        for s in range(9):
            slots.append(Slot(pairlike(vTP, PACC[q], s), dma4([SG, SG, SU, SU], [vDP[0], vDP[1], vDP[0], vDP[1]], BP, s * 64 * 9216, bump=(f's_lshl_b32 s{OFF}, s{SIG}, 7\ns_add_u32 s{BP}, s{BP}, s{OFF}' if s == 0 and q else ''))))
    pstep(0)
    for s in range(6):
        gs = [[Frag(vTL1, m * 6144 + ks * 2048, m * 6144 + ks * 2048 + 256, accf(ACCA, m), bf(3 * s + ks), s == 0 and ks == 0) for ks in range(3)] for m in range(2)]
        slots.append(Slot(gs, dma_l1(s)))
    pstep(1); pstep(2); pstep(3)
    NSEG1 = len(slots)
    hpos = {}
    for n, k in enumerate([6, 7, 11, 10]): hpos[k] = n
    for n, k in enumerate([0, 1, 2, 3, 4, 5, 16, 17, 14, 15, 12, 13, 9, 8]): hpos[k] = 4 + n
    lorder = [0, 1, 2, 8, 7, 6, 4, 3, 5]
    def dstep(q):
        acc = ACCA
        for n, ln in enumerate(lorder):
            gs = [[Frag(vTD[ft], ks * 8192 + c * 2048, ks * 8192 + c * 2048 + 4096, accf(acc, 2 * c + ft), bf(hpos[2 * ln + ks]), n == 0 and ks == 0) for ks in range(2)] for c in range(2) for ft in range(2)]
            slots.append(Slot(gs, dma4([SD] * 4, vDD, BD, 0, ln * 64 * 1152, bump=(f's_add_u32 s{BD}, s{BD}, 256' if q else '') if n == 0 else None)))
    dstep(0)
    for s in range(3):
        gs = [[Frag(vTL2, ks * 2048, ks * 2048 + 1024, accf(SP, 0), bf(hpos[6 * s + ks]), s == 0 and ks == 0) for ks in range(3 * hg, 3 * hg + 3)] for hg in range(2)]
        slots.append(Slot(gs, dma_l2(s)))
    n0 = len(slots); dstep(1)
    for sl in slots[n0:]:
        for g in sl.groups:
            for f in g: f.acc = (lambda old: (lambda mt: old(mt) + (ACCB - ACCA)))(f.acc)
    NS = len(slots)
    phys = {n: n for n in range(9)}; load_at = {}; hphys = {}
    nxt = 9
    divert = {18: 0, 33: 1, 42: 2, 50: 3}
    for n in range(2, NSEG1):
        if n in divert: hphys[divert[n]] = phys[n - 2]
        else: phys[nxt] = phys[n - 2]; load_at[n] = nxt; nxt += 1
    att_loads = []
    for f in [phys[NSEG1 - 2], phys[NSEG1 - 1], hphys[0], hphys[1], hphys[2]]:
        phys[nxt] = f; att_loads.append(nxt); nxt += 1
    phys[nxt] = hphys[3]; load_at[NSEG1 + 1] = nxt; nxt += 1
    for n in range(NSEG1 + 2, NS):
        if nxt < NS: phys[nxt] = phys[n - 2]; load_at[n] = nxt; nxt += 1
    def dma_groups(n):
        g = slots[n].dma(phys[n])
        slots[n].loads = [x for grp in g for x in grp if x.kind == 'vmem']
        return g

    SV = opt.get('sv', 4.75)
    loud = set(); svc = {id(freset): 1, id(guard): 1}
    def T(text, q=56):
        x = Ins(text); loud.add(id(x)); svc[id(x)] = q; return x
    LPR = 9 * JX // 2
    def pf_gu(it):
        return II(f'''v_add_u32 v102, {64*it}, v{vL}
        v_mul_u32_u24 v103, {65536//LPR+1}, v102
        v_lshrrev_b32 v103, 16, v103
        v_cmp_gt_u32 s[76:77], 9, v103
        v_mul_u32_u24 v103, {9216-LPR*128}, v103
        v_lshl_add_u32 v103, v102, 7, v103
        v_mov_b32 v102, 0x{OOB:x}
        v_cndmask_b32 v103, v102, v103, s[76:77]
        buffer_load_dword v0, v103, {sr(SL)}, s{PFP} offen''')
    stamp('setup')
    if opt.get('est'):
        P('s_waitcnt lgkmcnt(0)')
        for n, r in enumerate((76, 78, 80, 82, 86)): P('s_mov_b32 s%d, s%d' % (sTS + 5 + n, r))

    NPRE = opt.get('npre', 5)
    bg = xload(2) + xload(3) + [('GAP', opt.get('gap1', 20))]
    for n in range(NPRE): bg += dma_groups(n)
    bg += [pf_gu(it) for it in range((9 * LPR + 63) // 64)]
    cnt = [0]; lq = []; lcnt = [0, 10]
    EVERY = opt.get('every', 8)
    def V(t, needs=()):
        r = P(Ins(t, needs))
        cnt[0] += 1
        if bg and cnt[0] >= EVERY:
            cnt[0] = 0
            while bg:
                g = bg.pop(0)
                if isinstance(g, tuple): cnt[0] = -g[1]; break
                emit_all(g)
                if any(x.kind == 'vmem' for x in g): break
        lcnt[0] += 1
        if lq and lcnt[0] >= lcnt[1]:
            lcnt[0] = 0; emit_all([lq.pop(0)])
        return r
    def reduce8(r):
        V('v_add_f32_dpp v%d, v%d, v%d quad_perm:[1,0,3,2] row_mask:0xf bank_mask:0xf' % (r, r, r))
        V('v_add_f32_dpp v%d, v%d, v%d quad_perm:[2,3,0,1] row_mask:0xf bank_mask:0xf' % (r, r, r))
        V('v_add_f32_dpp v%d, v%d, v%d row_half_mirror row_mask:0xf bank_mask:0xf' % (r, r, r))
    def ln_block(blk, defer=False):
        X = XR + 36 * blk
        wa = [64, 76][blk & 1]
        for n in range(36):
            if n < 4: V('v_dot2_f32_bf16 v%d, v%d, s%d, 0' % (68 + n, X + n, ONE2), needs=[xl[blk][0]])
            else: V('v_dot2_f32_bf16 v%d, v%d, s%d, v%d' % (68 + n % 4, X + n, ONE2, 68 + n % 4), needs=[xl[blk][n // 4]])
        stamp('sum%d' % blk)
        V(f'v_add_u32 v77, s{XRO+blk}, v67')
        V('v_lshlrev_b32 v78, 4, v77')
        V('v_add_u32 v78, %d, v78' % RT4)
        V('v_add_f32 v68, v68, v69')
        V('v_add_f32 v70, v70, v71')
        V('v_add_f32 v68, v68, v70')
        V('v_and_b32 v101, 0x70, v77')
        V('v_mul_u32_u24 v101, 12, v101')
        reduce8(68)
        V('v_mul_f32 v68, 0x%x, v68' % f2u(-1.0 / 576))
        wr = []
        LAG = 2
        for n in range(36 + LAG + 1):
            if n < 36:
                t = 80 + 2 * (n % 8)
                V('v_dot2_f32_bf16 v%d, v%d, s%d, v68' % (t, X + n, LO))
                V('v_dot2_f32_bf16 v%d, v%d, s%d, v68' % (t + 1, X + n, HI))
            m = n - LAG
            if 0 <= m < 36:
                t = 80 + 2 * (m % 8)
                V('v_cvt_pk_bf16_f32 v%d, v%d, v%d' % (X + m, t, t + 1))
            m = n - LAG - 1
            if 0 <= m < 36:
                V('v_dot2_f32_bf16 v%d, v%d, v%d, %s' % (72 + m % 4, X + m, X + m, '0' if m < 4 else 'v%d' % (72 + m % 4)))
                if m % 4 == 3:
                    w = Ins('ds_write_b128 v%d, %s offset:%d' % (wa, vr(X + m - 3), (m // 4) * 2048)); wr.append(w)
                    if not defer: P(w)
        dwr = list(wr)
        V('v_lshl_add_u32 v101, v77, 2, v101')
        V('v_add_u32 v101, %d, v101' % RTB)
        V('v_lshlrev_b32 v77, 2, v77')
        V('v_add_f32 v72, v72, v73')
        V('v_add_f32 v74, v74, v75')
        V('v_add_f32 v72, v72, v74')
        V('v_mov_b32 v73, 0x%x' % f2u(1e-5))
        reduce8(72)
        V('v_fmac_f32 v73, 0x%x, v72' % f2u(1.0 / 576))
        V('v_rsq_f32 v96, v73')
        V('v_rcp_f32 v75, v73')
        for t in (1, 2, 3): V('v_mov_b32 v%d, v96' % (96 + t))
        wr.append(P('ds_write_b128 v78, v[96:99]'))
        wr.append(P('ds_write_b32 v101, v96'))
        P(f'buffer_store_dword v75, v77, {sr(SW)}, s{R2} offen')
        return wr, dwr
    slow = []
    nlab = [0]
    def alt_site(inline, other):
        nlab[0] += 1; n = nlab[0]
        slow.append(f'alt{n}:\n' + ''.join('    %s\n' % t for t in other) + f'    s_branch alt{n}_e\n')
        return [Ins(f's_cbranch_vccz alt{n}')] + inline + [Ins(f'alt{n}_e:')]
    def xn_reads(rho, per):
        def texts(r): return ['ds_read_b128 %s, v%d offset:%d' % (breg(ks, 2 * r + t), 65 + (ks & 1), t * 18432 + ks * 1024) for ks in range(18) for t in range(2)]
        rs = [Ins(t) for t in texts(rho)]; ot = texts(1 - rho)
        return rs, [alt_site(rs[n:n + per], ot[n:n + per]) for n in range(0, 36, per)]
    P(f's_bitcmp0_b32 s{ROT}, 1')
    P('s_cselect_b64 vcc, -1, 0')
    w0, _ = ln_block(0); w1, _ = ln_block(1)
    stamp('ln01')
    P(Ins('s_barrier', needs=w0 + w1))
    r0, sites = xn_reads(0, 6)
    lq += sites; lcnt[1] = 24
    w2, d2 = ln_block(2, defer=True)
    emit_all(lq); lq.clear()
    P(Ins('s_barrier', needs=r0))
    lq += d2; lcnt[1] = 12
    w3, _ = ln_block(3)
    emit_all(lq); lq.clear()
    emit_all([g for g in bg if not isinstance(g, tuple)]); bg.clear()
    stamp('ln23')
    P(Ins('s_barrier', needs=w2 + w3 + slots[0].loads))
    r1, sites = xn_reads(1, 36)
    stamp('mf0')

    window = {}
    extra_loads = {}
    AH = 4
    def make_reads(fr, sidx, fi):
        w, o = divmod(phys[sidx] * SLOT, 65536)
        out = []
        if window.get(fr.base, 0) != w:
            d = (w - window.get(fr.base, 0)) * 65536
            out.append(Ins('v_add_u32 v%d, 0x%x, v%d' % (fr.base, d & 0xffffffff, fr.base)))
            window[fr.base] = w
        f = FR + 4 * (fi % 8)
        fr.reg = f
        fr.rd = [Ins('ds_read_b64_tr_b16 %s, v%d offset:%d' % (vr(f + 2 * h, 2), fr.base, o + fr.imm[h])) for h in range(2)]
        return [out + [fr.rd[0]], [fr.rd[1]]]
    def segment(s0, s1, fillers, bar_extra, first_loads=(), extra_need=None, hook=None, quiet=(), pre=()):
        frs = []; groups = []
        for s in range(s0, s1):
            for g in slots[s].groups:
                groups.append((s, len(frs), g))
                for f in g: frs.append((s, f))
        nm = sum(4 * len(g) for _, _, g in groups)
        gm = [[] for _ in range(nm)]; ga = [[] for _ in range(nm)]; gz = [[] for _ in range(nm)]
        used = [0] * nm; vmw = [0] * (nm + 16)
        mf = []; issued = 0; slot_start = {}
        ismem = lambda x: x.kind in ('ds', 'vmem')
        def put(k, items, cost=None):
            (gm if len(items) == 1 and ismem(items[0]) else ga)[k].extend(items)
            used[k] += min(2, sum(x.cost for x in items)) if cost is None else cost
        while issued < AH:
            s, f = frs[issued]
            emit_all(make_reads(f, s, issued)); issued += 1
        emit_all(list(pre))
        pend = [(-1, list(first_loads), ())]
        barpos = {}; vcand = set(); fv = set()
        for (s, f0, g) in groups:
            a = len(mf)
            slot_start.setdefault(s, a)
            n = 4 * len(g)
            for mt in range(4):
                for f in g: mf.append((s, f, mt))
            if a > 0: used[a - 1] += 1
            vcand.update(range(a + 1, a + n, 4))
            items = []
            while issued < min(len(frs), f0 + len(g) + AH):
                s2, f2 = frs[issued]
                r = make_reads(f2, s2, issued)
                if frs[issued - 1][0] != s2: r[0] = ['BAR', s2] + r[0]
                items += r; issued += 1
            for q, it in enumerate(items):
                k = a + q * n // len(items)
                if it[0] == 'BAR':
                    s2 = it[1]
                    ex = bar_extra.get(s2, ((), ()))
                    b = Ins('s_barrier'); b.needs = ('LAZY', s2, list(ex[0]) + ([x for f in g for x in f.rd] if k == a else []))
                    gz[k - 1].append(b); used[k - 1] += 1 if k == a else 2
                    barpos[s2] = k - 1
                    pend.append((k - 1, list(extra_loads.get(s2, [])) + ([load_at[s2]] if s2 in load_at else []), ex[1]))
                    it = it[2:]
                if len(it) == 2: put(max(k - 1, 0), it[:1]); it = it[1:]
                put(k, it)
        class Chain:
            def __init__(c, items, start): c.q = list(items); c.rel = start; c.last = -1; c.cap = 2
        dl = []; dead = {}
        for (k, lds_, post) in pend:
            dl.append(('ATK', k + 1)); dl += list(post)
            for n in lds_:
                for g in dma_groups(n):
                    for x in g:
                        dl.append(x)
                        if x.kind == 'vmem': dead[id(x)] = (n, barpos.get(n, 10 ** 9)); svc[id(x)] = SV * (2 if len(slots[n].groups) == 2 else 1)
        chains = [Chain(dl, 0)] + [Chain(lst, slot_start[s] + off) for (s, off, lst) in fillers if lst]
        leads = {}
        pfree = 0.0
        def head(c, k):
            while c.q and isinstance(c.q[0], tuple):
                it = c.q[0]
                if c.rel > k: return None
                if opt.get('dbg') and it[0] in ('AT', 'BY'):
                    cs = max(x for x in slot_start if slot_start[x] <= k); print('   marker', it, 'reached at slot', cs, '+', k - slot_start[cs], file=sys.stderr)
                if it[0] == 'AT': c.rel = slot_start[it[1]] + it[2]
                elif it[0] == 'ATK': c.rel = it[1]
                elif it[0] == 'BY': assert k <= slot_start[it[1]], ('filler late', it, k, slot_start[it[1]])
                elif it[0] == 'CAP': c.cap = it[1]
                elif it[0] == 'SKIP': c.rel = k + it[1]
                c.q.pop(0)
            if not c.q or c.rel > k: return None
            return c.q[0]
        for k in range(nm):
            if not gm[k] and used[k] < 2:
                cand = []
                for n_, c in enumerate(chains):
                    x = head(c, k)
                    if x is None or isinstance(x, list) or not ismem(x) or c.last >= k: continue
                    if x.kind == 'ds':
                        if used[k] + x.cost > 2: continue
                    elif id(x) not in loud and pfree - k > opt.get('bl', 1.5): continue
                    pr = 1
                    if n_ == 0: pr = 0 if dead.get(id(x), (0, 0))[1] - k < opt.get('crit', 72) else 2
                    cand.append((pr, n_))
                if cand:
                    c = chains[min(cand)[1]]; x = c.q.pop(0); c.last = k
                    put(k, [x], x.cost if x.kind == 'ds' else 1)
                    if x.kind == 'vmem':
                        pfree = max(pfree, k + svc[id(x)]) if id(x) in loud else max(pfree, k) + svc.get(id(x), SV)
                        if id(x) in dead and dead[id(x)][1] < 10 ** 9: leads[dead[id(x)][0]] = dead[id(x)][1] - k
            for c in chains:
                while True:
                    x = head(c, k)
                    if x is None or (not isinstance(x, list) and ismem(x)): break
                    it = x if isinstance(x, list) else [x]
                    cst = min(2, sum(y.cost for y in it))
                    if used[k] + cst > c.cap: break
                    c.q.pop(0); c.last = k; ga[k].extend(it); used[k] += cst
        left = [(x if isinstance(x, list) else [x]) for c in chains for x in c.q if not isinstance(x, tuple)]
        print('DMA leads:', ' '.join('%d:%d' % x for x in sorted(leads.items())), file=sys.stderr)
        assert min(leads.values()) > 30
        for k, (s, f, mt) in enumerate(mf):
            if hook: hook(k, s)
            c = f.acc(mt)
            nd = list(f.rd) + ([extra_need(f, mt)] if extra_need else [])
            P(Ins('v_mfma_f32_16x16x32_bf16 %s, %s, %s, %s' % (vr(c), vr(f.reg), f.b(mt), '0' if f.first else vr(c)), needs=nd))
            for x in gz[k]: x.needs = list(slots[x.needs[1]].loads) + list(x.needs[2])
            emit_all(gm[k] + ga[k] + gz[k])
        return left

    def mul(d, a_, b_): return Ins('v_mul_f32 v%d, v%d, v%d' % (d, a_, b_))
    def cvt(d, a_, b_): return Ins('v_cvt_pk_bf16_f32 v%d, v%d, v%d' % (d, a_, b_))
    kv_stores = []
    def qkv_epi():
        rs = [Ins('ds_read_b128 %s, v%d offset:%d' % (vr(SP + 4 * mt), vRS, 256 * mt)) for mt in range(4)]
        L = list(rs) + [('SKIP', 6)]
        for mp in range(2):
            if mp: L += II(f's_add_u32 s{QM}, s{QM}, {BLK}')
            for c in range(2):
                if c: L += II(f's_add_u32 s{T2}, s{QM}, s{QC}')
                for ft in range(2):
                    te = ACCA + ((2 * c + ft) * 4 + 2 * mp) * 4; to = te + 4
                    for r in range(8):
                        x = mul(te + r, te + r, SP + 8 * mp + r); x.needs = [rs[2 * mp + r // 4]]; L.append(x)
                    L += [cvt(te, te, te + 1), cvt(te + 1, te + 2, te + 3), cvt(te + 2, to, to + 1), cvt(te + 3, to + 2, to + 3)]
                    st = Ins(f'buffer_store_dwordx4 {vr(te)}, v{vQS[0]}, {sr(SW)}, s{T2 if c else QM} offen offset:{1024*ft} sc1')
                    L.append(st); kv_stores.append(st)
        return L
    def l1_epi():
        L = II(f's_lshl_b32 s{T3}, s{FH}, 3\ns_add_u32 s{T3}, s{T3}, {HLONE}\nv_add_u32 v{SP+11}, s{T3}, v{vHW}')
        ws_ = []
        for mt in range(4):
            g0 = ACCA + mt * 4; u0 = ACCA + (4 + mt) * 4
            L += [mul(g0 + t, g0 + t, u0 + t) for t in range(4)] + [cvt(u0, g0, g0 + 1), cvt(u0 + 1, g0 + 2, g0 + 3)]
            w = Ins(f'ds_write_b64 v{SP+11}, {vr(u0,2)} offset:{1024*mt}'); L.append(w); ws_.append(w)
        L2 = II(f's_lshl_b32 s{T3}, s{FH}, 11\ns_add_u32 s{T3}, s{T3}, {HLONE}\nv_add_u32 v{SP+11}, s{T3}, v{vHW}')
        rd = [Ins(f'ds_read_b128 {vr(ACCA+4*m)}, v{SP+11} offset:{1024*m}') for m in range(2)]
        sts = [Ins(f'buffer_store_dwordx4 {vr(ACCA+4*m)}, v{vL16}, {sr(SW)}, s{HLN} offen offset:{1024*m} sc1', needs=[rd[m]]) for m in range(2)]
        return L, sts, ws_, L2 + rd + [('SKIP', 10)] + sts
    hw = {}
    def pair_epi(acc, q):
        L = II(f's_add_u32 s{ST}, s{HS}, {q*2*8192}\ns_lshl_b32 s{T1}, s{FH}, 13\ns_add_u32 s{T1}, s{T1}, {hphys[q]*SLOT}\nv_add_u32 v{SP+11}, s{T1}, v{vHW}')
        sts = []; hw[q] = []
        for mt in range(4):
            g0 = acc + mt * 4; g1 = acc + (4 + mt) * 4; u0 = acc + (8 + mt) * 4; u1 = acc + (12 + mt) * 4
            L += [mul(g0 + t, g0 + t, u0 + t) for t in range(4)]
            L += [mul(g1 + t, g1 + t, u1 + t) for t in range(4)]
            L += [cvt(u0, g0, g0 + 1), cvt(u0 + 1, g0 + 2, g0 + 3), cvt(u0 + 2, g1, g1 + 1), cvt(u0 + 3, g1 + 2, g1 + 3)]
            st = Ins(f'buffer_store_dwordx4 {vr(u0)}, v{vL16}, {sr(SW)}, s{ST} offen offset:{1024*mt} sc1')
            w = Ins(f'ds_write_b128 v{SP+11}, {vr(u0)} offset:{1024*mt}', cost=2)
            L += [st, w]; sts.append(st); hw[q].append(w)
        return L, sts
    def d_epi(acc, q, cs=(0, 1)):
        L = []
        for c in cs:
            L.append(Ins(f's_add_u32 s{ST}, s{PS}, {(2*q+c)*2*8192}'))
            for mt in range(4):
                t0 = acc + (8 * c + mt) * 4; t1 = acc + (8 * c + 4 + mt) * 4
                L += [cvt(t0, t0, t0 + 1), cvt(t0 + 1, t0 + 2, t0 + 3), cvt(t0 + 2, t1, t1 + 1), cvt(t0 + 3, t1 + 2, t1 + 3)]
                L.append(Ins(f'buffer_store_dwordx4 {vr(t0)}, v{vL16}, {sr(SW)}, s{ST} offen offset:{1024*mt} sc1'))
        return L
    def poll_check(name, ld, test):
        g = [Ins(t, needs=[ld] if n == 0 else []) for n, t in enumerate(test)]
        g.append(Ins('s_cbranch_scc0 %s_slow' % name))
        g.append(Ins('%s_ok:' % name))
        S = Prog()
        S.label('%s_slow' % name)
        S('s_mov_b32 s%d, 400000' % SPN)
        S.label('%s_loop' % name)
        S('s_sleep 2')
        S(ld.text)
        S('s_waitcnt vmcnt(0)')
        S('s_sub_u32 s%d, s%d, 1' % (SPN, SPN))
        S('s_cbranch_scc1 %s_ok' % name)
        for t in test: S(t)
        S('s_cbranch_scc0 %s_loop' % name)
        S('s_branch %s_ok' % name)
        slow.append(S.text())
        return g
    def setflag(n, reg):
        return II(f'v_mov_b32 v{reg}, {n}\nbuffer_store_dword v{reg}, v{vFL}, {sr(SW)}, s{MYF} offen sc1')
    def hpoll(n, reg):
        ld = T(f'buffer_load_dword v{reg}, off, {sr(SW)}, s{PF} sc1')
        return ld, poll_check('h%d' % n, ld, [f'v_readfirstlane_b32 s{T2}, v{reg}', f's_cmp_ge_u32 s{T2}, {n}'])

    qe = qkv_epi()
    pe = [pair_epi(PACC[q], q) for q in range(4)]
    le = l1_epi()
    VREG = [ACCA + 4 * n for n in range(16)] + [SP + 4 * n for n in range(4)]
    G0M, G1M = 96, 98
    late = II(f'''s_mov_b32 s{SX}, s8
    s_mov_b32 s{SX+1}, s9
    s_mov_b32 s{SX+2}, 0x{576*1152:x}
    s_mul_i32 s{T1}, s{T0}, {BLK//2}
    s_mul_i32 s{T2}, s{J}, 2304
    s_add_u32 s{T1}, s{T1}, s{T2}
    s_mov_b32 s{G0M}, 0xffff
    s_mov_b32 s{G0M+1}, 0
    s_mov_b32 s{G1M}, 0xffff0000
    s_mov_b32 s{G1M+1}, 0''')
    for a_ in range(5):
        late += II(f's_add_u32 s{KO+a_}, s{T1}, 0x{KOFF + (2*a_-9)*BLK:x}')
        if a_ < 4:
            late.append(II(f's_cmp_ge_u32 s{T0}, {16-4*a_}\ns_cselect_b32 s{KO+a_}, s{KO+a_}, 0x{OOB:x}\ns_cselect_b32 s{KB+a_}, 0, 0xf149'))
    a0, a1, a2, a3 = SP, SP + 1, SP + 2, SP + 3
    vTK, vQR, vTD_, vR0, vR1 = SP + 4, SP + 5, QF + 12, SP + 7, SP + 8
    late += II(f'''v_and_b32 v{a0}, 15, v{vL}
    v_lshrrev_b32 v{a1}, 4, v{vL}
    v_mov_b32 v{a3}, 0x{OOB:x}
    s_mul_i32 s{T2}, s{FH}, 1280
    s_add_u32 s{T3}, s{T2}, {BLK+144*256}
    v_add_u32 v{vKM}, s{T3}, v{vL16}
    v_lshlrev_b32 v{a1}, 4, v{a1}
    v_lshl_add_u32 v{a1}, v{a0}, 6, v{a1}
    s_add_u32 s{T3}, s{T2}, {BLK+73728}
    v_add_u32 v{vVM}, s{T3}, v{a1}
    s_lshl_b32 s{T2}, s{FH}, 7
    s_add_u32 s{T2}, s{T2}, {BLK+73728+1024}
    v_add_u32 v{a1}, s{T2}, v{a1}
    v_cmp_gt_u32 vcc, 2, v{a0}
    s_lshl_b32 s{T2}, s{FH}, 2
    s_add_u32 s{T2}, s{T2}, {BLK+148*256}
    v_lshlrev_b32 v{a2}, 4, v{a0}
    v_cndmask_b32 v{vVR}, v{a3}, v{a1}, vcc
    v_add_u32 v{a2}, s{T2}, v{a2}
    v_cmp_gt_u32 vcc, 32, v{vL}
    v_subrev_u32 v{a1}, {BLK-8}, v{a2}
    v_cndmask_b32 v{vR0}, v{a3}, v{a2}, {sr(G0M,2)}
    v_cndmask_b32 v{vQR}, v{a3}, v{a2}, vcc
    v_cndmask_b32 v{vR1}, v{a3}, v{a1}, {sr(G1M,2)}
    v_cndmask_b32 v{vKR}, v{vR0}, v{a1}, {sr(G1M,2)}
    v_and_b32 v{a0}, 3, v{a0}
    v_mov_b32 v{a2}, 0x3f803f80
    v_cmp_eq_u32 vcc, 2, v{a0}
    v_mul_u32_u24 v{a0}, 3641, v{vL}
    v_lshrrev_b32 v{a0}, 16, v{a0}
    v_cndmask_b32 v{vONES}, 0, v{a2}, vcc
    v_lshlrev_b32 v{a1}, 7, v{vL}
    v_cmp_gt_u32 vcc, 41, v{vL}
    v_mul_u32_u24 v{a0}, {36864-18*128}, v{a0}
    v_lshl_add_u32 v{a0}, v{vL}, 7, v{a0}
    v_cndmask_b32 v{vTD_}, v{a3}, v{a1}, vcc
    v_cmp_gt_u32 vcc, 54, v{vL}
    s_nop 0
    s_nop 0
    v_cndmask_b32 v{vTK}, v{a3}, v{a0}, vcc''')
    kvld = T(f'buffer_load_dwordx4 {vr(SP+12)}, off, {sr(SB)}, s{DB} sc1')
    kvtest = [f'v_readfirstlane_b32 s{T2}, v{SP+12}', f'v_readfirstlane_b32 s{T3}, v{SP+13}', f'v_readfirstlane_b32 s{T1}, v{SP+14}',
              f's_or_b32 s{T2}, s{T2}, s{N0}', f's_or_b32 s{T3}, s{T3}, s{N1}', f's_and_b32 s{T2}, s{T2}, s{T3}',
              f's_and_b32 s{T2}, s{T2}, s{T1}', f's_cmp_eq_u32 s{T2}, 0xffff']
    kvpre = II(f'''s_lshl_b32 s{T3}, s{I}, 2
    s_add_u32 s{T3}, s{T3}, s{Wv}
    s_mul_i32 s{T3}, s{T3}, {BLK}
    s_mul_i32 s{T2}, s{J}, 2304
    s_add_u32 s{T3}, s{T3}, s{T2}
    s_add_u32 s{T3}, s{T3}, 0x{KOFF:x}''')
    kvtouch = [T(f'buffer_load_dword v0, v{vTK}, {sr(SW)}, s{T3} offen')]
    if JX > 2:
        kvtouch += II(f's_sub_u32 s{T3}, s{T3}, {8*BLK}\ns_and_b32 s{T2}, s{I}, {32//JX-2}') + \
                   [II(f's_or_b32 s{T2}, s{T2}, s{N0}\ns_cselect_b32 s{T3}, 0x{OOB:x}, s{T3}'), T(f'buffer_load_dword v0, v{vTK}, {sr(SW)}, s{T3} offen')]
    qld = []; ql = []
    for a_ in range(2):
        l0 = Ins(f'buffer_load_dwordx4 {vr(QF+4*a_)}, v{vKM}, {sr(SW)}, s{T3} offen sc1')
        l1 = [Ins(f'buffer_load_dword v{QF+8+2*a_+h}, v{vQR}, {sr(SW)}, s{T3} offen offset:{8*h} sc1') for h in range(2)]
        ql += [Ins(f's_add_u32 s{T3}, s{KO+4}, {(a_*BLK - 36864) & 0xffffffff}'), l0, l1[0], l1[1]]; qld += [[l0, l1[0]], [l0, l1[1]]]
    km = []; kr = []; kl = []; vld = []; vl = []
    PACE = ('SKIP', 0)
    for b_ in range(11):
        so = Ins(f's_add_u32 s{T3}, s{KO+min(b_//2,4)}, {(b_-2*min(b_//2,4))*BLK}')
        r_ = Ins(f'buffer_load_dword a{6*b_}, v{vR0 if b_ == 0 else (vR1 if b_ == 10 else vKR)}, {sr(SW)}, s{T3} offen sc1'); kr.append(r_)
        kl += [so, r_, PACE]
        lo_, hi_ = b_ // 2, (b_ - 1) // 2
        nm_ = lambda q_: f's{KB+q_}' if 0 <= q_ < 4 else '0'
        if b_ <= 8: kl += II(f's_pack_ll_b32_b16 s{T2}, {nm_(lo_)}, {nm_(hi_)}\nv_accvgpr_write_b32 a{6*b_+1}, s{T2}')
        else: kl += II(f'v_accvgpr_write_b32 a{6*b_+1}, 0')
        if b_ < 10:
            m_ = Ins(f'buffer_load_dwordx4 {ar(6*b_+2)}, v{vKM}, {sr(SW)}, s{T3} offen sc1'); km.append(m_)
            kl += [m_, PACE]
    kld = [[km[u // 2], kr[(u + 1) // 2]] for u in range(20)]
    for v in range(10):
        a_ = Ins(f'buffer_load_dwordx4 {vr(VREG[2*v])}, v{vVM}, {sr(SW)}, s{T3} offen sc1')
        b_ = Ins(f'buffer_load_dwordx4 {vr(VREG[2*v+1])}, v{vVR}, {sr(SW)}, s{T3} offen sc1')
        vl.append([Ins(f's_add_u32 s{T3}, s{KO+v//2}, {(v%2)*BLK}'), a_, PACE, b_, PACE]); vld += [a_, b_]
    def vfix(v): return [Ins(f'v_or_b32 v{VREG[2*v+1]+r}, v{vONES}, v{VREG[2*v+1]+r}', needs=[vld[2 * v + 1]]) for r in range(4)]
    def pf_down(q):
        return (II(f's_add_u32 s{PFD}, s{PFD}, {162*128}') if q else []) + [T(f'buffer_load_dword v0, v{vTD_}, {sr(SD)}, s{PFD} offen offset:2048')]
    pfw = II(f's_mul_i32 s{T2}, s{NN}, {162*128}\ns_lshl_b32 s{T1}, s{Wv}, 13\ns_add_u32 s{T2}, s{T2}, s{T1}') + \
          [II(f's_cmp_ge_u32 s{Wv}, 3\ns_cselect_b32 s{T2}, 0x{OOB:x}, s{T2}')] + II(f'v_lshlrev_b32 v{vTA}, 7, v{vL}')
    pfw2 = [T(f'buffer_load_dword v0, v{vTA}, {sr(SX)}, s{T2} offen')]
    if opt.get('nopfw'): pfw2 = []
    h1ld, h1chk = hpoll(1, vPFP)
    e_ = opt.get('ev', [8, 0, 26, 30, 38])
    flat = lambda l: [y for x in l for y in x]
    NV1 = opt.get('nv1', 3)
    fill1 = [(sl, 0, stamp('slot%d' % sl, True)) for sl in range(NSEG1)] + [
        (0, 2, late0 + late0b + [('BY', 9), ('AT', 9, 4)] + qe + [('BY', 17)] + late + [('AT', 18, 4)]
         + pe[0][0] + [('BY', 24), ('AT', 24, 4)]
         + le[0] + [('BY', 26), ('AT', e_[2], 0), kvld] + pf_down(0) + [('AT', 27, 0)] + le[3] + [('AT', e_[3] - 1, 8), poll_check('kv', kvld, kvtest)] + kvpre + [('AT', e_[3], 0)] + kvtouch + [('BY', 33), ('AT', 33, 4)]
         + pe[1][0] + ql + (([('AT', e_[4], 0)] + pf_down(1)) if JX > 2 else []) + [('BY', 42), ('AT', 42, 4)]
         + pe[2][0] + [('AT', 44, 0)] + kl + flat(vl[:NV1]) + [h1ld]),
    ]
    bx1 = {
        2: (r1, []),
        18: (kv_stores + [freset, guard], II(f's_lshl_b32 s{SPN}, 1, s{J}\nv_mov_b32 v{SP+10}, s{SPN}\nbuffer_atomic_or v{SP+10}, v{vFL}, {sr(SB)}, s{DB} offen offset:8')),
        27: (le[2], []),
        47: (pe[0][1] + le[1] + pe[1][1] + pe[2][1], setflag(1, SP + 10)),
    }
    extra_loads[2] = [5, 6, 7, 8]
    xmap = {}
    for n, x in enumerate(r1):
        ks = n // 2
        for mt in range(4): xmap[breg(ks, mt)] = r1[2 * ks + 1]
    mark = {}
    def hook(k, s):
        if k == 0:
            P(f's_cmp_ge_u32 s{J}, 9')
            P('s_cbranch_scc1 qkv_v')
            mark['a'] = len(P.out)
        if s == 9 and 'b' not in mark:
            mark['b'] = len(P.out)
            P.label('qkv_e')
    left = segment(0, NSEG1, fill1, bx1, first_loads=list(range(NPRE, 5)), hook=hook, pre=sites, extra_need=lambda f, mt: xmap[f.b(mt)])
    alt = ['qkv_v:']
    for x in P.out[mark['a']:mark['b']]:
        t = x.text
        assert x.kind != 'label'
        if x.kind == 'mfma':
            o = [y.strip() for y in t[len(x.op):].split(',')]
            t = '%s %s, %s, %s, %s' % (x.op, o[0], o[2], o[1], o[3])
        alt.append('    ' + t)
    alt.append('    s_branch qkv_e')
    slow.append('\n'.join(alt) + '\n')
    print('left after seg1:', len(left), file=sys.stderr)
    stamp('g1end')

    SREG = [80] + [ACCB + (tl * 4 + mt) * 4 for mt in range(4) for tl in (0, 1, 3, 2)]
    PR = [84, 88]; OM, OR_ = 96, 100; MF, ML = 104, 108
    noskip = lambda l: [x for x in l if not isinstance(x, tuple)]
    def qbuild(t):
        q = QF + 2 * t
        P(Ins(f'v_mov_b32 v{QW+2}, v{q}', needs=qld[t]))
        P(f'v_mov_b32 v{QW+3}, v{q+1}')
        P(f'v_cndmask_b32 v{QW}, 0, v{QF+8+t}, {sr(G0M,2)}')
        P(f'v_cndmask_b32 v{QW+4}, 0, v{QF+8+t}, {sr(G1M,2)}')
    P('v_mov_b32 v%d, 0x%x' % (vTA, NEG))
    P(f'v_mov_b32 v{QW+1}, 0x3f80')
    P(f'v_mov_b32 v{QW+5}, 0x3f800000')
    qbuild(0)
    pq = list(pe[3][0])
    for r in range(4):
        P('v_cmp_lt_i32 vcc, %d, v%d' % (-r, vDG))
        P(pq.pop(0)); P(pq.pop(0))
        P('v_cndmask_b32 v%d, v%d, 0, vcc' % (MF + r, vTA))
        P('v_cndmask_b32 v%d, 0, v%d, vcc' % (ML + r, vTA))
    P(f's_cmp_eq_u32 s{FH}, 0')
    P('s_cselect_b64 vcc, -1, 0')
    P(f's_xor_b32 s{N0}, s{C}, 0x80000000')
    hld = {}
    def hload(k):
        if isinstance(k, tuple):
            ka, kb = k
            pre = II(f's_mul_i32 s{T2}, s{FH}, {(ka-kb)*8192}\ns_add_u32 s{T2}, s{T2}, s{HL}\ns_add_u32 s{T2}, s{T2}, {(17-ka)*8192}')
            tx = lambda kk, mt: f'buffer_load_dwordx4 {breg(hpos[kk], mt)}, v{vL16}, {sr(SW)}, s{T2} offen offset:{1024*mt} sc1'
            ld = [Ins(tx(ka, mt)) for mt in range(4)]
            hld[ka] = [ld[3]] * 4; hld[kb] = [ld[3]] * 4
            if ka == kb: return [pre + ld[:2], ld[2:]]
            return [(pre if h == 0 else []) + alt_site(ld[2*h:2*h+2], [tx(kb, 2*h), tx(kb, 2*h+1)]) for h in range(2)]
        base = HLONE if k == 8 else hphys[k // 2] * SLOT + (k & 1) * 8192
        hld[k] = [Ins(f'ds_read_b128 {breg(hpos[k], mt)}, v{vTB} offset:{1024*mt}') for mt in range(4)]
        return [II(f'v_add_u32 v{vTB}, {base}, v{vHW}') + hld[k]]
    def qk(t, sg):
        u = t + sg
        c = vr(MF) if sg == 0 else (vr(ML) if sg == 16 else '0')
        return Ins('v_mfma_f32_16x16x32_bf16 %s, %s, %s, %s' % (vr(SREG[sg]), ar(3 * u + (u & 1)), vr(QW + 2 * (u & 1)), c), needs=kld[u])
    def mx(sg, dst):
        s = SREG[sg]
        if sg == 0: return II('v_max3_f32 v%d, v%d, v%d, v%d\nv_max_f32 v%d, v%d, v%d' % (dst, s, s + 1, s + 2, dst, dst, s + 3))
        return II('v_max3_f32 v%d, v%d, v%d, v%d\nv_max3_f32 v%d, v%d, v%d, v%d' % (dst, dst, s, s + 1, dst, dst, s + 2, s + 3))
    lk = [x for x in left if any(y in km or y in kr for y in x)]
    if lk:
        n = left.index(lk[-1]) + 1; emit_all(left[:n]); left = left[n:]
    P(qk(0, 0))
    nq = 1; avail = 1; nmx = 0
    while pq:
        x = pq.pop(0); P(x)
        if x.kind == 'ds': avail += 4
        elif nq < avail and len(pq) % 2 == 0: P(qk(0, nq)); nq += 1
    left = left + [[x] for v in range(NV1, 10) for x in noskip(vl[v])]
    while nq < 17:
        P(qk(0, nq)); nq += 1
        emit_all(mx(nmx, vMN)); nmx += 1
    while nmx < 17:
        if left and any(y.kind == 'vmem' for y in left[0]): emit_all(left.pop(0))
        elif left: emit_all(left.pop(0)); continue
        emit_all(mx(nmx, vMN)); nmx += 1
    emit_all(left)
    qbuild(1)
    emit_all(h1chk)
    stamp('attk')
    ow = []
    def o_epi(t):
        P('v_rcp_f32 v%d, v%d' % (vTA, OR_ + 2))
        for r in range(4): P(mul(OM + r, OM + r, vTA))
        for r in range(2): P(mul(OR_ + r, OR_ + r, vTA))
        P(cvt(QF + 2 * t, OM, OM + 1)); P(cvt(QF + 2 * t + 1, OM + 2, OM + 3)); P(cvt(QF + 8 + t, OR_, OR_ + 1))
    def o_flush():
        P(f's_lshl_b32 s{T2}, s{FH}, 3')
        P(f's_add_u32 s{T2}, s{T2}, {HLONE}')
        P(f'v_add_u32 v{vTB}, s{T2}, v{vHW}')
        P(f's_lshl_b32 s{T2}, s{RG}, 9')
        P(f's_lshl_b32 s{T3}, s{FH}, 2')
        P(f's_add_u32 s{T2}, s{T2}, s{T3}')
        P(f's_add_u32 s{T2}, s{T2}, {RT4}')
        P(f'v_lshlrev_b32 v{vTA}, 3, v{vL}')
        P(f'v_add_u32 v{vMX}, 2048, v{vTA}')
        P(f'v_cndmask_b32 v{vTA}, v{vMX}, v{vTA}, {sr(G0M,2)}')
        P(f'v_add_u32 v{vTA}, s{T2}, v{vTA}')
        for t in range(4):
            ow.append(P(f'ds_write_b64 v{vTB}, {vr(QF+2*t,2)} offset:{1024*t}'))
            ow.append(P(f'ds_write_b32 v{vTA}, v{QF+8+t} offset:{128*t}'))
    h2ld, h2chk = hpoll(2, vPFP)
    hplan = opt.get('hplan', {0: [(16, 17), 0, 1, (14, 15), 2, 3, 4, 5, 8], 1: [(12, 13), (9, 9), (17, 16)], 2: [(15, 14), (13, 12)], 3: [(10, 11), 6, 7, (11, 10)]})
    vfixed = set()
    NATT = opt.get('natt', 2)
    dq = []
    for t in range(4):
        stamp('att%d' % t)
        P('v_mov_b32 v%d, v%d' % (vTA, vMN))
        P('v_permlane16_swap_b32 v%d, v%d' % (vTA, vMN))
        P('v_max_f32 v%d, v%d, v%d' % (vMN, vMN, vTA))
        P('v_mov_b32 v%d, v%d' % (vTA, vMN))
        P('v_permlane32_swap_b32 v%d, v%d' % (vTA, vMN))
        P('v_max_f32 v%d, v%d, v%d' % (vMN, vMN, vTA))
        P(f'v_mul_f32 v{vMX}, s{N0}, v{vMN}')
        if t == 1:
            P(Ins('s_barrier', needs=pe[3][1] + hw[3] + [x for k in (0, 1, 2, 3, 4, 5, 8) for x in hld[k]]))
            emit_all(setflag(2, vPFS))
        if t == 3: emit_all(h2chk)
        bq = flat([hload(k) for k in hplan[t]])
        if t == 2:
            for n in att_loads[:NATT]:
                g = dma_groups(n); cur = []
                for x in g:
                    cur += x
                    if x[0].kind == 'vmem': bq.append(cur); cur = []
        ppv = []; pqk = []; pmx = []
        for b in range(9):
            v = (t >> 1) + b
            sgs = [2 * v - t, 2 * v + 1 - t]
            val = [sg for sg in sgs if 0 <= sg <= 16]
            p = PR[b % 2]
            for sg in val:
                for r in (0, 2):
                    s = SREG[sg] + r
                    P(f'v_pk_fma_f32 {vr(s,2)}, {vr(s,2)}, {sr(C,2)}, {vr(vMX,2)} op_sel_hi:[1,0,0]')
            mfs = ppv + [qk(t + 1, g_) for g_ in pqk]
            for sg in val:
                for r in range(4):
                    P('v_exp_f32 v%d, v%d' % (SREG[sg] + r, SREG[sg] + r))
                    if mfs: P(mfs.pop(0))
            emit_all(mfs)
            nb = (len(bq) + (8 - b)) // (9 - b)
            if nb: emit_all(bq.pop(0))
            for g_ in pmx: emit_all(mx(g_, vMN))
            for hh, sg in enumerate(sgs):
                if sg in val:
                    s = SREG[sg]
                    P(cvt(p + 2 * hh, s, s + 1)); P(cvt(p + 2 * hh + 1, s + 2, s + 3))
                else:
                    P('v_mov_b32 v%d, 0' % (p + 2 * hh)); P('v_mov_b32 v%d, 0' % (p + 2 * hh + 1))
            for _ in range(nb - 1): emit_all(bq.pop(0))
            if v not in vfixed:
                vfixed.add(v); emit_all(vfix(v))
            pmx = pqk; pqk = val if t < 3 else []
            ppv = [Ins('v_mfma_f32_16x16x32_bf16 %s, %s, %s, %s' % (vr(OM), vr(VREG[2 * v]), vr(p), '0' if b == 0 else vr(OM)), needs=[vld[2 * v]]),
                   Ins('v_mfma_f32_16x16x32_bf16 %s, %s, %s, %s' % (vr(OR_), vr(VREG[2 * v + 1]), vr(p), '0' if b == 0 else vr(OR_)))]
            if t == 2 and b == 5: P(h2ld)
        assert not bq
        tail = flat([mx(g_, vMN) for g_ in pmx])
        for x in [qk(t + 1, g_) for g_ in pqk] + ppv:
            P(x)
            if tail: P(tail.pop(0))
        emit_all(tail)
        if t < 2: qbuild(t + 2)
        for g_ in pqk: emit_all(mx(g_, vMN))
        o_epi(t)
    o_flush()
    stamp('attend')

    P(Ins('s_barrier', needs=slots[NSEG1].loads + ow))
    bmap = {}
    for k in hld:
        for mt in range(4): bmap[breg(hpos[k], mt)] = hld[k][mt]
    def restage(dst, sbase, stride):
        L = II(f's_lshl_b32 s{T3}, s{FH}, 11\ns_add_u32 s{T3}, s{T3}, {HLONE}\nv_add_u32 v{vTB}, s{T3}, v{vHW}')
        rd = [Ins(f'ds_read_b128 {vr(dst+4*m)}, v{vTB} offset:{1024*m}') for m in range(2)]
        L += rd + II(f's_add_u32 s{T3}, s{sbase}, {stride}') + [('SKIP', 8)]
        L += [Ins(f'buffer_store_dwordx4 {vr(dst+4*m)}, v{vL16}, {sr(SW)}, s{[sbase, T3][m]} offen sc1', needs=[rd[m]]) for m in range(2)]
        return L, rd
    oe, ord_ = restage(QF, OB, 18432)
    rr = Ins(f'ds_read_b128 {vr(QF+8)}, v{vTA}')
    oe += II(f'v_add_u32 v{vTA}, {RT4}, v{vL16}') + [rr] + II(f'v_lshrrev_b32 v{vTA}, 3, v{vL}\nv_mul_u32_u24 v{vTA}, {18432-128}, v{vTA}\nv_add_u32 v{vTA}, v{vTA}, v{vL16}') + [('SKIP', 8)]
    oe += [Ins(f'buffer_store_dwordx4 {vr(QF+8)}, v{vTA}, {sr(SW)}, s{OR} offen sc1', needs=[rr])]
    l2e = II(f's_lshl_b32 s{T3}, s{FH}, 3\ns_add_u32 s{T3}, s{T3}, {HLONE}\nv_add_u32 v{vTB}, s{T3}, v{vHW}'); l2w = []
    for mt in range(4):
        t0 = SP + mt * 4
        w = Ins(f'ds_write_b64 v{vTB}, {vr(t0,2)} offset:{1024*mt}'); l2w.append(w)
        l2e += [cvt(t0, t0, t0 + 1), cvt(t0 + 1, t0 + 2, t0 + 3), w]
    l2s, _ = restage(SP, PLN, 1024)
    fill2 = [(sl, 0, stamp('slot%d' % sl, True)) for sl in range(NSEG1, NS)] + [
        (NSEG1, 0, oe + [('AT', NSEG1 + 9, 4)] + d_epi(ACCA, 0) + [('AT', NSEG1 + 12, 4)] + l2e + [('BY', NSEG1 + 14)] + pfw
         + [('AT', NSEG1 + 15, 0)] + l2s[:-3] + [('AT', NSEG1 + 15, 12)] + l2s[-2:] + [('AT', NSEG1 + 16, 8)] + pfw2 + [('AT', NS - 1, 20), ('CAP', 3)] + d_epi(ACCB, 1, (0,)) + [('SKIP', 99)] + d_epi(ACCB, 1, (1,)))]
    left = segment(NSEG1, NS, fill2, {NSEG1 + 1: (hld[6] + hld[7], []), NSEG1 + 15: (l2w, [])}, first_loads=att_loads[NATT:], extra_need=lambda f, mt: bmap[f.b(mt)])
    emit_all(left)
    if stamps:
        P('s_waitcnt vmcnt(0)')
        stamp('end')
        P('s_waitcnt lgkmcnt(0)')
        P(f's_lshl_b32 s{T2}, s2, 7')
        P(f's_add_u32 s{T2}, s{T2}, 0x{STAMP_OFF:x}')
        P('s_mov_b32 s%d, s22' % (sTS + len(stamps)))
        P('v_mov_b32 v81, 0')
        for n in range(10):
            P('v_mov_b32 v80, s%d' % (sTS + (n if opt.get('est') else min(n, len(stamps)))))
            P(f'buffer_store_dwordx2 v[80:81], v{vFL}, {sr(SW)}, s{T2} offen offset:{8*n}')
    P.label('K1_end')
    P('s_endpgm')
    print('K1: instrs', len(P.out), 'nops', P.nnop, file=sys.stderr)
    return P.text() + ''.join(slow)
```

```python
import sys
sys.path.insert(0, 'gen')
from prog import *
from asmlib import kernel_desc, STAMP_OFF
from k1 import *

def gen_k2(stamps=False, opt={}):
    P = Prog()
    SX, SO, SWO, SW = 24, 28, 32, 36
    sWv, sC, sM, sT0, sT1, sT2, sOFF, sLB = 40, 41, 42, 43, 44, 45, 46, 47
    sLO, sHI = 48, 49
    OF, PT, XR, ACC, SUM, FR = 16, 88, 152, 160, 176, 192
    P('s_cmp_ge_u32 s2, 240')
    P('s_cbranch_scc1 K2_end')
    P('s_and_b32 s%d, s2, 7' % sT0)
    P('s_mul_i32 s%d, s%d, 30' % (sT0, sT0))
    P('s_lshr_b32 s%d, s2, 3' % sT1)
    P('s_add_u32 s%d, s%d, s%d' % (sT0, sT0, sT1))
    P('s_cmp_ge_u32 s%d, 234' % sT0)
    P('s_cbranch_scc1 K2_end')
    P('s_load_dwordx16 s[4:19], s[0:1], 0')
    P('s_load_dwordx2 s[22:23], s[0:1], 72')
    if stamps: P('s_memrealtime s[60:61]')
    P('v_and_b32 v1, 63, v0')
    P('v_lshrrev_b32 v2, 6, v0')
    P('v_readfirstlane_b32 s%d, v2' % sWv)
    P('s_mul_i32 s%d, s%d, 7282' % (sT1, sT0))
    P('s_lshr_b32 s%d, s%d, 16' % (sT1, sT1))
    P('s_mul_i32 s%d, s%d, 9' % (sT2, sT1))
    P('s_sub_u32 s%d, s%d, s%d' % (sC, sT0, sT2))
    P('s_mul_i32 s%d, s%d, 5' % (sM, sT1))
    P('s_add_u32 s%d, s%d, s%d' % (sM, sM, sWv))
    P('v_lshrrev_b32 v3, 3, v1')
    P('v_and_b32 v4, 7, v1')
    P('v_and_b32 v5, 6, v3')
    P('v_xor_b32 v4, v4, v5')
    P('v_lshlrev_b32 v4, 4, v4')
    P('v_mul_u32_u24 v5, 1152, v3')
    P('v_add_u32 v5, v5, v4')
    P('v_lshrrev_b32 v6, 2, v3')
    P('v_mul_u32_u24 v6, %d, v6' % (32 * 1152))
    P('v_add_u32 v6, v6, v5')
    P('v_lshlrev_b32 v2, 4, v1')
    P('s_waitcnt lgkmcnt(0)')
    def srd(d, b, nbytes):
        P('s_mov_b32 s%d, s%d' % (d, b))
        P('s_mov_b32 s%d, s%d' % (d + 1, b + 1))
        P('s_mov_b32 s%d, 0x%x' % (d + 2, nbytes))
        P('s_mov_b32 s%d, 0x00020000' % (d + 3))
    srd(SWO, 8, 576 * 1152)
    srd(SW, 22, WSB)
    P('s_lshl_b32 s%d, s%d, 7' % (sLB, sC))
    dm = []
    for t in range(13):
        P('s_add_u32 s%d, s%d, %d' % (sT0, sWv, 5 * t))
        P('s_lshl_b32 m0, s%d, 10' % sT0)
        P('s_lshr_b32 s%d, s%d, 2' % (sT1, sT0))
        P('s_mul_i32 s%d, s%d, %d' % (sOFF, sT1, 36 * 1152))
        P('s_and_b32 s%d, s%d, 2' % (sT1, sT0))
        P('s_mul_i32 s%d, s%d, %d' % (sT1, sT1, 10 * 1152))
        P('s_add_u32 s%d, s%d, s%d' % (sOFF, sOFF, sT1))
        P('s_and_b32 s%d, s%d, 1' % (sT1, sT0))
        P('s_mul_i32 s%d, s%d, %d' % (sT1, sT1, 8 * 1152))
        P('s_add_u32 s%d, s%d, s%d' % (sOFF, sOFF, sT1))
        P('s_add_u32 s%d, s%d, s%d' % (sOFF, sOFF, sLB))
        dm.append(P('buffer_load_dwordx4 v5, %s, s%d offen lds' % (sr(SWO), sOFF)))
    for t in range(2):
        P('s_add_u32 s%d, s%d, %d' % (sT0, sWv, 5 * t))
        P('s_lshl_b32 s%d, s%d, 10' % (sT1, sT0))
        P('s_add_u32 m0, s%d, %d' % (sT1, 65 * 1024))
        P('s_mul_i32 s%d, s%d, %d' % (sOFF, sT0, 72 * 1152))
        P('s_add_u32 s%d, s%d, %d' % (sOFF, sOFF, 16 * 1152))
        P('s_add_u32 s%d, s%d, s%d' % (sOFF, sOFF, sLB))
        dm.append(P('buffer_load_dwordx4 v6, %s, s%d offen lds' % (sr(SWO), sOFF)))
    if opt.get('k2exp'):
        P('s_waitcnt vmcnt(0)')
        P('s_barrier')
        P('s_memrealtime s[62:63]')
    P('s_mul_i32 s%d, s%d, 18432' % (sT0, sM))
    ol = []
    for k in range(18):
        if k % 4 == 0: P('s_add_u32 s%d, s%d, 0x%x' % (sOFF, sT0, OOFF + k * 1024))
        if k < 16: ol.append(P('buffer_load_dwordx4 %s, v2, %s, s%d offen offset:%d' % (vr(OF + 4 * k), sr(SW), sOFF, 1024 * (k % 4))))
        else:
            if k == 16: P('v_lshlrev_b32 v7, 3, v1')
            P('buffer_load_dwordx2 %s, v7, %s, s%d offen offset:%d' % (vr(OF + 4 * k, 2), sr(SW), sOFF, 1024 * (k % 4)))
            ol.append(P('buffer_load_dwordx2 %s, v7, %s, s%d offen offset:%d' % (vr(OF + 4 * k + 2, 2), sr(SW), sOFF, 1024 * (k % 4) + 512)))
    if opt.get('k2exp'):
        P('s_waitcnt vmcnt(0)')
        P('s_barrier')
        P('s_memrealtime s[64:65]')
    P('s_lshr_b32 s%d, s%d, 3' % (sT0, sM))
    P('s_mul_i32 s%d, s%d, %d' % (sT0, sT0, 8 * 18 * 8192))
    P('s_and_b32 s%d, s%d, 7' % (sT1, sM))
    P('s_lshl_b32 s%d, s%d, 10' % (sT1, sT1))
    P('s_add_u32 s%d, s%d, s%d' % (sT0, sT0, sT1))
    P('s_lshl_b32 s%d, s%d, 14' % (sT1, sC))
    P('s_add_u32 s%d, s%d, s%d' % (sT0, sT0, sT1))
    pl = []
    for p in range(8):
        for u in range(2):
            P('s_add_u32 s%d, s%d, 0x%x' % (sOFF, sT0, POFF + p * 18 * 8192 + u * 8192))
            pl.append(P('buffer_load_dwordx4 %s, v2, %s, s%d offen' % (vr(PT + 8 * p + 4 * u), sr(SW), sOFF)))
    if opt.get('k2exp'):
        P('s_waitcnt vmcnt(0)')
        P('s_barrier')
        P('s_memrealtime s[66:67]')
    srd(SX, 4, 2048 * 1152)
    srd(SO, 18, 2048 * 1152)
    P('v_and_b32 v7, 15, v1')
    P('v_lshrrev_b32 v8, 4, v1')
    P('v_mul_u32_u24 v9, 1152, v7')
    P('v_and_b32 v10, 1, v8')
    P('v_lshl_add_u32 v9, v10, 5, v9')
    P('v_lshrrev_b32 v11, 1, v8')
    P('v_lshl_add_u32 v9, v11, 4, v9')
    P('s_mul_i32 s%d, s%d, 18432' % (sT2, sM))
    P('s_add_u32 s%d, s%d, s%d' % (sT2, sT2, sLB))
    xl = [P('buffer_load_dwordx4 %s, v9, %s, s%d offen offset:%d' % (vr(XR + 4 * u), sr(SX), sT2, 64 * u)) for u in range(2)]
    P('v_lshlrev_b32 v12, 2, v7')
    P('s_lshl_b32 s%d, s%d, 6' % (sT1, sM))
    P('s_add_u32 s%d, s%d, 0x%x' % (sT1, sT1, ROFF))
    rl = P('buffer_load_dword v3, v12, %s, s%d offen' % (sr(SW), sT1))
    P('v_lshrrev_b32 v12, 2, v7')
    P('v_lshl_add_u32 v12, v10, 2, v12')
    P('v_lshrrev_b32 v13, 1, v12')
    P('v_lshlrev_b32 v12, 7, v12')
    P('v_lshl_add_u32 v12, v11, 10, v12')
    P('v_lshl_add_u32 v12, v13, 5, v12')
    P('v_and_b32 v13, 3, v7')
    P('v_lshl_add_u32 v12, v13, 3, v12')
    for dt in range(1, 4): P('v_xor_b32 v%d, %d, v12' % (12 + dt, 32 * dt))
    P('s_mov_b32 s%d, 0x00003f80' % sLO)
    P('s_mov_b32 s%d, 0x3f800000' % sHI)
    for r in range(16): P('v_mov_b32 v%d, 0' % (SUM + r))
    if stamps and not opt.get('k2exp'): P('s_memrealtime s[62:63]')
    P(Ins('s_barrier', needs=dm))
    if stamps and not opt.get('k2exp'): P('s_memrealtime s[64:65]')
    rds = {}
    def rd(n):
        k, dt = divmod(n, 4)
        if n == 64:
            for d in range(4): P('v_add_u32 v%d, 0x10000, v%d' % (12 + d, 12 + d))
        off = k * 4096 if k < 16 else (k - 16) * 4096 + 1024
        f = FR + 4 * (n % 8)
        rds[n] = [P('ds_read_b64_tr_b16 %s, v%d offset:%d' % (vr(f + 2 * h, 2), 12 + dt, off + 2048 * h)) for h in range(2)]
    AH = 6
    for n in range(AH): rd(n)
    for n in range(72):
        k, dt = divmod(n, 4)
        P(Ins('v_mfma_f32_16x16x32_bf16 %s, %s, %s, %s' % (vr(ACC + 4 * dt), vr(FR + 4 * (n % 8)), vr(OF + 4 * k), '0' if k == 0 else vr(ACC + 4 * dt)), needs=rds[n] + [ol[k]]))
        if n + AH < 72: rd(n + AH)
    if stamps and not opt.get('k2exp'): P('s_memrealtime s[66:67]')
    for p in range(8):
        for u in range(2):
            for q in range(4):
                src = PT + 8 * p + 4 * u + q
                P(Ins('v_dot2c_f32_bf16 v%d, s%d, v%d' % (SUM + 8 * u + 2 * q, sLO, src), needs=[pl[2 * p + u]]))
                P('v_dot2c_f32_bf16 v%d, s%d, v%d' % (SUM + 8 * u + 2 * q + 1, sHI, src))
    P(Ins('v_mul_f32 v4, 0x%x, v3' % f2u(-1.4426950408889634), needs=[rl]))
    T = FR
    for r in range(16): P('v_mul_f32 v%d, v%d, v4' % (T + r, SUM + r))
    for r in range(16): P('v_exp_f32 v%d, v%d' % (T + r, T + r))
    for r in range(16): P('v_mul_f32 v%d, v%d, v3' % (SUM + r, SUM + r))
    for r in range(16): P('v_add_f32 v%d, 1.0, v%d' % (T + r, T + r))
    for r in range(16): P('v_rcp_f32 v%d, v%d' % (T + r, T + r))
    for r in range(16): P('v_mul_f32 v%d, v%d, v%d' % (ACC + r, ACC + r, SUM + r))
    for r in range(16): P('v_mul_f32 v%d, v%d, v%d' % (ACC + r, ACC + r, T + r))
    for u in range(2):
        for r in range(4): P('v_permlane16_swap_b32 v%d, v%d' % (ACC + 8 * u + r, ACC + 8 * u + 4 + r))
    for u in range(2):
        for q in range(4):
            P(Ins('v_dot2c_f32_bf16 v%d, s%d, v%d' % (ACC + 8 * u + 2 * q, sLO, XR + 4 * u + q), needs=[xl[u]]))
            P('v_dot2c_f32_bf16 v%d, s%d, v%d' % (ACC + 8 * u + 2 * q + 1, sHI, XR + 4 * u + q))
    for u in range(2):
        for q in range(4):
            P('v_cvt_pk_bf16_f32 v%d, v%d, v%d' % (XR + 4 * u + q, ACC + 8 * u + 2 * q, ACC + 8 * u + 2 * q + 1))
        P('buffer_store_dwordx4 %s, v9, %s, s%d offen offset:%d' % (vr(XR + 4 * u), sr(SO), sT2, 64 * u))
    if stamps:
        P('s_waitcnt vmcnt(0)')
        P('s_memrealtime s[68:69]')
        P('s_waitcnt lgkmcnt(0)')
        P('s_lshl_b32 s%d, s2, 7' % sT2)
        P('s_add_u32 s%d, s%d, 0x%x' % (sT2, sT2, STAMP_OFF + (1 << 18)))
        P('v_mov_b32 v4, 0x%x' % OOB)
        P('v_cmp_eq_u32 vcc, 0, v0')
        P('v_cndmask_b32 v4, v4, 0, vcc')
        P('v_mov_b32 v7, 0')
        for n in range(10):
            P('v_mov_b32 v6, s%d' % (60 + 2 * min(n, 4)))
            P('buffer_store_dwordx2 v[6:7], v4, %s, s%d offen offset:%d' % (sr(SW), sT2, 8 * n))
    P.label('K2_end')
    P('s_endpgm')
    print('K2: instrs', len(P.out), 'nops', P.nnop, file=sys.stderr)
    return P.text()

HEAD = """; Fused LayerNorm + sliding-window attention + bilinear GLU FFN, gfx950.  Generated by gen/main.py (hand-designed schedule).
; @launch kernel=ffn_attn_kernel grid=(256,1,1) block=(256,1,1) lds=163840
; @launch kernel=final_kernel grid=(240,1,1) block=(320,1,1) lds=76800
.amdgcn_target "amdgcn-amd-amdhsa--gfx950"
.text
"""
def kb(name): return '.globl %s\n.p2align 8\n.type %s,@function\n%s:\n' % (name, name, name)
def build(**kw):
    st = kw.get('stamps', False)
    t = HEAD + kb('ffn_attn_kernel') + gen_k1(**kw) + kb('final_kernel') + gen_k2(stamps=st, opt=kw.get('opt', {})) + 'code_end:\n'
    t += '.section .rodata,"a"\n.p2align 6\n' + kernel_desc('ffn_attn_kernel', 512, accum=256) + '.p2align 6\n' + kernel_desc('final_kernel', 224)
    return t

if __name__ == '__main__':
    open('recurrent_scan__sliding_block__glu_gated_bilinear__prompt.s', 'w').write(build())
    open('k_st.s', 'w').write(build(stamps=['mf0', 'slot9', 'slot18', 'slot24', 'slot33', 'slot42', 'g1end', 'attend', 'end']))
    open('k_st2.s', 'w').write(build(stamps=['setup', 'sum0', 'sum1', 'ln01', 'sum2', 'sum3', 'ln23', 'mf0', 'end']))
    open('k_st3.s', 'w').write(build(stamps=['g1end', 'attk', 'att1', 'att2', 'att3', 'attend', 'slot60', 'slot63', 'end']))
```

```python
import sys, struct
sys.path.insert(0, 'gen')
from prog import *
from asmlib import STAMP_OFF

HOFF = 0x0000000
POFF = 0x1200000
BLK = 110592
KOFF = 0x2400000 + BLK
OOFF = 0x2C00000
ROFF = 0x2F00000
FOFF = 0x2F10000
WSB = 256 << 20
OOB = 0x10000000
NEG = 0xF149F2CA
SCALE = 0.2357022603955158 * 1.4426950408889634
def f2u(x): return struct.unpack('<I', struct.pack('<f', x))[0]

SLOT = 16384
XB = 5 * SLOT
HLONE = 9 * SLOT
RT4 = 155648
RTB = RT4 + 2048
NCODE = 80

def vr(b, n=4): return 'v[%d:%d]' % (b, b + n - 1)
def ar(b, n=4): return 'a[%d:%d]' % (b, b + n - 1)
def sr(b, n=4): return 's[%d:%d]' % (b, b + n - 1)
def II(text): return [Ins(l) for l in text.strip().split('\n') if l.strip()]

class Frag:
    def __init__(s, base, imm0, imm1, acc, b, first):
        s.base, s.imm, s.acc, s.b, s.first = base, (imm0, imm1), acc, b, first
class Slot:
    def __init__(s, groups, dma):
        s.groups, s.dma, s.loads = groups, dma, None

def gen_k1(JX=4, stamps=False, opt={}):
    P = Prog()
    SX, SQ, SG, SU, SD, SW, SB, SL = 24, 28, 32, 36, 40, 44, 48, 52
    I, J, Wv, RG, FH, E, Pp, T0, T1, T2, T3, OFF, ST, SPN = range(56, 70)
    W4096, W3072, BP, BL1, BD, SIG = range(70, 76)
    BL2 = 76
    HS, HLN, HL, PS, PLN = range(79, 84)
    C, N0, N1 = 84, 85, 86
    QM, QC, BQ, ONE2, LO, HI, R2, XRO = 87, 91, 92, 93, 94, 95, 96, 97
    KO, KB = 87, 92
    NN = 101
    SH = 75 + 11
    OB, OR, MYF, PF, PFD, DB = 4, 5, 6, 7, 10, 11
    PFP, J0 = 0, 1
    ROT = 3
    sTS = 12
    vL, vL16 = 1, 2
    vDQ = [3, 4, 5, 6]; vDL2 = 7
    vDP = [8, 9]; vDL1 = 10; vTP = [11, 12]; vTL1 = 13
    vTQ = [14, 15]; vDD = [16, 17, 18, 19]; vTD = [20, 21]; vTL2 = 22
    vQS = [23]; vTB = 24; vRS = 25
    vPFP, vPFS, vHW, vFL, vDG, vOR = 26, 27, 28, 29, 30, 31
    vKM, vKR, vVM, vVR = 3, 4, 5, 6
    QW = 8
    vMX, vMN, vTA, vONES = 14, 15, 23, 25
    XT, QF, FR, ACCA, ACCB, SP = 32, 64, 80, 112, 176, 240
    def stamp(name, ret=False):
        if stamps and name in stamps:
            n = stamps.index(name)
            x = [Ins('s_mov_b32 s%d, s22' % (sTS + n)), Ins('s_memrealtime s[22:23]')]
            if ret: return [x]
            for y in x: P(y)
        return []
    def breg(pos, mt):
        i = pos * 4 + mt
        return ar(4 * i) if i < 64 else vr(XT + 4 * (i - 64))
    def emit_all(lst):
        for x in lst:
            if isinstance(x, list): emit_all(x)
            elif x.kind == 'label': P.out.append(x)
            else: P(x)
    lg = lambda x: x.bit_length() - 1
    ng = 16 // JX

    P('s_cmp_ge_u32 s2, 256')
    P('s_cbranch_scc1 K1_end')
    P('s_load_dwordx16 s[4:19], s[0:1], 0')
    P('s_load_dwordx4 s[20:23], s[0:1], 64')
    if stamps: P('s_memrealtime s[84:85]')
    def code_touch():
        P('s_getpc_b64 %s' % sr(SL, 2))
        P.label('K1_pc')
        P(f'''s_mov_b32 s{SL+2}, code_end-K1_pc
        s_mov_b32 s{SL+3}, 0x00020000
        s_lshr_b32 s{SPN}, s2, 3
        s_and_b32 s{SPN}, s{SPN}, 7
        s_mul_i32 s{SPN}, s{SPN}, {NCODE*128}
        v_lshlrev_b32 v80, 7, v0
        v_mov_b32 v89, 0x{OOB:x}
        v_cmp_gt_u32 vcc, {NCODE}, v0
        v_cndmask_b32 v80, v89, v80, vcc
        buffer_load_dword v79, v80, {sr(SL)}, s{SPN} offen''')
    if not opt.get('ctlate'): code_touch()
    P(f'''s_lshr_b32 s{NN}, s2, 3
    v_mov_b32 v89, 0x{OOB:x}
    v_and_b32 v{vL}, 63, v0
    v_lshrrev_b32 v80, 6, v0
    v_readfirstlane_b32 s{Wv}, v80
    s_and_b32 s{T0}, s2, 7
    s_and_b32 s{J}, s{T0}, {ng-1}
    s_lshl_b32 s{J}, s{J}, {lg(JX)}
    s_and_b32 s{T2}, s{NN}, {JX-1}
    s_or_b32 s{J}, s{J}, s{T2}
    s_lshr_b32 s{I}, s{T0}, {lg(ng)}
    s_lshl_b32 s{I}, s{I}, {lg(32//JX)}
    s_lshr_b32 s{T2}, s{NN}, {lg(JX)}
    s_or_b32 s{I}, s{I}, s{T2}
    s_and_b32 s{RG}, s{Wv}, 1
    s_lshr_b32 s{FH}, s{Wv}, 1
    s_and_b32 s{E}, s{J}, 1
    s_lshr_b32 s{Pp}, s{J}, 1
    s_and_b32 s{ROT}, s{J}, {min(JX-1, 3)}
    v_lshrrev_b32 v82, 3, v{vL}
    v_and_b32 v83, 7, v{vL}
    v_mul_u32_u24 v100, 1152, v82
    v_lshl_add_u32 v100, v83, 4, v100
    s_lshl_b32 s{T0}, s{I}, 3
    s_lshl_b32 s{T1}, s{RG}, 2
    s_add_u32 s{T0}, s{T0}, s{T1}
    s_add_u32 s{T1}, s{T0}, s{FH}
    s_mul_i32 s{T1}, s{T1}, {16*1152}''')
    if JX == 2: P(f's_lshl_b32 s{ROT}, s{ROT}, 1')
    def xro(blk):
        P(f'''s_xor_b32 s{T2}, s{ROT}, {blk}
        s_and_b32 s{T3}, s{T2}, 1
        s_lshl_b32 s{T3}, s{T3}, 3
        s_and_b32 s{T2}, s{T2}, 2
        s_lshl_b32 s{T2}, s{T2}, 4
        s_or_b32 s{XRO+blk}, s{T2}, s{T3}''')
    xro(0)
    if opt.get('est'): P('s_memrealtime s[76:77]')
    P('s_waitcnt lgkmcnt(0)')
    if opt.get('est'): P('s_memrealtime s[78:79]')
    def srd(d, b, nbytes, shift=0):
        if shift:
            P('s_sub_u32 s%d, s%d, %d' % (d, b, shift))
            P('s_subb_u32 s%d, s%d, 0' % (d + 1, b + 1))
        else:
            P('s_mov_b32 s%d, s%d' % (d, b))
            P('s_mov_b32 s%d, s%d' % (d + 1, b + 1))
        P('s_mov_b32 s%d, 0x%x' % (d + 2, nbytes + shift))
        P('s_mov_b32 s%d, 0x00020000' % (d + 3))
    srd(SX, 4, 2048 * 1152)
    XR = 112
    xl = []
    def xload(blk):
        ld = [Ins('buffer_load_dwordx4 %s, v100, %s, s%d offen offset:%d' % (vr(XR + 36 * blk + 4 * l), sr(SX), OFF, 128 * l)) for l in range(9)]
        xl.append(ld)
        return [II(f's_mul_i32 s{OFF}, s{XRO+blk}, 1152\ns_add_u32 s{OFF}, s{OFF}, s{T1}')] + [[x] for x in ld]
    emit_all(xload(0))
    if opt.get('ctlate'): code_touch()
    if opt.get('est'): P('s_memrealtime s[80:81]')
    if opt.get('est') == 2:
        P('s_waitcnt vmcnt(8)')
        P('s_memrealtime s[82:83]')
        P('s_waitcnt vmcnt(0)')
        P('s_memrealtime s[86:87]')
    for blk in range(1, 4): xro(blk)
    srd(SQ, 6, 576 * 3456, shift=2048)
    RS = 36 // JX
    P(f'''s_and_b32 s{J0}, s{J}, {16-JX}
    s_and_b32 s{SH}, s2, 7
    s_lshr_b32 s{SH}, s{SH}, {lg(ng)}
    s_lshl_b32 s{SH}, s{SH}, 5
    s_add_u32 s{SH}, s{SH}, s{NN}
    v_lshrrev_b32 v86, {lg(2*JX)}, v0
    v_and_b32 v87, {2*JX-1}, v0
    v_mul_u32_u24 v88, 3456, v86
    v_lshl_add_u32 v87, v87, 7, v88
    v_cmp_gt_u32 vcc, {RS}, v86
    v_cndmask_b32 v87, v89, v87, vcc
    s_mul_i32 s{ST}, s{SH}, {RS*3456}
    s_lshl_b32 s{T2}, s{J0}, 8
    s_add_u32 s{BL2}, s{ST}, s{T2}
    v_mov_b32 v104, v87''')
    qtouch = [Ins(f'buffer_load_dword v79, v104, {sr(SQ)}, s{BL2} offen offset:2048')]
    if opt.get('qt', 0) == 0: emit_all(qtouch)
    srd(SG, 12, 576 * 9216)
    srd(SU, 14, 576 * 9216, shift=2048)
    srd(SD, 16, 4608 * 1152, shift=2048)
    srd(SW, 22, WSB)
    srd(SB, 20, 256)
    P(f'''s_cmp_ge_u32 s{Wv}, 2
    s_cselect_b32 s{SL}, s14, s12
    s_cselect_b32 s{SL+1}, s15, s13
    s_mov_b32 s{SL+2}, 0x{576*9216:x}
    s_mov_b32 s{SL+3}, 0x00020000
    s_mul_i32 s{PFP}, s{SH}, {RS*9216}
    s_mul_i32 s{SPN}, s{RG}, 81
    s_mul_i32 s{T2}, s{J0}, 576
    s_add_u32 s{PFP}, s{PFP}, s{T2}''')
    if stamps: P('s_mov_b64 s[22:23], s[84:85]')
    P(f'''s_lshl_b32 s{W4096}, s{Wv}, 12
    s_lshl_b32 s{BQ}, s{J}, 8
    s_mul_i32 s{T2}, s{Wv}, {16*3456}
    s_add_u32 s{BQ}, s{BQ}, s{T2}
    s_cmp_ge_u32 s{J}, 14
    s_cselect_b32 s{BQ}, 0x{OOB:x}, s{BQ}
    s_lshl_b32 s{R2}, s{I}, 9
    s_add_u32 s{R2}, s{R2}, 0x{ROFF:x}
    s_cmp_eq_u32 s{J}, 15
    s_cselect_b32 s{R2}, s{R2}, 0x{OOB:x}
    s_mov_b32 s{ONE2}, 0x3f803f80
    s_mov_b32 s{LO}, 0x00003f80
    s_mov_b32 s{HI}, 0x3f800000
    v_lshrrev_b32 v84, 4, v{vL}
    v_and_b32 v85, 15, v{vL}
    v_cmp_eq_u32 vcc, 0, v0
    v_cndmask_b32 v{vFL}, v89, 0, vcc
    v_lshlrev_b32 v86, 1, v82
    v_and_b32 v86, 4, v86
    v_xor_b32 v86, v83, v86
    v_mul_u32_u24 v87, 9216, v82
    v_lshl_add_u32 v{vDP[0]}, v86, 4, v87
    v_mul_u32_u24 v88, 3456, v82
    v_lshl_add_u32 v90, v86, 4, v88
    v_add_u32 v{vDQ[0]}, 2048, v90
    v_add_u32 v{vDQ[2]}, 128, v90
    v_xor_b32 v86, 2, v86
    v_lshl_add_u32 v{vDP[1]}, v86, 4, v87
    v_add_u32 v{vDP[1]}, {8*9216-1024}, v{vDP[1]}
    v_lshl_add_u32 v90, v86, 4, v88
    v_add_u32 v{vDQ[1]}, {8*3456-1024+2048}, v90
    v_add_u32 v{vDQ[3]}, {8*3456-1024+128}, v90
    s_lshl_b32 s{SIG}, s{E}, 1
    s_sub_u32 s{SIG}, 1, s{SIG}
    s_mul_i32 s{BP}, s{Pp}, 1152
    s_lshl_b32 s{T3}, s{E}, 10
    s_add_u32 s{BP}, s{BP}, s{T3}
    s_mul_i32 s{T3}, s{Wv}, {16*9216}
    s_add_u32 s{BP}, s{BP}, s{T3}
    v_and_b32 v87, 3, v{vL}
    v_lshrrev_b32 v86, 2, v85
    v_and_b32 v88, 1, v84
    v_lshrrev_b32 v92, 1, v84
    v_lshlrev_b32 v90, 12, v92
    v_lshl_add_u32 v90, v88, 10, v90
    v_lshl_add_u32 v90, v86, 7, v90
    v_lshrrev_b32 v91, 1, v86
    v_xor_b32 v91, s{FH}, v91
    v_lshl_add_u32 v90, v91, 6, v90
    v_lshl_add_u32 v90, v88, 5, v90
    v_lshl_add_u32 v{vTQ[0]}, v87, 3, v90
    v_xor_b32 v{vTQ[1]}, 32, v{vTQ[0]}
    s_lshl_b32 s{T2}, s{E}, 6
    v_xor_b32 v{vTP[0]}, s{T2}, v{vTQ[0]}
    v_xor_b32 v{vTP[1]}, s{T2}, v{vTQ[1]}
    s_mul_i32 s{ST}, s{RG}, {2*18432}
    s_add_u32 s{ST}, s{ST}, {XB}
    v_xor_b32 v90, v85, v84
    v_lshlrev_b32 v90, 4, v90
    v_lshl_add_u32 v90, v84, 8, v90
    v_add_u32 v65, s{ST}, v90
    v_xor_b32 v66, 64, v65
    s_mul_i32 s{T2}, s{FH}, 18432
    s_add_u32 s{ST}, s{ST}, s{T2}
    s_and_b32 s{T2}, s{XRO}, 8
    s_lshl_b32 s{T2}, s{T2}, 4
    s_add_u32 s{ST}, s{ST}, s{T2}
    v_xor_b32 v90, v82, v83
    v_lshlrev_b32 v90, 4, v90
    v_lshl_add_u32 v90, v83, 8, v90
    v_add_u32 v64, s{ST}, v90
    v_xor_b32 v76, 128, v64
    s_lshl_b32 s{T2}, s{RG}, 6
    s_lshl_b32 s{T3}, s{FH}, 4
    s_add_u32 s{T2}, s{T2}, s{T3}
    v_add_u32 v67, s{T2}, v82''')
    def G(text): return [II(text)]
    late0 = II(f'''s_mul_i32 s{W3072}, s{Wv}, 3072
    s_lshl_b32 s{T2}, s{I}, 4
    s_add_u32 s{T2}, s{T2}, s{J}
    s_lshl_b32 s{MYF}, s{T2}, 7
    s_add_u32 s{MYF}, s{MYF}, 0x{FOFF:x}
    v_mov_b32 v207, 0''')
    freset = Ins(f'buffer_store_dword v207, v{vFL}, {sr(SW)}, s{MYF} offen sc1')
    late0 += [freset] + II(f'''s_xor_b32 s{PF}, s{MYF}, 128
    s_mul_i32 s{HS}, s{T2}, {9*8192}
    s_xor_b32 s{T2}, s{T2}, 1
    s_mul_i32 s{HL}, s{T2}, {9*8192}
    s_lshl_b32 s{T2}, s{RG}, 12
    s_add_u32 s{HS}, s{HS}, s{T2}
    s_lshl_b32 s{T3}, s{FH}, 11
    s_add_u32 s{HLN}, s{HS}, s{T3}
    s_add_u32 s{HLN}, s{HLN}, {8*8192}
    s_add_u32 s{HL}, s{HL}, s{T2}
    s_lshl_b32 s{T3}, s{FH}, 13
    s_add_u32 s{HS}, s{HS}, s{T3}
    s_mul_i32 s{BL1}, s{Pp}, 1152
    s_lshl_b32 s{T2}, s{E}, 6
    s_add_u32 s{T2}, s{T2}, 512
    s_add_u32 s{BL1}, s{BL1}, s{T2}
    s_mul_i32 s{T3}, s{RG}, {48*9216}
    s_add_u32 s{BL1}, s{BL1}, s{T3}
    s_lshl_b32 s{DB}, s{I}, 2''')
    late0b = II(f'''s_lshl_b32 s{T2}, s{RG}, 12
    s_lshl_b32 s{T3}, s{I}, 3
    s_add_u32 s{T3}, s{T3}, s{Pp}
    s_mul_i32 s{PS}, s{T3}, {18*8192}
    s_add_u32 s{PS}, s{PS}, s{T2}
    s_add_u32 s{PS}, s{PS}, 0x{POFF:x}
    s_add_u32 s{T3}, s{E}, 8
    s_lshl_b32 s{T3}, s{T3}, 13
    s_add_u32 s{PLN}, s{PS}, s{T3}
    s_lshl_b32 s{T3}, s{FH}, 11
    s_add_u32 s{PLN}, s{PLN}, s{T3}
    s_mul_i32 s{T3}, s{E}, 10
    s_add_u32 s{T3}, s{T3}, s{FH}
    s_lshl_b32 s{T3}, s{T3}, 13
    s_add_u32 s{PS}, s{PS}, s{T3}
    s_lshl_b32 s{T2}, s{E}, 6
    s_add_u32 s{T2}, s{T2}, 512
    s_mul_i32 s{T1}, s{Pp}, {576*1152}
    s_mul_i32 s{T3}, s{E}, {17*32*1152}
    s_add_u32 s{T1}, s{T1}, s{T3}
    s_mul_i32 s{BD}, s{E}, 640
    s_add_u32 s{BD}, s{BD}, s{T1}
    s_mul_i32 s{T3}, s{FH}, s{SIG}
    s_mul_i32 s{T3}, s{T3}, {32*1152}
    s_add_u32 s{BD}, s{BD}, s{T3}
    s_mul_i32 s{T3}, s{RG}, {16*1152}
    s_add_u32 s{BD}, s{BD}, s{T3}
    s_add_u32 s{T1}, s{T1}, s{T2}''')
    for t in range(3):
        late0b += II(f'''s_mul_i32 s{T2}, s{Wv}, 3
        s_add_u32 s{T2}, s{T2}, {t}
        s_lshr_b32 s{T3}, s{T2}, 1
        s_mul_i32 s{T3}, s{T3}, s{SIG}
        s_mul_i32 s{T3}, s{T3}, {32*1152}
        s_add_u32 s{BL2+t}, s{T1}, s{T3}
        s_and_b32 s{T2}, s{T2}, 1
        s_mul_i32 s{T2}, s{T2}, {16*1152}
        s_add_u32 s{BL2+t}, s{BL2+t}, s{T2}
        s_add_u32 s{BL2+t}, s{BL2+t}, {2048-1024*t}''')
    late0 += II(f'''s_mul_i32 s{T2}, s{T0}, {BLK//2}
    s_lshl_b32 s{T3}, s{J}, 13
    s_add_u32 s{T2}, s{T2}, s{T3}
    s_lshl_b32 s{T3}, s{FH}, 11
    s_add_u32 s{T2}, s{T2}, s{T3}
    s_add_u32 s{T2}, s{T2}, 0x{KOFF:x}
    s_movk_i32 s{QC}, 4096''')
    late0 += G(f's_cmp_ge_u32 s{J}, 14\ns_cselect_b32 s{QM}, 0x{OOB:x}, s{T2}')
    late0 += G(f's_cmp_eq_u32 s{J}, 13\ns_cselect_b32 s{QC}, 0x{OOB:x}, s{QC}')
    late0b += II(f'''s_lshl_b32 s{T2}, s{FH}, 1
    s_add_u32 s{T2}, s{T2}, s{T0}
    s_mul_i32 s{OB}, s{T2}, 18432
    s_lshl_b32 s{T2}, s{J}, 10
    s_add_u32 s{OB}, s{OB}, s{T2}
    s_add_u32 s{OB}, s{OB}, 0x{OOFF:x}
    s_mul_i32 s{OR}, s{I}, {8*18432}
    s_lshl_b32 s{T2}, s{J}, 7
    s_add_u32 s{OR}, s{OR}, s{T2}
    s_add_u32 s{OR}, s{OR}, 0x{OOFF+16384:x}''')
    late0b += G(f's_cmp_eq_u32 s{Wv}, 0\ns_cselect_b32 s{OR}, s{OR}, 0x{OOB:x}')
    late0b += II(f'''s_mov_b32 s{C}, 0x{f2u(SCALE):x}''')
    late0b += G(f's_cmp_lt_u32 s{I}, 2\ns_cselect_b32 s{N0}, 0xffff, 0') + G(f's_cmp_lt_u32 s{I}, 1\ns_cselect_b32 s{N1}, 0xffff, 0')
    late0 += II(f'''s_mul_i32 s{PFD}, s{J0}, {288*1152}
    s_mul_i32 s{T2}, s{SH}, {162*128}
    s_add_u32 s{PFD}, s{PFD}, s{T2}
    s_mul_i32 s{T2}, s{Wv}, {41*128}
    s_add_u32 s{PFD}, s{PFD}, s{T2}''')
    late0 += II(f'''v_lshlrev_b32 v{vL16}, 4, v{vL}
    v_lshrrev_b32 v182, 3, v{vL}
    v_and_b32 v183, 7, v{vL}
    v_lshrrev_b32 v184, 4, v{vL}
    v_and_b32 v185, 15, v{vL}
    v_and_b32 v186, 6, v182
    v_xor_b32 v186, v183, v186
    v_mul_u32_u24 v187, 1152, v182
    v_lshl_add_u32 v187, v186, 4, v187''')
    for t in range(4):
        late0 += II('v_add_u32 v%d, %d, v187' % (vDD[t], (t & 1) * (8 * 1152 - 1024) + (t >> 1) * (128 - 2048) + 2048))
    late0 += II(f'''v_lshrrev_b32 v186, 2, v{vL}
    v_and_b32 v187, 3, v{vL}
    v_and_b32 v188, 2, v184
    v_xor_b32 v188, v187, v188
    v_mul_u32_u24 v190, 9216, v186
    v_lshl_add_u32 v{vDL1}, v188, 4, v190
    v_and_b32 v188, 1, v184
    v_lshlrev_b32 v188, 1, v188
    v_xor_b32 v188, v187, v188
    v_mul_u32_u24 v190, 1152, v186
    v_lshl_add_u32 v{vDL2}, v188, 4, v190
    v_lshrrev_b32 v186, 2, v185
    v_and_b32 v188, 1, v184
    v_lshrrev_b32 v192, 1, v184
    v_lshl_add_u32 v190, v184, 3, v186
    v_lshlrev_b32 v190, 6, v190
    v_xor_b32 v191, s{FH}, v188
    v_lshl_add_u32 v190, v191, 5, v190
    v_lshl_add_u32 v{vTL1}, v187, 3, v190
    v_lshl_add_u32 v190, v184, 2, v186
    v_lshlrev_b32 v190, 6, v190
    v_lshl_add_u32 v190, v191, 5, v190
    v_lshl_add_u32 v{vTL2}, v187, 3, v190
    v_lshl_add_u32 v190, v188, 2, v186
    v_lshrrev_b32 v191, 1, v190
    s_lshl_b32 s{T2}, s{FH}, 1
    v_xor_b32 v191, s{T2}, v191
    v_lshlrev_b32 v190, 7, v190
    v_lshl_add_u32 v190, v192, 10, v190
    v_lshl_add_u32 v190, v191, 5, v190
    v_lshl_add_u32 v{vTD[0]}, v187, 3, v190
    v_xor_b32 v{vTD[1]}, 32, v{vTD[0]}
    v_mov_b32 v189, 0x{OOB:x}
    v_cmp_eq_u32 vcc, 0, v184
    v_lshlrev_b32 v190, 2, v184
    v_sub_u32 v{vDG}, v190, v185
    v_cndmask_b32 v{vOR}, v189, v{vL16}, vcc
    s_lshl_b32 s{T2}, s{RG}, 12
    v_add_u32 v{vHW}, s{T2}, v{vL16}''')
    late0 += G(f's_cmp_ge_u32 s{J}, 9\ns_cselect_b64 vcc, -1, 0')
    late0 += II(f'''v_lshlrev_b32 v191, 6, v185
    v_lshl_add_u32 v191, v184, 4, v191
    v_cndmask_b32 v{vQS[0]}, v{vL16}, v191, vcc
    v_lshlrev_b32 v190, 4, v185
    v_add_u32 v190, {RT4}, v190
    v_lshlrev_b32 v191, 4, v184
    v_add_u32 v191, {RTB}, v191
    v_cndmask_b32 v190, v190, v191, vcc
    s_lshl_b32 s{T2}, s{RG}, 10
    v_add_u32 v{vRS}, s{T2}, v190
    v_mov_b32 v204, 0
    v_mov_b32 v205, 0
    v_mov_b32 v206, 0
    s_mul_i32 s{T2}, s{J}, 2304
    s_add_u32 s{T2}, s{T2}, 0x{KOFF-BLK+148*256:x}''')
    late0 += G(f's_cmp_eq_u32 s{I}, 0\ns_cselect_b32 s{T2}, s{T2}, 0x{OOB:x}')
    guard = Ins(f'buffer_store_dwordx4 v[204:207], v{vOR}, {sr(SW)}, s{T2} offen sc1')
    late0 += [guard]

    slots = []
    def dma4(srds, voffs, sbase, add, sadd=0, bump=None):
        def f(rp):
            if bump is not None:
                g = [II((bump + '\n' if bump else '') + f's_add_u32 s{OFF}, s{sbase}, {add}\ns_add_u32 m0, s{W4096}, {rp*SLOT}')]
            elif sadd and not add:
                g = [II(f's_mul_i32 s{OFF}, s{SIG}, {sadd}\ns_add_u32 s{OFF}, s{OFF}, s{sbase}\ns_add_u32 m0, s{W4096}, {rp*SLOT}')]
            elif sadd:
                g = [II(f's_mul_i32 s{OFF}, s{SIG}, {sadd}\ns_add_u32 s{OFF}, s{OFF}, s{sbase}'),
                     II(f's_add_u32 s{OFF}, s{OFF}, {add}\ns_add_u32 m0, s{W4096}, {rp*SLOT}')]
            else:
                g = [II(f's_add_u32 s{OFF}, s{sbase}, {add}\ns_add_u32 m0, s{W4096}, {rp*SLOT}')]
            for t in range(4):
                g.append([Ins('buffer_load_dwordx4 v%d, %s, s%d offen offset:%d lds' % (voffs[t], sr(srds[t]), OFF, 1024 * t))])
            return g
        return f
    def dma_l1(s):
        def f(rp):
            g = []
            for t in range(3):
                pre = II(f's_add_u32 s{OFF}, s{BL1}, {s*96*9216 + t*(16*9216-1024)}')
                if t == 0: pre += II(f's_add_u32 m0, s{W3072}, {rp*SLOT}')
                g.append(pre)
                g.append(II(f'buffer_load_dwordx4 v{vDL1}, {sr(SL)}, s{OFF} offen offset:{1024*t} lds'))
            return g
        return f
    def dma_l2(s):
        def f(rp):
            g = [II(f's_add_u32 m0, s{W3072}, {rp*SLOT}')]
            for t in range(3):
                g.append(II(f's_mul_i32 s{OFF}, s{SIG}, {s*192*1152}\ns_add_u32 s{OFF}, s{OFF}, s{BL2+t}'))
                g.append(II(f'buffer_load_dwordx4 v{vDL2}, {sr(SD)}, s{OFF} offen offset:{1024*t} lds'))
            return g
        return f
    def accf(base, tile): return lambda mt: base + (tile * 4 + mt) * 4
    def bf(pos): return lambda mt: breg(pos, mt)
    def pairlike(vT, acc, s):
        return [[Frag(vT[ft], ks * 8192 + m * 2048, ks * 8192 + m * 2048 + 512, accf(acc, 2 * m + ft), bf(2 * s + ks), s == 0 and ks == 0) for ks in range(2)] for m in range(2) for ft in range(2)]
    for s in range(9):
        slots.append(Slot(pairlike(vTQ, ACCA, s), dma4([SQ] * 4, vDQ, BQ, s * 64 * 3456)))
    PACC = [ACCB, ACCB, ACCA, ACCB]
    def pstep(q):
        for s in range(9):
            slots.append(Slot(pairlike(vTP, PACC[q], s), dma4([SG, SG, SU, SU], [vDP[0], vDP[1], vDP[0], vDP[1]], BP, s * 64 * 9216, bump=(f's_lshl_b32 s{OFF}, s{SIG}, 7\ns_add_u32 s{BP}, s{BP}, s{OFF}' if s == 0 and q else ''))))
    pstep(0)
    for s in range(6):
        gs = [[Frag(vTL1, m * 6144 + ks * 2048, m * 6144 + ks * 2048 + 256, accf(ACCA, m), bf(3 * s + ks), s == 0 and ks == 0) for ks in range(3)] for m in range(2)]
        slots.append(Slot(gs, dma_l1(s)))
    pstep(1); pstep(2); pstep(3)
    NSEG1 = len(slots)
    hpos = {}
    for n, k in enumerate([6, 7, 11, 10]): hpos[k] = n
    for n, k in enumerate([0, 1, 2, 3, 4, 5, 16, 17, 14, 15, 12, 13, 9, 8]): hpos[k] = 4 + n
    lorder = [0, 1, 2, 8, 7, 6, 4, 3, 5]
    def dstep(q):
        acc = ACCA
        for n, ln in enumerate(lorder):
            gs = [[Frag(vTD[ft], ks * 8192 + c * 2048, ks * 8192 + c * 2048 + 4096, accf(acc, 2 * c + ft), bf(hpos[2 * ln + ks]), n == 0 and ks == 0) for ks in range(2)] for c in range(2) for ft in range(2)]
            slots.append(Slot(gs, dma4([SD] * 4, vDD, BD, 0, ln * 64 * 1152, bump=(f's_add_u32 s{BD}, s{BD}, 256' if q else '') if n == 0 else None)))
    dstep(0)
    for s in range(3):
        gs = [[Frag(vTL2, ks * 2048, ks * 2048 + 1024, accf(SP, 0), bf(hpos[6 * s + ks]), s == 0 and ks == 0) for ks in range(3 * hg, 3 * hg + 3)] for hg in range(2)]
        slots.append(Slot(gs, dma_l2(s)))
    n0 = len(slots); dstep(1)
    for sl in slots[n0:]:
        for g in sl.groups:
            for f in g: f.acc = (lambda old: (lambda mt: old(mt) + (ACCB - ACCA)))(f.acc)
    NS = len(slots)
    phys = {n: n for n in range(9)}; load_at = {}; hphys = {}
    nxt = 9
    divert = {18: 0, 33: 1, 42: 2, 50: 3}
    for n in range(2, NSEG1):
        if n in divert: hphys[divert[n]] = phys[n - 2]
        else: phys[nxt] = phys[n - 2]; load_at[n] = nxt; nxt += 1
    att_loads = []
    for f in [phys[NSEG1 - 2], phys[NSEG1 - 1], hphys[0], hphys[1], hphys[2]]:
        phys[nxt] = f; att_loads.append(nxt); nxt += 1
    phys[nxt] = hphys[3]; load_at[NSEG1 + 1] = nxt; nxt += 1
    for n in range(NSEG1 + 2, NS):
        if nxt < NS: phys[nxt] = phys[n - 2]; load_at[n] = nxt; nxt += 1
    def dma_groups(n):
        g = slots[n].dma(phys[n])
        slots[n].loads = [x for grp in g for x in grp if x.kind == 'vmem']
        return g

    SV = opt.get('sv', 4.75)
    loud = set(); svc = {id(freset): 1, id(guard): 1}
    def T(text, q=56):
        x = Ins(text); loud.add(id(x)); svc[id(x)] = q; return x
    LPR = 9 * JX // 2
    def pf_gu(it):
        return II(f'''v_add_u32 v102, {64*it}, v{vL}
        v_cmp_gt_u32 s[78:79], {[64, 17][it]}, v{vL}
        v_add_u32 v102, s{SPN}, v102
        v_mul_u32_u24 v103, {65536//LPR+1}, v102
        v_lshrrev_b32 v103, 16, v103
        v_mul_u32_u24 v103, {9216-LPR*128}, v103
        v_lshl_add_u32 v103, v102, 7, v103
        v_mov_b32 v102, 0x{OOB:x}
        v_cndmask_b32 v103, v102, v103, s[78:79]
        buffer_load_dword v0, v103, {sr(SL)}, s{PFP} offen''')
    emit_all(xload(1))
    stamp('setup')
    if opt.get('est'):
        P('s_waitcnt lgkmcnt(0)')
        for n, r in enumerate((76, 78, 80, 82, 86)): P('s_mov_b32 s%d, s%d' % (sTS + 5 + n, r))

    NPRE = opt.get('npre', 5)
    bg = [('GAP', opt.get('gap0', 30))] + xload(2) + ([qtouch] if opt.get('qt') == 1 else []) + xload(3) + ([qtouch] if opt.get('qt') == 2 else []) + [('GAP', opt.get('gap1', 20))]
    for n in range(NPRE): bg += dma_groups(n)
    bg += [pf_gu(it) for it in range(2)]
    cnt = [0]; lq = []; lcnt = [0, 10]
    EVERY = opt.get('every', 8)
    def V(t, needs=()):
        r = P(Ins(t, needs))
        cnt[0] += 1
        if bg and cnt[0] >= EVERY:
            cnt[0] = 0
            while bg:
                g = bg.pop(0)
                if isinstance(g, tuple): cnt[0] = -g[1]; break
                emit_all(g)
                if any(x.kind == 'vmem' for x in g): break
        lcnt[0] += 1
        if lq and lcnt[0] >= lcnt[1]:
            lcnt[0] = 0; emit_all([lq.pop(0)])
        return r
    def reduce8(r):
        V('v_add_f32_dpp v%d, v%d, v%d quad_perm:[1,0,3,2] row_mask:0xf bank_mask:0xf' % (r, r, r))
        V('v_add_f32_dpp v%d, v%d, v%d quad_perm:[2,3,0,1] row_mask:0xf bank_mask:0xf' % (r, r, r))
        V('v_add_f32_dpp v%d, v%d, v%d row_half_mirror row_mask:0xf bank_mask:0xf' % (r, r, r))
    def ln_block(blk, defer=False):
        X = XR + 36 * blk
        wa = [64, 76][blk & 1]
        for n in range(36):
            if n < 4: V('v_dot2_f32_bf16 v%d, v%d, s%d, 0' % (68 + n, X + n, ONE2), needs=[xl[blk][0]])
            else: V('v_dot2_f32_bf16 v%d, v%d, s%d, v%d' % (68 + n % 4, X + n, ONE2, 68 + n % 4), needs=[xl[blk][n // 4]])
        stamp('sum%d' % blk)
        V(f'v_add_u32 v77, s{XRO+blk}, v67')
        V('v_lshlrev_b32 v78, 4, v77')
        V('v_add_u32 v78, %d, v78' % RT4)
        V('v_add_f32 v68, v68, v69')
        V('v_add_f32 v70, v70, v71')
        V('v_add_f32 v68, v68, v70')
        V('v_and_b32 v101, 0x70, v77')
        V('v_mul_u32_u24 v101, 12, v101')
        reduce8(68)
        V('v_mul_f32 v68, 0x%x, v68' % f2u(-1.0 / 576))
        wr = []
        LAG = 2
        for n in range(36 + LAG + 1):
            if n < 36:
                t = 80 + 2 * (n % 8)
                V('v_dot2_f32_bf16 v%d, v%d, s%d, v68' % (t, X + n, LO))
                V('v_dot2_f32_bf16 v%d, v%d, s%d, v68' % (t + 1, X + n, HI))
            m = n - LAG
            if 0 <= m < 36:
                t = 80 + 2 * (m % 8)
                V('v_cvt_pk_bf16_f32 v%d, v%d, v%d' % (X + m, t, t + 1))
            m = n - LAG - 1
            if 0 <= m < 36:
                V('v_dot2_f32_bf16 v%d, v%d, v%d, %s' % (72 + m % 4, X + m, X + m, '0' if m < 4 else 'v%d' % (72 + m % 4)))
                if m % 4 == 3:
                    w = Ins('ds_write_b128 v%d, %s offset:%d' % (wa, vr(X + m - 3), (m // 4) * 2048)); wr.append(w)
                    if not defer: P(w)
        dwr = list(wr)
        V('v_lshl_add_u32 v101, v77, 2, v101')
        V('v_add_u32 v101, %d, v101' % RTB)
        V('v_lshlrev_b32 v77, 2, v77')
        V('v_add_f32 v72, v72, v73')
        V('v_add_f32 v74, v74, v75')
        V('v_add_f32 v72, v72, v74')
        V('v_mov_b32 v73, 0x%x' % f2u(1e-5))
        reduce8(72)
        V('v_fmac_f32 v73, 0x%x, v72' % f2u(1.0 / 576))
        V('v_rsq_f32 v96, v73')
        V('v_rcp_f32 v75, v73')
        for t in (1, 2, 3): V('v_mov_b32 v%d, v96' % (96 + t))
        wr.append(P('ds_write_b128 v78, v[96:99]'))
        wr.append(P('ds_write_b32 v101, v96'))
        P(f'buffer_store_dword v75, v77, {sr(SW)}, s{R2} offen')
        return wr, dwr
    slow = []
    nlab = [0]
    def alt_site(inline, other):
        nlab[0] += 1; n = nlab[0]
        slow.append(f'alt{n}:\n' + ''.join('    %s\n' % t for t in other) + f'    s_branch alt{n}_e\n')
        return [Ins(f's_cbranch_vccz alt{n}')] + inline + [Ins(f'alt{n}_e:')]
    def xn_reads(rho, per):
        def texts(r): return ['ds_read_b128 %s, v%d offset:%d' % (breg(ks, 2 * r + t), 65 + (ks & 1), t * 18432 + ks * 1024) for ks in range(18) for t in range(2)]
        rs = [Ins(t) for t in texts(rho)]; ot = texts(1 - rho)
        return rs, [alt_site(rs[n:n + per], ot[n:n + per]) for n in range(0, 36, per)]
    P(f's_bitcmp0_b32 s{ROT}, 1')
    P('s_cselect_b64 vcc, -1, 0')
    w0, _ = ln_block(0); w1, _ = ln_block(1)
    stamp('ln01')
    P(Ins('s_barrier', needs=w0 + w1))
    r0, sites = xn_reads(0, 6)
    lq += sites; lcnt[1] = 24
    w2, d2 = ln_block(2, defer=True)
    emit_all(lq); lq.clear()
    P(Ins('s_barrier', needs=r0))
    lq += d2; lcnt[1] = 12
    w3, _ = ln_block(3)
    emit_all(lq); lq.clear()
    emit_all([g for g in bg if not isinstance(g, tuple)]); bg.clear()
    stamp('ln23')
    P(Ins('s_barrier', needs=w2 + w3 + slots[0].loads))
    r1, sites = xn_reads(1, 36)
    stamp('mf0')

    window = {}
    extra_loads = {}
    AH = 4
    def make_reads(fr, sidx, fi):
        w, o = divmod(phys[sidx] * SLOT, 65536)
        out = []
        if window.get(fr.base, 0) != w:
            d = (w - window.get(fr.base, 0)) * 65536
            out.append(Ins('v_add_u32 v%d, 0x%x, v%d' % (fr.base, d & 0xffffffff, fr.base)))
            window[fr.base] = w
        f = FR + 4 * (fi % 8)
        fr.reg = f
        fr.rd = [Ins('ds_read_b64_tr_b16 %s, v%d offset:%d' % (vr(f + 2 * h, 2), fr.base, o + fr.imm[h])) for h in range(2)]
        return [out + [fr.rd[0]], [fr.rd[1]]]
    def segment(s0, s1, fillers, bar_extra, first_loads=(), extra_need=None, hook=None, quiet=(), pre=()):
        frs = []; groups = []
        for s in range(s0, s1):
            for g in slots[s].groups:
                groups.append((s, len(frs), g))
                for f in g: frs.append((s, f))
        nm = sum(4 * len(g) for _, _, g in groups)
        gm = [[] for _ in range(nm)]; ga = [[] for _ in range(nm)]; gz = [[] for _ in range(nm)]
        used = [0] * nm; vmw = [0] * (nm + 16)
        mf = []; issued = 0; slot_start = {}
        ismem = lambda x: x.kind in ('ds', 'vmem')
        def put(k, items, cost=None):
            (gm if len(items) == 1 and ismem(items[0]) else ga)[k].extend(items)
            used[k] += min(2, sum(x.cost for x in items)) if cost is None else cost
        while issued < AH:
            s, f = frs[issued]
            emit_all(make_reads(f, s, issued)); issued += 1
        emit_all(list(pre))
        pend = [(-1, list(first_loads), ())]
        barpos = {}; vcand = set(); fv = set()
        for (s, f0, g) in groups:
            a = len(mf)
            slot_start.setdefault(s, a)
            n = 4 * len(g)
            for mt in range(4):
                for f in g: mf.append((s, f, mt))
            if a > 0: used[a - 1] += 1
            vcand.update(range(a + 1, a + n, 4))
            items = []
            while issued < min(len(frs), f0 + len(g) + AH):
                s2, f2 = frs[issued]
                r = make_reads(f2, s2, issued)
                if frs[issued - 1][0] != s2: r[0] = ['BAR', s2] + r[0]
                items += r; issued += 1
            for q, it in enumerate(items):
                k = a + q * n // len(items)
                if it[0] == 'BAR':
                    s2 = it[1]
                    ex = bar_extra.get(s2, ((), ()))
                    b = Ins('s_barrier'); b.needs = ('LAZY', s2, list(ex[0]) + ([x for f in g for x in f.rd] if k == a else []))
                    gz[k - 1].append(b); used[k - 1] += 1 if k == a else 2
                    barpos[s2] = k - 1
                    pend.append((k - 1, list(extra_loads.get(s2, [])) + ([load_at[s2]] if s2 in load_at else []), ex[1]))
                    it = it[2:]
                if len(it) == 2: put(max(k - 1, 0), it[:1]); it = it[1:]
                put(k, it)
        class Chain:
            def __init__(c, items, start): c.q = list(items); c.rel = start; c.last = -1; c.cap = 2
        dl = []; dead = {}
        for (k, lds_, post) in pend:
            dl.append(('ATK', k + 1)); dl += list(post)
            for n in lds_:
                for g in dma_groups(n):
                    for x in g:
                        dl.append(x)
                        if x.kind == 'vmem': dead[id(x)] = (n, barpos.get(n, 10 ** 9)); svc[id(x)] = SV * (2 if len(slots[n].groups) == 2 else 1)
        chains = [Chain(dl, 0)] + [Chain(lst, slot_start[s] + off) for (s, off, lst) in fillers if lst]
        leads = {}
        pfree = 0.0
        def head(c, k):
            while c.q and isinstance(c.q[0], tuple):
                it = c.q[0]
                if c.rel > k: return None
                if opt.get('dbg') and it[0] in ('AT', 'BY'):
                    cs = max(x for x in slot_start if slot_start[x] <= k); print('   marker', it, 'reached at slot', cs, '+', k - slot_start[cs], file=sys.stderr)
                if it[0] == 'AT': c.rel = slot_start[it[1]] + it[2]
                elif it[0] == 'ATK': c.rel = it[1]
                elif it[0] == 'BY': assert k <= slot_start[it[1]], ('filler late', it, k, slot_start[it[1]])
                elif it[0] == 'CAP': c.cap = it[1]
                elif it[0] == 'SKIP': c.rel = k + it[1]
                c.q.pop(0)
            if not c.q or c.rel > k: return None
            return c.q[0]
        for k in range(nm):
            if not gm[k] and used[k] < 2:
                cand = []
                for n_, c in enumerate(chains):
                    x = head(c, k)
                    if x is None or isinstance(x, list) or not ismem(x) or c.last >= k: continue
                    if x.kind == 'ds':
                        if used[k] + x.cost > 2: continue
                    elif id(x) not in loud and pfree - k > opt.get('bl', 1.5): continue
                    pr = 1
                    if n_ == 0: pr = 0 if dead.get(id(x), (0, 0))[1] - k < opt.get('crit', 72) else 2
                    cand.append((pr, n_))
                if cand:
                    c = chains[min(cand)[1]]; x = c.q.pop(0); c.last = k
                    put(k, [x], x.cost if x.kind == 'ds' else 1)
                    if x.kind == 'vmem':
                        pfree = max(pfree, k + svc[id(x)]) if id(x) in loud else max(pfree, k) + svc.get(id(x), SV)
                        if id(x) in dead and dead[id(x)][1] < 10 ** 9: leads[dead[id(x)][0]] = dead[id(x)][1] - k
            for c in chains:
                while True:
                    x = head(c, k)
                    if x is None or (not isinstance(x, list) and ismem(x)): break
                    it = x if isinstance(x, list) else [x]
                    cst = min(2, sum(y.cost for y in it))
                    if used[k] + cst > c.cap: break
                    c.q.pop(0); c.last = k; ga[k].extend(it); used[k] += cst
        left = [(x if isinstance(x, list) else [x]) for c in chains for x in c.q if not isinstance(x, tuple)]
        print('DMA leads:', ' '.join('%d:%d' % x for x in sorted(leads.items())), file=sys.stderr)
        assert min(leads.values()) > 30
        for k, (s, f, mt) in enumerate(mf):
            if hook: hook(k, s)
            c = f.acc(mt)
            nd = list(f.rd) + ([extra_need(f, mt)] if extra_need else [])
            P(Ins('v_mfma_f32_16x16x32_bf16 %s, %s, %s, %s' % (vr(c), vr(f.reg), f.b(mt), '0' if f.first else vr(c)), needs=nd))
            for x in gz[k]: x.needs = list(slots[x.needs[1]].loads) + list(x.needs[2])
            emit_all(gm[k] + ga[k] + gz[k])
        return left

    def mul(d, a_, b_): return Ins('v_mul_f32 v%d, v%d, v%d' % (d, a_, b_))
    def cvt(d, a_, b_): return Ins('v_cvt_pk_bf16_f32 v%d, v%d, v%d' % (d, a_, b_))
    kv_stores = []
    def qkv_epi():
        rs = [Ins('ds_read_b128 %s, v%d offset:%d' % (vr(SP + 4 * mt), vRS, 256 * mt)) for mt in range(4)]
        L = list(rs) + [('SKIP', 6)]
        for mp in range(2):
            if mp: L += II(f's_add_u32 s{QM}, s{QM}, {BLK}')
            for c in range(2):
                if c: L += II(f's_add_u32 s{T2}, s{QM}, s{QC}')
                for ft in range(2):
                    te = ACCA + ((2 * c + ft) * 4 + 2 * mp) * 4; to = te + 4
                    for r in range(8):
                        x = mul(te + r, te + r, SP + 8 * mp + r); x.needs = [rs[2 * mp + r // 4]]; L.append(x)
                    L += [cvt(te, te, te + 1), cvt(te + 1, te + 2, te + 3), cvt(te + 2, to, to + 1), cvt(te + 3, to + 2, to + 3)]
                    st = Ins(f'buffer_store_dwordx4 {vr(te)}, v{vQS[0]}, {sr(SW)}, s{T2 if c else QM} offen offset:{1024*ft} sc1')
                    L.append(st); kv_stores.append(st)
        return L
    def l1_epi():
        L = II(f's_lshl_b32 s{T3}, s{FH}, 3\ns_add_u32 s{T3}, s{T3}, {HLONE}\nv_add_u32 v{SP+11}, s{T3}, v{vHW}')
        ws_ = []
        for mt in range(4):
            g0 = ACCA + mt * 4; u0 = ACCA + (4 + mt) * 4
            L += [mul(g0 + t, g0 + t, u0 + t) for t in range(4)] + [cvt(u0, g0, g0 + 1), cvt(u0 + 1, g0 + 2, g0 + 3)]
            w = Ins(f'ds_write_b64 v{SP+11}, {vr(u0,2)} offset:{1024*mt}'); L.append(w); ws_.append(w)
        L2 = II(f's_lshl_b32 s{T3}, s{FH}, 11\ns_add_u32 s{T3}, s{T3}, {HLONE}\nv_add_u32 v{SP+11}, s{T3}, v{vHW}')
        rd = [Ins(f'ds_read_b128 {vr(ACCA+4*m)}, v{SP+11} offset:{1024*m}') for m in range(2)]
        sts = [Ins(f'buffer_store_dwordx4 {vr(ACCA+4*m)}, v{vL16}, {sr(SW)}, s{HLN} offen offset:{1024*m} sc1', needs=[rd[m]]) for m in range(2)]
        return L, sts, ws_, L2 + rd + [('SKIP', 10)] + sts
    hw = {}
    def pair_epi(acc, q):
        L = II(f's_add_u32 s{ST}, s{HS}, {q*2*8192}\ns_lshl_b32 s{T1}, s{FH}, 13\ns_add_u32 s{T1}, s{T1}, {hphys[q]*SLOT}\nv_add_u32 v{SP+11}, s{T1}, v{vHW}')
        sts = []; hw[q] = []
        for mt in range(4):
            g0 = acc + mt * 4; g1 = acc + (4 + mt) * 4; u0 = acc + (8 + mt) * 4; u1 = acc + (12 + mt) * 4
            L += [mul(g0 + t, g0 + t, u0 + t) for t in range(4)]
            L += [mul(g1 + t, g1 + t, u1 + t) for t in range(4)]
            L += [cvt(u0, g0, g0 + 1), cvt(u0 + 1, g0 + 2, g0 + 3), cvt(u0 + 2, g1, g1 + 1), cvt(u0 + 3, g1 + 2, g1 + 3)]
            st = Ins(f'buffer_store_dwordx4 {vr(u0)}, v{vL16}, {sr(SW)}, s{ST} offen offset:{1024*mt} sc1')
            w = Ins(f'ds_write_b128 v{SP+11}, {vr(u0)} offset:{1024*mt}', cost=2)
            L += [st, w]; sts.append(st); hw[q].append(w)
        return L, sts
    def d_epi(acc, q, cs=(0, 1)):
        L = []
        for c in cs:
            L.append(Ins(f's_add_u32 s{ST}, s{PS}, {(2*q+c)*2*8192}'))
            for mt in range(4):
                t0 = acc + (8 * c + mt) * 4; t1 = acc + (8 * c + 4 + mt) * 4
                L += [cvt(t0, t0, t0 + 1), cvt(t0 + 1, t0 + 2, t0 + 3), cvt(t0 + 2, t1, t1 + 1), cvt(t0 + 3, t1 + 2, t1 + 3)]
                L.append(Ins(f'buffer_store_dwordx4 {vr(t0)}, v{vL16}, {sr(SW)}, s{ST} offen offset:{1024*mt} sc1'))
        return L
    def poll_check(name, ld, test):
        g = [Ins(t, needs=[ld] if n == 0 else []) for n, t in enumerate(test)]
        g.append(Ins('s_cbranch_scc0 %s_slow' % name))
        g.append(Ins('%s_ok:' % name))
        S = Prog()
        S.label('%s_slow' % name)
        S('s_mov_b32 s%d, 400000' % SPN)
        S.label('%s_loop' % name)
        S('s_sleep 2')
        S(ld.text)
        S('s_waitcnt vmcnt(0)')
        S('s_sub_u32 s%d, s%d, 1' % (SPN, SPN))
        S('s_cbranch_scc1 %s_ok' % name)
        for t in test: S(t)
        S('s_cbranch_scc0 %s_loop' % name)
        S('s_branch %s_ok' % name)
        slow.append(S.text())
        return g
    def setflag(n, reg):
        return II(f'v_mov_b32 v{reg}, {n}\nbuffer_store_dword v{reg}, v{vFL}, {sr(SW)}, s{MYF} offen sc1')
    def hpoll(n, reg):
        ld = T(f'buffer_load_dword v{reg}, off, {sr(SW)}, s{PF} sc1')
        return ld, poll_check('h%d' % n, ld, [f'v_readfirstlane_b32 s{T2}, v{reg}', f's_cmp_ge_u32 s{T2}, {n}'])

    qe = qkv_epi()
    pe = [pair_epi(PACC[q], q) for q in range(4)]
    le = l1_epi()
    VREG = [ACCA + 4 * n for n in range(16)] + [SP + 4 * n for n in range(4)]
    G0M, G1M = 96, 98
    late = II(f'''s_mov_b32 s{SX}, s8
    s_mov_b32 s{SX+1}, s9
    s_mov_b32 s{SX+2}, 0x{576*1152:x}
    s_mul_i32 s{T1}, s{T0}, {BLK//2}
    s_mul_i32 s{T2}, s{J}, 2304
    s_add_u32 s{T1}, s{T1}, s{T2}
    s_mov_b32 s{G0M}, 0xffff
    s_mov_b32 s{G0M+1}, 0
    s_mov_b32 s{G1M}, 0xffff0000
    s_mov_b32 s{G1M+1}, 0''')
    for a_ in range(5):
        late += II(f's_add_u32 s{KO+a_}, s{T1}, 0x{KOFF + (2*a_-9)*BLK:x}')
        if a_ < 4:
            late.append(II(f's_cmp_ge_u32 s{T0}, {16-4*a_}\ns_cselect_b32 s{KO+a_}, s{KO+a_}, 0x{OOB:x}\ns_cselect_b32 s{KB+a_}, 0, 0xf149'))
    a0, a1, a2, a3 = SP, SP + 1, SP + 2, SP + 3
    vTK, vQR, vTD_, vR0, vR1 = SP + 4, SP + 5, QF + 12, SP + 7, SP + 8
    late += II(f'''v_and_b32 v{a0}, 15, v{vL}
    v_lshrrev_b32 v{a1}, 4, v{vL}
    v_mov_b32 v{a3}, 0x{OOB:x}
    s_mul_i32 s{T2}, s{FH}, 1280
    s_add_u32 s{T3}, s{T2}, {BLK+144*256}
    v_add_u32 v{vKM}, s{T3}, v{vL16}
    v_lshlrev_b32 v{a1}, 4, v{a1}
    v_lshl_add_u32 v{a1}, v{a0}, 6, v{a1}
    s_add_u32 s{T3}, s{T2}, {BLK+73728}
    v_add_u32 v{vVM}, s{T3}, v{a1}
    s_lshl_b32 s{T2}, s{FH}, 7
    s_add_u32 s{T2}, s{T2}, {BLK+73728+1024}
    v_add_u32 v{a1}, s{T2}, v{a1}
    v_cmp_gt_u32 vcc, 2, v{a0}
    s_lshl_b32 s{T2}, s{FH}, 2
    s_add_u32 s{T2}, s{T2}, {BLK+148*256}
    v_lshlrev_b32 v{a2}, 4, v{a0}
    v_cndmask_b32 v{vVR}, v{a3}, v{a1}, vcc
    v_add_u32 v{a2}, s{T2}, v{a2}
    v_cmp_gt_u32 vcc, 32, v{vL}
    v_subrev_u32 v{a1}, {BLK-8}, v{a2}
    v_cndmask_b32 v{vR0}, v{a3}, v{a2}, {sr(G0M,2)}
    v_cndmask_b32 v{vQR}, v{a3}, v{a2}, vcc
    v_cndmask_b32 v{vR1}, v{a3}, v{a1}, {sr(G1M,2)}
    v_cndmask_b32 v{vKR}, v{vR0}, v{a1}, {sr(G1M,2)}
    v_and_b32 v{a0}, 3, v{a0}
    v_mov_b32 v{a2}, 0x3f803f80
    v_cmp_eq_u32 vcc, 2, v{a0}
    v_mul_u32_u24 v{a0}, 3641, v{vL}
    v_lshrrev_b32 v{a0}, 16, v{a0}
    v_cndmask_b32 v{vONES}, 0, v{a2}, vcc
    v_lshlrev_b32 v{a1}, 7, v{vL}
    v_cmp_gt_u32 vcc, 41, v{vL}
    v_mul_u32_u24 v{a0}, {36864-18*128}, v{a0}
    v_lshl_add_u32 v{a0}, v{vL}, 7, v{a0}
    v_cndmask_b32 v{vTD_}, v{a3}, v{a1}, vcc
    v_cmp_gt_u32 vcc, 54, v{vL}
    s_nop 0
    s_nop 0
    v_cndmask_b32 v{vTK}, v{a3}, v{a0}, vcc''')
    kvld = T(f'buffer_load_dwordx4 {vr(SP+12)}, off, {sr(SB)}, s{DB} sc1')
    kvtest = [f'v_readfirstlane_b32 s{T2}, v{SP+12}', f'v_readfirstlane_b32 s{T3}, v{SP+13}', f'v_readfirstlane_b32 s{T1}, v{SP+14}',
              f's_or_b32 s{T2}, s{T2}, s{N0}', f's_or_b32 s{T3}, s{T3}, s{N1}', f's_and_b32 s{T2}, s{T2}, s{T3}',
              f's_and_b32 s{T2}, s{T2}, s{T1}', f's_cmp_eq_u32 s{T2}, 0xffff']
    kvpre = II(f'''s_lshl_b32 s{T3}, s{I}, 2
    s_add_u32 s{T3}, s{T3}, s{Wv}
    s_mul_i32 s{T3}, s{T3}, {BLK}
    s_mul_i32 s{T2}, s{J}, 2304
    s_add_u32 s{T3}, s{T3}, s{T2}
    s_add_u32 s{T3}, s{T3}, 0x{KOFF:x}''')
    kvtouch = [T(f'buffer_load_dword v0, v{vTK}, {sr(SW)}, s{T3} offen')]
    if JX > 2:
        kvtouch += II(f's_sub_u32 s{T3}, s{T3}, {8*BLK}\ns_and_b32 s{T2}, s{I}, {32//JX-2}') + \
                   [II(f's_or_b32 s{T2}, s{T2}, s{N0}\ns_cselect_b32 s{T3}, 0x{OOB:x}, s{T3}'), T(f'buffer_load_dword v0, v{vTK}, {sr(SW)}, s{T3} offen')]
    kvtouch += [II(f's_getpc_b64 {sr(SQ,2)}') + [Ins('K1_pc2:')]] + II(f'''s_mov_b32 s{SQ+2}, code_end-K1_pc2
    s_and_b32 s{T2}, s{NN}, 7
    s_lshl_b32 s{T2}, s{T2}, 2
    s_add_u32 s{T2}, s{T2}, s{Wv}
    s_mul_i32 s{T2}, s{T2}, {12*128}
    v_lshlrev_b32 v{SP}, 7, v{vL}
    v_cmp_gt_u32 vcc, 12, v{vL}
    s_nop 0
    s_nop 0
    v_cndmask_b32 v{SP}, v{a3}, v{SP}, vcc''') + [T(f'buffer_load_dword v0, v{SP}, {sr(SQ)}, s{T2} offen', 40)]
    qld = []; ql = []
    for a_ in range(2):
        l0 = Ins(f'buffer_load_dwordx4 {vr(QF+4*a_)}, v{vKM}, {sr(SW)}, s{T3} offen sc1')
        l1 = [Ins(f'buffer_load_dword v{QF+8+2*a_+h}, v{vQR}, {sr(SW)}, s{T3} offen offset:{8*h} sc1') for h in range(2)]
        ql += [Ins(f's_add_u32 s{T3}, s{KO+4}, {(a_*BLK - 36864) & 0xffffffff}'), l0, l1[0], l1[1]]; qld += [[l0, l1[0]], [l0, l1[1]]]
    km = []; kr = []; kl = []; vld = []; vl = []
    PACE = ('SKIP', 0)
    for b_ in range(11):
        so = Ins(f's_add_u32 s{T3}, s{KO+min(b_//2,4)}, {(b_-2*min(b_//2,4))*BLK}')
        r_ = Ins(f'buffer_load_dword a{6*b_}, v{vR0 if b_ == 0 else (vR1 if b_ == 10 else vKR)}, {sr(SW)}, s{T3} offen sc1'); kr.append(r_)
        kl += [so, r_, PACE]
        lo_, hi_ = b_ // 2, (b_ - 1) // 2
        nm_ = lambda q_: f's{KB+q_}' if 0 <= q_ < 4 else '0'
        if b_ <= 8: kl += II(f's_pack_ll_b32_b16 s{T2}, {nm_(lo_)}, {nm_(hi_)}\nv_accvgpr_write_b32 a{6*b_+1}, s{T2}')
        else: kl += II(f'v_accvgpr_write_b32 a{6*b_+1}, 0')
        if b_ < 10:
            m_ = Ins(f'buffer_load_dwordx4 {ar(6*b_+2)}, v{vKM}, {sr(SW)}, s{T3} offen sc1'); km.append(m_)
            kl += [m_, PACE]
    kld = [[km[u // 2], kr[(u + 1) // 2]] for u in range(20)]
    for v in range(10):
        a_ = Ins(f'buffer_load_dwordx4 {vr(VREG[2*v])}, v{vVM}, {sr(SW)}, s{T3} offen sc1')
        b_ = Ins(f'buffer_load_dwordx4 {vr(VREG[2*v+1])}, v{vVR}, {sr(SW)}, s{T3} offen sc1')
        vl.append([Ins(f's_add_u32 s{T3}, s{KO+v//2}, {(v%2)*BLK}'), a_, PACE, b_, PACE]); vld += [a_, b_]
    def vfix(v): return [Ins(f'v_or_b32 v{VREG[2*v+1]+r}, v{vONES}, v{VREG[2*v+1]+r}', needs=[vld[2 * v + 1]]) for r in range(4)]
    def pf_down(q):
        return (II(f's_add_u32 s{PFD}, s{PFD}, {162*128}') if q else []) + [T(f'buffer_load_dword v0, v{vTD_}, {sr(SD)}, s{PFD} offen offset:2048')]
    pfw = II(f's_mul_i32 s{T2}, s{NN}, {162*128}\ns_lshl_b32 s{T1}, s{Wv}, 13\ns_add_u32 s{T2}, s{T2}, s{T1}') + \
          [II(f's_cmp_ge_u32 s{Wv}, 3\ns_cselect_b32 s{T2}, 0x{OOB:x}, s{T2}')] + II(f'v_lshlrev_b32 v{vTA}, 7, v{vL}')
    pfw2 = [T(f'buffer_load_dword v0, v{vTA}, {sr(SX)}, s{T2} offen')]
    if opt.get('nopfw'): pfw2 = []
    h1ld, h1chk = hpoll(1, vPFP)
    e_ = opt.get('ev', [8, 0, 26, 30, 38])
    flat = lambda l: [y for x in l for y in x]
    NV1 = opt.get('nv1', 3)
    fill1 = [(sl, 0, stamp('slot%d' % sl, True)) for sl in range(NSEG1)] + [
        (0, 2, late0 + late0b + [('BY', 9), ('AT', 9, 4)] + qe + [('BY', 17)] + late + [('AT', 18, 4)]
         + pe[0][0] + [('BY', 24), ('AT', 24, 4)]
         + le[0] + [('BY', 26), ('AT', e_[2], 0), kvld] + pf_down(0) + [('AT', 27, 0)] + le[3] + [('AT', e_[3] - 1, 8), poll_check('kv', kvld, kvtest)] + kvpre + [('AT', e_[3], 0)] + kvtouch + [('BY', 33), ('AT', 33, 4)]
         + pe[1][0] + ql + [('BY', 42), ('AT', 42, 4)]
         + pe[2][0] + [('AT', 44, 0)] + kl + flat(vl[:NV1]) + [h1ld]),
    ]
    bx1 = {
        2: (r1, []),
        18: (kv_stores + [freset, guard], II(f's_lshl_b32 s{SPN}, 1, s{J}\nv_mov_b32 v{SP+10}, s{SPN}\nbuffer_atomic_or v{SP+10}, v{vFL}, {sr(SB)}, s{DB} offen offset:8')),
        27: (le[2], []),
        47: (pe[0][1] + le[1] + pe[1][1] + pe[2][1], setflag(1, SP + 10)),
    }
    extra_loads[2] = [5, 6, 7, 8]
    xmap = {}
    for n, x in enumerate(r1):
        ks = n // 2
        for mt in range(4): xmap[breg(ks, mt)] = r1[2 * ks + 1]
    mark = {}
    def hook(k, s):
        if k == 0:
            P(f's_cmp_ge_u32 s{J}, 9')
            P('s_cbranch_scc1 qkv_v')
            mark['a'] = len(P.out)
        if s == 9 and 'b' not in mark:
            mark['b'] = len(P.out)
            P.label('qkv_e')
    left = segment(0, NSEG1, fill1, bx1, first_loads=list(range(NPRE, 5)), hook=hook, pre=sites, extra_need=lambda f, mt: xmap[f.b(mt)])
    alt = ['qkv_v:']
    for x in P.out[mark['a']:mark['b']]:
        t = x.text
        assert x.kind != 'label'
        if x.kind == 'mfma':
            o = [y.strip() for y in t[len(x.op):].split(',')]
            t = '%s %s, %s, %s, %s' % (x.op, o[0], o[2], o[1], o[3])
        alt.append('    ' + t)
    alt.append('    s_branch qkv_e')
    slow.append('\n'.join(alt) + '\n')
    print('left after seg1:', len(left), file=sys.stderr)
    stamp('g1end')

    SREG = [80] + [ACCB + (tl * 4 + mt) * 4 for mt in range(4) for tl in (0, 1, 3, 2)]
    PR = [84, 88]; OM, OR_ = 96, 100; MF, ML = 104, 108
    noskip = lambda l: [x for x in l if not isinstance(x, tuple)]
    def qbuild(t):
        q = QF + 2 * t
        P(Ins(f'v_mov_b32 v{QW+2}, v{q}', needs=qld[t]))
        P(f'v_mov_b32 v{QW+3}, v{q+1}')
        P(f'v_cndmask_b32 v{QW}, 0, v{QF+8+t}, {sr(G0M,2)}')
        P(f'v_cndmask_b32 v{QW+4}, 0, v{QF+8+t}, {sr(G1M,2)}')
    P('v_mov_b32 v%d, 0x%x' % (vTA, NEG))
    P(f'v_mov_b32 v{QW+1}, 0x3f80')
    P(f'v_mov_b32 v{QW+5}, 0x3f800000')
    qbuild(0)
    pq = list(pe[3][0])
    for r in range(4):
        P('v_cmp_lt_i32 vcc, %d, v%d' % (-r, vDG))
        P(pq.pop(0)); P(pq.pop(0))
        P('v_cndmask_b32 v%d, v%d, 0, vcc' % (MF + r, vTA))
        P('v_cndmask_b32 v%d, 0, v%d, vcc' % (ML + r, vTA))
    P(f's_cmp_eq_u32 s{FH}, 0')
    P('s_cselect_b64 vcc, -1, 0')
    P(f's_xor_b32 s{N0}, s{C}, 0x80000000')
    hld = {}
    def hload(k):
        if isinstance(k, tuple):
            ka, kb = k
            pre = II(f's_mul_i32 s{T2}, s{FH}, {(ka-kb)*8192}\ns_add_u32 s{T2}, s{T2}, s{HL}\ns_add_u32 s{T2}, s{T2}, {(17-ka)*8192}')
            tx = lambda kk, mt: f'buffer_load_dwordx4 {breg(hpos[kk], mt)}, v{vL16}, {sr(SW)}, s{T2} offen offset:{1024*mt} sc1'
            ld = [Ins(tx(ka, mt)) for mt in range(4)]
            hld[ka] = [ld[3]] * 4; hld[kb] = [ld[3]] * 4
            if ka == kb: return [pre + ld[:2], ld[2:]]
            return [(pre if h == 0 else []) + alt_site(ld[2*h:2*h+2], [tx(kb, 2*h), tx(kb, 2*h+1)]) for h in range(2)]
        base = HLONE if k == 8 else hphys[k // 2] * SLOT + (k & 1) * 8192
        hld[k] = [Ins(f'ds_read_b128 {breg(hpos[k], mt)}, v{vTB} offset:{1024*mt}') for mt in range(4)]
        return [II(f'v_add_u32 v{vTB}, {base}, v{vHW}') + hld[k]]
    def qk(t, sg):
        u = t + sg
        c = vr(MF) if sg == 0 else (vr(ML) if sg == 16 else '0')
        return Ins('v_mfma_f32_16x16x32_bf16 %s, %s, %s, %s' % (vr(SREG[sg]), ar(3 * u + (u & 1)), vr(QW + 2 * (u & 1)), c), needs=kld[u])
    def mx(sg, dst):
        s = SREG[sg]
        if sg == 0: return II('v_max3_f32 v%d, v%d, v%d, v%d\nv_max_f32 v%d, v%d, v%d' % (dst, s, s + 1, s + 2, dst, dst, s + 3))
        return II('v_max3_f32 v%d, v%d, v%d, v%d\nv_max3_f32 v%d, v%d, v%d, v%d' % (dst, dst, s, s + 1, dst, dst, s + 2, s + 3))
    lk = [x for x in left if any(y in km or y in kr for y in x)]
    if lk:
        n = left.index(lk[-1]) + 1; emit_all(left[:n]); left = left[n:]
    P(qk(0, 0))
    nq = 1; avail = 1; nmx = 0
    while pq:
        x = pq.pop(0); P(x)
        if x.kind == 'ds': avail += 4
        elif nq < avail and len(pq) % 2 == 0: P(qk(0, nq)); nq += 1
    left = left + [[x] for v in range(NV1, 10) for x in noskip(vl[v])]
    while nq < 17:
        P(qk(0, nq)); nq += 1
        emit_all(mx(nmx, vMN)); nmx += 1
    while nmx < 17:
        if left and any(y.kind == 'vmem' for y in left[0]): emit_all(left.pop(0))
        elif left: emit_all(left.pop(0)); continue
        emit_all(mx(nmx, vMN)); nmx += 1
    emit_all(left)
    qbuild(1)
    emit_all(h1chk)
    stamp('attk')
    ow = []
    def o_epi(t):
        P('v_rcp_f32 v%d, v%d' % (vTA, OR_ + 2))
        for r in range(4): P(mul(OM + r, OM + r, vTA))
        for r in range(2): P(mul(OR_ + r, OR_ + r, vTA))
        P(cvt(QF + 2 * t, OM, OM + 1)); P(cvt(QF + 2 * t + 1, OM + 2, OM + 3)); P(cvt(QF + 8 + t, OR_, OR_ + 1))
    def o_flush():
        P(f's_lshl_b32 s{T2}, s{FH}, 3')
        P(f's_add_u32 s{T2}, s{T2}, {HLONE}')
        P(f'v_add_u32 v{vTB}, s{T2}, v{vHW}')
        P(f's_lshl_b32 s{T2}, s{RG}, 9')
        P(f's_lshl_b32 s{T3}, s{FH}, 2')
        P(f's_add_u32 s{T2}, s{T2}, s{T3}')
        P(f's_add_u32 s{T2}, s{T2}, {RT4}')
        P(f'v_lshlrev_b32 v{vTA}, 3, v{vL}')
        P(f'v_add_u32 v{vMX}, 2048, v{vTA}')
        P(f'v_cndmask_b32 v{vTA}, v{vMX}, v{vTA}, {sr(G0M,2)}')
        P(f'v_add_u32 v{vTA}, s{T2}, v{vTA}')
        for t in range(4):
            ow.append(P(f'ds_write_b64 v{vTB}, {vr(QF+2*t,2)} offset:{1024*t}'))
            ow.append(P(f'ds_write_b32 v{vTA}, v{QF+8+t} offset:{128*t}'))
    h2ld, h2chk = hpoll(2, vPFP)
    hplan = opt.get('hplan', {0: [(16, 17), 0, 1, (14, 15), 2, 3, 4, 5, 8], 1: [(12, 13), (9, 9), (17, 16)], 2: [(15, 14), (13, 12)], 3: [(10, 11), 6, 7, (11, 10)]})
    vfixed = set()
    NATT = opt.get('natt', 2)
    dq = []
    for t in range(4):
        stamp('att%d' % t)
        P('v_mov_b32 v%d, v%d' % (vTA, vMN))
        P('v_permlane16_swap_b32 v%d, v%d' % (vTA, vMN))
        P('v_max_f32 v%d, v%d, v%d' % (vMN, vMN, vTA))
        P('v_mov_b32 v%d, v%d' % (vTA, vMN))
        P('v_permlane32_swap_b32 v%d, v%d' % (vTA, vMN))
        P('v_max_f32 v%d, v%d, v%d' % (vMN, vMN, vTA))
        P(f'v_mul_f32 v{vMX}, s{N0}, v{vMN}')
        if t == 1:
            P(Ins('s_barrier', needs=pe[3][1] + hw[3] + [x for k in (0, 1, 2, 3, 4, 5, 8) for x in hld[k]]))
            emit_all(setflag(2, vPFS))
        if t == 3: emit_all(h2chk)
        bq = flat([hload(k) for k in hplan[t]])
        if t == 2:
            for n in att_loads[:NATT]:
                g = dma_groups(n); cur = []
                for x in g:
                    cur += x
                    if x[0].kind == 'vmem': bq.append(cur); cur = []
        ppv = []; pqk = []; pmx = []
        for b in range(9):
            v = (t >> 1) + b
            sgs = [2 * v - t, 2 * v + 1 - t]
            val = [sg for sg in sgs if 0 <= sg <= 16]
            p = PR[b % 2]
            for sg in val:
                for r in (0, 2):
                    s = SREG[sg] + r
                    P(f'v_pk_fma_f32 {vr(s,2)}, {vr(s,2)}, {sr(C,2)}, {vr(vMX,2)} op_sel_hi:[1,0,0]')
            mfs = ppv + [qk(t + 1, g_) for g_ in pqk]
            for sg in val:
                for r in range(4):
                    P('v_exp_f32 v%d, v%d' % (SREG[sg] + r, SREG[sg] + r))
                    if mfs: P(mfs.pop(0))
            emit_all(mfs)
            nb = (len(bq) + (8 - b)) // (9 - b)
            if nb: emit_all(bq.pop(0))
            for g_ in pmx: emit_all(mx(g_, vMN))
            for hh, sg in enumerate(sgs):
                if sg in val:
                    s = SREG[sg]
                    P(cvt(p + 2 * hh, s, s + 1)); P(cvt(p + 2 * hh + 1, s + 2, s + 3))
                else:
                    P('v_mov_b32 v%d, 0' % (p + 2 * hh)); P('v_mov_b32 v%d, 0' % (p + 2 * hh + 1))
            for _ in range(nb - 1): emit_all(bq.pop(0))
            if v not in vfixed:
                vfixed.add(v); emit_all(vfix(v))
            pmx = pqk; pqk = val if t < 3 else []
            ppv = [Ins('v_mfma_f32_16x16x32_bf16 %s, %s, %s, %s' % (vr(OM), vr(VREG[2 * v]), vr(p), '0' if b == 0 else vr(OM)), needs=[vld[2 * v]]),
                   Ins('v_mfma_f32_16x16x32_bf16 %s, %s, %s, %s' % (vr(OR_), vr(VREG[2 * v + 1]), vr(p), '0' if b == 0 else vr(OR_)))]
            if t == 2 and b == 5: P(h2ld)
        assert not bq
        tail = flat([mx(g_, vMN) for g_ in pmx])
        for x in [qk(t + 1, g_) for g_ in pqk] + ppv:
            P(x)
            if tail: P(tail.pop(0))
        emit_all(tail)
        if t < 2: qbuild(t + 2)
        for g_ in pqk: emit_all(mx(g_, vMN))
        o_epi(t)
    o_flush()
    stamp('attend')

    P(Ins('s_barrier', needs=slots[NSEG1].loads + ow))
    bmap = {}
    for k in hld:
        for mt in range(4): bmap[breg(hpos[k], mt)] = hld[k][mt]
    def restage(dst, sbase, stride):
        L = II(f's_lshl_b32 s{T3}, s{FH}, 11\ns_add_u32 s{T3}, s{T3}, {HLONE}\nv_add_u32 v{vTB}, s{T3}, v{vHW}')
        rd = [Ins(f'ds_read_b128 {vr(dst+4*m)}, v{vTB} offset:{1024*m}') for m in range(2)]
        L += rd + II(f's_add_u32 s{T3}, s{sbase}, {stride}') + [('SKIP', 8)]
        L += [Ins(f'buffer_store_dwordx4 {vr(dst+4*m)}, v{vL16}, {sr(SW)}, s{[sbase, T3][m]} offen sc1', needs=[rd[m]]) for m in range(2)]
        return L, rd
    oe, ord_ = restage(QF, OB, 18432)
    rr = Ins(f'ds_read_b128 {vr(QF+8)}, v{vTA}')
    oe += II(f'v_add_u32 v{vTA}, {RT4}, v{vL16}') + [rr] + II(f'v_lshrrev_b32 v{vTA}, 3, v{vL}\nv_mul_u32_u24 v{vTA}, {18432-128}, v{vTA}\nv_add_u32 v{vTA}, v{vTA}, v{vL16}') + [('SKIP', 8)]
    oe += [Ins(f'buffer_store_dwordx4 {vr(QF+8)}, v{vTA}, {sr(SW)}, s{OR} offen sc1', needs=[rr])]
    l2e = II(f's_lshl_b32 s{T3}, s{FH}, 3\ns_add_u32 s{T3}, s{T3}, {HLONE}\nv_add_u32 v{vTB}, s{T3}, v{vHW}'); l2w = []
    for mt in range(4):
        t0 = SP + mt * 4
        w = Ins(f'ds_write_b64 v{vTB}, {vr(t0,2)} offset:{1024*mt}'); l2w.append(w)
        l2e += [cvt(t0, t0, t0 + 1), cvt(t0 + 1, t0 + 2, t0 + 3), w]
    l2s, _ = restage(SP, PLN, 1024)
    fill2 = [(sl, 0, stamp('slot%d' % sl, True)) for sl in range(NSEG1, NS)] + [
        (NSEG1, 0, oe + [('AT', NSEG1 + 9, 4)] + d_epi(ACCA, 0) + [('AT', NSEG1 + 12, 4)] + l2e + [('BY', NSEG1 + 14)] + pfw
         + [('AT', NSEG1 + 15, 0)] + l2s[:-3] + [('AT', NSEG1 + 15, 12)] + l2s[-2:] + [('AT', NSEG1 + 16, 8)] + pfw2 + [('AT', NS - 1, 20), ('CAP', 3)] + d_epi(ACCB, 1, (0,)) + [('SKIP', 99)] + d_epi(ACCB, 1, (1,)))]
    left = segment(NSEG1, NS, fill2, {NSEG1 + 1: (hld[6] + hld[7], []), NSEG1 + 15: (l2w, [])}, first_loads=att_loads[NATT:], extra_need=lambda f, mt: bmap[f.b(mt)])
    emit_all(left)
    if stamps:
        P('s_waitcnt vmcnt(0)')
        stamp('end')
        P('s_waitcnt lgkmcnt(0)')
        P(f's_lshl_b32 s{T2}, s2, 7')
        P(f's_add_u32 s{T2}, s{T2}, 0x{STAMP_OFF:x}')
        P('s_mov_b32 s%d, s22' % (sTS + len(stamps)))
        P('v_mov_b32 v81, 0')
        for n in range(10):
            P('v_mov_b32 v80, s%d' % (sTS + (n if opt.get('est') else min(n, len(stamps)))))
            P(f'buffer_store_dwordx2 v[80:81], v{vFL}, {sr(SW)}, s{T2} offen offset:{8*n}')
    P.label('K1_end')
    P('s_endpgm')
    print('K1: instrs', len(P.out), 'nops', P.nnop, file=sys.stderr)
    return P.text() + ''.join(slow)
```

```python
import sys
sys.path.insert(0, 'gen')
from prog import *
from asmlib import kernel_desc, STAMP_OFF
from k1 import *

def gen_k2(stamps=False, opt={}):
    P = Prog()
    SX, SO, SWO, SW = 24, 28, 32, 36
    sWv, sC, sM, sT0, sT1, sT2, sOFF, sLB, sG, sU = range(40, 50)
    sLO, sHI = 50, 51
    SLDS = 80 * 1024
    def srd(d, b, nbytes):
        P('s_mov_b32 s%d, s%d' % (d, b))
        P('s_mov_b32 s%d, s%d' % (d + 1, b + 1))
        P('s_mov_b32 s%d, 0x%x' % (d + 2, nbytes))
        P('s_mov_b32 s%d, 0x00020000' % (d + 3))
    def put_stamps(regs, lane_tid):
        P('s_waitcnt lgkmcnt(0)')
        P('s_lshl_b32 s%d, s2, 7' % sT2)
        P('s_add_u32 s%d, s%d, 0x%x' % (sT2, sT2, STAMP_OFF + (1 << 18)))
        P('v_mov_b32 v4, 0x%x' % OOB)
        P('v_cmp_eq_u32 vcc, %d, v0' % lane_tid)
        P('v_cndmask_b32 v4, v4, 0, vcc')
        P('v_mov_b32 v7, 0')
        for n, r in regs:
            P('v_mov_b32 v6, s%d' % r)
            P('buffer_store_dwordx2 v[6:7], v4, %s, s%d offen offset:%d' % (sr(SW), sT2, 8 * n))
    P(f'''s_cmp_ge_u32 s2, 240
    s_cbranch_scc1 K2_end
    s_load_dwordx16 s[4:19], s[0:1], 0
    s_load_dwordx2 s[22:23], s[0:1], 72''')
    if stamps: P('s_memrealtime s[60:61]')
    P(f'''s_and_b32 s{sT0}, s2, 7
    s_mul_i32 s{sT0}, s{sT0}, 30
    s_lshr_b32 s{sT1}, s2, 3
    s_add_u32 s{sT0}, s{sT0}, s{sT1}
    s_cmp_ge_u32 s{sT0}, 234
    s_cbranch_scc1 K2_end
    v_and_b32 v1, 63, v0
    v_lshrrev_b32 v2, 6, v0
    v_readfirstlane_b32 s{sWv}, v2
    s_mul_i32 s{sG}, s{sT0}, 7282
    s_lshr_b32 s{sG}, s{sG}, 16
    s_mul_i32 s{sT2}, s{sG}, 9
    s_sub_u32 s{sC}, s{sT0}, s{sT2}
    s_mul_i32 s{sG}, s{sG}, 5
    s_lshl_b32 s{sLB}, s{sC}, 7
    v_lshlrev_b32 v2, 4, v1
    s_cmp_ge_u32 s{sWv}, 5
    s_cbranch_scc1 K2_red''')
    OF, FR, ACC = 16, 88, 112
    P(f'''s_add_u32 s{sM}, s{sG}, s{sWv}
    s_waitcnt lgkmcnt(0)''')
    srd(SW, 22, WSB)
    P('s_mul_i32 s%d, s%d, 18432' % (sT0, sM))
    P('s_cmp_ge_u32 s%d, 128' % sM)
    P('s_cselect_b32 s%d, 0x%x, s%d' % (sT0, OOB, sT0))
    P('v_lshlrev_b32 v7, 3, v1')
    ol = []
    for k in range(18):
        if k % 4 == 0: P('s_add_u32 s%d, s%d, 0x%x' % (sOFF, sT0, OOFF + k * 1024))
        if k < 16: ol.append(P('buffer_load_dwordx4 %s, v2, %s, s%d offen offset:%d' % (vr(OF + 4 * k), sr(SW), sOFF, 1024 * (k % 4))))
        else:
            P('buffer_load_dwordx2 %s, v7, %s, s%d offen offset:%d' % (vr(OF + 4 * k, 2), sr(SW), sOFF, 1024 * (k % 4)))
            ol.append(P('buffer_load_dwordx2 %s, v7, %s, s%d offen offset:%d' % (vr(OF + 4 * k + 2, 2), sr(SW), sOFF, 1024 * (k % 4) + 512)))
    P(f'''v_and_b32 v7, 15, v1
    v_lshrrev_b32 v8, 4, v1
    v_and_b32 v10, 1, v8
    v_lshrrev_b32 v11, 1, v8
    v_lshrrev_b32 v12, 2, v7
    v_lshl_add_u32 v12, v10, 2, v12
    v_lshrrev_b32 v13, 1, v12
    v_lshlrev_b32 v12, 7, v12
    v_lshl_add_u32 v12, v11, 10, v12
    v_lshl_add_u32 v12, v13, 5, v12
    v_and_b32 v13, 3, v7
    v_lshl_add_u32 v12, v13, 3, v12
    s_lshl_b32 s{sT0}, s{sWv}, 12
    s_add_u32 s{sT0}, s{sT0}, {SLDS}
    v_add_u32 v3, s{sT0}, v2''')
    for dt in range(1, 4): P('v_xor_b32 v%d, %d, v12' % (12 + dt, 32 * dt))
    if stamps: P('s_memrealtime s[62:63]')
    P('s_barrier')
    if stamps: P('s_memrealtime s[64:65]')
    rds = {}
    def rd(n):
        k, dt = divmod(n, 4)
        if n == 64:
            for d in range(4): P('v_add_u32 v%d, 0x10000, v%d' % (12 + d, 12 + d))
        off = k * 4096 if k < 16 else (k - 16) * 4096 + 6144
        f = FR + 4 * (n % 6)
        rds[n] = [P('ds_read_b64_tr_b16 %s, v%d offset:%d' % (vr(f + 2 * h, 2), 12 + dt, off + 2048 * h)) for h in range(2)]
    AH = 5
    for n in range(AH): rd(n)
    for n in range(72):
        k, dt = divmod(n, 4)
        P(Ins('v_mfma_f32_16x16x32_bf16 %s, %s, %s, %s' % (vr(ACC + 4 * dt), vr(FR + 4 * (n % 6)), vr(OF + 4 * k), '0' if k == 0 else vr(ACC + 4 * dt)), needs=rds[n] + [ol[k]]))
        if n + AH < 72: rd(n + AH)
    ws_ = [P(f'ds_write_b128 v3, {vr(ACC+4*dt)} offset:{1024*dt}') for dt in range(4)]
    if stamps: P('s_memrealtime s[66:67]')
    P(Ins('s_barrier', needs=ws_))
    if stamps: put_stamps([(0, 60), (1, 62), (2, 64), (3, 66)], 0)
    P('s_endpgm')
    t1 = P.text()
    P = Prog()
    PT, XR, SUM, T, S_ = 16, 48, 52, 60, 68
    P.label('K2_red')
    P(f'''s_sub_u32 s{sWv}, s{sWv}, 5
    v_lshrrev_b32 v3, 3, v1
    v_and_b32 v4, 7, v1
    v_and_b32 v5, 6, v3
    v_xor_b32 v4, v4, v5
    v_lshlrev_b32 v4, 4, v4
    v_mul_u32_u24 v5, 1152, v3
    v_add_u32 v5, v5, v4
    v_lshrrev_b32 v6, 2, v3
    v_mul_u32_u24 v6, {32*1152}, v6
    v_add_u32 v6, v6, v5
    s_waitcnt lgkmcnt(0)''')
    srd(SWO, 8, 576 * 1152)
    dm = []
    for t in range(7):
        P(f'''s_add_u32 s{sT0}, s{sWv}, {10*t}
        s_lshl_b32 m0, s{sT0}, 10
        s_add_u32 s{sT1}, s{sT0}, 2
        s_lshr_b32 s{sT1}, s{sT1}, 2
        s_lshl_b32 s{sOFF}, s{sT0}, 1
        s_add_u32 s{sOFF}, s{sOFF}, s{sT1}
        s_mul_i32 s{sOFF}, s{sOFF}, {4*1152}
        s_add_u32 s{sOFF}, s{sOFF}, s{sLB}''')
        dm.append(P('buffer_load_dwordx4 v5, %s, s%d offen lds' % (sr(SWO), sOFF)))
    P(f'''s_lshl_b32 s{sT1}, s{sWv}, 10
    s_add_u32 m0, s{sT1}, {70*1024}
    s_mul_i32 s{sOFF}, s{sWv}, {72*1152}
    s_add_u32 s{sOFF}, s{sOFF}, {16*1152}
    s_add_u32 s{sOFF}, s{sOFF}, s{sLB}''')
    dm.append(P('buffer_load_dwordx4 v6, %s, s%d offen lds' % (sr(SWO), sOFF)))
    P(f'''s_and_b32 s{sU}, s{sWv}, 1
    s_lshr_b32 s{sWv}, s{sWv}, 1
    s_add_u32 s{sM}, s{sG}, s{sWv}
    s_lshr_b32 s{sT0}, s{sM}, 3
    s_mul_i32 s{sT0}, s{sT0}, {8*18*8192}
    s_and_b32 s{sT1}, s{sM}, 7
    s_lshl_b32 s{sT1}, s{sT1}, 10
    s_add_u32 s{sT0}, s{sT0}, s{sT1}
    s_lshl_b32 s{sT1}, s{sC}, 14
    s_add_u32 s{sT0}, s{sT0}, s{sT1}
    s_lshl_b32 s{sT1}, s{sU}, 13
    s_add_u32 s{sT0}, s{sT0}, s{sT1}
    s_cmp_ge_u32 s{sM}, 128
    s_cselect_b32 s{sT0}, 0x{OOB:x}, s{sT0}''')
    srd(SW, 22, WSB)
    pl = []
    def pload(p):
        P('s_add_u32 s%d, s%d, 0x%x' % (sOFF, sT0, POFF + p * 18 * 8192))
        pl.append(P('buffer_load_dwordx4 %s, v2, %s, s%d offen' % (vr(PT + 4 * p), sr(SW), sOFF)))
    NB = opt.get('k2nb', 2)
    for p in range(NB): pload(p)
    srd(SX, 4, 2048 * 1152)
    srd(SO, 18, 2048 * 1152)
    P(f'''v_and_b32 v7, 15, v1
    v_lshrrev_b32 v8, 4, v1
    v_mul_u32_u24 v9, 1152, v7
    v_and_b32 v10, 1, v8
    v_lshl_add_u32 v9, v10, 5, v9
    v_lshrrev_b32 v11, 1, v8
    v_lshl_add_u32 v9, v11, 4, v9
    s_mul_i32 s{sT2}, s{sM}, 18432
    s_add_u32 s{sT2}, s{sT2}, s{sLB}
    s_lshl_b32 s{sT1}, s{sU}, 6
    s_add_u32 s{sT2}, s{sT2}, s{sT1}
    v_lshlrev_b32 v12, 2, v7
    s_lshl_b32 s{sG}, s{sM}, 6
    s_add_u32 s{sG}, s{sG}, 0x{ROFF:x}
    s_mov_b32 s{sLO}, 0x00003f80
    s_mov_b32 s{sHI}, 0x3f800000''')
    P(f'''s_lshl_b32 s{sT1}, s{sWv}, 12
    s_lshl_b32 s{sOFF}, s{sU}, 11
    s_add_u32 s{sT1}, s{sT1}, s{sOFF}
    s_add_u32 s{sT1}, s{sT1}, {SLDS}
    v_add_u32 v13, s{sT1}, v2''')
    for r in range(8): P('v_mov_b32 v%d, 0' % (SUM + r))
    P(Ins('s_barrier', needs=dm))
    xl = P('buffer_load_dwordx4 %s, v9, %s, s%d offen' % (vr(XR), sr(SX), sT2))
    rl = P('buffer_load_dword v3, v12, %s, s%d offen' % (sr(SW), sG))
    for p in range(NB, 8): pload(p)
    for p in range(8):
        for q in range(4):
            P(Ins('v_dot2c_f32_bf16 v%d, s%d, v%d' % (SUM + 2 * q, sLO, PT + 4 * p + q), needs=[pl[p]]))
            P('v_dot2c_f32_bf16 v%d, s%d, v%d' % (SUM + 2 * q + 1, sHI, PT + 4 * p + q))
        if p == 6: P(Ins('v_mul_f32 v4, 0x%x, v3' % f2u(-1.4426950408889634), needs=[rl]))
    for r in range(8): P('v_mul_f32 v%d, v%d, v4' % (T + r, SUM + r))
    for r in range(8): P('v_exp_f32 v%d, v%d' % (T + r, T + r))
    for r in range(8): P('v_mul_f32 v%d, v%d, v3' % (SUM + r, SUM + r))
    for r in range(8): P('v_add_f32 v%d, 1.0, v%d' % (T + r, T + r))
    P('s_barrier')
    sl = [P(f'ds_read_b128 {vr(S_+4*h)}, v13 offset:{1024*h}') for h in range(2)]
    for r in range(8): P('v_rcp_f32 v%d, v%d' % (T + r, T + r))
    for r in range(8): P('v_mul_f32 v%d, v%d, v%d' % (SUM + r, SUM + r, T + r))
    for r in range(8): P(Ins('v_mul_f32 v%d, v%d, v%d' % (S_ + r, S_ + r, SUM + r), needs=[sl[r // 4]]))
    for r in range(4): P('v_permlane16_swap_b32 v%d, v%d' % (S_ + r, S_ + 4 + r))
    for q in range(4):
        P(Ins('v_dot2c_f32_bf16 v%d, s%d, v%d' % (S_ + 2 * q, sLO, XR + q), needs=[xl]))
        P('v_dot2c_f32_bf16 v%d, s%d, v%d' % (S_ + 2 * q + 1, sHI, XR + q))
    for q in range(4): P('v_cvt_pk_bf16_f32 v%d, v%d, v%d' % (XR + q, S_ + 2 * q, S_ + 2 * q + 1))
    P('buffer_store_dwordx4 %s, v9, %s, s%d offen %s' % (vr(XR), sr(SO), sT2, opt.get('ost', '')))
    if stamps:
        P('s_waitcnt vmcnt(0)')
        P('s_memrealtime s[68:69]')
        put_stamps([(n, 68) for n in range(4, 10)], 320)
    P.label('K2_end')
    P('s_endpgm')
    return t1 + P.text()

HEAD = """; Fused LayerNorm + sliding-window attention + bilinear GLU FFN, gfx950.  Generated by gen/main.py (hand-designed schedule).
; @launch kernel=ffn_attn_kernel grid=(256,1,1) block=(256,1,1) lds=163840
; @launch kernel=final_kernel grid=(240,1,1) block=(960,1,1) lds=102400
.amdgcn_target "amdgcn-amd-amdhsa--gfx950"
.text
"""
def kb(name): return '.globl %s\n.p2align 8\n.type %s,@function\n%s:\n' % (name, name, name)
def build(**kw):
    st = kw.get('stamps', False)
    t = HEAD + kb('ffn_attn_kernel') + gen_k1(**kw) + kb('final_kernel') + gen_k2(stamps=st, opt=kw.get('opt', {})) + 'code_end:\n'
    t += '.section .rodata,"a"\n.p2align 6\n' + kernel_desc('ffn_attn_kernel', 512, accum=256) + '.p2align 6\n' + kernel_desc('final_kernel', 128)
    return t

if __name__ == '__main__':
    open('recurrent_scan__sliding_block__glu_gated_bilinear__prompt.s', 'w').write(build())
    open('k_st.s', 'w').write(build(stamps=['mf0', 'slot9', 'slot18', 'slot24', 'slot33', 'slot42', 'g1end', 'attend', 'end']))
    open('k_st2.s', 'w').write(build(stamps=['setup', 'sum0', 'sum1', 'ln01', 'sum2', 'sum3', 'ln23', 'mf0', 'end']))
    open('k_st3.s', 'w').write(build(stamps=['g1end', 'attk', 'att1', 'att2', 'att3', 'attend', 'slot60', 'slot63', 'end']))
```

```python
import sys
sys.path.insert(0, 'gen')
from main import build
name = sys.argv[1]; st = sys.argv[2].split(',') if len(sys.argv) > 2 and sys.argv[2] else False
if st == ['all']: st = 'all'
kw = eval(sys.argv[3]) if len(sys.argv) > 3 else {}
t = build(stamps=st, **kw)
open('exp/%s.s' % name, 'w').write(t)
```

```python
import sys
sys.path.insert(0, 'gen')
from prog import *
from asmlib import kernel_desc, STAMP_OFF
from k1 import *

def gen_k2(stamps=False, opt={}):
    P = Prog()
    SX, SO, SWO, SW = 24, 28, 32, 36
    sWv, sC, sM, sT0, sT1, sT2, sOFF, sLB, sG, sU = range(40, 50)
    sLO, sHI = 50, 51
    SLDS = 80 * 1024
    def srd(d, b, nbytes):
        P('s_mov_b32 s%d, s%d' % (d, b))
        P('s_mov_b32 s%d, s%d' % (d + 1, b + 1))
        P('s_mov_b32 s%d, 0x%x' % (d + 2, nbytes))
        P('s_mov_b32 s%d, 0x00020000' % (d + 3))
    def put_stamps(regs, lane_tid):
        P('s_waitcnt lgkmcnt(0)')
        P('s_lshl_b32 s%d, s2, 7' % sT2)
        P('s_add_u32 s%d, s%d, 0x%x' % (sT2, sT2, STAMP_OFF + (1 << 18)))
        P('v_mov_b32 v4, 0x%x' % OOB)
        P('v_cmp_eq_u32 vcc, %d, v0' % lane_tid)
        P('v_cndmask_b32 v4, v4, 0, vcc')
        P('v_mov_b32 v7, 0')
        for n, r in regs:
            P('v_mov_b32 v6, s%d' % r)
            P('buffer_store_dwordx2 v[6:7], v4, %s, s%d offen offset:%d' % (sr(SW), sT2, 8 * n))
    P(f'''s_cmp_ge_u32 s2, 240
    s_cbranch_scc1 K2_end
    s_load_dwordx16 s[4:19], s[0:1], 0
    s_load_dwordx2 s[22:23], s[0:1], 72''')
    if stamps: P('s_memrealtime s[60:61]')
    P(f'''s_and_b32 s{sT0}, s2, 7
    s_mul_i32 s{sT0}, s{sT0}, 30
    s_lshr_b32 s{sT1}, s2, 3
    s_add_u32 s{sT0}, s{sT0}, s{sT1}
    s_cmp_ge_u32 s{sT0}, 234
    s_cbranch_scc1 K2_end
    v_and_b32 v1, 63, v0
    v_lshrrev_b32 v2, 6, v0
    v_readfirstlane_b32 s{sWv}, v2
    s_mul_i32 s{sG}, s{sT0}, 7282
    s_lshr_b32 s{sG}, s{sG}, 16
    s_mul_i32 s{sT2}, s{sG}, 9
    s_sub_u32 s{sC}, s{sT0}, s{sT2}
    s_mul_i32 s{sG}, s{sG}, 5
    s_lshl_b32 s{sLB}, s{sC}, 7
    v_lshlrev_b32 v2, 4, v1
    s_cmp_ge_u32 s{sWv}, 5
    s_cbranch_scc1 K2_red''')
    OF, FR, ACC = 16, 88, 112
    P(f'''s_add_u32 s{sM}, s{sG}, s{sWv}
    s_waitcnt lgkmcnt(0)''')
    srd(SW, 22, WSB)
    P('s_mul_i32 s%d, s%d, 18432' % (sT0, sM))
    P('s_cmp_ge_u32 s%d, 128' % sM)
    P('s_cselect_b32 s%d, 0x%x, s%d' % (sT0, OOB, sT0))
    P('v_lshlrev_b32 v7, 3, v1')
    ol = []
    for k in range(18):
        if k % 4 == 0: P('s_add_u32 s%d, s%d, 0x%x' % (sOFF, sT0, OOFF + k * 1024))
        if k < 16: ol.append(P('buffer_load_dwordx4 %s, v2, %s, s%d offen offset:%d' % (vr(OF + 4 * k), sr(SW), sOFF, 1024 * (k % 4))))
        else:
            P('buffer_load_dwordx2 %s, v7, %s, s%d offen offset:%d' % (vr(OF + 4 * k, 2), sr(SW), sOFF, 1024 * (k % 4)))
            ol.append(P('buffer_load_dwordx2 %s, v7, %s, s%d offen offset:%d' % (vr(OF + 4 * k + 2, 2), sr(SW), sOFF, 1024 * (k % 4) + 512)))
    P(f'''v_and_b32 v7, 15, v1
    v_lshrrev_b32 v8, 4, v1
    v_and_b32 v10, 1, v8
    v_lshrrev_b32 v11, 1, v8
    v_lshrrev_b32 v12, 2, v7
    v_lshl_add_u32 v12, v10, 2, v12
    v_lshrrev_b32 v13, 1, v12
    v_lshlrev_b32 v12, 7, v12
    v_lshl_add_u32 v12, v11, 10, v12
    v_lshl_add_u32 v12, v13, 5, v12
    v_and_b32 v13, 3, v7
    v_lshl_add_u32 v12, v13, 3, v12
    s_lshl_b32 s{sT0}, s{sWv}, 12
    s_add_u32 s{sT0}, s{sT0}, {SLDS}
    v_add_u32 v3, s{sT0}, v2''')
    for dt in range(1, 4): P('v_xor_b32 v%d, %d, v12' % (12 + dt, 32 * dt))
    if stamps: P('s_memrealtime s[62:63]')
    P('s_barrier')
    if stamps: P('s_memrealtime s[64:65]')
    rds = {}
    def rd(n):
        k, dt = divmod(n, 4)
        if n == 64:
            for d in range(4): P('v_add_u32 v%d, 0x10000, v%d' % (12 + d, 12 + d))
        off = k * 4096 if k < 16 else (k - 16) * 4096 + 6144
        f = FR + 4 * (n % 6)
        rds[n] = [P('ds_read_b64_tr_b16 %s, v%d offset:%d' % (vr(f + 2 * h, 2), 12 + dt, off + 2048 * h)) for h in range(2)]
    AH = 5
    for n in range(AH): rd(n)
    for n in range(72):
        k, dt = divmod(n, 4)
        P(Ins('v_mfma_f32_16x16x32_bf16 %s, %s, %s, %s' % (vr(ACC + 4 * dt), vr(FR + 4 * (n % 6)), vr(OF + 4 * k), '0' if k == 0 else vr(ACC + 4 * dt)), needs=rds[n] + [ol[k]]))
        if n + AH < 72: rd(n + AH)
    ws_ = [P(f'ds_write_b128 v3, {vr(ACC+4*dt)} offset:{1024*dt}') for dt in range(4)]
    if stamps: P('s_memrealtime s[66:67]')
    P(Ins('s_barrier', needs=ws_))
    if stamps: put_stamps([(0, 60), (1, 62), (2, 64), (3, 66)], 0)
    P('s_endpgm')
    t1 = P.text()
    P = Prog()
    PT, XR, SUM, T, S_ = 16, 48, 52, 60, 68
    P.label('K2_red')
    P(f'''s_sub_u32 s{sWv}, s{sWv}, 5
    v_lshrrev_b32 v3, 3, v1
    v_and_b32 v4, 7, v1
    v_and_b32 v5, 6, v3
    v_xor_b32 v4, v4, v5
    v_lshlrev_b32 v4, 4, v4
    v_mul_u32_u24 v5, 1152, v3
    v_add_u32 v5, v5, v4
    v_lshrrev_b32 v6, 2, v3
    v_mul_u32_u24 v6, {32*1152}, v6
    v_add_u32 v6, v6, v5
    s_waitcnt lgkmcnt(0)''')
    srd(SWO, 8, 576 * 1152)
    dm = []
    for t in range(7):
        P(f'''s_add_u32 s{sT0}, s{sWv}, {10*t}
        s_lshl_b32 m0, s{sT0}, 10
        s_add_u32 s{sT1}, s{sT0}, 2
        s_lshr_b32 s{sT1}, s{sT1}, 2
        s_lshl_b32 s{sOFF}, s{sT0}, 1
        s_add_u32 s{sOFF}, s{sOFF}, s{sT1}
        s_mul_i32 s{sOFF}, s{sOFF}, {4*1152}
        s_add_u32 s{sOFF}, s{sOFF}, s{sLB}''')
        dm.append(P('buffer_load_dwordx4 v5, %s, s%d offen lds' % (sr(SWO), sOFF)))
    P(f'''s_lshl_b32 s{sT1}, s{sWv}, 10
    s_add_u32 m0, s{sT1}, {70*1024}
    s_mul_i32 s{sOFF}, s{sWv}, {72*1152}
    s_add_u32 s{sOFF}, s{sOFF}, {16*1152}
    s_add_u32 s{sOFF}, s{sOFF}, s{sLB}''')
    dm.append(P('buffer_load_dwordx4 v6, %s, s%d offen lds' % (sr(SWO), sOFF)))
    P(f'''s_and_b32 s{sU}, s{sWv}, 1
    s_lshr_b32 s{sWv}, s{sWv}, 1
    s_add_u32 s{sM}, s{sG}, s{sWv}
    s_lshr_b32 s{sT0}, s{sM}, 3
    s_mul_i32 s{sT0}, s{sT0}, {8*18*8192}
    s_and_b32 s{sT1}, s{sM}, 7
    s_lshl_b32 s{sT1}, s{sT1}, 10
    s_add_u32 s{sT0}, s{sT0}, s{sT1}
    s_lshl_b32 s{sT1}, s{sC}, 14
    s_add_u32 s{sT0}, s{sT0}, s{sT1}
    s_lshl_b32 s{sT1}, s{sU}, 13
    s_add_u32 s{sT0}, s{sT0}, s{sT1}
    s_cmp_ge_u32 s{sM}, 128
    s_cselect_b32 s{sT0}, 0x{OOB:x}, s{sT0}''')
    srd(SW, 22, WSB)
    pl = []
    def pload(p):
        P('s_add_u32 s%d, s%d, 0x%x' % (sOFF, sT0, POFF + p * 18 * 8192))
        pl.append(P('buffer_load_dwordx4 %s, v2, %s, s%d offen' % (vr(PT + 4 * p), sr(SW), sOFF)))
    NB = opt.get('k2nb', 2)
    for p in range(NB): pload(p)
    srd(SX, 4, 2048 * 1152)
    srd(SO, 18, 2048 * 1152)
    P(f'''v_and_b32 v7, 15, v1
    v_lshrrev_b32 v8, 4, v1
    v_mul_u32_u24 v9, 1152, v7
    v_and_b32 v10, 1, v8
    v_lshl_add_u32 v9, v10, 5, v9
    v_lshrrev_b32 v11, 1, v8
    v_lshl_add_u32 v9, v11, 4, v9
    s_mul_i32 s{sT2}, s{sM}, 18432
    s_add_u32 s{sT2}, s{sT2}, s{sLB}
    s_lshl_b32 s{sT1}, s{sU}, 6
    s_add_u32 s{sT2}, s{sT2}, s{sT1}
    v_lshlrev_b32 v12, 2, v7
    s_lshl_b32 s{sG}, s{sM}, 6
    s_add_u32 s{sG}, s{sG}, 0x{ROFF:x}
    s_mov_b32 s{sLO}, 0x00003f80
    s_mov_b32 s{sHI}, 0x3f800000''')
    P(f'''s_lshl_b32 s{sT1}, s{sWv}, 12
    s_lshl_b32 s{sOFF}, s{sU}, 11
    s_add_u32 s{sT1}, s{sT1}, s{sOFF}
    s_add_u32 s{sT1}, s{sT1}, {SLDS}
    v_add_u32 v13, s{sT1}, v2''')
    for r in range(8): P('v_mov_b32 v%d, 0' % (SUM + r))
    P(Ins('s_barrier', needs=dm))
    xl = P('buffer_load_dwordx4 %s, v9, %s, s%d offen' % (vr(XR), sr(SX), sT2))
    rl = P('buffer_load_dword v3, v12, %s, s%d offen' % (sr(SW), sG))
    for p in range(NB, 8): pload(p)
    for p in range(8):
        for q in range(4):
            P(Ins('v_dot2c_f32_bf16 v%d, s%d, v%d' % (SUM + 2 * q, sLO, PT + 4 * p + q), needs=[pl[p]]))
            P('v_dot2c_f32_bf16 v%d, s%d, v%d' % (SUM + 2 * q + 1, sHI, PT + 4 * p + q))
        if p == 6: P(Ins('v_mul_f32 v4, 0x%x, v3' % f2u(-1.4426950408889634), needs=[rl]))
    for r in range(8): P('v_mul_f32 v%d, v%d, v4' % (T + r, SUM + r))
    for r in range(8): P('v_exp_f32 v%d, v%d' % (T + r, T + r))
    for r in range(8): P('v_mul_f32 v%d, v%d, v3' % (SUM + r, SUM + r))
    for r in range(8): P('v_add_f32 v%d, 1.0, v%d' % (T + r, T + r))
    P('s_barrier')
    sl = [P(f'ds_read_b128 {vr(S_+4*h)}, v13 offset:{1024*h}') for h in range(2)]
    for r in range(8): P('v_rcp_f32 v%d, v%d' % (T + r, T + r))
    for r in range(8): P('v_mul_f32 v%d, v%d, v%d' % (SUM + r, SUM + r, T + r))
    for r in range(8): P(Ins('v_mul_f32 v%d, v%d, v%d' % (S_ + r, S_ + r, SUM + r), needs=[sl[r // 4]]))
    for r in range(4): P('v_permlane16_swap_b32 v%d, v%d' % (S_ + r, S_ + 4 + r))
    for q in range(4):
        P(Ins('v_dot2c_f32_bf16 v%d, s%d, v%d' % (S_ + 2 * q, sLO, XR + q), needs=[xl]))
        P('v_dot2c_f32_bf16 v%d, s%d, v%d' % (S_ + 2 * q + 1, sHI, XR + q))
    for q in range(4): P('v_cvt_pk_bf16_f32 v%d, v%d, v%d' % (XR + q, S_ + 2 * q, S_ + 2 * q + 1))
    P('buffer_store_dwordx4 %s, v9, %s, s%d offen %s' % (vr(XR), sr(SO), sT2, opt.get('ost', '')))
    if stamps:
        P('s_waitcnt vmcnt(0)')
        P('s_memrealtime s[68:69]')
        put_stamps([(n, 68) for n in range(4, 10)], 320)
        if opt.get('dbgout'):
            P('s_load_dwordx2 s[70:71], s[0:1], 64')
            P('s_waitcnt lgkmcnt(0)')
            srd(72, 70, 256)
            P('v_lshlrev_b32 v5, 3, v1')
            P('s_mov_b32 s76, 0x%x' % (STAMP_OFF + 8 * 128))
            ld = P('buffer_load_dword v6, v5, %s, s76 offen' % sr(SW))
            P(Ins('v_readfirstlane_b32 s77, v6', needs=[ld]))
            P('v_writelane_b32 v6, s60, 10')
            P('v_writelane_b32 v6, s68, 11')
            P('v_subrev_u32 v6, s77, v6')
            P('v_subrev_u32 v5, 320, v0')
            P('v_lshlrev_b32 v5, 2, v5')
            P('s_cmp_eq_u32 s2, 8')
            P('s_cselect_b32 s76, 0, 0x1000')
            P('buffer_store_dword v6, v5, s[72:75], s76 offen')
    P.label('K2_end')
    P('s_endpgm')
    return t1 + P.text()

HEAD = """; Fused LayerNorm + sliding-window attention + bilinear GLU FFN, gfx950.  Generated by gen/main.py (hand-designed schedule).
; @launch kernel=ffn_attn_kernel grid=(256,1,1) block=(256,1,1) lds=163840
; @launch kernel=final_kernel grid=(240,1,1) block=(960,1,1) lds=102400
.amdgcn_target "amdgcn-amd-amdhsa--gfx950"
.text
"""
def kb(name): return '.globl %s\n.p2align 8\n.type %s,@function\n%s:\n' % (name, name, name)
def build(**kw):
    st = kw.get('stamps', False)
    t = HEAD + kb('ffn_attn_kernel') + gen_k1(**kw) + kb('final_kernel') + gen_k2(stamps=st, opt=kw.get('opt', {})) + 'code_end:\n'
    t += '.section .rodata,"a"\n.p2align 6\n' + kernel_desc('ffn_attn_kernel', 512, accum=256) + '.p2align 6\n' + kernel_desc('final_kernel', 128)
    return t

if __name__ == '__main__':
    open('recurrent_scan__sliding_block__glu_gated_bilinear__prompt.s', 'w').write(build())
    open('k_st.s', 'w').write(build(stamps=['mf0', 'slot9', 'slot18', 'slot24', 'slot33', 'slot42', 'g1end', 'attend', 'end']))
    open('k_st2.s', 'w').write(build(stamps=['setup', 'sum0', 'sum1', 'ln01', 'sum2', 'sum3', 'ln23', 'mf0', 'end']))
    open('k_st3.s', 'w').write(build(stamps=['g1end', 'attk', 'att1', 'att2', 'att3', 'attend', 'slot60', 'slot63', 'end']))
```

```python
import sys, struct
sys.path.insert(0, 'gen')
from prog import *
from asmlib import STAMP_OFF

HOFF = 0x0000000
POFF = 0x1200000
BLK = 110592 + 128
KOFF = 0x2400000 + BLK
OOFF = 0x2C00000
ROFF = 0x2F00000
FOFF = 0x2F10000
WSB = 256 << 20
OOB = 0x10000000
NEG = 0xF149F2CA
SCALE = 0.2357022603955158 * 1.4426950408889634
def f2u(x): return struct.unpack('<I', struct.pack('<f', x))[0]

SLOT = 16384
XB = 5 * SLOT
HLONE = 9 * SLOT
RT4 = 155648
RTB = RT4 + 2048
NCODE = 84

def vr(b, n=4): return 'v[%d:%d]' % (b, b + n - 1)
def ar(b, n=4): return 'a[%d:%d]' % (b, b + n - 1)
def sr(b, n=4): return 's[%d:%d]' % (b, b + n - 1)
def II(text): return [Ins(l) for l in text.strip().split('\n') if l.strip()]

class Frag:
    def __init__(s, base, imm0, imm1, acc, b, first):
        s.base, s.imm, s.acc, s.b, s.first = base, (imm0, imm1), acc, b, first
class Slot:
    def __init__(s, groups, dma):
        s.groups, s.dma, s.loads = groups, dma, None

def gen_k1(JX=4, stamps=False, opt={}):
    P = Prog()
    SX, SQ, SG, SU, SD, SW, SB, SL = 24, 28, 32, 36, 40, 44, 48, 52
    I, J, Wv, RG, FH, E, Pp, T0, T1, T2, T3, OFF, ST, SPN = range(56, 70)
    W4096, W3072, BP, BL1, BD, SIG = range(70, 76)
    BL2 = 76
    HS, HLN, HL, PS, PLN = range(79, 84)
    C, N0, N1 = 84, 85, 86
    QM, QC, BQ, ONE2, LO, HI, R2, XRO = 87, 91, 92, 93, 94, 95, 96, 97
    KO, KB = 87, 92
    NN = 101
    SH = 75 + 11
    OB, OR, MYF, PF, PFD, DB = 4, 5, 6, 7, 10, 11
    PFP, PFW, J0, DUM = 20, 21, 90, 18
    OUTP = 0
    ROT = 3
    sTS = 12
    vL, vL16 = 1, 2
    vDQ = [3, 4, 5, 6]; vDL2 = 7
    vDP = [8, 9]; vDL1 = 10; vTP = [11, 12]; vTL1 = 13
    vTQ = [14, 15]; vDD = [16, 17, 18, 19]; vTD = [20, 21]; vTL2 = 22
    vQS = [23]; vTB = 24; vRS = 25
    vPFP, vPFS, vHW, vFL, vDG, vOR = 26, 27, 28, 29, 30, 31
    vKM, vKR, vVM, vVR = 3, 4, 5, 6
    QW = 8
    vMX, vMN, vTA, vONES = 14, 15, 23, 25
    XT, QF, FR, ACCA, ACCB, SP = 32, 64, 80, 112, 176, 240
    ALL = ['mf0'] + ['slot%d' % n for n in range(1, 51)] + ['g1end', 'attk', 'att1', 'att2', 'att3', 'attend'] + ['slot%d' % n for n in range(52, 72)] + ['g2end', 'wo', 'poll', 'end']
    def stamp(name, ret=False):
        if stamps == 'all':
            if name not in ALL: return []
            n = ALL.index(name)
            x = [Ins('v_writelane_b32 v%d, s22, %d' % (77 + n // 64, n % 64)), Ins('s_memtime s[22:23]')]
            if ret: return [x]
            for y in x: P(y)
            return []
        if stamps and name in stamps:
            n = stamps.index(name)
            x = [Ins('s_mov_b32 s%d, s22' % (sTS + n)), Ins('s_memrealtime s[22:23]')]
            if ret: return [x]
            for y in x: P(y)
        return []
    def breg(pos, mt):
        i = pos * 4 + mt
        return ar(4 * i) if i < 64 else vr(XT + 4 * (i - 64))
    def emit_all(lst):
        for x in lst:
            if isinstance(x, list): emit_all(x)
            elif x.kind == 'label': P.out.append(x)
            else: P(x)
    lg = lambda x: x.bit_length() - 1
    ng = 16 // JX

    P('s_cmp_ge_u32 s2, 256')
    P('s_cbranch_scc1 K1_end')
    P('s_load_dwordx16 s[4:19], s[0:1], 0')
    P('s_load_dwordx4 s[20:23], s[0:1], 64')
    if stamps: P('s_memtime s[84:85]' if stamps == 'all' else 's_memrealtime s[84:85]')
    def code_touch():
        P('s_getpc_b64 %s' % sr(SL, 2))
        P.label('K1_pc')
        P(f'''s_mov_b32 s{SL+2}, code_end-K1_pc
        s_mov_b32 s{SL+3}, 0x00020000
        s_lshr_b32 s{SPN}, s2, 3
        s_and_b32 s{SPN}, s{SPN}, 7
        s_mul_i32 s{SPN}, s{SPN}, {NCODE*128}
        v_lshlrev_b32 v80, 7, v0
        v_mov_b32 v89, 0x{OOB:x}
        v_cmp_gt_u32 vcc, {NCODE}, v0
        v_cndmask_b32 v80, v89, v80, vcc
        buffer_load_dword v79, v80, {sr(SL)}, s{SPN} offen''')
    if not opt.get('ctlate', 1): code_touch()
    P(f'''s_lshr_b32 s{NN}, s2, 3
    v_mov_b32 v89, 0x{OOB:x}
    v_and_b32 v{vL}, 63, v0
    v_lshrrev_b32 v80, 6, v0
    v_readfirstlane_b32 s{Wv}, v80
    s_and_b32 s{T0}, s2, 7
    s_and_b32 s{J}, s{T0}, {ng-1}
    s_lshl_b32 s{J}, s{J}, {lg(JX)}
    s_and_b32 s{T2}, s{NN}, {JX-1}
    s_or_b32 s{J}, s{J}, s{T2}
    s_lshr_b32 s{I}, s{T0}, {lg(ng)}
    s_lshl_b32 s{I}, s{I}, {lg(32//JX)}
    s_lshr_b32 s{T2}, s{NN}, {lg(JX)}
    s_or_b32 s{I}, s{I}, s{T2}
    s_and_b32 s{RG}, s{Wv}, 1
    s_lshr_b32 s{FH}, s{Wv}, 1
    s_and_b32 s{E}, s{J}, 1
    s_lshr_b32 s{Pp}, s{J}, 1
    s_and_b32 s{ROT}, s{J}, {min(JX-1, 3)}
    v_lshrrev_b32 v82, 3, v{vL}
    v_and_b32 v83, 7, v{vL}
    v_mul_u32_u24 v100, 1152, v82
    v_lshl_add_u32 v100, v83, 4, v100
    s_lshl_b32 s{T0}, s{I}, 3
    s_lshl_b32 s{T1}, s{RG}, 2
    s_add_u32 s{T0}, s{T0}, s{T1}
    s_add_u32 s{T1}, s{T0}, s{FH}
    s_mul_i32 s{T1}, s{T1}, {16*1152}''')
    if JX == 2: P(f's_lshl_b32 s{ROT}, s{ROT}, 1')
    def xro(blk):
        P(f'''s_xor_b32 s{T2}, s{ROT}, {blk}
        s_and_b32 s{T3}, s{T2}, 1
        s_lshl_b32 s{T3}, s{T3}, 3
        s_and_b32 s{T2}, s{T2}, 2
        s_lshl_b32 s{T2}, s{T2}, 4
        s_or_b32 s{XRO+blk}, s{T2}, s{T3}''')
    xro(0)
    if opt.get('est'): P('s_memrealtime s[76:77]')
    P('s_waitcnt lgkmcnt(0)')
    if opt.get('est'): P('s_memrealtime s[78:79]')
    def srd(d, b, nbytes, shift=0):
        if shift:
            P('s_sub_u32 s%d, s%d, %d' % (d, b, shift))
            P('s_subb_u32 s%d, s%d, 0' % (d + 1, b + 1))
        else:
            P('s_mov_b32 s%d, s%d' % (d, b))
            P('s_mov_b32 s%d, s%d' % (d + 1, b + 1))
        P('s_mov_b32 s%d, 0x%x' % (d + 2, nbytes + shift))
        P('s_mov_b32 s%d, 0x00020000' % (d + 3))
    srd(SX, 4, 2048 * 1152)
    XR = 112
    xl = []
    def xload(blk):
        ld = [Ins('buffer_load_dwordx4 %s, v100, %s, s%d offen offset:%d' % (vr(XR + 36 * blk + 4 * l), sr(SX), OFF, 128 * l)) for l in range(9)]
        xl.append(ld)
        return [II(f's_mul_i32 s{OFF}, s{XRO+blk}, 1152\ns_add_u32 s{OFF}, s{OFF}, s{T1}')] + [[x] for x in ld]
    emit_all(xload(0))
    if opt.get('ctlate', 1): code_touch()
    if opt.get('est'): P('s_memrealtime s[80:81]')
    if opt.get('est') == 2:
        P('s_waitcnt vmcnt(8)')
        P('s_memrealtime s[82:83]')
        P('s_waitcnt vmcnt(0)')
        P('s_memrealtime s[86:87]')
    for blk in range(1, 4): xro(blk)
    srd(SQ, 6, 576 * 3456, shift=2048)
    RS = 36 // JX
    P(f'''s_and_b32 s{J0}, s{J}, {16-JX}
    s_and_b32 s{SH}, s2, 7
    s_lshr_b32 s{SH}, s{SH}, {lg(ng)}
    s_lshl_b32 s{SH}, s{SH}, 5
    s_add_u32 s{SH}, s{SH}, s{NN}
    v_lshrrev_b32 v86, {lg(2*JX)}, v0
    v_and_b32 v87, {2*JX-1}, v0
    v_mul_u32_u24 v88, 3456, v86
    v_lshl_add_u32 v87, v87, 7, v88
    v_cmp_gt_u32 vcc, {RS}, v86
    v_cndmask_b32 v87, v89, v87, vcc
    s_mul_i32 s{ST}, s{SH}, {RS*3456}
    s_lshl_b32 s{T2}, s{J0}, 8
    s_add_u32 s{BL2}, s{ST}, s{T2}
    v_mov_b32 v104, v87''')
    qtouch = [Ins(f'buffer_load_dword v79, v104, {sr(SQ)}, s{BL2} offen offset:2048')]
    if opt.get('qt', 2) == 0: emit_all(qtouch)
    srd(SG, 12, 576 * 9216)
    srd(SU, 14, 576 * 9216, shift=2048)
    srd(SD, 16, 4608 * 1152, shift=2048)
    srd(SW, 22, WSB)
    srd(SB, 20, 256)
    P(f's_mov_b64 {sr(OUTP,2)}, s[18:19]')
    P(f'''s_cmp_ge_u32 s{Wv}, 2
    s_cselect_b32 s{SL}, s14, s12
    s_cselect_b32 s{SL+1}, s15, s13
    s_mov_b32 s{SL+2}, 0x{576*9216:x}
    s_mov_b32 s{SL+3}, 0x00020000
    s_mul_i32 s{PFP}, s{SH}, {RS*9216}
    s_mul_i32 s{T2}, s{RG}, {1152 if JX == 4 else 9*9216}
    s_add_u32 s{PFP}, s{PFP}, s{T2}
    s_mul_i32 s{T2}, s{J0}, 576
    s_add_u32 s{PFP}, s{PFP}, s{T2}''')
    if stamps: P('s_mov_b64 s[22:23], s[84:85]')
    P(f'''s_lshl_b32 s{W4096}, s{Wv}, 12
    s_lshl_b32 s{BQ}, s{J}, 8
    s_mul_i32 s{T2}, s{Wv}, {16*3456}
    s_add_u32 s{BQ}, s{BQ}, s{T2}
    s_cmp_ge_u32 s{J}, 14
    s_cselect_b32 s{BQ}, 0x{OOB:x}, s{BQ}
    s_mov_b32 s{ONE2}, 0x3f803f80
    s_mov_b32 s{LO}, 0x00003f80
    s_mov_b32 s{HI}, 0x3f800000
    v_lshrrev_b32 v84, 4, v{vL}
    v_and_b32 v85, 15, v{vL}
    v_cmp_eq_u32 vcc, 0, v0
    v_cndmask_b32 v{vFL}, v89, 0, vcc
    v_lshlrev_b32 v86, 1, v82
    v_and_b32 v86, 4, v86
    v_xor_b32 v86, v83, v86
    v_mul_u32_u24 v87, 9216, v82
    v_lshl_add_u32 v{vDP[0]}, v86, 4, v87
    v_mul_u32_u24 v88, 3456, v82
    v_lshl_add_u32 v90, v86, 4, v88
    v_add_u32 v{vDQ[0]}, 2048, v90
    v_add_u32 v{vDQ[2]}, 128, v90
    v_xor_b32 v86, 2, v86
    v_lshl_add_u32 v{vDP[1]}, v86, 4, v87
    v_add_u32 v{vDP[1]}, {8*9216-1024}, v{vDP[1]}
    v_lshl_add_u32 v90, v86, 4, v88
    v_add_u32 v{vDQ[1]}, {8*3456-1024+2048}, v90
    v_add_u32 v{vDQ[3]}, {8*3456-1024+128}, v90
    s_lshl_b32 s{SIG}, s{E}, 1
    s_sub_u32 s{SIG}, 1, s{SIG}
    s_mul_i32 s{BP}, s{Pp}, 1152
    s_lshl_b32 s{T3}, s{E}, 10
    s_add_u32 s{BP}, s{BP}, s{T3}
    s_mul_i32 s{T3}, s{Wv}, {16*9216}
    s_add_u32 s{BP}, s{BP}, s{T3}
    v_and_b32 v87, 3, v{vL}
    v_lshrrev_b32 v86, 2, v85
    v_and_b32 v88, 1, v84
    v_lshrrev_b32 v92, 1, v84
    v_lshlrev_b32 v90, 12, v92
    v_lshl_add_u32 v90, v88, 10, v90
    v_lshl_add_u32 v90, v86, 7, v90
    v_lshrrev_b32 v91, 1, v86
    v_xor_b32 v91, s{FH}, v91
    v_lshl_add_u32 v90, v91, 6, v90
    v_lshl_add_u32 v90, v88, 5, v90
    v_lshl_add_u32 v{vTQ[0]}, v87, 3, v90
    v_xor_b32 v{vTQ[1]}, 32, v{vTQ[0]}
    s_lshl_b32 s{T2}, s{E}, 6
    v_xor_b32 v{vTP[0]}, s{T2}, v{vTQ[0]}
    v_xor_b32 v{vTP[1]}, s{T2}, v{vTQ[1]}
    s_mul_i32 s{ST}, s{RG}, {2*18432}
    s_add_u32 s{ST}, s{ST}, {XB}
    v_xor_b32 v90, v85, v84
    v_lshlrev_b32 v90, 4, v90
    v_lshl_add_u32 v90, v84, 8, v90
    v_add_u32 v65, s{ST}, v90
    v_xor_b32 v66, 64, v65
    s_mul_i32 s{T2}, s{FH}, 18432
    s_add_u32 s{ST}, s{ST}, s{T2}
    s_and_b32 s{T2}, s{XRO}, 8
    s_lshl_b32 s{T2}, s{T2}, 4
    s_add_u32 s{ST}, s{ST}, s{T2}
    v_xor_b32 v90, v82, v83
    v_lshlrev_b32 v90, 4, v90
    v_lshl_add_u32 v90, v83, 8, v90
    v_add_u32 v64, s{ST}, v90
    v_xor_b32 v76, 128, v64
    s_lshl_b32 s{T2}, s{RG}, 6
    s_lshl_b32 s{T3}, s{FH}, 4
    s_add_u32 s{T2}, s{T2}, s{T3}
    v_add_u32 v67, s{T2}, v82''')
    def G(text): return [II(text)]
    P(f'''s_lshl_b32 s{T2}, s{I}, 4
    s_add_u32 s{T2}, s{T2}, s{J}
    s_lshl_b32 s{MYF}, s{T2}, 7
    s_add_u32 s{MYF}, s{MYF}, 0x{FOFF:x}
    s_lshl_b32 s{DB}, s{I}, 2
    s_lshl_b32 s{T2}, 1, s{J}
    v_mov_b32 v105, s{T2}
    v_mov_b32 v86, 0''')
    freset = P(f'buffer_store_dword v86, v{vFL}, {sr(SW)}, s{MYF} offen sc1')
    fatom = Ins(f'buffer_atomic_or v105, v{vFL}, {sr(SB)}, s{DB} offen offset:8', needs=[freset])
    late0 = II(f'''s_mul_i32 s{W3072}, s{Wv}, 3072
    s_lshl_b32 s{T2}, s{I}, 4
    s_add_u32 s{T2}, s{T2}, s{J}
    v_mov_b32 v207, 0
    s_xor_b32 s{PF}, s{MYF}, 128
    s_mul_i32 s{HS}, s{T2}, {9*8192}
    s_xor_b32 s{T2}, s{T2}, 1
    s_mul_i32 s{HL}, s{T2}, {9*8192}
    s_lshl_b32 s{T2}, s{RG}, 12
    s_add_u32 s{HS}, s{HS}, s{T2}
    s_lshl_b32 s{T3}, s{FH}, 11
    s_add_u32 s{HLN}, s{HS}, s{T3}
    s_add_u32 s{HLN}, s{HLN}, {8*8192}
    s_add_u32 s{HL}, s{HL}, s{T2}
    s_lshl_b32 s{T3}, s{FH}, 13
    s_add_u32 s{HS}, s{HS}, s{T3}
    s_mul_i32 s{BL1}, s{Pp}, 1152
    s_lshl_b32 s{T2}, s{E}, 6
    s_add_u32 s{T2}, s{T2}, 512
    s_add_u32 s{BL1}, s{BL1}, s{T2}
    s_mul_i32 s{T3}, s{RG}, {48*9216}
    s_add_u32 s{BL1}, s{BL1}, s{T3}''')
    late0b = II(f'''s_lshl_b32 s{T2}, s{RG}, 12
    s_lshl_b32 s{T3}, s{I}, 3
    s_add_u32 s{T3}, s{T3}, s{Pp}
    s_mul_i32 s{PS}, s{T3}, {18*8192}
    s_add_u32 s{PS}, s{PS}, s{T2}
    s_add_u32 s{PS}, s{PS}, 0x{POFF:x}
    s_add_u32 s{T3}, s{E}, 8
    s_lshl_b32 s{T3}, s{T3}, 13
    s_add_u32 s{PLN}, s{PS}, s{T3}
    s_lshl_b32 s{T3}, s{FH}, 11
    s_add_u32 s{PLN}, s{PLN}, s{T3}
    s_mul_i32 s{T3}, s{E}, 10
    s_add_u32 s{T3}, s{T3}, s{FH}
    s_lshl_b32 s{T3}, s{T3}, 13
    s_add_u32 s{PS}, s{PS}, s{T3}
    s_lshl_b32 s{T2}, s{E}, 6
    s_add_u32 s{T2}, s{T2}, 512
    s_mul_i32 s{T1}, s{Pp}, {576*1152}
    s_mul_i32 s{T3}, s{E}, {17*32*1152}
    s_add_u32 s{T1}, s{T1}, s{T3}
    s_mul_i32 s{BD}, s{E}, 640
    s_add_u32 s{BD}, s{BD}, s{T1}
    s_mul_i32 s{T3}, s{FH}, s{SIG}
    s_mul_i32 s{T3}, s{T3}, {32*1152}
    s_add_u32 s{BD}, s{BD}, s{T3}
    s_mul_i32 s{T3}, s{RG}, {16*1152}
    s_add_u32 s{BD}, s{BD}, s{T3}
    s_add_u32 s{T1}, s{T1}, s{T2}''')
    for t in range(3):
        late0b += II(f'''s_mul_i32 s{T2}, s{Wv}, 3
        s_add_u32 s{T2}, s{T2}, {t}
        s_lshr_b32 s{T3}, s{T2}, 1
        s_mul_i32 s{T3}, s{T3}, s{SIG}
        s_mul_i32 s{T3}, s{T3}, {32*1152}
        s_add_u32 s{BL2+t}, s{T1}, s{T3}
        s_and_b32 s{T2}, s{T2}, 1
        s_mul_i32 s{T2}, s{T2}, {16*1152}
        s_add_u32 s{BL2+t}, s{BL2+t}, s{T2}
        s_add_u32 s{BL2+t}, s{BL2+t}, {2048-1024*t}''')
    late0 += II(f'''s_mul_i32 s{T2}, s{T0}, {BLK//2}
    s_lshl_b32 s{T3}, s{J}, 13
    s_add_u32 s{T2}, s{T2}, s{T3}
    s_lshl_b32 s{T3}, s{FH}, 11
    s_add_u32 s{T2}, s{T2}, s{T3}
    s_add_u32 s{T2}, s{T2}, 0x{KOFF:x}
    s_movk_i32 s{QC}, 4096''')
    late0 += G(f's_cmp_ge_u32 s{J}, 14\ns_cselect_b32 s{QM}, 0x{OOB:x}, s{T2}')
    late0 += G(f's_cmp_eq_u32 s{J}, 13\ns_cselect_b32 s{QC}, 0x{OOB:x}, s{QC}')
    late0b += II(f'''s_lshl_b32 s{T2}, s{FH}, 1
    s_add_u32 s{T2}, s{T2}, s{T0}
    s_mul_i32 s{OB}, s{T2}, 18432
    s_lshl_b32 s{T2}, s{J}, 10
    s_add_u32 s{OB}, s{OB}, s{T2}
    s_add_u32 s{OB}, s{OB}, 0x{OOFF:x}
    s_mul_i32 s{OR}, s{I}, {8*18432}
    s_lshl_b32 s{T2}, s{J}, 7
    s_add_u32 s{OR}, s{OR}, s{T2}
    s_add_u32 s{OR}, s{OR}, 0x{OOFF+16384:x}''')
    late0b += G(f's_cmp_eq_u32 s{Wv}, 0\ns_cselect_b32 s{OR}, s{OR}, 0x{OOB:x}')
    late0b += II(f'''s_mov_b32 s{C}, 0x{f2u(SCALE):x}''')
    late0b += G(f's_cmp_lt_u32 s{I}, 2\ns_cselect_b32 s{N0}, 0xffff, 0') + G(f's_cmp_lt_u32 s{I}, 1\ns_cselect_b32 s{N1}, 0xffff, 0')
    late0 += II(f'''s_mul_i32 s{PFD}, s{J0}, {288*1152}
    s_mul_i32 s{T2}, s{SH}, {162*128}
    s_add_u32 s{PFD}, s{PFD}, s{T2}
    s_mul_i32 s{T2}, s{Wv}, {41*128}
    s_add_u32 s{PFD}, s{PFD}, s{T2}''')
    late0 += II(f'''v_lshlrev_b32 v{vL16}, 4, v{vL}
    v_lshrrev_b32 v182, 3, v{vL}
    v_and_b32 v183, 7, v{vL}
    v_lshrrev_b32 v184, 4, v{vL}
    v_and_b32 v185, 15, v{vL}
    v_and_b32 v186, 6, v182
    v_xor_b32 v186, v183, v186
    v_mul_u32_u24 v187, 1152, v182
    v_lshl_add_u32 v187, v186, 4, v187''')
    for t in range(4):
        late0 += II('v_add_u32 v%d, %d, v187' % (vDD[t], (t & 1) * (8 * 1152 - 1024) + (t >> 1) * (128 - 2048) + 2048))
    late0 += II(f'''v_lshrrev_b32 v186, 2, v{vL}
    v_and_b32 v187, 3, v{vL}
    v_and_b32 v188, 2, v184
    v_xor_b32 v188, v187, v188
    v_mul_u32_u24 v190, 9216, v186
    v_lshl_add_u32 v{vDL1}, v188, 4, v190
    v_and_b32 v188, 1, v184
    v_lshlrev_b32 v188, 1, v188
    v_xor_b32 v188, v187, v188
    v_mul_u32_u24 v190, 1152, v186
    v_lshl_add_u32 v{vDL2}, v188, 4, v190
    v_lshrrev_b32 v186, 2, v185
    v_and_b32 v188, 1, v184
    v_lshrrev_b32 v192, 1, v184
    v_lshl_add_u32 v190, v184, 3, v186
    v_lshlrev_b32 v190, 6, v190
    v_xor_b32 v191, s{FH}, v188
    v_lshl_add_u32 v190, v191, 5, v190
    v_lshl_add_u32 v{vTL1}, v187, 3, v190
    v_lshl_add_u32 v190, v184, 2, v186
    v_lshlrev_b32 v190, 6, v190
    v_lshl_add_u32 v190, v191, 5, v190
    v_lshl_add_u32 v{vTL2}, v187, 3, v190
    v_lshl_add_u32 v190, v188, 2, v186
    v_lshrrev_b32 v191, 1, v190
    s_lshl_b32 s{T2}, s{FH}, 1
    v_xor_b32 v191, s{T2}, v191
    v_lshlrev_b32 v190, 7, v190
    v_lshl_add_u32 v190, v192, 10, v190
    v_lshl_add_u32 v190, v191, 5, v190
    v_lshl_add_u32 v{vTD[0]}, v187, 3, v190
    v_xor_b32 v{vTD[1]}, 32, v{vTD[0]}
    v_mov_b32 v189, 0x{OOB:x}
    v_cmp_eq_u32 vcc, 0, v184
    v_lshlrev_b32 v190, 2, v184
    v_sub_u32 v{vDG}, v190, v185
    v_cndmask_b32 v{vOR}, v189, v{vL16}, vcc
    s_lshl_b32 s{T2}, s{RG}, 12
    v_add_u32 v{vHW}, s{T2}, v{vL16}''')
    late0 += G(f's_cmp_ge_u32 s{J}, 9\ns_cselect_b64 vcc, -1, 0')
    late0 += II(f'''v_lshlrev_b32 v191, 6, v185
    v_lshl_add_u32 v191, v184, 4, v191
    v_cndmask_b32 v{vQS[0]}, v{vL16}, v191, vcc
    v_lshlrev_b32 v190, 4, v185
    v_add_u32 v190, {RT4}, v190
    v_lshlrev_b32 v191, 4, v184
    v_add_u32 v191, {RTB}, v191
    v_cndmask_b32 v190, v190, v191, vcc
    s_lshl_b32 s{T2}, s{RG}, 10
    v_add_u32 v{vRS}, s{T2}, v190
    v_mov_b32 v204, 0
    v_mov_b32 v205, 0
    v_mov_b32 v206, 0
    s_mul_i32 s{T2}, s{J}, 2304
    s_add_u32 s{T2}, s{T2}, 0x{KOFF-BLK+148*256:x}''')
    late0 += G(f's_cmp_eq_u32 s{I}, 0\ns_cselect_b32 s{T2}, s{T2}, 0x{OOB:x}')
    guard = Ins(f'buffer_store_dwordx4 v[204:207], v{vOR}, {sr(SW)}, s{T2} offen sc1')
    late0 += [guard]
    late0 += II(f'''v_mov_b32 v200, 0x3f803f80
    v_mov_b32 v201, 0x3f803f80
    v_mov_b32 v202, 0x3f803f80
    v_mov_b32 v203, 0x3f803f80
    s_lshl_b32 s{T2}, s{I}, 2
    s_add_u32 s{T2}, s{T2}, s{Wv}
    s_mul_i32 s{T2}, s{T2}, {BLK}
    s_add_u32 s{T2}, s{T2}, 0x{KOFF+110592:x}
    v_cmp_gt_u32 vcc, 8, v{vL}
    s_nop 0
    s_nop 0
    v_cndmask_b32 v199, v189, v{vL16}, vcc''')
    late0 += G(f's_cmp_eq_u32 s{J}, 14\ns_cselect_b32 s{T2}, s{T2}, 0x{OOB:x}')
    ones_st = Ins(f'buffer_store_dwordx4 v[200:203], v199, {sr(SW)}, s{T2} offen sc1')
    late0 += [ones_st]

    slots = []
    def dma4(srds, voffs, sbase, add, sadd=0, bump=None, pre=''):
        def f(rp):
            if bump is not None:
                g = [II((bump + '\n' if bump else '') + f's_add_u32 s{OFF}, s{sbase}, {add}\ns_add_u32 m0, s{W4096}, {rp*SLOT}')]
            elif sadd and not add:
                g = [II(pre + f's_mul_i32 s{OFF}, s{SIG}, {sadd}\ns_add_u32 s{OFF}, s{OFF}, s{sbase}\ns_add_u32 m0, s{W4096}, {rp*SLOT}')]
            elif sadd:
                g = [II(f's_mul_i32 s{OFF}, s{SIG}, {sadd}\ns_add_u32 s{OFF}, s{OFF}, s{sbase}'),
                     II(f's_add_u32 s{OFF}, s{OFF}, {add}\ns_add_u32 m0, s{W4096}, {rp*SLOT}')]
            else:
                g = [II(f's_add_u32 s{OFF}, s{sbase}, {add}\ns_add_u32 m0, s{W4096}, {rp*SLOT}')]
            for t in range(4):
                g.append([Ins('buffer_load_dwordx4 v%d, %s, s%d offen offset:%d lds' % (voffs[t], sr(srds[t]), OFF, 1024 * t))])
            return g
        return f
    def dma_l1(s):
        def f(rp):
            g = []
            for t in range(3):
                pre = II(f's_add_u32 s{OFF}, s{BL1}, {s*96*9216 + t*(16*9216-1024)}')
                if t == 0: pre += II(f's_add_u32 m0, s{W3072}, {rp*SLOT}')
                g.append(pre)
                g.append(II(f'buffer_load_dwordx4 v{vDL1}, {sr(SL)}, s{OFF} offen offset:{1024*t} lds'))
            return g
        return f
    def dma_l2(s):
        def f(rp):
            g = [II(f's_add_u32 m0, s{W3072}, {rp*SLOT}')]
            for t in range(3):
                g.append(II(f's_mul_i32 s{OFF}, s{SIG}, {s*192*1152}\ns_add_u32 s{OFF}, s{OFF}, s{BL2+t}'))
                g.append(II(f'buffer_load_dwordx4 v{vDL2}, {sr(SD)}, s{OFF} offen offset:{1024*t} lds'))
            return g
        return f
    def accf(base, tile): return lambda mt: base + (tile * 4 + mt) * 4
    def bf(pos): return lambda mt: breg(pos, mt)
    def pairlike(vT, acc, s):
        return [[Frag(vT[ft], ks * 8192 + m * 2048, ks * 8192 + m * 2048 + 512, accf(acc, 2 * m + ft), bf(2 * s + ks), s == 0 and ks == 0) for ks in range(2)] for m in range(2) for ft in range(2)]
    for s in range(9):
        slots.append(Slot(pairlike(vTQ, ACCA, s), dma4([SQ] * 4, vDQ, BQ, s * 64 * 3456)))
    PACC = [ACCB, ACCB, ACCA, ACCB]
    def pstep(q):
        for s in range(9):
            slots.append(Slot(pairlike(vTP, PACC[q], s), dma4([SG, SG, SU, SU], [vDP[0], vDP[1], vDP[0], vDP[1]], BP, s * 64 * 9216, bump=(f's_lshl_b32 s{OFF}, s{SIG}, 7\ns_add_u32 s{BP}, s{BP}, s{OFF}' if s == 0 and q else ''))))
    pstep(0)
    for s in range(6):
        gs = [[Frag(vTL1, m * 6144 + ks * 2048, m * 6144 + ks * 2048 + 256, accf(ACCA, m), bf(3 * s + ks), s == 0 and ks == 0) for ks in range(3)] for m in range(2)]
        slots.append(Slot(gs, dma_l1(s)))
    pstep(1); pstep(2); pstep(3)
    NSEG1 = len(slots)
    hpos = {}
    for n, k in enumerate([6, 7, 11, 10]): hpos[k] = n
    for n, k in enumerate([0, 1, 2, 3, 4, 5, 16, 17, 14, 15, 12, 13, 9, 8]): hpos[k] = 4 + n
    lorder = [8, 7, 6, 0, 1, 2, 4, 3, 5]
    def dstep(q):
        acc = ACCA
        for n, ln in enumerate(lorder):
            gs = [[Frag(vTD[ft], ks * 8192 + c * 2048, ks * 8192 + c * 2048 + 4096, accf(acc, 2 * c + ft), bf(hpos[2 * ln + ks]), n == 0 and ks == 0) for ks in range(2)] for c in range(2) for ft in range(2)]
            slots.append(Slot(gs, dma4([SD] * 4, vDD, BD, 0, ln * 64 * 1152, pre=(f's_add_u32 s{BD}, s{BD}, 256\n' if q and n == 0 else ''))))
    dstep(0)
    for s in range(3):
        gs = [[Frag(vTL2, ks * 2048, ks * 2048 + 1024, accf(SP, 0), bf(hpos[6 * s + ks]), s == 0 and ks == 0) for ks in range(3 * hg, 3 * hg + 3)] for hg in range(2)]
        slots.append(Slot(gs, dma_l2(s)))
    n0 = len(slots); dstep(1)
    for sl in slots[n0:]:
        for g in sl.groups:
            for f in g: f.acc = (lambda old: (lambda mt: old(mt) + (ACCB - ACCA)))(f.acc)
    NS = len(slots)
    vWD = [3, 4, 5, 6]; vWD2 = 8; vWT = [9, 10, 11, 12]; vPL = 13
    TL, TP, TX, TM, TV, OL, FB = 87, 88, 89, 90, 91, 92, 93
    for s in range(4): slots.append(Slot([], dma4([SG] * 4, vWD, TL, s * 4 * 36 * 1152)))
    def dma_w2(rp):
        return [II(f's_mul_i32 s{OFF}, s{Wv}, {(144-36)*1152}\ns_add_u32 s{OFF}, s{OFF}, s{TL}\ns_lshr_b32 m0, s{W4096}, 1\ns_add_u32 m0, m0, {rp*SLOT}'),
                II(f'buffer_load_dwordx4 v{vWD2}, {sr(SG)}, s{OFF} offen lds'), II(f's_add_u32 s{OFF}, s{OFF}, {72*1152-1024}'),
                II(f'buffer_load_dwordx4 v{vWD2}, {sr(SG)}, s{OFF} offen offset:1024 lds')]
    slots.append(Slot([], dma_w2))
    NSX = len(slots)
    phys = {n: n for n in range(9)}; load_at = {}; hphys = {}
    nxt = 9
    divert = {18: 0, 33: 1, 42: 2, 50: 3}
    for n in range(2, NSEG1):
        if n in divert: hphys[divert[n]] = phys[n - 2]
        else: phys[nxt] = phys[n - 2]; load_at[n] = nxt; nxt += 1
    att_loads = []
    for f in [phys[NSEG1 - 2], phys[NSEG1 - 1], hphys[0], hphys[1], hphys[2]]:
        phys[nxt] = f; att_loads.append(nxt); nxt += 1
    extra_loads = {}
    for n in range(NSEG1 + 2, NS):
        q = n - (NSEG1 + 2)
        if q == 1: phys[nxt] = hphys[3]; extra_loads[n] = [nxt]; nxt += 1
        if nxt < NSX: phys[nxt] = phys[n - 2]; load_at[n] = nxt; nxt += 1
    assert nxt == NSX
    def dma_groups(n):
        g = slots[n].dma(phys[n])
        slots[n].loads = [x for grp in g for x in grp if x.kind == 'vmem']
        return g

    SV = opt.get('sv', 4.75)
    loud = set(); svc = {id(guard): 1, id(ones_st): 1}
    def T(text, q=56):
        x = Ins(text); loud.add(id(x)); svc[id(x)] = q; return x
    VLS = opt.get('vls', [[0, 8, 4, 1, 7], [2, 6, 3, 5]])
    def pf_gu(VL, t0, msk, q=0):
        nl = len(VL); tab = sum(l << (4 * n) for n, l in enumerate(VL)); a_, b_, c_ = t0, t0 + 1, t0 + 2
        return II(f'''v_mul_u32_u24 v{b_}, {65536//nl+1}, v{vL}
        v_lshrrev_b32 v{b_}, 16, v{b_}
        v_cmp_gt_u32 {msk}, 9, v{b_}
        v_mul_u32_u24 v{a_}, {4*nl}, v{b_}
        v_lshlrev_b32 v{c_}, 2, v{vL}
        v_sub_u32 v{a_}, v{c_}, v{a_}
        v_mov_b32 v{c_}, 0x{tab:x}
        v_bfe_u32 v{a_}, v{c_}, v{a_}, 4
        v_mul_u32_u24 v{b_}, 9216, v{b_}
        v_lshl_add_u32 v{b_}, v{a_}, 7, v{b_}
        v_mov_b32 v{a_}, 0x{OOB:x}
        v_cndmask_b32 v{b_}, v{a_}, v{b_}, {msk}''') + [T(f'buffer_load_dword v0, v{b_}, {sr(SL)}, s{PFP} offen', q)]
    emit_all(xload(1))
    stamp('setup')
    if opt.get('est'):
        P('s_waitcnt lgkmcnt(0)')
        for n, r in enumerate((76, 78, 80, 82, 86)): P('s_mov_b32 s%d, s%d' % (sTS + 5 + n, r))

    NPRE = opt.get('npre', 5)
    bg = [('GAP', opt.get('gap0', 30))] + xload(2) + ([qtouch] if opt.get('qt', 2) == 1 else []) + xload(3) + ([qtouch] if opt.get('qt', 2) == 2 else []) + [('GAP', opt.get('gap1', 150))]
    for n in range(NPRE): bg += dma_groups(n)
    GU2 = opt.get('gu2', 0)
    bg += ([] if opt.get('nog') else [pf_gu(VLS[0], 106, 's[78:79]')] + ([] if GU2 else [pf_gu(VLS[1], 106, 's[78:79]')])) + [[fatom]]
    cnt = [0]; lq = []; lcnt = [0, 10]
    EVERY = opt.get('every', 8)
    def V(t, needs=()):
        r = P(Ins(t, needs))
        cnt[0] += 1
        if bg and cnt[0] >= EVERY:
            cnt[0] = 0
            while bg:
                g = bg.pop(0)
                if isinstance(g, tuple): cnt[0] = -g[1]; break
                emit_all(g)
                if any(x.kind == 'vmem' for x in g): break
        lcnt[0] += 1
        if lq and lcnt[0] >= lcnt[1]:
            lcnt[0] = 0; emit_all([lq.pop(0)])
        return r
    def reduce8(r):
        V('v_add_f32_dpp v%d, v%d, v%d quad_perm:[1,0,3,2] row_mask:0xf bank_mask:0xf' % (r, r, r))
        V('v_add_f32_dpp v%d, v%d, v%d quad_perm:[2,3,0,1] row_mask:0xf bank_mask:0xf' % (r, r, r))
        V('v_add_f32_dpp v%d, v%d, v%d row_half_mirror row_mask:0xf bank_mask:0xf' % (r, r, r))
    def ln_block(blk, defer=False):
        X = XR + 36 * blk
        wa = [64, 76][blk & 1]
        for n in range(36):
            if n < 4: V('v_dot2_f32_bf16 v%d, v%d, s%d, 0' % (68 + n, X + n, ONE2), needs=[xl[blk][0]])
            else: V('v_dot2_f32_bf16 v%d, v%d, s%d, v%d' % (68 + n % 4, X + n, ONE2, 68 + n % 4), needs=[xl[blk][n // 4]])
        stamp('sum%d' % blk)
        V(f'v_add_u32 v77, s{XRO+blk}, v67')
        V('v_lshlrev_b32 v78, 4, v77')
        V('v_add_u32 v78, %d, v78' % RT4)
        V('v_add_f32 v68, v68, v69')
        V('v_add_f32 v70, v70, v71')
        V('v_add_f32 v68, v68, v70')
        V('v_and_b32 v101, 0x70, v77')
        V('v_mul_u32_u24 v101, 12, v101')
        reduce8(68)
        V('v_mul_f32 v68, 0x%x, v68' % f2u(-1.0 / 576))
        wr = []
        LAG = 2
        for n in range(36 + LAG + 1):
            if n < 36:
                t = 80 + 2 * (n % 8)
                V('v_dot2_f32_bf16 v%d, v%d, s%d, v68' % (t, X + n, LO))
                V('v_dot2_f32_bf16 v%d, v%d, s%d, v68' % (t + 1, X + n, HI))
            m = n - LAG
            if 0 <= m < 36:
                t = 80 + 2 * (m % 8)
                V('v_cvt_pk_bf16_f32 v%d, v%d, v%d' % (X + m, t, t + 1))
            m = n - LAG - 1
            if 0 <= m < 36:
                V('v_dot2_f32_bf16 v%d, v%d, v%d, %s' % (72 + m % 4, X + m, X + m, '0' if m < 4 else 'v%d' % (72 + m % 4)))
                if m % 4 == 3:
                    w = Ins('ds_write_b128 v%d, %s offset:%d' % (wa, vr(X + m - 3), (m // 4) * 2048)); wr.append(w)
                    if not defer: P(w)
        dwr = list(wr)
        V('v_lshl_add_u32 v101, v77, 2, v101')
        V('v_add_u32 v101, %d, v101' % RTB)
        V('v_add_f32 v72, v72, v73')
        V('v_add_f32 v74, v74, v75')
        V('v_add_f32 v72, v72, v74')
        V('v_mov_b32 v73, 0x%x' % f2u(1e-5))
        reduce8(72)
        V('v_fmac_f32 v73, 0x%x, v72' % f2u(1.0 / 576))
        V('v_rsq_f32 v96, v73')
        for t in (1, 2, 3): V('v_mov_b32 v%d, v96' % (96 + t))
        wr.append(P('ds_write_b128 v78, v[96:99]'))
        wr.append(P('ds_write_b32 v101, v96'))
        return wr, dwr
    slow = []
    nlab = [0]
    def alt_site(inline, other):
        nlab[0] += 1; n = nlab[0]
        slow.append(f'alt{n}:\n' + ''.join('    %s\n' % t for t in other) + f'    s_branch alt{n}_e\n')
        return [Ins(f's_cbranch_vccz alt{n}')] + inline + [Ins(f'alt{n}_e:')]
    def xn_reads(rho, per):
        def texts(r): return ['ds_read_b128 %s, v%d offset:%d' % (breg(ks, 2 * r + t), 65 + (ks & 1), t * 18432 + ks * 1024) for ks in range(18) for t in range(2)]
        rs = [Ins(t) for t in texts(rho)]; ot = texts(1 - rho)
        if rho == 0: return rs, [alt_site(rs[n:n + per], ot[n:n + per]) for n in range(0, 36, per)]
        out = []
        for n in range(0, 36, per):
            for sfx in ('', 'v', 'k'):
                slow.append(f'xs{n}{sfx}:\n' + ''.join('    %s\n' % t for t in ot[n:n + per]) + f'    s_branch xs{n}{sfx}_e\n')
            out.append(II(f's_bitcmp1_b32 s{ROT}, 1\ns_cbranch_scc1 xs{n}') + rs[n:n + per] + [Ins(f'xs{n}_e:')])
        slow.append('xs0v_e:\nxs4v_e:\nxs0k_e:\nxs4k_e:\n    s_endpgm\n')
        return rs, out
    P(f's_bitcmp0_b32 s{ROT}, 1')
    P('s_cselect_b64 vcc, -1, 0')
    w0, _ = ln_block(0); w1, _ = ln_block(1)
    stamp('ln01')
    P(Ins('s_barrier', needs=w0 + w1))
    r0, sites = xn_reads(0, 6)
    lq += sites; lcnt[1] = 24
    w2, d2 = ln_block(2, defer=True)
    emit_all(lq); lq.clear()
    P(Ins('s_barrier', needs=r0))
    lq += d2; lcnt[1] = 12
    w3, _ = ln_block(3)
    emit_all(lq); lq.clear()
    emit_all([g for g in bg if not isinstance(g, tuple)]); bg.clear()
    stamp('ln23')
    P(Ins('s_barrier', needs=w2 + w3 + slots[0].loads))
    r1, sites = xn_reads(1, 4)
    stamp('mf0')

    window = {}
    AH = 4; AHM = opt.get('ah', 6)
    def make_reads(fr, sidx, fi):
        w, o = divmod(phys[sidx] * SLOT, 65536)
        out = []
        if window.get(fr.base, 0) != w:
            d = (w - window.get(fr.base, 0)) * 65536
            out.append(Ins('v_add_u32 v%d, 0x%x, v%d' % (fr.base, d & 0xffffffff, fr.base)))
            window[fr.base] = w
        f = FR + 4 * (fi % 8)
        fr.reg = f
        fr.rd = [Ins('ds_read_b64_tr_b16 %s, v%d offset:%d' % (vr(f + 2 * h, 2), fr.base, o + fr.imm[h])) for h in range(2)]
        return [out + [fr.rd[0]], [fr.rd[1]]]
    def segment(s0, s1, fillers, bar_extra, first_loads=(), extra_need=None, hook=None, quiet=(), pre=()):
        frs = []; groups = []
        for s in range(s0, s1):
            for g in slots[s].groups:
                groups.append((s, len(frs), g))
                for f in g: frs.append((s, f))
        nm = sum(4 * len(g) for _, _, g in groups)
        gm = [[] for _ in range(nm)]; ga = [[] for _ in range(nm)]; gz = [[] for _ in range(nm)]
        used = [0] * nm; vmw = [0] * (nm + 16)
        mf = []; issued = 0; slot_start = {}
        ismem = lambda x: x.kind in ('ds', 'vmem')
        def put(k, items, cost=None):
            (gm if len(items) == 1 and ismem(items[0]) else ga)[k].extend(items)
            used[k] += min(2, sum(x.cost for x in items)) if cost is None else cost
        while issued < AH:
            s, f = frs[issued]
            emit_all(make_reads(f, s, issued)); issued += 1
        emit_all(list(pre))
        pend = [(-1, list(first_loads), ())]
        barpos = {}; vcand = set(); fv = set()
        for (s, f0, g) in groups:
            a = len(mf)
            slot_start.setdefault(s, a)
            n = 4 * len(g)
            for mt in range(4):
                for f in g: mf.append((s, f, mt, g))
            if a > 0: used[a - 1] += 1
            vcand.update(range(a + 1, a + n, 4))
            items = []
            while issued < min(len(frs), f0 + min(8, len(g) + AHM)) and frs[issued][0] <= s + 1:
                s2, f2 = frs[issued]
                r = make_reads(f2, s2, issued)
                if frs[issued - 1][0] != s2: r[0] = ['BAR', s2] + r[0]
                items += r; issued += 1
            for q, it in enumerate(items):
                k = a + q * n // len(items)
                if it[0] == 'BAR':
                    s2 = it[1]
                    ex = bar_extra.get(s2, ((), ()))
                    b = Ins('s_barrier'); b.needs = ('LAZY', s2, list(ex[0]) + ([x for f in g for x in f.rd] if k == a else []))
                    gz[k - 1].append(b); used[k - 1] += 1 if k == a else 2
                    barpos[s2] = k - 1
                    pend.append((k - 1, list(extra_loads.get(s2, [])) + ([load_at[s2]] if s2 in load_at else []), ex[1]))
                    it = it[2:]
                if len(it) == 2: put(max(k - 1, 0), it[:1]); it = it[1:]
                put(k, it)
        class Chain:
            def __init__(c, items, start): c.q = list(items); c.rel = start; c.last = -1; c.cap = 2
        dl = []; dead = {}
        for (k, lds_, post) in pend:
            dl.append(('ATK', k + 1)); dl += list(post)
            for n in lds_:
                for g in dma_groups(n):
                    for x in g:
                        dl.append(x)
                        if x.kind == 'vmem': dead[id(x)] = (n, barpos.get(n, 10 ** 9 if n < NS else nm + opt.get('wdl', -100))); svc[id(x)] = SV * (2 if len(slots[n].groups) == 2 else 1)
        chains = [Chain(dl, 0)] + [Chain(lst, slot_start[s] + off) for (s, off, lst) in fillers if lst]
        leads = {}
        pfree = 0.0
        def head(c, k):
            while c.q and isinstance(c.q[0], tuple):
                it = c.q[0]
                if c.rel > k: return None
                if opt.get('dbg') and it[0] in ('AT', 'BY'):
                    cs = max(x for x in slot_start if slot_start[x] <= k); print('   marker', it, 'reached at slot', cs, '+', k - slot_start[cs], file=sys.stderr)
                if it[0] == 'AT': c.rel = slot_start[it[1]] + it[2]
                elif it[0] == 'ATK': c.rel = it[1]
                elif it[0] == 'BY': assert k <= slot_start[it[1]], ('filler late', it, k, slot_start[it[1]])
                elif it[0] == 'CAP': c.cap = it[1]
                elif it[0] == 'SKIP': c.rel = k + it[1]
                c.q.pop(0)
            if not c.q or c.rel > k: return None
            return c.q[0]
        for k in range(nm):
            if not gm[k] and used[k] < 2:
                cand = []
                for n_, c in enumerate(chains):
                    x = head(c, k)
                    if x is None or isinstance(x, list) or not ismem(x) or c.last >= k: continue
                    if x.kind == 'ds':
                        if used[k] + x.cost > 2: continue
                    elif id(x) not in loud and pfree - k > opt.get('bl', 1.5): continue
                    pr = 1
                    if n_ == 0: pr = 0 if dead.get(id(x), (0, 0))[1] - k < opt.get('crit', 72) else 2
                    cand.append((pr, n_))
                if cand:
                    c = chains[min(cand)[1]]; x = c.q.pop(0); c.last = k
                    put(k, [x], x.cost if x.kind == 'ds' else 1)
                    if x.kind == 'vmem':
                        pfree = max(pfree, k + svc[id(x)]) if id(x) in loud else max(pfree, k) + svc.get(id(x), SV)
                        if id(x) in dead and dead[id(x)][1] < 10 ** 9: leads[dead[id(x)][0]] = dead[id(x)][1] - k
            for c in chains:
                while True:
                    x = head(c, k)
                    if x is None or (not isinstance(x, list) and ismem(x)): break
                    it = x if isinstance(x, list) else [x]
                    cst = min(2, sum(y.cost for y in it))
                    if used[k] + cst > c.cap: break
                    c.q.pop(0); c.last = k; ga[k].extend(it); used[k] += cst
        left = [(x if isinstance(x, list) else [x]) for c in chains for x in c.q if not isinstance(x, tuple)]
        print('DMA leads:', ' '.join('%d:%d' % x for x in sorted(leads.items())), file=sys.stderr)
        assert min(v for n_, v in leads.items() if n_ < NS) > 30
        for k, (s, f, mt, g) in enumerate(mf):
            if hook: hook(k, s)
            c = f.acc(mt)
            nd = [x for f_ in g for x in f_.rd] + ([extra_need(f, mt)] if extra_need else [])
            P(Ins('v_mfma_f32_16x16x32_bf16 %s, %s, %s, %s' % (vr(c), vr(f.reg), f.b(mt), '0' if f.first else vr(c)), needs=nd))
            for x in gz[k]: x.needs = list(slots[x.needs[1]].loads) + list(x.needs[2])
            emit_all(gm[k] + ga[k] + gz[k])
        return left

    def mul(d, a_, b_): return Ins('v_mul_f32 v%d, v%d, v%d' % (d, a_, b_))
    def cvt(d, a_, b_): return Ins('v_cvt_pk_bf16_f32 v%d, v%d, v%d' % (d, a_, b_))
    kv_stores = []
    def qkv_epi():
        rs = [Ins('ds_read_b128 %s, v%d offset:%d' % (vr(SP + 4 * mt), vRS, 256 * mt)) for mt in range(4)]
        L = list(rs) + [('SKIP', 6)]
        for mp in range(2):
            if mp: L += II(f's_add_u32 s{QM}, s{QM}, {BLK}')
            for c in range(2):
                if c: L += II(f's_add_u32 s{T2}, s{QM}, s{QC}')
                for ft in range(2):
                    te = ACCA + ((2 * c + ft) * 4 + 2 * mp) * 4; to = te + 4
                    for r in range(8):
                        x = mul(te + r, te + r, SP + 8 * mp + r); x.needs = [rs[2 * mp + r // 4]]; L.append(x)
                    L += [cvt(te, te, te + 1), cvt(te + 1, te + 2, te + 3), cvt(te + 2, to, to + 1), cvt(te + 3, to + 2, to + 3)]
                    st = Ins(f'buffer_store_dwordx4 {vr(te)}, v{vQS[0]}, {sr(SW)}, s{T2 if c else QM} offen offset:{1024*ft} sc1')
                    L.append(st); kv_stores.append(st)
        return L
    def l1_epi():
        L = II(f's_lshl_b32 s{T3}, s{FH}, 3\ns_add_u32 s{T3}, s{T3}, {HLONE}\nv_add_u32 v{SP+11}, s{T3}, v{vHW}')
        ws_ = []
        for mt in range(4):
            g0 = ACCA + mt * 4; u0 = ACCA + (4 + mt) * 4
            L += [mul(g0 + t, g0 + t, u0 + t) for t in range(4)] + [cvt(u0, g0, g0 + 1), cvt(u0 + 1, g0 + 2, g0 + 3)]
            w = Ins(f'ds_write_b64 v{SP+11}, {vr(u0,2)} offset:{1024*mt}'); L.append(w); ws_.append(w)
        L2 = II(f's_lshl_b32 s{T3}, s{FH}, 11\ns_add_u32 s{T3}, s{T3}, {HLONE}\nv_add_u32 v{SP+11}, s{T3}, v{vHW}')
        rd = [Ins(f'ds_read_b128 {vr(ACCA+4*m)}, v{SP+11} offset:{1024*m}') for m in range(2)]
        sts = [Ins(f'buffer_store_dwordx4 {vr(ACCA+4*m)}, v{vL16}, {sr(SW)}, s{HLN} offen offset:{1024*m} sc1', needs=[rd[m]]) for m in range(2)]
        return L, sts, ws_, L2 + rd + [('SKIP', 10)] + sts
    hw = {}
    def pair_epi(acc, q):
        L = II(f's_add_u32 s{ST}, s{HS}, {q*2*8192}\ns_lshl_b32 s{T1}, s{FH}, 13\ns_add_u32 s{T1}, s{T1}, {hphys[q]*SLOT}\nv_add_u32 v{SP+11}, s{T1}, v{vHW}')
        sts = []; hw[q] = []
        for mt in range(4):
            g0 = acc + mt * 4; g1 = acc + (4 + mt) * 4; u0 = acc + (8 + mt) * 4; u1 = acc + (12 + mt) * 4
            L += [mul(g0 + t, g0 + t, u0 + t) for t in range(4)]
            L += [mul(g1 + t, g1 + t, u1 + t) for t in range(4)]
            L += [cvt(u0, g0, g0 + 1), cvt(u0 + 1, g0 + 2, g0 + 3), cvt(u0 + 2, g1, g1 + 1), cvt(u0 + 3, g1 + 2, g1 + 3)]
            st = Ins(f'buffer_store_dwordx4 {vr(u0)}, v{vL16}, {sr(SW)}, s{ST} offen offset:{1024*mt} sc1')
            w = Ins(f'ds_write_b128 v{SP+11}, {vr(u0)} offset:{1024*mt}', cost=2)
            L += [st, w]; sts.append(st); hw[q].append(w)
        return L, sts
    def d_epi(acc, q, cs=(0, 1)):
        L = []
        for c in cs:
            L.append(Ins(f's_add_u32 s{ST}, s{PS}, {(2*q+c)*2*8192}'))
            for mt in range(4):
                t0 = acc + (8 * c + mt) * 4; t1 = acc + (8 * c + 4 + mt) * 4
                L += [cvt(t0, t0, t0 + 1), cvt(t0 + 1, t0 + 2, t0 + 3), cvt(t0 + 2, t1, t1 + 1), cvt(t0 + 3, t1 + 2, t1 + 3)]
                L.append(Ins(f'buffer_store_dwordx4 {vr(t0)}, v{vL16}, {sr(SW)}, s{ST} offen offset:{1024*mt} sc1'))
        return L
    def poll_check(name, ld, test):
        g = [Ins(t, needs=[ld] if n == 0 else []) for n, t in enumerate(test)]
        g.append(Ins('s_cbranch_scc0 %s_slow' % name))
        g.append(Ins('%s_ok:' % name))
        S = Prog()
        S.label('%s_slow' % name)
        S('s_mov_b32 s%d, 400000' % SPN)
        S.label('%s_loop' % name)
        S('s_sleep 2')
        S(ld.text)
        S('s_waitcnt vmcnt(0)')
        S('s_sub_u32 s%d, s%d, 1' % (SPN, SPN))
        S('s_cbranch_scc1 %s_ok' % name)
        for t in test: S(t)
        S('s_cbranch_scc0 %s_loop' % name)
        S('s_branch %s_ok' % name)
        slow.append(S.text())
        return g
    def setflag(n, reg):
        return II(f'v_mov_b32 v{reg}, {n}\nbuffer_store_dword v{reg}, v{vFL}, {sr(SW)}, s{MYF} offen sc1')
    def hpoll(n, reg):
        ld = T(f'buffer_load_dword v{reg}, off, {sr(SW)}, s{PF} sc1')
        return ld, poll_check('h%d' % n, ld, [f'v_readfirstlane_b32 s{T2}, v{reg}', f's_cmp_ge_u32 s{T2}, {n}'])

    qe = qkv_epi()
    pe = [pair_epi(PACC[q], q) for q in range(4)]
    le = l1_epi()
    VREG = [ACCA + 4 * n for n in range(16)] + [SP + 4 * n for n in range(4)]
    G0M, G1M = 96, 98
    late = II(f'''s_mov_b32 s{SQ}, s8
    s_mov_b32 s{SQ+1}, s9
    s_mov_b32 s{SQ+2}, 0x{576*1152:x}
    s_mul_i32 s{T1}, s{T0}, {BLK//2}
    s_mul_i32 s{T2}, s{J}, 2304
    s_add_u32 s{T1}, s{T1}, s{T2}
    s_mov_b32 s{G0M}, 0xffff
    s_mov_b32 s{G0M+1}, 0
    s_mov_b32 s{G1M}, 0xffff0000
    s_mov_b32 s{G1M+1}, 0''')
    for a_ in range(5):
        late += II(f's_add_u32 s{KO+a_}, s{T1}, 0x{KOFF + (2*a_-9)*BLK:x}')
        if a_ < 4:
            late.append(II(f's_cmp_ge_u32 s{T0}, {16-4*a_}\ns_cselect_b32 s{KO+a_}, s{KO+a_}, 0x{OOB:x}\ns_cselect_b32 s{KB+a_}, 0, 0xf149'))
    a0, a1, a2, a3 = SP, SP + 1, SP + 2, SP + 3
    vTK, vQR, vTD_, vR0, vR1 = SP + 4, SP + 5, QF + 12, SP + 7, SP + 8
    late += II(f'''v_and_b32 v{a0}, 15, v{vL}
    v_lshrrev_b32 v{a1}, 4, v{vL}
    v_mov_b32 v{a3}, 0x{OOB:x}
    s_mul_i32 s{T2}, s{FH}, 1280
    s_add_u32 s{T3}, s{T2}, {BLK+144*256}
    v_add_u32 v{vKM}, s{T3}, v{vL16}
    v_lshlrev_b32 v{a1}, 4, v{a1}
    v_lshl_add_u32 v{a1}, v{a0}, 6, v{a1}
    s_add_u32 s{T3}, s{T2}, {BLK+73728}
    v_add_u32 v{vVM}, s{T3}, v{a1}
    s_lshl_b32 s{T2}, s{FH}, 7
    s_add_u32 s{T2}, s{T2}, {BLK+73728+1024}
    v_add_u32 v{a1}, s{T2}, v{a1}
    v_cmp_gt_u32 vcc, 2, v{a0}
    s_lshl_b32 s{T2}, s{FH}, 2
    s_add_u32 s{T2}, s{T2}, {BLK+148*256}
    v_lshlrev_b32 v{a2}, 4, v{a0}
    v_cndmask_b32 v{vVR}, v{a3}, v{a1}, vcc
    v_add_u32 v{a2}, s{T2}, v{a2}
    v_cmp_gt_u32 vcc, 32, v{vL}
    v_subrev_u32 v{a1}, {BLK-8}, v{a2}
    v_cndmask_b32 v{vR0}, v{a3}, v{a2}, {sr(G0M,2)}
    v_cndmask_b32 v{vQR}, v{a3}, v{a2}, vcc
    v_cndmask_b32 v{vR1}, v{a3}, v{a1}, {sr(G1M,2)}
    v_cndmask_b32 v{vKR}, v{vR0}, v{a1}, {sr(G1M,2)}
    v_and_b32 v{a0}, 3, v{a0}
    s_mul_i32 s{T2}, s{J}, 2304
    s_sub_u32 s{T2}, {BLK+110592}, s{T2}
    v_mov_b32 v{a2}, s{T2}
    v_cmp_eq_u32 vcc, 2, v{a0}
    v_mul_u32_u24 v{a0}, 3641, v{vL}
    v_lshrrev_b32 v{a0}, 16, v{a0}
    v_cndmask_b32 v{vVR}, v{vVR}, v{a2}, vcc
    v_lshlrev_b32 v{a1}, 7, v{vL}
    v_cmp_gt_u32 vcc, 41, v{vL}
    v_mul_u32_u24 v{a0}, {36864-18*128}, v{a0}
    v_lshl_add_u32 v{a0}, v{vL}, 7, v{a0}
    v_cndmask_b32 v{vTD_}, v{a3}, v{a1}, vcc
    v_cmp_gt_u32 vcc, 54, v{vL}
    s_nop 0
    s_nop 0
    v_cndmask_b32 v{vTK}, v{a3}, v{a0}, vcc''')
    kvld = T(f'buffer_load_dwordx4 {vr(SP+12)}, off, {sr(SB)}, s{DB} sc1', 32)
    kvtest = [f'v_readfirstlane_b32 s{T2}, v{SP+12}', f'v_readfirstlane_b32 s{T3}, v{SP+13}', f'v_readfirstlane_b32 s{T1}, v{SP+14}',
              f's_or_b32 s{T2}, s{T2}, s{N0}', f's_or_b32 s{T3}, s{T3}, s{N1}', f's_and_b32 s{T2}, s{T2}, s{T3}',
              f's_and_b32 s{T2}, s{T2}, s{T1}', f's_cmp_eq_u32 s{T2}, 0xffff']
    kv2pre = II(f'''v_lshlrev_b32 v{SP+9}, 7, v{vL}
    v_cmp_gt_u32 vcc, 48, v{vL}
    s_lshl_b32 s{DB}, s{I}, 11
    s_add_u32 s{DB}, s{DB}, 0x{FOFF-4096:x}
    v_cndmask_b32 v{SP+9}, v{a3}, v{SP+9}, vcc
    s_lshl_b32 s{N1}, s{N1}, 16
    s_or_b32 s{N1}, s{N1}, s{N0}''')
    kv2ld = T(f'buffer_load_dword v{SP+12}, v{SP+9}, {sr(SW)}, s{DB} offen sc1', 32)
    kv2test = [f'v_cmp_le_u32 vcc, 1, v{SP+12}', 's_nop 1', f's_or_b32 s{T2}, vcc_lo, s{N1}', f's_or_b32 s{T3}, vcc_hi, 0xffff0000', f's_and_b32 s{T2}, s{T2}, s{T3}', f's_cmp_eq_u32 s{T2}, -1']
    kvpre = II(f'''s_lshl_b32 s{T3}, s{I}, 2
    s_add_u32 s{T3}, s{T3}, s{Wv}
    s_mul_i32 s{T3}, s{T3}, {BLK}
    s_mul_i32 s{T2}, s{J}, 2304
    s_add_u32 s{T3}, s{T3}, s{T2}
    s_add_u32 s{T3}, s{T3}, 0x{KOFF:x}''')
    kvtouch = [T(f'buffer_load_dword v0, v{vTK}, {sr(SW)}, s{T3} offen')] if opt.get('kvt', 0) else []
    if JX > 2 and opt.get('kvt', 0):
        kvtouch += II(f's_sub_u32 s{T3}, s{T3}, {8*BLK}\ns_and_b32 s{T2}, s{I}, {32//JX-2}') + \
                   [II(f's_or_b32 s{T2}, s{T2}, s{N0}\ns_cselect_b32 s{T3}, 0x{OOB:x}, s{T3}'), T(f'buffer_load_dword v0, v{vTK}, {sr(SW)}, s{T3} offen')]
    kvtouch += [II(f's_getpc_b64 {sr(SB,2)}') + [Ins('K1_pc2:')]] + II(f'''s_mov_b32 s{SB+2}, code_end-K1_pc2
    s_and_b32 s{T2}, s{NN}, 7
    s_lshl_b32 s{T2}, s{T2}, 2
    s_add_u32 s{T2}, s{T2}, s{Wv}
    s_mul_i32 s{T2}, s{T2}, {12*128}
    v_lshlrev_b32 v{SP}, 7, v{vL}
    v_cmp_gt_u32 vcc, 12, v{vL}
    s_nop 0
    s_nop 0
    v_cndmask_b32 v{SP}, v{a3}, v{SP}, vcc''') + [T(f'buffer_load_dword v0, v{SP}, {sr(SB)}, s{T2} offen', 32)]
    qld = []; ql = []
    for a_ in range(2):
        l0 = Ins(f'buffer_load_dwordx4 {vr(QF+4*a_)}, v{vKM}, {sr(SW)}, s{T3} offen sc1')
        l1 = [Ins(f'buffer_load_dword v{QF+8+2*a_+h}, v{vQR}, {sr(SW)}, s{T3} offen offset:{8*h} sc1') for h in range(2)]
        ql += [Ins(f's_add_u32 s{T3}, s{KO+4}, {(a_*BLK - 36864) & 0xffffffff}'), l0, l1[0], l1[1]]; qld += [[l0, l1[0]], [l0, l1[1]]]
    km = []; kr = []; kl = []; vld = []; vl = []
    PACE = ('SKIP', 0)
    for b_ in range(11):
        so = Ins(f's_add_u32 s{T3}, s{KO+min(b_//2,4)}, {(b_-2*min(b_//2,4))*BLK}')
        r_ = Ins(f'buffer_load_dword a{6*b_}, v{vR0 if b_ == 0 else (vR1 if b_ == 10 else vKR)}, {sr(SW)}, s{T3} offen sc1'); kr.append(r_)
        kl += [so, r_, PACE]
        lo_, hi_ = b_ // 2, (b_ - 1) // 2
        nm_ = lambda q_: f's{KB+q_}' if 0 <= q_ < 4 else '0'
        if b_ <= 8: kl += II(f's_pack_ll_b32_b16 s{T2}, {nm_(lo_)}, {nm_(hi_)}\nv_accvgpr_write_b32 a{6*b_+1}, s{T2}')
        else: kl += II(f'v_accvgpr_write_b32 a{6*b_+1}, 0')
        if b_ < 10:
            m_ = Ins(f'buffer_load_dwordx4 {ar(6*b_+2)}, v{vKM}, {sr(SW)}, s{T3} offen sc1'); km.append(m_)
            kl += [m_, PACE]
    kld = [[km[u // 2], kr[(u + 1) // 2]] for u in range(20)]
    for v in range(10):
        a_ = Ins(f'buffer_load_dwordx4 {vr(VREG[2*v])}, v{vVM}, {sr(SW)}, s{T3} offen sc1')
        b_ = Ins(f'buffer_load_dwordx4 {vr(VREG[2*v+1])}, v{vVR}, {sr(SW)}, s{T3} offen sc1')
        vl.append([Ins(f's_add_u32 s{T3}, s{KO+v//2}, {(v%2)*BLK}'), a_, PACE, b_, PACE]); vld += [a_, b_]
    def vfix(v): return [Ins(f'v_or_b32 v{VREG[2*v+1]+r}, v{vONES}, v{VREG[2*v+1]+r}', needs=[vld[2 * v + 1]]) for r in range(4)]
    pfd = [T(f'buffer_load_dword v0, v{vTD_}, {sr(SD)}, s{PFD} offen offset:2048', opt.get('qd', 120))]
    if opt.get('nod'): pfd = []
    pfw = II(f's_mul_i32 s{T2}, s2, {21*128}') + [II(f's_cmp_eq_u32 s{Wv}, 0\ns_cselect_b32 s{T2}, s{T2}, 0x{OOB:x}'), T(f'buffer_load_dword v0, v{vTD_}, {sr(SQ)}, s{T2} offen')]
    if opt.get('nod'): pfw = []
    h1ld, h1chk = hpoll(2, vPFP)
    e_ = opt.get('ev', [8, 0, 26, 29, 38])
    flat = lambda l: [y for x in l for y in x]
    NV1 = opt.get('nv1', 3)
    fill1 = [(sl, 0, stamp('slot%d' % sl, True)) for sl in range(NSEG1)] + [
        (0, 1, flat([[x, ('SKIP', 6)] for x in sites[2:]])),
        (max(GU2 - 1, 0), 0, (pf_gu(VLS[1], QF + 4, sr(DUM, 2), opt.get('qg', 110))[:-1] + [('AT', GU2, 0)] + pf_gu(VLS[1], QF + 4, sr(DUM, 2), opt.get('qg', 110))[-1:]) if GU2 else []),
        (0, 2, late0 + late0b + [('BY', 9), ('AT', 9, 4)] + qe + [('BY', 16)] + late + [kvld, ('AT', 18, 4)]
         + pe[0][0] + [('BY', 24), poll_check('kv', kvld, kvtest)] + kv2pre + [('AT', 24, 4)]
         + le[0] + [('BY', 26), ('AT', e_[2], 0), kv2ld] + [('AT', 27, 0)] + le[3] + [('AT', e_[3] - 1, 8), poll_check('kw', kv2ld, kv2test)] + kvpre + [('AT', e_[3], 0)] + pfd + pfw + kvtouch + [('BY', 33), ('AT', 33, 4)]
         + pe[1][0] + ql + [('BY', 42), ('AT', 42, 4)]
         + pe[2][0] + [('AT', 44, 0)] + kl + flat(vl[:NV1]) + [h1ld]),
    ]
    bx1 = {
        3: (r1, []),
        opt.get('kvf', 17): (kv_stores + [guard, ones_st], setflag(1, SP + 10)),
        27: (le[2], []),
        47: (pe[0][1] + le[1] + pe[1][1] + pe[2][1], setflag(2, SP + 10)),
    }
    extra_loads[3] = [5, 6, 7, 8, load_at.pop(2)]
    xmap = {}
    for n, x in enumerate(r1):
        ks = n // 2
        for mt in range(4): xmap[breg(ks, mt)] = r1[2 * ks + 1]
    mark = {}
    def hook(k, s):
        if k == 0:
            P(f's_cmp_ge_u32 s{J}, 9')
            P('s_cbranch_scc1 qkv_v')
            mark['a'] = len(P.out)
        if s == 9 and 'b' not in mark:
            mark['b'] = len(P.out)
            P.label('qkv_e')
    left = segment(0, NSEG1, fill1, bx1, first_loads=list(range(NPRE, 5)), hook=hook, pre=sites[:2], extra_need=lambda f, mt: xmap[f.b(mt)])
    qrd = set(id(x) for n in range(9) for g in slots[n].groups for f in g for x in f.rd)
    K = Prog(); K.label('qkv_k'); nb_ = 0
    for x in P.out[mark['a']:mark['b']]:
        if x.kind == 'mfma' or id(x) in qrd or x.op == 's_nop': continue
        t = x.text
        if x.kind == 'label': K.label(t[:-1].replace('_e', 'k_e')); continue
        if x.op == 's_cbranch_scc1': t += 'k'
        if x.op == 's_waitcnt':
            if 'vmcnt' not in t: continue
            t = t.split(' lgkmcnt')[0]
        if x.op == 's_barrier':
            nb_ += 1
            if nb_ <= 3: K('s_waitcnt lgkmcnt(0)')
        K(t)
    K('s_waitcnt lgkmcnt(0)'); K('s_nop 4'); K('s_branch qkv_e')
    slow.append(K.text())
    alt = ['qkv_v:', f'    s_cmp_ge_u32 s{J}, 14', '    s_cbranch_scc1 qkv_k'] if opt.get('skip', 1) else ['qkv_v:']
    for x in P.out[mark['a']:mark['b']]:
        t = x.text
        if x.kind == 'label': alt.append(t.replace('_e:', 'v_e:')); continue
        if x.op == 's_cbranch_scc1': t += 'v'
        if x.kind == 'mfma':
            o = [y.strip() for y in t[len(x.op):].split(',')]
            t = '%s %s, %s, %s, %s' % (x.op, o[0], o[2], o[1], o[3])
        alt.append('    ' + t)
    alt.append('    s_branch qkv_e')
    slow.append('\n'.join(alt) + '\n')
    print('left after seg1:', len(left), file=sys.stderr)
    stamp('g1end')

    SREG = [80] + [ACCB + (tl * 4 + mt) * 4 for mt in range(4) for tl in (0, 1, 3, 2)]
    PR = [84, 88]; OM, OR_ = 96, 100; MF, ML = 104, 108
    noskip = lambda l: [x for x in l if not isinstance(x, tuple)]
    def qbuild(t):
        q = QF + 2 * t
        P(Ins(f'v_mov_b32 v{QW+2}, v{q}', needs=qld[t]))
        P(f'v_mov_b32 v{QW+3}, v{q+1}')
        P(f'v_cndmask_b32 v{QW}, 0, v{QF+8+t}, {sr(G0M,2)}')
        P(f'v_cndmask_b32 v{QW+4}, 0, v{QF+8+t}, {sr(G1M,2)}')
    P('v_mov_b32 v%d, 0x%x' % (vTA, NEG))
    P(f'v_mov_b32 v{QW+1}, 0x3f80')
    P(f'v_mov_b32 v{QW+5}, 0x3f800000')
    qbuild(0)
    pq = list(pe[3][0])
    for r in range(4):
        P('v_cmp_lt_i32 vcc, %d, v%d' % (-r, vDG))
        P(pq.pop(0)); P(pq.pop(0))
        P('v_cndmask_b32 v%d, v%d, 0, vcc' % (MF + r, vTA))
        P('v_cndmask_b32 v%d, 0, v%d, vcc' % (ML + r, vTA))
    P(f's_cmp_eq_u32 s{FH}, 0')
    P('s_cselect_b64 vcc, -1, 0')
    P(f's_xor_b32 s{N0}, s{C}, 0x80000000')
    hld = {}
    def hload(k):
        if isinstance(k, tuple):
            ka, kb = k
            pre = II(f's_mul_i32 s{T2}, s{FH}, {(ka-kb)*8192}\ns_add_u32 s{T2}, s{T2}, s{HL}\ns_add_u32 s{T2}, s{T2}, {(17-ka)*8192}')
            tx = lambda kk, mt: f'buffer_load_dwordx4 {breg(hpos[kk], mt)}, v{vL16}, {sr(SW)}, s{T2} offen offset:{1024*mt} sc1'
            ld = [Ins(tx(ka, mt)) for mt in range(4)]
            hld[ka] = [ld[3]] * 4; hld[kb] = [ld[3]] * 4
            if ka == kb: return [pre + ld[:2], ld[2:]]
            return [(pre if h == 0 else []) + alt_site(ld[2*h:2*h+2], [tx(kb, 2*h), tx(kb, 2*h+1)]) for h in range(2)]
        base = HLONE if k == 8 else hphys[k // 2] * SLOT + (k & 1) * 8192
        hld[k] = [Ins(f'ds_read_b128 {breg(hpos[k], mt)}, v{vONES} offset:{1024*mt}') for mt in range(4)]
        return [II(f'v_add_u32 v{vONES}, {base}, v{vHW}') + hld[k]]
    def qk(t, sg):
        u = t + sg
        c = vr(MF) if sg == 0 else (vr(ML) if sg == 16 else '0')
        return Ins('v_mfma_f32_16x16x32_bf16 %s, %s, %s, %s' % (vr(SREG[sg]), ar(3 * u + (u & 1)), vr(QW + 2 * (u & 1)), c), needs=kld[u])
    def mx(sg, dst):
        s = SREG[sg]
        if sg == 0: return II('v_max3_f32 v%d, v%d, v%d, v%d\nv_max_f32 v%d, v%d, v%d' % (dst, s, s + 1, s + 2, dst, dst, s + 3))
        return II('v_max3_f32 v%d, v%d, v%d, v%d\nv_max3_f32 v%d, v%d, v%d, v%d' % (dst, dst, s, s + 1, dst, dst, s + 2, s + 3))
    lk = [x for x in left if any(y in km or y in kr for y in x)]
    if lk:
        n = left.index(lk[-1]) + 1; emit_all(left[:n]); left = left[n:]
    P(qk(0, 0))
    nq = 1; avail = 1; nmx = 0
    while pq:
        x = pq.pop(0); P(x)
        if x.kind == 'ds': avail += 4
        elif nq < avail and len(pq) % 2 == 0: P(qk(0, nq)); nq += 1
    def bunch(l):
        out = []; cur = []
        for x in l:
            cur += x
            if any(y.kind == 'vmem' for y in x): out.append(cur); cur = []
        assert not cur
        return out
    isdma = lambda x: any(' lds' in y.text or f's{OFF},' in y.text.split()[1] or 'm0' in y.text or f's{BD},' in y.text.split()[1] for y in x)
    ldma = bunch([x for x in left if isdma(x)])
    lv = bunch([x for x in left if not isdma(x)] + [[x] for v in range(NV1, 10) for x in noskip(vl[v])])
    while nq < 17:
        P(qk(0, nq)); nq += 1
        emit_all(mx(nmx, vMN)); nmx += 1
    while nmx < 17:
        if len(lv) > 12 and nmx % 2: emit_all(lv.pop(0))
        emit_all(mx(nmx, vMN)); nmx += 1
    while len(lv) > 12: emit_all(lv.pop(0))
    qbuild(1)
    stamp('attk')
    ow = []
    def o_epi(t):
        P('v_rcp_f32 v%d, v%d' % (vTA, OR_ + 2))
        for r in range(4): P(mul(OM + r, OM + r, vTA))
        for r in range(2): P(mul(OR_ + r, OR_ + r, vTA))
        P(cvt(QF + 2 * t, OM, OM + 1)); P(cvt(QF + 2 * t + 1, OM + 2, OM + 3)); P(cvt(QF + 8 + t, OR_, OR_ + 1))
    ofl = II(f'''s_lshl_b32 s{T2}, s{FH}, 3
    s_add_u32 s{T2}, s{T2}, {HLONE}
    v_add_u32 v{vTB}, s{T2}, v{vHW}
    s_lshl_b32 s{T2}, s{RG}, 9
    s_lshl_b32 s{T3}, s{FH}, 2
    s_add_u32 s{T2}, s{T2}, s{T3}
    s_add_u32 s{T2}, s{T2}, {RT4}
    v_lshlrev_b32 v{vTA}, 3, v{vL}
    v_add_u32 v{vMX}, 4096, v{vTA}
    v_cndmask_b32 v{vTA}, v{vMX}, v{vTA}, {sr(G0M,2)}
    v_add_u32 v{vTA}, s{T2}, v{vTA}''')
    for t in range(4):
        ow += [Ins(f'ds_write_b64 v{vTB}, {vr(QF+2*t,2)} offset:{1024*t}'), Ins(f'ds_write_b32 v{vTA}, v{QF+8+t} offset:{128*t}')]
    ofl += ow
    h2ld, h2chk = hpoll(3, vPFP)
    hplan = opt.get('hplan', {0: [0, 1, 2, 3, 4, 5], 1: [(16, 17), (14, 15), (12, 13), (9, 9)], 2: [(17, 16), (15, 14), (13, 12), 8], 3: [(10, 11), (11, 10)]})
    for t in range(4):
        stamp('att%d' % t)
        P('v_mov_b32 v%d, v%d' % (vTA, vMN))
        P('v_permlane16_swap_b32 v%d, v%d' % (vTA, vMN))
        P('v_max_f32 v%d, v%d, v%d' % (vMN, vMN, vTA))
        P('v_mov_b32 v%d, v%d' % (vTA, vMN))
        P('v_permlane32_swap_b32 v%d, v%d' % (vTA, vMN))
        P('v_max_f32 v%d, v%d, v%d' % (vMN, vMN, vTA))
        P(f'v_mul_f32 v{vMX}, s{N0}, v{vMN}')
        if t == 1:
            P(Ins('s_barrier', needs=pe[3][1] + hw[3] + [x for k in range(6) for x in hld[k]]))
            ad = bunch(flat([dma_groups(n) for n in att_loads]))
            emit_all(setflag(3, vPFS))
            emit_all(h1chk)
        if t == 3:
            P(Ins('s_barrier', needs=slots[NSEG1].loads + hld[8]))
            emit_all(h2chk)
        bq = flat([hload(k) for k in hplan[t]])
        def mix(a_, b_):
            out = []; a_ = list(a_); b_ = list(b_)
            while a_ or b_:
                if a_: out.append(a_.pop(0))
                if b_: out.append(b_.pop(0))
            return out
        if t == 0: bq = mix(lv + ldma, bq)
        else:
            na = [0, 4, 6, 10][t]
            bq = mix(bq, ad[:na]) if t < 3 else bq[:2] + ad[:na] + bq[2:]
            ad = ad[na:]
        ppv = []; pqk = []; pmx = []
        for b in range(9):
            v = (t >> 1) + b
            sgs = [2 * v - t, 2 * v + 1 - t]
            val = [sg for sg in sgs if 0 <= sg <= 16]
            p = PR[b % 2]
            for sg in val:
                for r in (0, 2):
                    s = SREG[sg] + r
                    P(f'v_pk_fma_f32 {vr(s,2)}, {vr(s,2)}, {sr(C,2)}, {vr(vMX,2)} op_sel_hi:[1,0,0]')
            mfs = ppv + [qk(t + 1, g_) for g_ in pqk]
            for sg in val:
                for r in range(4):
                    P('v_exp_f32 v%d, v%d' % (SREG[sg] + r, SREG[sg] + r))
                    if mfs: P(mfs.pop(0))
            emit_all(mfs)
            nb = (len(bq) + (8 - b)) // (9 - b)
            if nb: emit_all(bq.pop(0))
            for g_ in pmx: emit_all(mx(g_, vMN))
            for hh, sg in enumerate(sgs):
                if sg in val:
                    s = SREG[sg]
                    P(cvt(p + 2 * hh, s, s + 1)); P(cvt(p + 2 * hh + 1, s + 2, s + 3))
                else:
                    P('v_mov_b32 v%d, 0' % (p + 2 * hh)); P('v_mov_b32 v%d, 0' % (p + 2 * hh + 1))
            for _ in range(nb - 1): emit_all(bq.pop(0))
            pmx = pqk; pqk = val if t < 3 else []
            ppv = [Ins('v_mfma_f32_16x16x32_bf16 %s, %s, %s, %s' % (vr(OM), vr(VREG[2 * v]), vr(p), '0' if b == 0 else vr(OM)), needs=[vld[2 * v]]),
                   Ins('v_mfma_f32_16x16x32_bf16 %s, %s, %s, %s' % (vr(OR_), vr(VREG[2 * v + 1]), vr(p), '0' if b == 0 else vr(OR_)), needs=[vld[2 * v + 1]])]
            if t == 2 and b == 5: P(h2ld)
        assert not bq
        tail = flat([mx(g_, vMN) for g_ in pmx])
        for x in [qk(t + 1, g_) for g_ in pqk] + ppv:
            P(x)
            if tail: P(tail.pop(0))
        emit_all(tail)
        if t < 2: qbuild(t + 2)
        for g_ in pqk: emit_all(mx(g_, vMN))
        o_epi(t)
    stamp('attend')

    own = flat(flat([hload(k) for k in (6, 7)]))
    bmap = {}
    for k in hld:
        for mt in range(4): bmap[breg(hpos[k], mt)] = hld[k][mt]
    def restage(dst, sbase, stride):
        L = II(f's_lshl_b32 s{T3}, s{FH}, 11\ns_add_u32 s{T3}, s{T3}, {HLONE}\nv_add_u32 v{vTB}, s{T3}, v{vHW}')
        rd = [Ins(f'ds_read_b128 {vr(dst+4*m)}, v{vTB} offset:{1024*m}') for m in range(2)]
        L += rd + II(f's_add_u32 s{T3}, s{sbase}, {stride}') + [('SKIP', 8)]
        L += [Ins(f'buffer_store_dwordx4 {vr(dst+4*m)}, v{vL16}, {sr(SW)}, s{[sbase, T3][m]} offen sc1', needs=[rd[m]]) for m in range(2)]
        return L, rd
    oe, ord_ = restage(QF, OB, 18432)
    rr = Ins(f'ds_read_b128 {vr(QF+8)}, v{vTA}')
    oe += II(f'v_add_u32 v{vTA}, {RT4}, v{vL16}') + [rr] + II(f'v_lshrrev_b32 v{vTA}, 3, v{vL}\nv_mul_u32_u24 v{vTA}, {18432-128}, v{vTA}\nv_add_u32 v{vTA}, v{vTA}, v{vL16}') + [('SKIP', 8)]
    oe += [Ins(f'buffer_store_dwordx4 {vr(QF+8)}, v{vTA}, {sr(SW)}, s{OR} offen sc1', needs=[rr])]
    l2e = II(f's_lshl_b32 s{T3}, s{FH}, 3\ns_add_u32 s{T3}, s{T3}, {HLONE}\nv_add_u32 v{vTB}, s{T3}, v{vHW}'); l2w = []
    for mt in range(4):
        t0 = SP + mt * 4
        w = Ins(f'ds_write_b64 v{vTB}, {vr(t0,2)} offset:{1024*mt}'); l2w.append(w)
        l2e += [cvt(t0, t0, t0 + 1), cvt(t0 + 1, t0 + 2, t0 + 3), w]
    l2s, _ = restage(SP, PLN, 1024)
    def task_params(second):
        ln = II(f's_lshl_b32 s{T2}, s{Pp}, 2\ns_lshr_b32 s{T1}, 0x54108732, s{T2}\ns_and_b32 s{T1}, s{T1}, 15\ns_lshr_b32 s{TV}, 0x56557777, s{T2}\ns_and_b32 s{TV}, s{TV}, 15\ns_movk_i32 s{TM}, 0x5555')
        ln += [II(f's_cmp_gt_u32 s{T1}, 4\ns_cselect_b32 s{T2}, 1, 0'), Ins(f's_lshl_b32 s{TM}, s{TM}, s{T2}'), II(f's_cmp_eq_u32 s{T1}, 4\ns_cselect_b32 s{TM}, 0xffff, s{TM}')]
        return ln + II(f'''s_lshl_b32 s{TL}, s{T1}, 7
        s_lshl_b32 s{T2}, s{E}, 2
        s_add_u32 s{T2}, s{T2}, s{Wv}
        s_lshl_b32 s{TP}, s{T2}, 10
        s_lshl_b32 s{T1}, s{T1}, 14
        s_add_u32 s{TP}, s{TP}, s{T1}
        s_mul_i32 s{T1}, s{I}, {8*18*8192}
        s_add_u32 s{TP}, s{TP}, s{T1}
        s_lshl_b32 s{T1}, s{I}, 3
        s_add_u32 s{T2}, s{T2}, s{T1}
        s_mul_i32 s{OL}, s{T2}, 18432
        s_add_u32 s{TX}, s{OL}, s{TL}
        s_mul_i32 s{T1}, s{Wv}, {36*1152}
        s_add_u32 s{TL}, s{TL}, s{T1}''')
    tsetup = II(f'''s_mov_b32 s{SG}, s8
    s_mov_b32 s{SG+1}, s9
    s_mov_b32 s{SG+2}, 0x{576*1152:x}
    s_mov_b32 s{SU}, s{OUTP}
    s_mov_b32 s{SU+1}, s{OUTP+1}
    s_mov_b32 s{SU+2}, 0x{2048*1152:x}
    s_lshl_b32 s{FB}, s{I}, 11
    s_add_u32 s{FB}, s{FB}, 0x{FOFF:x}
    s_mov_b32 s{LO}, 0x00003f80
    s_mov_b32 s{HI}, 0x3f800000''') + task_params(False)
    for t, row in enumerate((0, 8, 20, 28)): tsetup += II(f'v_add_u32 v{vWD[t]}, {(row*1152 - 1024*t - 2048) & 0xffffffff}, v{vDD[0]}')
    tsetup += II(f'''v_lshrrev_b32 v{vWD2}, 5, v{vL}
    v_mul_u32_u24 v{vWD2}, {32*1152}, v{vWD2}
    v_add_u32 v{vWD2}, v{vWD2}, v{vWD[0]}
    v_add_u32 v{vWD2}, {16*1152}, v{vWD2}
    v_and_b32 v{vWT[0]}, 0xffff, v{vTD[0]}
    s_lshl_b32 s{T2}, s{FH}, 6
    v_xor_b32 v{vWT[0]}, s{T2}, v{vWT[0]}
    v_xor_b32 v{vWT[1]}, 32, v{vWT[0]}
    v_xor_b32 v{vWT[2]}, 64, v{vWT[0]}
    v_xor_b32 v{vWT[3]}, 0x60, v{vWT[0]}
    v_lshlrev_b32 v{vPL}, 3, v{vOR}
    v_and_b32 v{vMX}, 15, v{vL}
    v_mul_u32_u24 v{vDG}, 1152, v{vMX}
    v_bfe_u32 v{vMN}, v{vL}, 4, 1
    v_lshl_add_u32 v{vDG}, v{vMN}, 5, v{vDG}
    v_lshrrev_b32 v{vMN}, 5, v{vL}
    v_lshl_add_u32 v{vDG}, v{vMN}, 4, v{vDG}
    s_lshl_b32 s{T2}, s{E}, 2
    s_add_u32 s{T2}, s{T2}, s{Wv}
    s_lshl_b32 s{T2}, s{T2}, 8
    s_add_u32 s{T2}, s{T2}, {RTB}
    v_lshlrev_b32 v{vMX}, 2, v{vMX}
    v_add_u32 v{vMX}, s{T2}, v{vMX}''')
    rrd = Ins(f'ds_read_b32 v{vMX}, v{vMX}')
    tsetup += [rrd, ('SKIP', 8), Ins(f'v_mul_f32 v{vMX}, v{vMX}, v{vMX}', needs=[rrd]), Ins(f'v_mul_f32 v{vMN}, 0x{f2u(-1.4426950408889634):x}, v{vMX}')]
    fl_t = f'buffer_load_dword v{vPFP}, v{vPL}, {sr(SW)}, s{FB} offen sc1'
    o3ld = T(fl_t, 24)
    o3chk = poll_check('o3', o3ld, [f'v_cmp_le_u32 vcc, 4, v{vPFP}', 's_nop 1', 's_cmp_eq_u32 vcc_lo, 0xffff'])
    OA = 160
    old = []; ol = II(f'v_lshlrev_b32 v{vTA}, 3, v{vL}')
    for k in range(18):
        if k == 8: ol += [('AT', NSEG1 + 14, 0)]
        if k == 16: ol += [('AT', NSEG1 + 15, 0)] + l2s
        if k % 4 == 0: ol += II(f's_add_u32 s{T3}, s{OL}, 0x{OOFF + k*1024:x}')
        if k < 16: x = [Ins(f'buffer_load_dwordx4 {ar(OA+4*k)}, v{vL16}, {sr(SW)}, s{T3} offen offset:{1024*(k%4)} sc1')]
        else: x = [Ins(f'buffer_load_dwordx2 {ar(OA+4*k+2*h,2)}, v{vTA}, {sr(SW)}, s{T3} offen offset:{1024*(k%4)+512*h} sc1') for h in range(2)]
        ol += x; old.append(x[-1])
    XR2 = SP + 8
    xt_ = lambda u: f'buffer_load_dwordx4 {vr(XR2+4*u)}, v{vDG}, {sr(SX)}, s{TX} offen offset:{64*u}'
    xld = [Ins(xt_(u)) for u in range(2)]
    de0 = d_epi(ACCA, 0); st0 = [x for x in de0 if x.kind == 'vmem']; stl = [x for x in l2s if not isinstance(x, tuple) and x.kind == 'vmem']
    ost = [x for x in oe if not isinstance(x, tuple) and x.kind == 'vmem']
    de1 = d_epi(ACCB, 1, (0,)) + [('SKIP', 99)] + d_epi(ACCB, 1, (1,)); st1 = [x for x in de1 if not isinstance(x, tuple) and x.kind == 'vmem']
    fill2 = [(sl, 0, stamp('slot%d' % sl, True)) for sl in range(NSEG1, NS)] + [
        (NSEG1, 0, ofl + [('AT', NSEG1 + 2, 0)] + oe + tsetup + [('BY', NSEG1 + 9), ('AT', NSEG1 + 9, 4)] + de0 + [o3ld, ('AT', NSEG1 + 12, 4)] + l2e + [('BY', NSEG1 + 14)]
         + [('AT', NSEG1 + 13, 0), o3chk] + ol + xld + [('AT', NS - 1, 20), ('CAP', 3)] + de1),
        (NSEG1, 1, own)]
    bx2 = {NSEG1 + 2: (ow, []), NSEG1 + 3: (hld[6] + hld[7], [])}
    bx2[NSEG1 + 7] = (ost, setflag(4, vPFS)); bx2[NSEG1 + 15] = (l2w + st0, setflag(5, vPFS)); bx2[NSEG1 + 19] = (stl, setflag(6, vPFS))
    left = segment(NSEG1, NS, fill2, bx2, extra_need=lambda f, mt: bmap[f.b(mt)])
    print('left after seg2:', len(left), file=sys.stderr)
    emit_all(left)
    stamp('g2end')
    def wo_gemm(P, acc, need_o, bg_=None):
        rds = {}
        wwin = [0]
        def rd(n):
            k, dt = divmod(n, 4)
            w, o = divmod(phys[NS + k // 4] * SLOT, 65536)
            if w != wwin[0]:
                for d in range(4): P('v_add_u32 v%d, 0x%x, v%d' % (vWT[d], ((w - wwin[0]) * 65536) & 0xffffffff, vWT[d]))
                wwin[0] = w
            f = FR + 4 * (n % 8)
            rds[n] = [P('ds_read_b64_tr_b16 %s, v%d offset:%d' % (vr(f + 2 * h, 2), vWT[dt], o + (k % 4) * 4096 + 2048 * h)) for h in range(2)]
        for n in range(7): rd(n)
        for n in range(72):
            k, dt = divmod(n, 4)
            nd = rds[n] + (rds[n + 1] if n % 2 == 0 else []) + ([old[k]] if need_o else [])
            P(Ins('v_mfma_f32_16x16x32_bf16 %s, %s, %s, %s' % (vr(acc + 4 * dt), vr(FR + 4 * (n % 8)), ar(OA + 4 * k), '0' if k == 0 else vr(acc + 4 * dt)), needs=nd))
            if n + 7 < 72: rd(n + 7)
            if bg_: bg_(n)
        for d in range(4):
            if wwin[0]: P('v_add_u32 v%d, 0x%x, v%d' % (vWT[d], (-wwin[0] * 65536) & 0xffffffff, vWT[d]))
    def ploads(P, dst, extra=0):
        pl = []
        for p in range(8):
            for u in range(2):
                P(f's_add_u32 s{T3}, s{TP}, 0x{POFF + p*18*8192 + u*8192 + extra:x}')
                pl.append(P(f'buffer_load_dwordx4 {vr(dst+8*p+4*u)}, v{vL16}, {sr(SW)}, s{T3} offen sc1'))
        return pl
    def fmath(P, acc, src0, pl, xr, xl_, imm, bg_=None):
        SUM, TT = FR, FR + 16
        for p in range(8):
            for u in range(2):
                for q in range(4):
                    src = src0 + 8 * p + 4 * u + q; d = SUM + 8 * u + 2 * q
                    P(Ins(f'v_dot2_f32_bf16 v{d}, v{src}, s{LO}, ' + ('0' if p == 0 else f'v{d}'), needs=[pl[2 * p + u]]))
                    P(f'v_dot2_f32_bf16 v{d+1}, v{src}, s{HI}, ' + ('0' if p == 0 else f'v{d+1}'))
                if bg_: bg_(2 * p + u)
        for r in range(0, 16, 2): P(f'v_pk_mul_f32 {vr(TT+r,2)}, {vr(SUM+r,2)}, {vr(vMX,2)} op_sel:[0,1] op_sel_hi:[1,1]')
        for r in range(16): P(f'v_exp_f32 v{TT+r}, v{TT+r}')
        for r in range(0, 16, 2): P(f'v_pk_mul_f32 {vr(acc+r,2)}, {vr(acc+r,2)}, {vr(SUM+r,2)}')
        for r in range(0, 16, 2): P(f'v_pk_add_f32 {vr(TT+r,2)}, {vr(TT+r,2)}, 1.0 op_sel_hi:[1,0]')
        for r in range(16): P(f'v_rcp_f32 v{TT+r}, v{TT+r}')
        for r in range(0, 16, 2): P(f'v_pk_mul_f32 {vr(acc+r,2)}, {vr(acc+r,2)}, {vr(TT+r,2)}')
        for u in range(2):
            for r in range(4): P(f'v_permlane16_swap_b32 v{acc+8*u+r}, v{acc+8*u+4+r}')
        for u in range(2):
            for q in range(4):
                d = acc + 8 * u + 2 * q
                P(Ins(f'v_dot2c_f32_bf16 v{d}, s{LO}, v{xr+4*u+q}', needs=[xl_[u]]))
                P(f'v_dot2c_f32_bf16 v{d+1}, s{HI}, v{xr+4*u+q}')
        for u in range(2):
            for q in range(4): P(cvt(xr + 4 * u + q, acc + 8 * u + 2 * q, acc + 8 * u + 2 * q + 1))
            P(f'buffer_store_dwordx4 {vr(xr+4*u)}, v{vDG}, {sr(SU)}, s{TX} offen offset:{64*u+imm} ' + opt.get('ost', 'sc1'))
    def scale_s(P, acc):
        for r in range(0, 16, 2): P(f'v_pk_mul_f32 {vr(acc+r,2)}, {vr(acc+r,2)}, {vr(vMX,2)} op_sel_hi:[1,0]')
    ftest = [f'v_cmp_le_u32 vcc, s{TV}, v{vPFP}', 's_nop 1', f's_and_b32 s{T2}, vcc_lo, s{TM}', f's_cmp_eq_u32 s{T2}, s{TM}']
    P(Ins('s_barrier', needs=[x for n in range(NS, NSX) for x in slots[n].loads]))
    wo_gemm(P, XT, True)
    stamp('wo')
    P(Ins('s_barrier', needs=st1))
    f1 = P(fl_t)
    emit_all(setflag(7, vPFS))
    scale_s(P, XT)
    emit_all(poll_check('fp', f1, ftest))
    stamp('poll')
    P(f's_cmp_ge_u32 s{J}, 14')
    P('s_cbranch_scc1 dbl')
    pl = ploads(P, ACCA)
    fmath(P, XT, ACCA, pl, XR2, xld, 0)
    P.label('dbl_e')
    S = Prog(); S.label('dbl')
    pa = ploads(S, ACCA)
    S(f's_add_u32 s{TL}, s{TL}, 128')
    wq = bunch(flat([slots[n].dma(phys[n]) for n in range(NS, NSX)]))
    wl = [x for g in wq for x in g if x.kind == 'vmem']
    def bgw(n):
        for _ in range(2 if n < 2 else 1):
            for x in wq.pop(0): S(x)
    fmath(S, XT, ACCA, pa, XR2, [None, None], 0, bgw)
    x2 = [S(f'buffer_load_dwordx4 {vr(SP+4*u)}, v{vDG}, {sr(SX)}, s{TX} offen offset:{128+64*u}') for u in range(2)]
    pb = []
    def bgp(n):
        if n % 4 == 0 and len(pb) < 16:
            p, u = divmod(len(pb), 2)
            S(f's_add_u32 s{T3}, s{TP}, 0x{POFF + p*18*8192 + u*8192 + 16384:x}')
            pb.append(S(f'buffer_load_dwordx4 {vr(ACCB+8*p+4*u)}, v{vL16}, {sr(SW)}, s{T3} offen sc1'))
    for n in range(4): bgp(0)
    S(Ins('s_barrier', needs=wl))
    wo_gemm(S, XT + 16, False, bgp)
    scale_s(S, XT + 16)
    fmath(S, XT + 16, ACCB, pb, SP, x2, 128)
    S('s_branch dbl_e'); slow.append(S.text())
    if stamps:
      P('s_waitcnt vmcnt(0)')
      stamp('end')
      P('s_waitcnt lgkmcnt(0)')
      P(f's_lshl_b32 s{T2}, s2, 7')
      P(f's_add_u32 s{T2}, s{T2}, 0x{STAMP_OFF:x}')
      if stamps == 'all':
        n = len(ALL)
        P('v_writelane_b32 v%d, s22, %d' % (77 + n // 64, n % 64))
        P(f's_lshl_b32 s{T2}, s2, 9')
        P(f's_add_u32 s{T2}, s{T2}, 0x{STAMP_OFF + (2 << 18):x}')
        P(f's_cmp_eq_u32 s{Wv}, 0')
        P(f's_cselect_b32 s{T2}, s{T2}, 0x{OOB:x}')
        P(f'v_lshlrev_b32 v80, 2, v{vL}')
        P(f'buffer_store_dword v77, v80, {sr(SW)}, s{T2} offen')
        P(f'buffer_store_dword v78, v80, {sr(SW)}, s{T2} offen offset:256')
      else:
        P('s_mov_b32 s%d, s22' % (sTS + len(stamps)))
        P('v_mov_b32 v81, 0')
        for n in range(10):
            P('v_mov_b32 v80, s%d' % (sTS + (n if opt.get('est') else min(n, len(stamps)))))
            P(f'buffer_store_dwordx2 v[80:81], v{vFL}, {sr(SW)}, s{T2} offen offset:{8*n}')
    P.label('K1_end')
    P('s_endpgm')
    print('K1: instrs', len(P.out), 'nops', P.nnop, file=sys.stderr)
    return P.text() + ''.join(slow)
```

```python
import sys
sys.path.insert(0, 'gen')
from prog import *
from asmlib import kernel_desc, STAMP_OFF
from k1 import *

def gen_k2(stamps=False, opt={}):
    P = Prog()
    SX, SO, SWO, SW = 24, 28, 32, 36
    sWv, sC, sM, sT0, sT1, sT2, sOFF, sLB, sG, sU = range(40, 50)
    sLO, sHI = 50, 51
    SLDS = 80 * 1024
    def srd(d, b, nbytes):
        P('s_mov_b32 s%d, s%d' % (d, b))
        P('s_mov_b32 s%d, s%d' % (d + 1, b + 1))
        P('s_mov_b32 s%d, 0x%x' % (d + 2, nbytes))
        P('s_mov_b32 s%d, 0x00020000' % (d + 3))
    def put_stamps(regs, lane_tid):
        P('s_waitcnt lgkmcnt(0)')
        P('s_lshl_b32 s%d, s2, 7' % sT2)
        P('s_add_u32 s%d, s%d, 0x%x' % (sT2, sT2, STAMP_OFF + (1 << 18)))
        P('v_mov_b32 v4, 0x%x' % OOB)
        P('v_cmp_eq_u32 vcc, %d, v0' % lane_tid)
        P('v_cndmask_b32 v4, v4, 0, vcc')
        P('v_mov_b32 v7, 0')
        for n, r in regs:
            P('v_mov_b32 v6, s%d' % r)
            P('buffer_store_dwordx2 v[6:7], v4, %s, s%d offen offset:%d' % (sr(SW), sT2, 8 * n))
    P(f'''s_cmp_ge_u32 s2, 240
    s_cbranch_scc1 K2_end
    s_load_dwordx16 s[4:19], s[0:1], 0
    s_load_dwordx2 s[22:23], s[0:1], 72''')
    if stamps: P('s_memrealtime s[60:61]')
    P(f'''s_and_b32 s{sT0}, s2, 7
    s_mul_i32 s{sT0}, s{sT0}, 30
    s_lshr_b32 s{sT1}, s2, 3
    s_add_u32 s{sT0}, s{sT0}, s{sT1}
    s_cmp_ge_u32 s{sT0}, 234
    s_cbranch_scc1 K2_end
    v_and_b32 v1, 63, v0
    v_lshrrev_b32 v2, 6, v0
    v_readfirstlane_b32 s{sWv}, v2
    s_mul_i32 s{sG}, s{sT0}, 7282
    s_lshr_b32 s{sG}, s{sG}, 16
    s_mul_i32 s{sT2}, s{sG}, 9
    s_sub_u32 s{sC}, s{sT0}, s{sT2}
    s_mul_i32 s{sG}, s{sG}, 5
    s_lshl_b32 s{sLB}, s{sC}, 7
    v_lshlrev_b32 v2, 4, v1
    s_cmp_ge_u32 s{sWv}, 5
    s_cbranch_scc1 K2_red''')
    OF, FR, ACC = 16, 88, 112
    P(f'''s_add_u32 s{sM}, s{sG}, s{sWv}
    s_waitcnt lgkmcnt(0)''')
    srd(SW, 22, WSB)
    P('s_mul_i32 s%d, s%d, 18432' % (sT0, sM))
    P('s_cmp_ge_u32 s%d, 128' % sM)
    P('s_cselect_b32 s%d, 0x%x, s%d' % (sT0, OOB, sT0))
    P('v_lshlrev_b32 v7, 3, v1')
    ol = []
    for k in range(18):
        if k % 4 == 0: P('s_add_u32 s%d, s%d, 0x%x' % (sOFF, sT0, OOFF + k * 1024))
        if k < 16: ol.append(P('buffer_load_dwordx4 %s, v2, %s, s%d offen offset:%d' % (vr(OF + 4 * k), sr(SW), sOFF, 1024 * (k % 4))))
        else:
            P('buffer_load_dwordx2 %s, v7, %s, s%d offen offset:%d' % (vr(OF + 4 * k, 2), sr(SW), sOFF, 1024 * (k % 4)))
            ol.append(P('buffer_load_dwordx2 %s, v7, %s, s%d offen offset:%d' % (vr(OF + 4 * k + 2, 2), sr(SW), sOFF, 1024 * (k % 4) + 512)))
    P(f'''v_and_b32 v7, 15, v1
    v_lshrrev_b32 v8, 4, v1
    v_and_b32 v10, 1, v8
    v_lshrrev_b32 v11, 1, v8
    v_lshrrev_b32 v12, 2, v7
    v_lshl_add_u32 v12, v10, 2, v12
    v_lshrrev_b32 v13, 1, v12
    v_lshlrev_b32 v12, 7, v12
    v_lshl_add_u32 v12, v11, 10, v12
    v_lshl_add_u32 v12, v13, 5, v12
    v_and_b32 v13, 3, v7
    v_lshl_add_u32 v12, v13, 3, v12
    s_lshl_b32 s{sT0}, s{sWv}, 12
    s_add_u32 s{sT0}, s{sT0}, {SLDS}
    v_add_u32 v3, s{sT0}, v2''')
    for dt in range(1, 4): P('v_xor_b32 v%d, %d, v12' % (12 + dt, 32 * dt))
    if stamps: P('s_memrealtime s[62:63]')
    P('s_barrier')
    if stamps: P('s_memrealtime s[64:65]')
    rds = {}
    def rd(n):
        k, dt = divmod(n, 4)
        if n == 64:
            for d in range(4): P('v_add_u32 v%d, 0x10000, v%d' % (12 + d, 12 + d))
        off = k * 4096 if k < 16 else (k - 16) * 4096 + 6144
        f = FR + 4 * (n % 6)
        rds[n] = [P('ds_read_b64_tr_b16 %s, v%d offset:%d' % (vr(f + 2 * h, 2), 12 + dt, off + 2048 * h)) for h in range(2)]
    AH = 5
    for n in range(AH): rd(n)
    for n in range(72):
        k, dt = divmod(n, 4)
        P(Ins('v_mfma_f32_16x16x32_bf16 %s, %s, %s, %s' % (vr(ACC + 4 * dt), vr(FR + 4 * (n % 6)), vr(OF + 4 * k), '0' if k == 0 else vr(ACC + 4 * dt)), needs=rds[n] + [ol[k]]))
        if n + AH < 72: rd(n + AH)
    ws_ = [P(f'ds_write_b128 v3, {vr(ACC+4*dt)} offset:{1024*dt}') for dt in range(4)]
    if stamps: P('s_memrealtime s[66:67]')
    P(Ins('s_barrier', needs=ws_))
    if stamps: put_stamps([(0, 60), (1, 62), (2, 64), (3, 66)], 0)
    P('s_endpgm')
    t1 = P.text()
    P = Prog()
    PT, XR, SUM, T, S_ = 16, 48, 52, 60, 68
    P.label('K2_red')
    P(f'''s_sub_u32 s{sWv}, s{sWv}, 5
    v_lshrrev_b32 v3, 3, v1
    v_and_b32 v4, 7, v1
    v_and_b32 v5, 6, v3
    v_xor_b32 v4, v4, v5
    v_lshlrev_b32 v4, 4, v4
    v_mul_u32_u24 v5, 1152, v3
    v_add_u32 v5, v5, v4
    v_lshrrev_b32 v6, 2, v3
    v_mul_u32_u24 v6, {32*1152}, v6
    v_add_u32 v6, v6, v5
    s_waitcnt lgkmcnt(0)''')
    srd(SWO, 8, 576 * 1152)
    dm = []
    for t in range(7):
        P(f'''s_add_u32 s{sT0}, s{sWv}, {10*t}
        s_lshl_b32 m0, s{sT0}, 10
        s_add_u32 s{sT1}, s{sT0}, 2
        s_lshr_b32 s{sT1}, s{sT1}, 2
        s_lshl_b32 s{sOFF}, s{sT0}, 1
        s_add_u32 s{sOFF}, s{sOFF}, s{sT1}
        s_mul_i32 s{sOFF}, s{sOFF}, {4*1152}
        s_add_u32 s{sOFF}, s{sOFF}, s{sLB}''')
        dm.append(P('buffer_load_dwordx4 v5, %s, s%d offen lds' % (sr(SWO), sOFF)))
    P(f'''s_lshl_b32 s{sT1}, s{sWv}, 10
    s_add_u32 m0, s{sT1}, {70*1024}
    s_mul_i32 s{sOFF}, s{sWv}, {72*1152}
    s_add_u32 s{sOFF}, s{sOFF}, {16*1152}
    s_add_u32 s{sOFF}, s{sOFF}, s{sLB}''')
    dm.append(P('buffer_load_dwordx4 v6, %s, s%d offen lds' % (sr(SWO), sOFF)))
    P(f'''s_and_b32 s{sU}, s{sWv}, 1
    s_lshr_b32 s{sWv}, s{sWv}, 1
    s_add_u32 s{sM}, s{sG}, s{sWv}
    s_lshr_b32 s{sT0}, s{sM}, 3
    s_mul_i32 s{sT0}, s{sT0}, {8*18*8192}
    s_and_b32 s{sT1}, s{sM}, 7
    s_lshl_b32 s{sT1}, s{sT1}, 10
    s_add_u32 s{sT0}, s{sT0}, s{sT1}
    s_lshl_b32 s{sT1}, s{sC}, 14
    s_add_u32 s{sT0}, s{sT0}, s{sT1}
    s_lshl_b32 s{sT1}, s{sU}, 13
    s_add_u32 s{sT0}, s{sT0}, s{sT1}
    s_cmp_ge_u32 s{sM}, 128
    s_cselect_b32 s{sT0}, 0x{OOB:x}, s{sT0}''')
    srd(SW, 22, WSB)
    pl = []
    def pload(p):
        P('s_add_u32 s%d, s%d, 0x%x' % (sOFF, sT0, POFF + p * 18 * 8192))
        pl.append(P('buffer_load_dwordx4 %s, v2, %s, s%d offen' % (vr(PT + 4 * p), sr(SW), sOFF)))
    NB = opt.get('k2nb', 2)
    for p in range(NB): pload(p)
    srd(SX, 4, 2048 * 1152)
    srd(SO, 18, 2048 * 1152)
    P(f'''v_and_b32 v7, 15, v1
    v_lshrrev_b32 v8, 4, v1
    v_mul_u32_u24 v9, 1152, v7
    v_and_b32 v10, 1, v8
    v_lshl_add_u32 v9, v10, 5, v9
    v_lshrrev_b32 v11, 1, v8
    v_lshl_add_u32 v9, v11, 4, v9
    s_mul_i32 s{sT2}, s{sM}, 18432
    s_add_u32 s{sT2}, s{sT2}, s{sLB}
    s_lshl_b32 s{sT1}, s{sU}, 6
    s_add_u32 s{sT2}, s{sT2}, s{sT1}
    v_lshlrev_b32 v12, 2, v7
    s_lshl_b32 s{sG}, s{sM}, 6
    s_add_u32 s{sG}, s{sG}, 0x{ROFF:x}
    s_mov_b32 s{sLO}, 0x00003f80
    s_mov_b32 s{sHI}, 0x3f800000''')
    P(f'''s_lshl_b32 s{sT1}, s{sWv}, 12
    s_lshl_b32 s{sOFF}, s{sU}, 11
    s_add_u32 s{sT1}, s{sT1}, s{sOFF}
    s_add_u32 s{sT1}, s{sT1}, {SLDS}
    v_add_u32 v13, s{sT1}, v2''')
    for r in range(8): P('v_mov_b32 v%d, 0' % (SUM + r))
    P(Ins('s_barrier', needs=dm))
    xl = P('buffer_load_dwordx4 %s, v9, %s, s%d offen' % (vr(XR), sr(SX), sT2))
    rl = P('buffer_load_dword v3, v12, %s, s%d offen' % (sr(SW), sG))
    for p in range(NB, 8): pload(p)
    for p in range(8):
        for q in range(4):
            P(Ins('v_dot2c_f32_bf16 v%d, s%d, v%d' % (SUM + 2 * q, sLO, PT + 4 * p + q), needs=[pl[p]]))
            P('v_dot2c_f32_bf16 v%d, s%d, v%d' % (SUM + 2 * q + 1, sHI, PT + 4 * p + q))
        if p == 6: P(Ins('v_mul_f32 v4, 0x%x, v3' % f2u(-1.4426950408889634), needs=[rl]))
    for r in range(8): P('v_mul_f32 v%d, v%d, v4' % (T + r, SUM + r))
    for r in range(8): P('v_exp_f32 v%d, v%d' % (T + r, T + r))
    for r in range(8): P('v_mul_f32 v%d, v%d, v3' % (SUM + r, SUM + r))
    for r in range(8): P('v_add_f32 v%d, 1.0, v%d' % (T + r, T + r))
    P('s_barrier')
    sl = [P(f'ds_read_b128 {vr(S_+4*h)}, v13 offset:{1024*h}') for h in range(2)]
    for r in range(8): P('v_rcp_f32 v%d, v%d' % (T + r, T + r))
    for r in range(8): P('v_mul_f32 v%d, v%d, v%d' % (SUM + r, SUM + r, T + r))
    for r in range(8): P(Ins('v_mul_f32 v%d, v%d, v%d' % (S_ + r, S_ + r, SUM + r), needs=[sl[r // 4]]))
    for r in range(4): P('v_permlane16_swap_b32 v%d, v%d' % (S_ + r, S_ + 4 + r))
    for q in range(4):
        P(Ins('v_dot2c_f32_bf16 v%d, s%d, v%d' % (S_ + 2 * q, sLO, XR + q), needs=[xl]))
        P('v_dot2c_f32_bf16 v%d, s%d, v%d' % (S_ + 2 * q + 1, sHI, XR + q))
    for q in range(4): P('v_cvt_pk_bf16_f32 v%d, v%d, v%d' % (XR + q, S_ + 2 * q, S_ + 2 * q + 1))
    P('buffer_store_dwordx4 %s, v9, %s, s%d offen %s' % (vr(XR), sr(SO), sT2, opt.get('ost', 'sc1')))
    if stamps:
        P('s_waitcnt vmcnt(0)')
        P('s_memrealtime s[68:69]')
        put_stamps([(n, 68) for n in range(4, 10)], 320)
        if opt.get('dbgout'):
            P('s_load_dwordx2 s[70:71], s[0:1], 64')
            P('s_waitcnt lgkmcnt(0)')
            srd(72, 70, 256)
            P('v_lshlrev_b32 v5, 3, v1')
            P('s_mov_b32 s76, 0x%x' % (STAMP_OFF + 8 * 128))
            ld = P('buffer_load_dword v6, v5, %s, s76 offen' % sr(SW))
            P(Ins('v_readfirstlane_b32 s77, v6', needs=[ld]))
            P('v_writelane_b32 v6, s60, 10')
            P('v_writelane_b32 v6, s68, 11')
            P('v_subrev_u32 v6, s77, v6')
            P('v_subrev_u32 v5, 320, v0')
            P('v_lshlrev_b32 v5, 2, v5')
            P('s_cmp_eq_u32 s2, 8')
            P('s_cselect_b32 s76, 0, 0x1000')
            P('buffer_store_dword v6, v5, s[72:75], s76 offen')
    P.label('K2_end')
    P('s_endpgm')
    return t1 + P.text()

KN = 'recurrent_scan__sliding_block__glu_gated_bilinear__prompt_kernel'
HEAD = """; Fused LayerNorm + sliding-window attention + bilinear GLU FFN, gfx950.  Generated by gen/main.py (hand-designed schedule).
; @launch grid=(256,1,1) block=(256,1,1) lds=163840
.amdgcn_target "amdgcn-amd-amdhsa--gfx950"
.text
"""
def kb(name): return '.globl %s\n.p2align 8\n.type %s,@function\n%s:\n' % (name, name, name)
import subprocess, re, os
PROMO = ('v_exp_f32', 'v_rcp_f32', 'v_rsq_f32', 'v_mul_f32', 'v_add_f32', 'v_max_f32', 'v_mov_b32', 'v_add_u32', 'v_and_b32', 'v_or_b32', 'v_xor_b32',
         'v_lshlrev_b32', 'v_lshrrev_b32', 'v_sub_u32', 'v_mul_u32_u24', 'v_cndmask_b32')
def align_pass(t):
    open('_al.s', 'w').write(t)
    subprocess.run(['clang', '-x', 'assembler', '-target', 'amdgcn-amd-amdhsa', '-mcpu=gfx950', '-c', '_al.s', '-o', '_al.o'], check=True)
    d = subprocess.run(['llvm-objdump', '-d', '--mcpu=gfx950', '_al.o'], capture_output=True, text=True).stdout
    dis = [(l.split()[0], 4 * len(l.split('//')[1].split(':')[1].split())) for l in d.split('\n') if '//' in l and l.startswith('\t')]
    lines = t.split('\n'); idx = [n for n, l in enumerate(lines) if l.startswith('    ')]
    size = {}; p = 0
    for n in idx:
        op = lines[n].split()[0]
        while not dis[p][0].startswith(op): p += 1
        size[n] = dis[p][1]; p += 1
    off = 0; run = []; npad = nprom = 0
    for q, n in enumerate(range(len(lines))):
        l = lines[n]
        if l.startswith('.p2align'): off = 0; run = []; continue
        if n not in size: continue
        if size[n] == 4: run.append(n); off += 4; continue
        if off % 8:
            c = [r for r in run if lines[r].split()[0] in PROMO]
            c = [r for r in c if (len(run) - 1 - run.index(r)) % 2 == 0]
            if c:
                r = c[-1]; w = lines[r].split()[0]; lines[r] = lines[r].replace(w, w + '_e64', 1); off += 4; nprom += 1
            else:
                k = n; cnt = 0; mf = 0
                while k < len(lines) and (k not in size or size[k] % 8 == 0) and cnt < 8:
                    if k in size: cnt += 1; mf += 'v_mfma' in lines[k]
                    k += 1
                if cnt >= 7 and mf == 0 and 'ds_' not in l: lines[n] = '    s_nop 0\n' + l; off += 4; npad += 1
        off += size[n]; run = []
    print('align: promoted', nprom, 'padded', npad, file=sys.stderr)
    return '\n'.join(lines)

def build(**kw):
    st = kw.get('stamps', False)
    t = HEAD + kb(KN) + gen_k1(**kw) + 'code_end:\n'
    t += '.section .rodata,"a"\n.p2align 6\n' + kernel_desc(KN, 512, accum=256)
    return align_pass(t) if kw.get('opt', {}).get('align', 1) else t

if __name__ == '__main__':
    t = build(); open('recurrent_scan__sliding_block__glu_gated_bilinear__prompt.s', 'w').write(t); open('cur.s', 'w').write(t)
    t = build(stamps=['mf0', 'g1end', 'g2end', 'poll', 'end']); open('k_st.s', 'w').write(t)
    t = build(stamps='all'); open('all.s', 'w').write(t)
```

```python
import sys, struct
sys.path.insert(0, 'gen')
from prog import *
from asmlib import STAMP_OFF

HOFF = 0x0000000
POFF = 0x1200000
BLK = 110592 + 128
KOFF = 0x2400000 + BLK
OOFF = 0x2C00000
ROFF = 0x2F00000
FOFF = 0x2F10000
WSB = 256 << 20
OOB = 0x10000000
NEG = 0xF149F2CA
SCALE = 0.2357022603955158 * 1.4426950408889634
def f2u(x): return struct.unpack('<I', struct.pack('<f', x))[0]

SLOT = 16384
XB = 5 * SLOT
HLONE = 9 * SLOT
RT4 = 155648
RTB = RT4 + 2048
NCODE = 84

def vr(b, n=4): return 'v[%d:%d]' % (b, b + n - 1)
def ar(b, n=4): return 'a[%d:%d]' % (b, b + n - 1)
def sr(b, n=4): return 's[%d:%d]' % (b, b + n - 1)
def II(text): return [Ins(l) for l in text.strip().split('\n') if l.strip()]

class Frag:
    def __init__(s, base, imm0, imm1, acc, b, first):
        s.base, s.imm, s.acc, s.b, s.first = base, (imm0, imm1), acc, b, first
class Slot:
    def __init__(s, groups, dma):
        s.groups, s.dma, s.loads = groups, dma, None

def gen_k1(JX=4, stamps=False, opt={}):
    P = Prog()
    SX, SQ, SG, SU, SD, SW, SB, SL = 24, 28, 32, 36, 40, 44, 48, 52
    I, J, Wv, RG, FH, E, Pp, T0, T1, T2, T3, OFF, ST, SPN = range(56, 70)
    W4096, W3072, BP, BL1, BD, SIG = range(70, 76)
    BL2 = 76
    HS, HLN, HL, PS, PLN = range(79, 84)
    C, N0, N1 = 84, 85, 86
    QM, QC, BQ, ONE2, LO, HI, R2, XRO = 87, 91, 92, 93, 94, 95, 96, 97
    KO, KB = 87, 92
    NN = 101
    SH = 75 + 11
    OB, OR, MYF, PF, PFD, DB = 4, 5, 6, 7, 10, 11
    PFP, PFW, J0, DUM = 20, 21, 90, 18
    OUTP = 0
    ROT = 3
    sTS = 12
    vL, vL16 = 1, 2
    vDQ = [3, 4, 5, 6]; vDL2 = 7
    vDP = [8, 9]; vDL1 = 10; vTP = [11, 12]; vTL1 = 13
    vTQ = [14, 15]; vDD = [16, 17, 18, 19]; vTD = [20, 21]; vTL2 = 22
    vQS = [23]; vTB = 24; vRS = 25
    vPFP, vPFS, vHW, vFL, vDG, vOR = 26, 27, 28, 29, 30, 31
    vKM, vKR, vVM, vVR = 3, 4, 5, 6
    QW = 8
    vMX, vMN, vTA, vONES = 14, 15, 23, 25
    XT, QF, FR, ACCA, ACCB, SP = 32, 64, 80, 112, 176, 240
    ALL = ['mf0'] + ['slot%d' % n for n in range(1, 51)] + ['g1end', 'attk', 'att1', 'att2', 'att3', 'attend'] + ['slot%d' % n for n in range(52, 72)] + ['g2end', 'wo', 'poll', 'end']
    def stamp(name, ret=False):
        if stamps == 'all':
            if name not in ALL: return []
            n = ALL.index(name)
            x = [Ins('v_writelane_b32 v%d, s22, %d' % (77 + n // 64, n % 64)), Ins('s_memtime s[22:23]')]
            if ret: return [x]
            for y in x: P(y)
            return []
        if stamps and name in stamps:
            n = stamps.index(name)
            x = [Ins('s_mov_b32 s%d, s22' % (sTS + n)), Ins('s_memrealtime s[22:23]')]
            if ret: return [x]
            for y in x: P(y)
        return []
    def breg(pos, mt):
        i = pos * 4 + mt
        return ar(4 * i) if i < 64 else vr(XT + 4 * (i - 64))
    def emit_all(lst):
        for x in lst:
            if isinstance(x, list): emit_all(x)
            elif x.kind == 'label': P.out.append(x)
            else: P(x)
    lg = lambda x: x.bit_length() - 1
    ng = 16 // JX

    P('s_cmp_ge_u32 s2, 256')
    P('s_cbranch_scc1 K1_end')
    P('s_load_dwordx16 s[4:19], s[0:1], 0')
    P('s_load_dwordx4 s[20:23], s[0:1], 64')
    if stamps: P('s_memtime s[84:85]' if stamps == 'all' else 's_memrealtime s[84:85]')
    def code_touch():
        P('s_getpc_b64 %s' % sr(SL, 2))
        P.label('K1_pc')
        P(f'''s_mov_b32 s{SL+2}, code_end-K1_pc
        s_mov_b32 s{SL+3}, 0x00020000
        s_lshr_b32 s{SPN}, s2, 3
        s_and_b32 s{SPN}, s{SPN}, 7
        s_mul_i32 s{SPN}, s{SPN}, {NCODE*128}
        v_lshlrev_b32 v80, 7, v0
        v_mov_b32 v89, 0x{OOB:x}
        v_cmp_gt_u32 vcc, {NCODE}, v0
        v_cndmask_b32 v80, v89, v80, vcc
        buffer_load_dword v79, v80, {sr(SL)}, s{SPN} offen''')
    if not opt.get('ctlate', 1): code_touch()
    P(f'''s_lshr_b32 s{NN}, s2, 3
    v_mov_b32 v89, 0x{OOB:x}
    v_and_b32 v{vL}, 63, v0
    v_lshrrev_b32 v80, 6, v0
    v_readfirstlane_b32 s{Wv}, v80
    s_and_b32 s{T0}, s2, 7
    s_and_b32 s{J}, s{T0}, {ng-1}
    s_lshl_b32 s{J}, s{J}, {lg(JX)}
    s_and_b32 s{T2}, s{NN}, {JX-1}
    s_or_b32 s{J}, s{J}, s{T2}
    s_lshr_b32 s{I}, s{T0}, {lg(ng)}
    s_lshl_b32 s{I}, s{I}, {lg(32//JX)}
    s_lshr_b32 s{T2}, s{NN}, {lg(JX)}
    s_or_b32 s{I}, s{I}, s{T2}
    s_and_b32 s{RG}, s{Wv}, 1
    s_lshr_b32 s{FH}, s{Wv}, 1
    s_and_b32 s{E}, s{J}, 1
    s_lshr_b32 s{Pp}, s{J}, 1
    s_and_b32 s{ROT}, s{J}, {min(JX-1, 3)}
    v_lshrrev_b32 v82, 3, v{vL}
    v_and_b32 v83, 7, v{vL}
    v_mul_u32_u24 v100, 1152, v82
    v_lshl_add_u32 v100, v83, 4, v100
    s_lshl_b32 s{T0}, s{I}, 3
    s_lshl_b32 s{T1}, s{RG}, 2
    s_add_u32 s{T0}, s{T0}, s{T1}
    s_add_u32 s{T1}, s{T0}, s{FH}
    s_mul_i32 s{T1}, s{T1}, {16*1152}''')
    if JX == 2: P(f's_lshl_b32 s{ROT}, s{ROT}, 1')
    def xro(blk):
        P(f'''s_xor_b32 s{T2}, s{ROT}, {blk}
        s_and_b32 s{T3}, s{T2}, 1
        s_lshl_b32 s{T3}, s{T3}, 3
        s_and_b32 s{T2}, s{T2}, 2
        s_lshl_b32 s{T2}, s{T2}, 4
        s_or_b32 s{XRO+blk}, s{T2}, s{T3}''')
    xro(0)
    if opt.get('est'): P('s_memrealtime s[76:77]')
    P('s_waitcnt lgkmcnt(0)')
    if opt.get('est'): P('s_memrealtime s[78:79]')
    def srd(d, b, nbytes, shift=0):
        if shift:
            P('s_sub_u32 s%d, s%d, %d' % (d, b, shift))
            P('s_subb_u32 s%d, s%d, 0' % (d + 1, b + 1))
        else:
            P('s_mov_b32 s%d, s%d' % (d, b))
            P('s_mov_b32 s%d, s%d' % (d + 1, b + 1))
        P('s_mov_b32 s%d, 0x%x' % (d + 2, nbytes + shift))
        P('s_mov_b32 s%d, 0x00020000' % (d + 3))
    srd(SX, 4, 2048 * 1152)
    XR = 112
    xl = []
    def xload(blk):
        ld = [Ins('buffer_load_dwordx4 %s, v100, %s, s%d offen offset:%d' % (vr(XR + 36 * blk + 4 * l), sr(SX), OFF, 128 * l)) for l in range(9)]
        xl.append(ld)
        return [II(f's_mul_i32 s{OFF}, s{XRO+blk}, 1152\ns_add_u32 s{OFF}, s{OFF}, s{T1}')] + [[x] for x in ld]
    emit_all(xload(0))
    if opt.get('ctlate', 1): code_touch()
    if opt.get('est'): P('s_memrealtime s[80:81]')
    if opt.get('est') == 2:
        P('s_waitcnt vmcnt(8)')
        P('s_memrealtime s[82:83]')
        P('s_waitcnt vmcnt(0)')
        P('s_memrealtime s[86:87]')
    for blk in range(1, 4): xro(blk)
    srd(SQ, 6, 576 * 3456, shift=2048)
    RS = 36 // JX
    NT = ' nt' if opt.get('nt') else ''
    P(f'''s_and_b32 s{J0}, s{J}, {16-JX}
    s_and_b32 s{SH}, s2, 7
    s_lshr_b32 s{SH}, s{SH}, {lg(ng)}
    s_lshl_b32 s{SH}, s{SH}, 5
    s_add_u32 s{SH}, s{SH}, s{NN}
    v_lshrrev_b32 v86, {lg(2*JX)}, v0
    v_and_b32 v87, {2*JX-1}, v0
    v_mul_u32_u24 v88, 3456, v86
    v_lshl_add_u32 v87, v87, 7, v88
    v_cmp_gt_u32 vcc, {RS}, v86
    v_cndmask_b32 v87, v89, v87, vcc
    s_mul_i32 s{ST}, s{SH}, {RS*3456}
    s_lshl_b32 s{T2}, s{J0}, 8
    s_add_u32 s{BL2}, s{ST}, s{T2}
    v_mov_b32 v104, v87''')
    qtouch = [Ins(f'buffer_load_dword v79, v104, {sr(SQ)}, s{BL2} offen offset:2048' + NT)]

    srd(SG, 12, 576 * 9216)
    srd(SU, 14, 576 * 9216, shift=2048)
    srd(SD, 16, 4608 * 1152, shift=2048)
    srd(SW, 22, WSB)
    srd(SB, 20, 256)
    P(f's_mov_b64 {sr(OUTP,2)}, s[18:19]')
    P(f'''s_cmp_ge_u32 s{Wv}, 2
    s_cselect_b32 s{SL}, s14, s12
    s_cselect_b32 s{SL+1}, s15, s13
    s_mov_b32 s{SL+2}, 0x{576*9216:x}
    s_mov_b32 s{SL+3}, 0x00020000
    s_mul_i32 s{PFP}, s{SH}, {RS*9216}
    s_mul_i32 s{T2}, s{RG}, {1152 if JX == 4 else 9*9216}
    s_add_u32 s{PFP}, s{PFP}, s{T2}
    s_mul_i32 s{T2}, s{J0}, 576
    s_add_u32 s{PFP}, s{PFP}, s{T2}''')
    if stamps: P('s_mov_b64 s[22:23], s[84:85]')
    P(f'''s_lshl_b32 s{W4096}, s{Wv}, 12
    s_lshl_b32 s{BQ}, s{J}, 8
    s_mul_i32 s{T2}, s{Wv}, {16*3456}
    s_add_u32 s{BQ}, s{BQ}, s{T2}
    s_cmp_ge_u32 s{J}, 14
    s_cselect_b32 s{BQ}, 0x{OOB:x}, s{BQ}
    s_mov_b32 s{ONE2}, 0x3f803f80
    s_mov_b32 s{LO}, 0x00003f80
    s_mov_b32 s{HI}, 0x3f800000
    v_lshrrev_b32 v84, 4, v{vL}
    v_and_b32 v85, 15, v{vL}
    v_cmp_eq_u32 vcc, 0, v0
    v_cndmask_b32 v{vFL}, v89, 0, vcc
    v_lshlrev_b32 v86, 1, v82
    v_and_b32 v86, 4, v86
    v_xor_b32 v86, v83, v86
    v_mul_u32_u24 v87, 9216, v82
    v_lshl_add_u32 v{vDP[0]}, v86, 4, v87
    v_mul_u32_u24 v88, 3456, v82
    v_lshl_add_u32 v90, v86, 4, v88
    v_add_u32 v{vDQ[0]}, 2048, v90
    v_add_u32 v{vDQ[2]}, 128, v90
    v_xor_b32 v86, 2, v86
    v_lshl_add_u32 v{vDP[1]}, v86, 4, v87
    v_add_u32 v{vDP[1]}, {8*9216-1024}, v{vDP[1]}
    v_lshl_add_u32 v90, v86, 4, v88
    v_add_u32 v{vDQ[1]}, {8*3456-1024+2048}, v90
    v_add_u32 v{vDQ[3]}, {8*3456-1024+128}, v90
    s_lshl_b32 s{SIG}, s{E}, 1
    s_sub_u32 s{SIG}, 1, s{SIG}
    s_mul_i32 s{BP}, s{Pp}, 1152
    s_lshl_b32 s{T3}, s{E}, 10
    s_add_u32 s{BP}, s{BP}, s{T3}
    s_mul_i32 s{T3}, s{Wv}, {16*9216}
    s_add_u32 s{BP}, s{BP}, s{T3}
    v_and_b32 v87, 3, v{vL}
    v_lshrrev_b32 v86, 2, v85
    v_and_b32 v88, 1, v84
    v_lshrrev_b32 v92, 1, v84
    v_lshlrev_b32 v90, 12, v92
    v_lshl_add_u32 v90, v88, 10, v90
    v_lshl_add_u32 v90, v86, 7, v90
    v_lshrrev_b32 v91, 1, v86
    v_xor_b32 v91, s{FH}, v91
    v_lshl_add_u32 v90, v91, 6, v90
    v_lshl_add_u32 v90, v88, 5, v90
    v_lshl_add_u32 v{vTQ[0]}, v87, 3, v90
    v_xor_b32 v{vTQ[1]}, 32, v{vTQ[0]}
    s_lshl_b32 s{T2}, s{E}, 6
    v_xor_b32 v{vTP[0]}, s{T2}, v{vTQ[0]}
    v_xor_b32 v{vTP[1]}, s{T2}, v{vTQ[1]}
    s_mul_i32 s{ST}, s{RG}, {2*18432}
    s_add_u32 s{ST}, s{ST}, {XB}
    v_xor_b32 v90, v85, v84
    v_lshlrev_b32 v90, 4, v90
    v_lshl_add_u32 v90, v84, 8, v90
    v_add_u32 v65, s{ST}, v90
    v_xor_b32 v66, 64, v65
    s_mul_i32 s{T2}, s{FH}, 18432
    s_add_u32 s{ST}, s{ST}, s{T2}
    s_and_b32 s{T2}, s{XRO}, 8
    s_lshl_b32 s{T2}, s{T2}, 4
    s_add_u32 s{ST}, s{ST}, s{T2}
    v_xor_b32 v90, v82, v83
    v_lshlrev_b32 v90, 4, v90
    v_lshl_add_u32 v90, v83, 8, v90
    v_add_u32 v64, s{ST}, v90
    v_xor_b32 v76, 128, v64
    s_lshl_b32 s{T2}, s{RG}, 6
    s_lshl_b32 s{T3}, s{FH}, 4
    s_add_u32 s{T2}, s{T2}, s{T3}
    v_add_u32 v67, s{T2}, v82''')
    def G(text): return [II(text)]
    P(f'''s_lshl_b32 s{T2}, s{I}, 4
    s_add_u32 s{T2}, s{T2}, s{J}
    s_lshl_b32 s{MYF}, s{T2}, 7
    s_add_u32 s{MYF}, s{MYF}, 0x{FOFF:x}
    s_lshl_b32 s{DB}, s{I}, 2
    s_lshl_b32 s{T2}, 1, s{J}
    v_mov_b32 v105, s{T2}
    v_mov_b32 v86, 0''')
    freset = P(f'buffer_store_dword v86, v{vFL}, {sr(SW)}, s{MYF} offen sc1')
    fatom = Ins(f'buffer_atomic_or v105, v{vFL}, {sr(SB)}, s{DB} offen offset:8', needs=[freset])
    late0 = II(f'''s_mul_i32 s{W3072}, s{Wv}, 3072
    s_lshl_b32 s{T2}, s{I}, 4
    s_add_u32 s{T2}, s{T2}, s{J}
    v_mov_b32 v207, 0
    s_xor_b32 s{PF}, s{MYF}, 128
    s_mul_i32 s{HS}, s{T2}, {9*8192}
    s_xor_b32 s{T2}, s{T2}, 1
    s_mul_i32 s{HL}, s{T2}, {9*8192}
    s_lshl_b32 s{T2}, s{RG}, 12
    s_add_u32 s{HS}, s{HS}, s{T2}
    s_lshl_b32 s{T3}, s{FH}, 11
    s_add_u32 s{HLN}, s{HS}, s{T3}
    s_add_u32 s{HLN}, s{HLN}, {8*8192}
    s_add_u32 s{HL}, s{HL}, s{T2}
    s_lshl_b32 s{T3}, s{FH}, 13
    s_add_u32 s{HS}, s{HS}, s{T3}
    s_mul_i32 s{BL1}, s{Pp}, 1152
    s_lshl_b32 s{T2}, s{E}, 6
    s_add_u32 s{T2}, s{T2}, 512
    s_add_u32 s{BL1}, s{BL1}, s{T2}
    s_mul_i32 s{T3}, s{RG}, {48*9216}
    s_add_u32 s{BL1}, s{BL1}, s{T3}''')
    late0b = II(f'''s_lshl_b32 s{T2}, s{RG}, 12
    s_lshl_b32 s{T3}, s{I}, 3
    s_add_u32 s{T3}, s{T3}, s{Pp}
    s_mul_i32 s{PS}, s{T3}, {18*8192}
    s_add_u32 s{PS}, s{PS}, s{T2}
    s_add_u32 s{PS}, s{PS}, 0x{POFF:x}
    s_add_u32 s{T3}, s{E}, 8
    s_lshl_b32 s{T3}, s{T3}, 13
    s_add_u32 s{PLN}, s{PS}, s{T3}
    s_lshl_b32 s{T3}, s{FH}, 11
    s_add_u32 s{PLN}, s{PLN}, s{T3}
    s_mul_i32 s{T3}, s{E}, 10
    s_add_u32 s{T3}, s{T3}, s{FH}
    s_lshl_b32 s{T3}, s{T3}, 13
    s_add_u32 s{PS}, s{PS}, s{T3}
    s_lshl_b32 s{T2}, s{E}, 6
    s_add_u32 s{T2}, s{T2}, 512
    s_mul_i32 s{T1}, s{Pp}, {576*1152}
    s_mul_i32 s{T3}, s{E}, {17*32*1152}
    s_add_u32 s{T1}, s{T1}, s{T3}
    s_mul_i32 s{BD}, s{E}, 640
    s_add_u32 s{BD}, s{BD}, s{T1}
    s_mul_i32 s{T3}, s{FH}, s{SIG}
    s_mul_i32 s{T3}, s{T3}, {32*1152}
    s_add_u32 s{BD}, s{BD}, s{T3}
    s_mul_i32 s{T3}, s{RG}, {16*1152}
    s_add_u32 s{BD}, s{BD}, s{T3}
    s_add_u32 s{T1}, s{T1}, s{T2}''')
    for t in range(3):
        late0b += II(f'''s_mul_i32 s{T2}, s{Wv}, 3
        s_add_u32 s{T2}, s{T2}, {t}
        s_lshr_b32 s{T3}, s{T2}, 1
        s_mul_i32 s{T3}, s{T3}, s{SIG}
        s_mul_i32 s{T3}, s{T3}, {32*1152}
        s_add_u32 s{BL2+t}, s{T1}, s{T3}
        s_and_b32 s{T2}, s{T2}, 1
        s_mul_i32 s{T2}, s{T2}, {16*1152}
        s_add_u32 s{BL2+t}, s{BL2+t}, s{T2}
        s_add_u32 s{BL2+t}, s{BL2+t}, {2048-1024*t}''')
    late0 += II(f'''s_mul_i32 s{T2}, s{T0}, {BLK//2}
    s_lshl_b32 s{T3}, s{J}, 13
    s_add_u32 s{T2}, s{T2}, s{T3}
    s_lshl_b32 s{T3}, s{FH}, 11
    s_add_u32 s{T2}, s{T2}, s{T3}
    s_add_u32 s{T2}, s{T2}, 0x{KOFF:x}
    s_movk_i32 s{QC}, 4096''')
    late0 += G(f's_cmp_ge_u32 s{J}, 14\ns_cselect_b32 s{QM}, 0x{OOB:x}, s{T2}')
    late0 += G(f's_cmp_eq_u32 s{J}, 13\ns_cselect_b32 s{QC}, 0x{OOB:x}, s{QC}')
    late0b += II(f'''s_lshl_b32 s{T2}, s{FH}, 1
    s_add_u32 s{T2}, s{T2}, s{T0}
    s_mul_i32 s{OB}, s{T2}, 18432
    s_lshl_b32 s{T2}, s{J}, 10
    s_add_u32 s{OB}, s{OB}, s{T2}
    s_add_u32 s{OB}, s{OB}, 0x{OOFF:x}
    s_mul_i32 s{OR}, s{I}, {8*18432}
    s_lshl_b32 s{T2}, s{J}, 7
    s_add_u32 s{OR}, s{OR}, s{T2}
    s_add_u32 s{OR}, s{OR}, 0x{OOFF+16384:x}''')
    late0b += G(f's_cmp_eq_u32 s{Wv}, 0\ns_cselect_b32 s{OR}, s{OR}, 0x{OOB:x}')
    late0b += II(f'''s_mov_b32 s{C}, 0x{f2u(SCALE):x}''')
    late0b += G(f's_cmp_lt_u32 s{I}, 2\ns_cselect_b32 s{N0}, 0xffff, 0') + G(f's_cmp_lt_u32 s{I}, 1\ns_cselect_b32 s{N1}, 0xffff, 0')
    late0 += II(f'''s_mul_i32 s{PFD}, s{J0}, {288*1152}
    s_mul_i32 s{T2}, s{SH}, {162*128}
    s_add_u32 s{PFD}, s{PFD}, s{T2}
    s_mul_i32 s{T2}, s{Wv}, {41*128}
    s_add_u32 s{PFD}, s{PFD}, s{T2}''')
    late0 += II(f'''v_lshlrev_b32 v{vL16}, 4, v{vL}
    v_lshrrev_b32 v182, 3, v{vL}
    v_and_b32 v183, 7, v{vL}
    v_lshrrev_b32 v184, 4, v{vL}
    v_and_b32 v185, 15, v{vL}
    v_and_b32 v186, 6, v182
    v_xor_b32 v186, v183, v186
    v_mul_u32_u24 v187, 1152, v182
    v_lshl_add_u32 v187, v186, 4, v187''')
    for t in range(4):
        late0 += II('v_add_u32 v%d, %d, v187' % (vDD[t], (t & 1) * (8 * 1152 - 1024) + (t >> 1) * (128 - 2048) + 2048))
    late0 += II(f'''v_lshrrev_b32 v186, 2, v{vL}
    v_and_b32 v187, 3, v{vL}
    v_and_b32 v188, 2, v184
    v_xor_b32 v188, v187, v188
    v_mul_u32_u24 v190, 9216, v186
    v_lshl_add_u32 v{vDL1}, v188, 4, v190
    v_and_b32 v188, 1, v184
    v_lshlrev_b32 v188, 1, v188
    v_xor_b32 v188, v187, v188
    v_mul_u32_u24 v190, 1152, v186
    v_lshl_add_u32 v{vDL2}, v188, 4, v190
    v_lshrrev_b32 v186, 2, v185
    v_and_b32 v188, 1, v184
    v_lshrrev_b32 v192, 1, v184
    v_lshl_add_u32 v190, v184, 3, v186
    v_lshlrev_b32 v190, 6, v190
    v_xor_b32 v191, s{FH}, v188
    v_lshl_add_u32 v190, v191, 5, v190
    v_lshl_add_u32 v{vTL1}, v187, 3, v190
    v_lshl_add_u32 v190, v184, 2, v186
    v_lshlrev_b32 v190, 6, v190
    v_lshl_add_u32 v190, v191, 5, v190
    v_lshl_add_u32 v{vTL2}, v187, 3, v190
    v_lshl_add_u32 v190, v188, 2, v186
    v_lshrrev_b32 v191, 1, v190
    s_lshl_b32 s{T2}, s{FH}, 1
    v_xor_b32 v191, s{T2}, v191
    v_lshlrev_b32 v190, 7, v190
    v_lshl_add_u32 v190, v192, 10, v190
    v_lshl_add_u32 v190, v191, 5, v190
    v_lshl_add_u32 v{vTD[0]}, v187, 3, v190
    v_xor_b32 v{vTD[1]}, 32, v{vTD[0]}
    v_mov_b32 v189, 0x{OOB:x}
    v_cmp_eq_u32 vcc, 0, v184
    v_lshlrev_b32 v190, 2, v184
    v_sub_u32 v{vDG}, v190, v185
    v_cndmask_b32 v{vOR}, v189, v{vL16}, vcc
    s_lshl_b32 s{T2}, s{RG}, 12
    v_add_u32 v{vHW}, s{T2}, v{vL16}''')
    late0 += G(f's_cmp_ge_u32 s{J}, 9\ns_cselect_b64 vcc, -1, 0')
    late0 += II(f'''v_lshlrev_b32 v191, 6, v185
    v_lshl_add_u32 v191, v184, 4, v191
    v_cndmask_b32 v{vQS[0]}, v{vL16}, v191, vcc
    v_lshlrev_b32 v190, 4, v185
    v_add_u32 v190, {RT4}, v190
    v_lshlrev_b32 v191, 4, v184
    v_add_u32 v191, {RTB}, v191
    v_cndmask_b32 v190, v190, v191, vcc
    s_lshl_b32 s{T2}, s{RG}, 10
    v_add_u32 v{vRS}, s{T2}, v190
    v_mov_b32 v204, 0
    v_mov_b32 v205, 0
    v_mov_b32 v206, 0
    s_mul_i32 s{T2}, s{J}, 2304
    s_add_u32 s{T2}, s{T2}, 0x{KOFF-BLK+148*256:x}''')
    late0 += G(f's_cmp_eq_u32 s{I}, 0\ns_cselect_b32 s{T2}, s{T2}, 0x{OOB:x}')
    guard = Ins(f'buffer_store_dwordx4 v[204:207], v{vOR}, {sr(SW)}, s{T2} offen sc1')
    late0 += [guard]
    late0 += II(f'''v_mov_b32 v200, 0x3f803f80
    v_mov_b32 v201, 0x3f803f80
    v_mov_b32 v202, 0x3f803f80
    v_mov_b32 v203, 0x3f803f80
    s_lshl_b32 s{T2}, s{I}, 2
    s_add_u32 s{T2}, s{T2}, s{Wv}
    s_mul_i32 s{T2}, s{T2}, {BLK}
    s_add_u32 s{T2}, s{T2}, 0x{KOFF+110592:x}
    v_cmp_gt_u32 vcc, 8, v{vL}
    s_nop 0
    s_nop 0
    v_cndmask_b32 v199, v189, v{vL16}, vcc''')
    late0 += G(f's_cmp_eq_u32 s{J}, 14\ns_cselect_b32 s{T2}, s{T2}, 0x{OOB:x}')
    ones_st = Ins(f'buffer_store_dwordx4 v[200:203], v199, {sr(SW)}, s{T2} offen sc1')
    late0 += [ones_st]

    slots = []
    def dma4(srds, voffs, sbase, add, sadd=0, bump=None, pre=''):
        def f(rp):
            if bump is not None:
                g = [II((bump + '\n' if bump else '') + f's_add_u32 s{OFF}, s{sbase}, {add}\ns_add_u32 m0, s{W4096}, {rp*SLOT}')]
            elif sadd and not add:
                g = [II(pre + f's_mul_i32 s{OFF}, s{SIG}, {sadd}\ns_add_u32 s{OFF}, s{OFF}, s{sbase}\ns_add_u32 m0, s{W4096}, {rp*SLOT}')]
            elif sadd:
                g = [II(f's_mul_i32 s{OFF}, s{SIG}, {sadd}\ns_add_u32 s{OFF}, s{OFF}, s{sbase}'),
                     II(f's_add_u32 s{OFF}, s{OFF}, {add}\ns_add_u32 m0, s{W4096}, {rp*SLOT}')]
            else:
                g = [II(f's_add_u32 s{OFF}, s{sbase}, {add}\ns_add_u32 m0, s{W4096}, {rp*SLOT}')]
            for t in range(4):
                g.append([Ins('buffer_load_dwordx4 v%d, %s, s%d offen offset:%d lds' % (voffs[t], sr(srds[t]), OFF, 1024 * t))])
            return g
        return f
    def dma_l1(s):
        def f(rp):
            g = []
            for t in range(3):
                pre = II(f's_add_u32 s{OFF}, s{BL1}, {s*96*9216 + t*(16*9216-1024)}')
                if t == 0: pre += II(f's_add_u32 m0, s{W3072}, {rp*SLOT}')
                g.append(pre)
                g.append(II(f'buffer_load_dwordx4 v{vDL1}, {sr(SL)}, s{OFF} offen offset:{1024*t} lds'))
            return g
        return f
    def dma_l2(s):
        def f(rp):
            g = [II(f's_add_u32 m0, s{W3072}, {rp*SLOT}')]
            for t in range(3):
                g.append(II(f's_mul_i32 s{OFF}, s{SIG}, {s*192*1152}\ns_add_u32 s{OFF}, s{OFF}, s{BL2+t}'))
                g.append(II(f'buffer_load_dwordx4 v{vDL2}, {sr(SD)}, s{OFF} offen offset:{1024*t} lds'))
            return g
        return f
    def accf(base, tile): return lambda mt: base + (tile * 4 + mt) * 4
    def bf(pos): return lambda mt: breg(pos, mt)
    def pairlike(vT, acc, s):
        return [[Frag(vT[ft], ks * 8192 + m * 2048, ks * 8192 + m * 2048 + 512, accf(acc, 2 * m + ft), bf(2 * s + ks), s == 0 and ks == 0) for ks in range(2)] for m in range(2) for ft in range(2)]
    for s in range(9):
        slots.append(Slot(pairlike(vTQ, ACCA, s), dma4([SQ] * 4, vDQ, BQ, s * 64 * 3456)))
    PACC = [ACCB, ACCB, ACCA, ACCB]
    def pstep(q):
        for s in range(9):
            slots.append(Slot(pairlike(vTP, PACC[q], s), dma4([SG, SG, SU, SU], [vDP[0], vDP[1], vDP[0], vDP[1]], BP, s * 64 * 9216, bump=(f's_lshl_b32 s{OFF}, s{SIG}, 7\ns_add_u32 s{BP}, s{BP}, s{OFF}' if s == 0 and q else ''))))
    pstep(0)
    for s in range(6):
        gs = [[Frag(vTL1, m * 6144 + ks * 2048, m * 6144 + ks * 2048 + 256, accf(ACCA, m), bf(3 * s + ks), s == 0 and ks == 0) for ks in range(3)] for m in range(2)]
        slots.append(Slot(gs, dma_l1(s)))
    pstep(1); pstep(2); pstep(3)
    NSEG1 = len(slots)
    hpos = {}
    for n, k in enumerate([6, 7, 11, 10]): hpos[k] = n
    for n, k in enumerate([0, 1, 2, 3, 4, 5, 16, 17, 14, 15, 12, 13, 9, 8]): hpos[k] = 4 + n
    lorder = [8, 7, 6, 0, 1, 2, 4, 3, 5]
    def dstep(q):
        acc = ACCA
        for n, ln in enumerate(lorder):
            gs = [[Frag(vTD[ft], ks * 8192 + c * 2048, ks * 8192 + c * 2048 + 4096, accf(acc, 2 * c + ft), bf(hpos[2 * ln + ks]), n == 0 and ks == 0) for ks in range(2)] for c in range(2) for ft in range(2)]
            slots.append(Slot(gs, dma4([SD] * 4, vDD, BD, 0, ln * 64 * 1152, pre=(f's_add_u32 s{BD}, s{BD}, 256\n' if q and n == 0 else ''))))
    dstep(0)
    for s in range(3):
        gs = [[Frag(vTL2, ks * 2048, ks * 2048 + 1024, accf(SP, 0), bf(hpos[6 * s + ks]), s == 0 and ks == 0) for ks in range(3 * hg, 3 * hg + 3)] for hg in range(2)]
        slots.append(Slot(gs, dma_l2(s)))
    n0 = len(slots); dstep(1)
    for sl in slots[n0:]:
        for g in sl.groups:
            for f in g: f.acc = (lambda old: (lambda mt: old(mt) + (ACCB - ACCA)))(f.acc)
    NS = len(slots)
    vWD = [3, 4, 5, 6]; vWD2 = 8; vWT = [9, 10, 11, 12]; vPL = 13
    TL, TP, TX, TM, TV, OL, FB = 87, 88, 89, 90, 91, 92, 93
    for s in range(4): slots.append(Slot([], dma4([SG] * 4, vWD, TL, s * 4 * 36 * 1152)))
    def dma_w2(rp):
        return [II(f's_mul_i32 s{OFF}, s{Wv}, {(144-36)*1152}\ns_add_u32 s{OFF}, s{OFF}, s{TL}\ns_lshr_b32 m0, s{W4096}, 1\ns_add_u32 m0, m0, {rp*SLOT}'),
                II(f'buffer_load_dwordx4 v{vWD2}, {sr(SG)}, s{OFF} offen lds'), II(f's_add_u32 s{OFF}, s{OFF}, {72*1152-1024}'),
                II(f'buffer_load_dwordx4 v{vWD2}, {sr(SG)}, s{OFF} offen offset:1024 lds')]
    slots.append(Slot([], dma_w2))
    NSX = len(slots)
    phys = {n: n for n in range(9)}; load_at = {}; hphys = {}
    nxt = 9
    divert = {18: 0, 33: 1, 42: 2, 50: 3}
    for n in range(2, NSEG1):
        if n in divert: hphys[divert[n]] = phys[n - 2]
        else: phys[nxt] = phys[n - 2]; load_at[n] = nxt; nxt += 1
    att_loads = []
    for f in [phys[NSEG1 - 2], phys[NSEG1 - 1], hphys[0], hphys[1], hphys[2]]:
        phys[nxt] = f; att_loads.append(nxt); nxt += 1
    extra_loads = {}
    for n in range(NSEG1 + 2, NS):
        q = n - (NSEG1 + 2)
        if q == 1: phys[nxt] = hphys[3]; extra_loads[n] = [nxt]; nxt += 1
        if nxt < NSX: phys[nxt] = phys[n - 2]; load_at[n] = nxt; nxt += 1
    assert nxt == NSX
    def dma_groups(n):
        g = slots[n].dma(phys[n])
        slots[n].loads = [x for grp in g for x in grp if x.kind == 'vmem']
        return g

    SV = opt.get('sv', 4.75)
    loud = set(); svc = {id(guard): 1, id(ones_st): 1}
    def T(text, q=56):
        x = Ins(text); loud.add(id(x)); svc[id(x)] = q; return x
    VLS = opt.get('vls', [[0, 8, 4, 1, 7], [2, 6, 3, 5]])
    def pf_gu(VL, t0, msk, q=0):
        nl = len(VL); tab = sum(l << (4 * n) for n, l in enumerate(VL)); a_, b_, c_ = t0, t0 + 1, t0 + 2
        return II(f'''v_mul_u32_u24 v{b_}, {65536//nl+1}, v{vL}
        v_lshrrev_b32 v{b_}, 16, v{b_}
        v_cmp_gt_u32 {msk}, 9, v{b_}
        v_mul_u32_u24 v{a_}, {4*nl}, v{b_}
        v_lshlrev_b32 v{c_}, 2, v{vL}
        v_sub_u32 v{a_}, v{c_}, v{a_}
        v_mov_b32 v{c_}, 0x{tab:x}
        v_bfe_u32 v{a_}, v{c_}, v{a_}, 4
        v_mul_u32_u24 v{b_}, 9216, v{b_}
        v_lshl_add_u32 v{b_}, v{a_}, 7, v{b_}
        v_mov_b32 v{a_}, 0x{OOB:x}
        v_cndmask_b32 v{b_}, v{a_}, v{b_}, {msk}''') + [T(f'buffer_load_dword v0, v{b_}, {sr(SL)}, s{PFP} offen' + NT, q)]
    emit_all(xload(1))
    stamp('setup')
    if opt.get('est'):
        P('s_waitcnt lgkmcnt(0)')
        for n, r in enumerate((76, 78, 80, 82, 86)): P('s_mov_b32 s%d, s%d' % (sTS + 5 + n, r))

    NPRE = opt.get('npre', 5)
    GU2 = 0
    gA, gB = pf_gu(VLS[0], 106, 's[78:79]'), pf_gu(VLS[1], 106, 's[78:79]')
    dm0 = [g for n in range(NPRE) for g in dma_groups(n)]
    if opt.get('so', 0) == 0:
        bg = [('GAP', 30)] + xload(2) + xload(3) + [qtouch, ('GAP', 150)] + dm0 + [gA, gB, [fatom]]
    elif opt.get('so', 0) == 1:
        bg = [('GAP', opt.get('gap0', 30)), qtouch, gA, ('GAP', opt.get('ga', 200))] + xload(2) + xload(3) + dm0 + [gB, [fatom]]
    else:
        bg = [('GAP', opt.get('gap0', 30))] + xload(2) + [qtouch, gA, ('GAP', opt.get('ga', 300))] + xload(3) + dm0 + [gB, [fatom]]
    cnt = [0]; lq = []; lcnt = [0, 10]
    EVERY = opt.get('every', 8)
    def V(t, needs=()):
        r = P(Ins(t, needs))
        cnt[0] += 1
        if bg and cnt[0] >= EVERY:
            cnt[0] = 0
            while bg:
                g = bg.pop(0)
                if isinstance(g, tuple): cnt[0] = -g[1]; break
                emit_all(g)
                if any(x.kind == 'vmem' for x in g): break
        lcnt[0] += 1
        if lq and lcnt[0] >= lcnt[1]:
            lcnt[0] = 0; emit_all([lq.pop(0)])
        return r
    def reduce8(r):
        V('v_add_f32_dpp v%d, v%d, v%d quad_perm:[1,0,3,2] row_mask:0xf bank_mask:0xf' % (r, r, r))
        V('v_add_f32_dpp v%d, v%d, v%d quad_perm:[2,3,0,1] row_mask:0xf bank_mask:0xf' % (r, r, r))
        V('v_add_f32_dpp v%d, v%d, v%d row_half_mirror row_mask:0xf bank_mask:0xf' % (r, r, r))
    def ln_block(blk, defer=False):
        X = XR + 36 * blk
        wa = [64, 76][blk & 1]
        for n in range(36):
            if n < 4: V('v_dot2_f32_bf16 v%d, v%d, s%d, 0' % (68 + n, X + n, ONE2), needs=[xl[blk][0]])
            else: V('v_dot2_f32_bf16 v%d, v%d, s%d, v%d' % (68 + n % 4, X + n, ONE2, 68 + n % 4), needs=[xl[blk][n // 4]])
        stamp('sum%d' % blk)
        V(f'v_add_u32 v77, s{XRO+blk}, v67')
        V('v_lshlrev_b32 v78, 4, v77')
        V('v_add_u32 v78, %d, v78' % RT4)
        V('v_add_f32 v68, v68, v69')
        V('v_add_f32 v70, v70, v71')
        V('v_add_f32 v68, v68, v70')
        V('v_and_b32 v101, 0x70, v77')
        V('v_mul_u32_u24 v101, 12, v101')
        reduce8(68)
        V('v_mul_f32 v68, 0x%x, v68' % f2u(-1.0 / 576))
        wr = []
        LAG = 2
        for n in range(36 + LAG + 1):
            if n < 36:
                t = 80 + 2 * (n % 8)
                V('v_dot2_f32_bf16 v%d, v%d, s%d, v68' % (t, X + n, LO))
                V('v_dot2_f32_bf16 v%d, v%d, s%d, v68' % (t + 1, X + n, HI))
            m = n - LAG
            if 0 <= m < 36:
                t = 80 + 2 * (m % 8)
                V('v_cvt_pk_bf16_f32 v%d, v%d, v%d' % (X + m, t, t + 1))
            m = n - LAG - 1
            if 0 <= m < 36:
                V('v_dot2_f32_bf16 v%d, v%d, v%d, %s' % (72 + m % 4, X + m, X + m, '0' if m < 4 else 'v%d' % (72 + m % 4)))
                if m % 4 == 3:
                    w = Ins('ds_write_b128 v%d, %s offset:%d' % (wa, vr(X + m - 3), (m // 4) * 2048)); wr.append(w)
                    if not defer: P(w)
        dwr = list(wr)
        V('v_lshl_add_u32 v101, v77, 2, v101')
        V('v_add_u32 v101, %d, v101' % RTB)
        V('v_add_f32 v72, v72, v73')
        V('v_add_f32 v74, v74, v75')
        V('v_add_f32 v72, v72, v74')
        V('v_mov_b32 v73, 0x%x' % f2u(1e-5))
        reduce8(72)
        V('v_fmac_f32 v73, 0x%x, v72' % f2u(1.0 / 576))
        V('v_rsq_f32 v96, v73')
        for t in (1, 2, 3): V('v_mov_b32 v%d, v96' % (96 + t))
        wr.append(P('ds_write_b128 v78, v[96:99]'))
        wr.append(P('ds_write_b32 v101, v96'))
        return wr, dwr
    slow = []
    nlab = [0]
    def alt_site(inline, other):
        nlab[0] += 1; n = nlab[0]
        slow.append(f'alt{n}:\n' + ''.join('    %s\n' % t for t in other) + f'    s_branch alt{n}_e\n')
        return [Ins(f's_cbranch_vccz alt{n}')] + inline + [Ins(f'alt{n}_e:')]
    def xn_reads(rho, per):
        def texts(r): return ['ds_read_b128 %s, v%d offset:%d' % (breg(ks, 2 * r + t), 65 + (ks & 1), t * 18432 + ks * 1024) for ks in range(18) for t in range(2)]
        rs = [Ins(t) for t in texts(rho)]; ot = texts(1 - rho)
        if rho == 0: return rs, [alt_site(rs[n:n + per], ot[n:n + per]) for n in range(0, 36, per)]
        out = []
        for n in range(0, 36, per):
            for sfx in ('', 'v', 'k'):
                slow.append(f'xs{n}{sfx}:\n' + ''.join('    %s\n' % t for t in ot[n:n + per]) + f'    s_branch xs{n}{sfx}_e\n')
            out.append(II(f's_bitcmp1_b32 s{ROT}, 1\ns_cbranch_scc1 xs{n}') + rs[n:n + per] + [Ins(f'xs{n}_e:')])
        slow.append('xs0v_e:\nxs4v_e:\nxs0k_e:\nxs4k_e:\n    s_endpgm\n')
        return rs, out
    P(f's_bitcmp0_b32 s{ROT}, 1')
    P('s_cselect_b64 vcc, -1, 0')
    w0, _ = ln_block(0); w1, _ = ln_block(1)
    stamp('ln01')
    P(Ins('s_barrier', needs=w0 + w1))
    r0, sites = xn_reads(0, 6)
    lq += sites; lcnt[1] = 24
    w2, d2 = ln_block(2, defer=True)
    emit_all(lq); lq.clear()
    P(Ins('s_barrier', needs=r0))
    lq += d2; lcnt[1] = 12
    w3, _ = ln_block(3)
    emit_all(lq); lq.clear()
    emit_all([g for g in bg if not isinstance(g, tuple)]); bg.clear()
    stamp('ln23')
    P(Ins('s_barrier', needs=w2 + w3 + slots[0].loads))
    r1, sites = xn_reads(1, 4)
    stamp('mf0')

    window = {}
    AH = 4; AHM = opt.get('ah', 6)
    def make_reads(fr, sidx, fi):
        w, o = divmod(phys[sidx] * SLOT, 65536)
        out = []
        if window.get(fr.base, 0) != w:
            d = (w - window.get(fr.base, 0)) * 65536
            out.append(Ins('v_add_u32 v%d, 0x%x, v%d' % (fr.base, d & 0xffffffff, fr.base)))
            window[fr.base] = w
        f = FR + 4 * (fi % 8)
        fr.reg = f
        fr.rd = [Ins('ds_read_b64_tr_b16 %s, v%d offset:%d' % (vr(f + 2 * h, 2), fr.base, o + fr.imm[h])) for h in range(2)]
        return [out + [fr.rd[0]], [fr.rd[1]]]
    def segment(s0, s1, fillers, bar_extra, first_loads=(), extra_need=None, hook=None, quiet=(), pre=()):
        frs = []; groups = []
        for s in range(s0, s1):
            for g in slots[s].groups:
                groups.append((s, len(frs), g))
                for f in g: frs.append((s, f))
        nm = sum(4 * len(g) for _, _, g in groups)
        gm = [[] for _ in range(nm)]; ga = [[] for _ in range(nm)]; gz = [[] for _ in range(nm)]
        used = [0] * nm; vmw = [0] * (nm + 16)
        mf = []; issued = 0; slot_start = {}
        ismem = lambda x: x.kind in ('ds', 'vmem')
        def put(k, items, cost=None):
            (gm if len(items) == 1 and ismem(items[0]) else ga)[k].extend(items)
            used[k] += min(2, sum(x.cost for x in items)) if cost is None else cost
        while issued < AH:
            s, f = frs[issued]
            emit_all(make_reads(f, s, issued)); issued += 1
        emit_all(list(pre))
        pend = [(-1, list(first_loads), ())]
        barpos = {}; vcand = set(); fv = set()
        for (s, f0, g) in groups:
            a = len(mf)
            slot_start.setdefault(s, a)
            n = 4 * len(g)
            for mt in range(4):
                for f in g: mf.append((s, f, mt, g))
            if a > 0: used[a - 1] += 1
            vcand.update(range(a + 1, a + n, 4))
            items = []
            while issued < min(len(frs), f0 + min(8, len(g) + AHM)) and frs[issued][0] <= s + 1:
                s2, f2 = frs[issued]
                r = make_reads(f2, s2, issued)
                if frs[issued - 1][0] != s2: r[0] = ['BAR', s2] + r[0]
                items += r; issued += 1
            for q, it in enumerate(items):
                k = a + q * n // len(items)
                if it[0] == 'BAR':
                    s2 = it[1]
                    ex = bar_extra.get(s2, ((), ()))
                    b = Ins('s_barrier'); b.needs = ('LAZY', s2, list(ex[0]) + ([x for f in g for x in f.rd] if k == a else []))
                    gz[k - 1].append(b); used[k - 1] += 1 if k == a else 2
                    barpos[s2] = k - 1
                    pend.append((k - 1, list(extra_loads.get(s2, [])) + ([load_at[s2]] if s2 in load_at else []), ex[1]))
                    it = it[2:]
                if len(it) == 2: put(max(k - 1, 0), it[:1]); it = it[1:]
                put(k, it)
        class Chain:
            def __init__(c, items, start): c.q = list(items); c.rel = start; c.last = -1; c.cap = 2
        dl = []; dead = {}
        for (k, lds_, post) in pend:
            dl.append(('ATK', k + 1)); dl += list(post)
            for n in lds_:
                for g in dma_groups(n):
                    for x in g:
                        dl.append(x)
                        if x.kind == 'vmem': dead[id(x)] = (n, barpos.get(n, 10 ** 9 if n < NS else nm + opt.get('wdl', -100))); svc[id(x)] = SV * (2 if len(slots[n].groups) == 2 else 1)
        chains = [Chain(dl, 0)] + [Chain(lst, slot_start[s] + off) for (s, off, lst) in fillers if lst]
        leads = {}
        pfree = 0.0
        def head(c, k):
            while c.q and isinstance(c.q[0], tuple):
                it = c.q[0]
                if c.rel > k: return None
                if opt.get('dbg') and it[0] in ('AT', 'BY'):
                    cs = max(x for x in slot_start if slot_start[x] <= k); print('   marker', it, 'reached at slot', cs, '+', k - slot_start[cs], file=sys.stderr)
                if it[0] == 'AT': c.rel = slot_start[it[1]] + it[2]
                elif it[0] == 'ATK': c.rel = it[1]
                elif it[0] == 'BY': assert k <= slot_start[it[1]], ('filler late', it, k, slot_start[it[1]])
                elif it[0] == 'CAP': c.cap = it[1]
                elif it[0] == 'SKIP': c.rel = k + it[1]
                c.q.pop(0)
            if not c.q or c.rel > k: return None
            return c.q[0]
        for k in range(nm):
            if not gm[k] and used[k] < 2:
                cand = []
                for n_, c in enumerate(chains):
                    x = head(c, k)
                    if x is None or isinstance(x, list) or not ismem(x) or c.last >= k: continue
                    if x.kind == 'ds':
                        if used[k] + x.cost > 2: continue
                    elif id(x) not in loud and pfree - k > opt.get('bl', 1.5): continue
                    pr = 1
                    if n_ == 0: pr = 0 if dead.get(id(x), (0, 0))[1] - k < opt.get('crit', 72) else 2
                    cand.append((pr, n_))
                if cand:
                    c = chains[min(cand)[1]]; x = c.q.pop(0); c.last = k
                    put(k, [x], x.cost if x.kind == 'ds' else 1)
                    if x.kind == 'vmem':
                        pfree = max(pfree, k + svc[id(x)]) if id(x) in loud else max(pfree, k) + svc.get(id(x), SV)
                        if id(x) in dead and dead[id(x)][1] < 10 ** 9: leads[dead[id(x)][0]] = dead[id(x)][1] - k
            for c in chains:
                while True:
                    x = head(c, k)
                    if x is None or (not isinstance(x, list) and ismem(x)): break
                    it = x if isinstance(x, list) else [x]
                    cst = min(2, sum(y.cost for y in it))
                    if used[k] + cst > c.cap: break
                    c.q.pop(0); c.last = k; ga[k].extend(it); used[k] += cst
        left = [(x if isinstance(x, list) else [x]) for c in chains for x in c.q if not isinstance(x, tuple)]
        print('DMA leads:', ' '.join('%d:%d' % x for x in sorted(leads.items())), file=sys.stderr)
        assert min(v for n_, v in leads.items() if n_ < NS) > 30
        for k, (s, f, mt, g) in enumerate(mf):
            if hook: hook(k, s)
            c = f.acc(mt)
            nd = [x for f_ in g for x in f_.rd] + ([extra_need(f, mt)] if extra_need else [])
            P(Ins('v_mfma_f32_16x16x32_bf16 %s, %s, %s, %s' % (vr(c), vr(f.reg), f.b(mt), '0' if f.first else vr(c)), needs=nd))
            for x in gz[k]: x.needs = list(slots[x.needs[1]].loads) + list(x.needs[2])
            emit_all(gm[k] + ga[k] + gz[k])
        return left

    def mul(d, a_, b_): return Ins('v_mul_f32 v%d, v%d, v%d' % (d, a_, b_))
    def cvt(d, a_, b_): return Ins('v_cvt_pk_bf16_f32 v%d, v%d, v%d' % (d, a_, b_))
    kv_stores = []
    def qkv_epi():
        rs = [Ins('ds_read_b128 %s, v%d offset:%d' % (vr(SP + 4 * mt), vRS, 256 * mt)) for mt in range(4)]
        L = list(rs) + [('SKIP', 6)]
        for mp in range(2):
            if mp: L += II(f's_add_u32 s{QM}, s{QM}, {BLK}')
            for c in range(2):
                if c: L += II(f's_add_u32 s{T2}, s{QM}, s{QC}')
                for ft in range(2):
                    te = ACCA + ((2 * c + ft) * 4 + 2 * mp) * 4; to = te + 4
                    for r in range(8):
                        x = mul(te + r, te + r, SP + 8 * mp + r); x.needs = [rs[2 * mp + r // 4]]; L.append(x)
                    L += [cvt(te, te, te + 1), cvt(te + 1, te + 2, te + 3), cvt(te + 2, to, to + 1), cvt(te + 3, to + 2, to + 3)]
                    st = Ins(f'buffer_store_dwordx4 {vr(te)}, v{vQS[0]}, {sr(SW)}, s{T2 if c else QM} offen offset:{1024*ft} sc1')
                    L.append(st); kv_stores.append(st)
        return L
    def l1_epi():
        L = II(f's_lshl_b32 s{T3}, s{FH}, 3\ns_add_u32 s{T3}, s{T3}, {HLONE}\nv_add_u32 v{SP+11}, s{T3}, v{vHW}')
        ws_ = []
        for mt in range(4):
            g0 = ACCA + mt * 4; u0 = ACCA + (4 + mt) * 4
            L += [mul(g0 + t, g0 + t, u0 + t) for t in range(4)] + [cvt(u0, g0, g0 + 1), cvt(u0 + 1, g0 + 2, g0 + 3)]
            w = Ins(f'ds_write_b64 v{SP+11}, {vr(u0,2)} offset:{1024*mt}'); L.append(w); ws_.append(w)
        L2 = II(f's_lshl_b32 s{T3}, s{FH}, 11\ns_add_u32 s{T3}, s{T3}, {HLONE}\nv_add_u32 v{SP+11}, s{T3}, v{vHW}')
        rd = [Ins(f'ds_read_b128 {vr(ACCA+4*m)}, v{SP+11} offset:{1024*m}') for m in range(2)]
        sts = [Ins(f'buffer_store_dwordx4 {vr(ACCA+4*m)}, v{vL16}, {sr(SW)}, s{HLN} offen offset:{1024*m} sc1', needs=[rd[m]]) for m in range(2)]
        return L, sts, ws_, L2 + rd + [('SKIP', 10)] + sts
    hw = {}
    def pair_epi(acc, q):
        L = II(f's_add_u32 s{ST}, s{HS}, {q*2*8192}\ns_lshl_b32 s{T1}, s{FH}, 13\ns_add_u32 s{T1}, s{T1}, {hphys[q]*SLOT}\nv_add_u32 v{SP+11}, s{T1}, v{vHW}')
        sts = []; hw[q] = []
        for mt in range(4):
            g0 = acc + mt * 4; g1 = acc + (4 + mt) * 4; u0 = acc + (8 + mt) * 4; u1 = acc + (12 + mt) * 4
            L += [mul(g0 + t, g0 + t, u0 + t) for t in range(4)]
            L += [mul(g1 + t, g1 + t, u1 + t) for t in range(4)]
            L += [cvt(u0, g0, g0 + 1), cvt(u0 + 1, g0 + 2, g0 + 3), cvt(u0 + 2, g1, g1 + 1), cvt(u0 + 3, g1 + 2, g1 + 3)]
            st = Ins(f'buffer_store_dwordx4 {vr(u0)}, v{vL16}, {sr(SW)}, s{ST} offen offset:{1024*mt} sc1')
            w = Ins(f'ds_write_b128 v{SP+11}, {vr(u0)} offset:{1024*mt}', cost=2)
            L += [st, w]; sts.append(st); hw[q].append(w)
        return L, sts
    def d_epi(acc, q, cs=(0, 1)):
        L = []
        for c in cs:
            L.append(Ins(f's_add_u32 s{ST}, s{PS}, {(2*q+c)*2*8192}'))
            for mt in range(4):
                t0 = acc + (8 * c + mt) * 4; t1 = acc + (8 * c + 4 + mt) * 4
                L += [cvt(t0, t0, t0 + 1), cvt(t0 + 1, t0 + 2, t0 + 3), cvt(t0 + 2, t1, t1 + 1), cvt(t0 + 3, t1 + 2, t1 + 3)]
                L.append(Ins(f'buffer_store_dwordx4 {vr(t0)}, v{vL16}, {sr(SW)}, s{ST} offen offset:{1024*mt} sc1'))
        return L
    def poll_check(name, ld, test):
        g = [Ins(t, needs=[ld] if n == 0 else []) for n, t in enumerate(test)]
        g.append(Ins('s_cbranch_scc0 %s_slow' % name))
        g.append(Ins('%s_ok:' % name))
        S = Prog()
        S.label('%s_slow' % name)
        S('s_mov_b32 s%d, 400000' % SPN)
        S.label('%s_loop' % name)
        S('s_sleep 2')
        S(ld.text)
        S('s_waitcnt vmcnt(0)')
        S('s_sub_u32 s%d, s%d, 1' % (SPN, SPN))
        S('s_cbranch_scc1 %s_ok' % name)
        for t in test: S(t)
        S('s_cbranch_scc0 %s_loop' % name)
        S('s_branch %s_ok' % name)
        slow.append(S.text())
        return g
    def setflag(n, reg):
        return II(f'v_mov_b32 v{reg}, {n}\nbuffer_store_dword v{reg}, v{vFL}, {sr(SW)}, s{MYF} offen sc1')
    def hpoll(n, reg):
        ld = T(f'buffer_load_dword v{reg}, off, {sr(SW)}, s{PF} sc1')
        return ld, poll_check('h%d' % n, ld, [f'v_readfirstlane_b32 s{T2}, v{reg}', f's_cmp_ge_u32 s{T2}, {n}'])

    qe = qkv_epi()
    pe = [pair_epi(PACC[q], q) for q in range(4)]
    le = l1_epi()
    VREG = [ACCA + 4 * n for n in range(16)] + [SP + 4 * n for n in range(4)]
    G0M, G1M = 96, 98
    late = II(f'''s_mov_b32 s{SQ}, s8
    s_mov_b32 s{SQ+1}, s9
    s_mov_b32 s{SQ+2}, 0x{576*1152:x}
    s_mul_i32 s{T1}, s{T0}, {BLK//2}
    s_mul_i32 s{T2}, s{J}, 2304
    s_add_u32 s{T1}, s{T1}, s{T2}
    s_mov_b32 s{G0M}, 0xffff
    s_mov_b32 s{G0M+1}, 0
    s_mov_b32 s{G1M}, 0xffff0000
    s_mov_b32 s{G1M+1}, 0''')
    for a_ in range(5):
        late += II(f's_add_u32 s{KO+a_}, s{T1}, 0x{KOFF + (2*a_-9)*BLK:x}')
        if a_ < 4:
            late.append(II(f's_cmp_ge_u32 s{T0}, {16-4*a_}\ns_cselect_b32 s{KO+a_}, s{KO+a_}, 0x{OOB:x}\ns_cselect_b32 s{KB+a_}, 0, 0xf149'))
    a0, a1, a2, a3 = SP, SP + 1, SP + 2, SP + 3
    vTK, vQR, vTD_, vR0, vR1 = SP + 4, SP + 5, QF + 12, SP + 7, SP + 8
    late += II(f'''v_and_b32 v{a0}, 15, v{vL}
    v_lshrrev_b32 v{a1}, 4, v{vL}
    v_mov_b32 v{a3}, 0x{OOB:x}
    s_mul_i32 s{T2}, s{FH}, 1280
    s_add_u32 s{T3}, s{T2}, {BLK+144*256}
    v_add_u32 v{vKM}, s{T3}, v{vL16}
    v_lshlrev_b32 v{a1}, 4, v{a1}
    v_lshl_add_u32 v{a1}, v{a0}, 6, v{a1}
    s_add_u32 s{T3}, s{T2}, {BLK+73728}
    v_add_u32 v{vVM}, s{T3}, v{a1}
    s_lshl_b32 s{T2}, s{FH}, 7
    s_add_u32 s{T2}, s{T2}, {BLK+73728+1024}
    v_add_u32 v{a1}, s{T2}, v{a1}
    v_cmp_gt_u32 vcc, 2, v{a0}
    s_lshl_b32 s{T2}, s{FH}, 2
    s_add_u32 s{T2}, s{T2}, {BLK+148*256}
    v_lshlrev_b32 v{a2}, 4, v{a0}
    v_cndmask_b32 v{vVR}, v{a3}, v{a1}, vcc
    v_add_u32 v{a2}, s{T2}, v{a2}
    v_cmp_gt_u32 vcc, 32, v{vL}
    v_subrev_u32 v{a1}, {BLK-8}, v{a2}
    v_cndmask_b32 v{vR0}, v{a3}, v{a2}, {sr(G0M,2)}
    v_cndmask_b32 v{vQR}, v{a3}, v{a2}, vcc
    v_cndmask_b32 v{vR1}, v{a3}, v{a1}, {sr(G1M,2)}
    v_cndmask_b32 v{vKR}, v{vR0}, v{a1}, {sr(G1M,2)}
    v_and_b32 v{a0}, 3, v{a0}
    s_mul_i32 s{T2}, s{J}, 2304
    s_sub_u32 s{T2}, {BLK+110592}, s{T2}
    v_mov_b32 v{a2}, s{T2}
    v_cmp_eq_u32 vcc, 2, v{a0}
    v_mul_u32_u24 v{a0}, 3641, v{vL}
    v_lshrrev_b32 v{a0}, 16, v{a0}
    v_cndmask_b32 v{vVR}, v{vVR}, v{a2}, vcc
    v_lshlrev_b32 v{a1}, 7, v{vL}
    v_cmp_gt_u32 vcc, 41, v{vL}
    v_mul_u32_u24 v{a0}, {36864-18*128}, v{a0}
    v_lshl_add_u32 v{a0}, v{vL}, 7, v{a0}
    v_cndmask_b32 v{vTD_}, v{a3}, v{a1}, vcc
    v_cmp_gt_u32 vcc, 54, v{vL}
    s_nop 0
    s_nop 0
    v_cndmask_b32 v{vTK}, v{a3}, v{a0}, vcc''')
    kvld = T(f'buffer_load_dwordx4 {vr(SP+12)}, off, {sr(SB)}, s{DB} sc1', 32)
    kvtest = [f'v_readfirstlane_b32 s{T2}, v{SP+12}', f'v_readfirstlane_b32 s{T3}, v{SP+13}', f'v_readfirstlane_b32 s{T1}, v{SP+14}',
              f's_or_b32 s{T2}, s{T2}, s{N0}', f's_or_b32 s{T3}, s{T3}, s{N1}', f's_and_b32 s{T2}, s{T2}, s{T3}',
              f's_and_b32 s{T2}, s{T2}, s{T1}', f's_cmp_eq_u32 s{T2}, 0xffff']
    kv2pre = II(f'''v_lshlrev_b32 v{SP+9}, 7, v{vL}
    v_cmp_gt_u32 vcc, 48, v{vL}
    s_lshl_b32 s{DB}, s{I}, 11
    s_add_u32 s{DB}, s{DB}, 0x{FOFF-4096:x}
    v_cndmask_b32 v{SP+9}, v{a3}, v{SP+9}, vcc
    s_lshl_b32 s{N1}, s{N1}, 16
    s_or_b32 s{N1}, s{N1}, s{N0}''')
    kv2ld = T(f'buffer_load_dword v{SP+12}, v{SP+9}, {sr(SW)}, s{DB} offen sc1', 32)
    kv2test = [f'v_cmp_le_u32 vcc, 1, v{SP+12}', 's_nop 1', f's_or_b32 s{T2}, vcc_lo, s{N1}', f's_or_b32 s{T3}, vcc_hi, 0xffff0000', f's_and_b32 s{T2}, s{T2}, s{T3}', f's_cmp_eq_u32 s{T2}, -1']
    kvpre = II(f'''s_lshl_b32 s{T3}, s{I}, 2
    s_add_u32 s{T3}, s{T3}, s{Wv}
    s_mul_i32 s{T3}, s{T3}, {BLK}
    s_mul_i32 s{T2}, s{J}, 2304
    s_add_u32 s{T3}, s{T3}, s{T2}
    s_add_u32 s{T3}, s{T3}, 0x{KOFF:x}''')
    kvtouch = [T(f'buffer_load_dword v0, v{vTK}, {sr(SW)}, s{T3} offen')] if opt.get('kvt', 0) else []
    if JX > 2 and opt.get('kvt', 0):
        kvtouch += II(f's_sub_u32 s{T3}, s{T3}, {8*BLK}\ns_and_b32 s{T2}, s{I}, {32//JX-2}') + \
                   [II(f's_or_b32 s{T2}, s{T2}, s{N0}\ns_cselect_b32 s{T3}, 0x{OOB:x}, s{T3}'), T(f'buffer_load_dword v0, v{vTK}, {sr(SW)}, s{T3} offen')]
    kvtouch += [II(f's_getpc_b64 {sr(SB,2)}') + [Ins('K1_pc2:')]] + II(f'''s_mov_b32 s{SB+2}, code_end-K1_pc2
    s_and_b32 s{T2}, s{NN}, 7
    s_lshl_b32 s{T2}, s{T2}, 2
    s_add_u32 s{T2}, s{T2}, s{Wv}
    s_mul_i32 s{T2}, s{T2}, {10*128}
    v_lshlrev_b32 v{SP}, 7, v{vL}
    v_cmp_gt_u32 vcc, 10, v{vL}
    s_nop 0
    s_nop 0
    v_cndmask_b32 v{SP}, v{a3}, v{SP}, vcc''') + [T(f'buffer_load_dword v0, v{SP}, {sr(SB)}, s{T2} offen', 32)]
    qld = []; ql = []
    for a_ in range(2):
        l0 = Ins(f'buffer_load_dwordx4 {vr(QF+4*a_)}, v{vKM}, {sr(SW)}, s{T3} offen sc1')
        l1 = [Ins(f'buffer_load_dword v{QF+8+2*a_+h}, v{vQR}, {sr(SW)}, s{T3} offen offset:{8*h} sc1') for h in range(2)]
        ql += [Ins(f's_add_u32 s{T3}, s{KO+4}, {(a_*BLK - 36864) & 0xffffffff}'), l0, l1[0], l1[1]]; qld += [[l0, l1[0]], [l0, l1[1]]]
    km = []; kr = []; kl = []; vld = []; vl = []
    PACE = ('SKIP', 0)
    for b_ in range(11):
        so = Ins(f's_add_u32 s{T3}, s{KO+min(b_//2,4)}, {(b_-2*min(b_//2,4))*BLK}')
        r_ = Ins(f'buffer_load_dword a{6*b_}, v{vR0 if b_ == 0 else (vR1 if b_ == 10 else vKR)}, {sr(SW)}, s{T3} offen sc1'); kr.append(r_)
        kl += [so, r_, PACE]
        lo_, hi_ = b_ // 2, (b_ - 1) // 2
        nm_ = lambda q_: f's{KB+q_}' if 0 <= q_ < 4 else '0'
        if b_ <= 8: kl += II(f's_pack_ll_b32_b16 s{T2}, {nm_(lo_)}, {nm_(hi_)}\nv_accvgpr_write_b32 a{6*b_+1}, s{T2}')
        else: kl += II(f'v_accvgpr_write_b32 a{6*b_+1}, 0')
        if b_ < 10:
            m_ = Ins(f'buffer_load_dwordx4 {ar(6*b_+2)}, v{vKM}, {sr(SW)}, s{T3} offen sc1'); km.append(m_)
            kl += [m_, PACE]
    kld = [[km[u // 2], kr[(u + 1) // 2]] for u in range(20)]
    for v in range(10):
        a_ = Ins(f'buffer_load_dwordx4 {vr(VREG[2*v])}, v{vVM}, {sr(SW)}, s{T3} offen sc1')
        b_ = Ins(f'buffer_load_dwordx4 {vr(VREG[2*v+1])}, v{vVR}, {sr(SW)}, s{T3} offen sc1')
        vl.append([Ins(f's_add_u32 s{T3}, s{KO+v//2}, {(v%2)*BLK}'), a_, PACE, b_, PACE]); vld += [a_, b_]
    def vfix(v): return [Ins(f'v_or_b32 v{VREG[2*v+1]+r}, v{vONES}, v{VREG[2*v+1]+r}', needs=[vld[2 * v + 1]]) for r in range(4)]
    pfd = [T(f'buffer_load_dword v0, v{vTD_}, {sr(SD)}, s{PFD} offen offset:2048' + NT, opt.get('qd', 120))]
    if opt.get('nod'): pfd = []
    pfw = II(f's_mul_i32 s{T2}, s2, {21*128}') + [II(f's_cmp_eq_u32 s{Wv}, 0\ns_cselect_b32 s{T2}, s{T2}, 0x{OOB:x}'), T(f'buffer_load_dword v0, v{vTD_}, {sr(SQ)}, s{T2} offen')]
    if opt.get('nod'): pfw = []
    h1ld, h1chk = hpoll(2, vPFP)
    e_ = opt.get('ev', [8, 0, 26, 29, 38])
    flat = lambda l: [y for x in l for y in x]
    NV1 = opt.get('nv1', 3)
    fill1 = [(sl, 0, stamp('slot%d' % sl, True)) for sl in range(NSEG1)] + [
        (0, 1, flat([[x, ('SKIP', 6)] for x in sites[2:]])),
        (max(GU2 - 1, 0), 0, (pf_gu(VLS[1], QF + 4, sr(DUM, 2), opt.get('qg', 110))[:-1] + [('AT', GU2, 0)] + pf_gu(VLS[1], QF + 4, sr(DUM, 2), opt.get('qg', 110))[-1:]) if GU2 else []),
        (0, 2, late0 + late0b + [('BY', 9), ('AT', 9, 4)] + qe + [('BY', 16)] + late + [kvld, ('AT', 18, 4)]
         + pe[0][0] + [('BY', 24), poll_check('kv', kvld, kvtest)] + kv2pre + [('AT', 24, 4)]
         + le[0] + [('BY', 26), ('AT', e_[2], 0), kv2ld] + [('AT', 27, 0)] + le[3] + [('AT', e_[3] - 1, 8), poll_check('kw', kv2ld, kv2test)] + kvpre + [('AT', e_[3], 0)] + pfd + pfw + kvtouch + [('BY', 33), ('AT', 33, 4)]
         + pe[1][0] + ql + [('BY', 42), ('AT', 42, 4)]
         + pe[2][0] + [('AT', 44, 0)] + kl + flat(vl[:NV1]) + [h1ld]),
    ]
    bx1 = {
        3: (r1, []),
        opt.get('kvf', 17): (kv_stores + [guard, ones_st], setflag(1, SP + 10)),
        27: (le[2], []),
        47: (pe[0][1] + le[1] + pe[1][1] + pe[2][1], setflag(2, SP + 10)),
    }
    extra_loads[3] = [5, 6, 7, 8, load_at.pop(2)]
    xmap = {}
    for n, x in enumerate(r1):
        ks = n // 2
        for mt in range(4): xmap[breg(ks, mt)] = r1[2 * ks + 1]
    mark = {}
    def hook(k, s):
        if k == 0:
            P(f's_cmp_ge_u32 s{J}, 9')
            P('s_cbranch_scc1 qkv_v')
            mark['a'] = len(P.out)
        if s == 9 and 'b' not in mark:
            mark['b'] = len(P.out)
            P.label('qkv_e')
    left = segment(0, NSEG1, fill1, bx1, first_loads=list(range(NPRE, 5)), hook=hook, pre=sites[:2], extra_need=lambda f, mt: xmap[f.b(mt)])
    qrd = set(id(x) for n in range(9) for g in slots[n].groups for f in g for x in f.rd)
    K = Prog(); K.label('qkv_k'); nb_ = 0
    for x in P.out[mark['a']:mark['b']]:
        if x.kind == 'mfma' or id(x) in qrd or x.op == 's_nop': continue
        t = x.text
        if x.kind == 'label': K.label(t[:-1].replace('_e', 'k_e')); continue
        if x.op == 's_cbranch_scc1': t += 'k'
        if x.op == 's_waitcnt':
            if 'vmcnt' not in t: continue
            t = t.split(' lgkmcnt')[0]
        if x.op == 's_barrier':
            nb_ += 1
            if nb_ <= 3: K('s_waitcnt lgkmcnt(0)')
        K(t)
    K('s_waitcnt lgkmcnt(0)'); K('s_nop 4'); K('s_branch qkv_e')
    slow.append(K.text())
    alt = ['qkv_v:', f'    s_cmp_ge_u32 s{J}, 14', '    s_cbranch_scc1 qkv_k'] if opt.get('skip', 1) else ['qkv_v:']
    for x in P.out[mark['a']:mark['b']]:
        t = x.text
        if x.kind == 'label': alt.append(t.replace('_e:', 'v_e:')); continue
        if x.op == 's_cbranch_scc1': t += 'v'
        if x.kind == 'mfma':
            o = [y.strip() for y in t[len(x.op):].split(',')]
            t = '%s %s, %s, %s, %s' % (x.op, o[0], o[2], o[1], o[3])
        alt.append('    ' + t)
    alt.append('    s_branch qkv_e')
    slow.append('\n'.join(alt) + '\n')
    print('left after seg1:', len(left), file=sys.stderr)
    stamp('g1end')

    SREG = [80] + [ACCB + (tl * 4 + mt) * 4 for mt in range(4) for tl in (0, 1, 3, 2)]
    PR = [84, 88]; OM, OR_ = 96, 100; MF, ML = 104, 108
    noskip = lambda l: [x for x in l if not isinstance(x, tuple)]
    def qbuild(t):
        q = QF + 2 * t
        P(Ins(f'v_mov_b32 v{QW+2}, v{q}', needs=qld[t]))
        P(f'v_mov_b32 v{QW+3}, v{q+1}')
        P(f'v_cndmask_b32 v{QW}, 0, v{QF+8+t}, {sr(G0M,2)}')
        P(f'v_cndmask_b32 v{QW+4}, 0, v{QF+8+t}, {sr(G1M,2)}')
    P('v_mov_b32 v%d, 0x%x' % (vTA, NEG))
    P(f'v_mov_b32 v{QW+1}, 0x3f80')
    P(f'v_mov_b32 v{QW+5}, 0x3f800000')
    qbuild(0)
    pq = list(pe[3][0])
    for r in range(4):
        P('v_cmp_lt_i32 vcc, %d, v%d' % (-r, vDG))
        P(pq.pop(0)); P(pq.pop(0))
        P('v_cndmask_b32 v%d, v%d, 0, vcc' % (MF + r, vTA))
        P('v_cndmask_b32 v%d, 0, v%d, vcc' % (ML + r, vTA))
    P(f's_cmp_eq_u32 s{FH}, 0')
    P('s_cselect_b64 vcc, -1, 0')
    P(f's_xor_b32 s{N0}, s{C}, 0x80000000')
    hld = {}
    def hload(k):
        if isinstance(k, tuple):
            ka, kb = k
            pre = II(f's_mul_i32 s{T2}, s{FH}, {(ka-kb)*8192}\ns_add_u32 s{T2}, s{T2}, s{HL}\ns_add_u32 s{T2}, s{T2}, {(17-ka)*8192}')
            tx = lambda kk, mt: f'buffer_load_dwordx4 {breg(hpos[kk], mt)}, v{vL16}, {sr(SW)}, s{T2} offen offset:{1024*mt} sc1'
            ld = [Ins(tx(ka, mt)) for mt in range(4)]
            hld[ka] = [ld[3]] * 4; hld[kb] = [ld[3]] * 4
            if ka == kb: return [pre + ld[:1], ld[1:2], ld[2:3], ld[3:]]
            return [(pre if h == 0 else []) + alt_site(ld[2*h:2*h+2], [tx(kb, 2*h), tx(kb, 2*h+1)]) for h in range(2)]
        base = HLONE if k == 8 else hphys[k // 2] * SLOT + (k & 1) * 8192
        hld[k] = [Ins(f'ds_read_b128 {breg(hpos[k], mt)}, v{vONES} offset:{1024*mt}') for mt in range(4)]
        return [II(f'v_add_u32 v{vONES}, {base}, v{vHW}') + hld[k][:2], hld[k][2:]]
    def qk(t, sg):
        u = t + sg
        c = vr(MF) if sg == 0 else (vr(ML) if sg == 16 else '0')
        return Ins('v_mfma_f32_16x16x32_bf16 %s, %s, %s, %s' % (vr(SREG[sg]), ar(3 * u + (u & 1)), vr(QW + 2 * (u & 1)), c), needs=kld[u])
    def mx(sg, dst):
        s = SREG[sg]
        if sg == 0: return II('v_max3_f32 v%d, v%d, v%d, v%d\nv_max_f32 v%d, v%d, v%d' % (dst, s, s + 1, s + 2, dst, dst, s + 3))
        return II('v_max3_f32 v%d, v%d, v%d, v%d\nv_max3_f32 v%d, v%d, v%d, v%d' % (dst, dst, s, s + 1, dst, dst, s + 2, s + 3))
    lk = [x for x in left if any(y in km or y in kr for y in x)]
    if lk:
        n = left.index(lk[-1]) + 1; emit_all(left[:n]); left = left[n:]
    P(qk(0, 0))
    nq = 1; avail = 1; nmx = 0
    while pq:
        x = pq.pop(0); P(x)
        if x.kind == 'ds': avail += 4
        elif nq < avail and len(pq) % 2 == 0: P(qk(0, nq)); nq += 1
    def bunch(l):
        out = []; cur = []
        for x in l:
            cur += x
            if any(y.kind == 'vmem' for y in x): out.append(cur); cur = []
        assert not cur
        return out
    isdma = lambda x: any(' lds' in y.text or f's{OFF},' in y.text.split()[1] or 'm0' in y.text or f's{BD},' in y.text.split()[1] for y in x)
    ldma = bunch([x for x in left if isdma(x)])
    lv = bunch([x for x in left if not isdma(x)] + [[x] for v in range(NV1, 10) for x in noskip(vl[v])])
    while nq < 17:
        P(qk(0, nq)); nq += 1
        emit_all(mx(nmx, vMN)); nmx += 1
    while nmx < 17:
        if len(lv) > 12 and nmx % 2: emit_all(lv.pop(0))
        emit_all(mx(nmx, vMN)); nmx += 1
    while len(lv) > 12: emit_all(lv.pop(0))
    qbuild(1)
    stamp('attk')
    ow = []
    def o_epi(t):
        P('v_rcp_f32 v%d, v%d' % (vTA, OR_ + 2))
        for r in range(4): P(mul(OM + r, OM + r, vTA))
        for r in range(2): P(mul(OR_ + r, OR_ + r, vTA))
        P(cvt(QF + 2 * t, OM, OM + 1)); P(cvt(QF + 2 * t + 1, OM + 2, OM + 3)); P(cvt(QF + 8 + t, OR_, OR_ + 1))
    ofl = II(f'''s_lshl_b32 s{T2}, s{FH}, 3
    s_add_u32 s{T2}, s{T2}, {HLONE}
    v_add_u32 v{vTB}, s{T2}, v{vHW}
    s_lshl_b32 s{T2}, s{RG}, 9
    s_lshl_b32 s{T3}, s{FH}, 2
    s_add_u32 s{T2}, s{T2}, s{T3}
    s_add_u32 s{T2}, s{T2}, {RT4}
    v_lshlrev_b32 v{vTA}, 3, v{vL}
    v_add_u32 v{vMX}, 4096, v{vTA}
    v_cndmask_b32 v{vTA}, v{vMX}, v{vTA}, {sr(G0M,2)}
    v_add_u32 v{vTA}, s{T2}, v{vTA}''')
    for t in range(4):
        ow += [Ins(f'ds_write_b64 v{vTB}, {vr(QF+2*t,2)} offset:{1024*t}'), Ins(f'ds_write_b32 v{vTA}, v{QF+8+t} offset:{128*t}')]
    ofl += ow
    h2ld, h2chk = hpoll(3, vPFP)
    hplan = opt.get('hplan', {0: [0, 1, 2, 3, 4, 5], 1: [(16, 17), (14, 15), (12, 13), (9, 9)], 2: [(17, 16), (15, 14), (13, 12), 8], 3: [(10, 11), (11, 10)]})
    if opt.get('plain', 1): hplan = {0: [0, 1, 2, 3, 4, 5], 1: [(16, 16), (17, 17), (14, 14), (15, 15)], 2: [(12, 12), (13, 13), (9, 9), 8], 3: [(10, 10), (11, 11)]}
    for t in range(4):
        stamp('att%d' % t)
        P('v_mov_b32 v%d, v%d' % (vTA, vMN))
        P('v_permlane16_swap_b32 v%d, v%d' % (vTA, vMN))
        P('v_max_f32 v%d, v%d, v%d' % (vMN, vMN, vTA))
        P('v_mov_b32 v%d, v%d' % (vTA, vMN))
        P('v_permlane32_swap_b32 v%d, v%d' % (vTA, vMN))
        P('v_max_f32 v%d, v%d, v%d' % (vMN, vMN, vTA))
        P(f'v_mul_f32 v{vMX}, s{N0}, v{vMN}')
        if t == 1:
            P(Ins('s_barrier', needs=pe[3][1] + hw[3] + [x for k in range(6) for x in hld[k]]))
            ad = bunch(flat([dma_groups(n) for n in att_loads]))
            emit_all(setflag(3, vPFS))
            emit_all(h1chk)
        if t == 3:
            P(Ins('s_barrier', needs=slots[NSEG1].loads + hld[8]))
            emit_all(h2chk)
        bq = flat([hload(k) for k in hplan[t]])
        def mix(a_, b_):
            out = []; a_ = list(a_); b_ = list(b_)
            while a_ or b_:
                if a_: out.append(a_.pop(0))
                if b_: out.append(b_.pop(0))
            return out
        if t == 0: bq = mix(lv + ldma, bq)
        else:
            na = [0, 4, 6, 10][t]
            bq = mix(bq, ad[:na]) if t < 3 or opt.get('plain', 1) else bq[:2] + ad[:na] + bq[2:]
            ad = ad[na:]
        ppv = []; pqk = []; pmx = []
        for b in range(9):
            v = (t >> 1) + b
            sgs = [2 * v - t, 2 * v + 1 - t]
            val = [sg for sg in sgs if 0 <= sg <= 16]
            p = PR[b % 2]
            for sg in val:
                for r in (0, 2):
                    s = SREG[sg] + r
                    P(f'v_pk_fma_f32 {vr(s,2)}, {vr(s,2)}, {sr(C,2)}, {vr(vMX,2)} op_sel_hi:[1,0,0]')
            mfs = ppv + [qk(t + 1, g_) for g_ in pqk]
            nb = (len(bq) + (8 - b)) // (9 - b)
            def withmem(x):
                nonlocal nb
                g = []
                if nb: g = bq.pop(0); nb -= 1
                n0 = 0
                while n0 < len(g) and g[n0].kind in ('salu', 'valu') and not g[n0].op.startswith('s_cbranch'): n0 += 1
                emit_all(g[:n0]); P(x); emit_all(g[n0:])
            for sg in val:
                for r in range(4):
                    P('v_exp_f32 v%d, v%d' % (SREG[sg] + r, SREG[sg] + r))
                    if mfs: withmem(mfs.pop(0))
            while mfs: withmem(mfs.pop(0))
            nb += 1
            for g_ in pmx: emit_all(mx(g_, vMN))
            for hh, sg in enumerate(sgs):
                if sg in val:
                    s = SREG[sg]
                    P(cvt(p + 2 * hh, s, s + 1)); P(cvt(p + 2 * hh + 1, s + 2, s + 3))
                else:
                    P('v_mov_b32 v%d, 0' % (p + 2 * hh)); P('v_mov_b32 v%d, 0' % (p + 2 * hh + 1))
            for _ in range(nb - 1): emit_all(bq.pop(0))
            pmx = pqk; pqk = val if t < 3 else []
            ppv = [Ins('v_mfma_f32_16x16x32_bf16 %s, %s, %s, %s' % (vr(OM), vr(VREG[2 * v]), vr(p), '0' if b == 0 else vr(OM)), needs=[vld[2 * v]]),
                   Ins('v_mfma_f32_16x16x32_bf16 %s, %s, %s, %s' % (vr(OR_), vr(VREG[2 * v + 1]), vr(p), '0' if b == 0 else vr(OR_)), needs=[vld[2 * v + 1]])]
            if t == 2 and b == 5: P(h2ld)
        assert not bq
        tail = flat([mx(g_, vMN) for g_ in pmx])
        for x in [qk(t + 1, g_) for g_ in pqk] + ppv:
            P(x)
            if tail: P(tail.pop(0))
        emit_all(tail)
        if t < 2: qbuild(t + 2)
        for g_ in pqk: emit_all(mx(g_, vMN))
        o_epi(t)
    stamp('attend')

    own = flat(flat([hload(k) for k in (6, 7)]))
    bmap = {}
    for k in hld:
        for mt in range(4): bmap[breg(hpos[k], mt)] = hld[k][mt]
    def restage(dst, sbase, stride):
        L = II(f's_lshl_b32 s{T3}, s{FH}, 11\ns_add_u32 s{T3}, s{T3}, {HLONE}\nv_add_u32 v{vTB}, s{T3}, v{vHW}')
        rd = [Ins(f'ds_read_b128 {vr(dst+4*m)}, v{vTB} offset:{1024*m}') for m in range(2)]
        L += rd + II(f's_add_u32 s{T3}, s{sbase}, {stride}') + [('SKIP', 8)]
        L += [Ins(f'buffer_store_dwordx4 {vr(dst+4*m)}, v{vL16}, {sr(SW)}, s{[sbase, T3][m]} offen sc1', needs=[rd[m]]) for m in range(2)]
        return L, rd
    oe, ord_ = restage(QF, OB, 18432)
    rr = Ins(f'ds_read_b128 {vr(QF+8)}, v{vTA}')
    oe += II(f'v_add_u32 v{vTA}, {RT4}, v{vL16}') + [rr] + II(f'v_lshrrev_b32 v{vTA}, 3, v{vL}\nv_mul_u32_u24 v{vTA}, {18432-128}, v{vTA}\nv_add_u32 v{vTA}, v{vTA}, v{vL16}') + [('SKIP', 8)]
    oe += [Ins(f'buffer_store_dwordx4 {vr(QF+8)}, v{vTA}, {sr(SW)}, s{OR} offen sc1', needs=[rr])]
    l2e = II(f's_lshl_b32 s{T3}, s{FH}, 3\ns_add_u32 s{T3}, s{T3}, {HLONE}\nv_add_u32 v{vTB}, s{T3}, v{vHW}'); l2w = []
    for mt in range(4):
        t0 = SP + mt * 4
        w = Ins(f'ds_write_b64 v{vTB}, {vr(t0,2)} offset:{1024*mt}'); l2w.append(w)
        l2e += [cvt(t0, t0, t0 + 1), cvt(t0 + 1, t0 + 2, t0 + 3), w]
    l2s, _ = restage(SP, PLN, 1024)
    def task_params(second):
        ln = II(f's_lshl_b32 s{T2}, s{Pp}, 2\ns_lshr_b32 s{T1}, 0x54108732, s{T2}\ns_and_b32 s{T1}, s{T1}, 15\ns_lshr_b32 s{TV}, 0x56557777, s{T2}\ns_and_b32 s{TV}, s{TV}, 15\ns_movk_i32 s{TM}, 0x5555')
        ln += [II(f's_cmp_gt_u32 s{T1}, 4\ns_cselect_b32 s{T2}, 1, 0'), Ins(f's_lshl_b32 s{TM}, s{TM}, s{T2}'), II(f's_cmp_eq_u32 s{T1}, 4\ns_cselect_b32 s{TM}, 0xffff, s{TM}')]
        return ln + II(f'''s_lshl_b32 s{TL}, s{T1}, 7
        s_lshl_b32 s{T2}, s{E}, 2
        s_add_u32 s{T2}, s{T2}, s{Wv}
        s_lshl_b32 s{TP}, s{T2}, 10
        s_lshl_b32 s{T1}, s{T1}, 14
        s_add_u32 s{TP}, s{TP}, s{T1}
        s_mul_i32 s{T1}, s{I}, {8*18*8192}
        s_add_u32 s{TP}, s{TP}, s{T1}
        s_lshl_b32 s{T1}, s{I}, 3
        s_add_u32 s{T2}, s{T2}, s{T1}
        s_mul_i32 s{OL}, s{T2}, 18432
        s_add_u32 s{TX}, s{OL}, s{TL}
        s_mul_i32 s{T1}, s{Wv}, {36*1152}
        s_add_u32 s{TL}, s{TL}, s{T1}''')
    tsetup = II(f'''s_mov_b32 s{SG}, s8
    s_mov_b32 s{SG+1}, s9
    s_mov_b32 s{SG+2}, 0x{576*1152:x}
    s_mov_b32 s{SU}, s{OUTP}
    s_mov_b32 s{SU+1}, s{OUTP+1}
    s_mov_b32 s{SU+2}, 0x{2048*1152:x}
    s_lshl_b32 s{FB}, s{I}, 11
    s_add_u32 s{FB}, s{FB}, 0x{FOFF:x}
    s_mov_b32 s{LO}, 0x00003f80
    s_mov_b32 s{HI}, 0x3f800000''') + task_params(False)
    for t, row in enumerate((0, 8, 20, 28)): tsetup += II(f'v_add_u32 v{vWD[t]}, {(row*1152 - 1024*t - 2048) & 0xffffffff}, v{vDD[0]}')
    tsetup += II(f'''v_lshrrev_b32 v{vWD2}, 5, v{vL}
    v_mul_u32_u24 v{vWD2}, {32*1152}, v{vWD2}
    v_add_u32 v{vWD2}, v{vWD2}, v{vWD[0]}
    v_add_u32 v{vWD2}, {16*1152}, v{vWD2}
    v_and_b32 v{vWT[0]}, 0xffff, v{vTD[0]}
    s_lshl_b32 s{T2}, s{FH}, 6
    v_xor_b32 v{vWT[0]}, s{T2}, v{vWT[0]}
    v_xor_b32 v{vWT[1]}, 32, v{vWT[0]}
    v_xor_b32 v{vWT[2]}, 64, v{vWT[0]}
    v_xor_b32 v{vWT[3]}, 0x60, v{vWT[0]}
    v_lshlrev_b32 v{vPL}, 3, v{vOR}
    v_and_b32 v{vMX}, 15, v{vL}
    v_mul_u32_u24 v{vDG}, 1152, v{vMX}
    v_bfe_u32 v{vMN}, v{vL}, 4, 1
    v_lshl_add_u32 v{vDG}, v{vMN}, 5, v{vDG}
    v_lshrrev_b32 v{vMN}, 5, v{vL}
    v_lshl_add_u32 v{vDG}, v{vMN}, 4, v{vDG}
    s_lshl_b32 s{T2}, s{E}, 2
    s_add_u32 s{T2}, s{T2}, s{Wv}
    s_lshl_b32 s{T2}, s{T2}, 8
    s_add_u32 s{T2}, s{T2}, {RTB}
    v_lshlrev_b32 v{vMX}, 2, v{vMX}
    v_add_u32 v{vMX}, s{T2}, v{vMX}''')
    rrd = Ins(f'ds_read_b32 v{vMX}, v{vMX}')
    tsetup += [rrd, ('SKIP', 8), Ins(f'v_mul_f32 v{vMX}, v{vMX}, v{vMX}', needs=[rrd]), Ins(f'v_mul_f32 v{vMN}, 0x{f2u(-1.4426950408889634):x}, v{vMX}')]
    fl_t = f'buffer_load_dword v{vPFP}, v{vPL}, {sr(SW)}, s{FB} offen sc1'
    o3ld = T(fl_t, 24)
    o3chk = poll_check('o3', o3ld, [f'v_cmp_le_u32 vcc, 4, v{vPFP}', 's_nop 1', 's_cmp_eq_u32 vcc_lo, 0xffff'])
    d5ld = T(fl_t, 8)
    ct3 = [II(f's_getpc_b64 {sr(SB,2)}') + [Ins('K1_pc3:')]] + II(f'''s_mov_b32 s{SB+2}, code_end-K1_pc3
    s_and_b32 s{T2}, s{NN}, 7
    s_lshl_b32 s{T2}, s{T2}, 2
    s_add_u32 s{T2}, s{T2}, s{Wv}
    s_lshl_b32 s{T2}, s{T2}, 10
    v_cmp_gt_u32 vcc, 8, v{vL}
    v_mov_b32 v{vTA}, 0x{OOB:x}
    s_nop 0
    v_cndmask_b32 v{vTA}, v{vTA}, v{vPL}, vcc''') + [T(f'buffer_load_dword v0, v{vTA}, {sr(SB)}, s{T2} offen', 24)]
    OA = 160
    old = []; ol = II(f'v_lshlrev_b32 v{vTA}, 3, v{vL}')
    for k in range(18):
        if k == 8: ol += [('AT', NSEG1 + 14, 0)]
        if k == 16: ol += [('AT', NSEG1 + 15, 0)] + l2s
        if k % 4 == 0: ol += II(f's_add_u32 s{T3}, s{OL}, 0x{OOFF + k*1024:x}')
        if k < 16: x = [Ins(f'buffer_load_dwordx4 {ar(OA+4*k)}, v{vL16}, {sr(SW)}, s{T3} offen offset:{1024*(k%4)} sc1')]
        else: x = [Ins(f'buffer_load_dwordx2 {ar(OA+4*k+2*h,2)}, v{vTA}, {sr(SW)}, s{T3} offen offset:{1024*(k%4)+512*h} sc1') for h in range(2)]
        ol += x; old.append(x[-1])
    XR2 = SP + 8
    xt_ = lambda u: f'buffer_load_dwordx4 {vr(XR2+4*u)}, v{vDG}, {sr(SX)}, s{TX} offen offset:{64*u}'
    xld = [Ins(xt_(u)) for u in range(2)]
    de0 = d_epi(ACCA, 0); st0 = [x for x in de0 if x.kind == 'vmem']; stl = [x for x in l2s if not isinstance(x, tuple) and x.kind == 'vmem']
    ost = [x for x in oe if not isinstance(x, tuple) and x.kind == 'vmem']
    de1a = d_epi(ACCB, 1, (0,)); de1b = d_epi(ACCB, 1, (1,)); st1 = [x for x in de1a + de1b if x.kind == 'vmem']
    for x in st1: loud.add(id(x)); svc[id(x)] = 3
    fill2 = [(sl, 0, stamp('slot%d' % sl, True)) for sl in range(NSEG1, NS)] + [
        (NSEG1, 0, ofl + [('AT', NSEG1 + 2, 0)] + oe + tsetup + [('BY', NSEG1 + 9), ('AT', NSEG1 + 9, 4)] + de0 + ct3 + [o3ld, ('AT', NSEG1 + 12, 4)] + l2e + [('BY', NSEG1 + 14)]
         + [('AT', NSEG1 + 13, 0), o3chk] + ol),
        (NS - 1, 19, de1a), (NS - 2, 16, [d5ld]),
        (NSEG1, 1, own)]
    bx2 = {NSEG1 + 2: (ow, []), NSEG1 + 3: (hld[6] + hld[7], [])}
    bx2[NSEG1 + 7] = (ost, setflag(4, vPFS)); bx2[NSEG1 + 15] = (l2w + st0, setflag(5, vPFS)); bx2[NSEG1 + 19] = (stl, setflag(6, vPFS))
    left = segment(NSEG1, NS, fill2, bx2, extra_need=lambda f, mt: bmap[f.b(mt)])
    print('left after seg2:', len(left), file=sys.stderr)
    stamp('g2end')
    tq = flat(left) + de1b + xld
    def wo_gemm(P, acc, need_o, bg_=None):
        rds = {}
        wwin = [0]
        def rd(n):
            k, dt = divmod(n, 4)
            w, o = divmod(phys[NS + k // 4] * SLOT, 65536)
            if w != wwin[0]:
                for d in range(4): P('v_add_u32 v%d, 0x%x, v%d' % (vWT[d], ((w - wwin[0]) * 65536) & 0xffffffff, vWT[d]))
                wwin[0] = w
            f = FR + 4 * (n % 8)
            rds[n] = [P('ds_read_b64_tr_b16 %s, v%d offset:%d' % (vr(f + 2 * h, 2), vWT[dt], o + (k % 4) * 4096 + 2048 * h)) for h in range(2)]
        for n in range(7): rd(n)
        for n in range(72):
            k, dt = divmod(n, 4)
            nd = rds[n] + (rds[n + 1] if n % 2 == 0 else []) + ([old[k]] if need_o else [])
            P(Ins('v_mfma_f32_16x16x32_bf16 %s, %s, %s, %s' % (vr(acc + 4 * dt), vr(FR + 4 * (n % 8)), ar(OA + 4 * k), '0' if k == 0 else vr(acc + 4 * dt)), needs=nd))
            if n + 7 < 72: rd(n + 7)
            if bg_: bg_(n)
        for d in range(4):
            if wwin[0]: P('v_add_u32 v%d, 0x%x, v%d' % (vWT[d], (-wwin[0] * 65536) & 0xffffffff, vWT[d]))
    def ploads(P, dst, extra=0):
        pl = []
        for p in range(8):
            for u in range(2):
                P(f's_add_u32 s{T3}, s{TP}, 0x{POFF + p*18*8192 + u*8192 + extra:x}')
                pl.append(P(f'buffer_load_dwordx4 {vr(dst+8*p+4*u)}, v{vL16}, {sr(SW)}, s{T3} offen sc1'))
        return pl
    def fmath(P, acc, src0, pl, xr, xl_, imm, bg_=None):
        SUM, TT = FR, FR + 16
        for p in range(8):
            for u in range(2):
                for q in range(4):
                    src = src0 + 8 * p + 4 * u + q; d = SUM + 8 * u + 2 * q
                    P(Ins(f'v_dot2_f32_bf16 v{d}, v{src}, s{LO}, ' + ('0' if p == 0 else f'v{d}'), needs=[pl[2 * p + u]]))
                    P(f'v_dot2_f32_bf16 v{d+1}, v{src}, s{HI}, ' + ('0' if p == 0 else f'v{d+1}'))
                if bg_: bg_(2 * p + u)
        for r in range(0, 16, 2): P(f'v_pk_mul_f32 {vr(TT+r,2)}, {vr(SUM+r,2)}, {vr(vMX,2)} op_sel:[0,1] op_sel_hi:[1,1]')
        for r in range(16): P(f'v_exp_f32 v{TT+r}, v{TT+r}')
        for r in range(0, 16, 2): P(f'v_pk_mul_f32 {vr(acc+r,2)}, {vr(acc+r,2)}, {vr(SUM+r,2)}')
        for r in range(0, 16, 2): P(f'v_pk_add_f32 {vr(TT+r,2)}, {vr(TT+r,2)}, 1.0 op_sel_hi:[1,0]')
        for r in range(16): P(f'v_rcp_f32 v{TT+r}, v{TT+r}')
        for r in range(0, 16, 2): P(f'v_pk_mul_f32 {vr(acc+r,2)}, {vr(acc+r,2)}, {vr(TT+r,2)}')
        for u in range(2):
            for r in range(4): P(f'v_permlane16_swap_b32 v{acc+8*u+r}, v{acc+8*u+4+r}')
        for u in range(2):
            for q in range(4):
                d = acc + 8 * u + 2 * q
                P(Ins(f'v_dot2c_f32_bf16 v{d}, s{LO}, v{xr+4*u+q}', needs=[xl_[u]]))
                P(f'v_dot2c_f32_bf16 v{d+1}, s{HI}, v{xr+4*u+q}')
        for u in range(2):
            for q in range(4): P(cvt(xr + 4 * u + q, acc + 8 * u + 2 * q, acc + 8 * u + 2 * q + 1))
            P(f'buffer_store_dwordx4 {vr(xr+4*u)}, v{vDG}, {sr(SU)}, s{TX} offen offset:{64*u+imm} ' + opt.get('ost', 'sc1'))
    def scale_s(P, acc):
        for r in range(0, 16, 2): P(f'v_pk_mul_f32 {vr(acc+r,2)}, {vr(acc+r,2)}, {vr(vMX,2)} op_sel_hi:[1,0]')
    ftest = [f'v_cmp_le_u32 vcc, s{TV}, v{vPFP}', 's_nop 1', f's_and_b32 s{T2}, vcc_lo, s{TM}', f's_cmp_eq_u32 s{T2}, s{TM}']
    P(Ins('s_barrier', needs=[x for n in range(NS, NSX) for x in slots[n].loads]))
    while tq and any(x in ol for x in tq): P(tq.pop(0))
    P(f's_cmp_ge_u32 s{J}, 14')
    P('s_cbranch_scc1 dbl')
    S = P.fork(); tq2 = [Ins(x.text) for x in tq]
    st2 = [x for x in st1 if x.cnt is not None] + [x for x in tq2 if 'store' in x.op]
    def bgt(n):
        for _ in range(2):
            if tq: P(tq.pop(0))
    wo_gemm(P, XT, True, bgt)
    assert not tq
    stamp('wo')
    P(Ins('s_barrier', needs=st1))
    f1 = P(fl_t)
    emit_all(setflag(7, vPFS))
    scale_s(P, XT)
    P(Ins(ftest[0], needs=[f1]))
    P('s_nop 1')
    pl = [None] * 16
    porder = opt.get('porder', [7, 6, 5, 4, 0, 1, 2, 3])
    for p in porder:
        chk = [f's_andn2_b32 s{T2}, s{TM}, vcc_lo', f's_and_b32 s{T2}, s{T2}, {3 << (2 * p)}']
        for t_ in chk: P(t_)
        P(f's_cbranch_scc1 fp{p}_slow')
        P.label(f'fp{p}_ok')
        Z = Prog(); Z.label(f'fp{p}_slow'); Z(f's_mov_b32 s{SPN}, 400000'); Z.label(f'fp{p}_loop')
        Z(fl_t); Z('s_waitcnt vmcnt(0)'); Z(ftest[0]); Z(f's_sub_u32 s{SPN}, s{SPN}, 1'); Z(f's_cbranch_scc1 fp{p}_ok')
        for t_ in chk: Z(t_)
        Z(f's_cbranch_scc1 fp{p}_loop'); Z(f's_branch fp{p}_ok'); slow.append(Z.text())
        for u in range(2):
            P(f's_add_u32 s{T3}, s{TP}, 0x{POFF + p*18*8192 + u*8192:x}')
            pl[2 * porder.index(p) + u] = P(f'buffer_load_dwordx4 {vr(ACCA+8*porder.index(p)+4*u)}, v{vL16}, {sr(SW)}, s{T3} offen sc1')
    stamp('poll')
    fmath(P, XT, ACCA, pl, XR2, xld, 0)
    P.label('dbl_e')
    S.label('dbl')
    for x in poll_check('d5', d5ld, ftest):
        if x.kind == 'label': S.out.append(x)
        else: S(x)
    pa = []
    def bgs(n):
        if tq2:
            for _ in range(2):
                if tq2: S(tq2.pop(0))
        elif n % 3 == 0 and len(pa) < 16:
            p, u = divmod(len(pa), 2)
            S(f's_add_u32 s{T3}, s{TP}, 0x{POFF + p*18*8192 + u*8192:x}')
            pa.append(S(f'buffer_load_dwordx4 {vr(ACCA+8*p+4*u)}, v{vL16}, {sr(SW)}, s{T3} offen sc1'))
    wo_gemm(S, XT, True, bgs)
    assert len(pa) == 16
    S(Ins('s_barrier', needs=st2))
    for x in setflag(7, vPFS): S(x)
    scale_s(S, XT)
    S(f's_add_u32 s{TL}, s{TL}, 128')
    wq = bunch(flat([slots[n].dma(phys[n]) for n in range(NS, NSX)]))
    wl = [x for g in wq for x in g if x.kind == 'vmem']
    def bgw(n):
        for _ in range(2 if n < 2 else 1):
            for x in wq.pop(0): S(x)
    fmath(S, XT, ACCA, pa, XR2, [None, None], 0, bgw)
    x2 = [S(f'buffer_load_dwordx4 {vr(SP+4*u)}, v{vDG}, {sr(SX)}, s{TX} offen offset:{128+64*u}') for u in range(2)]
    pb = []
    def bgp(n):
        if n % 4 == 0 and len(pb) < 16:
            p, u = divmod(len(pb), 2)
            S(f's_add_u32 s{T3}, s{TP}, 0x{POFF + p*18*8192 + u*8192 + 16384:x}')
            pb.append(S(f'buffer_load_dwordx4 {vr(ACCB+8*p+4*u)}, v{vL16}, {sr(SW)}, s{T3} offen sc1'))
    for n in range(4): bgp(0)
    S(Ins('s_barrier', needs=wl))
    wo_gemm(S, XT + 16, False, bgp)
    scale_s(S, XT + 16)
    fmath(S, XT + 16, ACCB, pb, SP, x2, 128)
    S('s_branch dbl_e'); slow.append(S.text())
    if stamps:
      P('s_waitcnt vmcnt(0)')
      stamp('end')
      P('s_waitcnt lgkmcnt(0)')
      P(f's_lshl_b32 s{T2}, s2, 7')
      P(f's_add_u32 s{T2}, s{T2}, 0x{STAMP_OFF:x}')
      if stamps == 'all':
        n = len(ALL)
        P('v_writelane_b32 v%d, s22, %d' % (77 + n // 64, n % 64))
        P(f's_lshl_b32 s{T2}, s2, 9')
        P(f's_add_u32 s{T2}, s{T2}, 0x{STAMP_OFF + (2 << 18):x}')
        P(f's_cmp_eq_u32 s{Wv}, 0')
        P(f's_cselect_b32 s{T2}, s{T2}, 0x{OOB:x}')
        P(f'v_lshlrev_b32 v80, 2, v{vL}')
        P(f'buffer_store_dword v77, v80, {sr(SW)}, s{T2} offen')
        P(f'buffer_store_dword v78, v80, {sr(SW)}, s{T2} offen offset:256')
      else:
        P('s_mov_b32 s%d, s22' % (sTS + len(stamps)))
        P('v_mov_b32 v81, 0')
        for n in range(10):
            P('v_mov_b32 v80, s%d' % (sTS + (n if opt.get('est') else min(n, len(stamps)))))
            P(f'buffer_store_dwordx2 v[80:81], v{vFL}, {sr(SW)}, s{T2} offen offset:{8*n}')
    P.label('K1_end')
    P('s_endpgm')
    print('K1: instrs', len(P.out), 'nops', P.nnop, file=sys.stderr)
    return P.text() + ''.join(reversed(slow))
```

```python
import re

class Ins:
    __slots__ = ('text', 'needs', 'kind', 'cost', 'wr', 'rd', 'op', 'cnt', 'srcC', 'srcAB')
    def __init__(self, text, needs=(), cost=None):
        self.text = text.strip()
        self.needs = [n for n in needs if n is not None]
        self.op = self.text.split()[0]
        self.kind = classify(self.op)
        self.cost = cost if cost is not None else (2 if self.op in TRANS or self.kind == 'vmem' else 1)
        self.cnt = None
        parse_regs(self)

TRANS = {'v_exp_f32', 'v_log_f32', 'v_rcp_f32', 'v_rsq_f32', 'v_sqrt_f32', 'v_sin_f32', 'v_cos_f32'}

def classify(op):
    if op.endswith(':'): return 'label'
    if op.startswith('v_mfma'): return 'mfma'
    if op.startswith('v_'): return 'valu'
    if op.startswith('ds_'): return 'ds'
    if op.startswith('buffer_') or op.startswith('global_'): return 'vmem'
    if op.startswith('s_load') or op.startswith('s_mem'): return 'smem'
    if op.startswith('s_'): return 'salu'
    return 'other'

_R = re.compile(r'^-?(?:abs\()?([vas])(?:\[(\d+):(\d+)\]|(\d+))\)?$')
def regset(tok):
    tok = tok.strip()
    if tok == 'vcc': return {('s', 106), ('s', 107)}
    if tok == 'exec': return {('s', 126), ('s', 127)}
    if tok == 'm0': return {('s', 124)}
    m = _R.match(tok)
    if not m: return set()
    c = m.group(1)
    if m.group(4) is not None: return {(c, int(m.group(4)))}
    return {(c, r) for r in range(int(m.group(2)), int(m.group(3)) + 1)}

def parse_regs(I):
    I.wr = set(); I.rd = set(); I.srcC = set(); I.srcAB = set()
    if I.kind in ('label', 'other'): return
    rest = I.text[len(I.op):].strip()
    ops = [o.strip() for o in rest.split(',')] if rest else []
    ops = [(o.split()[0] if o.split() else '') for o in ops]
    sets = [regset(o) for o in ops]
    op = I.op
    if I.kind == 'mfma':
        I.wr = sets[0]; I.srcAB = sets[1] | sets[2]; I.srcC = sets[3]; I.rd = I.srcAB | I.srcC
    elif I.kind == 'valu':
        if 'permlane' in op and 'swap' in op:
            I.wr = sets[0] | sets[1]; I.rd = sets[0] | sets[1]
        elif op.startswith('v_add_co') or op.startswith('v_addc_co') or op.startswith('v_sub_co'):
            I.wr = sets[0] | sets[1]; I.rd = set().union(*sets[2:])
        else:
            I.wr = sets[0]; I.rd = set().union(*sets[1:]) if len(sets) > 1 else set()
            if op.startswith('v_fmac') or op.startswith('v_dot2c'):
                I.rd |= sets[0]; I.srcC = sets[0]; I.srcAB = set().union(*sets[1:])
            if op.startswith('v_dot2_'):
                I.srcC = sets[3]; I.srcAB = sets[1] | sets[2]
    elif I.kind == 'ds':
        if op.startswith('ds_read') or op.startswith('ds_bpermute'):
            I.wr = sets[0]; I.rd = set().union(*sets[1:])
        else:
            I.rd = set().union(*sets)
    elif I.kind == 'vmem':
        toks = I.text.split()
        if toks[-1] == 'lds' or ' lds' in I.text:
            I.rd = set().union(*sets) | {('s', 124)}
        elif 'load' in op:
            I.wr = sets[0]; I.rd = set().union(*sets[1:])
        else:
            I.rd = set().union(*sets)
            I.srcC = sets[0]
    elif I.kind in ('salu', 'smem'):
        if op.startswith('s_cmp') or op.startswith('s_bitcmp') or op.startswith('s_cbranch') or op.startswith('s_branch') or op in ('s_waitcnt', 's_barrier', 's_nop', 's_endpgm', 's_sleep', 's_setprio'):
            I.rd = set().union(*sets) if sets else set()
        else:
            I.wr = sets[0] if sets else set(); I.rd = set().union(*sets[1:]) if len(sets) > 1 else set()

def states(I):
    if I.kind == 'label': return 0
    if I.op == 's_nop': return int(I.text.split()[1]) + 1
    return 1

def required(P, C):
    n = 0
    vw = lambda s: {r for r in s if r[0] in 'va'}
    sw = lambda s: {r for r in s if r[0] == 's'}
    if P.kind == 'valu':
        isdot = P.op.startswith('v_dot2')
        w = vw(P.wr)
        if w:
            if C.kind == 'mfma' and w & C.rd: n = max(n, 3 if isdot else 2)
            if C.kind == 'valu':
                if ('permlane' in C.op or '_dpp' in C.op) and w & C.rd: n = max(n, 2)
                if C.op.startswith('v_readlane') or C.op.startswith('v_readfirstlane'):
                    if w & C.rd: n = max(n, 1)
                if P.op in TRANS and C.op not in TRANS and w & C.rd: n = max(n, 1)
            if isdot:
                if C.op == P.op:
                    if w & C.srcAB: n = max(n, 3)
                elif w & (C.rd | C.wr): n = max(n, 3)
        s = sw(P.wr)
        if s:
            if C.kind == 'valu' and s & C.rd: n = max(n, 4 if C.op.startswith('v_readlane') else 2)
            if C.kind == 'valu' and C.op.startswith('v_cndmask') and ('s', 106) in s and 'vcc' in C.text: n = max(n, 2)
            if C.kind == 'vmem' and s & C.rd: n = max(n, 5)
            if C.kind == 'salu' and s & C.rd: n = max(n, 1)
    elif P.kind == 'mfma':
        big = '32x32' in P.op
        full = 12 if big else 8
        if C.kind == 'mfma':
            if P.wr & C.srcAB: n = max(n, full)
            if P.wr & C.srcC and P.wr != C.srcC: n = max(n, full - 2)
            if P.wr & C.wr and not (P.wr == C.srcC): n = max(n, full)
        elif C.kind in ('valu', 'ds', 'vmem'):
            if P.wr & (C.rd | C.wr): n = max(n, full)
            if C.kind == 'valu' and P.srcC & C.wr: n = max(n, 7 if big else 3)
    elif P.kind == 'salu':
        if ('s', 124) in P.wr and C.kind == 'vmem' and ('s', 124) in C.rd: n = max(n, 1)
    elif P.kind == 'vmem':
        if ('store_dwordx3' in P.op or 'store_dwordx4' in P.op) and P.srcC & C.wr:
            n = max(n, 2 if C.kind in ('valu', 'mfma') else 1)
    return n

class Prog:
    def __init__(self):
        self.out = []
        self.lg = 0; self.lg_done = 0
        self.vm = 0; self.vm_done = 0
        self.nnop = 0; self.skip = 0
    def _push(self, I):
        dist = 0; need = 0
        for P in reversed(self.out[-24:]):
            r = required(P, I)
            if r > dist: need = max(need, r - dist)
            dist += states(P)
            if dist >= 12: break
        if need:
            self.out.append(Ins('s_nop %d' % (need - 1))); self.nnop += need
        self.out.append(I)
    def wait_for(self, needs):
        lgn = None; vmn = None
        for t in needs:
            assert t.cnt is not None, 'dependency not yet emitted: ' + t.text
            if t.kind == 'ds':
                if t.cnt > self.lg_done:
                    n = min(15, self.lg - t.cnt); lgn = n if lgn is None else min(lgn, n)
            elif t.kind == 'vmem':
                if t.cnt > self.vm_done:
                    n = min(63, self.vm - t.cnt); vmn = n if vmn is None else min(vmn, n)
        if lgn is not None or vmn is not None:
            s = 's_waitcnt'
            if vmn is not None: s += ' vmcnt(%d)' % vmn; self.vm_done = self.vm - vmn
            if lgn is not None: s += ' lgkmcnt(%d)' % lgn; self.lg_done = self.lg - lgn
            self._push(Ins(s))
    def emit(self, I, needs=()):
        if isinstance(I, str):
            r = None
            for l in I.strip().split('\n'):
                if l.strip(): r = self.emit(Ins(l, needs))
            return r
        self.wait_for(I.needs)
        self._push(I)
        if I.kind == 'ds': self.lg += 1; I.cnt = self.lg
        elif I.kind == 'vmem': self.vm += 1; I.cnt = self.vm
        elif I.op == 's_waitcnt':
            m = re.search(r'vmcnt\((\d+)\)', I.text)
            if m: self.vm_done = max(self.vm_done, self.vm - int(m.group(1)))
            m = re.search(r'lgkmcnt\((\d+)\)', I.text)
            if m: self.lg_done = max(self.lg_done, self.lg - int(m.group(1)))
        return I
    __call__ = emit
    def fork(self):
        S = Prog(); S.lg, S.lg_done, S.vm, S.vm_done = self.lg, self.lg_done, self.vm, self.vm_done
        S.out = list(self.out[-24:]); S.skip = len(S.out)
        return S
    def label(self, name):
        self.out.append(Ins(name + ':'))
    def text(self):
        return '\n'.join((I.text if I.kind == 'label' else '    ' + I.text) for I in self.out[self.skip:]) + '\n'
```

```python
import sys, struct
sys.path.insert(0, 'gen')
from prog import *
from asmlib import STAMP_OFF

HOFF = 0x0000000
POFF = 0x1200000
BLK = 110592 + 128
KOFF = 0x2400000 + BLK
OOFF = 0x2C00000
ROFF = 0x2F00000
FOFF = 0x2F10000
WSB = 256 << 20
OOB = 0x10000000
NEG = 0xF149F2CA
SCALE = 0.2357022603955158 * 1.4426950408889634
def f2u(x): return struct.unpack('<I', struct.pack('<f', x))[0]

SLOT = 16384
XB = 5 * SLOT
HLONE = 9 * SLOT
RT4 = 155648
RTB = RT4 + 2048
NCODE = 84

def vr(b, n=4): return 'v[%d:%d]' % (b, b + n - 1)
def ar(b, n=4): return 'a[%d:%d]' % (b, b + n - 1)
def sr(b, n=4): return 's[%d:%d]' % (b, b + n - 1)
def II(text): return [Ins(l) for l in text.strip().split('\n') if l.strip()]

class Frag:
    def __init__(s, base, imm0, imm1, acc, b, first):
        s.base, s.imm, s.acc, s.b, s.first = base, (imm0, imm1), acc, b, first
class Slot:
    def __init__(s, groups, dma):
        s.groups, s.dma, s.loads = groups, dma, None

def gen_k1(JX=4, stamps=False, opt={}):
    opt = dict(dict(so=5, cls=[0, 0, 8, 8, 26, 26, 30, 30, 38, 38], qc=44, svst=2.5), **opt)
    assert JX == 4
    P = Prog()
    SX, SQ, SG, SU, SD, SW, SB, SL = 24, 28, 32, 36, 40, 44, 48, 52
    I, J, Wv, RG, FH, E, Pp, T0, T1, T2, T3, OFF, ST, SPN = range(56, 70)
    W4096, W3072, BP, BL1, BD, SIG = range(70, 76)
    BL2 = 76
    HS, HLN, HL, PS, PLN = range(79, 84)
    C, N0, N1 = 84, 85, 86
    QM, QC, BQ, ONE2, LO, HI, R2, XRO = 87, 91, 92, 93, 94, 95, 96, 97
    KO, KB = 87, 92
    NN = 101
    SH = 75 + 11
    OB, OR, MYF, PF, PFD, DB = 4, 5, 6, 7, 10, 11
    PFP, PFW, J0, DUM = 20, 21, 90, 18
    OUTP = 0
    ROT = 3
    sTS = 12
    vL, vL16 = 1, 2
    vDQ = [3, 4, 5, 6]; vDL2 = 7
    vDP = [8, 9]; vDL1 = 10; vTP = [11, 12]; vTL1 = 13
    vTQ = [14, 15]; vDD = [16, 17, 18, 19]; vTD = [20, 21]; vTL2 = 22
    vQS = [23]; vTB = 24; vRS = 25
    vPFP, vPFS, vHW, vFL, vDG, vOR = 26, 27, 28, 29, 30, 31
    vKM, vKR, vVM, vVR = 3, 4, 5, 6
    QW = 8
    vMX, vMN, vTA, vONES = 14, 15, 23, 25
    XT, QF, FR, ACCA, ACCB, SP = 32, 64, 80, 112, 176, 240
    ALL = ['mf0'] + ['slot%d' % n for n in range(1, 51)] + ['g1end', 'attk', 'att1', 'att2', 'att3', 'attend'] + ['slot%d' % n for n in range(52, 72)] + ['g2end', 'wo', 'poll', 'end']
    def stamp(name, ret=False):
        if stamps == 'all':
            if name not in ALL: return []
            n = ALL.index(name)
            x = [Ins('v_writelane_b32 v%d, s22, %d' % (77 + n // 64, n % 64)), Ins('s_memtime s[22:23]')]
            if ret: return [x]
            for y in x: P(y)
            return []
        if stamps and name in stamps:
            n = stamps.index(name)
            x = [Ins('s_mov_b32 s%d, s22' % (sTS + n)), Ins('s_memrealtime s[22:23]')]
            if ret: return [x]
            for y in x: P(y)
        return []
    def breg(pos, mt):
        i = pos * 4 + mt
        return ar(4 * i) if i < 64 else vr(XT + 4 * (i - 64))
    def emit_all(lst):
        for x in lst:
            if isinstance(x, list): emit_all(x)
            elif x.kind == 'label': P.out.append(x)
            else: P(x)
    lg = lambda x: x.bit_length() - 1
    ng = 16 // JX

    P('s_cmp_ge_u32 s2, 256')
    P('s_cbranch_scc1 K1_end')
    P('s_load_dwordx16 s[4:19], s[0:1], 0')
    P('s_load_dwordx4 s[20:23], s[0:1], 64')
    if stamps: P('s_memtime s[84:85]' if stamps == 'all' else 's_memrealtime s[84:85]')
    def code_touch():
        P('s_getpc_b64 %s' % sr(SL, 2))
        P.label('K1_pc')
        P(f'''s_mov_b32 s{SL+2}, code_end-K1_pc
        s_mov_b32 s{SL+3}, 0x00020000
        s_lshr_b32 s{SPN}, s2, 3
        s_and_b32 s{SPN}, s{SPN}, 7
        s_mul_i32 s{SPN}, s{SPN}, {NCODE*128}
        v_lshlrev_b32 v80, 7, v0
        v_mov_b32 v89, 0x{OOB:x}
        v_cmp_gt_u32 vcc, {NCODE}, v0
        v_cndmask_b32 v80, v89, v80, vcc
        buffer_load_dword v79, v80, {sr(SL)}, s{SPN} offen''')
    if not opt.get('ctlate', 1): code_touch()
    P(f'''s_lshr_b32 s{NN}, s2, 3
    v_mov_b32 v89, 0x{OOB:x}
    v_and_b32 v{vL}, 63, v0
    v_lshrrev_b32 v80, 6, v0
    v_readfirstlane_b32 s{Wv}, v80
    s_and_b32 s{T0}, s2, 7
    s_and_b32 s{J}, s{T0}, {ng-1}
    s_lshl_b32 s{J}, s{J}, {lg(JX)}
    s_and_b32 s{T2}, s{NN}, {JX-1}
    s_or_b32 s{J}, s{J}, s{T2}
    s_lshr_b32 s{I}, s{T0}, {lg(ng)}
    s_lshl_b32 s{I}, s{I}, {lg(32//JX)}
    s_lshr_b32 s{T2}, s{NN}, {lg(JX)}
    s_or_b32 s{I}, s{I}, s{T2}
    s_and_b32 s{RG}, s{Wv}, 1
    s_lshr_b32 s{FH}, s{Wv}, 1
    s_and_b32 s{E}, s{J}, 1
    s_lshr_b32 s{Pp}, s{J}, 1
    s_and_b32 s{ROT}, s{J}, {min(JX-1, 3)}
    v_lshrrev_b32 v82, 3, v{vL}
    v_and_b32 v83, 7, v{vL}
    v_mul_u32_u24 v100, 1152, v82
    v_lshl_add_u32 v100, v83, 4, v100
    s_lshl_b32 s{T0}, s{I}, 3
    s_lshl_b32 s{T1}, s{RG}, 2
    s_add_u32 s{T0}, s{T0}, s{T1}
    s_add_u32 s{T1}, s{T0}, s{FH}
    s_mul_i32 s{T1}, s{T1}, {16*1152}''')
    if JX == 2: P(f's_lshl_b32 s{ROT}, s{ROT}, 1')
    def xro(blk):
        P(f'''s_xor_b32 s{T2}, s{ROT}, {blk}
        s_and_b32 s{T3}, s{T2}, 1
        s_lshl_b32 s{T3}, s{T3}, 3
        s_and_b32 s{T2}, s{T2}, 2
        s_lshl_b32 s{T2}, s{T2}, 4
        s_or_b32 s{XRO+blk}, s{T2}, s{T3}''')
    xro(0)
    if opt.get('est'): P('s_memrealtime s[76:77]')
    P('s_waitcnt lgkmcnt(0)')
    if opt.get('est'): P('s_memrealtime s[78:79]')
    def srd(d, b, nbytes, shift=0):
        if shift:
            P('s_sub_u32 s%d, s%d, %d' % (d, b, shift))
            P('s_subb_u32 s%d, s%d, 0' % (d + 1, b + 1))
        else:
            P('s_mov_b32 s%d, s%d' % (d, b))
            P('s_mov_b32 s%d, s%d' % (d + 1, b + 1))
        P('s_mov_b32 s%d, 0x%x' % (d + 2, nbytes + shift))
        P('s_mov_b32 s%d, 0x00020000' % (d + 3))
    srd(SX, 4, 2048 * 1152)
    XR = 112
    xl = []
    def xload(blk):
        ld = [Ins('buffer_load_dwordx4 %s, v100, %s, s%d offen offset:%d' % (vr(XR + 36 * blk + 4 * l), sr(SX), OFF, 128 * l)) for l in range(9)]
        xl.append(ld)
        return [II(f's_mul_i32 s{OFF}, s{XRO+blk}, 1152\ns_add_u32 s{OFF}, s{OFF}, s{T1}')] + [[x] for x in ld]
    emit_all(xload(0))
    if opt.get('ctlate', 1): code_touch()
    if opt.get('est'): P('s_memrealtime s[80:81]')
    if opt.get('est') == 2:
        P('s_waitcnt vmcnt(8)')
        P('s_memrealtime s[82:83]')
        P('s_waitcnt vmcnt(0)')
        P('s_memrealtime s[86:87]')
    for blk in range(1, 4): xro(blk)
    srd(SQ, 6, 576 * 3456, shift=2048)
    RS = 36 // JX
    NT = ' nt' if opt.get('nt') else ''
    P(f'''s_and_b32 s{J0}, s{J}, {16-JX}
    s_and_b32 s{SH}, s2, 7
    s_lshr_b32 s{SH}, s{SH}, {lg(ng)}
    s_lshl_b32 s{SH}, s{SH}, 5
    s_add_u32 s{SH}, s{SH}, s{NN}
    v_lshrrev_b32 v86, {lg(2*JX)}, v0
    v_and_b32 v87, {2*JX-1}, v0
    v_mul_u32_u24 v88, 3456, v86
    v_lshl_add_u32 v87, v87, 7, v88
    v_cmp_gt_u32 vcc, {RS}, v86
    v_cndmask_b32 v87, v89, v87, vcc
    s_mul_i32 s{ST}, s{SH}, {RS*3456}
    s_lshl_b32 s{T2}, s{J0}, 8
    s_add_u32 s{BL2}, s{ST}, s{T2}
    v_mov_b32 v104, v87''')
    qtouch = [Ins(f'buffer_load_dword v79, v104, {sr(SQ)}, s{BL2} offen offset:2048' + NT)]

    srd(SG, 12, 576 * 9216)
    srd(SU, 14, 576 * 9216, shift=2048)
    srd(SD, 16, 4608 * 1152, shift=2048)
    srd(SW, 22, WSB)
    srd(SB, 20, 256)
    P(f's_mov_b64 {sr(OUTP,2)}, s[18:19]')
    P(f'''s_cmp_ge_u32 s{Wv}, 2
    s_cselect_b32 s{SL}, s14, s12
    s_cselect_b32 s{SL+1}, s15, s13
    s_mov_b32 s{SL+2}, 0x{576*9216:x}
    s_mov_b32 s{SL+3}, 0x00020000
    s_mul_i32 s{PFP}, s{SH}, {RS*9216}
    s_mul_i32 s{T2}, s{RG}, {1152 if JX == 4 else 9*9216}
    s_add_u32 s{PFP}, s{PFP}, s{T2}
    s_mul_i32 s{T2}, s{J0}, 576
    s_add_u32 s{PFP}, s{PFP}, s{T2}''')
    if stamps: P('s_mov_b64 s[22:23], s[84:85]')
    P(f'''s_lshl_b32 s{W4096}, s{Wv}, 12
    s_lshl_b32 s{BQ}, s{J}, 8
    s_mul_i32 s{T2}, s{Wv}, {16*3456}
    s_add_u32 s{BQ}, s{BQ}, s{T2}
    s_cmp_ge_u32 s{J}, 14
    s_cselect_b32 s{BQ}, 0x{OOB:x}, s{BQ}
    s_mov_b32 s{ONE2}, 0x3f803f80
    s_mov_b32 s{LO}, 0x00003f80
    s_mov_b32 s{HI}, 0x3f800000
    v_lshrrev_b32 v84, 4, v{vL}
    v_and_b32 v85, 15, v{vL}
    v_cmp_eq_u32 vcc, 0, v0
    v_cndmask_b32 v{vFL}, v89, 0, vcc
    v_lshlrev_b32 v86, 1, v82
    v_and_b32 v86, 4, v86
    v_xor_b32 v86, v83, v86
    v_mul_u32_u24 v87, 9216, v82
    v_lshl_add_u32 v{vDP[0]}, v86, 4, v87
    v_mul_u32_u24 v88, 3456, v82
    v_lshl_add_u32 v90, v86, 4, v88
    v_add_u32 v{vDQ[0]}, 2048, v90
    v_add_u32 v{vDQ[2]}, 128, v90
    v_xor_b32 v86, 2, v86
    v_lshl_add_u32 v{vDP[1]}, v86, 4, v87
    v_add_u32 v{vDP[1]}, {8*9216-1024}, v{vDP[1]}
    v_lshl_add_u32 v90, v86, 4, v88
    v_add_u32 v{vDQ[1]}, {8*3456-1024+2048}, v90
    v_add_u32 v{vDQ[3]}, {8*3456-1024+128}, v90
    s_lshl_b32 s{SIG}, s{E}, 1
    s_sub_u32 s{SIG}, 1, s{SIG}
    s_mul_i32 s{BP}, s{Pp}, 1152
    s_lshl_b32 s{T3}, s{E}, 10
    s_add_u32 s{BP}, s{BP}, s{T3}
    s_mul_i32 s{T3}, s{Wv}, {16*9216}
    s_add_u32 s{BP}, s{BP}, s{T3}
    v_and_b32 v87, 3, v{vL}
    v_lshrrev_b32 v86, 2, v85
    v_and_b32 v88, 1, v84
    v_lshrrev_b32 v92, 1, v84
    v_lshlrev_b32 v90, 12, v92
    v_lshl_add_u32 v90, v88, 10, v90
    v_lshl_add_u32 v90, v86, 7, v90
    v_lshrrev_b32 v91, 1, v86
    v_xor_b32 v91, s{FH}, v91
    v_lshl_add_u32 v90, v91, 6, v90
    v_lshl_add_u32 v90, v88, 5, v90
    v_lshl_add_u32 v{vTQ[0]}, v87, 3, v90
    v_xor_b32 v{vTQ[1]}, 32, v{vTQ[0]}
    s_lshl_b32 s{T2}, s{E}, 6
    v_xor_b32 v{vTP[0]}, s{T2}, v{vTQ[0]}
    v_xor_b32 v{vTP[1]}, s{T2}, v{vTQ[1]}
    s_mul_i32 s{ST}, s{RG}, {2*18432}
    s_add_u32 s{ST}, s{ST}, {XB}
    v_xor_b32 v90, v85, v84
    v_lshlrev_b32 v90, 4, v90
    v_lshl_add_u32 v90, v84, 8, v90
    v_add_u32 v65, s{ST}, v90
    v_xor_b32 v66, 64, v65
    s_mul_i32 s{T2}, s{FH}, 18432
    s_add_u32 s{ST}, s{ST}, s{T2}
    s_and_b32 s{T2}, s{XRO}, 8
    s_lshl_b32 s{T2}, s{T2}, 4
    s_add_u32 s{ST}, s{ST}, s{T2}
    v_xor_b32 v90, v82, v83
    v_lshlrev_b32 v90, 4, v90
    v_lshl_add_u32 v90, v83, 8, v90
    v_add_u32 v64, s{ST}, v90
    v_xor_b32 v76, 128, v64
    s_lshl_b32 s{T2}, s{RG}, 6
    s_lshl_b32 s{T3}, s{FH}, 4
    s_add_u32 s{T2}, s{T2}, s{T3}
    v_add_u32 v67, s{T2}, v82''')
    def G(text): return [II(text)]
    P(f'''s_lshl_b32 s{T2}, s{I}, 4
    s_add_u32 s{T2}, s{T2}, s{J}
    s_lshl_b32 s{MYF}, s{T2}, 7
    s_add_u32 s{MYF}, s{MYF}, 0x{FOFF:x}
    s_lshl_b32 s{DB}, s{I}, 2
    s_lshl_b32 s{T2}, 1, s{J}
    v_mov_b32 v105, s{T2}
    v_mov_b32 v86, 0''')
    freset = P(f'buffer_store_dword v86, v{vFL}, {sr(SW)}, s{MYF} offen sc1')
    fatom = Ins(f'buffer_atomic_or v105, v{vFL}, {sr(SB)}, s{DB} offen offset:8', needs=[freset])
    late0 = II(f'''s_mul_i32 s{W3072}, s{Wv}, 3072
    s_lshl_b32 s{T2}, s{I}, 4
    s_add_u32 s{T2}, s{T2}, s{J}
    v_mov_b32 v207, 0
    s_xor_b32 s{PF}, s{MYF}, 128
    s_mul_i32 s{HS}, s{T2}, {9*8192}
    s_xor_b32 s{T2}, s{T2}, 1
    s_mul_i32 s{HL}, s{T2}, {9*8192}
    s_lshl_b32 s{T2}, s{RG}, 12
    s_add_u32 s{HS}, s{HS}, s{T2}
    s_lshl_b32 s{T3}, s{FH}, 11
    s_add_u32 s{HLN}, s{HS}, s{T3}
    s_add_u32 s{HLN}, s{HLN}, {8*8192}
    s_add_u32 s{HL}, s{HL}, s{T2}
    s_lshl_b32 s{T3}, s{FH}, 13
    s_add_u32 s{HS}, s{HS}, s{T3}
    s_mul_i32 s{BL1}, s{Pp}, 1152
    s_lshl_b32 s{T2}, s{E}, 6
    s_add_u32 s{T2}, s{T2}, 512
    s_add_u32 s{BL1}, s{BL1}, s{T2}
    s_mul_i32 s{T3}, s{RG}, {48*9216}
    s_add_u32 s{BL1}, s{BL1}, s{T3}''')
    late0b = II(f'''s_lshl_b32 s{T2}, s{RG}, 12
    s_lshl_b32 s{T3}, s{I}, 3
    s_add_u32 s{T3}, s{T3}, s{Pp}
    s_mul_i32 s{PS}, s{T3}, {18*8192}
    s_add_u32 s{PS}, s{PS}, s{T2}
    s_add_u32 s{PS}, s{PS}, 0x{POFF:x}
    s_add_u32 s{T3}, s{E}, 8
    s_lshl_b32 s{T3}, s{T3}, 13
    s_add_u32 s{PLN}, s{PS}, s{T3}
    s_lshl_b32 s{T3}, s{FH}, 11
    s_xor_b32 s{T3}, s{T3}, s{ROT}
    s_add_u32 s{PLN}, s{PLN}, s{T3}
    s_add_u32 s{PS}, s{PS}, s{ROT}
    s_mul_i32 s{T3}, s{E}, 10
    s_add_u32 s{T3}, s{T3}, s{FH}
    s_lshl_b32 s{T3}, s{T3}, 13
    s_add_u32 s{PS}, s{PS}, s{T3}
    s_lshl_b32 s{T2}, s{E}, 6
    s_add_u32 s{T2}, s{T2}, 512
    s_mul_i32 s{T1}, s{Pp}, {576*1152}
    s_mul_i32 s{T3}, s{E}, {17*32*1152}
    s_add_u32 s{T1}, s{T1}, s{T3}
    s_mul_i32 s{BD}, s{E}, 640
    s_add_u32 s{BD}, s{BD}, s{T1}
    s_mul_i32 s{T3}, s{FH}, s{SIG}
    s_mul_i32 s{T3}, s{T3}, {32*1152}
    s_add_u32 s{BD}, s{BD}, s{T3}
    s_mul_i32 s{T3}, s{RG}, {16*1152}
    s_add_u32 s{BD}, s{BD}, s{T3}
    s_add_u32 s{T1}, s{T1}, s{T2}''')
    for t in range(3):
        late0b += II(f'''s_mul_i32 s{T2}, s{Wv}, 3
        s_add_u32 s{T2}, s{T2}, {t}
        s_lshr_b32 s{T3}, s{T2}, 1
        s_mul_i32 s{T3}, s{T3}, s{SIG}
        s_mul_i32 s{T3}, s{T3}, {32*1152}
        s_add_u32 s{BL2+t}, s{T1}, s{T3}
        s_and_b32 s{T2}, s{T2}, 1
        s_mul_i32 s{T2}, s{T2}, {16*1152}
        s_add_u32 s{BL2+t}, s{BL2+t}, s{T2}
        s_add_u32 s{BL2+t}, s{BL2+t}, {2048-1024*t}''')
    late0 += II(f'''s_mul_i32 s{T2}, s{T0}, {BLK//2}
    s_lshl_b32 s{T3}, s{J}, 13
    s_add_u32 s{T2}, s{T2}, s{T3}
    s_lshl_b32 s{T3}, s{FH}, 11
    s_add_u32 s{T2}, s{T2}, s{T3}
    s_add_u32 s{T2}, s{T2}, 0x{KOFF:x}
    s_and_b32 s{ROT}, s{ROT}, 2
    s_mul_i32 s{T3}, s{ROT}, {BLK//2}
    s_add_u32 s{T2}, s{T2}, s{T3}
    s_sub_u32 s{QM+2}, 1, s{ROT}
    s_mul_i32 s{QM+2}, s{QM+2}, {BLK}
    s_lshl_b32 s{ROT}, s{ROT}, 10
    s_movk_i32 s{QC}, 4096''')
    late0 += G(f's_cmp_ge_u32 s{J}, 14\ns_cselect_b32 s{QM}, 0x{2*OOB:x}, s{T2}')
    late0 += G(f's_cmp_eq_u32 s{J}, 13\ns_cselect_b32 s{QC}, 0x{OOB:x}, s{QC}')
    late0b += II(f'''s_lshl_b32 s{T2}, s{FH}, 1
    s_add_u32 s{T2}, s{T2}, s{T0}
    s_mul_i32 s{OB}, s{T2}, 18432
    s_lshl_b32 s{T2}, s{J}, 10
    s_add_u32 s{OB}, s{OB}, s{T2}
    s_add_u32 s{OB}, s{OB}, 0x{OOFF:x}
    s_mul_i32 s{OR}, s{I}, {8*18432}
    s_lshl_b32 s{T2}, s{J}, 7
    s_add_u32 s{OR}, s{OR}, s{T2}
    s_add_u32 s{OR}, s{OR}, 0x{OOFF+16384:x}''')
    late0b += G(f's_cmp_eq_u32 s{Wv}, 0\ns_cselect_b32 s{OR}, s{OR}, 0x{OOB:x}')
    late0b += II(f'''s_mov_b32 s{C}, 0x{f2u(SCALE):x}''')
    late0b += G(f's_cmp_lt_u32 s{I}, 2\ns_cselect_b32 s{N0}, 0xffff, 0') + G(f's_cmp_lt_u32 s{I}, 1\ns_cselect_b32 s{N1}, 0xffff, 0')
    late0 += II(f'''s_mul_i32 s{PFD}, s{J0}, {288*1152}
    s_mul_i32 s{T2}, s{SH}, {162*128}
    s_add_u32 s{PFD}, s{PFD}, s{T2}
    s_mul_i32 s{T2}, s{Wv}, {41*128}
    s_add_u32 s{PFD}, s{PFD}, s{T2}''')
    late0 += II(f'''v_lshlrev_b32 v{vL16}, 4, v{vL}
    v_lshrrev_b32 v182, 3, v{vL}
    v_and_b32 v183, 7, v{vL}
    v_lshrrev_b32 v184, 4, v{vL}
    v_and_b32 v185, 15, v{vL}
    v_and_b32 v186, 6, v182
    v_xor_b32 v186, v183, v186
    v_mul_u32_u24 v187, 1152, v182
    v_lshl_add_u32 v187, v186, 4, v187''')
    for t in range(4):
        late0 += II('v_add_u32 v%d, %d, v187' % (vDD[t], (t & 1) * (8 * 1152 - 1024) + (t >> 1) * (128 - 2048) + 2048))
    late0 += II(f'''v_lshrrev_b32 v186, 2, v{vL}
    v_and_b32 v187, 3, v{vL}
    v_and_b32 v188, 2, v184
    v_xor_b32 v188, v187, v188
    v_mul_u32_u24 v190, 9216, v186
    v_lshl_add_u32 v{vDL1}, v188, 4, v190
    v_and_b32 v188, 1, v184
    v_lshlrev_b32 v188, 1, v188
    v_xor_b32 v188, v187, v188
    v_mul_u32_u24 v190, 1152, v186
    v_lshl_add_u32 v{vDL2}, v188, 4, v190
    v_lshrrev_b32 v186, 2, v185
    v_and_b32 v188, 1, v184
    v_lshrrev_b32 v192, 1, v184
    v_lshl_add_u32 v190, v184, 3, v186
    v_lshlrev_b32 v190, 6, v190
    v_xor_b32 v191, s{FH}, v188
    v_lshl_add_u32 v190, v191, 5, v190
    v_lshl_add_u32 v{vTL1}, v187, 3, v190
    v_lshl_add_u32 v190, v184, 2, v186
    v_lshlrev_b32 v190, 6, v190
    v_lshl_add_u32 v190, v191, 5, v190
    v_lshl_add_u32 v{vTL2}, v187, 3, v190
    v_lshl_add_u32 v190, v188, 2, v186
    v_lshrrev_b32 v191, 1, v190
    s_lshl_b32 s{T2}, s{FH}, 1
    v_xor_b32 v191, s{T2}, v191
    v_lshlrev_b32 v190, 7, v190
    v_lshl_add_u32 v190, v192, 10, v190
    v_lshl_add_u32 v190, v191, 5, v190
    v_lshl_add_u32 v{vTD[0]}, v187, 3, v190
    v_xor_b32 v{vTD[1]}, 32, v{vTD[0]}
    v_mov_b32 v189, 0x{OOB:x}
    v_cmp_eq_u32 vcc, 0, v184
    v_lshlrev_b32 v190, 2, v184
    v_sub_u32 v{vDG}, v190, v185
    v_cndmask_b32 v{vOR}, v189, v{vL16}, vcc
    s_lshl_b32 s{T2}, s{RG}, 12
    v_add_u32 v{vHW}, s{T2}, v{vL16}''')
    late0 += G(f's_cmp_ge_u32 s{J}, 9\ns_cselect_b64 vcc, -1, 0')
    late0 += II(f'''v_lshlrev_b32 v191, 6, v185
    v_lshl_add_u32 v191, v184, 4, v191
    v_cndmask_b32 v{vQS[0]}, v{vL16}, v191, vcc
    v_lshlrev_b32 v190, 4, v185
    v_add_u32 v190, {RT4}, v190
    v_lshlrev_b32 v191, 4, v184
    v_add_u32 v191, {RTB}, v191
    v_cndmask_b32 v190, v190, v191, vcc
    s_lshl_b32 s{T2}, s{RG}, 10
    v_add_u32 v{vRS}, s{T2}, v190
    v_mov_b32 v204, 0
    v_mov_b32 v205, 0
    v_mov_b32 v206, 0
    s_mul_i32 s{T2}, s{J}, 2304
    s_add_u32 s{T2}, s{T2}, 0x{KOFF-BLK+148*256:x}''')
    late0 += G(f's_cmp_eq_u32 s{I}, 0\ns_cselect_b32 s{T2}, s{T2}, 0x{OOB:x}')
    guard = Ins(f'buffer_store_dwordx4 v[204:207], v{vOR}, {sr(SW)}, s{T2} offen sc1')
    late0 += [guard]
    late0 += II(f'''v_mov_b32 v200, 0x3f803f80
    v_mov_b32 v201, 0x3f803f80
    v_mov_b32 v202, 0x3f803f80
    v_mov_b32 v203, 0x3f803f80
    s_lshl_b32 s{T2}, s{I}, 2
    s_add_u32 s{T2}, s{T2}, s{Wv}
    s_mul_i32 s{T2}, s{T2}, {BLK}
    s_add_u32 s{T2}, s{T2}, 0x{KOFF+110592:x}
    v_cmp_gt_u32 vcc, 8, v{vL}
    s_nop 0
    s_nop 0
    v_cndmask_b32 v199, v189, v{vL16}, vcc''')
    late0 += G(f's_cmp_eq_u32 s{J}, 14\ns_cselect_b32 s{T2}, s{T2}, 0x{OOB:x}')
    ones_st = Ins(f'buffer_store_dwordx4 v[200:203], v199, {sr(SW)}, s{T2} offen sc1')
    late0 += [ones_st]

    slots = []
    def dma4(srds, voffs, sbase, add, sadd=0, bump=None, pre=''):
        def f(rp):
            if bump is not None:
                g = [II((bump + '\n' if bump else '') + f's_add_u32 s{OFF}, s{sbase}, {add}\ns_add_u32 m0, s{W4096}, {rp*SLOT}')]
            elif sadd and not add:
                g = [II(pre + f's_mul_i32 s{OFF}, s{SIG}, {sadd}\ns_add_u32 s{OFF}, s{OFF}, s{sbase}\ns_add_u32 m0, s{W4096}, {rp*SLOT}')]
            elif sadd:
                g = [II(f's_mul_i32 s{OFF}, s{SIG}, {sadd}\ns_add_u32 s{OFF}, s{OFF}, s{sbase}'),
                     II(f's_add_u32 s{OFF}, s{OFF}, {add}\ns_add_u32 m0, s{W4096}, {rp*SLOT}')]
            else:
                g = [II(f's_add_u32 s{OFF}, s{sbase}, {add}\ns_add_u32 m0, s{W4096}, {rp*SLOT}')]
            for t in range(4):
                g.append([Ins('buffer_load_dwordx4 v%d, %s, s%d offen offset:%d lds' % (voffs[t], sr(srds[t]), OFF, 1024 * t))])
            return g
        return f
    def dma_l1(s):
        def f(rp):
            g = []
            for t in range(3):
                pre = II(f's_add_u32 s{OFF}, s{BL1}, {s*96*9216 + t*(16*9216-1024)}')
                if t == 0: pre += II(f's_add_u32 m0, s{W3072}, {rp*SLOT}')
                g.append(pre)
                g.append(II(f'buffer_load_dwordx4 v{vDL1}, {sr(SL)}, s{OFF} offen offset:{1024*t} lds'))
            return g
        return f
    def dma_l2(s):
        def f(rp):
            g = [II(f's_add_u32 m0, s{W3072}, {rp*SLOT}')]
            for t in range(3):
                g.append(II(f's_mul_i32 s{OFF}, s{SIG}, {s*192*1152}\ns_add_u32 s{OFF}, s{OFF}, s{BL2+t}'))
                g.append(II(f'buffer_load_dwordx4 v{vDL2}, {sr(SD)}, s{OFF} offen offset:{1024*t} lds'))
            return g
        return f
    def accf(base, tile): return lambda mt: base + (tile * 4 + mt) * 4
    def bf(pos): return lambda mt: breg(pos, mt)
    def pairlike(vT, acc, s):
        return [[Frag(vT[ft], ks * 8192 + m * 2048, ks * 8192 + m * 2048 + 512, accf(acc, 2 * m + ft), bf(2 * s + ks), s == 0 and ks == 0) for ks in range(2)] for m in range(2) for ft in range(2)]
    for s in range(9):
        slots.append(Slot(pairlike(vTQ, ACCA, s), dma4([SQ] * 4, vDQ, BQ, s * 64 * 3456)))
    PACC = [ACCB, ACCB, ACCA, ACCB]
    def pstep(q):
        for s in range(9):
            slots.append(Slot(pairlike(vTP, PACC[q], s), dma4([SG, SG, SU, SU], [vDP[0], vDP[1], vDP[0], vDP[1]], BP, s * 64 * 9216, bump=(f's_lshl_b32 s{OFF}, s{SIG}, 7\ns_add_u32 s{BP}, s{BP}, s{OFF}' if s == 0 and q else ''))))
    pstep(0)
    for s in range(6):
        gs = [[Frag(vTL1, m * 6144 + ks * 2048, m * 6144 + ks * 2048 + 256, accf(ACCA, m), bf(3 * s + ks), s == 0 and ks == 0) for ks in range(3)] for m in range(2)]
        slots.append(Slot(gs, dma_l1(s)))
    pstep(1); pstep(2); pstep(3)
    NSEG1 = len(slots)
    hpos = {}
    for n, k in enumerate([6, 7, 11, 10]): hpos[k] = n
    for n, k in enumerate([0, 1, 2, 3, 4, 5, 16, 17, 14, 15, 12, 13, 9, 8]): hpos[k] = 4 + n
    lorder = [8, 7, 6, 0, 1, 2, 4, 3, 5]
    def dstep(q):
        acc = ACCA
        for n, ln in enumerate(lorder):
            gs = [[Frag(vTD[ft], ks * 8192 + c * 2048, ks * 8192 + c * 2048 + 4096, accf(acc, 2 * c + ft), bf(hpos[2 * ln + ks]), n == 0 and ks == 0) for ks in range(2)] for c in range(2) for ft in range(2)]
            slots.append(Slot(gs, dma4([SD] * 4, vDD, BD, 0, ln * 64 * 1152, pre=(f's_add_u32 s{BD}, s{BD}, 256\n' if q and n == 0 else ''))))
    dstep(0)
    for s in range(3):
        gs = [[Frag(vTL2, ks * 2048, ks * 2048 + 1024, accf(SP, 0), bf(hpos[6 * s + ks]), s == 0 and ks == 0) for ks in range(3 * hg, 3 * hg + 3)] for hg in range(2)]
        slots.append(Slot(gs, dma_l2(s)))
    n0 = len(slots); dstep(1)
    for sl in slots[n0:]:
        for g in sl.groups:
            for f in g: f.acc = (lambda old: (lambda mt: old(mt) + (ACCB - ACCA)))(f.acc)
    NS = len(slots)
    vWD = [3, 4, 5, 6]; vWD2 = 8; vWT = [9, 10, 11, 12]; vPL = 13
    TL, TP, TX, TM, TV, OL, FB = 87, 88, 89, 90, 91, 92, 93
    for s in range(4): slots.append(Slot([], dma4([SG] * 4, vWD, TL, s * 4 * 36 * 1152)))
    def dma_w2(rp):
        return [II(f's_mul_i32 s{OFF}, s{Wv}, {(144-36)*1152}\ns_add_u32 s{OFF}, s{OFF}, s{TL}\ns_lshr_b32 m0, s{W4096}, 1\ns_add_u32 m0, m0, {rp*SLOT}'),
                II(f'buffer_load_dwordx4 v{vWD2}, {sr(SG)}, s{OFF} offen lds'), II(f's_add_u32 s{OFF}, s{OFF}, {72*1152-1024}'),
                II(f'buffer_load_dwordx4 v{vWD2}, {sr(SG)}, s{OFF} offen offset:1024 lds')]
    slots.append(Slot([], dma_w2))
    NSX = len(slots)
    phys = {n: n for n in range(9)}; load_at = {}; hphys = {}
    nxt = 9
    divert = {18: 0, 33: 1, 42: 2, 50: 3}
    for n in range(2, NSEG1):
        if n in divert: hphys[divert[n]] = phys[n - 2]
        else: phys[nxt] = phys[n - 2]; load_at[n] = nxt; nxt += 1
    att_loads = []
    for f in [phys[NSEG1 - 2], phys[NSEG1 - 1], hphys[0], hphys[1], hphys[2]]:
        phys[nxt] = f; att_loads.append(nxt); nxt += 1
    extra_loads = {}
    for n in range(NSEG1 + 2, NS):
        q = n - (NSEG1 + 2)
        if q == 1: phys[nxt] = hphys[3]; extra_loads[n] = [nxt]; nxt += 1
        if nxt < NSX: phys[nxt] = phys[n - 2]; load_at[n] = nxt; nxt += 1
    assert nxt == NSX
    def dma_groups(n):
        g = slots[n].dma(phys[n])
        slots[n].loads = [x for grp in g for x in grp if x.kind == 'vmem']
        return g

    SV = opt.get('sv', 4.75)
    loud = set(); svc = {id(guard): 1, id(ones_st): 1}
    def T(text, q=56):
        x = Ins(text); loud.add(id(x)); svc[id(x)] = q; return x
    VLS = opt.get('vls', [[0, 8, 4, 1, 7], [2, 6, 3, 5]])
    def pf_gu(VL, t0, msk, q=0):
        nl = len(VL); tab = sum(l << (4 * n) for n, l in enumerate(VL)); a_, b_, c_ = t0, t0 + 1, t0 + 2
        return II(f'''v_mul_u32_u24 v{b_}, {65536//nl+1}, v{vL}
        v_lshrrev_b32 v{b_}, 16, v{b_}
        v_cmp_gt_u32 {msk}, 9, v{b_}
        v_mul_u32_u24 v{a_}, {4*nl}, v{b_}
        v_lshlrev_b32 v{c_}, 2, v{vL}
        v_sub_u32 v{a_}, v{c_}, v{a_}
        v_mov_b32 v{c_}, 0x{tab:x}
        v_bfe_u32 v{a_}, v{c_}, v{a_}, 4
        v_mul_u32_u24 v{b_}, 9216, v{b_}
        v_lshl_add_u32 v{b_}, v{a_}, 7, v{b_}
        v_mov_b32 v{a_}, 0x{OOB:x}
        v_cndmask_b32 v{b_}, v{a_}, v{b_}, {msk}''') + [T(f'buffer_load_dword v0, v{b_}, {sr(SL)}, s{PFP} offen' + NT, q)]
    emit_all(xload(1))
    stamp('setup')
    if opt.get('est'):
        P('s_waitcnt lgkmcnt(0)')
        for n, r in enumerate((76, 78, 80, 82, 86)): P('s_mov_b32 s%d, s%d' % (sTS + 5 + n, r))

    NPRE = opt.get('npre', 5)
    GU2 = 0
    gA, gB = pf_gu(VLS[0], 106, 's[78:79]'), pf_gu(VLS[1], 106, 's[78:79]')
    dm0 = [g for n in range(NPRE) for g in dma_groups(n)]
    if opt.get('so', 0) == 0:
        bg = [('GAP', 30)] + xload(2) + xload(3) + [qtouch, ('GAP', 150)] + dm0 + [gA, gB, [fatom]]
    elif opt.get('so', 0) == 3:
        bg = [('GAP', 30)] + xload(2) + xload(3) + [qtouch, gA, [fatom], ('GAP', opt.get('ga', 330))] + dm0
    elif opt.get('so', 0) == 4:
        bg = [('GAP', 30)] + xload(2) + xload(3) + [qtouch, gA, ('GAP', opt.get('ga', 330))] + dm0 + [gB, [fatom]]
    elif opt.get('so', 0) == 5:
        bg = [('GAP', 30)] + xload(2) + xload(3) + [qtouch, ('GAP', 150)] + dm0 + [gA, [fatom]]
    elif opt.get('so', 0) == 1:
        bg = [('GAP', opt.get('gap0', 30)), qtouch, gA, ('GAP', opt.get('ga', 200))] + xload(2) + xload(3) + dm0 + [gB, [fatom]]
    else:
        bg = [('GAP', opt.get('gap0', 30))] + xload(2) + [qtouch, gA, ('GAP', opt.get('ga', 300))] + xload(3) + dm0 + [gB, [fatom]]
    cnt = [0]; lq = []; lcnt = [0, 10]
    EVERY = opt.get('every', 8)
    def V(t, needs=()):
        r = P(Ins(t, needs))
        cnt[0] += 1
        if bg and cnt[0] >= EVERY:
            cnt[0] = 0
            while bg:
                g = bg.pop(0)
                if isinstance(g, tuple): cnt[0] = -g[1]; break
                emit_all(g)
                if any(x.kind == 'vmem' for x in g): break
        lcnt[0] += 1
        if lq and lcnt[0] >= lcnt[1]:
            lcnt[0] = 0; emit_all([lq.pop(0)])
        return r
    def reduce8(r):
        V('v_add_f32_dpp v%d, v%d, v%d quad_perm:[1,0,3,2] row_mask:0xf bank_mask:0xf' % (r, r, r))
        V('v_add_f32_dpp v%d, v%d, v%d quad_perm:[2,3,0,1] row_mask:0xf bank_mask:0xf' % (r, r, r))
        V('v_add_f32_dpp v%d, v%d, v%d row_half_mirror row_mask:0xf bank_mask:0xf' % (r, r, r))
    def ln_block(blk, defer=False):
        X = XR + 36 * blk
        wa = [64, 76][blk & 1]
        for n in range(36):
            if n < 4: V('v_dot2_f32_bf16 v%d, v%d, s%d, 0' % (68 + n, X + n, ONE2), needs=[xl[blk][0]])
            else: V('v_dot2_f32_bf16 v%d, v%d, s%d, v%d' % (68 + n % 4, X + n, ONE2, 68 + n % 4), needs=[xl[blk][n // 4]])
        stamp('sum%d' % blk)
        V(f's_and_b32 s{T2}, s{XRO+blk}, 8')
        V(f's_add_u32 s{T2}, s{T2}, {32*(blk>>1)}')
        V(f'v_add_u32 v77, s{T2}, v67')
        V('v_lshlrev_b32 v78, 4, v77')
        V('v_add_u32 v78, %d, v78' % RT4)
        V('v_add_f32 v68, v68, v69')
        V('v_add_f32 v70, v70, v71')
        V('v_add_f32 v68, v68, v70')
        V('v_and_b32 v101, 0x70, v77')
        V('v_mul_u32_u24 v101, 12, v101')
        reduce8(68)
        V('v_mul_f32 v68, 0x%x, v68' % f2u(-1.0 / 576))
        wr = []
        LAG = 2
        for n in range(36 + LAG + 1):
            if n < 36:
                t = 80 + 2 * (n % 8)
                V('v_dot2_f32_bf16 v%d, v%d, s%d, v68' % (t, X + n, LO))
                V('v_dot2_f32_bf16 v%d, v%d, s%d, v68' % (t + 1, X + n, HI))
            m = n - LAG
            if 0 <= m < 36:
                t = 80 + 2 * (m % 8)
                V('v_cvt_pk_bf16_f32 v%d, v%d, v%d' % (X + m, t, t + 1))
            m = n - LAG - 1
            if 0 <= m < 36:
                V('v_dot2_f32_bf16 v%d, v%d, v%d, %s' % (72 + m % 4, X + m, X + m, '0' if m < 4 else 'v%d' % (72 + m % 4)))
                if m % 4 == 3:
                    w = Ins('ds_write_b128 v%d, %s offset:%d' % (wa, vr(X + m - 3), (m // 4) * 2048)); wr.append(w)
                    if not defer: P(w)
        dwr = list(wr)
        V('v_lshl_add_u32 v101, v77, 2, v101')
        V('v_add_u32 v101, %d, v101' % RTB)
        V('v_add_f32 v72, v72, v73')
        V('v_add_f32 v74, v74, v75')
        V('v_add_f32 v72, v72, v74')
        V('v_mov_b32 v73, 0x%x' % f2u(1e-5))
        reduce8(72)
        V('v_fmac_f32 v73, 0x%x, v72' % f2u(1.0 / 576))
        V('v_rsq_f32 v96, v73')
        for t in (1, 2, 3): V('v_mov_b32 v%d, v96' % (96 + t))
        wr.append(P('ds_write_b128 v78, v[96:99]'))
        wr.append(P('ds_write_b32 v101, v96'))
        return wr, dwr
    slow = []
    nlab = [0]
    def alt_site(inline, other):
        nlab[0] += 1; n = nlab[0]
        slow.append(f'alt{n}:\n' + ''.join('    %s\n' % t for t in other) + f'    s_branch alt{n}_e\n')
        return [Ins(f's_cbranch_vccz alt{n}')] + inline + [Ins(f'alt{n}_e:')]
    def xn_reads(rho):
        return [Ins('ds_read_b128 %s, v%d offset:%d' % (breg(ks, 2 * rho + t), 65 + (ks & 1), t * 18432 + ks * 1024)) for ks in range(18) for t in range(2)]
    w0, _ = ln_block(0); w1, _ = ln_block(1)
    stamp('ln01')
    P(Ins('s_barrier', needs=w0 + w1))
    r0 = xn_reads(0)
    lq += [r0[n:n + 2] for n in range(0, 36, 2)]; lcnt[1] = 8
    w2, d2 = ln_block(2, defer=True)
    emit_all(lq); lq.clear()
    P(Ins('s_barrier', needs=r0))
    lq += d2; lcnt[1] = 12
    w3, _ = ln_block(3)
    emit_all(lq); lq.clear()
    emit_all([g for g in bg if not isinstance(g, tuple)]); bg.clear()
    stamp('ln23')
    P(Ins('s_barrier', needs=w2 + w3 + slots[0].loads))
    r1 = xn_reads(1)
    stamp('mf0')

    window = {}
    AH = 4; AHM = opt.get('ah', 6)
    def make_reads(fr, sidx, fi):
        w, o = divmod(phys[sidx] * SLOT, 65536)
        out = []
        if window.get(fr.base, 0) != w:
            d = (w - window.get(fr.base, 0)) * 65536
            out.append(Ins('v_add_u32 v%d, 0x%x, v%d' % (fr.base, d & 0xffffffff, fr.base)))
            window[fr.base] = w
        f = FR + 4 * (fi % 8)
        fr.reg = f
        fr.rd = [Ins('ds_read_b64_tr_b16 %s, v%d offset:%d' % (vr(f + 2 * h, 2), fr.base, o + fr.imm[h])) for h in range(2)]
        return [out + [fr.rd[0]], [fr.rd[1]]]
    def segment(s0, s1, fillers, bar_extra, first_loads=(), extra_need=None, hook=None, quiet=(), pre=()):
        frs = []; groups = []
        for s in range(s0, s1):
            for g in slots[s].groups:
                groups.append((s, len(frs), g))
                for f in g: frs.append((s, f))
        nm = sum(4 * len(g) for _, _, g in groups)
        gm = [[] for _ in range(nm)]; ga = [[] for _ in range(nm)]; gz = [[] for _ in range(nm)]
        used = [0] * nm; vmw = [0] * (nm + 16)
        mf = []; issued = 0; slot_start = {}
        ismem = lambda x: x.kind in ('ds', 'vmem')
        def put(k, items, cost=None):
            (gm if len(items) == 1 and ismem(items[0]) else ga)[k].extend(items)
            used[k] += min(2, sum(x.cost for x in items)) if cost is None else cost
        while issued < AH:
            s, f = frs[issued]
            emit_all(make_reads(f, s, issued)); issued += 1
        emit_all(list(pre))
        pend = [(-1, list(first_loads), ())]
        barpos = {}; vcand = set(); fv = set()
        for (s, f0, g) in groups:
            a = len(mf)
            slot_start.setdefault(s, a)
            n = 4 * len(g)
            for mt in range(4):
                for f in g: mf.append((s, f, mt, g))
            if a > 0: used[a - 1] += 1
            vcand.update(range(a + 1, a + n, 4))
            items = []
            while issued < min(len(frs), f0 + min(8, len(g) + AHM)) and frs[issued][0] <= s + 1:
                s2, f2 = frs[issued]
                r = make_reads(f2, s2, issued)
                if frs[issued - 1][0] != s2: r[0] = ['BAR', s2] + r[0]
                items += r; issued += 1
            for q, it in enumerate(items):
                k = a + q * n // len(items)
                if it[0] == 'BAR':
                    s2 = it[1]
                    ex = bar_extra.get(s2, ((), ()))
                    b = Ins('s_barrier'); b.needs = ('LAZY', s2, list(ex[0]) + ([x for f in g for x in f.rd] if k == a else []))
                    gz[k - 1].append(b); used[k - 1] += 1 if k == a else 2
                    barpos[s2] = k - 1
                    pend.append((k - 1, list(extra_loads.get(s2, [])) + ([load_at[s2]] if s2 in load_at else []), ex[1]))
                    it = it[2:]
                if len(it) == 2: put(max(k - 1, 0), it[:1]); it = it[1:]
                put(k, it)
        class Chain:
            def __init__(c, items, start): c.q = list(items); c.rel = start; c.last = -1; c.cap = 2
        dl = []; dead = {}
        for (k, lds_, post) in pend:
            dl.append(('ATK', k + 1)); dl += list(post)
            for n in lds_:
                for g in dma_groups(n):
                    for x in g:
                        dl.append(x)
                        if x.kind == 'vmem': dead[id(x)] = (n, barpos.get(n, 10 ** 9 if n < NS else nm + opt.get('wdl', -100))); svc[id(x)] = SV * (2 if len(slots[n].groups) == 2 else 1)
        chains = [Chain(dl, 0)] + [Chain(lst, slot_start[s] + off) for (s, off, lst) in fillers if lst]
        leads = {}
        pfree = 0.0
        def head(c, k):
            while c.q and isinstance(c.q[0], tuple):
                it = c.q[0]
                if c.rel > k: return None
                if opt.get('dbg') and it[0] in ('AT', 'BY'):
                    cs = max(x for x in slot_start if slot_start[x] <= k); print('   marker', it, 'reached at slot', cs, '+', k - slot_start[cs], file=sys.stderr)
                if it[0] == 'AT': c.rel = slot_start[it[1]] + it[2]
                elif it[0] == 'ATK': c.rel = it[1]
                elif it[0] == 'BY': assert k <= slot_start[it[1]], ('filler late', it, k, slot_start[it[1]])
                elif it[0] == 'CAP': c.cap = it[1]
                elif it[0] == 'SKIP': c.rel = k + it[1]
                c.q.pop(0)
            if not c.q or c.rel > k: return None
            return c.q[0]
        for k in range(nm):
            if not gm[k] and used[k] < 2:
                cand = []
                for n_, c in enumerate(chains):
                    x = head(c, k)
                    if x is None or isinstance(x, list) or not ismem(x) or c.last >= k: continue
                    if x.kind == 'ds':
                        if used[k] + x.cost > 2: continue
                    elif id(x) not in loud and pfree - k > opt.get('bl', 1.5): continue
                    pr = 1
                    if n_ == 0: pr = 0 if dead.get(id(x), (0, 0))[1] - k < opt.get('crit', 72) else 2
                    cand.append((pr, n_))
                if cand:
                    c = chains[min(cand)[1]]; x = c.q.pop(0); c.last = k
                    put(k, [x], x.cost if x.kind == 'ds' else 1)
                    if x.kind == 'vmem':
                        pfree = max(pfree, k + svc[id(x)]) if id(x) in loud else max(pfree, k) + svc.get(id(x), opt.get('svst', SV) if 'store' in x.op else SV)
                        if id(x) in dead and dead[id(x)][1] < 10 ** 9: leads[dead[id(x)][0]] = dead[id(x)][1] - k
            for c in chains:
                while True:
                    x = head(c, k)
                    if x is None or (not isinstance(x, list) and ismem(x)): break
                    it = x if isinstance(x, list) else [x]
                    cst = min(2, sum(y.cost for y in it))
                    if used[k] + cst > c.cap: break
                    c.q.pop(0); c.last = k; ga[k].extend(it); used[k] += cst
        left = [(x if isinstance(x, list) else [x]) for c in chains for x in c.q if not isinstance(x, tuple)]
        print('DMA leads:', ' '.join('%d:%d' % x for x in sorted(leads.items())), file=sys.stderr)
        assert min(v for n_, v in leads.items() if n_ < NS) > opt.get("minlead", 30)
        for k, (s, f, mt, g) in enumerate(mf):
            if hook: hook(k, s)
            c = f.acc(mt)
            nd = [x for f_ in g for x in f_.rd] + ([extra_need(f, mt)] if extra_need else [])
            P(Ins('v_mfma_f32_16x16x32_bf16 %s, %s, %s, %s' % (vr(c), vr(f.reg), f.b(mt), '0' if f.first else vr(c)), needs=nd))
            for x in gz[k]: x.needs = list(slots[x.needs[1]].loads) + list(x.needs[2])
            emit_all(gm[k] + ga[k] + gz[k])
        return left

    def mul(d, a_, b_): return Ins('v_mul_f32 v%d, v%d, v%d' % (d, a_, b_))
    def cvt(d, a_, b_): return Ins('v_cvt_pk_bf16_f32 v%d, v%d, v%d' % (d, a_, b_))
    kv_stores = []
    def qkv_epi():
        rs = [Ins('ds_read_b128 %s, v%d offset:%d' % (vr(SP + 4 * mt), vRS, 256 * mt)) for mt in range(4)]
        L = list(rs) + [('SKIP', 6)]
        for mp in range(2):
            if mp: L += II(f's_add_u32 s{QM}, s{QM}, s{QM+2}')
            for c in range(2):
                if c: L += II(f's_add_u32 s{T2}, s{QM}, s{QC}')
                for ft in range(2):
                    te = ACCA + ((2 * c + ft) * 4 + 2 * mp) * 4; to = te + 4
                    for r in range(8):
                        x = mul(te + r, te + r, SP + 8 * mp + r); x.needs = [rs[2 * mp + r // 4]]; L.append(x)
                    L += [cvt(te, te, te + 1), cvt(te + 1, te + 2, te + 3), cvt(te + 2, to, to + 1), cvt(te + 3, to + 2, to + 3)]
                    st = Ins(f'buffer_store_dwordx4 {vr(te)}, v{vQS[0]}, {sr(SW)}, s{T2 if c else QM} offen offset:{1024*ft} sc1')
                    L.append(st); kv_stores.append(st)
        return L
    def l1_epi():
        L = II(f's_lshl_b32 s{T3}, s{FH}, 3\ns_add_u32 s{T3}, s{T3}, {HLONE}\nv_add_u32 v{SP+11}, s{T3}, v{vHW}')
        ws_ = []
        for mt in range(4):
            g0 = ACCA + mt * 4; u0 = ACCA + (4 + mt) * 4
            L += [mul(g0 + t, g0 + t, u0 + t) for t in range(4)] + [cvt(u0, g0, g0 + 1), cvt(u0 + 1, g0 + 2, g0 + 3)]
            w = Ins(f'ds_write_b64 v{SP+11}, {vr(u0,2)} offset:{1024*mt}'); L.append(w); ws_.append(w)
        L2 = II(f's_lshl_b32 s{T3}, s{FH}, 11\ns_add_u32 s{T3}, s{T3}, {HLONE}\nv_add_u32 v{SP+11}, s{T3}, v{vHW}')
        rd = [Ins(f'ds_read_b128 {vr(ACCA+4*m)}, v{SP+11} offset:{1024*m}') for m in range(2)]
        sts = [Ins(f'buffer_store_dwordx4 {vr(ACCA+4*m)}, v{vL16}, {sr(SW)}, s{HLN} offen offset:{1024*m} sc1', needs=[rd[m]]) for m in range(2)]
        return L, sts, ws_, L2 + rd + [('SKIP', 10)] + sts
    hw = {}
    def pair_epi(acc, q):
        L = II(f's_add_u32 s{ST}, s{HS}, {q*2*8192}\ns_lshl_b32 s{T1}, s{FH}, 13\ns_add_u32 s{T1}, s{T1}, {hphys[q]*SLOT}\nv_add_u32 v{SP+11}, s{T1}, v{vHW}')
        sts = []; hw[q] = []
        for mt in range(4):
            g0 = acc + mt * 4; g1 = acc + (4 + mt) * 4; u0 = acc + (8 + mt) * 4; u1 = acc + (12 + mt) * 4
            L += [mul(g0 + t, g0 + t, u0 + t) for t in range(4)]
            L += [mul(g1 + t, g1 + t, u1 + t) for t in range(4)]
            L += [cvt(u0, g0, g0 + 1), cvt(u0 + 1, g0 + 2, g0 + 3), cvt(u0 + 2, g1, g1 + 1), cvt(u0 + 3, g1 + 2, g1 + 3)]
            st = Ins(f'buffer_store_dwordx4 {vr(u0)}, v{vL16}, {sr(SW)}, s{ST} offen offset:{1024*mt} sc1')
            w = Ins(f'ds_write_b128 v{SP+11}, {vr(u0)} offset:{1024*mt}', cost=2)
            L += [st, w]; sts.append(st); hw[q].append(w)
        return L, sts
    def d_epi(acc, q, cs=(0, 1)):
        L = []
        for c in cs:
            L.append(Ins(f's_add_u32 s{ST}, s{PS}, {(2*q+c)*2*8192}'))
            for mt in range(4):
                t0 = acc + (8 * c + mt) * 4; t1 = acc + (8 * c + 4 + mt) * 4
                if mt == 2: L.append(Ins(f's_xor_b32 s{ST}, s{ST}, 2048'))
                L += [cvt(t0, t0, t0 + 1), cvt(t0 + 1, t0 + 2, t0 + 3), cvt(t0 + 2, t1, t1 + 1), cvt(t0 + 3, t1 + 2, t1 + 3)]
                L.append(Ins(f'buffer_store_dwordx4 {vr(t0)}, v{vL16}, {sr(SW)}, s{ST} offen offset:{1024*(mt&1)} sc1'))
        return L
    def poll_check(name, ld, test):
        g = [Ins(t, needs=[ld] if n == 0 else []) for n, t in enumerate(test)]
        g.append(Ins('s_cbranch_scc0 %s_slow' % name))
        g.append(Ins('%s_ok:' % name))
        S = Prog()
        S.label('%s_slow' % name)
        S('s_mov_b32 s%d, 400000' % SPN)
        S.label('%s_loop' % name)
        S('s_sleep 2')
        S(ld.text)
        S('s_waitcnt vmcnt(0)')
        S('s_sub_u32 s%d, s%d, 1' % (SPN, SPN))
        S('s_cbranch_scc1 %s_ok' % name)
        for t in test: S(t)
        S('s_cbranch_scc0 %s_loop' % name)
        S('s_branch %s_ok' % name)
        slow.append(S.text())
        return g
    def setflag(n, reg):
        return II(f'v_mov_b32 v{reg}, {n}\nbuffer_store_dword v{reg}, v{vFL}, {sr(SW)}, s{MYF} offen sc1')
    def hpoll(n, reg):
        ld = T(f'buffer_load_dword v{reg}, off, {sr(SW)}, s{PF} sc1')
        return ld, poll_check('h%d' % n, ld, [f'v_readfirstlane_b32 s{T2}, v{reg}', f's_cmp_ge_u32 s{T2}, {n}'])

    qe = qkv_epi()
    pe = [pair_epi(PACC[q], q) for q in range(4)]
    le = l1_epi()
    VREG = [ACCA + 4 * n for n in range(16)] + [SP + 4 * n for n in range(4)]
    G0M, G1M = 96, 98
    late = II(f'''s_mov_b32 s{SQ}, s8
    s_mov_b32 s{SQ+1}, s9
    s_mov_b32 s{SQ+2}, 0x{576*1152:x}
    s_mul_i32 s{T1}, s{T0}, {BLK//2}
    s_mul_i32 s{T2}, s{J}, 2304
    s_add_u32 s{T1}, s{T1}, s{T2}
    s_mov_b32 s{G0M}, 0xffff
    s_mov_b32 s{G0M+1}, 0
    s_mov_b32 s{G1M}, 0xffff0000
    s_mov_b32 s{G1M+1}, 0''')
    for a_ in range(5):
        late += II(f's_add_u32 s{KO+a_}, s{T1}, 0x{KOFF + (2*a_-9)*BLK:x}')
        if a_ < 4:
            late.append(II(f's_cmp_ge_u32 s{T0}, {16-4*a_}\ns_cselect_b32 s{KO+a_}, s{KO+a_}, 0x{OOB:x}\ns_cselect_b32 s{KB+a_}, 0, 0xf149'))
    a0, a1, a2, a3 = SP, SP + 1, SP + 2, SP + 3
    vTK, vQR, vTD_, vR0, vR1 = SP + 4, SP + 5, QF + 12, SP + 7, SP + 8
    late += II(f'''v_and_b32 v{a0}, 15, v{vL}
    v_lshrrev_b32 v{a1}, 4, v{vL}
    v_mov_b32 v{a3}, 0x{OOB:x}
    s_mul_i32 s{T2}, s{FH}, 1280
    s_add_u32 s{T3}, s{T2}, {BLK+144*256}
    v_add_u32 v{vKM}, s{T3}, v{vL16}
    v_lshlrev_b32 v{a1}, 4, v{a1}
    v_lshl_add_u32 v{a1}, v{a0}, 6, v{a1}
    s_add_u32 s{T3}, s{T2}, {BLK+73728}
    v_add_u32 v{vVM}, s{T3}, v{a1}
    s_lshl_b32 s{T2}, s{FH}, 7
    s_add_u32 s{T2}, s{T2}, {BLK+73728+1024}
    v_add_u32 v{a1}, s{T2}, v{a1}
    v_cmp_gt_u32 vcc, 2, v{a0}
    s_lshl_b32 s{T2}, s{FH}, 2
    s_add_u32 s{T2}, s{T2}, {BLK+148*256}
    v_lshlrev_b32 v{a2}, 4, v{a0}
    v_cndmask_b32 v{vVR}, v{a3}, v{a1}, vcc
    v_add_u32 v{a2}, s{T2}, v{a2}
    v_cmp_gt_u32 vcc, 32, v{vL}
    v_subrev_u32 v{a1}, {BLK-8}, v{a2}
    v_cndmask_b32 v{vR0}, v{a3}, v{a2}, {sr(G0M,2)}
    v_cndmask_b32 v{vQR}, v{a3}, v{a2}, vcc
    v_cndmask_b32 v{vR1}, v{a3}, v{a1}, {sr(G1M,2)}
    v_cndmask_b32 v{vKR}, v{vR0}, v{a1}, {sr(G1M,2)}
    v_and_b32 v{a0}, 3, v{a0}
    s_mul_i32 s{T2}, s{J}, 2304
    s_sub_u32 s{T2}, {BLK+110592}, s{T2}
    v_mov_b32 v{a2}, s{T2}
    v_cmp_eq_u32 vcc, 2, v{a0}
    v_mul_u32_u24 v{a0}, 3641, v{vL}
    v_lshrrev_b32 v{a0}, 16, v{a0}
    v_cndmask_b32 v{vVR}, v{vVR}, v{a2}, vcc
    v_lshlrev_b32 v{a1}, 7, v{vL}
    v_cmp_gt_u32 vcc, 41, v{vL}
    v_mul_u32_u24 v{a0}, {36864-18*128}, v{a0}
    v_lshl_add_u32 v{a0}, v{vL}, 7, v{a0}
    v_cndmask_b32 v{vTD_}, v{a3}, v{a1}, vcc
    v_cmp_gt_u32 vcc, 54, v{vL}
    s_nop 0
    s_nop 0
    v_cndmask_b32 v{vTK}, v{a3}, v{a0}, vcc''')
    kvld = T(f'buffer_load_dwordx4 {vr(SP+12)}, off, {sr(SB)}, s{DB} sc1', 32)
    kvtest = [f'v_readfirstlane_b32 s{T2}, v{SP+12}', f'v_readfirstlane_b32 s{T3}, v{SP+13}', f'v_readfirstlane_b32 s{T1}, v{SP+14}',
              f's_or_b32 s{T2}, s{T2}, s{N0}', f's_or_b32 s{T3}, s{T3}, s{N1}', f's_and_b32 s{T2}, s{T2}, s{T3}',
              f's_and_b32 s{T2}, s{T2}, s{T1}', f's_cmp_eq_u32 s{T2}, 0xffff']
    kv2pre = II(f'''v_lshlrev_b32 v{SP+9}, 7, v{vL}
    v_cmp_gt_u32 vcc, 48, v{vL}
    s_lshl_b32 s{DB}, s{I}, 11
    s_add_u32 s{DB}, s{DB}, 0x{FOFF-4096:x}
    v_cndmask_b32 v{SP+9}, v{a3}, v{SP+9}, vcc
    s_lshl_b32 s{N1}, s{N1}, 16
    s_or_b32 s{N1}, s{N1}, s{N0}''')
    kv2ld = T(f'buffer_load_dword v{SP+12}, v{SP+9}, {sr(SW)}, s{DB} offen sc1', 32)
    kv2test = [f'v_cmp_le_u32 vcc, 1, v{SP+12}', 's_nop 1', f's_or_b32 s{T2}, vcc_lo, s{N1}', f's_or_b32 s{T3}, vcc_hi, 0xffff0000', f's_and_b32 s{T2}, s{T2}, s{T3}', f's_cmp_eq_u32 s{T2}, -1']
    kvpre = II(f'''s_lshl_b32 s{T3}, s{I}, 2
    s_add_u32 s{T3}, s{T3}, s{Wv}
    s_mul_i32 s{T3}, s{T3}, {BLK}
    s_mul_i32 s{T2}, s{J}, 2304
    s_add_u32 s{T3}, s{T3}, s{T2}
    s_add_u32 s{T3}, s{T3}, 0x{KOFF:x}''')
    kvtouch = [T(f'buffer_load_dword v0, v{vTK}, {sr(SW)}, s{T3} offen')] if opt.get('kvt', 0) else []
    if JX > 2 and opt.get('kvt', 0):
        kvtouch += II(f's_sub_u32 s{T3}, s{T3}, {8*BLK}\ns_and_b32 s{T2}, s{I}, {32//JX-2}') + \
                   [II(f's_or_b32 s{T2}, s{T2}, s{N0}\ns_cselect_b32 s{T3}, 0x{OOB:x}, s{T3}'), T(f'buffer_load_dword v0, v{vTK}, {sr(SW)}, s{T3} offen')]
    kvtouch += [II(f's_getpc_b64 {sr(SB,2)}') + [Ins('K1_pc2:')]] + II(f'''s_mov_b32 s{SB+2}, code_end-K1_pc2
    s_and_b32 s{T2}, s{NN}, 7
    s_lshl_b32 s{T2}, s{T2}, 2
    s_add_u32 s{T2}, s{T2}, s{Wv}
    s_mul_i32 s{T2}, s{T2}, {10*128}
    v_lshlrev_b32 v{SP}, 7, v{vL}
    v_cmp_gt_u32 vcc, 10, v{vL}
    s_nop 0
    s_nop 0
    v_cndmask_b32 v{SP}, v{a3}, v{SP}, vcc''') + [T(f'buffer_load_dword v0, v{SP}, {sr(SB)}, s{T2} offen', 32)]
    qld = []; ql = []
    for a_ in range(2):
        l0 = Ins(f'buffer_load_dwordx4 {vr(QF+4*a_)}, v{vKM}, {sr(SW)}, s{T3} offen sc1')
        l1 = [Ins(f'buffer_load_dword v{QF+8+2*a_+h}, v{vQR}, {sr(SW)}, s{T3} offen offset:{8*h} sc1') for h in range(2)]
        ql += [Ins(f's_add_u32 s{T3}, s{KO+4}, {(a_*BLK - 36864) & 0xffffffff}'), l0, l1[0], l1[1]]; qld += [[l0, l1[0]], [l0, l1[1]]]
    km = []; kr = []; kl = []; vld = []; vl = []
    PACE = ('SKIP', 0)
    for b_ in range(11):
        so = Ins(f's_add_u32 s{T3}, s{KO+min(b_//2,4)}, {(b_-2*min(b_//2,4))*BLK}')
        r_ = Ins(f'buffer_load_dword a{6*b_}, v{vR0 if b_ == 0 else (vR1 if b_ == 10 else vKR)}, {sr(SW)}, s{T3} offen sc1'); kr.append(r_)
        kl += [so, r_, PACE]
        lo_, hi_ = b_ // 2, (b_ - 1) // 2
        nm_ = lambda q_: f's{KB+q_}' if 0 <= q_ < 4 else '0'
        if b_ <= 8: kl += II(f's_pack_ll_b32_b16 s{T2}, {nm_(lo_)}, {nm_(hi_)}\nv_accvgpr_write_b32 a{6*b_+1}, s{T2}')
        else: kl += II(f'v_accvgpr_write_b32 a{6*b_+1}, 0')
        if b_ < 10:
            m_ = Ins(f'buffer_load_dwordx4 {ar(6*b_+2)}, v{vKM}, {sr(SW)}, s{T3} offen sc1'); km.append(m_)
            kl += [m_, PACE]
    kld = [[km[u // 2], kr[(u + 1) // 2]] for u in range(20)]
    for v in range(10):
        a_ = Ins(f'buffer_load_dwordx4 {vr(VREG[2*v])}, v{vVM}, {sr(SW)}, s{T3} offen sc1')
        b_ = Ins(f'buffer_load_dwordx4 {vr(VREG[2*v+1])}, v{vVR}, {sr(SW)}, s{T3} offen sc1')
        vl.append([Ins(f's_add_u32 s{T3}, s{KO+v//2}, {(v%2)*BLK}'), a_, PACE, b_, PACE]); vld += [a_, b_]
    def vfix(v): return [Ins(f'v_or_b32 v{VREG[2*v+1]+r}, v{vONES}, v{VREG[2*v+1]+r}', needs=[vld[2 * v + 1]]) for r in range(4)]
    pfd = [T(f'buffer_load_dword v0, v{vTD_}, {sr(SD)}, s{PFD} offen offset:2048' + NT, opt.get('qd', 120))]
    if opt.get('nod') or opt.get('cls'): pfd = []
    pfw = II(f's_mul_i32 s{T2}, s2, {21*128}') + [II(f's_cmp_eq_u32 s{Wv}, 0\ns_cselect_b32 s{T2}, s{T2}, 0x{OOB:x}'), T(f'buffer_load_dword v0, v{vTD_}, {sr(SQ)}, s{T2} offen', 40)]
    if opt.get('nod'): pfw = []
    h1ld, h1chk = hpoll(2, vPFP)
    e_ = opt.get('ev', [8, 0, 26, 29, 38])
    flat = lambda l: [y for x in l for y in x]
    NV1 = opt.get('nv1', 3)
    cls_chain = []
    if opt.get('cls'):
        va, vs_ = QF + 13 - 9, QF + 13 - 8
        cls_chain = II(f'''v_lshrrev_b32 v{va}, 2, v{vL}
        v_mul_u32_u24 v{va}, 9216, v{va}
        v_bfe_u32 v{vs_}, v{vL}, 1, 1
        v_mul_u32_u24 v{vs_}, 1152, v{vs_}
        v_add_u32 v{va}, v{va}, v{vs_}
        v_and_b32 v{vs_}, 1, v{vL}
        v_lshl_add_u32 v{va}, v{vs_}, 10, v{va}
        v_cmp_gt_u32 {sr(DUM,2)}, 36, v{vL}
        v_mov_b32 v{va+2}, 0x{OOB:x}
        v_lshlrev_b32 v{vs_}, 8, v{vs_}
        v_cndmask_b32 v{va}, v{va+2}, v{va}, {sr(DUM,2)}
        v_sub_u32 v{vs_}, 128, v{vs_}
        s_lshr_b32 s{DUM}, s2, 5
        s_lshl_b32 s{DUM}, s{DUM}, 3
        s_and_b32 s{DUM+1}, s2, 7
        s_or_b32 s{DUM}, s{DUM}, s{DUM+1}
        s_mul_i32 s{PFP}, s{DUM}, {9*9216}
        s_mul_i32 s{DUM+1}, s{Wv}, 2304
        s_add_u32 s{PFP}, s{PFP}, s{DUM+1}
        s_and_b32 s{DUM}, s{NN}, 3''')
        sites_ = opt['cls']; qc = opt.get('qc', 24)
        for n, sl in enumerate(sites_):
            if sl: cls_chain += [('AT', sl - 1, 16)]
            if n < 6 and n % 2 == 0: cls_chain += II(f'v_add_u32 v{va}, v{va}, v{vs_}')
            if not sl: continue
            if n < 6:
                cls_chain += [II(f's_cmp_eq_u32 s{DUM}, {n % 4}\ns_cselect_b32 s{PFW}, s{PFP}, 0x{OOB:x}'), ('AT', sl, 0),
                              T(f'buffer_load_dword v0, v{va}, {sr([SG, SU][n % 2])}, s{PFW} offen offset:{2048 * (n % 2)}', qc)]
            else:
                cls_chain += [II(f's_cmp_eq_u32 s{DUM}, {n % 4}\ns_cselect_b32 s{PFW}, s{PFD}, 0x{OOB:x}'), ('AT', sl, 0),
                              T(f'buffer_load_dword v0, v{vTD_}, {sr(SD)}, s{PFW} offen offset:2048', qc)]
    fill1 = [(sl, 0, stamp('slot%d' % sl, True)) for sl in range(NSEG1)] + [
        (0, 0, r1[8:]),
        (1, 0, cls_chain),
        (0, 2, late0 + late0b + [('BY', 9), ('AT', 9, 4)] + qe + [('BY', 16)] + late + [kvld, ('AT', 18, 4)]
         + pe[0][0] + [('BY', 24), poll_check('kv', kvld, kvtest)] + kv2pre + [('AT', 24, 4)]
         + le[0] + [('BY', 26), ('AT', e_[2], 0), kv2ld] + [('AT', 27, 0)] + le[3] + [('AT', e_[3] - 1, 8), poll_check('kw', kv2ld, kv2test)] + kvpre + [('AT', e_[3], 0)] + pfd + pfw + kvtouch + [('BY', 33), ('AT', 33, 4)]
         + pe[1][0] + ql + [('BY', 42), ('AT', 42, 4)]
         + pe[2][0] + [('AT', 44, 0)] + kl + flat(vl[:NV1]) + [h1ld]),
    ]
    bx1 = {
        3: (r1, []),
        opt.get('kvf', 17): (kv_stores + [guard, ones_st], setflag(1, SP + 10)),
        27: (le[2], []),
        47: (pe[0][1] + le[1] + pe[1][1] + pe[2][1], setflag(2, SP + 10)),
    }
    extra_loads[3] = [5, 6, 7, 8, load_at.pop(2)]
    xmap = {}
    for n, x in enumerate(r1):
        ks = n // 2
        for mt in range(4): xmap[breg(ks, mt)] = r1[2 * ks + (mt & 1)] if mt >= 2 else None
    mark = {}
    def hook(k, s):
        if k == 0:
            P(f's_cmp_ge_u32 s{J}, 9')
            P('s_cbranch_scc1 qkv_v')
            mark['a'] = len(P.out)
        if s == 9 and 'b' not in mark:
            mark['b'] = len(P.out)
            P.label('qkv_e')
    left = segment(0, NSEG1, fill1, bx1, first_loads=list(range(NPRE, 5)), hook=hook, pre=r1[:8], extra_need=lambda f, mt: xmap[f.b(mt)])
    qrd = set(id(x) for n in range(9) for g in slots[n].groups for f in g for x in f.rd)
    K = Prog(); K.label('qkv_k'); nb_ = 0
    for x in P.out[mark['a']:mark['b']]:
        if x.kind == 'mfma' or id(x) in qrd or x.op == 's_nop': continue
        t = x.text
        if x.kind == 'label': K.label(t[:-1].replace('_e', 'k_e')); continue
        if x.op == 's_cbranch_scc1': t += 'k'
        if x.op == 's_waitcnt':
            if 'vmcnt' not in t: continue
            t = t.split(' lgkmcnt')[0]
        if x.op == 's_barrier':
            nb_ += 1
            if nb_ <= 3: K('s_waitcnt lgkmcnt(0)')
        K(t)
    K('s_waitcnt lgkmcnt(0)'); K('s_nop 4'); K('s_branch qkv_e')
    slow.append(K.text())
    alt = ['qkv_v:', f'    s_cmp_ge_u32 s{J}, 14', '    s_cbranch_scc1 qkv_k'] if opt.get('skip', 1) else ['qkv_v:']
    for x in P.out[mark['a']:mark['b']]:
        t = x.text
        if x.kind == 'label': alt.append(t.replace('_e:', 'v_e:')); continue
        if x.op == 's_cbranch_scc1': t += 'v'
        if x.kind == 'mfma':
            o = [y.strip() for y in t[len(x.op):].split(',')]
            t = '%s %s, %s, %s, %s' % (x.op, o[0], o[2], o[1], o[3])
        alt.append('    ' + t)
    alt.append('    s_branch qkv_e')
    slow.append('\n'.join(alt) + '\n')
    print('left after seg1:', len(left), file=sys.stderr)
    stamp('g1end')

    SREG = [80] + [ACCB + (tl * 4 + mt) * 4 for mt in range(4) for tl in (0, 1, 3, 2)]
    PR = [84, 88]; OM, OR_ = 96, 100; MF, ML = 104, 108
    noskip = lambda l: [x for x in l if not isinstance(x, tuple)]
    def qbuild(t):
        q = QF + 2 * t
        P(Ins(f'v_mov_b32 v{QW+2}, v{q}', needs=qld[t]))
        P(f'v_mov_b32 v{QW+3}, v{q+1}')
        P(f'v_cndmask_b32 v{QW}, 0, v{QF+8+t}, {sr(G0M,2)}')
        P(f'v_cndmask_b32 v{QW+4}, 0, v{QF+8+t}, {sr(G1M,2)}')
    P('v_mov_b32 v%d, 0x%x' % (vTA, NEG))
    P(f'v_mov_b32 v{QW+1}, 0x3f80')
    P(f'v_mov_b32 v{QW+5}, 0x3f800000')
    qbuild(0)
    pq = list(pe[3][0])
    for r in range(4):
        P('v_cmp_lt_i32 vcc, %d, v%d' % (-r, vDG))
        P(pq.pop(0)); P(pq.pop(0))
        P('v_cndmask_b32 v%d, v%d, 0, vcc' % (MF + r, vTA))
        P('v_cndmask_b32 v%d, 0, v%d, vcc' % (ML + r, vTA))
    P(f's_cmp_eq_u32 s{FH}, 0')
    P('s_cselect_b64 vcc, -1, 0')
    P(f's_xor_b32 s{N0}, s{C}, 0x80000000')
    hld = {}
    def hload(k):
        if isinstance(k, tuple):
            ka, kb = k
            pre = II(f's_mul_i32 s{T2}, s{FH}, {(ka-kb)*8192}\ns_add_u32 s{T2}, s{T2}, s{HL}\ns_add_u32 s{T2}, s{T2}, {(17-ka)*8192}')
            tx = lambda kk, mt: f'buffer_load_dwordx4 {breg(hpos[kk], mt)}, v{vL16}, {sr(SW)}, s{T2} offen offset:{1024*mt} sc1'
            ld = [Ins(tx(ka, mt)) for mt in range(4)]
            hld[ka] = [ld[3]] * 4; hld[kb] = [ld[3]] * 4
            if ka == kb: return [pre + ld[:1], ld[1:2], ld[2:3], ld[3:]]
            return [(pre if h == 0 else []) + alt_site(ld[2*h:2*h+2], [tx(kb, 2*h), tx(kb, 2*h+1)]) for h in range(2)]
        base = HLONE if k == 8 else hphys[k // 2] * SLOT + (k & 1) * 8192
        hld[k] = [Ins(f'ds_read_b128 {breg(hpos[k], mt)}, v{vONES} offset:{1024*mt}') for mt in range(4)]
        return [II(f'v_add_u32 v{vONES}, {base}, v{vHW}') + hld[k][:2], hld[k][2:]]
    def qk(t, sg):
        u = t + sg
        c = vr(MF) if sg == 0 else (vr(ML) if sg == 16 else '0')
        return Ins('v_mfma_f32_16x16x32_bf16 %s, %s, %s, %s' % (vr(SREG[sg]), ar(3 * u + (u & 1)), vr(QW + 2 * (u & 1)), c), needs=kld[u])
    def mx(sg, dst):
        s = SREG[sg]
        if sg == 0: return II('v_max3_f32 v%d, v%d, v%d, v%d\nv_max_f32 v%d, v%d, v%d' % (dst, s, s + 1, s + 2, dst, dst, s + 3))
        return II('v_max3_f32 v%d, v%d, v%d, v%d\nv_max3_f32 v%d, v%d, v%d, v%d' % (dst, dst, s, s + 1, dst, dst, s + 2, s + 3))
    lk = [x for x in left if any(y in km or y in kr for y in x)]
    if lk:
        n = left.index(lk[-1]) + 1; emit_all(left[:n]); left = left[n:]
    P(qk(0, 0))
    nq = 1; avail = 1; nmx = 0
    while pq:
        x = pq.pop(0); P(x)
        if x.kind == 'ds': avail += 4
        elif nq < avail and len(pq) % 2 == 0: P(qk(0, nq)); nq += 1
    def bunch(l):
        out = []; cur = []
        for x in l:
            cur += x
            if any(y.kind == 'vmem' for y in x): out.append(cur); cur = []
        assert not cur
        return out
    isdma = lambda x: any(' lds' in y.text or f's{OFF},' in y.text.split()[1] or 'm0' in y.text or f's{BD},' in y.text.split()[1] for y in x)
    ldma = bunch([x for x in left if isdma(x)])
    lv = bunch([x for x in left if not isdma(x)] + [[x] for v in range(NV1, 10) for x in noskip(vl[v])])
    while nq < 17:
        P(qk(0, nq)); nq += 1
        emit_all(mx(nmx, vMN)); nmx += 1
    while nmx < 17:
        if len(lv) > 12 and nmx % 2: emit_all(lv.pop(0))
        emit_all(mx(nmx, vMN)); nmx += 1
    while len(lv) > 12: emit_all(lv.pop(0))
    qbuild(1)
    stamp('attk')
    ow = []
    def o_epi(t):
        P('v_rcp_f32 v%d, v%d' % (vTA, OR_ + 2))
        for r in range(4): P(mul(OM + r, OM + r, vTA))
        for r in range(2): P(mul(OR_ + r, OR_ + r, vTA))
        P(cvt(QF + 2 * t, OM, OM + 1)); P(cvt(QF + 2 * t + 1, OM + 2, OM + 3)); P(cvt(QF + 8 + t, OR_, OR_ + 1))
    ofl = II(f'''s_lshl_b32 s{T2}, s{FH}, 3
    s_add_u32 s{T2}, s{T2}, {HLONE}
    v_add_u32 v{vTB}, s{T2}, v{vHW}
    s_lshl_b32 s{T2}, s{RG}, 9
    s_lshl_b32 s{T3}, s{FH}, 2
    s_add_u32 s{T2}, s{T2}, s{T3}
    s_add_u32 s{T2}, s{T2}, {RT4}
    v_lshlrev_b32 v{vTA}, 3, v{vL}
    v_add_u32 v{vMX}, 4096, v{vTA}
    v_cndmask_b32 v{vTA}, v{vMX}, v{vTA}, {sr(G0M,2)}
    v_add_u32 v{vTA}, s{T2}, v{vTA}''')
    for t in range(4):
        ow += [Ins(f'ds_write_b64 v{vTB}, {vr(QF+2*t,2)} offset:{1024*t}'), Ins(f'ds_write_b32 v{vTA}, v{QF+8+t} offset:{128*t}')]
    ofl += ow
    h2ld, h2chk = hpoll(3, vPFP)
    hplan = opt.get('hplan', {0: [0, 1, 2, 3, 4, 5], 1: [(16, 17), (14, 15), (12, 13), (9, 9)], 2: [(17, 16), (15, 14), (13, 12), 8], 3: [(10, 11), (11, 10)]})
    if opt.get('plain', 1): hplan = {0: [0, 1, 2, 3, 4, 5], 1: [(16, 16), (17, 17), (14, 14), (15, 15)], 2: [(12, 12), (13, 13), (9, 9), 8], 3: [(10, 10), (11, 11)]}
    for t in range(4):
        stamp('att%d' % t)
        P('v_mov_b32 v%d, v%d' % (vTA, vMN))
        P('v_permlane16_swap_b32 v%d, v%d' % (vTA, vMN))
        P('v_max_f32 v%d, v%d, v%d' % (vMN, vMN, vTA))
        P('v_mov_b32 v%d, v%d' % (vTA, vMN))
        P('v_permlane32_swap_b32 v%d, v%d' % (vTA, vMN))
        P('v_max_f32 v%d, v%d, v%d' % (vMN, vMN, vTA))
        P(f'v_mul_f32 v{vMX}, s{N0}, v{vMN}')
        if t == 1:
            P(Ins('s_barrier', needs=pe[3][1] + hw[3] + [x for k in range(6) for x in hld[k]]))
            ad = bunch(flat([dma_groups(n) for n in att_loads]))
            emit_all(setflag(3, vPFS))
            emit_all(h1chk)
        if t == 3:
            P(Ins('s_barrier', needs=slots[NSEG1].loads + hld[8]))
            emit_all(h2chk)
        bq = flat([hload(k) for k in hplan[t]])
        def mix(a_, b_):
            out = []; a_ = list(a_); b_ = list(b_)
            while a_ or b_:
                if a_: out.append(a_.pop(0))
                if b_: out.append(b_.pop(0))
            return out
        if t == 0: bq = mix(lv + ldma, bq)
        else:
            na = [0, 4, 6, 10][t]
            bq = mix(bq, ad[:na]) if t < 3 or opt.get('plain', 1) else bq[:2] + ad[:na] + bq[2:]
            ad = ad[na:]
        ppv = []; pqk = []; pmx = []
        for b in range(9):
            v = (t >> 1) + b
            sgs = [2 * v - t, 2 * v + 1 - t]
            val = [sg for sg in sgs if 0 <= sg <= 16]
            p = PR[b % 2]
            for sg in val:
                for r in (0, 2):
                    s = SREG[sg] + r
                    P(f'v_pk_fma_f32 {vr(s,2)}, {vr(s,2)}, {sr(C,2)}, {vr(vMX,2)} op_sel_hi:[1,0,0]')
            mfs = ppv + [qk(t + 1, g_) for g_ in pqk]
            nb = (len(bq) + (8 - b)) // (9 - b)
            def withmem(x):
                nonlocal nb
                g = []
                if nb: g = bq.pop(0); nb -= 1
                n0 = 0
                while n0 < len(g) and g[n0].kind in ('salu', 'valu') and not g[n0].op.startswith('s_cbranch'): n0 += 1
                emit_all(g[:n0]); P(x); emit_all(g[n0:])
            for sg in val:
                for r in range(4):
                    P('v_exp_f32 v%d, v%d' % (SREG[sg] + r, SREG[sg] + r))
                    if mfs: withmem(mfs.pop(0))
            while mfs: withmem(mfs.pop(0))
            nb += 1
            for g_ in pmx: emit_all(mx(g_, vMN))
            for hh, sg in enumerate(sgs):
                if sg in val:
                    s = SREG[sg]
                    P(cvt(p + 2 * hh, s, s + 1)); P(cvt(p + 2 * hh + 1, s + 2, s + 3))
                else:
                    P('v_mov_b32 v%d, 0' % (p + 2 * hh)); P('v_mov_b32 v%d, 0' % (p + 2 * hh + 1))
            for _ in range(nb - 1): emit_all(bq.pop(0))
            pmx = pqk; pqk = val if t < 3 else []
            ppv = [Ins('v_mfma_f32_16x16x32_bf16 %s, %s, %s, %s' % (vr(OM), vr(VREG[2 * v]), vr(p), '0' if b == 0 else vr(OM)), needs=[vld[2 * v]]),
                   Ins('v_mfma_f32_16x16x32_bf16 %s, %s, %s, %s' % (vr(OR_), vr(VREG[2 * v + 1]), vr(p), '0' if b == 0 else vr(OR_)), needs=[vld[2 * v + 1]])]
            if t == 2 and b == 5: P(h2ld)
        assert not bq
        tail = flat([mx(g_, vMN) for g_ in pmx])
        for x in [qk(t + 1, g_) for g_ in pqk] + ppv:
            P(x)
            if tail: P(tail.pop(0))
        emit_all(tail)
        if t < 2: qbuild(t + 2)
        for g_ in pqk: emit_all(mx(g_, vMN))
        o_epi(t)
    stamp('attend')

    own = flat(flat([hload(k) for k in (6, 7)]))
    bmap = {}
    for k in hld:
        for mt in range(4): bmap[breg(hpos[k], mt)] = hld[k][mt]
    def restage(dst, sbase, stride):
        L = II(f's_lshl_b32 s{T3}, s{FH}, 11\ns_add_u32 s{T3}, s{T3}, {HLONE}\nv_add_u32 v{vTB}, s{T3}, v{vHW}')
        rd = [Ins(f'ds_read_b128 {vr(dst+4*m)}, v{vTB} offset:{1024*m}') for m in range(2)]
        L += rd + II(f's_add_u32 s{T3}, s{sbase}, {stride}') + [('SKIP', 8)]
        L += [Ins(f'buffer_store_dwordx4 {vr(dst+4*m)}, v{vL16}, {sr(SW)}, s{[sbase, T3][m]} offen sc1', needs=[rd[m]]) for m in range(2)]
        return L, rd
    oe, ord_ = restage(QF, OB, 18432)
    rr = Ins(f'ds_read_b128 {vr(QF+8)}, v{vTA}')
    oe += II(f'v_add_u32 v{vTA}, {RT4}, v{vL16}') + [rr] + II(f'v_lshrrev_b32 v{vTA}, 3, v{vL}\nv_mul_u32_u24 v{vTA}, {18432-128}, v{vTA}\nv_add_u32 v{vTA}, v{vTA}, v{vL16}') + [('SKIP', 8)]
    oe += [Ins(f'buffer_store_dwordx4 {vr(QF+8)}, v{vTA}, {sr(SW)}, s{OR} offen sc1', needs=[rr])]
    l2e = II(f's_lshl_b32 s{T3}, s{FH}, 3\ns_add_u32 s{T3}, s{T3}, {HLONE}\nv_add_u32 v{vTB}, s{T3}, v{vHW}'); l2w = []
    for mt in range(4):
        t0 = SP + mt * 4
        w = Ins(f'ds_write_b64 v{vTB}, {vr(t0,2)} offset:{1024*mt}'); l2w.append(w)
        l2e += [cvt(t0, t0, t0 + 1), cvt(t0 + 1, t0 + 2, t0 + 3), w]
    l2s, _ = restage(SP, PLN, 1024)
    def task_params(second):
        ln = II(f's_lshl_b32 s{T2}, s{Pp}, 2\ns_lshr_b32 s{T1}, 0x54108732, s{T2}\ns_and_b32 s{T1}, s{T1}, 15\ns_lshr_b32 s{TV}, 0x56557777, s{T2}\ns_and_b32 s{TV}, s{TV}, 15\ns_movk_i32 s{TM}, 0x5555')
        ln += [II(f's_cmp_gt_u32 s{T1}, 4\ns_cselect_b32 s{T2}, 1, 0'), Ins(f's_lshl_b32 s{TM}, s{TM}, s{T2}'), II(f's_cmp_eq_u32 s{T1}, 4\ns_cselect_b32 s{TM}, 0xffff, s{TM}'), Ins(f's_bitset0_b32 s{TM}, s{J}')]
        return ln + II(f'''s_lshl_b32 s{TL}, s{T1}, 7
        s_lshl_b32 s{T2}, s{E}, 2
        s_add_u32 s{T2}, s{T2}, s{Wv}
        s_lshl_b32 s{TP}, s{T2}, 10
        s_lshl_b32 s{T1}, s{T1}, 14
        s_add_u32 s{TP}, s{TP}, s{T1}
        s_mul_i32 s{T1}, s{I}, {8*18*8192}
        s_add_u32 s{TP}, s{TP}, s{T1}
        s_lshl_b32 s{T1}, s{I}, 3
        s_add_u32 s{T2}, s{T2}, s{T1}
        s_mul_i32 s{OL}, s{T2}, 18432
        s_add_u32 s{TX}, s{OL}, s{TL}
        s_mul_i32 s{T1}, s{Wv}, {36*1152}
        s_add_u32 s{TL}, s{TL}, s{T1}''')
    tsetup = II(f'''s_mov_b32 s{SG}, s8
    s_mov_b32 s{SG+1}, s9
    s_mov_b32 s{SG+2}, 0x{576*1152:x}
    s_mov_b32 s{SU}, s{OUTP}
    s_mov_b32 s{SU+1}, s{OUTP+1}
    s_mov_b32 s{SU+2}, 0x{2048*1152:x}
    s_lshl_b32 s{FB}, s{I}, 11
    s_add_u32 s{FB}, s{FB}, 0x{FOFF:x}
    s_mov_b32 s{LO}, 0x00003f80
    s_mov_b32 s{HI}, 0x3f800000''') + task_params(False)
    for t, row in enumerate((0, 8, 20, 28)): tsetup += II(f'v_add_u32 v{vWD[t]}, {(row*1152 - 1024*t - 2048) & 0xffffffff}, v{vDD[0]}')
    tsetup += II(f'''v_lshrrev_b32 v{vWD2}, 5, v{vL}
    v_mul_u32_u24 v{vWD2}, {32*1152}, v{vWD2}
    v_add_u32 v{vWD2}, v{vWD2}, v{vWD[0]}
    v_add_u32 v{vWD2}, {16*1152}, v{vWD2}
    v_and_b32 v{vWT[0]}, 0xffff, v{vTD[0]}
    s_lshl_b32 s{T2}, s{FH}, 6
    v_xor_b32 v{vWT[0]}, s{T2}, v{vWT[0]}
    v_xor_b32 v{vWT[1]}, 32, v{vWT[0]}
    v_xor_b32 v{vWT[2]}, 64, v{vWT[0]}
    v_xor_b32 v{vWT[3]}, 0x60, v{vWT[0]}
    v_lshlrev_b32 v{vPL}, 3, v{vOR}
    v_and_b32 v{vMX}, 15, v{vL}
    v_mul_u32_u24 v{vDG}, 1152, v{vMX}
    v_bfe_u32 v{vMN}, v{vL}, 4, 1
    v_lshl_add_u32 v{vDG}, v{vMN}, 5, v{vDG}
    v_lshrrev_b32 v{vMN}, 5, v{vL}
    v_lshl_add_u32 v{vDG}, v{vMN}, 4, v{vDG}
    s_lshl_b32 s{T2}, s{E}, 2
    s_add_u32 s{T2}, s{T2}, s{Wv}
    s_lshl_b32 s{T2}, s{T2}, 8
    s_lshr_b32 s{T3}, s{ROT}, 2
    s_xor_b32 s{T2}, s{T2}, s{T3}
    s_add_u32 s{T2}, s{T2}, {RTB}
    v_lshlrev_b32 v{vMX}, 2, v{vMX}
    v_add_u32 v{vMX}, s{T2}, v{vMX}''')
    rrd = Ins(f'ds_read_b32 v{vMX}, v{vMX}')
    tsetup += [rrd, ('SKIP', 8), Ins(f'v_mul_f32 v{vMX}, v{vMX}, v{vMX}', needs=[rrd]), Ins(f'v_mul_f32 v{vMN}, 0x{f2u(-1.4426950408889634):x}, v{vMX}')]
    fl_t = f'buffer_load_dword v{vPFP}, v{vPL}, {sr(SW)}, s{FB} offen sc1'
    o3ld = T(fl_t, 24)
    o3chk = poll_check('o3', o3ld, [f'v_cmp_le_u32 vcc, 4, v{vPFP}', 's_nop 1', 's_cmp_eq_u32 vcc_lo, 0xffff'])
    d5ld = T(fl_t, 8)
    ct3 = [II(f's_getpc_b64 {sr(SB,2)}') + [Ins('K1_pc3:')]] + II(f'''s_mov_b32 s{SB+2}, code_end-K1_pc3
    s_and_b32 s{T2}, s{NN}, 7
    s_lshl_b32 s{T2}, s{T2}, 2
    s_add_u32 s{T2}, s{T2}, s{Wv}
    s_lshl_b32 s{T2}, s{T2}, 10
    v_cmp_gt_u32 vcc, 8, v{vL}
    v_mov_b32 v{vTA}, 0x{OOB:x}
    s_nop 0
    v_cndmask_b32 v{vTA}, v{vTA}, v{vPL}, vcc''') + [T(f'buffer_load_dword v0, v{vTA}, {sr(SB)}, s{T2} offen', 24)]
    OA = 160
    old = []; ol = II(f'v_lshlrev_b32 v{vTA}, 3, v{vL}')
    for k in range(18):
        if k == 8: ol += [('AT', NSEG1 + 14, 0)]
        if k == 16: ol += [('AT', NSEG1 + 15, 0)] + l2s
        if k % 4 == 0: ol += II(f's_add_u32 s{T3}, s{OL}, 0x{OOFF + k*1024:x}')
        if k < 16: x = [Ins(f'buffer_load_dwordx4 {ar(OA+4*k)}, v{vL16}, {sr(SW)}, s{T3} offen offset:{1024*(k%4)} sc1')]
        else: x = [Ins(f'buffer_load_dwordx2 {ar(OA+4*k+2*h,2)}, v{vTA}, {sr(SW)}, s{T3} offen offset:{1024*(k%4)+512*h} sc1') for h in range(2)]
        ol += x; old.append(x[-1])
    XR2 = SP + 8
    xt_ = lambda u: f'buffer_load_dwordx4 {vr(XR2+4*u)}, v{vDG}, {sr(SX)}, s{TX} offen offset:{64*u}'
    xld = [Ins(xt_(u)) for u in range(2)]
    de0 = d_epi(ACCA, 0); st0 = [x for x in de0 if x.kind == 'vmem']; stl = [x for x in l2s if not isinstance(x, tuple) and x.kind == 'vmem']
    ost = [x for x in oe if not isinstance(x, tuple) and x.kind == 'vmem']
    de1a = d_epi(ACCB, 1, (0,)); de1b = d_epi(ACCB, 1, (1,)); st1 = [x for x in de1a + de1b if x.kind == 'vmem']
    for x in st1: loud.add(id(x)); svc[id(x)] = 3
    fill2 = [(sl, 0, stamp('slot%d' % sl, True)) for sl in range(NSEG1, NS)] + [
        (NSEG1, 0, ofl + [('AT', NSEG1 + 2, 0)] + oe + tsetup + [('BY', NSEG1 + 9), ('AT', NSEG1 + 9, 4)] + de0 + ct3 + [o3ld, ('AT', NSEG1 + 12, 4)] + l2e + [('BY', NSEG1 + 14)]
         + [('AT', NSEG1 + 13, 0), o3chk] + ol),
        (NS - 1, 19, de1a),
        (NSEG1, 1, own)]
    bx2 = {NSEG1 + 2: (ow, []), NSEG1 + 3: (hld[6] + hld[7], [])}
    bx2[NSEG1 + 7] = (ost, setflag(4, vPFS)); bx2[NSEG1 + 15] = (l2w + st0, setflag(5, vPFS)); bx2[NSEG1 + 19] = (stl, setflag(6, vPFS))
    left = segment(NSEG1, NS, fill2, bx2, extra_need=lambda f, mt: bmap[f.b(mt)])
    print('left after seg2:', len(left), file=sys.stderr)
    stamp('g2end')
    tq = flat(left) + de1b + xld
    def wo_gemm(P, acc, need_o, bg_=None, ph=None):
        ph = ph or [phys[n] for n in range(NS, NSX)]
        rds = {}
        wwin = [0]
        def rd(n):
            k, dt = divmod(n, 4)
            w, o = divmod(ph[k // 4] * SLOT, 65536)
            if w != wwin[0]:
                for d in range(4): P('v_add_u32 v%d, 0x%x, v%d' % (vWT[d], ((w - wwin[0]) * 65536) & 0xffffffff, vWT[d]))
                wwin[0] = w
            f = FR + 4 * (n % 8)
            rds[n] = [P('ds_read_b64_tr_b16 %s, v%d offset:%d' % (vr(f + 2 * h, 2), vWT[dt], o + (k % 4) * 4096 + 2048 * h)) for h in range(2)]
        for n in range(7): rd(n)
        for n in range(72):
            k, dt = divmod(n, 4)
            nd = rds[n] + (rds[n + 1] if n % 2 == 0 else []) + ([old[k]] if need_o else [])
            P(Ins('v_mfma_f32_16x16x32_bf16 %s, %s, %s, %s' % (vr(acc + 4 * dt), vr(FR + 4 * (n % 8)), ar(OA + 4 * k), '0' if k == 0 else vr(acc + 4 * dt)), needs=nd))
            if n + 7 < 72: rd(n + 7)
            if bg_: bg_(n)
        for d in range(4):
            if wwin[0]: P('v_add_u32 v%d, 0x%x, v%d' % (vWT[d], (-wwin[0] * 65536) & 0xffffffff, vWT[d]))
    def ploads(P, dst, extra=0):
        pl = []
        for p in range(8):
            for u in range(2):
                P(f's_add_u32 s{T3}, s{TP}, 0x{POFF + p*18*8192 + u*8192 + extra:x}')
                pl.append(P(f'buffer_load_dwordx4 {vr(dst+8*p+4*u)}, v{vL16}, {sr(SW)}, s{T3} offen sc1'))
        return pl
    def fmath(P, acc, src0, pl, xr, xl_, imm, bg_=None):
        SUM, TT = FR, FR + 16
        for p in range(8):
            for u in range(2):
                for q in range(4):
                    src = src0 + 8 * p + 4 * u + q; d = SUM + 8 * u + 2 * q
                    P(Ins(f'v_dot2_f32_bf16 v{d}, v{src}, s{LO}, ' + ('0' if p == 0 else f'v{d}'), needs=[pl[2 * p + u]]))
                    P(f'v_dot2_f32_bf16 v{d+1}, v{src}, s{HI}, ' + ('0' if p == 0 else f'v{d+1}'))
                if bg_: bg_(2 * p + u)
        for r in range(0, 16, 2): P(f'v_pk_mul_f32 {vr(TT+r,2)}, {vr(SUM+r,2)}, {vr(vMX,2)} op_sel:[0,1] op_sel_hi:[1,1]')
        for r in range(16): P(f'v_exp_f32 v{TT+r}, v{TT+r}')
        for r in range(0, 16, 2): P(f'v_pk_mul_f32 {vr(acc+r,2)}, {vr(acc+r,2)}, {vr(SUM+r,2)}')
        for r in range(0, 16, 2): P(f'v_pk_add_f32 {vr(TT+r,2)}, {vr(TT+r,2)}, 1.0 op_sel_hi:[1,0]')
        for r in range(16): P(f'v_rcp_f32 v{TT+r}, v{TT+r}')
        for r in range(0, 16, 2): P(f'v_pk_mul_f32 {vr(acc+r,2)}, {vr(acc+r,2)}, {vr(TT+r,2)}')
        for u in range(2):
            for r in range(4): P(f'v_permlane16_swap_b32 v{acc+8*u+r}, v{acc+8*u+4+r}')
        for u in range(2):
            for q in range(4):
                d = acc + 8 * u + 2 * q
                P(Ins(f'v_dot2c_f32_bf16 v{d}, s{LO}, v{xr+4*u+q}', needs=[xl_[u]]))
                P(f'v_dot2c_f32_bf16 v{d+1}, s{HI}, v{xr+4*u+q}')
        for u in range(2):
            for q in range(4): P(cvt(xr + 4 * u + q, acc + 8 * u + 2 * q, acc + 8 * u + 2 * q + 1))
            P(f'buffer_store_dwordx4 {vr(xr+4*u)}, v{vDG}, {sr(SU)}, s{TX} offen offset:{64*u+imm} ' + opt.get('ost', 'sc1'))
    def scale_s(P, acc):
        for r in range(0, 16, 2): P(f'v_pk_mul_f32 {vr(acc+r,2)}, {vr(acc+r,2)}, {vr(vMX,2)} op_sel_hi:[1,0]')
    ftest = [f'v_cmp_le_u32 vcc, s{TV}, v{vPFP}', 's_nop 1', f's_and_b32 s{T2}, vcc_lo, s{TM}', f's_cmp_eq_u32 s{T2}, s{TM}']
    P(Ins('s_barrier', needs=[x for n in range(NS, NSX) for x in slots[n].loads]))
    while tq and any(x in ol for x in tq): P(tq.pop(0))
    P(f's_cmp_ge_u32 s{J}, 14')
    P('s_cbranch_scc1 dbl')
    S = P.fork(); tq2 = [Ins(x.text) for x in tq]
    st2 = [x for x in st1 if x.cnt is not None] + [x for x in tq2 if 'store' in x.op]
    f1 = Ins(fl_t)
    def bgt(n):
        for _ in range(2):
            if tq: P(tq.pop(0))
        if n == opt.get('nf', 48):
            P(Ins('s_barrier', needs=st1))
            P(f1)
            emit_all(setflag(7, vPFS))
    wo_gemm(P, XT, True, bgt)
    assert not tq
    stamp('wo')
    scale_s(P, XT)
    P(Ins(ftest[0], needs=[f1]))
    P('s_nop 1')
    pl = [None] * 16
    porder = opt.get('porder', [7, 6, 5, 4, 0, 1, 2, 3])
    for p in porder:
        chk = [f's_andn2_b32 s{T2}, s{TM}, vcc_lo', f's_and_b32 s{T2}, s{T2}, {3 << (2 * p)}']
        for t_ in chk: P(t_)
        P(f's_cbranch_scc1 fp{p}_slow')
        P.label(f'fp{p}_ok')
        Z = Prog(); Z.label(f'fp{p}_slow'); Z(f's_mov_b32 s{SPN}, 400000'); Z.label(f'fp{p}_loop')
        Z(fl_t); Z('s_waitcnt vmcnt(0)'); Z(ftest[0]); Z(f's_sub_u32 s{SPN}, s{SPN}, 1'); Z(f's_cbranch_scc1 fp{p}_ok')
        for t_ in chk: Z(t_)
        Z(f's_cbranch_scc1 fp{p}_loop'); Z(f's_branch fp{p}_ok'); slow.append(Z.text())
        for u in range(2):
            P(f's_add_u32 s{T3}, s{TP}, 0x{POFF + p*18*8192 + u*8192:x}')
            pl[2 * porder.index(p) + u] = P(f'buffer_load_dwordx4 {vr(ACCA+8*porder.index(p)+4*u)}, v{vL16}, {sr(SW)}, s{T3} offen sc1')
    stamp('poll')
    fmath(P, XT, ACCA, pl, XR2, xld, 0)
    P.label('dbl_e')
    S.label('dbl')
    ph2 = [x for x in range(9) if x not in [phys[n] for n in range(NS, NSX)]] + [9]
    wq = [II(f's_add_u32 s{TL}, s{TL}, 128')] + bunch(flat([slots[NS + n].dma(ph2[n]) for n in range(5)]))
    wl = [x for g in wq for x in g if x.kind == 'vmem']
    def pl_(dst, extra): return [II(f's_add_u32 s{T3}, s{TP}, 0x{POFF + p*18*8192 + u*8192 + extra:x}\nbuffer_load_dwordx4 {vr(dst+8*p+4*u)}, v{vL16}, {sr(SW)}, s{T3} offen sc1') for p in range(8) for u in range(2)]
    qa = pl_(ACCA, 0); qb = pl_(ACCB, 16384); pa = [g[1] for g in qa]; pb = [g[1] for g in qb]
    x2 = [Ins(f'buffer_load_dwordx4 {vr(SP+4*u)}, v{vDG}, {sr(SX)}, s{TX} offen offset:{128+64*u}') for u in range(2)]
    mq = wq[:10] + [[d5ld]] + wq[10:] + [[x] for x in x2] + [poll_check('d5', d5ld, ftest) + qa[0]] + qa[1:] + qb
    def pop():
        if mq:
            for x in mq.pop(0):
                if x.kind == 'label': S.out.append(x)
                else: S(x)
    def bgs(n):
        if tq2:
            for _ in range(2):
                if tq2: S(tq2.pop(0))
        elif n % opt.get('dp', 3) == 0: pop()
        if n == opt.get('nf', 48) and not fdone:
            fdone.append(1)
            S(Ins('s_barrier', needs=st2))
            for x in setflag(7, vPFS): S(x)
    fdone = []
    wo_gemm(S, XT, True, bgs)
    while wl[-1].cnt is None: pop()
    for _ in range(4): pop()
    S(Ins('s_barrier', needs=wl))
    wo_gemm(S, XT + 16, False, bgs, ph2)
    scale_s(S, XT)
    fmath(S, XT, ACCA, pa, XR2, [None, None], 0, lambda n: pop())
    assert not mq
    scale_s(S, XT + 16)
    fmath(S, XT + 16, ACCB, pb, SP, x2, 128)
    S('s_branch dbl_e'); slow.append(S.text())
    if stamps:
      P('s_waitcnt vmcnt(0)')
      stamp('end')
      P('s_waitcnt lgkmcnt(0)')
      P(f's_lshl_b32 s{T2}, s2, 7')
      P(f's_add_u32 s{T2}, s{T2}, 0x{STAMP_OFF:x}')
      if stamps == 'all':
        n = len(ALL)
        P('v_writelane_b32 v%d, s22, %d' % (77 + n // 64, n % 64))
        P(f's_lshl_b32 s{T2}, s2, 9')
        P(f's_add_u32 s{T2}, s{T2}, 0x{STAMP_OFF + (2 << 18):x}')
        P(f's_cmp_eq_u32 s{Wv}, 0')
        P(f's_cselect_b32 s{T2}, s{T2}, 0x{OOB:x}')
        P(f'v_lshlrev_b32 v80, 2, v{vL}')
        P(f'buffer_store_dword v77, v80, {sr(SW)}, s{T2} offen')
        P(f'buffer_store_dword v78, v80, {sr(SW)}, s{T2} offen offset:256')
      else:
        P('s_mov_b32 s%d, s22' % (sTS + len(stamps)))
        P('v_mov_b32 v81, 0')
        for n in range(10):
            P('v_mov_b32 v80, s%d' % (sTS + (n if opt.get('est') else min(n, len(stamps)))))
            P(f'buffer_store_dwordx2 v[80:81], v{vFL}, {sr(SW)}, s{T2} offen offset:{8*n}')
    P.label('K1_end')
    P('s_endpgm')
    print('K1: instrs', len(P.out), 'nops', P.nnop, file=sys.stderr)
    return P.text() + ''.join(reversed(slow))
```

```python
import sys, struct
sys.path.insert(0, 'gen')
from prog import *
from asmlib import STAMP_OFF

HOFF = 0x0000000
POFF = 0
BLK = 110592 + 128
KOFF = 0x2400000 + BLK
OOFF = 0x2C00000
ROFF = 0x2F00000
FOFF = 0x2F10000
WSB = 256 << 20
OOB = 0x10000000
NEG = 0xF149F2CA
SCALE = 0.2357022603955158 * 1.4426950408889634
def f2u(x): return struct.unpack('<I', struct.pack('<f', x))[0]

SLOT = 16384
XB = 5 * SLOT
HLONE = 9 * SLOT
RT4 = 155648
RTB = RT4 + 2048
NCODE = 84

def vr(b, n=4): return 'v[%d:%d]' % (b, b + n - 1)
def ar(b, n=4): return 'a[%d:%d]' % (b, b + n - 1)
def sr(b, n=4): return 's[%d:%d]' % (b, b + n - 1)
def II(text): return [Ins(l) for l in text.strip().split('\n') if l.strip()]

class Frag:
    def __init__(s, base, imm0, imm1, acc, b, first):
        s.base, s.imm, s.acc, s.b, s.first = base, (imm0, imm1), acc, b, first
class Slot:
    def __init__(s, groups, dma):
        s.groups, s.dma, s.loads = groups, dma, None

def gen_k1(JX=4, stamps=False, opt={}):
    opt = dict(dict(so=5, cls=[0, 0, 8, 8, 26, 26, 30, 30, 38, 38], qc=44, svst=2.5), **opt)
    assert JX == 4
    P = Prog()
    SX, SQ, SG, SU, SD, SW, SB, SL = 24, 28, 32, 36, 40, 44, 48, 52
    I, J, Wv, RG, FH, E, Pp, T0, T1, T2, T3, OFF, ST, SPN = range(56, 70)
    W4096, W3072, BP, BL1, BD, SIG = range(70, 76)
    BL2 = 76
    HS, HLN, HL, PS, PLN = range(79, 84)
    C, N0, N1 = 84, 85, 86
    QM, QC, BQ, ONE2, LO, HI, R2, XRO = 87, 91, 92, 93, 94, 95, 96, 97
    KO, KB = 87, 92
    NN = 101
    SH = 75 + 11
    OB, OR, MYF, PF, PFD, DB = 4, 5, 6, 7, 10, 11
    PFP, PFW, J0, DUM = 20, 21, 90, 18
    OUTP = 0
    ROT = 3
    sTS = 12
    vL, vL16 = 1, 2
    vDQ = [3, 4, 5, 6]; vDL2 = 7
    vDP = [8, 9]; vDL1 = 10; vTP = [11, 12]; vTL1 = 13
    vTQ = [14, 15]; vDD = [16, 17, 18, 19]; vTD = [20, 21]; vTL2 = 22
    vQS = [23]; vTB = 24; vRS = 25
    vPFP, vPFS, vHW, vFL, vDG, vOR = 26, 27, 28, 29, 30, 31
    vKM, vKR, vVM, vVR = 3, 4, 5, 6
    QW = 8
    vMX, vMN, vTA, vONES = 14, 15, 23, 25
    XT, QF, FR, ACCA, ACCB, SP = 32, 64, 80, 112, 176, 240
    ALL = ['mf0'] + ['slot%d' % n for n in range(1, 51)] + ['g1end', 'attk', 'att1', 'att2', 'att3', 'attend'] + ['slot%d' % n for n in range(52, 72)] + ['g2end', 'wo', 'poll', 'end']
    def stamp(name, ret=False):
        if stamps == 'all':
            if name not in ALL: return []
            n = ALL.index(name)
            x = [Ins('v_writelane_b32 v%d, s22, %d' % (77 + n // 64, n % 64)), Ins('s_memtime s[22:23]')]
            if ret: return [x]
            for y in x: P(y)
            return []
        if stamps and name in stamps:
            n = stamps.index(name)
            x = [Ins('s_mov_b32 s%d, s22' % (sTS + n)), Ins('s_memrealtime s[22:23]')]
            if ret: return [x]
            for y in x: P(y)
        return []
    def breg(pos, mt):
        i = pos * 4 + mt
        return ar(4 * i) if i < 64 else vr(XT + 4 * (i - 64))
    def emit_all(lst):
        for x in lst:
            if isinstance(x, list): emit_all(x)
            elif x.kind == 'label': P.out.append(x)
            else: P(x)
    lg = lambda x: x.bit_length() - 1
    ng = 16 // JX

    P('s_cmp_ge_u32 s2, 256')
    P('s_cbranch_scc1 K1_end')
    P('s_load_dwordx16 s[4:19], s[0:1], 0')
    P('s_load_dwordx4 s[20:23], s[0:1], 64')
    if stamps: P('s_memtime s[84:85]' if stamps == 'all' else 's_memrealtime s[84:85]')
    def code_touch():
        P('s_getpc_b64 %s' % sr(SL, 2))
        P.label('K1_pc')
        P(f'''s_mov_b32 s{SL+2}, code_end-K1_pc
        s_mov_b32 s{SL+3}, 0x00020000
        s_lshr_b32 s{SPN}, s2, 3
        s_and_b32 s{SPN}, s{SPN}, 7
        s_mul_i32 s{SPN}, s{SPN}, {NCODE*128}
        v_lshlrev_b32 v80, 7, v0
        v_mov_b32 v89, 0x{OOB:x}
        v_cmp_gt_u32 vcc, {NCODE}, v0
        v_cndmask_b32 v80, v89, v80, vcc
        buffer_load_dword v79, v80, {sr(SL)}, s{SPN} offen''')
    if opt.get('ct0'):
        P('s_getpc_b64 %s' % sr(SL, 2))
        P(f'''s_mov_b32 s{SL+2}, {opt['ct0']*128}
        s_mov_b32 s{SL+3}, 0x00020000
        v_lshlrev_b32 v80, 7, v0
        buffer_load_dword v79, v80, {sr(SL)}, 0 offen''')
    if not opt.get('ctlate', 1): code_touch()
    P(f'''s_lshr_b32 s{NN}, s2, 3
    v_mov_b32 v89, 0x{OOB:x}
    v_and_b32 v{vL}, 63, v0
    v_lshrrev_b32 v80, 6, v0
    v_readfirstlane_b32 s{Wv}, v80
    s_and_b32 s{T0}, s2, 7
    s_and_b32 s{J}, s{T0}, {ng-1}
    s_lshl_b32 s{J}, s{J}, {lg(JX)}
    s_and_b32 s{T2}, s{NN}, {JX-1}
    s_or_b32 s{J}, s{J}, s{T2}
    s_lshr_b32 s{I}, s{T0}, {lg(ng)}
    s_lshl_b32 s{I}, s{I}, {lg(32//JX)}
    s_lshr_b32 s{T2}, s{NN}, {lg(JX)}
    s_or_b32 s{I}, s{I}, s{T2}
    s_and_b32 s{RG}, s{Wv}, 1
    s_lshr_b32 s{FH}, s{Wv}, 1
    s_and_b32 s{E}, s{J}, 1
    s_lshr_b32 s{Pp}, s{J}, 1
    s_and_b32 s{ROT}, s{J}, {min(JX-1, 3)}
    v_lshrrev_b32 v82, 3, v{vL}
    v_and_b32 v83, 7, v{vL}
    v_mul_u32_u24 v100, 1152, v82
    v_lshl_add_u32 v100, v83, 4, v100
    s_lshl_b32 s{T0}, s{I}, 3
    s_lshl_b32 s{T1}, s{RG}, 2
    s_add_u32 s{T0}, s{T0}, s{T1}
    s_add_u32 s{T1}, s{T0}, s{FH}
    s_mul_i32 s{T1}, s{T1}, {16*1152}''')
    if JX == 2: P(f's_lshl_b32 s{ROT}, s{ROT}, 1')
    def xro(blk):
        P(f'''s_xor_b32 s{T2}, s{ROT}, {blk}
        s_and_b32 s{T3}, s{T2}, 1
        s_lshl_b32 s{T3}, s{T3}, 3
        s_and_b32 s{T2}, s{T2}, 2
        s_lshl_b32 s{T2}, s{T2}, 4
        s_or_b32 s{XRO+blk}, s{T2}, s{T3}''')
    xro(0)
    if opt.get('est'): P('s_memrealtime s[76:77]')
    P('s_waitcnt lgkmcnt(0)')
    if opt.get('est'): P('s_memrealtime s[78:79]')
    def srd(d, b, nbytes, shift=0):
        if shift:
            P('s_sub_u32 s%d, s%d, %d' % (d, b, shift))
            P('s_subb_u32 s%d, s%d, 0' % (d + 1, b + 1))
        else:
            P('s_mov_b32 s%d, s%d' % (d, b))
            P('s_mov_b32 s%d, s%d' % (d + 1, b + 1))
        P('s_mov_b32 s%d, 0x%x' % (d + 2, nbytes + shift))
        P('s_mov_b32 s%d, 0x00020000' % (d + 3))
    srd(SX, 4, 2048 * 1152)
    XR = 112
    xl = []
    def xload(blk):
        ld = [Ins('buffer_load_dwordx4 %s, v100, %s, s%d offen offset:%d' % (vr(XR + 36 * blk + 4 * l), sr(SX), OFF, 128 * l)) for l in range(9)]
        xl.append(ld)
        return [II(f's_mul_i32 s{OFF}, s{XRO+blk}, 1152\ns_add_u32 s{OFF}, s{OFF}, s{T1}')] + [[x] for x in ld]
    emit_all(xload(0))
    if opt.get('ctlate', 1): code_touch()
    if opt.get('est'): P('s_memrealtime s[80:81]')
    if opt.get('est') == 2:
        P('s_waitcnt vmcnt(8)')
        P('s_memrealtime s[82:83]')
        P('s_waitcnt vmcnt(0)')
        P('s_memrealtime s[86:87]')
    for blk in range(1, 4): xro(blk)
    srd(SQ, 6, 576 * 3456, shift=2048)
    RS = 36 // JX
    NT = ' nt' if opt.get('nt') else ''
    P(f'''s_and_b32 s{J0}, s{J}, {16-JX}
    s_and_b32 s{SH}, s2, 7
    s_lshr_b32 s{SH}, s{SH}, {lg(ng)}
    s_lshl_b32 s{SH}, s{SH}, 5
    s_add_u32 s{SH}, s{SH}, s{NN}
    v_lshrrev_b32 v86, {lg(2*JX)}, v0
    v_and_b32 v87, {2*JX-1}, v0
    v_mul_u32_u24 v88, 3456, v86
    v_lshl_add_u32 v87, v87, 7, v88
    v_cmp_gt_u32 vcc, {RS}, v86
    v_cndmask_b32 v87, v89, v87, vcc
    s_mul_i32 s{ST}, s{SH}, {RS*3456}
    s_lshl_b32 s{T2}, s{J0}, 8
    s_add_u32 s{BL2}, s{ST}, s{T2}
    v_mov_b32 v104, v87''')
    qtouch = [Ins(f'buffer_load_dword v79, v104, {sr(SQ)}, s{BL2} offen offset:2048' + NT)]

    srd(SG, 12, 576 * 9216)
    srd(SU, 14, 576 * 9216, shift=2048)
    srd(SD, 16, 4608 * 1152, shift=2048)
    srd(SW, 22, WSB)
    srd(SB, 20, 256)
    P(f's_mov_b64 {sr(OUTP,2)}, s[18:19]')
    P(f'''s_cmp_ge_u32 s{Wv}, 2
    s_cselect_b32 s{SL}, s14, s12
    s_cselect_b32 s{SL+1}, s15, s13
    s_mov_b32 s{SL+2}, 0x{576*9216:x}
    s_mov_b32 s{SL+3}, 0x00020000
    s_mul_i32 s{PFP}, s{SH}, {RS*9216}
    s_mul_i32 s{T2}, s{RG}, {1152 if JX == 4 else 9*9216}
    s_add_u32 s{PFP}, s{PFP}, s{T2}
    s_mul_i32 s{T2}, s{J0}, 576
    s_add_u32 s{PFP}, s{PFP}, s{T2}''')
    if stamps: P('s_mov_b64 s[22:23], s[84:85]')
    P(f'''s_lshl_b32 s{W4096}, s{Wv}, 12
    s_lshl_b32 s{BQ}, s{J}, 8
    s_mul_i32 s{T2}, s{Wv}, {16*3456}
    s_add_u32 s{BQ}, s{BQ}, s{T2}
    s_cmp_ge_u32 s{J}, 14
    s_cselect_b32 s{BQ}, 0x{OOB:x}, s{BQ}
    s_mov_b32 s{ONE2}, 0x3f803f80
    s_mov_b32 s{LO}, 0x00003f80
    s_mov_b32 s{HI}, 0x3f800000
    v_lshrrev_b32 v84, 4, v{vL}
    v_and_b32 v85, 15, v{vL}
    v_cmp_eq_u32 vcc, 0, v0
    v_cndmask_b32 v{vFL}, v89, 0, vcc
    v_lshlrev_b32 v86, 1, v82
    v_and_b32 v86, 4, v86
    v_xor_b32 v86, v83, v86
    v_mul_u32_u24 v87, 9216, v82
    v_lshl_add_u32 v{vDP[0]}, v86, 4, v87
    v_mul_u32_u24 v88, 3456, v82
    v_lshl_add_u32 v90, v86, 4, v88
    v_add_u32 v{vDQ[0]}, 2048, v90
    v_add_u32 v{vDQ[2]}, 128, v90
    v_xor_b32 v86, 2, v86
    v_lshl_add_u32 v{vDP[1]}, v86, 4, v87
    v_add_u32 v{vDP[1]}, {8*9216-1024}, v{vDP[1]}
    v_lshl_add_u32 v90, v86, 4, v88
    v_add_u32 v{vDQ[1]}, {8*3456-1024+2048}, v90
    v_add_u32 v{vDQ[3]}, {8*3456-1024+128}, v90
    s_lshl_b32 s{SIG}, s{E}, 1
    s_sub_u32 s{SIG}, 1, s{SIG}
    s_mul_i32 s{BP}, s{Pp}, 1152
    s_lshl_b32 s{T3}, s{E}, 10
    s_add_u32 s{BP}, s{BP}, s{T3}
    s_mul_i32 s{T3}, s{Wv}, {16*9216}
    s_add_u32 s{BP}, s{BP}, s{T3}
    v_and_b32 v87, 3, v{vL}
    v_lshrrev_b32 v86, 2, v85
    v_and_b32 v88, 1, v84
    v_lshrrev_b32 v92, 1, v84
    v_lshlrev_b32 v90, 12, v92
    v_lshl_add_u32 v90, v88, 10, v90
    v_lshl_add_u32 v90, v86, 7, v90
    v_lshrrev_b32 v91, 1, v86
    v_xor_b32 v91, s{FH}, v91
    v_lshl_add_u32 v90, v91, 6, v90
    v_lshl_add_u32 v90, v88, 5, v90
    v_lshl_add_u32 v{vTQ[0]}, v87, 3, v90
    v_xor_b32 v{vTQ[1]}, 32, v{vTQ[0]}
    s_lshl_b32 s{T2}, s{E}, 6
    v_xor_b32 v{vTP[0]}, s{T2}, v{vTQ[0]}
    v_xor_b32 v{vTP[1]}, s{T2}, v{vTQ[1]}
    s_mul_i32 s{ST}, s{RG}, {2*18432}
    s_add_u32 s{ST}, s{ST}, {XB}
    v_xor_b32 v90, v85, v84
    v_lshlrev_b32 v90, 4, v90
    v_lshl_add_u32 v90, v84, 8, v90
    v_add_u32 v65, s{ST}, v90
    v_xor_b32 v66, 64, v65
    s_mul_i32 s{T2}, s{FH}, 18432
    s_add_u32 s{ST}, s{ST}, s{T2}
    s_and_b32 s{T2}, s{XRO}, 8
    s_lshl_b32 s{T2}, s{T2}, 4
    s_add_u32 s{ST}, s{ST}, s{T2}
    v_xor_b32 v90, v82, v83
    v_lshlrev_b32 v90, 4, v90
    v_lshl_add_u32 v90, v83, 8, v90
    v_add_u32 v64, s{ST}, v90
    v_xor_b32 v76, 128, v64
    s_lshl_b32 s{T2}, s{RG}, 6
    s_lshl_b32 s{T3}, s{FH}, 4
    s_add_u32 s{T2}, s{T2}, s{T3}
    v_add_u32 v67, s{T2}, v82''')
    def G(text): return [II(text)]
    P(f'''s_lshl_b32 s{T2}, s{I}, 4
    s_add_u32 s{T2}, s{T2}, s{J}
    s_lshl_b32 s{MYF}, s{T2}, 7
    s_add_u32 s{MYF}, s{MYF}, 0x{FOFF:x}
    s_lshl_b32 s{DB}, s{I}, 2
    s_lshl_b32 s{T2}, 1, s{J}
    v_mov_b32 v105, s{T2}
    v_mov_b32 v86, 0''')
    freset = P(f'buffer_store_dword v86, v{vFL}, {sr(SW)}, s{MYF} offen sc1')
    fatom = Ins(f'buffer_atomic_or v105, v{vFL}, {sr(SB)}, s{DB} offen offset:8', needs=[freset])
    late0 = II(f'''s_mul_i32 s{W3072}, s{Wv}, 3072
    s_lshl_b32 s{T2}, s{I}, 4
    s_add_u32 s{T2}, s{T2}, s{J}
    v_mov_b32 v207, 0
    s_xor_b32 s{PF}, s{MYF}, 128
    s_mul_i32 s{HS}, s{T2}, {9*8192}
    s_xor_b32 s{T2}, s{T2}, 1
    s_mul_i32 s{HL}, s{T2}, {9*8192}
    s_lshl_b32 s{T2}, s{RG}, 12
    s_add_u32 s{HS}, s{HS}, s{T2}
    s_lshl_b32 s{T3}, s{FH}, 11
    s_add_u32 s{HLN}, s{HS}, s{T3}
    s_add_u32 s{HLN}, s{HLN}, {8*8192}
    s_add_u32 s{HL}, s{HL}, s{T2}
    s_lshl_b32 s{T3}, s{FH}, 13
    s_add_u32 s{HS}, s{HS}, s{T3}
    s_mul_i32 s{BL1}, s{Pp}, 1152
    s_lshl_b32 s{T2}, s{E}, 6
    s_add_u32 s{T2}, s{T2}, 512
    s_add_u32 s{BL1}, s{BL1}, s{T2}
    s_mul_i32 s{T3}, s{RG}, {48*9216}
    s_add_u32 s{BL1}, s{BL1}, s{T3}''')
    late0b = II(f'''s_lshl_b32 s{T2}, s{RG}, 12
    s_lshl_b32 s{T3}, s{I}, 3
    s_add_u32 s{T3}, s{T3}, s{Pp}
    s_mul_i32 s{PS}, s{T3}, {18*8192}
    s_add_u32 s{PS}, s{PS}, s{T2}
    s_add_u32 s{PS}, s{PS}, 0x{POFF:x}
    s_sub_u32 s{T3}, 9, s{E}
    s_lshl_b32 s{T3}, s{T3}, 13
    s_add_u32 s{PLN}, s{PS}, s{T3}
    s_lshl_b32 s{T3}, s{FH}, 11
    s_xor_b32 s{T3}, s{T3}, s{ROT}
    s_add_u32 s{PLN}, s{PLN}, s{T3}
    s_add_u32 s{PS}, s{PS}, s{ROT}
    s_mul_i32 s{T3}, s{E}, 10
    s_add_u32 s{T3}, s{T3}, s{FH}
    s_sub_u32 s{T3}, 17, s{T3}
    s_lshl_b32 s{T3}, s{T3}, 13
    s_add_u32 s{PS}, s{PS}, s{T3}
    s_lshl_b32 s{T2}, s{E}, 6
    s_add_u32 s{T2}, s{T2}, 512
    s_mul_i32 s{T1}, s{Pp}, {576*1152}
    s_mul_i32 s{T3}, s{E}, {17*32*1152}
    s_add_u32 s{T1}, s{T1}, s{T3}
    s_mul_i32 s{BD}, s{E}, 640
    s_add_u32 s{BD}, s{BD}, s{T1}
    s_mul_i32 s{T3}, s{FH}, s{SIG}
    s_mul_i32 s{T3}, s{T3}, {32*1152}
    s_add_u32 s{BD}, s{BD}, s{T3}
    s_mul_i32 s{T3}, s{RG}, {16*1152}
    s_add_u32 s{BD}, s{BD}, s{T3}
    s_add_u32 s{T1}, s{T1}, s{T2}''')
    for t in range(3):
        late0b += II(f'''s_mul_i32 s{T2}, s{Wv}, 3
        s_add_u32 s{T2}, s{T2}, {t}
        s_lshr_b32 s{T3}, s{T2}, 1
        s_mul_i32 s{T3}, s{T3}, s{SIG}
        s_mul_i32 s{T3}, s{T3}, {32*1152}
        s_add_u32 s{BL2+t}, s{T1}, s{T3}
        s_and_b32 s{T2}, s{T2}, 1
        s_mul_i32 s{T2}, s{T2}, {16*1152}
        s_add_u32 s{BL2+t}, s{BL2+t}, s{T2}
        s_add_u32 s{BL2+t}, s{BL2+t}, {2048-1024*t}''')
    late0 += II(f'''s_mul_i32 s{T2}, s{T0}, {BLK//2}
    s_lshl_b32 s{T3}, s{J}, 13
    s_add_u32 s{T2}, s{T2}, s{T3}
    s_lshl_b32 s{T3}, s{FH}, 11
    s_add_u32 s{T2}, s{T2}, s{T3}
    s_add_u32 s{T2}, s{T2}, 0x{KOFF:x}
    s_and_b32 s{ROT}, s{ROT}, 2
    s_mul_i32 s{T3}, s{ROT}, {BLK//2}
    s_add_u32 s{T2}, s{T2}, s{T3}
    s_sub_u32 s{QM+2}, 1, s{ROT}
    s_mul_i32 s{QM+2}, s{QM+2}, {BLK}
    s_lshl_b32 s{ROT}, s{ROT}, 10
    s_movk_i32 s{QC}, 4096''')
    late0 += G(f's_cmp_ge_u32 s{J}, 14\ns_cselect_b32 s{QM}, 0x{2*OOB:x}, s{T2}')
    late0 += G(f's_cmp_eq_u32 s{J}, 13\ns_cselect_b32 s{QC}, 0x{OOB:x}, s{QC}')
    late0b += II(f'''s_lshl_b32 s{T2}, s{FH}, 1
    s_add_u32 s{T2}, s{T2}, s{T0}
    s_mul_i32 s{OB}, s{T2}, 18432
    s_lshl_b32 s{T2}, s{J}, 10
    s_add_u32 s{OB}, s{OB}, s{T2}
    s_add_u32 s{OB}, s{OB}, 0x{OOFF:x}
    s_mul_i32 s{OR}, s{I}, {8*18432}
    s_lshl_b32 s{T2}, s{J}, 7
    s_add_u32 s{OR}, s{OR}, s{T2}
    s_add_u32 s{OR}, s{OR}, 0x{OOFF+16384:x}''')
    late0b += G(f's_cmp_eq_u32 s{Wv}, 0\ns_cselect_b32 s{OR}, s{OR}, 0x{OOB:x}')
    late0b += II(f'''s_mov_b32 s{C}, 0x{f2u(SCALE):x}''')
    late0b += G(f's_cmp_lt_u32 s{I}, 2\ns_cselect_b32 s{N0}, 0xffff, 0') + G(f's_cmp_lt_u32 s{I}, 1\ns_cselect_b32 s{N1}, 0xffff, 0')
    late0 += II(f'''s_mul_i32 s{PFD}, s{J0}, {288*1152}
    s_mul_i32 s{T2}, s{SH}, {162*128}
    s_add_u32 s{PFD}, s{PFD}, s{T2}
    s_mul_i32 s{T2}, s{Wv}, {41*128}
    s_add_u32 s{PFD}, s{PFD}, s{T2}''')
    late0 += II(f'''v_lshlrev_b32 v{vL16}, 4, v{vL}
    v_lshrrev_b32 v182, 3, v{vL}
    v_and_b32 v183, 7, v{vL}
    v_lshrrev_b32 v184, 4, v{vL}
    v_and_b32 v185, 15, v{vL}
    v_and_b32 v186, 6, v182
    v_xor_b32 v186, v183, v186
    v_mul_u32_u24 v187, 1152, v182
    v_lshl_add_u32 v187, v186, 4, v187''')
    for t in range(4):
        late0 += II('v_add_u32 v%d, %d, v187' % (vDD[t], (t & 1) * (8 * 1152 - 1024) + (t >> 1) * (128 - 2048) + 2048))
    late0 += II(f'''v_lshrrev_b32 v186, 2, v{vL}
    v_and_b32 v187, 3, v{vL}
    v_and_b32 v188, 2, v184
    v_xor_b32 v188, v187, v188
    v_mul_u32_u24 v190, 9216, v186
    v_lshl_add_u32 v{vDL1}, v188, 4, v190
    v_and_b32 v188, 1, v184
    v_lshlrev_b32 v188, 1, v188
    v_xor_b32 v188, v187, v188
    v_mul_u32_u24 v190, 1152, v186
    v_lshl_add_u32 v{vDL2}, v188, 4, v190
    v_lshrrev_b32 v186, 2, v185
    v_and_b32 v188, 1, v184
    v_lshrrev_b32 v192, 1, v184
    v_lshl_add_u32 v190, v184, 3, v186
    v_lshlrev_b32 v190, 6, v190
    v_xor_b32 v191, s{FH}, v188
    v_lshl_add_u32 v190, v191, 5, v190
    v_lshl_add_u32 v{vTL1}, v187, 3, v190
    v_lshl_add_u32 v190, v184, 2, v186
    v_lshlrev_b32 v190, 6, v190
    v_lshl_add_u32 v190, v191, 5, v190
    v_lshl_add_u32 v{vTL2}, v187, 3, v190
    v_lshl_add_u32 v190, v188, 2, v186
    v_lshrrev_b32 v191, 1, v190
    s_lshl_b32 s{T2}, s{FH}, 1
    v_xor_b32 v191, s{T2}, v191
    v_lshlrev_b32 v190, 7, v190
    v_lshl_add_u32 v190, v192, 10, v190
    v_lshl_add_u32 v190, v191, 5, v190
    v_lshl_add_u32 v{vTD[0]}, v187, 3, v190
    v_xor_b32 v{vTD[1]}, 32, v{vTD[0]}
    v_mov_b32 v189, 0x{OOB:x}
    v_cmp_eq_u32 vcc, 0, v184
    v_lshlrev_b32 v190, 2, v184
    v_sub_u32 v{vDG}, v190, v185
    v_cndmask_b32 v{vOR}, v189, v{vL16}, vcc
    s_lshl_b32 s{T2}, s{RG}, 12
    v_add_u32 v{vHW}, s{T2}, v{vL16}''')
    late0 += G(f's_cmp_ge_u32 s{J}, 9\ns_cselect_b64 vcc, -1, 0')
    late0 += II(f'''v_lshlrev_b32 v191, 6, v185
    v_lshl_add_u32 v191, v184, 4, v191
    v_cndmask_b32 v{vQS[0]}, v{vL16}, v191, vcc
    v_lshlrev_b32 v190, 4, v185
    v_add_u32 v190, {RT4}, v190
    v_lshlrev_b32 v191, 4, v184
    v_add_u32 v191, {RTB}, v191
    v_cndmask_b32 v190, v190, v191, vcc
    s_lshl_b32 s{T2}, s{RG}, 10
    v_add_u32 v{vRS}, s{T2}, v190
    v_mov_b32 v204, 0
    v_mov_b32 v205, 0
    v_mov_b32 v206, 0
    s_mul_i32 s{T2}, s{J}, 2304
    s_add_u32 s{T2}, s{T2}, 0x{KOFF-BLK+148*256:x}''')
    late0 += G(f's_cmp_eq_u32 s{I}, 0\ns_cselect_b32 s{T2}, s{T2}, 0x{OOB:x}')
    guard = Ins(f'buffer_store_dwordx4 v[204:207], v{vOR}, {sr(SW)}, s{T2} offen sc1')
    late0 += [guard]
    late0 += II(f'''v_mov_b32 v200, 0x3f803f80
    v_mov_b32 v201, 0x3f803f80
    v_mov_b32 v202, 0x3f803f80
    v_mov_b32 v203, 0x3f803f80
    s_lshl_b32 s{T2}, s{I}, 2
    s_add_u32 s{T2}, s{T2}, s{Wv}
    s_mul_i32 s{T2}, s{T2}, {BLK}
    s_add_u32 s{T2}, s{T2}, 0x{KOFF+110592:x}
    v_cmp_gt_u32 vcc, 8, v{vL}
    s_nop 0
    s_nop 0
    v_cndmask_b32 v199, v189, v{vL16}, vcc''')
    late0 += G(f's_cmp_eq_u32 s{J}, 14\ns_cselect_b32 s{T2}, s{T2}, 0x{OOB:x}')
    ones_st = Ins(f'buffer_store_dwordx4 v[200:203], v199, {sr(SW)}, s{T2} offen sc1')
    late0 += [ones_st]

    slots = []
    def dma4(srds, voffs, sbase, add, sadd=0, bump=None, pre=''):
        def f(rp):
            if bump is not None:
                g = [II((bump + '\n' if bump else '') + f's_add_u32 s{OFF}, s{sbase}, {add}\ns_add_u32 m0, s{W4096}, {rp*SLOT}')]
            elif sadd and not add:
                g = [II(pre + f's_mul_i32 s{OFF}, s{SIG}, {sadd}\ns_add_u32 s{OFF}, s{OFF}, s{sbase}\ns_add_u32 m0, s{W4096}, {rp*SLOT}')]
            elif sadd:
                g = [II(f's_mul_i32 s{OFF}, s{SIG}, {sadd}\ns_add_u32 s{OFF}, s{OFF}, s{sbase}'),
                     II(f's_add_u32 s{OFF}, s{OFF}, {add}\ns_add_u32 m0, s{W4096}, {rp*SLOT}')]
            else:
                g = [II(f's_add_u32 s{OFF}, s{sbase}, {add}\ns_add_u32 m0, s{W4096}, {rp*SLOT}')]
            for t in range(4):
                g.append([Ins('buffer_load_dwordx4 v%d, %s, s%d offen offset:%d lds' % (voffs[t], sr(srds[t]), OFF, 1024 * t))])
            return g
        return f
    def dma_l1(s):
        def f(rp):
            g = []
            for t in range(3):
                pre = II(f's_add_u32 s{OFF}, s{BL1}, {s*96*9216 + t*(16*9216-1024)}')
                if t == 0: pre += II(f's_add_u32 m0, s{W3072}, {rp*SLOT}')
                g.append(pre)
                g.append(II(f'buffer_load_dwordx4 v{vDL1}, {sr(SL)}, s{OFF} offen offset:{1024*t} lds'))
            return g
        return f
    def dma_l2(s):
        def f(rp):
            g = [II(f's_add_u32 m0, s{W3072}, {rp*SLOT}')]
            for t in range(3):
                g.append(II(f's_mul_i32 s{OFF}, s{SIG}, {s*192*1152}\ns_add_u32 s{OFF}, s{OFF}, s{BL2+t}'))
                g.append(II(f'buffer_load_dwordx4 v{vDL2}, {sr(SD)}, s{OFF} offen offset:{1024*t} lds'))
            return g
        return f
    def regroup(gs):
        if not opt.get('rg', 1): return gs
        fl = [f for g in gs for f in g]
        return [fl[n:n + 2] for n in range(0, 6, 2)]
    def accf(base, tile): return lambda mt: base + (tile * 4 + mt) * 4
    def bf(pos): return lambda mt: breg(pos, mt)
    def pairlike(vT, acc, s):
        return [[Frag(vT[ft], ks * 8192 + m * 2048, ks * 8192 + m * 2048 + 512, accf(acc, 2 * m + ft), bf(2 * s + ks), s == 0 and ks == 0) for ks in range(2)] for m in range(2) for ft in range(2)]
    for s in range(9):
        slots.append(Slot(pairlike(vTQ, ACCA, s), dma4([SQ] * 4, vDQ, BQ, s * 64 * 3456)))
    PACC = [ACCB, ACCB, ACCA, ACCB]
    def pstep(q):
        for s in range(9):
            slots.append(Slot(pairlike(vTP, PACC[q], s), dma4([SG, SG, SU, SU], [vDP[0], vDP[1], vDP[0], vDP[1]], BP, s * 64 * 9216, bump=(f's_lshl_b32 s{OFF}, s{SIG}, 7\ns_add_u32 s{BP}, s{BP}, s{OFF}' if s == 0 and q else ''))))
    pstep(0)
    for s in range(6):
        gs = [[Frag(vTL1, m * 6144 + ks * 2048, m * 6144 + ks * 2048 + 256, accf(ACCA, m), bf(3 * s + ks), s == 0 and ks == 0) for ks in range(3)] for m in range(2)]
        slots.append(Slot(regroup(gs), dma_l1(s)))
    pstep(1); pstep(2); pstep(3)
    NSEG1 = len(slots)
    hpos = {}
    for n, k in enumerate([6, 7, 11, 10]): hpos[k] = n
    for n, k in enumerate([0, 1, 2, 3, 4, 5, 16, 17, 14, 15, 12, 13, 9, 8]): hpos[k] = 4 + n
    lorder = [8, 7, 6, 0, 1, 2, 4, 3, 5]
    def dstep(q):
        acc = ACCA
        for n, ln in enumerate(lorder):
            gs = [[Frag(vTD[ft], ks * 8192 + c * 2048, ks * 8192 + c * 2048 + 4096, accf(acc, 2 * c + ft), bf(hpos[2 * ln + ks]), n == 0 and ks == 0) for ks in range(2)] for c in range(2) for ft in range(2)]
            slots.append(Slot(gs, dma4([SD] * 4, vDD, BD, 0, ln * 64 * 1152, pre=(f's_add_u32 s{BD}, s{BD}, 256\n' if q and n == 0 else ''))))
    dstep(0)
    for s in range(3):
        gs = [[Frag(vTL2, ks * 2048, ks * 2048 + 1024, accf(SP, 0), bf(hpos[6 * s + ks]), s == 0 and ks == 0) for ks in range(3 * hg, 3 * hg + 3)] for hg in range(2)]
        slots.append(Slot(regroup(gs), dma_l2(s)))
    n0 = len(slots); dstep(1)
    for sl in slots[n0:]:
        for g in sl.groups:
            for f in g: f.acc = (lambda old: (lambda mt: old(mt) + (ACCB - ACCA)))(f.acc)
    NS = len(slots)
    vWD = [3, 4, 5, 6]; vWD2 = 8; vWT = [9, 10, 11, 12]; vPL = 13
    TL, TP, TX, TM, TV, OL, FB = 87, 88, 89, 90, 91, 92, 93
    for s in range(4): slots.append(Slot([], dma4([SG] * 4, vWD, TL, s * 4 * 36 * 1152)))
    def dma_w2(rp):
        return [II(f's_mul_i32 s{OFF}, s{Wv}, {(144-36)*1152}\ns_add_u32 s{OFF}, s{OFF}, s{TL}\ns_lshr_b32 m0, s{W4096}, 1\ns_add_u32 m0, m0, {rp*SLOT}'),
                II(f'buffer_load_dwordx4 v{vWD2}, {sr(SG)}, s{OFF} offen lds'), II(f's_add_u32 s{OFF}, s{OFF}, {72*1152-1024}'),
                II(f'buffer_load_dwordx4 v{vWD2}, {sr(SG)}, s{OFF} offen offset:1024 lds')]
    slots.append(Slot([], dma_w2))
    NSX = len(slots)
    phys = {n: n for n in range(9)}; load_at = {}; hphys = {}
    nxt = 9
    divert = {18: 0, 33: 1, 42: 2, 50: 3}
    for n in range(2, NSEG1):
        if n in divert: hphys[divert[n]] = phys[n - 2]
        else: phys[nxt] = phys[n - 2]; load_at[n] = nxt; nxt += 1
    att_loads = []
    for f in [phys[NSEG1 - 2], phys[NSEG1 - 1], hphys[0], hphys[1], hphys[2]]:
        phys[nxt] = f; att_loads.append(nxt); nxt += 1
    extra_loads = {}
    for n in range(NSEG1 + 2, NS):
        q = n - (NSEG1 + 2)
        if q == 1: phys[nxt] = hphys[3]; extra_loads[n] = [nxt]; nxt += 1
        if nxt < NSX: phys[nxt] = phys[n - 2]; load_at[n] = nxt; nxt += 1
    assert nxt == NSX
    def dma_groups(n):
        g = slots[n].dma(phys[n])
        slots[n].loads = [x for grp in g for x in grp if x.kind == 'vmem']
        return g

    SV = opt.get('sv', 4.75)
    loud = set(); svc = {id(guard): 1, id(ones_st): 1}
    def T(text, q=56):
        x = Ins(text); loud.add(id(x)); svc[id(x)] = q; return x
    VLS = opt.get('vls', [[0, 8, 4, 1, 7], [2, 6, 3, 5]])
    def pf_gu(VL, t0, msk, q=0):
        nl = len(VL); tab = sum(l << (4 * n) for n, l in enumerate(VL)); a_, b_, c_ = t0, t0 + 1, t0 + 2
        return II(f'''v_mul_u32_u24 v{b_}, {65536//nl+1}, v{vL}
        v_lshrrev_b32 v{b_}, 16, v{b_}
        v_cmp_gt_u32 {msk}, 9, v{b_}
        v_mul_u32_u24 v{a_}, {4*nl}, v{b_}
        v_lshlrev_b32 v{c_}, 2, v{vL}
        v_sub_u32 v{a_}, v{c_}, v{a_}
        v_mov_b32 v{c_}, 0x{tab:x}
        v_bfe_u32 v{a_}, v{c_}, v{a_}, 4
        v_mul_u32_u24 v{b_}, 9216, v{b_}
        v_lshl_add_u32 v{b_}, v{a_}, 7, v{b_}
        v_mov_b32 v{a_}, 0x{OOB:x}
        v_cndmask_b32 v{b_}, v{a_}, v{b_}, {msk}''') + [T(f'buffer_load_dword v0, v{b_}, {sr(SL)}, s{PFP} offen' + NT, q)]
    emit_all(xload(1))
    stamp('setup')
    if opt.get('est'):
        P('s_waitcnt lgkmcnt(0)')
        for n, r in enumerate((76, 78, 80, 82, 86)): P('s_mov_b32 s%d, s%d' % (sTS + 5 + n, r))

    NPRE = opt.get('npre', 5)
    GU2 = 0
    gA, gB = pf_gu(VLS[0], 106, 's[78:79]'), pf_gu(VLS[1], 106, 's[78:79]')
    dm0 = [g for n in range(NPRE) for g in dma_groups(n)]
    if opt.get('so', 0) == 0:
        bg = [('GAP', 30)] + xload(2) + xload(3) + [qtouch, ('GAP', 150)] + dm0 + [gA, gB, [fatom]]
    elif opt.get('so', 0) == 3:
        bg = [('GAP', 30)] + xload(2) + xload(3) + [qtouch, gA, [fatom], ('GAP', opt.get('ga', 330))] + dm0
    elif opt.get('so', 0) == 4:
        bg = [('GAP', 30)] + xload(2) + xload(3) + [qtouch, gA, ('GAP', opt.get('ga', 330))] + dm0 + [gB, [fatom]]
    elif opt.get('so', 0) == 5:
        bg = [('GAP', 30)] + xload(2) + xload(3) + [qtouch, ('GAP', 150)] + dm0 + [gA, [fatom]]
    elif opt.get('so', 0) == 1:
        bg = [('GAP', opt.get('gap0', 30)), qtouch, gA, ('GAP', opt.get('ga', 200))] + xload(2) + xload(3) + dm0 + [gB, [fatom]]
    else:
        bg = [('GAP', opt.get('gap0', 30))] + xload(2) + [qtouch, gA, ('GAP', opt.get('ga', 300))] + xload(3) + dm0 + [gB, [fatom]]
    cnt = [0]; lq = []; lcnt = [0, 10]
    EVERY = opt.get('every', 8)
    def V(t, needs=()):
        r = P(Ins(t, needs))
        cnt[0] += 1
        if bg and cnt[0] >= EVERY:
            cnt[0] = 0
            while bg:
                g = bg.pop(0)
                if isinstance(g, tuple): cnt[0] = -g[1]; break
                emit_all(g)
                if any(x.kind == 'vmem' for x in g): break
        lcnt[0] += 1
        if lq and lcnt[0] >= lcnt[1]:
            lcnt[0] = 0; emit_all([lq.pop(0)])
        return r
    def reduce8(r):
        V('v_add_f32_dpp v%d, v%d, v%d quad_perm:[1,0,3,2] row_mask:0xf bank_mask:0xf' % (r, r, r))
        V('v_add_f32_dpp v%d, v%d, v%d quad_perm:[2,3,0,1] row_mask:0xf bank_mask:0xf' % (r, r, r))
        V('v_add_f32_dpp v%d, v%d, v%d row_half_mirror row_mask:0xf bank_mask:0xf' % (r, r, r))
    def ln_block(blk, defer=False):
        X = XR + 36 * blk
        wa = [64, 76][blk & 1]
        for n in range(36):
            if n < 4: V('v_dot2_f32_bf16 v%d, v%d, s%d, 0' % (68 + n, X + n, ONE2), needs=[xl[blk][0]])
            else: V('v_dot2_f32_bf16 v%d, v%d, s%d, v%d' % (68 + n % 4, X + n, ONE2, 68 + n % 4), needs=[xl[blk][n // 4]])
        stamp('sum%d' % blk)
        V(f's_and_b32 s{T2}, s{XRO+blk}, 8')
        V(f's_add_u32 s{T2}, s{T2}, {32*(blk>>1)}')
        V(f'v_add_u32 v77, s{T2}, v67')
        V('v_lshlrev_b32 v78, 4, v77')
        V('v_add_u32 v78, %d, v78' % RT4)
        V('v_add_f32 v68, v68, v69')
        V('v_add_f32 v70, v70, v71')
        V('v_add_f32 v68, v68, v70')
        V('v_and_b32 v101, 0x70, v77')
        V('v_mul_u32_u24 v101, 12, v101')
        reduce8(68)
        V('v_mul_f32 v68, 0x%x, v68' % f2u(-1.0 / 576))
        wr = []
        LAG = 2
        for n in range(36 + LAG + 1):
            if n < 36:
                t = 80 + 2 * (n % 8)
                V('v_dot2_f32_bf16 v%d, v%d, s%d, v68' % (t, X + n, LO))
                V('v_dot2_f32_bf16 v%d, v%d, s%d, v68' % (t + 1, X + n, HI))
            m = n - LAG
            if 0 <= m < 36:
                t = 80 + 2 * (m % 8)
                V('v_cvt_pk_bf16_f32 v%d, v%d, v%d' % (X + m, t, t + 1))
            m = n - LAG - 1
            if 0 <= m < 36:
                V('v_dot2_f32_bf16 v%d, v%d, v%d, %s' % (72 + m % 4, X + m, X + m, '0' if m < 4 else 'v%d' % (72 + m % 4)))
                if m % 4 == 3:
                    w = Ins('ds_write_b128 v%d, %s offset:%d' % (wa, vr(X + m - 3), (m // 4) * 2048)); wr.append(w)
                    if not defer: P(w)
        dwr = list(wr)
        V('v_lshl_add_u32 v101, v77, 2, v101')
        V('v_add_u32 v101, %d, v101' % RTB)
        V('v_add_f32 v72, v72, v73')
        V('v_add_f32 v74, v74, v75')
        V('v_add_f32 v72, v72, v74')
        V('v_mov_b32 v73, 0x%x' % f2u(1e-5))
        reduce8(72)
        V('v_fmac_f32 v73, 0x%x, v72' % f2u(1.0 / 576))
        V('v_rsq_f32 v96, v73')
        for t in (1, 2, 3): V('v_mov_b32 v%d, v96' % (96 + t))
        wr.append(P('ds_write_b128 v78, v[96:99]'))
        wr.append(P('ds_write_b32 v101, v96'))
        return wr, dwr
    slow = []
    nlab = [0]
    def alt_site(inline, other):
        nlab[0] += 1; n = nlab[0]
        slow.append(f'alt{n}:\n' + ''.join('    %s\n' % t for t in other) + f'    s_branch alt{n}_e\n')
        return [Ins(f's_cbranch_vccz alt{n}')] + inline + [Ins(f'alt{n}_e:')]
    def xn_reads(rho):
        return [Ins('ds_read_b128 %s, v%d offset:%d' % (breg(ks, 2 * rho + t), 65 + (ks & 1), t * 18432 + ks * 1024)) for ks in range(18) for t in range(2)]
    w0, _ = ln_block(0); w1, _ = ln_block(1)
    stamp('ln01')
    P(Ins('s_barrier', needs=w0 + w1))
    r0 = xn_reads(0)
    lq += [r0[n:n + 2] for n in range(0, 36, 2)]; lcnt[1] = 8
    w2, d2 = ln_block(2, defer=True)
    emit_all(lq); lq.clear()
    P(Ins('s_barrier', needs=r0))
    lq += d2; lcnt[1] = 12
    w3, _ = ln_block(3)
    emit_all(lq); lq.clear()
    emit_all([g for g in bg if not isinstance(g, tuple)]); bg.clear()
    stamp('ln23')
    P(Ins('s_barrier', needs=w2 + w3 + slots[0].loads))
    r1 = xn_reads(1)
    stamp('mf0')

    window = {}
    AH = 4; AHM = opt.get('ah', 6)
    def make_reads(fr, sidx, fi):
        w, o = divmod(phys[sidx] * SLOT, 65536)
        out = []
        if window.get(fr.base, 0) != w:
            d = (w - window.get(fr.base, 0)) * 65536
            out.append(Ins('v_add_u32 v%d, 0x%x, v%d' % (fr.base, d & 0xffffffff, fr.base)))
            window[fr.base] = w
        f = FR + 4 * (fi % 8)
        fr.reg = f
        fr.rd = [Ins('ds_read_b64_tr_b16 %s, v%d offset:%d' % (vr(f + 2 * h, 2), fr.base, o + fr.imm[h])) for h in range(2)]
        return [out + [fr.rd[0]], [fr.rd[1]]]
    def segment(s0, s1, fillers, bar_extra, first_loads=(), extra_need=None, hook=None, quiet=(), pre=()):
        frs = []; groups = []
        for s in range(s0, s1):
            for g in slots[s].groups:
                groups.append((s, len(frs), g))
                for f in g: frs.append((s, f))
        nm = sum(4 * len(g) for _, _, g in groups)
        gm = [[] for _ in range(nm)]; ga = [[] for _ in range(nm)]; gz = [[] for _ in range(nm)]
        used = [0] * nm; vmw = [0] * (nm + 16)
        mf = []; issued = 0; slot_start = {}
        ismem = lambda x: x.kind in ('ds', 'vmem')
        def put(k, items, cost=None):
            (gm if len(items) == 1 and ismem(items[0]) else ga)[k].extend(items)
            used[k] += min(2, sum(x.cost for x in items)) if cost is None else cost
        while issued < AH:
            s, f = frs[issued]
            emit_all(make_reads(f, s, issued)); issued += 1
        if callable(pre): pre()
        else: emit_all(list(pre))
        pend = [(-1, list(first_loads), ())]
        barpos = {}; vcand = set(); fv = set()
        for (s, f0, g) in groups:
            a = len(mf)
            slot_start.setdefault(s, a)
            n = 4 * len(g)
            for mt in range(4):
                for f in g: mf.append((s, f, mt, g))
            if a > 0: used[a - 1] += 1
            vcand.update(range(a + 1, a + n, 4))
            items = []
            while issued < min(len(frs), f0 + min(8, len(g) + AHM)) and frs[issued][0] <= s + 1:
                s2, f2 = frs[issued]
                r = make_reads(f2, s2, issued)
                if frs[issued - 1][0] != s2: r[0] = ['BAR', s2] + r[0]
                items += r; issued += 1
            for q, it in enumerate(items):
                k = a + q * n // len(items)
                if it[0] == 'BAR':
                    s2 = it[1]
                    ex = bar_extra.get(s2, ((), ()))
                    b = Ins('s_barrier'); b.needs = ('LAZY', s2, list(ex[0]) + ([x for f in g for x in f.rd] if k == a else []))
                    gz[k - 1].append(b); used[k - 1] += 1 if k == a else 2
                    barpos[s2] = k - 1
                    pend.append((k - 1, list(extra_loads.get(s2, [])) + ([load_at[s2]] if s2 in load_at else []), ex[1]))
                    it = it[2:]
                if len(it) == 2: put(max(k - 1, 0), it[:1]); it = it[1:]
                put(k, it)
        class Chain:
            def __init__(c, items, start): c.q = list(items); c.rel = start; c.last = -1; c.cap = 2
        dl = []; dead = {}
        for (k, lds_, post) in pend:
            dl.append(('ATK', k + 1)); dl += list(post)
            for n in lds_:
                for g in dma_groups(n):
                    for x in g:
                        dl.append(x)
                        if x.kind == 'vmem': dead[id(x)] = (n, barpos.get(n, 10 ** 9 if n < NS else nm + opt.get('wdl', -100))); svc[id(x)] = SV * (2 if sum(len(g_) for g_ in slots[n].groups) == 6 else 1)
        chains = [Chain(dl, 0)] + [Chain(lst, slot_start[s] + off) for (s, off, lst) in fillers if lst]
        leads = {}
        pfree = 0.0
        def head(c, k):
            while c.q and isinstance(c.q[0], tuple):
                it = c.q[0]
                if c.rel > k: return None
                if opt.get('dbg') and it[0] in ('AT', 'BY'):
                    cs = max(x for x in slot_start if slot_start[x] <= k); print('   marker', it, 'reached at slot', cs, '+', k - slot_start[cs], file=sys.stderr)
                if it[0] == 'AT': c.rel = slot_start[it[1]] + it[2]
                elif it[0] == 'ATK': c.rel = it[1]
                elif it[0] == 'BY': assert k <= slot_start[it[1]], ('filler late', it, k, slot_start[it[1]])
                elif it[0] == 'CAP': c.cap = it[1]
                elif it[0] == 'SKIP': c.rel = k + it[1]
                c.q.pop(0)
            if not c.q or c.rel > k: return None
            return c.q[0]
        for k in range(nm):
            if not gm[k] and used[k] < 2:
                cand = []
                for n_, c in enumerate(chains):
                    x = head(c, k)
                    if x is None or isinstance(x, list) or not ismem(x) or c.last >= k: continue
                    if x.kind == 'ds':
                        if used[k] + x.cost > 2: continue
                    elif id(x) not in loud and pfree - k > opt.get('bl', 1.5): continue
                    pr = 1
                    if n_ == 0: pr = 0 if dead.get(id(x), (0, 0))[1] - k < opt.get('crit', 72) else 2
                    cand.append((pr, n_))
                if cand:
                    c = chains[min(cand)[1]]; x = c.q.pop(0); c.last = k
                    put(k, [x], x.cost if x.kind == 'ds' else 1)
                    if x.kind == 'vmem':
                        pfree = max(pfree, k + svc[id(x)]) if id(x) in loud else max(pfree, k) + svc.get(id(x), opt.get('svst', SV) if 'store' in x.op else SV)
                        if id(x) in dead and dead[id(x)][1] < 10 ** 9: leads[dead[id(x)][0]] = dead[id(x)][1] - k
            for c in chains:
                while True:
                    x = head(c, k)
                    if x is None or (not isinstance(x, list) and ismem(x)): break
                    it = x if isinstance(x, list) else [x]
                    cst = min(2, sum(y.cost for y in it))
                    if used[k] + cst > c.cap: break
                    c.q.pop(0); c.last = k; ga[k].extend(it); used[k] += cst
        left = [(x if isinstance(x, list) else [x]) for c in chains for x in c.q if not isinstance(x, tuple)]
        print('DMA leads:', ' '.join('%d:%d' % x for x in sorted(leads.items())), file=sys.stderr)
        assert min(v for n_, v in leads.items() if n_ < NS) > opt.get("minlead", 30)
        for k, (s, f, mt, g) in enumerate(mf):
            if hook: hook(k, s)
            c = f.acc(mt)
            nd = [x for f_ in g for x in f_.rd] + ([extra_need(f, mt)] if extra_need else [])
            P(Ins('v_mfma_f32_16x16x32_bf16 %s, %s, %s, %s' % (vr(c), vr(f.reg), f.b(mt), '0' if f.first else vr(c)), needs=nd))
            for x in gz[k]: x.needs = list(slots[x.needs[1]].loads) + list(x.needs[2])
            emit_all(gm[k] + ga[k] + gz[k])
        return left

    def mul(d, a_, b_): return Ins('v_mul_f32 v%d, v%d, v%d' % (d, a_, b_))
    def cvt(d, a_, b_): return Ins('v_cvt_pk_bf16_f32 v%d, v%d, v%d' % (d, a_, b_))
    kv_stores = []
    flat0 = lambda l: [y for x in l for y in x]
    def qkv_epi():
        rs = [Ins('ds_read_b128 %s, v%d offset:%d' % (vr(SP + 4 * mt), vRS, 256 * mt)) for mt in range(4)]
        L = list(rs) + [('SKIP', 6)]
        for mp in range(2):
            if mp: L += II(f's_add_u32 s{QM}, s{QM}, s{QM+2}')
            for c in range(2):
                if c: L += II(f's_add_u32 s{T2}, s{QM}, s{QC}')
                for ft in range(2):
                    te = ACCA + ((2 * c + ft) * 4 + 2 * mp) * 4; to = te + 4
                    for r in range(8):
                        x = mul(te + r, te + r, SP + 8 * mp + r); x.needs = [rs[2 * mp + r // 4]]; L.append(x)
                    L += [cvt(te, te, te + 1), cvt(te + 1, te + 2, te + 3), cvt(te + 2, to, to + 1), cvt(te + 3, to + 2, to + 3)]
                    st = Ins(f'buffer_store_dwordx4 {vr(te)}, v{vQS[0]}, {sr(SW)}, s{T2 if c else QM} offen offset:{1024*ft} sc1')
                    L.append(st); kv_stores.append(st)
        return L
    def l1_epi():
        L = II(f's_lshl_b32 s{T3}, s{FH}, 3\ns_add_u32 s{T3}, s{T3}, {HLONE}\nv_add_u32 v{SP+11}, s{T3}, v{vHW}')
        ws_ = []
        for mt in range(4):
            g0 = ACCA + mt * 4; u0 = ACCA + (4 + mt) * 4
            L += [mul(g0 + t, g0 + t, u0 + t) for t in range(4)] + [cvt(u0, g0, g0 + 1), cvt(u0 + 1, g0 + 2, g0 + 3)]
            w = Ins(f'ds_write_b64 v{SP+11}, {vr(u0,2)} offset:{1024*mt}'); ws_.append(w)
            if not opt.get('bw'): L.append(w)
        if opt.get('bw'): L += [('SKIP', 2), list(ws_)] if opt['bw'] == 1 else flat0([[('SKIP', 4), w] for w in ws_])
        L2 = II(f's_lshl_b32 s{T3}, s{FH}, 11\ns_add_u32 s{T3}, s{T3}, {HLONE}\nv_add_u32 v{SP+11}, s{T3}, v{vHW}')
        rd = [Ins(f'ds_read_b128 {vr(ACCA+4*m)}, v{SP+11} offset:{1024*m}') for m in range(2)]
        sts = [Ins(f'buffer_store_dwordx4 {vr(ACCA+4*m)}, v{vL16}, {sr(SW)}, s{HLN} offen offset:{1024*m} sc1', needs=[rd[m]]) for m in range(2)]
        return L, sts, ws_, L2 + rd + [('SKIP', 10)] + sts
    hw = {}
    def pair_epi(acc, q):
        L = II(f's_add_u32 s{ST}, s{HS}, {q*2*8192}\ns_lshl_b32 s{T1}, s{FH}, 13\ns_add_u32 s{T1}, s{T1}, {hphys[q]*SLOT}\nv_add_u32 v{SP+11}, s{T1}, v{vHW}')
        sts = []; hw[q] = []
        for mt in range(4):
            g0 = acc + mt * 4; g1 = acc + (4 + mt) * 4; u0 = acc + (8 + mt) * 4; u1 = acc + (12 + mt) * 4
            L += [mul(g0 + t, g0 + t, u0 + t) for t in range(4)]
            L += [mul(g1 + t, g1 + t, u1 + t) for t in range(4)]
            L += [cvt(u0, g0, g0 + 1), cvt(u0 + 1, g0 + 2, g0 + 3), cvt(u0 + 2, g1, g1 + 1), cvt(u0 + 3, g1 + 2, g1 + 3)]
            st = Ins(f'buffer_store_dwordx4 {vr(u0)}, v{vL16}, {sr(SW)}, s{ST} offen offset:{1024*mt} sc1')
            w = Ins(f'ds_write_b128 v{SP+11}, {vr(u0)} offset:{1024*mt}', cost=2)
            L += [st] if opt.get('bw') and q < 3 else [st, w]
            sts.append(st); hw[q].append(w)
        if opt.get('bw') and q < 3: L += [('SKIP', 2), list(hw[q])] if opt['bw'] == 1 else flat0([[('SKIP', opt['bw']), w] for w in hw[q]])
        return L, sts
    def d_epi(acc, q, cs=(0, 1)):
        L = []
        for c in cs:
            L.append(Ins(f's_sub_u32 s{ST}, s{PS}, {(2*q+c)*2*8192}'))
            for mt in range(4):
                t0 = acc + (8 * c + mt) * 4; t1 = acc + (8 * c + 4 + mt) * 4
                if mt == 2: L.append(Ins(f's_xor_b32 s{ST}, s{ST}, 2048'))
                L += [cvt(t0, t0, t0 + 1), cvt(t0 + 1, t0 + 2, t0 + 3), cvt(t0 + 2, t1, t1 + 1), cvt(t0 + 3, t1 + 2, t1 + 3)]
                L.append(Ins(f'buffer_store_dwordx4 {vr(t0)}, v{vL16}, {sr(SW)}, s{ST} offen offset:{1024*(mt&1)} sc1'))
        return L
    def poll_check(name, ld, test):
        g = [Ins(t, needs=[ld] if n == 0 else []) for n, t in enumerate(test)]
        g.append(Ins('s_cbranch_scc0 %s_slow' % name))
        g.append(Ins('%s_ok:' % name))
        S = Prog()
        S.label('%s_slow' % name)
        S('s_mov_b32 s%d, 400000' % SPN)
        S.label('%s_loop' % name)
        S('s_sleep 2')
        S(ld.text)
        S('s_waitcnt vmcnt(0)')
        S('s_sub_u32 s%d, s%d, 1' % (SPN, SPN))
        S('s_cbranch_scc1 %s_ok' % name)
        for t in test: S(t)
        S('s_cbranch_scc0 %s_loop' % name)
        S('s_branch %s_ok' % name)
        slow.append(S.text())
        return g
    def setflag(n, reg):
        return II(f'v_mov_b32 v{reg}, {n}\nbuffer_store_dword v{reg}, v{vFL}, {sr(SW)}, s{MYF} offen sc1')
    def hpoll(n, reg):
        ld = T(f'buffer_load_dword v{reg}, off, {sr(SW)}, s{PF} sc1')
        return ld, poll_check('h%d' % n, ld, [f'v_readfirstlane_b32 s{T2}, v{reg}', f's_cmp_ge_u32 s{T2}, {n}'])

    qe = qkv_epi()
    pe = [pair_epi(PACC[q], q) for q in range(4)]
    le = l1_epi()
    VREG = [ACCA + 4 * n for n in range(16)] + [SP + 4 * n for n in range(4)]
    G0M, G1M = 96, 98
    late = II(f'''s_mov_b32 s{SQ}, s8
    s_mov_b32 s{SQ+1}, s9
    s_mov_b32 s{SQ+2}, 0x{576*1152:x}
    s_mul_i32 s{T1}, s{T0}, {BLK//2}
    s_mul_i32 s{T2}, s{J}, 2304
    s_add_u32 s{T1}, s{T1}, s{T2}
    s_mov_b32 s{G0M}, 0xffff
    s_mov_b32 s{G0M+1}, 0
    s_mov_b32 s{G1M}, 0xffff0000
    s_mov_b32 s{G1M+1}, 0''')
    for a_ in range(5):
        late += II(f's_add_u32 s{KO+a_}, s{T1}, 0x{KOFF + (2*a_-9)*BLK:x}')
        if a_ < 4:
            late.append(II(f's_cmp_ge_u32 s{T0}, {16-4*a_}\ns_cselect_b32 s{KO+a_}, s{KO+a_}, 0x{OOB:x}\ns_cselect_b32 s{KB+a_}, 0, 0xf149'))
    a0, a1, a2, a3 = SP, SP + 1, SP + 2, SP + 3
    vTK, vQR, vTD_, vR0, vR1 = SP + 4, SP + 5, QF + 12, SP + 7, SP + 8
    late += II(f'''v_and_b32 v{a0}, 15, v{vL}
    v_lshrrev_b32 v{a1}, 4, v{vL}
    v_mov_b32 v{a3}, 0x{OOB:x}
    s_mul_i32 s{T2}, s{FH}, 1280
    s_add_u32 s{T3}, s{T2}, {BLK+144*256}
    v_add_u32 v{vKM}, s{T3}, v{vL16}
    v_lshlrev_b32 v{a1}, 4, v{a1}
    v_lshl_add_u32 v{a1}, v{a0}, 6, v{a1}
    s_add_u32 s{T3}, s{T2}, {BLK+73728}
    v_add_u32 v{vVM}, s{T3}, v{a1}
    s_lshl_b32 s{T2}, s{FH}, 7
    s_add_u32 s{T2}, s{T2}, {BLK+73728+1024}
    v_add_u32 v{a1}, s{T2}, v{a1}
    v_cmp_gt_u32 vcc, 2, v{a0}
    s_lshl_b32 s{T2}, s{FH}, 2
    s_add_u32 s{T2}, s{T2}, {BLK+148*256}
    v_lshlrev_b32 v{a2}, 4, v{a0}
    v_cndmask_b32 v{vVR}, v{a3}, v{a1}, vcc
    v_add_u32 v{a2}, s{T2}, v{a2}
    v_cmp_gt_u32 vcc, 32, v{vL}
    v_subrev_u32 v{a1}, {BLK-8}, v{a2}
    v_cndmask_b32 v{vR0}, v{a3}, v{a2}, {sr(G0M,2)}
    v_cndmask_b32 v{vQR}, v{a3}, v{a2}, vcc
    v_cndmask_b32 v{vR1}, v{a3}, v{a1}, {sr(G1M,2)}
    v_cndmask_b32 v{vKR}, v{vR0}, v{a1}, {sr(G1M,2)}
    v_and_b32 v{a0}, 3, v{a0}
    s_mul_i32 s{T2}, s{J}, 2304
    s_sub_u32 s{T2}, {BLK+110592}, s{T2}
    v_mov_b32 v{a2}, s{T2}
    v_cmp_eq_u32 vcc, 2, v{a0}
    v_mul_u32_u24 v{a0}, 3641, v{vL}
    v_lshrrev_b32 v{a0}, 16, v{a0}
    v_cndmask_b32 v{vVR}, v{vVR}, v{a2}, vcc
    v_lshlrev_b32 v{a1}, 7, v{vL}
    v_cmp_gt_u32 vcc, 41, v{vL}
    v_mul_u32_u24 v{a0}, {36864-18*128}, v{a0}
    v_lshl_add_u32 v{a0}, v{vL}, 7, v{a0}
    v_cndmask_b32 v{vTD_}, v{a3}, v{a1}, vcc
    v_cmp_gt_u32 vcc, 54, v{vL}
    s_nop 0
    s_nop 0
    v_cndmask_b32 v{vTK}, v{a3}, v{a0}, vcc''')
    kvld = T(f'buffer_load_dwordx4 {vr(SP+12)}, off, {sr(SB)}, s{DB} sc1', 32)
    kvtest = [f'v_readfirstlane_b32 s{T2}, v{SP+12}', f'v_readfirstlane_b32 s{T3}, v{SP+13}', f'v_readfirstlane_b32 s{T1}, v{SP+14}',
              f's_or_b32 s{T2}, s{T2}, s{N0}', f's_or_b32 s{T3}, s{T3}, s{N1}', f's_and_b32 s{T2}, s{T2}, s{T3}',
              f's_and_b32 s{T2}, s{T2}, s{T1}', f's_cmp_eq_u32 s{T2}, 0xffff']
    kv2pre = II(f'''v_lshlrev_b32 v{SP+9}, 7, v{vL}
    v_cmp_gt_u32 vcc, 48, v{vL}
    s_lshl_b32 s{DB}, s{I}, 11
    s_add_u32 s{DB}, s{DB}, 0x{FOFF-4096:x}
    v_cndmask_b32 v{SP+9}, v{a3}, v{SP+9}, vcc
    s_lshl_b32 s{N1}, s{N1}, 16
    s_or_b32 s{N1}, s{N1}, s{N0}''')
    kv2ld = T(f'buffer_load_dword v{SP+12}, v{SP+9}, {sr(SW)}, s{DB} offen sc1', 32)
    kv2test = [f'v_cmp_le_u32 vcc, 1, v{SP+12}', 's_nop 1', f's_or_b32 s{T2}, vcc_lo, s{N1}', f's_or_b32 s{T3}, vcc_hi, 0xffff0000', f's_and_b32 s{T2}, s{T2}, s{T3}', f's_cmp_eq_u32 s{T2}, -1']
    kvpre = II(f'''s_lshl_b32 s{T3}, s{I}, 2
    s_add_u32 s{T3}, s{T3}, s{Wv}
    s_mul_i32 s{T3}, s{T3}, {BLK}
    s_mul_i32 s{T2}, s{J}, 2304
    s_add_u32 s{T3}, s{T3}, s{T2}
    s_add_u32 s{T3}, s{T3}, 0x{KOFF:x}''')
    kvtouch = [T(f'buffer_load_dword v0, v{vTK}, {sr(SW)}, s{T3} offen')] if opt.get('kvt', 0) else []
    if JX > 2 and opt.get('kvt', 0):
        kvtouch += II(f's_sub_u32 s{T3}, s{T3}, {8*BLK}\ns_and_b32 s{T2}, s{I}, {32//JX-2}') + \
                   [II(f's_or_b32 s{T2}, s{T2}, s{N0}\ns_cselect_b32 s{T3}, 0x{OOB:x}, s{T3}'), T(f'buffer_load_dword v0, v{vTK}, {sr(SW)}, s{T3} offen')]
    kvtouch += [II(f's_getpc_b64 {sr(SB,2)}') + [Ins('K1_pc2:')]] + II(f'''s_mov_b32 s{SB+2}, code_end-K1_pc2
    s_and_b32 s{T2}, s{NN}, 7
    s_lshl_b32 s{T2}, s{T2}, 2
    s_add_u32 s{T2}, s{T2}, s{Wv}
    s_mul_i32 s{T2}, s{T2}, {10*128}
    v_lshlrev_b32 v{SP}, 7, v{vL}
    v_cmp_gt_u32 vcc, 10, v{vL}
    s_nop 0
    s_nop 0
    v_cndmask_b32 v{SP}, v{a3}, v{SP}, vcc''') + [T(f'buffer_load_dword v0, v{SP}, {sr(SB)}, s{T2} offen', 32)]
    qld = []; ql = []
    for a_ in range(2):
        l0 = Ins(f'buffer_load_dwordx4 {vr(QF+4*a_)}, v{vKM}, {sr(SW)}, s{T3} offen sc1')
        l1 = [Ins(f'buffer_load_dword v{QF+8+2*a_+h}, v{vQR}, {sr(SW)}, s{T3} offen offset:{8*h} sc1') for h in range(2)]
        ql += [Ins(f's_add_u32 s{T3}, s{KO+4}, {(a_*BLK - 36864) & 0xffffffff}'), l0, l1[0], l1[1]]; qld += [[l0, l1[0]], [l0, l1[1]]]
    km = []; kr = []; kl = []; vld = []; vl = []
    PACE = ('SKIP', 0)
    for b_ in range(11):
        so = Ins(f's_add_u32 s{T3}, s{KO+min(b_//2,4)}, {(b_-2*min(b_//2,4))*BLK}')
        r_ = Ins(f'buffer_load_dword a{6*b_}, v{vR0 if b_ == 0 else (vR1 if b_ == 10 else vKR)}, {sr(SW)}, s{T3} offen sc1'); kr.append(r_)
        kl += [so, r_, PACE]
        lo_, hi_ = b_ // 2, (b_ - 1) // 2
        nm_ = lambda q_: f's{KB+q_}' if 0 <= q_ < 4 else '0'
        if b_ <= 8: kl += II(f's_pack_ll_b32_b16 s{T2}, {nm_(lo_)}, {nm_(hi_)}\nv_accvgpr_write_b32 a{6*b_+1}, s{T2}')
        else: kl += II(f'v_accvgpr_write_b32 a{6*b_+1}, 0')
        if b_ < 10:
            m_ = Ins(f'buffer_load_dwordx4 {ar(6*b_+2)}, v{vKM}, {sr(SW)}, s{T3} offen sc1'); km.append(m_)
            kl += [m_, PACE]
    kld = [[km[u // 2], kr[(u + 1) // 2]] for u in range(20)]
    for v in range(10):
        a_ = Ins(f'buffer_load_dwordx4 {vr(VREG[2*v])}, v{vVM}, {sr(SW)}, s{T3} offen sc1')
        b_ = Ins(f'buffer_load_dwordx4 {vr(VREG[2*v+1])}, v{vVR}, {sr(SW)}, s{T3} offen sc1')
        vl.append([Ins(f's_add_u32 s{T3}, s{KO+v//2}, {(v%2)*BLK}'), a_, PACE, b_, PACE]); vld += [a_, b_]
    def vfix(v): return [Ins(f'v_or_b32 v{VREG[2*v+1]+r}, v{vONES}, v{VREG[2*v+1]+r}', needs=[vld[2 * v + 1]]) for r in range(4)]
    pfd = [T(f'buffer_load_dword v0, v{vTD_}, {sr(SD)}, s{PFD} offen offset:2048' + NT, opt.get('qd', 120))]
    if opt.get('nod') or opt.get('cls'): pfd = []
    pfw = II(f's_mul_i32 s{T2}, s2, {21*128}') + [II(f's_cmp_eq_u32 s{Wv}, 0\ns_cselect_b32 s{T2}, s{T2}, 0x{OOB:x}'), T(f'buffer_load_dword v0, v{vTD_}, {sr(SQ)}, s{T2} offen', 40)]
    if opt.get('nod'): pfw = []
    h1ld, h1chk = hpoll(2, vPFP)
    e_ = opt.get('ev', [8, 0, 26, 29, 38])
    flat = lambda l: [y for x in l for y in x]
    NV1 = opt.get('nv1', 3)
    cls_chain = []
    if opt.get('cls'):
        va, vs_ = QF + 13 - 9, QF + 13 - 8
        cls_chain = II(f'''v_lshrrev_b32 v{va}, 2, v{vL}
        v_mul_u32_u24 v{va}, 9216, v{va}
        v_bfe_u32 v{vs_}, v{vL}, 1, 1
        v_mul_u32_u24 v{vs_}, 1152, v{vs_}
        v_add_u32 v{va}, v{va}, v{vs_}
        v_and_b32 v{vs_}, 1, v{vL}
        v_lshl_add_u32 v{va}, v{vs_}, 10, v{va}
        v_cmp_gt_u32 {sr(DUM,2)}, 36, v{vL}
        v_mov_b32 v{va+2}, 0x{OOB:x}
        v_lshlrev_b32 v{vs_}, 8, v{vs_}
        v_cndmask_b32 v{va}, v{va+2}, v{va}, {sr(DUM,2)}
        v_sub_u32 v{vs_}, 128, v{vs_}
        s_lshr_b32 s{DUM}, s2, 5
        s_lshl_b32 s{DUM}, s{DUM}, 3
        s_and_b32 s{DUM+1}, s2, 7
        s_or_b32 s{DUM}, s{DUM}, s{DUM+1}
        s_mul_i32 s{PFP}, s{DUM}, {9*9216}
        s_mul_i32 s{DUM+1}, s{Wv}, 2304
        s_add_u32 s{PFP}, s{PFP}, s{DUM+1}
        s_and_b32 s{DUM}, s{NN}, 3''')
        sites_ = opt['cls']; qc = opt.get('qc', 24)
        for n, sl in enumerate(sites_):
            if sl: cls_chain += [('AT', sl - 1, 16)]
            if n < 6 and n % 2 == 0: cls_chain += II(f'v_add_u32 v{va}, v{va}, v{vs_}')
            if not sl: continue
            if n < 6:
                cls_chain += [II(f's_cmp_eq_u32 s{DUM}, {n % 4}\ns_cselect_b32 s{PFW}, s{PFP}, 0x{OOB:x}'), ('AT', sl, 0),
                              T(f'buffer_load_dword v0, v{va}, {sr([SG, SU][n % 2])}, s{PFW} offen offset:{2048 * (n % 2)}', qc)]
            else:
                cls_chain += [II(f's_cmp_eq_u32 s{DUM}, {n % 4}\ns_cselect_b32 s{PFW}, s{PFD}, 0x{OOB:x}'), ('AT', sl, 0),
                              T(f'buffer_load_dword v0, v{vTD_}, {sr(SD)}, s{PFW} offen offset:2048', qc)]
    fill1 = [(sl, 0, stamp('slot%d' % sl, True)) for sl in range(NSEG1)] + [
        (0, 0, r1[8:]),
        (1, 0, cls_chain),
        (0, 2, late0 + late0b + [('BY', 9), ('AT', 9, 4)] + qe + [('BY', 16)] + late + [kvld, ('AT', 18, 4)]
         + pe[0][0] + [('BY', 24), poll_check('kv', kvld, kvtest)] + kv2pre + [('AT', 24, 4)]
         + le[0] + [('BY', 26), ('AT', e_[2], 0), kv2ld] + [('AT', 27, 0)] + le[3] + [('AT', e_[3] - 1, 8), poll_check('kw', kv2ld, kv2test)] + kvpre + [('AT', e_[3], 0)] + pfd + pfw + kvtouch + [('BY', 33), ('AT', 33, 4)]
         + pe[1][0] + ql + [('BY', 42), ('AT', 42, 4)]
         + pe[2][0] + [('AT', 44, 0)] + kl + flat(vl[:NV1]) + [h1ld]),
    ]
    bx1 = {
        3: (r1, []),
        opt.get('kvf', 17): (kv_stores + [guard, ones_st], setflag(1, SP + 10)),
        27: (le[2], []),
        47: (pe[0][1] + le[1] + pe[1][1] + pe[2][1], setflag(2, SP + 10)),
    }
    extra_loads[3] = [5, 6, 7, 8, load_at.pop(2)]
    xmap = {}
    for n, x in enumerate(r1):
        ks = n // 2
        for mt in range(4): xmap[breg(ks, mt)] = r1[2 * ks + (mt & 1)] if mt >= 2 else None
    mark = {}
    def hook(k, s):
        if k == 0:
            P(f's_cmp_ge_u32 s{J}, 9')
            P('s_cbranch_scc1 qkv_v')
            mark['a'] = len(P.out)
        if s == 9 and 'b' not in mark:
            mark['b'] = len(P.out)
            P.label('qkv_e')
    left = segment(0, NSEG1, fill1, bx1, first_loads=list(range(NPRE, 5)), hook=hook, pre=r1[:8], extra_need=lambda f, mt: xmap[f.b(mt)])
    qrd = set(id(x) for n in range(9) for g in slots[n].groups for f in g for x in f.rd)
    K = Prog(); K.label('qkv_k'); nb_ = 0
    for x in P.out[mark['a']:mark['b']]:
        if x.kind == 'mfma' or id(x) in qrd or x.op == 's_nop': continue
        t = x.text
        if x.kind == 'label': K.label(t[:-1].replace('_e', 'k_e')); continue
        if x.op == 's_cbranch_scc1': t += 'k'
        if x.op == 's_waitcnt':
            if 'vmcnt' not in t: continue
            t = t.split(' lgkmcnt')[0]
        if x.op == 's_barrier':
            nb_ += 1
            if nb_ <= 3: K('s_waitcnt lgkmcnt(0)')
        K(t)
    K('s_waitcnt lgkmcnt(0)'); K('s_nop 4'); K('s_branch qkv_e')
    slow.append(K.text())
    alt = ['qkv_v:', f'    s_cmp_ge_u32 s{J}, 14', '    s_cbranch_scc1 qkv_k'] if opt.get('skip', 1) else ['qkv_v:']
    for x in P.out[mark['a']:mark['b']]:
        t = x.text
        if x.kind == 'label': alt.append(t.replace('_e:', 'v_e:')); continue
        if x.op == 's_cbranch_scc1': t += 'v'
        if x.kind == 'mfma':
            o = [y.strip() for y in t[len(x.op):].split(',')]
            t = '%s %s, %s, %s, %s' % (x.op, o[0], o[2], o[1], o[3])
        alt.append('    ' + t)
    alt.append('    s_branch qkv_e')
    slow.append('\n'.join(alt) + '\n')
    print('left after seg1:', len(left), file=sys.stderr)
    stamp('g1end')

    SREG = [80] + [ACCB + (tl * 4 + mt) * 4 for mt in range(4) for tl in (0, 1, 3, 2)]
    PR = [84, 88]; OM, OR_ = 96, 100; MF, ML = 104, 108
    noskip = lambda l: [x for x in l if not isinstance(x, tuple)]
    def qbuild(t):
        q = QF + 2 * t
        P(Ins(f'v_mov_b32 v{QW+2}, v{q}', needs=qld[t]))
        P(f'v_mov_b32 v{QW+3}, v{q+1}')
        P(f'v_cndmask_b32 v{QW}, 0, v{QF+8+t}, {sr(G0M,2)}')
        P(f'v_cndmask_b32 v{QW+4}, 0, v{QF+8+t}, {sr(G1M,2)}')
    P('v_mov_b32 v%d, 0x%x' % (vTA, NEG))
    P(f'v_mov_b32 v{QW+1}, 0x3f80')
    P(f'v_mov_b32 v{QW+5}, 0x3f800000')
    qbuild(0)
    pq = list(pe[3][0])
    for r in range(4):
        P('v_cmp_lt_i32 vcc, %d, v%d' % (-r, vDG))
        P(pq.pop(0)); P(pq.pop(0))
        P('v_cndmask_b32 v%d, v%d, 0, vcc' % (MF + r, vTA))
        P('v_cndmask_b32 v%d, 0, v%d, vcc' % (ML + r, vTA))
    P(f's_cmp_eq_u32 s{FH}, 0')
    P('s_cselect_b64 vcc, -1, 0')
    P(f's_xor_b32 s{N0}, s{C}, 0x80000000')
    hld = {}
    def hload(k):
        if isinstance(k, tuple):
            ka, kb = k
            pre = II(f's_mul_i32 s{T2}, s{FH}, {(ka-kb)*8192}\ns_add_u32 s{T2}, s{T2}, s{HL}\ns_add_u32 s{T2}, s{T2}, {(17-ka)*8192}') if ka != kb else II(f's_add_u32 s{T2}, s{HL}, {(17-ka)*8192}')
            tx = lambda kk, mt: f'buffer_load_dwordx4 {breg(hpos[kk], mt)}, v{vL16}, {sr(SW)}, s{T2} offen offset:{1024*mt} sc1'
            ld = [Ins(tx(ka, mt)) for mt in range(4)]
            hld[ka] = [ld[3]] * 4; hld[kb] = [ld[3]] * 4
            if ka == kb: return [pre + ld[:1], ld[1:2], ld[2:3], ld[3:]]
            return [(pre if h == 0 else []) + alt_site(ld[2*h:2*h+2], [tx(kb, 2*h), tx(kb, 2*h+1)]) for h in range(2)]
        base = HLONE if k == 8 else hphys[k // 2] * SLOT + (k & 1) * 8192
        hld[k] = [Ins(f'ds_read_b128 {breg(hpos[k], mt)}, v{vONES} offset:{1024*mt}') for mt in range(4)]
        return [II(f'v_add_u32 v{vONES}, {base}, v{vHW}') + hld[k][:2], hld[k][2:]]
    def qk(t, sg):
        u = t + sg
        c = vr(MF) if sg == 0 else (vr(ML) if sg == 16 else '0')
        return Ins('v_mfma_f32_16x16x32_bf16 %s, %s, %s, %s' % (vr(SREG[sg]), ar(3 * u + (u & 1)), vr(QW + 2 * (u & 1)), c), needs=kld[u])
    def mx(sg, dst):
        s = SREG[sg]
        if sg == 0: return II('v_max3_f32 v%d, v%d, v%d, v%d\nv_max_f32 v%d, v%d, v%d' % (dst, s, s + 1, s + 2, dst, dst, s + 3))
        return II('v_max3_f32 v%d, v%d, v%d, v%d\nv_max3_f32 v%d, v%d, v%d, v%d' % (dst, dst, s, s + 1, dst, dst, s + 2, s + 3))
    lk = [x for x in left if any(y in km or y in kr for y in x)]
    if lk:
        n = left.index(lk[-1]) + 1; emit_all(left[:n]); left = left[n:]
    P(qk(0, 0))
    nq = 1; avail = 1; nmx = 0
    while pq:
        x = pq.pop(0); P(x)
        if x.kind == 'ds': avail += 4
        elif nq < avail and len(pq) % 2 == 0: P(qk(0, nq)); nq += 1
    def bunch(l):
        out = []; cur = []
        for x in l:
            cur += x
            if any(y.kind == 'vmem' for y in x): out.append(cur); cur = []
        assert not cur
        return out
    isdma = lambda x: any(' lds' in y.text or f's{OFF},' in y.text.split()[1] or 'm0' in y.text or f's{BD},' in y.text.split()[1] for y in x)
    ldma = bunch([x for x in left if isdma(x)])
    lv = bunch([x for x in left if not isdma(x)] + [[x] for v in range(NV1, 10) for x in noskip(vl[v])])
    while nq < 17:
        P(qk(0, nq)); nq += 1
        emit_all(mx(nmx, vMN)); nmx += 1
    while nmx < 17:
        if len(lv) > 12 and nmx % 2: emit_all(lv.pop(0))
        emit_all(mx(nmx, vMN)); nmx += 1
    while len(lv) > 12: emit_all(lv.pop(0))
    qbuild(1)
    stamp('attk')
    ow = []
    def o_epi(t):
        P('v_rcp_f32 v%d, v%d' % (vTA, OR_ + 2))
        for r in range(4): P(mul(OM + r, OM + r, vTA))
        for r in range(2): P(mul(OR_ + r, OR_ + r, vTA))
        P(cvt(QF + 2 * t, OM, OM + 1)); P(cvt(QF + 2 * t + 1, OM + 2, OM + 3)); P(cvt(QF + 8 + t, OR_, OR_ + 1))
    ofl = II(f'''s_lshl_b32 s{T2}, s{FH}, 3
    s_add_u32 s{T2}, s{T2}, {HLONE}
    v_add_u32 v{vTB}, s{T2}, v{vHW}
    s_lshl_b32 s{T2}, s{RG}, 9
    s_lshl_b32 s{T3}, s{FH}, 2
    s_add_u32 s{T2}, s{T2}, s{T3}
    s_add_u32 s{T2}, s{T2}, {RT4}
    v_lshlrev_b32 v{vTA}, 3, v{vL}
    v_add_u32 v{vMX}, 4096, v{vTA}
    v_cndmask_b32 v{vTA}, v{vMX}, v{vTA}, {sr(G0M,2)}
    v_add_u32 v{vTA}, s{T2}, v{vTA}''')
    for t in range(4):
        ow += [Ins(f'ds_write_b64 v{vTB}, {vr(QF+2*t,2)} offset:{1024*t}'), Ins(f'ds_write_b32 v{vTA}, v{QF+8+t} offset:{128*t}')]
    ofl += ow
    h2ld, h2chk = hpoll(3, vPFP)
    hplan = opt.get('hplan', {0: [0, 1, 2, 3, 4, 5], 1: [(16, 17), (14, 15), (12, 13), (9, 9)], 2: [(17, 16), (15, 14), (13, 12), 8], 3: [(10, 11), (11, 10)]})
    if opt.get('plain', 1): hplan = {0: [0, 1, 2, 3, 4, 5], 1: [(16, 16), (17, 17), (14, 14), (15, 15)], 2: [(12, 12), (13, 13), (9, 9), 8], 3: [(10, 10), (11, 11)]}
    for t in range(4):
        stamp('att%d' % t)
        P('v_mov_b32 v%d, v%d' % (vTA, vMN))
        P('v_permlane16_swap_b32 v%d, v%d' % (vTA, vMN))
        P('v_max_f32 v%d, v%d, v%d' % (vMN, vMN, vTA))
        P('v_mov_b32 v%d, v%d' % (vTA, vMN))
        P('v_permlane32_swap_b32 v%d, v%d' % (vTA, vMN))
        P('v_max_f32 v%d, v%d, v%d' % (vMN, vMN, vTA))
        P(f'v_mul_f32 v{vMX}, s{N0}, v{vMN}')
        if t == 1:
            P(Ins('s_barrier', needs=pe[3][1] + hw[3] + [x for k in range(6) for x in hld[k]]))
            ad = bunch(flat([dma_groups(n) for n in att_loads]))
            emit_all(setflag(3, vPFS))
            emit_all(h1chk)
        if t == 3:
            P(Ins('s_barrier', needs=slots[NSEG1].loads + hld[8]))
            emit_all(h2chk)
        bq = flat([hload(k) for k in hplan[t]])
        def mix(a_, b_):
            out = []; a_ = list(a_); b_ = list(b_)
            while a_ or b_:
                if a_: out.append(a_.pop(0))
                if b_: out.append(b_.pop(0))
            return out
        if t == 0: bq = mix(lv + ldma, bq)
        else:
            na = [0, 4, 6, 10][t]
            bq = mix(bq, ad[:na]) if t < 3 or opt.get('plain', 1) else bq[:2] + ad[:na] + bq[2:]
            ad = ad[na:]
        ppv = []; pqk = []; pmx = []
        for b in range(9):
            v = (t >> 1) + b
            sgs = [2 * v - t, 2 * v + 1 - t]
            val = [sg for sg in sgs if 0 <= sg <= 16]
            p = PR[b % 2]
            for sg in val:
                for r in (0, 2):
                    s = SREG[sg] + r
                    P(f'v_pk_fma_f32 {vr(s,2)}, {vr(s,2)}, {sr(C,2)}, {vr(vMX,2)} op_sel_hi:[1,0,0]')
            mfs = ppv + [qk(t + 1, g_) for g_ in pqk]
            nb = (len(bq) + (8 - b)) // (9 - b)
            def withmem(x):
                nonlocal nb
                g = []
                if nb: g = bq.pop(0); nb -= 1
                n0 = 0
                while n0 < len(g) and g[n0].kind in ('salu', 'valu') and not g[n0].op.startswith('s_cbranch'): n0 += 1
                emit_all(g[:n0]); P(x); emit_all(g[n0:])
            for sg in val:
                for r in range(4):
                    P('v_exp_f32 v%d, v%d' % (SREG[sg] + r, SREG[sg] + r))
                    if mfs: withmem(mfs.pop(0))
            while mfs: withmem(mfs.pop(0))
            nb += 1
            for g_ in pmx: emit_all(mx(g_, vMN))
            for hh, sg in enumerate(sgs):
                if sg in val:
                    s = SREG[sg]
                    P(cvt(p + 2 * hh, s, s + 1)); P(cvt(p + 2 * hh + 1, s + 2, s + 3))
                else:
                    P('v_mov_b32 v%d, 0' % (p + 2 * hh)); P('v_mov_b32 v%d, 0' % (p + 2 * hh + 1))
            for _ in range(nb - 1): emit_all(bq.pop(0))
            pmx = pqk; pqk = val if t < 3 else []
            ppv = [Ins('v_mfma_f32_16x16x32_bf16 %s, %s, %s, %s' % (vr(OM), vr(VREG[2 * v]), vr(p), '0' if b == 0 else vr(OM)), needs=[vld[2 * v]]),
                   Ins('v_mfma_f32_16x16x32_bf16 %s, %s, %s, %s' % (vr(OR_), vr(VREG[2 * v + 1]), vr(p), '0' if b == 0 else vr(OR_)), needs=[vld[2 * v + 1]])]
            if t == 2 and b == 5: P(h2ld)
        assert not bq
        tail = flat([mx(g_, vMN) for g_ in pmx])
        for x in [qk(t + 1, g_) for g_ in pqk] + ppv:
            P(x)
            if tail: P(tail.pop(0))
        emit_all(tail)
        if t < 2: qbuild(t + 2)
        for g_ in pqk: emit_all(mx(g_, vMN))
        if t < 3: o_epi(t)
    stamp('attend')

    own = flat(flat([hload(k) for k in (6, 7)]))
    bmap = {}
    for k in hld:
        for mt in range(4): bmap[breg(hpos[k], mt)] = hld[k][mt]
    def restage(dst, sbase, stride, T3=T3):
        L = II(f's_lshl_b32 s{T3}, s{FH}, 11\ns_add_u32 s{T3}, s{T3}, {HLONE}\nv_add_u32 v{vTB}, s{T3}, v{vHW}')
        rd = [Ins(f'ds_read_b128 {vr(dst+4*m)}, v{vTB} offset:{1024*m}') for m in range(2)]
        L += rd + II(f's_add_u32 s{T3}, s{sbase}, {stride}') + [('SKIP', 8)]
        L += [Ins(f'buffer_store_dwordx4 {vr(dst+4*m)}, v{vL16}, {sr(SW)}, s{[sbase, T3][m]} offen sc1', needs=[rd[m]]) for m in range(2)]
        return L, rd
    oe, ord_ = restage(QF, OB, 18432)
    rr = Ins(f'ds_read_b128 {vr(QF+8)}, v{vTA}')
    oe += II(f'v_add_u32 v{vTA}, {RT4}, v{vL16}') + [rr] + II(f'v_lshrrev_b32 v{vTA}, 3, v{vL}\nv_mul_u32_u24 v{vTA}, {18432-128}, v{vTA}\nv_add_u32 v{vTA}, v{vTA}, v{vL16}') + [('SKIP', 8)]
    oe += [Ins(f'buffer_store_dwordx4 {vr(QF+8)}, v{vTA}, {sr(SW)}, s{OR} offen sc1', needs=[rr])]
    l2e = II(f's_lshl_b32 s{T3}, s{FH}, 3\ns_add_u32 s{T3}, s{T3}, {HLONE}\nv_add_u32 v{vTB}, s{T3}, v{vHW}'); l2w = []
    for mt in range(4):
        t0 = SP + mt * 4
        w = Ins(f'ds_write_b64 v{vTB}, {vr(t0,2)} offset:{1024*mt}'); l2w.append(w)
        l2e += [cvt(t0, t0, t0 + 1), cvt(t0 + 1, t0 + 2, t0 + 3), w]
    l2s, _ = restage(SP, PLN, 1024, T1)
    def task_params(second):
        ln = II(f's_lshl_b32 s{T2}, s{Pp}, 2\ns_lshr_b32 s{T1}, 0x54108732, s{T2}\ns_and_b32 s{T1}, s{T1}, 15\ns_lshr_b32 s{TV}, 0x56557777, s{T2}\ns_and_b32 s{TV}, s{TV}, 15\ns_movk_i32 s{TM}, 0x5555')
        ln += [II(f's_cmp_gt_u32 s{T1}, 4\ns_cselect_b32 s{T2}, 1, 0'), Ins(f's_lshl_b32 s{TM}, s{TM}, s{T2}'), II(f's_cmp_eq_u32 s{T1}, 4\ns_cselect_b32 s{TM}, 0xffff, s{TM}'), Ins(f's_bitset0_b32 s{TM}, s{J}')]
        return ln + II(f'''s_lshl_b32 s{TL}, s{T1}, 7
        s_lshl_b32 s{T2}, s{E}, 2
        s_add_u32 s{T2}, s{T2}, s{Wv}
        s_lshl_b32 s{TP}, s{T2}, 10
        s_lshl_b32 s{T1}, s{T1}, 14
        s_sub_u32 s{TP}, s{TP}, s{T1}
        s_mul_i32 s{T1}, s{I}, {8*18*8192}
        s_add_u32 s{TP}, s{TP}, s{T1}
        s_lshl_b32 s{T1}, s{I}, 3
        s_add_u32 s{T2}, s{T2}, s{T1}
        s_mul_i32 s{OL}, s{T2}, 18432
        s_add_u32 s{TX}, s{OL}, s{TL}
        s_mul_i32 s{T1}, s{Wv}, {36*1152}
        s_add_u32 s{TL}, s{TL}, s{T1}''')
    tsetup = II(f'''s_mov_b32 s{SG}, s8
    s_mov_b32 s{SG+1}, s9
    s_mov_b32 s{SG+2}, 0x{576*1152:x}
    s_mov_b32 s{SU}, s{OUTP}
    s_mov_b32 s{SU+1}, s{OUTP+1}
    s_mov_b32 s{SU+2}, 0x{2048*1152:x}
    s_lshl_b32 s{FB}, s{I}, 11
    s_add_u32 s{FB}, s{FB}, 0x{FOFF:x}
    s_mov_b32 s{LO}, 0x00003f80
    s_mov_b32 s{HI}, 0x3f800000''') + task_params(False)
    for t, row in enumerate((0, 8, 20, 28)): tsetup += II(f'v_add_u32 v{vWD[t]}, {(row*1152 - 1024*t - 2048) & 0xffffffff}, v{vDD[0]}')
    tsetup += II(f'''v_lshrrev_b32 v{vWD2}, 5, v{vL}
    v_mul_u32_u24 v{vWD2}, {32*1152}, v{vWD2}
    v_add_u32 v{vWD2}, v{vWD2}, v{vWD[0]}
    v_add_u32 v{vWD2}, {16*1152}, v{vWD2}
    v_and_b32 v{vWT[0]}, 0xffff, v{vTD[0]}
    s_lshl_b32 s{T2}, s{FH}, 6
    v_xor_b32 v{vWT[0]}, s{T2}, v{vWT[0]}
    v_xor_b32 v{vWT[1]}, 32, v{vWT[0]}
    v_xor_b32 v{vWT[2]}, 64, v{vWT[0]}
    v_xor_b32 v{vWT[3]}, 0x60, v{vWT[0]}
    v_lshlrev_b32 v{vPL}, 3, v{vOR}
    v_and_b32 v{vMX}, 15, v{vL}
    v_mul_u32_u24 v{vDG}, 1152, v{vMX}
    v_bfe_u32 v{vMN}, v{vL}, 4, 1
    v_lshl_add_u32 v{vDG}, v{vMN}, 5, v{vDG}
    v_lshrrev_b32 v{vMN}, 5, v{vL}
    v_lshl_add_u32 v{vDG}, v{vMN}, 4, v{vDG}
    s_lshl_b32 s{T2}, s{E}, 2
    s_add_u32 s{T2}, s{T2}, s{Wv}
    s_lshl_b32 s{T2}, s{T2}, 8
    s_lshr_b32 s{T3}, s{ROT}, 2
    s_xor_b32 s{T2}, s{T2}, s{T3}
    s_add_u32 s{T2}, s{T2}, {RTB}
    v_lshlrev_b32 v{vMX}, 2, v{vMX}
    v_add_u32 v{vMX}, s{T2}, v{vMX}''')
    rrd = Ins(f'ds_read_b32 v{vMX}, v{vMX}')
    tsetup += [rrd, ('SKIP', 8), Ins(f'v_mul_f32 v{vMX}, v{vMX}, v{vMX}', needs=[rrd]), Ins(f'v_mul_f32 v{vMN}, 0x{f2u(-1.4426950408889634):x}, v{vMX}')]
    fl_t = f'buffer_load_dword v{vPFP}, v{vPL}, {sr(SW)}, s{FB} offen sc1'
    o3ld = T(fl_t, 24)
    o3chk = poll_check('o3', o3ld, [f'v_cmp_le_u32 vcc, 4, v{vPFP}', 's_nop 1', 's_cmp_eq_u32 vcc_lo, 0xffff'])
    d5ld = T(fl_t, 8)
    ct3 = [II(f's_getpc_b64 {sr(SB,2)}') + [Ins('K1_pc3:')]] + II(f'''s_mov_b32 s{SB+2}, code_end-K1_pc3
    s_and_b32 s{T2}, s{NN}, 7
    s_lshl_b32 s{T2}, s{T2}, 2
    s_add_u32 s{T2}, s{T2}, s{Wv}
    s_mul_i32 s{T2}, s{T2}, {9*128}
    v_cmp_gt_u32 vcc, 9, v{vL}
    v_mov_b32 v{vTA}, 0x{OOB:x}
    s_nop 0
    v_cndmask_b32 v{vTA}, v{vTA}, v{vPL}, vcc''') + [T(f'buffer_load_dword v0, v{vTA}, {sr(SB)}, s{T2} offen', 24)]
    ct3 += II(f'''v_mul_u32_u24 v{vTA}, 1152, v{vL}
    v_subrev_u32 v{vTB}, {9*1152-128}, v{vTA}
    v_cmp_gt_u32 vcc, 9, v{vL}
    s_and_b32 s{T2}, s{I}, 7
    s_lshl_b32 s{T2}, s{T2}, 1
    v_cndmask_b32 v{vTA}, v{vTB}, v{vTA}, vcc
    s_add_u32 s{T2}, s{T2}, s{E}
    s_mul_i32 s{T2}, s{T2}, {36*1152}
    s_add_u32 s{T2}, s{T2}, s{TL}
    s_mul_i32 s{T3}, s{Wv}, {27*1152}
    s_sub_u32 s{T2}, s{T2}, s{T3}''') + [II(f's_cmp_ge_u32 s{J}, 14\ns_cselect_b32 s{T3}, 18, 9')] + II(f'''v_cmp_gt_u32 vcc, s{T3}, v{vL}
    v_mov_b32 v{vTB}, 0x{OOB:x}
    s_nop 0
    v_cndmask_b32 v{vTA}, v{vTB}, v{vTA}, vcc''') + [T(f'buffer_load_dword v0, v{vTA}, {sr(SG)}, s{T2} offen', 24)]
    if opt.get('nowt', 1): ct3 = ct3[:-17]
    OA = 160
    old = []; ol = II(f'v_lshlrev_b32 v{vTA}, 3, v{vL}')
    for k in range(18):
        if k == 8: ol += [('AT', NSEG1 + 14, 0)]
        if k == 16: ol += [('AT', NSEG1 + 15, 0)]
        if k % 4 == 0: ol += II(f's_add_u32 s{T3}, s{OL}, 0x{OOFF + k*1024:x}')
        if k < 16: x = [Ins(f'buffer_load_dwordx4 {ar(OA+4*k)}, v{vL16}, {sr(SW)}, s{T3} offen offset:{1024*(k%4)} sc1')]
        else: x = [Ins(f'buffer_load_dwordx2 {ar(OA+4*k+2*h,2)}, v{vTA}, {sr(SW)}, s{T3} offen offset:{1024*(k%4)+512*h} sc1') for h in range(2)]
        ol += x; old.append(x[-1])
    XR2 = SP + 8
    xt_ = lambda u: f'buffer_load_dwordx4 {vr(XR2+4*u)}, v{vDG}, {sr(SX)}, s{TX} offen offset:{64*u}'
    xld = [Ins(xt_(u)) for u in range(2)]
    de0 = d_epi(ACCA, 0); st0 = [x for x in de0 if x.kind == 'vmem']; stl = [x for x in l2s if not isinstance(x, tuple) and x.kind == 'vmem']
    ost = [x for x in oe if not isinstance(x, tuple) and x.kind == 'vmem']
    de1a = d_epi(ACCB, 1, (0,)); de1b = d_epi(ACCB, 1, (1,)); st1 = [x for x in de1a + de1b if x.kind == 'vmem']
    for x in st1 + stl: loud.add(id(x)); svc[id(x)] = 3
    fill2 = [(sl, 0, stamp('slot%d' % sl, True)) for sl in range(NSEG1, NS)] + [
        (NSEG1, 0, ofl + [('AT', NSEG1 + 2, 0)] + oe + tsetup + ct3 + [('BY', NSEG1 + 9), ('AT', NSEG1 + 9, 4)] + de0 + [o3ld, ('AT', NSEG1 + 12, 4)] + l2e + [('BY', NSEG1 + 14)]
         + [('AT', NSEG1 + 13, 0), o3chk] + ol),
        (NS - 1, 19, de1a), (NSEG1 + 15, 0, l2s),
        (NSEG1, 1, own)]
    bx2 = {NSEG1 + 2: (ow, []), NSEG1 + 3: (hld[6] + hld[7], [])}
    bx2[NSEG1 + 7] = (ost, setflag(4, vPFS)); bx2[NSEG1 + 15] = (l2w + st0, setflag(5, vPFS)); bx2[NSEG1 + 18] = (stl, setflag(6, vPFS))
    left = segment(NSEG1, NS, fill2, bx2, extra_need=lambda f, mt: bmap[f.b(mt)], pre=lambda: o_epi(3))
    print('left after seg2:', len(left), file=sys.stderr)
    stamp('g2end')
    tq = flat(left) + de1b + xld
    def wo_gemm(P, acc, need_o, bg_=None, ph=None):
        ph = ph or [phys[n] for n in range(NS, NSX)]
        rds = {}
        wwin = [0]
        def rd(n):
            k, dt = divmod(n, 4)
            w, o = divmod(ph[k // 4] * SLOT, 65536)
            if w != wwin[0]:
                for d in range(4): P('v_add_u32 v%d, 0x%x, v%d' % (vWT[d], ((w - wwin[0]) * 65536) & 0xffffffff, vWT[d]))
                wwin[0] = w
            f = FR + 4 * (n % 8)
            rds[n] = [P('ds_read_b64_tr_b16 %s, v%d offset:%d' % (vr(f + 2 * h, 2), vWT[dt], o + (k % 4) * 4096 + 2048 * h)) for h in range(2)]
        for n in range(7): rd(n)
        for n in range(72):
            k, dt = divmod(n, 4)
            nd = rds[n] + (rds[n + 1] if n % 2 == 0 else []) + ([old[k]] if need_o else [])
            P(Ins('v_mfma_f32_16x16x32_bf16 %s, %s, %s, %s' % (vr(acc + 4 * dt), vr(FR + 4 * (n % 8)), ar(OA + 4 * k), '0' if k == 0 else vr(acc + 4 * dt)), needs=nd))
            if n + 7 < 72: rd(n + 7)
            if bg_: bg_(n)
        for d in range(4):
            if wwin[0]: P('v_add_u32 v%d, 0x%x, v%d' % (vWT[d], (-wwin[0] * 65536) & 0xffffffff, vWT[d]))
    def ploads(P, dst, extra=0):
        pl = []
        for p in range(8):
            for u in range(2):
                P(f's_add_u32 s{T3}, s{TP}, 0x{POFF + (p*18+17-u)*8192 - extra:x}')
                pl.append(P(f'buffer_load_dwordx4 {vr(dst+8*p+4*u)}, v{vL16}, {sr(SW)}, s{T3} offen sc1'))
        return pl
    def fmath(P, acc, src0, pl, xr, xl_, imm, bg_=None):
        SUM, TT = FR, FR + 16
        for p in range(8):
            for u in range(2):
                for q in range(4):
                    src = src0 + 8 * p + 4 * u + q; d = SUM + 8 * u + 2 * q
                    P(Ins(f'v_dot2_f32_bf16 v{d}, v{src}, s{LO}, ' + ('0' if p == 0 else f'v{d}'), needs=[pl[2 * p + u]]))
                    P(f'v_dot2_f32_bf16 v{d+1}, v{src}, s{HI}, ' + ('0' if p == 0 else f'v{d+1}'))
                if bg_: bg_(2 * p + u)
        for r in range(0, 16, 2): P(f'v_pk_mul_f32 {vr(TT+r,2)}, {vr(SUM+r,2)}, {vr(vMX,2)} op_sel:[0,1] op_sel_hi:[1,1]')
        for r in range(16): P(f'v_exp_f32 v{TT+r}, v{TT+r}')
        for r in range(0, 16, 2): P(f'v_pk_mul_f32 {vr(acc+r,2)}, {vr(acc+r,2)}, {vr(SUM+r,2)}')
        for r in range(0, 16, 2): P(f'v_pk_add_f32 {vr(TT+r,2)}, {vr(TT+r,2)}, 1.0 op_sel_hi:[1,0]')
        for r in range(16): P(f'v_rcp_f32 v{TT+r}, v{TT+r}')
        for r in range(0, 16, 2): P(f'v_pk_mul_f32 {vr(acc+r,2)}, {vr(acc+r,2)}, {vr(TT+r,2)}')
        for u in range(2):
            for r in range(4): P(f'v_permlane16_swap_b32 v{acc+8*u+r}, v{acc+8*u+4+r}')
        for u in range(2):
            for q in range(4):
                d = acc + 8 * u + 2 * q
                P(Ins(f'v_dot2c_f32_bf16 v{d}, s{LO}, v{xr+4*u+q}', needs=[xl_[u]]))
                P(f'v_dot2c_f32_bf16 v{d+1}, s{HI}, v{xr+4*u+q}')
        for u in range(2):
            for q in range(4): P(cvt(xr + 4 * u + q, acc + 8 * u + 2 * q, acc + 8 * u + 2 * q + 1))
            P(f'buffer_store_dwordx4 {vr(xr+4*u)}, v{vDG}, {sr(SU)}, s{TX} offen offset:{64*u+imm} ' + opt.get('ost', 'sc1'))
    def scale_s(P, acc):
        for r in range(0, 16, 2): P(f'v_pk_mul_f32 {vr(acc+r,2)}, {vr(acc+r,2)}, {vr(vMX,2)} op_sel_hi:[1,0]')
    ftest = [f'v_cmp_le_u32 vcc, s{TV}, v{vPFP}', 's_nop 1', f's_and_b32 s{T2}, vcc_lo, s{TM}', f's_cmp_eq_u32 s{T2}, s{TM}']
    P(Ins('s_barrier', needs=[x for n in range(NS, NSX) for x in slots[n].loads]))
    while tq and any(x in ol for x in tq): P(tq.pop(0))
    P(f's_cmp_ge_u32 s{J}, 14')
    P('s_cbranch_scc1 dbl')
    S = P.fork(); tq2 = [Ins(x.text) for x in tq]
    st2 = [x for x in st1 if x.cnt is not None] + [x for x in tq2 if 'store' in x.op]
    f1 = Ins(fl_t)
    def bgt(n):
        for _ in range(2):
            if tq: P(tq.pop(0))
        if n == opt.get('nf', 48):
            P(Ins('s_barrier', needs=st1))
            P(f1)
            emit_all(setflag(7, vPFS))
    wo_gemm(P, XT, True, bgt)
    assert not tq
    stamp('wo')
    scale_s(P, XT)
    P(Ins(ftest[0], needs=[f1]))
    P('s_nop 1')
    pl = [None] * 16
    porder = opt.get('porder', [7, 6, 5, 4, 0, 1, 2, 3])
    for p in porder:
        chk = [f's_andn2_b32 s{T2}, s{TM}, vcc_lo', f's_and_b32 s{T2}, s{T2}, {3 << (2 * p)}']
        for t_ in chk: P(t_)
        P(f's_cbranch_scc1 fp{p}_slow')
        P.label(f'fp{p}_ok')
        Z = Prog(); Z.label(f'fp{p}_slow'); Z(f's_mov_b32 s{SPN}, 400000'); Z.label(f'fp{p}_loop')
        Z(fl_t); Z('s_waitcnt vmcnt(0)'); Z(ftest[0]); Z(f's_sub_u32 s{SPN}, s{SPN}, 1'); Z(f's_cbranch_scc1 fp{p}_ok')
        for t_ in chk: Z(t_)
        Z(f's_cbranch_scc1 fp{p}_loop'); Z(f's_branch fp{p}_ok'); slow.append(Z.text())
        for u in range(2):
            P(f's_add_u32 s{T3}, s{TP}, 0x{POFF + (p*18+17-u)*8192:x}')
            pl[2 * porder.index(p) + u] = P(f'buffer_load_dwordx4 {vr(ACCA+8*porder.index(p)+4*u)}, v{vL16}, {sr(SW)}, s{T3} offen sc1')
    stamp('poll')
    fmath(P, XT, ACCA, pl, XR2, xld, 0)
    stamp('x1')
    P.label('dbl_e')
    stamp('x2')
    S.label('dbl')
    ph2 = [x for x in range(9) if x not in [phys[n] for n in range(NS, NSX)]] + [9]
    wq = [II(f's_add_u32 s{TL}, s{TL}, 128')] + bunch(flat([slots[NS + n].dma(ph2[n]) for n in range(5)]))
    wl = [x for g in wq for x in g if x.kind == 'vmem']
    def pl_(dst, extra): return [II(f's_add_u32 s{T3}, s{TP}, 0x{POFF + (p*18+17-u)*8192 - extra:x}\nbuffer_load_dwordx4 {vr(dst+8*p+4*u)}, v{vL16}, {sr(SW)}, s{T3} offen sc1') for p in range(8) for u in range(2)]
    qa = pl_(ACCA, 0); qb = pl_(ACCB, 16384); pa = [g[1] for g in qa]; pb = [g[1] for g in qb]
    x2 = [Ins(f'buffer_load_dwordx4 {vr(SP+4*u)}, v{vDG}, {sr(SX)}, s{TX} offen offset:{128+64*u}') for u in range(2)]
    mq = wq[:10] + [[d5ld]] + wq[10:] + [[x] for x in x2] + [poll_check('d5', d5ld, ftest) + qa[0]] + qa[1:] + qb
    def pop():
        if mq:
            for x in mq.pop(0):
                if x.kind == 'label': S.out.append(x)
                else: S(x)
    def bgs(n):
        if tq2:
            for _ in range(2):
                if tq2: S(tq2.pop(0))
        elif n % opt.get('dp', 3) == 0: pop()
        if n == opt.get('nf', 48) and not fdone:
            fdone.append(1)
            S(Ins('s_barrier', needs=st2))
            for x in setflag(7, vPFS): S(x)
    fdone = []
    wo_gemm(S, XT, True, bgs)
    for x in flat(stamp('wo', True)): S(x)
    while wl[-1].cnt is None: pop()
    for _ in range(4): pop()
    S(Ins('s_barrier', needs=wl))
    for x in flat(stamp('poll', True)): S(x)
    wo_gemm(S, XT + 16, False, bgs, ph2)
    for x in flat(stamp('x1', True)): S(x)
    scale_s(S, XT)
    fmath(S, XT, ACCA, pa, XR2, [None, None], 0, lambda n: pop())
    assert not mq
    scale_s(S, XT + 16)
    fmath(S, XT + 16, ACCB, pb, SP, x2, 128)
    S('s_branch dbl_e'); slow.append(S.text())
    if stamps:
      P('s_waitcnt vmcnt(0)')
      stamp('end')
      P('s_waitcnt lgkmcnt(0)')
      P(f's_lshl_b32 s{T2}, s2, 7')
      P(f's_add_u32 s{T2}, s{T2}, 0x{STAMP_OFF:x}')
      if stamps == 'all':
        n = len(ALL)
        P('v_writelane_b32 v%d, s22, %d' % (77 + n // 64, n % 64))
        P(f's_lshl_b32 s{T2}, s2, 9')
        P(f's_add_u32 s{T2}, s{T2}, 0x{STAMP_OFF + (2 << 18):x}')
        P(f's_cmp_eq_u32 s{Wv}, 0')
        P(f's_cselect_b32 s{T2}, s{T2}, 0x{OOB:x}')
        P(f'v_lshlrev_b32 v80, 2, v{vL}')
        P(f'buffer_store_dword v77, v80, {sr(SW)}, s{T2} offen')
        P(f'buffer_store_dword v78, v80, {sr(SW)}, s{T2} offen offset:256')
      else:
        P('s_mov_b32 s%d, s22' % (sTS + len(stamps)))
        P('v_mov_b32 v81, 0')
        for n in range(10):
            P('v_mov_b32 v80, s%d' % (sTS + (n if opt.get('est') else min(n, len(stamps)))))
            P(f'buffer_store_dwordx2 v[80:81], v{vFL}, {sr(SW)}, s{T2} offen offset:{8*n}')
    P.label('K1_end')
    P('s_endpgm')
    print('K1: instrs', len(P.out), 'nops', P.nnop, file=sys.stderr)
    return P.text() + ''.join(reversed(slow))
```

```python
import sys, struct
sys.path.insert(0, 'gen')
from prog import *
from asmlib import STAMP_OFF

HOFF = 0x0000000
POFF = 0
BLK = 110592 + 128
KOFF = 0x2400000 + BLK
OOFF = 0x2C00000
ROFF = 0x2F00000
FOFF = 0x2F10000
WSB = 256 << 20
OOB = 0x10000000
NEG = 0xF149F2CA
SCALE = 0.2357022603955158 * 1.4426950408889634
def f2u(x): return struct.unpack('<I', struct.pack('<f', x))[0]

SLOT = 16384
XB = 5 * SLOT
HLONE = 9 * SLOT
RT4 = 155648
RTB = RT4 + 2048
NCODE = 84

def vr(b, n=4): return 'v[%d:%d]' % (b, b + n - 1)
def ar(b, n=4): return 'a[%d:%d]' % (b, b + n - 1)
def sr(b, n=4): return 's[%d:%d]' % (b, b + n - 1)
def II(text): return [Ins(l) for l in text.strip().split('\n') if l.strip()]

class Frag:
    def __init__(s, base, imm0, imm1, acc, b, first):
        s.base, s.imm, s.acc, s.b, s.first = base, (imm0, imm1), acc, b, first
class Slot:
    def __init__(s, groups, dma):
        s.groups, s.dma, s.loads = groups, dma, None

def gen_k1(JX=4, stamps=False, opt={}):
    opt = dict(dict(so=5, cls=[0, 0, 8, 8, 26, 26, 30, 30, 38, 38], qc=44, svst=2.5, spr=1, nv1=6), **opt)
    assert JX == 4
    P = Prog()
    SX, SQ, SG, SU, SD, SW, SB, SL = 24, 28, 32, 36, 40, 44, 48, 52
    I, J, Wv, RG, FH, E, Pp, T0, T1, T2, T3, OFF, ST, SPN = range(56, 70)
    W4096, W3072, BP, BL1, BD, SIG = range(70, 76)
    BL2 = 76
    HS, HLN, HL, PS, PLN = range(79, 84)
    C, N0, N1 = 84, 85, 86
    QM, QC, BQ, ONE2, LO, HI, R2, XRO = 87, 91, 92, 93, 94, 95, 96, 97
    KO, KB = 87, 92
    NN = 101
    SH = 75 + 11
    OB, OR, MYF, PF, PFD, DB = 4, 5, 6, 7, 10, 11
    PFP, PFW, J0, DUM = 20, 21, 90, 18
    OUTP = 0
    ROT = 3
    sTS = 12
    vL, vL16 = 1, 2
    vDQ = [3, 4, 5, 6]; vDL2 = 7
    vDP = [8, 9]; vDL1 = 10; vTP = [11, 12]; vTL1 = 13
    vTQ = [14, 15]; vDD = [16, 17, 18, 19]; vTD = [20, 21]; vTL2 = 22
    vQS = [23]; vTB = 24; vRS = 25
    vPFP, vPFS, vHW, vFL, vDG, vOR = 26, 27, 28, 29, 30, 31
    vKM, vKR, vVM, vVR = 3, 4, 5, 6
    QW = 8
    vMX, vMN, vTA, vONES = 14, 15, 23, 25
    XT, QF, FR, ACCA, ACCB, SP = 32, 64, 80, 112, 176, 240
    ALL = ['mf0'] + ['slot%d' % n for n in range(1, 51)] + ['g1end', 'attk', 'att1', 'att2', 'att3', 'attend'] + ['slot%d' % n for n in range(52, 72)] + ['g2end', 'wo', 'poll', 'end']
    def stamp(name, ret=False):
        if stamps == 'all':
            if name not in ALL: return []
            n = ALL.index(name)
            x = [Ins('v_writelane_b32 v%d, s22, %d' % (77 + n // 64, n % 64)), Ins('s_memtime s[22:23]')]
            if ret: return [x]
            for y in x: P(y)
            return []
        if stamps and name in stamps:
            n = stamps.index(name)
            x = [Ins('s_mov_b32 s%d, s22' % (sTS + n)), Ins('s_memrealtime s[22:23]')]
            if ret: return [x]
            for y in x: P(y)
        return []
    def breg(pos, mt):
        i = pos * 4 + mt
        return ar(4 * i) if i < 64 else vr(XT + 4 * (i - 64))
    def emit_all(lst):
        for x in lst:
            if isinstance(x, list): emit_all(x)
            elif x.kind == 'label': P.out.append(x)
            else: P(x)
    lg = lambda x: x.bit_length() - 1
    ng = 16 // JX

    P('s_cmp_ge_u32 s2, 256')
    P('s_cbranch_scc1 K1_end')
    P('s_load_dwordx16 s[4:19], s[0:1], 0')
    P('s_load_dwordx4 s[20:23], s[0:1], 64')
    if stamps: P('s_memtime s[84:85]' if stamps == 'all' else 's_memrealtime s[84:85]')
    def code_touch():
        P('s_getpc_b64 %s' % sr(SL, 2))
        P.label('K1_pc')
        P(f'''s_mov_b32 s{SL+2}, code_end-K1_pc
        s_mov_b32 s{SL+3}, 0x00020000
        s_lshr_b32 s{SPN}, s2, 3
        s_and_b32 s{SPN}, s{SPN}, 7
        s_mul_i32 s{SPN}, s{SPN}, {NCODE*128}
        v_lshlrev_b32 v80, 7, v0
        v_mov_b32 v89, 0x{OOB:x}
        v_cmp_gt_u32 vcc, {NCODE}, v0
        v_cndmask_b32 v80, v89, v80, vcc
        buffer_load_dword v79, v80, {sr(SL)}, s{SPN} offen''')
    if opt.get('ct0'):
        P('s_getpc_b64 %s' % sr(SL, 2))
        P(f'''s_mov_b32 s{SL+2}, {opt['ct0']*128}
        s_mov_b32 s{SL+3}, 0x00020000
        v_lshlrev_b32 v80, 7, v0
        buffer_load_dword v79, v80, {sr(SL)}, 0 offen''')
    if not opt.get('ctlate', 0): code_touch()
    P(f'''s_lshr_b32 s{NN}, s2, 3
    v_mov_b32 v89, 0x{OOB:x}
    v_and_b32 v{vL}, 63, v0
    v_lshrrev_b32 v80, 6, v0
    v_readfirstlane_b32 s{Wv}, v80
    s_and_b32 s{T0}, s2, 7
    s_and_b32 s{J}, s{T0}, {ng-1}
    s_lshl_b32 s{J}, s{J}, {lg(JX)}
    s_and_b32 s{T2}, s{NN}, {JX-1}
    s_or_b32 s{J}, s{J}, s{T2}
    s_lshr_b32 s{I}, s{T0}, {lg(ng)}
    s_lshl_b32 s{I}, s{I}, {lg(32//JX)}
    s_lshr_b32 s{T2}, s{NN}, {lg(JX)}
    s_or_b32 s{I}, s{I}, s{T2}
    s_and_b32 s{RG}, s{Wv}, 1
    s_lshr_b32 s{FH}, s{Wv}, 1
    s_and_b32 s{E}, s{J}, 1
    s_lshr_b32 s{Pp}, s{J}, 1
    s_and_b32 s{ROT}, s{J}, {min(JX-1, 3)}
    v_lshrrev_b32 v82, 3, v{vL}
    v_and_b32 v83, 7, v{vL}
    v_mul_u32_u24 v100, 1152, v82
    v_lshl_add_u32 v100, v83, 4, v100
    s_lshl_b32 s{T0}, s{I}, 3
    s_lshl_b32 s{T1}, s{RG}, 2
    s_add_u32 s{T0}, s{T0}, s{T1}
    s_add_u32 s{T1}, s{T0}, s{FH}
    s_mul_i32 s{T1}, s{T1}, {16*1152}''')
    if JX == 2: P(f's_lshl_b32 s{ROT}, s{ROT}, 1')
    def xro(blk):
        P(f'''s_xor_b32 s{T2}, s{ROT}, {blk}
        s_and_b32 s{T3}, s{T2}, 1
        s_lshl_b32 s{T3}, s{T3}, 3
        s_and_b32 s{T2}, s{T2}, 2
        s_lshl_b32 s{T2}, s{T2}, 4
        s_or_b32 s{XRO+blk}, s{T2}, s{T3}''')
    xro(0)
    if opt.get('est'): P('s_memrealtime s[76:77]')
    P('s_waitcnt lgkmcnt(0)')
    if opt.get('est'): P('s_memrealtime s[78:79]')
    def srd(d, b, nbytes, shift=0):
        if shift:
            P('s_sub_u32 s%d, s%d, %d' % (d, b, shift))
            P('s_subb_u32 s%d, s%d, 0' % (d + 1, b + 1))
        else:
            P('s_mov_b32 s%d, s%d' % (d, b))
            P('s_mov_b32 s%d, s%d' % (d + 1, b + 1))
        P('s_mov_b32 s%d, 0x%x' % (d + 2, nbytes + shift))
        P('s_mov_b32 s%d, 0x00020000' % (d + 3))
    srd(SX, 4, 2048 * 1152)
    XR = 112
    xl = []
    def xload(blk):
        ld = [Ins('buffer_load_dwordx4 %s, v100, %s, s%d offen offset:%d' % (vr(XR + 36 * blk + 4 * l), sr(SX), OFF, 128 * l)) for l in range(9)]
        xl.append(ld)
        return [II(f's_mul_i32 s{OFF}, s{XRO+blk}, 1152\ns_add_u32 s{OFF}, s{OFF}, s{T1}')] + [[x] for x in ld]
    emit_all(xload(0))
    if opt.get('ctlate', 0): code_touch()
    if opt.get('est'): P('s_memrealtime s[80:81]')
    if opt.get('est') == 2:
        P('s_waitcnt vmcnt(8)')
        P('s_memrealtime s[82:83]')
        P('s_waitcnt vmcnt(0)')
        P('s_memrealtime s[86:87]')
    for blk in range(1, 4): xro(blk)
    srd(SQ, 6, 576 * 3456, shift=2048)
    RS = 36 // JX
    NT = ' nt' if opt.get('nt') else ''
    P(f'''s_and_b32 s{J0}, s{J}, {16-JX}
    s_and_b32 s{SH}, s2, 7
    s_lshr_b32 s{SH}, s{SH}, {lg(ng)}
    s_lshl_b32 s{SH}, s{SH}, 5
    s_add_u32 s{SH}, s{SH}, s{NN}
    v_lshrrev_b32 v86, {lg(2*JX)}, v0
    v_and_b32 v87, {2*JX-1}, v0
    v_mul_u32_u24 v88, 3456, v86
    v_lshl_add_u32 v87, v87, 7, v88
    v_cmp_gt_u32 vcc, {RS}, v86
    v_cndmask_b32 v87, v89, v87, vcc
    s_mul_i32 s{ST}, s{SH}, {RS*3456}
    s_lshl_b32 s{T2}, s{J0}, 8
    s_add_u32 s{BL2}, s{ST}, s{T2}
    v_mov_b32 v104, v87''')
    qtouch = [Ins(f'buffer_load_dword v79, v104, {sr(SQ)}, s{BL2} offen offset:2048' + NT)]

    srd(SG, 12, 576 * 9216)
    srd(SU, 14, 576 * 9216, shift=2048)
    srd(SD, 16, 4608 * 1152, shift=2048)
    srd(SW, 22, WSB)
    srd(SB, 20, 256)
    P(f's_mov_b64 {sr(OUTP,2)}, s[18:19]')
    P(f'''s_cmp_ge_u32 s{Wv}, 2
    s_cselect_b32 s{SL}, s14, s12
    s_cselect_b32 s{SL+1}, s15, s13
    s_mov_b32 s{SL+2}, 0x{576*9216:x}
    s_mov_b32 s{SL+3}, 0x00020000
    s_mul_i32 s{PFP}, s{SH}, {RS*9216}
    s_mul_i32 s{T2}, s{RG}, {1152 if JX == 4 else 9*9216}
    s_add_u32 s{PFP}, s{PFP}, s{T2}
    s_mul_i32 s{T2}, s{J0}, 576
    s_add_u32 s{PFP}, s{PFP}, s{T2}''')
    if stamps: P('s_mov_b64 s[22:23], s[84:85]')
    P(f'''s_lshl_b32 s{W4096}, s{Wv}, 12
    s_lshl_b32 s{BQ}, s{J}, 8
    s_mul_i32 s{T2}, s{Wv}, {16*3456}
    s_add_u32 s{BQ}, s{BQ}, s{T2}
    s_cmp_ge_u32 s{J}, 14
    s_cselect_b32 s{BQ}, 0x{OOB:x}, s{BQ}
    s_mov_b32 s{ONE2}, 0x3f803f80
    s_mov_b32 s{LO}, 0x00003f80
    s_mov_b32 s{HI}, 0x3f800000
    v_lshrrev_b32 v84, 4, v{vL}
    v_and_b32 v85, 15, v{vL}
    v_cmp_eq_u32 vcc, 0, v0
    v_cndmask_b32 v{vFL}, v89, 0, vcc
    v_lshlrev_b32 v86, 1, v82
    v_and_b32 v86, 4, v86
    v_xor_b32 v86, v83, v86
    v_mul_u32_u24 v87, 9216, v82
    v_lshl_add_u32 v{vDP[0]}, v86, 4, v87
    v_mul_u32_u24 v88, 3456, v82
    v_lshl_add_u32 v90, v86, 4, v88
    v_add_u32 v{vDQ[0]}, 2048, v90
    v_add_u32 v{vDQ[2]}, 128, v90
    v_xor_b32 v86, 2, v86
    v_lshl_add_u32 v{vDP[1]}, v86, 4, v87
    v_add_u32 v{vDP[1]}, {8*9216-1024}, v{vDP[1]}
    v_lshl_add_u32 v90, v86, 4, v88
    v_add_u32 v{vDQ[1]}, {8*3456-1024+2048}, v90
    v_add_u32 v{vDQ[3]}, {8*3456-1024+128}, v90
    s_lshl_b32 s{SIG}, s{E}, 1
    s_sub_u32 s{SIG}, 1, s{SIG}
    s_mul_i32 s{BP}, s{Pp}, 1152
    s_lshl_b32 s{T3}, s{E}, 10
    s_add_u32 s{BP}, s{BP}, s{T3}
    s_mul_i32 s{T3}, s{Wv}, {16*9216}
    s_add_u32 s{BP}, s{BP}, s{T3}
    v_and_b32 v87, 3, v{vL}
    v_lshrrev_b32 v86, 2, v85
    v_and_b32 v88, 1, v84
    v_lshrrev_b32 v92, 1, v84
    v_lshlrev_b32 v90, 12, v92
    v_lshl_add_u32 v90, v88, 10, v90
    v_lshl_add_u32 v90, v86, 7, v90
    v_lshrrev_b32 v91, 1, v86
    v_xor_b32 v91, s{FH}, v91
    v_lshl_add_u32 v90, v91, 6, v90
    v_lshl_add_u32 v90, v88, 5, v90
    v_lshl_add_u32 v{vTQ[0]}, v87, 3, v90
    v_xor_b32 v{vTQ[1]}, 32, v{vTQ[0]}
    s_lshl_b32 s{T2}, s{E}, 6
    v_xor_b32 v{vTP[0]}, s{T2}, v{vTQ[0]}
    v_xor_b32 v{vTP[1]}, s{T2}, v{vTQ[1]}
    s_mul_i32 s{ST}, s{RG}, {2*18432}
    s_add_u32 s{ST}, s{ST}, {XB}
    v_xor_b32 v90, v85, v84
    v_lshlrev_b32 v90, 4, v90
    v_lshl_add_u32 v90, v84, 8, v90
    v_add_u32 v65, s{ST}, v90
    v_xor_b32 v66, 64, v65
    s_mul_i32 s{T2}, s{FH}, 18432
    s_add_u32 s{ST}, s{ST}, s{T2}
    s_and_b32 s{T2}, s{XRO}, 8
    s_lshl_b32 s{T2}, s{T2}, 4
    s_add_u32 s{ST}, s{ST}, s{T2}
    v_xor_b32 v90, v82, v83
    v_lshlrev_b32 v90, 4, v90
    v_lshl_add_u32 v90, v83, 8, v90
    v_add_u32 v64, s{ST}, v90
    v_xor_b32 v76, 128, v64
    s_lshl_b32 s{T2}, s{RG}, 6
    s_lshl_b32 s{T3}, s{FH}, 4
    s_add_u32 s{T2}, s{T2}, s{T3}
    v_add_u32 v67, s{T2}, v82''')
    def G(text): return [II(text)]
    P(f'''s_lshl_b32 s{T2}, s{I}, 4
    s_add_u32 s{T2}, s{T2}, s{J}
    s_lshl_b32 s{MYF}, s{T2}, 7
    s_add_u32 s{MYF}, s{MYF}, 0x{FOFF:x}
    s_lshl_b32 s{DB}, s{I}, 2
    s_lshl_b32 s{T2}, 1, s{J}
    v_mov_b32 v105, s{T2}
    v_mov_b32 v86, 0''')
    freset = P(f'buffer_store_dword v86, v{vFL}, {sr(SW)}, s{MYF} offen sc1')
    fatom = Ins(f'buffer_atomic_or v105, v{vFL}, {sr(SB)}, s{DB} offen offset:8', needs=[freset])
    late0 = II(f'''s_mul_i32 s{W3072}, s{Wv}, 3072
    s_lshl_b32 s{T2}, s{I}, 4
    s_add_u32 s{T2}, s{T2}, s{J}
    v_mov_b32 v207, 0
    s_xor_b32 s{PF}, s{MYF}, 128
    s_mul_i32 s{HS}, s{T2}, {9*8192}
    s_xor_b32 s{T2}, s{T2}, 1
    s_mul_i32 s{HL}, s{T2}, {9*8192}
    s_lshl_b32 s{T2}, s{RG}, 12
    s_add_u32 s{HS}, s{HS}, s{T2}
    s_lshl_b32 s{T3}, s{FH}, 11
    s_add_u32 s{HLN}, s{HS}, s{T3}
    s_add_u32 s{HLN}, s{HLN}, {8*8192}
    s_add_u32 s{HL}, s{HL}, s{T2}
    s_lshl_b32 s{T3}, s{FH}, 13
    s_add_u32 s{HS}, s{HS}, s{T3}
    s_mul_i32 s{BL1}, s{Pp}, 1152
    s_lshl_b32 s{T2}, s{E}, 6
    s_add_u32 s{T2}, s{T2}, 512
    s_add_u32 s{BL1}, s{BL1}, s{T2}
    s_mul_i32 s{T3}, s{RG}, {48*9216}
    s_add_u32 s{BL1}, s{BL1}, s{T3}''')
    late0b = II(f'''s_lshl_b32 s{T2}, s{RG}, 12
    s_lshl_b32 s{T3}, s{I}, 3
    s_add_u32 s{T3}, s{T3}, s{Pp}
    s_mul_i32 s{PS}, s{T3}, {18*8192}
    s_add_u32 s{PS}, s{PS}, s{T2}
    s_add_u32 s{PS}, s{PS}, 0x{POFF:x}
    s_sub_u32 s{T3}, 9, s{E}
    s_lshl_b32 s{T3}, s{T3}, 13
    s_add_u32 s{PLN}, s{PS}, s{T3}
    s_lshl_b32 s{T3}, s{FH}, 11
    s_xor_b32 s{T3}, s{T3}, s{ROT}
    s_add_u32 s{PLN}, s{PLN}, s{T3}
    s_add_u32 s{PS}, s{PS}, s{ROT}
    s_mul_i32 s{T3}, s{E}, 10
    s_add_u32 s{T3}, s{T3}, s{FH}
    s_sub_u32 s{T3}, 17, s{T3}
    s_lshl_b32 s{T3}, s{T3}, 13
    s_add_u32 s{PS}, s{PS}, s{T3}
    s_lshl_b32 s{T2}, s{E}, 6
    s_add_u32 s{T2}, s{T2}, 512
    s_mul_i32 s{T1}, s{Pp}, {576*1152}
    s_mul_i32 s{T3}, s{E}, {17*32*1152}
    s_add_u32 s{T1}, s{T1}, s{T3}
    s_mul_i32 s{BD}, s{E}, 640
    s_add_u32 s{BD}, s{BD}, s{T1}
    s_mul_i32 s{T3}, s{FH}, s{SIG}
    s_mul_i32 s{T3}, s{T3}, {32*1152}
    s_add_u32 s{BD}, s{BD}, s{T3}
    s_mul_i32 s{T3}, s{RG}, {16*1152}
    s_add_u32 s{BD}, s{BD}, s{T3}
    s_add_u32 s{T1}, s{T1}, s{T2}''')
    for t in range(3):
        late0b += II(f'''s_mul_i32 s{T2}, s{Wv}, 3
        s_add_u32 s{T2}, s{T2}, {t}
        s_lshr_b32 s{T3}, s{T2}, 1
        s_mul_i32 s{T3}, s{T3}, s{SIG}
        s_mul_i32 s{T3}, s{T3}, {32*1152}
        s_add_u32 s{BL2+t}, s{T1}, s{T3}
        s_and_b32 s{T2}, s{T2}, 1
        s_mul_i32 s{T2}, s{T2}, {16*1152}
        s_add_u32 s{BL2+t}, s{BL2+t}, s{T2}
        s_add_u32 s{BL2+t}, s{BL2+t}, {2048-1024*t}''')
    late0 += II(f'''s_mul_i32 s{T2}, s{T0}, {BLK//2}
    s_lshl_b32 s{T3}, s{J}, 13
    s_add_u32 s{T2}, s{T2}, s{T3}
    s_lshl_b32 s{T3}, s{FH}, 11
    s_add_u32 s{T2}, s{T2}, s{T3}
    s_add_u32 s{T2}, s{T2}, 0x{KOFF:x}
    s_and_b32 s{ROT}, s{ROT}, 2
    s_mul_i32 s{T3}, s{ROT}, {BLK//2}
    s_add_u32 s{T2}, s{T2}, s{T3}
    s_sub_u32 s{QM+2}, 1, s{ROT}
    s_mul_i32 s{QM+2}, s{QM+2}, {BLK}
    s_lshl_b32 s{ROT}, s{ROT}, 10
    s_movk_i32 s{QC}, 4096''')
    late0 += G(f's_cmp_ge_u32 s{J}, 14\ns_cselect_b32 s{QM}, 0x{2*OOB:x}, s{T2}')
    late0 += G(f's_cmp_eq_u32 s{J}, 13\ns_cselect_b32 s{QC}, 0x{OOB:x}, s{QC}')
    late0b += II(f'''s_lshl_b32 s{T2}, s{FH}, 1
    s_add_u32 s{T2}, s{T2}, s{T0}
    s_mul_i32 s{OB}, s{T2}, 18432
    s_lshl_b32 s{T2}, s{J}, 10
    s_add_u32 s{OB}, s{OB}, s{T2}
    s_add_u32 s{OB}, s{OB}, 0x{OOFF:x}
    s_mul_i32 s{OR}, s{I}, {8*18432}
    s_lshl_b32 s{T2}, s{J}, 7
    s_add_u32 s{OR}, s{OR}, s{T2}
    s_add_u32 s{OR}, s{OR}, 0x{OOFF+16384:x}''')
    late0b += G(f's_cmp_eq_u32 s{Wv}, 0\ns_cselect_b32 s{OR}, s{OR}, 0x{OOB:x}')
    late0b += II(f'''s_mov_b32 s{C}, 0x{f2u(SCALE):x}''')
    late0b += G(f's_cmp_lt_u32 s{I}, 2\ns_cselect_b32 s{N0}, 0xffff, 0') + G(f's_cmp_lt_u32 s{I}, 1\ns_cselect_b32 s{N1}, 0xffff, 0')
    late0 += II(f'''s_mul_i32 s{PFD}, s{J0}, {288*1152}
    s_mul_i32 s{T2}, s{SH}, {162*128}
    s_add_u32 s{PFD}, s{PFD}, s{T2}
    s_mul_i32 s{T2}, s{Wv}, {41*128}
    s_add_u32 s{PFD}, s{PFD}, s{T2}''')
    late0 += II(f'''v_lshlrev_b32 v{vL16}, 4, v{vL}
    v_lshrrev_b32 v182, 3, v{vL}
    v_and_b32 v183, 7, v{vL}
    v_lshrrev_b32 v184, 4, v{vL}
    v_and_b32 v185, 15, v{vL}
    v_and_b32 v186, 6, v182
    v_xor_b32 v186, v183, v186
    v_mul_u32_u24 v187, 1152, v182
    v_lshl_add_u32 v187, v186, 4, v187''')
    for t in range(4):
        late0 += II('v_add_u32 v%d, %d, v187' % (vDD[t], (t & 1) * (8 * 1152 - 1024) + (t >> 1) * (128 - 2048) + 2048))
    late0 += II(f'''v_lshrrev_b32 v186, 2, v{vL}
    v_and_b32 v187, 3, v{vL}
    v_and_b32 v188, 2, v184
    v_xor_b32 v188, v187, v188
    v_mul_u32_u24 v190, 9216, v186
    v_lshl_add_u32 v{vDL1}, v188, 4, v190
    v_and_b32 v188, 1, v184
    v_lshlrev_b32 v188, 1, v188
    v_xor_b32 v188, v187, v188
    v_mul_u32_u24 v190, 1152, v186
    v_lshl_add_u32 v{vDL2}, v188, 4, v190
    v_lshrrev_b32 v186, 2, v185
    v_and_b32 v188, 1, v184
    v_lshrrev_b32 v192, 1, v184
    v_lshl_add_u32 v190, v184, 3, v186
    v_lshlrev_b32 v190, 6, v190
    v_xor_b32 v191, s{FH}, v188
    v_lshl_add_u32 v190, v191, 5, v190
    v_lshl_add_u32 v{vTL1}, v187, 3, v190
    v_lshl_add_u32 v190, v184, 2, v186
    v_lshlrev_b32 v190, 6, v190
    v_lshl_add_u32 v190, v191, 5, v190
    v_lshl_add_u32 v{vTL2}, v187, 3, v190
    v_lshl_add_u32 v190, v188, 2, v186
    v_lshrrev_b32 v191, 1, v190
    s_lshl_b32 s{T2}, s{FH}, 1
    v_xor_b32 v191, s{T2}, v191
    v_lshlrev_b32 v190, 7, v190
    v_lshl_add_u32 v190, v192, 10, v190
    v_lshl_add_u32 v190, v191, 5, v190
    v_lshl_add_u32 v{vTD[0]}, v187, 3, v190
    v_xor_b32 v{vTD[1]}, 32, v{vTD[0]}
    v_mov_b32 v189, 0x{OOB:x}
    v_cmp_eq_u32 vcc, 0, v184
    v_lshlrev_b32 v190, 2, v184
    v_sub_u32 v{vDG}, v190, v185
    v_cndmask_b32 v{vOR}, v189, v{vL16}, vcc
    s_lshl_b32 s{T2}, s{RG}, 12
    v_add_u32 v{vHW}, s{T2}, v{vL16}''')
    late0 += G(f's_cmp_ge_u32 s{J}, 9\ns_cselect_b64 vcc, -1, 0')
    late0 += II(f'''v_lshlrev_b32 v191, 6, v185
    v_lshl_add_u32 v191, v184, 4, v191
    v_cndmask_b32 v{vQS[0]}, v{vL16}, v191, vcc
    v_lshlrev_b32 v190, 4, v185
    v_add_u32 v190, {RT4}, v190
    v_lshlrev_b32 v191, 4, v184
    v_add_u32 v191, {RTB}, v191
    v_cndmask_b32 v190, v190, v191, vcc
    s_lshl_b32 s{T2}, s{RG}, 10
    v_add_u32 v{vRS}, s{T2}, v190
    v_mov_b32 v204, 0
    v_mov_b32 v205, 0
    v_mov_b32 v206, 0
    s_mul_i32 s{T2}, s{J}, 2304
    s_add_u32 s{T2}, s{T2}, 0x{KOFF-BLK+148*256:x}''')
    late0 += G(f's_cmp_eq_u32 s{I}, 0\ns_cselect_b32 s{T2}, s{T2}, 0x{OOB:x}')
    guard = Ins(f'buffer_store_dwordx4 v[204:207], v{vOR}, {sr(SW)}, s{T2} offen sc1')
    late0 += [guard]
    late0 += II(f'''v_mov_b32 v200, 0x3f803f80
    v_mov_b32 v201, 0x3f803f80
    v_mov_b32 v202, 0x3f803f80
    v_mov_b32 v203, 0x3f803f80
    s_lshl_b32 s{T2}, s{I}, 2
    s_add_u32 s{T2}, s{T2}, s{Wv}
    s_mul_i32 s{T2}, s{T2}, {BLK}
    s_add_u32 s{T2}, s{T2}, 0x{KOFF+110592:x}
    v_cmp_gt_u32 vcc, 8, v{vL}
    s_nop 0
    s_nop 0
    v_cndmask_b32 v199, v189, v{vL16}, vcc''')
    late0 += G(f's_cmp_eq_u32 s{J}, 14\ns_cselect_b32 s{T2}, s{T2}, 0x{OOB:x}')
    ones_st = Ins(f'buffer_store_dwordx4 v[200:203], v199, {sr(SW)}, s{T2} offen sc1')
    late0 += [ones_st]

    slots = []
    def dma4(srds, voffs, sbase, add, sadd=0, bump=None, pre=''):
        def f(rp):
            if bump is not None:
                g = [II((bump + '\n' if bump else '') + f's_add_u32 s{OFF}, s{sbase}, {add}\ns_add_u32 m0, s{W4096}, {rp*SLOT}')]
            elif sadd and not add:
                g = [II(pre + f's_mul_i32 s{OFF}, s{SIG}, {sadd}\ns_add_u32 s{OFF}, s{OFF}, s{sbase}\ns_add_u32 m0, s{W4096}, {rp*SLOT}')]
            elif sadd:
                g = [II(f's_mul_i32 s{OFF}, s{SIG}, {sadd}\ns_add_u32 s{OFF}, s{OFF}, s{sbase}'),
                     II(f's_add_u32 s{OFF}, s{OFF}, {add}\ns_add_u32 m0, s{W4096}, {rp*SLOT}')]
            else:
                g = [II(f's_add_u32 s{OFF}, s{sbase}, {add}\ns_add_u32 m0, s{W4096}, {rp*SLOT}')]
            for t in range(4):
                g.append([Ins('buffer_load_dwordx4 v%d, %s, s%d offen offset:%d lds' % (voffs[t], sr(srds[t]), OFF, 1024 * t))])
            return g
        return f
    def dma_l1(s):
        def f(rp):
            g = []
            for t in range(3):
                pre = II(f's_add_u32 s{OFF}, s{BL1}, {s*96*9216 + t*(16*9216-1024)}')
                if t == 0: pre += II(f's_add_u32 m0, s{W3072}, {rp*SLOT}')
                g.append(pre)
                g.append(II(f'buffer_load_dwordx4 v{vDL1}, {sr(SL)}, s{OFF} offen offset:{1024*t} lds'))
            return g
        return f
    def dma_l2(s):
        def f(rp):
            g = [II(f's_add_u32 m0, s{W3072}, {rp*SLOT}')]
            for t in range(3):
                g.append(II(f's_mul_i32 s{OFF}, s{SIG}, {s*192*1152}\ns_add_u32 s{OFF}, s{OFF}, s{BL2+t}'))
                g.append(II(f'buffer_load_dwordx4 v{vDL2}, {sr(SD)}, s{OFF} offen offset:{1024*t} lds'))
            return g
        return f
    def regroup(gs):
        if not opt.get('rg', 1): return gs
        fl = [f for g in gs for f in g]
        return [fl[n:n + 2] for n in range(0, 6, 2)]
    def accf(base, tile): return lambda mt: base + (tile * 4 + mt) * 4
    def bf(pos): return lambda mt: breg(pos, mt)
    def pairlike(vT, acc, s):
        return [[Frag(vT[ft], ks * 8192 + m * 2048, ks * 8192 + m * 2048 + 512, accf(acc, 2 * m + ft), bf(2 * s + ks), s == 0 and ks == 0) for ks in range(2)] for m in range(2) for ft in range(2)]
    for s in range(9):
        slots.append(Slot(pairlike(vTQ, ACCA, s), dma4([SQ] * 4, vDQ, BQ, s * 64 * 3456)))
    PACC = [ACCB, ACCB, ACCA, ACCB]
    def pstep(q):
        for s in range(9):
            slots.append(Slot(pairlike(vTP, PACC[q], s), dma4([SG, SG, SU, SU], [vDP[0], vDP[1], vDP[0], vDP[1]], BP, s * 64 * 9216, bump=(f's_lshl_b32 s{OFF}, s{SIG}, 7\ns_add_u32 s{BP}, s{BP}, s{OFF}' if s == 0 and q else ''))))
    pstep(0)
    for s in range(6):
        gs = [[Frag(vTL1, m * 6144 + ks * 2048, m * 6144 + ks * 2048 + 256, accf(ACCA, m), bf(3 * s + ks), s == 0 and ks == 0) for ks in range(3)] for m in range(2)]
        slots.append(Slot(regroup(gs), dma_l1(s)))
    pstep(1); pstep(2); pstep(3)
    NSEG1 = len(slots)
    hpos = {}
    for n, k in enumerate([6, 7, 11, 10]): hpos[k] = n
    for n, k in enumerate([0, 1, 2, 3, 4, 5, 16, 17, 14, 15, 12, 13, 9, 8]): hpos[k] = 4 + n
    lorder = [8, 7, 6, 0, 1, 2, 4, 3, 5]
    def dstep(q):
        acc = ACCA
        for n, ln in enumerate(lorder):
            gs = [[Frag(vTD[ft], ks * 8192 + c * 2048, ks * 8192 + c * 2048 + 4096, accf(acc, 2 * c + ft), bf(hpos[2 * ln + ks]), n == 0 and ks == 0) for ks in range(2)] for c in range(2) for ft in range(2)]
            slots.append(Slot(gs, dma4([SD] * 4, vDD, BD, 0, ln * 64 * 1152, pre=(f's_add_u32 s{BD}, s{BD}, 256\n' if q and n == 0 else ''))))
    dstep(0)
    for s in range(3):
        gs = [[Frag(vTL2, ks * 2048, ks * 2048 + 1024, accf(SP, 0), bf(hpos[6 * s + ks]), s == 0 and ks == 0) for ks in range(3 * hg, 3 * hg + 3)] for hg in range(2)]
        slots.append(Slot(regroup(gs), dma_l2(s)))
    n0 = len(slots); dstep(1)
    for sl in slots[n0:]:
        for g in sl.groups:
            for f in g: f.acc = (lambda old: (lambda mt: old(mt) + (ACCB - ACCA)))(f.acc)
    NS = len(slots)
    vWD = [3, 4, 5, 6]; vWD2 = 8; vWT = [9, 10, 11, 12]; vPL = 13
    TL, TP, TX, TM, TV, OL, FB = 87, 88, 89, 90, 91, 92, 93
    for s in range(4): slots.append(Slot([], dma4([SG] * 4, vWD, TL, s * 4 * 36 * 1152)))
    def dma_w2(rp):
        return [II(f's_mul_i32 s{OFF}, s{Wv}, {(144-36)*1152}\ns_add_u32 s{OFF}, s{OFF}, s{TL}\ns_lshr_b32 m0, s{W4096}, 1\ns_add_u32 m0, m0, {rp*SLOT}'),
                II(f'buffer_load_dwordx4 v{vWD2}, {sr(SG)}, s{OFF} offen lds'), II(f's_add_u32 s{OFF}, s{OFF}, {72*1152-1024}'),
                II(f'buffer_load_dwordx4 v{vWD2}, {sr(SG)}, s{OFF} offen offset:1024 lds')]
    slots.append(Slot([], dma_w2))
    NSX = len(slots)
    phys = {n: n for n in range(9)}; load_at = {}; hphys = {}
    nxt = 9
    divert = {18: 0, 33: 1, 42: 2, 50: 3}
    for n in range(2, NSEG1):
        if n in divert: hphys[divert[n]] = phys[n - 2]
        else: phys[nxt] = phys[n - 2]; load_at[n] = nxt; nxt += 1
    att_loads = []
    for f in [phys[NSEG1 - 2], phys[NSEG1 - 1], hphys[0], hphys[1], hphys[2]]:
        phys[nxt] = f; att_loads.append(nxt); nxt += 1
    extra_loads = {}
    for n in range(NSEG1 + 2, NS):
        q = n - (NSEG1 + 2)
        if q == 1: phys[nxt] = hphys[3]; extra_loads[n] = [nxt]; nxt += 1
        if nxt < NSX: phys[nxt] = phys[n - 2]; load_at[n] = nxt; nxt += 1
    assert nxt == NSX
    def dma_groups(n):
        g = slots[n].dma(phys[n])
        slots[n].loads = [x for grp in g for x in grp if x.kind == 'vmem']
        return g

    SV = opt.get('sv', 4.75)
    loud = set(); svc = {id(guard): 1, id(ones_st): 1}
    def T(text, q=56):
        x = Ins(text); loud.add(id(x)); svc[id(x)] = q; return x
    VLS = opt.get('vls', [[0, 8, 4, 1, 7], [2, 6, 3, 5]])
    def pf_gu(VL, t0, msk, q=0):
        nl = len(VL); tab = sum(l << (4 * n) for n, l in enumerate(VL)); a_, b_, c_ = t0, t0 + 1, t0 + 2
        return II(f'''v_mul_u32_u24 v{b_}, {65536//nl+1}, v{vL}
        v_lshrrev_b32 v{b_}, 16, v{b_}
        v_cmp_gt_u32 {msk}, 9, v{b_}
        v_mul_u32_u24 v{a_}, {4*nl}, v{b_}
        v_lshlrev_b32 v{c_}, 2, v{vL}
        v_sub_u32 v{a_}, v{c_}, v{a_}
        v_mov_b32 v{c_}, 0x{tab:x}
        v_bfe_u32 v{a_}, v{c_}, v{a_}, 4
        v_mul_u32_u24 v{b_}, 9216, v{b_}
        v_lshl_add_u32 v{b_}, v{a_}, 7, v{b_}
        v_mov_b32 v{a_}, 0x{OOB:x}
        v_cndmask_b32 v{b_}, v{a_}, v{b_}, {msk}''') + [T(f'buffer_load_dword v0, v{b_}, {sr(SL)}, s{PFP} offen' + NT, q)]
    emit_all(xload(1))
    stamp('setup')
    if opt.get('est'):
        P('s_waitcnt lgkmcnt(0)')
        for n, r in enumerate((76, 78, 80, 82, 86)): P('s_mov_b32 s%d, s%d' % (sTS + 5 + n, r))

    NPRE = opt.get('npre', 5)
    GU2 = 0
    gA, gB = pf_gu(VLS[0], 106, 's[78:79]'), pf_gu(VLS[1], 106, 's[78:79]')
    dm0 = [g for n in range(NPRE) for g in dma_groups(n)]
    if opt.get('so', 0) == 0:
        bg = [('GAP', 30)] + xload(2) + xload(3) + [qtouch, ('GAP', 150)] + dm0 + [gA, gB, [fatom]]
    elif opt.get('so', 0) == 3:
        bg = [('GAP', 30)] + xload(2) + xload(3) + [qtouch, gA, [fatom], ('GAP', opt.get('ga', 330))] + dm0
    elif opt.get('so', 0) == 4:
        bg = [('GAP', 30)] + xload(2) + xload(3) + [qtouch, gA, ('GAP', opt.get('ga', 330))] + dm0 + [gB, [fatom]]
    elif opt.get('so', 0) == 5:
        bg = [('GAP', 30)] + xload(2) + xload(3) + [qtouch, ('GAP', 150)] + dm0 + [gA, [fatom]]
    elif opt.get('so', 0) == 1:
        bg = [('GAP', opt.get('gap0', 30)), qtouch, gA, ('GAP', opt.get('ga', 200))] + xload(2) + xload(3) + dm0 + [gB, [fatom]]
    else:
        bg = [('GAP', opt.get('gap0', 30))] + xload(2) + [qtouch, gA, ('GAP', opt.get('ga', 300))] + xload(3) + dm0 + [gB, [fatom]]
    cnt = [0]; lq = []; lcnt = [0, 10]
    EVERY = opt.get('every', 8)
    def V(t, needs=()):
        r = P(Ins(t, needs))
        cnt[0] += 1
        if bg and cnt[0] >= EVERY:
            cnt[0] = 0
            while bg:
                g = bg.pop(0)
                if isinstance(g, tuple): cnt[0] = -g[1]; break
                emit_all(g)
                if any(x.kind == 'vmem' for x in g): break
        lcnt[0] += 1
        if lq and lcnt[0] >= lcnt[1]:
            lcnt[0] = 0; emit_all([lq.pop(0)])
        return r
    def reduce8(r):
        V('v_add_f32_dpp v%d, v%d, v%d quad_perm:[1,0,3,2] row_mask:0xf bank_mask:0xf' % (r, r, r))
        V('v_add_f32_dpp v%d, v%d, v%d quad_perm:[2,3,0,1] row_mask:0xf bank_mask:0xf' % (r, r, r))
        V('v_add_f32_dpp v%d, v%d, v%d row_half_mirror row_mask:0xf bank_mask:0xf' % (r, r, r))
    def ln_block(blk, defer=False):
        X = XR + 36 * blk
        wa = [64, 76][blk & 1]
        for n in range(36):
            if n < 4: V('v_dot2_f32_bf16 v%d, v%d, s%d, 0' % (68 + n, X + n, ONE2), needs=[xl[blk][0]])
            else: V('v_dot2_f32_bf16 v%d, v%d, s%d, v%d' % (68 + n % 4, X + n, ONE2, 68 + n % 4), needs=[xl[blk][n // 4]])
        stamp('sum%d' % blk)
        V(f's_and_b32 s{T2}, s{XRO+blk}, 8')
        V(f's_add_u32 s{T2}, s{T2}, {32*(blk>>1)}')
        V(f'v_add_u32 v77, s{T2}, v67')
        V('v_lshlrev_b32 v78, 4, v77')
        V('v_add_u32 v78, %d, v78' % RT4)
        V('v_add_f32 v68, v68, v69')
        V('v_add_f32 v70, v70, v71')
        V('v_add_f32 v68, v68, v70')
        V('v_and_b32 v101, 0x70, v77')
        V('v_mul_u32_u24 v101, 12, v101')
        reduce8(68)
        V('v_mul_f32 v68, 0x%x, v68' % f2u(-1.0 / 576))
        wr = []
        LAG = 2
        for n in range(36 + LAG + 1):
            if n < 36:
                t = 80 + 2 * (n % 8)
                V('v_dot2_f32_bf16 v%d, v%d, s%d, v68' % (t, X + n, LO))
                V('v_dot2_f32_bf16 v%d, v%d, s%d, v68' % (t + 1, X + n, HI))
            m = n - LAG
            if 0 <= m < 36:
                t = 80 + 2 * (m % 8)
                V('v_cvt_pk_bf16_f32 v%d, v%d, v%d' % (X + m, t, t + 1))
            m = n - LAG - 1
            if 0 <= m < 36:
                V('v_dot2_f32_bf16 v%d, v%d, v%d, %s' % (72 + m % 4, X + m, X + m, '0' if m < 4 else 'v%d' % (72 + m % 4)))
                if m % 4 == 3:
                    w = Ins('ds_write_b128 v%d, %s offset:%d' % (wa, vr(X + m - 3), (m // 4) * 2048)); wr.append(w)
                    if not defer: P(w)
        dwr = list(wr)
        V('v_lshl_add_u32 v101, v77, 2, v101')
        V('v_add_u32 v101, %d, v101' % RTB)
        V('v_add_f32 v72, v72, v73')
        V('v_add_f32 v74, v74, v75')
        V('v_add_f32 v72, v72, v74')
        V('v_mov_b32 v73, 0x%x' % f2u(1e-5))
        reduce8(72)
        V('v_fmac_f32 v73, 0x%x, v72' % f2u(1.0 / 576))
        V('v_rsq_f32 v96, v73')
        for t in (1, 2, 3): V('v_mov_b32 v%d, v96' % (96 + t))
        wr.append(P('ds_write_b128 v78, v[96:99]'))
        wr.append(P('ds_write_b32 v101, v96'))
        return wr, dwr
    slow = []
    nlab = [0]
    def alt_site(inline, other):
        nlab[0] += 1; n = nlab[0]
        slow.append(f'alt{n}:\n' + ''.join('    %s\n' % t for t in other) + f'    s_branch alt{n}_e\n')
        return [Ins(f's_cbranch_vccz alt{n}')] + inline + [Ins(f'alt{n}_e:')]
    def xn_reads(rho):
        return [Ins('ds_read_b128 %s, v%d offset:%d' % (breg(ks, 2 * rho + t), 65 + (ks & 1), t * 18432 + ks * 1024)) for ks in range(18) for t in range(2)]
    w0, _ = ln_block(0); w1, _ = ln_block(1)
    stamp('ln01')
    P(Ins('s_barrier', needs=w0 + w1))
    r0 = xn_reads(0)
    lq += [r0[n:n + 2] for n in range(0, 36, 2)]; lcnt[1] = 8
    w2, d2 = ln_block(2, defer=True)
    emit_all(lq); lq.clear()
    P(Ins('s_barrier', needs=r0))
    lq += d2; lcnt[1] = 12
    w3, _ = ln_block(3)
    emit_all(lq); lq.clear()
    emit_all([g for g in bg if not isinstance(g, tuple)]); bg.clear()
    stamp('ln23')
    P(Ins('s_barrier', needs=w2 + w3 + slots[0].loads))
    r1 = xn_reads(1)
    stamp('mf0')

    window = {}
    AH = 4; AHM = opt.get('ah', 6)
    def make_reads(fr, sidx, fi):
        w, o = divmod(phys[sidx] * SLOT, 65536)
        out = []
        if window.get(fr.base, 0) != w:
            d = (w - window.get(fr.base, 0)) * 65536
            out.append(Ins('v_add_u32 v%d, 0x%x, v%d' % (fr.base, d & 0xffffffff, fr.base)))
            window[fr.base] = w
        f = FR + 4 * (fi % 8)
        fr.reg = f
        fr.rd = [Ins('ds_read_b64_tr_b16 %s, v%d offset:%d' % (vr(f + 2 * h, 2), fr.base, o + fr.imm[h])) for h in range(2)]
        return [out + [fr.rd[0]], [fr.rd[1]]]
    def segment(s0, s1, fillers, bar_extra, first_loads=(), extra_need=None, hook=None, quiet=(), pre=()):
        frs = []; groups = []
        for s in range(s0, s1):
            for g in slots[s].groups:
                groups.append((s, len(frs), g))
                for f in g: frs.append((s, f))
        nm = sum(4 * len(g) for _, _, g in groups)
        gm = [[] for _ in range(nm)]; ga = [[] for _ in range(nm)]; gz = [[] for _ in range(nm)]
        used = [0] * nm; vmw = [0] * (nm + 16)
        mf = []; issued = 0; slot_start = {}
        ismem = lambda x: x.kind in ('ds', 'vmem')
        def put(k, items, cost=None):
            (gm if len(items) == 1 and ismem(items[0]) else ga)[k].extend(items)
            used[k] += min(2, sum(x.cost for x in items)) if cost is None else cost
        while issued < AH:
            s, f = frs[issued]
            emit_all(make_reads(f, s, issued)); issued += 1
        if callable(pre): pre()
        else: emit_all(list(pre))
        pend = [(-1, list(first_loads), ())]
        barpos = {}; vcand = set(); fv = set()
        for (s, f0, g) in groups:
            a = len(mf)
            slot_start.setdefault(s, a)
            n = 4 * len(g)
            for mt in range(4):
                for f in g: mf.append((s, f, mt, g))
            if a > 0: used[a - 1] += 1
            vcand.update(range(a + 1, a + n, 4))
            items = []
            while issued < min(len(frs), f0 + min(8, len(g) + AHM)) and frs[issued][0] <= s + 1:
                s2, f2 = frs[issued]
                r = make_reads(f2, s2, issued)
                if frs[issued - 1][0] != s2: r[0] = ['BAR', s2] + r[0]
                items += r; issued += 1
            for q, it in enumerate(items):
                k = a + q * n // len(items)
                if it[0] == 'BAR':
                    s2 = it[1]
                    ex = bar_extra.get(s2, ((), ()))
                    b = Ins('s_barrier'); b.needs = ('LAZY', s2, list(ex[0]) + ([x for f in g for x in f.rd] if k == a else []))
                    gz[k - 1].append(b); used[k - 1] += 1 if k == a else 2
                    barpos[s2] = k - 1
                    pend.append((k - 1, list(extra_loads.get(s2, [])) + ([load_at[s2]] if s2 in load_at else []), ex[1]))
                    it = it[2:]
                if len(it) == 2: put(max(k - 1, 0), it[:1]); it = it[1:]
                put(k, it)
        class Chain:
            def __init__(c, items, start): c.q = list(items); c.rel = start; c.last = -1; c.cap = 2
        dl = []; dead = {}
        for (k, lds_, post) in pend:
            dl.append(('ATK', k + 1)); dl += list(post)
            for n in lds_:
                for g in dma_groups(n):
                    for x in g:
                        dl.append(x)
                        if x.kind == 'vmem': dead[id(x)] = (n, barpos.get(n, 10 ** 9 if n < NS else nm + opt.get('wdl', -100))); svc[id(x)] = SV * (2 if sum(len(g_) for g_ in slots[n].groups) == 6 else 1)
        chains = [Chain(dl, 0)] + [Chain(lst, slot_start[s] + off) for (s, off, lst) in fillers if lst]
        leads = {}
        pfree = 0.0
        def head(c, k):
            while c.q and isinstance(c.q[0], tuple):
                it = c.q[0]
                if c.rel > k: return None
                if opt.get('dbg') and it[0] in ('AT', 'BY'):
                    cs = max(x for x in slot_start if slot_start[x] <= k); print('   marker', it, 'reached at slot', cs, '+', k - slot_start[cs], file=sys.stderr)
                if it[0] == 'AT': c.rel = slot_start[it[1]] + it[2]
                elif it[0] == 'ATK': c.rel = it[1]
                elif it[0] == 'BY': assert k <= slot_start[it[1]], ('filler late', it, k, slot_start[it[1]])
                elif it[0] == 'CAP': c.cap = it[1]
                elif it[0] == 'SKIP': c.rel = k + it[1]
                c.q.pop(0)
            if not c.q or c.rel > k: return None
            return c.q[0]
        for k in range(nm):
            if not gm[k] and used[k] < 2:
                cand = []
                for n_, c in enumerate(chains):
                    x = head(c, k)
                    if x is None or isinstance(x, list) or not ismem(x) or c.last >= k: continue
                    if x.kind == 'ds':
                        if used[k] + x.cost > 2: continue
                    elif id(x) not in loud and pfree - k > opt.get('bl', 1.5): continue
                    pr = 1
                    if n_ == 0: pr = 0 if dead.get(id(x), (0, 0))[1] - k < opt.get('crit', 72) else 2
                    cand.append((pr, n_))
                if cand:
                    c = chains[min(cand)[1]]; x = c.q.pop(0); c.last = k
                    put(k, [x], x.cost if x.kind == 'ds' else 1)
                    if x.kind == 'vmem':
                        pfree = max(pfree, k + svc[id(x)]) if id(x) in loud else max(pfree, k) + svc.get(id(x), opt.get('svst', SV) if 'store' in x.op else SV)
                        if id(x) in dead and dead[id(x)][1] < 10 ** 9: leads[dead[id(x)][0]] = dead[id(x)][1] - k
            for c in chains:
                while True:
                    x = head(c, k)
                    if x is None or (not isinstance(x, list) and ismem(x)): break
                    it = x if isinstance(x, list) else [x]
                    cst = min(2, sum(y.cost for y in it))
                    if used[k] + cst > c.cap: break
                    c.q.pop(0); c.last = k; ga[k].extend(it); used[k] += cst
        left = [(x if isinstance(x, list) else [x]) for c in chains for x in c.q if not isinstance(x, tuple)]
        print('DMA leads:', ' '.join('%d:%d' % x for x in sorted(leads.items())), file=sys.stderr)
        assert min(v for n_, v in leads.items() if n_ < NS) > opt.get("minlead", 30)
        for k, (s, f, mt, g) in enumerate(mf):
            if hook: hook(k, s)
            c = f.acc(mt)
            nd = [x for f_ in g for x in f_.rd] + ([extra_need(f, mt)] if extra_need else [])
            P(Ins('v_mfma_f32_16x16x32_bf16 %s, %s, %s, %s' % (vr(c), vr(f.reg), f.b(mt), '0' if f.first else vr(c)), needs=nd))
            for x in gz[k]: x.needs = list(slots[x.needs[1]].loads) + list(x.needs[2])
            emit_all(gm[k] + ga[k] + gz[k])
        return left

    def mul(d, a_, b_): return Ins('v_mul_f32 v%d, v%d, v%d' % (d, a_, b_))
    def cvt(d, a_, b_): return Ins('v_cvt_pk_bf16_f32 v%d, v%d, v%d' % (d, a_, b_))
    kv_stores = []
    flat0 = lambda l: [y for x in l for y in x]
    def qkv_epi():
        rs = [Ins('ds_read_b128 %s, v%d offset:%d' % (vr(SP + 4 * mt), vRS, 256 * mt)) for mt in range(4)]
        L = list(rs) + [('SKIP', 6)]
        for mp in range(2):
            if mp: L += II(f's_add_u32 s{QM}, s{QM}, s{QM+2}')
            for c in range(2):
                if c: L += II(f's_add_u32 s{T2}, s{QM}, s{QC}')
                for ft in range(2):
                    te = ACCA + ((2 * c + ft) * 4 + 2 * mp) * 4; to = te + 4
                    for r in range(8):
                        x = mul(te + r, te + r, SP + 8 * mp + r); x.needs = [rs[2 * mp + r // 4]]; L.append(x)
                    L += [cvt(te, te, te + 1), cvt(te + 1, te + 2, te + 3), cvt(te + 2, to, to + 1), cvt(te + 3, to + 2, to + 3)]
                    st = Ins(f'buffer_store_dwordx4 {vr(te)}, v{vQS[0]}, {sr(SW)}, s{T2 if c else QM} offen offset:{1024*ft} sc1')
                    L.append(st); kv_stores.append(st)
        return L
    def l1_epi():
        L = II(f's_lshl_b32 s{T3}, s{FH}, 3\ns_add_u32 s{T3}, s{T3}, {HLONE}\nv_add_u32 v{SP+11}, s{T3}, v{vHW}')
        ws_ = []
        for mt in range(4):
            g0 = ACCA + mt * 4; u0 = ACCA + (4 + mt) * 4
            L += [mul(g0 + t, g0 + t, u0 + t) for t in range(4)] + [cvt(u0, g0, g0 + 1), cvt(u0 + 1, g0 + 2, g0 + 3)]
            w = Ins(f'ds_write_b64 v{SP+11}, {vr(u0,2)} offset:{1024*mt}'); ws_.append(w)
            if not opt.get('bw'): L.append(w)
        if opt.get('bw'): L += [('SKIP', 2), list(ws_)] if opt['bw'] == 1 else flat0([[('SKIP', 4), w] for w in ws_])
        L2 = II(f's_lshl_b32 s{T3}, s{FH}, 11\ns_add_u32 s{T3}, s{T3}, {HLONE}\nv_add_u32 v{SP+11}, s{T3}, v{vHW}')
        rd = [Ins(f'ds_read_b128 {vr(ACCA+4*m)}, v{SP+11} offset:{1024*m}') for m in range(2)]
        sts = [Ins(f'buffer_store_dwordx4 {vr(ACCA+4*m)}, v{vL16}, {sr(SW)}, s{HLN} offen offset:{1024*m} sc1', needs=[rd[m]]) for m in range(2)]
        return L, sts, ws_, L2 + rd + [('SKIP', 10)] + sts
    hw = {}
    def pair_epi(acc, q):
        L = II(f's_add_u32 s{ST}, s{HS}, {q*2*8192}\ns_lshl_b32 s{T1}, s{FH}, 13\ns_add_u32 s{T1}, s{T1}, {hphys[q]*SLOT}\nv_add_u32 v{SP+11}, s{T1}, v{vHW}')
        sts = []; hw[q] = []
        for mt in range(4):
            g0 = acc + mt * 4; g1 = acc + (4 + mt) * 4; u0 = acc + (8 + mt) * 4; u1 = acc + (12 + mt) * 4
            L += [mul(g0 + t, g0 + t, u0 + t) for t in range(4)]
            L += [mul(g1 + t, g1 + t, u1 + t) for t in range(4)]
            L += [cvt(u0, g0, g0 + 1), cvt(u0 + 1, g0 + 2, g0 + 3), cvt(u0 + 2, g1, g1 + 1), cvt(u0 + 3, g1 + 2, g1 + 3)]
            st = Ins(f'buffer_store_dwordx4 {vr(u0)}, v{vL16}, {sr(SW)}, s{ST} offen offset:{1024*mt} sc1')
            w = Ins(f'ds_write_b128 v{SP+11}, {vr(u0)} offset:{1024*mt}', cost=2)
            L += [st] if opt.get('bw') and q < 3 else [st, w]
            sts.append(st); hw[q].append(w)
        if opt.get('bw') and q < 3: L += [('SKIP', 2), list(hw[q])] if opt['bw'] == 1 else flat0([[('SKIP', opt['bw']), w] for w in hw[q]])
        return L, sts
    def d_epi(acc, q, cs=(0, 1)):
        L = []
        for c in cs:
            L.append(Ins(f's_sub_u32 s{ST}, s{PS}, {(2*q+c)*2*8192}'))
            for mt in range(4):
                t0 = acc + (8 * c + mt) * 4; t1 = acc + (8 * c + 4 + mt) * 4
                if mt == 2: L.append(Ins(f's_xor_b32 s{ST}, s{ST}, 2048'))
                L += [cvt(t0, t0, t0 + 1), cvt(t0 + 1, t0 + 2, t0 + 3), cvt(t0 + 2, t1, t1 + 1), cvt(t0 + 3, t1 + 2, t1 + 3)]
                L.append(Ins(f'buffer_store_dwordx4 {vr(t0)}, v{vL16}, {sr(SW)}, s{ST} offen offset:{1024*(mt&1)} sc1'))
        return L
    def poll_check(name, ld, test):
        g = [Ins(t, needs=[ld] if n == 0 else []) for n, t in enumerate(test)]
        g.append(Ins('s_cbranch_scc0 %s_slow' % name))
        g.append(Ins('%s_ok:' % name))
        S = Prog()
        S.label('%s_slow' % name)
        S('s_mov_b32 s%d, 400000' % SPN)
        S.label('%s_loop' % name)
        S('s_sleep 2')
        S(ld.text)
        S('s_waitcnt vmcnt(0)')
        S('s_sub_u32 s%d, s%d, 1' % (SPN, SPN))
        S('s_cbranch_scc1 %s_ok' % name)
        for t in test: S(t)
        S('s_cbranch_scc0 %s_loop' % name)
        S('s_branch %s_ok' % name)
        slow.append(S.text())
        return g
    def setflag(n, reg):
        return II(f'v_mov_b32 v{reg}, {n}\nbuffer_store_dword v{reg}, v{vFL}, {sr(SW)}, s{MYF} offen sc1')
    def hpoll(n, reg):
        ld = T(f'buffer_load_dword v{reg}, off, {sr(SW)}, s{PF} sc1')
        return ld, poll_check('h%d' % n, ld, [f'v_readfirstlane_b32 s{T2}, v{reg}', f's_cmp_ge_u32 s{T2}, {n}'])

    qe = qkv_epi()
    pe = [pair_epi(PACC[q], q) for q in range(4)]
    le = l1_epi()
    VREG = [ACCA + 4 * n for n in range(16)] + [SP + 4 * n for n in range(4)]
    G0M, G1M = 96, 98
    late = II(f'''s_mov_b32 s{SQ}, s8
    s_mov_b32 s{SQ+1}, s9
    s_mov_b32 s{SQ+2}, 0x{576*1152:x}
    s_mul_i32 s{T1}, s{T0}, {BLK//2}
    s_mul_i32 s{T2}, s{J}, 2304
    s_add_u32 s{T1}, s{T1}, s{T2}
    s_mov_b32 s{G0M}, 0xffff
    s_mov_b32 s{G0M+1}, 0
    s_mov_b32 s{G1M}, 0xffff0000
    s_mov_b32 s{G1M+1}, 0''')
    for a_ in range(5):
        late += II(f's_add_u32 s{KO+a_}, s{T1}, 0x{KOFF + (2*a_-9)*BLK:x}')
        if a_ < 4:
            late.append(II(f's_cmp_ge_u32 s{T0}, {16-4*a_}\ns_cselect_b32 s{KO+a_}, s{KO+a_}, 0x{OOB:x}\ns_cselect_b32 s{KB+a_}, 0, 0xf149'))
    a0, a1, a2, a3 = SP, SP + 1, SP + 2, SP + 3
    vTK, vQR, vTD_, vR0, vR1 = SP + 4, SP + 5, QF + 12, SP + 7, SP + 8
    late += II(f'''v_and_b32 v{a0}, 15, v{vL}
    v_lshrrev_b32 v{a1}, 4, v{vL}
    v_mov_b32 v{a3}, 0x{OOB:x}
    s_mul_i32 s{T2}, s{FH}, 1280
    s_add_u32 s{T3}, s{T2}, {BLK+144*256}
    v_add_u32 v{vKM}, s{T3}, v{vL16}
    v_lshlrev_b32 v{a1}, 4, v{a1}
    v_lshl_add_u32 v{a1}, v{a0}, 6, v{a1}
    s_add_u32 s{T3}, s{T2}, {BLK+73728}
    v_add_u32 v{vVM}, s{T3}, v{a1}
    s_lshl_b32 s{T2}, s{FH}, 7
    s_add_u32 s{T2}, s{T2}, {BLK+73728+1024}
    v_add_u32 v{a1}, s{T2}, v{a1}
    v_cmp_gt_u32 vcc, 2, v{a0}
    s_lshl_b32 s{T2}, s{FH}, 2
    s_add_u32 s{T2}, s{T2}, {BLK+148*256}
    v_lshlrev_b32 v{a2}, 4, v{a0}
    v_cndmask_b32 v{vVR}, v{a3}, v{a1}, vcc
    v_add_u32 v{a2}, s{T2}, v{a2}
    v_cmp_gt_u32 vcc, 32, v{vL}
    v_subrev_u32 v{a1}, {BLK-8}, v{a2}
    v_cndmask_b32 v{vR0}, v{a3}, v{a2}, {sr(G0M,2)}
    v_cndmask_b32 v{vQR}, v{a3}, v{a2}, vcc
    v_cndmask_b32 v{vR1}, v{a3}, v{a1}, {sr(G1M,2)}
    v_cndmask_b32 v{vKR}, v{vR0}, v{a1}, {sr(G1M,2)}
    v_and_b32 v{a0}, 3, v{a0}
    s_mul_i32 s{T2}, s{J}, 2304
    s_sub_u32 s{T2}, {BLK+110592}, s{T2}
    v_mov_b32 v{a2}, s{T2}
    v_cmp_eq_u32 vcc, 2, v{a0}
    v_mul_u32_u24 v{a0}, 3641, v{vL}
    v_lshrrev_b32 v{a0}, 16, v{a0}
    v_cndmask_b32 v{vVR}, v{vVR}, v{a2}, vcc
    v_lshlrev_b32 v{a1}, 7, v{vL}
    v_cmp_gt_u32 vcc, 41, v{vL}
    v_mul_u32_u24 v{a0}, {36864-18*128}, v{a0}
    v_lshl_add_u32 v{a0}, v{vL}, 7, v{a0}
    v_cndmask_b32 v{vTD_}, v{a3}, v{a1}, vcc
    v_cmp_gt_u32 vcc, 54, v{vL}
    s_nop 0
    s_nop 0
    v_cndmask_b32 v{vTK}, v{a3}, v{a0}, vcc''')
    kvld = T(f'buffer_load_dwordx4 {vr(SP+12)}, off, {sr(SB)}, s{DB} sc1', 32)
    kvtest = [f'v_readfirstlane_b32 s{T2}, v{SP+12}', f'v_readfirstlane_b32 s{T3}, v{SP+13}', f'v_readfirstlane_b32 s{T1}, v{SP+14}',
              f's_or_b32 s{T2}, s{T2}, s{N0}', f's_or_b32 s{T3}, s{T3}, s{N1}', f's_and_b32 s{T2}, s{T2}, s{T3}',
              f's_and_b32 s{T2}, s{T2}, s{T1}', f's_cmp_eq_u32 s{T2}, 0xffff']
    kv2pre = II(f'''v_lshlrev_b32 v{SP+9}, 7, v{vL}
    v_cmp_gt_u32 vcc, 48, v{vL}
    s_lshl_b32 s{DB}, s{I}, 11
    s_add_u32 s{DB}, s{DB}, 0x{FOFF-4096:x}
    v_cndmask_b32 v{SP+9}, v{a3}, v{SP+9}, vcc
    s_lshl_b32 s{N1}, s{N1}, 16
    s_or_b32 s{N1}, s{N1}, s{N0}''')
    kv2ld = T(f'buffer_load_dword v{SP+12}, v{SP+9}, {sr(SW)}, s{DB} offen sc1', 32)
    kv2test = [f'v_cmp_le_u32 vcc, 1, v{SP+12}', 's_nop 1', f's_or_b32 s{T2}, vcc_lo, s{N1}', f's_or_b32 s{T3}, vcc_hi, 0xffff0000', f's_and_b32 s{T2}, s{T2}, s{T3}', f's_cmp_eq_u32 s{T2}, -1']
    kvpre = II(f'''s_lshl_b32 s{T3}, s{I}, 2
    s_add_u32 s{T3}, s{T3}, s{Wv}
    s_mul_i32 s{T3}, s{T3}, {BLK}
    s_mul_i32 s{T2}, s{J}, 2304
    s_add_u32 s{T3}, s{T3}, s{T2}
    s_add_u32 s{T3}, s{T3}, 0x{KOFF:x}''')
    kvtouch = [T(f'buffer_load_dword v0, v{vTK}, {sr(SW)}, s{T3} offen')] if opt.get('kvt', 0) else []
    if JX > 2 and opt.get('kvt', 0):
        kvtouch += II(f's_sub_u32 s{T3}, s{T3}, {8*BLK}\ns_and_b32 s{T2}, s{I}, {32//JX-2}') + \
                   [II(f's_or_b32 s{T2}, s{T2}, s{N0}\ns_cselect_b32 s{T3}, 0x{OOB:x}, s{T3}'), T(f'buffer_load_dword v0, v{vTK}, {sr(SW)}, s{T3} offen')]
    kvtouch += [II(f's_getpc_b64 {sr(SB,2)}') + [Ins('K1_pc2:')]] + II(f'''s_mov_b32 s{SB+2}, code_end-K1_pc2
    s_and_b32 s{T2}, s{NN}, 7
    s_lshl_b32 s{T2}, s{T2}, 2
    s_add_u32 s{T2}, s{T2}, s{Wv}
    s_mul_i32 s{T2}, s{T2}, {10*128}
    v_lshlrev_b32 v{SP}, 7, v{vL}
    v_cmp_gt_u32 vcc, 10, v{vL}
    s_nop 0
    s_nop 0
    v_cndmask_b32 v{SP}, v{a3}, v{SP}, vcc''') + [T(f'buffer_load_dword v0, v{SP}, {sr(SB)}, s{T2} offen', 32)]
    qld = []; ql = []
    for a_ in range(2):
        l0 = Ins(f'buffer_load_dwordx4 {vr(QF+4*a_)}, v{vKM}, {sr(SW)}, s{T3} offen sc1')
        l1 = [Ins(f'buffer_load_dword v{QF+8+2*a_+h}, v{vQR}, {sr(SW)}, s{T3} offen offset:{8*h} sc1') for h in range(2)]
        ql += [Ins(f's_add_u32 s{T3}, s{KO+4}, {(a_*BLK - 36864) & 0xffffffff}'), l0, l1[0], l1[1]]; qld += [[l0, l1[0]], [l0, l1[1]]]
    km = []; kr = []; kl = []; vld = []; vl = []
    PACE = ('SKIP', 0)
    for b_ in range(11):
        so = Ins(f's_add_u32 s{T3}, s{KO+min(b_//2,4)}, {(b_-2*min(b_//2,4))*BLK}')
        r_ = Ins(f'buffer_load_dword a{6*b_}, v{vR0 if b_ == 0 else (vR1 if b_ == 10 else vKR)}, {sr(SW)}, s{T3} offen sc1'); kr.append(r_)
        kl += [so, r_, PACE]
        lo_, hi_ = b_ // 2, (b_ - 1) // 2
        nm_ = lambda q_: f's{KB+q_}' if 0 <= q_ < 4 else '0'
        if b_ <= 8: kl += II(f's_pack_ll_b32_b16 s{T2}, {nm_(lo_)}, {nm_(hi_)}\nv_accvgpr_write_b32 a{6*b_+1}, s{T2}')
        else: kl += II(f'v_accvgpr_write_b32 a{6*b_+1}, 0')
        if b_ < 10:
            m_ = Ins(f'buffer_load_dwordx4 {ar(6*b_+2)}, v{vKM}, {sr(SW)}, s{T3} offen sc1'); km.append(m_)
            kl += [m_, PACE]
    kld = [[km[u // 2], kr[(u + 1) // 2]] for u in range(20)]
    for v in range(10):
        a_ = Ins(f'buffer_load_dwordx4 {vr(VREG[2*v])}, v{vVM}, {sr(SW)}, s{T3} offen sc1')
        b_ = Ins(f'buffer_load_dwordx4 {vr(VREG[2*v+1])}, v{vVR}, {sr(SW)}, s{T3} offen sc1')
        vl.append([Ins(f's_add_u32 s{T3}, s{KO+v//2}, {(v%2)*BLK}'), a_, PACE, b_, PACE]); vld += [a_, b_]
    def vfix(v): return [Ins(f'v_or_b32 v{VREG[2*v+1]+r}, v{vONES}, v{VREG[2*v+1]+r}', needs=[vld[2 * v + 1]]) for r in range(4)]
    pfd = [T(f'buffer_load_dword v0, v{vTD_}, {sr(SD)}, s{PFD} offen offset:2048' + NT, opt.get('qd', 120))]
    if opt.get('nod') or opt.get('cls'): pfd = []
    pfw = II(f's_mul_i32 s{T2}, s2, {21*128}') + [II(f's_cmp_eq_u32 s{Wv}, 0\ns_cselect_b32 s{T2}, s{T2}, 0x{OOB:x}'), T(f'buffer_load_dword v0, v{vTD_}, {sr(SQ)}, s{T2} offen', 40)]
    if opt.get('nod'): pfw = []
    h1ld, h1chk = hpoll(2, vPFP)
    e_ = opt.get('ev', [8, 0, 26, 29, 38])
    flat = lambda l: [y for x in l for y in x]
    NV1 = opt.get('nv1', 3)
    cls_chain = []
    if opt.get('cls'):
        va, vs_ = QF + 13 - 9, QF + 13 - 8
        cls_chain = II(f'''v_lshrrev_b32 v{va}, 2, v{vL}
        v_mul_u32_u24 v{va}, 9216, v{va}
        v_bfe_u32 v{vs_}, v{vL}, 1, 1
        v_mul_u32_u24 v{vs_}, 1152, v{vs_}
        v_add_u32 v{va}, v{va}, v{vs_}
        v_and_b32 v{vs_}, 1, v{vL}
        v_lshl_add_u32 v{va}, v{vs_}, 10, v{va}
        v_cmp_gt_u32 {sr(DUM,2)}, 36, v{vL}
        v_mov_b32 v{va+2}, 0x{OOB:x}
        v_lshlrev_b32 v{vs_}, 8, v{vs_}
        v_cndmask_b32 v{va}, v{va+2}, v{va}, {sr(DUM,2)}
        v_sub_u32 v{vs_}, 128, v{vs_}
        s_lshr_b32 s{DUM}, s2, 5
        s_lshl_b32 s{DUM}, s{DUM}, 3
        s_and_b32 s{DUM+1}, s2, 7
        s_or_b32 s{DUM}, s{DUM}, s{DUM+1}
        s_mul_i32 s{PFP}, s{DUM}, {9*9216}
        s_mul_i32 s{DUM+1}, s{Wv}, 2304
        s_add_u32 s{PFP}, s{PFP}, s{DUM+1}
        s_and_b32 s{DUM}, s{NN}, 3''')
        sites_ = opt['cls']; qc = opt.get('qc', 24)
        for n, sl in enumerate(sites_):
            if sl: cls_chain += [('AT', sl - 1, 16)]
            if n < 6 and n % 2 == 0: cls_chain += II(f'v_add_u32 v{va}, v{va}, v{vs_}')
            if not sl: continue
            if n < 6:
                cls_chain += [II(f's_cmp_eq_u32 s{DUM}, {n % 4}\ns_cselect_b32 s{PFW}, s{PFP}, 0x{OOB:x}'), ('AT', sl, 0),
                              T(f'buffer_load_dword v0, v{va}, {sr([SG, SU][n % 2])}, s{PFW} offen offset:{2048 * (n % 2)}', qc)]
            else:
                cls_chain += [II(f's_cmp_eq_u32 s{DUM}, {n % 4}\ns_cselect_b32 s{PFW}, s{PFD}, 0x{OOB:x}'), ('AT', sl, 0),
                              T(f'buffer_load_dword v0, v{vTD_}, {sr(SD)}, s{PFW} offen offset:2048', qc)]
    fill1 = [(sl, 0, stamp('slot%d' % sl, True)) for sl in range(NSEG1)] + [
        (0, 0, r1[8:]),
        (1, 0, cls_chain),
        (0, 2, late0 + late0b + [('BY', 9), ('AT', 9, 4)] + qe + [('BY', 16)] + late + [kvld, ('AT', 18, 4)]
         + pe[0][0] + [('BY', 24), poll_check('kv', kvld, kvtest)] + kv2pre + [('AT', 24, 4)]
         + le[0] + [('BY', 26), ('AT', e_[2], 0), kv2ld] + [('AT', 27, 0)] + le[3] + [('AT', e_[3] - 1, 8), poll_check('kw', kv2ld, kv2test)] + kvpre + [('AT', e_[3], 0)] + pfd + pfw + kvtouch + [('BY', 33), ('AT', 33, 4)]
         + pe[1][0] + ql + [('BY', 42), ('AT', 42, 4)]
         + pe[2][0] + [('AT', 44, 0)] + kl + flat(vl[:NV1]) + [h1ld]),
    ]
    bx1 = {
        3: (r1, []),
        opt.get('kvf', 17): (kv_stores + [guard, ones_st], setflag(1, SP + 10)),
        27: (le[2], []),
        47: (pe[0][1] + le[1] + pe[1][1] + pe[2][1], setflag(2, SP + 10)),
    }
    extra_loads[3] = [5, 6, 7, 8, load_at.pop(2)]
    xmap = {}
    for n, x in enumerate(r1):
        ks = n // 2
        for mt in range(4): xmap[breg(ks, mt)] = r1[2 * ks + (mt & 1)] if mt >= 2 else None
    mark = {}
    def hook(k, s):
        if k == 0:
            P(f's_cmp_ge_u32 s{J}, 9')
            P('s_cbranch_scc1 qkv_v')
            mark['a'] = len(P.out)
        if s == 9 and 'b' not in mark:
            mark['b'] = len(P.out)
            P.label('qkv_e')
    left = segment(0, NSEG1, fill1, bx1, first_loads=list(range(NPRE, 5)), hook=hook, pre=r1[:8], extra_need=lambda f, mt: xmap[f.b(mt)])
    qrd = set(id(x) for n in range(9) for g in slots[n].groups for f in g for x in f.rd)
    K = Prog(); K.label('qkv_k'); nb_ = 0
    for x in P.out[mark['a']:mark['b']]:
        if x.kind == 'mfma' or id(x) in qrd or x.op == 's_nop': continue
        t = x.text
        if x.kind == 'label': K.label(t[:-1].replace('_e', 'k_e')); continue
        if x.op == 's_cbranch_scc1': t += 'k'
        if x.op == 's_waitcnt':
            if 'vmcnt' not in t: continue
            t = t.split(' lgkmcnt')[0]
        if x.op == 's_barrier':
            nb_ += 1
            if nb_ <= 3: K('s_waitcnt lgkmcnt(0)')
        K(t)
    K('s_waitcnt lgkmcnt(0)'); K('s_nop 4'); K('s_branch qkv_e')
    slow.append(K.text())
    alt = ['qkv_v:', f'    s_cmp_ge_u32 s{J}, 14', '    s_cbranch_scc1 qkv_k'] if opt.get('skip', 1) else ['qkv_v:']
    for x in P.out[mark['a']:mark['b']]:
        t = x.text
        if x.kind == 'label': alt.append(t.replace('_e:', 'v_e:')); continue
        if x.op == 's_cbranch_scc1': t += 'v'
        if x.kind == 'mfma':
            o = [y.strip() for y in t[len(x.op):].split(',')]
            t = '%s %s, %s, %s, %s' % (x.op, o[0], o[2], o[1], o[3])
        alt.append('    ' + t)
    alt.append('    s_branch qkv_e')
    slow.append('\n'.join(alt) + '\n')
    print('left after seg1:', len(left), file=sys.stderr)
    stamp('g1end')

    SREG = [80] + [ACCB + (tl * 4 + mt) * 4 for mt in range(4) for tl in (0, 1, 3, 2)]
    PR = [84, 88]; OM, OR_ = 96, 100; MF, ML = 104, 108
    noskip = lambda l: [x for x in l if not isinstance(x, tuple)]
    def qbuild(t):
        q = QF + 2 * t
        P(Ins(f'v_mov_b32 v{QW+2}, v{q}', needs=qld[t]))
        P(f'v_mov_b32 v{QW+3}, v{q+1}')
        P(f'v_cndmask_b32 v{QW}, 0, v{QF+8+t}, {sr(G0M,2)}')
        P(f'v_cndmask_b32 v{QW+4}, 0, v{QF+8+t}, {sr(G1M,2)}')
    P('v_mov_b32 v%d, 0x%x' % (vTA, NEG))
    P(f'v_mov_b32 v{QW+1}, 0x3f80')
    P(f'v_mov_b32 v{QW+5}, 0x3f800000')
    qbuild(0)
    pq = list(pe[3][0])
    for r in range(4):
        P('v_cmp_lt_i32 vcc, %d, v%d' % (-r, vDG))
        P(pq.pop(0)); P(pq.pop(0))
        P('v_cndmask_b32 v%d, v%d, 0, vcc' % (MF + r, vTA))
        P('v_cndmask_b32 v%d, 0, v%d, vcc' % (ML + r, vTA))
    P(f's_cmp_eq_u32 s{FH}, 0')
    P('s_cselect_b64 vcc, -1, 0')
    P(f's_xor_b32 s{N0}, s{C}, 0x80000000')
    hld = {}
    def hload(k):
        if isinstance(k, tuple):
            ka, kb = k
            pre = II(f's_mul_i32 s{T2}, s{FH}, {(ka-kb)*8192}\ns_add_u32 s{T2}, s{T2}, s{HL}\ns_add_u32 s{T2}, s{T2}, {(17-ka)*8192}') if ka != kb else II(f's_add_u32 s{T2}, s{HL}, {(17-ka)*8192}')
            tx = lambda kk, mt: f'buffer_load_dwordx4 {breg(hpos[kk], mt)}, v{vL16}, {sr(SW)}, s{T2} offen offset:{1024*mt} sc1'
            ld = [Ins(tx(ka, mt)) for mt in range(4)]
            hld[ka] = [ld[3]] * 4; hld[kb] = [ld[3]] * 4
            if ka == kb: return [pre + ld[:1], ld[1:2], ld[2:3], ld[3:]]
            return [(pre if h == 0 else []) + alt_site(ld[2*h:2*h+2], [tx(kb, 2*h), tx(kb, 2*h+1)]) for h in range(2)]
        base = HLONE if k == 8 else hphys[k // 2] * SLOT + (k & 1) * 8192
        hld[k] = [Ins(f'ds_read_b128 {breg(hpos[k], mt)}, v{vONES} offset:{1024*mt}') for mt in range(4)]
        return [II(f'v_add_u32 v{vONES}, {base}, v{vHW}') + hld[k][:2], hld[k][2:]]
    def qk(t, sg):
        u = t + sg
        c = vr(MF) if sg == 0 else (vr(ML) if sg == 16 else '0')
        return Ins('v_mfma_f32_16x16x32_bf16 %s, %s, %s, %s' % (vr(SREG[sg]), ar(3 * u + (u & 1)), vr(QW + 2 * (u & 1)), c), needs=kld[u])
    def mx(sg, dst):
        s = SREG[sg]
        if sg == 0: return II('v_max3_f32 v%d, v%d, v%d, v%d\nv_max_f32 v%d, v%d, v%d' % (dst, s, s + 1, s + 2, dst, dst, s + 3))
        return II('v_max3_f32 v%d, v%d, v%d, v%d\nv_max3_f32 v%d, v%d, v%d, v%d' % (dst, dst, s, s + 1, dst, dst, s + 2, s + 3))
    lk = [x for x in left if any(y in km or y in kr for y in x)]
    if lk:
        n = left.index(lk[-1]) + 1; emit_all(left[:n]); left = left[n:]
    P(qk(0, 0))
    nq = 1; avail = 1; nmx = 0
    while pq:
        x = pq.pop(0); P(x)
        if x.kind == 'ds': avail += 4
        elif nq < avail and len(pq) % 2 == 0: P(qk(0, nq)); nq += 1
    def bunch(l):
        out = []; cur = []
        for x in l:
            cur += x
            if any(y.kind == 'vmem' for y in x): out.append(cur); cur = []
        assert not cur
        return out
    isdma = lambda x: any(' lds' in y.text or f's{OFF},' in y.text.split()[1] or 'm0' in y.text or f's{BD},' in y.text.split()[1] for y in x)
    ldma = bunch([x for x in left if isdma(x)])
    lv = bunch([x for x in left if not isdma(x)] + [[x] for v in range(NV1, 10) for x in noskip(vl[v])])
    while nq < 17:
        P(qk(0, nq)); nq += 1
        emit_all(mx(nmx, vMN)); nmx += 1
    while nmx < 17:
        if len(lv) > 12 and nmx % 2: emit_all(lv.pop(0))
        emit_all(mx(nmx, vMN)); nmx += 1
    while len(lv) > 12: emit_all(lv.pop(0))
    qbuild(1)
    stamp('attk')
    ow = []
    def o_epi(t):
        P('v_rcp_f32 v%d, v%d' % (vTA, OR_ + 2))
        for r in range(4): P(mul(OM + r, OM + r, vTA))
        for r in range(2): P(mul(OR_ + r, OR_ + r, vTA))
        P(cvt(QF + 2 * t, OM, OM + 1)); P(cvt(QF + 2 * t + 1, OM + 2, OM + 3)); P(cvt(QF + 8 + t, OR_, OR_ + 1))
    ofl = II(f'''s_lshl_b32 s{T2}, s{FH}, 3
    s_add_u32 s{T2}, s{T2}, {HLONE}
    v_add_u32 v{vTB}, s{T2}, v{vHW}
    s_lshl_b32 s{T2}, s{RG}, 9
    s_lshl_b32 s{T3}, s{FH}, 2
    s_add_u32 s{T2}, s{T2}, s{T3}
    s_add_u32 s{T2}, s{T2}, {RT4}
    v_lshlrev_b32 v{vTA}, 3, v{vL}
    v_add_u32 v{vMX}, 4096, v{vTA}
    v_cndmask_b32 v{vTA}, v{vMX}, v{vTA}, {sr(G0M,2)}
    v_add_u32 v{vTA}, s{T2}, v{vTA}''')
    for t in range(4):
        ow += [Ins(f'ds_write_b64 v{vTB}, {vr(QF+2*t,2)} offset:{1024*t}'), Ins(f'ds_write_b32 v{vTA}, v{QF+8+t} offset:{128*t}')]
    ofl += ow
    h2ld, h2chk = hpoll(3, vPFP)
    hplan = opt.get('hplan', {0: [0, 1, 2, 3, 4, 5], 1: [(16, 17), (14, 15), (12, 13), (9, 9)], 2: [(17, 16), (15, 14), (13, 12), 8], 3: [(10, 11), (11, 10)]})
    if opt.get('plain', 1): hplan = {0: [0, 1, 2, 3, 4, 5], 1: [(16, 16), (17, 17), (14, 14), (15, 15)], 2: [(12, 12), (13, 13), (9, 9), 8], 3: [(10, 10), (11, 11)]}
    for t in range(4):
        stamp('att%d' % t)
        P('v_mov_b32 v%d, v%d' % (vTA, vMN))
        P('v_permlane16_swap_b32 v%d, v%d' % (vTA, vMN))
        P('v_max_f32 v%d, v%d, v%d' % (vMN, vMN, vTA))
        P('v_mov_b32 v%d, v%d' % (vTA, vMN))
        P('v_permlane32_swap_b32 v%d, v%d' % (vTA, vMN))
        P('v_max_f32 v%d, v%d, v%d' % (vMN, vMN, vTA))
        P(f'v_mul_f32 v{vMX}, s{N0}, v{vMN}')
        if t == 1:
            P(Ins('s_barrier', needs=pe[3][1] + hw[3] + [x for k in range(6) for x in hld[k]]))
            ad = bunch(flat([dma_groups(n) for n in att_loads[:sum(opt.get('na', [0, 4, 6, 10])) // 4]]))
            emit_all(setflag(3, vPFS))
            emit_all(h1chk)
        if t == 3:
            P(Ins('s_barrier', needs=slots[NSEG1].loads + hld[8]))
            emit_all(h2chk)
        bq = flat([hload(k) for k in hplan[t]])
        def mix(a_, b_):
            out = []; a_ = list(a_); b_ = list(b_)
            while a_ or b_:
                if a_: out.append(a_.pop(0))
                if b_: out.append(b_.pop(0))
            return out
        if t == 0: bq = mix(lv + ldma, bq)
        else:
            na = opt.get('na', [0, 4, 6, 10])[t]
            bq = mix(bq, ad[:na]) if t < 3 or opt.get('plain', 1) else bq[:2] + ad[:na] + bq[2:]
            ad = ad[na:]
        ppv = []; pqk = []; pmx = []
        for b in range(9):
            v = (t >> 1) + b
            sgs = [2 * v - t, 2 * v + 1 - t]
            val = [sg for sg in sgs if 0 <= sg <= 16]
            p = PR[b % 2]
            for sg in val:
                for r in (0, 2):
                    s = SREG[sg] + r
                    P(f'v_pk_fma_f32 {vr(s,2)}, {vr(s,2)}, {sr(C,2)}, {vr(vMX,2)} op_sel_hi:[1,0,0]')
            mfs = ppv + [qk(t + 1, g_) for g_ in pqk]
            nb = (len(bq) + (8 - b)) // (9 - b)
            def withmem(x):
                nonlocal nb
                g = []
                if nb: g = bq.pop(0); nb -= 1
                n0 = 0
                while n0 < len(g) and g[n0].kind in ('salu', 'valu') and not g[n0].op.startswith('s_cbranch'): n0 += 1
                emit_all(g[:n0]); P(x); emit_all(g[n0:])
            for sg in val:
                for r in range(4):
                    P('v_exp_f32 v%d, v%d' % (SREG[sg] + r, SREG[sg] + r))
                    if mfs and (not opt.get('spr') or r % 2 == 0 or len(val) == 1): withmem(mfs.pop(0))
            while mfs: withmem(mfs.pop(0))
            nb += 1
            for g_ in pmx: emit_all(mx(g_, vMN))
            for hh, sg in enumerate(sgs):
                if sg in val:
                    s = SREG[sg]
                    P(cvt(p + 2 * hh, s, s + 1)); P(cvt(p + 2 * hh + 1, s + 2, s + 3))
                else:
                    P('v_mov_b32 v%d, 0' % (p + 2 * hh)); P('v_mov_b32 v%d, 0' % (p + 2 * hh + 1))
            for _ in range(nb - 1): emit_all(bq.pop(0))
            pmx = pqk; pqk = val if t < 3 else []
            ppv = [Ins('v_mfma_f32_16x16x32_bf16 %s, %s, %s, %s' % (vr(OM), vr(VREG[2 * v]), vr(p), '0' if b == 0 else vr(OM)), needs=[vld[2 * v]]),
                   Ins('v_mfma_f32_16x16x32_bf16 %s, %s, %s, %s' % (vr(OR_), vr(VREG[2 * v + 1]), vr(p), '0' if b == 0 else vr(OR_)), needs=[vld[2 * v + 1]])]
            if t == 2 and b == 5: P(h2ld)
        assert not bq
        tail = flat([mx(g_, vMN) for g_ in pmx])
        for x in [qk(t + 1, g_) for g_ in pqk] + ppv:
            P(x)
            if tail: P(tail.pop(0))
        emit_all(tail)
        if t < 2: qbuild(t + 2)
        for g_ in pqk: emit_all(mx(g_, vMN))
        if t < 3: o_epi(t)
    stamp('attend')

    own = flat(flat([hload(k) for k in (6, 7)]))
    bmap = {}
    for k in hld:
        for mt in range(4): bmap[breg(hpos[k], mt)] = hld[k][mt]
    def restage(dst, sbase, stride, T3=T3):
        L = II(f's_lshl_b32 s{T3}, s{FH}, 11\ns_add_u32 s{T3}, s{T3}, {HLONE}\nv_add_u32 v{vTB}, s{T3}, v{vHW}')
        rd = [Ins(f'ds_read_b128 {vr(dst+4*m)}, v{vTB} offset:{1024*m}') for m in range(2)]
        L += rd + II(f's_add_u32 s{T3}, s{sbase}, {stride}') + [('SKIP', 8)]
        L += [Ins(f'buffer_store_dwordx4 {vr(dst+4*m)}, v{vL16}, {sr(SW)}, s{[sbase, T3][m]} offen sc1', needs=[rd[m]]) for m in range(2)]
        return L, rd
    oe, ord_ = restage(QF, OB, 18432)
    rr = Ins(f'ds_read_b128 {vr(QF+8)}, v{vTA}')
    oe += II(f'v_add_u32 v{vTA}, {RT4}, v{vL16}') + [rr] + II(f'v_lshrrev_b32 v{vTA}, 3, v{vL}\nv_mul_u32_u24 v{vTA}, {18432-128}, v{vTA}\nv_add_u32 v{vTA}, v{vTA}, v{vL16}') + [('SKIP', 8)]
    oe += [Ins(f'buffer_store_dwordx4 {vr(QF+8)}, v{vTA}, {sr(SW)}, s{OR} offen sc1', needs=[rr])]
    l2e = II(f's_lshl_b32 s{T3}, s{FH}, 3\ns_add_u32 s{T3}, s{T3}, {HLONE}\nv_add_u32 v{vTB}, s{T3}, v{vHW}'); l2w = []
    for mt in range(4):
        t0 = SP + mt * 4
        w = Ins(f'ds_write_b64 v{vTB}, {vr(t0,2)} offset:{1024*mt}'); l2w.append(w)
        l2e += [cvt(t0, t0, t0 + 1), cvt(t0 + 1, t0 + 2, t0 + 3), w]
    l2s, _ = restage(SP, PLN, 1024, T1)
    def task_params(second):
        ln = II(f's_lshl_b32 s{T2}, s{Pp}, 2\ns_lshr_b32 s{T1}, 0x54108732, s{T2}\ns_and_b32 s{T1}, s{T1}, 15\ns_lshr_b32 s{TV}, 0x56557777, s{T2}\ns_and_b32 s{TV}, s{TV}, 15\ns_movk_i32 s{TM}, 0x5555')
        ln += [II(f's_cmp_gt_u32 s{T1}, 4\ns_cselect_b32 s{T2}, 1, 0'), Ins(f's_lshl_b32 s{TM}, s{TM}, s{T2}'), II(f's_cmp_eq_u32 s{T1}, 4\ns_cselect_b32 s{TM}, 0xffff, s{TM}'), Ins(f's_bitset0_b32 s{TM}, s{J}')]
        return ln + II(f'''s_lshl_b32 s{TL}, s{T1}, 7
        s_lshl_b32 s{T2}, s{E}, 2
        s_add_u32 s{T2}, s{T2}, s{Wv}
        s_lshl_b32 s{TP}, s{T2}, 10
        s_lshl_b32 s{T1}, s{T1}, 14
        s_sub_u32 s{TP}, s{TP}, s{T1}
        s_mul_i32 s{T1}, s{I}, {8*18*8192}
        s_add_u32 s{TP}, s{TP}, s{T1}
        s_lshl_b32 s{T1}, s{I}, 3
        s_add_u32 s{T2}, s{T2}, s{T1}
        s_mul_i32 s{OL}, s{T2}, 18432
        s_add_u32 s{TX}, s{OL}, s{TL}
        s_mul_i32 s{T1}, s{Wv}, {36*1152}
        s_add_u32 s{TL}, s{TL}, s{T1}''')
    tsetup = II(f'''s_mov_b32 s{SG}, s8
    s_mov_b32 s{SG+1}, s9
    s_mov_b32 s{SG+2}, 0x{576*1152:x}
    s_mov_b32 s{SU}, s{OUTP}
    s_mov_b32 s{SU+1}, s{OUTP+1}
    s_mov_b32 s{SU+2}, 0x{2048*1152:x}
    s_lshl_b32 s{FB}, s{I}, 11
    s_add_u32 s{FB}, s{FB}, 0x{FOFF:x}
    s_mov_b32 s{LO}, 0x00003f80
    s_mov_b32 s{HI}, 0x3f800000''') + task_params(False)
    for t, row in enumerate((0, 8, 20, 28)): tsetup += II(f'v_add_u32 v{vWD[t]}, {(row*1152 - 1024*t - 2048) & 0xffffffff}, v{vDD[0]}')
    tsetup += II(f'''v_lshrrev_b32 v{vWD2}, 5, v{vL}
    v_mul_u32_u24 v{vWD2}, {32*1152}, v{vWD2}
    v_add_u32 v{vWD2}, v{vWD2}, v{vWD[0]}
    v_add_u32 v{vWD2}, {16*1152}, v{vWD2}
    v_and_b32 v{vWT[0]}, 0xffff, v{vTD[0]}
    s_lshl_b32 s{T2}, s{FH}, 6
    v_xor_b32 v{vWT[0]}, s{T2}, v{vWT[0]}
    v_xor_b32 v{vWT[1]}, 32, v{vWT[0]}
    v_xor_b32 v{vWT[2]}, 64, v{vWT[0]}
    v_xor_b32 v{vWT[3]}, 0x60, v{vWT[0]}
    v_lshlrev_b32 v{vPL}, 3, v{vOR}
    v_and_b32 v{vMX}, 15, v{vL}
    v_mul_u32_u24 v{vDG}, 1152, v{vMX}
    v_bfe_u32 v{vMN}, v{vL}, 4, 1
    v_lshl_add_u32 v{vDG}, v{vMN}, 5, v{vDG}
    v_lshrrev_b32 v{vMN}, 5, v{vL}
    v_lshl_add_u32 v{vDG}, v{vMN}, 4, v{vDG}
    s_lshl_b32 s{T2}, s{E}, 2
    s_add_u32 s{T2}, s{T2}, s{Wv}
    s_lshl_b32 s{T2}, s{T2}, 8
    s_lshr_b32 s{T3}, s{ROT}, 2
    s_xor_b32 s{T2}, s{T2}, s{T3}
    s_add_u32 s{T2}, s{T2}, {RTB}
    v_lshlrev_b32 v{vMX}, 2, v{vMX}
    v_add_u32 v{vMX}, s{T2}, v{vMX}''')
    rrd = Ins(f'ds_read_b32 v{vMX}, v{vMX}')
    tsetup += [rrd, ('SKIP', 8), Ins(f'v_mul_f32 v{vMX}, v{vMX}, v{vMX}', needs=[rrd]), Ins(f'v_mul_f32 v{vMN}, 0x{f2u(-1.4426950408889634):x}, v{vMX}')]
    fl_t = f'buffer_load_dword v{vPFP}, v{vPL}, {sr(SW)}, s{FB} offen sc1'
    o3ld = T(fl_t, 24)
    o3chk = poll_check('o3', o3ld, [f'v_cmp_le_u32 vcc, 4, v{vPFP}', 's_nop 1', 's_cmp_eq_u32 vcc_lo, 0xffff'])
    d5ld = T(fl_t, 8)
    ct3 = [II(f's_getpc_b64 {sr(SB,2)}') + [Ins('K1_pc3:')]] + II(f'''s_mov_b32 s{SB+2}, code_end-K1_pc3
    s_and_b32 s{T2}, s{NN}, 7
    s_lshl_b32 s{T2}, s{T2}, 2
    s_add_u32 s{T2}, s{T2}, s{Wv}
    s_mul_i32 s{T2}, s{T2}, {9*128}
    v_cmp_gt_u32 vcc, 9, v{vL}
    v_mov_b32 v{vTA}, 0x{OOB:x}
    s_nop 0
    v_cndmask_b32 v{vTA}, v{vTA}, v{vPL}, vcc''') + [T(f'buffer_load_dword v0, v{vTA}, {sr(SB)}, s{T2} offen', 24)]
    ct3 += II(f'''v_mul_u32_u24 v{vTA}, 1152, v{vL}
    v_subrev_u32 v{vTB}, {9*1152-128}, v{vTA}
    v_cmp_gt_u32 vcc, 9, v{vL}
    s_and_b32 s{T2}, s{I}, 7
    s_lshl_b32 s{T2}, s{T2}, 1
    v_cndmask_b32 v{vTA}, v{vTB}, v{vTA}, vcc
    s_add_u32 s{T2}, s{T2}, s{E}
    s_mul_i32 s{T2}, s{T2}, {36*1152}
    s_add_u32 s{T2}, s{T2}, s{TL}
    s_mul_i32 s{T3}, s{Wv}, {27*1152}
    s_sub_u32 s{T2}, s{T2}, s{T3}''') + [II(f's_cmp_ge_u32 s{J}, 14\ns_cselect_b32 s{T3}, 18, 9')] + II(f'''v_cmp_gt_u32 vcc, s{T3}, v{vL}
    v_mov_b32 v{vTB}, 0x{OOB:x}
    s_nop 0
    v_cndmask_b32 v{vTA}, v{vTB}, v{vTA}, vcc''') + [T(f'buffer_load_dword v0, v{vTA}, {sr(SG)}, s{T2} offen', 24)]
    if opt.get('nowt', 1): ct3 = ct3[:-17]
    OA = 160
    old = []; ol = II(f'v_lshlrev_b32 v{vTA}, 3, v{vL}')
    for k in range(18):
        if k == 8: ol += [('AT', NSEG1 + 14, 0)]
        if k == 16: ol += [('AT', NSEG1 + 15, 0)]
        if k % 4 == 0: ol += II(f's_add_u32 s{T3}, s{OL}, 0x{OOFF + k*1024:x}')
        if k < 16: x = [Ins(f'buffer_load_dwordx4 {ar(OA+4*k)}, v{vL16}, {sr(SW)}, s{T3} offen offset:{1024*(k%4)} sc1')]
        else: x = [Ins(f'buffer_load_dwordx2 {ar(OA+4*k+2*h,2)}, v{vTA}, {sr(SW)}, s{T3} offen offset:{1024*(k%4)+512*h} sc1') for h in range(2)]
        ol += x; old.append(x[-1])
    XR2 = SP + 8
    xt_ = lambda u: f'buffer_load_dwordx4 {vr(XR2+4*u)}, v{vDG}, {sr(SX)}, s{TX} offen offset:{64*u}'
    xld = [Ins(xt_(u)) for u in range(2)]
    de0 = d_epi(ACCA, 0); st0 = [x for x in de0 if x.kind == 'vmem']; stl = [x for x in l2s if not isinstance(x, tuple) and x.kind == 'vmem']
    ost = [x for x in oe if not isinstance(x, tuple) and x.kind == 'vmem']
    de1a = d_epi(ACCB, 1, (0,)); de1b = d_epi(ACCB, 1, (1,)); st1 = [x for x in de1a + de1b if x.kind == 'vmem']
    for x in st1 + stl: loud.add(id(x)); svc[id(x)] = 3
    fill2 = [(sl, 0, stamp('slot%d' % sl, True)) for sl in range(NSEG1, NS)] + [
        (NSEG1, 0, ofl + [('AT', NSEG1 + 2, 0)] + oe + tsetup + ct3 + [('BY', NSEG1 + 9), ('AT', NSEG1 + 9, 4)] + de0 + [o3ld, ('AT', NSEG1 + 12, 4)] + l2e + [('BY', NSEG1 + 14)]
         + [('AT', NSEG1 + 13, 0), o3chk] + ol),
        (NS - 1, 19, de1a), (NSEG1 + 15, 0, l2s),
        (NSEG1, 1, own)]
    bx2 = {NSEG1 + 2: (ow, []), NSEG1 + 3: (hld[6] + hld[7], [])}
    bx2[NSEG1 + 7] = (ost, setflag(4, vPFS)); bx2[NSEG1 + 15] = (l2w + st0, setflag(5, vPFS)); bx2[NSEG1 + 18] = (stl, setflag(6, vPFS))
    left = segment(NSEG1, NS, fill2, bx2, first_loads=att_loads[sum(opt.get('na', [0, 4, 6, 10])) // 4:], extra_need=lambda f, mt: bmap[f.b(mt)], pre=lambda: o_epi(3))
    print('left after seg2:', len(left), file=sys.stderr)
    stamp('g2end')
    tq = flat(left) + de1b + xld
    def wo_gemm(P, acc, need_o, bg_=None, ph=None):
        ph = ph or [phys[n] for n in range(NS, NSX)]
        rds = {}
        wwin = [0]
        def rd(n):
            k, dt = divmod(n, 4)
            w, o = divmod(ph[k // 4] * SLOT, 65536)
            if w != wwin[0]:
                for d in range(4): P('v_add_u32 v%d, 0x%x, v%d' % (vWT[d], ((w - wwin[0]) * 65536) & 0xffffffff, vWT[d]))
                wwin[0] = w
            f = FR + 4 * (n % 8)
            rds[n] = [P('ds_read_b64_tr_b16 %s, v%d offset:%d' % (vr(f + 2 * h, 2), vWT[dt], o + (k % 4) * 4096 + 2048 * h)) for h in range(2)]
        for n in range(7): rd(n)
        for n in range(72):
            k, dt = divmod(n, 4)
            nd = rds[n] + (rds[n + 1] if n % 2 == 0 else []) + ([old[k]] if need_o else [])
            P(Ins('v_mfma_f32_16x16x32_bf16 %s, %s, %s, %s' % (vr(acc + 4 * dt), vr(FR + 4 * (n % 8)), ar(OA + 4 * k), '0' if k == 0 else vr(acc + 4 * dt)), needs=nd))
            if n + 7 < 72: rd(n + 7)
            if bg_: bg_(n)
        for d in range(4):
            if wwin[0]: P('v_add_u32 v%d, 0x%x, v%d' % (vWT[d], (-wwin[0] * 65536) & 0xffffffff, vWT[d]))
    def ploads(P, dst, extra=0):
        pl = []
        for p in range(8):
            for u in range(2):
                P(f's_add_u32 s{T3}, s{TP}, 0x{POFF + (p*18+17-u)*8192 - extra:x}')
                pl.append(P(f'buffer_load_dwordx4 {vr(dst+8*p+4*u)}, v{vL16}, {sr(SW)}, s{T3} offen sc1'))
        return pl
    def fmath(P, acc, src0, pl, xr, xl_, imm, bg_=None):
        SUM, TT = FR, FR + 16
        for p in range(8):
            for u in range(2):
                for q in range(4):
                    src = src0 + 8 * p + 4 * u + q; d = SUM + 8 * u + 2 * q
                    P(Ins(f'v_dot2_f32_bf16 v{d}, v{src}, s{LO}, ' + ('0' if p == 0 else f'v{d}'), needs=[pl[2 * p + u]]))
                    P(f'v_dot2_f32_bf16 v{d+1}, v{src}, s{HI}, ' + ('0' if p == 0 else f'v{d+1}'))
                if bg_: bg_(2 * p + u)
        for r in range(0, 16, 2): P(f'v_pk_mul_f32 {vr(TT+r,2)}, {vr(SUM+r,2)}, {vr(vMX,2)} op_sel:[0,1] op_sel_hi:[1,1]')
        for r in range(16): P(f'v_exp_f32 v{TT+r}, v{TT+r}')
        for r in range(0, 16, 2): P(f'v_pk_mul_f32 {vr(acc+r,2)}, {vr(acc+r,2)}, {vr(SUM+r,2)}')
        for r in range(0, 16, 2): P(f'v_pk_add_f32 {vr(TT+r,2)}, {vr(TT+r,2)}, 1.0 op_sel_hi:[1,0]')
        for r in range(16): P(f'v_rcp_f32 v{TT+r}, v{TT+r}')
        for r in range(0, 16, 2): P(f'v_pk_mul_f32 {vr(acc+r,2)}, {vr(acc+r,2)}, {vr(TT+r,2)}')
        for u in range(2):
            for r in range(4): P(f'v_permlane16_swap_b32 v{acc+8*u+r}, v{acc+8*u+4+r}')
        for u in range(2):
            for q in range(4):
                d = acc + 8 * u + 2 * q
                P(Ins(f'v_dot2c_f32_bf16 v{d}, s{LO}, v{xr+4*u+q}', needs=[xl_[u]]))
                P(f'v_dot2c_f32_bf16 v{d+1}, s{HI}, v{xr+4*u+q}')
        for u in range(2):
            for q in range(4): P(cvt(xr + 4 * u + q, acc + 8 * u + 2 * q, acc + 8 * u + 2 * q + 1))
            P(f'buffer_store_dwordx4 {vr(xr+4*u)}, v{vDG}, {sr(SU)}, s{TX} offen offset:{64*u+imm} ' + opt.get('ost', 'sc1'))
    def scale_s(P, acc):
        for r in range(0, 16, 2): P(f'v_pk_mul_f32 {vr(acc+r,2)}, {vr(acc+r,2)}, {vr(vMX,2)} op_sel_hi:[1,0]')
    ftest = [f'v_cmp_le_u32 vcc, s{TV}, v{vPFP}', 's_nop 1', f's_and_b32 s{T2}, vcc_lo, s{TM}', f's_cmp_eq_u32 s{T2}, s{TM}']
    P(Ins('s_barrier', needs=[x for n in range(NS, NSX) for x in slots[n].loads]))
    while tq and any(x in ol for x in tq): P(tq.pop(0))
    P(f's_cmp_ge_u32 s{J}, 14')
    P('s_cbranch_scc1 dbl')
    S = P.fork(); tq2 = [Ins(x.text) for x in tq]
    st2 = [x for x in st1 if x.cnt is not None] + [x for x in tq2 if 'store' in x.op]
    f1 = Ins(fl_t)
    def bgt(n):
        for _ in range(2):
            if tq: P(tq.pop(0))
        if n == opt.get('nf', 48):
            P(Ins('s_barrier', needs=st1))
            P(f1)
            emit_all(setflag(7, vPFS))
    wo_gemm(P, XT, True, bgt)
    assert not tq
    stamp('wo')
    scale_s(P, XT)
    P(Ins(ftest[0], needs=[f1]))
    P('s_nop 1')
    pl = [None] * 16
    porder = opt.get('porder', [7, 6, 5, 4, 0, 1, 2, 3])
    for p in porder:
        chk = [f's_andn2_b32 s{T2}, s{TM}, vcc_lo', f's_and_b32 s{T2}, s{T2}, {3 << (2 * p)}']
        for t_ in chk: P(t_)
        P(f's_cbranch_scc1 fp{p}_slow')
        P.label(f'fp{p}_ok')
        Z = Prog(); Z.label(f'fp{p}_slow'); Z(f's_mov_b32 s{SPN}, 400000'); Z.label(f'fp{p}_loop')
        Z(fl_t); Z('s_waitcnt vmcnt(0)'); Z(ftest[0]); Z(f's_sub_u32 s{SPN}, s{SPN}, 1'); Z(f's_cbranch_scc1 fp{p}_ok')
        for t_ in chk: Z(t_)
        Z(f's_cbranch_scc1 fp{p}_loop'); Z(f's_branch fp{p}_ok'); slow.append(Z.text())
        for u in range(2):
            P(f's_add_u32 s{T3}, s{TP}, 0x{POFF + (p*18+17-u)*8192:x}')
            pl[2 * porder.index(p) + u] = P(f'buffer_load_dwordx4 {vr(ACCA+8*porder.index(p)+4*u)}, v{vL16}, {sr(SW)}, s{T3} offen sc1')
    stamp('poll')
    fmath(P, XT, ACCA, pl, XR2, xld, 0)
    stamp('x1')
    P.label('dbl_e')
    stamp('x2')
    S.label('dbl')
    ph2 = [x for x in range(9) if x not in [phys[n] for n in range(NS, NSX)]] + [9]
    wq = [II(f's_add_u32 s{TL}, s{TL}, 128')] + bunch(flat([slots[NS + n].dma(ph2[n]) for n in range(5)]))
    wl = [x for g in wq for x in g if x.kind == 'vmem']
    def pl_(dst, extra): return [II(f's_add_u32 s{T3}, s{TP}, 0x{POFF + (p*18+17-u)*8192 - extra:x}\nbuffer_load_dwordx4 {vr(dst+8*p+4*u)}, v{vL16}, {sr(SW)}, s{T3} offen sc1') for p in range(8) for u in range(2)]
    qa = pl_(ACCA, 0); qb = pl_(ACCB, 16384); pa = [g[1] for g in qa]; pb = [g[1] for g in qb]
    x2 = [Ins(f'buffer_load_dwordx4 {vr(SP+4*u)}, v{vDG}, {sr(SX)}, s{TX} offen offset:{128+64*u}') for u in range(2)]
    mq = wq[:10] + [[d5ld]] + wq[10:] + [[x] for x in x2] + [poll_check('d5', d5ld, ftest) + qa[0]] + qa[1:] + qb
    def pop():
        if mq:
            for x in mq.pop(0):
                if x.kind == 'label': S.out.append(x)
                else: S(x)
    def bgs(n):
        if tq2:
            for _ in range(2):
                if tq2: S(tq2.pop(0))
        elif n % opt.get('dp', 3) == 0: pop()
        if n == opt.get('nf', 48) and not fdone:
            fdone.append(1)
            S(Ins('s_barrier', needs=st2))
            for x in setflag(7, vPFS): S(x)
    fdone = []
    wo_gemm(S, XT, True, bgs)
    for x in flat(stamp('wo', True)): S(x)
    while wl[-1].cnt is None: pop()
    for _ in range(4): pop()
    S(Ins('s_barrier', needs=wl))
    for x in flat(stamp('poll', True)): S(x)
    wo_gemm(S, XT + 16, False, bgs, ph2)
    for x in flat(stamp('x1', True)): S(x)
    scale_s(S, XT)
    fmath(S, XT, ACCA, pa, XR2, [None, None], 0, lambda n: pop())
    assert not mq
    scale_s(S, XT + 16)
    fmath(S, XT + 16, ACCB, pb, SP, x2, 128)
    S('s_branch dbl_e'); slow.append(S.text())
    if stamps:
      P('s_waitcnt vmcnt(0)')
      stamp('end')
      P('s_waitcnt lgkmcnt(0)')
      P(f's_lshl_b32 s{T2}, s2, 7')
      P(f's_add_u32 s{T2}, s{T2}, 0x{STAMP_OFF:x}')
      if stamps == 'all':
        n = len(ALL)
        P('v_writelane_b32 v%d, s22, %d' % (77 + n // 64, n % 64))
        P(f's_lshl_b32 s{T2}, s2, 9')
        P(f's_add_u32 s{T2}, s{T2}, 0x{STAMP_OFF + (2 << 18):x}')
        P(f's_cmp_eq_u32 s{Wv}, 0')
        P(f's_cselect_b32 s{T2}, s{T2}, 0x{OOB:x}')
        P(f'v_lshlrev_b32 v80, 2, v{vL}')
        P(f'buffer_store_dword v77, v80, {sr(SW)}, s{T2} offen')
        P(f'buffer_store_dword v78, v80, {sr(SW)}, s{T2} offen offset:256')
      else:
        P('s_mov_b32 s%d, s22' % (sTS + len(stamps)))
        P('v_mov_b32 v81, 0')
        for n in range(10):
            P('v_mov_b32 v80, s%d' % (sTS + (n if opt.get('est') else min(n, len(stamps)))))
            P(f'buffer_store_dwordx2 v[80:81], v{vFL}, {sr(SW)}, s{T2} offen offset:{8*n}')
    P.label('K1_end')
    P('s_endpgm')
    print('K1: instrs', len(P.out), 'nops', P.nnop, file=sys.stderr)
    return P.text() + ''.join(reversed(slow))
```

```python
import sys, struct
sys.path.insert(0, 'gen')
from prog import *
from asmlib import STAMP_OFF

HOFF = 0x0000000
POFF = 0
BLK = 110592 + 128
KOFF = 0x2400000 + BLK
OOFF = 0x2C00000
ROFF = 0x2F00000
FOFF = 0x2F10000
WSB = 256 << 20
OOB = 0x10000000
NEG = 0xF149F2CA
SCALE = 0.2357022603955158 * 1.4426950408889634
def f2u(x): return struct.unpack('<I', struct.pack('<f', x))[0]

SLOT = 16384
XB = 5 * SLOT
HLONE = 9 * SLOT
RT4 = 155648
RTB = RT4 + 2048
NCODE = 84

def vr(b, n=4): return 'v[%d:%d]' % (b, b + n - 1)
def ar(b, n=4): return 'a[%d:%d]' % (b, b + n - 1)
def sr(b, n=4): return 's[%d:%d]' % (b, b + n - 1)
def II(text): return [Ins(l) for l in text.strip().split('\n') if l.strip()]

class Frag:
    def __init__(s, base, imm0, imm1, acc, b, first):
        s.base, s.imm, s.acc, s.b, s.first = base, (imm0, imm1), acc, b, first
class Slot:
    def __init__(s, groups, dma):
        s.groups, s.dma, s.loads = groups, dma, None

def gen_k1(JX=4, stamps=False, opt={}):
    opt = dict(dict(so=5, cls=[0, 0, 8, 8, 26, 26, 30, 30, 38, 38], qc=44, svst=2.5, spr=1, nv1=6), **opt)
    assert JX == 4
    P = Prog()
    SX, SQ, SG, SU, SD, SW, SB, SL = 24, 28, 32, 36, 40, 44, 48, 52
    I, J, Wv, RG, FH, E, Pp, T0, T1, T2, T3, OFF, ST, SPN = range(56, 70)
    W4096, W3072, BP, BL1, BD, SIG = range(70, 76)
    BL2 = 76
    HS, HLN, HL, PS, PLN = range(79, 84)
    C, N0, N1 = 84, 85, 86
    QM, QC, BQ, ONE2, LO, HI, R2, XRO = 87, 91, 92, 93, 94, 95, 96, 97
    KO, KB = 87, 92
    NN = 101
    SH = 75 + 11
    OB, OR, MYF, PF, PFD, DB = 4, 5, 6, 7, 10, 11
    PFP, PFW, J0, DUM = 20, 21, 90, 18
    OUTP = 0
    ROT = 3
    sTS = 12
    vL, vL16 = 1, 2
    vDQ = [3, 4, 5, 6]; vDL2 = 7
    vDP = [8, 9]; vDL1 = 10; vTP = [11, 12]; vTL1 = 13
    vTQ = [14, 15]; vDD = [16, 17, 18, 19]; vTD = [20, 21]; vTL2 = 22
    vQS = [23]; vTB = 24; vRS = 25
    vPFP, vPFS, vHW, vFL, vDG, vOR = 26, 27, 28, 29, 30, 31
    vKM, vKR, vVM, vVR = 3, 4, 5, 6
    QW = 8
    vMX, vMN, vTA, vONES = 14, 15, 23, 25
    XT, QF, FR, ACCA, ACCB, SP = 32, 64, 80, 112, 176, 240
    ALL = ['mf0'] + ['slot%d' % n for n in range(1, 51)] + ['g1end', 'attk', 'att1', 'att2', 'att3', 'attend'] + ['slot%d' % n for n in range(52, 72)] + ['g2end', 'wo', 'poll', 'end']
    def stamp(name, ret=False):
        if stamps == 'all':
            if name not in ALL: return []
            n = ALL.index(name)
            x = [Ins('v_writelane_b32 v%d, s22, %d' % (77 + n // 64, n % 64)), Ins('s_memtime s[22:23]')]
            if ret: return [x]
            for y in x: P(y)
            return []
        if stamps and name in stamps:
            n = stamps.index(name)
            x = [Ins('s_mov_b32 s%d, s22' % (sTS + n)), Ins('s_memrealtime s[22:23]')]
            if ret: return [x]
            for y in x: P(y)
        return []
    def breg(pos, mt):
        i = pos * 4 + mt
        return ar(4 * i) if i < 64 else vr(XT + 4 * (i - 64))
    def emit_all(lst):
        for x in lst:
            if isinstance(x, list): emit_all(x)
            elif x.kind == 'label': P.out.append(x)
            else: P(x)
    lg = lambda x: x.bit_length() - 1
    ng = 16 // JX

    P('s_cmp_ge_u32 s2, 256')
    P('s_cbranch_scc1 K1_end')
    P('s_load_dwordx16 s[4:19], s[0:1], 0')
    P('s_load_dwordx4 s[20:23], s[0:1], 64')
    if stamps: P('s_memtime s[84:85]' if stamps == 'all' else 's_memrealtime s[84:85]')
    def code_touch():
        P('s_getpc_b64 %s' % sr(SL, 2))
        P.label('K1_pc')
        P(f'''s_mov_b32 s{SL+2}, code_end-K1_pc
        s_mov_b32 s{SL+3}, 0x00020000
        s_lshr_b32 s{SPN}, s2, 3
        s_and_b32 s{SPN}, s{SPN}, 7
        s_mul_i32 s{SPN}, s{SPN}, {NCODE*128}
        v_lshlrev_b32 v80, 7, v0
        v_mov_b32 v89, 0x{OOB:x}
        v_cmp_gt_u32 vcc, {NCODE}, v0
        v_cndmask_b32 v80, v89, v80, vcc
        buffer_load_dword v79, v80, {sr(SL)}, s{SPN} offen''')
    if opt.get('ct0'):
        P('s_getpc_b64 %s' % sr(SL, 2))
        P(f'''s_mov_b32 s{SL+2}, {opt['ct0']*128}
        s_mov_b32 s{SL+3}, 0x00020000
        v_lshlrev_b32 v80, 7, v0
        buffer_load_dword v79, v80, {sr(SL)}, 0 offen''')
    if not opt.get('ctlate', 0): code_touch()
    P(f'''s_lshr_b32 s{NN}, s2, 3
    v_mov_b32 v89, 0x{OOB:x}
    v_and_b32 v{vL}, 63, v0
    v_lshrrev_b32 v80, 6, v0
    v_readfirstlane_b32 s{Wv}, v80
    s_and_b32 s{T0}, s2, 7
    s_and_b32 s{J}, s{T0}, {ng-1}
    s_lshl_b32 s{J}, s{J}, {lg(JX)}
    s_and_b32 s{T2}, s{NN}, {JX-1}
    s_or_b32 s{J}, s{J}, s{T2}
    s_lshr_b32 s{I}, s{T0}, {lg(ng)}
    s_lshl_b32 s{I}, s{I}, {lg(32//JX)}
    s_lshr_b32 s{T2}, s{NN}, {lg(JX)}
    s_or_b32 s{I}, s{I}, s{T2}
    s_and_b32 s{RG}, s{Wv}, 1
    s_lshr_b32 s{FH}, s{Wv}, 1
    s_and_b32 s{E}, s{J}, 1
    s_lshr_b32 s{Pp}, s{J}, 1
    s_and_b32 s{ROT}, s{J}, {min(JX-1, 3)}
    v_lshrrev_b32 v82, 3, v{vL}
    v_and_b32 v83, 7, v{vL}
    v_mul_u32_u24 v100, 1152, v82
    v_lshl_add_u32 v100, v83, 4, v100
    s_lshl_b32 s{T0}, s{I}, 3
    s_lshl_b32 s{T1}, s{RG}, 2
    s_add_u32 s{T0}, s{T0}, s{T1}
    s_add_u32 s{T1}, s{T0}, s{FH}
    s_mul_i32 s{T1}, s{T1}, {16*1152}''')
    if JX == 2: P(f's_lshl_b32 s{ROT}, s{ROT}, 1')
    def xro(blk):
        P(f'''s_xor_b32 s{T2}, s{ROT}, {blk}
        s_and_b32 s{T3}, s{T2}, 1
        s_lshl_b32 s{T3}, s{T3}, 3
        s_and_b32 s{T2}, s{T2}, 2
        s_lshl_b32 s{T2}, s{T2}, 4
        s_or_b32 s{XRO+blk}, s{T2}, s{T3}''')
    xro(0)
    if opt.get('est'): P('s_memrealtime s[76:77]')
    P('s_waitcnt lgkmcnt(0)')
    if opt.get('est'): P('s_memrealtime s[78:79]')
    def srd(d, b, nbytes, shift=0):
        if shift:
            P('s_sub_u32 s%d, s%d, %d' % (d, b, shift))
            P('s_subb_u32 s%d, s%d, 0' % (d + 1, b + 1))
        else:
            P('s_mov_b32 s%d, s%d' % (d, b))
            P('s_mov_b32 s%d, s%d' % (d + 1, b + 1))
        P('s_mov_b32 s%d, 0x%x' % (d + 2, nbytes + shift))
        P('s_mov_b32 s%d, 0x00020000' % (d + 3))
    srd(SX, 4, 2048 * 1152)
    XR = 112
    xl = []
    def xload(blk):
        ld = [Ins('buffer_load_dwordx4 %s, v100, %s, s%d offen offset:%d' % (vr(XR + 36 * blk + 4 * l), sr(SX), OFF, 128 * l)) for l in range(9)]
        xl.append(ld)
        return [II(f's_mul_i32 s{OFF}, s{XRO+blk}, 1152\ns_add_u32 s{OFF}, s{OFF}, s{T1}')] + [[x] for x in ld]
    emit_all(xload(0))
    if opt.get('ctlate', 0): code_touch()
    if opt.get('est'): P('s_memrealtime s[80:81]')
    if opt.get('est') == 2:
        P('s_waitcnt vmcnt(8)')
        P('s_memrealtime s[82:83]')
        P('s_waitcnt vmcnt(0)')
        P('s_memrealtime s[86:87]')
    for blk in range(1, 4): xro(blk)
    srd(SQ, 6, 576 * 3456, shift=2048)
    RS = 36 // JX
    NT = ' nt' if opt.get('nt') else ''
    P(f'''s_and_b32 s{J0}, s{J}, {16-JX}
    s_and_b32 s{SH}, s2, 7
    s_lshr_b32 s{SH}, s{SH}, {lg(ng)}
    s_lshl_b32 s{SH}, s{SH}, 5
    s_add_u32 s{SH}, s{SH}, s{NN}
    v_lshrrev_b32 v86, {lg(2*JX)}, v0
    v_and_b32 v87, {2*JX-1}, v0
    v_mul_u32_u24 v88, 3456, v86
    v_lshl_add_u32 v87, v87, 7, v88
    v_cmp_gt_u32 vcc, {RS}, v86
    v_cndmask_b32 v87, v89, v87, vcc
    s_mul_i32 s{ST}, s{SH}, {RS*3456}
    s_lshl_b32 s{T2}, s{J0}, 8
    s_add_u32 s{BL2}, s{ST}, s{T2}
    v_mov_b32 v104, v87''')
    qtouch = [Ins(f'buffer_load_dword v79, v104, {sr(SQ)}, s{BL2} offen offset:2048' + NT)]

    srd(SG, 12, 576 * 9216)
    srd(SU, 14, 576 * 9216, shift=2048)
    srd(SD, 16, 4608 * 1152, shift=2048)
    srd(SW, 22, WSB)
    srd(SB, 20, 256)
    P(f's_mov_b64 {sr(OUTP,2)}, s[18:19]')
    P(f'''s_cmp_ge_u32 s{Wv}, 2
    s_cselect_b32 s{SL}, s14, s12
    s_cselect_b32 s{SL+1}, s15, s13
    s_mov_b32 s{SL+2}, 0x{576*9216:x}
    s_mov_b32 s{SL+3}, 0x00020000
    s_mul_i32 s{PFP}, s{SH}, {RS*9216}
    s_mul_i32 s{T2}, s{RG}, {1152 if JX == 4 else 9*9216}
    s_add_u32 s{PFP}, s{PFP}, s{T2}
    s_mul_i32 s{T2}, s{J0}, 576
    s_add_u32 s{PFP}, s{PFP}, s{T2}''')
    if stamps: P('s_mov_b64 s[22:23], s[84:85]')
    P(f'''s_lshl_b32 s{W4096}, s{Wv}, 12
    s_lshl_b32 s{BQ}, s{J}, 8
    s_mul_i32 s{T2}, s{Wv}, {16*3456}
    s_add_u32 s{BQ}, s{BQ}, s{T2}
    s_cmp_ge_u32 s{J}, 14
    s_cselect_b32 s{BQ}, 0x{OOB:x}, s{BQ}
    s_mov_b32 s{ONE2}, 0x3f803f80
    s_mov_b32 s{LO}, 0x00003f80
    s_mov_b32 s{HI}, 0x3f800000
    v_lshrrev_b32 v84, 4, v{vL}
    v_and_b32 v85, 15, v{vL}
    v_cmp_eq_u32 vcc, 0, v0
    v_cndmask_b32 v{vFL}, v89, 0, vcc
    v_lshlrev_b32 v86, 1, v82
    v_and_b32 v86, 4, v86
    v_xor_b32 v86, v83, v86
    v_mul_u32_u24 v87, 9216, v82
    v_lshl_add_u32 v{vDP[0]}, v86, 4, v87
    v_mul_u32_u24 v88, 3456, v82
    v_lshl_add_u32 v90, v86, 4, v88
    v_add_u32 v{vDQ[0]}, 2048, v90
    v_add_u32 v{vDQ[2]}, 128, v90
    v_xor_b32 v86, 2, v86
    v_lshl_add_u32 v{vDP[1]}, v86, 4, v87
    v_add_u32 v{vDP[1]}, {8*9216-1024}, v{vDP[1]}
    v_lshl_add_u32 v90, v86, 4, v88
    v_add_u32 v{vDQ[1]}, {8*3456-1024+2048}, v90
    v_add_u32 v{vDQ[3]}, {8*3456-1024+128}, v90
    s_lshl_b32 s{SIG}, s{E}, 1
    s_sub_u32 s{SIG}, 1, s{SIG}
    s_mul_i32 s{BP}, s{Pp}, 1152
    s_lshl_b32 s{T3}, s{E}, 10
    s_add_u32 s{BP}, s{BP}, s{T3}
    s_mul_i32 s{T3}, s{Wv}, {16*9216}
    s_add_u32 s{BP}, s{BP}, s{T3}
    v_and_b32 v87, 3, v{vL}
    v_lshrrev_b32 v86, 2, v85
    v_and_b32 v88, 1, v84
    v_lshrrev_b32 v92, 1, v84
    v_lshlrev_b32 v90, 12, v92
    v_lshl_add_u32 v90, v88, 10, v90
    v_lshl_add_u32 v90, v86, 7, v90
    v_lshrrev_b32 v91, 1, v86
    v_xor_b32 v91, s{FH}, v91
    v_lshl_add_u32 v90, v91, 6, v90
    v_lshl_add_u32 v90, v88, 5, v90
    v_lshl_add_u32 v{vTQ[0]}, v87, 3, v90
    v_xor_b32 v{vTQ[1]}, 32, v{vTQ[0]}
    s_lshl_b32 s{T2}, s{E}, 6
    v_xor_b32 v{vTP[0]}, s{T2}, v{vTQ[0]}
    v_xor_b32 v{vTP[1]}, s{T2}, v{vTQ[1]}
    s_mul_i32 s{ST}, s{RG}, {2*18432}
    s_add_u32 s{ST}, s{ST}, {XB}
    v_xor_b32 v90, v85, v84
    v_lshlrev_b32 v90, 4, v90
    v_lshl_add_u32 v90, v84, 8, v90
    v_add_u32 v65, s{ST}, v90
    v_xor_b32 v66, 64, v65
    s_mul_i32 s{T2}, s{FH}, 18432
    s_add_u32 s{ST}, s{ST}, s{T2}
    s_and_b32 s{T2}, s{XRO}, 8
    s_lshl_b32 s{T2}, s{T2}, 4
    s_add_u32 s{ST}, s{ST}, s{T2}
    v_xor_b32 v90, v82, v83
    v_lshlrev_b32 v90, 4, v90
    v_lshl_add_u32 v90, v83, 8, v90
    v_add_u32 v64, s{ST}, v90
    v_xor_b32 v76, 128, v64
    s_lshl_b32 s{T2}, s{RG}, 6
    s_lshl_b32 s{T3}, s{FH}, 4
    s_add_u32 s{T2}, s{T2}, s{T3}
    v_add_u32 v67, s{T2}, v82''')
    def G(text): return [II(text)]
    P(f'''s_lshl_b32 s{T2}, s{I}, 4
    s_add_u32 s{T2}, s{T2}, s{J}
    s_lshl_b32 s{MYF}, s{T2}, 7
    s_add_u32 s{MYF}, s{MYF}, 0x{FOFF:x}
    s_lshl_b32 s{DB}, s{I}, 2
    s_lshl_b32 s{T2}, 1, s{J}
    v_mov_b32 v105, s{T2}
    v_mov_b32 v86, 0''')
    freset = P(f'buffer_store_dword v86, v{vFL}, {sr(SW)}, s{MYF} offen sc1')
    fatom = Ins(f'buffer_atomic_or v105, v{vFL}, {sr(SB)}, s{DB} offen offset:8', needs=[freset])
    late0 = II(f'''s_mul_i32 s{W3072}, s{Wv}, 3072
    s_lshl_b32 s{T2}, s{I}, 4
    s_add_u32 s{T2}, s{T2}, s{J}
    v_mov_b32 v207, 0
    s_xor_b32 s{PF}, s{MYF}, 128
    s_mul_i32 s{HS}, s{T2}, {9*8192}
    s_xor_b32 s{T2}, s{T2}, 1
    s_mul_i32 s{HL}, s{T2}, {9*8192}
    s_lshl_b32 s{T2}, s{RG}, 12
    s_add_u32 s{HS}, s{HS}, s{T2}
    s_lshl_b32 s{T3}, s{FH}, 11
    s_add_u32 s{HLN}, s{HS}, s{T3}
    s_add_u32 s{HLN}, s{HLN}, {8*8192}
    s_add_u32 s{HL}, s{HL}, s{T2}
    s_lshl_b32 s{T3}, s{FH}, 13
    s_add_u32 s{HS}, s{HS}, s{T3}
    s_mul_i32 s{BL1}, s{Pp}, 1152
    s_lshl_b32 s{T2}, s{E}, 6
    s_add_u32 s{T2}, s{T2}, 512
    s_add_u32 s{BL1}, s{BL1}, s{T2}
    s_mul_i32 s{T3}, s{RG}, {48*9216}
    s_add_u32 s{BL1}, s{BL1}, s{T3}''')
    late0b = II(f'''s_lshl_b32 s{T2}, s{RG}, 12
    s_lshl_b32 s{T3}, s{I}, 3
    s_add_u32 s{T3}, s{T3}, s{Pp}
    s_mul_i32 s{PS}, s{T3}, {18*8192}
    s_add_u32 s{PS}, s{PS}, s{T2}
    s_add_u32 s{PS}, s{PS}, 0x{POFF:x}
    s_sub_u32 s{T3}, 9, s{E}
    s_lshl_b32 s{T3}, s{T3}, 13
    s_add_u32 s{PLN}, s{PS}, s{T3}
    s_lshl_b32 s{T3}, s{FH}, 11
    s_xor_b32 s{T3}, s{T3}, s{ROT}
    s_add_u32 s{PLN}, s{PLN}, s{T3}
    s_add_u32 s{PS}, s{PS}, s{ROT}
    s_mul_i32 s{T3}, s{E}, 10
    s_add_u32 s{T3}, s{T3}, s{FH}
    s_sub_u32 s{T3}, 17, s{T3}
    s_lshl_b32 s{T3}, s{T3}, 13
    s_add_u32 s{PS}, s{PS}, s{T3}
    s_lshl_b32 s{T2}, s{E}, 6
    s_add_u32 s{T2}, s{T2}, 512
    s_mul_i32 s{T1}, s{Pp}, {576*1152}
    s_mul_i32 s{T3}, s{E}, {17*32*1152}
    s_add_u32 s{T1}, s{T1}, s{T3}
    s_mul_i32 s{BD}, s{E}, 640
    s_add_u32 s{BD}, s{BD}, s{T1}
    s_mul_i32 s{T3}, s{FH}, s{SIG}
    s_mul_i32 s{T3}, s{T3}, {32*1152}
    s_add_u32 s{BD}, s{BD}, s{T3}
    s_mul_i32 s{T3}, s{RG}, {16*1152}
    s_add_u32 s{BD}, s{BD}, s{T3}
    s_add_u32 s{T1}, s{T1}, s{T2}''')
    for t in range(3):
        late0b += II(f'''s_mul_i32 s{T2}, s{Wv}, 3
        s_add_u32 s{T2}, s{T2}, {t}
        s_lshr_b32 s{T3}, s{T2}, 1
        s_mul_i32 s{T3}, s{T3}, s{SIG}
        s_mul_i32 s{T3}, s{T3}, {32*1152}
        s_add_u32 s{BL2+t}, s{T1}, s{T3}
        s_and_b32 s{T2}, s{T2}, 1
        s_mul_i32 s{T2}, s{T2}, {16*1152}
        s_add_u32 s{BL2+t}, s{BL2+t}, s{T2}
        s_add_u32 s{BL2+t}, s{BL2+t}, {2048-1024*t}''')
    late0 += II(f'''s_mul_i32 s{T2}, s{T0}, {BLK//2}
    s_lshl_b32 s{T3}, s{J}, 13
    s_add_u32 s{T2}, s{T2}, s{T3}
    s_lshl_b32 s{T3}, s{FH}, 11
    s_add_u32 s{T2}, s{T2}, s{T3}
    s_add_u32 s{T2}, s{T2}, 0x{KOFF:x}
    s_and_b32 s{ROT}, s{ROT}, 2
    s_mul_i32 s{T3}, s{ROT}, {BLK//2}
    s_add_u32 s{T2}, s{T2}, s{T3}
    s_sub_u32 s{QM+2}, 1, s{ROT}
    s_mul_i32 s{QM+2}, s{QM+2}, {BLK}
    s_lshl_b32 s{ROT}, s{ROT}, 10
    s_movk_i32 s{QC}, 4096''')
    late0 += G(f's_cmp_ge_u32 s{J}, 14\ns_cselect_b32 s{QM}, 0x{2*OOB:x}, s{T2}')
    late0 += G(f's_cmp_eq_u32 s{J}, 13\ns_cselect_b32 s{QC}, 0x{OOB:x}, s{QC}')
    late0b += II(f'''s_lshl_b32 s{T2}, s{FH}, 1
    s_add_u32 s{T2}, s{T2}, s{T0}
    s_mul_i32 s{OB}, s{T2}, 18432
    s_lshl_b32 s{T2}, s{J}, 10
    s_add_u32 s{OB}, s{OB}, s{T2}
    s_add_u32 s{OB}, s{OB}, 0x{OOFF:x}
    s_mul_i32 s{OR}, s{I}, {8*18432}
    s_lshl_b32 s{T2}, s{J}, 7
    s_add_u32 s{OR}, s{OR}, s{T2}
    s_add_u32 s{OR}, s{OR}, 0x{OOFF+16384:x}''')
    late0b += G(f's_cmp_eq_u32 s{Wv}, 0\ns_cselect_b32 s{OR}, s{OR}, 0x{OOB:x}')
    late0b += II(f'''s_mov_b32 s{C}, 0x{f2u(SCALE):x}''')
    late0b += G(f's_cmp_lt_u32 s{I}, 2\ns_cselect_b32 s{N0}, 0xffff, 0') + G(f's_cmp_lt_u32 s{I}, 1\ns_cselect_b32 s{N1}, 0xffff, 0')
    late0 += II(f'''s_mul_i32 s{PFD}, s{J0}, {288*1152}
    s_mul_i32 s{T2}, s{SH}, {162*128}
    s_add_u32 s{PFD}, s{PFD}, s{T2}
    s_mul_i32 s{T2}, s{Wv}, {41*128}
    s_add_u32 s{PFD}, s{PFD}, s{T2}''')
    late0 += II(f'''v_lshlrev_b32 v{vL16}, 4, v{vL}
    v_lshrrev_b32 v182, 3, v{vL}
    v_and_b32 v183, 7, v{vL}
    v_lshrrev_b32 v184, 4, v{vL}
    v_and_b32 v185, 15, v{vL}
    v_and_b32 v186, 6, v182
    v_xor_b32 v186, v183, v186
    v_mul_u32_u24 v187, 1152, v182
    v_lshl_add_u32 v187, v186, 4, v187''')
    for t in range(4):
        late0 += II('v_add_u32 v%d, %d, v187' % (vDD[t], (t & 1) * (8 * 1152 - 1024) + (t >> 1) * (128 - 2048) + 2048))
    late0 += II(f'''v_lshrrev_b32 v186, 2, v{vL}
    v_and_b32 v187, 3, v{vL}
    v_and_b32 v188, 2, v184
    v_xor_b32 v188, v187, v188
    v_mul_u32_u24 v190, 9216, v186
    v_lshl_add_u32 v{vDL1}, v188, 4, v190
    v_and_b32 v188, 1, v184
    v_lshlrev_b32 v188, 1, v188
    v_xor_b32 v188, v187, v188
    v_mul_u32_u24 v190, 1152, v186
    v_lshl_add_u32 v{vDL2}, v188, 4, v190
    v_lshrrev_b32 v186, 2, v185
    v_and_b32 v188, 1, v184
    v_lshrrev_b32 v192, 1, v184
    v_lshl_add_u32 v190, v184, 3, v186
    v_lshlrev_b32 v190, 6, v190
    v_xor_b32 v191, s{FH}, v188
    v_lshl_add_u32 v190, v191, 5, v190
    v_lshl_add_u32 v{vTL1}, v187, 3, v190
    v_lshl_add_u32 v190, v184, 2, v186
    v_lshlrev_b32 v190, 6, v190
    v_lshl_add_u32 v190, v191, 5, v190
    v_lshl_add_u32 v{vTL2}, v187, 3, v190
    v_lshl_add_u32 v190, v188, 2, v186
    v_lshrrev_b32 v191, 1, v190
    s_lshl_b32 s{T2}, s{FH}, 1
    v_xor_b32 v191, s{T2}, v191
    v_lshlrev_b32 v190, 7, v190
    v_lshl_add_u32 v190, v192, 10, v190
    v_lshl_add_u32 v190, v191, 5, v190
    v_lshl_add_u32 v{vTD[0]}, v187, 3, v190
    v_xor_b32 v{vTD[1]}, 32, v{vTD[0]}
    v_mov_b32 v189, 0x{OOB:x}
    v_cmp_eq_u32 vcc, 0, v184
    v_lshlrev_b32 v190, 2, v184
    v_sub_u32 v{vDG}, v190, v185
    v_cndmask_b32 v{vOR}, v189, v{vL16}, vcc
    s_lshl_b32 s{T2}, s{RG}, 12
    v_add_u32 v{vHW}, s{T2}, v{vL16}''')
    late0 += G(f's_cmp_ge_u32 s{J}, 9\ns_cselect_b64 vcc, -1, 0')
    late0 += II(f'''v_lshlrev_b32 v191, 6, v185
    v_lshl_add_u32 v191, v184, 4, v191
    v_cndmask_b32 v{vQS[0]}, v{vL16}, v191, vcc
    v_lshlrev_b32 v190, 4, v185
    v_add_u32 v190, {RT4}, v190
    v_lshlrev_b32 v191, 4, v184
    v_add_u32 v191, {RTB}, v191
    v_cndmask_b32 v190, v190, v191, vcc
    s_lshl_b32 s{T2}, s{RG}, 10
    v_add_u32 v{vRS}, s{T2}, v190
    v_mov_b32 v204, 0
    v_mov_b32 v205, 0
    v_mov_b32 v206, 0
    s_mul_i32 s{T2}, s{J}, 2304
    s_add_u32 s{T2}, s{T2}, 0x{KOFF-BLK+148*256:x}''')
    late0 += G(f's_cmp_eq_u32 s{I}, 0\ns_cselect_b32 s{T2}, s{T2}, 0x{OOB:x}')
    guard = Ins(f'buffer_store_dwordx4 v[204:207], v{vOR}, {sr(SW)}, s{T2} offen sc1')
    late0 += [guard]
    late0 += II(f'''v_mov_b32 v200, 0x3f803f80
    v_mov_b32 v201, 0x3f803f80
    v_mov_b32 v202, 0x3f803f80
    v_mov_b32 v203, 0x3f803f80
    s_lshl_b32 s{T2}, s{I}, 2
    s_add_u32 s{T2}, s{T2}, s{Wv}
    s_mul_i32 s{T2}, s{T2}, {BLK}
    s_add_u32 s{T2}, s{T2}, 0x{KOFF+110592:x}
    v_cmp_gt_u32 vcc, 8, v{vL}
    s_nop 0
    s_nop 0
    v_cndmask_b32 v199, v189, v{vL16}, vcc''')
    late0 += G(f's_cmp_eq_u32 s{J}, 14\ns_cselect_b32 s{T2}, s{T2}, 0x{OOB:x}')
    ones_st = Ins(f'buffer_store_dwordx4 v[200:203], v199, {sr(SW)}, s{T2} offen sc1')
    late0 += [ones_st]

    slots = []
    def dma4(srds, voffs, sbase, add, sadd=0, bump=None, pre=''):
        def f(rp):
            if bump is not None:
                g = [II((bump + '\n' if bump else '') + f's_add_u32 s{OFF}, s{sbase}, {add}\ns_add_u32 m0, s{W4096}, {rp*SLOT}')]
            elif sadd and not add:
                g = [II(pre + f's_mul_i32 s{OFF}, s{SIG}, {sadd}\ns_add_u32 s{OFF}, s{OFF}, s{sbase}\ns_add_u32 m0, s{W4096}, {rp*SLOT}')]
            elif sadd:
                g = [II(f's_mul_i32 s{OFF}, s{SIG}, {sadd}\ns_add_u32 s{OFF}, s{OFF}, s{sbase}'),
                     II(f's_add_u32 s{OFF}, s{OFF}, {add}\ns_add_u32 m0, s{W4096}, {rp*SLOT}')]
            else:
                g = [II(f's_add_u32 s{OFF}, s{sbase}, {add}\ns_add_u32 m0, s{W4096}, {rp*SLOT}')]
            for t in range(4):
                g.append([Ins('buffer_load_dwordx4 v%d, %s, s%d offen offset:%d lds' % (voffs[t], sr(srds[t]), OFF, 1024 * t))])
            return g
        return f
    def dma_l1(s):
        def f(rp):
            g = []
            for t in range(3):
                pre = II(f's_add_u32 s{OFF}, s{BL1}, {s*96*9216 + t*(16*9216-1024)}')
                if t == 0: pre += II(f's_add_u32 m0, s{W3072}, {rp*SLOT}')
                g.append(pre)
                g.append(II(f'buffer_load_dwordx4 v{vDL1}, {sr(SL)}, s{OFF} offen offset:{1024*t} lds'))
            return g
        return f
    def dma_l2(s):
        def f(rp):
            g = [II(f's_add_u32 m0, s{W3072}, {rp*SLOT}')]
            for t in range(3):
                g.append(II(f's_mul_i32 s{OFF}, s{SIG}, {s*192*1152}\ns_add_u32 s{OFF}, s{OFF}, s{BL2+t}'))
                g.append(II(f'buffer_load_dwordx4 v{vDL2}, {sr(SD)}, s{OFF} offen offset:{1024*t} lds'))
            return g
        return f
    def regroup(gs):
        if not opt.get('rg', 1): return gs
        fl = [f for g in gs for f in g]
        return [fl[n:n + 2] for n in range(0, 6, 2)]
    def accf(base, tile): return lambda mt: base + (tile * 4 + mt) * 4
    def bf(pos): return lambda mt: breg(pos, mt)
    def pairlike(vT, acc, s):
        return [[Frag(vT[ft], ks * 8192 + m * 2048, ks * 8192 + m * 2048 + 512, accf(acc, 2 * m + ft), bf(2 * s + ks), s == 0 and ks == 0) for ks in range(2)] for m in range(2) for ft in range(2)]
    for s in range(9):
        slots.append(Slot(pairlike(vTQ, ACCA, s), dma4([SQ] * 4, vDQ, BQ, s * 64 * 3456)))
    PACC = [ACCB, ACCB, ACCA, ACCB]
    def pstep(q):
        for s in range(9):
            slots.append(Slot(pairlike(vTP, PACC[q], s), dma4([SG, SG, SU, SU], [vDP[0], vDP[1], vDP[0], vDP[1]], BP, s * 64 * 9216, bump=(f's_lshl_b32 s{OFF}, s{SIG}, 7\ns_add_u32 s{BP}, s{BP}, s{OFF}' if s == 0 and q else ''))))
    pstep(0)
    for s in range(6):
        gs = [[Frag(vTL1, m * 6144 + ks * 2048, m * 6144 + ks * 2048 + 256, accf(ACCA, m), bf(3 * s + ks), s == 0 and ks == 0) for ks in range(3)] for m in range(2)]
        slots.append(Slot(regroup(gs), dma_l1(s)))
    pstep(1); pstep(2); pstep(3)
    NSEG1 = len(slots)
    hpos = {}
    for n, k in enumerate([6, 7, 11, 10]): hpos[k] = n
    for n, k in enumerate([0, 1, 2, 3, 4, 5, 16, 17, 14, 15, 12, 13, 9, 8]): hpos[k] = 4 + n
    lorder = [8, 7, 6, 0, 1, 2, 4, 3, 5]
    def dstep(q):
        acc = ACCA
        for n, ln in enumerate(lorder):
            gs = [[Frag(vTD[ft], ks * 8192 + c * 2048, ks * 8192 + c * 2048 + 4096, accf(acc, 2 * c + ft), bf(hpos[2 * ln + ks]), n == 0 and ks == 0) for ks in range(2)] for c in range(2) for ft in range(2)]
            slots.append(Slot(gs, dma4([SD] * 4, vDD, BD, 0, ln * 64 * 1152, pre=(f's_add_u32 s{BD}, s{BD}, 256\n' if q and n == 0 else ''))))
    dstep(0)
    for s in range(3):
        gs = [[Frag(vTL2, ks * 2048, ks * 2048 + 1024, accf(SP, 0), bf(hpos[6 * s + ks]), s == 0 and ks == 0) for ks in range(3 * hg, 3 * hg + 3)] for hg in range(2)]
        slots.append(Slot(regroup(gs), dma_l2(s)))
    n0 = len(slots); dstep(1)
    for sl in slots[n0:]:
        for g in sl.groups:
            for f in g: f.acc = (lambda old: (lambda mt: old(mt) + (ACCB - ACCA)))(f.acc)
    NS = len(slots)
    vWD = [3, 4, 5, 6]; vWD2 = 8; vWT = [9, 10, 11, 12]; vPL = 13
    TL, TP, TX, TM, TV, OL, FB = 87, 88, 89, 90, 91, 92, 93
    for s in range(4): slots.append(Slot([], dma4([SG] * 4, vWD, TL, s * 4 * 36 * 1152)))
    def dma_w2(rp):
        return [II(f's_mul_i32 s{OFF}, s{Wv}, {(144-36)*1152}\ns_add_u32 s{OFF}, s{OFF}, s{TL}\ns_lshr_b32 m0, s{W4096}, 1\ns_add_u32 m0, m0, {rp*SLOT}'),
                II(f'buffer_load_dwordx4 v{vWD2}, {sr(SG)}, s{OFF} offen lds'), II(f's_add_u32 s{OFF}, s{OFF}, {72*1152-1024}'),
                II(f'buffer_load_dwordx4 v{vWD2}, {sr(SG)}, s{OFF} offen offset:1024 lds')]
    slots.append(Slot([], dma_w2))
    NSX = len(slots)
    phys = {n: n for n in range(9)}; load_at = {}; hphys = {}
    nxt = 9
    divert = {18: 0, 33: 1, 42: 2, 50: 3}
    for n in range(2, NSEG1):
        if n in divert: hphys[divert[n]] = phys[n - 2]
        else: phys[nxt] = phys[n - 2]; load_at[n] = nxt; nxt += 1
    att_loads = []
    for f in [phys[NSEG1 - 2], phys[NSEG1 - 1], hphys[0], hphys[1], hphys[2]]:
        phys[nxt] = f; att_loads.append(nxt); nxt += 1
    extra_loads = {}
    for n in range(NSEG1 + 2, NS):
        q = n - (NSEG1 + 2)
        if q == 1: phys[nxt] = hphys[3]; extra_loads[n] = [nxt]; nxt += 1
        if nxt < NSX: phys[nxt] = phys[n - 2]; load_at[n] = nxt; nxt += 1
    assert nxt == NSX
    def dma_groups(n):
        g = slots[n].dma(phys[n])
        slots[n].loads = [x for grp in g for x in grp if x.kind == 'vmem']
        return g

    SV = opt.get('sv', 4.75)
    loud = set(); svc = {id(guard): 1, id(ones_st): 1}
    def T(text, q=56):
        x = Ins(text); loud.add(id(x)); svc[id(x)] = q; return x
    VLS = opt.get('vls', [[0, 8, 4, 1, 7], [2, 6, 3, 5]])
    def pf_gu(VL, t0, msk, q=0):
        nl = len(VL); tab = sum(l << (4 * n) for n, l in enumerate(VL)); a_, b_, c_ = t0, t0 + 1, t0 + 2
        return II(f'''v_mul_u32_u24 v{b_}, {65536//nl+1}, v{vL}
        v_lshrrev_b32 v{b_}, 16, v{b_}
        v_cmp_gt_u32 {msk}, 9, v{b_}
        v_mul_u32_u24 v{a_}, {4*nl}, v{b_}
        v_lshlrev_b32 v{c_}, 2, v{vL}
        v_sub_u32 v{a_}, v{c_}, v{a_}
        v_mov_b32 v{c_}, 0x{tab:x}
        v_bfe_u32 v{a_}, v{c_}, v{a_}, 4
        v_mul_u32_u24 v{b_}, 9216, v{b_}
        v_lshl_add_u32 v{b_}, v{a_}, 7, v{b_}
        v_mov_b32 v{a_}, 0x{OOB:x}
        v_cndmask_b32 v{b_}, v{a_}, v{b_}, {msk}''') + [T(f'buffer_load_dword v0, v{b_}, {sr(SL)}, s{PFP} offen' + NT, q)]
    emit_all(xload(1))
    stamp('setup')
    if opt.get('est'):
        P('s_waitcnt lgkmcnt(0)')
        for n, r in enumerate((76, 78, 80, 82, 86)): P('s_mov_b32 s%d, s%d' % (sTS + 5 + n, r))

    NPRE = opt.get('npre', 5)
    GU2 = 0
    gA, gB = pf_gu(VLS[0], 106, 's[78:79]'), pf_gu(VLS[1], 106, 's[78:79]')
    if opt.get('tlb'):
        qtouch = qtouch + II(f'''v_lshlrev_b32 v106, 21, v0
        v_min_u32 v107, 24, v0
        v_lshlrev_b32 v107, 21, v107
        buffer_load_dword v0, v107, {sr(SW)}, 0 offen sc1
        buffer_load_dword v79, v106, {sr(SD)}, 0 offen offset:2048
        buffer_load_dword v79, v106, {sr(SG)}, 0 offen
        buffer_load_dword v79, v106, {sr(SU)}, 0 offen offset:2048
        s_mov_b32 s80, s{OUTP}
        s_mov_b32 s81, s{OUTP+1}
        s_mov_b32 s82, 0x{2048*1152:x}
        s_mov_b32 s83, 0x00020000
        buffer_load_dword v79, v106, s[80:83], 0 offen sc1
        s_mov_b32 s80, s8
        s_mov_b32 s81, s9
        s_mov_b32 s82, 0x{576*1152:x}
        buffer_load_dword v79, v106, s[80:83], 0 offen''')
    dm0 = [g for n in range(NPRE) for g in dma_groups(n)]
    if opt.get('so', 0) == 0:
        bg = [('GAP', 30)] + xload(2) + xload(3) + [qtouch, ('GAP', 150)] + dm0 + [gA, gB, [fatom]]
    elif opt.get('so', 0) == 3:
        bg = [('GAP', 30)] + xload(2) + xload(3) + [qtouch, gA, [fatom], ('GAP', opt.get('ga', 330))] + dm0
    elif opt.get('so', 0) == 4:
        bg = [('GAP', 30)] + xload(2) + xload(3) + [qtouch, gA, ('GAP', opt.get('ga', 330))] + dm0 + [gB, [fatom]]
    elif opt.get('so', 0) == 5:
        bg = [('GAP', 30)] + xload(2) + xload(3) + [qtouch, ('GAP', 150)] + dm0 + [gA, [fatom]]
    elif opt.get('so', 0) == 1:
        bg = [('GAP', opt.get('gap0', 30)), qtouch, gA, ('GAP', opt.get('ga', 200))] + xload(2) + xload(3) + dm0 + [gB, [fatom]]
    else:
        bg = [('GAP', opt.get('gap0', 30))] + xload(2) + [qtouch, gA, ('GAP', opt.get('ga', 300))] + xload(3) + dm0 + [gB, [fatom]]
    cnt = [0]; lq = []; lcnt = [0, 10]
    EVERY = opt.get('every', 8)
    def V(t, needs=()):
        r = P(Ins(t, needs))
        cnt[0] += 1
        if bg and cnt[0] >= EVERY:
            cnt[0] = 0
            while bg:
                g = bg.pop(0)
                if isinstance(g, tuple): cnt[0] = -g[1]; break
                emit_all(g)
                if any(x.kind == 'vmem' for x in g): break
        lcnt[0] += 1
        if lq and lcnt[0] >= lcnt[1]:
            lcnt[0] = 0; emit_all([lq.pop(0)])
        return r
    def reduce8(r):
        V('v_add_f32_dpp v%d, v%d, v%d quad_perm:[1,0,3,2] row_mask:0xf bank_mask:0xf' % (r, r, r))
        V('v_add_f32_dpp v%d, v%d, v%d quad_perm:[2,3,0,1] row_mask:0xf bank_mask:0xf' % (r, r, r))
        V('v_add_f32_dpp v%d, v%d, v%d row_half_mirror row_mask:0xf bank_mask:0xf' % (r, r, r))
    def ln_block(blk, defer=False):
        X = XR + 36 * blk
        wa = [64, 76][blk & 1]
        for n in range(36):
            if n < 4: V('v_dot2_f32_bf16 v%d, v%d, s%d, 0' % (68 + n, X + n, ONE2), needs=[xl[blk][0]])
            else: V('v_dot2_f32_bf16 v%d, v%d, s%d, v%d' % (68 + n % 4, X + n, ONE2, 68 + n % 4), needs=[xl[blk][n // 4]])
        stamp('sum%d' % blk)
        V(f's_and_b32 s{T2}, s{XRO+blk}, 8')
        V(f's_add_u32 s{T2}, s{T2}, {32*(blk>>1)}')
        V(f'v_add_u32 v77, s{T2}, v67')
        V('v_lshlrev_b32 v78, 4, v77')
        V('v_add_u32 v78, %d, v78' % RT4)
        V('v_add_f32 v68, v68, v69')
        V('v_add_f32 v70, v70, v71')
        V('v_add_f32 v68, v68, v70')
        V('v_and_b32 v101, 0x70, v77')
        V('v_mul_u32_u24 v101, 12, v101')
        reduce8(68)
        V('v_mul_f32 v68, 0x%x, v68' % f2u(-1.0 / 576))
        wr = []
        LAG = 2
        for n in range(36 + LAG + 1):
            if n < 36:
                t = 80 + 2 * (n % 8)
                V('v_dot2_f32_bf16 v%d, v%d, s%d, v68' % (t, X + n, LO))
                V('v_dot2_f32_bf16 v%d, v%d, s%d, v68' % (t + 1, X + n, HI))
            m = n - LAG
            if 0 <= m < 36:
                t = 80 + 2 * (m % 8)
                V('v_cvt_pk_bf16_f32 v%d, v%d, v%d' % (X + m, t, t + 1))
            m = n - LAG - 1
            if 0 <= m < 36:
                V('v_dot2_f32_bf16 v%d, v%d, v%d, %s' % (72 + m % 4, X + m, X + m, '0' if m < 4 else 'v%d' % (72 + m % 4)))
                if m % 4 == 3:
                    w = Ins('ds_write_b128 v%d, %s offset:%d' % (wa, vr(X + m - 3), (m // 4) * 2048)); wr.append(w)
                    if not defer: P(w)
        dwr = list(wr)
        V('v_lshl_add_u32 v101, v77, 2, v101')
        V('v_add_u32 v101, %d, v101' % RTB)
        V('v_add_f32 v72, v72, v73')
        V('v_add_f32 v74, v74, v75')
        V('v_add_f32 v72, v72, v74')
        V('v_mov_b32 v73, 0x%x' % f2u(1e-5))
        reduce8(72)
        V('v_fmac_f32 v73, 0x%x, v72' % f2u(1.0 / 576))
        V('v_rsq_f32 v96, v73')
        for t in (1, 2, 3): V('v_mov_b32 v%d, v96' % (96 + t))
        wr.append(P('ds_write_b128 v78, v[96:99]'))
        wr.append(P('ds_write_b32 v101, v96'))
        return wr, dwr
    slow = []
    nlab = [0]
    def alt_site(inline, other):
        nlab[0] += 1; n = nlab[0]
        slow.append(f'alt{n}:\n' + ''.join('    %s\n' % t for t in other) + f'    s_branch alt{n}_e\n')
        return [Ins(f's_cbranch_vccz alt{n}')] + inline + [Ins(f'alt{n}_e:')]
    def xn_reads(rho):
        return [Ins('ds_read_b128 %s, v%d offset:%d' % (breg(ks, 2 * rho + t), 65 + (ks & 1), t * 18432 + ks * 1024)) for ks in range(18) for t in range(2)]
    w0, _ = ln_block(0); w1, _ = ln_block(1)
    stamp('ln01')
    P(Ins('s_barrier', needs=w0 + w1))
    r0 = xn_reads(0)
    lq += [r0[n:n + 2] for n in range(0, 36, 2)]; lcnt[1] = 8
    w2, d2 = ln_block(2, defer=True)
    emit_all(lq); lq.clear()
    P(Ins('s_barrier', needs=r0))
    lq += d2; lcnt[1] = 12
    w3, _ = ln_block(3)
    emit_all(lq); lq.clear()
    emit_all([g for g in bg if not isinstance(g, tuple)]); bg.clear()
    stamp('ln23')
    P(Ins('s_barrier', needs=w2 + w3 + slots[0].loads))
    r1 = xn_reads(1)
    stamp('mf0')

    window = {}
    AH = 4; AHM = opt.get('ah', 6)
    def make_reads(fr, sidx, fi):
        w, o = divmod(phys[sidx] * SLOT, 65536)
        out = []
        if window.get(fr.base, 0) != w:
            d = (w - window.get(fr.base, 0)) * 65536
            out.append(Ins('v_add_u32 v%d, 0x%x, v%d' % (fr.base, d & 0xffffffff, fr.base)))
            window[fr.base] = w
        f = FR + 4 * (fi % 8)
        fr.reg = f
        fr.rd = [Ins('ds_read_b64_tr_b16 %s, v%d offset:%d' % (vr(f + 2 * h, 2), fr.base, o + fr.imm[h])) for h in range(2)]
        return [out + [fr.rd[0]], [fr.rd[1]]]
    def segment(s0, s1, fillers, bar_extra, first_loads=(), extra_need=None, hook=None, quiet=(), pre=()):
        frs = []; groups = []
        for s in range(s0, s1):
            for g in slots[s].groups:
                groups.append((s, len(frs), g))
                for f in g: frs.append((s, f))
        nm = sum(4 * len(g) for _, _, g in groups)
        gm = [[] for _ in range(nm)]; ga = [[] for _ in range(nm)]; gz = [[] for _ in range(nm)]
        used = [0] * nm; vmw = [0] * (nm + 16)
        mf = []; issued = 0; slot_start = {}
        ismem = lambda x: x.kind in ('ds', 'vmem')
        def put(k, items, cost=None):
            (gm if len(items) == 1 and ismem(items[0]) else ga)[k].extend(items)
            used[k] += min(2, sum(x.cost for x in items)) if cost is None else cost
        while issued < AH:
            s, f = frs[issued]
            emit_all(make_reads(f, s, issued)); issued += 1
        if callable(pre): pre()
        else: emit_all(list(pre))
        pend = [(-1, list(first_loads), ())]
        barpos = {}; vcand = set(); fv = set()
        for (s, f0, g) in groups:
            a = len(mf)
            slot_start.setdefault(s, a)
            n = 4 * len(g)
            for mt in range(4):
                for f in g: mf.append((s, f, mt, g))
            if a > 0: used[a - 1] += 1
            vcand.update(range(a + 1, a + n, 4))
            items = []
            while issued < min(len(frs), f0 + min(8, len(g) + AHM)) and frs[issued][0] <= s + 1:
                s2, f2 = frs[issued]
                r = make_reads(f2, s2, issued)
                if frs[issued - 1][0] != s2: r[0] = ['BAR', s2] + r[0]
                items += r; issued += 1
            for q, it in enumerate(items):
                k = a + q * n // len(items)
                if it[0] == 'BAR':
                    s2 = it[1]
                    ex = bar_extra.get(s2, ((), ()))
                    b = Ins('s_barrier'); b.needs = ('LAZY', s2, list(ex[0]) + ([x for f in g for x in f.rd] if k == a else []))
                    gz[k - 1].append(b); used[k - 1] += 1 if k == a else 2
                    barpos[s2] = k - 1
                    pend.append((k - 1, list(extra_loads.get(s2, [])) + ([load_at[s2]] if s2 in load_at else []), ex[1]))
                    it = it[2:]
                if len(it) == 2: put(max(k - 1, 0), it[:1]); it = it[1:]
                put(k, it)
        class Chain:
            def __init__(c, items, start): c.q = list(items); c.rel = start; c.last = -1; c.cap = 2
        dl = []; dead = {}
        for (k, lds_, post) in pend:
            dl.append(('ATK', k + 1)); dl += list(post)
            for n in lds_:
                for g in dma_groups(n):
                    for x in g:
                        dl.append(x)
                        if x.kind == 'vmem': dead[id(x)] = (n, barpos.get(n, 10 ** 9 if n < NS else nm + opt.get('wdl', -100))); svc[id(x)] = SV * (2 if sum(len(g_) for g_ in slots[n].groups) == 6 else 1)
        chains = [Chain(dl, 0)] + [Chain(lst, slot_start[s] + off) for (s, off, lst) in fillers if lst]
        leads = {}
        pfree = 0.0
        def head(c, k):
            while c.q and isinstance(c.q[0], tuple):
                it = c.q[0]
                if c.rel > k: return None
                if opt.get('dbg') and it[0] in ('AT', 'BY'):
                    cs = max(x for x in slot_start if slot_start[x] <= k); print('   marker', it, 'reached at slot', cs, '+', k - slot_start[cs], file=sys.stderr)
                if it[0] == 'AT': c.rel = slot_start[it[1]] + it[2]
                elif it[0] == 'ATK': c.rel = it[1]
                elif it[0] == 'BY': assert k <= slot_start[it[1]], ('filler late', it, k, slot_start[it[1]])
                elif it[0] == 'CAP': c.cap = it[1]
                elif it[0] == 'SKIP': c.rel = k + it[1]
                c.q.pop(0)
            if not c.q or c.rel > k: return None
            return c.q[0]
        for k in range(nm):
            if not gm[k] and used[k] < 2:
                cand = []
                for n_, c in enumerate(chains):
                    x = head(c, k)
                    if x is None or isinstance(x, list) or not ismem(x) or c.last >= k: continue
                    if x.kind == 'ds':
                        if used[k] + x.cost > 2: continue
                    elif id(x) not in loud and pfree - k > opt.get('bl', 1.5): continue
                    pr = 1
                    if n_ == 0: pr = 0 if dead.get(id(x), (0, 0))[1] - k < opt.get('crit', 72) else 2
                    cand.append((pr, n_))
                if cand:
                    c = chains[min(cand)[1]]; x = c.q.pop(0); c.last = k
                    put(k, [x], x.cost if x.kind == 'ds' else 1)
                    if x.kind == 'vmem':
                        pfree = max(pfree, k + svc[id(x)]) if id(x) in loud else max(pfree, k) + svc.get(id(x), opt.get('svst', SV) if 'store' in x.op else SV)
                        if id(x) in dead and dead[id(x)][1] < 10 ** 9: leads[dead[id(x)][0]] = dead[id(x)][1] - k
            for c in chains:
                while True:
                    x = head(c, k)
                    if x is None or (not isinstance(x, list) and ismem(x)): break
                    it = x if isinstance(x, list) else [x]
                    cst = min(2, sum(y.cost for y in it))
                    if used[k] + cst > c.cap: break
                    c.q.pop(0); c.last = k; ga[k].extend(it); used[k] += cst
        left = [(x if isinstance(x, list) else [x]) for c in chains for x in c.q if not isinstance(x, tuple)]
        print('DMA leads:', ' '.join('%d:%d' % x for x in sorted(leads.items())), file=sys.stderr)
        assert min(v for n_, v in leads.items() if n_ < NS) > opt.get("minlead", 30)
        for k, (s, f, mt, g) in enumerate(mf):
            if hook: hook(k, s)
            c = f.acc(mt)
            nd = [x for f_ in g for x in f_.rd] + ([extra_need(f, mt)] if extra_need else [])
            P(Ins('v_mfma_f32_16x16x32_bf16 %s, %s, %s, %s' % (vr(c), vr(f.reg), f.b(mt), '0' if f.first else vr(c)), needs=nd))
            for x in gz[k]: x.needs = list(slots[x.needs[1]].loads) + list(x.needs[2])
            emit_all(gm[k] + ga[k] + gz[k])
        return left

    def mul(d, a_, b_): return Ins('v_mul_f32 v%d, v%d, v%d' % (d, a_, b_))
    def cvt(d, a_, b_): return Ins('v_cvt_pk_bf16_f32 v%d, v%d, v%d' % (d, a_, b_))
    kv_stores = []
    flat0 = lambda l: [y for x in l for y in x]
    def qkv_epi():
        rs = [Ins('ds_read_b128 %s, v%d offset:%d' % (vr(SP + 4 * mt), vRS, 256 * mt)) for mt in range(4)]
        L = list(rs) + [('SKIP', 6)]
        for mp in range(2):
            if mp: L += II(f's_add_u32 s{QM}, s{QM}, s{QM+2}')
            for c in range(2):
                if c: L += II(f's_add_u32 s{T2}, s{QM}, s{QC}')
                for ft in range(2):
                    te = ACCA + ((2 * c + ft) * 4 + 2 * mp) * 4; to = te + 4
                    for r in range(8):
                        x = mul(te + r, te + r, SP + 8 * mp + r); x.needs = [rs[2 * mp + r // 4]]; L.append(x)
                    L += [cvt(te, te, te + 1), cvt(te + 1, te + 2, te + 3), cvt(te + 2, to, to + 1), cvt(te + 3, to + 2, to + 3)]
                    st = Ins(f'buffer_store_dwordx4 {vr(te)}, v{vQS[0]}, {sr(SW)}, s{T2 if c else QM} offen offset:{1024*ft} sc1')
                    L.append(st); kv_stores.append(st)
        return L
    def l1_epi():
        L = II(f's_lshl_b32 s{T3}, s{FH}, 3\ns_add_u32 s{T3}, s{T3}, {HLONE}\nv_add_u32 v{SP+11}, s{T3}, v{vHW}')
        ws_ = []
        for mt in range(4):
            g0 = ACCA + mt * 4; u0 = ACCA + (4 + mt) * 4
            L += [mul(g0 + t, g0 + t, u0 + t) for t in range(4)] + [cvt(u0, g0, g0 + 1), cvt(u0 + 1, g0 + 2, g0 + 3)]
            w = Ins(f'ds_write_b64 v{SP+11}, {vr(u0,2)} offset:{1024*mt}'); ws_.append(w)
            if not opt.get('bw'): L.append(w)
        if opt.get('bw'): L += [('SKIP', 2), list(ws_)] if opt['bw'] == 1 else flat0([[('SKIP', 4), w] for w in ws_])
        L2 = II(f's_lshl_b32 s{T3}, s{FH}, 11\ns_add_u32 s{T3}, s{T3}, {HLONE}\nv_add_u32 v{SP+11}, s{T3}, v{vHW}')
        rd = [Ins(f'ds_read_b128 {vr(ACCA+4*m)}, v{SP+11} offset:{1024*m}') for m in range(2)]
        sts = [Ins(f'buffer_store_dwordx4 {vr(ACCA+4*m)}, v{vL16}, {sr(SW)}, s{HLN} offen offset:{1024*m} sc1', needs=[rd[m]]) for m in range(2)]
        return L, sts, ws_, L2 + rd + [('SKIP', 10)] + sts
    hw = {}
    def pair_epi(acc, q):
        L = II(f's_add_u32 s{ST}, s{HS}, {q*2*8192}\ns_lshl_b32 s{T1}, s{FH}, 13\ns_add_u32 s{T1}, s{T1}, {hphys[q]*SLOT}\nv_add_u32 v{SP+11}, s{T1}, v{vHW}')
        sts = []; hw[q] = []
        for mt in range(4):
            g0 = acc + mt * 4; g1 = acc + (4 + mt) * 4; u0 = acc + (8 + mt) * 4; u1 = acc + (12 + mt) * 4
            L += [mul(g0 + t, g0 + t, u0 + t) for t in range(4)]
            L += [mul(g1 + t, g1 + t, u1 + t) for t in range(4)]
            L += [cvt(u0, g0, g0 + 1), cvt(u0 + 1, g0 + 2, g0 + 3), cvt(u0 + 2, g1, g1 + 1), cvt(u0 + 3, g1 + 2, g1 + 3)]
            st = Ins(f'buffer_store_dwordx4 {vr(u0)}, v{vL16}, {sr(SW)}, s{ST} offen offset:{1024*mt} sc1')
            w = Ins(f'ds_write_b128 v{SP+11}, {vr(u0)} offset:{1024*mt}', cost=2)
            L += [st] if opt.get('bw') and q < 3 else [st, w]
            sts.append(st); hw[q].append(w)
        if opt.get('bw') and q < 3: L += [('SKIP', 2), list(hw[q])] if opt['bw'] == 1 else flat0([[('SKIP', opt['bw']), w] for w in hw[q]])
        return L, sts
    def d_epi(acc, q, cs=(0, 1)):
        L = []
        for c in cs:
            L.append(Ins(f's_sub_u32 s{ST}, s{PS}, {(2*q+c)*2*8192}'))
            for mt in range(4):
                t0 = acc + (8 * c + mt) * 4; t1 = acc + (8 * c + 4 + mt) * 4
                if mt == 2: L.append(Ins(f's_xor_b32 s{ST}, s{ST}, 2048'))
                L += [cvt(t0, t0, t0 + 1), cvt(t0 + 1, t0 + 2, t0 + 3), cvt(t0 + 2, t1, t1 + 1), cvt(t0 + 3, t1 + 2, t1 + 3)]
                L.append(Ins(f'buffer_store_dwordx4 {vr(t0)}, v{vL16}, {sr(SW)}, s{ST} offen offset:{1024*(mt&1)} sc1'))
        return L
    def poll_check(name, ld, test):
        g = [Ins(t, needs=[ld] if n == 0 else []) for n, t in enumerate(test)]
        g.append(Ins('s_cbranch_scc0 %s_slow' % name))
        g.append(Ins('%s_ok:' % name))
        S = Prog()
        S.label('%s_slow' % name)
        S('s_mov_b32 s%d, 400000' % SPN)
        S.label('%s_loop' % name)
        S('s_sleep 2')
        S(ld.text)
        S('s_waitcnt vmcnt(0)')
        S('s_sub_u32 s%d, s%d, 1' % (SPN, SPN))
        S('s_cbranch_scc1 %s_ok' % name)
        for t in test: S(t)
        S('s_cbranch_scc0 %s_loop' % name)
        S('s_branch %s_ok' % name)
        slow.append(S.text())
        return g
    def setflag(n, reg):
        return II(f'v_mov_b32 v{reg}, {n}\nbuffer_store_dword v{reg}, v{vFL}, {sr(SW)}, s{MYF} offen sc1')
    def hpoll(n, reg):
        ld = T(f'buffer_load_dword v{reg}, off, {sr(SW)}, s{PF} sc1')
        return ld, poll_check('h%d' % n, ld, [f'v_readfirstlane_b32 s{T2}, v{reg}', f's_cmp_ge_u32 s{T2}, {n}'])

    qe = qkv_epi()
    pe = [pair_epi(PACC[q], q) for q in range(4)]
    le = l1_epi()
    VREG = [ACCA + 4 * n for n in range(16)] + [SP + 4 * n for n in range(4)]
    G0M, G1M = 96, 98
    late = II(f'''s_mov_b32 s{SQ}, s8
    s_mov_b32 s{SQ+1}, s9
    s_mov_b32 s{SQ+2}, 0x{576*1152:x}
    s_mul_i32 s{T1}, s{T0}, {BLK//2}
    s_mul_i32 s{T2}, s{J}, 2304
    s_add_u32 s{T1}, s{T1}, s{T2}
    s_mov_b32 s{G0M}, 0xffff
    s_mov_b32 s{G0M+1}, 0
    s_mov_b32 s{G1M}, 0xffff0000
    s_mov_b32 s{G1M+1}, 0''')
    for a_ in range(5):
        late += II(f's_add_u32 s{KO+a_}, s{T1}, 0x{KOFF + (2*a_-9)*BLK:x}')
        if a_ < 4:
            late.append(II(f's_cmp_ge_u32 s{T0}, {16-4*a_}\ns_cselect_b32 s{KO+a_}, s{KO+a_}, 0x{OOB:x}\ns_cselect_b32 s{KB+a_}, 0, 0xf149'))
    a0, a1, a2, a3 = SP, SP + 1, SP + 2, SP + 3
    vTK, vQR, vTD_, vR0, vR1 = SP + 4, SP + 5, QF + 12, SP + 7, SP + 8
    late += II(f'''v_and_b32 v{a0}, 15, v{vL}
    v_lshrrev_b32 v{a1}, 4, v{vL}
    v_mov_b32 v{a3}, 0x{OOB:x}
    s_mul_i32 s{T2}, s{FH}, 1280
    s_add_u32 s{T3}, s{T2}, {BLK+144*256}
    v_add_u32 v{vKM}, s{T3}, v{vL16}
    v_lshlrev_b32 v{a1}, 4, v{a1}
    v_lshl_add_u32 v{a1}, v{a0}, 6, v{a1}
    s_add_u32 s{T3}, s{T2}, {BLK+73728}
    v_add_u32 v{vVM}, s{T3}, v{a1}
    s_lshl_b32 s{T2}, s{FH}, 7
    s_add_u32 s{T2}, s{T2}, {BLK+73728+1024}
    v_add_u32 v{a1}, s{T2}, v{a1}
    v_cmp_gt_u32 vcc, 2, v{a0}
    s_lshl_b32 s{T2}, s{FH}, 2
    s_add_u32 s{T2}, s{T2}, {BLK+148*256}
    v_lshlrev_b32 v{a2}, 4, v{a0}
    v_cndmask_b32 v{vVR}, v{a3}, v{a1}, vcc
    v_add_u32 v{a2}, s{T2}, v{a2}
    v_cmp_gt_u32 vcc, 32, v{vL}
    v_subrev_u32 v{a1}, {BLK-8}, v{a2}
    v_cndmask_b32 v{vR0}, v{a3}, v{a2}, {sr(G0M,2)}
    v_cndmask_b32 v{vQR}, v{a3}, v{a2}, vcc
    v_cndmask_b32 v{vR1}, v{a3}, v{a1}, {sr(G1M,2)}
    v_cndmask_b32 v{vKR}, v{vR0}, v{a1}, {sr(G1M,2)}
    v_and_b32 v{a0}, 3, v{a0}
    s_mul_i32 s{T2}, s{J}, 2304
    s_sub_u32 s{T2}, {BLK+110592}, s{T2}
    v_mov_b32 v{a2}, s{T2}
    v_cmp_eq_u32 vcc, 2, v{a0}
    v_mul_u32_u24 v{a0}, 3641, v{vL}
    v_lshrrev_b32 v{a0}, 16, v{a0}
    v_cndmask_b32 v{vVR}, v{vVR}, v{a2}, vcc
    v_lshlrev_b32 v{a1}, 7, v{vL}
    v_cmp_gt_u32 vcc, 41, v{vL}
    v_mul_u32_u24 v{a0}, {36864-18*128}, v{a0}
    v_lshl_add_u32 v{a0}, v{vL}, 7, v{a0}
    v_cndmask_b32 v{vTD_}, v{a3}, v{a1}, vcc
    v_cmp_gt_u32 vcc, 54, v{vL}
    s_nop 0
    s_nop 0
    v_cndmask_b32 v{vTK}, v{a3}, v{a0}, vcc''')
    kvld = T(f'buffer_load_dwordx4 {vr(SP+12)}, off, {sr(SB)}, s{DB} sc1', 32)
    kvtest = [f'v_readfirstlane_b32 s{T2}, v{SP+12}', f'v_readfirstlane_b32 s{T3}, v{SP+13}', f'v_readfirstlane_b32 s{T1}, v{SP+14}',
              f's_or_b32 s{T2}, s{T2}, s{N0}', f's_or_b32 s{T3}, s{T3}, s{N1}', f's_and_b32 s{T2}, s{T2}, s{T3}',
              f's_and_b32 s{T2}, s{T2}, s{T1}', f's_cmp_eq_u32 s{T2}, 0xffff']
    kv2pre = II(f'''v_lshlrev_b32 v{SP+9}, 7, v{vL}
    v_cmp_gt_u32 vcc, 48, v{vL}
    s_lshl_b32 s{DB}, s{I}, 11
    s_add_u32 s{DB}, s{DB}, 0x{FOFF-4096:x}
    v_cndmask_b32 v{SP+9}, v{a3}, v{SP+9}, vcc
    s_lshl_b32 s{N1}, s{N1}, 16
    s_or_b32 s{N1}, s{N1}, s{N0}''')
    kv2ld = T(f'buffer_load_dword v{SP+12}, v{SP+9}, {sr(SW)}, s{DB} offen sc1', 32)
    kv2test = [f'v_cmp_le_u32 vcc, 1, v{SP+12}', 's_nop 1', f's_or_b32 s{T2}, vcc_lo, s{N1}', f's_or_b32 s{T3}, vcc_hi, 0xffff0000', f's_and_b32 s{T2}, s{T2}, s{T3}', f's_cmp_eq_u32 s{T2}, -1']
    kvpre = II(f'''s_lshl_b32 s{T3}, s{I}, 2
    s_add_u32 s{T3}, s{T3}, s{Wv}
    s_mul_i32 s{T3}, s{T3}, {BLK}
    s_mul_i32 s{T2}, s{J}, 2304
    s_add_u32 s{T3}, s{T3}, s{T2}
    s_add_u32 s{T3}, s{T3}, 0x{KOFF:x}''')
    kvtouch = [T(f'buffer_load_dword v0, v{vTK}, {sr(SW)}, s{T3} offen')] if opt.get('kvt', 0) else []
    if JX > 2 and opt.get('kvt', 0):
        kvtouch += II(f's_sub_u32 s{T3}, s{T3}, {8*BLK}\ns_and_b32 s{T2}, s{I}, {32//JX-2}') + \
                   [II(f's_or_b32 s{T2}, s{T2}, s{N0}\ns_cselect_b32 s{T3}, 0x{OOB:x}, s{T3}'), T(f'buffer_load_dword v0, v{vTK}, {sr(SW)}, s{T3} offen')]
    kvtouch += [II(f's_getpc_b64 {sr(SB,2)}') + [Ins('K1_pc2:')]] + II(f'''s_mov_b32 s{SB+2}, code_end-K1_pc2
    s_and_b32 s{T2}, s{NN}, 7
    s_lshl_b32 s{T2}, s{T2}, 2
    s_add_u32 s{T2}, s{T2}, s{Wv}
    s_mul_i32 s{T2}, s{T2}, {10*128}
    v_lshlrev_b32 v{SP}, 7, v{vL}
    v_cmp_gt_u32 vcc, 10, v{vL}
    s_nop 0
    s_nop 0
    v_cndmask_b32 v{SP}, v{a3}, v{SP}, vcc''') + [T(f'buffer_load_dword v0, v{SP}, {sr(SB)}, s{T2} offen', 32)]
    qld = []; ql = []
    for a_ in range(2):
        l0 = Ins(f'buffer_load_dwordx4 {vr(QF+4*a_)}, v{vKM}, {sr(SW)}, s{T3} offen sc1')
        l1 = [Ins(f'buffer_load_dword v{QF+8+2*a_+h}, v{vQR}, {sr(SW)}, s{T3} offen offset:{8*h} sc1') for h in range(2)]
        ql += [Ins(f's_add_u32 s{T3}, s{KO+4}, {(a_*BLK - 36864) & 0xffffffff}'), l0, l1[0], l1[1]]; qld += [[l0, l1[0]], [l0, l1[1]]]
    km = []; kr = []; kl = []; vld = []; vl = []
    PACE = ('SKIP', 0)
    for b_ in range(11):
        so = Ins(f's_add_u32 s{T3}, s{KO+min(b_//2,4)}, {(b_-2*min(b_//2,4))*BLK}')
        r_ = Ins(f'buffer_load_dword a{6*b_}, v{vR0 if b_ == 0 else (vR1 if b_ == 10 else vKR)}, {sr(SW)}, s{T3} offen sc1'); kr.append(r_)
        kl += [so, r_, PACE]
        lo_, hi_ = b_ // 2, (b_ - 1) // 2
        nm_ = lambda q_: f's{KB+q_}' if 0 <= q_ < 4 else '0'
        if b_ <= 8: kl += II(f's_pack_ll_b32_b16 s{T2}, {nm_(lo_)}, {nm_(hi_)}\nv_accvgpr_write_b32 a{6*b_+1}, s{T2}')
        else: kl += II(f'v_accvgpr_write_b32 a{6*b_+1}, 0')
        if b_ < 10:
            m_ = Ins(f'buffer_load_dwordx4 {ar(6*b_+2)}, v{vKM}, {sr(SW)}, s{T3} offen sc1'); km.append(m_)
            kl += [m_, PACE]
    kld = [[km[u // 2], kr[(u + 1) // 2]] for u in range(20)]
    for v in range(10):
        a_ = Ins(f'buffer_load_dwordx4 {vr(VREG[2*v])}, v{vVM}, {sr(SW)}, s{T3} offen sc1')
        b_ = Ins(f'buffer_load_dwordx4 {vr(VREG[2*v+1])}, v{vVR}, {sr(SW)}, s{T3} offen sc1')
        vl.append([Ins(f's_add_u32 s{T3}, s{KO+v//2}, {(v%2)*BLK}'), a_, PACE, b_, PACE]); vld += [a_, b_]
    def vfix(v): return [Ins(f'v_or_b32 v{VREG[2*v+1]+r}, v{vONES}, v{VREG[2*v+1]+r}', needs=[vld[2 * v + 1]]) for r in range(4)]
    pfd = [T(f'buffer_load_dword v0, v{vTD_}, {sr(SD)}, s{PFD} offen offset:2048' + NT, opt.get('qd', 120))]
    if opt.get('nod') or opt.get('cls'): pfd = []
    pfw = II(f's_mul_i32 s{T2}, s2, {21*128}') + [II(f's_cmp_eq_u32 s{Wv}, 0\ns_cselect_b32 s{T2}, s{T2}, 0x{OOB:x}'), T(f'buffer_load_dword v0, v{vTD_}, {sr(SQ)}, s{T2} offen', 40)]
    if opt.get('nod'): pfw = []
    h1ld, h1chk = hpoll(2, vPFP)
    e_ = opt.get('ev', [8, 0, 26, 29, 38])
    flat = lambda l: [y for x in l for y in x]
    NV1 = opt.get('nv1', 3)
    cls_chain = []
    if opt.get('cls'):
        va, vs_ = QF + 13 - 9, QF + 13 - 8
        cls_chain = II(f'''v_lshrrev_b32 v{va}, 2, v{vL}
        v_mul_u32_u24 v{va}, 9216, v{va}
        v_bfe_u32 v{vs_}, v{vL}, 1, 1
        v_mul_u32_u24 v{vs_}, 1152, v{vs_}
        v_add_u32 v{va}, v{va}, v{vs_}
        v_and_b32 v{vs_}, 1, v{vL}
        v_lshl_add_u32 v{va}, v{vs_}, 10, v{va}
        v_cmp_gt_u32 {sr(DUM,2)}, 36, v{vL}
        v_mov_b32 v{va+2}, 0x{OOB:x}
        v_lshlrev_b32 v{vs_}, 8, v{vs_}
        v_cndmask_b32 v{va}, v{va+2}, v{va}, {sr(DUM,2)}
        v_sub_u32 v{vs_}, 128, v{vs_}
        s_lshr_b32 s{DUM}, s2, 5
        s_lshl_b32 s{DUM}, s{DUM}, 3
        s_and_b32 s{DUM+1}, s2, 7
        s_or_b32 s{DUM}, s{DUM}, s{DUM+1}
        s_mul_i32 s{PFP}, s{DUM}, {9*9216}
        s_mul_i32 s{DUM+1}, s{Wv}, 2304
        s_add_u32 s{PFP}, s{PFP}, s{DUM+1}
        s_and_b32 s{DUM}, s{NN}, 3''')
        sites_ = opt['cls']; qc = opt.get('qc', 24)
        for n, sl in enumerate(sites_):
            if sl: cls_chain += [('AT', sl - 1, 16)]
            if n < 6 and n % 2 == 0: cls_chain += II(f'v_add_u32 v{va}, v{va}, v{vs_}')
            if not sl: continue
            if n < 6:
                cls_chain += [II(f's_cmp_eq_u32 s{DUM}, {n % 4}\ns_cselect_b32 s{PFW}, s{PFP}, 0x{OOB:x}'), ('AT', sl, 0),
                              T(f'buffer_load_dword v0, v{va}, {sr([SG, SU][n % 2])}, s{PFW} offen offset:{2048 * (n % 2)}', qc)]
            else:
                cls_chain += [II(f's_cmp_eq_u32 s{DUM}, {n % 4}\ns_cselect_b32 s{PFW}, s{PFD}, 0x{OOB:x}'), ('AT', sl, 0),
                              T(f'buffer_load_dword v0, v{vTD_}, {sr(SD)}, s{PFW} offen offset:2048', qc)]
    fill1 = [(sl, 0, stamp('slot%d' % sl, True)) for sl in range(NSEG1)] + [
        (0, 0, r1[8:]),
        (1, 0, cls_chain),
        (0, 2, late0 + late0b + [('BY', 9), ('AT', 9, 4)] + qe + [('BY', 16)] + late + [kvld, ('AT', 18, 4)]
         + pe[0][0] + [('BY', 24), poll_check('kv', kvld, kvtest)] + kv2pre + [('AT', 24, 4)]
         + le[0] + [('BY', 26), ('AT', e_[2], 0), kv2ld] + [('AT', 27, 0)] + le[3] + [('AT', e_[3] - 1, 8), poll_check('kw', kv2ld, kv2test)] + kvpre + [('AT', e_[3], 0)] + pfd + pfw + kvtouch + [('BY', 33), ('AT', 33, 4)]
         + pe[1][0] + ql + [('BY', 42), ('AT', 42, 4)]
         + pe[2][0] + [('AT', 44, 0)] + kl + flat(vl[:NV1]) + [h1ld]),
    ]
    bx1 = {
        3: (r1, []),
        opt.get('kvf', 17): (kv_stores + [guard, ones_st], setflag(1, SP + 10)),
        27: (le[2], []),
        47: (pe[0][1] + le[1] + pe[1][1] + pe[2][1], setflag(2, SP + 10)),
    }
    extra_loads[3] = [5, 6, 7, 8, load_at.pop(2)]
    xmap = {}
    for n, x in enumerate(r1):
        ks = n // 2
        for mt in range(4): xmap[breg(ks, mt)] = r1[2 * ks + (mt & 1)] if mt >= 2 else None
    mark = {}
    def hook(k, s):
        if k == 0:
            P(f's_cmp_ge_u32 s{J}, 9')
            P('s_cbranch_scc1 qkv_v')
            mark['a'] = len(P.out)
        if s == 9 and 'b' not in mark:
            mark['b'] = len(P.out)
            P.label('qkv_e')
    left = segment(0, NSEG1, fill1, bx1, first_loads=list(range(NPRE, 5)), hook=hook, pre=r1[:8], extra_need=lambda f, mt: xmap[f.b(mt)])
    qrd = set(id(x) for n in range(9) for g in slots[n].groups for f in g for x in f.rd)
    K = Prog(); K.label('qkv_k'); nb_ = 0
    for x in P.out[mark['a']:mark['b']]:
        if x.kind == 'mfma' or id(x) in qrd or x.op == 's_nop': continue
        t = x.text
        if x.kind == 'label': K.label(t[:-1].replace('_e', 'k_e')); continue
        if x.op == 's_cbranch_scc1': t += 'k'
        if x.op == 's_waitcnt':
            if 'vmcnt' not in t: continue
            t = t.split(' lgkmcnt')[0]
        if x.op == 's_barrier':
            nb_ += 1
            if nb_ <= 3: K('s_waitcnt lgkmcnt(0)')
        K(t)
    K('s_waitcnt lgkmcnt(0)'); K('s_nop 4'); K('s_branch qkv_e')
    slow.append(K.text())
    alt = ['qkv_v:', f'    s_cmp_ge_u32 s{J}, 14', '    s_cbranch_scc1 qkv_k'] if opt.get('skip', 1) else ['qkv_v:']
    for x in P.out[mark['a']:mark['b']]:
        t = x.text
        if x.kind == 'label': alt.append(t.replace('_e:', 'v_e:')); continue
        if x.op == 's_cbranch_scc1': t += 'v'
        if x.kind == 'mfma':
            o = [y.strip() for y in t[len(x.op):].split(',')]
            t = '%s %s, %s, %s, %s' % (x.op, o[0], o[2], o[1], o[3])
        alt.append('    ' + t)
    alt.append('    s_branch qkv_e')
    slow.append('\n'.join(alt) + '\n')
    print('left after seg1:', len(left), file=sys.stderr)
    stamp('g1end')

    SREG = [80] + [ACCB + (tl * 4 + mt) * 4 for mt in range(4) for tl in (0, 1, 3, 2)]
    PR = [84, 88]; OM, OR_ = 96, 100; MF, ML = 104, 108
    noskip = lambda l: [x for x in l if not isinstance(x, tuple)]
    def qbuild(t):
        q = QF + 2 * t
        P(Ins(f'v_mov_b32 v{QW+2}, v{q}', needs=qld[t]))
        P(f'v_mov_b32 v{QW+3}, v{q+1}')
        P(f'v_cndmask_b32 v{QW}, 0, v{QF+8+t}, {sr(G0M,2)}')
        P(f'v_cndmask_b32 v{QW+4}, 0, v{QF+8+t}, {sr(G1M,2)}')
    P('v_mov_b32 v%d, 0x%x' % (vTA, NEG))
    P(f'v_mov_b32 v{QW+1}, 0x3f80')
    P(f'v_mov_b32 v{QW+5}, 0x3f800000')
    qbuild(0)
    pq = list(pe[3][0])
    for r in range(4):
        P('v_cmp_lt_i32 vcc, %d, v%d' % (-r, vDG))
        P(pq.pop(0)); P(pq.pop(0))
        P('v_cndmask_b32 v%d, v%d, 0, vcc' % (MF + r, vTA))
        P('v_cndmask_b32 v%d, 0, v%d, vcc' % (ML + r, vTA))
    P(f's_cmp_eq_u32 s{FH}, 0')
    P('s_cselect_b64 vcc, -1, 0')
    P(f's_xor_b32 s{N0}, s{C}, 0x80000000')
    hld = {}
    def hload(k):
        if isinstance(k, tuple):
            ka, kb = k
            pre = II(f's_mul_i32 s{T2}, s{FH}, {(ka-kb)*8192}\ns_add_u32 s{T2}, s{T2}, s{HL}\ns_add_u32 s{T2}, s{T2}, {(17-ka)*8192}') if ka != kb else II(f's_add_u32 s{T2}, s{HL}, {(17-ka)*8192}')
            tx = lambda kk, mt: f'buffer_load_dwordx4 {breg(hpos[kk], mt)}, v{vL16}, {sr(SW)}, s{T2} offen offset:{1024*mt} sc1'
            ld = [Ins(tx(ka, mt)) for mt in range(4)]
            hld[ka] = [ld[3]] * 4; hld[kb] = [ld[3]] * 4
            if ka == kb: return [pre + ld[:1], ld[1:2], ld[2:3], ld[3:]]
            return [(pre if h == 0 else []) + alt_site(ld[2*h:2*h+2], [tx(kb, 2*h), tx(kb, 2*h+1)]) for h in range(2)]
        base = HLONE if k == 8 else hphys[k // 2] * SLOT + (k & 1) * 8192
        hld[k] = [Ins(f'ds_read_b128 {breg(hpos[k], mt)}, v{vONES} offset:{1024*mt}') for mt in range(4)]
        return [II(f'v_add_u32 v{vONES}, {base}, v{vHW}') + hld[k][:2], hld[k][2:]]
    def qk(t, sg):
        u = t + sg
        c = vr(MF) if sg == 0 else (vr(ML) if sg == 16 else '0')
        return Ins('v_mfma_f32_16x16x32_bf16 %s, %s, %s, %s' % (vr(SREG[sg]), ar(3 * u + (u & 1)), vr(QW + 2 * (u & 1)), c), needs=kld[u])
    def mx(sg, dst):
        s = SREG[sg]
        if sg == 0: return II('v_max3_f32 v%d, v%d, v%d, v%d\nv_max_f32 v%d, v%d, v%d' % (dst, s, s + 1, s + 2, dst, dst, s + 3))
        return II('v_max3_f32 v%d, v%d, v%d, v%d\nv_max3_f32 v%d, v%d, v%d, v%d' % (dst, dst, s, s + 1, dst, dst, s + 2, s + 3))
    lk = [x for x in left if any(y in km or y in kr for y in x)]
    if lk:
        n = left.index(lk[-1]) + 1; emit_all(left[:n]); left = left[n:]
    P(qk(0, 0))
    nq = 1; avail = 1; nmx = 0
    while pq:
        x = pq.pop(0); P(x)
        if x.kind == 'ds': avail += 4
        elif nq < avail and len(pq) % 2 == 0: P(qk(0, nq)); nq += 1
    def bunch(l):
        out = []; cur = []
        for x in l:
            cur += x
            if any(y.kind == 'vmem' for y in x): out.append(cur); cur = []
        assert not cur
        return out
    isdma = lambda x: any(' lds' in y.text or f's{OFF},' in y.text.split()[1] or 'm0' in y.text or f's{BD},' in y.text.split()[1] for y in x)
    ldma = bunch([x for x in left if isdma(x)])
    lv = bunch([x for x in left if not isdma(x)] + [[x] for v in range(NV1, 10) for x in noskip(vl[v])])
    while nq < 17:
        P(qk(0, nq)); nq += 1
        emit_all(mx(nmx, vMN)); nmx += 1
    while nmx < 17:
        if len(lv) > 12 and nmx % 2: emit_all(lv.pop(0))
        emit_all(mx(nmx, vMN)); nmx += 1
    while len(lv) > 12: emit_all(lv.pop(0))
    qbuild(1)
    stamp('attk')
    ow = []
    def o_epi(t):
        P('v_rcp_f32 v%d, v%d' % (vTA, OR_ + 2))
        for r in range(4): P(mul(OM + r, OM + r, vTA))
        for r in range(2): P(mul(OR_ + r, OR_ + r, vTA))
        P(cvt(QF + 2 * t, OM, OM + 1)); P(cvt(QF + 2 * t + 1, OM + 2, OM + 3)); P(cvt(QF + 8 + t, OR_, OR_ + 1))
    ofl = II(f'''s_lshl_b32 s{T2}, s{FH}, 3
    s_add_u32 s{T2}, s{T2}, {HLONE}
    v_add_u32 v{vTB}, s{T2}, v{vHW}
    s_lshl_b32 s{T2}, s{RG}, 9
    s_lshl_b32 s{T3}, s{FH}, 2
    s_add_u32 s{T2}, s{T2}, s{T3}
    s_add_u32 s{T2}, s{T2}, {RT4}
    v_lshlrev_b32 v{vTA}, 3, v{vL}
    v_add_u32 v{vMX}, 4096, v{vTA}
    v_cndmask_b32 v{vTA}, v{vMX}, v{vTA}, {sr(G0M,2)}
    v_add_u32 v{vTA}, s{T2}, v{vTA}''')
    for t in range(4):
        ow += [Ins(f'ds_write_b64 v{vTB}, {vr(QF+2*t,2)} offset:{1024*t}'), Ins(f'ds_write_b32 v{vTA}, v{QF+8+t} offset:{128*t}')]
    ofl += ow
    h2ld, h2chk = hpoll(3, vPFP)
    hplan = opt.get('hplan', {0: [0, 1, 2, 3, 4, 5], 1: [(16, 17), (14, 15), (12, 13), (9, 9)], 2: [(17, 16), (15, 14), (13, 12), 8], 3: [(10, 11), (11, 10)]})
    if opt.get('plain', 1): hplan = {0: [0, 1, 2, 3, 4, 5], 1: [(16, 16), (17, 17), (14, 14), (15, 15)], 2: [(12, 12), (13, 13), (9, 9), 8], 3: [(10, 10), (11, 11)]}
    for t in range(4):
        stamp('att%d' % t)
        P('v_mov_b32 v%d, v%d' % (vTA, vMN))
        P('v_permlane16_swap_b32 v%d, v%d' % (vTA, vMN))
        P('v_max_f32 v%d, v%d, v%d' % (vMN, vMN, vTA))
        P('v_mov_b32 v%d, v%d' % (vTA, vMN))
        P('v_permlane32_swap_b32 v%d, v%d' % (vTA, vMN))
        P('v_max_f32 v%d, v%d, v%d' % (vMN, vMN, vTA))
        P(f'v_mul_f32 v{vMX}, s{N0}, v{vMN}')
        if t == 1:
            P(Ins('s_barrier', needs=pe[3][1] + hw[3] + [x for k in range(6) for x in hld[k]]))
            ad = bunch(flat([dma_groups(n) for n in att_loads[:sum(opt.get('na', [0, 4, 6, 10])) // 4]]))
            emit_all(setflag(3, vPFS))
            emit_all(h1chk)
        if t == 3:
            P(Ins('s_barrier', needs=slots[NSEG1].loads + hld[8]))
            emit_all(h2chk)
        bq = flat([hload(k) for k in hplan[t]])
        def mix(a_, b_):
            out = []; a_ = list(a_); b_ = list(b_)
            while a_ or b_:
                if a_: out.append(a_.pop(0))
                if b_: out.append(b_.pop(0))
            return out
        if t == 0: bq = mix(lv + ldma, bq)
        else:
            na = opt.get('na', [0, 4, 6, 10])[t]
            bq = mix(bq, ad[:na]) if t < 3 or opt.get('plain', 1) else bq[:2] + ad[:na] + bq[2:]
            ad = ad[na:]
        ppv = []; pqk = []; pmx = []
        for b in range(9):
            v = (t >> 1) + b
            sgs = [2 * v - t, 2 * v + 1 - t]
            val = [sg for sg in sgs if 0 <= sg <= 16]
            p = PR[b % 2]
            for sg in val:
                for r in (0, 2):
                    s = SREG[sg] + r
                    P(f'v_pk_fma_f32 {vr(s,2)}, {vr(s,2)}, {sr(C,2)}, {vr(vMX,2)} op_sel_hi:[1,0,0]')
            mfs = ppv + [qk(t + 1, g_) for g_ in pqk]
            nb = (len(bq) + (8 - b)) // (9 - b)
            def withmem(x):
                nonlocal nb
                g = []
                if nb: g = bq.pop(0); nb -= 1
                n0 = 0
                while n0 < len(g) and g[n0].kind in ('salu', 'valu') and not g[n0].op.startswith('s_cbranch'): n0 += 1
                emit_all(g[:n0]); P(x); emit_all(g[n0:])
            for sg in val:
                for r in range(4):
                    P('v_exp_f32 v%d, v%d' % (SREG[sg] + r, SREG[sg] + r))
                    if mfs and (not opt.get('spr') or r % 2 == 0 or len(val) == 1): withmem(mfs.pop(0))
            while mfs: withmem(mfs.pop(0))
            nb += 1
            for g_ in pmx: emit_all(mx(g_, vMN))
            for hh, sg in enumerate(sgs):
                if sg in val:
                    s = SREG[sg]
                    P(cvt(p + 2 * hh, s, s + 1)); P(cvt(p + 2 * hh + 1, s + 2, s + 3))
                else:
                    P('v_mov_b32 v%d, 0' % (p + 2 * hh)); P('v_mov_b32 v%d, 0' % (p + 2 * hh + 1))
            for _ in range(nb - 1): emit_all(bq.pop(0))
            pmx = pqk; pqk = val if t < 3 else []
            ppv = [Ins('v_mfma_f32_16x16x32_bf16 %s, %s, %s, %s' % (vr(OM), vr(VREG[2 * v]), vr(p), '0' if b == 0 else vr(OM)), needs=[vld[2 * v]]),
                   Ins('v_mfma_f32_16x16x32_bf16 %s, %s, %s, %s' % (vr(OR_), vr(VREG[2 * v + 1]), vr(p), '0' if b == 0 else vr(OR_)), needs=[vld[2 * v + 1]])]
            if t == 2 and b == 5: P(h2ld)
        assert not bq
        tail = flat([mx(g_, vMN) for g_ in pmx])
        for x in [qk(t + 1, g_) for g_ in pqk] + ppv:
            P(x)
            if tail: P(tail.pop(0))
        emit_all(tail)
        if t < 2: qbuild(t + 2)
        for g_ in pqk: emit_all(mx(g_, vMN))
        if t < 3: o_epi(t)
    stamp('attend')

    own = flat(flat([hload(k) for k in (6, 7)]))
    bmap = {}
    for k in hld:
        for mt in range(4): bmap[breg(hpos[k], mt)] = hld[k][mt]
    def restage(dst, sbase, stride, T3=T3):
        L = II(f's_lshl_b32 s{T3}, s{FH}, 11\ns_add_u32 s{T3}, s{T3}, {HLONE}\nv_add_u32 v{vTB}, s{T3}, v{vHW}')
        rd = [Ins(f'ds_read_b128 {vr(dst+4*m)}, v{vTB} offset:{1024*m}') for m in range(2)]
        L += rd + II(f's_add_u32 s{T3}, s{sbase}, {stride}') + [('SKIP', 8)]
        L += [Ins(f'buffer_store_dwordx4 {vr(dst+4*m)}, v{vL16}, {sr(SW)}, s{[sbase, T3][m]} offen sc1', needs=[rd[m]]) for m in range(2)]
        return L, rd
    oe, ord_ = restage(QF, OB, 18432)
    rr = Ins(f'ds_read_b128 {vr(QF+8)}, v{vTA}')
    oe += II(f'v_add_u32 v{vTA}, {RT4}, v{vL16}') + [rr] + II(f'v_lshrrev_b32 v{vTA}, 3, v{vL}\nv_mul_u32_u24 v{vTA}, {18432-128}, v{vTA}\nv_add_u32 v{vTA}, v{vTA}, v{vL16}') + [('SKIP', 8)]
    oe += [Ins(f'buffer_store_dwordx4 {vr(QF+8)}, v{vTA}, {sr(SW)}, s{OR} offen sc1', needs=[rr])]
    l2e = II(f's_lshl_b32 s{T3}, s{FH}, 3\ns_add_u32 s{T3}, s{T3}, {HLONE}\nv_add_u32 v{vTB}, s{T3}, v{vHW}'); l2w = []
    for mt in range(4):
        t0 = SP + mt * 4
        w = Ins(f'ds_write_b64 v{vTB}, {vr(t0,2)} offset:{1024*mt}'); l2w.append(w)
        l2e += [cvt(t0, t0, t0 + 1), cvt(t0 + 1, t0 + 2, t0 + 3), w]
    l2s, _ = restage(SP, PLN, 1024, T1)
    def task_params(second):
        ln = II(f's_lshl_b32 s{T2}, s{Pp}, 2\ns_lshr_b32 s{T1}, 0x54108732, s{T2}\ns_and_b32 s{T1}, s{T1}, 15\ns_lshr_b32 s{TV}, 0x56557777, s{T2}\ns_and_b32 s{TV}, s{TV}, 15\ns_movk_i32 s{TM}, 0x5555')
        ln += [II(f's_cmp_gt_u32 s{T1}, 4\ns_cselect_b32 s{T2}, 1, 0'), Ins(f's_lshl_b32 s{TM}, s{TM}, s{T2}'), II(f's_cmp_eq_u32 s{T1}, 4\ns_cselect_b32 s{TM}, 0xffff, s{TM}'), Ins(f's_bitset0_b32 s{TM}, s{J}')]
        return ln + II(f'''s_lshl_b32 s{TL}, s{T1}, 7
        s_lshl_b32 s{T2}, s{E}, 2
        s_add_u32 s{T2}, s{T2}, s{Wv}
        s_lshl_b32 s{TP}, s{T2}, 10
        s_lshl_b32 s{T1}, s{T1}, 14
        s_sub_u32 s{TP}, s{TP}, s{T1}
        s_mul_i32 s{T1}, s{I}, {8*18*8192}
        s_add_u32 s{TP}, s{TP}, s{T1}
        s_lshl_b32 s{T1}, s{I}, 3
        s_add_u32 s{T2}, s{T2}, s{T1}
        s_mul_i32 s{OL}, s{T2}, 18432
        s_add_u32 s{TX}, s{OL}, s{TL}
        s_mul_i32 s{T1}, s{Wv}, {36*1152}
        s_add_u32 s{TL}, s{TL}, s{T1}''')
    tsetup = II(f'''s_mov_b32 s{SG}, s8
    s_mov_b32 s{SG+1}, s9
    s_mov_b32 s{SG+2}, 0x{576*1152:x}
    s_mov_b32 s{SU}, s{OUTP}
    s_mov_b32 s{SU+1}, s{OUTP+1}
    s_mov_b32 s{SU+2}, 0x{2048*1152:x}
    s_lshl_b32 s{FB}, s{I}, 11
    s_add_u32 s{FB}, s{FB}, 0x{FOFF:x}
    s_mov_b32 s{LO}, 0x00003f80
    s_mov_b32 s{HI}, 0x3f800000''') + task_params(False)
    for t, row in enumerate((0, 8, 20, 28)): tsetup += II(f'v_add_u32 v{vWD[t]}, {(row*1152 - 1024*t - 2048) & 0xffffffff}, v{vDD[0]}')
    tsetup += II(f'''v_lshrrev_b32 v{vWD2}, 5, v{vL}
    v_mul_u32_u24 v{vWD2}, {32*1152}, v{vWD2}
    v_add_u32 v{vWD2}, v{vWD2}, v{vWD[0]}
    v_add_u32 v{vWD2}, {16*1152}, v{vWD2}
    v_and_b32 v{vWT[0]}, 0xffff, v{vTD[0]}
    s_lshl_b32 s{T2}, s{FH}, 6
    v_xor_b32 v{vWT[0]}, s{T2}, v{vWT[0]}
    v_xor_b32 v{vWT[1]}, 32, v{vWT[0]}
    v_xor_b32 v{vWT[2]}, 64, v{vWT[0]}
    v_xor_b32 v{vWT[3]}, 0x60, v{vWT[0]}
    v_lshlrev_b32 v{vPL}, 3, v{vOR}
    v_and_b32 v{vMX}, 15, v{vL}
    v_mul_u32_u24 v{vDG}, 1152, v{vMX}
    v_bfe_u32 v{vMN}, v{vL}, 4, 1
    v_lshl_add_u32 v{vDG}, v{vMN}, 5, v{vDG}
    v_lshrrev_b32 v{vMN}, 5, v{vL}
    v_lshl_add_u32 v{vDG}, v{vMN}, 4, v{vDG}
    s_lshl_b32 s{T2}, s{E}, 2
    s_add_u32 s{T2}, s{T2}, s{Wv}
    s_lshl_b32 s{T2}, s{T2}, 8
    s_lshr_b32 s{T3}, s{ROT}, 2
    s_xor_b32 s{T2}, s{T2}, s{T3}
    s_add_u32 s{T2}, s{T2}, {RTB}
    v_lshlrev_b32 v{vMX}, 2, v{vMX}
    v_add_u32 v{vMX}, s{T2}, v{vMX}''')
    rrd = Ins(f'ds_read_b32 v{vMX}, v{vMX}')
    tsetup += [rrd, ('SKIP', 8), Ins(f'v_mul_f32 v{vMX}, v{vMX}, v{vMX}', needs=[rrd]), Ins(f'v_mul_f32 v{vMN}, 0x{f2u(-1.4426950408889634):x}, v{vMX}')]
    fl_t = f'buffer_load_dword v{vPFP}, v{vPL}, {sr(SW)}, s{FB} offen sc1'
    o3ld = T(fl_t, 24)
    o3chk = poll_check('o3', o3ld, [f'v_cmp_le_u32 vcc, 4, v{vPFP}', 's_nop 1', 's_cmp_eq_u32 vcc_lo, 0xffff'])
    d5ld = T(fl_t, 8)
    ct3 = [II(f's_getpc_b64 {sr(SB,2)}') + [Ins('K1_pc3:')]] + II(f'''s_mov_b32 s{SB+2}, code_end-K1_pc3
    s_and_b32 s{T2}, s{NN}, 7
    s_lshl_b32 s{T2}, s{T2}, 2
    s_add_u32 s{T2}, s{T2}, s{Wv}
    s_mul_i32 s{T2}, s{T2}, {9*128}
    v_cmp_gt_u32 vcc, 9, v{vL}
    v_mov_b32 v{vTA}, 0x{OOB:x}
    s_nop 0
    v_cndmask_b32 v{vTA}, v{vTA}, v{vPL}, vcc''') + [T(f'buffer_load_dword v0, v{vTA}, {sr(SB)}, s{T2} offen', 24)]
    ct3 += II(f'''v_mul_u32_u24 v{vTA}, 1152, v{vL}
    v_subrev_u32 v{vTB}, {9*1152-128}, v{vTA}
    v_cmp_gt_u32 vcc, 9, v{vL}
    s_and_b32 s{T2}, s{I}, 7
    s_lshl_b32 s{T2}, s{T2}, 1
    v_cndmask_b32 v{vTA}, v{vTB}, v{vTA}, vcc
    s_add_u32 s{T2}, s{T2}, s{E}
    s_mul_i32 s{T2}, s{T2}, {36*1152}
    s_add_u32 s{T2}, s{T2}, s{TL}
    s_mul_i32 s{T3}, s{Wv}, {27*1152}
    s_sub_u32 s{T2}, s{T2}, s{T3}''') + [II(f's_cmp_ge_u32 s{J}, 14\ns_cselect_b32 s{T3}, 18, 9')] + II(f'''v_cmp_gt_u32 vcc, s{T3}, v{vL}
    v_mov_b32 v{vTB}, 0x{OOB:x}
    s_nop 0
    v_cndmask_b32 v{vTA}, v{vTB}, v{vTA}, vcc''') + [T(f'buffer_load_dword v0, v{vTA}, {sr(SG)}, s{T2} offen', 24)]
    if opt.get('nowt', 1): ct3 = ct3[:-17]
    OA = 160
    old = []; ol = II(f'v_lshlrev_b32 v{vTA}, 3, v{vL}')
    for k in range(18):
        if k == 8: ol += [('AT', NSEG1 + 14, 0)]
        if k == 16: ol += [('AT', NSEG1 + 15, 0)]
        if k % 4 == 0: ol += II(f's_add_u32 s{T3}, s{OL}, 0x{OOFF + k*1024:x}')
        if k < 16: x = [Ins(f'buffer_load_dwordx4 {ar(OA+4*k)}, v{vL16}, {sr(SW)}, s{T3} offen offset:{1024*(k%4)} sc1')]
        else: x = [Ins(f'buffer_load_dwordx2 {ar(OA+4*k+2*h,2)}, v{vTA}, {sr(SW)}, s{T3} offen offset:{1024*(k%4)+512*h} sc1') for h in range(2)]
        ol += x; old.append(x[-1])
    XR2 = SP + 8
    xt_ = lambda u: f'buffer_load_dwordx4 {vr(XR2+4*u)}, v{vDG}, {sr(SX)}, s{TX} offen offset:{64*u}'
    xld = [Ins(xt_(u)) for u in range(2)]
    de0 = d_epi(ACCA, 0); st0 = [x for x in de0 if x.kind == 'vmem']; stl = [x for x in l2s if not isinstance(x, tuple) and x.kind == 'vmem']
    ost = [x for x in oe if not isinstance(x, tuple) and x.kind == 'vmem']
    de1a = d_epi(ACCB, 1, (0,)); de1b = d_epi(ACCB, 1, (1,)); st1 = [x for x in de1a + de1b if x.kind == 'vmem']
    for x in st1 + stl: loud.add(id(x)); svc[id(x)] = 3
    fill2 = [(sl, 0, stamp('slot%d' % sl, True)) for sl in range(NSEG1, NS)] + [
        (NSEG1, 0, ofl + [('AT', NSEG1 + 2, 0)] + oe + tsetup + ct3 + [('BY', NSEG1 + 9), ('AT', NSEG1 + 9, 4)] + de0 + [o3ld, ('AT', NSEG1 + 12, 4)] + l2e + [('BY', NSEG1 + 14)]
         + [('AT', NSEG1 + 13, 0), o3chk] + ol),
        (NS - 1, 19, de1a), (NSEG1 + 15, 0, l2s),
        (NSEG1, 1, own)]
    bx2 = {NSEG1 + 2: (ow, []), NSEG1 + 3: (hld[6] + hld[7], [])}
    bx2[NSEG1 + 7] = (ost, setflag(4, vPFS)); bx2[NSEG1 + 15] = (l2w + st0, setflag(5, vPFS)); bx2[NSEG1 + 18] = (stl, setflag(6, vPFS))
    left = segment(NSEG1, NS, fill2, bx2, first_loads=att_loads[sum(opt.get('na', [0, 4, 6, 10])) // 4:], extra_need=lambda f, mt: bmap[f.b(mt)], pre=lambda: o_epi(3))
    print('left after seg2:', len(left), file=sys.stderr)
    stamp('g2end')
    tq = flat(left) + de1b + xld
    def wo_gemm(P, acc, need_o, bg_=None, ph=None):
        ph = ph or [phys[n] for n in range(NS, NSX)]
        rds = {}
        wwin = [0]
        def rd(n):
            k, dt = divmod(n, 4)
            w, o = divmod(ph[k // 4] * SLOT, 65536)
            if w != wwin[0]:
                for d in range(4): P('v_add_u32 v%d, 0x%x, v%d' % (vWT[d], ((w - wwin[0]) * 65536) & 0xffffffff, vWT[d]))
                wwin[0] = w
            f = FR + 4 * (n % 8)
            rds[n] = [P('ds_read_b64_tr_b16 %s, v%d offset:%d' % (vr(f + 2 * h, 2), vWT[dt], o + (k % 4) * 4096 + 2048 * h)) for h in range(2)]
        for n in range(7): rd(n)
        for n in range(72):
            k, dt = divmod(n, 4)
            nd = rds[n] + (rds[n + 1] if n % 2 == 0 else []) + ([old[k]] if need_o else [])
            P(Ins('v_mfma_f32_16x16x32_bf16 %s, %s, %s, %s' % (vr(acc + 4 * dt), vr(FR + 4 * (n % 8)), ar(OA + 4 * k), '0' if k == 0 else vr(acc + 4 * dt)), needs=nd))
            if n + 7 < 72: rd(n + 7)
            if bg_: bg_(n)
        for d in range(4):
            if wwin[0]: P('v_add_u32 v%d, 0x%x, v%d' % (vWT[d], (-wwin[0] * 65536) & 0xffffffff, vWT[d]))
    def ploads(P, dst, extra=0):
        pl = []
        for p in range(8):
            for u in range(2):
                P(f's_add_u32 s{T3}, s{TP}, 0x{POFF + (p*18+17-u)*8192 - extra:x}')
                pl.append(P(f'buffer_load_dwordx4 {vr(dst+8*p+4*u)}, v{vL16}, {sr(SW)}, s{T3} offen sc1'))
        return pl
    def fmath(P, acc, src0, pl, xr, xl_, imm, bg_=None):
        SUM, TT = FR, FR + 16
        for p in range(8):
            for u in range(2):
                for q in range(4):
                    src = src0 + 8 * p + 4 * u + q; d = SUM + 8 * u + 2 * q
                    P(Ins(f'v_dot2_f32_bf16 v{d}, v{src}, s{LO}, ' + ('0' if p == 0 else f'v{d}'), needs=[pl[2 * p + u]]))
                    P(f'v_dot2_f32_bf16 v{d+1}, v{src}, s{HI}, ' + ('0' if p == 0 else f'v{d+1}'))
                if bg_: bg_(2 * p + u)
        for r in range(0, 16, 2): P(f'v_pk_mul_f32 {vr(TT+r,2)}, {vr(SUM+r,2)}, {vr(vMX,2)} op_sel:[0,1] op_sel_hi:[1,1]')
        for r in range(16): P(f'v_exp_f32 v{TT+r}, v{TT+r}')
        for r in range(0, 16, 2): P(f'v_pk_mul_f32 {vr(acc+r,2)}, {vr(acc+r,2)}, {vr(SUM+r,2)}')
        for r in range(0, 16, 2): P(f'v_pk_add_f32 {vr(TT+r,2)}, {vr(TT+r,2)}, 1.0 op_sel_hi:[1,0]')
        for r in range(16): P(f'v_rcp_f32 v{TT+r}, v{TT+r}')
        for r in range(0, 16, 2): P(f'v_pk_mul_f32 {vr(acc+r,2)}, {vr(acc+r,2)}, {vr(TT+r,2)}')
        for u in range(2):
            for r in range(4): P(f'v_permlane16_swap_b32 v{acc+8*u+r}, v{acc+8*u+4+r}')
        for u in range(2):
            for q in range(4):
                d = acc + 8 * u + 2 * q
                P(Ins(f'v_dot2c_f32_bf16 v{d}, s{LO}, v{xr+4*u+q}', needs=[xl_[u]]))
                P(f'v_dot2c_f32_bf16 v{d+1}, s{HI}, v{xr+4*u+q}')
        for u in range(2):
            for q in range(4): P(cvt(xr + 4 * u + q, acc + 8 * u + 2 * q, acc + 8 * u + 2 * q + 1))
            P(f'buffer_store_dwordx4 {vr(xr+4*u)}, v{vDG}, {sr(SU)}, s{TX} offen offset:{64*u+imm} ' + opt.get('ost', 'sc1'))
    def scale_s(P, acc):
        for r in range(0, 16, 2): P(f'v_pk_mul_f32 {vr(acc+r,2)}, {vr(acc+r,2)}, {vr(vMX,2)} op_sel_hi:[1,0]')
    ftest = [f'v_cmp_le_u32 vcc, s{TV}, v{vPFP}', 's_nop 1', f's_and_b32 s{T2}, vcc_lo, s{TM}', f's_cmp_eq_u32 s{T2}, s{TM}']
    P(Ins('s_barrier', needs=[x for n in range(NS, NSX) for x in slots[n].loads]))
    while tq and any(x in ol for x in tq): P(tq.pop(0))
    P(f's_cmp_ge_u32 s{J}, 14')
    P('s_cbranch_scc1 dbl')
    S = P.fork(); tq2 = [Ins(x.text) for x in tq]
    st2 = [x for x in st1 if x.cnt is not None] + [x for x in tq2 if 'store' in x.op]
    f1 = Ins(fl_t)
    def bgt(n):
        for _ in range(2):
            if tq: P(tq.pop(0))
        if n == opt.get('nf', 48):
            P(Ins('s_barrier', needs=st1))
            P(f1)
            emit_all(setflag(7, vPFS))
    wo_gemm(P, XT, True, bgt)
    assert not tq
    stamp('wo')
    scale_s(P, XT)
    P(Ins(ftest[0], needs=[f1]))
    P('s_nop 1')
    pl = [None] * 16
    porder = opt.get('porder', [7, 6, 5, 4, 0, 1, 2, 3])
    for p in porder:
        chk = [f's_andn2_b32 s{T2}, s{TM}, vcc_lo', f's_and_b32 s{T2}, s{T2}, {3 << (2 * p)}']
        for t_ in chk: P(t_)
        P(f's_cbranch_scc1 fp{p}_slow')
        P.label(f'fp{p}_ok')
        Z = Prog(); Z.label(f'fp{p}_slow'); Z(f's_mov_b32 s{SPN}, 400000'); Z.label(f'fp{p}_loop')
        Z(fl_t); Z('s_waitcnt vmcnt(0)'); Z(ftest[0]); Z(f's_sub_u32 s{SPN}, s{SPN}, 1'); Z(f's_cbranch_scc1 fp{p}_ok')
        for t_ in chk: Z(t_)
        Z(f's_cbranch_scc1 fp{p}_loop'); Z(f's_branch fp{p}_ok'); slow.append(Z.text())
        for u in range(2):
            P(f's_add_u32 s{T3}, s{TP}, 0x{POFF + (p*18+17-u)*8192:x}')
            pl[2 * porder.index(p) + u] = P(f'buffer_load_dwordx4 {vr(ACCA+8*porder.index(p)+4*u)}, v{vL16}, {sr(SW)}, s{T3} offen sc1')
    stamp('poll')
    fmath(P, XT, ACCA, pl, XR2, xld, 0)
    stamp('x1')
    P.label('dbl_e')
    stamp('x2')
    S.label('dbl')
    ph2 = [x for x in range(9) if x not in [phys[n] for n in range(NS, NSX)]] + [9]
    wq = [II(f's_add_u32 s{TL}, s{TL}, 128')] + bunch(flat([slots[NS + n].dma(ph2[n]) for n in range(5)]))
    wl = [x for g in wq for x in g if x.kind == 'vmem']
    def pl_(dst, extra): return [II(f's_add_u32 s{T3}, s{TP}, 0x{POFF + (p*18+17-u)*8192 - extra:x}\nbuffer_load_dwordx4 {vr(dst+8*p+4*u)}, v{vL16}, {sr(SW)}, s{T3} offen sc1') for p in range(8) for u in range(2)]
    qa = pl_(ACCA, 0); qb = pl_(ACCB, 16384); pa = [g[1] for g in qa]; pb = [g[1] for g in qb]
    x2 = [Ins(f'buffer_load_dwordx4 {vr(SP+4*u)}, v{vDG}, {sr(SX)}, s{TX} offen offset:{128+64*u}') for u in range(2)]
    mq = wq[:10] + [[d5ld]] + wq[10:] + [[x] for x in x2] + [poll_check('d5', d5ld, ftest) + qa[0]] + qa[1:] + qb
    def pop():
        if mq:
            for x in mq.pop(0):
                if x.kind == 'label': S.out.append(x)
                else: S(x)
    def bgs(n):
        if tq2:
            for _ in range(2):
                if tq2: S(tq2.pop(0))
        elif n % opt.get('dp', 3) == 0: pop()
        if n == opt.get('nf', 48) and not fdone:
            fdone.append(1)
            S(Ins('s_barrier', needs=st2))
            for x in setflag(7, vPFS): S(x)
    fdone = []
    wo_gemm(S, XT, True, bgs)
    for x in flat(stamp('wo', True)): S(x)
    while wl[-1].cnt is None: pop()
    for _ in range(4): pop()
    S(Ins('s_barrier', needs=wl))
    for x in flat(stamp('poll', True)): S(x)
    wo_gemm(S, XT + 16, False, bgs, ph2)
    for x in flat(stamp('x1', True)): S(x)
    scale_s(S, XT)
    fmath(S, XT, ACCA, pa, XR2, [None, None], 0, lambda n: pop())
    assert not mq
    scale_s(S, XT + 16)
    fmath(S, XT + 16, ACCB, pb, SP, x2, 128)
    S('s_branch dbl_e'); slow.append(S.text())
    if stamps:
      P('s_waitcnt vmcnt(0)')
      stamp('end')
      P('s_waitcnt lgkmcnt(0)')
      P(f's_lshl_b32 s{T2}, s2, 7')
      P(f's_add_u32 s{T2}, s{T2}, 0x{STAMP_OFF:x}')
      if stamps == 'all':
        n = len(ALL)
        P('v_writelane_b32 v%d, s22, %d' % (77 + n // 64, n % 64))
        P(f's_lshl_b32 s{T2}, s2, 9')
        P(f's_add_u32 s{T2}, s{T2}, 0x{STAMP_OFF + (2 << 18):x}')
        P(f's_cmp_eq_u32 s{Wv}, 0')
        P(f's_cselect_b32 s{T2}, s{T2}, 0x{OOB:x}')
        P(f'v_lshlrev_b32 v80, 2, v{vL}')
        P(f'buffer_store_dword v77, v80, {sr(SW)}, s{T2} offen')
        P(f'buffer_store_dword v78, v80, {sr(SW)}, s{T2} offen offset:256')
      else:
        P('s_mov_b32 s%d, s22' % (sTS + len(stamps)))
        P('v_mov_b32 v81, 0')
        for n in range(10):
            P('v_mov_b32 v80, s%d' % (sTS + (n if opt.get('est') else min(n, len(stamps)))))
            P(f'buffer_store_dwordx2 v[80:81], v{vFL}, {sr(SW)}, s{T2} offen offset:{8*n}')
    P.label('K1_end')
    P('s_endpgm')
    print('K1: instrs', len(P.out), 'nops', P.nnop, file=sys.stderr)
    return P.text() + ''.join(reversed(slow))
```

```python
import sys, struct
sys.path.insert(0, 'gen')
from prog import *
from asmlib import STAMP_OFF

HOFF = 0x0000000
POFF = 0
BLK = 110592 + 128
KOFF = 0x2400000 + BLK
OOFF = 0x2C00000
ROFF = 0x2F00000
FOFF = 0x2F10000
WSB = 256 << 20
OOB = 0x10000000
NEG = 0xF149F2CA
SCALE = 0.2357022603955158 * 1.4426950408889634
def f2u(x): return struct.unpack('<I', struct.pack('<f', x))[0]

SLOT = 16384
XB = 5 * SLOT
HLONE = 9 * SLOT
RT4 = 155648
RTB = RT4 + 2048
NCODE = 84

def vr(b, n=4): return 'v[%d:%d]' % (b, b + n - 1)
def ar(b, n=4): return 'a[%d:%d]' % (b, b + n - 1)
def sr(b, n=4): return 's[%d:%d]' % (b, b + n - 1)
def II(text): return [Ins(l) for l in text.strip().split('\n') if l.strip()]

class Frag:
    def __init__(s, base, imm0, imm1, acc, b, first):
        s.base, s.imm, s.acc, s.b, s.first = base, (imm0, imm1), acc, b, first
class Slot:
    def __init__(s, groups, dma):
        s.groups, s.dma, s.loads = groups, dma, None

def gen_k1(JX=4, stamps=False, opt={}):
    opt = dict(dict(so=5, cls=[0, 0, 8, 8, 26, 26, 30, 30, 38, 38], qc=44, crit=72, svst=2.5, spr=1, nv1=6, hf=47, l2f=18), **opt)
    assert JX == 4
    P = Prog()
    SX, SQ, SG, SU, SD, SW, SB, SL = 24, 28, 32, 36, 40, 44, 48, 52
    I, J, Wv, RG, FH, E, Pp, T0, T1, T2, T3, OFF, ST, SPN = range(56, 70)
    W4096, W3072, BP, BL1, BD, SIG = range(70, 76)
    BL2 = 76
    HS, HLN, HL, PS, PLN = range(79, 84)
    C, N0, N1 = 84, 85, 86
    QM, QC, BQ, ONE2, LO, HI, R2, XRO = 87, 91, 92, 93, 94, 95, 96, 97
    KO, KB = 87, 92
    NN = 101
    SH = 75 + 11
    OB, OR, MYF, PF, PFD, DB = 4, 5, 6, 7, 10, 11
    PFP, PFW, J0, DUM = 20, 21, 90, 18
    OUTP = 0
    ROT = 3
    sTS = 12
    vL, vL16 = 1, 2
    vDQ = [3, 4, 5, 6]; vDL2 = 7
    vDP = [8, 9]; vDL1 = 10; vTP = [11, 12]; vTL1 = 13
    vTQ = [14, 15]; vDD = [16, 17, 18, 19]; vTD = [20, 21]; vTL2 = 22
    vQS = [23]; vTB = 24; vRS = 25
    vPFP, vPFS, vHW, vFL, vDG, vOR = 26, 27, 28, 29, 30, 31
    vKM, vKR, vVM, vVR = 3, 4, 5, 6
    QW = 8
    vMX, vMN, vTA, vONES = 14, 15, 23, 25
    XT, QF, FR, ACCA, ACCB, SP = 32, 64, 80, 112, 176, 240
    ALL = ['mf0'] + ['slot%d' % n for n in range(1, 51)] + ['g1end', 'attk', 'att1', 'att2', 'att3', 'attend'] + ['slot%d' % n for n in range(52, 72)] + ['g2end', 'wo', 'poll', 'end']
    def stamp(name, ret=False):
        if stamps == 'all':
            if name not in ALL: return []
            n = ALL.index(name)
            x = [Ins('v_writelane_b32 v%d, s22, %d' % (77 + n // 64, n % 64)), Ins('s_memtime s[22:23]')]
            if ret: return [x]
            for y in x: P(y)
            return []
        if stamps and name in stamps:
            n = stamps.index(name)
            x = [Ins('s_mov_b32 s%d, s22' % (sTS + n)), Ins('s_memrealtime s[22:23]')]
            if ret: return [x]
            for y in x: P(y)
        return []
    def breg(pos, mt):
        i = pos * 4 + mt
        return ar(4 * i) if i < 64 else vr(XT + 4 * (i - 64))
    def emit_all(lst):
        for x in lst:
            if isinstance(x, list): emit_all(x)
            elif x.kind == 'label': P.out.append(x)
            else: P(x)
    lg = lambda x: x.bit_length() - 1
    ng = 16 // JX

    P('s_cmp_ge_u32 s2, 256')
    P('s_cbranch_scc1 K1_end')
    P('s_load_dwordx16 s[4:19], s[0:1], 0')
    P('s_load_dwordx4 s[20:23], s[0:1], 64')
    if stamps: P('s_memtime s[84:85]' if stamps == 'all' else 's_memrealtime s[84:85]')
    def code_touch():
        P('s_getpc_b64 %s' % sr(SL, 2))
        P.label('K1_pc')
        P(f'''s_mov_b32 s{SL+2}, code_end-K1_pc
        s_mov_b32 s{SL+3}, 0x00020000
        s_lshr_b32 s{SPN}, s2, 3
        s_and_b32 s{SPN}, s{SPN}, 7
        s_mul_i32 s{SPN}, s{SPN}, {NCODE*128}
        v_lshlrev_b32 v80, 7, v0
        v_mov_b32 v89, 0x{OOB:x}
        v_cmp_gt_u32 vcc, {NCODE}, v0
        v_cndmask_b32 v80, v89, v80, vcc
        buffer_load_dword v79, v80, {sr(SL)}, s{SPN} offen''')
    if opt.get('ct0'):
        P('s_getpc_b64 %s' % sr(SL, 2))
        P(f'''s_mov_b32 s{SL+2}, {opt['ct0']*128}
        s_mov_b32 s{SL+3}, 0x00020000
        v_lshlrev_b32 v80, 7, v0
        buffer_load_dword v79, v80, {sr(SL)}, 0 offen''')
    if not opt.get('ctlate', 0): code_touch()
    P(f'''s_lshr_b32 s{NN}, s2, 3
    v_mov_b32 v89, 0x{OOB:x}
    v_and_b32 v{vL}, 63, v0
    v_lshrrev_b32 v80, 6, v0
    v_readfirstlane_b32 s{Wv}, v80
    s_and_b32 s{T0}, s2, 7
    s_and_b32 s{J}, s{T0}, {ng-1}
    s_lshl_b32 s{J}, s{J}, {lg(JX)}
    s_and_b32 s{T2}, s{NN}, {JX-1}
    s_or_b32 s{J}, s{J}, s{T2}
    s_lshr_b32 s{I}, s{T0}, {lg(ng)}
    s_lshl_b32 s{I}, s{I}, {lg(32//JX)}
    s_lshr_b32 s{T2}, s{NN}, {lg(JX)}
    s_or_b32 s{I}, s{I}, s{T2}
    s_and_b32 s{RG}, s{Wv}, 1
    s_lshr_b32 s{FH}, s{Wv}, 1
    s_and_b32 s{E}, s{J}, 1
    s_lshr_b32 s{Pp}, s{J}, 1
    s_and_b32 s{ROT}, s{J}, {min(JX-1, 3)}
    v_lshrrev_b32 v82, 3, v{vL}
    v_and_b32 v83, 7, v{vL}
    v_mul_u32_u24 v100, 1152, v82
    v_lshl_add_u32 v100, v83, 4, v100
    s_lshl_b32 s{T0}, s{I}, 3
    s_lshl_b32 s{T1}, s{RG}, 2
    s_add_u32 s{T0}, s{T0}, s{T1}
    s_add_u32 s{T1}, s{T0}, s{FH}
    s_mul_i32 s{T1}, s{T1}, {16*1152}''')
    if JX == 2: P(f's_lshl_b32 s{ROT}, s{ROT}, 1')
    def xro(blk):
        P(f'''s_xor_b32 s{T2}, s{ROT}, {blk}
        s_and_b32 s{T3}, s{T2}, 1
        s_lshl_b32 s{T3}, s{T3}, 3
        s_and_b32 s{T2}, s{T2}, 2
        s_lshl_b32 s{T2}, s{T2}, 4
        s_or_b32 s{XRO+blk}, s{T2}, s{T3}''')
    xro(0)
    if opt.get('est'): P('s_memrealtime s[76:77]')
    P('s_waitcnt lgkmcnt(0)')
    if opt.get('est'): P('s_memrealtime s[78:79]')
    def srd(d, b, nbytes, shift=0):
        if shift:
            P('s_sub_u32 s%d, s%d, %d' % (d, b, shift))
            P('s_subb_u32 s%d, s%d, 0' % (d + 1, b + 1))
        else:
            P('s_mov_b32 s%d, s%d' % (d, b))
            P('s_mov_b32 s%d, s%d' % (d + 1, b + 1))
        P('s_mov_b32 s%d, 0x%x' % (d + 2, nbytes + shift))
        P('s_mov_b32 s%d, 0x00020000' % (d + 3))
    srd(SX, 4, 2048 * 1152)
    XR = 112
    xl = []
    def xload(blk):
        ld = [Ins('buffer_load_dwordx4 %s, v100, %s, s%d offen offset:%d' % (vr(XR + 36 * blk + 4 * l), sr(SX), OFF, 128 * l)) for l in range(9)]
        xl.append(ld)
        return [II(f's_mul_i32 s{OFF}, s{XRO+blk}, 1152\ns_add_u32 s{OFF}, s{OFF}, s{T1}')] + [[x] for x in ld]
    emit_all(xload(0))
    if opt.get('ctlate', 0): code_touch()
    if opt.get('est'): P('s_memrealtime s[80:81]')
    if opt.get('est') == 2:
        P('s_waitcnt vmcnt(8)')
        P('s_memrealtime s[82:83]')
        P('s_waitcnt vmcnt(0)')
        P('s_memrealtime s[86:87]')
    for blk in range(1, 4): xro(blk)
    srd(SQ, 6, 576 * 3456, shift=2048)
    RS = 36 // JX
    NT = ' nt' if opt.get('nt') else ''
    P(f'''s_and_b32 s{J0}, s{J}, {16-JX}
    s_and_b32 s{SH}, s2, 7
    s_lshr_b32 s{SH}, s{SH}, {lg(ng)}
    s_lshl_b32 s{SH}, s{SH}, 5
    s_add_u32 s{SH}, s{SH}, s{NN}
    v_lshrrev_b32 v86, {lg(2*JX)}, v0
    v_and_b32 v87, {2*JX-1}, v0
    v_mul_u32_u24 v88, 3456, v86
    v_lshl_add_u32 v87, v87, 7, v88
    v_cmp_gt_u32 vcc, {RS}, v86
    v_cndmask_b32 v87, v89, v87, vcc
    s_mul_i32 s{ST}, s{SH}, {RS*3456}
    s_lshl_b32 s{T2}, s{J0}, 8
    s_add_u32 s{BL2}, s{ST}, s{T2}
    v_mov_b32 v104, v87''')
    qtouch = [Ins(f'buffer_load_dword v79, v104, {sr(SQ)}, s{BL2} offen offset:2048' + NT)]

    srd(SG, 12, 576 * 9216)
    srd(SU, 14, 576 * 9216, shift=2048)
    srd(SD, 16, 4608 * 1152, shift=2048)
    srd(SW, 22, WSB)
    srd(SB, 20, 256)
    P(f's_mov_b64 {sr(OUTP,2)}, s[18:19]')
    P(f'''s_cmp_ge_u32 s{Wv}, 2
    s_cselect_b32 s{SL}, s14, s12
    s_cselect_b32 s{SL+1}, s15, s13
    s_mov_b32 s{SL+2}, 0x{576*9216:x}
    s_mov_b32 s{SL+3}, 0x00020000
    s_mul_i32 s{PFP}, s{SH}, {RS*9216}
    s_mul_i32 s{T2}, s{RG}, {1152 if JX == 4 else 9*9216}
    s_add_u32 s{PFP}, s{PFP}, s{T2}
    s_mul_i32 s{T2}, s{J0}, 576
    s_add_u32 s{PFP}, s{PFP}, s{T2}''')
    if stamps: P('s_mov_b64 s[22:23], s[84:85]')
    P(f'''s_lshl_b32 s{W4096}, s{Wv}, 12
    s_lshl_b32 s{BQ}, s{J}, 8
    s_mul_i32 s{T2}, s{Wv}, {16*3456}
    s_add_u32 s{BQ}, s{BQ}, s{T2}
    s_cmp_ge_u32 s{J}, 14
    s_cselect_b32 s{BQ}, 0x{OOB:x}, s{BQ}
    s_mov_b32 s{ONE2}, 0x3f803f80
    s_mov_b32 s{LO}, 0x00003f80
    s_mov_b32 s{HI}, 0x3f800000
    v_lshrrev_b32 v84, 4, v{vL}
    v_and_b32 v85, 15, v{vL}
    v_cmp_eq_u32 vcc, 0, v0
    v_cndmask_b32 v{vFL}, v89, 0, vcc
    v_lshlrev_b32 v86, 1, v82
    v_and_b32 v86, 4, v86
    v_xor_b32 v86, v83, v86
    v_mul_u32_u24 v87, 9216, v82
    v_lshl_add_u32 v{vDP[0]}, v86, 4, v87
    v_mul_u32_u24 v88, 3456, v82
    v_lshl_add_u32 v90, v86, 4, v88
    v_add_u32 v{vDQ[0]}, 2048, v90
    v_add_u32 v{vDQ[2]}, 128, v90
    v_xor_b32 v86, 2, v86
    v_lshl_add_u32 v{vDP[1]}, v86, 4, v87
    v_add_u32 v{vDP[1]}, {8*9216-1024}, v{vDP[1]}
    v_lshl_add_u32 v90, v86, 4, v88
    v_add_u32 v{vDQ[1]}, {8*3456-1024+2048}, v90
    v_add_u32 v{vDQ[3]}, {8*3456-1024+128}, v90
    s_lshl_b32 s{SIG}, s{E}, 1
    s_sub_u32 s{SIG}, 1, s{SIG}
    s_mul_i32 s{BP}, s{Pp}, 1152
    s_lshl_b32 s{T3}, s{E}, 10
    s_add_u32 s{BP}, s{BP}, s{T3}
    s_mul_i32 s{T3}, s{Wv}, {16*9216}
    s_add_u32 s{BP}, s{BP}, s{T3}
    v_and_b32 v87, 3, v{vL}
    v_lshrrev_b32 v86, 2, v85
    v_and_b32 v88, 1, v84
    v_lshrrev_b32 v92, 1, v84
    v_lshlrev_b32 v90, 12, v92
    v_lshl_add_u32 v90, v88, 10, v90
    v_lshl_add_u32 v90, v86, 7, v90
    v_lshrrev_b32 v91, 1, v86
    v_xor_b32 v91, s{FH}, v91
    v_lshl_add_u32 v90, v91, 6, v90
    v_lshl_add_u32 v90, v88, 5, v90
    v_lshl_add_u32 v{vTQ[0]}, v87, 3, v90
    v_xor_b32 v{vTQ[1]}, 32, v{vTQ[0]}
    s_lshl_b32 s{T2}, s{E}, 6
    v_xor_b32 v{vTP[0]}, s{T2}, v{vTQ[0]}
    v_xor_b32 v{vTP[1]}, s{T2}, v{vTQ[1]}
    s_mul_i32 s{ST}, s{RG}, {2*18432}
    s_add_u32 s{ST}, s{ST}, {XB}
    v_xor_b32 v90, v85, v84
    v_lshlrev_b32 v90, 4, v90
    v_lshl_add_u32 v90, v84, 8, v90
    v_add_u32 v65, s{ST}, v90
    v_xor_b32 v66, 64, v65
    s_mul_i32 s{T2}, s{FH}, 18432
    s_add_u32 s{ST}, s{ST}, s{T2}
    s_and_b32 s{T2}, s{XRO}, 8
    s_lshl_b32 s{T2}, s{T2}, 4
    s_add_u32 s{ST}, s{ST}, s{T2}
    v_xor_b32 v90, v82, v83
    v_lshlrev_b32 v90, 4, v90
    v_lshl_add_u32 v90, v83, 8, v90
    v_add_u32 v64, s{ST}, v90
    v_xor_b32 v76, 128, v64
    s_lshl_b32 s{T2}, s{RG}, 6
    s_lshl_b32 s{T3}, s{FH}, 4
    s_add_u32 s{T2}, s{T2}, s{T3}
    v_add_u32 v67, s{T2}, v82''')
    def G(text): return [II(text)]
    P(f'''s_lshl_b32 s{T2}, s{I}, 4
    s_add_u32 s{T2}, s{T2}, s{J}
    s_lshl_b32 s{MYF}, s{T2}, 7
    s_add_u32 s{MYF}, s{MYF}, 0x{FOFF:x}
    s_lshl_b32 s{DB}, s{I}, 2
    s_lshl_b32 s{T2}, 1, s{J}
    v_mov_b32 v105, s{T2}
    v_mov_b32 v86, 0''')
    freset = P(f'buffer_store_dword v86, v{vFL}, {sr(SW)}, s{MYF} offen sc1')
    fatom = Ins(f'buffer_atomic_or v105, v{vFL}, {sr(SB)}, s{DB} offen offset:8', needs=[freset])
    late0 = II(f'''s_mul_i32 s{W3072}, s{Wv}, 3072
    s_lshl_b32 s{T2}, s{I}, 4
    s_add_u32 s{T2}, s{T2}, s{J}
    v_mov_b32 v207, 0
    s_xor_b32 s{PF}, s{MYF}, 128
    s_mul_i32 s{HS}, s{T2}, {9*8192}
    s_xor_b32 s{T2}, s{T2}, 1
    s_mul_i32 s{HL}, s{T2}, {9*8192}
    s_lshl_b32 s{T2}, s{RG}, 12
    s_add_u32 s{HS}, s{HS}, s{T2}
    s_lshl_b32 s{T3}, s{FH}, 11
    s_add_u32 s{HLN}, s{HS}, s{T3}
    s_add_u32 s{HLN}, s{HLN}, {8*8192}
    s_add_u32 s{HL}, s{HL}, s{T2}
    s_lshl_b32 s{T3}, s{FH}, 13
    s_add_u32 s{HS}, s{HS}, s{T3}
    s_mul_i32 s{BL1}, s{Pp}, 1152
    s_lshl_b32 s{T2}, s{E}, 6
    s_add_u32 s{T2}, s{T2}, 512
    s_add_u32 s{BL1}, s{BL1}, s{T2}
    s_mul_i32 s{T3}, s{RG}, {48*9216}
    s_add_u32 s{BL1}, s{BL1}, s{T3}''')
    late0b = II(f'''s_lshl_b32 s{T2}, s{RG}, 12
    s_lshl_b32 s{T3}, s{I}, 3
    s_add_u32 s{T3}, s{T3}, s{Pp}
    s_mul_i32 s{PS}, s{T3}, {18*8192}
    s_add_u32 s{PS}, s{PS}, s{T2}
    s_add_u32 s{PS}, s{PS}, 0x{POFF:x}
    s_sub_u32 s{T3}, 9, s{E}
    s_lshl_b32 s{T3}, s{T3}, 13
    s_add_u32 s{PLN}, s{PS}, s{T3}
    s_lshl_b32 s{T3}, s{FH}, 11
    s_xor_b32 s{T3}, s{T3}, s{ROT}
    s_add_u32 s{PLN}, s{PLN}, s{T3}
    s_add_u32 s{PS}, s{PS}, s{ROT}
    s_mul_i32 s{T3}, s{E}, 10
    s_add_u32 s{T3}, s{T3}, s{FH}
    s_sub_u32 s{T3}, 17, s{T3}
    s_lshl_b32 s{T3}, s{T3}, 13
    s_add_u32 s{PS}, s{PS}, s{T3}
    s_lshl_b32 s{T2}, s{E}, 6
    s_add_u32 s{T2}, s{T2}, 512
    s_mul_i32 s{T1}, s{Pp}, {576*1152}
    s_mul_i32 s{T3}, s{E}, {17*32*1152}
    s_add_u32 s{T1}, s{T1}, s{T3}
    s_mul_i32 s{BD}, s{E}, 640
    s_add_u32 s{BD}, s{BD}, s{T1}
    s_mul_i32 s{T3}, s{FH}, s{SIG}
    s_mul_i32 s{T3}, s{T3}, {32*1152}
    s_add_u32 s{BD}, s{BD}, s{T3}
    s_mul_i32 s{T3}, s{RG}, {16*1152}
    s_add_u32 s{BD}, s{BD}, s{T3}
    s_add_u32 s{T1}, s{T1}, s{T2}''')
    for t in range(3):
        late0b += II(f'''s_mul_i32 s{T2}, s{Wv}, 3
        s_add_u32 s{T2}, s{T2}, {t}
        s_lshr_b32 s{T3}, s{T2}, 1
        s_mul_i32 s{T3}, s{T3}, s{SIG}
        s_mul_i32 s{T3}, s{T3}, {32*1152}
        s_add_u32 s{BL2+t}, s{T1}, s{T3}
        s_and_b32 s{T2}, s{T2}, 1
        s_mul_i32 s{T2}, s{T2}, {16*1152}
        s_add_u32 s{BL2+t}, s{BL2+t}, s{T2}
        s_add_u32 s{BL2+t}, s{BL2+t}, {2048-1024*t}''')
    late0 += II(f'''s_mul_i32 s{T2}, s{T0}, {BLK//2}
    s_lshl_b32 s{T3}, s{J}, 13
    s_add_u32 s{T2}, s{T2}, s{T3}
    s_lshl_b32 s{T3}, s{FH}, 11
    s_add_u32 s{T2}, s{T2}, s{T3}
    s_add_u32 s{T2}, s{T2}, 0x{KOFF:x}
    s_and_b32 s{ROT}, s{ROT}, 2
    s_mul_i32 s{T3}, s{ROT}, {BLK//2}
    s_add_u32 s{T2}, s{T2}, s{T3}
    s_sub_u32 s{QM+2}, 1, s{ROT}
    s_mul_i32 s{QM+2}, s{QM+2}, {BLK}
    s_lshl_b32 s{ROT}, s{ROT}, 10
    s_movk_i32 s{QC}, 4096''')
    late0 += G(f's_cmp_ge_u32 s{J}, 14\ns_cselect_b32 s{QM}, 0x{2*OOB:x}, s{T2}')
    late0 += G(f's_cmp_eq_u32 s{J}, 13\ns_cselect_b32 s{QC}, 0x{OOB:x}, s{QC}')
    late0b += II(f'''s_lshl_b32 s{T2}, s{FH}, 1
    s_add_u32 s{T2}, s{T2}, s{T0}
    s_mul_i32 s{OB}, s{T2}, 18432
    s_lshl_b32 s{T2}, s{J}, 10
    s_add_u32 s{OB}, s{OB}, s{T2}
    s_add_u32 s{OB}, s{OB}, 0x{OOFF:x}
    s_mul_i32 s{OR}, s{I}, {8*18432}
    s_lshl_b32 s{T2}, s{J}, 7
    s_add_u32 s{OR}, s{OR}, s{T2}
    s_add_u32 s{OR}, s{OR}, 0x{OOFF+16384:x}''')
    late0b += G(f's_cmp_eq_u32 s{Wv}, 0\ns_cselect_b32 s{OR}, s{OR}, 0x{OOB:x}')
    late0b += II(f'''s_mov_b32 s{C}, 0x{f2u(SCALE):x}''')
    late0b += G(f's_cmp_lt_u32 s{I}, 2\ns_cselect_b32 s{N0}, 0xffff, 0') + G(f's_cmp_lt_u32 s{I}, 1\ns_cselect_b32 s{N1}, 0xffff, 0')
    late0 += II(f'''s_mul_i32 s{PFD}, s{J0}, {288*1152}
    s_mul_i32 s{T2}, s{SH}, {162*128}
    s_add_u32 s{PFD}, s{PFD}, s{T2}
    s_mul_i32 s{T2}, s{Wv}, {41*128}
    s_add_u32 s{PFD}, s{PFD}, s{T2}''')
    late0 += II(f'''v_lshlrev_b32 v{vL16}, 4, v{vL}
    v_lshrrev_b32 v182, 3, v{vL}
    v_and_b32 v183, 7, v{vL}
    v_lshrrev_b32 v184, 4, v{vL}
    v_and_b32 v185, 15, v{vL}
    v_and_b32 v186, 6, v182
    v_xor_b32 v186, v183, v186
    v_mul_u32_u24 v187, 1152, v182
    v_lshl_add_u32 v187, v186, 4, v187''')
    for t in range(4):
        late0 += II('v_add_u32 v%d, %d, v187' % (vDD[t], (t & 1) * (8 * 1152 - 1024) + (t >> 1) * (128 - 2048) + 2048))
    late0 += II(f'''v_lshrrev_b32 v186, 2, v{vL}
    v_and_b32 v187, 3, v{vL}
    v_and_b32 v188, 2, v184
    v_xor_b32 v188, v187, v188
    v_mul_u32_u24 v190, 9216, v186
    v_lshl_add_u32 v{vDL1}, v188, 4, v190
    v_and_b32 v188, 1, v184
    v_lshlrev_b32 v188, 1, v188
    v_xor_b32 v188, v187, v188
    v_mul_u32_u24 v190, 1152, v186
    v_lshl_add_u32 v{vDL2}, v188, 4, v190
    v_lshrrev_b32 v186, 2, v185
    v_and_b32 v188, 1, v184
    v_lshrrev_b32 v192, 1, v184
    v_lshl_add_u32 v190, v184, 3, v186
    v_lshlrev_b32 v190, 6, v190
    v_xor_b32 v191, s{FH}, v188
    v_lshl_add_u32 v190, v191, 5, v190
    v_lshl_add_u32 v{vTL1}, v187, 3, v190
    v_lshl_add_u32 v190, v184, 2, v186
    v_lshlrev_b32 v190, 6, v190
    v_lshl_add_u32 v190, v191, 5, v190
    v_lshl_add_u32 v{vTL2}, v187, 3, v190
    v_lshl_add_u32 v190, v188, 2, v186
    v_lshrrev_b32 v191, 1, v190
    s_lshl_b32 s{T2}, s{FH}, 1
    v_xor_b32 v191, s{T2}, v191
    v_lshlrev_b32 v190, 7, v190
    v_lshl_add_u32 v190, v192, 10, v190
    v_lshl_add_u32 v190, v191, 5, v190
    v_lshl_add_u32 v{vTD[0]}, v187, 3, v190
    v_xor_b32 v{vTD[1]}, 32, v{vTD[0]}
    v_mov_b32 v189, 0x{OOB:x}
    v_cmp_eq_u32 vcc, 0, v184
    v_lshlrev_b32 v190, 2, v184
    v_sub_u32 v{vDG}, v190, v185
    v_cndmask_b32 v{vOR}, v189, v{vL16}, vcc
    s_lshl_b32 s{T2}, s{RG}, 12
    v_add_u32 v{vHW}, s{T2}, v{vL16}''')
    late0 += G(f's_cmp_ge_u32 s{J}, 9\ns_cselect_b64 vcc, -1, 0')
    late0 += II(f'''v_lshlrev_b32 v191, 6, v185
    v_lshl_add_u32 v191, v184, 4, v191
    v_cndmask_b32 v{vQS[0]}, v{vL16}, v191, vcc
    v_lshlrev_b32 v190, 4, v185
    v_add_u32 v190, {RT4}, v190
    v_lshlrev_b32 v191, 4, v184
    v_add_u32 v191, {RTB}, v191
    v_cndmask_b32 v190, v190, v191, vcc
    s_lshl_b32 s{T2}, s{RG}, 10
    v_add_u32 v{vRS}, s{T2}, v190
    v_mov_b32 v204, 0
    v_mov_b32 v205, 0
    v_mov_b32 v206, 0
    s_mul_i32 s{T2}, s{J}, 2304
    s_add_u32 s{T2}, s{T2}, 0x{KOFF-BLK+148*256:x}''')
    late0 += G(f's_cmp_eq_u32 s{I}, 0\ns_cselect_b32 s{T2}, s{T2}, 0x{OOB:x}')
    guard = Ins(f'buffer_store_dwordx4 v[204:207], v{vOR}, {sr(SW)}, s{T2} offen sc1')
    late0 += [guard]
    late0 += II(f'''v_mov_b32 v200, 0x3f803f80
    v_mov_b32 v201, 0x3f803f80
    v_mov_b32 v202, 0x3f803f80
    v_mov_b32 v203, 0x3f803f80
    s_lshl_b32 s{T2}, s{I}, 2
    s_add_u32 s{T2}, s{T2}, s{Wv}
    s_mul_i32 s{T2}, s{T2}, {BLK}
    s_add_u32 s{T2}, s{T2}, 0x{KOFF+110592:x}
    v_cmp_gt_u32 vcc, 8, v{vL}
    s_nop 0
    s_nop 0
    v_cndmask_b32 v199, v189, v{vL16}, vcc''')
    late0 += G(f's_cmp_eq_u32 s{J}, 14\ns_cselect_b32 s{T2}, s{T2}, 0x{OOB:x}')
    ones_st = Ins(f'buffer_store_dwordx4 v[200:203], v199, {sr(SW)}, s{T2} offen sc1')
    late0 += [ones_st]

    slots = []
    def dma4(srds, voffs, sbase, add, sadd=0, bump=None, pre=''):
        def f(rp):
            if bump is not None:
                g = [II((bump + '\n' if bump else '') + f's_add_u32 s{OFF}, s{sbase}, {add}\ns_add_u32 m0, s{W4096}, {rp*SLOT}')]
            elif sadd and not add:
                g = [II(pre + f's_mul_i32 s{OFF}, s{SIG}, {sadd}\ns_add_u32 s{OFF}, s{OFF}, s{sbase}\ns_add_u32 m0, s{W4096}, {rp*SLOT}')]
            elif sadd:
                g = [II(f's_mul_i32 s{OFF}, s{SIG}, {sadd}\ns_add_u32 s{OFF}, s{OFF}, s{sbase}'),
                     II(f's_add_u32 s{OFF}, s{OFF}, {add}\ns_add_u32 m0, s{W4096}, {rp*SLOT}')]
            else:
                g = [II(f's_add_u32 s{OFF}, s{sbase}, {add}\ns_add_u32 m0, s{W4096}, {rp*SLOT}')]
            for t in range(4):
                g.append([Ins('buffer_load_dwordx4 v%d, %s, s%d offen offset:%d lds' % (voffs[t], sr(srds[t]), OFF, 1024 * t))])
            return g
        return f
    def dma_l1(s):
        def f(rp):
            g = []
            for t in range(3):
                pre = II(f's_add_u32 s{OFF}, s{BL1}, {s*96*9216 + t*(16*9216-1024)}')
                if t == 0: pre += II(f's_add_u32 m0, s{W3072}, {rp*SLOT}')
                g.append(pre)
                g.append(II(f'buffer_load_dwordx4 v{vDL1}, {sr(SL)}, s{OFF} offen offset:{1024*t} lds'))
            return g
        return f
    def dma_l2(s):
        def f(rp):
            g = [II(f's_add_u32 m0, s{W3072}, {rp*SLOT}')]
            for t in range(3):
                g.append(II(f's_mul_i32 s{OFF}, s{SIG}, {s*192*1152}\ns_add_u32 s{OFF}, s{OFF}, s{BL2+t}'))
                g.append(II(f'buffer_load_dwordx4 v{vDL2}, {sr(SD)}, s{OFF} offen offset:{1024*t} lds'))
            return g
        return f
    def regroup(gs):
        if not opt.get('rg', 1): return gs
        fl = [f for g in gs for f in g]
        return [fl[n:n + 2] for n in range(0, 6, 2)]
    def accf(base, tile): return lambda mt: base + (tile * 4 + mt) * 4
    def bf(pos): return lambda mt: breg(pos, mt)
    def pairlike(vT, acc, s):
        return [[Frag(vT[ft], ks * 8192 + m * 2048, ks * 8192 + m * 2048 + 512, accf(acc, 2 * m + ft), bf(2 * s + ks), s == 0 and ks == 0) for ks in range(2)] for m in range(2) for ft in range(2)]
    for s in range(9):
        slots.append(Slot(pairlike(vTQ, ACCA, s), dma4([SQ] * 4, vDQ, BQ, s * 64 * 3456)))
    PACC = [ACCB, ACCB, ACCA, ACCB]
    def pstep(q):
        for s in range(9):
            slots.append(Slot(pairlike(vTP, PACC[q], s), dma4([SG, SG, SU, SU], [vDP[0], vDP[1], vDP[0], vDP[1]], BP, s * 64 * 9216, bump=(f's_lshl_b32 s{OFF}, s{SIG}, 7\ns_add_u32 s{BP}, s{BP}, s{OFF}' if s == 0 and q else ''))))
    pstep(0)
    for s in range(6):
        gs = [[Frag(vTL1, m * 6144 + ks * 2048, m * 6144 + ks * 2048 + 256, accf(ACCA, m), bf(3 * s + ks), s == 0 and ks == 0) for ks in range(3)] for m in range(2)]
        slots.append(Slot(regroup(gs), dma_l1(s)))
    pstep(1); pstep(2); pstep(3)
    NSEG1 = len(slots)
    hpos = {}
    for n, k in enumerate([6, 7, 11, 10]): hpos[k] = n
    for n, k in enumerate([0, 1, 2, 3, 4, 5, 16, 17, 14, 15, 12, 13, 9, 8]): hpos[k] = 4 + n
    lorder = [8, 7, 6, 0, 1, 2, 4, 3, 5]
    def dstep(q):
        acc = ACCA
        for n, ln in enumerate(lorder):
            gs = [[Frag(vTD[ft], ks * 8192 + c * 2048, ks * 8192 + c * 2048 + 4096, accf(acc, 2 * c + ft), bf(hpos[2 * ln + ks]), n == 0 and ks == 0) for ks in range(2)] for c in range(2) for ft in range(2)]
            slots.append(Slot(gs, dma4([SD] * 4, vDD, BD, 0, ln * 64 * 1152, pre=(f's_add_u32 s{BD}, s{BD}, 256\n' if q and n == 0 else ''))))
    dstep(0)
    for s in range(3):
        gs = [[Frag(vTL2, ks * 2048, ks * 2048 + 1024, accf(SP, 0), bf(hpos[6 * s + ks]), s == 0 and ks == 0) for ks in range(3 * hg, 3 * hg + 3)] for hg in range(2)]
        slots.append(Slot(regroup(gs), dma_l2(s)))
    n0 = len(slots); dstep(1)
    for sl in slots[n0:]:
        for g in sl.groups:
            for f in g: f.acc = (lambda old: (lambda mt: old(mt) + (ACCB - ACCA)))(f.acc)
    NS = len(slots)
    vWD = [3, 4, 5, 6]; vWD2 = 8; vWT = [9, 10, 11, 12]; vPL = 13
    TL, TP, TX, TM, TV, OL, FB = 87, 88, 89, 90, 91, 92, 93
    for s in range(4): slots.append(Slot([], dma4([SG] * 4, vWD, TL, s * 4 * 36 * 1152)))
    def dma_w2(rp):
        return [II(f's_mul_i32 s{OFF}, s{Wv}, {(144-36)*1152}\ns_add_u32 s{OFF}, s{OFF}, s{TL}\ns_lshr_b32 m0, s{W4096}, 1\ns_add_u32 m0, m0, {rp*SLOT}'),
                II(f'buffer_load_dwordx4 v{vWD2}, {sr(SG)}, s{OFF} offen lds'), II(f's_add_u32 s{OFF}, s{OFF}, {72*1152-1024}'),
                II(f'buffer_load_dwordx4 v{vWD2}, {sr(SG)}, s{OFF} offen offset:1024 lds')]
    slots.append(Slot([], dma_w2))
    NSX = len(slots)
    phys = {n: n for n in range(9)}; load_at = {}; hphys = {}
    nxt = 9
    divert = {18: 0, 33: 1, 42: 2, 50: 3}
    for n in range(2, NSEG1):
        if n in divert: hphys[divert[n]] = phys[n - 2]
        else: phys[nxt] = phys[n - 2]; load_at[n] = nxt; nxt += 1
    att_loads = []
    for f in [phys[NSEG1 - 2], phys[NSEG1 - 1], hphys[0], hphys[1], hphys[2]]:
        phys[nxt] = f; att_loads.append(nxt); nxt += 1
    extra_loads = {}
    for n in range(NSEG1 + 2, NS):
        q = n - (NSEG1 + 2)
        if q == 1: phys[nxt] = hphys[3]; extra_loads[n] = [nxt]; nxt += 1
        if nxt < NSX: phys[nxt] = phys[n - 2]; load_at[n] = nxt; nxt += 1
    assert nxt == NSX
    def dma_groups(n):
        g = slots[n].dma(phys[n])
        slots[n].loads = [x for grp in g for x in grp if x.kind == 'vmem']
        return g

    SV = opt.get('sv', 4.75)
    loud = set(); svc = {id(guard): 1, id(ones_st): 1}
    def T(text, q=56):
        x = Ins(text); loud.add(id(x)); svc[id(x)] = q; return x
    VLS = opt.get('vls', [[0, 8, 4, 1, 7], [2, 6, 3, 5]])
    def pf_gu(VL, t0, msk, q=0):
        nl = len(VL); tab = sum(l << (4 * n) for n, l in enumerate(VL)); a_, b_, c_ = t0, t0 + 1, t0 + 2
        return II(f'''v_mul_u32_u24 v{b_}, {65536//nl+1}, v{vL}
        v_lshrrev_b32 v{b_}, 16, v{b_}
        v_cmp_gt_u32 {msk}, 9, v{b_}
        v_mul_u32_u24 v{a_}, {4*nl}, v{b_}
        v_lshlrev_b32 v{c_}, 2, v{vL}
        v_sub_u32 v{a_}, v{c_}, v{a_}
        v_mov_b32 v{c_}, 0x{tab:x}
        v_bfe_u32 v{a_}, v{c_}, v{a_}, 4
        v_mul_u32_u24 v{b_}, 9216, v{b_}
        v_lshl_add_u32 v{b_}, v{a_}, 7, v{b_}
        v_mov_b32 v{a_}, 0x{OOB:x}
        v_cndmask_b32 v{b_}, v{a_}, v{b_}, {msk}''') + [T(f'buffer_load_dword v0, v{b_}, {sr(SL)}, s{PFP} offen' + NT, q)]
    if opt.get('walk', 1):
        P('s_mov_b64 exec, 0')
        for w in range(3):
            P(f's_cmp_eq_u32 s{Wv}, {w}')
            P(f's_cbranch_scc1 LAND{w}')
        P('s_branch LAND3')
        P.label('WALK_END')
        P('s_mov_b64 exec, -1')
    emit_all(xload(1))
    stamp('setup')
    if opt.get('est'):
        P('s_waitcnt lgkmcnt(0)')
        for n, r in enumerate((76, 78, 80, 82, 86)): P('s_mov_b32 s%d, s%d' % (sTS + 5 + n, r))

    NPRE = opt.get('npre', 5)
    GU2 = 0
    gA, gB = pf_gu(VLS[0], 106, 's[78:79]'), pf_gu(VLS[1], 106, 's[78:79]')
    if opt.get('tlb'):
        qtouch = qtouch + II(f'''v_lshlrev_b32 v106, 21, v0
        v_min_u32 v107, 24, v0
        v_lshlrev_b32 v107, 21, v107
        buffer_load_dword v0, v107, {sr(SW)}, 0 offen sc1
        buffer_load_dword v79, v106, {sr(SD)}, 0 offen offset:2048
        buffer_load_dword v79, v106, {sr(SG)}, 0 offen
        buffer_load_dword v79, v106, {sr(SU)}, 0 offen offset:2048
        s_mov_b32 s80, s{OUTP}
        s_mov_b32 s81, s{OUTP+1}
        s_mov_b32 s82, 0x{2048*1152:x}
        s_mov_b32 s83, 0x00020000
        buffer_load_dword v79, v106, s[80:83], 0 offen sc1
        s_mov_b32 s80, s8
        s_mov_b32 s81, s9
        s_mov_b32 s82, 0x{576*1152:x}
        buffer_load_dword v79, v106, s[80:83], 0 offen''')
    dm0 = [g for n in range(NPRE) for g in dma_groups(n)]
    if opt.get('so', 0) == 0:
        bg = [('GAP', 30)] + xload(2) + xload(3) + [qtouch, ('GAP', 150)] + dm0 + [gA, gB, [fatom]]
    elif opt.get('so', 0) == 3:
        bg = [('GAP', 30)] + xload(2) + xload(3) + [qtouch, gA, [fatom], ('GAP', opt.get('ga', 330))] + dm0
    elif opt.get('so', 0) == 4:
        bg = [('GAP', 30)] + xload(2) + xload(3) + [qtouch, gA, ('GAP', opt.get('ga', 330))] + dm0 + [gB, [fatom]]
    elif opt.get('so', 0) == 5:
        bg = [('GAP', 30)] + xload(2) + xload(3) + [qtouch, ('GAP', 150)] + dm0 + [gA, [fatom]]
    elif opt.get('so', 0) == 1:
        bg = [('GAP', opt.get('gap0', 30)), qtouch, gA, ('GAP', opt.get('ga', 200))] + xload(2) + xload(3) + dm0 + [gB, [fatom]]
    else:
        bg = [('GAP', opt.get('gap0', 30))] + xload(2) + [qtouch, gA, ('GAP', opt.get('ga', 300))] + xload(3) + dm0 + [gB, [fatom]]
    cnt = [0]; lq = []; lcnt = [0, 10]
    EVERY = opt.get('every', 8)
    def V(t, needs=()):
        r = P(Ins(t, needs))
        cnt[0] += 1
        if bg and cnt[0] >= EVERY:
            cnt[0] = 0
            while bg:
                g = bg.pop(0)
                if isinstance(g, tuple): cnt[0] = -g[1]; break
                emit_all(g)
                if any(x.kind == 'vmem' for x in g): break
        lcnt[0] += 1
        if lq and lcnt[0] >= lcnt[1]:
            lcnt[0] = 0; emit_all([lq.pop(0)])
        return r
    def reduce8(r):
        V('v_add_f32_dpp v%d, v%d, v%d quad_perm:[1,0,3,2] row_mask:0xf bank_mask:0xf' % (r, r, r))
        V('v_add_f32_dpp v%d, v%d, v%d quad_perm:[2,3,0,1] row_mask:0xf bank_mask:0xf' % (r, r, r))
        V('v_add_f32_dpp v%d, v%d, v%d row_half_mirror row_mask:0xf bank_mask:0xf' % (r, r, r))
    def ln_block(blk, defer=False):
        X = XR + 36 * blk
        wa = [64, 76][blk & 1]
        for n in range(36):
            if n < 4: V('v_dot2_f32_bf16 v%d, v%d, s%d, 0' % (68 + n, X + n, ONE2), needs=[xl[blk][0]])
            else: V('v_dot2_f32_bf16 v%d, v%d, s%d, v%d' % (68 + n % 4, X + n, ONE2, 68 + n % 4), needs=[xl[blk][n // 4]])
        stamp('sum%d' % blk)
        V(f's_and_b32 s{T2}, s{XRO+blk}, 8')
        V(f's_add_u32 s{T2}, s{T2}, {32*(blk>>1)}')
        V(f'v_add_u32 v77, s{T2}, v67')
        V('v_lshlrev_b32 v78, 4, v77')
        V('v_add_u32 v78, %d, v78' % RT4)
        V('v_add_f32 v68, v68, v69')
        V('v_add_f32 v70, v70, v71')
        V('v_add_f32 v68, v68, v70')
        V('v_and_b32 v101, 0x70, v77')
        V('v_mul_u32_u24 v101, 12, v101')
        reduce8(68)
        V('v_mul_f32 v68, 0x%x, v68' % f2u(-1.0 / 576))
        wr = []
        LAG = 2
        for n in range(36 + LAG + 1):
            if n < 36:
                t = 80 + 2 * (n % 8)
                V('v_dot2_f32_bf16 v%d, v%d, s%d, v68' % (t, X + n, LO))
                V('v_dot2_f32_bf16 v%d, v%d, s%d, v68' % (t + 1, X + n, HI))
            m = n - LAG
            if 0 <= m < 36:
                t = 80 + 2 * (m % 8)
                V('v_cvt_pk_bf16_f32 v%d, v%d, v%d' % (X + m, t, t + 1))
            m = n - LAG - 1
            if 0 <= m < 36:
                V('v_dot2_f32_bf16 v%d, v%d, v%d, %s' % (72 + m % 4, X + m, X + m, '0' if m < 4 else 'v%d' % (72 + m % 4)))
                if m % 4 == 3:
                    w = Ins('ds_write_b128 v%d, %s offset:%d' % (wa, vr(X + m - 3), (m // 4) * 2048)); wr.append(w)
                    if not defer: P(w)
        dwr = list(wr)
        V('v_lshl_add_u32 v101, v77, 2, v101')
        V('v_add_u32 v101, %d, v101' % RTB)
        V('v_add_f32 v72, v72, v73')
        V('v_add_f32 v74, v74, v75')
        V('v_add_f32 v72, v72, v74')
        V('v_mov_b32 v73, 0x%x' % f2u(1e-5))
        reduce8(72)
        V('v_fmac_f32 v73, 0x%x, v72' % f2u(1.0 / 576))
        V('v_rsq_f32 v96, v73')
        for t in (1, 2, 3): V('v_mov_b32 v%d, v96' % (96 + t))
        wr.append(P('ds_write_b128 v78, v[96:99]'))
        wr.append(P('ds_write_b32 v101, v96'))
        return wr, dwr
    slow = []
    nlab = [0]
    def alt_site(inline, other):
        nlab[0] += 1; n = nlab[0]
        slow.append(f'alt{n}:\n' + ''.join('    %s\n' % t for t in other) + f'    s_branch alt{n}_e\n')
        return [Ins(f's_cbranch_vccz alt{n}')] + inline + [Ins(f'alt{n}_e:')]
    def xn_reads(rho):
        return [Ins('ds_read_b128 %s, v%d offset:%d' % (breg(ks, 2 * rho + t), 65 + (ks & 1), t * 18432 + ks * 1024)) for ks in range(18) for t in range(2)]
    w0, _ = ln_block(0); w1, _ = ln_block(1)
    stamp('ln01')
    P(Ins('s_barrier', needs=w0 + w1))
    r0 = xn_reads(0)
    lq += [r0[n:n + 2] for n in range(0, 36, 2)]; lcnt[1] = 8
    w2, d2 = ln_block(2, defer=True)
    emit_all(lq); lq.clear()
    P(Ins('s_barrier', needs=r0))
    lq += d2; lcnt[1] = 12
    w3, _ = ln_block(3)
    emit_all(lq); lq.clear()
    emit_all([g for g in bg if not isinstance(g, tuple)]); bg.clear()
    stamp('ln23')
    P(Ins('s_barrier', needs=w2 + w3 + slots[0].loads))
    r1 = xn_reads(1)
    stamp('mf0')

    window = {}
    AH = 4; AHM = opt.get('ah', 6)
    def make_reads(fr, sidx, fi):
        w, o = divmod(phys[sidx] * SLOT, 65536)
        out = []
        if window.get(fr.base, 0) != w:
            d = (w - window.get(fr.base, 0)) * 65536
            out.append(Ins('v_add_u32 v%d, 0x%x, v%d' % (fr.base, d & 0xffffffff, fr.base)))
            window[fr.base] = w
        f = FR + 4 * (fi % 8)
        fr.reg = f
        fr.rd = [Ins('ds_read_b64_tr_b16 %s, v%d offset:%d' % (vr(f + 2 * h, 2), fr.base, o + fr.imm[h])) for h in range(2)]
        return [out + [fr.rd[0]], [fr.rd[1]]]
    def segment(s0, s1, fillers, bar_extra, first_loads=(), extra_need=None, hook=None, quiet=(), pre=()):
        frs = []; groups = []
        for s in range(s0, s1):
            for g in slots[s].groups:
                groups.append((s, len(frs), g))
                for f in g: frs.append((s, f))
        nm = sum(4 * len(g) for _, _, g in groups)
        gm = [[] for _ in range(nm)]; ga = [[] for _ in range(nm)]; gz = [[] for _ in range(nm)]
        used = [0] * nm; vmw = [0] * (nm + 16)
        mf = []; issued = 0; slot_start = {}
        ismem = lambda x: x.kind in ('ds', 'vmem')
        def put(k, items, cost=None):
            (gm if len(items) == 1 and ismem(items[0]) else ga)[k].extend(items)
            used[k] += min(2, sum(x.cost for x in items)) if cost is None else cost
        while issued < AH:
            s, f = frs[issued]
            emit_all(make_reads(f, s, issued)); issued += 1
        if callable(pre): pre()
        else: emit_all(list(pre))
        pend = [(-1, list(first_loads), ())]
        barpos = {}; vcand = set(); fv = set()
        for (s, f0, g) in groups:
            a = len(mf)
            slot_start.setdefault(s, a)
            n = 4 * len(g)
            for mt in range(4):
                for f in g: mf.append((s, f, mt, g))
            if a > 0: used[a - 1] += 1
            vcand.update(range(a + 1, a + n, 4))
            items = []
            while issued < min(len(frs), f0 + min(8, len(g) + AHM)) and frs[issued][0] <= s + 1:
                s2, f2 = frs[issued]
                r = make_reads(f2, s2, issued)
                if frs[issued - 1][0] != s2: r[0] = ['BAR', s2] + r[0]
                items += r; issued += 1
            for q, it in enumerate(items):
                k = a + q * n // len(items)
                if it[0] == 'BAR':
                    s2 = it[1]
                    ex = bar_extra.get(s2, ((), ()))
                    b = Ins('s_barrier'); b.needs = ('LAZY', s2, list(ex[0]) + ([x for f in g for x in f.rd] if k == a else []))
                    gz[k - 1].append(b); used[k - 1] += 1 if k == a else 2
                    barpos[s2] = k - 1
                    pend.append((k - 1, list(extra_loads.get(s2, [])) + ([load_at[s2]] if s2 in load_at else []), ex[1]))
                    it = it[2:]
                if len(it) == 2: put(max(k - 1, 0), it[:1]); it = it[1:]
                put(k, it)
        class Chain:
            def __init__(c, items, start): c.q = list(items); c.rel = start; c.last = -1; c.cap = 2
        dl = []; dead = {}
        for (k, lds_, post) in pend:
            dl.append(('ATK', k + 1)); dl += list(post)
            for n in lds_:
                for g in dma_groups(n):
                    for x in g:
                        dl.append(x)
                        if x.kind == 'vmem': dead[id(x)] = (n, barpos.get(n, 10 ** 9 if n < NS else nm + opt.get('wdl', -100))); svc[id(x)] = SV * (2 if sum(len(g_) for g_ in slots[n].groups) == 6 else 1)
        chains = [Chain(dl, 0)] + [Chain(lst, slot_start[s] + off) for (s, off, lst) in fillers if lst]
        leads = {}; slk = {}; lastst = -999
        pfree = 0.0
        def head(c, k):
            while c.q and isinstance(c.q[0], tuple):
                it = c.q[0]
                if c.rel > k: return None
                if opt.get('dbg') and it[0] in ('AT', 'BY'):
                    cs = max(x for x in slot_start if slot_start[x] <= k); print('   marker', it, 'reached at slot', cs, '+', k - slot_start[cs], file=sys.stderr)
                if it[0] == 'AT': c.rel = slot_start[it[1]] + it[2]
                elif it[0] == 'ATK': c.rel = it[1]
                elif it[0] == 'BY': assert k <= slot_start[it[1]], ('filler late', it, k, slot_start[it[1]])
                elif it[0] == 'CAP': c.cap = it[1]
                elif it[0] == 'SKIP': c.rel = k + it[1]
                c.q.pop(0)
            if not c.q or c.rel > k: return None
            return c.q[0]
        for k in range(nm):
            if not gm[k] and used[k] < 2:
                cand = []
                for n_, c in enumerate(chains):
                    x = head(c, k)
                    if x is None or isinstance(x, list) or not ismem(x) or c.last >= k: continue
                    if x.kind == 'ds':
                        if used[k] + x.cost > 2: continue
                    elif id(x) not in loud and pfree - k > opt.get('bl', 1.5): continue
                    pr = 1
                    if n_ == 0: pr = 0 if dead.get(id(x), (0, 0))[1] - k < opt.get('crit', 72) else 2
                    cand.append((pr, n_))
                if cand:
                    c = chains[min(cand)[1]]; x = c.q.pop(0); c.last = k
                    put(k, [x], x.cost if x.kind == 'ds' else 1)
                    if x.kind == 'vmem':
                        pfree = max(pfree, k + svc[id(x)]) if id(x) in loud else max(pfree, k) + svc.get(id(x), opt.get('svst', SV) if 'store' in x.op else SV)
                        if 'store_dwordx4' in x.op: lastst = k
                        if id(x) in dead and dead[id(x)][1] < 10 ** 9:
                            leads[dead[id(x)][0]] = dead[id(x)][1] - k; slk[dead[id(x)][0]] = dead[id(x)][1] - lastst
            for c in chains:
                while True:
                    x = head(c, k)
                    if x is None or (not isinstance(x, list) and ismem(x)): break
                    it = x if isinstance(x, list) else [x]
                    cst = min(2, sum(y.cost for y in it))
                    if used[k] + cst > c.cap: break
                    c.q.pop(0); c.last = k; ga[k].extend(it); used[k] += cst
        left = [(x if isinstance(x, list) else [x]) for c in chains for x in c.q if not isinstance(x, tuple)]
        print('DMA leads:', ' '.join('%d:%d' % x for x in sorted(leads.items())), file=sys.stderr)
        print('store->wait distance < 130:', ' '.join('%d:%d' % x for x in sorted(slk.items()) if x[1] < 130 and x[0] < NS), file=sys.stderr)
        assert min(v for n_, v in leads.items() if n_ < NS) > opt.get("minlead", 30)
        for k, (s, f, mt, g) in enumerate(mf):
            if hook: hook(k, s)
            c = f.acc(mt)
            nd = [x for f_ in g for x in f_.rd] + ([extra_need(f, mt)] if extra_need else [])
            P(Ins('v_mfma_f32_16x16x32_bf16 %s, %s, %s, %s' % (vr(c), vr(f.reg), f.b(mt), '0' if f.first else vr(c)), needs=nd))
            for x in gz[k]: x.needs = list(slots[x.needs[1]].loads) + list(x.needs[2])
            emit_all(gm[k] + ga[k] + gz[k])
        return left

    def mul(d, a_, b_): return Ins('v_mul_f32 v%d, v%d, v%d' % (d, a_, b_))
    def cvt(d, a_, b_): return Ins('v_cvt_pk_bf16_f32 v%d, v%d, v%d' % (d, a_, b_))
    kv_stores = []
    flat0 = lambda l: [y for x in l for y in x]
    def qkv_epi():
        rs = [Ins('ds_read_b128 %s, v%d offset:%d' % (vr(SP + 4 * mt), vRS, 256 * mt)) for mt in range(4)]
        L = list(rs) + [('SKIP', 6)]
        for mp in range(2):
            if mp: L += II(f's_add_u32 s{QM}, s{QM}, s{QM+2}')
            for c in range(2):
                if c: L += II(f's_add_u32 s{T2}, s{QM}, s{QC}')
                for ft in range(2):
                    te = ACCA + ((2 * c + ft) * 4 + 2 * mp) * 4; to = te + 4
                    for r in range(8):
                        x = mul(te + r, te + r, SP + 8 * mp + r); x.needs = [rs[2 * mp + r // 4]]; L.append(x)
                    L += [cvt(te, te, te + 1), cvt(te + 1, te + 2, te + 3), cvt(te + 2, to, to + 1), cvt(te + 3, to + 2, to + 3)]
                    st = Ins(f'buffer_store_dwordx4 {vr(te)}, v{vQS[0]}, {sr(SW)}, s{T2 if c else QM} offen offset:{1024*ft} sc1')
                    L.append(st); kv_stores.append(st)
        return L
    def l1_epi():
        L = II(f's_lshl_b32 s{T3}, s{FH}, 3\ns_add_u32 s{T3}, s{T3}, {HLONE}\nv_add_u32 v{SP+11}, s{T3}, v{vHW}')
        ws_ = []
        for mt in range(4):
            g0 = ACCA + mt * 4; u0 = ACCA + (4 + mt) * 4
            L += [mul(g0 + t, g0 + t, u0 + t) for t in range(4)] + [cvt(u0, g0, g0 + 1), cvt(u0 + 1, g0 + 2, g0 + 3)]
            w = Ins(f'ds_write_b64 v{SP+11}, {vr(u0,2)} offset:{1024*mt}'); ws_.append(w)
            if not opt.get('bw'): L.append(w)
        if opt.get('bw'): L += [('SKIP', 2), list(ws_)] if opt['bw'] == 1 else flat0([[('SKIP', 4), w] for w in ws_])
        L2 = II(f's_lshl_b32 s{T3}, s{FH}, 11\ns_add_u32 s{T3}, s{T3}, {HLONE}\nv_add_u32 v{SP+11}, s{T3}, v{vHW}')
        rd = [Ins(f'ds_read_b128 {vr(ACCA+4*m)}, v{SP+11} offset:{1024*m}') for m in range(2)]
        sts = [Ins(f'buffer_store_dwordx4 {vr(ACCA+4*m)}, v{vL16}, {sr(SW)}, s{HLN} offen offset:{1024*m} sc1', needs=[rd[m]]) for m in range(2)]
        return L, sts, ws_, L2 + rd + [('SKIP', 10)] + sts
    hw = {}
    def pair_epi(acc, q):
        L = II(f's_add_u32 s{ST}, s{HS}, {q*2*8192}\ns_lshl_b32 s{T1}, s{FH}, 13\ns_add_u32 s{T1}, s{T1}, {hphys[q]*SLOT}\nv_add_u32 v{SP+11}, s{T1}, v{vHW}')
        sts = []; hw[q] = []
        for mt in range(4):
            g0 = acc + mt * 4; g1 = acc + (4 + mt) * 4; u0 = acc + (8 + mt) * 4; u1 = acc + (12 + mt) * 4
            L += [mul(g0 + t, g0 + t, u0 + t) for t in range(4)]
            L += [mul(g1 + t, g1 + t, u1 + t) for t in range(4)]
            L += [cvt(u0, g0, g0 + 1), cvt(u0 + 1, g0 + 2, g0 + 3), cvt(u0 + 2, g1, g1 + 1), cvt(u0 + 3, g1 + 2, g1 + 3)]
            st = Ins(f'buffer_store_dwordx4 {vr(u0)}, v{vL16}, {sr(SW)}, s{ST} offen offset:{1024*mt} sc1')
            w = Ins(f'ds_write_b128 v{SP+11}, {vr(u0)} offset:{1024*mt}', cost=2)
            if q < 3 and opt.get('w64', 0):
                w = [Ins(f'ds_write_b64 v{SP+11}, {vr(u0+2*h,2)} offset:{1024*mt+8*h}') for h in range(2)]
                L += [st] + w; hw[q] += w
            else:
                L += [st, w]; hw[q].append(w)
            sts.append(st)
        return L, sts
    def d_epi(acc, q, cs=(0, 1)):
        L = []
        for c in cs:
            L.append(Ins(f's_sub_u32 s{ST}, s{PS}, {(2*q+c)*2*8192}'))
            for mt in range(4):
                t0 = acc + (8 * c + mt) * 4; t1 = acc + (8 * c + 4 + mt) * 4
                if mt == 2: L.append(Ins(f's_xor_b32 s{ST}, s{ST}, 2048'))
                L += [cvt(t0, t0, t0 + 1), cvt(t0 + 1, t0 + 2, t0 + 3), cvt(t0 + 2, t1, t1 + 1), cvt(t0 + 3, t1 + 2, t1 + 3)]
                L.append(Ins(f'buffer_store_dwordx4 {vr(t0)}, v{vL16}, {sr(SW)}, s{ST} offen offset:{1024*(mt&1)} sc1'))
        return L
    def poll_check(name, ld, test):
        g = [Ins(t, needs=[ld] if n == 0 else []) for n, t in enumerate(test)]
        g.append(Ins('s_cbranch_scc0 %s_slow' % name))
        g.append(Ins('%s_ok:' % name))
        S = Prog()
        S.label('%s_slow' % name)
        S('s_mov_b32 s%d, 400000' % SPN)
        S.label('%s_loop' % name)
        S('s_sleep 2')
        S(ld.text)
        S('s_waitcnt vmcnt(0)')
        S('s_sub_u32 s%d, s%d, 1' % (SPN, SPN))
        S('s_cbranch_scc1 %s_ok' % name)
        for t in test: S(t)
        S('s_cbranch_scc0 %s_loop' % name)
        S('s_branch %s_ok' % name)
        slow.append(S.text())
        return g
    def setflag(n, reg):
        return II(f'v_mov_b32 v{reg}, {n}\nbuffer_store_dword v{reg}, v{vFL}, {sr(SW)}, s{MYF} offen sc1')
    def hpoll(n, reg):
        ld = T(f'buffer_load_dword v{reg}, off, {sr(SW)}, s{PF} sc1')
        return ld, poll_check('h%d' % n, ld, [f'v_readfirstlane_b32 s{T2}, v{reg}', f's_cmp_ge_u32 s{T2}, {n}'])

    qe = qkv_epi()
    pe = [pair_epi(PACC[q], q) for q in range(4)]
    le = l1_epi()
    VREG = [ACCA + 4 * n for n in range(16)] + [SP + 4 * n for n in range(4)]
    G0M, G1M = 96, 98
    late = II(f'''s_mov_b32 s{SQ}, s8
    s_mov_b32 s{SQ+1}, s9
    s_mov_b32 s{SQ+2}, 0x{576*1152:x}
    s_mul_i32 s{T1}, s{T0}, {BLK//2}
    s_mul_i32 s{T2}, s{J}, 2304
    s_add_u32 s{T1}, s{T1}, s{T2}
    s_mov_b32 s{G0M}, 0xffff
    s_mov_b32 s{G0M+1}, 0
    s_mov_b32 s{G1M}, 0xffff0000
    s_mov_b32 s{G1M+1}, 0''')
    for a_ in range(5):
        late += II(f's_add_u32 s{KO+a_}, s{T1}, 0x{KOFF + (2*a_-9)*BLK:x}')
        if a_ < 4:
            late.append(II(f's_cmp_ge_u32 s{T0}, {16-4*a_}\ns_cselect_b32 s{KO+a_}, s{KO+a_}, 0x{OOB:x}\ns_cselect_b32 s{KB+a_}, 0, 0xf149'))
    a0, a1, a2, a3 = SP, SP + 1, SP + 2, SP + 3
    vTK, vQR, vTD_, vR0, vR1 = SP + 4, SP + 5, QF + 12, SP + 7, SP + 8
    late += II(f'''v_and_b32 v{a0}, 15, v{vL}
    v_lshrrev_b32 v{a1}, 4, v{vL}
    v_mov_b32 v{a3}, 0x{OOB:x}
    s_mul_i32 s{T2}, s{FH}, 1280
    s_add_u32 s{T3}, s{T2}, {BLK+144*256}
    v_add_u32 v{vKM}, s{T3}, v{vL16}
    v_lshlrev_b32 v{a1}, 4, v{a1}
    v_lshl_add_u32 v{a1}, v{a0}, 6, v{a1}
    s_add_u32 s{T3}, s{T2}, {BLK+73728}
    v_add_u32 v{vVM}, s{T3}, v{a1}
    s_lshl_b32 s{T2}, s{FH}, 7
    s_add_u32 s{T2}, s{T2}, {BLK+73728+1024}
    v_add_u32 v{a1}, s{T2}, v{a1}
    v_cmp_gt_u32 vcc, 2, v{a0}
    s_lshl_b32 s{T2}, s{FH}, 2
    s_add_u32 s{T2}, s{T2}, {BLK+148*256}
    v_lshlrev_b32 v{a2}, 4, v{a0}
    v_cndmask_b32 v{vVR}, v{a3}, v{a1}, vcc
    v_add_u32 v{a2}, s{T2}, v{a2}
    v_cmp_gt_u32 vcc, 32, v{vL}
    v_subrev_u32 v{a1}, {BLK-8}, v{a2}
    v_cndmask_b32 v{vR0}, v{a3}, v{a2}, {sr(G0M,2)}
    v_cndmask_b32 v{vQR}, v{a3}, v{a2}, vcc
    v_cndmask_b32 v{vR1}, v{a3}, v{a1}, {sr(G1M,2)}
    v_cndmask_b32 v{vKR}, v{vR0}, v{a1}, {sr(G1M,2)}
    v_and_b32 v{a0}, 3, v{a0}
    s_mul_i32 s{T2}, s{J}, 2304
    s_sub_u32 s{T2}, {BLK+110592}, s{T2}
    v_mov_b32 v{a2}, s{T2}
    v_cmp_eq_u32 vcc, 2, v{a0}
    v_mul_u32_u24 v{a0}, 3641, v{vL}
    v_lshrrev_b32 v{a0}, 16, v{a0}
    v_cndmask_b32 v{vVR}, v{vVR}, v{a2}, vcc
    v_lshlrev_b32 v{a1}, 7, v{vL}
    v_cmp_gt_u32 vcc, 41, v{vL}
    v_mul_u32_u24 v{a0}, {36864-18*128}, v{a0}
    v_lshl_add_u32 v{a0}, v{vL}, 7, v{a0}
    v_cndmask_b32 v{vTD_}, v{a3}, v{a1}, vcc
    v_cmp_gt_u32 vcc, 54, v{vL}
    s_nop 0
    s_nop 0
    v_cndmask_b32 v{vTK}, v{a3}, v{a0}, vcc''')
    kvld = T(f'buffer_load_dwordx4 {vr(SP+12)}, off, {sr(SB)}, s{DB} sc1', 32)
    kvtest = [f'v_readfirstlane_b32 s{T2}, v{SP+12}', f'v_readfirstlane_b32 s{T3}, v{SP+13}', f'v_readfirstlane_b32 s{T1}, v{SP+14}',
              f's_or_b32 s{T2}, s{T2}, s{N0}', f's_or_b32 s{T3}, s{T3}, s{N1}', f's_and_b32 s{T2}, s{T2}, s{T3}',
              f's_and_b32 s{T2}, s{T2}, s{T1}', f's_cmp_eq_u32 s{T2}, 0xffff']
    kv2pre = II(f'''v_lshlrev_b32 v{SP+9}, 7, v{vL}
    v_cmp_gt_u32 vcc, 48, v{vL}
    s_lshl_b32 s{DB}, s{I}, 11
    s_add_u32 s{DB}, s{DB}, 0x{FOFF-4096:x}
    v_cndmask_b32 v{SP+9}, v{a3}, v{SP+9}, vcc
    s_lshl_b32 s{N1}, s{N1}, 16
    s_or_b32 s{N1}, s{N1}, s{N0}''')
    kv2ld = T(f'buffer_load_dword v{SP+12}, v{SP+9}, {sr(SW)}, s{DB} offen sc1', 32)
    kv2test = [f'v_cmp_le_u32 vcc, 1, v{SP+12}', 's_nop 1', f's_or_b32 s{T2}, vcc_lo, s{N1}', f's_or_b32 s{T3}, vcc_hi, 0xffff0000', f's_and_b32 s{T2}, s{T2}, s{T3}', f's_cmp_eq_u32 s{T2}, -1']
    kvpre = II(f'''s_lshl_b32 s{T3}, s{I}, 2
    s_add_u32 s{T3}, s{T3}, s{Wv}
    s_mul_i32 s{T3}, s{T3}, {BLK}
    s_mul_i32 s{T2}, s{J}, 2304
    s_add_u32 s{T3}, s{T3}, s{T2}
    s_add_u32 s{T3}, s{T3}, 0x{KOFF:x}''')
    kvtouch = [T(f'buffer_load_dword v0, v{vTK}, {sr(SW)}, s{T3} offen')] if opt.get('kvt', 0) else []
    if JX > 2 and opt.get('kvt', 0):
        kvtouch += II(f's_sub_u32 s{T3}, s{T3}, {8*BLK}\ns_and_b32 s{T2}, s{I}, {32//JX-2}') + \
                   [II(f's_or_b32 s{T2}, s{T2}, s{N0}\ns_cselect_b32 s{T3}, 0x{OOB:x}, s{T3}'), T(f'buffer_load_dword v0, v{vTK}, {sr(SW)}, s{T3} offen')]
    kvtouch += [II(f's_getpc_b64 {sr(SB,2)}') + [Ins('K1_pc2:')]] + II(f'''s_mov_b32 s{SB+2}, code_end-K1_pc2
    s_and_b32 s{T2}, s{NN}, 7
    s_lshl_b32 s{T2}, s{T2}, 2
    s_add_u32 s{T2}, s{T2}, s{Wv}
    s_mul_i32 s{T2}, s{T2}, {10*128}
    v_lshlrev_b32 v{SP}, 7, v{vL}
    v_cmp_gt_u32 vcc, 10, v{vL}
    s_nop 0
    s_nop 0
    v_cndmask_b32 v{SP}, v{a3}, v{SP}, vcc''') + [T(f'buffer_load_dword v0, v{SP}, {sr(SB)}, s{T2} offen', 32)]
    qld = []; ql = []
    for a_ in range(2):
        l0 = Ins(f'buffer_load_dwordx4 {vr(QF+4*a_)}, v{vKM}, {sr(SW)}, s{T3} offen sc1')
        l1 = [Ins(f'buffer_load_dword v{QF+8+2*a_+h}, v{vQR}, {sr(SW)}, s{T3} offen offset:{8*h} sc1') for h in range(2)]
        ql += [Ins(f's_add_u32 s{T3}, s{KO+4}, {(a_*BLK - 36864) & 0xffffffff}'), l0, l1[0], l1[1]]; qld += [[l0, l1[0]], [l0, l1[1]]]
    km = []; kr = []; kl = []; vld = []; vl = []
    PACE = ('SKIP', 0)
    for b_ in range(11):
        so = Ins(f's_add_u32 s{T3}, s{KO+min(b_//2,4)}, {(b_-2*min(b_//2,4))*BLK}')
        r_ = Ins(f'buffer_load_dword a{6*b_}, v{vR0 if b_ == 0 else (vR1 if b_ == 10 else vKR)}, {sr(SW)}, s{T3} offen sc1'); kr.append(r_)
        kl += [so, r_, PACE]
        lo_, hi_ = b_ // 2, (b_ - 1) // 2
        nm_ = lambda q_: f's{KB+q_}' if 0 <= q_ < 4 else '0'
        if b_ <= 8: kl += II(f's_pack_ll_b32_b16 s{T2}, {nm_(lo_)}, {nm_(hi_)}\nv_accvgpr_write_b32 a{6*b_+1}, s{T2}')
        else: kl += II(f'v_accvgpr_write_b32 a{6*b_+1}, 0')
        if b_ < 10:
            m_ = Ins(f'buffer_load_dwordx4 {ar(6*b_+2)}, v{vKM}, {sr(SW)}, s{T3} offen sc1'); km.append(m_)
            kl += [m_, PACE]
    kld = [[km[u // 2], kr[(u + 1) // 2]] for u in range(20)]
    for v in range(10):
        a_ = Ins(f'buffer_load_dwordx4 {vr(VREG[2*v])}, v{vVM}, {sr(SW)}, s{T3} offen sc1')
        b_ = Ins(f'buffer_load_dwordx4 {vr(VREG[2*v+1])}, v{vVR}, {sr(SW)}, s{T3} offen sc1')
        vl.append([Ins(f's_add_u32 s{T3}, s{KO+v//2}, {(v%2)*BLK}'), a_, PACE, b_, PACE]); vld += [a_, b_]
    def vfix(v): return [Ins(f'v_or_b32 v{VREG[2*v+1]+r}, v{vONES}, v{VREG[2*v+1]+r}', needs=[vld[2 * v + 1]]) for r in range(4)]
    pfd = [T(f'buffer_load_dword v0, v{vTD_}, {sr(SD)}, s{PFD} offen offset:2048' + NT, opt.get('qd', 120))]
    if opt.get('nod') or opt.get('cls'): pfd = []
    pfw = II(f's_mul_i32 s{T2}, s2, {21*128}') + [II(f's_cmp_eq_u32 s{Wv}, 0\ns_cselect_b32 s{T2}, s{T2}, 0x{OOB:x}'), T(f'buffer_load_dword v0, v{vTD_}, {sr(SQ)}, s{T2} offen', 40)]
    if opt.get('nod'): pfw = []
    h1ld, h1chk = hpoll(2, vPFP)
    e_ = opt.get('ev', [8, 0, 26, 29, 38])
    flat = lambda l: [y for x in l for y in x]
    NV1 = opt.get('nv1', 3)
    cls_chain = []
    if opt.get('cls'):
        va, vs_ = QF + 13 - 9, QF + 13 - 8
        cls_chain = II(f'''v_lshrrev_b32 v{va}, 2, v{vL}
        v_mul_u32_u24 v{va}, 9216, v{va}
        v_bfe_u32 v{vs_}, v{vL}, 1, 1
        v_mul_u32_u24 v{vs_}, 1152, v{vs_}
        v_add_u32 v{va}, v{va}, v{vs_}
        v_and_b32 v{vs_}, 1, v{vL}
        v_lshl_add_u32 v{va}, v{vs_}, 10, v{va}
        v_cmp_gt_u32 {sr(DUM,2)}, 36, v{vL}
        v_mov_b32 v{va+2}, 0x{OOB:x}
        v_lshlrev_b32 v{vs_}, 8, v{vs_}
        v_cndmask_b32 v{va}, v{va+2}, v{va}, {sr(DUM,2)}
        v_sub_u32 v{vs_}, 128, v{vs_}
        s_lshr_b32 s{DUM}, s2, 5
        s_lshl_b32 s{DUM}, s{DUM}, 3
        s_and_b32 s{DUM+1}, s2, 7
        s_or_b32 s{DUM}, s{DUM}, s{DUM+1}
        s_mul_i32 s{PFP}, s{DUM}, {9*9216}
        s_mul_i32 s{DUM+1}, s{Wv}, 2304
        s_add_u32 s{PFP}, s{PFP}, s{DUM+1}
        s_and_b32 s{DUM}, s{NN}, 3''')
        sites_ = opt['cls']; qc = opt.get('qc', 24)
        for n, sl in enumerate(sites_):
            if sl: cls_chain += [('AT', sl - 1, 16)]
            if n < 6 and n % 2 == 0: cls_chain += II(f'v_add_u32 v{va}, v{va}, v{vs_}')
            if not sl: continue
            if n < 6:
                cls_chain += [II(f's_cmp_eq_u32 s{DUM}, {n % 4}\ns_cselect_b32 s{PFW}, s{PFP}, 0x{OOB:x}'), ('AT', sl, 0),
                              T(f'buffer_load_dword v0, v{va}, {sr([SG, SU][n % 2])}, s{PFW} offen offset:{2048 * (n % 2)}', qc)]
            else:
                cls_chain += [II(f's_cmp_eq_u32 s{DUM}, {n % 4}\ns_cselect_b32 s{PFW}, s{PFD}, 0x{OOB:x}'), ('AT', sl, 0),
                              T(f'buffer_load_dword v0, v{vTD_}, {sr(SD)}, s{PFW} offen offset:2048', qc)]
    fill1 = [(sl, 0, stamp('slot%d' % sl, True)) for sl in range(NSEG1)] + [
        (0, 0, r1[8:]),
        (1, 0, cls_chain),
        (0, 2, late0 + late0b + [('BY', 9), ('AT', 9, 4)] + qe + [('BY', 16)] + late + [kvld, ('AT', 18, 4)]
         + pe[0][0] + [('BY', 24), poll_check('kv', kvld, kvtest)] + kv2pre + [('AT', 24, 4)]
         + le[0] + [('BY', 26), ('AT', e_[2], 0), kv2ld] + [('AT', 27, 0)] + le[3] + [('AT', e_[3] - 1, 8), poll_check('kw', kv2ld, kv2test)] + kvpre + [('AT', e_[3], 0)] + pfd + pfw + kvtouch + [('BY', 33), ('AT', 33, 4)]
         + pe[1][0] + ql + [('BY', 42), ('AT', 42, 4)]
         + pe[2][0] + [('AT', 44, 0)] + kl + flat(vl[:NV1])),
    ]
    bx1 = {
        3: (r1, []),
        opt.get('kvf', 17): (kv_stores + [guard, ones_st], setflag(1, SP + 10)),
        27: (le[2], []),
        opt.get('hf', 49): (pe[0][1] + le[1] + pe[1][1] + pe[2][1], setflag(2, SP + 10)),
    }
    extra_loads[3] = [5, 6, 7, 8, load_at.pop(2)]
    xmap = {}
    for n, x in enumerate(r1):
        ks = n // 2
        for mt in range(4): xmap[breg(ks, mt)] = r1[2 * ks + (mt & 1)] if mt >= 2 else None
    mark = {}
    def hook(k, s):
        if k == 0:
            P(f's_cmp_ge_u32 s{J}, 9')
            P('s_cbranch_scc1 qkv_v')
            mark['a'] = len(P.out)
        if s == 9 and 'b' not in mark:
            mark['b'] = len(P.out)
            P.label('qkv_e')
    left = segment(0, NSEG1, fill1, bx1, first_loads=list(range(NPRE, 5)), hook=hook, pre=r1[:8], extra_need=lambda f, mt: xmap[f.b(mt)])
    qrd = set(id(x) for n in range(9) for g in slots[n].groups for f in g for x in f.rd)
    K = Prog(); K.label('qkv_k'); nb_ = 0
    for x in P.out[mark['a']:mark['b']]:
        if x.kind == 'mfma' or id(x) in qrd or x.op == 's_nop': continue
        t = x.text
        if x.kind == 'label': K.label(t[:-1].replace('_e', 'k_e')); continue
        if x.op == 's_cbranch_scc1': t += 'k'
        if x.op == 's_waitcnt':
            if 'vmcnt' not in t: continue
            t = t.split(' lgkmcnt')[0]
        if x.op == 's_barrier':
            nb_ += 1
            if nb_ <= 3: K('s_waitcnt lgkmcnt(0)')
        K(t)
    K('s_waitcnt lgkmcnt(0)'); K('s_nop 4'); K('s_branch qkv_e')
    slow.append(K.text())
    alt = ['qkv_v:', f'    s_cmp_ge_u32 s{J}, 14', '    s_cbranch_scc1 qkv_k'] if opt.get('skip', 1) else ['qkv_v:']
    for x in P.out[mark['a']:mark['b']]:
        t = x.text
        if x.kind == 'label': alt.append(t.replace('_e:', 'v_e:')); continue
        if x.op == 's_cbranch_scc1': t += 'v'
        if x.kind == 'mfma':
            o = [y.strip() for y in t[len(x.op):].split(',')]
            t = '%s %s, %s, %s, %s' % (x.op, o[0], o[2], o[1], o[3])
        alt.append('    ' + t)
    alt.append('    s_branch qkv_e')
    slow.append('\n'.join(alt) + '\n')
    print('left after seg1:', len(left), file=sys.stderr)
    stamp('g1end')

    SREG = [80] + [ACCB + (tl * 4 + mt) * 4 for mt in range(4) for tl in (0, 1, 3, 2)]
    PR = [84, 88]; OM, OR_ = 96, 100; MF, ML = 104, 108
    noskip = lambda l: [x for x in l if not isinstance(x, tuple)]
    def qbuild(t):
        q = QF + 2 * t
        P(Ins(f'v_mov_b32 v{QW+2}, v{q}', needs=qld[t]))
        P(f'v_mov_b32 v{QW+3}, v{q+1}')
        P(f'v_cndmask_b32 v{QW}, 0, v{QF+8+t}, {sr(G0M,2)}')
        P(f'v_cndmask_b32 v{QW+4}, 0, v{QF+8+t}, {sr(G1M,2)}')
    P('v_mov_b32 v%d, 0x%x' % (vTA, NEG))
    P(f'v_mov_b32 v{QW+1}, 0x3f80')
    P(f'v_mov_b32 v{QW+5}, 0x3f800000')
    qbuild(0)
    pq = list(pe[3][0])
    for r in range(4):
        P('v_cmp_lt_i32 vcc, %d, v%d' % (-r, vDG))
        P(pq.pop(0)); P(pq.pop(0))
        P('v_cndmask_b32 v%d, v%d, 0, vcc' % (MF + r, vTA))
        P('v_cndmask_b32 v%d, 0, v%d, vcc' % (ML + r, vTA))
    P(f's_cmp_eq_u32 s{FH}, 0')
    P('s_cselect_b64 vcc, -1, 0')
    P(f's_xor_b32 s{N0}, s{C}, 0x80000000')
    hld = {}
    def hload(k):
        if isinstance(k, tuple):
            ka, kb = k
            pre = II(f's_mul_i32 s{T2}, s{FH}, {(ka-kb)*8192}\ns_add_u32 s{T2}, s{T2}, s{HL}\ns_add_u32 s{T2}, s{T2}, {(17-ka)*8192}') if ka != kb else II(f's_add_u32 s{T2}, s{HL}, {(17-ka)*8192}')
            tx = lambda kk, mt: f'buffer_load_dwordx4 {breg(hpos[kk], mt)}, v{vL16}, {sr(SW)}, s{T2} offen offset:{1024*mt} sc1'
            ld = [Ins(tx(ka, mt)) for mt in range(4)]
            hld[ka] = [ld[3]] * 4; hld[kb] = [ld[3]] * 4
            if ka == kb: return [pre + ld[:1], ld[1:2], ld[2:3], ld[3:]]
            return [(pre if h == 0 else []) + alt_site(ld[2*h:2*h+2], [tx(kb, 2*h), tx(kb, 2*h+1)]) for h in range(2)]
        base = HLONE if k == 8 else hphys[k // 2] * SLOT + (k & 1) * 8192
        hld[k] = [Ins(f'ds_read_b128 {breg(hpos[k], mt)}, v{vONES} offset:{1024*mt}') for mt in range(4)]
        return [II(f'v_add_u32 v{vONES}, {base}, v{vHW}') + hld[k][:2], hld[k][2:]]
    def qk(t, sg):
        u = t + sg
        c = vr(MF) if sg == 0 else (vr(ML) if sg == 16 else '0')
        return Ins('v_mfma_f32_16x16x32_bf16 %s, %s, %s, %s' % (vr(SREG[sg]), ar(3 * u + (u & 1)), vr(QW + 2 * (u & 1)), c), needs=kld[u])
    def mx(sg, dst):
        s = SREG[sg]
        if sg == 0: return II('v_max3_f32 v%d, v%d, v%d, v%d\nv_max_f32 v%d, v%d, v%d' % (dst, s, s + 1, s + 2, dst, dst, s + 3))
        return II('v_max3_f32 v%d, v%d, v%d, v%d\nv_max3_f32 v%d, v%d, v%d, v%d' % (dst, dst, s, s + 1, dst, dst, s + 2, s + 3))
    lk = [x for x in left if any(y in km or y in kr for y in x)]
    if lk:
        n = left.index(lk[-1]) + 1; emit_all(left[:n]); left = left[n:]
    P(qk(0, 0))
    nq = 1; avail = 1; nmx = 0
    while pq:
        x = pq.pop(0); P(x)
        if x.kind == 'ds': avail += 4
        elif nq < avail and len(pq) % 2 == 0: P(qk(0, nq)); nq += 1
    def bunch(l):
        out = []; cur = []
        for x in l:
            cur += x
            if any(y.kind == 'vmem' for y in x): out.append(cur); cur = []
        assert not cur
        return out
    isdma = lambda x: any(' lds' in y.text or f's{OFF},' in y.text.split()[1] or 'm0' in y.text or f's{BD},' in y.text.split()[1] for y in x)
    ldma = bunch([x for x in left if isdma(x)])
    lv = bunch([x for x in left if not isdma(x)] + [[x] for v in range(NV1, 10) for x in noskip(vl[v])])
    while nq < 17:
        P(qk(0, nq)); nq += 1
        emit_all(mx(nmx, vMN)); nmx += 1
    while nmx < 17:
        if len(lv) > 12 and nmx % 2: emit_all(lv.pop(0))
        emit_all(mx(nmx, vMN)); nmx += 1
    while len(lv) > 12: emit_all(lv.pop(0))
    qbuild(1)
    stamp('attk')
    ow = []
    def o_epi(t):
        P('v_rcp_f32 v%d, v%d' % (vTA, OR_ + 2))
        for r in range(4): P(mul(OM + r, OM + r, vTA))
        for r in range(2): P(mul(OR_ + r, OR_ + r, vTA))
        P(cvt(QF + 2 * t, OM, OM + 1)); P(cvt(QF + 2 * t + 1, OM + 2, OM + 3)); P(cvt(QF + 8 + t, OR_, OR_ + 1))
    ofl = II(f'''s_lshl_b32 s{T2}, s{FH}, 3
    s_add_u32 s{T2}, s{T2}, {HLONE}
    v_add_u32 v{vTB}, s{T2}, v{vHW}
    s_lshl_b32 s{T2}, s{RG}, 9
    s_lshl_b32 s{T3}, s{FH}, 2
    s_add_u32 s{T2}, s{T2}, s{T3}
    s_add_u32 s{T2}, s{T2}, {RT4}
    v_lshlrev_b32 v{vTA}, 3, v{vL}
    v_add_u32 v{vMX}, 4096, v{vTA}
    v_cndmask_b32 v{vTA}, v{vMX}, v{vTA}, {sr(G0M,2)}
    v_add_u32 v{vTA}, s{T2}, v{vTA}''')
    for t in range(4):
        ow += [Ins(f'ds_write_b64 v{vTB}, {vr(QF+2*t,2)} offset:{1024*t}'), Ins(f'ds_write_b32 v{vTA}, v{QF+8+t} offset:{128*t}')]
    ofl += ow
    h2ld, h2chk = hpoll(3, vPFP)
    hplan = opt.get('hplan', {0: [0, 1, 2, 3, 4, 5], 1: [(16, 17), (14, 15), (12, 13), (9, 9)], 2: [(17, 16), (15, 14), (13, 12), 8], 3: [(10, 11), (11, 10)]})
    if opt.get('plain', 1): hplan = {0: [0, 1, 2, 3, 4, 5], 1: [(16, 16), (17, 17), (14, 14), (15, 15)], 2: [(12, 12), (13, 13), (9, 9), 8], 3: [(10, 10), (11, 11)]}
    for t in range(4):
        stamp('att%d' % t)
        P('v_mov_b32 v%d, v%d' % (vTA, vMN))
        P('v_permlane16_swap_b32 v%d, v%d' % (vTA, vMN))
        P('v_max_f32 v%d, v%d, v%d' % (vMN, vMN, vTA))
        P('v_mov_b32 v%d, v%d' % (vTA, vMN))
        P('v_permlane32_swap_b32 v%d, v%d' % (vTA, vMN))
        P('v_max_f32 v%d, v%d, v%d' % (vMN, vMN, vTA))
        P(f'v_mul_f32 v{vMX}, s{N0}, v{vMN}')
        if t == 1:
            P(Ins('s_barrier', needs=pe[3][1] + hw[3] + [x for k in range(6) for x in hld[k]]))
            ad = bunch(flat([dma_groups(n) for n in att_loads[:sum(opt.get('na', [0, 4, 6, 10])) // 4]]))
            emit_all(setflag(3, vPFS))
            emit_all(h1chk)
        if t == 3:
            P(Ins('s_barrier', needs=slots[NSEG1].loads + hld[8]))
            emit_all(h2chk)
        bq = flat([hload(k) for k in hplan[t]])
        def mix(a_, b_):
            out = []; a_ = list(a_); b_ = list(b_)
            while a_ or b_:
                if a_: out.append(a_.pop(0))
                if b_: out.append(b_.pop(0))
            return out
        if t == 0:
            bq = mix(lv + ldma, bq); bq.insert(len(bq) * 2 // 3, [h1ld])
        else:
            na = opt.get('na', [0, 4, 6, 10])[t]
            bq = mix(bq, ad[:na]) if t < 3 or opt.get('plain', 1) else bq[:2] + ad[:na] + bq[2:]
            ad = ad[na:]
        ppv = []; pqk = []; pmx = []
        for b in range(9):
            v = (t >> 1) + b
            sgs = [2 * v - t, 2 * v + 1 - t]
            val = [sg for sg in sgs if 0 <= sg <= 16]
            p = PR[b % 2]
            for sg in val:
                for r in (0, 2):
                    s = SREG[sg] + r
                    P(f'v_pk_fma_f32 {vr(s,2)}, {vr(s,2)}, {sr(C,2)}, {vr(vMX,2)} op_sel_hi:[1,0,0]')
            mfs = ppv + [qk(t + 1, g_) for g_ in pqk]
            nb = (len(bq) + (8 - b)) // (9 - b)
            def withmem(x):
                nonlocal nb
                g = []
                if nb: g = bq.pop(0); nb -= 1
                n0 = 0
                while n0 < len(g) and g[n0].kind in ('salu', 'valu') and not g[n0].op.startswith('s_cbranch'): n0 += 1
                emit_all(g[:n0]); P(x); emit_all(g[n0:])
            for sg in val:
                for r in range(4):
                    P('v_exp_f32 v%d, v%d' % (SREG[sg] + r, SREG[sg] + r))
                    if mfs and (not opt.get('spr') or r % 2 == 0 or len(val) == 1): withmem(mfs.pop(0))
            while mfs: withmem(mfs.pop(0))
            nb += 1
            for g_ in pmx: emit_all(mx(g_, vMN))
            for hh, sg in enumerate(sgs):
                if sg in val:
                    s = SREG[sg]
                    P(cvt(p + 2 * hh, s, s + 1)); P(cvt(p + 2 * hh + 1, s + 2, s + 3))
                else:
                    P('v_mov_b32 v%d, 0' % (p + 2 * hh)); P('v_mov_b32 v%d, 0' % (p + 2 * hh + 1))
            for _ in range(nb - 1): emit_all(bq.pop(0))
            pmx = pqk; pqk = val if t < 3 else []
            ppv = [Ins('v_mfma_f32_16x16x32_bf16 %s, %s, %s, %s' % (vr(OM), vr(VREG[2 * v]), vr(p), '0' if b == 0 else vr(OM)), needs=[vld[2 * v]]),
                   Ins('v_mfma_f32_16x16x32_bf16 %s, %s, %s, %s' % (vr(OR_), vr(VREG[2 * v + 1]), vr(p), '0' if b == 0 else vr(OR_)), needs=[vld[2 * v + 1]])]
            if t == 2 and b == 5: P(h2ld)
        assert not bq
        tail = flat([mx(g_, vMN) for g_ in pmx])
        for x in [qk(t + 1, g_) for g_ in pqk] + ppv:
            P(x)
            if tail: P(tail.pop(0))
        emit_all(tail)
        if t < 2: qbuild(t + 2)
        for g_ in pqk: emit_all(mx(g_, vMN))
        if t < 3: o_epi(t)
    stamp('attend')

    own = flat(flat([hload(k) for k in (6, 7)]))
    bmap = {}
    for k in hld:
        for mt in range(4): bmap[breg(hpos[k], mt)] = hld[k][mt]
    def restage(dst, sbase, stride, T3=T3):
        L = II(f's_lshl_b32 s{T3}, s{FH}, 11\ns_add_u32 s{T3}, s{T3}, {HLONE}\nv_add_u32 v{vTB}, s{T3}, v{vHW}')
        rd = [Ins(f'ds_read_b128 {vr(dst+4*m)}, v{vTB} offset:{1024*m}') for m in range(2)]
        L += rd + II(f's_add_u32 s{T3}, s{sbase}, {stride}') + [('SKIP', 8)]
        L += [Ins(f'buffer_store_dwordx4 {vr(dst+4*m)}, v{vL16}, {sr(SW)}, s{[sbase, T3][m]} offen sc1', needs=[rd[m]]) for m in range(2)]
        return L, rd
    oe, ord_ = restage(QF, OB, 18432)
    rr = Ins(f'ds_read_b128 {vr(QF+8)}, v{vTA}')
    oe += II(f'v_add_u32 v{vTA}, {RT4}, v{vL16}') + [rr] + II(f'v_lshrrev_b32 v{vTA}, 3, v{vL}\nv_mul_u32_u24 v{vTA}, {18432-128}, v{vTA}\nv_add_u32 v{vTA}, v{vTA}, v{vL16}') + [('SKIP', 8)]
    oe += [Ins(f'buffer_store_dwordx4 {vr(QF+8)}, v{vTA}, {sr(SW)}, s{OR} offen sc1', needs=[rr])]
    l2e = II(f's_lshl_b32 s{T3}, s{FH}, 3\ns_add_u32 s{T3}, s{T3}, {HLONE}\nv_add_u32 v{vTB}, s{T3}, v{vHW}'); l2w = []
    for mt in range(4):
        t0 = SP + mt * 4
        w = Ins(f'ds_write_b64 v{vTB}, {vr(t0,2)} offset:{1024*mt}'); l2w.append(w)
        l2e += [cvt(t0, t0, t0 + 1), cvt(t0 + 1, t0 + 2, t0 + 3), w]
    l2s, _ = restage(SP, PLN, 1024, T1)
    TLT, TVT = opt.get('tl', 0x54108732), opt.get('tv', 0x56557777)
    def task_params(second):
        ln = II(f's_lshl_b32 s{T2}, s{Pp}, 2\ns_lshr_b32 s{T1}, {TLT:#x}, s{T2}\ns_and_b32 s{T1}, s{T1}, 15\ns_lshr_b32 s{TV}, {TVT:#x}, s{T2}\ns_and_b32 s{TV}, s{TV}, 15\ns_movk_i32 s{TM}, 0x5555')
        ln += [II(f's_cmp_gt_u32 s{T1}, 4\ns_cselect_b32 s{T2}, 1, 0'), Ins(f's_lshl_b32 s{TM}, s{TM}, s{T2}'), II(f's_cmp_eq_u32 s{T1}, 4\ns_cselect_b32 s{TM}, 0xffff, s{TM}'), Ins(f's_bitset0_b32 s{TM}, s{J}')]
        return ln + II(f'''s_lshl_b32 s{TL}, s{T1}, 7
        s_lshl_b32 s{T2}, s{E}, 2
        s_add_u32 s{T2}, s{T2}, s{Wv}
        s_lshl_b32 s{TP}, s{T2}, 10
        s_lshl_b32 s{T1}, s{T1}, 14
        s_sub_u32 s{TP}, s{TP}, s{T1}
        s_mul_i32 s{T1}, s{I}, {8*18*8192}
        s_add_u32 s{TP}, s{TP}, s{T1}
        s_lshl_b32 s{T1}, s{I}, 3
        s_add_u32 s{T2}, s{T2}, s{T1}
        s_mul_i32 s{OL}, s{T2}, 18432
        s_add_u32 s{TX}, s{OL}, s{TL}
        s_mul_i32 s{T1}, s{Wv}, {36*1152}
        s_add_u32 s{TL}, s{TL}, s{T1}''')
    tsetup = II(f'''s_mov_b32 s{SG}, s8
    s_mov_b32 s{SG+1}, s9
    s_mov_b32 s{SG+2}, 0x{576*1152:x}
    s_mov_b32 s{SU}, s{OUTP}
    s_mov_b32 s{SU+1}, s{OUTP+1}
    s_mov_b32 s{SU+2}, 0x{2048*1152:x}
    s_lshl_b32 s{FB}, s{I}, 11
    s_add_u32 s{FB}, s{FB}, 0x{FOFF:x}
    s_mov_b32 s{LO}, 0x00003f80
    s_mov_b32 s{HI}, 0x3f800000''') + task_params(False)
    for t, row in enumerate((0, 8, 20, 28)): tsetup += II(f'v_add_u32 v{vWD[t]}, {(row*1152 - 1024*t - 2048) & 0xffffffff}, v{vDD[0]}')
    tsetup += II(f'''v_lshrrev_b32 v{vWD2}, 5, v{vL}
    v_mul_u32_u24 v{vWD2}, {32*1152}, v{vWD2}
    v_add_u32 v{vWD2}, v{vWD2}, v{vWD[0]}
    v_add_u32 v{vWD2}, {16*1152}, v{vWD2}
    v_and_b32 v{vWT[0]}, 0xffff, v{vTD[0]}
    s_lshl_b32 s{T2}, s{FH}, 6
    v_xor_b32 v{vWT[0]}, s{T2}, v{vWT[0]}
    v_xor_b32 v{vWT[1]}, 32, v{vWT[0]}
    v_xor_b32 v{vWT[2]}, 64, v{vWT[0]}
    v_xor_b32 v{vWT[3]}, 0x60, v{vWT[0]}
    v_lshlrev_b32 v{vPL}, 3, v{vOR}
    v_and_b32 v{vMX}, 15, v{vL}
    v_mul_u32_u24 v{vDG}, 1152, v{vMX}
    v_bfe_u32 v{vMN}, v{vL}, 4, 1
    v_lshl_add_u32 v{vDG}, v{vMN}, 5, v{vDG}
    v_lshrrev_b32 v{vMN}, 5, v{vL}
    v_lshl_add_u32 v{vDG}, v{vMN}, 4, v{vDG}
    s_lshl_b32 s{T2}, s{E}, 2
    s_add_u32 s{T2}, s{T2}, s{Wv}
    s_lshl_b32 s{T2}, s{T2}, 8
    s_lshr_b32 s{T3}, s{ROT}, 2
    s_xor_b32 s{T2}, s{T2}, s{T3}
    s_add_u32 s{T2}, s{T2}, {RTB}
    v_lshlrev_b32 v{vMX}, 2, v{vMX}
    v_add_u32 v{vMX}, s{T2}, v{vMX}''')
    rrd = Ins(f'ds_read_b32 v{vMX}, v{vMX}')
    tsetup += [rrd, ('SKIP', 8), Ins(f'v_mul_f32 v{vMX}, v{vMX}, v{vMX}', needs=[rrd]), Ins(f'v_mul_f32 v{vMN}, 0x{f2u(-1.4426950408889634):x}, v{vMX}')]
    fl_t = f'buffer_load_dword v{vPFP}, v{vPL}, {sr(SW)}, s{FB} offen sc1'
    o3ld = T(fl_t, 24)
    o3chk = poll_check('o3', o3ld, [f'v_cmp_le_u32 vcc, 4, v{vPFP}', 's_nop 1', 's_cmp_eq_u32 vcc_lo, 0xffff'])
    d5ld = T(fl_t, 8)
    ct3 = [II(f's_getpc_b64 {sr(SB,2)}') + [Ins('K1_pc3:')]] + II(f'''s_mov_b32 s{SB+2}, code_end-K1_pc3
    s_and_b32 s{T2}, s{NN}, 7
    s_lshl_b32 s{T2}, s{T2}, 2
    s_add_u32 s{T2}, s{T2}, s{Wv}
    s_mul_i32 s{T2}, s{T2}, {9*128}
    v_cmp_gt_u32 vcc, 9, v{vL}
    v_mov_b32 v{vTA}, 0x{OOB:x}
    s_nop 0
    v_cndmask_b32 v{vTA}, v{vTA}, v{vPL}, vcc''') + [T(f'buffer_load_dword v0, v{vTA}, {sr(SB)}, s{T2} offen', 24)]
    ct3 += II(f'''v_mul_u32_u24 v{vTA}, 1152, v{vL}
    v_subrev_u32 v{vTB}, {9*1152-128}, v{vTA}
    v_cmp_gt_u32 vcc, 9, v{vL}
    s_and_b32 s{T2}, s{I}, 7
    s_lshl_b32 s{T2}, s{T2}, 1
    v_cndmask_b32 v{vTA}, v{vTB}, v{vTA}, vcc
    s_add_u32 s{T2}, s{T2}, s{E}
    s_mul_i32 s{T2}, s{T2}, {36*1152}
    s_add_u32 s{T2}, s{T2}, s{TL}
    s_mul_i32 s{T3}, s{Wv}, {27*1152}
    s_sub_u32 s{T2}, s{T2}, s{T3}''') + [II(f's_cmp_ge_u32 s{J}, 14\ns_cselect_b32 s{T3}, 18, 9')] + II(f'''v_cmp_gt_u32 vcc, s{T3}, v{vL}
    v_mov_b32 v{vTB}, 0x{OOB:x}
    s_nop 0
    v_cndmask_b32 v{vTA}, v{vTB}, v{vTA}, vcc''') + [T(f'buffer_load_dword v0, v{vTA}, {sr(SG)}, s{T2} offen', 24)]
    if opt.get('nowt', 1): ct3 = ct3[:-17]
    OA = 160
    old = []; ol = II(f'v_lshlrev_b32 v{vTA}, 3, v{vL}')
    for k in range(18):
        if k == 8: ol += [('AT', NSEG1 + 14, 0)]
        if k == 16: ol += [('AT', NSEG1 + 15, 0)]
        if k % 4 == 0: ol += II(f's_add_u32 s{T3}, s{OL}, 0x{OOFF + k*1024:x}')
        if k < 16: x = [Ins(f'buffer_load_dwordx4 {ar(OA+4*k)}, v{vL16}, {sr(SW)}, s{T3} offen offset:{1024*(k%4)} sc1')]
        else: x = [Ins(f'buffer_load_dwordx2 {ar(OA+4*k+2*h,2)}, v{vTA}, {sr(SW)}, s{T3} offen offset:{1024*(k%4)+512*h} sc1') for h in range(2)]
        ol += x; old.append(x[-1])
    XR2 = SP + 8
    xt_ = lambda u: f'buffer_load_dwordx4 {vr(XR2+4*u)}, v{vDG}, {sr(SX)}, s{TX} offen offset:{64*u}'
    xld = [Ins(xt_(u)) for u in range(2)]
    de0 = d_epi(ACCA, 0); st0 = [x for x in de0 if x.kind == 'vmem']; stl = [x for x in l2s if not isinstance(x, tuple) and x.kind == 'vmem']
    ost = [x for x in oe if not isinstance(x, tuple) and x.kind == 'vmem']
    de1a = d_epi(ACCB, 1, (0,)); de1b = d_epi(ACCB, 1, (1,)); st1 = [x for x in de1a + de1b if x.kind == 'vmem']
    for x in st1 + stl: loud.add(id(x)); svc[id(x)] = 3
    fill2 = [(sl, 0, stamp('slot%d' % sl, True)) for sl in range(NSEG1, NS)] + [
        (NSEG1, 0, ofl + [('AT', NSEG1 + 2, 0)] + oe + tsetup + ct3 + [('BY', NSEG1 + 9), ('AT', NSEG1 + 9, 4)] + de0 + [o3ld, ('AT', NSEG1 + 12, 4)] + l2e + [('BY', NSEG1 + 14)]
         + [('AT', NSEG1 + 13, 0), o3chk] + ol),
        (NS - 1, 19, de1a), (NSEG1 + 15, 0, l2s),
        (NSEG1, 1, own)]
    bx2 = {NSEG1 + 2: (ow, []), NSEG1 + 3: (hld[6] + hld[7], [])}
    bx2[NSEG1 + 7] = (ost, setflag(4, vPFS)); bx2[NSEG1 + 15] = (l2w + st0, setflag(5, vPFS)); bx2[NSEG1 + opt.get('l2f', 20)] = (stl, setflag(6, vPFS))
    left = segment(NSEG1, NS, fill2, bx2, first_loads=att_loads[sum(opt.get('na', [0, 4, 6, 10])) // 4:], extra_need=lambda f, mt: bmap[f.b(mt)], pre=lambda: o_epi(3))
    print('left after seg2:', len(left), file=sys.stderr)
    stamp('g2end')
    tq = flat(left) + de1b + xld
    def wo_gemm(P, acc, need_o, bg_=None, ph=None):
        ph = ph or [phys[n] for n in range(NS, NSX)]
        rds = {}
        wwin = [0]
        def rd(n):
            k, dt = divmod(n, 4)
            w, o = divmod(ph[k // 4] * SLOT, 65536)
            if w != wwin[0]:
                for d in range(4): P('v_add_u32 v%d, 0x%x, v%d' % (vWT[d], ((w - wwin[0]) * 65536) & 0xffffffff, vWT[d]))
                wwin[0] = w
            f = FR + 4 * (n % 8)
            rds[n] = [P('ds_read_b64_tr_b16 %s, v%d offset:%d' % (vr(f + 2 * h, 2), vWT[dt], o + (k % 4) * 4096 + 2048 * h)) for h in range(2)]
        for n in range(7): rd(n)
        for n in range(72):
            k, dt = divmod(n, 4)
            nd = rds[n] + (rds[n + 1] if n % 2 == 0 else []) + ([old[k]] if need_o else [])
            P(Ins('v_mfma_f32_16x16x32_bf16 %s, %s, %s, %s' % (vr(acc + 4 * dt), vr(FR + 4 * (n % 8)), ar(OA + 4 * k), '0' if k == 0 else vr(acc + 4 * dt)), needs=nd))
            if n + 7 < 72: rd(n + 7)
            if bg_: bg_(n)
        for d in range(4):
            if wwin[0]: P('v_add_u32 v%d, 0x%x, v%d' % (vWT[d], (-wwin[0] * 65536) & 0xffffffff, vWT[d]))
    def ploads(P, dst, extra=0):
        pl = []
        for p in range(8):
            for u in range(2):
                P(f's_add_u32 s{T3}, s{TP}, 0x{POFF + (p*18+17-u)*8192 - extra:x}')
                pl.append(P(f'buffer_load_dwordx4 {vr(dst+8*p+4*u)}, v{vL16}, {sr(SW)}, s{T3} offen sc1'))
        return pl
    def fmath(P, acc, src0, pl, xr, xl_, imm, bg_=None):
        SUM, TT = FR, FR + 16
        for p in range(8):
            for u in range(2):
                for q in range(4):
                    src = src0 + 8 * p + 4 * u + q; d = SUM + 8 * u + 2 * q
                    P(Ins(f'v_dot2_f32_bf16 v{d}, v{src}, s{LO}, ' + ('0' if p == 0 else f'v{d}'), needs=[pl[2 * p + u]]))
                    P(f'v_dot2_f32_bf16 v{d+1}, v{src}, s{HI}, ' + ('0' if p == 0 else f'v{d+1}'))
                if bg_: bg_(2 * p + u)
        for r in range(0, 16, 2): P(f'v_pk_mul_f32 {vr(TT+r,2)}, {vr(SUM+r,2)}, {vr(vMX,2)} op_sel:[0,1] op_sel_hi:[1,1]')
        for r in range(16): P(f'v_exp_f32 v{TT+r}, v{TT+r}')
        for r in range(0, 16, 2): P(f'v_pk_mul_f32 {vr(acc+r,2)}, {vr(acc+r,2)}, {vr(SUM+r,2)}')
        for r in range(0, 16, 2): P(f'v_pk_add_f32 {vr(TT+r,2)}, {vr(TT+r,2)}, 1.0 op_sel_hi:[1,0]')
        for r in range(16): P(f'v_rcp_f32 v{TT+r}, v{TT+r}')
        for r in range(0, 16, 2): P(f'v_pk_mul_f32 {vr(acc+r,2)}, {vr(acc+r,2)}, {vr(TT+r,2)}')
        for u in range(2):
            for r in range(4): P(f'v_permlane16_swap_b32 v{acc+8*u+r}, v{acc+8*u+4+r}')
        for u in range(2):
            for q in range(4):
                d = acc + 8 * u + 2 * q
                P(Ins(f'v_dot2c_f32_bf16 v{d}, s{LO}, v{xr+4*u+q}', needs=[xl_[u]]))
                P(f'v_dot2c_f32_bf16 v{d+1}, s{HI}, v{xr+4*u+q}')
        for u in range(2):
            for q in range(4): P(cvt(xr + 4 * u + q, acc + 8 * u + 2 * q, acc + 8 * u + 2 * q + 1))
            P(f'buffer_store_dwordx4 {vr(xr+4*u)}, v{vDG}, {sr(SU)}, s{TX} offen offset:{64*u+imm} ' + opt.get('ost', 'sc1'))
    def scale_s(P, acc):
        for r in range(0, 16, 2): P(f'v_pk_mul_f32 {vr(acc+r,2)}, {vr(acc+r,2)}, {vr(vMX,2)} op_sel_hi:[1,0]')
    ftest = [f'v_cmp_le_u32 vcc, s{TV}, v{vPFP}', 's_nop 1', f's_and_b32 s{T2}, vcc_lo, s{TM}', f's_cmp_eq_u32 s{T2}, s{TM}']
    P(Ins('s_barrier', needs=[x for n in range(NS, NSX) for x in slots[n].loads]))
    while tq and any(x in ol for x in tq): P(tq.pop(0))
    P(f's_cmp_ge_u32 s{J}, 14')
    P('s_cbranch_scc1 dbl')
    S = P.fork(); tq2 = [Ins(x.text) for x in tq]
    st2 = [x for x in st1 if x.cnt is not None] + [x for x in tq2 if 'store' in x.op]
    f1 = Ins(fl_t)
    def bgt(n):
        for _ in range(2):
            if tq: P(tq.pop(0))
        if n == opt.get('nf', 48):
            P(Ins('s_barrier', needs=st1))
            P(f1)
            emit_all(setflag(7, vPFS))
    wo_gemm(P, XT, True, bgt)
    assert not tq
    stamp('wo')
    scale_s(P, XT)
    P(Ins(ftest[0], needs=[f1]))
    P('s_nop 1')
    pl = [None] * 16
    porder = opt.get('porder', [7, 6, 5, 4, 0, 1, 2, 3])
    for p in porder:
        chk = [f's_andn2_b32 s{T2}, s{TM}, vcc_lo', f's_and_b32 s{T2}, s{T2}, {3 << (2 * p)}']
        for t_ in chk: P(t_)
        P(f's_cbranch_scc1 fp{p}_slow')
        P.label(f'fp{p}_ok')
        Z = Prog(); Z.label(f'fp{p}_slow'); Z(f's_mov_b32 s{SPN}, 400000'); Z.label(f'fp{p}_loop')
        Z(fl_t); Z('s_waitcnt vmcnt(0)'); Z(ftest[0]); Z(f's_sub_u32 s{SPN}, s{SPN}, 1'); Z(f's_cbranch_scc1 fp{p}_ok')
        for t_ in chk: Z(t_)
        Z(f's_cbranch_scc1 fp{p}_loop'); Z(f's_branch fp{p}_ok'); slow.append(Z.text())
        for u in range(2):
            P(f's_add_u32 s{T3}, s{TP}, 0x{POFF + (p*18+17-u)*8192:x}')
            pl[2 * porder.index(p) + u] = P(f'buffer_load_dwordx4 {vr(ACCA+8*porder.index(p)+4*u)}, v{vL16}, {sr(SW)}, s{T3} offen sc1')
    stamp('poll')
    fmath(P, XT, ACCA, pl, XR2, xld, 0)
    stamp('x1')
    P.label('dbl_e')
    stamp('x2')
    S.label('dbl')
    ph2 = [x for x in range(9) if x not in [phys[n] for n in range(NS, NSX)]] + [9]
    wq = [II(f's_add_u32 s{TL}, s{TL}, 128')] + bunch(flat([slots[NS + n].dma(ph2[n]) for n in range(5)]))
    wl = [x for g in wq for x in g if x.kind == 'vmem']
    def pl_(dst, extra): return [II(f's_add_u32 s{T3}, s{TP}, 0x{POFF + (p*18+17-u)*8192 - extra:x}\nbuffer_load_dwordx4 {vr(dst+8*p+4*u)}, v{vL16}, {sr(SW)}, s{T3} offen sc1') for p in range(8) for u in range(2)]
    qa = pl_(ACCA, 0); qb = pl_(ACCB, 16384); pa = [g[1] for g in qa]; pb = [g[1] for g in qb]
    x2 = [Ins(f'buffer_load_dwordx4 {vr(SP+4*u)}, v{vDG}, {sr(SX)}, s{TX} offen offset:{128+64*u}') for u in range(2)]
    mq = wq[:10] + [[d5ld]] + wq[10:] + [[x] for x in x2] + [poll_check('d5', d5ld, ftest) + qa[0]] + qa[1:] + qb
    def pop():
        if mq:
            for x in mq.pop(0):
                if x.kind == 'label': S.out.append(x)
                else: S(x)
    def bgs(n):
        if tq2:
            for _ in range(2):
                if tq2: S(tq2.pop(0))
        elif n % opt.get('dp', 3) == 0: pop()
        if n == opt.get('nf', 48) and not fdone:
            fdone.append(1)
            S(Ins('s_barrier', needs=st2))
            for x in setflag(7, vPFS): S(x)
    fdone = []
    wo_gemm(S, XT, True, bgs)
    for x in flat(stamp('wo', True)): S(x)
    while wl[-1].cnt is None: pop()
    for _ in range(4): pop()
    S(Ins('s_barrier', needs=wl))
    for x in flat(stamp('poll', True)): S(x)
    wo_gemm(S, XT + 16, False, bgs, ph2)
    for x in flat(stamp('x1', True)): S(x)
    scale_s(S, XT)
    fmath(S, XT, ACCA, pa, XR2, [None, None], 0, lambda n: pop())
    assert not mq
    scale_s(S, XT + 16)
    fmath(S, XT + 16, ACCB, pb, SP, x2, 128)
    S('s_branch dbl_e'); slow.append(S.text())
    if stamps:
      P('s_waitcnt vmcnt(0)')
      stamp('end')
      P('s_waitcnt lgkmcnt(0)')
      P(f's_lshl_b32 s{T2}, s2, 7')
      P(f's_add_u32 s{T2}, s{T2}, 0x{STAMP_OFF:x}')
      if stamps == 'all':
        n = len(ALL)
        P('v_writelane_b32 v%d, s22, %d' % (77 + n // 64, n % 64))
        P(f's_lshl_b32 s{T2}, s2, 9')
        P(f's_add_u32 s{T2}, s{T2}, 0x{STAMP_OFF + (2 << 18):x}')
        P(f's_cmp_eq_u32 s{Wv}, 0')
        P(f's_cselect_b32 s{T2}, s{T2}, 0x{OOB:x}')
        P(f'v_lshlrev_b32 v80, 2, v{vL}')
        P(f'buffer_store_dword v77, v80, {sr(SW)}, s{T2} offen')
        P(f'buffer_store_dword v78, v80, {sr(SW)}, s{T2} offen offset:256')
      else:
        P('s_mov_b32 s%d, s22' % (sTS + len(stamps)))
        P('v_mov_b32 v81, 0')
        for n in range(10):
            P('v_mov_b32 v80, s%d' % (sTS + (n if opt.get('est') else min(n, len(stamps)))))
            P(f'buffer_store_dwordx2 v[80:81], v{vFL}, {sr(SW)}, s{T2} offen offset:{8*n}')
    P.label('K1_end')
    P('s_endpgm')
    print('K1: instrs', len(P.out), 'nops', P.nnop, file=sys.stderr)
    return P.text() + ''.join(reversed(slow))
```

```python
import sys
sys.path.insert(0, 'gen')
from prog import *
from asmlib import kernel_desc, STAMP_OFF
from k1 import *

def gen_k2(stamps=False, opt={}):
    P = Prog()
    SX, SO, SWO, SW = 24, 28, 32, 36
    sWv, sC, sM, sT0, sT1, sT2, sOFF, sLB, sG, sU = range(40, 50)
    sLO, sHI = 50, 51
    SLDS = 80 * 1024
    def srd(d, b, nbytes):
        P('s_mov_b32 s%d, s%d' % (d, b))
        P('s_mov_b32 s%d, s%d' % (d + 1, b + 1))
        P('s_mov_b32 s%d, 0x%x' % (d + 2, nbytes))
        P('s_mov_b32 s%d, 0x00020000' % (d + 3))
    def put_stamps(regs, lane_tid):
        P('s_waitcnt lgkmcnt(0)')
        P('s_lshl_b32 s%d, s2, 7' % sT2)
        P('s_add_u32 s%d, s%d, 0x%x' % (sT2, sT2, STAMP_OFF + (1 << 18)))
        P('v_mov_b32 v4, 0x%x' % OOB)
        P('v_cmp_eq_u32 vcc, %d, v0' % lane_tid)
        P('v_cndmask_b32 v4, v4, 0, vcc')
        P('v_mov_b32 v7, 0')
        for n, r in regs:
            P('v_mov_b32 v6, s%d' % r)
            P('buffer_store_dwordx2 v[6:7], v4, %s, s%d offen offset:%d' % (sr(SW), sT2, 8 * n))
    P(f'''s_cmp_ge_u32 s2, 240
    s_cbranch_scc1 K2_end
    s_load_dwordx16 s[4:19], s[0:1], 0
    s_load_dwordx2 s[22:23], s[0:1], 72''')
    if stamps: P('s_memrealtime s[60:61]')
    P(f'''s_and_b32 s{sT0}, s2, 7
    s_mul_i32 s{sT0}, s{sT0}, 30
    s_lshr_b32 s{sT1}, s2, 3
    s_add_u32 s{sT0}, s{sT0}, s{sT1}
    s_cmp_ge_u32 s{sT0}, 234
    s_cbranch_scc1 K2_end
    v_and_b32 v1, 63, v0
    v_lshrrev_b32 v2, 6, v0
    v_readfirstlane_b32 s{sWv}, v2
    s_mul_i32 s{sG}, s{sT0}, 7282
    s_lshr_b32 s{sG}, s{sG}, 16
    s_mul_i32 s{sT2}, s{sG}, 9
    s_sub_u32 s{sC}, s{sT0}, s{sT2}
    s_mul_i32 s{sG}, s{sG}, 5
    s_lshl_b32 s{sLB}, s{sC}, 7
    v_lshlrev_b32 v2, 4, v1
    s_cmp_ge_u32 s{sWv}, 5
    s_cbranch_scc1 K2_red''')
    OF, FR, ACC = 16, 88, 112
    P(f'''s_add_u32 s{sM}, s{sG}, s{sWv}
    s_waitcnt lgkmcnt(0)''')
    srd(SW, 22, WSB)
    P('s_mul_i32 s%d, s%d, 18432' % (sT0, sM))
    P('s_cmp_ge_u32 s%d, 128' % sM)
    P('s_cselect_b32 s%d, 0x%x, s%d' % (sT0, OOB, sT0))
    P('v_lshlrev_b32 v7, 3, v1')
    ol = []
    for k in range(18):
        if k % 4 == 0: P('s_add_u32 s%d, s%d, 0x%x' % (sOFF, sT0, OOFF + k * 1024))
        if k < 16: ol.append(P('buffer_load_dwordx4 %s, v2, %s, s%d offen offset:%d' % (vr(OF + 4 * k), sr(SW), sOFF, 1024 * (k % 4))))
        else:
            P('buffer_load_dwordx2 %s, v7, %s, s%d offen offset:%d' % (vr(OF + 4 * k, 2), sr(SW), sOFF, 1024 * (k % 4)))
            ol.append(P('buffer_load_dwordx2 %s, v7, %s, s%d offen offset:%d' % (vr(OF + 4 * k + 2, 2), sr(SW), sOFF, 1024 * (k % 4) + 512)))
    P(f'''v_and_b32 v7, 15, v1
    v_lshrrev_b32 v8, 4, v1
    v_and_b32 v10, 1, v8
    v_lshrrev_b32 v11, 1, v8
    v_lshrrev_b32 v12, 2, v7
    v_lshl_add_u32 v12, v10, 2, v12
    v_lshrrev_b32 v13, 1, v12
    v_lshlrev_b32 v12, 7, v12
    v_lshl_add_u32 v12, v11, 10, v12
    v_lshl_add_u32 v12, v13, 5, v12
    v_and_b32 v13, 3, v7
    v_lshl_add_u32 v12, v13, 3, v12
    s_lshl_b32 s{sT0}, s{sWv}, 12
    s_add_u32 s{sT0}, s{sT0}, {SLDS}
    v_add_u32 v3, s{sT0}, v2''')
    for dt in range(1, 4): P('v_xor_b32 v%d, %d, v12' % (12 + dt, 32 * dt))
    if stamps: P('s_memrealtime s[62:63]')
    P('s_barrier')
    if stamps: P('s_memrealtime s[64:65]')
    rds = {}
    def rd(n):
        k, dt = divmod(n, 4)
        if n == 64:
            for d in range(4): P('v_add_u32 v%d, 0x10000, v%d' % (12 + d, 12 + d))
        off = k * 4096 if k < 16 else (k - 16) * 4096 + 6144
        f = FR + 4 * (n % 6)
        rds[n] = [P('ds_read_b64_tr_b16 %s, v%d offset:%d' % (vr(f + 2 * h, 2), 12 + dt, off + 2048 * h)) for h in range(2)]
    AH = 5
    for n in range(AH): rd(n)
    for n in range(72):
        k, dt = divmod(n, 4)
        P(Ins('v_mfma_f32_16x16x32_bf16 %s, %s, %s, %s' % (vr(ACC + 4 * dt), vr(FR + 4 * (n % 6)), vr(OF + 4 * k), '0' if k == 0 else vr(ACC + 4 * dt)), needs=rds[n] + [ol[k]]))
        if n + AH < 72: rd(n + AH)
    ws_ = [P(f'ds_write_b128 v3, {vr(ACC+4*dt)} offset:{1024*dt}') for dt in range(4)]
    if stamps: P('s_memrealtime s[66:67]')
    P(Ins('s_barrier', needs=ws_))
    if stamps: put_stamps([(0, 60), (1, 62), (2, 64), (3, 66)], 0)
    P('s_endpgm')
    t1 = P.text()
    P = Prog()
    PT, XR, SUM, T, S_ = 16, 48, 52, 60, 68
    P.label('K2_red')
    P(f'''s_sub_u32 s{sWv}, s{sWv}, 5
    v_lshrrev_b32 v3, 3, v1
    v_and_b32 v4, 7, v1
    v_and_b32 v5, 6, v3
    v_xor_b32 v4, v4, v5
    v_lshlrev_b32 v4, 4, v4
    v_mul_u32_u24 v5, 1152, v3
    v_add_u32 v5, v5, v4
    v_lshrrev_b32 v6, 2, v3
    v_mul_u32_u24 v6, {32*1152}, v6
    v_add_u32 v6, v6, v5
    s_waitcnt lgkmcnt(0)''')
    srd(SWO, 8, 576 * 1152)
    dm = []
    for t in range(7):
        P(f'''s_add_u32 s{sT0}, s{sWv}, {10*t}
        s_lshl_b32 m0, s{sT0}, 10
        s_add_u32 s{sT1}, s{sT0}, 2
        s_lshr_b32 s{sT1}, s{sT1}, 2
        s_lshl_b32 s{sOFF}, s{sT0}, 1
        s_add_u32 s{sOFF}, s{sOFF}, s{sT1}
        s_mul_i32 s{sOFF}, s{sOFF}, {4*1152}
        s_add_u32 s{sOFF}, s{sOFF}, s{sLB}''')
        dm.append(P('buffer_load_dwordx4 v5, %s, s%d offen lds' % (sr(SWO), sOFF)))
    P(f'''s_lshl_b32 s{sT1}, s{sWv}, 10
    s_add_u32 m0, s{sT1}, {70*1024}
    s_mul_i32 s{sOFF}, s{sWv}, {72*1152}
    s_add_u32 s{sOFF}, s{sOFF}, {16*1152}
    s_add_u32 s{sOFF}, s{sOFF}, s{sLB}''')
    dm.append(P('buffer_load_dwordx4 v6, %s, s%d offen lds' % (sr(SWO), sOFF)))
    P(f'''s_and_b32 s{sU}, s{sWv}, 1
    s_lshr_b32 s{sWv}, s{sWv}, 1
    s_add_u32 s{sM}, s{sG}, s{sWv}
    s_lshr_b32 s{sT0}, s{sM}, 3
    s_mul_i32 s{sT0}, s{sT0}, {8*18*8192}
    s_and_b32 s{sT1}, s{sM}, 7
    s_lshl_b32 s{sT1}, s{sT1}, 10
    s_add_u32 s{sT0}, s{sT0}, s{sT1}
    s_lshl_b32 s{sT1}, s{sC}, 14
    s_add_u32 s{sT0}, s{sT0}, s{sT1}
    s_lshl_b32 s{sT1}, s{sU}, 13
    s_add_u32 s{sT0}, s{sT0}, s{sT1}
    s_cmp_ge_u32 s{sM}, 128
    s_cselect_b32 s{sT0}, 0x{OOB:x}, s{sT0}''')
    srd(SW, 22, WSB)
    pl = []
    def pload(p):
        P('s_add_u32 s%d, s%d, 0x%x' % (sOFF, sT0, POFF + p * 18 * 8192))
        pl.append(P('buffer_load_dwordx4 %s, v2, %s, s%d offen' % (vr(PT + 4 * p), sr(SW), sOFF)))
    NB = opt.get('k2nb', 2)
    for p in range(NB): pload(p)
    srd(SX, 4, 2048 * 1152)
    srd(SO, 18, 2048 * 1152)
    P(f'''v_and_b32 v7, 15, v1
    v_lshrrev_b32 v8, 4, v1
    v_mul_u32_u24 v9, 1152, v7
    v_and_b32 v10, 1, v8
    v_lshl_add_u32 v9, v10, 5, v9
    v_lshrrev_b32 v11, 1, v8
    v_lshl_add_u32 v9, v11, 4, v9
    s_mul_i32 s{sT2}, s{sM}, 18432
    s_add_u32 s{sT2}, s{sT2}, s{sLB}
    s_lshl_b32 s{sT1}, s{sU}, 6
    s_add_u32 s{sT2}, s{sT2}, s{sT1}
    v_lshlrev_b32 v12, 2, v7
    s_lshl_b32 s{sG}, s{sM}, 6
    s_add_u32 s{sG}, s{sG}, 0x{ROFF:x}
    s_mov_b32 s{sLO}, 0x00003f80
    s_mov_b32 s{sHI}, 0x3f800000''')
    P(f'''s_lshl_b32 s{sT1}, s{sWv}, 12
    s_lshl_b32 s{sOFF}, s{sU}, 11
    s_add_u32 s{sT1}, s{sT1}, s{sOFF}
    s_add_u32 s{sT1}, s{sT1}, {SLDS}
    v_add_u32 v13, s{sT1}, v2''')
    for r in range(8): P('v_mov_b32 v%d, 0' % (SUM + r))
    P(Ins('s_barrier', needs=dm))
    xl = P('buffer_load_dwordx4 %s, v9, %s, s%d offen' % (vr(XR), sr(SX), sT2))
    rl = P('buffer_load_dword v3, v12, %s, s%d offen' % (sr(SW), sG))
    for p in range(NB, 8): pload(p)
    for p in range(8):
        for q in range(4):
            P(Ins('v_dot2c_f32_bf16 v%d, s%d, v%d' % (SUM + 2 * q, sLO, PT + 4 * p + q), needs=[pl[p]]))
            P('v_dot2c_f32_bf16 v%d, s%d, v%d' % (SUM + 2 * q + 1, sHI, PT + 4 * p + q))
        if p == 6: P(Ins('v_mul_f32 v4, 0x%x, v3' % f2u(-1.4426950408889634), needs=[rl]))
    for r in range(8): P('v_mul_f32 v%d, v%d, v4' % (T + r, SUM + r))
    for r in range(8): P('v_exp_f32 v%d, v%d' % (T + r, T + r))
    for r in range(8): P('v_mul_f32 v%d, v%d, v3' % (SUM + r, SUM + r))
    for r in range(8): P('v_add_f32 v%d, 1.0, v%d' % (T + r, T + r))
    P('s_barrier')
    sl = [P(f'ds_read_b128 {vr(S_+4*h)}, v13 offset:{1024*h}') for h in range(2)]
    for r in range(8): P('v_rcp_f32 v%d, v%d' % (T + r, T + r))
    for r in range(8): P('v_mul_f32 v%d, v%d, v%d' % (SUM + r, SUM + r, T + r))
    for r in range(8): P(Ins('v_mul_f32 v%d, v%d, v%d' % (S_ + r, S_ + r, SUM + r), needs=[sl[r // 4]]))
    for r in range(4): P('v_permlane16_swap_b32 v%d, v%d' % (S_ + r, S_ + 4 + r))
    for q in range(4):
        P(Ins('v_dot2c_f32_bf16 v%d, s%d, v%d' % (S_ + 2 * q, sLO, XR + q), needs=[xl]))
        P('v_dot2c_f32_bf16 v%d, s%d, v%d' % (S_ + 2 * q + 1, sHI, XR + q))
    for q in range(4): P('v_cvt_pk_bf16_f32 v%d, v%d, v%d' % (XR + q, S_ + 2 * q, S_ + 2 * q + 1))
    P('buffer_store_dwordx4 %s, v9, %s, s%d offen %s' % (vr(XR), sr(SO), sT2, opt.get('ost', 'sc1')))
    if stamps:
        P('s_waitcnt vmcnt(0)')
        P('s_memrealtime s[68:69]')
        put_stamps([(n, 68) for n in range(4, 10)], 320)
        if opt.get('dbgout'):
            P('s_load_dwordx2 s[70:71], s[0:1], 64')
            P('s_waitcnt lgkmcnt(0)')
            srd(72, 70, 256)
            P('v_lshlrev_b32 v5, 3, v1')
            P('s_mov_b32 s76, 0x%x' % (STAMP_OFF + 8 * 128))
            ld = P('buffer_load_dword v6, v5, %s, s76 offen' % sr(SW))
            P(Ins('v_readfirstlane_b32 s77, v6', needs=[ld]))
            P('v_writelane_b32 v6, s60, 10')
            P('v_writelane_b32 v6, s68, 11')
            P('v_subrev_u32 v6, s77, v6')
            P('v_subrev_u32 v5, 320, v0')
            P('v_lshlrev_b32 v5, 2, v5')
            P('s_cmp_eq_u32 s2, 8')
            P('s_cselect_b32 s76, 0, 0x1000')
            P('buffer_store_dword v6, v5, s[72:75], s76 offen')
    P.label('K2_end')
    P('s_endpgm')
    return t1 + P.text()

KN = 'recurrent_scan__sliding_block__glu_gated_bilinear__prompt_kernel'
HEAD = """; Fused LayerNorm + sliding-window attention + bilinear GLU FFN, gfx950.  Generated by gen/main.py (hand-designed schedule).
; @launch grid=(256,1,1) block=(256,1,1) lds=163840
.amdgcn_target "amdgcn-amd-amdhsa--gfx950"
.text
"""
def kb(name): return '.globl %s\n.p2align 12\n.p2align 8\n.type %s,@function\n%s:\n' % (name, name, name)
import subprocess, re, os
PROMO = ('v_exp_f32', 'v_rcp_f32', 'v_rsq_f32', 'v_mul_f32', 'v_add_f32', 'v_max_f32', 'v_mov_b32', 'v_add_u32', 'v_and_b32', 'v_or_b32', 'v_xor_b32',
         'v_lshlrev_b32', 'v_lshrrev_b32', 'v_sub_u32', 'v_mul_u32_u24', 'v_cndmask_b32')
def sizes(t):
    open('_al.s', 'w').write(t)
    subprocess.run(['clang', '-x', 'assembler', '-target', 'amdgcn-amd-amdhsa', '-mcpu=gfx950', '-c', '_al.s', '-o', '_al.o'], check=True)
    d = subprocess.run(['llvm-objdump', '-d', '--mcpu=gfx950', '_al.o'], capture_output=True, text=True).stdout
    dis = [(l.split()[0], 4 * len(l.split('//')[1].split(':')[1].split())) for l in d.split('\n') if '//' in l and l.startswith('\t')]
    lines = t.split('\n'); size = {}; p = 0
    for n, l in enumerate(lines):
        if not l.startswith('    '): continue
        op = l.split()[0].replace('_e64', '')
        while not dis[p][0].startswith(op): p += 1
        size[n] = dis[p][1]; p += 1
    return lines, size
def land_pass(t, npages, extra=()):
    stub = ''.join('LAND%d:\n' % w for w in range(4))
    lines, size = sizes(t.replace('code_end:\n', stub + 'code_end:\n'))
    off = 0; k = 0; pg = 0; out = []
    for n, l in enumerate(lines):
        if l.startswith('LAND'): continue
        if n in size:
            page = off >= 4096 * (pg + 1) and pg < npages and 'getpc' not in out[-1] and not out[-1].endswith(':')
            if page or out[-1] in extra:
                out += ['LAND%d:' % k, '    s_cbranch_execz LAND%d' % (k + 4), '    s_nop 0']; off += 8; k += 1; pg += page
            off += size[n]
        out.append(l)
    assert pg == npages, pg
    t = '\n'.join(out)
    for q in range(k, k + 4): t = t.replace('s_cbranch_execz LAND%d\n' % q, 's_cbranch_execz WALK_END\n')
    return t

def align_pass(t):
    open('_al.s', 'w').write(t.replace('code_end:\n', 'LAND0:\nLAND1:\nLAND2:\nLAND3:\ncode_end:\n'))
    subprocess.run(['clang', '-x', 'assembler', '-target', 'amdgcn-amd-amdhsa', '-mcpu=gfx950', '-c', '_al.s', '-o', '_al.o'], check=True)
    d = subprocess.run(['llvm-objdump', '-d', '--mcpu=gfx950', '_al.o'], capture_output=True, text=True).stdout
    dis = [(l.split()[0], 4 * len(l.split('//')[1].split(':')[1].split())) for l in d.split('\n') if '//' in l and l.startswith('\t')]
    lines = t.split('\n'); idx = [n for n, l in enumerate(lines) if l.startswith('    ')]
    size = {}; p = 0
    for n in idx:
        op = lines[n].split()[0]
        while not dis[p][0].startswith(op): p += 1
        size[n] = dis[p][1]; p += 1
    off = 0; run = []; npad = nprom = 0
    for q, n in enumerate(range(len(lines))):
        l = lines[n]
        if l.startswith('.p2align'): off = 0; run = []; continue
        if n not in size: continue
        if size[n] == 4: run.append(n); off += 4; continue
        if off % 8:
            c = [r for r in run if lines[r].split()[0] in PROMO]
            c = [r for r in c if (len(run) - 1 - run.index(r)) % 2 == 0]
            if c:
                r = c[-1]; w = lines[r].split()[0]; lines[r] = lines[r].replace(w, w + '_e64', 1); off += 4; nprom += 1
            else:
                k = n; cnt = 0; mf = 0
                while k < len(lines) and (k not in size or size[k] % 8 == 0) and cnt < 8:
                    if k in size: cnt += 1; mf += 'v_mfma' in lines[k]
                    k += 1
                if cnt >= 7 and mf == 0 and 'ds_' not in l: lines[n] = '    s_nop 0\n' + l; off += 4; npad += 1
        off += size[n]; run = []
    print('align: promoted', nprom, 'padded', npad, file=sys.stderr)
    return '\n'.join(lines)

def build(**kw):
    st = kw.get('stamps', False)
    t = HEAD + kb(KN) + gen_k1(**kw) + 'code_end:\n'
    t += '.section .rodata,"a"\n.p2align 6\n' + kernel_desc(KN, 512, accum=256)
    o = kw.get('opt', {})
    if o.get('align', 1): t = align_pass(t)
    if o.get('walk', 0): t = land_pass(t, o.get('npages', 14), o.get('lx', ()))
    return t

if __name__ == '__main__':
    t = build(); open('recurrent_scan__sliding_block__glu_gated_bilinear__prompt.s', 'w').write(t); open('cur.s', 'w').write(t)
    t = build(stamps=['mf0', 'g1end', 'g2end', 'poll', 'end']); open('k_st.s', 'w').write(t)
    t = build(stamps='all'); open('all.s', 'w').write(t)
```

```python
import sys, struct
sys.path.insert(0, 'gen')
from prog import *
from asmlib import STAMP_OFF

HOFF = 0x0000000
POFF = 0
BLK = 110592 + 128
KOFF = 0x2400000 + BLK
OOFF = 0x2C00000
ROFF = 0x2F00000
FOFF = 0x2F10000
WSB = 256 << 20
OOB = 0x10000000
NEG = 0xF149F2CA
SCALE = 0.2357022603955158 * 1.4426950408889634
def f2u(x): return struct.unpack('<I', struct.pack('<f', x))[0]

SLOT = 16384
XB = 5 * SLOT
HLONE = 9 * SLOT
RT4 = 155648
RTB = RT4 + 2048
NCODE = 84

def vr(b, n=4): return 'v[%d:%d]' % (b, b + n - 1)
def ar(b, n=4): return 'a[%d:%d]' % (b, b + n - 1)
def sr(b, n=4): return 's[%d:%d]' % (b, b + n - 1)
def II(text): return [Ins(l) for l in text.strip().split('\n') if l.strip()]

class Frag:
    def __init__(s, base, imm0, imm1, acc, b, first):
        s.base, s.imm, s.acc, s.b, s.first = base, (imm0, imm1), acc, b, first
class Slot:
    def __init__(s, groups, dma):
        s.groups, s.dma, s.loads = groups, dma, None

def gen_k1(JX=4, stamps=False, opt={}):
    opt = dict(dict(so=5, cls=[0, 0, 8, 8, 26, 26, 30, 30, 38, 38], qc=44, crit=72, svst=2.5, spr=1, nv1=6, hf=47, l2f=18), **opt)
    assert JX == 4
    P = Prog()
    SX, SQ, SG, SU, SD, SW, SB, SL = 24, 28, 32, 36, 40, 44, 48, 52
    I, J, Wv, RG, FH, E, Pp, T0, T1, T2, T3, OFF, ST, SPN = range(56, 70)
    W4096, W3072, BP, BL1, BD, SIG = range(70, 76)
    BL2 = 76
    HS, HLN, HL, PS, PLN = range(79, 84)
    C, N0, N1 = 84, 85, 86
    QM, QC, BQ, ONE2, LO, HI, R2, XRO = 87, 91, 92, 93, 94, 95, 96, 97
    KO, KB = 87, 92
    NN = 101
    SH = 75 + 11
    OB, OR, MYF, PF, PFD, DB = 4, 5, 6, 7, 10, 11
    PFP, PFW, J0, DUM = 20, 21, 90, 18
    OUTP = 0
    ROT = 3
    sTS = 12
    vL, vL16 = 1, 2
    vDQ = [3, 4, 5, 6]; vDL2 = 7
    vDP = [8, 9]; vDL1 = 10; vTP = [11, 12]; vTL1 = 13
    vTQ = [14, 15]; vDD = [16, 17, 18, 19]; vTD = [20, 21]; vTL2 = 22
    vQS = [23]; vTB = 24; vRS = 25
    vPFP, vPFS, vHW, vFL, vDG, vOR = 26, 27, 28, 29, 30, 31
    vKM, vKR, vVM, vVR = 3, 4, 5, 6
    QW = 8
    vMX, vMN, vTA, vONES = 14, 15, 23, 25
    XT, QF, FR, ACCA, ACCB, SP = 32, 64, 80, 112, 176, 240
    ALL = ['mf0'] + ['slot%d' % n for n in range(1, 51)] + ['g1end', 'attk', 'att1', 'att2', 'att3', 'attend'] + ['slot%d' % n for n in range(52, 72)] + ['g2end', 'wo', 'poll', 'end']
    def stamp(name, ret=False):
        if stamps == 'all':
            if name not in ALL: return []
            n = ALL.index(name)
            x = [Ins('v_writelane_b32 v%d, s22, %d' % (77 + n // 64, n % 64)), Ins('s_memtime s[22:23]')]
            if ret: return [x]
            for y in x: P(y)
            return []
        if stamps and name in stamps:
            n = stamps.index(name)
            x = [Ins('s_mov_b32 s%d, s22' % (sTS + n)), Ins('s_memrealtime s[22:23]')]
            if ret: return [x]
            for y in x: P(y)
        return []
    def breg(pos, mt):
        i = pos * 4 + mt
        return ar(4 * i) if i < 64 else vr(XT + 4 * (i - 64))
    def emit_all(lst):
        for x in lst:
            if isinstance(x, list): emit_all(x)
            elif x.kind == 'label': P.out.append(x)
            else: P(x)
    lg = lambda x: x.bit_length() - 1
    ng = 16 // JX

    P('s_cmp_ge_u32 s2, 256')
    P('s_cbranch_scc1 K1_end')
    P('s_load_dwordx16 s[4:19], s[0:1], 0')
    P('s_load_dwordx4 s[20:23], s[0:1], 64')
    if stamps: P('s_memtime s[84:85]' if stamps == 'all' else 's_memrealtime s[84:85]')
    def code_touch():
        P('s_getpc_b64 %s' % sr(SL, 2))
        P.label('K1_pc')
        P(f'''s_mov_b32 s{SL+2}, code_end-K1_pc
        s_mov_b32 s{SL+3}, 0x00020000
        s_lshr_b32 s{SPN}, s2, 3
        s_and_b32 s{SPN}, s{SPN}, 7
        s_mul_i32 s{SPN}, s{SPN}, {NCODE*128}
        v_lshlrev_b32 v80, 7, v0
        v_mov_b32 v89, 0x{OOB:x}
        v_cmp_gt_u32 vcc, {NCODE}, v0
        v_cndmask_b32 v80, v89, v80, vcc
        buffer_load_dword v79, v80, {sr(SL)}, s{SPN} offen''')
    if opt.get('ct0'):
        P('s_getpc_b64 %s' % sr(SL, 2))
        P(f'''s_mov_b32 s{SL+2}, {opt['ct0']*128}
        s_mov_b32 s{SL+3}, 0x00020000
        v_lshlrev_b32 v80, 7, v0
        buffer_load_dword v79, v80, {sr(SL)}, 0 offen''')
    if not opt.get('ctlate', 0): code_touch()
    P(f'''s_lshr_b32 s{NN}, s2, 3
    v_mov_b32 v89, 0x{OOB:x}
    v_and_b32 v{vL}, 63, v0
    v_lshrrev_b32 v80, 6, v0
    v_readfirstlane_b32 s{Wv}, v80
    s_and_b32 s{T0}, s2, 7
    s_and_b32 s{J}, s{T0}, {ng-1}
    s_lshl_b32 s{J}, s{J}, {lg(JX)}
    s_and_b32 s{T2}, s{NN}, {JX-1}
    s_or_b32 s{J}, s{J}, s{T2}
    s_lshr_b32 s{I}, s{T0}, {lg(ng)}
    s_lshl_b32 s{I}, s{I}, {lg(32//JX)}
    s_lshr_b32 s{T2}, s{NN}, {lg(JX)}
    s_or_b32 s{I}, s{I}, s{T2}
    s_and_b32 s{RG}, s{Wv}, 1
    s_lshr_b32 s{FH}, s{Wv}, 1
    s_and_b32 s{E}, s{J}, 1
    s_lshr_b32 s{Pp}, s{J}, 1
    s_and_b32 s{ROT}, s{J}, {min(JX-1, 3)}
    v_lshrrev_b32 v82, 3, v{vL}
    v_and_b32 v83, 7, v{vL}
    v_mul_u32_u24 v100, 1152, v82
    v_lshl_add_u32 v100, v83, 4, v100
    s_lshl_b32 s{T0}, s{I}, 3
    s_lshl_b32 s{T1}, s{RG}, 2
    s_add_u32 s{T0}, s{T0}, s{T1}
    s_add_u32 s{T1}, s{T0}, s{FH}
    s_mul_i32 s{T1}, s{T1}, {16*1152}''')
    if JX == 2: P(f's_lshl_b32 s{ROT}, s{ROT}, 1')
    def xro(blk):
        P(f'''s_xor_b32 s{T2}, s{ROT}, {blk}
        s_and_b32 s{T3}, s{T2}, 1
        s_lshl_b32 s{T3}, s{T3}, 3
        s_and_b32 s{T2}, s{T2}, 2
        s_lshl_b32 s{T2}, s{T2}, 4
        s_or_b32 s{XRO+blk}, s{T2}, s{T3}''')
    xro(0)
    if opt.get('est'): P('s_memrealtime s[76:77]')
    P('s_waitcnt lgkmcnt(0)')
    if opt.get('est'): P('s_memrealtime s[78:79]')
    def srd(d, b, nbytes, shift=0):
        if shift:
            P('s_sub_u32 s%d, s%d, %d' % (d, b, shift))
            P('s_subb_u32 s%d, s%d, 0' % (d + 1, b + 1))
        else:
            P('s_mov_b32 s%d, s%d' % (d, b))
            P('s_mov_b32 s%d, s%d' % (d + 1, b + 1))
        P('s_mov_b32 s%d, 0x%x' % (d + 2, nbytes + shift))
        P('s_mov_b32 s%d, 0x00020000' % (d + 3))
    srd(SX, 4, 2048 * 1152)
    XR = 112
    xl = []
    def xload(blk):
        ld = [Ins('buffer_load_dwordx4 %s, v100, %s, s%d offen offset:%d' % (vr(XR + 36 * blk + 4 * l), sr(SX), OFF, 128 * l)) for l in range(9)]
        xl.append(ld)
        return [II(f's_mul_i32 s{OFF}, s{XRO+blk}, 1152\ns_add_u32 s{OFF}, s{OFF}, s{T1}')] + [[x] for x in ld]
    if opt.get('xt'):
        P(f'''s_lshl_b32 s{T2}, s{I}, 4
        s_add_u32 s{T2}, s{T2}, s{J}
        s_lshl_b32 s{T2}, s{T2}, 2
        s_add_u32 s{T2}, s{T2}, s{Wv}
        s_mul_i32 s{T2}, s{T2}, 2304
        v_min_u32 v80, 17, v{vL}
        v_lshlrev_b32 v80, 7, v80
        buffer_load_dword v79, v80, {sr(SX)}, s{T2} offen''')
    emit_all(xload(0))
    if opt.get('ctlate', 0): code_touch()
    if opt.get('est'): P('s_memrealtime s[80:81]')
    if opt.get('est') == 2:
        P('s_waitcnt vmcnt(8)')
        P('s_memrealtime s[82:83]')
        P('s_waitcnt vmcnt(0)')
        P('s_memrealtime s[86:87]')
    for blk in range(1, 4): xro(blk)
    srd(SQ, 6, 576 * 3456, shift=2048)
    RS = 36 // JX
    NT = ' nt' if opt.get('nt') else ''
    P(f'''s_and_b32 s{J0}, s{J}, {16-JX}
    s_and_b32 s{SH}, s2, 7
    s_lshr_b32 s{SH}, s{SH}, {lg(ng)}
    s_lshl_b32 s{SH}, s{SH}, 5
    s_add_u32 s{SH}, s{SH}, s{NN}
    v_lshrrev_b32 v86, {lg(2*JX)}, v0
    v_and_b32 v87, {2*JX-1}, v0
    v_mul_u32_u24 v88, 3456, v86
    v_lshl_add_u32 v87, v87, 7, v88
    v_cmp_gt_u32 vcc, {RS}, v86
    v_cndmask_b32 v87, v89, v87, vcc
    s_mul_i32 s{ST}, s{SH}, {RS*3456}
    s_lshl_b32 s{T2}, s{J0}, 8
    s_add_u32 s{BL2}, s{ST}, s{T2}
    v_mov_b32 v104, v87''')
    qtouch = [Ins(f'buffer_load_dword v79, v104, {sr(SQ)}, s{BL2} offen offset:2048' + NT)]

    srd(SG, 12, 576 * 9216)
    srd(SU, 14, 576 * 9216, shift=2048)
    srd(SD, 16, 4608 * 1152, shift=2048)
    srd(SW, 22, WSB)
    srd(SB, 20, 256)
    P(f's_mov_b64 {sr(OUTP,2)}, s[18:19]')
    P(f'''s_cmp_ge_u32 s{Wv}, 2
    s_cselect_b32 s{SL}, s14, s12
    s_cselect_b32 s{SL+1}, s15, s13
    s_mov_b32 s{SL+2}, 0x{576*9216:x}
    s_mov_b32 s{SL+3}, 0x00020000
    s_mul_i32 s{PFP}, s{SH}, {RS*9216}
    s_mul_i32 s{T2}, s{RG}, {1152 if JX == 4 else 9*9216}
    s_add_u32 s{PFP}, s{PFP}, s{T2}
    s_mul_i32 s{T2}, s{J0}, 576
    s_add_u32 s{PFP}, s{PFP}, s{T2}''')
    if stamps: P('s_mov_b64 s[22:23], s[84:85]')
    P(f'''s_lshl_b32 s{W4096}, s{Wv}, 12
    s_lshl_b32 s{BQ}, s{J}, 8
    s_mul_i32 s{T2}, s{Wv}, {16*3456}
    s_add_u32 s{BQ}, s{BQ}, s{T2}
    s_cmp_ge_u32 s{J}, 14
    s_cselect_b32 s{BQ}, 0x{OOB:x}, s{BQ}
    s_mov_b32 s{ONE2}, 0x3f803f80
    s_mov_b32 s{LO}, 0x00003f80
    s_mov_b32 s{HI}, 0x3f800000
    v_lshrrev_b32 v84, 4, v{vL}
    v_and_b32 v85, 15, v{vL}
    v_cmp_eq_u32 vcc, 0, v0
    v_cndmask_b32 v{vFL}, v89, 0, vcc
    v_lshlrev_b32 v86, 1, v82
    v_and_b32 v86, 4, v86
    v_xor_b32 v86, v83, v86
    v_mul_u32_u24 v87, 9216, v82
    v_lshl_add_u32 v{vDP[0]}, v86, 4, v87
    v_mul_u32_u24 v88, 3456, v82
    v_lshl_add_u32 v90, v86, 4, v88
    v_add_u32 v{vDQ[0]}, 2048, v90
    v_add_u32 v{vDQ[2]}, 128, v90
    v_xor_b32 v86, 2, v86
    v_lshl_add_u32 v{vDP[1]}, v86, 4, v87
    v_add_u32 v{vDP[1]}, {8*9216-1024}, v{vDP[1]}
    v_lshl_add_u32 v90, v86, 4, v88
    v_add_u32 v{vDQ[1]}, {8*3456-1024+2048}, v90
    v_add_u32 v{vDQ[3]}, {8*3456-1024+128}, v90
    s_lshl_b32 s{SIG}, s{E}, 1
    s_sub_u32 s{SIG}, 1, s{SIG}
    s_mul_i32 s{BP}, s{Pp}, 1152
    s_lshl_b32 s{T3}, s{E}, 10
    s_add_u32 s{BP}, s{BP}, s{T3}
    s_mul_i32 s{T3}, s{Wv}, {16*9216}
    s_add_u32 s{BP}, s{BP}, s{T3}
    v_and_b32 v87, 3, v{vL}
    v_lshrrev_b32 v86, 2, v85
    v_and_b32 v88, 1, v84
    v_lshrrev_b32 v92, 1, v84
    v_lshlrev_b32 v90, 12, v92
    v_lshl_add_u32 v90, v88, 10, v90
    v_lshl_add_u32 v90, v86, 7, v90
    v_lshrrev_b32 v91, 1, v86
    v_xor_b32 v91, s{FH}, v91
    v_lshl_add_u32 v90, v91, 6, v90
    v_lshl_add_u32 v90, v88, 5, v90
    v_lshl_add_u32 v{vTQ[0]}, v87, 3, v90
    v_xor_b32 v{vTQ[1]}, 32, v{vTQ[0]}
    s_lshl_b32 s{T2}, s{E}, 6
    v_xor_b32 v{vTP[0]}, s{T2}, v{vTQ[0]}
    v_xor_b32 v{vTP[1]}, s{T2}, v{vTQ[1]}
    s_mul_i32 s{ST}, s{RG}, {2*18432}
    s_add_u32 s{ST}, s{ST}, {XB}
    v_xor_b32 v90, v85, v84
    v_lshlrev_b32 v90, 4, v90
    v_lshl_add_u32 v90, v84, 8, v90
    v_add_u32 v65, s{ST}, v90
    v_xor_b32 v66, 64, v65
    s_mul_i32 s{T2}, s{FH}, 18432
    s_add_u32 s{ST}, s{ST}, s{T2}
    s_and_b32 s{T2}, s{XRO}, 8
    s_lshl_b32 s{T2}, s{T2}, 4
    s_add_u32 s{ST}, s{ST}, s{T2}
    v_xor_b32 v90, v82, v83
    v_lshlrev_b32 v90, 4, v90
    v_lshl_add_u32 v90, v83, 8, v90
    v_add_u32 v64, s{ST}, v90
    v_xor_b32 v76, 128, v64
    s_lshl_b32 s{T2}, s{RG}, 6
    s_lshl_b32 s{T3}, s{FH}, 4
    s_add_u32 s{T2}, s{T2}, s{T3}
    v_add_u32 v67, s{T2}, v82''')
    def G(text): return [II(text)]
    P(f'''s_lshl_b32 s{T2}, s{I}, 4
    s_add_u32 s{T2}, s{T2}, s{J}
    s_lshl_b32 s{MYF}, s{T2}, 7
    s_add_u32 s{MYF}, s{MYF}, 0x{FOFF:x}
    s_lshl_b32 s{DB}, s{I}, 2
    s_lshl_b32 s{T2}, 1, s{J}
    v_mov_b32 v105, s{T2}
    v_mov_b32 v86, 0''')
    freset = P(f'buffer_store_dword v86, v{vFL}, {sr(SW)}, s{MYF} offen sc1')
    fatom = Ins(f'buffer_atomic_or v105, v{vFL}, {sr(SB)}, s{DB} offen offset:8', needs=[freset])
    late0 = II(f'''s_mul_i32 s{W3072}, s{Wv}, 3072
    s_lshl_b32 s{T2}, s{I}, 4
    s_add_u32 s{T2}, s{T2}, s{J}
    v_mov_b32 v207, 0
    s_xor_b32 s{PF}, s{MYF}, 128
    s_mul_i32 s{HS}, s{T2}, {9*8192}
    s_xor_b32 s{T2}, s{T2}, 1
    s_mul_i32 s{HL}, s{T2}, {9*8192}
    s_lshl_b32 s{T2}, s{RG}, 12
    s_add_u32 s{HS}, s{HS}, s{T2}
    s_lshl_b32 s{T3}, s{FH}, 11
    s_add_u32 s{HLN}, s{HS}, s{T3}
    s_add_u32 s{HLN}, s{HLN}, {8*8192}
    s_add_u32 s{HL}, s{HL}, s{T2}
    s_lshl_b32 s{T3}, s{FH}, 13
    s_add_u32 s{HS}, s{HS}, s{T3}
    s_mul_i32 s{BL1}, s{Pp}, 1152
    s_lshl_b32 s{T2}, s{E}, 6
    s_add_u32 s{T2}, s{T2}, 512
    s_add_u32 s{BL1}, s{BL1}, s{T2}
    s_mul_i32 s{T3}, s{RG}, {48*9216}
    s_add_u32 s{BL1}, s{BL1}, s{T3}''')
    late0b = II(f'''s_lshl_b32 s{T2}, s{RG}, 12
    s_lshl_b32 s{T3}, s{I}, 3
    s_add_u32 s{T3}, s{T3}, s{Pp}
    s_mul_i32 s{PS}, s{T3}, {18*8192}
    s_add_u32 s{PS}, s{PS}, s{T2}
    s_add_u32 s{PS}, s{PS}, 0x{POFF:x}
    s_sub_u32 s{T3}, 9, s{E}
    s_lshl_b32 s{T3}, s{T3}, 13
    s_add_u32 s{PLN}, s{PS}, s{T3}
    s_lshl_b32 s{T3}, s{FH}, 11
    s_xor_b32 s{T3}, s{T3}, s{ROT}
    s_add_u32 s{PLN}, s{PLN}, s{T3}
    s_add_u32 s{PS}, s{PS}, s{ROT}
    s_mul_i32 s{T3}, s{E}, 10
    s_add_u32 s{T3}, s{T3}, s{FH}
    s_sub_u32 s{T3}, 17, s{T3}
    s_lshl_b32 s{T3}, s{T3}, 13
    s_add_u32 s{PS}, s{PS}, s{T3}
    s_lshl_b32 s{T2}, s{E}, 6
    s_add_u32 s{T2}, s{T2}, 512
    s_mul_i32 s{T1}, s{Pp}, {576*1152}
    s_mul_i32 s{T3}, s{E}, {17*32*1152}
    s_add_u32 s{T1}, s{T1}, s{T3}
    s_mul_i32 s{BD}, s{E}, 640
    s_add_u32 s{BD}, s{BD}, s{T1}
    s_mul_i32 s{T3}, s{FH}, s{SIG}
    s_mul_i32 s{T3}, s{T3}, {32*1152}
    s_add_u32 s{BD}, s{BD}, s{T3}
    s_mul_i32 s{T3}, s{RG}, {16*1152}
    s_add_u32 s{BD}, s{BD}, s{T3}
    s_add_u32 s{T1}, s{T1}, s{T2}''')
    for t in range(3):
        late0b += II(f'''s_mul_i32 s{T2}, s{Wv}, 3
        s_add_u32 s{T2}, s{T2}, {t}
        s_lshr_b32 s{T3}, s{T2}, 1
        s_mul_i32 s{T3}, s{T3}, s{SIG}
        s_mul_i32 s{T3}, s{T3}, {32*1152}
        s_add_u32 s{BL2+t}, s{T1}, s{T3}
        s_and_b32 s{T2}, s{T2}, 1
        s_mul_i32 s{T2}, s{T2}, {16*1152}
        s_add_u32 s{BL2+t}, s{BL2+t}, s{T2}
        s_add_u32 s{BL2+t}, s{BL2+t}, {2048-1024*t}''')
    late0 += II(f'''s_mul_i32 s{T2}, s{T0}, {BLK//2}
    s_lshl_b32 s{T3}, s{J}, 13
    s_add_u32 s{T2}, s{T2}, s{T3}
    s_lshl_b32 s{T3}, s{FH}, 11
    s_add_u32 s{T2}, s{T2}, s{T3}
    s_add_u32 s{T2}, s{T2}, 0x{KOFF:x}
    s_and_b32 s{ROT}, s{ROT}, 2
    s_mul_i32 s{T3}, s{ROT}, {BLK//2}
    s_add_u32 s{T2}, s{T2}, s{T3}
    s_sub_u32 s{QM+2}, 1, s{ROT}
    s_mul_i32 s{QM+2}, s{QM+2}, {BLK}
    s_lshl_b32 s{ROT}, s{ROT}, 10
    s_movk_i32 s{QC}, 4096''')
    late0 += G(f's_cmp_ge_u32 s{J}, 14\ns_cselect_b32 s{QM}, 0x{2*OOB:x}, s{T2}')
    late0 += G(f's_cmp_eq_u32 s{J}, 13\ns_cselect_b32 s{QC}, 0x{OOB:x}, s{QC}')
    late0b += II(f'''s_lshl_b32 s{T2}, s{FH}, 1
    s_add_u32 s{T2}, s{T2}, s{T0}
    s_mul_i32 s{OB}, s{T2}, 18432
    s_lshl_b32 s{T2}, s{J}, 10
    s_add_u32 s{OB}, s{OB}, s{T2}
    s_add_u32 s{OB}, s{OB}, 0x{OOFF:x}
    s_mul_i32 s{OR}, s{I}, {8*18432}
    s_lshl_b32 s{T2}, s{J}, 7
    s_add_u32 s{OR}, s{OR}, s{T2}
    s_add_u32 s{OR}, s{OR}, 0x{OOFF+16384:x}''')
    late0b += G(f's_cmp_eq_u32 s{Wv}, 0\ns_cselect_b32 s{OR}, s{OR}, 0x{OOB:x}')
    late0b += II(f'''s_mov_b32 s{C}, 0x{f2u(SCALE):x}''')
    late0b += G(f's_cmp_lt_u32 s{I}, 2\ns_cselect_b32 s{N0}, 0xffff, 0') + G(f's_cmp_lt_u32 s{I}, 1\ns_cselect_b32 s{N1}, 0xffff, 0')
    late0 += II(f'''s_mul_i32 s{PFD}, s{J0}, {288*1152}
    s_mul_i32 s{T2}, s{SH}, {162*128}
    s_add_u32 s{PFD}, s{PFD}, s{T2}
    s_mul_i32 s{T2}, s{Wv}, {41*128}
    s_add_u32 s{PFD}, s{PFD}, s{T2}''')
    late0 += II(f'''v_lshlrev_b32 v{vL16}, 4, v{vL}
    v_lshrrev_b32 v182, 3, v{vL}
    v_and_b32 v183, 7, v{vL}
    v_lshrrev_b32 v184, 4, v{vL}
    v_and_b32 v185, 15, v{vL}
    v_and_b32 v186, 6, v182
    v_xor_b32 v186, v183, v186
    v_mul_u32_u24 v187, 1152, v182
    v_lshl_add_u32 v187, v186, 4, v187''')
    for t in range(4):
        late0 += II('v_add_u32 v%d, %d, v187' % (vDD[t], (t & 1) * (8 * 1152 - 1024) + (t >> 1) * (128 - 2048) + 2048))
    late0 += II(f'''v_lshrrev_b32 v186, 2, v{vL}
    v_and_b32 v187, 3, v{vL}
    v_and_b32 v188, 2, v184
    v_xor_b32 v188, v187, v188
    v_mul_u32_u24 v190, 9216, v186
    v_lshl_add_u32 v{vDL1}, v188, 4, v190
    v_and_b32 v188, 1, v184
    v_lshlrev_b32 v188, 1, v188
    v_xor_b32 v188, v187, v188
    v_mul_u32_u24 v190, 1152, v186
    v_lshl_add_u32 v{vDL2}, v188, 4, v190
    v_lshrrev_b32 v186, 2, v185
    v_and_b32 v188, 1, v184
    v_lshrrev_b32 v192, 1, v184
    v_lshl_add_u32 v190, v184, 3, v186
    v_lshlrev_b32 v190, 6, v190
    v_xor_b32 v191, s{FH}, v188
    v_lshl_add_u32 v190, v191, 5, v190
    v_lshl_add_u32 v{vTL1}, v187, 3, v190
    v_lshl_add_u32 v190, v184, 2, v186
    v_lshlrev_b32 v190, 6, v190
    v_lshl_add_u32 v190, v191, 5, v190
    v_lshl_add_u32 v{vTL2}, v187, 3, v190
    v_lshl_add_u32 v190, v188, 2, v186
    v_lshrrev_b32 v191, 1, v190
    s_lshl_b32 s{T2}, s{FH}, 1
    v_xor_b32 v191, s{T2}, v191
    v_lshlrev_b32 v190, 7, v190
    v_lshl_add_u32 v190, v192, 10, v190
    v_lshl_add_u32 v190, v191, 5, v190
    v_lshl_add_u32 v{vTD[0]}, v187, 3, v190
    v_xor_b32 v{vTD[1]}, 32, v{vTD[0]}
    v_mov_b32 v189, 0x{OOB:x}
    v_cmp_eq_u32 vcc, 0, v184
    v_lshlrev_b32 v190, 2, v184
    v_sub_u32 v{vDG}, v190, v185
    v_cndmask_b32 v{vOR}, v189, v{vL16}, vcc
    s_lshl_b32 s{T2}, s{RG}, 12
    v_add_u32 v{vHW}, s{T2}, v{vL16}''')
    late0 += G(f's_cmp_ge_u32 s{J}, 9\ns_cselect_b64 vcc, -1, 0')
    late0 += II(f'''v_lshlrev_b32 v191, 6, v185
    v_lshl_add_u32 v191, v184, 4, v191
    v_cndmask_b32 v{vQS[0]}, v{vL16}, v191, vcc
    v_lshlrev_b32 v190, 4, v185
    v_add_u32 v190, {RT4}, v190
    v_lshlrev_b32 v191, 4, v184
    v_add_u32 v191, {RTB}, v191
    v_cndmask_b32 v190, v190, v191, vcc
    s_lshl_b32 s{T2}, s{RG}, 10
    v_add_u32 v{vRS}, s{T2}, v190
    v_mov_b32 v204, 0
    v_mov_b32 v205, 0
    v_mov_b32 v206, 0
    s_mul_i32 s{T2}, s{J}, 2304
    s_add_u32 s{T2}, s{T2}, 0x{KOFF-BLK+148*256:x}''')
    late0 += G(f's_cmp_eq_u32 s{I}, 0\ns_cselect_b32 s{T2}, s{T2}, 0x{OOB:x}')
    guard = Ins(f'buffer_store_dwordx4 v[204:207], v{vOR}, {sr(SW)}, s{T2} offen sc1')
    late0 += [guard]
    late0 += II(f'''v_mov_b32 v200, 0x3f803f80
    v_mov_b32 v201, 0x3f803f80
    v_mov_b32 v202, 0x3f803f80
    v_mov_b32 v203, 0x3f803f80
    s_lshl_b32 s{T2}, s{I}, 2
    s_add_u32 s{T2}, s{T2}, s{Wv}
    s_mul_i32 s{T2}, s{T2}, {BLK}
    s_add_u32 s{T2}, s{T2}, 0x{KOFF+110592:x}
    v_cmp_gt_u32 vcc, 8, v{vL}
    s_nop 0
    s_nop 0
    v_cndmask_b32 v199, v189, v{vL16}, vcc''')
    late0 += G(f's_cmp_eq_u32 s{J}, 14\ns_cselect_b32 s{T2}, s{T2}, 0x{OOB:x}')
    ones_st = Ins(f'buffer_store_dwordx4 v[200:203], v199, {sr(SW)}, s{T2} offen sc1')
    late0 += [ones_st]

    slots = []
    def dma4(srds, voffs, sbase, add, sadd=0, bump=None, pre=''):
        def f(rp):
            if bump is not None:
                g = [II((bump + '\n' if bump else '') + f's_add_u32 s{OFF}, s{sbase}, {add}\ns_add_u32 m0, s{W4096}, {rp*SLOT}')]
            elif sadd and not add:
                g = [II(pre + f's_mul_i32 s{OFF}, s{SIG}, {sadd}\ns_add_u32 s{OFF}, s{OFF}, s{sbase}\ns_add_u32 m0, s{W4096}, {rp*SLOT}')]
            elif sadd:
                g = [II(f's_mul_i32 s{OFF}, s{SIG}, {sadd}\ns_add_u32 s{OFF}, s{OFF}, s{sbase}'),
                     II(f's_add_u32 s{OFF}, s{OFF}, {add}\ns_add_u32 m0, s{W4096}, {rp*SLOT}')]
            else:
                g = [II(f's_add_u32 s{OFF}, s{sbase}, {add}\ns_add_u32 m0, s{W4096}, {rp*SLOT}')]
            for t in range(4):
                g.append([Ins('buffer_load_dwordx4 v%d, %s, s%d offen offset:%d lds' % (voffs[t], sr(srds[t]), OFF, 1024 * t))])
            return g
        return f
    def dma_l1(s):
        def f(rp):
            g = []
            for t in range(3):
                pre = II(f's_add_u32 s{OFF}, s{BL1}, {s*96*9216 + t*(16*9216-1024)}')
                if t == 0: pre += II(f's_add_u32 m0, s{W3072}, {rp*SLOT}')
                g.append(pre)
                g.append(II(f'buffer_load_dwordx4 v{vDL1}, {sr(SL)}, s{OFF} offen offset:{1024*t} lds'))
            return g
        return f
    def dma_l2(s):
        def f(rp):
            g = [II(f's_add_u32 m0, s{W3072}, {rp*SLOT}')]
            for t in range(3):
                g.append(II(f's_mul_i32 s{OFF}, s{SIG}, {s*192*1152}\ns_add_u32 s{OFF}, s{OFF}, s{BL2+t}'))
                g.append(II(f'buffer_load_dwordx4 v{vDL2}, {sr(SD)}, s{OFF} offen offset:{1024*t} lds'))
            return g
        return f
    def regroup(gs):
        if not opt.get('rg', 1): return gs
        fl = [f for g in gs for f in g]
        return [fl[n:n + 2] for n in range(0, 6, 2)]
    def accf(base, tile): return lambda mt: base + (tile * 4 + mt) * 4
    def bf(pos): return lambda mt: breg(pos, mt)
    def pairlike(vT, acc, s):
        return [[Frag(vT[ft], ks * 8192 + m * 2048, ks * 8192 + m * 2048 + 512, accf(acc, 2 * m + ft), bf(2 * s + ks), s == 0 and ks == 0) for ks in range(2)] for m in range(2) for ft in range(2)]
    for s in range(9):
        slots.append(Slot(pairlike(vTQ, ACCA, s), dma4([SQ] * 4, vDQ, BQ, s * 64 * 3456)))
    PACC = [ACCB, ACCB, ACCA, ACCB]
    def pstep(q):
        for s in range(9):
            slots.append(Slot(pairlike(vTP, PACC[q], s), dma4([SG, SG, SU, SU], [vDP[0], vDP[1], vDP[0], vDP[1]], BP, s * 64 * 9216, bump=(f's_lshl_b32 s{OFF}, s{SIG}, 7\ns_add_u32 s{BP}, s{BP}, s{OFF}' if s == 0 and q else ''))))
    pstep(0)
    for s in range(6):
        gs = [[Frag(vTL1, m * 6144 + ks * 2048, m * 6144 + ks * 2048 + 256, accf(ACCA, m), bf(3 * s + ks), s == 0 and ks == 0) for ks in range(3)] for m in range(2)]
        slots.append(Slot(regroup(gs), dma_l1(s)))
    pstep(1); pstep(2); pstep(3)
    NSEG1 = len(slots)
    hpos = {}
    for n, k in enumerate([6, 7, 11, 10]): hpos[k] = n
    for n, k in enumerate([0, 1, 2, 3, 4, 5, 16, 17, 14, 15, 12, 13, 9, 8]): hpos[k] = 4 + n
    lorder = [8, 7, 6, 0, 1, 2, 4, 3, 5]
    def dstep(q):
        acc = ACCA
        for n, ln in enumerate(lorder):
            gs = [[Frag(vTD[ft], ks * 8192 + c * 2048, ks * 8192 + c * 2048 + 4096, accf(acc, 2 * c + ft), bf(hpos[2 * ln + ks]), n == 0 and ks == 0) for ks in range(2)] for c in range(2) for ft in range(2)]
            slots.append(Slot(gs, dma4([SD] * 4, vDD, BD, 0, ln * 64 * 1152, pre=(f's_add_u32 s{BD}, s{BD}, 256\n' if q and n == 0 else ''))))
    dstep(0)
    for s in range(3):
        gs = [[Frag(vTL2, ks * 2048, ks * 2048 + 1024, accf(SP, 0), bf(hpos[6 * s + ks]), s == 0 and ks == 0) for ks in range(3 * hg, 3 * hg + 3)] for hg in range(2)]
        slots.append(Slot(regroup(gs), dma_l2(s)))
    n0 = len(slots); dstep(1)
    for sl in slots[n0:]:
        for g in sl.groups:
            for f in g: f.acc = (lambda old: (lambda mt: old(mt) + (ACCB - ACCA)))(f.acc)
    NS = len(slots)
    vWD = [3, 4, 5, 6]; vWD2 = 8; vWT = [9, 10, 11, 12]; vPL = 13
    TL, TP, TX, TM, TV, OL, FB = 87, 88, 89, 90, 91, 92, 93
    for s in range(4): slots.append(Slot([], dma4([SG] * 4, vWD, TL, s * 4 * 36 * 1152)))
    def dma_w2(rp):
        return [II(f's_mul_i32 s{OFF}, s{Wv}, {(144-36)*1152}\ns_add_u32 s{OFF}, s{OFF}, s{TL}\ns_lshr_b32 m0, s{W4096}, 1\ns_add_u32 m0, m0, {rp*SLOT}'),
                II(f'buffer_load_dwordx4 v{vWD2}, {sr(SG)}, s{OFF} offen lds'), II(f's_add_u32 s{OFF}, s{OFF}, {72*1152-1024}'),
                II(f'buffer_load_dwordx4 v{vWD2}, {sr(SG)}, s{OFF} offen offset:1024 lds')]
    slots.append(Slot([], dma_w2))
    NSX = len(slots)
    phys = {n: n for n in range(9)}; load_at = {}; hphys = {}
    nxt = 9
    divert = {18: 0, 33: 1, 42: 2, 50: 3}
    for n in range(2, NSEG1):
        if n in divert: hphys[divert[n]] = phys[n - 2]
        else: phys[nxt] = phys[n - 2]; load_at[n] = nxt; nxt += 1
    att_loads = []
    for f in [phys[NSEG1 - 2], phys[NSEG1 - 1], hphys[0], hphys[1], hphys[2]]:
        phys[nxt] = f; att_loads.append(nxt); nxt += 1
    extra_loads = {}
    for n in range(NSEG1 + 2, NS):
        q = n - (NSEG1 + 2)
        if q == 1: phys[nxt] = hphys[3]; extra_loads[n] = [nxt]; nxt += 1
        if nxt < NSX: phys[nxt] = phys[n - 2]; load_at[n] = nxt; nxt += 1
    assert nxt == NSX
    def dma_groups(n):
        g = slots[n].dma(phys[n])
        slots[n].loads = [x for grp in g for x in grp if x.kind == 'vmem']
        return g

    SV = opt.get('sv', 4.75)
    loud = set(); svc = {id(guard): 1, id(ones_st): 1}
    def T(text, q=56):
        x = Ins(text); loud.add(id(x)); svc[id(x)] = q; return x
    VLS = opt.get('vls', [[0, 8, 4, 1, 7], [2, 6, 3, 5]])
    def pf_gu(VL, t0, msk, q=0):
        nl = len(VL); tab = sum(l << (4 * n) for n, l in enumerate(VL)); a_, b_, c_ = t0, t0 + 1, t0 + 2
        return II(f'''v_mul_u32_u24 v{b_}, {65536//nl+1}, v{vL}
        v_lshrrev_b32 v{b_}, 16, v{b_}
        v_cmp_gt_u32 {msk}, 9, v{b_}
        v_mul_u32_u24 v{a_}, {4*nl}, v{b_}
        v_lshlrev_b32 v{c_}, 2, v{vL}
        v_sub_u32 v{a_}, v{c_}, v{a_}
        v_mov_b32 v{c_}, 0x{tab:x}
        v_bfe_u32 v{a_}, v{c_}, v{a_}, 4
        v_mul_u32_u24 v{b_}, 9216, v{b_}
        v_lshl_add_u32 v{b_}, v{a_}, 7, v{b_}
        v_mov_b32 v{a_}, 0x{OOB:x}
        v_cndmask_b32 v{b_}, v{a_}, v{b_}, {msk}''') + [T(f'buffer_load_dword v0, v{b_}, {sr(SL)}, s{PFP} offen' + NT, q)]
    if opt.get('walk', 1):
        P('s_mov_b64 exec, 0')
        for w in range(3):
            P(f's_cmp_eq_u32 s{Wv}, {w}')
            P(f's_cbranch_scc1 LAND{w}')
        P('s_branch LAND3')
        P.label('WALK_END')
        P('s_mov_b64 exec, -1')
    emit_all(xload(1))
    stamp('setup')
    if opt.get('est'):
        P('s_waitcnt lgkmcnt(0)')
        for n, r in enumerate((76, 78, 80, 82, 86)): P('s_mov_b32 s%d, s%d' % (sTS + 5 + n, r))

    NPRE = opt.get('npre', 5)
    GU2 = 0
    gA, gB = pf_gu(VLS[0], 106, 's[78:79]'), pf_gu(VLS[1], 106, 's[78:79]')
    if opt.get('tlb'):
        qtouch = qtouch + II(f'''v_lshlrev_b32 v106, 21, v0
        v_min_u32 v107, 24, v0
        v_lshlrev_b32 v107, 21, v107
        buffer_load_dword v0, v107, {sr(SW)}, 0 offen sc1
        buffer_load_dword v79, v106, {sr(SD)}, 0 offen offset:2048
        buffer_load_dword v79, v106, {sr(SG)}, 0 offen
        buffer_load_dword v79, v106, {sr(SU)}, 0 offen offset:2048
        s_mov_b32 s80, s{OUTP}
        s_mov_b32 s81, s{OUTP+1}
        s_mov_b32 s82, 0x{2048*1152:x}
        s_mov_b32 s83, 0x00020000
        buffer_load_dword v79, v106, s[80:83], 0 offen sc1
        s_mov_b32 s80, s8
        s_mov_b32 s81, s9
        s_mov_b32 s82, 0x{576*1152:x}
        buffer_load_dword v79, v106, s[80:83], 0 offen''')
    dm0 = [g for n in range(NPRE) for g in dma_groups(n)]
    if opt.get('so', 0) == 0:
        bg = [('GAP', 30)] + xload(2) + xload(3) + [qtouch, ('GAP', 150)] + dm0 + [gA, gB, [fatom]]
    elif opt.get('so', 0) == 3:
        bg = [('GAP', 30)] + xload(2) + xload(3) + [qtouch, gA, [fatom], ('GAP', opt.get('ga', 330))] + dm0
    elif opt.get('so', 0) == 4:
        bg = [('GAP', 30)] + xload(2) + xload(3) + [qtouch, gA, ('GAP', opt.get('ga', 330))] + dm0 + [gB, [fatom]]
    elif opt.get('so', 0) == 5:
        sp = lambda l: [y for x in l for y in ([x, ('GAP', opt['xs'])] if opt.get('xs') and x[0].kind == 'vmem' else [x])]
        bg = [('GAP', opt.get('gap0', 30))] + sp(xload(2)) + ([qtouch] if opt.get('qt') == 1 else []) + sp(xload(3)) + ([] if opt.get('qt') == 1 else [qtouch]) + [('GAP', opt.get('gap1', 150))] + dm0 + [gA, [fatom]]
    elif opt.get('so', 0) == 1:
        bg = [('GAP', opt.get('gap0', 30)), qtouch, gA, ('GAP', opt.get('ga', 200))] + xload(2) + xload(3) + dm0 + [gB, [fatom]]
    else:
        bg = [('GAP', opt.get('gap0', 30))] + xload(2) + [qtouch, gA, ('GAP', opt.get('ga', 300))] + xload(3) + dm0 + [gB, [fatom]]
    cnt = [0]; lq = []; lcnt = [0, 10]
    EVERY = opt.get('every', 8)
    def V(t, needs=()):
        r = P(Ins(t, needs))
        cnt[0] += 1
        if bg and cnt[0] >= EVERY:
            cnt[0] = 0
            while bg:
                g = bg.pop(0)
                if isinstance(g, tuple): cnt[0] = -g[1]; break
                emit_all(g)
                if any(x.kind == 'vmem' for x in g): break
        lcnt[0] += 1
        if lq and lcnt[0] >= lcnt[1]:
            lcnt[0] = 0; emit_all([lq.pop(0)])
        return r
    def reduce8(r):
        V('v_add_f32_dpp v%d, v%d, v%d quad_perm:[1,0,3,2] row_mask:0xf bank_mask:0xf' % (r, r, r))
        V('v_add_f32_dpp v%d, v%d, v%d quad_perm:[2,3,0,1] row_mask:0xf bank_mask:0xf' % (r, r, r))
        V('v_add_f32_dpp v%d, v%d, v%d row_half_mirror row_mask:0xf bank_mask:0xf' % (r, r, r))
    def ln_block(blk, defer=False):
        X = XR + 36 * blk
        wa = [64, 76][blk & 1]
        for n in range(36):
            if n < 4: V('v_dot2_f32_bf16 v%d, v%d, s%d, 0' % (68 + n, X + n, ONE2), needs=[xl[blk][0]])
            else: V('v_dot2_f32_bf16 v%d, v%d, s%d, v%d' % (68 + n % 4, X + n, ONE2, 68 + n % 4), needs=[xl[blk][n // 4]])
        stamp('sum%d' % blk)
        V(f's_and_b32 s{T2}, s{XRO+blk}, 8')
        V(f's_add_u32 s{T2}, s{T2}, {32*(blk>>1)}')
        V(f'v_add_u32 v77, s{T2}, v67')
        V('v_lshlrev_b32 v78, 4, v77')
        V('v_add_u32 v78, %d, v78' % RT4)
        V('v_add_f32 v68, v68, v69')
        V('v_add_f32 v70, v70, v71')
        V('v_add_f32 v68, v68, v70')
        V('v_and_b32 v101, 0x70, v77')
        V('v_mul_u32_u24 v101, 12, v101')
        reduce8(68)
        V('v_mul_f32 v68, 0x%x, v68' % f2u(-1.0 / 576))
        wr = []
        LAG = 2
        for n in range(36 + LAG + 1):
            if n < 36:
                t = 80 + 2 * (n % 8)
                V('v_dot2_f32_bf16 v%d, v%d, s%d, v68' % (t, X + n, LO))
                V('v_dot2_f32_bf16 v%d, v%d, s%d, v68' % (t + 1, X + n, HI))
            m = n - LAG
            if 0 <= m < 36:
                t = 80 + 2 * (m % 8)
                V('v_cvt_pk_bf16_f32 v%d, v%d, v%d' % (X + m, t, t + 1))
            m = n - LAG - 1
            if 0 <= m < 36:
                V('v_dot2_f32_bf16 v%d, v%d, v%d, %s' % (72 + m % 4, X + m, X + m, '0' if m < 4 else 'v%d' % (72 + m % 4)))
                if m % 4 == 3:
                    w = Ins('ds_write_b128 v%d, %s offset:%d' % (wa, vr(X + m - 3), (m // 4) * 2048)); wr.append(w)
                    if not defer: P(w)
        dwr = list(wr)
        V('v_lshl_add_u32 v101, v77, 2, v101')
        V('v_add_u32 v101, %d, v101' % RTB)
        V('v_add_f32 v72, v72, v73')
        V('v_add_f32 v74, v74, v75')
        V('v_add_f32 v72, v72, v74')
        V('v_mov_b32 v73, 0x%x' % f2u(1e-5))
        reduce8(72)
        V('v_fmac_f32 v73, 0x%x, v72' % f2u(1.0 / 576))
        V('v_rsq_f32 v96, v73')
        for t in (1, 2, 3): V('v_mov_b32 v%d, v96' % (96 + t))
        wr.append(P('ds_write_b128 v78, v[96:99]'))
        wr.append(P('ds_write_b32 v101, v96'))
        return wr, dwr
    slow = []
    nlab = [0]
    def alt_site(inline, other):
        nlab[0] += 1; n = nlab[0]
        slow.append(f'alt{n}:\n' + ''.join('    %s\n' % t for t in other) + f'    s_branch alt{n}_e\n')
        return [Ins(f's_cbranch_vccz alt{n}')] + inline + [Ins(f'alt{n}_e:')]
    def xn_reads(rho):
        return [Ins('ds_read_b128 %s, v%d offset:%d' % (breg(ks, 2 * rho + t), 65 + (ks & 1), t * 18432 + ks * 1024)) for ks in range(18) for t in range(2)]
    w0, _ = ln_block(0); w1, _ = ln_block(1)
    stamp('ln01')
    P(Ins('s_barrier', needs=w0 + w1))
    r0 = xn_reads(0)
    lq += [r0[n:n + 2] for n in range(0, 36, 2)]; lcnt[1] = 8
    w2, d2 = ln_block(2, defer=True)
    emit_all(lq); lq.clear()
    P(Ins('s_barrier', needs=r0))
    lq += d2; lcnt[1] = 12
    w3, _ = ln_block(3)
    emit_all(lq); lq.clear()
    emit_all([g for g in bg if not isinstance(g, tuple)]); bg.clear()
    stamp('ln23')
    P(Ins('s_barrier', needs=w2 + w3 + slots[0].loads))
    r1 = xn_reads(1)
    stamp('mf0')

    window = {}
    AH = 4; AHM = opt.get('ah', 6)
    def make_reads(fr, sidx, fi):
        w, o = divmod(phys[sidx] * SLOT, 65536)
        out = []
        if window.get(fr.base, 0) != w:
            d = (w - window.get(fr.base, 0)) * 65536
            out.append(Ins('v_add_u32 v%d, 0x%x, v%d' % (fr.base, d & 0xffffffff, fr.base)))
            window[fr.base] = w
        f = FR + 4 * (fi % 8)
        fr.reg = f
        fr.rd = [Ins('ds_read_b64_tr_b16 %s, v%d offset:%d' % (vr(f + 2 * h, 2), fr.base, o + fr.imm[h])) for h in range(2)]
        return [out + [fr.rd[0]], [fr.rd[1]]]
    def segment(s0, s1, fillers, bar_extra, first_loads=(), extra_need=None, hook=None, quiet=(), pre=()):
        frs = []; groups = []
        for s in range(s0, s1):
            for g in slots[s].groups:
                groups.append((s, len(frs), g))
                for f in g: frs.append((s, f))
        nm = sum(4 * len(g) for _, _, g in groups)
        gm = [[] for _ in range(nm)]; ga = [[] for _ in range(nm)]; gz = [[] for _ in range(nm)]
        used = [0] * nm; vmw = [0] * (nm + 16)
        mf = []; issued = 0; slot_start = {}
        ismem = lambda x: x.kind in ('ds', 'vmem')
        def put(k, items, cost=None):
            (gm if len(items) == 1 and ismem(items[0]) else ga)[k].extend(items)
            used[k] += min(2, sum(x.cost for x in items)) if cost is None else cost
        while issued < AH:
            s, f = frs[issued]
            emit_all(make_reads(f, s, issued)); issued += 1
        if callable(pre): pre()
        else: emit_all(list(pre))
        pend = [(-1, list(first_loads), ())]
        barpos = {}; vcand = set(); fv = set()
        for (s, f0, g) in groups:
            a = len(mf)
            slot_start.setdefault(s, a)
            n = 4 * len(g)
            for mt in range(4):
                for f in g: mf.append((s, f, mt, g))
            if a > 0: used[a - 1] += 1
            vcand.update(range(a + 1, a + n, 4))
            items = []
            while issued < min(len(frs), f0 + min(8, len(g) + AHM)) and frs[issued][0] <= s + 1:
                s2, f2 = frs[issued]
                r = make_reads(f2, s2, issued)
                if frs[issued - 1][0] != s2: r[0] = ['BAR', s2] + r[0]
                items += r; issued += 1
            for q, it in enumerate(items):
                k = a + q * n // len(items)
                if it[0] == 'BAR':
                    s2 = it[1]
                    ex = bar_extra.get(s2, ((), ()))
                    b = Ins('s_barrier'); b.needs = ('LAZY', s2, list(ex[0]) + ([x for f in g for x in f.rd] if k == a else []))
                    gz[k - 1].append(b); used[k - 1] += 1 if k == a else 2
                    barpos[s2] = k - 1
                    pend.append((k - 1, list(extra_loads.get(s2, [])) + ([load_at[s2]] if s2 in load_at else []), ex[1]))
                    it = it[2:]
                if len(it) == 2: put(max(k - 1, 0), it[:1]); it = it[1:]
                put(k, it)
        class Chain:
            def __init__(c, items, start): c.q = list(items); c.rel = start; c.last = -1; c.cap = 2
        dl = []; dead = {}
        for (k, lds_, post) in pend:
            dl.append(('ATK', k + 1)); dl += list(post)
            for n in lds_:
                for g in dma_groups(n):
                    for x in g:
                        dl.append(x)
                        if x.kind == 'vmem': dead[id(x)] = (n, barpos.get(n, 10 ** 9 if n < NS else nm + opt.get('wdl', -100))); svc[id(x)] = SV * (2 if sum(len(g_) for g_ in slots[n].groups) == 6 else 1)
        chains = [Chain(dl, 0)] + [Chain(lst, slot_start[s] + off) for (s, off, lst) in fillers if lst]
        leads = {}; slk = {}; lastst = -999
        pfree = 0.0
        def head(c, k):
            while c.q and isinstance(c.q[0], tuple):
                it = c.q[0]
                if c.rel > k: return None
                if opt.get('dbg') and it[0] in ('AT', 'BY'):
                    cs = max(x for x in slot_start if slot_start[x] <= k); print('   marker', it, 'reached at slot', cs, '+', k - slot_start[cs], file=sys.stderr)
                if it[0] == 'AT': c.rel = slot_start[it[1]] + it[2]
                elif it[0] == 'ATK': c.rel = it[1]
                elif it[0] == 'BY': assert k <= slot_start[it[1]], ('filler late', it, k, slot_start[it[1]])
                elif it[0] == 'CAP': c.cap = it[1]
                elif it[0] == 'SKIP': c.rel = k + it[1]
                c.q.pop(0)
            if not c.q or c.rel > k: return None
            return c.q[0]
        for k in range(nm):
            if not gm[k] and used[k] < 2:
                cand = []
                for n_, c in enumerate(chains):
                    x = head(c, k)
                    if x is None or isinstance(x, list) or not ismem(x) or c.last >= k: continue
                    if x.kind == 'ds':
                        if used[k] + x.cost > 2: continue
                    elif id(x) not in loud and pfree - k > opt.get('bl', 1.5): continue
                    pr = 1
                    if n_ == 0: pr = 0 if dead.get(id(x), (0, 0))[1] - k < opt.get('crit', 72) else 2
                    cand.append((pr, n_))
                if cand:
                    c = chains[min(cand)[1]]; x = c.q.pop(0); c.last = k
                    put(k, [x], x.cost if x.kind == 'ds' else 1)
                    if x.kind == 'vmem':
                        pfree = max(pfree, k + svc[id(x)]) if id(x) in loud else max(pfree, k) + svc.get(id(x), opt.get('svst', SV) if 'store' in x.op else SV)
                        if 'store_dwordx4' in x.op: lastst = k
                        if id(x) in dead and dead[id(x)][1] < 10 ** 9:
                            leads[dead[id(x)][0]] = dead[id(x)][1] - k; slk[dead[id(x)][0]] = dead[id(x)][1] - lastst
            for c in chains:
                while True:
                    x = head(c, k)
                    if x is None or (not isinstance(x, list) and ismem(x)): break
                    it = x if isinstance(x, list) else [x]
                    cst = min(2, sum(y.cost for y in it))
                    if used[k] + cst > c.cap: break
                    c.q.pop(0); c.last = k; ga[k].extend(it); used[k] += cst
        left = [(x if isinstance(x, list) else [x]) for c in chains for x in c.q if not isinstance(x, tuple)]
        print('DMA leads:', ' '.join('%d:%d' % x for x in sorted(leads.items())), file=sys.stderr)
        print('store->wait distance < 130:', ' '.join('%d:%d' % x for x in sorted(slk.items()) if x[1] < 130 and x[0] < NS), file=sys.stderr)
        assert min(v for n_, v in leads.items() if n_ < NS) > opt.get("minlead", 30)
        for k, (s, f, mt, g) in enumerate(mf):
            if hook: hook(k, s)
            c = f.acc(mt)
            nd = [x for f_ in g for x in f_.rd] + ([extra_need(f, mt)] if extra_need else [])
            P(Ins('v_mfma_f32_16x16x32_bf16 %s, %s, %s, %s' % (vr(c), vr(f.reg), f.b(mt), '0' if f.first else vr(c)), needs=nd))
            for x in gz[k]: x.needs = list(slots[x.needs[1]].loads) + list(x.needs[2])
            emit_all(gm[k] + ga[k] + gz[k])
        return left

    def mul(d, a_, b_): return Ins('v_mul_f32 v%d, v%d, v%d' % (d, a_, b_))
    def cvt(d, a_, b_): return Ins('v_cvt_pk_bf16_f32 v%d, v%d, v%d' % (d, a_, b_))
    kv_stores = []
    flat0 = lambda l: [y for x in l for y in x]
    def qkv_epi():
        rs = [Ins('ds_read_b128 %s, v%d offset:%d' % (vr(SP + 4 * mt), vRS, 256 * mt)) for mt in range(4)]
        L = list(rs) + [('SKIP', 6)]
        for mp in range(2):
            if mp: L += II(f's_add_u32 s{QM}, s{QM}, s{QM+2}')
            for c in range(2):
                if c: L += II(f's_add_u32 s{T2}, s{QM}, s{QC}')
                for ft in range(2):
                    te = ACCA + ((2 * c + ft) * 4 + 2 * mp) * 4; to = te + 4
                    for r in range(8):
                        x = mul(te + r, te + r, SP + 8 * mp + r); x.needs = [rs[2 * mp + r // 4]]; L.append(x)
                    L += [cvt(te, te, te + 1), cvt(te + 1, te + 2, te + 3), cvt(te + 2, to, to + 1), cvt(te + 3, to + 2, to + 3)]
                    st = Ins(f'buffer_store_dwordx4 {vr(te)}, v{vQS[0]}, {sr(SW)}, s{T2 if c else QM} offen offset:{1024*ft} sc1')
                    L.append(st); kv_stores.append(st)
        return L
    def l1_epi():
        L = II(f's_lshl_b32 s{T3}, s{FH}, 3\ns_add_u32 s{T3}, s{T3}, {HLONE}\nv_add_u32 v{SP+11}, s{T3}, v{vHW}')
        ws_ = []
        for mt in range(4):
            g0 = ACCA + mt * 4; u0 = ACCA + (4 + mt) * 4
            L += [mul(g0 + t, g0 + t, u0 + t) for t in range(4)] + [cvt(u0, g0, g0 + 1), cvt(u0 + 1, g0 + 2, g0 + 3)]
            w = Ins(f'ds_write_b64 v{SP+11}, {vr(u0,2)} offset:{1024*mt}'); ws_.append(w)
            if not opt.get('bw'): L.append(w)
        if opt.get('bw'): L += [('SKIP', 2), list(ws_)] if opt['bw'] == 1 else flat0([[('SKIP', 4), w] for w in ws_])
        L2 = II(f's_lshl_b32 s{T3}, s{FH}, 11\ns_add_u32 s{T3}, s{T3}, {HLONE}\nv_add_u32 v{SP+11}, s{T3}, v{vHW}')
        rd = [Ins(f'ds_read_b128 {vr(ACCA+4*m)}, v{SP+11} offset:{1024*m}') for m in range(2)]
        sts = [Ins(f'buffer_store_dwordx4 {vr(ACCA+4*m)}, v{vL16}, {sr(SW)}, s{HLN} offen offset:{1024*m} sc1', needs=[rd[m]]) for m in range(2)]
        return L, sts, ws_, L2 + rd + [('SKIP', 10)] + sts
    hw = {}
    def pair_epi(acc, q):
        L = II(f's_add_u32 s{ST}, s{HS}, {q*2*8192}\ns_lshl_b32 s{T1}, s{FH}, 13\ns_add_u32 s{T1}, s{T1}, {hphys[q]*SLOT}\nv_add_u32 v{SP+11}, s{T1}, v{vHW}')
        sts = []; hw[q] = []
        for mt in range(4):
            g0 = acc + mt * 4; g1 = acc + (4 + mt) * 4; u0 = acc + (8 + mt) * 4; u1 = acc + (12 + mt) * 4
            L += [mul(g0 + t, g0 + t, u0 + t) for t in range(4)]
            L += [mul(g1 + t, g1 + t, u1 + t) for t in range(4)]
            L += [cvt(u0, g0, g0 + 1), cvt(u0 + 1, g0 + 2, g0 + 3), cvt(u0 + 2, g1, g1 + 1), cvt(u0 + 3, g1 + 2, g1 + 3)]
            st = Ins(f'buffer_store_dwordx4 {vr(u0)}, v{vL16}, {sr(SW)}, s{ST} offen offset:{1024*mt} sc1')
            w = Ins(f'ds_write_b128 v{SP+11}, {vr(u0)} offset:{1024*mt}', cost=2)
            if q < 3 and opt.get('w64', 0):
                w = [Ins(f'ds_write_b64 v{SP+11}, {vr(u0+2*h,2)} offset:{1024*mt+8*h}') for h in range(2)]
                L += [st] + w; hw[q] += w
            else:
                L += [st, w]; hw[q].append(w)
            sts.append(st)
        return L, sts
    def d_epi(acc, q, cs=(0, 1)):
        L = []
        for c in cs:
            L.append(Ins(f's_sub_u32 s{ST}, s{PS}, {(2*q+c)*2*8192}'))
            for mt in range(4):
                t0 = acc + (8 * c + mt) * 4; t1 = acc + (8 * c + 4 + mt) * 4
                if mt == 2: L.append(Ins(f's_xor_b32 s{ST}, s{ST}, 2048'))
                L += [cvt(t0, t0, t0 + 1), cvt(t0 + 1, t0 + 2, t0 + 3), cvt(t0 + 2, t1, t1 + 1), cvt(t0 + 3, t1 + 2, t1 + 3)]
                L.append(Ins(f'buffer_store_dwordx4 {vr(t0)}, v{vL16}, {sr(SW)}, s{ST} offen offset:{1024*(mt&1)} sc1'))
        return L
    def poll_check(name, ld, test):
        g = [Ins(t, needs=[ld] if n == 0 else []) for n, t in enumerate(test)]
        g.append(Ins('s_cbranch_scc0 %s_slow' % name))
        g.append(Ins('%s_ok:' % name))
        S = Prog()
        S.label('%s_slow' % name)
        S('s_mov_b32 s%d, 400000' % SPN)
        S.label('%s_loop' % name)
        S('s_sleep 2')
        S(ld.text)
        S('s_waitcnt vmcnt(0)')
        S('s_sub_u32 s%d, s%d, 1' % (SPN, SPN))
        S('s_cbranch_scc1 %s_ok' % name)
        for t in test: S(t)
        S('s_cbranch_scc0 %s_loop' % name)
        S('s_branch %s_ok' % name)
        slow.append(S.text())
        return g
    def setflag(n, reg):
        return II(f'v_mov_b32 v{reg}, {n}\nbuffer_store_dword v{reg}, v{vFL}, {sr(SW)}, s{MYF} offen sc1')
    def hpoll(n, reg):
        ld = T(f'buffer_load_dword v{reg}, off, {sr(SW)}, s{PF} sc1')
        return ld, poll_check('h%d' % n, ld, [f'v_readfirstlane_b32 s{T2}, v{reg}', f's_cmp_ge_u32 s{T2}, {n}'])

    qe = qkv_epi()
    pe = [pair_epi(PACC[q], q) for q in range(4)]
    le = l1_epi()
    VREG = [ACCA + 4 * n for n in range(16)] + [SP + 4 * n for n in range(4)]
    G0M, G1M = 96, 98
    late = II(f'''s_mov_b32 s{SQ}, s8
    s_mov_b32 s{SQ+1}, s9
    s_mov_b32 s{SQ+2}, 0x{576*1152:x}
    s_mul_i32 s{T1}, s{T0}, {BLK//2}
    s_mul_i32 s{T2}, s{J}, 2304
    s_add_u32 s{T1}, s{T1}, s{T2}
    s_mov_b32 s{G0M}, 0xffff
    s_mov_b32 s{G0M+1}, 0
    s_mov_b32 s{G1M}, 0xffff0000
    s_mov_b32 s{G1M+1}, 0''')
    for a_ in range(5):
        late += II(f's_add_u32 s{KO+a_}, s{T1}, 0x{KOFF + (2*a_-9)*BLK:x}')
        if a_ < 4:
            late.append(II(f's_cmp_ge_u32 s{T0}, {16-4*a_}\ns_cselect_b32 s{KO+a_}, s{KO+a_}, 0x{OOB:x}\ns_cselect_b32 s{KB+a_}, 0, 0xf149'))
    a0, a1, a2, a3 = SP, SP + 1, SP + 2, SP + 3
    vTK, vQR, vTD_, vR0, vR1 = SP + 4, SP + 5, QF + 12, SP + 7, SP + 8
    late += II(f'''v_and_b32 v{a0}, 15, v{vL}
    v_lshrrev_b32 v{a1}, 4, v{vL}
    v_mov_b32 v{a3}, 0x{OOB:x}
    s_mul_i32 s{T2}, s{FH}, 1280
    s_add_u32 s{T3}, s{T2}, {BLK+144*256}
    v_add_u32 v{vKM}, s{T3}, v{vL16}
    v_lshlrev_b32 v{a1}, 4, v{a1}
    v_lshl_add_u32 v{a1}, v{a0}, 6, v{a1}
    s_add_u32 s{T3}, s{T2}, {BLK+73728}
    v_add_u32 v{vVM}, s{T3}, v{a1}
    s_lshl_b32 s{T2}, s{FH}, 7
    s_add_u32 s{T2}, s{T2}, {BLK+73728+1024}
    v_add_u32 v{a1}, s{T2}, v{a1}
    v_cmp_gt_u32 vcc, 2, v{a0}
    s_lshl_b32 s{T2}, s{FH}, 2
    s_add_u32 s{T2}, s{T2}, {BLK+148*256}
    v_lshlrev_b32 v{a2}, 4, v{a0}
    v_cndmask_b32 v{vVR}, v{a3}, v{a1}, vcc
    v_add_u32 v{a2}, s{T2}, v{a2}
    v_cmp_gt_u32 vcc, 32, v{vL}
    v_subrev_u32 v{a1}, {BLK-8}, v{a2}
    v_cndmask_b32 v{vR0}, v{a3}, v{a2}, {sr(G0M,2)}
    v_cndmask_b32 v{vQR}, v{a3}, v{a2}, vcc
    v_cndmask_b32 v{vR1}, v{a3}, v{a1}, {sr(G1M,2)}
    v_cndmask_b32 v{vKR}, v{vR0}, v{a1}, {sr(G1M,2)}
    v_and_b32 v{a0}, 3, v{a0}
    s_mul_i32 s{T2}, s{J}, 2304
    s_sub_u32 s{T2}, {BLK+110592}, s{T2}
    v_mov_b32 v{a2}, s{T2}
    v_cmp_eq_u32 vcc, 2, v{a0}
    v_mul_u32_u24 v{a0}, 3641, v{vL}
    v_lshrrev_b32 v{a0}, 16, v{a0}
    v_cndmask_b32 v{vVR}, v{vVR}, v{a2}, vcc
    v_lshlrev_b32 v{a1}, 7, v{vL}
    v_cmp_gt_u32 vcc, 41, v{vL}
    v_mul_u32_u24 v{a0}, {36864-18*128}, v{a0}
    v_lshl_add_u32 v{a0}, v{vL}, 7, v{a0}
    v_cndmask_b32 v{vTD_}, v{a3}, v{a1}, vcc
    v_cmp_gt_u32 vcc, 54, v{vL}
    s_nop 0
    s_nop 0
    v_cndmask_b32 v{vTK}, v{a3}, v{a0}, vcc''')
    kvld = T(f'buffer_load_dwordx4 {vr(SP+12)}, off, {sr(SB)}, s{DB} sc1', 32)
    kvtest = [f'v_readfirstlane_b32 s{T2}, v{SP+12}', f'v_readfirstlane_b32 s{T3}, v{SP+13}', f'v_readfirstlane_b32 s{T1}, v{SP+14}',
              f's_or_b32 s{T2}, s{T2}, s{N0}', f's_or_b32 s{T3}, s{T3}, s{N1}', f's_and_b32 s{T2}, s{T2}, s{T3}',
              f's_and_b32 s{T2}, s{T2}, s{T1}', f's_cmp_eq_u32 s{T2}, 0xffff']
    kv2pre = II(f'''v_lshlrev_b32 v{SP+9}, 7, v{vL}
    v_cmp_gt_u32 vcc, 48, v{vL}
    s_lshl_b32 s{DB}, s{I}, 11
    s_add_u32 s{DB}, s{DB}, 0x{FOFF-4096:x}
    v_cndmask_b32 v{SP+9}, v{a3}, v{SP+9}, vcc
    s_lshl_b32 s{N1}, s{N1}, 16
    s_or_b32 s{N1}, s{N1}, s{N0}''')
    kv2ld = T(f'buffer_load_dword v{SP+12}, v{SP+9}, {sr(SW)}, s{DB} offen sc1', 32)
    kv2test = [f'v_cmp_le_u32 vcc, 1, v{SP+12}', 's_nop 1', f's_or_b32 s{T2}, vcc_lo, s{N1}', f's_or_b32 s{T3}, vcc_hi, 0xffff0000', f's_and_b32 s{T2}, s{T2}, s{T3}', f's_cmp_eq_u32 s{T2}, -1']
    kvpre = II(f'''s_lshl_b32 s{T3}, s{I}, 2
    s_add_u32 s{T3}, s{T3}, s{Wv}
    s_mul_i32 s{T3}, s{T3}, {BLK}
    s_mul_i32 s{T2}, s{J}, 2304
    s_add_u32 s{T3}, s{T3}, s{T2}
    s_add_u32 s{T3}, s{T3}, 0x{KOFF:x}''')
    kvtouch = [T(f'buffer_load_dword v0, v{vTK}, {sr(SW)}, s{T3} offen')] if opt.get('kvt', 0) else []
    if JX > 2 and opt.get('kvt', 0):
        kvtouch += II(f's_sub_u32 s{T3}, s{T3}, {8*BLK}\ns_and_b32 s{T2}, s{I}, {32//JX-2}') + \
                   [II(f's_or_b32 s{T2}, s{T2}, s{N0}\ns_cselect_b32 s{T3}, 0x{OOB:x}, s{T3}'), T(f'buffer_load_dword v0, v{vTK}, {sr(SW)}, s{T3} offen')]
    kvtouch += [II(f's_getpc_b64 {sr(SB,2)}') + [Ins('K1_pc2:')]] + II(f'''s_mov_b32 s{SB+2}, code_end-K1_pc2
    s_and_b32 s{T2}, s{NN}, 7
    s_lshl_b32 s{T2}, s{T2}, 2
    s_add_u32 s{T2}, s{T2}, s{Wv}
    s_mul_i32 s{T2}, s{T2}, {10*128}
    v_lshlrev_b32 v{SP}, 7, v{vL}
    v_cmp_gt_u32 vcc, 10, v{vL}
    s_nop 0
    s_nop 0
    v_cndmask_b32 v{SP}, v{a3}, v{SP}, vcc''') + [T(f'buffer_load_dword v0, v{SP}, {sr(SB)}, s{T2} offen', 32)]
    qld = []; ql = []
    for a_ in range(2):
        l0 = Ins(f'buffer_load_dwordx4 {vr(QF+4*a_)}, v{vKM}, {sr(SW)}, s{T3} offen sc1')
        l1 = [Ins(f'buffer_load_dword v{QF+8+2*a_+h}, v{vQR}, {sr(SW)}, s{T3} offen offset:{8*h} sc1') for h in range(2)]
        ql += [Ins(f's_add_u32 s{T3}, s{KO+4}, {(a_*BLK - 36864) & 0xffffffff}'), l0, l1[0], l1[1]]; qld += [[l0, l1[0]], [l0, l1[1]]]
    km = []; kr = []; kl = []; vld = []; vl = []
    PACE = ('SKIP', 0)
    for b_ in range(11):
        so = Ins(f's_add_u32 s{T3}, s{KO+min(b_//2,4)}, {(b_-2*min(b_//2,4))*BLK}')
        r_ = Ins(f'buffer_load_dword a{6*b_}, v{vR0 if b_ == 0 else (vR1 if b_ == 10 else vKR)}, {sr(SW)}, s{T3} offen sc1'); kr.append(r_)
        kl += [so, r_, PACE]
        lo_, hi_ = b_ // 2, (b_ - 1) // 2
        nm_ = lambda q_: f's{KB+q_}' if 0 <= q_ < 4 else '0'
        if b_ <= 8: kl += II(f's_pack_ll_b32_b16 s{T2}, {nm_(lo_)}, {nm_(hi_)}\nv_accvgpr_write_b32 a{6*b_+1}, s{T2}')
        else: kl += II(f'v_accvgpr_write_b32 a{6*b_+1}, 0')
        if b_ < 10:
            m_ = Ins(f'buffer_load_dwordx4 {ar(6*b_+2)}, v{vKM}, {sr(SW)}, s{T3} offen sc1'); km.append(m_)
            kl += [m_, PACE]
    kld = [[km[u // 2], kr[(u + 1) // 2]] for u in range(20)]
    for v in range(10):
        a_ = Ins(f'buffer_load_dwordx4 {vr(VREG[2*v])}, v{vVM}, {sr(SW)}, s{T3} offen sc1')
        b_ = Ins(f'buffer_load_dwordx4 {vr(VREG[2*v+1])}, v{vVR}, {sr(SW)}, s{T3} offen sc1')
        vl.append([Ins(f's_add_u32 s{T3}, s{KO+v//2}, {(v%2)*BLK}'), a_, PACE, b_, PACE]); vld += [a_, b_]
    def vfix(v): return [Ins(f'v_or_b32 v{VREG[2*v+1]+r}, v{vONES}, v{VREG[2*v+1]+r}', needs=[vld[2 * v + 1]]) for r in range(4)]
    pfd = [T(f'buffer_load_dword v0, v{vTD_}, {sr(SD)}, s{PFD} offen offset:2048' + NT, opt.get('qd', 120))]
    if opt.get('nod') or opt.get('cls'): pfd = []
    pfw = II(f's_mul_i32 s{T2}, s2, {21*128}') + [II(f's_cmp_eq_u32 s{Wv}, 0\ns_cselect_b32 s{T2}, s{T2}, 0x{OOB:x}'), T(f'buffer_load_dword v0, v{vTD_}, {sr(SQ)}, s{T2} offen', 40)]
    if opt.get('nod'): pfw = []
    h1ld, h1chk = hpoll(2, vPFP)
    e_ = opt.get('ev', [8, 0, 26, 29, 38])
    flat = lambda l: [y for x in l for y in x]
    NV1 = opt.get('nv1', 3)
    cls_chain = []
    if opt.get('cls'):
        va, vs_ = QF + 13 - 9, QF + 13 - 8
        cls_chain = II(f'''v_lshrrev_b32 v{va}, 2, v{vL}
        v_mul_u32_u24 v{va}, 9216, v{va}
        v_bfe_u32 v{vs_}, v{vL}, 1, 1
        v_mul_u32_u24 v{vs_}, 1152, v{vs_}
        v_add_u32 v{va}, v{va}, v{vs_}
        v_and_b32 v{vs_}, 1, v{vL}
        v_lshl_add_u32 v{va}, v{vs_}, 10, v{va}
        v_cmp_gt_u32 {sr(DUM,2)}, 36, v{vL}
        v_mov_b32 v{va+2}, 0x{OOB:x}
        v_lshlrev_b32 v{vs_}, 8, v{vs_}
        v_cndmask_b32 v{va}, v{va+2}, v{va}, {sr(DUM,2)}
        v_sub_u32 v{vs_}, 128, v{vs_}
        s_lshr_b32 s{DUM}, s2, 5
        s_lshl_b32 s{DUM}, s{DUM}, 3
        s_and_b32 s{DUM+1}, s2, 7
        s_or_b32 s{DUM}, s{DUM}, s{DUM+1}
        s_mul_i32 s{PFP}, s{DUM}, {9*9216}
        s_mul_i32 s{DUM+1}, s{Wv}, 2304
        s_add_u32 s{PFP}, s{PFP}, s{DUM+1}
        s_and_b32 s{DUM}, s{NN}, 3''')
        sites_ = opt['cls']; qc = opt.get('qc', 24)
        for n, sl in enumerate(sites_):
            if sl: cls_chain += [('AT', sl - 1, 16)]
            if n < 6 and n % 2 == 0: cls_chain += II(f'v_add_u32 v{va}, v{va}, v{vs_}')
            if not sl: continue
            if n < 6:
                cls_chain += [II(f's_cmp_eq_u32 s{DUM}, {n % 4}\ns_cselect_b32 s{PFW}, s{PFP}, 0x{OOB:x}'), ('AT', sl, 0),
                              T(f'buffer_load_dword v0, v{va}, {sr([SG, SU][n % 2])}, s{PFW} offen offset:{2048 * (n % 2)}', qc)]
            else:
                cls_chain += [II(f's_cmp_eq_u32 s{DUM}, {n % 4}\ns_cselect_b32 s{PFW}, s{PFD}, 0x{OOB:x}'), ('AT', sl, 0),
                              T(f'buffer_load_dword v0, v{vTD_}, {sr(SD)}, s{PFW} offen offset:2048', qc)]
    fill1 = [(sl, 0, stamp('slot%d' % sl, True)) for sl in range(NSEG1)] + [
        (0, 0, r1[8:]),
        (1, 0, cls_chain),
        (0, 2, late0 + late0b + [('BY', 9), ('AT', 9, 4)] + qe + [('BY', 16)] + late + [kvld, ('AT', 18, 4)]
         + pe[0][0] + [('BY', 24), poll_check('kv', kvld, kvtest)] + kv2pre + [('AT', 24, 4)]
         + le[0] + [('BY', 26), ('AT', e_[2], 0), kv2ld] + [('AT', 27, 0)] + le[3] + [('AT', e_[3] - 1, 8), poll_check('kw', kv2ld, kv2test)] + kvpre + [('AT', e_[3], 0)] + pfd + pfw + kvtouch + [('BY', 33), ('AT', 33, 4)]
         + pe[1][0] + ql + [('BY', 42), ('AT', 42, 4)]
         + pe[2][0] + [('AT', 44, 0)] + kl + flat(vl[:NV1])),
    ]
    bx1 = {
        3: (r1, []),
        opt.get('kvf', 17): (kv_stores + [guard, ones_st], setflag(1, SP + 10)),
        27: (le[2], []),
        opt.get('hf', 49): (pe[0][1] + le[1] + pe[1][1] + pe[2][1], setflag(2, SP + 10)),
    }
    extra_loads[3] = [5, 6, 7, 8, load_at.pop(2)]
    xmap = {}
    for n, x in enumerate(r1):
        ks = n // 2
        for mt in range(4): xmap[breg(ks, mt)] = r1[2 * ks + (mt & 1)] if mt >= 2 else None
    mark = {}
    def hook(k, s):
        if k == 0:
            P(f's_cmp_ge_u32 s{J}, 9')
            P('s_cbranch_scc1 qkv_v')
            mark['a'] = len(P.out)
        if s == 9 and 'b' not in mark:
            mark['b'] = len(P.out)
            P.label('qkv_e')
    left = segment(0, NSEG1, fill1, bx1, first_loads=list(range(NPRE, 5)), hook=hook, pre=r1[:8], extra_need=lambda f, mt: xmap[f.b(mt)])
    qrd = set(id(x) for n in range(9) for g in slots[n].groups for f in g for x in f.rd)
    K = Prog(); K.label('qkv_k'); nb_ = 0
    for x in P.out[mark['a']:mark['b']]:
        if x.kind == 'mfma' or id(x) in qrd or x.op == 's_nop': continue
        t = x.text
        if x.kind == 'label': K.label(t[:-1].replace('_e', 'k_e')); continue
        if x.op == 's_cbranch_scc1': t += 'k'
        if x.op == 's_waitcnt':
            if 'vmcnt' not in t: continue
            t = t.split(' lgkmcnt')[0]
        if x.op == 's_barrier':
            nb_ += 1
            if nb_ <= 3: K('s_waitcnt lgkmcnt(0)')
        K(t)
    K('s_waitcnt lgkmcnt(0)'); K('s_nop 4'); K('s_branch qkv_e')
    slow.append(K.text())
    alt = ['qkv_v:', f'    s_cmp_ge_u32 s{J}, 14', '    s_cbranch_scc1 qkv_k'] if opt.get('skip', 1) else ['qkv_v:']
    for x in P.out[mark['a']:mark['b']]:
        t = x.text
        if x.kind == 'label': alt.append(t.replace('_e:', 'v_e:')); continue
        if x.op == 's_cbranch_scc1': t += 'v'
        if x.kind == 'mfma':
            o = [y.strip() for y in t[len(x.op):].split(',')]
            t = '%s %s, %s, %s, %s' % (x.op, o[0], o[2], o[1], o[3])
        alt.append('    ' + t)
    alt.append('    s_branch qkv_e')
    slow.append('\n'.join(alt) + '\n')
    print('left after seg1:', len(left), file=sys.stderr)
    stamp('g1end')

    SREG = [80] + [ACCB + (tl * 4 + mt) * 4 for mt in range(4) for tl in (0, 1, 3, 2)]
    PR = [84, 88]; OM, OR_ = 96, 100; MF, ML = 104, 108
    noskip = lambda l: [x for x in l if not isinstance(x, tuple)]
    def qbuild(t):
        q = QF + 2 * t
        P(Ins(f'v_mov_b32 v{QW+2}, v{q}', needs=qld[t]))
        P(f'v_mov_b32 v{QW+3}, v{q+1}')
        P(f'v_cndmask_b32 v{QW}, 0, v{QF+8+t}, {sr(G0M,2)}')
        P(f'v_cndmask_b32 v{QW+4}, 0, v{QF+8+t}, {sr(G1M,2)}')
    P('v_mov_b32 v%d, 0x%x' % (vTA, NEG))
    P(f'v_mov_b32 v{QW+1}, 0x3f80')
    P(f'v_mov_b32 v{QW+5}, 0x3f800000')
    qbuild(0)
    pq = list(pe[3][0])
    for r in range(4):
        P('v_cmp_lt_i32 vcc, %d, v%d' % (-r, vDG))
        P(pq.pop(0)); P(pq.pop(0))
        P('v_cndmask_b32 v%d, v%d, 0, vcc' % (MF + r, vTA))
        P('v_cndmask_b32 v%d, 0, v%d, vcc' % (ML + r, vTA))
    P(f's_cmp_eq_u32 s{FH}, 0')
    P('s_cselect_b64 vcc, -1, 0')
    P(f's_xor_b32 s{N0}, s{C}, 0x80000000')
    hld = {}
    def hload(k):
        if isinstance(k, tuple):
            ka, kb = k
            pre = II(f's_mul_i32 s{T2}, s{FH}, {(ka-kb)*8192}\ns_add_u32 s{T2}, s{T2}, s{HL}\ns_add_u32 s{T2}, s{T2}, {(17-ka)*8192}') if ka != kb else II(f's_add_u32 s{T2}, s{HL}, {(17-ka)*8192}')
            tx = lambda kk, mt: f'buffer_load_dwordx4 {breg(hpos[kk], mt)}, v{vL16}, {sr(SW)}, s{T2} offen offset:{1024*mt} sc1'
            ld = [Ins(tx(ka, mt)) for mt in range(4)]
            if not opt.get('ksw'): hld[ka] = [ld[3]] * 4; hld[kb] = [ld[3]] * 4
            if opt.get('ksw'): hld[ka] = list(ld); hld.setdefault(kb, None)
            if ka == kb or opt.get('ksw'): return [pre + ld[:1], ld[1:2], ld[2:3], ld[3:]]
            return [(pre if h == 0 else []) + alt_site(ld[2*h:2*h+2], [tx(kb, 2*h), tx(kb, 2*h+1)]) for h in range(2)]
        base = HLONE if k == 8 else hphys[k // 2] * SLOT + (k & 1) * 8192
        hld[k] = [Ins(f'ds_read_b128 {breg(hpos[k], mt)}, v{vONES} offset:{1024*mt}') for mt in range(4)]
        return [II(f'v_add_u32 v{vONES}, {base}, v{vHW}') + hld[k][:2], hld[k][2:]]
    def qk(t, sg):
        u = t + sg
        c = vr(MF) if sg == 0 else (vr(ML) if sg == 16 else '0')
        return Ins('v_mfma_f32_16x16x32_bf16 %s, %s, %s, %s' % (vr(SREG[sg]), ar(3 * u + (u & 1)), vr(QW + 2 * (u & 1)), c), needs=kld[u])
    def mx(sg, dst):
        s = SREG[sg]
        if sg == 0: return II('v_max3_f32 v%d, v%d, v%d, v%d\nv_max_f32 v%d, v%d, v%d' % (dst, s, s + 1, s + 2, dst, dst, s + 3))
        return II('v_max3_f32 v%d, v%d, v%d, v%d\nv_max3_f32 v%d, v%d, v%d, v%d' % (dst, dst, s, s + 1, dst, dst, s + 2, s + 3))
    lk = [x for x in left if any(y in km or y in kr for y in x)]
    if lk:
        n = left.index(lk[-1]) + 1; emit_all(left[:n]); left = left[n:]
    P(qk(0, 0))
    nq = 1; avail = 1; nmx = 0
    while pq:
        x = pq.pop(0); P(x)
        if x.kind == 'ds': avail += 4
        elif nq < avail and len(pq) % 2 == 0: P(qk(0, nq)); nq += 1
    def bunch(l):
        out = []; cur = []
        for x in l:
            cur += x
            if any(y.kind == 'vmem' for y in x): out.append(cur); cur = []
        assert not cur
        return out
    isdma = lambda x: any(' lds' in y.text or f's{OFF},' in y.text.split()[1] or 'm0' in y.text or f's{BD},' in y.text.split()[1] for y in x)
    ldma = bunch([x for x in left if isdma(x)])
    lv = bunch([x for x in left if not isdma(x)] + [[x] for v in range(NV1, 10) for x in noskip(vl[v])])
    while nq < 17:
        P(qk(0, nq)); nq += 1
        emit_all(mx(nmx, vMN)); nmx += 1
    while nmx < 17:
        if len(lv) > 12 and nmx % 2: emit_all(lv.pop(0))
        emit_all(mx(nmx, vMN)); nmx += 1
    while len(lv) > 12: emit_all(lv.pop(0))
    qbuild(1)
    stamp('attk')
    ow = []
    def o_epi(t):
        P('v_rcp_f32 v%d, v%d' % (vTA, OR_ + 2))
        for r in range(4): P(mul(OM + r, OM + r, vTA))
        for r in range(2): P(mul(OR_ + r, OR_ + r, vTA))
        P(cvt(QF + 2 * t, OM, OM + 1)); P(cvt(QF + 2 * t + 1, OM + 2, OM + 3)); P(cvt(QF + 8 + t, OR_, OR_ + 1))
    ofl = II(f'''s_lshl_b32 s{T2}, s{FH}, 3
    s_add_u32 s{T2}, s{T2}, {HLONE}
    v_add_u32 v{vTB}, s{T2}, v{vHW}
    s_lshl_b32 s{T2}, s{RG}, 9
    s_lshl_b32 s{T3}, s{FH}, 2
    s_add_u32 s{T2}, s{T2}, s{T3}
    s_add_u32 s{T2}, s{T2}, {RT4}
    v_lshlrev_b32 v{vTA}, 3, v{vL}
    v_add_u32 v{vMX}, 4096, v{vTA}
    v_cndmask_b32 v{vTA}, v{vMX}, v{vTA}, {sr(G0M,2)}
    v_add_u32 v{vTA}, s{T2}, v{vTA}''')
    for t in range(4):
        ow += [Ins(f'ds_write_b64 v{vTB}, {vr(QF+2*t,2)} offset:{1024*t}'), Ins(f'ds_write_b32 v{vTA}, v{QF+8+t} offset:{128*t}')]
    ofl += ow
    h2ld, h2chk = hpoll(3, vPFP)
    hplan = opt.get('hplan', {0: [0, 1, 2, 3, 4, 5], 1: [(16, 17), (14, 15), (12, 13), (9, 9)], 2: [(17, 16), (15, 14), (13, 12), 8], 3: [(10, 11), (11, 10)]})
    if opt.get('plain', 1): hplan = {0: [0, 1, 2, 3, 4, 5], 1: [(16, 16), (17, 17), (14, 14), (15, 15)], 2: [(12, 12), (13, 13), (9, 9), 8], 3: [(10, 10), (11, 11)]}
    if opt.get('ksw'): hplan = {0: [0, 1, 2, 3, 4, 5], 1: [(16, 17), (14, 15), (12, 13), (9, 9)], 2: [(17, 16), (15, 14), (13, 12), 8], 3: [(10, 11), (11, 10)]}
    for t in range(4):
        stamp('att%d' % t)
        P('v_mov_b32 v%d, v%d' % (vTA, vMN))
        P('v_permlane16_swap_b32 v%d, v%d' % (vTA, vMN))
        P('v_max_f32 v%d, v%d, v%d' % (vMN, vMN, vTA))
        P('v_mov_b32 v%d, v%d' % (vTA, vMN))
        P('v_permlane32_swap_b32 v%d, v%d' % (vTA, vMN))
        P('v_max_f32 v%d, v%d, v%d' % (vMN, vMN, vTA))
        P(f'v_mul_f32 v{vMX}, s{N0}, v{vMN}')
        if t == 1:
            P(Ins('s_barrier', needs=pe[3][1] + hw[3] + [x for k in range(6) for x in hld[k]]))
            ad = bunch(flat([dma_groups(n) for n in att_loads[:sum(opt.get('na', [0, 4, 6, 10])) // 4]]))
            emit_all(setflag(3, vPFS))
            emit_all(h1chk)
        if t == 3:
            P(Ins('s_barrier', needs=slots[NSEG1].loads + hld[8]))
            emit_all(h2chk)
        bq = flat([hload(k) for k in hplan[t]])
        def mix(a_, b_):
            out = []; a_ = list(a_); b_ = list(b_)
            while a_ or b_:
                if a_: out.append(a_.pop(0))
                if b_: out.append(b_.pop(0))
            return out
        if t == 0:
            bq = mix(lv + ldma, bq); bq.insert(len(bq) * 2 // 3, [h1ld])
        else:
            na = opt.get('na', [0, 4, 6, 10])[t]
            bq = mix(bq, ad[:na]) if t < 3 or opt.get('plain', 1) else bq[:2] + ad[:na] + bq[2:]
            ad = ad[na:]
        ppv = []; pqk = []; pmx = []
        for b in range(9):
            v = (t >> 1) + b
            sgs = [2 * v - t, 2 * v + 1 - t]
            val = [sg for sg in sgs if 0 <= sg <= 16]
            p = PR[b % 2]
            for sg in val:
                for r in (0, 2):
                    s = SREG[sg] + r
                    P(f'v_pk_fma_f32 {vr(s,2)}, {vr(s,2)}, {sr(C,2)}, {vr(vMX,2)} op_sel_hi:[1,0,0]')
            mfs = ppv + [qk(t + 1, g_) for g_ in pqk]
            nb = (len(bq) + (8 - b)) // (9 - b)
            def withmem(x):
                nonlocal nb
                g = []
                if nb: g = bq.pop(0); nb -= 1
                n0 = 0
                while n0 < len(g) and g[n0].kind in ('salu', 'valu') and not g[n0].op.startswith('s_cbranch'): n0 += 1
                emit_all(g[:n0]); P(x); emit_all(g[n0:])
            for sg in val:
                for r in range(4):
                    P('v_exp_f32 v%d, v%d' % (SREG[sg] + r, SREG[sg] + r))
                    if mfs and (not opt.get('spr') or r % 2 == 0 or len(val) == 1): withmem(mfs.pop(0))
            while mfs: withmem(mfs.pop(0))
            nb += 1
            for g_ in pmx: emit_all(mx(g_, vMN))
            for hh, sg in enumerate(sgs):
                if sg in val:
                    s = SREG[sg]
                    P(cvt(p + 2 * hh, s, s + 1)); P(cvt(p + 2 * hh + 1, s + 2, s + 3))
                else:
                    P('v_mov_b32 v%d, 0' % (p + 2 * hh)); P('v_mov_b32 v%d, 0' % (p + 2 * hh + 1))
            for _ in range(nb - 1): emit_all(bq.pop(0))
            pmx = pqk; pqk = val if t < 3 else []
            ppv = [Ins('v_mfma_f32_16x16x32_bf16 %s, %s, %s, %s' % (vr(OM), vr(VREG[2 * v]), vr(p), '0' if b == 0 else vr(OM)), needs=[vld[2 * v]]),
                   Ins('v_mfma_f32_16x16x32_bf16 %s, %s, %s, %s' % (vr(OR_), vr(VREG[2 * v + 1]), vr(p), '0' if b == 0 else vr(OR_)), needs=[vld[2 * v + 1]])]
            if t == 2 and b == 5: P(h2ld)
        assert not bq
        tail = flat([mx(g_, vMN) for g_ in pmx])
        for x in [qk(t + 1, g_) for g_ in pqk] + ppv:
            P(x)
            if tail: P(tail.pop(0))
        emit_all(tail)
        if t < 2: qbuild(t + 2)
        for g_ in pqk: emit_all(mx(g_, vMN))
        if t < 3: o_epi(t)
    stamp('attend')

    own = flat(flat([hload(k) for k in (6, 7)]))
    bmap = {}
    for k in hld:
        for mt in range(4): bmap[breg(hpos[k], mt)] = hld[k][mt]
    def restage(dst, sbase, stride, T3=T3):
        L = II(f's_lshl_b32 s{T3}, s{FH}, 11\ns_add_u32 s{T3}, s{T3}, {HLONE}\nv_add_u32 v{vTB}, s{T3}, v{vHW}')
        rd = [Ins(f'ds_read_b128 {vr(dst+4*m)}, v{vTB} offset:{1024*m}') for m in range(2)]
        L += rd + II(f's_add_u32 s{T3}, s{sbase}, {stride}') + [('SKIP', 8)]
        L += [Ins(f'buffer_store_dwordx4 {vr(dst+4*m)}, v{vL16}, {sr(SW)}, s{[sbase, T3][m]} offen sc1', needs=[rd[m]]) for m in range(2)]
        return L, rd
    oe, ord_ = restage(QF, OB, 18432)
    rr = Ins(f'ds_read_b128 {vr(QF+8)}, v{vTA}')
    oe += II(f'v_add_u32 v{vTA}, {RT4}, v{vL16}') + [rr] + II(f'v_lshrrev_b32 v{vTA}, 3, v{vL}\nv_mul_u32_u24 v{vTA}, {18432-128}, v{vTA}\nv_add_u32 v{vTA}, v{vTA}, v{vL16}') + [('SKIP', 8)]
    oe += [Ins(f'buffer_store_dwordx4 {vr(QF+8)}, v{vTA}, {sr(SW)}, s{OR} offen sc1', needs=[rr])]
    l2e = II(f's_lshl_b32 s{T3}, s{FH}, 3\ns_add_u32 s{T3}, s{T3}, {HLONE}\nv_add_u32 v{vTB}, s{T3}, v{vHW}'); l2w = []
    for mt in range(4):
        t0 = SP + mt * 4
        w = Ins(f'ds_write_b64 v{vTB}, {vr(t0,2)} offset:{1024*mt}'); l2w.append(w)
        l2e += [cvt(t0, t0, t0 + 1), cvt(t0 + 1, t0 + 2, t0 + 3), w]
    l2s, _ = restage(SP, PLN, 1024, T1)
    TLT, TVT = opt.get('tl', 0x54108732), opt.get('tv', 0x56557777)
    def task_params(second):
        ln = II(f's_lshl_b32 s{T2}, s{Pp}, 2\ns_lshr_b32 s{T1}, {TLT:#x}, s{T2}\ns_and_b32 s{T1}, s{T1}, 15\ns_lshr_b32 s{TV}, {TVT:#x}, s{T2}\ns_and_b32 s{TV}, s{TV}, 15\ns_movk_i32 s{TM}, 0x5555')
        ln += [II(f's_cmp_gt_u32 s{T1}, 4\ns_cselect_b32 s{T2}, 1, 0'), Ins(f's_lshl_b32 s{TM}, s{TM}, s{T2}'), II(f's_cmp_eq_u32 s{T1}, 4\ns_cselect_b32 s{TM}, 0xffff, s{TM}'), Ins(f's_bitset0_b32 s{TM}, s{J}')]
        return ln + II(f'''s_lshl_b32 s{TL}, s{T1}, 7
        s_lshl_b32 s{T2}, s{E}, 2
        s_add_u32 s{T2}, s{T2}, s{Wv}
        s_lshl_b32 s{TP}, s{T2}, 10
        s_lshl_b32 s{T1}, s{T1}, 14
        s_sub_u32 s{TP}, s{TP}, s{T1}
        s_mul_i32 s{T1}, s{I}, {8*18*8192}
        s_add_u32 s{TP}, s{TP}, s{T1}
        s_lshl_b32 s{T1}, s{I}, 3
        s_add_u32 s{T2}, s{T2}, s{T1}
        s_mul_i32 s{OL}, s{T2}, 18432
        s_add_u32 s{TX}, s{OL}, s{TL}
        s_mul_i32 s{T1}, s{Wv}, {36*1152}
        s_add_u32 s{TL}, s{TL}, s{T1}''')
    tsetup = II(f'''s_mov_b32 s{SG}, s8
    s_mov_b32 s{SG+1}, s9
    s_mov_b32 s{SG+2}, 0x{576*1152:x}
    s_mov_b32 s{SU}, s{OUTP}
    s_mov_b32 s{SU+1}, s{OUTP+1}
    s_mov_b32 s{SU+2}, 0x{2048*1152:x}
    s_lshl_b32 s{FB}, s{I}, 11
    s_add_u32 s{FB}, s{FB}, 0x{FOFF:x}
    s_mov_b32 s{LO}, 0x00003f80
    s_mov_b32 s{HI}, 0x3f800000''') + task_params(False)
    for t, row in enumerate((0, 8, 20, 28)): tsetup += II(f'v_add_u32 v{vWD[t]}, {(row*1152 - 1024*t - 2048) & 0xffffffff}, v{vDD[0]}')
    tsetup += II(f'''v_lshrrev_b32 v{vWD2}, 5, v{vL}
    v_mul_u32_u24 v{vWD2}, {32*1152}, v{vWD2}
    v_add_u32 v{vWD2}, v{vWD2}, v{vWD[0]}
    v_add_u32 v{vWD2}, {16*1152}, v{vWD2}
    v_and_b32 v{vWT[0]}, 0xffff, v{vTD[0]}
    s_lshl_b32 s{T2}, s{FH}, 6
    v_xor_b32 v{vWT[0]}, s{T2}, v{vWT[0]}
    v_xor_b32 v{vWT[1]}, 32, v{vWT[0]}
    v_xor_b32 v{vWT[2]}, 64, v{vWT[0]}
    v_xor_b32 v{vWT[3]}, 0x60, v{vWT[0]}
    v_lshlrev_b32 v{vPL}, 3, v{vOR}
    v_and_b32 v{vMX}, 15, v{vL}
    v_mul_u32_u24 v{vDG}, 1152, v{vMX}
    v_bfe_u32 v{vMN}, v{vL}, 4, 1
    v_lshl_add_u32 v{vDG}, v{vMN}, 5, v{vDG}
    v_lshrrev_b32 v{vMN}, 5, v{vL}
    v_lshl_add_u32 v{vDG}, v{vMN}, 4, v{vDG}
    s_lshl_b32 s{T2}, s{E}, 2
    s_add_u32 s{T2}, s{T2}, s{Wv}
    s_lshl_b32 s{T2}, s{T2}, 8
    s_lshr_b32 s{T3}, s{ROT}, 2
    s_xor_b32 s{T2}, s{T2}, s{T3}
    s_add_u32 s{T2}, s{T2}, {RTB}
    v_lshlrev_b32 v{vMX}, 2, v{vMX}
    v_add_u32 v{vMX}, s{T2}, v{vMX}''')
    rrd = Ins(f'ds_read_b32 v{vMX}, v{vMX}')
    tsetup += [rrd, ('SKIP', 8), Ins(f'v_mul_f32 v{vMX}, v{vMX}, v{vMX}', needs=[rrd]), Ins(f'v_mul_f32 v{vMN}, 0x{f2u(-1.4426950408889634):x}, v{vMX}')]
    fl_t = f'buffer_load_dword v{vPFP}, v{vPL}, {sr(SW)}, s{FB} offen sc1'
    o3ld = T(fl_t, 24)
    o3chk = poll_check('o3', o3ld, [f'v_cmp_le_u32 vcc, 4, v{vPFP}', 's_nop 1', 's_cmp_eq_u32 vcc_lo, 0xffff'])
    d5ld = T(fl_t, 8)
    ct3 = [II(f's_getpc_b64 {sr(SB,2)}') + [Ins('K1_pc3:')]] + II(f'''s_mov_b32 s{SB+2}, code_end-K1_pc3
    s_and_b32 s{T2}, s{NN}, 7
    s_lshl_b32 s{T2}, s{T2}, 2
    s_add_u32 s{T2}, s{T2}, s{Wv}
    s_mul_i32 s{T2}, s{T2}, {9*128}
    v_cmp_gt_u32 vcc, 9, v{vL}
    v_mov_b32 v{vTA}, 0x{OOB:x}
    s_nop 0
    v_cndmask_b32 v{vTA}, v{vTA}, v{vPL}, vcc''') + [T(f'buffer_load_dword v0, v{vTA}, {sr(SB)}, s{T2} offen', 24)]
    ct3 += II(f'''v_mul_u32_u24 v{vTA}, 1152, v{vL}
    v_subrev_u32 v{vTB}, {9*1152-128}, v{vTA}
    v_cmp_gt_u32 vcc, 9, v{vL}
    s_and_b32 s{T2}, s{I}, 7
    s_lshl_b32 s{T2}, s{T2}, 1
    v_cndmask_b32 v{vTA}, v{vTB}, v{vTA}, vcc
    s_add_u32 s{T2}, s{T2}, s{E}
    s_mul_i32 s{T2}, s{T2}, {36*1152}
    s_add_u32 s{T2}, s{T2}, s{TL}
    s_mul_i32 s{T3}, s{Wv}, {27*1152}
    s_sub_u32 s{T2}, s{T2}, s{T3}''') + [II(f's_cmp_ge_u32 s{J}, 14\ns_cselect_b32 s{T3}, 18, 9')] + II(f'''v_cmp_gt_u32 vcc, s{T3}, v{vL}
    v_mov_b32 v{vTB}, 0x{OOB:x}
    s_nop 0
    v_cndmask_b32 v{vTA}, v{vTB}, v{vTA}, vcc''') + [T(f'buffer_load_dword v0, v{vTA}, {sr(SG)}, s{T2} offen', 24)]
    if opt.get('nowt', 1): ct3 = ct3[:-17]
    OA = 160
    old = []; ol = II(f'v_lshlrev_b32 v{vTA}, 3, v{vL}')
    for k in range(18):
        if k == 8: ol += [('AT', NSEG1 + 14, 0)]
        if k == 16: ol += [('AT', NSEG1 + 15, 0)]
        if k % 4 == 0: ol += II(f's_add_u32 s{T3}, s{OL}, 0x{OOFF + k*1024:x}')
        if k < 16: x = [Ins(f'buffer_load_dwordx4 {ar(OA+4*k)}, v{vL16}, {sr(SW)}, s{T3} offen offset:{1024*(k%4)} sc1')]
        else: x = [Ins(f'buffer_load_dwordx2 {ar(OA+4*k+2*h,2)}, v{vTA}, {sr(SW)}, s{T3} offen offset:{1024*(k%4)+512*h} sc1') for h in range(2)]
        ol += x; old.append(x[-1])
    XR2 = SP + 8
    xt_ = lambda u: f'buffer_load_dwordx4 {vr(XR2+4*u)}, v{vDG}, {sr(SX)}, s{TX} offen offset:{64*u}'
    xld = [Ins(xt_(u)) for u in range(2)]
    de0 = d_epi(ACCA, 0); st0 = [x for x in de0 if x.kind == 'vmem']; stl = [x for x in l2s if not isinstance(x, tuple) and x.kind == 'vmem']
    ost = [x for x in oe if not isinstance(x, tuple) and x.kind == 'vmem']
    de1a = d_epi(ACCB, 1, (0,)); de1b = d_epi(ACCB, 1, (1,)); st1 = [x for x in de1a + de1b if x.kind == 'vmem']
    for x in st1 + stl: loud.add(id(x)); svc[id(x)] = 3
    fill2 = [(sl, 0, stamp('slot%d' % sl, True)) for sl in range(NSEG1, NS)] + [
        (NSEG1, 0, ofl + [('AT', NSEG1 + 2, 0)] + oe + tsetup + ct3 + [('BY', NSEG1 + 9), ('AT', NSEG1 + 9, 4)] + de0 + [o3ld, ('AT', NSEG1 + 12, 4)] + l2e + [('BY', NSEG1 + 14)]
         + [('AT', NSEG1 + 13, 0), o3chk] + ol),
        (NS - 1, 19, de1a), (NSEG1 + 15, 0, l2s),
        (NSEG1, 1, own)]
    bx2 = {NSEG1 + 2: (ow, []), NSEG1 + 3: (hld[6] + hld[7], [])}
    bx2[NSEG1 + 7] = (ost, setflag(4, vPFS)); bx2[NSEG1 + 15] = (l2w + st0, setflag(5, vPFS)); bx2[NSEG1 + opt.get('l2f', 20)] = (stl, setflag(6, vPFS))
    left = segment(NSEG1, NS, fill2, bx2, first_loads=att_loads[sum(opt.get('na', [0, 4, 6, 10])) // 4:], extra_need=lambda f, mt: bmap[f.b(mt)], pre=lambda: o_epi(3))
    print('left after seg2:', len(left), file=sys.stderr)
    stamp('g2end')
    tq = flat(left) + de1b + xld
    def wo_gemm(P, acc, need_o, bg_=None, ph=None, nd_=4):
        ph = ph or [phys[n] for n in range(NS, NSX)]
        rds = {}
        wwin = [0]
        def rd(n):
            k, dt = divmod(n, nd_)
            w, o = divmod(ph[k // 4] * SLOT, 65536)
            if w != wwin[0]:
                for d in range(4): P('v_add_u32 v%d, 0x%x, v%d' % (vWT[d], ((w - wwin[0]) * 65536) & 0xffffffff, vWT[d]))
                wwin[0] = w
            f = FR + 4 * (n % 8)
            rds[n] = [P('ds_read_b64_tr_b16 %s, v%d offset:%d' % (vr(f + 2 * h, 2), vWT[dt], o + (k % 4) * 4096 + 2048 * h)) for h in range(2)]
        for n in range(7): rd(n)
        for n in range(18 * nd_):
            k, dt = divmod(n, nd_)
            nd = rds[n] + (rds[n + 1] if n % 2 == 0 else []) + ([old[k]] if need_o else [])
            P(Ins('v_mfma_f32_16x16x32_bf16 %s, %s, %s, %s' % (vr(acc + 4 * dt), vr(FR + 4 * (n % 8)), ar(OA + 4 * k), '0' if k == 0 else vr(acc + 4 * dt)), needs=nd))
            if n + 7 < 18 * nd_: rd(n + 7)
            if bg_: bg_(n)
        for d in range(4):
            if wwin[0]: P('v_add_u32 v%d, 0x%x, v%d' % (vWT[d], (-wwin[0] * 65536) & 0xffffffff, vWT[d]))
    def ploads(P, dst, extra=0):
        pl = []
        for p in range(8):
            for u in range(2):
                P(f's_add_u32 s{T3}, s{TP}, 0x{POFF + (p*18+17-u)*8192 - extra:x}')
                pl.append(P(f'buffer_load_dwordx4 {vr(dst+8*p+4*u)}, v{vL16}, {sr(SW)}, s{T3} offen sc1'))
        return pl
    def fmath(P, acc, src0, pl, xr, xl_, imm, bg_=None, nu=2):
        SUM, TT = FR, FR + 16
        for p in range(8):
            for u in range(nu):
                for q in range(4):
                    src = src0 + 8 * p + 4 * u + q; d = SUM + 8 * u + 2 * q
                    P(Ins(f'v_dot2_f32_bf16 v{d}, v{src}, s{LO}, ' + ('0' if p == 0 else f'v{d}'), needs=[pl[nu * p + u]]))
                    P(f'v_dot2_f32_bf16 v{d+1}, v{src}, s{HI}, ' + ('0' if p == 0 else f'v{d+1}'))
                if bg_: bg_(2 * p + u)
        for r in range(0, 8 * nu, 2): P(f'v_pk_mul_f32 {vr(TT+r,2)}, {vr(SUM+r,2)}, {vr(vMX,2)} op_sel:[0,1] op_sel_hi:[1,1]')
        for r in range(8 * nu): P(f'v_exp_f32 v{TT+r}, v{TT+r}')
        for r in range(0, 8 * nu, 2): P(f'v_pk_mul_f32 {vr(acc+r,2)}, {vr(acc+r,2)}, {vr(SUM+r,2)}')
        for r in range(0, 8 * nu, 2): P(f'v_pk_add_f32 {vr(TT+r,2)}, {vr(TT+r,2)}, 1.0 op_sel_hi:[1,0]')
        for r in range(8 * nu): P(f'v_rcp_f32 v{TT+r}, v{TT+r}')
        for r in range(0, 8 * nu, 2): P(f'v_pk_mul_f32 {vr(acc+r,2)}, {vr(acc+r,2)}, {vr(TT+r,2)}')
        for u in range(nu):
            for r in range(4): P(f'v_permlane16_swap_b32 v{acc+8*u+r}, v{acc+8*u+4+r}')
        for u in range(nu):
            for q in range(4):
                d = acc + 8 * u + 2 * q
                P(Ins(f'v_dot2c_f32_bf16 v{d}, s{LO}, v{xr+4*u+q}', needs=[xl_[u]]))
                P(f'v_dot2c_f32_bf16 v{d+1}, s{HI}, v{xr+4*u+q}')
        for u in range(nu):
            for q in range(4): P(cvt(xr + 4 * u + q, acc + 8 * u + 2 * q, acc + 8 * u + 2 * q + 1))
            P(f'buffer_store_dwordx4 {vr(xr+4*u)}, v{vDG}, {sr(SU)}, s{TX} offen offset:{64*u+imm} ' + opt.get('ost', 'sc1'))
    def scale_s(P, acc, nu=2):
        for r in range(0, 8 * nu, 2): P(f'v_pk_mul_f32 {vr(acc+r,2)}, {vr(acc+r,2)}, {vr(vMX,2)} op_sel_hi:[1,0]')
    ftest = [f'v_cmp_le_u32 vcc, s{TV}, v{vPFP}', 's_nop 1', f's_and_b32 s{T2}, vcc_lo, s{TM}', f's_cmp_eq_u32 s{T2}, s{TM}']
    P(Ins('s_barrier', needs=[x for n in range(NS, NSX) for x in slots[n].loads]))
    while tq and any(x in ol for x in tq): P(tq.pop(0))
    P(f's_and_b32 s{T2}, s{J}, 10')
    P(f's_cmp_eq_u32 s{T2}, 10')
    P('s_cbranch_scc1 dbl')
    S = P.fork(); tq2 = [Ins(x.text) for x in tq]
    st2 = [x for x in st1 if x.cnt is not None] + [x for x in tq2 if 'store' in x.op]
    f1 = Ins(fl_t)
    def bgt(n):
        for _ in range(2):
            if tq: P(tq.pop(0))
        if n == opt.get('nf', 48):
            P(Ins('s_barrier', needs=st1))
            P(f1)
            emit_all(setflag(7, vPFS))
    wo_gemm(P, XT, True, bgt)
    assert not tq
    stamp('wo')
    scale_s(P, XT)
    P(Ins(ftest[0], needs=[f1]))
    P('s_nop 1')
    pl = [None] * 16
    porder = opt.get('porder', [7, 6, 5, 4, 0, 1, 2, 3])
    for p in porder:
        chk = [f's_andn2_b32 s{T2}, s{TM}, vcc_lo', f's_and_b32 s{T2}, s{T2}, {3 << (2 * p)}']
        for t_ in chk: P(t_)
        P(f's_cbranch_scc1 fp{p}_slow')
        P.label(f'fp{p}_ok')
        Z = Prog(); Z.label(f'fp{p}_slow'); Z(f's_mov_b32 s{SPN}, 400000'); Z.label(f'fp{p}_loop')
        Z(fl_t); Z('s_waitcnt vmcnt(0)'); Z(ftest[0]); Z(f's_sub_u32 s{SPN}, s{SPN}, 1'); Z(f's_cbranch_scc1 fp{p}_ok')
        for t_ in chk: Z(t_)
        Z(f's_cbranch_scc1 fp{p}_loop'); Z(f's_branch fp{p}_ok'); slow.append(Z.text())
        for u in range(2):
            P(f's_add_u32 s{T3}, s{TP}, 0x{POFF + (p*18+17-u)*8192:x}')
            pl[2 * porder.index(p) + u] = P(f'buffer_load_dwordx4 {vr(ACCA+8*porder.index(p)+4*u)}, v{vL16}, {sr(SW)}, s{T3} offen sc1')
    stamp('poll')
    fmath(P, XT, ACCA, pl, XR2, xld, 0)
    stamp('x1')
    P.label('dbl_e')
    stamp('x2')
    S.label('dbl')
    TP2, TX2, U6 = 96, 97, 98
    S(f'''s_bfe_u32 s{U6}, s{J}, 0x10002
    s_lshl_b32 s{T2}, s{U6}, 9
    s_sub_u32 s{T2}, 640, s{T2}
    s_add_u32 s{TL}, s{TL}, s{T2}
    s_lshl_b32 s{U6}, s{U6}, 6
    s_add_u32 s{T2}, s{T2}, s{U6}
    s_add_u32 s{TX2}, s{TX}, s{T2}
    s_lshl_b32 s{T2}, s{T2}, 7
    s_sub_u32 s{TP2}, s{TP}, s{T2}
    s_mov_b32 s{TM}, 0xffff''')
    ph2 = [x for x in range(9) if x not in [phys[n] for n in range(NS, NSX)]] + [9]
    wq = bunch(flat([slots[NS + n].dma(ph2[n]) for n in range(5)]))
    wl = [x for g in wq for x in g if x.kind == 'vmem']
    def pl_(dst, base, nu): return [II(f's_add_u32 s{T3}, s{base}, 0x{POFF + (p*18+17-u)*8192:x}\nbuffer_load_dwordx4 {vr(dst+8*p+4*u)}, v{vL16}, {sr(SW)}, s{T3} offen sc1') for p in range(8) for u in range(nu)]
    qa = pl_(ACCA, TP, 2); qb = pl_(ACCB, TP2, 1); pa = [g[1] for g in qa]; pb = [g[1] for g in qb]
    x2 = [Ins(f'buffer_load_dwordx4 {vr(SP)}, v{vDG}, {sr(SX)}, s{TX2} offen')]
    mq = wq[:10] + [[d5ld]] + wq[10:] + [x2] + [poll_check('d5', d5ld, ftest) + qa[0]] + qa[1:] + qb
    def pop():
        if mq:
            for x in mq.pop(0):
                if x.kind == 'label': S.out.append(x)
                else: S(x)
    def bgs(n):
        if tq2:
            for _ in range(2):
                if tq2: S(tq2.pop(0))
        elif n % (2 if fdone and len(fdone) > 1 else opt.get('dp', 3)) == 0: pop()
        if n == opt.get('nfd', 28) and not fdone:
            fdone.append(1)
            S(Ins('s_barrier', needs=st2))
            for x in setflag(7, vPFS): S(x)
    fdone = []
    wo_gemm(S, XT, True, bgs)
    for x in flat(stamp('wo', True)): S(x)
    while wl[-1].cnt is None: pop()
    for _ in range(4): pop()
    S(Ins('s_barrier', needs=wl))
    for x in flat(stamp('poll', True)): S(x)
    fdone.append(1)
    for d in range(2): S(f'v_xor_b32 v{vWT[d]}, s{U6}, v{vWT[d]}')
    wo_gemm(S, XT + 16, False, bgs, ph2, 2)
    for x in flat(stamp('x1', True)): S(x)
    scale_s(S, XT)
    fmath(S, XT, ACCA, pa, XR2, [None, None], 0, lambda n: pop())
    assert not mq
    S(f's_mov_b32 s{TX}, s{TX2}')
    scale_s(S, XT + 16, 1)
    fmath(S, XT + 16, ACCB, pb, SP, x2, 0, None, 1)
    S('s_branch dbl_e'); slow.append(S.text())
    if stamps:
      P('s_waitcnt vmcnt(0)')
      stamp('end')
      P('s_waitcnt lgkmcnt(0)')
      P(f's_lshl_b32 s{T2}, s2, 7')
      P(f's_add_u32 s{T2}, s{T2}, 0x{STAMP_OFF:x}')
      if stamps == 'all':
        n = len(ALL)
        P('v_writelane_b32 v%d, s22, %d' % (77 + n // 64, n % 64))
        P(f's_lshl_b32 s{T2}, s2, 9')
        P(f's_add_u32 s{T2}, s{T2}, 0x{STAMP_OFF + (2 << 18):x}')
        P(f's_cmp_eq_u32 s{Wv}, 0')
        P(f's_cselect_b32 s{T2}, s{T2}, 0x{OOB:x}')
        P(f'v_lshlrev_b32 v80, 2, v{vL}')
        P(f'buffer_store_dword v77, v80, {sr(SW)}, s{T2} offen')
        P(f'buffer_store_dword v78, v80, {sr(SW)}, s{T2} offen offset:256')
      else:
        P('s_mov_b32 s%d, s22' % (sTS + len(stamps)))
        P('v_mov_b32 v81, 0')
        for n in range(10):
            P('v_mov_b32 v80, s%d' % (sTS + (n if opt.get('est') else min(n, len(stamps)))))
            P(f'buffer_store_dwordx2 v[80:81], v{vFL}, {sr(SW)}, s{T2} offen offset:{8*n}')
    P.label('K1_end')
    P('s_endpgm')
    print('K1: instrs', len(P.out), 'nops', P.nnop, file=sys.stderr)
    return P.text() + ''.join(reversed(slow))
```

```python
import sys, struct
sys.path.insert(0, 'gen')
from prog import *
from asmlib import STAMP_OFF

HOFF = 0x0000000
POFF = 0
BLK = 110592 + 128
KOFF = 0x2400000 + BLK
OOFF = 0x2C00000
ROFF = 0x2F00000
FOFF = 0x2F10000
WSB = 256 << 20
OOB = 0x10000000
NEG = 0xF149F2CA
SCALE = 0.2357022603955158 * 1.4426950408889634
def f2u(x): return struct.unpack('<I', struct.pack('<f', x))[0]

SLOT = 16384
XB = 5 * SLOT
HLONE = 9 * SLOT
RT4 = 155648
RTB = RT4 + 2048
NCODE = 84

def vr(b, n=4): return 'v[%d:%d]' % (b, b + n - 1)
def ar(b, n=4): return 'a[%d:%d]' % (b, b + n - 1)
def sr(b, n=4): return 's[%d:%d]' % (b, b + n - 1)
def II(text): return [Ins(l) for l in text.strip().split('\n') if l.strip()]

class Frag:
    def __init__(s, base, imm0, imm1, acc, b, first):
        s.base, s.imm, s.acc, s.b, s.first = base, (imm0, imm1), acc, b, first
class Slot:
    def __init__(s, groups, dma):
        s.groups, s.dma, s.loads = groups, dma, None

def gen_k1(JX=4, stamps=False, opt={}):
    opt = dict(dict(so=5, cls=[0, 0, 8, 8, 26, 26, 30, 30, 38, 38], qc=44, crit=72, svst=2.5, spr=1, nv1=6, hf=47, l2f=18), **opt)
    assert JX == 4
    P = Prog()
    SX, SQ, SG, SU, SD, SW, SB, SL = 24, 28, 32, 36, 40, 44, 48, 52
    I, J, Wv, RG, FH, E, Pp, T0, T1, T2, T3, OFF, ST, SPN = range(56, 70)
    W4096, W3072, BP, BL1, BD, SIG = range(70, 76)
    BL2 = 76
    HS, HLN, HL, PS, PLN = range(79, 84)
    C, N0, N1 = 84, 85, 86
    QM, QC, BQ, ONE2, LO, HI, R2, XRO = 87, 91, 92, 93, 94, 95, 96, 97
    KO, KB = 87, 92
    NN = 101
    SH = 75 + 11
    OB, OR, MYF, PF, PFD, DB = 4, 5, 6, 7, 10, 11
    PFP, PFW, J0, DUM = 20, 21, 90, 18
    OUTP = 0
    ROT = 3
    sTS = 12
    vL, vL16 = 1, 2
    vDQ = [3, 4, 5, 6]; vDL2 = 7
    vDP = [8, 9]; vDL1 = 10; vTP = [11, 12]; vTL1 = 13
    vTQ = [14, 15]; vDD = [16, 17, 18, 19]; vTD = [20, 21]; vTL2 = 22
    vQS = [23]; vTB = 24; vRS = 25
    vPFP, vPFS, vHW, vFL, vDG, vOR = 26, 27, 28, 29, 30, 31
    vKM, vKR, vVM, vVR = 3, 4, 5, 6
    QW = 8
    vMX, vMN, vTA, vONES = 14, 15, 23, 25
    XT, QF, FR, ACCA, ACCB, SP = 32, 64, 80, 112, 176, 240
    ALL = ['mf0'] + ['slot%d' % n for n in range(1, 51)] + ['g1end', 'attk', 'att1', 'att2', 'att3', 'attend'] + ['slot%d' % n for n in range(52, 72)] + ['g2end', 'wo', 'poll', 'end']
    JIT = ['setup', 'ln23', 'slot10', 'slot19', 'slot25', 'slot34', 'slot43', 'slot49', 'attk', 'att2', 'slot53', 'slot61', 'slot66', 'slot71', 'g2end']
    def stamp(name, ret=False):
        if opt.get('jit'):
            if name not in JIT: return []
            n = JIT.index(name)
            x = II(f'''s_lshl_b32 s12, s2, 2
            s_add_u32 s12, s12, s{Wv}
            s_lshr_b32 s12, s12, {2 * (n % 2)}
            s_add_u32 s12, s12, {n * 7919 + opt['jit']}
            s_mul_i32 s12, s12, 0x9e3779b1
            s_lshr_b32 s12, s12, 29
            s_sub_u32 s12, s12, 4
            s_cbranch_scc1 jit{n}_e''') + [Ins(f'jit{n}:')] + II(f's_sleep 40\ns_sub_u32 s12, s12, 1\ns_cbranch_scc0 jit{n}') + [Ins(f'jit{n}_e:')]
            if ret: return [x]
            for y in x:
                if y.kind == 'label': P.out.append(y)
                else: P(y)
            return []
        if stamps == 'all':
            if name not in ALL: return []
            n = ALL.index(name)
            x = [Ins('v_writelane_b32 v%d, s22, %d' % (77 + n // 64, n % 64)), Ins('s_memtime s[22:23]')]
            if ret: return [x]
            for y in x: P(y)
            return []
        if stamps and name in stamps:
            n = stamps.index(name)
            x = [Ins('s_mov_b32 s%d, s22' % (sTS + n)), Ins('s_memrealtime s[22:23]')]
            if ret: return [x]
            for y in x: P(y)
        return []
    def breg(pos, mt):
        i = pos * 4 + mt
        return ar(4 * i) if i < 64 else vr(XT + 4 * (i - 64))
    def emit_all(lst):
        for x in lst:
            if isinstance(x, list): emit_all(x)
            elif x.kind == 'label': P.out.append(x)
            else: P(x)
    lg = lambda x: x.bit_length() - 1
    ng = 16 // JX

    P('s_cmp_ge_u32 s2, 256')
    P('s_cbranch_scc1 K1_end')
    P('s_load_dwordx16 s[4:19], s[0:1], 0')
    P('s_load_dwordx4 s[20:23], s[0:1], 64')
    if stamps: P('s_memtime s[84:85]' if stamps == 'all' else 's_memrealtime s[84:85]')
    def code_touch():
        P('s_getpc_b64 %s' % sr(SL, 2))
        P.label('K1_pc')
        P(f'''s_mov_b32 s{SL+2}, code_end-K1_pc
        s_mov_b32 s{SL+3}, 0x00020000
        s_lshr_b32 s{SPN}, s2, 3
        s_and_b32 s{SPN}, s{SPN}, 7
        s_mul_i32 s{SPN}, s{SPN}, {NCODE*128}
        v_lshlrev_b32 v80, 7, v0
        v_mov_b32 v89, 0x{OOB:x}
        v_cmp_gt_u32 vcc, {NCODE}, v0
        v_cndmask_b32 v80, v89, v80, vcc
        buffer_load_dword v79, v80, {sr(SL)}, s{SPN} offen''')
    if opt.get('ct0'):
        P('s_getpc_b64 %s' % sr(SL, 2))
        P(f'''s_mov_b32 s{SL+2}, {opt['ct0']*128}
        s_mov_b32 s{SL+3}, 0x00020000
        v_lshlrev_b32 v80, 7, v0
        buffer_load_dword v79, v80, {sr(SL)}, 0 offen''')
    if not opt.get('ctlate', 0): code_touch()
    P(f'''s_lshr_b32 s{NN}, s2, 3
    v_mov_b32 v89, 0x{OOB:x}
    v_and_b32 v{vL}, 63, v0
    v_lshrrev_b32 v80, 6, v0
    v_readfirstlane_b32 s{Wv}, v80
    s_and_b32 s{T0}, s2, 7
    s_and_b32 s{J}, s{T0}, {ng-1}
    s_lshl_b32 s{J}, s{J}, {lg(JX)}
    s_and_b32 s{T2}, s{NN}, {JX-1}
    s_or_b32 s{J}, s{J}, s{T2}
    s_lshr_b32 s{I}, s{T0}, {lg(ng)}
    s_lshl_b32 s{I}, s{I}, {lg(32//JX)}
    s_lshr_b32 s{T2}, s{NN}, {lg(JX)}
    s_or_b32 s{I}, s{I}, s{T2}
    s_and_b32 s{RG}, s{Wv}, 1
    s_lshr_b32 s{FH}, s{Wv}, 1
    s_and_b32 s{E}, s{J}, 1
    s_lshr_b32 s{Pp}, s{J}, 1
    s_and_b32 s{ROT}, s{J}, {min(JX-1, 3)}
    v_lshrrev_b32 v82, 3, v{vL}
    v_and_b32 v83, 7, v{vL}
    v_mul_u32_u24 v100, 1152, v82
    v_lshl_add_u32 v100, v83, 4, v100
    s_lshl_b32 s{T0}, s{I}, 3
    s_lshl_b32 s{T1}, s{RG}, 2
    s_add_u32 s{T0}, s{T0}, s{T1}
    s_add_u32 s{T1}, s{T0}, s{FH}
    s_mul_i32 s{T1}, s{T1}, {16*1152}''')
    if JX == 2: P(f's_lshl_b32 s{ROT}, s{ROT}, 1')
    def xro(blk):
        P(f'''s_xor_b32 s{T2}, s{ROT}, {blk}
        s_and_b32 s{T3}, s{T2}, 1
        s_lshl_b32 s{T3}, s{T3}, 3
        s_and_b32 s{T2}, s{T2}, 2
        s_lshl_b32 s{T2}, s{T2}, 4
        s_or_b32 s{XRO+blk}, s{T2}, s{T3}''')
    xro(0)
    if opt.get('est'): P('s_memrealtime s[76:77]')
    P('s_waitcnt lgkmcnt(0)')
    if opt.get('est'): P('s_memrealtime s[78:79]')
    def srd(d, b, nbytes, shift=0):
        if shift:
            P('s_sub_u32 s%d, s%d, %d' % (d, b, shift))
            P('s_subb_u32 s%d, s%d, 0' % (d + 1, b + 1))
        else:
            P('s_mov_b32 s%d, s%d' % (d, b))
            P('s_mov_b32 s%d, s%d' % (d + 1, b + 1))
        P('s_mov_b32 s%d, 0x%x' % (d + 2, nbytes + shift))
        P('s_mov_b32 s%d, 0x00020000' % (d + 3))
    srd(SX, 4, 2048 * 1152)
    XR = 112
    xl = []
    def xload(blk):
        ld = [Ins('buffer_load_dwordx4 %s, v100, %s, s%d offen offset:%d' % (vr(XR + 36 * blk + 4 * l), sr(SX), OFF, 128 * l)) for l in range(9)]
        xl.append(ld)
        return [II(f's_mul_i32 s{OFF}, s{XRO+blk}, 1152\ns_add_u32 s{OFF}, s{OFF}, s{T1}')] + [[x] for x in ld]
    if opt.get('xt'):
        P(f'''s_lshl_b32 s{T2}, s{I}, 4
        s_add_u32 s{T2}, s{T2}, s{J}
        s_lshl_b32 s{T2}, s{T2}, 2
        s_add_u32 s{T2}, s{T2}, s{Wv}
        s_mul_i32 s{T2}, s{T2}, 2304
        v_min_u32 v80, 17, v{vL}
        v_lshlrev_b32 v80, 7, v80
        buffer_load_dword v79, v80, {sr(SX)}, s{T2} offen''')
    emit_all(xload(0))
    if opt.get('ctlate', 0): code_touch()
    if opt.get('est'): P('s_memrealtime s[80:81]')
    if opt.get('est') == 2:
        P('s_waitcnt vmcnt(8)')
        P('s_memrealtime s[82:83]')
        P('s_waitcnt vmcnt(0)')
        P('s_memrealtime s[86:87]')
    for blk in range(1, 4): xro(blk)
    srd(SQ, 6, 576 * 3456, shift=2048)
    RS = 36 // JX
    NT = ' nt' if opt.get('nt') else ''
    P(f'''s_and_b32 s{J0}, s{J}, {16-JX}
    s_and_b32 s{SH}, s2, 7
    s_lshr_b32 s{SH}, s{SH}, {lg(ng)}
    s_lshl_b32 s{SH}, s{SH}, 5
    s_add_u32 s{SH}, s{SH}, s{NN}
    v_lshrrev_b32 v86, {lg(2*JX)}, v0
    v_and_b32 v87, {2*JX-1}, v0
    v_mul_u32_u24 v88, 3456, v86
    v_lshl_add_u32 v87, v87, 7, v88
    v_cmp_gt_u32 vcc, {RS}, v86
    v_cndmask_b32 v87, v89, v87, vcc
    s_mul_i32 s{ST}, s{SH}, {RS*3456}
    s_lshl_b32 s{T2}, s{J0}, 8
    s_add_u32 s{BL2}, s{ST}, s{T2}
    v_mov_b32 v104, v87''')
    qtouch = [Ins(f'buffer_load_dword v79, v104, {sr(SQ)}, s{BL2} offen offset:2048' + NT)]

    srd(SG, 12, 576 * 9216)
    srd(SU, 14, 576 * 9216, shift=2048)
    srd(SD, 16, 4608 * 1152, shift=2048)
    srd(SW, 22, WSB)
    srd(SB, 20, 256)
    P(f's_mov_b64 {sr(OUTP,2)}, s[18:19]')
    P(f'''s_cmp_ge_u32 s{Wv}, 2
    s_cselect_b32 s{SL}, s14, s12
    s_cselect_b32 s{SL+1}, s15, s13
    s_mov_b32 s{SL+2}, 0x{576*9216:x}
    s_mov_b32 s{SL+3}, 0x00020000
    s_mul_i32 s{PFP}, s{SH}, {RS*9216}
    s_mul_i32 s{T2}, s{RG}, {1152 if JX == 4 else 9*9216}
    s_add_u32 s{PFP}, s{PFP}, s{T2}
    s_mul_i32 s{T2}, s{J0}, 576
    s_add_u32 s{PFP}, s{PFP}, s{T2}''')
    if stamps: P('s_mov_b64 s[22:23], s[84:85]')
    P(f'''s_lshl_b32 s{W4096}, s{Wv}, 12
    s_lshl_b32 s{BQ}, s{J}, 8
    s_mul_i32 s{T2}, s{Wv}, {16*3456}
    s_add_u32 s{BQ}, s{BQ}, s{T2}
    s_cmp_ge_u32 s{J}, 14
    s_cselect_b32 s{BQ}, 0x{OOB:x}, s{BQ}
    s_mov_b32 s{ONE2}, 0x3f803f80
    s_mov_b32 s{LO}, 0x00003f80
    s_mov_b32 s{HI}, 0x3f800000
    v_lshrrev_b32 v84, 4, v{vL}
    v_and_b32 v85, 15, v{vL}
    v_cmp_eq_u32 vcc, 0, v0
    v_cndmask_b32 v{vFL}, v89, 0, vcc
    v_lshlrev_b32 v86, 1, v82
    v_and_b32 v86, 4, v86
    v_xor_b32 v86, v83, v86
    v_mul_u32_u24 v87, 9216, v82
    v_lshl_add_u32 v{vDP[0]}, v86, 4, v87
    v_mul_u32_u24 v88, 3456, v82
    v_lshl_add_u32 v90, v86, 4, v88
    v_add_u32 v{vDQ[0]}, 2048, v90
    v_add_u32 v{vDQ[2]}, 128, v90
    v_xor_b32 v86, 2, v86
    v_lshl_add_u32 v{vDP[1]}, v86, 4, v87
    v_add_u32 v{vDP[1]}, {8*9216-1024}, v{vDP[1]}
    v_lshl_add_u32 v90, v86, 4, v88
    v_add_u32 v{vDQ[1]}, {8*3456-1024+2048}, v90
    v_add_u32 v{vDQ[3]}, {8*3456-1024+128}, v90
    s_lshl_b32 s{SIG}, s{E}, 1
    s_sub_u32 s{SIG}, 1, s{SIG}
    s_mul_i32 s{BP}, s{Pp}, 1152
    s_lshl_b32 s{T3}, s{E}, 10
    s_add_u32 s{BP}, s{BP}, s{T3}
    s_mul_i32 s{T3}, s{Wv}, {16*9216}
    s_add_u32 s{BP}, s{BP}, s{T3}
    v_and_b32 v87, 3, v{vL}
    v_lshrrev_b32 v86, 2, v85
    v_and_b32 v88, 1, v84
    v_lshrrev_b32 v92, 1, v84
    v_lshlrev_b32 v90, 12, v92
    v_lshl_add_u32 v90, v88, 10, v90
    v_lshl_add_u32 v90, v86, 7, v90
    v_lshrrev_b32 v91, 1, v86
    v_xor_b32 v91, s{FH}, v91
    v_lshl_add_u32 v90, v91, 6, v90
    v_lshl_add_u32 v90, v88, 5, v90
    v_lshl_add_u32 v{vTQ[0]}, v87, 3, v90
    v_xor_b32 v{vTQ[1]}, 32, v{vTQ[0]}
    s_lshl_b32 s{T2}, s{E}, 6
    v_xor_b32 v{vTP[0]}, s{T2}, v{vTQ[0]}
    v_xor_b32 v{vTP[1]}, s{T2}, v{vTQ[1]}
    s_mul_i32 s{ST}, s{RG}, {2*18432}
    s_add_u32 s{ST}, s{ST}, {XB}
    v_xor_b32 v90, v85, v84
    v_lshlrev_b32 v90, 4, v90
    v_lshl_add_u32 v90, v84, 8, v90
    v_add_u32 v65, s{ST}, v90
    v_xor_b32 v66, 64, v65
    s_mul_i32 s{T2}, s{FH}, 18432
    s_add_u32 s{ST}, s{ST}, s{T2}
    s_and_b32 s{T2}, s{XRO}, 8
    s_lshl_b32 s{T2}, s{T2}, 4
    s_add_u32 s{ST}, s{ST}, s{T2}
    v_xor_b32 v90, v82, v83
    v_lshlrev_b32 v90, 4, v90
    v_lshl_add_u32 v90, v83, 8, v90
    v_add_u32 v64, s{ST}, v90
    v_xor_b32 v76, 128, v64
    s_lshl_b32 s{T2}, s{RG}, 6
    s_lshl_b32 s{T3}, s{FH}, 4
    s_add_u32 s{T2}, s{T2}, s{T3}
    v_add_u32 v67, s{T2}, v82''')
    def G(text): return [II(text)]
    P(f'''s_lshl_b32 s{T2}, s{I}, 4
    s_add_u32 s{T2}, s{T2}, s{J}
    s_lshl_b32 s{MYF}, s{T2}, 7
    s_add_u32 s{MYF}, s{MYF}, 0x{FOFF:x}
    s_lshl_b32 s{DB}, s{I}, 2
    s_lshl_b32 s{T2}, 1, s{J}
    v_mov_b32 v105, s{T2}
    v_mov_b32 v86, 0''')
    freset = P(f'buffer_store_dword v86, v{vFL}, {sr(SW)}, s{MYF} offen sc1')
    fatom = Ins(f'buffer_atomic_or v105, v{vFL}, {sr(SB)}, s{DB} offen offset:8', needs=[freset])
    late0 = II(f'''s_mul_i32 s{W3072}, s{Wv}, 3072
    s_lshl_b32 s{T2}, s{I}, 4
    s_add_u32 s{T2}, s{T2}, s{J}
    v_mov_b32 v207, 0
    s_xor_b32 s{PF}, s{MYF}, 128
    s_mul_i32 s{HS}, s{T2}, {9*8192}
    s_xor_b32 s{T2}, s{T2}, 1
    s_mul_i32 s{HL}, s{T2}, {9*8192}
    s_lshl_b32 s{T2}, s{RG}, 12
    s_add_u32 s{HS}, s{HS}, s{T2}
    s_lshl_b32 s{T3}, s{FH}, 11
    s_add_u32 s{HLN}, s{HS}, s{T3}
    s_add_u32 s{HLN}, s{HLN}, {8*8192}
    s_add_u32 s{HL}, s{HL}, s{T2}
    s_lshl_b32 s{T3}, s{FH}, 13
    s_add_u32 s{HS}, s{HS}, s{T3}
    s_mul_i32 s{BL1}, s{Pp}, 1152
    s_lshl_b32 s{T2}, s{E}, 6
    s_add_u32 s{T2}, s{T2}, 512
    s_add_u32 s{BL1}, s{BL1}, s{T2}
    s_mul_i32 s{T3}, s{RG}, {48*9216}
    s_add_u32 s{BL1}, s{BL1}, s{T3}''')
    late0b = II(f'''s_lshl_b32 s{T2}, s{RG}, 12
    s_lshl_b32 s{T3}, s{I}, 3
    s_add_u32 s{T3}, s{T3}, s{Pp}
    s_mul_i32 s{PS}, s{T3}, {18*8192}
    s_add_u32 s{PS}, s{PS}, s{T2}
    s_add_u32 s{PS}, s{PS}, 0x{POFF:x}
    s_sub_u32 s{T3}, 9, s{E}
    s_lshl_b32 s{T3}, s{T3}, 13
    s_add_u32 s{PLN}, s{PS}, s{T3}
    s_lshl_b32 s{T3}, s{FH}, 11
    s_xor_b32 s{T3}, s{T3}, s{ROT}
    s_add_u32 s{PLN}, s{PLN}, s{T3}
    s_add_u32 s{PS}, s{PS}, s{ROT}
    s_mul_i32 s{T3}, s{E}, 10
    s_add_u32 s{T3}, s{T3}, s{FH}
    s_sub_u32 s{T3}, 17, s{T3}
    s_lshl_b32 s{T3}, s{T3}, 13
    s_add_u32 s{PS}, s{PS}, s{T3}
    s_lshl_b32 s{T2}, s{E}, 6
    s_add_u32 s{T2}, s{T2}, 512
    s_mul_i32 s{T1}, s{Pp}, {576*1152}
    s_mul_i32 s{T3}, s{E}, {17*32*1152}
    s_add_u32 s{T1}, s{T1}, s{T3}
    s_mul_i32 s{BD}, s{E}, 640
    s_add_u32 s{BD}, s{BD}, s{T1}
    s_mul_i32 s{T3}, s{FH}, s{SIG}
    s_mul_i32 s{T3}, s{T3}, {32*1152}
    s_add_u32 s{BD}, s{BD}, s{T3}
    s_mul_i32 s{T3}, s{RG}, {16*1152}
    s_add_u32 s{BD}, s{BD}, s{T3}
    s_add_u32 s{T1}, s{T1}, s{T2}''')
    for t in range(3):
        late0b += II(f'''s_mul_i32 s{T2}, s{Wv}, 3
        s_add_u32 s{T2}, s{T2}, {t}
        s_lshr_b32 s{T3}, s{T2}, 1
        s_mul_i32 s{T3}, s{T3}, s{SIG}
        s_mul_i32 s{T3}, s{T3}, {32*1152}
        s_add_u32 s{BL2+t}, s{T1}, s{T3}
        s_and_b32 s{T2}, s{T2}, 1
        s_mul_i32 s{T2}, s{T2}, {16*1152}
        s_add_u32 s{BL2+t}, s{BL2+t}, s{T2}
        s_add_u32 s{BL2+t}, s{BL2+t}, {2048-1024*t}''')
    late0 += II(f'''s_mul_i32 s{T2}, s{T0}, {BLK//2}
    s_lshl_b32 s{T3}, s{J}, 13
    s_add_u32 s{T2}, s{T2}, s{T3}
    s_lshl_b32 s{T3}, s{FH}, 11
    s_add_u32 s{T2}, s{T2}, s{T3}
    s_add_u32 s{T2}, s{T2}, 0x{KOFF:x}
    s_and_b32 s{ROT}, s{ROT}, 2
    s_mul_i32 s{T3}, s{ROT}, {BLK//2}
    s_add_u32 s{T2}, s{T2}, s{T3}
    s_sub_u32 s{QM+2}, 1, s{ROT}
    s_mul_i32 s{QM+2}, s{QM+2}, {BLK}
    s_lshl_b32 s{ROT}, s{ROT}, 10
    s_movk_i32 s{QC}, 4096''')
    late0 += G(f's_cmp_ge_u32 s{J}, 14\ns_cselect_b32 s{QM}, 0x{2*OOB:x}, s{T2}')
    late0 += G(f's_cmp_eq_u32 s{J}, 13\ns_cselect_b32 s{QC}, 0x{OOB:x}, s{QC}')
    late0b += II(f'''s_lshl_b32 s{T2}, s{FH}, 1
    s_add_u32 s{T2}, s{T2}, s{T0}
    s_mul_i32 s{OB}, s{T2}, 18432
    s_lshl_b32 s{T2}, s{J}, 10
    s_add_u32 s{OB}, s{OB}, s{T2}
    s_add_u32 s{OB}, s{OB}, 0x{OOFF:x}
    s_mul_i32 s{OR}, s{I}, {8*18432}
    s_lshl_b32 s{T2}, s{J}, 7
    s_add_u32 s{OR}, s{OR}, s{T2}
    s_add_u32 s{OR}, s{OR}, 0x{OOFF+16384:x}''')
    late0b += G(f's_cmp_eq_u32 s{Wv}, 0\ns_cselect_b32 s{OR}, s{OR}, 0x{OOB:x}')
    late0b += II(f'''s_mov_b32 s{C}, 0x{f2u(SCALE):x}''')
    late0b += G(f's_cmp_lt_u32 s{I}, 2\ns_cselect_b32 s{N0}, 0xffff, 0') + G(f's_cmp_lt_u32 s{I}, 1\ns_cselect_b32 s{N1}, 0xffff, 0')
    late0 += II(f'''s_mul_i32 s{PFD}, s{J0}, {288*1152}
    s_mul_i32 s{T2}, s{SH}, {162*128}
    s_add_u32 s{PFD}, s{PFD}, s{T2}
    s_mul_i32 s{T2}, s{Wv}, {41*128}
    s_add_u32 s{PFD}, s{PFD}, s{T2}''')
    late0 += II(f'''v_lshlrev_b32 v{vL16}, 4, v{vL}
    v_lshrrev_b32 v182, 3, v{vL}
    v_and_b32 v183, 7, v{vL}
    v_lshrrev_b32 v184, 4, v{vL}
    v_and_b32 v185, 15, v{vL}
    v_and_b32 v186, 6, v182
    v_xor_b32 v186, v183, v186
    v_mul_u32_u24 v187, 1152, v182
    v_lshl_add_u32 v187, v186, 4, v187''')
    for t in range(4):
        late0 += II('v_add_u32 v%d, %d, v187' % (vDD[t], (t & 1) * (8 * 1152 - 1024) + (t >> 1) * (128 - 2048) + 2048))
    late0 += II(f'''v_lshrrev_b32 v186, 2, v{vL}
    v_and_b32 v187, 3, v{vL}
    v_and_b32 v188, 2, v184
    v_xor_b32 v188, v187, v188
    v_mul_u32_u24 v190, 9216, v186
    v_lshl_add_u32 v{vDL1}, v188, 4, v190
    v_and_b32 v188, 1, v184
    v_lshlrev_b32 v188, 1, v188
    v_xor_b32 v188, v187, v188
    v_mul_u32_u24 v190, 1152, v186
    v_lshl_add_u32 v{vDL2}, v188, 4, v190
    v_lshrrev_b32 v186, 2, v185
    v_and_b32 v188, 1, v184
    v_lshrrev_b32 v192, 1, v184
    v_lshl_add_u32 v190, v184, 3, v186
    v_lshlrev_b32 v190, 6, v190
    v_xor_b32 v191, s{FH}, v188
    v_lshl_add_u32 v190, v191, 5, v190
    v_lshl_add_u32 v{vTL1}, v187, 3, v190
    v_lshl_add_u32 v190, v184, 2, v186
    v_lshlrev_b32 v190, 6, v190
    v_lshl_add_u32 v190, v191, 5, v190
    v_lshl_add_u32 v{vTL2}, v187, 3, v190
    v_lshl_add_u32 v190, v188, 2, v186
    v_lshrrev_b32 v191, 1, v190
    s_lshl_b32 s{T2}, s{FH}, 1
    v_xor_b32 v191, s{T2}, v191
    v_lshlrev_b32 v190, 7, v190
    v_lshl_add_u32 v190, v192, 10, v190
    v_lshl_add_u32 v190, v191, 5, v190
    v_lshl_add_u32 v{vTD[0]}, v187, 3, v190
    v_xor_b32 v{vTD[1]}, 32, v{vTD[0]}
    v_mov_b32 v189, 0x{OOB:x}
    v_cmp_eq_u32 vcc, 0, v184
    v_lshlrev_b32 v190, 2, v184
    v_sub_u32 v{vDG}, v190, v185
    v_cndmask_b32 v{vOR}, v189, v{vL16}, vcc
    s_lshl_b32 s{T2}, s{RG}, 12
    v_add_u32 v{vHW}, s{T2}, v{vL16}''')
    late0 += G(f's_cmp_ge_u32 s{J}, 9\ns_cselect_b64 vcc, -1, 0')
    late0 += II(f'''v_lshlrev_b32 v191, 6, v185
    v_lshl_add_u32 v191, v184, 4, v191
    v_cndmask_b32 v{vQS[0]}, v{vL16}, v191, vcc
    v_lshlrev_b32 v190, 4, v185
    v_add_u32 v190, {RT4}, v190
    v_lshlrev_b32 v191, 4, v184
    v_add_u32 v191, {RTB}, v191
    v_cndmask_b32 v190, v190, v191, vcc
    s_lshl_b32 s{T2}, s{RG}, 10
    v_add_u32 v{vRS}, s{T2}, v190
    v_mov_b32 v204, 0
    v_mov_b32 v205, 0
    v_mov_b32 v206, 0
    s_mul_i32 s{T2}, s{J}, 2304
    s_add_u32 s{T2}, s{T2}, 0x{KOFF-BLK+148*256:x}''')
    late0 += G(f's_cmp_eq_u32 s{I}, 0\ns_cselect_b32 s{T2}, s{T2}, 0x{OOB:x}')
    guard = Ins(f'buffer_store_dwordx4 v[204:207], v{vOR}, {sr(SW)}, s{T2} offen sc1')
    late0 += [guard]
    late0 += II(f'''v_mov_b32 v200, 0x3f803f80
    v_mov_b32 v201, 0x3f803f80
    v_mov_b32 v202, 0x3f803f80
    v_mov_b32 v203, 0x3f803f80
    s_lshl_b32 s{T2}, s{I}, 2
    s_add_u32 s{T2}, s{T2}, s{Wv}
    s_mul_i32 s{T2}, s{T2}, {BLK}
    s_add_u32 s{T2}, s{T2}, 0x{KOFF+110592:x}
    v_cmp_gt_u32 vcc, 8, v{vL}
    s_nop 0
    s_nop 0
    v_cndmask_b32 v199, v189, v{vL16}, vcc''')
    late0 += G(f's_cmp_eq_u32 s{J}, 14\ns_cselect_b32 s{T2}, s{T2}, 0x{OOB:x}')
    ones_st = Ins(f'buffer_store_dwordx4 v[200:203], v199, {sr(SW)}, s{T2} offen sc1')
    late0 += [ones_st]

    slots = []
    def dma4(srds, voffs, sbase, add, sadd=0, bump=None, pre=''):
        def f(rp):
            if bump is not None:
                g = [II((bump + '\n' if bump else '') + f's_add_u32 s{OFF}, s{sbase}, {add}\ns_add_u32 m0, s{W4096}, {rp*SLOT}')]
            elif sadd and not add:
                g = [II(pre + f's_mul_i32 s{OFF}, s{SIG}, {sadd}\ns_add_u32 s{OFF}, s{OFF}, s{sbase}\ns_add_u32 m0, s{W4096}, {rp*SLOT}')]
            elif sadd:
                g = [II(f's_mul_i32 s{OFF}, s{SIG}, {sadd}\ns_add_u32 s{OFF}, s{OFF}, s{sbase}'),
                     II(f's_add_u32 s{OFF}, s{OFF}, {add}\ns_add_u32 m0, s{W4096}, {rp*SLOT}')]
            else:
                g = [II(f's_add_u32 s{OFF}, s{sbase}, {add}\ns_add_u32 m0, s{W4096}, {rp*SLOT}')]
            for t in range(4):
                g.append([Ins('buffer_load_dwordx4 v%d, %s, s%d offen offset:%d lds' % (voffs[t], sr(srds[t]), OFF, 1024 * t))])
            return g
        return f
    def dma_l1(s):
        def f(rp):
            g = []
            for t in range(3):
                pre = II(f's_add_u32 s{OFF}, s{BL1}, {s*96*9216 + t*(16*9216-1024)}')
                if t == 0: pre += II(f's_add_u32 m0, s{W3072}, {rp*SLOT}')
                g.append(pre)
                g.append(II(f'buffer_load_dwordx4 v{vDL1}, {sr(SL)}, s{OFF} offen offset:{1024*t} lds'))
            return g
        return f
    def dma_l2(s):
        def f(rp):
            g = [II(f's_add_u32 m0, s{W3072}, {rp*SLOT}')]
            for t in range(3):
                g.append(II(f's_mul_i32 s{OFF}, s{SIG}, {s*192*1152}\ns_add_u32 s{OFF}, s{OFF}, s{BL2+t}'))
                g.append(II(f'buffer_load_dwordx4 v{vDL2}, {sr(SD)}, s{OFF} offen offset:{1024*t} lds'))
            return g
        return f
    def regroup(gs):
        if not opt.get('rg', 1): return gs
        fl = [f for g in gs for f in g]
        return [fl[n:n + 2] for n in range(0, 6, 2)]
    def accf(base, tile): return lambda mt: base + (tile * 4 + mt) * 4
    def bf(pos): return lambda mt: breg(pos, mt)
    def pairlike(vT, acc, s):
        return [[Frag(vT[ft], ks * 8192 + m * 2048, ks * 8192 + m * 2048 + 512, accf(acc, 2 * m + ft), bf(2 * s + ks), s == 0 and ks == 0) for ks in range(2)] for m in range(2) for ft in range(2)]
    for s in range(9):
        slots.append(Slot(pairlike(vTQ, ACCA, s), dma4([SQ] * 4, vDQ, BQ, s * 64 * 3456)))
    PACC = [ACCB, ACCB, ACCA, ACCB]
    def pstep(q):
        for s in range(9):
            slots.append(Slot(pairlike(vTP, PACC[q], s), dma4([SG, SG, SU, SU], [vDP[0], vDP[1], vDP[0], vDP[1]], BP, s * 64 * 9216, bump=(f's_lshl_b32 s{OFF}, s{SIG}, 7\ns_add_u32 s{BP}, s{BP}, s{OFF}' if s == 0 and q else ''))))
    pstep(0)
    for s in range(6):
        gs = [[Frag(vTL1, m * 6144 + ks * 2048, m * 6144 + ks * 2048 + 256, accf(ACCA, m), bf(3 * s + ks), s == 0 and ks == 0) for ks in range(3)] for m in range(2)]
        slots.append(Slot(regroup(gs), dma_l1(s)))
    pstep(1); pstep(2); pstep(3)
    NSEG1 = len(slots)
    hpos = {}
    for n, k in enumerate([6, 7, 11, 10]): hpos[k] = n
    for n, k in enumerate([0, 1, 2, 3, 4, 5, 16, 17, 14, 15, 12, 13, 9, 8]): hpos[k] = 4 + n
    lorder = [8, 7, 6, 0, 1, 2, 4, 3, 5]
    def dstep(q):
        acc = ACCA
        for n, ln in enumerate(lorder):
            gs = [[Frag(vTD[ft], ks * 8192 + c * 2048, ks * 8192 + c * 2048 + 4096, accf(acc, 2 * c + ft), bf(hpos[2 * ln + ks]), n == 0 and ks == 0) for ks in range(2)] for c in range(2) for ft in range(2)]
            slots.append(Slot(gs, dma4([SD] * 4, vDD, BD, 0, ln * 64 * 1152, pre=(f's_add_u32 s{BD}, s{BD}, 256\n' if q and n == 0 else ''))))
    dstep(0)
    for s in range(3):
        gs = [[Frag(vTL2, ks * 2048, ks * 2048 + 1024, accf(SP, 0), bf(hpos[6 * s + ks]), s == 0 and ks == 0) for ks in range(3 * hg, 3 * hg + 3)] for hg in range(2)]
        slots.append(Slot(regroup(gs), dma_l2(s)))
    n0 = len(slots); dstep(1)
    for sl in slots[n0:]:
        for g in sl.groups:
            for f in g: f.acc = (lambda old: (lambda mt: old(mt) + (ACCB - ACCA)))(f.acc)
    NS = len(slots)
    vWD = [3, 4, 5, 6]; vWD2 = 8; vWT = [9, 10, 11, 12]; vPL = 13
    TL, TP, TX, TM, TV, OL, FB = 87, 88, 89, 90, 91, 92, 93
    for s in range(4): slots.append(Slot([], dma4([SG] * 4, vWD, TL, s * 4 * 36 * 1152)))
    def dma_w2(rp):
        return [II(f's_mul_i32 s{OFF}, s{Wv}, {(144-36)*1152}\ns_add_u32 s{OFF}, s{OFF}, s{TL}\ns_lshr_b32 m0, s{W4096}, 1\ns_add_u32 m0, m0, {rp*SLOT}'),
                II(f'buffer_load_dwordx4 v{vWD2}, {sr(SG)}, s{OFF} offen lds'), II(f's_add_u32 s{OFF}, s{OFF}, {72*1152-1024}'),
                II(f'buffer_load_dwordx4 v{vWD2}, {sr(SG)}, s{OFF} offen offset:1024 lds')]
    slots.append(Slot([], dma_w2))
    NSX = len(slots)
    phys = {n: n for n in range(9)}; load_at = {}; hphys = {}
    nxt = 9
    divert = {18: 0, 33: 1, 42: 2, 50: 3}
    for n in range(2, NSEG1):
        if n in divert: hphys[divert[n]] = phys[n - 2]
        else: phys[nxt] = phys[n - 2]; load_at[n] = nxt; nxt += 1
    att_loads = []
    for f in [phys[NSEG1 - 2], phys[NSEG1 - 1], hphys[0], hphys[1], hphys[2]]:
        phys[nxt] = f; att_loads.append(nxt); nxt += 1
    extra_loads = {}
    for n in range(NSEG1 + 2, NS):
        q = n - (NSEG1 + 2)
        if q == 1: phys[nxt] = hphys[3]; extra_loads[n] = [nxt]; nxt += 1
        if nxt < NSX: phys[nxt] = phys[n - 2]; load_at[n] = nxt; nxt += 1
    assert nxt == NSX
    def dma_groups(n):
        g = slots[n].dma(phys[n])
        slots[n].loads = [x for grp in g for x in grp if x.kind == 'vmem']
        return g

    SV = opt.get('sv', 4.75)
    loud = {id(guard), id(ones_st)}; svc = {id(guard): 1, id(ones_st): 1}
    def T(text, q=56):
        x = Ins(text); loud.add(id(x)); svc[id(x)] = q; return x
    VLS = opt.get('vls', [[0, 8, 4, 1, 7], [2, 6, 3, 5]])
    def pf_gu(VL, t0, msk, q=0):
        nl = len(VL); tab = sum(l << (4 * n) for n, l in enumerate(VL)); a_, b_, c_ = t0, t0 + 1, t0 + 2
        return II(f'''v_mul_u32_u24 v{b_}, {65536//nl+1}, v{vL}
        v_lshrrev_b32 v{b_}, 16, v{b_}
        v_cmp_gt_u32 {msk}, 9, v{b_}
        v_mul_u32_u24 v{a_}, {4*nl}, v{b_}
        v_lshlrev_b32 v{c_}, 2, v{vL}
        v_sub_u32 v{a_}, v{c_}, v{a_}
        v_mov_b32 v{c_}, 0x{tab:x}
        v_bfe_u32 v{a_}, v{c_}, v{a_}, 4
        v_mul_u32_u24 v{b_}, 9216, v{b_}
        v_lshl_add_u32 v{b_}, v{a_}, 7, v{b_}
        v_mov_b32 v{a_}, 0x{OOB:x}
        v_cndmask_b32 v{b_}, v{a_}, v{b_}, {msk}''') + [T(f'buffer_load_dword v0, v{b_}, {sr(SL)}, s{PFP} offen' + NT, q)]
    if opt.get('walk', 1):
        P('s_mov_b64 exec, 0')
        for w in range(3):
            P(f's_cmp_eq_u32 s{Wv}, {w}')
            P(f's_cbranch_scc1 LAND{w}')
        P('s_branch LAND3')
        P.label('WALK_END')
        P('s_mov_b64 exec, -1')
    emit_all(xload(1))
    stamp('setup')
    if opt.get('est'):
        P('s_waitcnt lgkmcnt(0)')
        for n, r in enumerate((76, 78, 80, 82, 86)): P('s_mov_b32 s%d, s%d' % (sTS + 5 + n, r))

    NPRE = opt.get('npre', 5)
    GU2 = 0
    gA, gB = pf_gu(VLS[0], 106, 's[78:79]'), pf_gu(VLS[1], 106, 's[78:79]')
    if opt.get('tlb'):
        qtouch = qtouch + II(f'''v_lshlrev_b32 v106, 21, v0
        v_min_u32 v107, 24, v0
        v_lshlrev_b32 v107, 21, v107
        buffer_load_dword v0, v107, {sr(SW)}, 0 offen sc1
        buffer_load_dword v79, v106, {sr(SD)}, 0 offen offset:2048
        buffer_load_dword v79, v106, {sr(SG)}, 0 offen
        buffer_load_dword v79, v106, {sr(SU)}, 0 offen offset:2048
        s_mov_b32 s80, s{OUTP}
        s_mov_b32 s81, s{OUTP+1}
        s_mov_b32 s82, 0x{2048*1152:x}
        s_mov_b32 s83, 0x00020000
        buffer_load_dword v79, v106, s[80:83], 0 offen sc1
        s_mov_b32 s80, s8
        s_mov_b32 s81, s9
        s_mov_b32 s82, 0x{576*1152:x}
        buffer_load_dword v79, v106, s[80:83], 0 offen''')
    dm0 = [g for n in range(NPRE) for g in dma_groups(n)]
    if opt.get('so', 0) == 0:
        bg = [('GAP', 30)] + xload(2) + xload(3) + [qtouch, ('GAP', 150)] + dm0 + [gA, gB, [fatom]]
    elif opt.get('so', 0) == 3:
        bg = [('GAP', 30)] + xload(2) + xload(3) + [qtouch, gA, [fatom], ('GAP', opt.get('ga', 330))] + dm0
    elif opt.get('so', 0) == 4:
        bg = [('GAP', 30)] + xload(2) + xload(3) + [qtouch, gA, ('GAP', opt.get('ga', 330))] + dm0 + [gB, [fatom]]
    elif opt.get('so', 0) == 5:
        sp = lambda l: [y for x in l for y in ([x, ('GAP', opt['xs'])] if opt.get('xs') and x[0].kind == 'vmem' else [x])]
        bg = [('GAP', opt.get('gap0', 30))] + sp(xload(2)) + ([qtouch] if opt.get('qt') == 1 else []) + sp(xload(3)) + ([] if opt.get('qt') == 1 else [qtouch]) + [('GAP', opt.get('gap1', 150))] + dm0 + [gA, [fatom]]
    elif opt.get('so', 0) == 1:
        bg = [('GAP', opt.get('gap0', 30)), qtouch, gA, ('GAP', opt.get('ga', 200))] + xload(2) + xload(3) + dm0 + [gB, [fatom]]
    else:
        bg = [('GAP', opt.get('gap0', 30))] + xload(2) + [qtouch, gA, ('GAP', opt.get('ga', 300))] + xload(3) + dm0 + [gB, [fatom]]
    cnt = [0]; lq = []; lcnt = [0, 10]
    EVERY = opt.get('every', 8)
    def V(t, needs=()):
        r = P(Ins(t, needs))
        cnt[0] += 1
        if bg and cnt[0] >= EVERY:
            cnt[0] = 0
            while bg:
                g = bg.pop(0)
                if isinstance(g, tuple): cnt[0] = -g[1]; break
                emit_all(g)
                if any(x.kind == 'vmem' for x in g): break
        lcnt[0] += 1
        if lq and lcnt[0] >= lcnt[1]:
            lcnt[0] = 0; emit_all([lq.pop(0)])
        return r
    def reduce8(r):
        V('v_add_f32_dpp v%d, v%d, v%d quad_perm:[1,0,3,2] row_mask:0xf bank_mask:0xf' % (r, r, r))
        V('v_add_f32_dpp v%d, v%d, v%d quad_perm:[2,3,0,1] row_mask:0xf bank_mask:0xf' % (r, r, r))
        V('v_add_f32_dpp v%d, v%d, v%d row_half_mirror row_mask:0xf bank_mask:0xf' % (r, r, r))
    KEEP = [vPFP, vPFS, vTB, vRS]
    def ln_block(blk, defer=False):
        X = XR + 36 * blk
        wa = [64, 76][blk & 1]
        for n in range(36):
            if n < 2: V('v_dot2_f32_bf16 v%d, v%d, s%d, 0' % (68 + n, X + n, ONE2), needs=[xl[blk][0]])
            else: V('v_dot2_f32_bf16 v%d, v%d, s%d, v%d' % (68 + n % 2, X + n, ONE2, 68 + n % 2), needs=[xl[blk][n // 4]])
        stamp('sum%d' % blk)
        V('v_add_f32 v68, v68, v69')
        reduce8(68)
        V('v_mul_f32 v68, 0x%x, v68' % f2u(-1.0 / 576))
        wr = []
        LAG = 2
        for n in range(36 + LAG + 1):
            if n < 36:
                t = 80 + 2 * (n % 8)
                V('v_dot2_f32_bf16 v%d, v%d, s%d, v68' % (t, X + n, LO))
                V('v_dot2_f32_bf16 v%d, v%d, s%d, v68' % (t + 1, X + n, HI))
            m = n - LAG
            if 0 <= m < 36:
                t = 80 + 2 * (m % 8)
                V('v_cvt_pk_bf16_f32 v%d, v%d, v%d' % (X + m, t, t + 1))
            m = n - LAG - 1
            if 0 <= m < 36:
                V('v_dot2_f32_bf16 v%d, v%d, v%d, %s' % (KEEP[blk], X + m, X + m, '0' if m == 0 else 'v%d' % KEEP[blk]))
                if m % 4 == 3:
                    w = Ins('ds_write_b128 v%d, %s offset:%d' % (wa, vr(X + m - 3), (m // 4) * 2048)); wr.append(w)
                    if not defer: P(w)
        return wr, list(wr)
    lnfin = []
    for pat in ('quad_perm:[1,0,3,2]', 'quad_perm:[2,3,0,1]', 'row_half_mirror'):
        lnfin += [Ins(f'v_add_f32_dpp v{r}, v{r}, v{r} {pat} row_mask:0xf bank_mask:0xf') for r in KEEP]
    lnfin += II(f'''s_mov_b32 s76, 0xaaaaaaaa
    s_mov_b32 s77, 0xaaaaaaaa
    v_cndmask_b32 v{KEEP[0]}, v{KEEP[0]}, v{KEEP[1]}, s[76:77]
    v_cndmask_b32 v{KEEP[2]}, v{KEEP[2]}, v{KEEP[3]}, s[76:77]
    s_mov_b32 s76, 0xcccccccc
    s_mov_b32 s77, 0xcccccccc
    v_mov_b32 v181, 0x{f2u(1e-5):x}
    v_cndmask_b32 v{KEEP[0]}, v{KEEP[0]}, v{KEEP[2]}, s[76:77]
    v_fmac_f32 v181, 0x{f2u(1.0 / 576):x}, v{KEEP[0]}
    v_rsq_f32 v176, v181
    v_lshlrev_b32 v180, 3, v{vL}
    v_xor_b32 v180, s{XRO}, v180
    v_and_b32 v180, 8, v180
    v_add_u32 v180, v180, v67
    v_and_b32 v181, 2, v{vL}
    v_lshl_add_u32 v180, v181, 4, v180
    v_mov_b32 v177, v176
    v_mov_b32 v178, v176
    v_mov_b32 v179, v176
    v_and_b32 v181, 0x70, v180
    v_mul_u32_u24 v181, 12, v181
    v_lshl_add_u32 v181, v180, 2, v181
    v_add_u32 v181, {RTB}, v181
    v_lshlrev_b32 v180, 4, v180
    v_add_u32 v180, {RT4}, v180''')
    lnw = [Ins('ds_write_b128 v180, v[176:179]', cost=2), Ins('ds_write_b32 v181, v176')]
    lnfin += lnw
    slow = []
    nlab = [0]
    def alt_site(inline, other):
        nlab[0] += 1; n = nlab[0]
        slow.append(f'alt{n}:\n' + ''.join('    %s\n' % t for t in other) + f'    s_branch alt{n}_e\n')
        return [Ins(f's_cbranch_vccz alt{n}')] + inline + [Ins(f'alt{n}_e:')]
    def xn_reads(rho):
        return [Ins('ds_read_b128 %s, v%d offset:%d' % (breg(ks, 2 * rho + t), 65 + (ks & 1), t * 18432 + ks * 1024)) for ks in range(18) for t in range(2)]
    w0, _ = ln_block(0); w1, _ = ln_block(1)
    stamp('ln01')
    P(Ins('s_barrier', needs=w0 + w1))
    r0 = xn_reads(0)
    lq += [r0[n:n + 2] for n in range(0, 36, 2)]; lcnt[1] = 8
    w2, d2 = ln_block(2, defer=True)
    emit_all(lq); lq.clear()
    P(Ins('s_barrier', needs=r0))
    lq += d2; lcnt[1] = 12
    w3, _ = ln_block(3)
    emit_all(lq); lq.clear()
    emit_all([g for g in bg if not isinstance(g, tuple)]); bg.clear()
    stamp('ln23')
    P(Ins('s_barrier', needs=w2 + w3 + slots[0].loads))
    r1 = xn_reads(1)
    stamp('mf0')

    window = {}
    AH = 4; AHM = opt.get('ah', 6)
    def make_reads(fr, sidx, fi):
        w, o = divmod(phys[sidx] * SLOT, 65536)
        out = []
        if window.get(fr.base, 0) != w:
            d = (w - window.get(fr.base, 0)) * 65536
            out.append(Ins('v_add_u32 v%d, 0x%x, v%d' % (fr.base, d & 0xffffffff, fr.base)))
            window[fr.base] = w
        f = FR + 4 * (fi % 8)
        fr.reg = f
        fr.rd = [Ins('ds_read_b64_tr_b16 %s, v%d offset:%d' % (vr(f + 2 * h, 2), fr.base, o + fr.imm[h])) for h in range(2)]
        return [out + [fr.rd[0]], [fr.rd[1]]]
    def segment(s0, s1, fillers, bar_extra, first_loads=(), extra_need=None, hook=None, quiet=(), pre=()):
        frs = []; groups = []
        for s in range(s0, s1):
            for g in slots[s].groups:
                groups.append((s, len(frs), g))
                for f in g: frs.append((s, f))
        nm = sum(4 * len(g) for _, _, g in groups)
        gm = [[] for _ in range(nm)]; ga = [[] for _ in range(nm)]; gz = [[] for _ in range(nm)]
        used = [0] * nm; vmw = [0] * (nm + 16)
        mf = []; issued = 0; slot_start = {}
        ismem = lambda x: x.kind in ('ds', 'vmem')
        def put(k, items, cost=None):
            (gm if len(items) == 1 and ismem(items[0]) else ga)[k].extend(items)
            used[k] += min(2, sum(x.cost for x in items)) if cost is None else cost
        while issued < AH:
            s, f = frs[issued]
            emit_all(make_reads(f, s, issued)); issued += 1
        if callable(pre): pre()
        else: emit_all(list(pre))
        pend = [(-1, list(first_loads), ())]
        barpos = {}; vcand = set(); fv = set()
        for (s, f0, g) in groups:
            a = len(mf)
            slot_start.setdefault(s, a)
            n = 4 * len(g)
            for mt in range(4):
                for f in g: mf.append((s, f, mt, g))
            if a > 0: used[a - 1] += 1
            vcand.update(range(a + 1, a + n, 4))
            items = []
            while issued < min(len(frs), f0 + min(8, len(g) + AHM)) and frs[issued][0] <= s + 1:
                s2, f2 = frs[issued]
                r = make_reads(f2, s2, issued)
                if frs[issued - 1][0] != s2: r[0] = ['BAR', s2] + r[0]
                items += r; issued += 1
            for q, it in enumerate(items):
                k = a + q * n // len(items)
                if it[0] == 'BAR':
                    s2 = it[1]
                    ex = bar_extra.get(s2, ((), ()))
                    b = Ins('s_barrier'); b.needs = ('LAZY', s2, list(ex[0]) + ([x for f in g for x in f.rd] if k == a else []))
                    gz[k - 1].append(b); used[k - 1] += 1 if k == a else 2
                    barpos[s2] = k - 1
                    pend.append((k - 1, list(extra_loads.get(s2, [])) + ([load_at[s2]] if s2 in load_at else []), ex[1]))
                    it = it[2:]
                if len(it) == 2: put(max(k - 1, 0), it[:1]); it = it[1:]
                put(k, it)
        class Chain:
            def __init__(c, items, start): c.q = list(items); c.rel = start; c.last = -1; c.cap = 2
        dl = []; dead = {}
        for (k, lds_, post) in pend:
            dl.append(('ATK', k + 1)); dl += list(post)
            for n in lds_:
                for g in dma_groups(n):
                    for x in g:
                        dl.append(x)
                        if x.kind == 'vmem': dead[id(x)] = (n, barpos.get(n, 10 ** 9 if n < NS else nm + opt.get('wdl', -100))); svc[id(x)] = SV * (2 if sum(len(g_) for g_ in slots[n].groups) == 6 else 1)
        chains = [Chain(dl, 0)] + [Chain(lst, slot_start[s] + off) for (s, off, lst) in fillers if lst]
        leads = {}; slk = {}; lastst = -999
        pfree = 0.0
        def head(c, k):
            while c.q and isinstance(c.q[0], tuple):
                it = c.q[0]
                if c.rel > k: return None
                if opt.get('dbg') and it[0] in ('AT', 'BY'):
                    cs = max(x for x in slot_start if slot_start[x] <= k); print('   marker', it, 'reached at slot', cs, '+', k - slot_start[cs], file=sys.stderr)
                if it[0] == 'AT': c.rel = slot_start[it[1]] + it[2]
                elif it[0] == 'ATK': c.rel = it[1]
                elif it[0] == 'BY': assert k <= slot_start[it[1]], ('filler late', it, k, slot_start[it[1]])
                elif it[0] == 'CAP': c.cap = it[1]
                elif it[0] == 'SKIP': c.rel = k + it[1]
                c.q.pop(0)
            if not c.q or c.rel > k: return None
            return c.q[0]
        for k in range(nm):
            if not gm[k] and used[k] < 2:
                cand = []
                for n_, c in enumerate(chains):
                    x = head(c, k)
                    if x is None or isinstance(x, list) or not ismem(x) or c.last >= k: continue
                    if x.kind == 'ds':
                        if used[k] + x.cost > 2: continue
                    elif id(x) not in loud and pfree - k > opt.get('bl', 1.5): continue
                    pr = 1
                    if n_ == 0: pr = 0 if dead.get(id(x), (0, 0))[1] - k < opt.get('crit', 72) else 2
                    cand.append((pr, n_))
                if cand:
                    c = chains[min(cand)[1]]; x = c.q.pop(0); c.last = k
                    put(k, [x], x.cost if x.kind == 'ds' else 1)
                    if x.kind == 'vmem':
                        pfree = max(pfree, k + svc[id(x)]) if id(x) in loud else max(pfree, k) + svc.get(id(x), opt.get('svst', SV) if 'store' in x.op else SV)
                        if 'store_dwordx4' in x.op: lastst = k
                        if id(x) in dead and dead[id(x)][1] < 10 ** 9:
                            leads[dead[id(x)][0]] = dead[id(x)][1] - k; slk[dead[id(x)][0]] = dead[id(x)][1] - lastst
            for c in chains:
                while True:
                    x = head(c, k)
                    if x is None or (not isinstance(x, list) and ismem(x)): break
                    it = x if isinstance(x, list) else [x]
                    cst = min(2, sum(y.cost for y in it))
                    if used[k] + cst > c.cap: break
                    c.q.pop(0); c.last = k; ga[k].extend(it); used[k] += cst
        left = [(x if isinstance(x, list) else [x]) for c in chains for x in c.q if not isinstance(x, tuple)]
        print('DMA leads:', ' '.join('%d:%d' % x for x in sorted(leads.items())), file=sys.stderr)
        print('store->wait distance < 130:', ' '.join('%d:%d' % x for x in sorted(slk.items()) if x[1] < 130 and x[0] < NS), file=sys.stderr)
        assert min(v for n_, v in leads.items() if n_ < NS) > opt.get("minlead", 30)
        for k, (s, f, mt, g) in enumerate(mf):
            if hook: hook(k, s)
            c = f.acc(mt)
            nd = [x for f_ in g for x in f_.rd] + ([extra_need(f, mt)] if extra_need else [])
            P(Ins('v_mfma_f32_16x16x32_bf16 %s, %s, %s, %s' % (vr(c), vr(f.reg), f.b(mt), '0' if f.first else vr(c)), needs=nd))
            for x in gz[k]: x.needs = list(slots[x.needs[1]].loads) + list(x.needs[2])
            emit_all(gm[k] + ga[k] + gz[k])
        return left

    def mul(d, a_, b_): return Ins('v_mul_f32 v%d, v%d, v%d' % (d, a_, b_))
    def cvt(d, a_, b_): return Ins('v_cvt_pk_bf16_f32 v%d, v%d, v%d' % (d, a_, b_))
    kv_stores = []
    flat0 = lambda l: [y for x in l for y in x]
    def qkv_epi():
        rs = [Ins('ds_read_b128 %s, v%d offset:%d' % (vr(SP + 4 * mt), vRS, 256 * mt)) for mt in range(4)]
        L = list(rs) + [('SKIP', 6)]
        for mp in range(2):
            if mp: L += II(f's_add_u32 s{QM}, s{QM}, s{QM+2}')
            for c in range(2):
                if c: L += II(f's_add_u32 s{T2}, s{QM}, s{QC}')
                for ft in range(2):
                    te = ACCA + ((2 * c + ft) * 4 + 2 * mp) * 4; to = te + 4
                    for r in range(8):
                        x = mul(te + r, te + r, SP + 8 * mp + r); x.needs = [rs[2 * mp + r // 4]]; L.append(x)
                    L += [cvt(te, te, te + 1), cvt(te + 1, te + 2, te + 3), cvt(te + 2, to, to + 1), cvt(te + 3, to + 2, to + 3)]
                    st = Ins(f'buffer_store_dwordx4 {vr(te)}, v{vQS[0]}, {sr(SW)}, s{T2 if c else QM} offen offset:{1024*ft} sc1')
                    L.append(st); kv_stores.append(st)
        return L
    def l1_epi():
        L = II(f's_lshl_b32 s{T3}, s{FH}, 3\ns_add_u32 s{T3}, s{T3}, {HLONE}\nv_add_u32 v{SP+11}, s{T3}, v{vHW}')
        ws_ = []
        for mt in range(4):
            g0 = ACCA + mt * 4; u0 = ACCA + (4 + mt) * 4
            L += [mul(g0 + t, g0 + t, u0 + t) for t in range(4)] + [cvt(u0, g0, g0 + 1), cvt(u0 + 1, g0 + 2, g0 + 3)]
            w = Ins(f'ds_write_b64 v{SP+11}, {vr(u0,2)} offset:{1024*mt}'); ws_.append(w)
            if not opt.get('bw'): L.append(w)
        if opt.get('bw'): L += [('SKIP', 2), list(ws_)] if opt['bw'] == 1 else flat0([[('SKIP', 4), w] for w in ws_])
        L2 = II(f's_lshl_b32 s{T3}, s{FH}, 11\ns_add_u32 s{T3}, s{T3}, {HLONE}\nv_add_u32 v{SP+11}, s{T3}, v{vHW}')
        rd = [Ins(f'ds_read_b128 {vr(ACCA+4*m)}, v{SP+11} offset:{1024*m}') for m in range(2)]
        sts = [Ins(f'buffer_store_dwordx4 {vr(ACCA+4*m)}, v{vL16}, {sr(SW)}, s{HLN} offen offset:{1024*m} sc1', needs=[rd[m]]) for m in range(2)]
        return L, sts, ws_, L2 + rd + [('SKIP', 10)] + sts
    hw = {}
    def pair_epi(acc, q):
        L = II(f's_add_u32 s{ST}, s{HS}, {q*2*8192}\ns_lshl_b32 s{T1}, s{FH}, 13\ns_add_u32 s{T1}, s{T1}, {hphys[q]*SLOT}\nv_add_u32 v{SP+11}, s{T1}, v{vHW}')
        sts = []; hw[q] = []
        for mt in range(4):
            g0 = acc + mt * 4; g1 = acc + (4 + mt) * 4; u0 = acc + (8 + mt) * 4; u1 = acc + (12 + mt) * 4
            L += [mul(g0 + t, g0 + t, u0 + t) for t in range(4)]
            L += [mul(g1 + t, g1 + t, u1 + t) for t in range(4)]
            L += [cvt(u0, g0, g0 + 1), cvt(u0 + 1, g0 + 2, g0 + 3), cvt(u0 + 2, g1, g1 + 1), cvt(u0 + 3, g1 + 2, g1 + 3)]
            st = Ins(f'buffer_store_dwordx4 {vr(u0)}, v{vL16}, {sr(SW)}, s{ST} offen offset:{1024*mt} sc1')
            w = Ins(f'ds_write_b128 v{SP+11}, {vr(u0)} offset:{1024*mt}', cost=2)
            if q < 3 and opt.get('w64', 0):
                w = [Ins(f'ds_write_b64 v{SP+11}, {vr(u0+2*h,2)} offset:{1024*mt+8*h}') for h in range(2)]
                L += [st] + w; hw[q] += w
            else:
                L += [st, w]; hw[q].append(w)
            sts.append(st)
        return L, sts
    def d_epi(acc, q, cs=(0, 1)):
        L = []
        for c in cs:
            L.append(Ins(f's_sub_u32 s{ST}, s{PS}, {(2*q+c)*2*8192}'))
            for mt in range(4):
                t0 = acc + (8 * c + mt) * 4; t1 = acc + (8 * c + 4 + mt) * 4
                if mt == 2: L.append(Ins(f's_xor_b32 s{ST}, s{ST}, 2048'))
                L += [cvt(t0, t0, t0 + 1), cvt(t0 + 1, t0 + 2, t0 + 3), cvt(t0 + 2, t1, t1 + 1), cvt(t0 + 3, t1 + 2, t1 + 3)]
                L.append(Ins(f'buffer_store_dwordx4 {vr(t0)}, v{vL16}, {sr(SW)}, s{ST} offen offset:{1024*(mt&1)} sc1'))
        return L
    def poll_check(name, ld, test):
        g = [Ins(t, needs=[ld] if n == 0 else []) for n, t in enumerate(test)]
        g.append(Ins('s_cbranch_scc0 %s_slow' % name))
        g.append(Ins('%s_ok:' % name))
        S = Prog()
        S.label('%s_slow' % name)
        S('s_mov_b32 s%d, 400000' % SPN)
        S.label('%s_loop' % name)
        S('s_sleep 2')
        S(ld.text)
        S('s_waitcnt vmcnt(0)')
        S('s_sub_u32 s%d, s%d, 1' % (SPN, SPN))
        S('s_cbranch_scc1 %s_ok' % name)
        for t in test: S(t)
        S('s_cbranch_scc0 %s_loop' % name)
        S('s_branch %s_ok' % name)
        slow.append(S.text())
        return g
    def setflag(n, reg):
        return II(f'v_mov_b32 v{reg}, {n}\nbuffer_store_dword v{reg}, v{vFL}, {sr(SW)}, s{MYF} offen sc1')
    def hpoll(n, reg):
        ld = T(f'buffer_load_dword v{reg}, off, {sr(SW)}, s{PF} sc1')
        return ld, poll_check('h%d' % n, ld, [f'v_readfirstlane_b32 s{T2}, v{reg}', f's_cmp_ge_u32 s{T2}, {n}'])

    qe = qkv_epi()
    pe = [pair_epi(PACC[q], q) for q in range(4)]
    le = l1_epi()
    VREG = [ACCA + 4 * n for n in range(16)] + [SP + 4 * n for n in range(4)]
    G0M, G1M = 96, 98
    late = II(f'''s_mov_b32 s{SQ}, s8
    s_mov_b32 s{SQ+1}, s9
    s_mov_b32 s{SQ+2}, 0x{576*1152:x}
    s_mul_i32 s{T1}, s{T0}, {BLK//2}
    s_mul_i32 s{T2}, s{J}, 2304
    s_add_u32 s{T1}, s{T1}, s{T2}
    s_mov_b32 s{G0M}, 0xffff
    s_mov_b32 s{G0M+1}, 0
    s_mov_b32 s{G1M}, 0xffff0000
    s_mov_b32 s{G1M+1}, 0''')
    for a_ in range(5):
        late += II(f's_add_u32 s{KO+a_}, s{T1}, 0x{KOFF + (2*a_-9)*BLK:x}')
        if a_ < 4:
            late.append(II(f's_cmp_ge_u32 s{T0}, {16-4*a_}\ns_cselect_b32 s{KO+a_}, s{KO+a_}, 0x{OOB:x}\ns_cselect_b32 s{KB+a_}, 0, 0xf149'))
    a0, a1, a2, a3 = SP, SP + 1, SP + 2, SP + 3
    vTK, vQR, vTD_, vR0, vR1 = SP + 4, SP + 5, QF + 12, SP + 7, SP + 8
    late += II(f'''v_and_b32 v{a0}, 15, v{vL}
    v_lshrrev_b32 v{a1}, 4, v{vL}
    v_mov_b32 v{a3}, 0x{OOB:x}
    s_mul_i32 s{T2}, s{FH}, 1280
    s_add_u32 s{T3}, s{T2}, {BLK+144*256}
    v_add_u32 v{vKM}, s{T3}, v{vL16}
    v_lshlrev_b32 v{a1}, 4, v{a1}
    v_lshl_add_u32 v{a1}, v{a0}, 6, v{a1}
    s_add_u32 s{T3}, s{T2}, {BLK+73728}
    v_add_u32 v{vVM}, s{T3}, v{a1}
    s_lshl_b32 s{T2}, s{FH}, 7
    s_add_u32 s{T2}, s{T2}, {BLK+73728+1024}
    v_add_u32 v{a1}, s{T2}, v{a1}
    v_cmp_gt_u32 vcc, 2, v{a0}
    s_lshl_b32 s{T2}, s{FH}, 2
    s_add_u32 s{T2}, s{T2}, {BLK+148*256}
    v_lshlrev_b32 v{a2}, 4, v{a0}
    v_cndmask_b32 v{vVR}, v{a3}, v{a1}, vcc
    v_add_u32 v{a2}, s{T2}, v{a2}
    v_cmp_gt_u32 vcc, 32, v{vL}
    v_subrev_u32 v{a1}, {BLK-8}, v{a2}
    v_cndmask_b32 v{vR0}, v{a3}, v{a2}, {sr(G0M,2)}
    v_cndmask_b32 v{vQR}, v{a3}, v{a2}, vcc
    v_cndmask_b32 v{vR1}, v{a3}, v{a1}, {sr(G1M,2)}
    v_cndmask_b32 v{vKR}, v{vR0}, v{a1}, {sr(G1M,2)}
    v_and_b32 v{a0}, 3, v{a0}
    s_mul_i32 s{T2}, s{J}, 2304
    s_sub_u32 s{T2}, {BLK+110592}, s{T2}
    v_mov_b32 v{a2}, s{T2}
    v_cmp_eq_u32 vcc, 2, v{a0}
    v_mul_u32_u24 v{a0}, 3641, v{vL}
    v_lshrrev_b32 v{a0}, 16, v{a0}
    v_cndmask_b32 v{vVR}, v{vVR}, v{a2}, vcc
    v_lshlrev_b32 v{a1}, 7, v{vL}
    v_cmp_gt_u32 vcc, 41, v{vL}
    v_mul_u32_u24 v{a0}, {36864-18*128}, v{a0}
    v_lshl_add_u32 v{a0}, v{vL}, 7, v{a0}
    v_cndmask_b32 v{vTD_}, v{a3}, v{a1}, vcc
    v_cmp_gt_u32 vcc, 54, v{vL}
    s_nop 0
    s_nop 0
    v_cndmask_b32 v{vTK}, v{a3}, v{a0}, vcc''')
    kvld = T(f'buffer_load_dwordx4 {vr(SP+12)}, off, {sr(SB)}, s{DB} sc1', 32)
    kvtest = [f'v_readfirstlane_b32 s{T2}, v{SP+12}', f'v_readfirstlane_b32 s{T3}, v{SP+13}', f'v_readfirstlane_b32 s{T1}, v{SP+14}',
              f's_or_b32 s{T2}, s{T2}, s{N0}', f's_or_b32 s{T3}, s{T3}, s{N1}', f's_and_b32 s{T2}, s{T2}, s{T3}',
              f's_and_b32 s{T2}, s{T2}, s{T1}', f's_cmp_eq_u32 s{T2}, 0xffff']
    kv2pre = II(f'''v_lshlrev_b32 v{SP+9}, 7, v{vL}
    v_cmp_gt_u32 vcc, 48, v{vL}
    s_lshl_b32 s{DB}, s{I}, 11
    s_add_u32 s{DB}, s{DB}, 0x{FOFF-4096:x}
    v_cndmask_b32 v{SP+9}, v{a3}, v{SP+9}, vcc
    s_lshl_b32 s{N1}, s{N1}, 16
    s_or_b32 s{N1}, s{N1}, s{N0}''')
    kv2ld = T(f'buffer_load_dword v{SP+12}, v{SP+9}, {sr(SW)}, s{DB} offen sc1', 32)
    kv2test = [f'v_cmp_le_u32 vcc, 1, v{SP+12}', 's_nop 1', f's_or_b32 s{T2}, vcc_lo, s{N1}', f's_or_b32 s{T3}, vcc_hi, 0xffff0000', f's_and_b32 s{T2}, s{T2}, s{T3}', f's_cmp_eq_u32 s{T2}, -1']
    kvpre = II(f'''s_lshl_b32 s{T3}, s{I}, 2
    s_add_u32 s{T3}, s{T3}, s{Wv}
    s_mul_i32 s{T3}, s{T3}, {BLK}
    s_mul_i32 s{T2}, s{J}, 2304
    s_add_u32 s{T3}, s{T3}, s{T2}
    s_add_u32 s{T3}, s{T3}, 0x{KOFF:x}''')
    kvtouch = [T(f'buffer_load_dword v0, v{vTK}, {sr(SW)}, s{T3} offen')] if opt.get('kvt', 0) else []
    if JX > 2 and opt.get('kvt', 0):
        kvtouch += II(f's_sub_u32 s{T3}, s{T3}, {8*BLK}\ns_and_b32 s{T2}, s{I}, {32//JX-2}') + \
                   [II(f's_or_b32 s{T2}, s{T2}, s{N0}\ns_cselect_b32 s{T3}, 0x{OOB:x}, s{T3}'), T(f'buffer_load_dword v0, v{vTK}, {sr(SW)}, s{T3} offen')]
    kvtouch += [II(f's_getpc_b64 {sr(SB,2)}') + [Ins('K1_pc2:')]] + II(f'''s_mov_b32 s{SB+2}, code_end-K1_pc2
    s_and_b32 s{T2}, s{NN}, 7
    s_lshl_b32 s{T2}, s{T2}, 2
    s_add_u32 s{T2}, s{T2}, s{Wv}
    s_mul_i32 s{T2}, s{T2}, {10*128}
    v_lshlrev_b32 v{SP}, 7, v{vL}
    v_cmp_gt_u32 vcc, 10, v{vL}
    s_nop 0
    s_nop 0
    v_cndmask_b32 v{SP}, v{a3}, v{SP}, vcc''') + [T(f'buffer_load_dword v0, v{SP}, {sr(SB)}, s{T2} offen', 32)]
    qld = []; ql = []
    for a_ in range(2):
        l0 = Ins(f'buffer_load_dwordx4 {vr(QF+4*a_)}, v{vKM}, {sr(SW)}, s{T3} offen sc1')
        l1 = [Ins(f'buffer_load_dword v{QF+8+2*a_+h}, v{vQR}, {sr(SW)}, s{T3} offen offset:{8*h} sc1') for h in range(2)]
        ql += [Ins(f's_add_u32 s{T3}, s{KO+4}, {(a_*BLK - 36864) & 0xffffffff}'), l0, l1[0], l1[1]]; qld += [[l0, l1[0]], [l0, l1[1]]]
    km = []; kr = []; kl = []; vld = []; vl = []
    PACE = ('SKIP', 0)
    for b_ in range(11):
        so = Ins(f's_add_u32 s{T3}, s{KO+min(b_//2,4)}, {(b_-2*min(b_//2,4))*BLK}')
        r_ = Ins(f'buffer_load_dword a{6*b_}, v{vR0 if b_ == 0 else (vR1 if b_ == 10 else vKR)}, {sr(SW)}, s{T3} offen sc1'); kr.append(r_)
        kl += [so, r_, PACE]
        lo_, hi_ = b_ // 2, (b_ - 1) // 2
        nm_ = lambda q_: f's{KB+q_}' if 0 <= q_ < 4 else '0'
        if b_ <= 8: kl += II(f's_pack_ll_b32_b16 s{T2}, {nm_(lo_)}, {nm_(hi_)}\nv_accvgpr_write_b32 a{6*b_+1}, s{T2}')
        else: kl += II(f'v_accvgpr_write_b32 a{6*b_+1}, 0')
        if b_ < 10:
            m_ = Ins(f'buffer_load_dwordx4 {ar(6*b_+2)}, v{vKM}, {sr(SW)}, s{T3} offen sc1'); km.append(m_)
            kl += [m_, PACE]
    kld = [[km[u // 2], kr[(u + 1) // 2]] for u in range(20)]
    for v in range(10):
        a_ = Ins(f'buffer_load_dwordx4 {vr(VREG[2*v])}, v{vVM}, {sr(SW)}, s{T3} offen sc1')
        b_ = Ins(f'buffer_load_dwordx4 {vr(VREG[2*v+1])}, v{vVR}, {sr(SW)}, s{T3} offen sc1')
        vl.append([Ins(f's_add_u32 s{T3}, s{KO+v//2}, {(v%2)*BLK}'), a_, PACE, b_, PACE]); vld += [a_, b_]
    def vfix(v): return [Ins(f'v_or_b32 v{VREG[2*v+1]+r}, v{vONES}, v{VREG[2*v+1]+r}', needs=[vld[2 * v + 1]]) for r in range(4)]
    pfd = [T(f'buffer_load_dword v0, v{vTD_}, {sr(SD)}, s{PFD} offen offset:2048' + NT, opt.get('qd', 120))]
    if opt.get('nod') or opt.get('cls'): pfd = []
    pfw = II(f's_mul_i32 s{T2}, s2, {21*128}') + [II(f's_cmp_eq_u32 s{Wv}, 0\ns_cselect_b32 s{T2}, s{T2}, 0x{OOB:x}'), T(f'buffer_load_dword v0, v{vTD_}, {sr(SQ)}, s{T2} offen', 40)]
    if opt.get('nod'): pfw = []
    h1ld, h1chk = hpoll(2, vPFP)
    e_ = opt.get('ev', [8, 0, 26, 29, 38])
    flat = lambda l: [y for x in l for y in x]
    NV1 = opt.get('nv1', 3)
    cls_chain = []
    if opt.get('cls'):
        va, vs_ = QF + 13 - 9, QF + 13 - 8
        cls_chain = II(f'''v_lshrrev_b32 v{va}, 2, v{vL}
        v_mul_u32_u24 v{va}, 9216, v{va}
        v_bfe_u32 v{vs_}, v{vL}, 1, 1
        v_mul_u32_u24 v{vs_}, 1152, v{vs_}
        v_add_u32 v{va}, v{va}, v{vs_}
        v_and_b32 v{vs_}, 1, v{vL}
        v_lshl_add_u32 v{va}, v{vs_}, 10, v{va}
        v_cmp_gt_u32 {sr(DUM,2)}, 36, v{vL}
        v_mov_b32 v{va+2}, 0x{OOB:x}
        v_lshlrev_b32 v{vs_}, 8, v{vs_}
        v_cndmask_b32 v{va}, v{va+2}, v{va}, {sr(DUM,2)}
        v_sub_u32 v{vs_}, 128, v{vs_}
        s_lshr_b32 s{DUM}, s2, 5
        s_lshl_b32 s{DUM}, s{DUM}, 3
        s_and_b32 s{DUM+1}, s2, 7
        s_or_b32 s{DUM}, s{DUM}, s{DUM+1}
        s_mul_i32 s{PFP}, s{DUM}, {9*9216}
        s_mul_i32 s{DUM+1}, s{Wv}, 2304
        s_add_u32 s{PFP}, s{PFP}, s{DUM+1}
        s_and_b32 s{DUM}, s{NN}, 3''')
        sites_ = opt['cls']; qc = opt.get('qc', 24)
        for n, sl in enumerate(sites_):
            if sl: cls_chain += [('AT', sl - 1, 16)]
            if n < 6 and n % 2 == 0: cls_chain += II(f'v_add_u32 v{va}, v{va}, v{vs_}')
            if not sl: continue
            if n < 6:
                cls_chain += [II(f's_cmp_eq_u32 s{DUM}, {n % 4}\ns_cselect_b32 s{PFW}, s{PFP}, 0x{OOB:x}'), ('AT', sl, 0),
                              T(f'buffer_load_dword v0, v{va}, {sr([SG, SU][n % 2])}, s{PFW} offen offset:{2048 * (n % 2)}', qc)]
            else:
                cls_chain += [II(f's_cmp_eq_u32 s{DUM}, {n % 4}\ns_cselect_b32 s{PFW}, s{PFD}, 0x{OOB:x}'), ('AT', sl, 0),
                              T(f'buffer_load_dword v0, v{vTD_}, {sr(SD)}, s{PFW} offen offset:2048', qc)]
    fill1 = [(sl, 0, stamp('slot%d' % sl, True)) for sl in range(NSEG1)] + [
        (0, 0, r1[8:]),
        (1, 0, cls_chain),
        (0, 2, lnfin + late0 + [('BY', 9)] + late0b[:31] + [('AT', 9, 4)] + qe + [('BY', 16)] + late0b[31:] + late + [kvld, ('AT', 18, 4)]
         + pe[0][0] + [('BY', 24), poll_check('kv', kvld, kvtest)] + kv2pre + [('AT', 24, 4)]
         + le[0] + [('BY', 26), ('AT', e_[2], 0), kv2ld] + [('AT', 27, 0)] + le[3] + [('AT', e_[3] - 1, 8), poll_check('kw', kv2ld, kv2test)] + kvpre + [('AT', e_[3], 0)] + pfd + pfw + kvtouch + [('BY', 33), ('AT', 33, 4)]
         + pe[1][0] + ql + [('BY', 42), ('AT', 42, 4)]
         + pe[2][0] + [('AT', 44, 0)] + kl + flat(vl[:NV1])),
    ]
    bx1 = {
        3: (r1, []), 6: (lnw, []),
        opt.get('kvf', 17): (kv_stores + [guard, ones_st], setflag(1, SP + 10)),
        27: (le[2], []),
        opt.get('hf', 49): (pe[0][1] + le[1] + pe[1][1] + pe[2][1], setflag(2, SP + 10)),
    }
    extra_loads[3] = [5, 6, 7, 8, load_at.pop(2)]
    xmap = {}
    for n, x in enumerate(r1):
        ks = n // 2
        for mt in range(4): xmap[breg(ks, mt)] = r1[2 * ks + (mt & 1)] if mt >= 2 else None
    mark = {}
    def hook(k, s):
        if k == 0:
            P(f's_cmp_ge_u32 s{J}, 9')
            P('s_cbranch_scc1 qkv_v')
            mark['a'] = len(P.out)
        if s == 9 and 'b' not in mark:
            mark['b'] = len(P.out)
            P.label('qkv_e')
    left = segment(0, NSEG1, fill1, bx1, first_loads=list(range(NPRE, 5)), hook=hook, pre=r1[:8], extra_need=lambda f, mt: xmap[f.b(mt)])
    qrd = set(id(x) for n in range(9) for g in slots[n].groups for f in g for x in f.rd)
    K = Prog(); K.label('qkv_k'); nb_ = 0
    for x in P.out[mark['a']:mark['b']]:
        if x.kind == 'mfma' or id(x) in qrd or x.op == 's_nop': continue
        t = x.text
        if x.kind == 'label': K.label(t[:-1].replace('_e', 'k_e')); continue
        if x.op == 's_cbranch_scc1': t += 'k'
        if x.op == 's_waitcnt':
            if 'vmcnt' not in t: continue
            t = t.split(' lgkmcnt')[0]
        if x.op == 's_barrier':
            nb_ += 1
            K('s_waitcnt lgkmcnt(0)')
        K(t)
    K('s_waitcnt lgkmcnt(0)'); K('s_nop 4'); K('s_branch qkv_e')
    slow.append(K.text())
    alt = ['qkv_v:', f'    s_cmp_ge_u32 s{J}, 14', '    s_cbranch_scc1 qkv_k'] if opt.get('skip', 1) else ['qkv_v:']
    for x in P.out[mark['a']:mark['b']]:
        t = x.text
        if x.kind == 'label': alt.append(t.replace('_e:', 'v_e:')); continue
        if x.op == 's_cbranch_scc1': t += 'v'
        if x.kind == 'mfma':
            o = [y.strip() for y in t[len(x.op):].split(',')]
            t = '%s %s, %s, %s, %s' % (x.op, o[0], o[2], o[1], o[3])
        alt.append('    ' + t)
    alt.append('    s_branch qkv_e')
    slow.append('\n'.join(alt) + '\n')
    print('left after seg1:', len(left), file=sys.stderr)
    stamp('g1end')

    SREG = [80] + [ACCB + (tl * 4 + mt) * 4 for mt in range(4) for tl in (0, 1, 3, 2)]
    PR = [84, 88]; OM, OR_ = 96, 100; MF, ML = 104, 108
    noskip = lambda l: [x for x in l if not isinstance(x, tuple)]
    def qbuild(t):
        q = QF + 2 * t
        P(Ins(f'v_mov_b32 v{QW+2}, v{q}', needs=qld[t]))
        P(f'v_mov_b32 v{QW+3}, v{q+1}')
        P(f'v_cndmask_b32 v{QW}, 0, v{QF+8+t}, {sr(G0M,2)}')
        P(f'v_cndmask_b32 v{QW+4}, 0, v{QF+8+t}, {sr(G1M,2)}')
    P('v_mov_b32 v%d, 0x%x' % (vTA, NEG))
    P(f'v_mov_b32 v{QW+1}, 0x3f80')
    P(f'v_mov_b32 v{QW+5}, 0x3f800000')
    qbuild(0)
    pq = list(pe[3][0])
    for r in range(4):
        P('v_cmp_lt_i32 vcc, %d, v%d' % (-r, vDG))
        P(pq.pop(0)); P(pq.pop(0))
        P('v_cndmask_b32 v%d, v%d, 0, vcc' % (MF + r, vTA))
        P('v_cndmask_b32 v%d, 0, v%d, vcc' % (ML + r, vTA))
    P(f's_cmp_eq_u32 s{FH}, 0')
    P('s_cselect_b64 vcc, -1, 0')
    P(f's_xor_b32 s{N0}, s{C}, 0x80000000')
    hld = {}
    def hload(k):
        if isinstance(k, tuple):
            ka, kb = k
            pre = II(f's_mul_i32 s{T2}, s{FH}, {(ka-kb)*8192}\ns_add_u32 s{T2}, s{T2}, s{HL}\ns_add_u32 s{T2}, s{T2}, {(17-ka)*8192}') if ka != kb else II(f's_add_u32 s{T2}, s{HL}, {(17-ka)*8192}')
            tx = lambda kk, mt: f'buffer_load_dwordx4 {breg(hpos[kk], mt)}, v{vL16}, {sr(SW)}, s{T2} offen offset:{1024*mt} sc1'
            ld = [Ins(tx(ka, mt)) for mt in range(4)]
            if not opt.get('ksw'): hld[ka] = [ld[3]] * 4; hld[kb] = [ld[3]] * 4
            if opt.get('ksw'): hld[ka] = list(ld); hld.setdefault(kb, None)
            if ka == kb or opt.get('ksw'): return [pre + ld[:1], ld[1:2], ld[2:3], ld[3:]]
            return [(pre if h == 0 else []) + alt_site(ld[2*h:2*h+2], [tx(kb, 2*h), tx(kb, 2*h+1)]) for h in range(2)]
        base = HLONE if k == 8 else hphys[k // 2] * SLOT + (k & 1) * 8192
        hld[k] = [Ins(f'ds_read_b128 {breg(hpos[k], mt)}, v{vONES} offset:{1024*mt}') for mt in range(4)]
        return [II(f'v_add_u32 v{vONES}, {base}, v{vHW}') + hld[k][:2], hld[k][2:]]
    def qk(t, sg):
        u = t + sg
        c = vr(MF) if sg == 0 else (vr(ML) if sg == 16 else '0')
        return Ins('v_mfma_f32_16x16x32_bf16 %s, %s, %s, %s' % (vr(SREG[sg]), ar(3 * u + (u & 1)), vr(QW + 2 * (u & 1)), c), needs=kld[u])
    def mx(sg, dst):
        s = SREG[sg]
        if sg == 0: return II('v_max3_f32 v%d, v%d, v%d, v%d\nv_max_f32 v%d, v%d, v%d' % (dst, s, s + 1, s + 2, dst, dst, s + 3))
        return II('v_max3_f32 v%d, v%d, v%d, v%d\nv_max3_f32 v%d, v%d, v%d, v%d' % (dst, dst, s, s + 1, dst, dst, s + 2, s + 3))
    lk = [x for x in left if any(y in km or y in kr for y in x)]
    if lk:
        n = left.index(lk[-1]) + 1; emit_all(left[:n]); left = left[n:]
    P(qk(0, 0))
    nq = 1; avail = 1; nmx = 0
    while pq:
        x = pq.pop(0); P(x)
        if x.kind == 'ds': avail += 4
        elif nq < avail and len(pq) % 2 == 0: P(qk(0, nq)); nq += 1
    def bunch(l):
        out = []; cur = []
        for x in l:
            cur += x
            if any(y.kind == 'vmem' for y in x): out.append(cur); cur = []
        assert not cur
        return out
    isdma = lambda x: any(' lds' in y.text or f's{OFF},' in y.text.split()[1] or 'm0' in y.text or f's{BD},' in y.text.split()[1] for y in x)
    ldma = bunch([x for x in left if isdma(x)])
    lv = bunch([x for x in left if not isdma(x)] + [[x] for v in range(NV1, 10) for x in noskip(vl[v])])
    while nq < 17:
        P(qk(0, nq)); nq += 1
        emit_all(mx(nmx, vMN)); nmx += 1
    while nmx < 17:
        if len(lv) > 12 and nmx % 2: emit_all(lv.pop(0))
        emit_all(mx(nmx, vMN)); nmx += 1
    while len(lv) > 12: emit_all(lv.pop(0))
    qbuild(1)
    stamp('attk')
    ow = []
    def o_epi(t):
        P('v_rcp_f32 v%d, v%d' % (vTA, OR_ + 2))
        for r in range(4): P(mul(OM + r, OM + r, vTA))
        for r in range(2): P(mul(OR_ + r, OR_ + r, vTA))
        P(cvt(QF + 2 * t, OM, OM + 1)); P(cvt(QF + 2 * t + 1, OM + 2, OM + 3)); P(cvt(QF + 8 + t, OR_, OR_ + 1))
    ofl = II(f'''s_lshl_b32 s{T2}, s{FH}, 3
    s_add_u32 s{T2}, s{T2}, {HLONE}
    v_add_u32 v{vTB}, s{T2}, v{vHW}
    s_lshl_b32 s{T2}, s{RG}, 9
    s_lshl_b32 s{T3}, s{FH}, 2
    s_add_u32 s{T2}, s{T2}, s{T3}
    s_add_u32 s{T2}, s{T2}, {RT4}
    v_lshlrev_b32 v{vTA}, 3, v{vL}
    v_add_u32 v{vMX}, 4096, v{vTA}
    v_cndmask_b32 v{vTA}, v{vMX}, v{vTA}, {sr(G0M,2)}
    v_add_u32 v{vTA}, s{T2}, v{vTA}''')
    for t in range(4):
        ow += [Ins(f'ds_write_b64 v{vTB}, {vr(QF+2*t,2)} offset:{1024*t}'), Ins(f'ds_write_b32 v{vTA}, v{QF+8+t} offset:{128*t}')]
    ofl += ow
    h2ld, h2chk = hpoll(3, vPFP)
    hplan = opt.get('hplan', {0: [0, 1, 2, 3, 4, 5], 1: [(16, 17), (14, 15), (12, 13), (9, 9)], 2: [(17, 16), (15, 14), (13, 12), 8], 3: [(10, 11), (11, 10)]})
    if opt.get('plain', 1): hplan = {0: [0, 1, 2, 3, 4, 5], 1: [(16, 16), (17, 17), (14, 14), (15, 15)], 2: [(12, 12), (13, 13), (9, 9), 8], 3: [(10, 10), (11, 11)]}
    if opt.get('ksw'): hplan = {0: [0, 1, 2, 3, 4, 5], 1: [(16, 17), (14, 15), (12, 13), (9, 9)], 2: [(17, 16), (15, 14), (13, 12), 8], 3: [(10, 11), (11, 10)]}
    for t in range(4):
        stamp('att%d' % t)
        P('v_mov_b32 v%d, v%d' % (vTA, vMN))
        P('v_permlane16_swap_b32 v%d, v%d' % (vTA, vMN))
        P('v_max_f32 v%d, v%d, v%d' % (vMN, vMN, vTA))
        P('v_mov_b32 v%d, v%d' % (vTA, vMN))
        P('v_permlane32_swap_b32 v%d, v%d' % (vTA, vMN))
        P('v_max_f32 v%d, v%d, v%d' % (vMN, vMN, vTA))
        P(f'v_mul_f32 v{vMX}, s{N0}, v{vMN}')
        if t == 1:
            P(Ins('s_barrier', needs=pe[3][1] + hw[3] + [x for k in range(6) for x in hld[k]]))
            ad = bunch(flat([dma_groups(n) for n in att_loads[:sum(opt.get('na', [0, 4, 6, 10])) // 4]]))
            emit_all(setflag(3, vPFS))
            emit_all(h1chk)
        if t == 3:
            P(Ins('s_barrier', needs=slots[NSEG1].loads + hld[8]))
            emit_all(h2chk)
        bq = flat([hload(k) for k in hplan[t]])
        def mix(a_, b_):
            out = []; a_ = list(a_); b_ = list(b_)
            while a_ or b_:
                if a_: out.append(a_.pop(0))
                if b_: out.append(b_.pop(0))
            return out
        if t == 0:
            bq = mix(lv + ldma, bq); bq.insert(len(bq) * 2 // 3, [h1ld])
        else:
            na = opt.get('na', [0, 4, 6, 10])[t]
            bq = mix(bq, ad[:na]) if t < 3 or opt.get('plain', 1) else bq[:2] + ad[:na] + bq[2:]
            ad = ad[na:]
        ppv = []; pqk = []; pmx = []
        for b in range(9):
            v = (t >> 1) + b
            sgs = [2 * v - t, 2 * v + 1 - t]
            val = [sg for sg in sgs if 0 <= sg <= 16]
            p = PR[b % 2]
            for sg in val:
                for r in (0, 2):
                    s = SREG[sg] + r
                    P(f'v_pk_fma_f32 {vr(s,2)}, {vr(s,2)}, {sr(C,2)}, {vr(vMX,2)} op_sel_hi:[1,0,0]')
            mfs = ppv + [qk(t + 1, g_) for g_ in pqk]
            nb = (len(bq) + (8 - b)) // (9 - b)
            def withmem(x):
                nonlocal nb
                g = []
                if nb: g = bq.pop(0); nb -= 1
                n0 = 0
                while n0 < len(g) and g[n0].kind in ('salu', 'valu') and not g[n0].op.startswith('s_cbranch'): n0 += 1
                emit_all(g[:n0]); P(x); emit_all(g[n0:])
            for sg in val:
                for r in range(4):
                    P('v_exp_f32 v%d, v%d' % (SREG[sg] + r, SREG[sg] + r))
                    if mfs and (not opt.get('spr') or r % 2 == 0 or len(val) == 1): withmem(mfs.pop(0))
            while mfs: withmem(mfs.pop(0))
            nb += 1
            for g_ in pmx: emit_all(mx(g_, vMN))
            for hh, sg in enumerate(sgs):
                if sg in val:
                    s = SREG[sg]
                    P(cvt(p + 2 * hh, s, s + 1)); P(cvt(p + 2 * hh + 1, s + 2, s + 3))
                else:
                    P('v_mov_b32 v%d, 0' % (p + 2 * hh)); P('v_mov_b32 v%d, 0' % (p + 2 * hh + 1))
            for _ in range(nb - 1): emit_all(bq.pop(0))
            pmx = pqk; pqk = val if t < 3 else []
            ppv = [Ins('v_mfma_f32_16x16x32_bf16 %s, %s, %s, %s' % (vr(OM), vr(VREG[2 * v]), vr(p), '0' if b == 0 else vr(OM)), needs=[vld[2 * v]]),
                   Ins('v_mfma_f32_16x16x32_bf16 %s, %s, %s, %s' % (vr(OR_), vr(VREG[2 * v + 1]), vr(p), '0' if b == 0 else vr(OR_)), needs=[vld[2 * v + 1]])]
            if t == 2 and b == 5: P(h2ld)
        assert not bq
        tail = flat([mx(g_, vMN) for g_ in pmx])
        for x in [qk(t + 1, g_) for g_ in pqk] + ppv:
            P(x)
            if tail: P(tail.pop(0))
        emit_all(tail)
        if t < 2: qbuild(t + 2)
        for g_ in pqk: emit_all(mx(g_, vMN))
        if t < 3: o_epi(t)
    stamp('attend')

    own = flat(flat([hload(k) for k in (6, 7)]))
    bmap = {}
    for k in hld:
        for mt in range(4): bmap[breg(hpos[k], mt)] = hld[k][mt]
    def restage(dst, sbase, stride, T3=T3):
        L = II(f's_lshl_b32 s{T3}, s{FH}, 11\ns_add_u32 s{T3}, s{T3}, {HLONE}\nv_add_u32 v{vTB}, s{T3}, v{vHW}')
        rd = [Ins(f'ds_read_b128 {vr(dst+4*m)}, v{vTB} offset:{1024*m}') for m in range(2)]
        L += rd + II(f's_add_u32 s{T3}, s{sbase}, {stride}') + [('SKIP', 8)]
        L += [Ins(f'buffer_store_dwordx4 {vr(dst+4*m)}, v{vL16}, {sr(SW)}, s{[sbase, T3][m]} offen sc1', needs=[rd[m]]) for m in range(2)]
        return L, rd
    oe, ord_ = restage(QF, OB, 18432)
    rr = Ins(f'ds_read_b128 {vr(QF+8)}, v{vTA}')
    oe += II(f'v_add_u32 v{vTA}, {RT4}, v{vL16}') + [rr] + II(f'v_lshrrev_b32 v{vTA}, 3, v{vL}\nv_mul_u32_u24 v{vTA}, {18432-128}, v{vTA}\nv_add_u32 v{vTA}, v{vTA}, v{vL16}') + [('SKIP', 8)]
    oe += [Ins(f'buffer_store_dwordx4 {vr(QF+8)}, v{vTA}, {sr(SW)}, s{OR} offen sc1', needs=[rr])]
    l2e = II(f's_lshl_b32 s{T3}, s{FH}, 3\ns_add_u32 s{T3}, s{T3}, {HLONE}\nv_add_u32 v{vTB}, s{T3}, v{vHW}'); l2w = []
    for mt in range(4):
        t0 = SP + mt * 4
        w = Ins(f'ds_write_b64 v{vTB}, {vr(t0,2)} offset:{1024*mt}'); l2w.append(w)
        l2e += [cvt(t0, t0, t0 + 1), cvt(t0 + 1, t0 + 2, t0 + 3), w]
    l2s, _ = restage(SP, PLN, 1024, T1)
    TLT, TVT = opt.get('tl', 0x54108732), opt.get('tv', 0x56557777)
    def task_params(second):
        ln = II(f's_lshl_b32 s{T2}, s{Pp}, 2\ns_lshr_b32 s{T1}, {TLT:#x}, s{T2}\ns_and_b32 s{T1}, s{T1}, 15\ns_lshr_b32 s{TV}, {TVT:#x}, s{T2}\ns_and_b32 s{TV}, s{TV}, 15\ns_movk_i32 s{TM}, 0x5555')
        ln += [II(f's_cmp_gt_u32 s{T1}, 4\ns_cselect_b32 s{T2}, 1, 0'), Ins(f's_lshl_b32 s{TM}, s{TM}, s{T2}'), II(f's_cmp_eq_u32 s{T1}, 4\ns_cselect_b32 s{TM}, 0xffff, s{TM}'), Ins(f's_bitset0_b32 s{TM}, s{J}')]
        return ln + II(f'''s_lshl_b32 s{TL}, s{T1}, 7
        s_lshl_b32 s{T2}, s{E}, 2
        s_add_u32 s{T2}, s{T2}, s{Wv}
        s_lshl_b32 s{TP}, s{T2}, 10
        s_lshl_b32 s{T1}, s{T1}, 14
        s_sub_u32 s{TP}, s{TP}, s{T1}
        s_mul_i32 s{T1}, s{I}, {8*18*8192}
        s_add_u32 s{TP}, s{TP}, s{T1}
        s_lshl_b32 s{T1}, s{I}, 3
        s_add_u32 s{T2}, s{T2}, s{T1}
        s_mul_i32 s{OL}, s{T2}, 18432
        s_add_u32 s{TX}, s{OL}, s{TL}
        s_mul_i32 s{T1}, s{Wv}, {36*1152}
        s_add_u32 s{TL}, s{TL}, s{T1}''')
    tsetup = II(f'''s_mov_b32 s{SG}, s8
    s_mov_b32 s{SG+1}, s9
    s_mov_b32 s{SG+2}, 0x{576*1152:x}
    s_mov_b32 s{SU}, s{OUTP}
    s_mov_b32 s{SU+1}, s{OUTP+1}
    s_mov_b32 s{SU+2}, 0x{2048*1152:x}
    s_lshl_b32 s{FB}, s{I}, 11
    s_add_u32 s{FB}, s{FB}, 0x{FOFF:x}
    s_mov_b32 s{LO}, 0x00003f80
    s_mov_b32 s{HI}, 0x3f800000''') + task_params(False)
    for t, row in enumerate((0, 8, 20, 28)): tsetup += II(f'v_add_u32 v{vWD[t]}, {(row*1152 - 1024*t - 2048) & 0xffffffff}, v{vDD[0]}')
    tsetup += II(f'''v_lshrrev_b32 v{vWD2}, 5, v{vL}
    v_mul_u32_u24 v{vWD2}, {32*1152}, v{vWD2}
    v_add_u32 v{vWD2}, v{vWD2}, v{vWD[0]}
    v_add_u32 v{vWD2}, {16*1152}, v{vWD2}
    v_and_b32 v{vWT[0]}, 0xffff, v{vTD[0]}
    s_lshl_b32 s{T2}, s{FH}, 6
    v_xor_b32 v{vWT[0]}, s{T2}, v{vWT[0]}
    v_xor_b32 v{vWT[1]}, 32, v{vWT[0]}
    v_xor_b32 v{vWT[2]}, 64, v{vWT[0]}
    v_xor_b32 v{vWT[3]}, 0x60, v{vWT[0]}
    v_lshlrev_b32 v{vPL}, 3, v{vOR}
    v_and_b32 v{vMX}, 15, v{vL}
    v_mul_u32_u24 v{vDG}, 1152, v{vMX}
    v_bfe_u32 v{vMN}, v{vL}, 4, 1
    v_lshl_add_u32 v{vDG}, v{vMN}, 5, v{vDG}
    v_lshrrev_b32 v{vMN}, 5, v{vL}
    v_lshl_add_u32 v{vDG}, v{vMN}, 4, v{vDG}
    s_lshl_b32 s{T2}, s{E}, 2
    s_add_u32 s{T2}, s{T2}, s{Wv}
    s_lshl_b32 s{T2}, s{T2}, 8
    s_lshr_b32 s{T3}, s{ROT}, 2
    s_xor_b32 s{T2}, s{T2}, s{T3}
    s_add_u32 s{T2}, s{T2}, {RTB}
    v_lshlrev_b32 v{vMX}, 2, v{vMX}
    v_add_u32 v{vMX}, s{T2}, v{vMX}''')
    rrd = Ins(f'ds_read_b32 v{vMX}, v{vMX}')
    tsetup += [rrd, ('SKIP', 8), Ins(f'v_mul_f32 v{vMX}, v{vMX}, v{vMX}', needs=[rrd]), Ins(f'v_mul_f32 v{vMN}, 0x{f2u(-1.4426950408889634):x}, v{vMX}')]
    fl_t = f'buffer_load_dword v{vPFP}, v{vPL}, {sr(SW)}, s{FB} offen sc1'
    o3ld = T(fl_t, 24)
    o3chk = poll_check('o3', o3ld, [f'v_cmp_le_u32 vcc, 4, v{vPFP}', 's_nop 1', 's_cmp_eq_u32 vcc_lo, 0xffff'])
    d5ld = T(fl_t, 8)
    ct3 = [II(f's_getpc_b64 {sr(SB,2)}') + [Ins('K1_pc3:')]] + II(f'''s_mov_b32 s{SB+2}, code_end-K1_pc3
    s_and_b32 s{T2}, s{NN}, 7
    s_lshl_b32 s{T2}, s{T2}, 2
    s_add_u32 s{T2}, s{T2}, s{Wv}
    s_mul_i32 s{T2}, s{T2}, {9*128}
    v_cmp_gt_u32 vcc, 9, v{vL}
    v_mov_b32 v{vTA}, 0x{OOB:x}
    s_nop 0
    v_cndmask_b32 v{vTA}, v{vTA}, v{vPL}, vcc''') + [T(f'buffer_load_dword v0, v{vTA}, {sr(SB)}, s{T2} offen', 24)]
    ct3 += II(f'''v_mul_u32_u24 v{vTA}, 1152, v{vL}
    v_subrev_u32 v{vTB}, {9*1152-128}, v{vTA}
    v_cmp_gt_u32 vcc, 9, v{vL}
    s_and_b32 s{T2}, s{I}, 7
    s_lshl_b32 s{T2}, s{T2}, 1
    v_cndmask_b32 v{vTA}, v{vTB}, v{vTA}, vcc
    s_add_u32 s{T2}, s{T2}, s{E}
    s_mul_i32 s{T2}, s{T2}, {36*1152}
    s_add_u32 s{T2}, s{T2}, s{TL}
    s_mul_i32 s{T3}, s{Wv}, {27*1152}
    s_sub_u32 s{T2}, s{T2}, s{T3}''') + [II(f's_cmp_ge_u32 s{J}, 14\ns_cselect_b32 s{T3}, 18, 9')] + II(f'''v_cmp_gt_u32 vcc, s{T3}, v{vL}
    v_mov_b32 v{vTB}, 0x{OOB:x}
    s_nop 0
    v_cndmask_b32 v{vTA}, v{vTB}, v{vTA}, vcc''') + [T(f'buffer_load_dword v0, v{vTA}, {sr(SG)}, s{T2} offen', 24)]
    if opt.get('nowt', 1): ct3 = ct3[:-17]
    OA = 160
    old = []; ol = II(f'v_lshlrev_b32 v{vTA}, 3, v{vL}')
    for k in range(18):
        if k == 8: ol += [('AT', NSEG1 + 14, 0)]
        if k == 16: ol += [('AT', NSEG1 + 15, 0)]
        if k % 4 == 0: ol += II(f's_add_u32 s{T3}, s{OL}, 0x{OOFF + k*1024:x}')
        if k < 16: x = [Ins(f'buffer_load_dwordx4 {ar(OA+4*k)}, v{vL16}, {sr(SW)}, s{T3} offen offset:{1024*(k%4)} sc1')]
        else: x = [Ins(f'buffer_load_dwordx2 {ar(OA+4*k+2*h,2)}, v{vTA}, {sr(SW)}, s{T3} offen offset:{1024*(k%4)+512*h} sc1') for h in range(2)]
        ol += x; old.append(x[-1])
    XR2 = SP + 8
    xt_ = lambda u: f'buffer_load_dwordx4 {vr(XR2+4*u)}, v{vDG}, {sr(SX)}, s{TX} offen offset:{64*u}'
    xld = [Ins(xt_(u)) for u in range(2)]
    de0 = d_epi(ACCA, 0); st0 = [x for x in de0 if x.kind == 'vmem']; stl = [x for x in l2s if not isinstance(x, tuple) and x.kind == 'vmem']
    ost = [x for x in oe if not isinstance(x, tuple) and x.kind == 'vmem']
    de1a = d_epi(ACCB, 1, (0,)); de1b = d_epi(ACCB, 1, (1,)); st1 = [x for x in de1a + de1b if x.kind == 'vmem']
    for x in st1 + stl: loud.add(id(x)); svc[id(x)] = 3
    fill2 = [(sl, 0, stamp('slot%d' % sl, True)) for sl in range(NSEG1, NS)] + [
        (NSEG1, 0, ofl + [('AT', NSEG1 + 2, 0)] + oe + tsetup + ct3 + [('BY', NSEG1 + 9), ('AT', NSEG1 + 9, 4)] + de0 + [o3ld, ('AT', NSEG1 + 12, 4)] + l2e + [('BY', NSEG1 + 14)]
         + [('AT', NSEG1 + 13, 0), o3chk] + ol),
        (NS - 1, 19, de1a), (NSEG1 + 15, 0, l2s),
        (NSEG1, 1, own)]
    bx2 = {NSEG1 + 2: (ow, []), NSEG1 + 3: (hld[6] + hld[7], [])}
    bx2[NSEG1 + 7] = (ost, setflag(4, vPFS)); bx2[NSEG1 + 15] = (l2w + st0, setflag(5, vPFS)); bx2[NSEG1 + opt.get('l2f', 20)] = (stl, setflag(6, vPFS))
    left = segment(NSEG1, NS, fill2, bx2, first_loads=att_loads[sum(opt.get('na', [0, 4, 6, 10])) // 4:], extra_need=lambda f, mt: bmap[f.b(mt)], pre=lambda: o_epi(3))
    print('left after seg2:', len(left), file=sys.stderr)
    stamp('g2end')
    tq = flat(left) + de1b + xld
    def wo_gemm(P, acc, need_o, bg_=None, ph=None, nd_=4):
        ph = ph or [phys[n] for n in range(NS, NSX)]
        rds = {}
        wwin = [0]
        def rd(n):
            k, dt = divmod(n, nd_)
            w, o = divmod(ph[k // 4] * SLOT, 65536)
            if w != wwin[0]:
                for d in range(4): P('v_add_u32 v%d, 0x%x, v%d' % (vWT[d], ((w - wwin[0]) * 65536) & 0xffffffff, vWT[d]))
                wwin[0] = w
            f = FR + 4 * (n % 8)
            rds[n] = [P('ds_read_b64_tr_b16 %s, v%d offset:%d' % (vr(f + 2 * h, 2), vWT[dt], o + (k % 4) * 4096 + 2048 * h)) for h in range(2)]
        for n in range(7): rd(n)
        for n in range(18 * nd_):
            k, dt = divmod(n, nd_)
            nd = rds[n] + (rds[n + 1] if n % 2 == 0 else []) + ([old[k]] if need_o else [])
            P(Ins('v_mfma_f32_16x16x32_bf16 %s, %s, %s, %s' % (vr(acc + 4 * dt), vr(FR + 4 * (n % 8)), ar(OA + 4 * k), '0' if k == 0 else vr(acc + 4 * dt)), needs=nd))
            if n + 7 < 18 * nd_: rd(n + 7)
            if bg_: bg_(n)
        for d in range(4):
            if wwin[0]: P('v_add_u32 v%d, 0x%x, v%d' % (vWT[d], (-wwin[0] * 65536) & 0xffffffff, vWT[d]))
    def ploads(P, dst, extra=0):
        pl = []
        for p in range(8):
            for u in range(2):
                P(f's_add_u32 s{T3}, s{TP}, 0x{POFF + (p*18+17-u)*8192 - extra:x}')
                pl.append(P(f'buffer_load_dwordx4 {vr(dst+8*p+4*u)}, v{vL16}, {sr(SW)}, s{T3} offen sc1'))
        return pl
    def fmath(P, acc, src0, pl, xr, xl_, imm, bg_=None, nu=2):
        SUM, TT = FR, FR + 16
        for p in range(8):
            for u in range(nu):
                for q in range(4):
                    src = src0 + 8 * p + 4 * u + q; d = SUM + 8 * u + 2 * q
                    P(Ins(f'v_dot2_f32_bf16 v{d}, v{src}, s{LO}, ' + ('0' if p == 0 else f'v{d}'), needs=[pl[nu * p + u]]))
                    P(f'v_dot2_f32_bf16 v{d+1}, v{src}, s{HI}, ' + ('0' if p == 0 else f'v{d+1}'))
                if bg_: bg_(2 * p + u)
        for r in range(0, 8 * nu, 2): P(f'v_pk_mul_f32 {vr(TT+r,2)}, {vr(SUM+r,2)}, {vr(vMX,2)} op_sel:[0,1] op_sel_hi:[1,1]')
        for r in range(8 * nu): P(f'v_exp_f32 v{TT+r}, v{TT+r}')
        for r in range(0, 8 * nu, 2): P(f'v_pk_mul_f32 {vr(acc+r,2)}, {vr(acc+r,2)}, {vr(SUM+r,2)}')
        for r in range(0, 8 * nu, 2): P(f'v_pk_add_f32 {vr(TT+r,2)}, {vr(TT+r,2)}, 1.0 op_sel_hi:[1,0]')
        for r in range(8 * nu): P(f'v_rcp_f32 v{TT+r}, v{TT+r}')
        for r in range(0, 8 * nu, 2): P(f'v_pk_mul_f32 {vr(acc+r,2)}, {vr(acc+r,2)}, {vr(TT+r,2)}')
        for u in range(nu):
            for r in range(4): P(f'v_permlane16_swap_b32 v{acc+8*u+r}, v{acc+8*u+4+r}')
        for u in range(nu):
            for q in range(4):
                d = acc + 8 * u + 2 * q
                P(Ins(f'v_dot2c_f32_bf16 v{d}, s{LO}, v{xr+4*u+q}', needs=[xl_[u]]))
                P(f'v_dot2c_f32_bf16 v{d+1}, s{HI}, v{xr+4*u+q}')
        for u in range(nu):
            for q in range(4): P(cvt(xr + 4 * u + q, acc + 8 * u + 2 * q, acc + 8 * u + 2 * q + 1))
            P(f'buffer_store_dwordx4 {vr(xr+4*u)}, v{vDG}, {sr(SU)}, s{TX} offen offset:{64*u+imm} ' + opt.get('ost', 'sc1'))
    def scale_s(P, acc, nu=2):
        for r in range(0, 8 * nu, 2): P(f'v_pk_mul_f32 {vr(acc+r,2)}, {vr(acc+r,2)}, {vr(vMX,2)} op_sel_hi:[1,0]')
    ftest = [f'v_cmp_le_u32 vcc, s{TV}, v{vPFP}', 's_nop 1', f's_and_b32 s{T2}, vcc_lo, s{TM}', f's_cmp_eq_u32 s{T2}, s{TM}']
    P(Ins('s_barrier', needs=[x for n in range(NS, NSX) for x in slots[n].loads]))
    while tq and any(x in ol for x in tq): P(tq.pop(0))
    P(f's_and_b32 s{T2}, s{J}, 10')
    P(f's_cmp_eq_u32 s{T2}, 10')
    P('s_cbranch_scc1 dbl')
    S = P.fork(); tq2 = [Ins(x.text) for x in tq]
    st2 = [x for x in st1 if x.cnt is not None] + [x for x in tq2 if 'store' in x.op]
    f1 = Ins(fl_t)
    def bgt(n):
        for _ in range(2):
            if tq: P(tq.pop(0))
        if n == opt.get('nf', 48):
            P(Ins('s_barrier', needs=st1))
            P(f1)
            emit_all(setflag(7, vPFS))
    wo_gemm(P, XT, True, bgt)
    assert not tq
    stamp('wo')
    scale_s(P, XT)
    P(Ins(ftest[0], needs=[f1]))
    P('s_nop 1')
    pl = [None] * 16
    porder = opt.get('porder', [7, 6, 5, 4, 0, 1, 2, 3])
    for p in porder:
        chk = [f's_andn2_b32 s{T2}, s{TM}, vcc_lo', f's_and_b32 s{T2}, s{T2}, {3 << (2 * p)}']
        for t_ in chk: P(t_)
        P(f's_cbranch_scc1 fp{p}_slow')
        P.label(f'fp{p}_ok')
        Z = Prog(); Z.label(f'fp{p}_slow'); Z(f's_mov_b32 s{SPN}, 400000'); Z.label(f'fp{p}_loop')
        Z(fl_t); Z('s_waitcnt vmcnt(0)'); Z(ftest[0]); Z(f's_sub_u32 s{SPN}, s{SPN}, 1'); Z(f's_cbranch_scc1 fp{p}_ok')
        for t_ in chk: Z(t_)
        Z(f's_cbranch_scc1 fp{p}_loop'); Z(f's_branch fp{p}_ok'); slow.append(Z.text())
        for u in range(2):
            P(f's_add_u32 s{T3}, s{TP}, 0x{POFF + (p*18+17-u)*8192:x}')
            pl[2 * porder.index(p) + u] = P(f'buffer_load_dwordx4 {vr(ACCA+8*porder.index(p)+4*u)}, v{vL16}, {sr(SW)}, s{T3} offen sc1')
    stamp('poll')
    fmath(P, XT, ACCA, pl, XR2, xld, 0)
    stamp('x1')
    P.label('dbl_e')
    stamp('x2')
    S.label('dbl')
    TP2, TX2, U6 = 96, 97, 98
    S(f'''s_bfe_u32 s{U6}, s{J}, 0x10002
    s_lshl_b32 s{T2}, s{U6}, 9
    s_sub_u32 s{T2}, 640, s{T2}
    s_add_u32 s{TL}, s{TL}, s{T2}
    s_lshl_b32 s{U6}, s{U6}, 6
    s_add_u32 s{T2}, s{T2}, s{U6}
    s_add_u32 s{TX2}, s{TX}, s{T2}
    s_lshl_b32 s{T2}, s{T2}, 7
    s_sub_u32 s{TP2}, s{TP}, s{T2}
    s_mov_b32 s{TM}, 0xffff''')
    ph2 = [x for x in range(9) if x not in [phys[n] for n in range(NS, NSX)]] + [9]
    wq = bunch(flat([slots[NS + n].dma(ph2[n]) for n in range(5)]))
    wl = [x for g in wq for x in g if x.kind == 'vmem']
    def pl_(dst, base, nu): return [II(f's_add_u32 s{T3}, s{base}, 0x{POFF + (p*18+17-u)*8192:x}\nbuffer_load_dwordx4 {vr(dst+8*p+4*u)}, v{vL16}, {sr(SW)}, s{T3} offen sc1') for p in range(8) for u in range(nu)]
    qa = pl_(ACCA, TP, 2); qb = pl_(ACCB, TP2, 1); pa = [g[1] for g in qa]; pb = [g[1] for g in qb]
    x2 = [Ins(f'buffer_load_dwordx4 {vr(SP)}, v{vDG}, {sr(SX)}, s{TX2} offen')]
    mq = wq[:10] + [[d5ld]] + wq[10:] + [x2] + [poll_check('d5', d5ld, ftest) + qa[0]] + qa[1:] + qb
    def pop():
        if mq:
            for x in mq.pop(0):
                if x.kind == 'label': S.out.append(x)
                else: S(x)
    def bgs(n):
        if tq2:
            for _ in range(2):
                if tq2: S(tq2.pop(0))
        elif n % (2 if fdone and len(fdone) > 1 else opt.get('dp', 3)) == 0: pop()
        if n == opt.get('nfd', 28) and not fdone:
            fdone.append(1)
            S(Ins('s_barrier', needs=st2))
            for x in setflag(7, vPFS): S(x)
    fdone = []
    wo_gemm(S, XT, True, bgs)
    for x in flat(stamp('wo', True)): S(x)
    while wl[-1].cnt is None: pop()
    for _ in range(4): pop()
    S(Ins('s_barrier', needs=wl))
    for x in flat(stamp('poll', True)): S(x)
    fdone.append(1)
    for d in range(2): S(f'v_xor_b32 v{vWT[d]}, s{U6}, v{vWT[d]}')
    wo_gemm(S, XT + 16, False, bgs, ph2, 2)
    for x in flat(stamp('x1', True)): S(x)
    scale_s(S, XT)
    fmath(S, XT, ACCA, pa, XR2, [None, None], 0, lambda n: pop())
    assert not mq
    S(f's_mov_b32 s{TX}, s{TX2}')
    scale_s(S, XT + 16, 1)
    fmath(S, XT + 16, ACCB, pb, SP, x2, 0, None, 1)
    S('s_branch dbl_e'); slow.append(S.text())
    if stamps:
      P('s_waitcnt vmcnt(0)')
      stamp('end')
      P('s_waitcnt lgkmcnt(0)')
      P(f's_lshl_b32 s{T2}, s2, 7')
      P(f's_add_u32 s{T2}, s{T2}, 0x{STAMP_OFF:x}')
      if stamps == 'all':
        n = len(ALL)
        P('v_writelane_b32 v%d, s22, %d' % (77 + n // 64, n % 64))
        P(f's_lshl_b32 s{T2}, s2, 9')
        P(f's_add_u32 s{T2}, s{T2}, 0x{STAMP_OFF + (2 << 18):x}')
        P(f's_cmp_eq_u32 s{Wv}, 0')
        P(f's_cselect_b32 s{T2}, s{T2}, 0x{OOB:x}')
        P(f'v_lshlrev_b32 v80, 2, v{vL}')
        P(f'buffer_store_dword v77, v80, {sr(SW)}, s{T2} offen')
        P(f'buffer_store_dword v78, v80, {sr(SW)}, s{T2} offen offset:256')
      else:
        P('s_mov_b32 s%d, s22' % (sTS + len(stamps)))
        P('v_mov_b32 v81, 0')
        for n in range(10):
            P('v_mov_b32 v80, s%d' % (sTS + (n if opt.get('est') else min(n, len(stamps)))))
            P(f'buffer_store_dwordx2 v[80:81], v{vFL}, {sr(SW)}, s{T2} offen offset:{8*n}')
    P.label('K1_end')
    P('s_endpgm')
    print('K1: instrs', len(P.out), 'nops', P.nnop, file=sys.stderr)
    return P.text() + ''.join(reversed(slow))
```

```python
import sys, struct
sys.path.insert(0, 'gen')
from prog import *
from asmlib import STAMP_OFF

HOFF = 0x0000000
POFF = 0
BLK = 110592
KOFF = 0x2400000 + BLK
OOFF = 0x2C00000
ROFF = 0x2F00000
FOFF = 0x2F10000
WSB = 256 << 20
OOB = 0x10000000
NEG = 0xF149F2CA
SCALE = 0.2357022603955158 * 1.4426950408889634
def f2u(x): return struct.unpack('<I', struct.pack('<f', x))[0]

SLOT = 16384
XB = 5 * SLOT
HLONE = 9 * SLOT
RT4 = 155648
RTB = RT4 + 2048
RTC = RT4 + 7680
VRS = 272; LVR = RT4; LKR = LVR + 12 * VRS; LQR = LKR + 3072
NCODE = 84

def vr(b, n=4): return 'v[%d:%d]' % (b, b + n - 1)
def ar(b, n=4): return 'a[%d:%d]' % (b, b + n - 1)
def sr(b, n=4): return 's[%d:%d]' % (b, b + n - 1)
def II(text): return [Ins(l) for l in text.strip().split('\n') if l.strip()]

class Frag:
    def __init__(s, base, imm0, imm1, acc, b, first):
        s.base, s.imm, s.acc, s.b, s.first = base, (imm0, imm1), acc, b, first
class Slot:
    def __init__(s, groups, dma):
        s.groups, s.dma, s.loads = groups, dma, None

def gen_k1(JX=4, stamps=False, opt={}):
    opt = dict(dict(so=5, cls=[0, 0, 8, 8, 26, 26, 30, 30, 38, 38], qc=44, crit=72, svst=2.5, spr=1, nv1=8, hf=47, l2f=18, xs=1, qt=1, gap1=20, svk=5.5), **opt)
    assert JX == 4
    P = Prog()
    SX, SQ, SG, SU, SD, SW, SB, SL = 24, 28, 32, 36, 40, 44, 48, 52
    I, J, Wv, RG, FH, E, Pp, T0, T1, T2, T3, OFF, ST, SPN = range(56, 70)
    W4096, W3072, BP, BL1, BD, SIG = range(70, 76)
    BL2 = 76
    HS, HLN, HL, PS, PLN = range(79, 84)
    C, N0, N1 = 84, 85, 86
    QM, QC, BQ, ONE2, LO, HI, R2, XRO = 87, 91, 92, 93, 94, 95, 96, 97
    KO, KB = 87, 92
    NN = 101
    SH = 75 + 11
    OB, OR, MYF, PF, PFD, DB = 4, 5, 6, 7, 10, 11
    PFP, PFW, J0, DUM = 20, 21, 90, 18
    OUTP = 0
    ROT = 3
    sTS = 12
    vL, vL16 = 1, 2
    vDQ = [3, 4, 5, 6]; vDL2 = 7
    vDP = [8, 9]; vDL1 = 10; vTP = [11, 12]; vTL1 = 13
    vTQ = [14, 15]; vDD = [16, 17, 18, 19]; vTD = [20, 21]; vTL2 = 22
    vQS = [23]; vTB = 24; vRS = 25
    vPFP, vPFS, vHW, vFL, vDG, vOR = 26, 27, 28, 29, 30, 31
    vKM, vKR, vVM, vVR = 3, 4, 5, 6
    QW = 8
    vMX, vMN, vTA, vONES = 14, 15, 23, 25
    XT, QF, FR, ACCA, ACCB, SP = 32, 64, 80, 112, 176, 240
    ALL = ['mf0'] + ['slot%d' % n for n in range(1, 51)] + ['g1end', 'attk', 'att1', 'att2', 'att3', 'attend'] + ['slot%d' % n for n in range(52, 72)] + ['g2end', 'wo', 'poll', 'end']
    JIT = ['setup', 'ln23', 'slot10', 'slot19', 'slot25', 'slot34', 'slot43', 'slot49', 'attk', 'att2', 'slot53', 'slot61', 'slot66', 'slot71', 'g2end']
    def stamp(name, ret=False):
        if opt.get('jit'):
            if name not in JIT: return []
            n = JIT.index(name)
            x = II(f'''s_lshl_b32 s12, s2, 2
            s_add_u32 s12, s12, s{Wv}
            s_lshr_b32 s12, s12, {2 * (n % 2)}
            s_add_u32 s12, s12, {n * 7919 + opt['jit']}
            s_mul_i32 s12, s12, 0x9e3779b1
            s_lshr_b32 s12, s12, 29
            s_sub_u32 s12, s12, 4
            s_cbranch_scc1 jit{n}_e''') + [Ins(f'jit{n}:')] + II(f's_sleep 40\ns_sub_u32 s12, s12, 1\ns_cbranch_scc0 jit{n}') + [Ins(f'jit{n}_e:')]
            if ret: return [x]
            for y in x:
                if y.kind == 'label': P.out.append(y)
                else: P(y)
            return []
        if stamps == 'all':
            if name not in ALL: return []
            n = ALL.index(name)
            x = [Ins('v_writelane_b32 v%d, s22, %d' % (77 + n // 64, n % 64)), Ins('s_memtime s[22:23]')]
            if ret: return [x]
            for y in x: P(y)
            return []
        if stamps and name in stamps:
            n = stamps.index(name)
            x = [Ins('s_mov_b32 s%d, s22' % (sTS + n)), Ins('s_memrealtime s[22:23]')]
            if ret: return [x]
            for y in x: P(y)
        return []
    def breg(pos, mt):
        i = pos * 4 + mt
        return ar(4 * i) if i < 64 else vr(XT + 4 * (i - 64))
    def emit_all(lst):
        for x in lst:
            if isinstance(x, list): emit_all(x)
            elif x.kind == 'label': P.out.append(x)
            else: P(x)
    lg = lambda x: x.bit_length() - 1
    ng = 16 // JX

    P('s_cmp_ge_u32 s2, 256')
    P('s_cbranch_scc1 K1_end')
    P('s_load_dwordx16 s[4:19], s[0:1], 0')
    P('s_load_dwordx4 s[20:23], s[0:1], 64')
    if stamps: P('s_memtime s[84:85]' if stamps == 'all' else 's_memrealtime s[84:85]')
    def code_touch():
        P('s_getpc_b64 %s' % sr(SL, 2))
        P.label('K1_pc')
        P(f'''s_mov_b32 s{SL+2}, code_end-K1_pc
        s_mov_b32 s{SL+3}, 0x00020000
        s_lshr_b32 s{SPN}, s2, 3
        s_and_b32 s{SPN}, s{SPN}, 7
        s_mul_i32 s{SPN}, s{SPN}, {NCODE*128}
        v_lshlrev_b32 v80, 7, v0
        v_mov_b32 v89, 0x{OOB:x}
        v_cmp_gt_u32 vcc, {NCODE}, v0
        v_cndmask_b32 v80, v89, v80, vcc
        buffer_load_dword v79, v80, {sr(SL)}, s{SPN} offen''')
    if opt.get('ct0'):
        P('s_getpc_b64 %s' % sr(SL, 2))
        P(f'''s_mov_b32 s{SL+2}, {opt['ct0']*128}
        s_mov_b32 s{SL+3}, 0x00020000
        v_lshlrev_b32 v80, 7, v0
        buffer_load_dword v79, v80, {sr(SL)}, 0 offen''')
    if not opt.get('ctlate', 0): code_touch()
    P(f'''s_lshr_b32 s{NN}, s2, 3
    v_mov_b32 v89, 0x{OOB:x}
    v_and_b32 v{vL}, 63, v0
    v_lshrrev_b32 v80, 6, v0
    v_readfirstlane_b32 s{Wv}, v80
    s_and_b32 s{T0}, s2, 7
    s_and_b32 s{J}, s{T0}, {ng-1}
    s_lshl_b32 s{J}, s{J}, {lg(JX)}
    s_and_b32 s{T2}, s{NN}, {JX-1}
    s_or_b32 s{J}, s{J}, s{T2}
    s_lshr_b32 s{I}, s{T0}, {lg(ng)}
    s_lshl_b32 s{I}, s{I}, {lg(32//JX)}
    s_lshr_b32 s{T2}, s{NN}, {lg(JX)}
    s_or_b32 s{I}, s{I}, s{T2}
    s_and_b32 s{RG}, s{Wv}, 1
    s_lshr_b32 s{FH}, s{Wv}, 1
    s_and_b32 s{E}, s{J}, 1
    s_lshr_b32 s{Pp}, s{J}, 1
    s_and_b32 s{ROT}, s{J}, {min(JX-1, 3)}
    v_lshrrev_b32 v82, 3, v{vL}
    v_and_b32 v83, 7, v{vL}
    v_mul_u32_u24 v100, 1152, v82
    v_lshl_add_u32 v100, v83, 4, v100
    s_lshl_b32 s{T0}, s{I}, 3
    s_lshl_b32 s{T1}, s{RG}, 2
    s_add_u32 s{T0}, s{T0}, s{T1}
    s_add_u32 s{T1}, s{T0}, s{FH}
    s_mul_i32 s{T1}, s{T1}, {16*1152}''')
    if JX == 2: P(f's_lshl_b32 s{ROT}, s{ROT}, 1')
    def xro(blk):
        P(f'''s_xor_b32 s{T2}, s{ROT}, {blk}
        s_and_b32 s{T3}, s{T2}, 1
        s_lshl_b32 s{T3}, s{T3}, 3
        s_and_b32 s{T2}, s{T2}, 2
        s_lshl_b32 s{T2}, s{T2}, 4
        s_or_b32 s{XRO+blk}, s{T2}, s{T3}''')
    xro(0)
    if opt.get('est'): P('s_memrealtime s[76:77]')
    P('s_waitcnt lgkmcnt(0)')
    if opt.get('est'): P('s_memrealtime s[78:79]')
    def srd(d, b, nbytes, shift=0):
        if shift:
            P('s_sub_u32 s%d, s%d, %d' % (d, b, shift))
            P('s_subb_u32 s%d, s%d, 0' % (d + 1, b + 1))
        else:
            P('s_mov_b32 s%d, s%d' % (d, b))
            P('s_mov_b32 s%d, s%d' % (d + 1, b + 1))
        P('s_mov_b32 s%d, 0x%x' % (d + 2, nbytes + shift))
        P('s_mov_b32 s%d, 0x00020000' % (d + 3))
    srd(SX, 4, 2048 * 1152)
    XR = 112
    xl = []
    def xload(blk):
        ld = [Ins('buffer_load_dwordx4 %s, v100, %s, s%d offen offset:%d' % (vr(XR + 36 * blk + 4 * l), sr(SX), OFF, 128 * l)) for l in range(9)]
        xl.append(ld)
        return [II(f's_mul_i32 s{OFF}, s{XRO+blk}, 1152\ns_add_u32 s{OFF}, s{OFF}, s{T1}')] + [[x] for x in ld]
    if opt.get('xt'):
        P(f'''s_lshl_b32 s{T2}, s{I}, 4
        s_add_u32 s{T2}, s{T2}, s{J}
        s_lshl_b32 s{T2}, s{T2}, 2
        s_add_u32 s{T2}, s{T2}, s{Wv}
        s_mul_i32 s{T2}, s{T2}, 2304
        v_min_u32 v80, 17, v{vL}
        v_lshlrev_b32 v80, 7, v80
        buffer_load_dword v79, v80, {sr(SX)}, s{T2} offen''')
    emit_all(xload(0))
    if opt.get('ctlate', 0): code_touch()
    if opt.get('est'): P('s_memrealtime s[80:81]')
    if opt.get('est') == 2:
        P('s_waitcnt vmcnt(8)')
        P('s_memrealtime s[82:83]')
        P('s_waitcnt vmcnt(0)')
        P('s_memrealtime s[86:87]')
    for blk in range(1, 4): xro(blk)
    srd(SQ, 6, 576 * 3456, shift=2048)
    RS = 36 // JX
    NT = ' nt' if opt.get('nt') else ''
    P(f'''s_and_b32 s{J0}, s{J}, {16-JX}
    s_and_b32 s{SH}, s2, 7
    s_lshr_b32 s{SH}, s{SH}, {lg(ng)}
    s_lshl_b32 s{SH}, s{SH}, 5
    s_add_u32 s{SH}, s{SH}, s{NN}
    v_lshrrev_b32 v86, {lg(2*JX)}, v0
    v_and_b32 v87, {2*JX-1}, v0
    v_mul_u32_u24 v88, 3456, v86
    v_lshl_add_u32 v87, v87, 7, v88
    v_cmp_gt_u32 vcc, {RS}, v86
    v_cndmask_b32 v87, v89, v87, vcc
    s_mul_i32 s{ST}, s{SH}, {RS*3456}
    s_lshl_b32 s{T2}, s{J0}, 8
    s_add_u32 s{BL2}, s{ST}, s{T2}
    v_mov_b32 v104, v87''')
    qtouch = [Ins(f'buffer_load_dword v79, v104, {sr(SQ)}, s{BL2} offen offset:2048' + NT)]

    srd(SG, 12, 576 * 9216)
    srd(SU, 14, 576 * 9216, shift=2048)
    srd(SD, 16, 4608 * 1152, shift=2048)
    srd(SW, 22, WSB)
    srd(SB, 20, 256)
    P(f's_mov_b64 {sr(OUTP,2)}, s[18:19]')
    P(f'''s_cmp_ge_u32 s{Wv}, 2
    s_cselect_b32 s{SL}, s14, s12
    s_cselect_b32 s{SL+1}, s15, s13
    s_mov_b32 s{SL+2}, 0x{576*9216:x}
    s_mov_b32 s{SL+3}, 0x00020000
    s_mul_i32 s{PFP}, s{SH}, {RS*9216}
    s_mul_i32 s{T2}, s{RG}, {1152 if JX == 4 else 9*9216}
    s_add_u32 s{PFP}, s{PFP}, s{T2}
    s_mul_i32 s{T2}, s{J0}, 576
    s_add_u32 s{PFP}, s{PFP}, s{T2}''')
    if stamps: P('s_mov_b64 s[22:23], s[84:85]')
    P(f'''s_lshl_b32 s{W4096}, s{Wv}, 12
    s_lshl_b32 s{BQ}, s{J}, 8
    s_mul_i32 s{T2}, s{Wv}, {16*3456}
    s_add_u32 s{BQ}, s{BQ}, s{T2}
    s_cmp_ge_u32 s{J}, 14
    s_cselect_b32 s{BQ}, 0x{OOB:x}, s{BQ}
    s_mov_b32 s{ONE2}, 0x3f803f80
    s_mov_b32 s{LO}, 0x00003f80
    s_mov_b32 s{HI}, 0x3f800000
    v_lshrrev_b32 v84, 4, v{vL}
    v_and_b32 v85, 15, v{vL}
    v_cmp_eq_u32 vcc, 0, v0
    v_cndmask_b32 v{vFL}, v89, 0, vcc
    v_lshlrev_b32 v86, 1, v82
    v_and_b32 v86, 4, v86
    v_xor_b32 v86, v83, v86
    v_mul_u32_u24 v87, 9216, v82
    v_lshl_add_u32 v{vDP[0]}, v86, 4, v87
    v_mul_u32_u24 v88, 3456, v82
    v_lshl_add_u32 v90, v86, 4, v88
    v_add_u32 v{vDQ[0]}, 2048, v90
    v_add_u32 v{vDQ[2]}, 128, v90
    v_xor_b32 v86, 2, v86
    v_lshl_add_u32 v{vDP[1]}, v86, 4, v87
    v_add_u32 v{vDP[1]}, {8*9216-1024}, v{vDP[1]}
    v_lshl_add_u32 v90, v86, 4, v88
    v_add_u32 v{vDQ[1]}, {8*3456-1024+2048}, v90
    v_add_u32 v{vDQ[3]}, {8*3456-1024+128}, v90
    s_lshl_b32 s{SIG}, s{E}, 1
    s_sub_u32 s{SIG}, 1, s{SIG}
    s_mul_i32 s{BP}, s{Pp}, 1152
    s_lshl_b32 s{T3}, s{E}, 10
    s_add_u32 s{BP}, s{BP}, s{T3}
    s_mul_i32 s{T3}, s{Wv}, {16*9216}
    s_add_u32 s{BP}, s{BP}, s{T3}
    v_and_b32 v87, 3, v{vL}
    v_lshrrev_b32 v86, 2, v85
    v_and_b32 v88, 1, v84
    v_lshrrev_b32 v92, 1, v84
    v_lshlrev_b32 v90, 12, v92
    v_lshl_add_u32 v90, v88, 10, v90
    v_lshl_add_u32 v90, v86, 7, v90
    v_lshrrev_b32 v91, 1, v86
    v_xor_b32 v91, s{FH}, v91
    v_lshl_add_u32 v90, v91, 6, v90
    v_lshl_add_u32 v90, v88, 5, v90
    v_lshl_add_u32 v{vTQ[0]}, v87, 3, v90
    v_xor_b32 v{vTQ[1]}, 32, v{vTQ[0]}
    s_lshl_b32 s{T2}, s{E}, 6
    v_xor_b32 v{vTP[0]}, s{T2}, v{vTQ[0]}
    v_xor_b32 v{vTP[1]}, s{T2}, v{vTQ[1]}
    s_mul_i32 s{ST}, s{RG}, {2*18432}
    s_add_u32 s{ST}, s{ST}, {XB}
    v_xor_b32 v90, v85, v84
    v_lshlrev_b32 v90, 4, v90
    v_lshl_add_u32 v90, v84, 8, v90
    v_add_u32 v65, s{ST}, v90
    v_xor_b32 v66, 64, v65
    s_mul_i32 s{T2}, s{FH}, 18432
    s_add_u32 s{ST}, s{ST}, s{T2}
    s_and_b32 s{T2}, s{XRO}, 8
    s_lshl_b32 s{T2}, s{T2}, 4
    s_add_u32 s{ST}, s{ST}, s{T2}
    v_xor_b32 v90, v82, v83
    v_lshlrev_b32 v90, 4, v90
    v_lshl_add_u32 v90, v83, 8, v90
    v_add_u32 v64, s{ST}, v90
    v_xor_b32 v76, 128, v64
    s_lshl_b32 s{T2}, s{RG}, 6
    s_lshl_b32 s{T3}, s{FH}, 4
    s_add_u32 s{T2}, s{T2}, s{T3}
    v_add_u32 v67, s{T2}, v82''')
    def G(text): return [II(text)]
    P(f'''s_lshl_b32 s{T2}, s{I}, 4
    s_add_u32 s{T2}, s{T2}, s{J}
    s_lshl_b32 s{MYF}, s{T2}, 7
    s_add_u32 s{MYF}, s{MYF}, 0x{FOFF:x}
    s_lshl_b32 s{DB}, s{I}, 2
    s_lshl_b32 s{T2}, 1, s{J}
    v_mov_b32 v105, s{T2}
    v_mov_b32 v86, 0''')
    freset = P(f'buffer_store_dword v86, v{vFL}, {sr(SW)}, s{MYF} offen sc1')
    fatom = Ins(f'buffer_atomic_or v105, v{vFL}, {sr(SB)}, s{DB} offen offset:8', needs=[freset])
    late0 = II(f'''s_mul_i32 s{W3072}, s{Wv}, 3072
    s_lshl_b32 s{T2}, s{I}, 4
    s_add_u32 s{T2}, s{T2}, s{J}
    v_mov_b32 v207, 0
    s_xor_b32 s{PF}, s{MYF}, 128
    s_mul_i32 s{HS}, s{T2}, {9*8192}
    s_xor_b32 s{T2}, s{T2}, 1
    s_mul_i32 s{HL}, s{T2}, {9*8192}
    s_lshl_b32 s{T2}, s{RG}, 12
    s_add_u32 s{HS}, s{HS}, s{T2}
    s_lshl_b32 s{T3}, s{FH}, 11
    s_add_u32 s{HLN}, s{HS}, s{T3}
    s_add_u32 s{HLN}, s{HLN}, {8*8192}
    s_add_u32 s{HL}, s{HL}, s{T2}
    s_lshl_b32 s{T3}, s{FH}, 13
    s_add_u32 s{HS}, s{HS}, s{T3}
    s_mul_i32 s{BL1}, s{Pp}, 1152
    s_lshl_b32 s{T2}, s{E}, 6
    s_add_u32 s{T2}, s{T2}, 512
    s_add_u32 s{BL1}, s{BL1}, s{T2}
    s_mul_i32 s{T3}, s{RG}, {48*9216}
    s_add_u32 s{BL1}, s{BL1}, s{T3}''')
    late0b = II(f'''s_lshl_b32 s{T2}, s{RG}, 12
    s_lshl_b32 s{T3}, s{I}, 3
    s_add_u32 s{T3}, s{T3}, s{Pp}
    s_mul_i32 s{PS}, s{T3}, {18*8192}
    s_add_u32 s{PS}, s{PS}, s{T2}
    s_add_u32 s{PS}, s{PS}, 0x{POFF:x}
    s_sub_u32 s{T3}, 9, s{E}
    s_lshl_b32 s{T3}, s{T3}, 13
    s_add_u32 s{PLN}, s{PS}, s{T3}
    s_lshl_b32 s{T3}, s{FH}, 11
    s_xor_b32 s{T3}, s{T3}, s{ROT}
    s_add_u32 s{PLN}, s{PLN}, s{T3}
    s_add_u32 s{PS}, s{PS}, s{ROT}
    s_mul_i32 s{T3}, s{E}, 10
    s_add_u32 s{T3}, s{T3}, s{FH}
    s_sub_u32 s{T3}, 17, s{T3}
    s_lshl_b32 s{T3}, s{T3}, 13
    s_add_u32 s{PS}, s{PS}, s{T3}
    s_lshl_b32 s{T2}, s{E}, 6
    s_add_u32 s{T2}, s{T2}, 512
    s_mul_i32 s{T1}, s{Pp}, {576*1152}
    s_mul_i32 s{T3}, s{E}, {17*32*1152}
    s_add_u32 s{T1}, s{T1}, s{T3}
    s_mul_i32 s{BD}, s{E}, 640
    s_add_u32 s{BD}, s{BD}, s{T1}
    s_mul_i32 s{T3}, s{FH}, s{SIG}
    s_mul_i32 s{T3}, s{T3}, {32*1152}
    s_add_u32 s{BD}, s{BD}, s{T3}
    s_mul_i32 s{T3}, s{RG}, {16*1152}
    s_add_u32 s{BD}, s{BD}, s{T3}
    s_add_u32 s{T1}, s{T1}, s{T2}''')
    for t in range(3):
        late0b += II(f'''s_mul_i32 s{T2}, s{Wv}, 3
        s_add_u32 s{T2}, s{T2}, {t}
        s_lshr_b32 s{T3}, s{T2}, 1
        s_mul_i32 s{T3}, s{T3}, s{SIG}
        s_mul_i32 s{T3}, s{T3}, {32*1152}
        s_add_u32 s{BL2+t}, s{T1}, s{T3}
        s_and_b32 s{T2}, s{T2}, 1
        s_mul_i32 s{T2}, s{T2}, {16*1152}
        s_add_u32 s{BL2+t}, s{BL2+t}, s{T2}
        s_add_u32 s{BL2+t}, s{BL2+t}, {2048-1024*t}''')
    late0 += II(f'''s_mul_i32 s{T2}, s{T0}, {BLK//2}
    s_lshl_b32 s{T3}, s{J}, 13
    s_add_u32 s{T2}, s{T2}, s{T3}
    s_lshl_b32 s{T3}, s{FH}, 11
    s_add_u32 s{T2}, s{T2}, s{T3}
    s_add_u32 s{T2}, s{T2}, 0x{KOFF:x}
    s_and_b32 s{ROT}, s{ROT}, 2
    s_mul_i32 s{T3}, s{ROT}, {BLK//2}
    s_add_u32 s{T2}, s{T2}, s{T3}
    s_sub_u32 s{QM+2}, 1, s{ROT}
    s_mul_i32 s{QM+2}, s{QM+2}, {BLK}
    s_lshl_b32 s{ROT}, s{ROT}, 10
    s_movk_i32 s{QC}, 4096''')
    late0 += G(f's_cmp_ge_u32 s{J}, 14\ns_cselect_b32 s{QM}, 0x{2*OOB:x}, s{T2}')
    late0 += G(f's_cmp_eq_u32 s{J}, 13\ns_cselect_b32 s{QC}, 0x{OOB:x}, s{QC}')
    late0b += II(f'''s_lshl_b32 s{T2}, s{FH}, 1
    s_add_u32 s{T2}, s{T2}, s{T0}
    s_mul_i32 s{OB}, s{T2}, 18432
    s_lshl_b32 s{T2}, s{J}, 10
    s_add_u32 s{OB}, s{OB}, s{T2}
    s_add_u32 s{OB}, s{OB}, 0x{OOFF:x}
    s_mul_i32 s{OR}, s{I}, {8*18432}
    s_lshl_b32 s{T2}, s{J}, 7
    s_add_u32 s{OR}, s{OR}, s{T2}
    s_add_u32 s{OR}, s{OR}, 0x{OOFF+16384:x}''')
    late0b += G(f's_cmp_eq_u32 s{Wv}, 0\ns_cselect_b32 s{OR}, s{OR}, 0x{OOB:x}')
    late0b += II(f'''s_mov_b32 s{C}, 0x{f2u(SCALE):x}''')
    late0b += G(f's_cmp_lt_u32 s{I}, 2\ns_cselect_b32 s{N0}, 0xffff, 0') + G(f's_cmp_lt_u32 s{I}, 1\ns_cselect_b32 s{N1}, 0xffff, 0')
    late0 += II(f'''s_mul_i32 s{PFD}, s{J0}, {288*1152}
    s_mul_i32 s{T2}, s{SH}, {162*128}
    s_add_u32 s{PFD}, s{PFD}, s{T2}
    s_mul_i32 s{T2}, s{Wv}, {41*128}
    s_add_u32 s{PFD}, s{PFD}, s{T2}''')
    late0 += II(f'''v_lshlrev_b32 v{vL16}, 4, v{vL}
    v_lshrrev_b32 v182, 3, v{vL}
    v_and_b32 v183, 7, v{vL}
    v_lshrrev_b32 v184, 4, v{vL}
    v_and_b32 v185, 15, v{vL}
    v_and_b32 v186, 6, v182
    v_xor_b32 v186, v183, v186
    v_mul_u32_u24 v187, 1152, v182
    v_lshl_add_u32 v187, v186, 4, v187''')
    for t in range(4):
        late0 += II('v_add_u32 v%d, %d, v187' % (vDD[t], (t & 1) * (8 * 1152 - 1024) + (t >> 1) * (128 - 2048) + 2048))
    late0 += II(f'''v_lshrrev_b32 v186, 2, v{vL}
    v_and_b32 v187, 3, v{vL}
    v_and_b32 v188, 2, v184
    v_xor_b32 v188, v187, v188
    v_mul_u32_u24 v190, 9216, v186
    v_lshl_add_u32 v{vDL1}, v188, 4, v190
    v_and_b32 v188, 1, v184
    v_lshlrev_b32 v188, 1, v188
    v_xor_b32 v188, v187, v188
    v_mul_u32_u24 v190, 1152, v186
    v_lshl_add_u32 v{vDL2}, v188, 4, v190
    v_lshrrev_b32 v186, 2, v185
    v_and_b32 v188, 1, v184
    v_lshrrev_b32 v192, 1, v184
    v_lshl_add_u32 v190, v184, 3, v186
    v_lshlrev_b32 v190, 6, v190
    v_xor_b32 v191, s{FH}, v188
    v_lshl_add_u32 v190, v191, 5, v190
    v_lshl_add_u32 v{vTL1}, v187, 3, v190
    v_lshl_add_u32 v190, v184, 2, v186
    v_lshlrev_b32 v190, 6, v190
    v_lshl_add_u32 v190, v191, 5, v190
    v_lshl_add_u32 v{vTL2}, v187, 3, v190
    v_lshl_add_u32 v190, v188, 2, v186
    v_lshrrev_b32 v191, 1, v190
    s_lshl_b32 s{T2}, s{FH}, 1
    v_xor_b32 v191, s{T2}, v191
    v_lshlrev_b32 v190, 7, v190
    v_lshl_add_u32 v190, v192, 10, v190
    v_lshl_add_u32 v190, v191, 5, v190
    v_lshl_add_u32 v{vTD[0]}, v187, 3, v190
    v_xor_b32 v{vTD[1]}, 32, v{vTD[0]}
    v_mov_b32 v189, 0x{OOB:x}
    v_cmp_eq_u32 vcc, 0, v184
    v_lshlrev_b32 v190, 2, v184
    v_sub_u32 v{vDG}, v190, v185
    v_cndmask_b32 v{vOR}, v189, v{vL16}, vcc
    s_lshl_b32 s{T2}, s{RG}, 12
    v_add_u32 v{vHW}, s{T2}, v{vL16}''')
    late0 += G(f's_cmp_ge_u32 s{J}, 9\ns_cselect_b64 vcc, -1, 0')
    late0 += II(f'''v_lshlrev_b32 v191, 6, v185
    v_lshl_add_u32 v191, v184, 4, v191
    v_cndmask_b32 v{vQS[0]}, v{vL16}, v191, vcc
    v_lshlrev_b32 v190, 4, v185
    v_add_u32 v190, {RT4}, v190
    v_lshlrev_b32 v191, 4, v184
    v_add_u32 v191, {RTB}, v191
    v_cndmask_b32 v190, v190, v191, vcc
    s_lshl_b32 s{T2}, s{RG}, 10
    v_add_u32 v{vRS}, s{T2}, v190''')

    slots = []
    def dma4(srds, voffs, sbase, add, sadd=0, bump=None, pre=''):
        def f(rp):
            if bump is not None:
                g = [II((bump + '\n' if bump else '') + f's_add_u32 s{OFF}, s{sbase}, {add}\ns_add_u32 m0, s{W4096}, {rp*SLOT}')]
            elif sadd and not add:
                g = [II(pre + f's_mul_i32 s{OFF}, s{SIG}, {sadd}\ns_add_u32 s{OFF}, s{OFF}, s{sbase}\ns_add_u32 m0, s{W4096}, {rp*SLOT}')]
            elif sadd:
                g = [II(f's_mul_i32 s{OFF}, s{SIG}, {sadd}\ns_add_u32 s{OFF}, s{OFF}, s{sbase}'),
                     II(f's_add_u32 s{OFF}, s{OFF}, {add}\ns_add_u32 m0, s{W4096}, {rp*SLOT}')]
            else:
                g = [II(f's_add_u32 s{OFF}, s{sbase}, {add}\ns_add_u32 m0, s{W4096}, {rp*SLOT}')]
            for t in range(4):
                g.append([Ins('buffer_load_dwordx4 v%d, %s, s%d offen offset:%d lds' % (voffs[t], sr(srds[t]), OFF, 1024 * t))])
            return g
        return f
    def dma_l1(s):
        def f(rp):
            g = []
            for t in range(3):
                pre = II(f's_add_u32 s{OFF}, s{BL1}, {s*96*9216 + t*(16*9216-1024)}')
                if t == 0: pre += II(f's_add_u32 m0, s{W3072}, {rp*SLOT}')
                g.append(pre)
                g.append(II(f'buffer_load_dwordx4 v{vDL1}, {sr(SL)}, s{OFF} offen offset:{1024*t} lds'))
            return g
        return f
    def dma_l2(s):
        def f(rp):
            g = [II(f's_add_u32 m0, s{W3072}, {rp*SLOT}')]
            for t in range(3):
                g.append(II(f's_mul_i32 s{OFF}, s{SIG}, {s*192*1152}\ns_add_u32 s{OFF}, s{OFF}, s{BL2+t}'))
                g.append(II(f'buffer_load_dwordx4 v{vDL2}, {sr(SD)}, s{OFF} offen offset:{1024*t} lds'))
            return g
        return f
    def regroup(gs):
        if not opt.get('rg', 1): return gs
        fl = [f for g in gs for f in g]
        return [fl[n:n + 2] for n in range(0, 6, 2)]
    def accf(base, tile): return lambda mt: base + (tile * 4 + mt) * 4
    def bf(pos): return lambda mt: breg(pos, mt)
    def pairlike(vT, acc, s):
        return [[Frag(vT[ft], ks * 8192 + m * 2048, ks * 8192 + m * 2048 + 512, accf(acc, 2 * m + ft), bf(2 * s + ks), s == 0 and ks == 0) for ks in range(2)] for m in range(2) for ft in range(2)]
    for s in range(9):
        slots.append(Slot(pairlike(vTQ, ACCA, s), dma4([SQ] * 4, vDQ, BQ, s * 64 * 3456)))
    PACC = [ACCB, ACCB, ACCA, ACCB]
    def pstep(q):
        for s in range(9):
            slots.append(Slot(pairlike(vTP, PACC[q], s), dma4([SG, SG, SU, SU], [vDP[0], vDP[1], vDP[0], vDP[1]], BP, s * 64 * 9216, bump=(f's_lshl_b32 s{OFF}, s{SIG}, 7\ns_add_u32 s{BP}, s{BP}, s{OFF}' if s == 0 and q else ''))))
    pstep(0)
    for s in range(6):
        gs = [[Frag(vTL1, m * 6144 + ks * 2048, m * 6144 + ks * 2048 + 256, accf(ACCA, m), bf(3 * s + ks), s == 0 and ks == 0) for ks in range(3)] for m in range(2)]
        slots.append(Slot(regroup(gs), dma_l1(s)))
    pstep(1); pstep(2); pstep(3)
    NSEG1 = len(slots)
    hpos = {}
    for n, k in enumerate([6, 7, 11, 10]): hpos[k] = n
    for n, k in enumerate([0, 1, 2, 3, 4, 5, 16, 17, 14, 15, 12, 13, 9, 8]): hpos[k] = 4 + n
    lorder = [8, 7, 6, 0, 1, 2, 4, 3, 5]
    def dstep(q):
        acc = ACCA
        for n, ln in enumerate(lorder):
            gs = [[Frag(vTD[ft], ks * 8192 + c * 2048, ks * 8192 + c * 2048 + 4096, accf(acc, 2 * c + ft), bf(hpos[2 * ln + ks]), n == 0 and ks == 0) for ks in range(2)] for c in range(2) for ft in range(2)]
            slots.append(Slot(gs, dma4([SD] * 4, vDD, BD, 0, ln * 64 * 1152, pre=(f's_add_u32 s{BD}, s{BD}, 256\n' if q and n == 0 else ''))))
    dstep(0)
    for s in range(3):
        gs = [[Frag(vTL2, ks * 2048, ks * 2048 + 1024, accf(SP, 0), bf(hpos[6 * s + ks]), s == 0 and ks == 0) for ks in range(3 * hg, 3 * hg + 3)] for hg in range(2)]
        slots.append(Slot(regroup(gs), dma_l2(s)))
    n0 = len(slots); dstep(1)
    for sl in slots[n0:]:
        for g in sl.groups:
            for f in g: f.acc = (lambda old: (lambda mt: old(mt) + (ACCB - ACCA)))(f.acc)
    NS = len(slots)
    vWD = [3, 4, 5, 6]; vWD2 = 8; vWT = [9, 10, 11, 12]; vPL = 13
    TL, TP, TX, TM, TV, OL, FB = 87, 88, 89, 90, 91, 92, 93
    for s in range(4): slots.append(Slot([], dma4([SG] * 4, vWD, TL, s * 4 * 36 * 1152)))
    def dma_w2(rp):
        return [II(f's_mul_i32 s{OFF}, s{Wv}, {(144-36)*1152}\ns_add_u32 s{OFF}, s{OFF}, s{TL}\ns_lshr_b32 m0, s{W4096}, 1\ns_add_u32 m0, m0, {rp*SLOT}'),
                II(f'buffer_load_dwordx4 v{vWD2}, {sr(SG)}, s{OFF} offen lds'), II(f's_add_u32 s{OFF}, s{OFF}, {72*1152-1024}'),
                II(f'buffer_load_dwordx4 v{vWD2}, {sr(SG)}, s{OFF} offen offset:1024 lds')]
    slots.append(Slot([], dma_w2))
    NSX = len(slots)
    phys = {n: n for n in range(9)}; load_at = {}; hphys = {}
    nxt = 9
    divert = {18: 0, 33: 1, 42: 2, 50: 3}
    for n in range(2, NSEG1):
        if n in divert: hphys[divert[n]] = phys[n - 2]
        else: phys[nxt] = phys[n - 2]; load_at[n] = nxt; nxt += 1
    att_loads = []
    for f in [phys[NSEG1 - 2], phys[NSEG1 - 1], hphys[0], hphys[1], hphys[2]]:
        phys[nxt] = f; att_loads.append(nxt); nxt += 1
    extra_loads = {}
    for n in range(NSEG1 + 2, NS):
        q = n - (NSEG1 + 2)
        if q == 1: phys[nxt] = hphys[3]; extra_loads[n] = [nxt]; nxt += 1
        if nxt < NSX: phys[nxt] = phys[n - 2]; load_at[n] = nxt; nxt += 1
    assert nxt == NSX
    def dma_groups(n):
        g = slots[n].dma(phys[n])
        slots[n].loads = [x for grp in g for x in grp if x.kind == 'vmem']
        return g

    SV = opt.get('sv', 4.75)
    loud = set(); svc = {}
    def T(text, q=56):
        x = Ins(text); loud.add(id(x)); svc[id(x)] = q; return x
    VLS = opt.get('vls', [[0, 8, 4, 1, 7], [2, 6, 3, 5]])
    def pf_gu(VL, t0, msk, q=0):
        nl = len(VL); tab = sum(l << (4 * n) for n, l in enumerate(VL)); a_, b_, c_ = t0, t0 + 1, t0 + 2
        return II(f'''v_mul_u32_u24 v{b_}, {65536//nl+1}, v{vL}
        v_lshrrev_b32 v{b_}, 16, v{b_}
        v_cmp_gt_u32 {msk}, 9, v{b_}
        v_mul_u32_u24 v{a_}, {4*nl}, v{b_}
        v_lshlrev_b32 v{c_}, 2, v{vL}
        v_sub_u32 v{a_}, v{c_}, v{a_}
        v_mov_b32 v{c_}, 0x{tab:x}
        v_bfe_u32 v{a_}, v{c_}, v{a_}, 4
        v_mul_u32_u24 v{b_}, 9216, v{b_}
        v_lshl_add_u32 v{b_}, v{a_}, 7, v{b_}
        v_mov_b32 v{a_}, 0x{OOB:x}
        v_cndmask_b32 v{b_}, v{a_}, v{b_}, {msk}''') + [T(f'buffer_load_dword v0, v{b_}, {sr(SL)}, s{PFP} offen' + NT, q)]
    if opt.get('walk', 1):
        P('s_mov_b64 exec, 0')
        for w in range(3):
            P(f's_cmp_eq_u32 s{Wv}, {w}')
            P(f's_cbranch_scc1 LAND{w}')
        P('s_branch LAND3')
        P.label('WALK_END')
        P('s_mov_b64 exec, -1')
    emit_all(xload(1))
    stamp('setup')
    if opt.get('est'):
        P('s_waitcnt lgkmcnt(0)')
        for n, r in enumerate((76, 78, 80, 82, 86)): P('s_mov_b32 s%d, s%d' % (sTS + 5 + n, r))

    NPRE = opt.get('npre', 5)
    GU2 = 0
    gA, gB = pf_gu(VLS[0], 106, 's[78:79]'), pf_gu(VLS[1], 106, 's[78:79]')
    if opt.get('tlb'):
        qtouch = qtouch + II(f'''v_lshlrev_b32 v106, 21, v0
        v_min_u32 v107, 24, v0
        v_lshlrev_b32 v107, 21, v107
        buffer_load_dword v0, v107, {sr(SW)}, 0 offen sc1
        buffer_load_dword v79, v106, {sr(SD)}, 0 offen offset:2048
        buffer_load_dword v79, v106, {sr(SG)}, 0 offen
        buffer_load_dword v79, v106, {sr(SU)}, 0 offen offset:2048
        s_mov_b32 s80, s{OUTP}
        s_mov_b32 s81, s{OUTP+1}
        s_mov_b32 s82, 0x{2048*1152:x}
        s_mov_b32 s83, 0x00020000
        buffer_load_dword v79, v106, s[80:83], 0 offen sc1
        s_mov_b32 s80, s8
        s_mov_b32 s81, s9
        s_mov_b32 s82, 0x{576*1152:x}
        buffer_load_dword v79, v106, s[80:83], 0 offen''')
    dm0 = [g for n in range(NPRE) for g in dma_groups(n)]
    if opt.get('so', 0) == 0:
        bg = [('GAP', 30)] + xload(2) + xload(3) + [qtouch, ('GAP', 150)] + dm0 + [gA, gB, [fatom]]
    elif opt.get('so', 0) == 3:
        bg = [('GAP', 30)] + xload(2) + xload(3) + [qtouch, gA, [fatom], ('GAP', opt.get('ga', 330))] + dm0
    elif opt.get('so', 0) == 4:
        bg = [('GAP', 30)] + xload(2) + xload(3) + [qtouch, gA, ('GAP', opt.get('ga', 330))] + dm0 + [gB, [fatom]]
    elif opt.get('so', 0) == 5:
        sp = lambda l: [y for x in l for y in ([x, ('GAP', opt['xs'])] if opt.get('xs') and x[0].kind == 'vmem' else [x])]
        bg = [('GAP', opt.get('gap0', 30))] + sp(xload(2)) + ([qtouch] if opt.get('qt') == 1 else []) + sp(xload(3)) + ([] if opt.get('qt') == 1 else [qtouch]) + [('GAP', opt.get('gap1', 150))] + dm0 + [gA, [fatom]]
    elif opt.get('so', 0) == 1:
        bg = [('GAP', opt.get('gap0', 30)), qtouch, gA, ('GAP', opt.get('ga', 200))] + xload(2) + xload(3) + dm0 + [gB, [fatom]]
    else:
        bg = [('GAP', opt.get('gap0', 30))] + xload(2) + [qtouch, gA, ('GAP', opt.get('ga', 300))] + xload(3) + dm0 + [gB, [fatom]]
    cnt = [0]; lq = []; lcnt = [0, 10]
    EVERY = opt.get('every', 8)
    def V(t, needs=()):
        r = P(Ins(t, needs))
        cnt[0] += 1
        if bg and cnt[0] >= EVERY:
            cnt[0] = 0
            while bg:
                g = bg.pop(0)
                if isinstance(g, tuple): cnt[0] = -g[1]; break
                emit_all(g)
                if any(x.kind == 'vmem' for x in g): break
        lcnt[0] += 1
        if lq and lcnt[0] >= lcnt[1]:
            lcnt[0] = 0; emit_all([lq.pop(0)])
        return r
    def reduce8(r):
        V('v_add_f32_dpp v%d, v%d, v%d quad_perm:[1,0,3,2] row_mask:0xf bank_mask:0xf' % (r, r, r))
        V('v_add_f32_dpp v%d, v%d, v%d quad_perm:[2,3,0,1] row_mask:0xf bank_mask:0xf' % (r, r, r))
        V('v_add_f32_dpp v%d, v%d, v%d row_half_mirror row_mask:0xf bank_mask:0xf' % (r, r, r))
    KEEP = [vPFP, vPFS, vTB, vRS]
    def ln_block(blk, defer=False):
        X = XR + 36 * blk
        wa = [64, 76][blk & 1]
        for n in range(36):
            if n < 2: V('v_dot2_f32_bf16 v%d, v%d, s%d, 0' % (68 + n, X + n, ONE2), needs=[xl[blk][0]])
            else: V('v_dot2_f32_bf16 v%d, v%d, s%d, v%d' % (68 + n % 2, X + n, ONE2, 68 + n % 2), needs=[xl[blk][n // 4]])
        stamp('sum%d' % blk)
        V('v_add_f32 v68, v68, v69')
        reduce8(68)
        V('v_mul_f32 v68, 0x%x, v68' % f2u(-1.0 / 576))
        wr = []
        LAG = 2
        for n in range(36 + LAG + 1):
            if n < 36:
                t = 80 + 2 * (n % 8)
                V('v_dot2_f32_bf16 v%d, v%d, s%d, v68' % (t, X + n, LO))
                V('v_dot2_f32_bf16 v%d, v%d, s%d, v68' % (t + 1, X + n, HI))
            m = n - LAG
            if 0 <= m < 36:
                t = 80 + 2 * (m % 8)
                V('v_cvt_pk_bf16_f32 v%d, v%d, v%d' % (X + m, t, t + 1))
            m = n - LAG - 1
            if 0 <= m < 36:
                V('v_dot2_f32_bf16 v%d, v%d, v%d, %s' % (KEEP[blk], X + m, X + m, '0' if m == 0 else 'v%d' % KEEP[blk]))
                if m % 4 == 3:
                    w = Ins('ds_write_b128 v%d, %s offset:%d' % (wa, vr(X + m - 3), (m // 4) * 2048)); wr.append(w)
                    if not defer: P(w)
        return wr, list(wr)
    lnfin = []
    for pat in ('quad_perm:[1,0,3,2]', 'quad_perm:[2,3,0,1]', 'row_half_mirror'):
        lnfin += [Ins(f'v_add_f32_dpp v{r}, v{r}, v{r} {pat} row_mask:0xf bank_mask:0xf') for r in KEEP]
    lnfin += II(f'''s_mov_b32 s76, 0xaaaaaaaa
    s_mov_b32 s77, 0xaaaaaaaa
    v_cndmask_b32 v{KEEP[0]}, v{KEEP[0]}, v{KEEP[1]}, s[76:77]
    v_cndmask_b32 v{KEEP[2]}, v{KEEP[2]}, v{KEEP[3]}, s[76:77]
    s_mov_b32 s76, 0xcccccccc
    s_mov_b32 s77, 0xcccccccc
    v_mov_b32 v181, 0x{f2u(1e-5):x}
    v_cndmask_b32 v{KEEP[0]}, v{KEEP[0]}, v{KEEP[2]}, s[76:77]
    v_fmac_f32 v181, 0x{f2u(1.0 / 576):x}, v{KEEP[0]}
    v_rsq_f32 v176, v181
    v_lshlrev_b32 v180, 3, v{vL}
    v_xor_b32 v180, s{XRO}, v180
    v_and_b32 v180, 8, v180
    v_add_u32 v180, v180, v67
    v_and_b32 v181, 2, v{vL}
    v_lshl_add_u32 v180, v181, 4, v180
    v_mov_b32 v177, v176
    v_mov_b32 v178, v176
    v_mov_b32 v179, v176
    v_and_b32 v181, 0x70, v180
    v_mul_u32_u24 v181, 12, v181
    v_lshl_add_u32 v181, v180, 2, v181
    v_add_u32 v181, {RTB}, v181
    v_lshlrev_b32 v193, 2, v180
    v_add_u32 v193, {RTC}, v193
    v_lshlrev_b32 v180, 4, v180
    v_add_u32 v180, {RT4}, v180''')
    lnw = [Ins('ds_write_b128 v180, v[176:179]', cost=2), Ins('ds_write_b32 v181, v176'), Ins('ds_write_b32 v193, v176')]
    lnfin += lnw
    slow = []
    nlab = [0]
    def alt_site(inline, other):
        nlab[0] += 1; n = nlab[0]
        slow.append(f'alt{n}:\n' + ''.join('    %s\n' % t for t in other) + f'    s_branch alt{n}_e\n')
        return [Ins(f's_cbranch_vccz alt{n}')] + inline + [Ins(f'alt{n}_e:')]
    def xn_reads(rho):
        return [Ins('ds_read_b128 %s, v%d offset:%d' % (breg(ks, 2 * rho + t), 65 + (ks & 1), t * 18432 + ks * 1024)) for ks in range(18) for t in range(2)]
    w0, _ = ln_block(0); w1, _ = ln_block(1)
    stamp('ln01')
    P(Ins('s_barrier', needs=w0 + w1))
    r0 = xn_reads(0)
    lq += [r0[n:n + 2] for n in range(0, 36, 2)]; lcnt[1] = 8
    w2, d2 = ln_block(2, defer=True)
    emit_all(lq); lq.clear()
    P(Ins('s_barrier', needs=r0))
    lq += d2; lcnt[1] = 12
    w3, _ = ln_block(3)
    emit_all(lq); lq.clear()
    emit_all([g for g in bg if not isinstance(g, tuple)]); bg.clear()
    stamp('ln23')
    P(Ins('s_barrier', needs=w2 + w3 + slots[0].loads))
    r1 = xn_reads(1)
    stamp('mf0')

    window = {}
    AH = 4; AHM = opt.get('ah', 6)
    def make_reads(fr, sidx, fi):
        w, o = divmod(phys[sidx] * SLOT, 65536)
        out = []
        if window.get(fr.base, 0) != w:
            d = (w - window.get(fr.base, 0)) * 65536
            out.append(Ins('v_add_u32 v%d, 0x%x, v%d' % (fr.base, d & 0xffffffff, fr.base)))
            window[fr.base] = w
        f = FR + 4 * (fi % 8)
        fr.reg = f
        fr.rd = [Ins('ds_read_b64_tr_b16 %s, v%d offset:%d' % (vr(f + 2 * h, 2), fr.base, o + fr.imm[h])) for h in range(2)]
        return [out + [fr.rd[0]], [fr.rd[1]]]
    def segment(s0, s1, fillers, bar_extra, first_loads=(), extra_need=None, hook=None, quiet=(), pre=()):
        frs = []; groups = []
        for s in range(s0, s1):
            for g in slots[s].groups:
                groups.append((s, len(frs), g))
                for f in g: frs.append((s, f))
        nm = sum(4 * len(g) for _, _, g in groups)
        gm = [[] for _ in range(nm)]; ga = [[] for _ in range(nm)]; gz = [[] for _ in range(nm)]
        used = [0] * nm; vmw = [0] * (nm + 16)
        mf = []; issued = 0; slot_start = {}
        ismem = lambda x: x.kind in ('ds', 'vmem')
        def put(k, items, cost=None):
            (gm if len(items) == 1 and ismem(items[0]) else ga)[k].extend(items)
            used[k] += min(2, sum(x.cost for x in items)) if cost is None else cost
        while issued < AH:
            s, f = frs[issued]
            emit_all(make_reads(f, s, issued)); issued += 1
        if callable(pre): pre()
        else: emit_all(list(pre))
        pend = [(-1, list(first_loads), ())]
        barpos = {}; vcand = set(); fv = set()
        for (s, f0, g) in groups:
            a = len(mf)
            slot_start.setdefault(s, a)
            n = 4 * len(g)
            for mt in range(4):
                for f in g: mf.append((s, f, mt, g))
            if a > 0: used[a - 1] += 1
            vcand.update(range(a + 1, a + n, 4))
            items = []
            while issued < min(len(frs), f0 + min(8, len(g) + AHM)) and frs[issued][0] <= s + 1:
                s2, f2 = frs[issued]
                r = make_reads(f2, s2, issued)
                if frs[issued - 1][0] != s2: r[0] = ['BAR', s2] + r[0]
                items += r; issued += 1
            for q, it in enumerate(items):
                k = a + q * n // len(items)
                if it[0] == 'BAR':
                    s2 = it[1]
                    ex = bar_extra.get(s2, ((), ()))
                    b = Ins('s_barrier'); b.needs = ('LAZY', s2, list(ex[0]) + ([x for f in g for x in f.rd] if k == a else []))
                    gz[k - 1].append(b); used[k - 1] += 1 if k == a else 2
                    barpos[s2] = k - 1
                    pend.append((k - 1, list(extra_loads.get(s2, [])) + ([load_at[s2]] if s2 in load_at else []), ex[1]))
                    it = it[2:]
                if len(it) == 2: put(max(k - 1, 0), it[:1]); it = it[1:]
                put(k, it)
        class Chain:
            def __init__(c, items, start): c.q = list(items); c.rel = start; c.last = -1; c.cap = 2
        dl = []; dead = {}
        for (k, lds_, post) in pend:
            dl.append(('ATK', k + 1)); dl += list(post)
            for n in lds_:
                for g in dma_groups(n):
                    for x in g:
                        dl.append(x)
                        if x.kind == 'vmem': dead[id(x)] = (n, barpos.get(n, 10 ** 9 if n < NS else nm + opt.get('wdl', -100))); svc[id(x)] = SV * (2 if sum(len(g_) for g_ in slots[n].groups) == 6 else 1)
        chains = [Chain(dl, 0)] + [Chain(lst, slot_start[s] + off) for (s, off, lst) in fillers if lst]
        leads = {}; slk = {}; lastst = -999
        pfree = 0.0
        def head(c, k):
            while c.q and isinstance(c.q[0], tuple):
                it = c.q[0]
                if c.rel > k: return None
                if opt.get('dbg') and it[0] in ('AT', 'BY'):
                    cs = max(x for x in slot_start if slot_start[x] <= k); print('   marker', it, 'reached at slot', cs, '+', k - slot_start[cs], file=sys.stderr)
                if it[0] == 'AT': c.rel = slot_start[it[1]] + it[2]
                elif it[0] == 'ATK': c.rel = it[1]
                elif it[0] == 'BY': assert k <= slot_start[it[1]], ('filler late', it, k, slot_start[it[1]])
                elif it[0] == 'CAP': c.cap = it[1]
                elif it[0] == 'SKIP': c.rel = k + it[1]
                c.q.pop(0)
            if not c.q or c.rel > k: return None
            return c.q[0]
        for k in range(nm):
            if not gm[k] and used[k] < 2:
                cand = []
                for n_, c in enumerate(chains):
                    x = head(c, k)
                    if x is None or isinstance(x, list) or not ismem(x) or c.last >= k: continue
                    if x.kind == 'ds':
                        if used[k] + x.cost > 2: continue
                    elif id(x) not in loud and pfree - k > opt.get('bl', 1.5): continue
                    pr = 1
                    if n_ == 0: pr = 0 if dead.get(id(x), (0, 0))[1] - k < opt.get('crit', 72) else 2
                    cand.append((pr, n_))
                if cand:
                    c = chains[min(cand)[1]]; x = c.q.pop(0); c.last = k
                    put(k, [x], x.cost if x.kind == 'ds' else 1)
                    if x.kind == 'vmem':
                        pfree = max(pfree, k + svc[id(x)]) if id(x) in loud else max(pfree, k) + svc.get(id(x), opt.get('svst', SV) if 'store' in x.op else SV)
                        if 'store_dwordx4' in x.op: lastst = k
                        if id(x) in dead and dead[id(x)][1] < 10 ** 9:
                            leads[dead[id(x)][0]] = dead[id(x)][1] - k; slk[dead[id(x)][0]] = dead[id(x)][1] - lastst
            for c in chains:
                while True:
                    x = head(c, k)
                    if x is None or (not isinstance(x, list) and ismem(x)): break
                    it = x if isinstance(x, list) else [x]
                    cst = min(2, sum(y.cost for y in it))
                    if used[k] + cst > c.cap: break
                    c.q.pop(0); c.last = k; ga[k].extend(it); used[k] += cst
        left = [(x if isinstance(x, list) else [x]) for c in chains for x in c.q if not isinstance(x, tuple)]
        print('DMA leads:', ' '.join('%d:%d' % x for x in sorted(leads.items())), file=sys.stderr)
        print('store->wait distance < 130:', ' '.join('%d:%d' % x for x in sorted(slk.items()) if x[1] < 130 and x[0] < NS), file=sys.stderr)
        assert min(v for n_, v in leads.items() if n_ < NS) > opt.get("minlead", 30)
        for k, (s, f, mt, g) in enumerate(mf):
            if hook: hook(k, s)
            c = f.acc(mt)
            nd = [x for f_ in g for x in f_.rd] + ([extra_need(f, mt)] if extra_need else [])
            P(Ins('v_mfma_f32_16x16x32_bf16 %s, %s, %s, %s' % (vr(c), vr(f.reg), f.b(mt), '0' if f.first else vr(c)), needs=nd))
            for x in gz[k]: x.needs = list(slots[x.needs[1]].loads) + list(x.needs[2])
            emit_all(gm[k] + ga[k] + gz[k])
        return left

    def mul(d, a_, b_): return Ins('v_mul_f32 v%d, v%d, v%d' % (d, a_, b_))
    def cvt(d, a_, b_): return Ins('v_cvt_pk_bf16_f32 v%d, v%d, v%d' % (d, a_, b_))
    kv_stores = []
    flat0 = lambda l: [y for x in l for y in x]
    def qkv_epi():
        rs = [Ins('ds_read_b128 %s, v%d offset:%d' % (vr(SP + 4 * mt), vRS, 256 * mt)) for mt in range(4)]
        L = list(rs) + [('SKIP', 6)]
        for mp in range(2):
            if mp: L += II(f's_add_u32 s{QM}, s{QM}, s{QM+2}')
            for c in range(2):
                if c: L += II(f's_add_u32 s{T2}, s{QM}, s{QC}')
                for ft in range(2):
                    te = ACCA + ((2 * c + ft) * 4 + 2 * mp) * 4; to = te + 4
                    for r in range(8):
                        x = mul(te + r, te + r, SP + 8 * mp + r); x.needs = [rs[2 * mp + r // 4]]; L.append(x)
                    L += [cvt(te, te, te + 1), cvt(te + 1, te + 2, te + 3), cvt(te + 2, to, to + 1), cvt(te + 3, to + 2, to + 3)]
                    st = Ins(f'buffer_store_dwordx4 {vr(te)}, v{vQS[0]}, {sr(SW)}, s{T2 if c else QM} offen offset:{1024*ft} sc1')
                    L.append(st); kv_stores.append(st)
        return L
    def l1_epi():
        L = II(f's_lshl_b32 s{T3}, s{FH}, 3\ns_add_u32 s{T3}, s{T3}, {HLONE}\nv_add_u32 v{SP+11}, s{T3}, v{vHW}')
        ws_ = []
        for mt in range(4):
            g0 = ACCA + mt * 4; u0 = ACCA + (4 + mt) * 4
            L += [mul(g0 + t, g0 + t, u0 + t) for t in range(4)] + [cvt(u0, g0, g0 + 1), cvt(u0 + 1, g0 + 2, g0 + 3)]
            w = Ins(f'ds_write_b64 v{SP+11}, {vr(u0,2)} offset:{1024*mt}'); ws_.append(w)
            if not opt.get('bw'): L.append(w)
        if opt.get('bw'): L += [('SKIP', 2), list(ws_)] if opt['bw'] == 1 else flat0([[('SKIP', 4), w] for w in ws_])
        L2 = II(f's_lshl_b32 s{T3}, s{FH}, 11\ns_add_u32 s{T3}, s{T3}, {HLONE}\nv_add_u32 v{SP+11}, s{T3}, v{vHW}')
        rd = [Ins(f'ds_read_b128 {vr(ACCA+4*m)}, v{SP+11} offset:{1024*m}') for m in range(2)]
        sts = [Ins(f'buffer_store_dwordx4 {vr(ACCA+4*m)}, v{vL16}, {sr(SW)}, s{HLN} offen offset:{1024*m} sc1', needs=[rd[m]]) for m in range(2)]
        return L, sts, ws_, L2 + rd + [('SKIP', 10)] + sts
    hw = {}
    def pair_epi(acc, q):
        L = II(f's_add_u32 s{ST}, s{HS}, {q*2*8192}\ns_lshl_b32 s{T1}, s{FH}, 13\ns_add_u32 s{T1}, s{T1}, {hphys[q]*SLOT}\nv_add_u32 v{SP+11}, s{T1}, v{vHW}')
        sts = []; hw[q] = []
        for mt in range(4):
            g0 = acc + mt * 4; g1 = acc + (4 + mt) * 4; u0 = acc + (8 + mt) * 4; u1 = acc + (12 + mt) * 4
            L += [mul(g0 + t, g0 + t, u0 + t) for t in range(4)]
            L += [mul(g1 + t, g1 + t, u1 + t) for t in range(4)]
            L += [cvt(u0, g0, g0 + 1), cvt(u0 + 1, g0 + 2, g0 + 3), cvt(u0 + 2, g1, g1 + 1), cvt(u0 + 3, g1 + 2, g1 + 3)]
            st = Ins(f'buffer_store_dwordx4 {vr(u0)}, v{vL16}, {sr(SW)}, s{ST} offen offset:{1024*mt} sc1')
            w = Ins(f'ds_write_b128 v{SP+11}, {vr(u0)} offset:{1024*mt}', cost=2)
            if q < 3 and opt.get('w64', 0):
                w = [Ins(f'ds_write_b64 v{SP+11}, {vr(u0+2*h,2)} offset:{1024*mt+8*h}') for h in range(2)]
                L += [st] + w; hw[q] += w
            else:
                L += [st, w]; hw[q].append(w)
            sts.append(st)
        return L, sts
    def d_epi(acc, q, cs=(0, 1)):
        L = []
        for c in cs:
            L.append(Ins(f's_sub_u32 s{ST}, s{PS}, {(2*q+c)*2*8192}'))
            for mt in range(4):
                t0 = acc + (8 * c + mt) * 4; t1 = acc + (8 * c + 4 + mt) * 4
                if mt == 2: L.append(Ins(f's_xor_b32 s{ST}, s{ST}, 2048'))
                L += [cvt(t0, t0, t0 + 1), cvt(t0 + 1, t0 + 2, t0 + 3), cvt(t0 + 2, t1, t1 + 1), cvt(t0 + 3, t1 + 2, t1 + 3)]
                L.append(Ins(f'buffer_store_dwordx4 {vr(t0)}, v{vL16}, {sr(SW)}, s{ST} offen offset:{1024*(mt&1)} sc1'))
        return L
    def poll_check(name, ld, test):
        g = [Ins(t, needs=[ld] if n == 0 else []) for n, t in enumerate(test)]
        g.append(Ins('s_cbranch_scc0 %s_slow' % name))
        g.append(Ins('%s_ok:' % name))
        S = Prog()
        S.label('%s_slow' % name)
        S('s_mov_b32 s%d, 400000' % SPN)
        S.label('%s_loop' % name)
        S('s_sleep %d' % opt.get('ps', 2))
        S(ld.text)
        S('s_waitcnt vmcnt(0)')
        S('s_sub_u32 s%d, s%d, 1' % (SPN, SPN))
        S('s_cbranch_scc1 %s_ok' % name)
        for t in test: S(t)
        S('s_cbranch_scc0 %s_loop' % name)
        S('s_branch %s_ok' % name)
        slow.append(S.text())
        return g
    def setflag(n, reg):
        return II(f'v_mov_b32 v{reg}, {n}\nbuffer_store_dword v{reg}, v{vFL}, {sr(SW)}, s{MYF} offen sc1')
    def hpoll(n, reg):
        ld = T(f'buffer_load_dword v{reg}, off, {sr(SW)}, s{PF} sc1')
        return ld, poll_check('h%d' % n, ld, [f'v_readfirstlane_b32 s{T2}, v{reg}', f's_cmp_ge_u32 s{T2}, {n}'])

    qe = qkv_epi()
    pe = [pair_epi(PACC[q], q) for q in range(4)]
    le = l1_epi()
    VREG = [ACCA + 4 * n for n in range(16)] + [SP + 4 * n for n in range(4)]
    G0M, G1M = 96, 98
    late = II(f'''s_mov_b32 s{SQ}, s8
    s_mov_b32 s{SQ+1}, s9
    s_mov_b32 s{SQ+2}, 0x{576*1152:x}
    s_mul_i32 s{T1}, s{T0}, {BLK//2}
    s_mul_i32 s{T2}, s{J}, 2304
    s_add_u32 s{T1}, s{T1}, s{T2}
    s_mov_b32 s{G0M}, 0xffff
    s_mov_b32 s{G0M+1}, 0
    s_mov_b32 s{G1M}, 0xffff0000
    s_mov_b32 s{G1M+1}, 0''')
    for a_ in range(5):
        late += II(f's_add_u32 s{KO+a_}, s{T1}, 0x{KOFF + (2*a_-9)*BLK:x}')
        if a_ < 4:
            late.append(II(f's_cmp_ge_u32 s{T0}, {16-4*a_}\ns_cselect_b32 s{KO+a_}, s{KO+a_}, 0x{OOB:x}\ns_cselect_b32 s{KB+a_}, 0, 0xf149'))
    a0, a1, a2, a3 = SP, SP + 1, SP + 2, SP + 3
    vTD_ = QF + 12
    late += II(f'''v_and_b32 v{a0}, 15, v{vL}
    v_lshrrev_b32 v{a1}, 4, v{vL}
    v_mov_b32 v{a3}, 0x{OOB:x}
    s_mul_i32 s{T2}, s{FH}, 1280
    s_add_u32 s{T3}, s{T2}, {BLK+144*256}
    v_add_u32 v{vKM}, s{T3}, v{vL16}
    v_lshlrev_b32 v{a1}, 4, v{a1}
    v_lshl_add_u32 v{a2}, v{a0}, 6, v{a1}
    s_add_u32 s{T3}, s{T2}, {BLK+73728}
    v_add_u32 v{vVM}, s{T3}, v{a2}
    v_and_b32 v{a2}, 1, v{a0}
    v_lshl_add_u32 v{a1}, v{a2}, 6, v{a1}
    s_lshl_b32 s{T2}, s{FH}, 7
    v_add_u32 v{a1}, s{T2}, v{a1}
    v_and_b32 v{a2}, 3, v{a0}
    v_cmp_eq_u32 vcc, 2, v{a2}
    v_mov_b32 v{a2}, 256
    s_mul_i32 s{T2}, s{RG}, {2*VRS}
    s_add_u32 s{T2}, s{T2}, {LVR}
    v_cndmask_b32 v{a1}, v{a1}, v{a2}, vcc
    v_add_u32 v{vVR}, s{T2}, v{a1}
    s_lshl_b32 s{T2}, s{RG}, 9
    s_lshl_b32 s{T3}, s{FH}, 2
    s_add_u32 s{T2}, s{T2}, s{T3}
    s_add_u32 s{T2}, s{T2}, {LKR}
    v_lshlrev_b32 v{a2}, 4, v{a0}
    v_add_u32 v{a2}, s{T2}, v{a2}
    v_subrev_u32 v{a1}, 248, v{a2}
    v_add_u32 v{SP+8}, {LQR-LKR}, v{a2}
    v_cndmask_b32 v{vKR}, v{a2}, v{a1}, {sr(G1M,2)}
    v_lshlrev_b32 v{a1}, 7, v{vL}
    v_cmp_gt_u32 vcc, 41, v{vL}
    s_nop 0
    s_nop 0
    v_cndmask_b32 v{vTD_}, v{a3}, v{a1}, vcc''')
    kvld = T(f'buffer_load_dwordx4 {vr(SP+12)}, off, {sr(SB)}, s{DB} sc1', 32)
    kvtest = [f'v_readfirstlane_b32 s{T2}, v{SP+12}', f'v_readfirstlane_b32 s{T3}, v{SP+13}', f'v_readfirstlane_b32 s{T1}, v{SP+14}',
              f's_or_b32 s{T2}, s{T2}, s{N0}', f's_or_b32 s{T3}, s{T3}, s{N1}', f's_and_b32 s{T2}, s{T2}, s{T3}',
              f's_and_b32 s{T2}, s{T2}, s{T1}', f's_cmp_eq_u32 s{T2}, 0xffff']
    kv2pre = II(f'''v_lshlrev_b32 v{SP+9}, 7, v{vL}
    v_cmp_gt_u32 vcc, 48, v{vL}
    s_lshl_b32 s{DB}, s{I}, 11
    s_add_u32 s{DB}, s{DB}, 0x{FOFF-4096:x}
    v_cndmask_b32 v{SP+9}, v{a3}, v{SP+9}, vcc
    s_lshl_b32 s{N1}, s{N1}, 16
    s_or_b32 s{N1}, s{N1}, s{N0}''')
    kv2ld = T(f'buffer_load_dword v{SP+12}, v{SP+9}, {sr(SW)}, s{DB} offen sc1', 32)
    kv2test = [f'v_cmp_le_u32 vcc, 1, v{SP+12}', 's_nop 1', f's_or_b32 s{T2}, vcc_lo, s{N1}', f's_or_b32 s{T3}, vcc_hi, 0xffff0000', f's_and_b32 s{T2}, s{T2}, s{T3}', f's_cmp_eq_u32 s{T2}, -1']
    kvpre = []; kvtouch = []
    kvtouch += [II(f's_getpc_b64 {sr(SB,2)}') + [Ins('K1_pc2:')]] + II(f'''s_mov_b32 s{SB+2}, code_end-K1_pc2
    s_and_b32 s{T2}, s{NN}, 7
    s_lshl_b32 s{T2}, s{T2}, 2
    s_add_u32 s{T2}, s{T2}, s{Wv}
    s_mul_i32 s{T2}, s{T2}, {10*128}
    v_lshlrev_b32 v{SP}, 7, v{vL}
    v_cmp_gt_u32 vcc, 10, v{vL}
    s_nop 0
    s_nop 0
    v_cndmask_b32 v{SP}, v{a3}, v{SP}, vcc''') + [T(f'buffer_load_dword v0, v{SP}, {sr(SB)}, s{T2} offen', 32)]
    RA, RB = SP + 12, SP + 4
    rla = Ins(f'buffer_load_dwordx4 {vr(RA)}, v{a1}, {sr(SW)}, s{T3} offen sc1'); rlb = Ins(f'buffer_load_dwordx4 {vr(RB)}, v{a2}, {sr(SW)}, s{T3} offen sc1')
    rst = II(f'''v_lshrrev_b32 v{a0}, 4, v{vL}
    s_mul_i32 s{T2}, s{Wv}, 3
    v_add_u32 v{a0}, s{T2}, v{a0}
    v_mul_u32_u24 v{a1}, {BLK}, v{a0}
    s_lshl_b32 s{T3}, s{I}, 2
    s_sub_u32 s{T3}, 8, s{T3}
    v_cmp_le_i32 vcc, s{T3}, v{a0}
    v_and_b32 v{SP+9}, 0xf0, v{vL16}
    v_add_u32 v{a1}, v{a1}, v{SP+9}
    v_cndmask_b32 v{a1}, v{a3}, v{a1}, vcc
    v_add_u32 v{a2}, {73728+1024}, v{a1}
    v_add_u32 v{a1}, {148*256}, v{a1}
    s_add_u32 s{T2}, s{Wv}, 8
    s_mul_i32 s{T2}, s{T2}, {BLK}
    s_add_u32 s{T2}, s{T2}, 1024
    v_cmp_gt_u32 vcc, 48, v{vL}
    v_add_u32 v{RA}, s{T2}, v{SP+9}
    s_mul_i32 s{T3}, s{I}, {4*BLK}
    v_cndmask_b32 v{a1}, v{RA}, v{a1}, vcc
    v_cndmask_b32 v{a2}, v{a3}, v{a2}, vcc
    s_mul_i32 s{T2}, s{J}, 2304
    s_add_u32 s{T3}, s{T3}, s{T2}
    s_add_u32 s{T3}, s{T3}, 0x{KOFF-8*BLK:x}''') + [rla, rlb] + II(f'''s_mul_i32 s{T2}, s{Wv}, 768
    s_add_u32 s{T2}, s{T2}, {LKR}
    v_add_u32 v{a1}, s{T2}, v{vL16}
    s_lshl_b32 s{T2}, s{Wv}, 8
    s_add_u32 s{T2}, s{T2}, {LQR}
    v_add_u32 v{a2}, s{T2}, v{SP+9}
    v_cndmask_b32 v{a1}, v{a2}, v{a1}, vcc
    v_mul_u32_u24 v{a2}, {VRS}, v{a0}
    v_add_u32 v{a2}, v{a2}, v{SP+9}
    v_and_b32 v{SP+9}, 15, v{vL}
    v_min_u32 v{SP+9}, 2, v{SP+9}
    v_add_u32 v{a0}, v{a0}, v{SP+9}
    v_mul_u32_u24 v{a0}, {VRS}, v{a0}
    v_add_u32 v{a0}, {(256-3*VRS) & 0xffffffff}, v{a0}
    v_cndmask_b32 v{a2}, v{a0}, v{a2}, vcc
    v_add_u32 v{a2}, {LVR}, v{a2}
    v_mov_b32 v{a0}, 0x3f803f80''')
    nrs = len(rst)
    rst += [Ins(f'v_cndmask_b32 v{RB+r}, v{a0}, v{RB+r}, vcc', needs=[rlb]) for r in range(4)]
    rsw = [Ins(f'ds_write_b128 v{a1}, {vr(RA)}', needs=[rla], cost=2), Ins(f'ds_write_b128 v{a2}, {vr(RB)}', cost=2)]
    rst += rsw
    qld = []; ql = []; qr = []
    for a_ in range(2):
        l0 = Ins(f'buffer_load_dwordx4 {vr(QF+4*a_)}, v{vKM}, {sr(SW)}, s{T3} offen sc1')
        l1 = [Ins(f'ds_read_b32 v{QF+8+2*a_+h}, v{SP+8} offset:{256*a_+8*h}') for h in range(2)]
        ql += [Ins(f's_add_u32 s{T3}, s{KO+4}, {(a_*BLK - 36864) & 0xffffffff}'), l0]; qr += l1; qld += [[l0, l1[0]], [l0, l1[1]]]
    km = []; kr = []; kl = []; vld = []; vl = []
    for b_ in range(11):
        r_ = Ins(f'ds_read_b32 a{6*b_}, v{vKR} offset:{256*b_}'); kr.append(r_)
        kl += [r_]
        lo_, hi_ = b_ // 2, (b_ - 1) // 2
        nm_ = lambda q_: f's{KB+q_}' if 0 <= q_ < 4 else '0'
        if b_ <= 8: kl += II(f's_pack_ll_b32_b16 s{T2}, {nm_(lo_)}, {nm_(hi_)}\nv_accvgpr_write_b32 a{6*b_+1}, s{T2}')
        else: kl += II(f'v_accvgpr_write_b32 a{6*b_+1}, 0')
        if b_ < 10:
            m_ = Ins(f'buffer_load_dwordx4 {ar(6*b_+2)}, v{vKM}, {sr(SW)}, s{T3} offen sc1'); km.append(m_)
            kl += [Ins(f's_add_u32 s{T3}, s{KO+b_//2}, {(b_%2)*BLK}'), m_]
    kld = [[km[u // 2], kr[(u + 1) // 2]] for u in range(20)]
    for v in range(10):
        a_ = Ins(f'buffer_load_dwordx4 {vr(VREG[2*v])}, v{vVM}, {sr(SW)}, s{T3} offen sc1')
        b_ = Ins(f'ds_read_b128 {vr(VREG[2*v+1])}, v{vVR} offset:{VRS*v}')
        vl.append([b_, Ins(f's_add_u32 s{T3}, s{KO+v//2}, {(v%2)*BLK}'), a_]); vld += [a_, b_]
    for x in km + vld[::2]: svc[id(x)] = opt.get('svk', SV)
    def vfix(v): return [Ins(f'v_or_b32 v{VREG[2*v+1]+r}, v{vONES}, v{VREG[2*v+1]+r}', needs=[vld[2 * v + 1]]) for r in range(4)]
    pfd = [T(f'buffer_load_dword v0, v{vTD_}, {sr(SD)}, s{PFD} offen offset:2048' + NT, opt.get('qd', 120))]
    if opt.get('nod') or opt.get('cls'): pfd = []
    pfw = II(f's_mul_i32 s{T2}, s2, {21*128}') + [II(f's_cmp_eq_u32 s{Wv}, 0\ns_cselect_b32 s{T2}, s{T2}, 0x{OOB:x}'), T(f'buffer_load_dword v0, v{vTD_}, {sr(SQ)}, s{T2} offen', 40)]
    if opt.get('nod'): pfw = []
    h1ld, h1chk = hpoll(2, vPFP)
    e_ = opt.get('ev', [8, 0, 26, 29, 38])
    flat = lambda l: [y for x in l for y in x]
    NV1 = opt.get('nv1', 3)
    cls_chain = []
    if opt.get('cls'):
        va, vs_ = QF + 13 - 9, QF + 13 - 8
        cls_chain = II(f'''v_lshrrev_b32 v{va}, 2, v{vL}
        v_mul_u32_u24 v{va}, 9216, v{va}
        v_bfe_u32 v{vs_}, v{vL}, 1, 1
        v_mul_u32_u24 v{vs_}, 1152, v{vs_}
        v_add_u32 v{va}, v{va}, v{vs_}
        v_and_b32 v{vs_}, 1, v{vL}
        v_lshl_add_u32 v{va}, v{vs_}, 10, v{va}
        v_cmp_gt_u32 {sr(DUM,2)}, 36, v{vL}
        v_mov_b32 v{va+2}, 0x{OOB:x}
        v_lshlrev_b32 v{vs_}, 8, v{vs_}
        v_cndmask_b32 v{va}, v{va+2}, v{va}, {sr(DUM,2)}
        v_sub_u32 v{vs_}, 128, v{vs_}
        s_lshr_b32 s{DUM}, s2, 5
        s_lshl_b32 s{DUM}, s{DUM}, 3
        s_and_b32 s{DUM+1}, s2, 7
        s_or_b32 s{DUM}, s{DUM}, s{DUM+1}
        s_mul_i32 s{PFP}, s{DUM}, {9*9216}
        s_mul_i32 s{DUM+1}, s{Wv}, 2304
        s_add_u32 s{PFP}, s{PFP}, s{DUM+1}
        s_and_b32 s{DUM}, s{NN}, 3''')
        sites_ = opt['cls']; qc = opt.get('qc', 24)
        for n, sl in enumerate(sites_):
            if sl: cls_chain += [('AT', sl - 1, 16)]
            if n < 6 and n % 2 == 0: cls_chain += II(f'v_add_u32 v{va}, v{va}, v{vs_}')
            if not sl: continue
            if n < 6:
                cls_chain += [II(f's_cmp_eq_u32 s{DUM}, {n % 4}\ns_cselect_b32 s{PFW}, s{PFP}, 0x{OOB:x}'), ('AT', sl, 0),
                              T(f'buffer_load_dword v0, v{va}, {sr([SG, SU][n % 2])}, s{PFW} offen offset:{2048 * (n % 2)}', qc)]
            else:
                cls_chain += [II(f's_cmp_eq_u32 s{DUM}, {n % 4}\ns_cselect_b32 s{PFW}, s{PFD}, 0x{OOB:x}'), ('AT', sl, 0),
                              T(f'buffer_load_dword v0, v{vTD_}, {sr(SD)}, s{PFW} offen offset:2048', qc)]
    fill1 = [(sl, 0, stamp('slot%d' % sl, True)) for sl in range(NSEG1)] + [
        (0, 0, r1[8:]),
        (1, 0, cls_chain),
        (0, 2, lnfin + late0 + [('BY', 9)] + late0b[:31] + [('AT', 9, 4)] + qe + [('BY', 16)] + late0b[31:] + late + [kvld, ('AT', 18, 4)]
         + pe[0][0] + [('BY', 24), poll_check('kv', kvld, kvtest)] + kv2pre + [('AT', 24, 4)]
         + le[0] + [('BY', 26), ('AT', e_[2], 0), kv2ld] + [('AT', 27, 0)] + le[3] + [('AT', e_[3] - 1, 8), poll_check('kw', kv2ld, kv2test)] + kvpre + [('AT', e_[3], 0)] + pfd + pfw + kvtouch + rst[:nrs] + [('AT', 33, 4)]
         + pe[1][0] + rst[nrs:] + ql + [('BY', 40), ('AT', 41, 0)] + qr + [('BY', 42), ('AT', 42, 4)]
         + pe[2][0] + [('AT', 44, 0)] + kl + flat(vl[:NV1]) + [('AT', 50, 8), h1ld]),
    ]
    bx1 = {
        3: (r1, []), 6: (lnw, []),
        opt.get('kvf', 17): (kv_stores, setflag(1, SP + 10)),
        27: (le[2], []), 41: (rsw, []),
        opt.get('hf', 49): (pe[0][1] + le[1] + pe[1][1] + pe[2][1], setflag(2, SP + 10)),
    }
    extra_loads[3] = [5, 6, 7, 8, load_at.pop(2)]
    xmap = {}
    for n, x in enumerate(r1):
        ks = n // 2
        for mt in range(4): xmap[breg(ks, mt)] = r1[2 * ks + (mt & 1)] if mt >= 2 else None
    mark = {}
    def hook(k, s):
        if k == 0:
            P(f's_cmp_ge_u32 s{J}, 9')
            P('s_cbranch_scc1 qkv_v')
            mark['a'] = len(P.out)
        if s == 9 and 'b' not in mark:
            mark['b'] = len(P.out)
            P.label('qkv_e')
    left = segment(0, NSEG1, fill1, bx1, first_loads=list(range(NPRE, 5)), hook=hook, pre=r1[:8], extra_need=lambda f, mt: xmap[f.b(mt)])
    qrd = set(id(x) for n in range(9) for g in slots[n].groups for f in g for x in f.rd)
    K = Prog(); K.label('qkv_k'); nb_ = 0
    for x in P.out[mark['a']:mark['b']]:
        if x.kind == 'mfma' or id(x) in qrd or x.op == 's_nop': continue
        t = x.text
        if x.kind == 'label': K.label(t[:-1].replace('_e', 'k_e')); continue
        if x.op == 's_cbranch_scc1': t += 'k'
        if x.op == 's_waitcnt':
            if 'vmcnt' not in t: continue
            t = t.split(' lgkmcnt')[0]
        if x.op == 's_barrier':
            nb_ += 1
            K('s_waitcnt lgkmcnt(0)')
        K(t)
    K('s_waitcnt lgkmcnt(0)'); K('s_nop 4'); K('s_branch qkv_e')
    slow.append(K.text())
    alt = ['qkv_v:', f'    s_cmp_ge_u32 s{J}, 14', '    s_cbranch_scc1 qkv_k'] if opt.get('skip', 1) else ['qkv_v:']
    for x in P.out[mark['a']:mark['b']]:
        t = x.text
        if x.kind == 'label': alt.append(t.replace('_e:', 'v_e:')); continue
        if x.op == 's_cbranch_scc1': t += 'v'
        if x.kind == 'mfma':
            o = [y.strip() for y in t[len(x.op):].split(',')]
            t = '%s %s, %s, %s, %s' % (x.op, o[0], o[2], o[1], o[3])
        alt.append('    ' + t)
    alt.append('    s_branch qkv_e')
    slow.append('\n'.join(alt) + '\n')
    print('left after seg1:', len(left), file=sys.stderr)
    stamp('g1end')

    SREG = [80] + [ACCB + (tl * 4 + mt) * 4 for mt in range(4) for tl in (0, 1, 3, 2)]
    PR = [84, 88]; OM, OR_ = 96, 100; MF, ML = 104, 108
    noskip = lambda l: [x for x in l if not isinstance(x, tuple)]
    def qbuild(t):
        q = QF + 2 * t
        P(Ins(f'v_mov_b32 v{QW+2}, v{q}', needs=qld[t]))
        P(f'v_mov_b32 v{QW+3}, v{q+1}')
        P(f'v_cndmask_b32 v{QW}, 0, v{QF+8+t}, {sr(G0M,2)}')
        P(f'v_cndmask_b32 v{QW+4}, 0, v{QF+8+t}, {sr(G1M,2)}')
    P('v_mov_b32 v%d, 0x%x' % (vTA, NEG))
    P(f'v_mov_b32 v{QW+1}, 0x3f80')
    P(f'v_mov_b32 v{QW+5}, 0x3f800000')
    qbuild(0)
    pq = list(pe[3][0])
    for r in range(4):
        P('v_cmp_lt_i32 vcc, %d, v%d' % (-r, vDG))
        P(pq.pop(0)); P(pq.pop(0))
        P('v_cndmask_b32 v%d, v%d, 0, vcc' % (MF + r, vTA))
        P('v_cndmask_b32 v%d, 0, v%d, vcc' % (ML + r, vTA))
    P(f's_cmp_eq_u32 s{FH}, 0')
    P('s_cselect_b64 vcc, -1, 0')
    P(f's_xor_b32 s{N0}, s{C}, 0x80000000')
    hld = {}
    def hload(k):
        if isinstance(k, tuple):
            ka, kb = k
            pre = II(f's_mul_i32 s{T2}, s{FH}, {(ka-kb)*8192}\ns_add_u32 s{T2}, s{T2}, s{HL}\ns_add_u32 s{T2}, s{T2}, {(17-ka)*8192}') if ka != kb else II(f's_add_u32 s{T2}, s{HL}, {(17-ka)*8192}')
            tx = lambda kk, mt: f'buffer_load_dwordx4 {breg(hpos[kk], mt)}, v{vL16}, {sr(SW)}, s{T2} offen offset:{1024*mt} sc1'
            ld = [Ins(tx(ka, mt)) for mt in range(4)]
            if not opt.get('ksw'): hld[ka] = [ld[3]] * 4; hld[kb] = [ld[3]] * 4
            if opt.get('ksw'): hld[ka] = list(ld); hld.setdefault(kb, None)
            if ka == kb or opt.get('ksw'): return [pre + ld[:1], ld[1:2], ld[2:3], ld[3:]]
            return [(pre if h == 0 else []) + alt_site(ld[2*h:2*h+2], [tx(kb, 2*h), tx(kb, 2*h+1)]) for h in range(2)]
        base = HLONE if k == 8 else hphys[k // 2] * SLOT + (k & 1) * 8192
        hld[k] = [Ins(f'ds_read_b128 {breg(hpos[k], mt)}, v{vONES} offset:{1024*mt}') for mt in range(4)]
        return [II(f'v_add_u32 v{vONES}, {base}, v{vHW}') + hld[k][:2], hld[k][2:]]
    def qk(t, sg):
        u = t + sg
        c = vr(MF) if sg == 0 else (vr(ML) if sg == 16 else '0')
        return Ins('v_mfma_f32_16x16x32_bf16 %s, %s, %s, %s' % (vr(SREG[sg]), ar(3 * u + (u & 1)), vr(QW + 2 * (u & 1)), c), needs=kld[u])
    def mx(sg, dst):
        s = SREG[sg]
        if sg == 0: return II('v_max3_f32 v%d, v%d, v%d, v%d\nv_max_f32 v%d, v%d, v%d' % (dst, s, s + 1, s + 2, dst, dst, s + 3))
        return II('v_max3_f32 v%d, v%d, v%d, v%d\nv_max3_f32 v%d, v%d, v%d, v%d' % (dst, dst, s, s + 1, dst, dst, s + 2, s + 3))
    lk = [x for x in left if any(y in km or y in kr for y in x)]
    if lk:
        n = left.index(lk[-1]) + 1; emit_all(left[:n]); left = left[n:]
    P(qk(0, 0))
    nq = 1; avail = 1; nmx = 0
    while pq:
        x = pq.pop(0); P(x)
        if x.kind == 'ds': avail += 4
        elif nq < avail and len(pq) % 2 == 0: P(qk(0, nq)); nq += 1
    def bunch(l):
        out = []; cur = []
        for x in l:
            cur += x
            if any(y.kind in ('vmem', 'ds') for y in x): out.append(cur); cur = []
        assert not cur
        return out
    isdma = lambda x: any(' lds' in y.text or f's{OFF},' in y.text.split()[1] or 'm0' in y.text or f's{BD},' in y.text.split()[1] for y in x)
    ldma = bunch([x for x in left if isdma(x)])
    lv = bunch([x for x in left if not isdma(x)] + [[x] for v in range(NV1, 10) for x in noskip(vl[v])])
    while nq < 17:
        P(qk(0, nq)); nq += 1
        emit_all(mx(nmx, vMN)); nmx += 1
    while nmx < 17:
        if len(lv) > 12 and nmx % 2: emit_all(lv.pop(0))
        emit_all(mx(nmx, vMN)); nmx += 1
    while len(lv) > 12: emit_all(lv.pop(0))
    qbuild(1)
    emit_all(h1chk)
    stamp('attk')
    ow = []
    def o_epi(t):
        P('v_rcp_f32 v%d, v%d' % (vTA, OR_ + 2))
        for r in range(4): P(mul(OM + r, OM + r, vTA))
        for r in range(2): P(mul(OR_ + r, OR_ + r, vTA))
        P(cvt(QF + 2 * t, OM, OM + 1)); P(cvt(QF + 2 * t + 1, OM + 2, OM + 3)); P(cvt(QF + 8 + t, OR_, OR_ + 1))
    ofl = II(f'''s_lshl_b32 s{T2}, s{FH}, 3
    s_add_u32 s{T2}, s{T2}, {HLONE}
    v_add_u32 v{vTB}, s{T2}, v{vHW}
    s_lshl_b32 s{T2}, s{RG}, 9
    s_lshl_b32 s{T3}, s{FH}, 2
    s_add_u32 s{T2}, s{T2}, s{T3}
    s_add_u32 s{T2}, s{T2}, {RT4}
    v_lshlrev_b32 v{vTA}, 3, v{vL}
    v_add_u32 v{vMX}, 4096, v{vTA}
    v_cndmask_b32 v{vTA}, v{vMX}, v{vTA}, {sr(G0M,2)}
    v_add_u32 v{vTA}, s{T2}, v{vTA}''')
    for t in range(4):
        ow += [Ins(f'ds_write_b64 v{vTB}, {vr(QF+2*t,2)} offset:{1024*t}'), Ins(f'ds_write_b32 v{vTA}, v{QF+8+t} offset:{128*t}')]
    ofl += ow
    h2ld, h2chk = hpoll(3, vPFP)
    hplan = opt.get('hplan', {0: [0, 1, 2, 3, 4, 5], 1: [(16, 17), (14, 15), (12, 13), (9, 9)], 2: [(17, 16), (15, 14), (13, 12), 8], 3: [(10, 11), (11, 10)]})
    if opt.get('plain', 1): hplan = opt.get('hp', {0: [(16, 16), 0, 1, (17, 17), 2, 3, (14, 14), 4, 5], 1: [(15, 15), (12, 12)], 2: [(13, 13), (9, 9), 8], 3: [(10, 10), (11, 11)]})
    if opt.get('ksw'): hplan = {0: [0, 1, 2, 3, 4, 5], 1: [(16, 17), (14, 15), (12, 13), (9, 9)], 2: [(17, 16), (15, 14), (13, 12), 8], 3: [(10, 11), (11, 10)]}
    for t in range(4):
        stamp('att%d' % t)
        P('v_mov_b32 v%d, v%d' % (vTA, vMN))
        P('v_permlane16_swap_b32 v%d, v%d' % (vTA, vMN))
        P('v_max_f32 v%d, v%d, v%d' % (vMN, vMN, vTA))
        P('v_mov_b32 v%d, v%d' % (vTA, vMN))
        P('v_permlane32_swap_b32 v%d, v%d' % (vTA, vMN))
        P('v_max_f32 v%d, v%d, v%d' % (vMN, vMN, vTA))
        P(f'v_mul_f32 v{vMX}, s{N0}, v{vMN}')
        if t == 1:
            P(Ins('s_barrier', needs=pe[3][1] + hw[3] + [x for k in range(6) for x in hld[k]]))
            ad = bunch(flat([dma_groups(n) for n in att_loads[:sum(opt.get('na', [0, 8, 8, 4])) // 4]]))
            emit_all(setflag(3, vPFS))
        if t == 3:
            P(Ins('s_barrier', needs=slots[NSEG1].loads + hld[8]))
            emit_all(h2chk)
        bq = flat([hload(k) for k in hplan[t]])
        def mix(a_, b_):
            out = []; a_ = list(a_); b_ = list(b_)
            while a_ or b_:
                if a_: out.append(a_.pop(0))
                if b_: out.append(b_.pop(0))
            return out
        if t == 0:
            bq = mix(lv + ldma, bq)
        else:
            na = opt.get('na', [0, 8, 8, 4])[t]
            bq = mix(bq, ad[:na]) if t < 3 or opt.get('plain', 1) else bq[:2] + ad[:na] + bq[2:]
            ad = ad[na:]
        ppv = []; pqk = []; pmx = []
        for b in range(9):
            v = (t >> 1) + b
            sgs = [2 * v - t, 2 * v + 1 - t]
            val = [sg for sg in sgs if 0 <= sg <= 16]
            p = PR[b % 2]
            for sg in val:
                for r in (0, 2):
                    s = SREG[sg] + r
                    P(f'v_pk_fma_f32 {vr(s,2)}, {vr(s,2)}, {sr(C,2)}, {vr(vMX,2)} op_sel_hi:[1,0,0]')
            mfs = ppv + [qk(t + 1, g_) for g_ in pqk]
            nb = (len(bq) + (8 - b)) // (9 - b)
            def withmem(x):
                nonlocal nb
                g = []
                if nb: g = bq.pop(0); nb -= 1
                n0 = 0
                while n0 < len(g) and g[n0].kind in ('salu', 'valu') and not g[n0].op.startswith('s_cbranch'): n0 += 1
                emit_all(g[:n0]); P(x); emit_all(g[n0:])
            for sg in val:
                for r in range(4):
                    P('v_exp_f32 v%d, v%d' % (SREG[sg] + r, SREG[sg] + r))
                    if mfs and (not opt.get('spr') or r % 2 == 0 or len(val) == 1): withmem(mfs.pop(0))
            while mfs: withmem(mfs.pop(0))
            nb += 1
            for g_ in pmx: emit_all(mx(g_, vMN))
            for hh, sg in enumerate(sgs):
                if sg in val:
                    s = SREG[sg]
                    P(cvt(p + 2 * hh, s, s + 1)); P(cvt(p + 2 * hh + 1, s + 2, s + 3))
                else:
                    P('v_mov_b32 v%d, 0' % (p + 2 * hh)); P('v_mov_b32 v%d, 0' % (p + 2 * hh + 1))
            for _ in range(nb - 1): emit_all(bq.pop(0))
            pmx = pqk; pqk = val if t < 3 else []
            ppv = [Ins('v_mfma_f32_16x16x32_bf16 %s, %s, %s, %s' % (vr(OM), vr(VREG[2 * v]), vr(p), '0' if b == 0 else vr(OM)), needs=[vld[2 * v]]),
                   Ins('v_mfma_f32_16x16x32_bf16 %s, %s, %s, %s' % (vr(OR_), vr(VREG[2 * v + 1]), vr(p), '0' if b == 0 else vr(OR_)), needs=[vld[2 * v + 1]])]
            if t == 2 and b == 5: P(h2ld)
        assert not bq
        tail = flat([mx(g_, vMN) for g_ in pmx])
        for x in [qk(t + 1, g_) for g_ in pqk] + ppv:
            P(x)
            if tail: P(tail.pop(0))
        emit_all(tail)
        if t < 2: qbuild(t + 2)
        for g_ in pqk: emit_all(mx(g_, vMN))
        if t < 3: o_epi(t)
    stamp('attend')

    own = flat(flat([hload(k) for k in (6, 7)]))
    bmap = {}
    for k in hld:
        for mt in range(4): bmap[breg(hpos[k], mt)] = hld[k][mt]
    def restage(dst, sbase, stride, T3=T3):
        L = II(f's_lshl_b32 s{T3}, s{FH}, 11\ns_add_u32 s{T3}, s{T3}, {HLONE}\nv_add_u32 v{vTB}, s{T3}, v{vHW}')
        rd = [Ins(f'ds_read_b128 {vr(dst+4*m)}, v{vTB} offset:{1024*m}') for m in range(2)]
        L += rd + II(f's_add_u32 s{T3}, s{sbase}, {stride}') + [('SKIP', 8)]
        L += [Ins(f'buffer_store_dwordx4 {vr(dst+4*m)}, v{vL16}, {sr(SW)}, s{[sbase, T3][m]} offen sc1', needs=[rd[m]]) for m in range(2)]
        return L, rd
    oe, ord_ = restage(QF, OB, 18432)
    rr = Ins(f'ds_read_b128 {vr(QF+8)}, v{vTA}')
    oe += II(f'v_add_u32 v{vTA}, {RT4}, v{vL16}') + [rr] + II(f'v_lshrrev_b32 v{vTA}, 3, v{vL}\nv_mul_u32_u24 v{vTA}, {18432-128}, v{vTA}\nv_add_u32 v{vTA}, v{vTA}, v{vL16}') + [('SKIP', 8)]
    oe += [Ins(f'buffer_store_dwordx4 {vr(QF+8)}, v{vTA}, {sr(SW)}, s{OR} offen sc1', needs=[rr])]
    l2e = II(f's_lshl_b32 s{T3}, s{FH}, 3\ns_add_u32 s{T3}, s{T3}, {HLONE}\nv_add_u32 v{vTB}, s{T3}, v{vHW}'); l2w = []
    for mt in range(4):
        t0 = SP + mt * 4
        w = Ins(f'ds_write_b64 v{vTB}, {vr(t0,2)} offset:{1024*mt}'); l2w.append(w)
        l2e += [cvt(t0, t0, t0 + 1), cvt(t0 + 1, t0 + 2, t0 + 3), w]
    l2s, _ = restage(SP, PLN, 1024, T1)
    TLT, TVT = opt.get('tl', 0x54108732), opt.get('tv', 0x56557777)
    def task_params(second):
        ln = II(f's_lshl_b32 s{T2}, s{Pp}, 2\ns_lshr_b32 s{T1}, {TLT:#x}, s{T2}\ns_and_b32 s{T1}, s{T1}, 15\ns_lshr_b32 s{TV}, {TVT:#x}, s{T2}\ns_and_b32 s{TV}, s{TV}, 15\ns_movk_i32 s{TM}, 0x5555')
        ln += [II(f's_cmp_gt_u32 s{T1}, 4\ns_cselect_b32 s{T2}, 1, 0'), Ins(f's_lshl_b32 s{TM}, s{TM}, s{T2}'), II(f's_cmp_eq_u32 s{T1}, 4\ns_cselect_b32 s{TM}, 0xffff, s{TM}'), Ins(f's_bitset0_b32 s{TM}, s{J}')]
        return ln + II(f'''s_lshl_b32 s{TL}, s{T1}, 7
        s_lshl_b32 s{T2}, s{E}, 2
        s_add_u32 s{T2}, s{T2}, s{Wv}
        s_lshl_b32 s{TP}, s{T2}, 10
        s_lshl_b32 s{T1}, s{T1}, 14
        s_sub_u32 s{TP}, s{TP}, s{T1}
        s_mul_i32 s{T1}, s{I}, {8*18*8192}
        s_add_u32 s{TP}, s{TP}, s{T1}
        s_lshl_b32 s{T1}, s{I}, 3
        s_add_u32 s{T2}, s{T2}, s{T1}
        s_mul_i32 s{OL}, s{T2}, 18432
        s_add_u32 s{TX}, s{OL}, s{TL}
        s_mul_i32 s{T1}, s{Wv}, {36*1152}
        s_add_u32 s{TL}, s{TL}, s{T1}''')
    tsetup = II(f'''s_mov_b32 s{SG}, s8
    s_mov_b32 s{SG+1}, s9
    s_mov_b32 s{SG+2}, 0x{576*1152:x}
    s_mov_b32 s{SU}, s{OUTP}
    s_mov_b32 s{SU+1}, s{OUTP+1}
    s_mov_b32 s{SU+2}, 0x{2048*1152:x}
    s_lshl_b32 s{FB}, s{I}, 11
    s_add_u32 s{FB}, s{FB}, 0x{FOFF:x}
    s_mov_b32 s{LO}, 0x00003f80
    s_mov_b32 s{HI}, 0x3f800000''') + task_params(False)
    for t, row in enumerate((0, 8, 20, 28)): tsetup += II(f'v_add_u32 v{vWD[t]}, {(row*1152 - 1024*t - 2048) & 0xffffffff}, v{vDD[0]}')
    tsetup += II(f'''v_lshrrev_b32 v{vWD2}, 5, v{vL}
    v_mul_u32_u24 v{vWD2}, {32*1152}, v{vWD2}
    v_add_u32 v{vWD2}, v{vWD2}, v{vWD[0]}
    v_add_u32 v{vWD2}, {16*1152}, v{vWD2}
    v_and_b32 v{vWT[0]}, 0xffff, v{vTD[0]}
    s_lshl_b32 s{T2}, s{FH}, 6
    v_xor_b32 v{vWT[0]}, s{T2}, v{vWT[0]}
    v_xor_b32 v{vWT[1]}, 32, v{vWT[0]}
    v_xor_b32 v{vWT[2]}, 64, v{vWT[0]}
    v_xor_b32 v{vWT[3]}, 0x60, v{vWT[0]}
    v_lshlrev_b32 v{vPL}, 3, v{vOR}
    v_and_b32 v{vMX}, 15, v{vL}
    v_mul_u32_u24 v{vDG}, 1152, v{vMX}
    v_bfe_u32 v{vMN}, v{vL}, 4, 1
    v_lshl_add_u32 v{vDG}, v{vMN}, 5, v{vDG}
    v_lshrrev_b32 v{vMN}, 5, v{vL}
    v_lshl_add_u32 v{vDG}, v{vMN}, 4, v{vDG}
    s_lshl_b32 s{T2}, s{E}, 2
    s_add_u32 s{T2}, s{T2}, s{Wv}
    s_lshl_b32 s{T2}, s{T2}, 6
    s_lshr_b32 s{T3}, s{ROT}, 4
    s_xor_b32 s{T2}, s{T2}, s{T3}
    s_add_u32 s{T2}, s{T2}, {RTC}
    v_lshlrev_b32 v{vMX}, 2, v{vMX}
    v_add_u32 v{vMX}, s{T2}, v{vMX}''')
    rrd = Ins(f'ds_read_b32 v{vMX}, v{vMX}')
    tsetup += [rrd, ('SKIP', 8), Ins(f'v_mul_f32 v{vMX}, v{vMX}, v{vMX}', needs=[rrd]), Ins(f'v_mul_f32 v{vMN}, 0x{f2u(-1.4426950408889634):x}, v{vMX}')]
    fl_t = f'buffer_load_dword v{vPFP}, v{vPL}, {sr(SW)}, s{FB} offen sc1'
    o3ld = T(fl_t, 24)
    o3chk = poll_check('o3', o3ld, [f'v_cmp_le_u32 vcc, 4, v{vPFP}', 's_nop 1', 's_cmp_eq_u32 vcc_lo, 0xffff'])
    d5ld = T(fl_t, 8)
    ct3 = [II(f's_getpc_b64 {sr(SB,2)}') + [Ins('K1_pc3:')]] + II(f'''s_mov_b32 s{SB+2}, code_end-K1_pc3
    s_and_b32 s{T2}, s{NN}, 7
    s_lshl_b32 s{T2}, s{T2}, 2
    s_add_u32 s{T2}, s{T2}, s{Wv}
    s_mul_i32 s{T2}, s{T2}, {9*128}
    v_cmp_gt_u32 vcc, 9, v{vL}
    v_mov_b32 v{vTA}, 0x{OOB:x}
    s_nop 0
    v_cndmask_b32 v{vTA}, v{vTA}, v{vPL}, vcc''') + [T(f'buffer_load_dword v0, v{vTA}, {sr(SB)}, s{T2} offen', 24)]
    ct3 += II(f'''v_mul_u32_u24 v{vTA}, 1152, v{vL}
    v_subrev_u32 v{vTB}, {9*1152-128}, v{vTA}
    v_cmp_gt_u32 vcc, 9, v{vL}
    s_and_b32 s{T2}, s{I}, 7
    s_lshl_b32 s{T2}, s{T2}, 1
    v_cndmask_b32 v{vTA}, v{vTB}, v{vTA}, vcc
    s_add_u32 s{T2}, s{T2}, s{E}
    s_mul_i32 s{T2}, s{T2}, {36*1152}
    s_add_u32 s{T2}, s{T2}, s{TL}
    s_mul_i32 s{T3}, s{Wv}, {27*1152}
    s_sub_u32 s{T2}, s{T2}, s{T3}''') + [II(f's_cmp_ge_u32 s{J}, 14\ns_cselect_b32 s{T3}, 18, 9')] + II(f'''v_cmp_gt_u32 vcc, s{T3}, v{vL}
    v_mov_b32 v{vTB}, 0x{OOB:x}
    s_nop 0
    v_cndmask_b32 v{vTA}, v{vTB}, v{vTA}, vcc''') + [T(f'buffer_load_dword v0, v{vTA}, {sr(SG)}, s{T2} offen', 24)]
    if opt.get('nowt', 1): ct3 = ct3[:-17]
    OA = 160
    old = []; ol = II(f'v_lshlrev_b32 v{vTA}, 3, v{vL}')
    for k in range(18):
        if k == 8: ol += [('AT', NSEG1 + 14, 0)]
        if k == 16: ol += [('AT', NSEG1 + 15, 0)]
        if k % 4 == 0: ol += II(f's_add_u32 s{T3}, s{OL}, 0x{OOFF + k*1024:x}')
        if k < 16: x = [Ins(f'buffer_load_dwordx4 {ar(OA+4*k)}, v{vL16}, {sr(SW)}, s{T3} offen offset:{1024*(k%4)} sc1')]
        else: x = [Ins(f'buffer_load_dwordx2 {ar(OA+4*k+2*h,2)}, v{vTA}, {sr(SW)}, s{T3} offen offset:{1024*(k%4)+512*h} sc1') for h in range(2)]
        ol += x; old.append(x[-1])
    XR2 = SP + 8
    xt_ = lambda u: f'buffer_load_dwordx4 {vr(XR2+4*u)}, v{vDG}, {sr(SX)}, s{TX} offen offset:{64*u}'
    xld = [Ins(xt_(u)) for u in range(2)]
    de0 = d_epi(ACCA, 0); st0 = [x for x in de0 if x.kind == 'vmem']; stl = [x for x in l2s if not isinstance(x, tuple) and x.kind == 'vmem']
    ost = [x for x in oe if not isinstance(x, tuple) and x.kind == 'vmem']
    de1a = d_epi(ACCB, 1, (0,)); de1b = d_epi(ACCB, 1, (1,)); st1 = [x for x in de1a + de1b if x.kind == 'vmem']
    for x in st1 + stl: loud.add(id(x)); svc[id(x)] = 3
    fill2 = [(sl, 0, stamp('slot%d' % sl, True)) for sl in range(NSEG1, NS)] + [
        (NSEG1, 0, ofl + [('AT', NSEG1 + 2, 0)] + oe + tsetup + ct3 + [('BY', NSEG1 + 9), ('AT', NSEG1 + 9, 4)] + de0 + [o3ld, ('AT', NSEG1 + 12, 4)] + l2e + [('BY', NSEG1 + 14)]
         + [('AT', NSEG1 + 13, 0), o3chk] + ol),
        (NS - 1, 19, de1a), (NSEG1 + 15, 0, l2s),
        (NSEG1, 1, own)]
    bx2 = {NSEG1 + 2: (ow, []), NSEG1 + 3: (hld[6] + hld[7], [])}
    bx2[NSEG1 + 7] = (ost, setflag(4, vPFS)); bx2[NSEG1 + 15] = (l2w + st0, setflag(5, vPFS)); bx2[NSEG1 + opt.get('l2f', 20)] = (stl, setflag(6, vPFS))
    left = segment(NSEG1, NS, fill2, bx2, first_loads=att_loads[sum(opt.get('na', [0, 8, 8, 4])) // 4:], extra_need=lambda f, mt: bmap[f.b(mt)], pre=lambda: o_epi(3))
    print('left after seg2:', len(left), file=sys.stderr)
    stamp('g2end')
    tq = flat(left) + de1b + xld
    def wo_gemm(P, acc, need_o, bg_=None, ph=None, nd_=4):
        ph = ph or [phys[n] for n in range(NS, NSX)]
        rds = {}
        wwin = [0]
        def rd(n):
            k, dt = divmod(n, nd_)
            w, o = divmod(ph[k // 4] * SLOT, 65536)
            if w != wwin[0]:
                for d in range(4): P('v_add_u32 v%d, 0x%x, v%d' % (vWT[d], ((w - wwin[0]) * 65536) & 0xffffffff, vWT[d]))
                wwin[0] = w
            f = FR + 4 * (n % 8)
            rds[n] = [P('ds_read_b64_tr_b16 %s, v%d offset:%d' % (vr(f + 2 * h, 2), vWT[dt], o + (k % 4) * 4096 + 2048 * h)) for h in range(2)]
        for n in range(7): rd(n)
        for n in range(18 * nd_):
            k, dt = divmod(n, nd_)
            nd = rds[n] + (rds[n + 1] if n % 2 == 0 else []) + ([old[k]] if need_o else [])
            P(Ins('v_mfma_f32_16x16x32_bf16 %s, %s, %s, %s' % (vr(acc + 4 * dt), vr(FR + 4 * (n % 8)), ar(OA + 4 * k), '0' if k == 0 else vr(acc + 4 * dt)), needs=nd))
            if n + 7 < 18 * nd_: rd(n + 7)
            if bg_: bg_(n)
        for d in range(4):
            if wwin[0]: P('v_add_u32 v%d, 0x%x, v%d' % (vWT[d], (-wwin[0] * 65536) & 0xffffffff, vWT[d]))
    def ploads(P, dst, extra=0):
        pl = []
        for p in range(8):
            for u in range(2):
                P(f's_add_u32 s{T3}, s{TP}, 0x{POFF + (p*18+17-u)*8192 - extra:x}')
                pl.append(P(f'buffer_load_dwordx4 {vr(dst+8*p+4*u)}, v{vL16}, {sr(SW)}, s{T3} offen sc1'))
        return pl
    def fmath(P, acc, src0, pl, xr, xl_, imm, bg_=None, nu=2):
        SUM, TT = FR, FR + 16
        for p in range(8):
            for u in range(nu):
                for q in range(4):
                    src = src0 + 8 * p + 4 * u + q; d = SUM + 8 * u + 2 * q
                    P(Ins(f'v_dot2_f32_bf16 v{d}, v{src}, s{LO}, ' + ('0' if p == 0 else f'v{d}'), needs=[pl[nu * p + u]]))
                    P(f'v_dot2_f32_bf16 v{d+1}, v{src}, s{HI}, ' + ('0' if p == 0 else f'v{d+1}'))
                if bg_: bg_(2 * p + u)
        for r in range(0, 8 * nu, 2): P(f'v_pk_mul_f32 {vr(TT+r,2)}, {vr(SUM+r,2)}, {vr(vMX,2)} op_sel:[0,1] op_sel_hi:[1,1]')
        for r in range(8 * nu): P(f'v_exp_f32 v{TT+r}, v{TT+r}')
        for r in range(0, 8 * nu, 2): P(f'v_pk_mul_f32 {vr(acc+r,2)}, {vr(acc+r,2)}, {vr(SUM+r,2)}')
        for r in range(0, 8 * nu, 2): P(f'v_pk_add_f32 {vr(TT+r,2)}, {vr(TT+r,2)}, 1.0 op_sel_hi:[1,0]')
        for r in range(8 * nu): P(f'v_rcp_f32 v{TT+r}, v{TT+r}')
        for r in range(0, 8 * nu, 2): P(f'v_pk_mul_f32 {vr(acc+r,2)}, {vr(acc+r,2)}, {vr(TT+r,2)}')
        for u in range(nu):
            for r in range(4): P(f'v_permlane16_swap_b32 v{acc+8*u+r}, v{acc+8*u+4+r}')
        for u in range(nu):
            for q in range(4):
                d = acc + 8 * u + 2 * q
                P(Ins(f'v_dot2c_f32_bf16 v{d}, s{LO}, v{xr+4*u+q}', needs=[xl_[u]]))
                P(f'v_dot2c_f32_bf16 v{d+1}, s{HI}, v{xr+4*u+q}')
        for u in range(nu):
            for q in range(4): P(cvt(xr + 4 * u + q, acc + 8 * u + 2 * q, acc + 8 * u + 2 * q + 1))
            P(f'buffer_store_dwordx4 {vr(xr+4*u)}, v{vDG}, {sr(SU)}, s{TX} offen offset:{64*u+imm} ' + opt.get('ost', 'sc1'))
    def scale_s(P, acc, nu=2):
        for r in range(0, 8 * nu, 2): P(f'v_pk_mul_f32 {vr(acc+r,2)}, {vr(acc+r,2)}, {vr(vMX,2)} op_sel_hi:[1,0]')
    ftest = [f'v_cmp_le_u32 vcc, s{TV}, v{vPFP}', 's_nop 1', f's_and_b32 s{T2}, vcc_lo, s{TM}', f's_cmp_eq_u32 s{T2}, s{TM}']
    P(Ins('s_barrier', needs=[x for n in range(NS, NSX) for x in slots[n].loads]))
    while tq and any(x in ol for x in tq): P(tq.pop(0))
    P(f's_and_b32 s{T2}, s{J}, 10')
    P(f's_cmp_eq_u32 s{T2}, 10')
    P('s_cbranch_scc1 dbl')
    S = P.fork(); tq2 = [Ins(x.text) for x in tq]
    st2 = [x for x in st1 if x.cnt is not None] + [x for x in tq2 if 'store' in x.op]
    f1 = Ins(fl_t)
    def bgt(n):
        for _ in range(2):
            if tq: P(tq.pop(0))
        if n == opt.get('nf', 48):
            P(Ins('s_barrier', needs=st1))
            P(f1)
            emit_all(setflag(7, vPFS))
    wo_gemm(P, XT, True, bgt)
    assert not tq
    stamp('wo')
    scale_s(P, XT)
    P(Ins(ftest[0], needs=[f1]))
    P('s_nop 1')
    pl = [None] * 16
    porder = opt.get('porder', [7, 6, 5, 4, 0, 1, 2, 3])
    for p in porder:
        bits = 3 << (2 * p)
        if opt.get('pb'): bits = sum(3 << (2 * y) for y in porder[porder.index(p) // opt['pb'] * opt['pb']:][:opt['pb']])
        chk = [f's_andn2_b32 s{T2}, s{TM}, vcc_lo', f's_and_b32 s{T2}, s{T2}, {bits}']
        for t_ in chk: P(t_)
        P(f's_cbranch_scc1 fp{p}_slow')
        P.label(f'fp{p}_ok')
        Z = Prog(); Z.label(f'fp{p}_slow'); Z(f's_mov_b32 s{SPN}, 400000'); Z.label(f'fp{p}_loop')
        if opt.get('fs'): Z('s_sleep %d' % opt['fs'])
        Z(fl_t); Z('s_waitcnt vmcnt(0)'); Z(ftest[0]); Z(f's_sub_u32 s{SPN}, s{SPN}, 1'); Z(f's_cbranch_scc1 fp{p}_ok')
        for t_ in chk: Z(t_)
        Z(f's_cbranch_scc1 fp{p}_loop'); Z(f's_branch fp{p}_ok'); slow.append(Z.text())
        for u in range(2):
            P(f's_add_u32 s{T3}, s{TP}, 0x{POFF + (p*18+17-u)*8192:x}')
            pl[2 * porder.index(p) + u] = P(f'buffer_load_dwordx4 {vr(ACCA+8*porder.index(p)+4*u)}, v{vL16}, {sr(SW)}, s{T3} offen sc1')
    stamp('poll')
    fmath(P, XT, ACCA, pl, XR2, xld, 0)
    stamp('x1')
    P.label('dbl_e')
    stamp('x2')
    S.label('dbl')
    TP2, TX2, U6 = 96, 97, 98
    S(f'''s_bfe_u32 s{U6}, s{J}, 0x10002
    s_lshl_b32 s{T2}, s{U6}, 9
    s_sub_u32 s{T2}, 640, s{T2}
    s_add_u32 s{TL}, s{TL}, s{T2}
    s_lshl_b32 s{U6}, s{U6}, 6
    s_add_u32 s{T2}, s{T2}, s{U6}
    s_add_u32 s{TX2}, s{TX}, s{T2}
    s_lshl_b32 s{T2}, s{T2}, 7
    s_sub_u32 s{TP2}, s{TP}, s{T2}
    s_mov_b32 s{TM}, 0xffff''')
    ph2 = [x for x in range(9) if x not in [phys[n] for n in range(NS, NSX)]] + [9]
    wq = bunch(flat([slots[NS + n].dma(ph2[n]) for n in range(5)]))
    wl = [x for g in wq for x in g if x.kind == 'vmem']
    def pl_(dst, base, nu): return [II(f's_add_u32 s{T3}, s{base}, 0x{POFF + (p*18+17-u)*8192:x}\nbuffer_load_dwordx4 {vr(dst+8*p+4*u)}, v{vL16}, {sr(SW)}, s{T3} offen sc1') for p in range(8) for u in range(nu)]
    qa = pl_(ACCA, TP, 2); qb = pl_(ACCB, TP2, 1); pa = [g[1] for g in qa]; pb = [g[1] for g in qb]
    x2 = [Ins(f'buffer_load_dwordx4 {vr(SP)}, v{vDG}, {sr(SX)}, s{TX2} offen')]
    mq = wq[:10] + [[d5ld]] + wq[10:] + [x2] + [poll_check('d5', d5ld, ftest) + qa[0]] + qa[1:] + qb
    def pop():
        if mq:
            for x in mq.pop(0):
                if x.kind == 'label': S.out.append(x)
                else: S(x)
    def bgs(n):
        if tq2:
            for _ in range(2):
                if tq2: S(tq2.pop(0))
        elif n % (2 if fdone and len(fdone) > 1 else opt.get('dp', 3)) == 0: pop()
        if n == opt.get('nfd', 28) and not fdone:
            fdone.append(1)
            S(Ins('s_barrier', needs=st2))
            for x in setflag(7, vPFS): S(x)
    fdone = []
    wo_gemm(S, XT, True, bgs)
    for x in flat(stamp('wo', True)): S(x)
    while wl[-1].cnt is None: pop()
    for _ in range(4): pop()
    S(Ins('s_barrier', needs=wl))
    for x in flat(stamp('poll', True)): S(x)
    fdone.append(1)
    for d in range(2): S(f'v_xor_b32 v{vWT[d]}, s{U6}, v{vWT[d]}')
    wo_gemm(S, XT + 16, False, bgs, ph2, 2)
    for x in flat(stamp('x1', True)): S(x)
    scale_s(S, XT)
    fmath(S, XT, ACCA, pa, XR2, [None, None], 0, lambda n: pop())
    assert not mq
    S(f's_mov_b32 s{TX}, s{TX2}')
    scale_s(S, XT + 16, 1)
    fmath(S, XT + 16, ACCB, pb, SP, x2, 0, None, 1)
    S('s_branch dbl_e'); slow.append(S.text())
    if stamps:
      P('s_waitcnt vmcnt(0)')
      stamp('end')
      P('s_waitcnt lgkmcnt(0)')
      P(f's_lshl_b32 s{T2}, s2, 7')
      P(f's_add_u32 s{T2}, s{T2}, 0x{STAMP_OFF:x}')
      if stamps == 'all':
        n = len(ALL)
        P('v_writelane_b32 v%d, s22, %d' % (77 + n // 64, n % 64))
        P(f's_lshl_b32 s{T2}, s2, 9')
        P(f's_add_u32 s{T2}, s{T2}, 0x{STAMP_OFF + (2 << 18):x}')
        P(f's_cmp_eq_u32 s{Wv}, 0')
        P(f's_cselect_b32 s{T2}, s{T2}, 0x{OOB:x}')
        P(f'v_lshlrev_b32 v80, 2, v{vL}')
        P(f'buffer_store_dword v77, v80, {sr(SW)}, s{T2} offen')
        P(f'buffer_store_dword v78, v80, {sr(SW)}, s{T2} offen offset:256')
      else:
        P('s_mov_b32 s%d, s22' % (sTS + len(stamps)))
        P('v_mov_b32 v81, 0')
        for n in range(10):
            P('v_mov_b32 v80, s%d' % (sTS + (n if opt.get('est') else min(n, len(stamps)))))
            P(f'buffer_store_dwordx2 v[80:81], v{vFL}, {sr(SW)}, s{T2} offen offset:{8*n}')
    P.label('K1_end')
    P('s_endpgm')
    print('K1: instrs', len(P.out), 'nops', P.nnop, file=sys.stderr)
    return P.text() + ''.join(reversed(slow))
```

```python
import sys, struct
sys.path.insert(0, 'gen')
from prog import *
from asmlib import STAMP_OFF

HOFF = 0x0000000
POFF = 0
BLK = 110592
KOFF = 0x2400000 + BLK
OOFF = 0x2C00000
ROFF = 0x2F00000
FOFF = 0x2F10000
WSB = 256 << 20
OOB = 0x10000000
NEG = 0xF149F2CA
SCALE = 0.2357022603955158 * 1.4426950408889634
def f2u(x): return struct.unpack('<I', struct.pack('<f', x))[0]

SLOT = 16384
XB = 5 * SLOT
HLONE = 9 * SLOT
RT4 = 155648
RTB = RT4 + 2048
RTC = RT4 + 7680
VRS = 272; LVR = RT4; LKR = LVR + 12 * VRS; LQR = LKR + 3072
NCODE = 84

def vr(b, n=4): return 'v[%d:%d]' % (b, b + n - 1)
def ar(b, n=4): return 'a[%d:%d]' % (b, b + n - 1)
def sr(b, n=4): return 's[%d:%d]' % (b, b + n - 1)
def II(text): return [Ins(l) for l in text.strip().split('\n') if l.strip()]

class Frag:
    def __init__(s, base, imm0, imm1, acc, b, first):
        s.base, s.imm, s.acc, s.b, s.first = base, (imm0, imm1), acc, b, first
class Slot:
    def __init__(s, groups, dma):
        s.groups, s.dma, s.loads = groups, dma, None

def gen_k1(JX=4, stamps=False, opt={}):
    opt = dict(dict(so=5, cls=[0, 0, 8, 8, 26, 26, 30, 30, 38, 38], qc=44, crit=72, svst=2.5, spr=1, nv1=8, hf=47, l2f=18, xs=1, qt=1, gap1=20, svk=5.5), **opt)
    assert JX == 4
    P = Prog()
    SX, SQ, SG, SU, SD, SW, SB, SL = 24, 28, 32, 36, 40, 44, 48, 52
    I, J, Wv, RG, FH, E, Pp, T0, T1, T2, T3, OFF, ST, SPN = range(56, 70)
    W4096, W3072, BP, BL1, BD, SIG = range(70, 76)
    BL2 = 76
    HS, HLN, HL, PS, PLN = range(79, 84)
    C, N0, N1 = 84, 85, 86
    QM, QC, BQ, ONE2, LO, HI, R2, XRO = 87, 91, 92, 93, 94, 95, 96, 97
    KO, KB = 87, 92
    NN = 101
    SH = 75 + 11
    OB, OR, MYF, PF, PFD, DB = 4, 5, 6, 7, 10, 11
    PFP, PFW, J0, DUM = 20, 21, 90, 18
    OUTP = 0
    ROT = 3
    sTS = 12
    vL, vL16 = 1, 2
    vDQ = [3, 4, 5, 6]; vDL2 = 7
    vDP = [8, 9]; vDL1 = 10; vTP = [11, 12]; vTL1 = 13
    vTQ = [14, 15]; vDD = [16, 17, 18, 19]; vTD = [20, 21]; vTL2 = 22
    vQS = [23]; vTB = 24; vRS = 25
    vPFP, vPFS, vHW, vFL, vDG, vOR = 26, 27, 28, 29, 30, 31
    vKM, vKR, vVM, vVR = 3, 4, 5, 6
    QW = 8
    vMX, vMN, vTA, vONES = 14, 15, 23, 25
    XT, QF, FR, ACCA, ACCB, SP = 32, 64, 80, 112, 176, 240
    ALL = ['mf0'] + ['slot%d' % n for n in range(1, 51)] + ['g1end', 'attk', 'att1', 'att2', 'att3', 'attend'] + ['slot%d' % n for n in range(52, 72)] + ['g2end', 'wo', 'poll', 'end']
    JIT = ['setup', 'ln23', 'slot10', 'slot19', 'slot25', 'slot34', 'slot43', 'slot49', 'attk', 'att2', 'slot53', 'slot61', 'slot66', 'slot71', 'g2end']
    def stamp(name, ret=False):
        if opt.get('jit'):
            if name not in JIT: return []
            n = JIT.index(name)
            x = II(f'''s_lshl_b32 s12, s2, 2
            s_add_u32 s12, s12, s{Wv}
            s_lshr_b32 s12, s12, {2 * (n % 2)}
            s_add_u32 s12, s12, {n * 7919 + opt['jit']}
            s_mul_i32 s12, s12, 0x9e3779b1
            s_lshr_b32 s12, s12, 29
            s_sub_u32 s12, s12, 4
            s_cbranch_scc1 jit{n}_e''') + [Ins(f'jit{n}:')] + II(f's_sleep 40\ns_sub_u32 s12, s12, 1\ns_cbranch_scc0 jit{n}') + [Ins(f'jit{n}_e:')]
            if ret: return [x]
            for y in x:
                if y.kind == 'label': P.out.append(y)
                else: P(y)
            return []
        if stamps == 'all':
            if name not in ALL: return []
            n = ALL.index(name)
            x = [Ins('v_writelane_b32 v%d, s22, %d' % (77 + n // 64, n % 64)), Ins('s_memtime s[22:23]')]
            if ret: return [x]
            for y in x: P(y)
            return []
        if stamps and name in stamps:
            n = stamps.index(name)
            x = [Ins('s_mov_b32 s%d, s22' % (sTS + n)), Ins('s_memrealtime s[22:23]')]
            if ret: return [x]
            for y in x: P(y)
        return []
    def breg(pos, mt):
        i = pos * 4 + mt
        return ar(4 * i) if i < 64 else vr(XT + 4 * (i - 64))
    def emit_all(lst):
        for x in lst:
            if isinstance(x, list): emit_all(x)
            elif x.kind == 'label': P.out.append(x)
            else: P(x)
    lg = lambda x: x.bit_length() - 1
    ng = 16 // JX

    P('s_cmp_ge_u32 s2, 256')
    P('s_cbranch_scc1 K1_end')
    P('s_load_dwordx16 s[4:19], s[0:1], 0')
    P('s_load_dwordx4 s[20:23], s[0:1], 64')
    if stamps: P('s_memtime s[84:85]' if stamps == 'all' else 's_memrealtime s[84:85]')
    def code_touch():
        P('s_getpc_b64 %s' % sr(SL, 2))
        P.label('K1_pc')
        P(f'''s_mov_b32 s{SL+2}, code_end-K1_pc
        s_mov_b32 s{SL+3}, 0x00020000
        s_lshr_b32 s{SPN}, s2, 3
        s_and_b32 s{SPN}, s{SPN}, 7
        s_mul_i32 s{SPN}, s{SPN}, {NCODE*128}
        v_lshlrev_b32 v80, 7, v0
        v_mov_b32 v89, 0x{OOB:x}
        v_cmp_gt_u32 vcc, {NCODE}, v0
        v_cndmask_b32 v80, v89, v80, vcc
        buffer_load_dword v79, v80, {sr(SL)}, s{SPN} offen''')
    if opt.get('ct0'):
        P('s_getpc_b64 %s' % sr(SL, 2))
        P(f'''s_mov_b32 s{SL+2}, {opt['ct0']*128}
        s_mov_b32 s{SL+3}, 0x00020000
        v_lshlrev_b32 v80, 7, v0
        buffer_load_dword v79, v80, {sr(SL)}, 0 offen''')
    if not opt.get('ctlate', 0): code_touch()
    P(f'''s_lshr_b32 s{NN}, s2, 3
    v_mov_b32 v89, 0x{OOB:x}
    v_and_b32 v{vL}, 63, v0
    v_lshrrev_b32 v80, 6, v0
    v_readfirstlane_b32 s{Wv}, v80
    s_and_b32 s{T0}, s2, 7
    s_and_b32 s{J}, s{T0}, {ng-1}
    s_lshl_b32 s{J}, s{J}, {lg(JX)}
    s_and_b32 s{T2}, s{NN}, {JX-1}
    s_or_b32 s{J}, s{J}, s{T2}
    s_lshr_b32 s{I}, s{T0}, {lg(ng)}
    s_lshl_b32 s{I}, s{I}, {lg(32//JX)}
    s_lshr_b32 s{T2}, s{NN}, {lg(JX)}
    s_or_b32 s{I}, s{I}, s{T2}
    s_and_b32 s{RG}, s{Wv}, 1
    s_lshr_b32 s{FH}, s{Wv}, 1
    s_and_b32 s{E}, s{J}, 1
    s_lshr_b32 s{Pp}, s{J}, 1
    s_and_b32 s{ROT}, s{J}, {min(JX-1, 3)}
    v_lshrrev_b32 v82, 3, v{vL}
    v_and_b32 v83, 7, v{vL}
    v_mul_u32_u24 v100, 1152, v82
    v_lshl_add_u32 v100, v83, 4, v100
    s_lshl_b32 s{T0}, s{I}, 3
    s_lshl_b32 s{T1}, s{RG}, 2
    s_add_u32 s{T0}, s{T0}, s{T1}
    s_add_u32 s{T1}, s{T0}, s{FH}
    s_mul_i32 s{T1}, s{T1}, {16*1152}''')
    if JX == 2: P(f's_lshl_b32 s{ROT}, s{ROT}, 1')
    def xro(blk):
        P(f'''s_xor_b32 s{T2}, s{ROT}, {blk}
        s_and_b32 s{T3}, s{T2}, 1
        s_lshl_b32 s{T3}, s{T3}, 3
        s_and_b32 s{T2}, s{T2}, 2
        s_lshl_b32 s{T2}, s{T2}, 4
        s_or_b32 s{XRO+blk}, s{T2}, s{T3}''')
    xro(0)
    if opt.get('est'): P('s_memrealtime s[76:77]')
    P('s_waitcnt lgkmcnt(0)')
    if opt.get('est'): P('s_memrealtime s[78:79]')
    def srd(d, b, nbytes, shift=0):
        if shift:
            P('s_sub_u32 s%d, s%d, %d' % (d, b, shift))
            P('s_subb_u32 s%d, s%d, 0' % (d + 1, b + 1))
        else:
            P('s_mov_b32 s%d, s%d' % (d, b))
            P('s_mov_b32 s%d, s%d' % (d + 1, b + 1))
        P('s_mov_b32 s%d, 0x%x' % (d + 2, nbytes + shift))
        P('s_mov_b32 s%d, 0x00020000' % (d + 3))
    srd(SX, 4, 2048 * 1152)
    XR = 112
    xl = []
    def xload(blk):
        ld = [Ins('buffer_load_dwordx4 %s, v100, %s, s%d offen offset:%d' % (vr(XR + 36 * blk + 4 * l), sr(SX), OFF, 128 * l)) for l in range(9)]
        xl.append(ld)
        return [II(f's_mul_i32 s{OFF}, s{XRO+blk}, 1152\ns_add_u32 s{OFF}, s{OFF}, s{T1}')] + [[x] for x in ld]
    if opt.get('xt'):
        P(f'''s_lshl_b32 s{T2}, s{I}, 4
        s_add_u32 s{T2}, s{T2}, s{J}
        s_lshl_b32 s{T2}, s{T2}, 2
        s_add_u32 s{T2}, s{T2}, s{Wv}
        s_mul_i32 s{T2}, s{T2}, 2304
        v_min_u32 v80, 17, v{vL}
        v_lshlrev_b32 v80, 7, v80
        buffer_load_dword v79, v80, {sr(SX)}, s{T2} offen''')
    emit_all(xload(0))
    if opt.get('ctlate', 0): code_touch()
    if opt.get('est'): P('s_memrealtime s[80:81]')
    if opt.get('est') == 2:
        P('s_waitcnt vmcnt(8)')
        P('s_memrealtime s[82:83]')
        P('s_waitcnt vmcnt(0)')
        P('s_memrealtime s[86:87]')
    for blk in range(1, 4): xro(blk)
    srd(SQ, 6, 576 * 3456, shift=2048)
    RS = 36 // JX
    NT = ' nt' if opt.get('nt') else ''
    P(f'''s_and_b32 s{J0}, s{J}, {16-JX}
    s_and_b32 s{SH}, s2, 7
    s_lshr_b32 s{SH}, s{SH}, {lg(ng)}
    s_lshl_b32 s{SH}, s{SH}, 5
    s_add_u32 s{SH}, s{SH}, s{NN}
    v_lshrrev_b32 v86, {lg(2*JX)}, v0
    v_and_b32 v87, {2*JX-1}, v0
    v_mul_u32_u24 v88, 3456, v86
    v_lshl_add_u32 v87, v87, 7, v88
    v_cmp_gt_u32 vcc, {RS}, v86
    v_cndmask_b32 v87, v89, v87, vcc
    s_mul_i32 s{ST}, s{SH}, {RS*3456}
    s_lshl_b32 s{T2}, s{J0}, 8
    s_add_u32 s{BL2}, s{ST}, s{T2}
    v_mov_b32 v104, v87''')
    qtouch = [Ins(f'buffer_load_dword v79, v104, {sr(SQ)}, s{BL2} offen offset:2048' + NT)]

    srd(SG, 12, 576 * 9216)
    srd(SU, 14, 576 * 9216, shift=2048)
    srd(SD, 16, 4608 * 1152, shift=2048)
    srd(SW, 22, WSB)
    srd(SB, 20, 256)
    P(f's_mov_b64 {sr(OUTP,2)}, s[18:19]')
    P(f'''s_cmp_ge_u32 s{Wv}, 2
    s_cselect_b32 s{SL}, s14, s12
    s_cselect_b32 s{SL+1}, s15, s13
    s_mov_b32 s{SL+2}, 0x{576*9216:x}
    s_mov_b32 s{SL+3}, 0x00020000
    s_mul_i32 s{PFP}, s{SH}, {RS*9216}
    s_mul_i32 s{T2}, s{RG}, {1152 if JX == 4 else 9*9216}
    s_add_u32 s{PFP}, s{PFP}, s{T2}
    s_mul_i32 s{T2}, s{J0}, 576
    s_add_u32 s{PFP}, s{PFP}, s{T2}''')
    if stamps: P('s_mov_b64 s[22:23], s[84:85]')
    P(f'''s_lshl_b32 s{W4096}, s{Wv}, 12
    s_lshl_b32 s{BQ}, s{J}, 8
    s_mul_i32 s{T2}, s{Wv}, {16*3456}
    s_add_u32 s{BQ}, s{BQ}, s{T2}
    s_cmp_ge_u32 s{J}, 14
    s_cselect_b32 s{BQ}, 0x{OOB:x}, s{BQ}
    s_mov_b32 s{ONE2}, 0x3f803f80
    s_mov_b32 s{LO}, 0x00003f80
    s_mov_b32 s{HI}, 0x3f800000
    v_lshrrev_b32 v84, 4, v{vL}
    v_and_b32 v85, 15, v{vL}
    v_cmp_eq_u32 vcc, 0, v0
    v_cndmask_b32 v{vFL}, v89, 0, vcc
    v_lshlrev_b32 v86, 1, v82
    v_and_b32 v86, 4, v86
    v_xor_b32 v86, v83, v86
    v_mul_u32_u24 v87, 9216, v82
    v_lshl_add_u32 v{vDP[0]}, v86, 4, v87
    v_mul_u32_u24 v88, 3456, v82
    v_lshl_add_u32 v90, v86, 4, v88
    v_add_u32 v{vDQ[0]}, 2048, v90
    v_add_u32 v{vDQ[2]}, 128, v90
    v_xor_b32 v86, 2, v86
    v_lshl_add_u32 v{vDP[1]}, v86, 4, v87
    v_add_u32 v{vDP[1]}, {8*9216-1024}, v{vDP[1]}
    v_lshl_add_u32 v90, v86, 4, v88
    v_add_u32 v{vDQ[1]}, {8*3456-1024+2048}, v90
    v_add_u32 v{vDQ[3]}, {8*3456-1024+128}, v90
    s_lshl_b32 s{SIG}, s{E}, 1
    s_sub_u32 s{SIG}, 1, s{SIG}
    s_mul_i32 s{BP}, s{Pp}, 1152
    s_lshl_b32 s{T3}, s{E}, 10
    s_add_u32 s{BP}, s{BP}, s{T3}
    s_mul_i32 s{T3}, s{Wv}, {16*9216}
    s_add_u32 s{BP}, s{BP}, s{T3}
    v_and_b32 v87, 3, v{vL}
    v_lshrrev_b32 v86, 2, v85
    v_and_b32 v88, 1, v84
    v_lshrrev_b32 v92, 1, v84
    v_lshlrev_b32 v90, 12, v92
    v_lshl_add_u32 v90, v88, 10, v90
    v_lshl_add_u32 v90, v86, 7, v90
    v_lshrrev_b32 v91, 1, v86
    v_xor_b32 v91, s{FH}, v91
    v_lshl_add_u32 v90, v91, 6, v90
    v_lshl_add_u32 v90, v88, 5, v90
    v_lshl_add_u32 v{vTQ[0]}, v87, 3, v90
    v_xor_b32 v{vTQ[1]}, 32, v{vTQ[0]}
    s_lshl_b32 s{T2}, s{E}, 6
    v_xor_b32 v{vTP[0]}, s{T2}, v{vTQ[0]}
    v_xor_b32 v{vTP[1]}, s{T2}, v{vTQ[1]}
    s_mul_i32 s{ST}, s{RG}, {2*18432}
    s_add_u32 s{ST}, s{ST}, {XB}
    v_xor_b32 v90, v85, v84
    v_lshlrev_b32 v90, 4, v90
    v_lshl_add_u32 v90, v84, 8, v90
    v_add_u32 v65, s{ST}, v90
    v_xor_b32 v66, 64, v65
    s_mul_i32 s{T2}, s{FH}, 18432
    s_add_u32 s{ST}, s{ST}, s{T2}
    s_and_b32 s{T2}, s{XRO}, 8
    s_lshl_b32 s{T2}, s{T2}, 4
    s_add_u32 s{ST}, s{ST}, s{T2}
    v_xor_b32 v90, v82, v83
    v_lshlrev_b32 v90, 4, v90
    v_lshl_add_u32 v90, v83, 8, v90
    v_add_u32 v64, s{ST}, v90
    v_xor_b32 v76, 128, v64
    s_lshl_b32 s{T2}, s{RG}, 6
    s_lshl_b32 s{T3}, s{FH}, 4
    s_add_u32 s{T2}, s{T2}, s{T3}
    v_add_u32 v67, s{T2}, v82''')
    def G(text): return [II(text)]
    P(f'''s_lshl_b32 s{T2}, s{I}, 4
    s_add_u32 s{T2}, s{T2}, s{J}
    s_lshl_b32 s{MYF}, s{T2}, 7
    s_add_u32 s{MYF}, s{MYF}, 0x{FOFF:x}
    s_lshl_b32 s{DB}, s{I}, 2
    s_lshl_b32 s{T2}, 1, s{J}
    v_mov_b32 v105, s{T2}
    v_mov_b32 v86, 0''')
    freset = P(f'buffer_store_dword v86, v{vFL}, {sr(SW)}, s{MYF} offen sc1')
    fatom = Ins(f'buffer_atomic_or v105, v{vFL}, {sr(SB)}, s{DB} offen offset:8', needs=[freset])
    late0 = II(f'''s_mul_i32 s{W3072}, s{Wv}, 3072
    s_lshl_b32 s{T2}, s{I}, 4
    s_add_u32 s{T2}, s{T2}, s{J}
    v_mov_b32 v207, 0
    s_xor_b32 s{PF}, s{MYF}, 128
    s_mul_i32 s{HS}, s{T2}, {9*8192}
    s_xor_b32 s{T2}, s{T2}, 1
    s_mul_i32 s{HL}, s{T2}, {9*8192}
    s_lshl_b32 s{T2}, s{RG}, 12
    s_add_u32 s{HS}, s{HS}, s{T2}
    s_lshl_b32 s{T3}, s{FH}, 11
    s_add_u32 s{HLN}, s{HS}, s{T3}
    s_add_u32 s{HLN}, s{HLN}, {8*8192}
    s_add_u32 s{HL}, s{HL}, s{T2}
    s_lshl_b32 s{T3}, s{FH}, 13
    s_add_u32 s{HS}, s{HS}, s{T3}
    s_mul_i32 s{BL1}, s{Pp}, 1152
    s_lshl_b32 s{T2}, s{E}, 6
    s_add_u32 s{T2}, s{T2}, 512
    s_add_u32 s{BL1}, s{BL1}, s{T2}
    s_mul_i32 s{T3}, s{RG}, {48*9216}
    s_add_u32 s{BL1}, s{BL1}, s{T3}''')
    late0b = II(f'''s_lshl_b32 s{T2}, s{RG}, 12
    s_lshl_b32 s{T3}, s{I}, 3
    s_add_u32 s{T3}, s{T3}, s{Pp}
    s_mul_i32 s{PS}, s{T3}, {18*8192}
    s_add_u32 s{PS}, s{PS}, s{T2}
    s_add_u32 s{PS}, s{PS}, 0x{POFF:x}
    s_sub_u32 s{T3}, 9, s{E}
    s_lshl_b32 s{T3}, s{T3}, 13
    s_add_u32 s{PLN}, s{PS}, s{T3}
    s_lshl_b32 s{T3}, s{FH}, 11
    s_xor_b32 s{T3}, s{T3}, s{ROT}
    s_add_u32 s{PLN}, s{PLN}, s{T3}
    s_add_u32 s{PS}, s{PS}, s{ROT}
    s_mul_i32 s{T3}, s{E}, 10
    s_add_u32 s{T3}, s{T3}, s{FH}
    s_sub_u32 s{T3}, 17, s{T3}
    s_lshl_b32 s{T3}, s{T3}, 13
    s_add_u32 s{PS}, s{PS}, s{T3}
    s_lshl_b32 s{T2}, s{E}, 6
    s_add_u32 s{T2}, s{T2}, 512
    s_mul_i32 s{T1}, s{Pp}, {576*1152}
    s_mul_i32 s{T3}, s{E}, {17*32*1152}
    s_add_u32 s{T1}, s{T1}, s{T3}
    s_mul_i32 s{BD}, s{E}, 640
    s_add_u32 s{BD}, s{BD}, s{T1}
    s_mul_i32 s{T3}, s{FH}, s{SIG}
    s_mul_i32 s{T3}, s{T3}, {32*1152}
    s_add_u32 s{BD}, s{BD}, s{T3}
    s_mul_i32 s{T3}, s{RG}, {16*1152}
    s_add_u32 s{BD}, s{BD}, s{T3}
    s_add_u32 s{T1}, s{T1}, s{T2}''')
    for t in range(3):
        late0b += II(f'''s_mul_i32 s{T2}, s{Wv}, 3
        s_add_u32 s{T2}, s{T2}, {t}
        s_lshr_b32 s{T3}, s{T2}, 1
        s_mul_i32 s{T3}, s{T3}, s{SIG}
        s_mul_i32 s{T3}, s{T3}, {32*1152}
        s_add_u32 s{BL2+t}, s{T1}, s{T3}
        s_and_b32 s{T2}, s{T2}, 1
        s_mul_i32 s{T2}, s{T2}, {16*1152}
        s_add_u32 s{BL2+t}, s{BL2+t}, s{T2}
        s_add_u32 s{BL2+t}, s{BL2+t}, {2048-1024*t}''')
    late0 += II(f'''s_mul_i32 s{T2}, s{T0}, {BLK//2}
    s_lshl_b32 s{T3}, s{J}, 13
    s_add_u32 s{T2}, s{T2}, s{T3}
    s_lshl_b32 s{T3}, s{FH}, 11
    s_add_u32 s{T2}, s{T2}, s{T3}
    s_add_u32 s{T2}, s{T2}, 0x{KOFF:x}
    s_and_b32 s{ROT}, s{ROT}, 2
    s_mul_i32 s{T3}, s{ROT}, {BLK//2}
    s_add_u32 s{T2}, s{T2}, s{T3}
    s_sub_u32 s{QM+2}, 1, s{ROT}
    s_mul_i32 s{QM+2}, s{QM+2}, {BLK}
    s_lshl_b32 s{ROT}, s{ROT}, 10
    s_movk_i32 s{QC}, 4096''')
    late0 += G(f's_cmp_ge_u32 s{J}, 14\ns_cselect_b32 s{QM}, 0x{2*OOB:x}, s{T2}')
    late0 += G(f's_cmp_eq_u32 s{J}, 13\ns_cselect_b32 s{QC}, 0x{OOB:x}, s{QC}')
    late0b += II(f'''s_lshl_b32 s{T2}, s{FH}, 1
    s_add_u32 s{T2}, s{T2}, s{T0}
    s_mul_i32 s{OB}, s{T2}, 18432
    s_lshl_b32 s{T2}, s{J}, 10
    s_add_u32 s{OB}, s{OB}, s{T2}
    s_add_u32 s{OB}, s{OB}, 0x{OOFF:x}
    s_mul_i32 s{OR}, s{I}, {8*18432}
    s_lshl_b32 s{T2}, s{J}, 7
    s_add_u32 s{OR}, s{OR}, s{T2}
    s_add_u32 s{OR}, s{OR}, 0x{OOFF+16384:x}''')
    late0b += G(f's_cmp_eq_u32 s{Wv}, 0\ns_cselect_b32 s{OR}, s{OR}, 0x{OOB:x}')
    late0b += II(f'''s_mov_b32 s{C}, 0x{f2u(SCALE):x}''')
    late0b += G(f's_cmp_lt_u32 s{I}, 2\ns_cselect_b32 s{N0}, 0xffff, 0') + G(f's_cmp_lt_u32 s{I}, 1\ns_cselect_b32 s{N1}, 0xffff, 0')
    late0 += II(f'''s_mul_i32 s{PFD}, s{J0}, {288*1152}
    s_mul_i32 s{T2}, s{SH}, {162*128}
    s_add_u32 s{PFD}, s{PFD}, s{T2}
    s_mul_i32 s{T2}, s{Wv}, {41*128}
    s_add_u32 s{PFD}, s{PFD}, s{T2}''')
    late0 += II(f'''v_lshlrev_b32 v{vL16}, 4, v{vL}
    v_lshrrev_b32 v182, 3, v{vL}
    v_and_b32 v183, 7, v{vL}
    v_lshrrev_b32 v184, 4, v{vL}
    v_and_b32 v185, 15, v{vL}
    v_and_b32 v186, 6, v182
    v_xor_b32 v186, v183, v186
    v_mul_u32_u24 v187, 1152, v182
    v_lshl_add_u32 v187, v186, 4, v187''')
    for t in range(4):
        late0 += II('v_add_u32 v%d, %d, v187' % (vDD[t], (t & 1) * (8 * 1152 - 1024) + (t >> 1) * (128 - 2048) + 2048))
    late0 += II(f'''v_lshrrev_b32 v186, 2, v{vL}
    v_and_b32 v187, 3, v{vL}
    v_and_b32 v188, 2, v184
    v_xor_b32 v188, v187, v188
    v_mul_u32_u24 v190, 9216, v186
    v_lshl_add_u32 v{vDL1}, v188, 4, v190
    v_and_b32 v188, 1, v184
    v_lshlrev_b32 v188, 1, v188
    v_xor_b32 v188, v187, v188
    v_mul_u32_u24 v190, 1152, v186
    v_lshl_add_u32 v{vDL2}, v188, 4, v190
    v_lshrrev_b32 v186, 2, v185
    v_and_b32 v188, 1, v184
    v_lshrrev_b32 v192, 1, v184
    v_lshl_add_u32 v190, v184, 3, v186
    v_lshlrev_b32 v190, 6, v190
    v_xor_b32 v191, s{FH}, v188
    v_lshl_add_u32 v190, v191, 5, v190
    v_lshl_add_u32 v{vTL1}, v187, 3, v190
    v_lshl_add_u32 v190, v184, 2, v186
    v_lshlrev_b32 v190, 6, v190
    v_lshl_add_u32 v190, v191, 5, v190
    v_lshl_add_u32 v{vTL2}, v187, 3, v190
    v_lshl_add_u32 v190, v188, 2, v186
    v_lshrrev_b32 v191, 1, v190
    s_lshl_b32 s{T2}, s{FH}, 1
    v_xor_b32 v191, s{T2}, v191
    v_lshlrev_b32 v190, 7, v190
    v_lshl_add_u32 v190, v192, 10, v190
    v_lshl_add_u32 v190, v191, 5, v190
    v_lshl_add_u32 v{vTD[0]}, v187, 3, v190
    v_xor_b32 v{vTD[1]}, 32, v{vTD[0]}
    v_mov_b32 v189, 0x{OOB:x}
    v_cmp_eq_u32 vcc, 0, v184
    v_lshlrev_b32 v190, 2, v184
    v_sub_u32 v{vDG}, v190, v185
    v_cndmask_b32 v{vOR}, v189, v{vL16}, vcc
    s_lshl_b32 s{T2}, s{RG}, 12
    v_add_u32 v{vHW}, s{T2}, v{vL16}''')
    late0 += G(f's_cmp_ge_u32 s{J}, 9\ns_cselect_b64 vcc, -1, 0')
    late0 += II(f'''v_lshlrev_b32 v191, 6, v185
    v_lshl_add_u32 v191, v184, 4, v191
    v_cndmask_b32 v{vQS[0]}, v{vL16}, v191, vcc
    v_lshlrev_b32 v190, 4, v185
    v_add_u32 v190, {RT4}, v190
    v_lshlrev_b32 v191, 4, v184
    v_add_u32 v191, {RTB}, v191
    v_cndmask_b32 v190, v190, v191, vcc
    s_lshl_b32 s{T2}, s{RG}, 10
    v_add_u32 v{vRS}, s{T2}, v190''')

    slots = []
    def dma4(srds, voffs, sbase, add, sadd=0, bump=None, pre=''):
        def f(rp):
            if bump is not None:
                g = [II((bump + '\n' if bump else '') + f's_add_u32 s{OFF}, s{sbase}, {add}\ns_add_u32 m0, s{W4096}, {rp*SLOT}')]
            elif sadd and not add:
                g = [II(pre + f's_mul_i32 s{OFF}, s{SIG}, {sadd}\ns_add_u32 s{OFF}, s{OFF}, s{sbase}\ns_add_u32 m0, s{W4096}, {rp*SLOT}')]
            elif sadd:
                g = [II(f's_mul_i32 s{OFF}, s{SIG}, {sadd}\ns_add_u32 s{OFF}, s{OFF}, s{sbase}'),
                     II(f's_add_u32 s{OFF}, s{OFF}, {add}\ns_add_u32 m0, s{W4096}, {rp*SLOT}')]
            else:
                g = [II(f's_add_u32 s{OFF}, s{sbase}, {add}\ns_add_u32 m0, s{W4096}, {rp*SLOT}')]
            for t in range(4):
                g.append([Ins('buffer_load_dwordx4 v%d, %s, s%d offen offset:%d lds' % (voffs[t], sr(srds[t]), OFF, 1024 * t))])
            return g
        return f
    def dma_l1(s):
        def f(rp):
            g = []
            for t in range(3):
                pre = II(f's_add_u32 s{OFF}, s{BL1}, {s*96*9216 + t*(16*9216-1024)}')
                if t == 0: pre += II(f's_add_u32 m0, s{W3072}, {rp*SLOT}')
                g.append(pre)
                g.append(II(f'buffer_load_dwordx4 v{vDL1}, {sr(SL)}, s{OFF} offen offset:{1024*t} lds'))
            return g
        return f
    def dma_l2(s):
        def f(rp):
            g = [II(f's_add_u32 m0, s{W3072}, {rp*SLOT}')]
            for t in range(3):
                g.append(II(f's_mul_i32 s{OFF}, s{SIG}, {s*192*1152}\ns_add_u32 s{OFF}, s{OFF}, s{BL2+t}'))
                g.append(II(f'buffer_load_dwordx4 v{vDL2}, {sr(SD)}, s{OFF} offen offset:{1024*t} lds'))
            return g
        return f
    def regroup(gs):
        if not opt.get('rg', 1): return gs
        fl = [f for g in gs for f in g]
        return [fl[n:n + 2] for n in range(0, 6, 2)]
    def accf(base, tile): return lambda mt: base + (tile * 4 + mt) * 4
    def bf(pos): return lambda mt: breg(pos, mt)
    def pairlike(vT, acc, s):
        return [[Frag(vT[ft], ks * 8192 + m * 2048, ks * 8192 + m * 2048 + 512, accf(acc, 2 * m + ft), bf(2 * s + ks), s == 0 and ks == 0) for ks in range(2)] for m in range(2) for ft in range(2)]
    for s in range(9):
        slots.append(Slot(pairlike(vTQ, ACCA, s), dma4([SQ] * 4, vDQ, BQ, s * 64 * 3456)))
    PACC = [ACCB, ACCB, ACCA, ACCB]
    def pstep(q):
        for s in range(9):
            slots.append(Slot(pairlike(vTP, PACC[q], s), dma4([SG, SG, SU, SU], [vDP[0], vDP[1], vDP[0], vDP[1]], BP, s * 64 * 9216, bump=(f's_lshl_b32 s{OFF}, s{SIG}, 7\ns_add_u32 s{BP}, s{BP}, s{OFF}' if s == 0 and q else ''))))
    pstep(0)
    for s in range(6):
        gs = [[Frag(vTL1, m * 6144 + ks * 2048, m * 6144 + ks * 2048 + 256, accf(ACCA, m), bf(3 * s + ks), s == 0 and ks == 0) for ks in range(3)] for m in range(2)]
        slots.append(Slot(regroup(gs), dma_l1(s)))
    pstep(1); pstep(2); pstep(3)
    NSEG1 = len(slots)
    hpos = {}
    for n, k in enumerate([6, 7, 11, 10]): hpos[k] = n
    for n, k in enumerate([0, 1, 2, 3, 4, 5, 16, 17, 14, 15, 12, 13, 9, 8]): hpos[k] = 4 + n
    lorder = [8, 7, 6, 0, 1, 2, 4, 3, 5]
    def dstep(q):
        acc = ACCA
        for n, ln in enumerate(lorder):
            gs = [[Frag(vTD[ft], ks * 8192 + c * 2048, ks * 8192 + c * 2048 + 4096, accf(acc, 2 * c + ft), bf(hpos[2 * ln + ks]), n == 0 and ks == 0) for ks in range(2)] for c in range(2) for ft in range(2)]
            slots.append(Slot(gs, dma4([SD] * 4, vDD, BD, 0, ln * 64 * 1152, pre=(f's_add_u32 s{BD}, s{BD}, 256\n' if q and n == 0 else ''))))
    dstep(0)
    for s in range(3):
        gs = [[Frag(vTL2, ks * 2048, ks * 2048 + 1024, accf(SP, 0), bf(hpos[6 * s + ks]), s == 0 and ks == 0) for ks in range(3 * hg, 3 * hg + 3)] for hg in range(2)]
        slots.append(Slot(regroup(gs), dma_l2(s)))
    n0 = len(slots); dstep(1)
    for sl in slots[n0:]:
        for g in sl.groups:
            for f in g: f.acc = (lambda old: (lambda mt: old(mt) + (ACCB - ACCA)))(f.acc)
    NS = len(slots)
    vWD = [3, 4, 5, 6]; vWD2 = 8; vWT = [9, 10, 11, 12]; vPL = 13
    TL, TP, TX, TM, TV, OL, FB = 87, 88, 89, 90, 91, 92, 93
    for s in range(4): slots.append(Slot([], dma4([SG] * 4, vWD, TL, s * 4 * 36 * 1152)))
    def dma_w2(rp):
        return [II(f's_mul_i32 s{OFF}, s{Wv}, {(144-36)*1152}\ns_add_u32 s{OFF}, s{OFF}, s{TL}\ns_lshr_b32 m0, s{W4096}, 1\ns_add_u32 m0, m0, {rp*SLOT}'),
                II(f'buffer_load_dwordx4 v{vWD2}, {sr(SG)}, s{OFF} offen lds'), II(f's_add_u32 s{OFF}, s{OFF}, {72*1152-1024}'),
                II(f'buffer_load_dwordx4 v{vWD2}, {sr(SG)}, s{OFF} offen offset:1024 lds')]
    slots.append(Slot([], dma_w2))
    NSX = len(slots)
    phys = {n: n for n in range(9)}; load_at = {}; hphys = {}
    nxt = 9
    divert = {18: 0, 33: 1, 42: 2, 50: 3}
    for n in range(2, NSEG1):
        if n in divert: hphys[divert[n]] = phys[n - 2]
        else: phys[nxt] = phys[n - 2]; load_at[n] = nxt; nxt += 1
    att_loads = []
    for f in [phys[NSEG1 - 2], phys[NSEG1 - 1], hphys[0], hphys[1], hphys[2]]:
        phys[nxt] = f; att_loads.append(nxt); nxt += 1
    extra_loads = {}
    for n in range(NSEG1 + 2, NS):
        q = n - (NSEG1 + 2)
        if q == 1: phys[nxt] = hphys[3]; extra_loads[n] = [nxt]; nxt += 1
        if nxt < NSX: phys[nxt] = phys[n - 2]; load_at[n] = nxt; nxt += 1
    assert nxt == NSX
    def dma_groups(n):
        g = slots[n].dma(phys[n])
        slots[n].loads = [x for grp in g for x in grp if x.kind == 'vmem']
        return g

    SV = opt.get('sv', 4.75)
    loud = set(); svc = {}
    def T(text, q=56):
        x = Ins(text); loud.add(id(x)); svc[id(x)] = q; return x
    VLS = opt.get('vls', [[0, 8, 4, 1, 7], [2, 6, 3, 5]])
    def pf_gu(VL, t0, msk, q=0):
        nl = len(VL); tab = sum(l << (4 * n) for n, l in enumerate(VL)); a_, b_, c_ = t0, t0 + 1, t0 + 2
        return II(f'''v_mul_u32_u24 v{b_}, {65536//nl+1}, v{vL}
        v_lshrrev_b32 v{b_}, 16, v{b_}
        v_cmp_gt_u32 {msk}, 9, v{b_}
        v_mul_u32_u24 v{a_}, {4*nl}, v{b_}
        v_lshlrev_b32 v{c_}, 2, v{vL}
        v_sub_u32 v{a_}, v{c_}, v{a_}
        v_mov_b32 v{c_}, 0x{tab:x}
        v_bfe_u32 v{a_}, v{c_}, v{a_}, 4
        v_mul_u32_u24 v{b_}, 9216, v{b_}
        v_lshl_add_u32 v{b_}, v{a_}, 7, v{b_}
        v_mov_b32 v{a_}, 0x{OOB:x}
        v_cndmask_b32 v{b_}, v{a_}, v{b_}, {msk}''') + [T(f'buffer_load_dword v0, v{b_}, {sr(SL)}, s{PFP} offen' + NT, q)]
    if opt.get('walk', 1):
        P('s_mov_b64 exec, 0')
        for w in range(3):
            P(f's_cmp_eq_u32 s{Wv}, {w}')
            P(f's_cbranch_scc1 LAND{w}')
        P('s_branch LAND3')
        P.label('WALK_END')
        P('s_mov_b64 exec, -1')
    emit_all(xload(1))
    stamp('setup')
    if opt.get('est'):
        P('s_waitcnt lgkmcnt(0)')
        for n, r in enumerate((76, 78, 80, 82, 86)): P('s_mov_b32 s%d, s%d' % (sTS + 5 + n, r))

    NPRE = opt.get('npre', 5)
    GU2 = 0
    gA, gB = pf_gu(VLS[0], 106, 's[78:79]'), pf_gu(VLS[1], 106, 's[78:79]')
    if opt.get('tlb'):
        qtouch = qtouch + II(f'''v_lshlrev_b32 v106, 21, v0
        v_min_u32 v107, 24, v0
        v_lshlrev_b32 v107, 21, v107
        buffer_load_dword v0, v107, {sr(SW)}, 0 offen sc1
        buffer_load_dword v79, v106, {sr(SD)}, 0 offen offset:2048
        buffer_load_dword v79, v106, {sr(SG)}, 0 offen
        buffer_load_dword v79, v106, {sr(SU)}, 0 offen offset:2048
        s_mov_b32 s80, s{OUTP}
        s_mov_b32 s81, s{OUTP+1}
        s_mov_b32 s82, 0x{2048*1152:x}
        s_mov_b32 s83, 0x00020000
        buffer_load_dword v79, v106, s[80:83], 0 offen sc1
        s_mov_b32 s80, s8
        s_mov_b32 s81, s9
        s_mov_b32 s82, 0x{576*1152:x}
        buffer_load_dword v79, v106, s[80:83], 0 offen''')
    dm0 = [g for n in range(NPRE) for g in dma_groups(n)]
    if opt.get('so', 0) == 0:
        bg = [('GAP', 30)] + xload(2) + xload(3) + [qtouch, ('GAP', 150)] + dm0 + [gA, gB, [fatom]]
    elif opt.get('so', 0) == 3:
        bg = [('GAP', 30)] + xload(2) + xload(3) + [qtouch, gA, [fatom], ('GAP', opt.get('ga', 330))] + dm0
    elif opt.get('so', 0) == 4:
        bg = [('GAP', 30)] + xload(2) + xload(3) + [qtouch, gA, ('GAP', opt.get('ga', 330))] + dm0 + [gB, [fatom]]
    elif opt.get('so', 0) == 5:
        sp = lambda l: [y for x in l for y in ([x, ('GAP', opt['xs'])] if opt.get('xs') and x[0].kind == 'vmem' else [x])]
        bg = [('GAP', opt.get('gap0', 30))] + sp(xload(2)) + ([qtouch] if opt.get('qt') == 1 else []) + sp(xload(3)) + ([] if opt.get('qt') == 1 else [qtouch]) + [('GAP', opt.get('gap1', 150))] + dm0 + [gA, [fatom]]
    elif opt.get('so', 0) == 1:
        bg = [('GAP', opt.get('gap0', 30)), qtouch, gA, ('GAP', opt.get('ga', 200))] + xload(2) + xload(3) + dm0 + [gB, [fatom]]
    else:
        bg = [('GAP', opt.get('gap0', 30))] + xload(2) + [qtouch, gA, ('GAP', opt.get('ga', 300))] + xload(3) + dm0 + [gB, [fatom]]
    cnt = [0]; lq = []; lcnt = [0, 10]
    EVERY = opt.get('every', 8)
    def V(t, needs=()):
        r = P(Ins(t, needs))
        cnt[0] += 1
        if bg and cnt[0] >= EVERY:
            cnt[0] = 0
            while bg:
                g = bg.pop(0)
                if isinstance(g, tuple): cnt[0] = -g[1]; break
                emit_all(g)
                if any(x.kind == 'vmem' for x in g): break
        lcnt[0] += 1
        if lq and lcnt[0] >= lcnt[1]:
            lcnt[0] = 0; emit_all([lq.pop(0)])
        return r
    def reduce8(r):
        V('v_add_f32_dpp v%d, v%d, v%d quad_perm:[1,0,3,2] row_mask:0xf bank_mask:0xf' % (r, r, r))
        V('v_add_f32_dpp v%d, v%d, v%d quad_perm:[2,3,0,1] row_mask:0xf bank_mask:0xf' % (r, r, r))
        V('v_add_f32_dpp v%d, v%d, v%d row_half_mirror row_mask:0xf bank_mask:0xf' % (r, r, r))
    KEEP = [vPFP, vPFS, vTB, vRS]
    def ln_block(blk, defer=False):
        X = XR + 36 * blk
        wa = [64, 76][blk & 1]
        for n in range(36):
            if n < 2: V('v_dot2_f32_bf16 v%d, v%d, s%d, 0' % (68 + n, X + n, ONE2), needs=[xl[blk][0]])
            else: V('v_dot2_f32_bf16 v%d, v%d, s%d, v%d' % (68 + n % 2, X + n, ONE2, 68 + n % 2), needs=[xl[blk][n // 4]])
        stamp('sum%d' % blk)
        V('v_add_f32 v68, v68, v69')
        reduce8(68)
        V('v_mul_f32 v68, 0x%x, v68' % f2u(-1.0 / 576))
        wr = []
        LAG = 2
        for n in range(36 + LAG + 1):
            if n < 36:
                t = 80 + 2 * (n % 8)
                V('v_dot2_f32_bf16 v%d, v%d, s%d, v68' % (t, X + n, LO))
                V('v_dot2_f32_bf16 v%d, v%d, s%d, v68' % (t + 1, X + n, HI))
            m = n - LAG
            if 0 <= m < 36:
                t = 80 + 2 * (m % 8)
                V('v_cvt_pk_bf16_f32 v%d, v%d, v%d' % (X + m, t, t + 1))
            m = n - LAG - 1
            if 0 <= m < 36:
                V('v_dot2_f32_bf16 v%d, v%d, v%d, %s' % (KEEP[blk], X + m, X + m, '0' if m == 0 else 'v%d' % KEEP[blk]))
                if m % 4 == 3:
                    w = Ins('ds_write_b128 v%d, %s offset:%d' % (wa, vr(X + m - 3), (m // 4) * 2048)); wr.append(w)
                    if not defer: P(w)
        return wr, list(wr)
    lnfin = []
    for pat in ('quad_perm:[1,0,3,2]', 'quad_perm:[2,3,0,1]', 'row_half_mirror'):
        lnfin += [Ins(f'v_add_f32_dpp v{r}, v{r}, v{r} {pat} row_mask:0xf bank_mask:0xf') for r in KEEP]
    lnfin += II(f'''s_mov_b32 s76, 0xaaaaaaaa
    s_mov_b32 s77, 0xaaaaaaaa
    v_cndmask_b32 v{KEEP[0]}, v{KEEP[0]}, v{KEEP[1]}, s[76:77]
    v_cndmask_b32 v{KEEP[2]}, v{KEEP[2]}, v{KEEP[3]}, s[76:77]
    s_mov_b32 s76, 0xcccccccc
    s_mov_b32 s77, 0xcccccccc
    v_mov_b32 v181, 0x{f2u(1e-5):x}
    v_cndmask_b32 v{KEEP[0]}, v{KEEP[0]}, v{KEEP[2]}, s[76:77]
    v_fmac_f32 v181, 0x{f2u(1.0 / 576):x}, v{KEEP[0]}
    v_rsq_f32 v176, v181
    v_lshlrev_b32 v180, 3, v{vL}
    v_xor_b32 v180, s{XRO}, v180
    v_and_b32 v180, 8, v180
    v_add_u32 v180, v180, v67
    v_and_b32 v181, 2, v{vL}
    v_lshl_add_u32 v180, v181, 4, v180
    v_mov_b32 v177, v176
    v_mov_b32 v178, v176
    v_mov_b32 v179, v176
    v_and_b32 v181, 0x70, v180
    v_mul_u32_u24 v181, 12, v181
    v_lshl_add_u32 v181, v180, 2, v181
    v_add_u32 v181, {RTB}, v181
    v_lshlrev_b32 v193, 2, v180
    v_add_u32 v193, {RTC}, v193
    v_lshlrev_b32 v180, 4, v180
    v_add_u32 v180, {RT4}, v180''')
    lnw = [Ins('ds_write_b128 v180, v[176:179]', cost=2), Ins('ds_write_b32 v181, v176'), Ins('ds_write_b32 v193, v176')]
    lnfin += lnw
    slow = []
    nlab = [0]
    def alt_site(inline, other):
        nlab[0] += 1; n = nlab[0]
        slow.append(f'alt{n}:\n' + ''.join('    %s\n' % t for t in other) + f'    s_branch alt{n}_e\n')
        return [Ins(f's_cbranch_vccz alt{n}')] + inline + [Ins(f'alt{n}_e:')]
    def xn_reads(rho):
        return [Ins('ds_read_b128 %s, v%d offset:%d' % (breg(ks, 2 * rho + t), 65 + (ks & 1), t * 18432 + ks * 1024)) for ks in range(18) for t in range(2)]
    w0, _ = ln_block(0); w1, _ = ln_block(1)
    stamp('ln01')
    P(Ins('s_barrier', needs=w0 + w1))
    r0 = xn_reads(0)
    lq += [r0[n:n + 2] for n in range(0, 36, 2)]; lcnt[1] = 8
    w2, d2 = ln_block(2, defer=True)
    emit_all(lq); lq.clear()
    P(Ins('s_barrier', needs=r0))
    lq += d2; lcnt[1] = 12
    w3, _ = ln_block(3)
    emit_all(lq); lq.clear()
    emit_all([g for g in bg if not isinstance(g, tuple)]); bg.clear()
    stamp('ln23')
    P(Ins('s_barrier', needs=w2 + w3 + slots[0].loads))
    r1 = xn_reads(1)
    stamp('mf0')

    window = {}
    AH = 4; AHM = opt.get('ah', 6)
    def make_reads(fr, sidx, fi):
        w, o = divmod(phys[sidx] * SLOT, 65536)
        out = []
        if window.get(fr.base, 0) != w:
            d = (w - window.get(fr.base, 0)) * 65536
            out.append(Ins('v_add_u32 v%d, 0x%x, v%d' % (fr.base, d & 0xffffffff, fr.base)))
            window[fr.base] = w
        f = FR + 4 * (fi % 8)
        fr.reg = f
        fr.rd = [Ins('ds_read_b64_tr_b16 %s, v%d offset:%d' % (vr(f + 2 * h, 2), fr.base, o + fr.imm[h])) for h in range(2)]
        return [out + [fr.rd[0]], [fr.rd[1]]]
    def segment(s0, s1, fillers, bar_extra, first_loads=(), extra_need=None, hook=None, quiet=(), pre=()):
        frs = []; groups = []
        for s in range(s0, s1):
            for g in slots[s].groups:
                groups.append((s, len(frs), g))
                for f in g: frs.append((s, f))
        nm = sum(4 * len(g) for _, _, g in groups)
        gm = [[] for _ in range(nm)]; ga = [[] for _ in range(nm)]; gz = [[] for _ in range(nm)]
        used = [0] * nm; vmw = [0] * (nm + 16)
        mf = []; issued = 0; slot_start = {}
        ismem = lambda x: x.kind in ('ds', 'vmem')
        def put(k, items, cost=None):
            (gm if len(items) == 1 and ismem(items[0]) else ga)[k].extend(items)
            used[k] += min(2, sum(x.cost for x in items)) if cost is None else cost
        while issued < AH:
            s, f = frs[issued]
            emit_all(make_reads(f, s, issued)); issued += 1
        if callable(pre): pre()
        else: emit_all(list(pre))
        pend = [(-1, list(first_loads), ())]
        barpos = {}; vcand = set(); fv = set()
        for (s, f0, g) in groups:
            a = len(mf)
            slot_start.setdefault(s, a)
            n = 4 * len(g)
            for mt in range(4):
                for f in g: mf.append((s, f, mt, g))
            if a > 0: used[a - 1] += 1
            vcand.update(range(a + 1, a + n, 4))
            items = []
            while issued < min(len(frs), f0 + min(8, len(g) + AHM)) and frs[issued][0] <= s + 1:
                s2, f2 = frs[issued]
                r = make_reads(f2, s2, issued)
                if frs[issued - 1][0] != s2: r[0] = ['BAR', s2] + r[0]
                items += r; issued += 1
            for q, it in enumerate(items):
                k = a + q * n // len(items)
                if it[0] == 'BAR':
                    s2 = it[1]
                    ex = bar_extra.get(s2, ((), ()))
                    b = Ins('s_barrier'); b.needs = ('LAZY', s2, list(ex[0]) + ([x for f in g for x in f.rd] if k == a else []))
                    gz[k - 1].append(b); used[k - 1] += 1 if k == a else 2
                    barpos[s2] = k - 1
                    pend.append((k - 1, list(extra_loads.get(s2, [])) + ([load_at[s2]] if s2 in load_at else []), ex[1]))
                    it = it[2:]
                if len(it) == 2: put(max(k - 1, 0), it[:1]); it = it[1:]
                put(k, it)
        class Chain:
            def __init__(c, items, start): c.q = list(items); c.rel = start; c.last = -1; c.cap = 2
        dl = []; dead = {}
        for (k, lds_, post) in pend:
            dl.append(('ATK', k + 1)); dl += list(post)
            for n in lds_:
                for g in dma_groups(n):
                    for x in g:
                        dl.append(x)
                        if x.kind == 'vmem': dead[id(x)] = (n, barpos.get(n, 10 ** 9 if n < NS else nm + opt.get('wdl', -100))); svc[id(x)] = SV * (2 if sum(len(g_) for g_ in slots[n].groups) == 6 else 1)
        chains = [Chain(dl, 0)] + [Chain(lst, slot_start[s] + off) for (s, off, lst) in fillers if lst]
        leads = {}; slk = {}; lastst = -999
        pfree = 0.0
        def head(c, k):
            while c.q and isinstance(c.q[0], tuple):
                it = c.q[0]
                if c.rel > k: return None
                if opt.get('dbg') and it[0] in ('AT', 'BY'):
                    cs = max(x for x in slot_start if slot_start[x] <= k); print('   marker', it, 'reached at slot', cs, '+', k - slot_start[cs], file=sys.stderr)
                if it[0] == 'AT': c.rel = slot_start[it[1]] + it[2]
                elif it[0] == 'ATK': c.rel = it[1]
                elif it[0] == 'BY': assert k <= slot_start[it[1]], ('filler late', it, k, slot_start[it[1]])
                elif it[0] == 'CAP': c.cap = it[1]
                elif it[0] == 'SKIP': c.rel = k + it[1]
                c.q.pop(0)
            if not c.q or c.rel > k: return None
            return c.q[0]
        for k in range(nm):
            if not gm[k] and used[k] < 2:
                cand = []
                for n_, c in enumerate(chains):
                    x = head(c, k)
                    if x is None or isinstance(x, list) or not ismem(x) or c.last >= k: continue
                    if x.kind == 'ds':
                        if used[k] + x.cost > 2: continue
                    elif id(x) not in loud and pfree - k > opt.get('bl', 1.5): continue
                    pr = 1
                    if n_ == 0: pr = 0 if dead.get(id(x), (0, 0))[1] - k < opt.get('crit', 72) else 2
                    cand.append((pr, n_))
                if cand:
                    c = chains[min(cand)[1]]; x = c.q.pop(0); c.last = k
                    put(k, [x], x.cost if x.kind == 'ds' else 1)
                    if x.kind == 'vmem':
                        pfree = max(pfree, k + svc[id(x)]) if id(x) in loud else max(pfree, k) + svc.get(id(x), opt.get('svst', SV) if 'store' in x.op else SV)
                        if 'store_dwordx4' in x.op: lastst = k
                        if id(x) in dead and dead[id(x)][1] < 10 ** 9:
                            leads[dead[id(x)][0]] = dead[id(x)][1] - k; slk[dead[id(x)][0]] = dead[id(x)][1] - lastst
            for c in chains:
                while True:
                    x = head(c, k)
                    if x is None or (not isinstance(x, list) and ismem(x)): break
                    it = x if isinstance(x, list) else [x]
                    cst = min(2, sum(y.cost for y in it))
                    if used[k] + cst > c.cap: break
                    c.q.pop(0); c.last = k; ga[k].extend(it); used[k] += cst
        left = [(x if isinstance(x, list) else [x]) for c in chains for x in c.q if not isinstance(x, tuple)]
        print('DMA leads:', ' '.join('%d:%d' % x for x in sorted(leads.items())), file=sys.stderr)
        print('store->wait distance < 130:', ' '.join('%d:%d' % x for x in sorted(slk.items()) if x[1] < 130 and x[0] < NS), file=sys.stderr)
        assert min(v for n_, v in leads.items() if n_ < NS) > opt.get("minlead", 30)
        for k, (s, f, mt, g) in enumerate(mf):
            if hook: hook(k, s)
            c = f.acc(mt)
            nd = [x for f_ in g for x in f_.rd] + ([extra_need(f, mt)] if extra_need else [])
            P(Ins('v_mfma_f32_16x16x32_bf16 %s, %s, %s, %s' % (vr(c), vr(f.reg), f.b(mt), '0' if f.first else vr(c)), needs=nd))
            for x in gz[k]: x.needs = list(slots[x.needs[1]].loads) + list(x.needs[2])
            emit_all(gm[k] + ga[k] + gz[k])
        return left

    def mul(d, a_, b_): return Ins('v_mul_f32 v%d, v%d, v%d' % (d, a_, b_))
    def cvt(d, a_, b_): return Ins('v_cvt_pk_bf16_f32 v%d, v%d, v%d' % (d, a_, b_))
    kv_stores = []
    flat0 = lambda l: [y for x in l for y in x]
    def qkv_epi():
        rs = [Ins('ds_read_b128 %s, v%d offset:%d' % (vr(SP + 4 * mt), vRS, 256 * mt)) for mt in range(4)]
        L = list(rs) + [('SKIP', 6)]
        for mp in range(2):
            if mp: L += II(f's_add_u32 s{QM}, s{QM}, s{QM+2}')
            for c in range(2):
                if c: L += II(f's_add_u32 s{T2}, s{QM}, s{QC}')
                for ft in range(2):
                    te = ACCA + ((2 * c + ft) * 4 + 2 * mp) * 4; to = te + 4
                    for r in range(8):
                        x = mul(te + r, te + r, SP + 8 * mp + r); x.needs = [rs[2 * mp + r // 4]]; L.append(x)
                    L += [cvt(te, te, te + 1), cvt(te + 1, te + 2, te + 3), cvt(te + 2, to, to + 1), cvt(te + 3, to + 2, to + 3)]
                    st = Ins(f'buffer_store_dwordx4 {vr(te)}, v{vQS[0]}, {sr(SW)}, s{T2 if c else QM} offen offset:{1024*ft} sc1')
                    L.append(st); kv_stores.append(st)
        return L
    def l1_epi():
        L = II(f's_lshl_b32 s{T3}, s{FH}, 3\ns_add_u32 s{T3}, s{T3}, {HLONE}\nv_add_u32 v{SP+11}, s{T3}, v{vHW}')
        ws_ = []
        for mt in range(4):
            g0 = ACCA + mt * 4; u0 = ACCA + (4 + mt) * 4
            L += [mul(g0 + t, g0 + t, u0 + t) for t in range(4)] + [cvt(u0, g0, g0 + 1), cvt(u0 + 1, g0 + 2, g0 + 3)]
            w = Ins(f'ds_write_b64 v{SP+11}, {vr(u0,2)} offset:{1024*mt}'); ws_.append(w)
            if not opt.get('bw'): L.append(w)
        if opt.get('bw'): L += [('SKIP', 2), list(ws_)] if opt['bw'] == 1 else flat0([[('SKIP', 4), w] for w in ws_])
        L2 = II(f's_lshl_b32 s{T3}, s{FH}, 11\ns_add_u32 s{T3}, s{T3}, {HLONE}\nv_add_u32 v{SP+11}, s{T3}, v{vHW}')
        rd = [Ins(f'ds_read_b128 {vr(ACCA+4*m)}, v{SP+11} offset:{1024*m}') for m in range(2)]
        sts = [Ins(f'buffer_store_dwordx4 {vr(ACCA+4*m)}, v{vL16}, {sr(SW)}, s{HLN} offen offset:{1024*m} sc1', needs=[rd[m]]) for m in range(2)]
        return L, sts, ws_, L2 + rd + [('SKIP', 10)] + sts
    hw = {}
    def pair_epi(acc, q):
        L = II(f's_add_u32 s{ST}, s{HS}, {q*2*8192}\ns_lshl_b32 s{T1}, s{FH}, 13\ns_add_u32 s{T1}, s{T1}, {hphys[q]*SLOT}\nv_add_u32 v{SP+11}, s{T1}, v{vHW}')
        sts = []; hw[q] = []
        for mt in range(4):
            g0 = acc + mt * 4; g1 = acc + (4 + mt) * 4; u0 = acc + (8 + mt) * 4; u1 = acc + (12 + mt) * 4
            L += [mul(g0 + t, g0 + t, u0 + t) for t in range(4)]
            L += [mul(g1 + t, g1 + t, u1 + t) for t in range(4)]
            L += [cvt(u0, g0, g0 + 1), cvt(u0 + 1, g0 + 2, g0 + 3), cvt(u0 + 2, g1, g1 + 1), cvt(u0 + 3, g1 + 2, g1 + 3)]
            st = Ins(f'buffer_store_dwordx4 {vr(u0)}, v{vL16}, {sr(SW)}, s{ST} offen offset:{1024*mt} sc1')
            w = Ins(f'ds_write_b128 v{SP+11}, {vr(u0)} offset:{1024*mt}', cost=2)
            if q < 3 and opt.get('w64', 0):
                w = [Ins(f'ds_write_b64 v{SP+11}, {vr(u0+2*h,2)} offset:{1024*mt+8*h}') for h in range(2)]
                L += [st] + w; hw[q] += w
            else:
                L += [st, w]; hw[q].append(w)
            sts.append(st)
        return L, sts
    def d_epi(acc, q, cs=(0, 1)):
        L = []
        for c in cs:
            L.append(Ins(f's_sub_u32 s{ST}, s{PS}, {(2*q+c)*2*8192}'))
            for mt in range(4):
                t0 = acc + (8 * c + mt) * 4; t1 = acc + (8 * c + 4 + mt) * 4
                if mt == 2: L.append(Ins(f's_xor_b32 s{ST}, s{ST}, 2048'))
                L += [cvt(t0, t0, t0 + 1), cvt(t0 + 1, t0 + 2, t0 + 3), cvt(t0 + 2, t1, t1 + 1), cvt(t0 + 3, t1 + 2, t1 + 3)]
                L.append(Ins(f'buffer_store_dwordx4 {vr(t0)}, v{vL16}, {sr(SW)}, s{ST} offen offset:{1024*(mt&1)} sc1'))
        return L
    def poll_check(name, ld, test):
        g = [Ins(t, needs=[ld] if n == 0 else []) for n, t in enumerate(test)]
        g.append(Ins('s_cbranch_scc0 %s_slow' % name))
        g.append(Ins('%s_ok:' % name))
        S = Prog()
        S.label('%s_slow' % name)
        S('s_mov_b32 s%d, 400000' % SPN)
        S.label('%s_loop' % name)
        S('s_sleep %d' % opt.get('ps', 2))
        S(ld.text)
        S('s_waitcnt vmcnt(0)')
        S('s_sub_u32 s%d, s%d, 1' % (SPN, SPN))
        S('s_cbranch_scc1 %s_ok' % name)
        for t in test: S(t)
        S('s_cbranch_scc0 %s_loop' % name)
        S('s_branch %s_ok' % name)
        slow.append(S.text())
        return g
    def setflag(n, reg):
        return II(f'v_mov_b32 v{reg}, {n}\nbuffer_store_dword v{reg}, v{vFL}, {sr(SW)}, s{MYF} offen sc1')
    def hpoll(n, reg):
        ld = T(f'buffer_load_dword v{reg}, off, {sr(SW)}, s{PF} sc1')
        return ld, poll_check('h%d' % n, ld, [f'v_readfirstlane_b32 s{T2}, v{reg}', f's_cmp_ge_u32 s{T2}, {n}'])

    qe = qkv_epi()
    pe = [pair_epi(PACC[q], q) for q in range(4)]
    le = l1_epi()
    VREG = [ACCA + 4 * n for n in range(16)] + [SP + 4 * n for n in range(4)]
    G0M, G1M = 96, 98
    late = II(f'''s_mov_b32 s{SQ}, s8
    s_mov_b32 s{SQ+1}, s9
    s_mov_b32 s{SQ+2}, 0x{576*1152:x}
    s_mul_i32 s{T1}, s{T0}, {BLK//2}
    s_mul_i32 s{T2}, s{J}, 2304
    s_add_u32 s{T1}, s{T1}, s{T2}
    s_mov_b32 s{G0M}, 0xffff
    s_mov_b32 s{G0M+1}, 0
    s_mov_b32 s{G1M}, 0xffff0000
    s_mov_b32 s{G1M+1}, 0''')
    for a_ in range(5):
        late += II(f's_add_u32 s{KO+a_}, s{T1}, 0x{KOFF + (2*a_-9)*BLK:x}')
        if a_ < 4:
            late.append(II(f's_cmp_ge_u32 s{T0}, {16-4*a_}\ns_cselect_b32 s{KO+a_}, s{KO+a_}, 0x{OOB:x}\ns_cselect_b32 s{KB+a_}, 0, 0xf149'))
    a0, a1, a2, a3 = SP, SP + 1, SP + 2, SP + 3
    vTD_ = QF + 12
    late += II(f'''v_and_b32 v{a0}, 15, v{vL}
    v_lshrrev_b32 v{a1}, 4, v{vL}
    v_mov_b32 v{a3}, 0x{OOB:x}
    s_mul_i32 s{T2}, s{FH}, 1280
    s_add_u32 s{T3}, s{T2}, {BLK+144*256}
    v_add_u32 v{vKM}, s{T3}, v{vL16}
    v_lshlrev_b32 v{a1}, 4, v{a1}
    v_lshl_add_u32 v{a2}, v{a0}, 6, v{a1}
    s_add_u32 s{T3}, s{T2}, {BLK+73728}
    v_add_u32 v{vVM}, s{T3}, v{a2}
    v_and_b32 v{a2}, 1, v{a0}
    v_lshl_add_u32 v{a1}, v{a2}, 6, v{a1}
    s_lshl_b32 s{T2}, s{FH}, 7
    v_add_u32 v{a1}, s{T2}, v{a1}
    v_and_b32 v{a2}, 3, v{a0}
    v_cmp_eq_u32 vcc, 2, v{a2}
    v_mov_b32 v{a2}, 256
    s_mul_i32 s{T2}, s{RG}, {2*VRS}
    s_add_u32 s{T2}, s{T2}, {LVR}
    v_cndmask_b32 v{a1}, v{a1}, v{a2}, vcc
    v_add_u32 v{vVR}, s{T2}, v{a1}
    s_lshl_b32 s{T2}, s{RG}, 9
    s_lshl_b32 s{T3}, s{FH}, 2
    s_add_u32 s{T2}, s{T2}, s{T3}
    s_add_u32 s{T2}, s{T2}, {LKR}
    v_lshlrev_b32 v{a2}, 4, v{a0}
    v_add_u32 v{a2}, s{T2}, v{a2}
    v_subrev_u32 v{a1}, 248, v{a2}
    v_add_u32 v{SP+8}, {LQR-LKR}, v{a2}
    v_cndmask_b32 v{vKR}, v{a2}, v{a1}, {sr(G1M,2)}
    v_lshlrev_b32 v{a1}, 7, v{vL}
    v_cmp_gt_u32 vcc, 41, v{vL}
    s_nop 0
    s_nop 0
    v_cndmask_b32 v{vTD_}, v{a3}, v{a1}, vcc''')
    kvld = T(f'buffer_load_dwordx4 {vr(SP+12)}, off, {sr(SB)}, s{DB} sc1', opt.get('qk', 20))
    kvtest = [f'v_readfirstlane_b32 s{T2}, v{SP+12}', f'v_readfirstlane_b32 s{T3}, v{SP+13}', f'v_readfirstlane_b32 s{T1}, v{SP+14}',
              f's_or_b32 s{T2}, s{T2}, s{N0}', f's_or_b32 s{T3}, s{T3}, s{N1}', f's_and_b32 s{T2}, s{T2}, s{T3}',
              f's_and_b32 s{T2}, s{T2}, s{T1}', f's_cmp_eq_u32 s{T2}, 0xffff']
    kv2pre = II(f'''v_lshlrev_b32 v{SP+9}, 7, v{vL}
    v_cmp_gt_u32 vcc, 48, v{vL}
    s_lshl_b32 s{DB}, s{I}, 11
    s_add_u32 s{DB}, s{DB}, 0x{FOFF-4096:x}
    v_cndmask_b32 v{SP+9}, v{a3}, v{SP+9}, vcc
    s_lshl_b32 s{N1}, s{N1}, 16
    s_or_b32 s{N1}, s{N1}, s{N0}''')
    kv2ld = T(f'buffer_load_dword v{SP+12}, v{SP+9}, {sr(SW)}, s{DB} offen sc1', 32)
    kv2test = [f'v_cmp_le_u32 vcc, 1, v{SP+12}', 's_nop 1', f's_or_b32 s{T2}, vcc_lo, s{N1}', f's_or_b32 s{T3}, vcc_hi, 0xffff0000', f's_and_b32 s{T2}, s{T2}, s{T3}', f's_cmp_eq_u32 s{T2}, -1']
    kvpre = []; kvtouch = []
    kvtouch += [II(f's_getpc_b64 {sr(SB,2)}') + [Ins('K1_pc2:')]] + II(f'''s_mov_b32 s{SB+2}, code_end-K1_pc2
    s_and_b32 s{T2}, s{NN}, 7
    s_lshl_b32 s{T2}, s{T2}, 2
    s_add_u32 s{T2}, s{T2}, s{Wv}
    s_mul_i32 s{T2}, s{T2}, {11*128}
    v_lshlrev_b32 v{SP}, 7, v{vL}
    v_cmp_gt_u32 vcc, 11, v{vL}
    s_nop 0
    s_nop 0
    v_cndmask_b32 v{SP}, v{a3}, v{SP}, vcc''') + [T(f'buffer_load_dword v0, v{SP}, {sr(SB)}, s{T2} offen', 32)]
    RA, RB = SP + 12, SP + 4
    rla = Ins(f'buffer_load_dwordx4 {vr(RA)}, v{a1}, {sr(SW)}, s{T3} offen sc1'); rlb = Ins(f'buffer_load_dwordx4 {vr(RB)}, v{a2}, {sr(SW)}, s{T3} offen sc1')
    rst = II(f'''v_lshrrev_b32 v{a0}, 4, v{vL}
    s_mul_i32 s{T2}, s{Wv}, 3
    v_add_u32 v{a0}, s{T2}, v{a0}
    v_mul_u32_u24 v{a1}, {BLK}, v{a0}
    s_lshl_b32 s{T3}, s{I}, 2
    s_sub_u32 s{T3}, 8, s{T3}
    v_cmp_le_i32 vcc, s{T3}, v{a0}
    v_and_b32 v{SP+9}, 0xf0, v{vL16}
    v_add_u32 v{a1}, v{a1}, v{SP+9}
    v_cndmask_b32 v{a1}, v{a3}, v{a1}, vcc
    v_add_u32 v{a2}, {73728+1024}, v{a1}
    v_add_u32 v{a1}, {148*256}, v{a1}
    s_add_u32 s{T2}, s{Wv}, 8
    s_mul_i32 s{T2}, s{T2}, {BLK}
    s_add_u32 s{T2}, s{T2}, 1024
    v_cmp_gt_u32 vcc, 48, v{vL}
    v_add_u32 v{RA}, s{T2}, v{SP+9}
    s_mul_i32 s{T3}, s{I}, {4*BLK}
    v_cndmask_b32 v{a1}, v{RA}, v{a1}, vcc
    v_cndmask_b32 v{a2}, v{a3}, v{a2}, vcc
    s_mul_i32 s{T2}, s{J}, 2304
    s_add_u32 s{T3}, s{T3}, s{T2}
    s_add_u32 s{T3}, s{T3}, 0x{KOFF-8*BLK:x}''') + [rla, rlb] + II(f'''s_mul_i32 s{T2}, s{Wv}, 768
    s_add_u32 s{T2}, s{T2}, {LKR}
    v_add_u32 v{a1}, s{T2}, v{vL16}
    s_lshl_b32 s{T2}, s{Wv}, 8
    s_add_u32 s{T2}, s{T2}, {LQR}
    v_add_u32 v{a2}, s{T2}, v{SP+9}
    v_cndmask_b32 v{a1}, v{a2}, v{a1}, vcc
    v_mul_u32_u24 v{a2}, {VRS}, v{a0}
    v_add_u32 v{a2}, v{a2}, v{SP+9}
    v_and_b32 v{SP+9}, 15, v{vL}
    v_min_u32 v{SP+9}, 2, v{SP+9}
    v_add_u32 v{a0}, v{a0}, v{SP+9}
    v_mul_u32_u24 v{a0}, {VRS}, v{a0}
    v_add_u32 v{a0}, {(256-3*VRS) & 0xffffffff}, v{a0}
    v_cndmask_b32 v{a2}, v{a0}, v{a2}, vcc
    v_add_u32 v{a2}, {LVR}, v{a2}
    v_mov_b32 v{a0}, 0x3f803f80''')
    nrs = len(rst)
    rst += [Ins(f'v_cndmask_b32 v{RB+r}, v{a0}, v{RB+r}, vcc', needs=[rlb]) for r in range(4)]
    rsw = [Ins(f'ds_write_b128 v{a1}, {vr(RA)}', needs=[rla], cost=2), Ins(f'ds_write_b128 v{a2}, {vr(RB)}', cost=2)]
    rst += rsw
    qld = []; ql = []; qr = []
    for a_ in range(2):
        l0 = Ins(f'buffer_load_dwordx4 {vr(QF+4*a_)}, v{vKM}, {sr(SW)}, s{T3} offen sc1')
        l1 = [Ins(f'ds_read_b32 v{QF+8+2*a_+h}, v{SP+8} offset:{256*a_+8*h}') for h in range(2)]
        ql += [Ins(f's_add_u32 s{T3}, s{KO+4}, {(a_*BLK - 36864) & 0xffffffff}'), l0]; qr += l1; qld += [[l0, l1[0]], [l0, l1[1]]]
    km = []; kr = []; kl = []; vld = []; vl = []
    for b_ in range(11):
        r_ = Ins(f'ds_read_b32 a{6*b_}, v{vKR} offset:{256*b_}'); kr.append(r_)
        kl += [r_]
        lo_, hi_ = b_ // 2, (b_ - 1) // 2
        nm_ = lambda q_: f's{KB+q_}' if 0 <= q_ < 4 else '0'
        if b_ <= 8: kl += II(f's_pack_ll_b32_b16 s{T2}, {nm_(lo_)}, {nm_(hi_)}\nv_accvgpr_write_b32 a{6*b_+1}, s{T2}')
        else: kl += II(f'v_accvgpr_write_b32 a{6*b_+1}, 0')
        if b_ < 10:
            m_ = Ins(f'buffer_load_dwordx4 {ar(6*b_+2)}, v{vKM}, {sr(SW)}, s{T3} offen sc1'); km.append(m_)
            kl += [Ins(f's_add_u32 s{T3}, s{KO+b_//2}, {(b_%2)*BLK}'), m_]
    kld = [[km[u // 2], kr[(u + 1) // 2]] for u in range(20)]
    for v in range(10):
        a_ = Ins(f'buffer_load_dwordx4 {vr(VREG[2*v])}, v{vVM}, {sr(SW)}, s{T3} offen sc1')
        b_ = Ins(f'ds_read_b128 {vr(VREG[2*v+1])}, v{vVR} offset:{VRS*v}')
        vl.append([b_, Ins(f's_add_u32 s{T3}, s{KO+v//2}, {(v%2)*BLK}'), a_]); vld += [a_, b_]
    for x in km + vld[::2]: svc[id(x)] = opt.get('svk', SV)
    def vfix(v): return [Ins(f'v_or_b32 v{VREG[2*v+1]+r}, v{vONES}, v{VREG[2*v+1]+r}', needs=[vld[2 * v + 1]]) for r in range(4)]
    pfd = [T(f'buffer_load_dword v0, v{vTD_}, {sr(SD)}, s{PFD} offen offset:2048' + NT, opt.get('qd', 120))]
    if opt.get('nod') or opt.get('cls'): pfd = []
    pfw = II(f's_mul_i32 s{T2}, s2, {21*128}') + [II(f's_cmp_eq_u32 s{Wv}, 0\ns_cselect_b32 s{T2}, s{T2}, 0x{OOB:x}'), T(f'buffer_load_dword v0, v{vTD_}, {sr(SQ)}, s{T2} offen', 40)]
    if opt.get('nod'): pfw = []
    h1ld, h1chk = hpoll(2, vPFP)
    e_ = opt.get('ev', [8, 0, 26, 29, 38])
    flat = lambda l: [y for x in l for y in x]
    NV1 = opt.get('nv1', 3)
    cls_chain = []
    if opt.get('cls'):
        va, vs_ = QF + 13 - 9, QF + 13 - 8
        cls_chain = II(f'''v_lshrrev_b32 v{va}, 2, v{vL}
        v_mul_u32_u24 v{va}, 9216, v{va}
        v_bfe_u32 v{vs_}, v{vL}, 1, 1
        v_mul_u32_u24 v{vs_}, 1152, v{vs_}
        v_add_u32 v{va}, v{va}, v{vs_}
        v_and_b32 v{vs_}, 1, v{vL}
        v_lshl_add_u32 v{va}, v{vs_}, 10, v{va}
        v_cmp_gt_u32 {sr(DUM,2)}, 36, v{vL}
        v_mov_b32 v{va+2}, 0x{OOB:x}
        v_lshlrev_b32 v{vs_}, 8, v{vs_}
        v_cndmask_b32 v{va}, v{va+2}, v{va}, {sr(DUM,2)}
        v_sub_u32 v{vs_}, 128, v{vs_}
        s_lshr_b32 s{DUM}, s2, 5
        s_lshl_b32 s{DUM}, s{DUM}, 3
        s_and_b32 s{DUM+1}, s2, 7
        s_or_b32 s{DUM}, s{DUM}, s{DUM+1}
        s_mul_i32 s{PFP}, s{DUM}, {9*9216}
        s_mul_i32 s{DUM+1}, s{Wv}, 2304
        s_add_u32 s{PFP}, s{PFP}, s{DUM+1}
        s_and_b32 s{DUM}, s{NN}, 3''')
        sites_ = opt['cls']; qc = opt.get('qc', 24)
        for n, sl in enumerate(sites_):
            if sl: cls_chain += [('AT', sl - 1, 16)]
            if n < 6 and n % 2 == 0: cls_chain += II(f'v_add_u32 v{va}, v{va}, v{vs_}')
            if not sl: continue
            if n < 6:
                cls_chain += [II(f's_cmp_eq_u32 s{DUM}, {n % 4}\ns_cselect_b32 s{PFW}, s{PFP}, 0x{OOB:x}'), ('AT', sl, 0),
                              T(f'buffer_load_dword v0, v{va}, {sr([SG, SU][n % 2])}, s{PFW} offen offset:{2048 * (n % 2)}', qc)]
            else:
                cls_chain += [II(f's_cmp_eq_u32 s{DUM}, {n % 4}\ns_cselect_b32 s{PFW}, s{PFD}, 0x{OOB:x}'), ('AT', sl, 0),
                              T(f'buffer_load_dword v0, v{vTD_}, {sr(SD)}, s{PFW} offen offset:2048', qc)]
    fill1 = [(sl, 0, stamp('slot%d' % sl, True)) for sl in range(NSEG1)] + [
        (0, 0, r1[8:]),
        (1, 0, cls_chain),
        (0, 2, lnfin + late0 + [('BY', 9)] + late0b[:31] + [('AT', 9, 4)] + qe + [('BY', 16)] + late0b[31:] + late + [kvld, ('AT', 18, 4)]
         + pe[0][0] + [('BY', 24), poll_check('kv', kvld, kvtest)] + kv2pre + [('AT', 24, 4)]
         + le[0] + [('BY', 26)] + kvtouch[:-1] + [('AT', e_[2], 0), kv2ld] + kvtouch[-1:] + pfw + [('AT', 27, 0)] + le[3] + [('AT', e_[3] - 1, 8), poll_check('kw', kv2ld, kv2test)] + pfd + rst[:nrs] + [('AT', 33, 4)]
         + pe[1][0] + rst[nrs:] + ql + [('BY', 40), ('AT', 41, 0)] + qr + [('BY', 42), ('AT', 42, 4)]
         + pe[2][0] + [('AT', 44, 0)] + kl + flat(vl[:NV1]) + [('AT', 50, 8), h1ld]),
    ]
    bx1 = {
        3: (r1, []), 6: (lnw, []),
        opt.get('kvf', 17): (kv_stores, setflag(1, SP + 10)),
        27: (le[2], []), 41: (rsw, []),
        opt.get('hf', 49): (pe[0][1] + le[1] + pe[1][1] + pe[2][1], setflag(2, SP + 10)),
    }
    extra_loads[3] = [5, 6, 7, 8, load_at.pop(2)]
    xmap = {}
    for n, x in enumerate(r1):
        ks = n // 2
        for mt in range(4): xmap[breg(ks, mt)] = r1[2 * ks + (mt & 1)] if mt >= 2 else None
    mark = {}
    def hook(k, s):
        if k == 0:
            P(f's_cmp_ge_u32 s{J}, 9')
            P('s_cbranch_scc1 qkv_v')
            mark['a'] = len(P.out)
        if s == 9 and 'b' not in mark:
            mark['b'] = len(P.out)
            P.label('qkv_e')
    left = segment(0, NSEG1, fill1, bx1, first_loads=list(range(NPRE, 5)), hook=hook, pre=r1[:8], extra_need=lambda f, mt: xmap[f.b(mt)])
    qrd = set(id(x) for n in range(9) for g in slots[n].groups for f in g for x in f.rd)
    K = Prog(); K.label('qkv_k'); nb_ = 0
    for x in P.out[mark['a']:mark['b']]:
        if x.kind == 'mfma' or id(x) in qrd or x.op == 's_nop': continue
        t = x.text
        if x.kind == 'label': K.label(t[:-1].replace('_e', 'k_e')); continue
        if x.op == 's_cbranch_scc1': t += 'k'
        if x.op == 's_waitcnt':
            if 'vmcnt' not in t: continue
            t = t.split(' lgkmcnt')[0]
        if x.op == 's_barrier':
            nb_ += 1
            K('s_waitcnt lgkmcnt(0)')
        K(t)
    if opt.get('kpf'):
        K(f'''v_lshrrev_b32 v112, 5, v{vL}
        v_mul_u32_u24 v112, 9216, v112
        v_bfe_u32 v113, v{vL}, 2, 3
        v_mul_u32_u24 v113, 1152, v113
        v_add_u32 v112, v112, v113
        v_and_b32 v113, 3, v{vL}
        v_lshlrev_b32 v113, 2, v113
        v_mov_b32 v114, 0x5362
        v_bfe_u32 v113, v114, v113, 4
        v_lshl_add_u32 v112, v113, 7, v112
        s_lshl_b32 s{SPN}, s{I}, 1
        s_add_u32 s{SPN}, s{SPN}, s{E}
        s_lshl_b32 s{SPN}, s{SPN}, 1
        s_add_u32 s{SPN}, s{SPN}, s{RG}
        s_mul_i32 s{SPN}, s{SPN}, {9*9216}''')
        for n in range(5):
            K(f'buffer_load_dword v0, v112, {sr(SL)}, s{SPN} offen')
            K(f's_add_u32 s{SPN}, s{SPN}, {2*9216}')
    K('s_waitcnt lgkmcnt(0)'); K('s_nop 4'); K('s_branch qkv_e')
    slow.append(K.text())
    alt = ['qkv_v:', f'    s_cmp_ge_u32 s{J}, 14', '    s_cbranch_scc1 qkv_k'] if opt.get('skip', 1) else ['qkv_v:']
    for x in P.out[mark['a']:mark['b']]:
        t = x.text
        if x.kind == 'label': alt.append(t.replace('_e:', 'v_e:')); continue
        if x.op == 's_cbranch_scc1': t += 'v'
        if x.kind == 'mfma':
            o = [y.strip() for y in t[len(x.op):].split(',')]
            t = '%s %s, %s, %s, %s' % (x.op, o[0], o[2], o[1], o[3])
        alt.append('    ' + t)
    alt.append('    s_branch qkv_e')
    slow.append('\n'.join(alt) + '\n')
    print('left after seg1:', len(left), file=sys.stderr)
    stamp('g1end')

    SREG = [80] + [ACCB + (tl * 4 + mt) * 4 for mt in range(4) for tl in (0, 1, 3, 2)]
    PR = [84, 88]; OM, OR_ = 96, 100; MF, ML = 104, 108
    noskip = lambda l: [x for x in l if not isinstance(x, tuple)]
    def qbuild(t):
        q = QF + 2 * t
        P(Ins(f'v_mov_b32 v{QW+2}, v{q}', needs=qld[t]))
        P(f'v_mov_b32 v{QW+3}, v{q+1}')
        P(f'v_cndmask_b32 v{QW}, 0, v{QF+8+t}, {sr(G0M,2)}')
        P(f'v_cndmask_b32 v{QW+4}, 0, v{QF+8+t}, {sr(G1M,2)}')
    P('v_mov_b32 v%d, 0x%x' % (vTA, NEG))
    P(f'v_mov_b32 v{QW+1}, 0x3f80')
    P(f'v_mov_b32 v{QW+5}, 0x3f800000')
    qbuild(0)
    pq = list(pe[3][0])
    for r in range(4):
        P('v_cmp_lt_i32 vcc, %d, v%d' % (-r, vDG))
        P(pq.pop(0)); P(pq.pop(0))
        P('v_cndmask_b32 v%d, v%d, 0, vcc' % (MF + r, vTA))
        P('v_cndmask_b32 v%d, 0, v%d, vcc' % (ML + r, vTA))
    P(f's_cmp_eq_u32 s{FH}, 0')
    P('s_cselect_b64 vcc, -1, 0')
    P(f's_xor_b32 s{N0}, s{C}, 0x80000000')
    hld = {}
    def hload(k):
        if isinstance(k, tuple):
            ka, kb = k
            pre = II(f's_mul_i32 s{T2}, s{FH}, {(ka-kb)*8192}\ns_add_u32 s{T2}, s{T2}, s{HL}\ns_add_u32 s{T2}, s{T2}, {(17-ka)*8192}') if ka != kb else II(f's_add_u32 s{T2}, s{HL}, {(17-ka)*8192}')
            tx = lambda kk, mt: f'buffer_load_dwordx4 {breg(hpos[kk], mt)}, v{vL16}, {sr(SW)}, s{T2} offen offset:{1024*mt} sc1'
            ld = [Ins(tx(ka, mt)) for mt in range(4)]
            if not opt.get('ksw'): hld[ka] = [ld[3]] * 4; hld[kb] = [ld[3]] * 4
            if opt.get('ksw'): hld[ka] = list(ld); hld.setdefault(kb, None)
            if ka == kb or opt.get('ksw'): return [pre + ld[:1], ld[1:2], ld[2:3], ld[3:]]
            return [(pre if h == 0 else []) + alt_site(ld[2*h:2*h+2], [tx(kb, 2*h), tx(kb, 2*h+1)]) for h in range(2)]
        base = HLONE if k == 8 else hphys[k // 2] * SLOT + (k & 1) * 8192
        hld[k] = [Ins(f'ds_read_b128 {breg(hpos[k], mt)}, v{vONES} offset:{1024*mt}') for mt in range(4)]
        return [II(f'v_add_u32 v{vONES}, {base}, v{vHW}') + hld[k][:2], hld[k][2:]]
    def qk(t, sg):
        u = t + sg
        c = vr(MF) if sg == 0 else (vr(ML) if sg == 16 else '0')
        return Ins('v_mfma_f32_16x16x32_bf16 %s, %s, %s, %s' % (vr(SREG[sg]), ar(3 * u + (u & 1)), vr(QW + 2 * (u & 1)), c), needs=kld[u])
    def mx(sg, dst):
        s = SREG[sg]
        if sg == 0: return II('v_max3_f32 v%d, v%d, v%d, v%d\nv_max_f32 v%d, v%d, v%d' % (dst, s, s + 1, s + 2, dst, dst, s + 3))
        return II('v_max3_f32 v%d, v%d, v%d, v%d\nv_max3_f32 v%d, v%d, v%d, v%d' % (dst, dst, s, s + 1, dst, dst, s + 2, s + 3))
    lk = [x for x in left if any(y in km or y in kr for y in x)]
    if lk:
        n = left.index(lk[-1]) + 1; emit_all(left[:n]); left = left[n:]
    P(qk(0, 0))
    nq = 1; avail = 1; nmx = 0
    while pq:
        x = pq.pop(0); P(x)
        if x.kind == 'ds': avail += 4
        elif nq < avail and len(pq) % 2 == 0: P(qk(0, nq)); nq += 1
    def bunch(l):
        out = []; cur = []
        for x in l:
            cur += x
            if any(y.kind in ('vmem', 'ds') for y in x): out.append(cur); cur = []
        assert not cur
        return out
    isdma = lambda x: any(' lds' in y.text or f's{OFF},' in y.text.split()[1] or 'm0' in y.text or f's{BD},' in y.text.split()[1] for y in x)
    ldma = bunch([x for x in left if isdma(x)])
    lv = bunch([x for x in left if not isdma(x)] + [[x] for v in range(NV1, 10) for x in noskip(vl[v])])
    while nq < 17:
        P(qk(0, nq)); nq += 1
        emit_all(mx(nmx, vMN)); nmx += 1
    while nmx < 17:
        if len(lv) > 12 and nmx % 2: emit_all(lv.pop(0))
        emit_all(mx(nmx, vMN)); nmx += 1
    while len(lv) > 12: emit_all(lv.pop(0))
    qbuild(1)
    emit_all(h1chk)
    stamp('attk')
    ow = []
    def o_epi(t):
        P('v_rcp_f32 v%d, v%d' % (vTA, OR_ + 2))
        for r in range(4): P(mul(OM + r, OM + r, vTA))
        for r in range(2): P(mul(OR_ + r, OR_ + r, vTA))
        P(cvt(QF + 2 * t, OM, OM + 1)); P(cvt(QF + 2 * t + 1, OM + 2, OM + 3)); P(cvt(QF + 8 + t, OR_, OR_ + 1))
    ofl = II(f'''s_lshl_b32 s{T2}, s{FH}, 3
    s_add_u32 s{T2}, s{T2}, {HLONE}
    v_add_u32 v{vTB}, s{T2}, v{vHW}
    s_lshl_b32 s{T2}, s{RG}, 9
    s_lshl_b32 s{T3}, s{FH}, 2
    s_add_u32 s{T2}, s{T2}, s{T3}
    s_add_u32 s{T2}, s{T2}, {RT4}
    v_lshlrev_b32 v{vTA}, 3, v{vL}
    v_add_u32 v{vMX}, 4096, v{vTA}
    v_cndmask_b32 v{vTA}, v{vMX}, v{vTA}, {sr(G0M,2)}
    v_add_u32 v{vTA}, s{T2}, v{vTA}''')
    for t in range(4):
        ow += [Ins(f'ds_write_b64 v{vTB}, {vr(QF+2*t,2)} offset:{1024*t}'), Ins(f'ds_write_b32 v{vTA}, v{QF+8+t} offset:{128*t}')]
    ofl += ow
    h2ld, h2chk = hpoll(3, vPFP)
    hplan = opt.get('hplan', {0: [0, 1, 2, 3, 4, 5], 1: [(16, 17), (14, 15), (12, 13), (9, 9)], 2: [(17, 16), (15, 14), (13, 12), 8], 3: [(10, 11), (11, 10)]})
    if opt.get('plain', 1): hplan = opt.get('hp', {0: [(16, 16), 0, 1, (17, 17), 2, 3, (14, 14), 4, 5], 1: [(15, 15), (12, 12)], 2: [(13, 13), (9, 9), 8], 3: [(10, 10), (11, 11)]})
    if opt.get('ksw'): hplan = {0: [0, 1, 2, 3, 4, 5], 1: [(16, 17), (14, 15), (12, 13), (9, 9)], 2: [(17, 16), (15, 14), (13, 12), 8], 3: [(10, 11), (11, 10)]}
    for t in range(4):
        stamp('att%d' % t)
        P('v_mov_b32 v%d, v%d' % (vTA, vMN))
        P('v_permlane16_swap_b32 v%d, v%d' % (vTA, vMN))
        P('v_max_f32 v%d, v%d, v%d' % (vMN, vMN, vTA))
        P('v_mov_b32 v%d, v%d' % (vTA, vMN))
        P('v_permlane32_swap_b32 v%d, v%d' % (vTA, vMN))
        P('v_max_f32 v%d, v%d, v%d' % (vMN, vMN, vTA))
        P(f'v_mul_f32 v{vMX}, s{N0}, v{vMN}')
        if t == 1:
            P(Ins('s_barrier', needs=pe[3][1] + hw[3] + [x for k in range(6) for x in hld[k]]))
            ad = bunch(flat([dma_groups(n) for n in att_loads[:sum(opt.get('na', [0, 8, 8, 4])) // 4]]))
            emit_all(setflag(3, vPFS))
        if t == 3:
            P(Ins('s_barrier', needs=slots[NSEG1].loads + hld[8]))
            emit_all(h2chk)
        bq = flat([hload(k) for k in hplan[t]])
        def mix(a_, b_):
            out = []; a_ = list(a_); b_ = list(b_)
            while a_ or b_:
                if a_: out.append(a_.pop(0))
                if b_: out.append(b_.pop(0))
            return out
        if t == 0:
            bq = mix(lv + ldma, bq)
        else:
            na = opt.get('na', [0, 8, 8, 4])[t]
            bq = mix(bq, ad[:na]) if t < 3 or opt.get('plain', 1) else bq[:2] + ad[:na] + bq[2:]
            ad = ad[na:]
        ppv = []; pqk = []; pmx = []
        for b in range(9):
            v = (t >> 1) + b
            sgs = [2 * v - t, 2 * v + 1 - t]
            val = [sg for sg in sgs if 0 <= sg <= 16]
            p = PR[b % 2]
            for sg in val:
                for r in (0, 2):
                    s = SREG[sg] + r
                    P(f'v_pk_fma_f32 {vr(s,2)}, {vr(s,2)}, {sr(C,2)}, {vr(vMX,2)} op_sel_hi:[1,0,0]')
            mfs = ppv + [qk(t + 1, g_) for g_ in pqk]
            nb = (len(bq) + (8 - b)) // (9 - b)
            def withmem(x):
                nonlocal nb
                g = []
                if nb: g = bq.pop(0); nb -= 1
                n0 = 0
                while n0 < len(g) and g[n0].kind in ('salu', 'valu') and not g[n0].op.startswith('s_cbranch'): n0 += 1
                emit_all(g[:n0]); P(x); emit_all(g[n0:])
            for sg in val:
                for r in range(4):
                    P('v_exp_f32 v%d, v%d' % (SREG[sg] + r, SREG[sg] + r))
                    if mfs and (not opt.get('spr') or r % 2 == 0 or len(val) == 1): withmem(mfs.pop(0))
            while mfs: withmem(mfs.pop(0))
            nb += 1
            for g_ in pmx: emit_all(mx(g_, vMN))
            for hh, sg in enumerate(sgs):
                if sg in val:
                    s = SREG[sg]
                    P(cvt(p + 2 * hh, s, s + 1)); P(cvt(p + 2 * hh + 1, s + 2, s + 3))
                else:
                    P('v_mov_b32 v%d, 0' % (p + 2 * hh)); P('v_mov_b32 v%d, 0' % (p + 2 * hh + 1))
            for _ in range(nb - 1): emit_all(bq.pop(0))
            pmx = pqk; pqk = val if t < 3 else []
            ppv = [Ins('v_mfma_f32_16x16x32_bf16 %s, %s, %s, %s' % (vr(OM), vr(VREG[2 * v]), vr(p), '0' if b == 0 else vr(OM)), needs=[vld[2 * v]]),
                   Ins('v_mfma_f32_16x16x32_bf16 %s, %s, %s, %s' % (vr(OR_), vr(VREG[2 * v + 1]), vr(p), '0' if b == 0 else vr(OR_)), needs=[vld[2 * v + 1]])]
            if t == 2 and b == 5: P(h2ld)
        assert not bq
        tail = flat([mx(g_, vMN) for g_ in pmx])
        for x in [qk(t + 1, g_) for g_ in pqk] + ppv:
            P(x)
            if tail: P(tail.pop(0))
        emit_all(tail)
        if t < 2: qbuild(t + 2)
        for g_ in pqk: emit_all(mx(g_, vMN))
        if t < 3: o_epi(t)
    stamp('attend')

    own = flat(flat([hload(k) for k in (6, 7)]))
    bmap = {}
    for k in hld:
        for mt in range(4): bmap[breg(hpos[k], mt)] = hld[k][mt]
    def restage(dst, sbase, stride, T3=T3):
        L = II(f's_lshl_b32 s{T3}, s{FH}, 11\ns_add_u32 s{T3}, s{T3}, {HLONE}\nv_add_u32 v{vTB}, s{T3}, v{vHW}')
        rd = [Ins(f'ds_read_b128 {vr(dst+4*m)}, v{vTB} offset:{1024*m}') for m in range(2)]
        L += rd + II(f's_add_u32 s{T3}, s{sbase}, {stride}') + [('SKIP', 8)]
        L += [Ins(f'buffer_store_dwordx4 {vr(dst+4*m)}, v{vL16}, {sr(SW)}, s{[sbase, T3][m]} offen sc1', needs=[rd[m]]) for m in range(2)]
        return L, rd
    oe, ord_ = restage(QF, OB, 18432)
    rr = Ins(f'ds_read_b128 {vr(QF+8)}, v{vTA}')
    oe += II(f'v_add_u32 v{vTA}, {RT4}, v{vL16}') + [rr] + II(f'v_lshrrev_b32 v{vTA}, 3, v{vL}\nv_mul_u32_u24 v{vTA}, {18432-128}, v{vTA}\nv_add_u32 v{vTA}, v{vTA}, v{vL16}') + [('SKIP', 8)]
    oe += [Ins(f'buffer_store_dwordx4 {vr(QF+8)}, v{vTA}, {sr(SW)}, s{OR} offen sc1', needs=[rr])]
    l2e = II(f's_lshl_b32 s{T3}, s{FH}, 3\ns_add_u32 s{T3}, s{T3}, {HLONE}\nv_add_u32 v{vTB}, s{T3}, v{vHW}'); l2w = []
    for mt in range(4):
        t0 = SP + mt * 4
        w = Ins(f'ds_write_b64 v{vTB}, {vr(t0,2)} offset:{1024*mt}'); l2w.append(w)
        l2e += [cvt(t0, t0, t0 + 1), cvt(t0 + 1, t0 + 2, t0 + 3), w]
    l2s, _ = restage(SP, PLN, 1024, T1)
    TLT, TVT = opt.get('tl', 0x54108732), opt.get('tv', 0x56557777)
    def task_params(second):
        ln = II(f's_lshl_b32 s{T2}, s{Pp}, 2\ns_lshr_b32 s{T1}, {TLT:#x}, s{T2}\ns_and_b32 s{T1}, s{T1}, 15\ns_lshr_b32 s{TV}, {TVT:#x}, s{T2}\ns_and_b32 s{TV}, s{TV}, 15\ns_movk_i32 s{TM}, 0x5555')
        ln += [II(f's_cmp_gt_u32 s{T1}, 4\ns_cselect_b32 s{T2}, 1, 0'), Ins(f's_lshl_b32 s{TM}, s{TM}, s{T2}'), II(f's_cmp_eq_u32 s{T1}, 4\ns_cselect_b32 s{TM}, 0xffff, s{TM}'), Ins(f's_bitset0_b32 s{TM}, s{J}')]
        return ln + II(f'''s_lshl_b32 s{TL}, s{T1}, 7
        s_lshl_b32 s{T2}, s{E}, 2
        s_add_u32 s{T2}, s{T2}, s{Wv}
        s_lshl_b32 s{TP}, s{T2}, 10
        s_lshl_b32 s{T1}, s{T1}, 14
        s_sub_u32 s{TP}, s{TP}, s{T1}
        s_mul_i32 s{T1}, s{I}, {8*18*8192}
        s_add_u32 s{TP}, s{TP}, s{T1}
        s_lshl_b32 s{T1}, s{I}, 3
        s_add_u32 s{T2}, s{T2}, s{T1}
        s_mul_i32 s{OL}, s{T2}, 18432
        s_add_u32 s{TX}, s{OL}, s{TL}
        s_mul_i32 s{T1}, s{Wv}, {36*1152}
        s_add_u32 s{TL}, s{TL}, s{T1}''')
    tsetup = II(f'''s_mov_b32 s{SG}, s8
    s_mov_b32 s{SG+1}, s9
    s_mov_b32 s{SG+2}, 0x{576*1152:x}
    s_mov_b32 s{SU}, s{OUTP}
    s_mov_b32 s{SU+1}, s{OUTP+1}
    s_mov_b32 s{SU+2}, 0x{2048*1152:x}
    s_lshl_b32 s{FB}, s{I}, 11
    s_add_u32 s{FB}, s{FB}, 0x{FOFF:x}
    s_mov_b32 s{LO}, 0x00003f80
    s_mov_b32 s{HI}, 0x3f800000''') + task_params(False)
    for t, row in enumerate((0, 8, 20, 28)): tsetup += II(f'v_add_u32 v{vWD[t]}, {(row*1152 - 1024*t - 2048) & 0xffffffff}, v{vDD[0]}')
    tsetup += II(f'''v_lshrrev_b32 v{vWD2}, 5, v{vL}
    v_mul_u32_u24 v{vWD2}, {32*1152}, v{vWD2}
    v_add_u32 v{vWD2}, v{vWD2}, v{vWD[0]}
    v_add_u32 v{vWD2}, {16*1152}, v{vWD2}
    v_and_b32 v{vWT[0]}, 0xffff, v{vTD[0]}
    s_lshl_b32 s{T2}, s{FH}, 6
    v_xor_b32 v{vWT[0]}, s{T2}, v{vWT[0]}
    v_xor_b32 v{vWT[1]}, 32, v{vWT[0]}
    v_xor_b32 v{vWT[2]}, 64, v{vWT[0]}
    v_xor_b32 v{vWT[3]}, 0x60, v{vWT[0]}
    v_lshlrev_b32 v{vPL}, 3, v{vOR}
    v_and_b32 v{vMX}, 15, v{vL}
    v_mul_u32_u24 v{vDG}, 1152, v{vMX}
    v_bfe_u32 v{vMN}, v{vL}, 4, 1
    v_lshl_add_u32 v{vDG}, v{vMN}, 5, v{vDG}
    v_lshrrev_b32 v{vMN}, 5, v{vL}
    v_lshl_add_u32 v{vDG}, v{vMN}, 4, v{vDG}
    s_lshl_b32 s{T2}, s{E}, 2
    s_add_u32 s{T2}, s{T2}, s{Wv}
    s_lshl_b32 s{T2}, s{T2}, 6
    s_lshr_b32 s{T3}, s{ROT}, 4
    s_xor_b32 s{T2}, s{T2}, s{T3}
    s_add_u32 s{T2}, s{T2}, {RTC}
    v_lshlrev_b32 v{vMX}, 2, v{vMX}
    v_add_u32 v{vMX}, s{T2}, v{vMX}''')
    rrd = Ins(f'ds_read_b32 v{vMX}, v{vMX}')
    tsetup += [rrd, ('SKIP', 8), Ins(f'v_mul_f32 v{vMX}, v{vMX}, v{vMX}', needs=[rrd]), Ins(f'v_mul_f32 v{vMN}, 0x{f2u(-1.4426950408889634):x}, v{vMX}')]
    fl_t = f'buffer_load_dword v{vPFP}, v{vPL}, {sr(SW)}, s{FB} offen sc1'
    o3ld = T(fl_t, 24)
    o3chk = poll_check('o3', o3ld, [f'v_cmp_le_u32 vcc, 4, v{vPFP}', 's_nop 1', 's_cmp_eq_u32 vcc_lo, 0xffff'])
    d5ld = T(fl_t, 8)
    ct3 = [II(f's_getpc_b64 {sr(SB,2)}') + [Ins('K1_pc3:')]] + II(f'''s_mov_b32 s{SB+2}, code_end-K1_pc3
    s_and_b32 s{T2}, s{NN}, 7
    s_lshl_b32 s{T2}, s{T2}, 2
    s_add_u32 s{T2}, s{T2}, s{Wv}
    s_mul_i32 s{T2}, s{T2}, {9*128}
    v_cmp_gt_u32 vcc, 9, v{vL}
    v_mov_b32 v{vTA}, 0x{OOB:x}
    s_nop 0
    v_cndmask_b32 v{vTA}, v{vTA}, v{vPL}, vcc''') + [T(f'buffer_load_dword v0, v{vTA}, {sr(SB)}, s{T2} offen', 24)]
    ct3 += II(f'''v_mul_u32_u24 v{vTA}, 1152, v{vL}
    v_subrev_u32 v{vTB}, {9*1152-128}, v{vTA}
    v_cmp_gt_u32 vcc, 9, v{vL}
    s_and_b32 s{T2}, s{I}, 7
    s_lshl_b32 s{T2}, s{T2}, 1
    v_cndmask_b32 v{vTA}, v{vTB}, v{vTA}, vcc
    s_add_u32 s{T2}, s{T2}, s{E}
    s_mul_i32 s{T2}, s{T2}, {36*1152}
    s_add_u32 s{T2}, s{T2}, s{TL}
    s_mul_i32 s{T3}, s{Wv}, {27*1152}
    s_sub_u32 s{T2}, s{T2}, s{T3}''') + [II(f's_cmp_ge_u32 s{J}, 14\ns_cselect_b32 s{T3}, 18, 9')] + II(f'''v_cmp_gt_u32 vcc, s{T3}, v{vL}
    v_mov_b32 v{vTB}, 0x{OOB:x}
    s_nop 0
    v_cndmask_b32 v{vTA}, v{vTB}, v{vTA}, vcc''') + [T(f'buffer_load_dword v0, v{vTA}, {sr(SG)}, s{T2} offen', 24)]
    if opt.get('nowt', 1): ct3 = ct3[:-17]
    OA = 160
    old = []; ol = II(f'v_lshlrev_b32 v{vTA}, 3, v{vL}')
    for k in range(18):
        if k == 8: ol += [('AT', NSEG1 + 14, 0)]
        if k == 16: ol += [('AT', NSEG1 + 15, 0)]
        if k % 4 == 0: ol += II(f's_add_u32 s{T3}, s{OL}, 0x{OOFF + k*1024:x}')
        if k < 16: x = [Ins(f'buffer_load_dwordx4 {ar(OA+4*k)}, v{vL16}, {sr(SW)}, s{T3} offen offset:{1024*(k%4)} sc1')]
        else: x = [Ins(f'buffer_load_dwordx2 {ar(OA+4*k+2*h,2)}, v{vTA}, {sr(SW)}, s{T3} offen offset:{1024*(k%4)+512*h} sc1') for h in range(2)]
        ol += x; old.append(x[-1])
    XR2 = SP + 8
    xt_ = lambda u: f'buffer_load_dwordx4 {vr(XR2+4*u)}, v{vDG}, {sr(SX)}, s{TX} offen offset:{64*u}'
    xld = [Ins(xt_(u)) for u in range(2)]
    de0 = d_epi(ACCA, 0); st0 = [x for x in de0 if x.kind == 'vmem']; stl = [x for x in l2s if not isinstance(x, tuple) and x.kind == 'vmem']
    ost = [x for x in oe if not isinstance(x, tuple) and x.kind == 'vmem']
    de1a = d_epi(ACCB, 1, (0,)); de1b = d_epi(ACCB, 1, (1,)); st1 = [x for x in de1a + de1b if x.kind == 'vmem']
    for x in st1 + stl: loud.add(id(x)); svc[id(x)] = 3
    fill2 = [(sl, 0, stamp('slot%d' % sl, True)) for sl in range(NSEG1, NS)] + [
        (NSEG1, 0, ofl + [('AT', NSEG1 + 2, 0)] + oe + tsetup + ct3 + [('BY', NSEG1 + 9), ('AT', NSEG1 + 9, 4)] + de0 + [o3ld, ('AT', NSEG1 + 12, 4)] + l2e + [('BY', NSEG1 + 14)]
         + [('AT', NSEG1 + 13, 0), o3chk] + ol),
        (NS - 1, 19, de1a), (NSEG1 + 15, 0, l2s),
        (NSEG1, 1, own)]
    bx2 = {NSEG1 + 2: (ow, []), NSEG1 + 3: (hld[6] + hld[7], [])}
    bx2[NSEG1 + 7] = (ost, setflag(4, vPFS)); bx2[NSEG1 + 15] = (l2w + st0, setflag(5, vPFS)); bx2[NSEG1 + opt.get('l2f', 20)] = (stl, setflag(6, vPFS))
    left = segment(NSEG1, NS, fill2, bx2, first_loads=att_loads[sum(opt.get('na', [0, 8, 8, 4])) // 4:], extra_need=lambda f, mt: bmap[f.b(mt)], pre=lambda: o_epi(3))
    print('left after seg2:', len(left), file=sys.stderr)
    stamp('g2end')
    tq = flat(left) + de1b + xld
    def wo_gemm(P, acc, need_o, bg_=None, ph=None, nd_=4):
        ph = ph or [phys[n] for n in range(NS, NSX)]
        rds = {}
        wwin = [0]
        def rd(n):
            k, dt = divmod(n, nd_)
            w, o = divmod(ph[k // 4] * SLOT, 65536)
            if w != wwin[0]:
                for d in range(4): P('v_add_u32 v%d, 0x%x, v%d' % (vWT[d], ((w - wwin[0]) * 65536) & 0xffffffff, vWT[d]))
                wwin[0] = w
            f = FR + 4 * (n % 8)
            rds[n] = [P('ds_read_b64_tr_b16 %s, v%d offset:%d' % (vr(f + 2 * h, 2), vWT[dt], o + (k % 4) * 4096 + 2048 * h)) for h in range(2)]
        for n in range(7): rd(n)
        for n in range(18 * nd_):
            k, dt = divmod(n, nd_)
            nd = rds[n] + (rds[n + 1] if n % 2 == 0 else []) + ([old[k]] if need_o else [])
            P(Ins('v_mfma_f32_16x16x32_bf16 %s, %s, %s, %s' % (vr(acc + 4 * dt), vr(FR + 4 * (n % 8)), ar(OA + 4 * k), '0' if k == 0 else vr(acc + 4 * dt)), needs=nd))
            if n + 7 < 18 * nd_: rd(n + 7)
            if bg_: bg_(n)
        for d in range(4):
            if wwin[0]: P('v_add_u32 v%d, 0x%x, v%d' % (vWT[d], (-wwin[0] * 65536) & 0xffffffff, vWT[d]))
    def ploads(P, dst, extra=0):
        pl = []
        for p in range(8):
            for u in range(2):
                P(f's_add_u32 s{T3}, s{TP}, 0x{POFF + (p*18+17-u)*8192 - extra:x}')
                pl.append(P(f'buffer_load_dwordx4 {vr(dst+8*p+4*u)}, v{vL16}, {sr(SW)}, s{T3} offen sc1'))
        return pl
    def fmath(P, acc, src0, pl, xr, xl_, imm, bg_=None, nu=2):
        SUM, TT = FR, FR + 16
        for p in range(8):
            for u in range(nu):
                for q in range(4):
                    src = src0 + 8 * p + 4 * u + q; d = SUM + 8 * u + 2 * q
                    P(Ins(f'v_dot2_f32_bf16 v{d}, v{src}, s{LO}, ' + ('0' if p == 0 else f'v{d}'), needs=[pl[nu * p + u]]))
                    P(f'v_dot2_f32_bf16 v{d+1}, v{src}, s{HI}, ' + ('0' if p == 0 else f'v{d+1}'))
                if bg_: bg_(2 * p + u)
        for r in range(0, 8 * nu, 2): P(f'v_pk_mul_f32 {vr(TT+r,2)}, {vr(SUM+r,2)}, {vr(vMX,2)} op_sel:[0,1] op_sel_hi:[1,1]')
        for r in range(8 * nu): P(f'v_exp_f32 v{TT+r}, v{TT+r}')
        for r in range(0, 8 * nu, 2): P(f'v_pk_mul_f32 {vr(acc+r,2)}, {vr(acc+r,2)}, {vr(SUM+r,2)}')
        for r in range(0, 8 * nu, 2): P(f'v_pk_add_f32 {vr(TT+r,2)}, {vr(TT+r,2)}, 1.0 op_sel_hi:[1,0]')
        for r in range(8 * nu): P(f'v_rcp_f32 v{TT+r}, v{TT+r}')
        for r in range(0, 8 * nu, 2): P(f'v_pk_mul_f32 {vr(acc+r,2)}, {vr(acc+r,2)}, {vr(TT+r,2)}')
        for u in range(nu):
            for r in range(4): P(f'v_permlane16_swap_b32 v{acc+8*u+r}, v{acc+8*u+4+r}')
        for u in range(nu):
            for q in range(4):
                d = acc + 8 * u + 2 * q
                P(Ins(f'v_dot2c_f32_bf16 v{d}, s{LO}, v{xr+4*u+q}', needs=[xl_[u]]))
                P(f'v_dot2c_f32_bf16 v{d+1}, s{HI}, v{xr+4*u+q}')
        for u in range(nu):
            for q in range(4): P(cvt(xr + 4 * u + q, acc + 8 * u + 2 * q, acc + 8 * u + 2 * q + 1))
            P(f'buffer_store_dwordx4 {vr(xr+4*u)}, v{vDG}, {sr(SU)}, s{TX} offen offset:{64*u+imm} ' + opt.get('ost', 'sc1'))
    def scale_s(P, acc, nu=2):
        for r in range(0, 8 * nu, 2): P(f'v_pk_mul_f32 {vr(acc+r,2)}, {vr(acc+r,2)}, {vr(vMX,2)} op_sel_hi:[1,0]')
    ftest = [f'v_cmp_le_u32 vcc, s{TV}, v{vPFP}', 's_nop 1', f's_and_b32 s{T2}, vcc_lo, s{TM}', f's_cmp_eq_u32 s{T2}, s{TM}']
    P(Ins('s_barrier', needs=[x for n in range(NS, NSX) for x in slots[n].loads]))
    while tq and any(x in ol for x in tq): P(tq.pop(0))
    P(f's_and_b32 s{T2}, s{J}, 10')
    P(f's_cmp_eq_u32 s{T2}, 10')
    P('s_cbranch_scc1 dbl')
    S = P.fork(); tq2 = [Ins(x.text) for x in tq]
    st2 = [x for x in st1 if x.cnt is not None] + [x for x in tq2 if 'store' in x.op]
    f1 = Ins(fl_t)
    def bgt(n):
        for _ in range(2):
            if tq: P(tq.pop(0))
        if n == opt.get('nf', 48):
            P(Ins('s_barrier', needs=st1))
            P(f1)
            emit_all(setflag(7, vPFS))
    wo_gemm(P, XT, True, bgt)
    assert not tq
    stamp('wo')
    scale_s(P, XT)
    P(Ins(ftest[0], needs=[f1]))
    P('s_nop 1')
    pl = [None] * 16
    porder = opt.get('porder', [7, 6, 5, 4, 0, 1, 2, 3])
    for p in porder:
        bits = 3 << (2 * p)
        if opt.get('pb'): bits = sum(3 << (2 * y) for y in porder[porder.index(p) // opt['pb'] * opt['pb']:][:opt['pb']])
        chk = [f's_andn2_b32 s{T2}, s{TM}, vcc_lo', f's_and_b32 s{T2}, s{T2}, {bits}']
        for t_ in chk: P(t_)
        P(f's_cbranch_scc1 fp{p}_slow')
        P.label(f'fp{p}_ok')
        Z = Prog(); Z.label(f'fp{p}_slow'); Z(f's_mov_b32 s{SPN}, 400000'); Z.label(f'fp{p}_loop')
        if opt.get('fs'): Z('s_sleep %d' % opt['fs'])
        Z(fl_t); Z('s_waitcnt vmcnt(0)'); Z(ftest[0]); Z(f's_sub_u32 s{SPN}, s{SPN}, 1'); Z(f's_cbranch_scc1 fp{p}_ok')
        for t_ in chk: Z(t_)
        Z(f's_cbranch_scc1 fp{p}_loop'); Z(f's_branch fp{p}_ok'); slow.append(Z.text())
        for u in range(2):
            P(f's_add_u32 s{T3}, s{TP}, 0x{POFF + (p*18+17-u)*8192:x}')
            pl[2 * porder.index(p) + u] = P(f'buffer_load_dwordx4 {vr(ACCA+8*porder.index(p)+4*u)}, v{vL16}, {sr(SW)}, s{T3} offen sc1')
    stamp('poll')
    fmath(P, XT, ACCA, pl, XR2, xld, 0)
    stamp('x1')
    P.label('dbl_e')
    stamp('x2')
    S.label('dbl')
    TP2, TX2, U6 = 96, 97, 98
    S(f'''s_bfe_u32 s{U6}, s{J}, 0x10002
    s_lshl_b32 s{T2}, s{U6}, 9
    s_sub_u32 s{T2}, 640, s{T2}
    s_add_u32 s{TL}, s{TL}, s{T2}
    s_lshl_b32 s{U6}, s{U6}, 6
    s_add_u32 s{T2}, s{T2}, s{U6}
    s_add_u32 s{TX2}, s{TX}, s{T2}
    s_lshl_b32 s{T2}, s{T2}, 7
    s_sub_u32 s{TP2}, s{TP}, s{T2}
    s_mov_b32 s{TM}, 0xffff''')
    ph2 = [x for x in range(9) if x not in [phys[n] for n in range(NS, NSX)]] + [9]
    wq = bunch(flat([slots[NS + n].dma(ph2[n]) for n in range(5)]))
    wl = [x for g in wq for x in g if x.kind == 'vmem']
    def pl_(dst, base, nu): return [II(f's_add_u32 s{T3}, s{base}, 0x{POFF + (p*18+17-u)*8192:x}\nbuffer_load_dwordx4 {vr(dst+8*p+4*u)}, v{vL16}, {sr(SW)}, s{T3} offen sc1') for p in range(8) for u in range(nu)]
    qa = pl_(ACCA, TP, 2); qb = pl_(ACCB, TP2, 1); pa = [g[1] for g in qa]; pb = [g[1] for g in qb]
    x2 = [Ins(f'buffer_load_dwordx4 {vr(SP)}, v{vDG}, {sr(SX)}, s{TX2} offen')]
    mq = wq[:10] + [[d5ld]] + wq[10:] + [x2] + [poll_check('d5', d5ld, ftest) + qa[0]] + qa[1:] + qb
    def pop():
        if mq:
            for x in mq.pop(0):
                if x.kind == 'label': S.out.append(x)
                else: S(x)
    def bgs(n):
        if tq2:
            for _ in range(2):
                if tq2: S(tq2.pop(0))
        elif n % (2 if fdone and len(fdone) > 1 else opt.get('dp', 3)) == 0: pop()
        if n == opt.get('nfd', 28) and not fdone:
            fdone.append(1)
            S(Ins('s_barrier', needs=st2))
            for x in setflag(7, vPFS): S(x)
    fdone = []
    wo_gemm(S, XT, True, bgs)
    for x in flat(stamp('wo', True)): S(x)
    while wl[-1].cnt is None: pop()
    for _ in range(4): pop()
    S(Ins('s_barrier', needs=wl))
    for x in flat(stamp('poll', True)): S(x)
    fdone.append(1)
    for d in range(2): S(f'v_xor_b32 v{vWT[d]}, s{U6}, v{vWT[d]}')
    wo_gemm(S, XT + 16, False, bgs, ph2, 2)
    for x in flat(stamp('x1', True)): S(x)
    scale_s(S, XT)
    fmath(S, XT, ACCA, pa, XR2, [None, None], 0, lambda n: pop())
    assert not mq
    S(f's_mov_b32 s{TX}, s{TX2}')
    scale_s(S, XT + 16, 1)
    fmath(S, XT + 16, ACCB, pb, SP, x2, 0, None, 1)
    S('s_branch dbl_e'); slow.append(S.text())
    if stamps:
      P('s_waitcnt vmcnt(0)')
      stamp('end')
      P('s_waitcnt lgkmcnt(0)')
      P(f's_lshl_b32 s{T2}, s2, 7')
      P(f's_add_u32 s{T2}, s{T2}, 0x{STAMP_OFF:x}')
      if stamps == 'all':
        n = len(ALL)
        P('v_writelane_b32 v%d, s22, %d' % (77 + n // 64, n % 64))
        P(f's_lshl_b32 s{T2}, s2, 9')
        P(f's_add_u32 s{T2}, s{T2}, 0x{STAMP_OFF + (2 << 18):x}')
        P(f's_cmp_eq_u32 s{Wv}, 0')
        P(f's_cselect_b32 s{T2}, s{T2}, 0x{OOB:x}')
        P(f'v_lshlrev_b32 v80, 2, v{vL}')
        P(f'buffer_store_dword v77, v80, {sr(SW)}, s{T2} offen')
        P(f'buffer_store_dword v78, v80, {sr(SW)}, s{T2} offen offset:256')
      else:
        P('s_mov_b32 s%d, s22' % (sTS + len(stamps)))
        P('v_mov_b32 v81, 0')
        for n in range(10):
            P('v_mov_b32 v80, s%d' % (sTS + (n if opt.get('est') else min(n, len(stamps)))))
            P(f'buffer_store_dwordx2 v[80:81], v{vFL}, {sr(SW)}, s{T2} offen offset:{8*n}')
    P.label('K1_end')
    P('s_endpgm')
    print('K1: instrs', len(P.out), 'nops', P.nnop, file=sys.stderr)
    return P.text() + ''.join(reversed(slow))
```

```python
import sys, struct
sys.path.insert(0, 'gen')
from prog import *
from asmlib import STAMP_OFF

HOFF = 0x0000000
POFF = 0
BLK = 110592
KOFF = 0x2400000 + BLK
OOFF = 0x2C00000
ROFF = 0x2F00000
FOFF = 0x2F10000
WSB = 256 << 20
OOB = 0x10000000
NEG = 0xF149F2CA
SCALE = 0.2357022603955158 * 1.4426950408889634
def f2u(x): return struct.unpack('<I', struct.pack('<f', x))[0]

SLOT = 16384
XB = 5 * SLOT
HLONE = 9 * SLOT
RT4 = 155648
RTB = RT4 + 2048
RTC = RT4 + 7680
VRS = 272; LVR = RT4; LKR = LVR + 12 * VRS; LQR = LKR + 3072
NCODE = 84

def vr(b, n=4): return 'v[%d:%d]' % (b, b + n - 1)
def ar(b, n=4): return 'a[%d:%d]' % (b, b + n - 1)
def sr(b, n=4): return 's[%d:%d]' % (b, b + n - 1)
def II(text): return [Ins(l) for l in text.strip().split('\n') if l.strip()]

class Frag:
    def __init__(s, base, imm0, imm1, acc, b, first):
        s.base, s.imm, s.acc, s.b, s.first = base, (imm0, imm1), acc, b, first
class Slot:
    def __init__(s, groups, dma):
        s.groups, s.dma, s.loads = groups, dma, None

def gen_k1(JX=4, stamps=False, opt={}):
    opt = dict(dict(so=5, cls=[0, 0, 8, 8, 26, 26, 30, 30, 38, 38], qc=44, crit=72, svst=2.5, spr=1, nv1=8, hf=47, l2f=18, xs=1, qt=1, gap1=20, svk=5.5), **opt)
    assert JX == 4
    P = Prog()
    SX, SQ, SG, SU, SD, SW, SB, SL = 24, 28, 32, 36, 40, 44, 48, 52
    I, J, Wv, RG, FH, E, Pp, T0, T1, T2, T3, OFF, ST, SPN = range(56, 70)
    W4096, W3072, BP, BL1, BD, SIG = range(70, 76)
    BL2 = 76
    HS, HLN, HL, PS, PLN = range(79, 84)
    C, N0, N1 = 84, 85, 86
    QM, QC, BQ, ONE2, LO, HI, R2, XRO = 87, 91, 92, 93, 94, 95, 96, 97
    KO, KB = 87, 92
    NN = 101
    SH = 75 + 11
    OB, OR, MYF, PF, PFD, DB = 4, 5, 6, 7, 10, 11
    PFP, PFW, J0, DUM = 20, 21, 90, 18
    OUTP = 0
    QL = 88; SGR = opt.get('sg', 2)
    ROT = 3
    sTS = 12
    vL, vL16 = 1, 2
    vDQ = [3, 4, 5, 6]; vDL2 = 7
    vDP = [8, 9]; vDL1 = 10; vTP = [11, 12]; vTL1 = 13
    vTQ = [14, 15]; vDD = [16, 17, 18, 19]; vTD = [20, 21]; vTL2 = 22
    vQS = [23]; vTB = 24; vRS = 25
    vPFP, vPFS, vHW, vFL, vDG, vOR = 26, 27, 28, 29, 30, 31
    vKM, vKR, vVM, vVR = 3, 4, 5, 6
    QW = 8
    vMX, vMN, vTA, vONES = 14, 15, 23, 25
    XT, QF, FR, ACCA, ACCB, SP = 32, 64, 80, 112, 176, 240
    ALL = ['mf0'] + ['slot%d' % n for n in range(1, 51)] + ['g1end', 'attk', 'att1', 'att2', 'att3', 'attend'] + ['slot%d' % n for n in range(52, 72)] + ['g2end', 'wo', 'poll', 'end']
    JIT = ['setup', 'ln23', 'slot10', 'slot19', 'slot25', 'slot34', 'slot43', 'slot49', 'attk', 'att2', 'slot53', 'slot61', 'slot66', 'slot71', 'g2end']
    def stamp(name, ret=False):
        if opt.get('jit'):
            if name not in JIT: return []
            n = JIT.index(name)
            x = II(f'''s_lshl_b32 s12, s2, 2
            s_add_u32 s12, s12, s{Wv}
            s_lshr_b32 s12, s12, {2 * (n % 2)}
            s_add_u32 s12, s12, {n * 7919 + opt['jit']}
            s_mul_i32 s12, s12, 0x9e3779b1
            s_lshr_b32 s12, s12, 29
            s_sub_u32 s12, s12, 4
            s_cbranch_scc1 jit{n}_e''') + [Ins(f'jit{n}:')] + II(f's_sleep 40\ns_sub_u32 s12, s12, 1\ns_cbranch_scc0 jit{n}') + [Ins(f'jit{n}_e:')]
            if ret: return [x]
            for y in x:
                if y.kind == 'label': P.out.append(y)
                else: P(y)
            return []
        if stamps == 'all':
            if name not in ALL: return []
            n = ALL.index(name)
            x = [Ins('v_writelane_b32 v%d, s22, %d' % (77 + n // 64, n % 64)), Ins('s_memtime s[22:23]')]
            if ret: return [x]
            for y in x: P(y)
            return []
        if stamps and name in stamps:
            n = stamps.index(name)
            x = [Ins('s_mov_b32 s%d, s22' % (sTS + n)), Ins('s_memrealtime s[22:23]')]
            if ret: return [x]
            for y in x: P(y)
        return []
    def breg(pos, mt):
        i = pos * 4 + mt
        return ar(4 * i) if i < 64 else vr(XT + 4 * (i - 64))
    def emit_all(lst):
        for x in lst:
            if isinstance(x, list): emit_all(x)
            elif x.kind == 'label': P.out.append(x)
            else: P(x)
    lg = lambda x: x.bit_length() - 1
    ng = 16 // JX

    P('s_cmp_ge_u32 s2, 256')
    P('s_cbranch_scc1 K1_end')
    P('s_load_dwordx16 s[4:19], s[0:1], 0')
    P('s_load_dwordx4 s[20:23], s[0:1], 64')
    if stamps: P('s_memtime s[84:85]' if stamps == 'all' else 's_memrealtime s[84:85]')
    def code_touch():
        P('s_getpc_b64 %s' % sr(SL, 2))
        P.label('K1_pc')
        P(f'''s_mov_b32 s{SL+2}, code_end-K1_pc
        s_mov_b32 s{SL+3}, 0x00020000
        s_lshr_b32 s{SPN}, s2, 3
        s_and_b32 s{SPN}, s{SPN}, 7
        s_mul_i32 s{SPN}, s{SPN}, {NCODE*128}
        v_lshlrev_b32 v80, 7, v0
        v_mov_b32 v89, 0x{OOB:x}
        v_cmp_gt_u32 vcc, {NCODE}, v0
        v_cndmask_b32 v80, v89, v80, vcc
        buffer_load_dword v79, v80, {sr(SL)}, s{SPN} offen''')
    if opt.get('ct0'):
        P('s_getpc_b64 %s' % sr(SL, 2))
        P(f'''s_mov_b32 s{SL+2}, {opt['ct0']*128}
        s_mov_b32 s{SL+3}, 0x00020000
        v_lshlrev_b32 v80, 7, v0
        buffer_load_dword v79, v80, {sr(SL)}, 0 offen''')
    if not opt.get('ctlate', 0): code_touch()
    P(f'''s_lshr_b32 s{NN}, s2, 3
    v_mov_b32 v89, 0x{OOB:x}
    v_and_b32 v{vL}, 63, v0
    v_lshrrev_b32 v80, 6, v0
    v_readfirstlane_b32 s{Wv}, v80
    s_and_b32 s{T0}, s2, 7
    s_and_b32 s{J}, s{T0}, {ng-1}
    s_lshl_b32 s{J}, s{J}, {lg(JX)}
    s_and_b32 s{T2}, s{NN}, {JX-1}
    s_or_b32 s{J}, s{J}, s{T2}
    s_lshr_b32 s{I}, s{T0}, {lg(ng)}
    s_lshl_b32 s{I}, s{I}, {lg(32//JX)}
    s_lshr_b32 s{T2}, s{NN}, {lg(JX)}
    s_or_b32 s{I}, s{I}, s{T2}
    s_and_b32 s{RG}, s{Wv}, 1
    s_lshr_b32 s{FH}, s{Wv}, 1
    s_and_b32 s{E}, s{J}, 1
    s_lshr_b32 s{Pp}, s{J}, 1
    s_and_b32 s{ROT}, s{J}, {min(JX-1, 3)}
    v_lshrrev_b32 v82, 3, v{vL}
    v_and_b32 v83, 7, v{vL}
    v_mul_u32_u24 v100, 1152, v82
    v_lshl_add_u32 v100, v83, 4, v100
    s_lshl_b32 s{T0}, s{I}, 3
    s_lshl_b32 s{T1}, s{RG}, 2
    s_add_u32 s{T0}, s{T0}, s{T1}
    s_add_u32 s{T1}, s{T0}, s{FH}
    s_mul_i32 s{T1}, s{T1}, {16*1152}''')
    if JX == 2: P(f's_lshl_b32 s{ROT}, s{ROT}, 1')
    def xro(blk):
        P(f'''s_xor_b32 s{T2}, s{ROT}, {blk}
        s_and_b32 s{T3}, s{T2}, 1
        s_lshl_b32 s{T3}, s{T3}, 3
        s_and_b32 s{T2}, s{T2}, 2
        s_lshl_b32 s{T2}, s{T2}, 4
        s_or_b32 s{XRO+blk}, s{T2}, s{T3}''')
    xro(0)
    if opt.get('est'): P('s_memrealtime s[76:77]')
    P('s_waitcnt lgkmcnt(0)')
    if opt.get('est'): P('s_memrealtime s[78:79]')
    def srd(d, b, nbytes, shift=0):
        if shift:
            P('s_sub_u32 s%d, s%d, %d' % (d, b, shift))
            P('s_subb_u32 s%d, s%d, 0' % (d + 1, b + 1))
        else:
            P('s_mov_b32 s%d, s%d' % (d, b))
            P('s_mov_b32 s%d, s%d' % (d + 1, b + 1))
        P('s_mov_b32 s%d, 0x%x' % (d + 2, nbytes + shift))
        P('s_mov_b32 s%d, 0x00020000' % (d + 3))
    srd(SX, 4, 2048 * 1152)
    XR = 112
    xl = []
    def xload(blk):
        ld = [Ins('buffer_load_dwordx4 %s, v100, %s, s%d offen offset:%d' % (vr(XR + 36 * blk + 4 * l), sr(SX), OFF, 128 * l)) for l in range(9)]
        xl.append(ld)
        return [II(f's_mul_i32 s{OFF}, s{XRO+blk}, 1152\ns_add_u32 s{OFF}, s{OFF}, s{T1}')] + [[x] for x in ld]
    if opt.get('xt'):
        P(f'''s_lshl_b32 s{T2}, s{I}, 4
        s_add_u32 s{T2}, s{T2}, s{J}
        s_lshl_b32 s{T2}, s{T2}, 2
        s_add_u32 s{T2}, s{T2}, s{Wv}
        s_mul_i32 s{T2}, s{T2}, 2304
        v_min_u32 v80, 17, v{vL}
        v_lshlrev_b32 v80, 7, v80
        buffer_load_dword v79, v80, {sr(SX)}, s{T2} offen''')
    emit_all(xload(0))
    if opt.get('ctlate', 0): code_touch()
    if opt.get('est'): P('s_memrealtime s[80:81]')
    if opt.get('est') == 2:
        P('s_waitcnt vmcnt(8)')
        P('s_memrealtime s[82:83]')
        P('s_waitcnt vmcnt(0)')
        P('s_memrealtime s[86:87]')
    for blk in range(1, 4): xro(blk)
    srd(SQ, 6, 576 * 3456, shift=2048)
    RS = 36 // JX
    NT = ' nt' if opt.get('nt') else ''
    P(f'''s_and_b32 s{J0}, s{J}, {16-JX}
    s_and_b32 s{SH}, s2, 7
    s_lshr_b32 s{SH}, s{SH}, {lg(ng)}
    s_lshl_b32 s{SH}, s{SH}, 5
    s_add_u32 s{SH}, s{SH}, s{NN}
    v_lshrrev_b32 v86, {lg(2*JX)}, v0
    v_and_b32 v87, {2*JX-1}, v0
    v_mul_u32_u24 v88, 3456, v86
    v_lshl_add_u32 v87, v87, 7, v88
    v_cmp_gt_u32 vcc, {RS}, v86
    v_cndmask_b32 v87, v89, v87, vcc
    s_mul_i32 s{ST}, s{SH}, {RS*3456}
    s_lshl_b32 s{T2}, s{J0}, 8
    s_add_u32 s{BL2}, s{ST}, s{T2}
    v_mov_b32 v104, v87''')
    qtouch = [Ins(f'buffer_load_dword v79, v104, {sr(SQ)}, s{BL2} offen offset:2048' + NT)]

    srd(SG, 12, 576 * 9216)
    srd(SU, 14, 576 * 9216, shift=2048)
    srd(SD, 16, 4608 * 1152, shift=2048)
    srd(SW, 22, WSB)
    srd(SB, 20, 256)
    P(f's_mov_b64 {sr(OUTP,2)}, s[18:19]')
    P(f'''s_cmp_ge_u32 s{Wv}, 2
    s_cselect_b32 s{SL}, s14, s12
    s_cselect_b32 s{SL+1}, s15, s13
    s_mov_b32 s{SL+2}, 0x{576*9216:x}
    s_mov_b32 s{SL+3}, 0x00020000
    s_mul_i32 s{PFP}, s{SH}, {RS*9216}
    s_mul_i32 s{T2}, s{RG}, {1152 if JX == 4 else 9*9216}
    s_add_u32 s{PFP}, s{PFP}, s{T2}
    s_mul_i32 s{T2}, s{J0}, 576
    s_add_u32 s{PFP}, s{PFP}, s{T2}''')
    if stamps: P('s_mov_b64 s[22:23], s[84:85]')
    P(f'''s_lshl_b32 s{W4096}, s{Wv}, 12
    s_lshl_b32 s{QL}, s{J}, 1
    s_add_u32 s{QL}, s{QL}, 4
    s_sub_u32 s{T2}, s{QL}, 8
    s_cmp_ge_u32 s{J}, {4*SGR}
    s_cselect_b32 s{QL}, s{T2}, s{QL}
    s_and_b32 s{T2}, s{J}, 3
    s_cmp_eq_u32 s{J0}, {4*SGR}
    s_cselect_b32 s{QL}, s{T2}, s{QL}
    s_lshl_b32 s{BQ}, s{QL}, 7
    s_mul_i32 s{T2}, s{Wv}, {16*3456}
    s_add_u32 s{BQ}, s{BQ}, s{T2}
    s_mov_b32 s{ONE2}, 0x3f803f80
    s_mov_b32 s{LO}, 0x00003f80
    s_mov_b32 s{HI}, 0x3f800000
    v_lshrrev_b32 v84, 4, v{vL}
    v_and_b32 v85, 15, v{vL}
    v_cmp_eq_u32 vcc, 0, v0
    v_cndmask_b32 v{vFL}, v89, 0, vcc
    v_lshlrev_b32 v86, 1, v82
    v_and_b32 v86, 4, v86
    v_xor_b32 v86, v83, v86
    v_mul_u32_u24 v87, 9216, v82
    v_lshl_add_u32 v{vDP[0]}, v86, 4, v87
    v_mul_u32_u24 v88, 3456, v82
    v_lshl_add_u32 v90, v86, 4, v88
    v_add_u32 v{vDQ[0]}, 2048, v90
    v_add_u32 v{vDQ[2]}, 128, v90
    v_xor_b32 v86, 2, v86
    v_lshl_add_u32 v{vDP[1]}, v86, 4, v87
    v_add_u32 v{vDP[1]}, {8*9216-1024}, v{vDP[1]}
    v_lshl_add_u32 v90, v86, 4, v88
    v_add_u32 v{vDQ[1]}, {8*3456-1024+2048}, v90
    v_add_u32 v{vDQ[3]}, {8*3456-1024+128}, v90
    s_sub_u32 s{T2}, s{QL}, 4
    s_cmp_ge_u32 s{T2}, 22
    s_cselect_b32 s{QC}, 0x{OOB:x}, 0
    v_add_u32 v{vDQ[2]}, s{QC}, v{vDQ[2]}
    v_add_u32 v{vDQ[3]}, s{QC}, v{vDQ[3]}
    s_lshl_b32 s{SIG}, s{E}, 1
    s_sub_u32 s{SIG}, 1, s{SIG}
    s_mul_i32 s{BP}, s{Pp}, 1152
    s_lshl_b32 s{T3}, s{E}, 10
    s_add_u32 s{BP}, s{BP}, s{T3}
    s_mul_i32 s{T3}, s{Wv}, {16*9216}
    s_add_u32 s{BP}, s{BP}, s{T3}
    v_and_b32 v87, 3, v{vL}
    v_lshrrev_b32 v86, 2, v85
    v_and_b32 v88, 1, v84
    v_lshrrev_b32 v92, 1, v84
    v_lshlrev_b32 v90, 12, v92
    v_lshl_add_u32 v90, v88, 10, v90
    v_lshl_add_u32 v90, v86, 7, v90
    v_lshrrev_b32 v91, 1, v86
    v_xor_b32 v91, s{FH}, v91
    v_lshl_add_u32 v90, v91, 6, v90
    v_lshl_add_u32 v90, v88, 5, v90
    v_lshl_add_u32 v{vTQ[0]}, v87, 3, v90
    v_xor_b32 v{vTQ[1]}, 32, v{vTQ[0]}
    s_lshl_b32 s{T2}, s{E}, 6
    v_xor_b32 v{vTP[0]}, s{T2}, v{vTQ[0]}
    v_xor_b32 v{vTP[1]}, s{T2}, v{vTQ[1]}
    s_mul_i32 s{ST}, s{RG}, {2*18432}
    s_add_u32 s{ST}, s{ST}, {XB}
    v_xor_b32 v90, v85, v84
    v_lshlrev_b32 v90, 4, v90
    v_lshl_add_u32 v90, v84, 8, v90
    v_add_u32 v65, s{ST}, v90
    v_xor_b32 v66, 64, v65
    s_mul_i32 s{T2}, s{FH}, 18432
    s_add_u32 s{ST}, s{ST}, s{T2}
    s_and_b32 s{T2}, s{XRO}, 8
    s_lshl_b32 s{T2}, s{T2}, 4
    s_add_u32 s{ST}, s{ST}, s{T2}
    v_xor_b32 v90, v82, v83
    v_lshlrev_b32 v90, 4, v90
    v_lshl_add_u32 v90, v83, 8, v90
    v_add_u32 v64, s{ST}, v90
    v_xor_b32 v76, 128, v64
    s_lshl_b32 s{T2}, s{RG}, 6
    s_lshl_b32 s{T3}, s{FH}, 4
    s_add_u32 s{T2}, s{T2}, s{T3}
    v_add_u32 v67, s{T2}, v82''')
    def G(text): return [II(text)]
    P(f'''s_lshl_b32 s{T2}, s{I}, 4
    s_add_u32 s{T2}, s{T2}, s{J}
    s_lshl_b32 s{MYF}, s{T2}, 7
    s_add_u32 s{MYF}, s{MYF}, 0x{FOFF:x}
    s_lshl_b32 s{DB}, s{I}, 2
    s_lshl_b32 s{T2}, 1, s{J}
    v_mov_b32 v105, s{T2}
    v_mov_b32 v86, 0''')
    freset = P(f'buffer_store_dword v86, v{vFL}, {sr(SW)}, s{MYF} offen sc1')
    fatom = Ins(f'buffer_atomic_or v105, v{vFL}, {sr(SB)}, s{DB} offen offset:8', needs=[freset])
    late0 = II(f'''s_mul_i32 s{W3072}, s{Wv}, 3072
    s_lshl_b32 s{T2}, s{I}, 4
    s_add_u32 s{T2}, s{T2}, s{J}
    v_mov_b32 v207, 0
    s_xor_b32 s{PF}, s{MYF}, 128
    s_mul_i32 s{HS}, s{T2}, {9*8192}
    s_xor_b32 s{T2}, s{T2}, 1
    s_mul_i32 s{HL}, s{T2}, {9*8192}
    s_lshl_b32 s{T2}, s{RG}, 12
    s_add_u32 s{HS}, s{HS}, s{T2}
    s_lshl_b32 s{T3}, s{FH}, 11
    s_add_u32 s{HLN}, s{HS}, s{T3}
    s_add_u32 s{HLN}, s{HLN}, {8*8192}
    s_add_u32 s{HL}, s{HL}, s{T2}
    s_lshl_b32 s{T3}, s{FH}, 13
    s_add_u32 s{HS}, s{HS}, s{T3}
    s_mul_i32 s{BL1}, s{Pp}, 1152
    s_lshl_b32 s{T2}, s{E}, 6
    s_add_u32 s{T2}, s{T2}, 512
    s_add_u32 s{BL1}, s{BL1}, s{T2}
    s_mul_i32 s{T3}, s{RG}, {48*9216}
    s_add_u32 s{BL1}, s{BL1}, s{T3}''')
    late0b = II(f'''s_lshl_b32 s{T2}, s{RG}, 12
    s_lshl_b32 s{T3}, s{I}, 3
    s_add_u32 s{T3}, s{T3}, s{Pp}
    s_mul_i32 s{PS}, s{T3}, {18*8192}
    s_add_u32 s{PS}, s{PS}, s{T2}
    s_add_u32 s{PS}, s{PS}, 0x{POFF:x}
    s_sub_u32 s{T3}, 9, s{E}
    s_lshl_b32 s{T3}, s{T3}, 13
    s_add_u32 s{PLN}, s{PS}, s{T3}
    s_lshl_b32 s{T3}, s{FH}, 11
    s_xor_b32 s{T3}, s{T3}, s{ROT}
    s_add_u32 s{PLN}, s{PLN}, s{T3}
    s_add_u32 s{PS}, s{PS}, s{ROT}
    s_mul_i32 s{T3}, s{E}, 10
    s_add_u32 s{T3}, s{T3}, s{FH}
    s_sub_u32 s{T3}, 17, s{T3}
    s_lshl_b32 s{T3}, s{T3}, 13
    s_add_u32 s{PS}, s{PS}, s{T3}
    s_lshl_b32 s{T2}, s{E}, 6
    s_add_u32 s{T2}, s{T2}, 512
    s_mul_i32 s{T1}, s{Pp}, {576*1152}
    s_mul_i32 s{T3}, s{E}, {17*32*1152}
    s_add_u32 s{T1}, s{T1}, s{T3}
    s_mul_i32 s{BD}, s{E}, 640
    s_add_u32 s{BD}, s{BD}, s{T1}
    s_mul_i32 s{T3}, s{FH}, s{SIG}
    s_mul_i32 s{T3}, s{T3}, {32*1152}
    s_add_u32 s{BD}, s{BD}, s{T3}
    s_mul_i32 s{T3}, s{RG}, {16*1152}
    s_add_u32 s{BD}, s{BD}, s{T3}
    s_add_u32 s{T1}, s{T1}, s{T2}''')
    for t in range(3):
        late0b += II(f'''s_mul_i32 s{T2}, s{Wv}, 3
        s_add_u32 s{T2}, s{T2}, {t}
        s_lshr_b32 s{T3}, s{T2}, 1
        s_mul_i32 s{T3}, s{T3}, s{SIG}
        s_mul_i32 s{T3}, s{T3}, {32*1152}
        s_add_u32 s{BL2+t}, s{T1}, s{T3}
        s_and_b32 s{T2}, s{T2}, 1
        s_mul_i32 s{T2}, s{T2}, {16*1152}
        s_add_u32 s{BL2+t}, s{BL2+t}, s{T2}
        s_add_u32 s{BL2+t}, s{BL2+t}, {2048-1024*t}''')
    late0 += II(f'''s_mul_i32 s{T2}, s{T0}, {BLK//2}
    s_lshl_b32 s{T3}, s{QL}, 12
    s_add_u32 s{T2}, s{T2}, s{T3}
    s_lshl_b32 s{T3}, s{FH}, 11
    s_add_u32 s{T2}, s{T2}, s{T3}
    s_add_u32 s{T2}, s{T2}, 0x{KOFF:x}
    s_and_b32 s{ROT}, s{ROT}, 2
    s_mul_i32 s{T3}, s{ROT}, {BLK//2}
    s_add_u32 s{T2}, s{T2}, s{T3}
    s_sub_u32 s{QM+2}, 1, s{ROT}
    s_mul_i32 s{QM+2}, s{QM+2}, {BLK}
    s_lshl_b32 s{ROT}, s{ROT}, 10
    s_add_u32 s{QC}, s{QC}, 4096
    s_mov_b32 s{QM}, s{T2}''')
    late0b += II(f'''s_lshl_b32 s{T2}, s{FH}, 1
    s_add_u32 s{T2}, s{T2}, s{T0}
    s_mul_i32 s{OB}, s{T2}, 18432
    s_lshl_b32 s{T2}, s{J}, 10
    s_add_u32 s{OB}, s{OB}, s{T2}
    s_add_u32 s{OB}, s{OB}, 0x{OOFF:x}
    s_mul_i32 s{OR}, s{I}, {8*18432}
    s_lshl_b32 s{T2}, s{J}, 7
    s_add_u32 s{OR}, s{OR}, s{T2}
    s_add_u32 s{OR}, s{OR}, 0x{OOFF+16384:x}''')
    late0b += G(f's_cmp_eq_u32 s{Wv}, 0\ns_cselect_b32 s{OR}, s{OR}, 0x{OOB:x}')
    late0b += II(f'''s_mov_b32 s{C}, 0x{f2u(SCALE):x}''')
    late0b += G(f's_cmp_lt_u32 s{I}, 2\ns_cselect_b32 s{N0}, 0xffff, 0') + G(f's_cmp_lt_u32 s{I}, 1\ns_cselect_b32 s{N1}, 0xffff, 0')
    late0 += II(f'''s_mul_i32 s{PFD}, s{J0}, {288*1152}
    s_mul_i32 s{T2}, s{SH}, {162*128}
    s_add_u32 s{PFD}, s{PFD}, s{T2}
    s_mul_i32 s{T2}, s{Wv}, {41*128}
    s_add_u32 s{PFD}, s{PFD}, s{T2}''')
    late0 += II(f'''v_lshlrev_b32 v{vL16}, 4, v{vL}
    v_lshrrev_b32 v182, 3, v{vL}
    v_and_b32 v183, 7, v{vL}
    v_lshrrev_b32 v184, 4, v{vL}
    v_and_b32 v185, 15, v{vL}
    v_and_b32 v186, 6, v182
    v_xor_b32 v186, v183, v186
    v_mul_u32_u24 v187, 1152, v182
    v_lshl_add_u32 v187, v186, 4, v187''')
    for t in range(4):
        late0 += II('v_add_u32 v%d, %d, v187' % (vDD[t], (t & 1) * (8 * 1152 - 1024) + (t >> 1) * (128 - 2048) + 2048))
    late0 += II(f'''v_lshrrev_b32 v186, 2, v{vL}
    v_and_b32 v187, 3, v{vL}
    v_and_b32 v188, 2, v184
    v_xor_b32 v188, v187, v188
    v_mul_u32_u24 v190, 9216, v186
    v_lshl_add_u32 v{vDL1}, v188, 4, v190
    v_and_b32 v188, 1, v184
    v_lshlrev_b32 v188, 1, v188
    v_xor_b32 v188, v187, v188
    v_mul_u32_u24 v190, 1152, v186
    v_lshl_add_u32 v{vDL2}, v188, 4, v190
    v_lshrrev_b32 v186, 2, v185
    v_and_b32 v188, 1, v184
    v_lshrrev_b32 v192, 1, v184
    v_lshl_add_u32 v190, v184, 3, v186
    v_lshlrev_b32 v190, 6, v190
    v_xor_b32 v191, s{FH}, v188
    v_lshl_add_u32 v190, v191, 5, v190
    v_lshl_add_u32 v{vTL1}, v187, 3, v190
    v_lshl_add_u32 v190, v184, 2, v186
    v_lshlrev_b32 v190, 6, v190
    v_lshl_add_u32 v190, v191, 5, v190
    v_lshl_add_u32 v{vTL2}, v187, 3, v190
    v_lshl_add_u32 v190, v188, 2, v186
    v_lshrrev_b32 v191, 1, v190
    s_lshl_b32 s{T2}, s{FH}, 1
    v_xor_b32 v191, s{T2}, v191
    v_lshlrev_b32 v190, 7, v190
    v_lshl_add_u32 v190, v192, 10, v190
    v_lshl_add_u32 v190, v191, 5, v190
    v_lshl_add_u32 v{vTD[0]}, v187, 3, v190
    v_xor_b32 v{vTD[1]}, 32, v{vTD[0]}
    v_mov_b32 v189, 0x{OOB:x}
    v_cmp_eq_u32 vcc, 0, v184
    v_lshlrev_b32 v190, 2, v184
    v_sub_u32 v{vDG}, v190, v185
    v_cndmask_b32 v{vOR}, v189, v{vL16}, vcc
    s_lshl_b32 s{T2}, s{RG}, 12
    v_add_u32 v{vHW}, s{T2}, v{vL16}''')
    late0 += G(f's_cmp_ge_u32 s{QL}, 18\ns_cselect_b64 vcc, -1, 0')
    late0 += II(f'''v_lshlrev_b32 v191, 6, v185
    v_lshl_add_u32 v191, v184, 4, v191
    v_cndmask_b32 v{vQS[0]}, v{vL16}, v191, vcc
    v_lshlrev_b32 v190, 4, v185
    v_add_u32 v190, {RT4}, v190
    v_lshlrev_b32 v191, 4, v184
    v_add_u32 v191, {RTB}, v191
    v_cndmask_b32 v190, v190, v191, vcc
    s_lshl_b32 s{T2}, s{RG}, 10
    v_add_u32 v{vRS}, s{T2}, v190''')

    slots = []
    def dma4(srds, voffs, sbase, add, sadd=0, bump=None, pre=''):
        def f(rp):
            if bump is not None:
                g = [II((bump + '\n' if bump else '') + f's_add_u32 s{OFF}, s{sbase}, {add}\ns_add_u32 m0, s{W4096}, {rp*SLOT}')]
            elif sadd and not add:
                g = [II(pre + f's_mul_i32 s{OFF}, s{SIG}, {sadd}\ns_add_u32 s{OFF}, s{OFF}, s{sbase}\ns_add_u32 m0, s{W4096}, {rp*SLOT}')]
            elif sadd:
                g = [II(f's_mul_i32 s{OFF}, s{SIG}, {sadd}\ns_add_u32 s{OFF}, s{OFF}, s{sbase}'),
                     II(f's_add_u32 s{OFF}, s{OFF}, {add}\ns_add_u32 m0, s{W4096}, {rp*SLOT}')]
            else:
                g = [II(f's_add_u32 s{OFF}, s{sbase}, {add}\ns_add_u32 m0, s{W4096}, {rp*SLOT}')]
            for t in range(4):
                g.append([Ins('buffer_load_dwordx4 v%d, %s, s%d offen offset:%d lds' % (voffs[t], sr(srds[t]), OFF, 1024 * t))])
            return g
        return f
    def dma_l1(s):
        def f(rp):
            g = []
            for t in range(3):
                pre = II(f's_add_u32 s{OFF}, s{BL1}, {s*96*9216 + t*(16*9216-1024)}')
                if t == 0: pre += II(f's_add_u32 m0, s{W3072}, {rp*SLOT}')
                g.append(pre)
                g.append(II(f'buffer_load_dwordx4 v{vDL1}, {sr(SL)}, s{OFF} offen offset:{1024*t} lds'))
            return g
        return f
    def dma_l2(s):
        def f(rp):
            g = [II(f's_add_u32 m0, s{W3072}, {rp*SLOT}')]
            for t in range(3):
                g.append(II(f's_mul_i32 s{OFF}, s{SIG}, {s*192*1152}\ns_add_u32 s{OFF}, s{OFF}, s{BL2+t}'))
                g.append(II(f'buffer_load_dwordx4 v{vDL2}, {sr(SD)}, s{OFF} offen offset:{1024*t} lds'))
            return g
        return f
    def regroup(gs):
        if not opt.get('rg', 1): return gs
        fl = [f for g in gs for f in g]
        return [fl[n:n + 2] for n in range(0, 6, 2)]
    def accf(base, tile): return lambda mt: base + (tile * 4 + mt) * 4
    def bf(pos): return lambda mt: breg(pos, mt)
    def pairlike(vT, acc, s):
        return [[Frag(vT[ft], ks * 8192 + m * 2048, ks * 8192 + m * 2048 + 512, accf(acc, 2 * m + ft), bf(2 * s + ks), s == 0 and ks == 0) for ks in range(2)] for m in range(2) for ft in range(2)]
    for s in range(9):
        slots.append(Slot(pairlike(vTQ, ACCA, s), dma4([SQ] * 4, vDQ, BQ, s * 64 * 3456)))
    PACC = [ACCB, ACCB, ACCA, ACCB]
    def pstep(q):
        for s in range(9):
            slots.append(Slot(pairlike(vTP, PACC[q], s), dma4([SG, SG, SU, SU], [vDP[0], vDP[1], vDP[0], vDP[1]], BP, s * 64 * 9216, bump=(f's_lshl_b32 s{OFF}, s{SIG}, 7\ns_add_u32 s{BP}, s{BP}, s{OFF}' if s == 0 and q else ''))))
    pstep(0)
    for s in range(6):
        gs = [[Frag(vTL1, m * 6144 + ks * 2048, m * 6144 + ks * 2048 + 256, accf(ACCA, m), bf(3 * s + ks), s == 0 and ks == 0) for ks in range(3)] for m in range(2)]
        slots.append(Slot(regroup(gs), dma_l1(s)))
    pstep(1); pstep(2); pstep(3)
    NSEG1 = len(slots)
    hpos = {}
    for n, k in enumerate([6, 7, 11, 10]): hpos[k] = n
    for n, k in enumerate([0, 1, 2, 3, 4, 5, 16, 17, 14, 15, 12, 13, 9, 8]): hpos[k] = 4 + n
    lorder = [8, 7, 6, 0, 1, 2, 4, 3, 5]
    def dstep(q):
        acc = ACCA
        for n, ln in enumerate(lorder):
            gs = [[Frag(vTD[ft], ks * 8192 + c * 2048, ks * 8192 + c * 2048 + 4096, accf(acc, 2 * c + ft), bf(hpos[2 * ln + ks]), n == 0 and ks == 0) for ks in range(2)] for c in range(2) for ft in range(2)]
            slots.append(Slot(gs, dma4([SD] * 4, vDD, BD, 0, ln * 64 * 1152, pre=(f's_add_u32 s{BD}, s{BD}, 256\n' if q and n == 0 else ''))))
    dstep(0)
    for s in range(3):
        gs = [[Frag(vTL2, ks * 2048, ks * 2048 + 1024, accf(SP, 0), bf(hpos[6 * s + ks]), s == 0 and ks == 0) for ks in range(3 * hg, 3 * hg + 3)] for hg in range(2)]
        slots.append(Slot(regroup(gs), dma_l2(s)))
    n0 = len(slots); dstep(1)
    for sl in slots[n0:]:
        for g in sl.groups:
            for f in g: f.acc = (lambda old: (lambda mt: old(mt) + (ACCB - ACCA)))(f.acc)
    NS = len(slots)
    vWD = [3, 4, 5, 6]; vWD2 = 8; vWT = [9, 10, 11, 12]; vPL = 13
    TL, TP, TX, TM, TV, OL, FB = 87, 88, 89, 90, 91, 92, 93
    for s in range(4): slots.append(Slot([], dma4([SG] * 4, vWD, TL, s * 4 * 36 * 1152)))
    def dma_w2(rp):
        return [II(f's_mul_i32 s{OFF}, s{Wv}, {(144-36)*1152}\ns_add_u32 s{OFF}, s{OFF}, s{TL}\ns_lshr_b32 m0, s{W4096}, 1\ns_add_u32 m0, m0, {rp*SLOT}'),
                II(f'buffer_load_dwordx4 v{vWD2}, {sr(SG)}, s{OFF} offen lds'), II(f's_add_u32 s{OFF}, s{OFF}, {72*1152-1024}'),
                II(f'buffer_load_dwordx4 v{vWD2}, {sr(SG)}, s{OFF} offen offset:1024 lds')]
    slots.append(Slot([], dma_w2))
    NSX = len(slots)
    phys = {n: n for n in range(9)}; load_at = {}; hphys = {}
    nxt = 9
    divert = {18: 0, 33: 1, 42: 2, 50: 3}
    for n in range(2, NSEG1):
        if n in divert: hphys[divert[n]] = phys[n - 2]
        else: phys[nxt] = phys[n - 2]; load_at[n] = nxt; nxt += 1
    att_loads = []
    for f in [phys[NSEG1 - 2], phys[NSEG1 - 1], hphys[0], hphys[1], hphys[2]]:
        phys[nxt] = f; att_loads.append(nxt); nxt += 1
    extra_loads = {}
    for n in range(NSEG1 + 2, NS):
        q = n - (NSEG1 + 2)
        if q == 1: phys[nxt] = hphys[3]; extra_loads[n] = [nxt]; nxt += 1
        if nxt < NSX: phys[nxt] = phys[n - 2]; load_at[n] = nxt; nxt += 1
    assert nxt == NSX
    def dma_groups(n):
        g = slots[n].dma(phys[n])
        slots[n].loads = [x for grp in g for x in grp if x.kind == 'vmem']
        return g

    SV = opt.get('sv', 4.75)
    loud = set(); svc = {}
    def T(text, q=56):
        x = Ins(text); loud.add(id(x)); svc[id(x)] = q; return x
    VLS = opt.get('vls', [[0, 8, 4, 1, 7], [2, 6, 3, 5]])
    def pf_gu(VL, t0, msk, q=0):
        nl = len(VL); tab = sum(l << (4 * n) for n, l in enumerate(VL)); a_, b_, c_ = t0, t0 + 1, t0 + 2
        return II(f'''v_mul_u32_u24 v{b_}, {65536//nl+1}, v{vL}
        v_lshrrev_b32 v{b_}, 16, v{b_}
        v_cmp_gt_u32 {msk}, 9, v{b_}
        v_mul_u32_u24 v{a_}, {4*nl}, v{b_}
        v_lshlrev_b32 v{c_}, 2, v{vL}
        v_sub_u32 v{a_}, v{c_}, v{a_}
        v_mov_b32 v{c_}, 0x{tab:x}
        v_bfe_u32 v{a_}, v{c_}, v{a_}, 4
        v_mul_u32_u24 v{b_}, 9216, v{b_}
        v_lshl_add_u32 v{b_}, v{a_}, 7, v{b_}
        v_mov_b32 v{a_}, 0x{OOB:x}
        v_cndmask_b32 v{b_}, v{a_}, v{b_}, {msk}''') + [T(f'buffer_load_dword v0, v{b_}, {sr(SL)}, s{PFP} offen' + NT, q)]
    if opt.get('walk', 1):
        P('s_mov_b64 exec, 0')
        for w in range(3):
            P(f's_cmp_eq_u32 s{Wv}, {w}')
            P(f's_cbranch_scc1 LAND{w}')
        P('s_branch LAND3')
        P.label('WALK_END')
        P('s_mov_b64 exec, -1')
    emit_all(xload(1))
    stamp('setup')
    if opt.get('est'):
        P('s_waitcnt lgkmcnt(0)')
        for n, r in enumerate((76, 78, 80, 82, 86)): P('s_mov_b32 s%d, s%d' % (sTS + 5 + n, r))

    NPRE = opt.get('npre', 5)
    GU2 = 0
    gA, gB = pf_gu(VLS[0], 106, 's[78:79]'), pf_gu(VLS[1], 106, 's[78:79]')
    if opt.get('tlb'):
        qtouch = qtouch + II(f'''v_lshlrev_b32 v106, 21, v0
        v_min_u32 v107, 24, v0
        v_lshlrev_b32 v107, 21, v107
        buffer_load_dword v0, v107, {sr(SW)}, 0 offen sc1
        buffer_load_dword v79, v106, {sr(SD)}, 0 offen offset:2048
        buffer_load_dword v79, v106, {sr(SG)}, 0 offen
        buffer_load_dword v79, v106, {sr(SU)}, 0 offen offset:2048
        s_mov_b32 s80, s{OUTP}
        s_mov_b32 s81, s{OUTP+1}
        s_mov_b32 s82, 0x{2048*1152:x}
        s_mov_b32 s83, 0x00020000
        buffer_load_dword v79, v106, s[80:83], 0 offen sc1
        s_mov_b32 s80, s8
        s_mov_b32 s81, s9
        s_mov_b32 s82, 0x{576*1152:x}
        buffer_load_dword v79, v106, s[80:83], 0 offen''')
    dm0 = [g for n in range(NPRE) for g in dma_groups(n)]
    if opt.get('so', 0) == 0:
        bg = [('GAP', 30)] + xload(2) + xload(3) + [qtouch, ('GAP', 150)] + dm0 + [gA, gB, [fatom]]
    elif opt.get('so', 0) == 3:
        bg = [('GAP', 30)] + xload(2) + xload(3) + [qtouch, gA, [fatom], ('GAP', opt.get('ga', 330))] + dm0
    elif opt.get('so', 0) == 4:
        bg = [('GAP', 30)] + xload(2) + xload(3) + [qtouch, gA, ('GAP', opt.get('ga', 330))] + dm0 + [gB, [fatom]]
    elif opt.get('so', 0) == 5:
        sp = lambda l: [y for x in l for y in ([x, ('GAP', opt['xs'])] if opt.get('xs') and x[0].kind == 'vmem' else [x])]
        bg = [('GAP', opt.get('gap0', 30))] + sp(xload(2)) + ([qtouch] if opt.get('qt') == 1 else []) + sp(xload(3)) + ([] if opt.get('qt') == 1 else [qtouch]) + [('GAP', opt.get('gap1', 150))] + dm0 + [gA, [fatom]]
    elif opt.get('so', 0) == 1:
        bg = [('GAP', opt.get('gap0', 30)), qtouch, gA, ('GAP', opt.get('ga', 200))] + xload(2) + xload(3) + dm0 + [gB, [fatom]]
    else:
        bg = [('GAP', opt.get('gap0', 30))] + xload(2) + [qtouch, gA, ('GAP', opt.get('ga', 300))] + xload(3) + dm0 + [gB, [fatom]]
    cnt = [0]; lq = []; lcnt = [0, 10]
    EVERY = opt.get('every', 8)
    def V(t, needs=()):
        r = P(Ins(t, needs))
        cnt[0] += 1
        if bg and cnt[0] >= EVERY:
            cnt[0] = 0
            while bg:
                g = bg.pop(0)
                if isinstance(g, tuple): cnt[0] = -g[1]; break
                emit_all(g)
                if any(x.kind == 'vmem' for x in g): break
        lcnt[0] += 1
        if lq and lcnt[0] >= lcnt[1]:
            lcnt[0] = 0; emit_all([lq.pop(0)])
        return r
    def reduce8(r):
        V('v_add_f32_dpp v%d, v%d, v%d quad_perm:[1,0,3,2] row_mask:0xf bank_mask:0xf' % (r, r, r))
        V('v_add_f32_dpp v%d, v%d, v%d quad_perm:[2,3,0,1] row_mask:0xf bank_mask:0xf' % (r, r, r))
        V('v_add_f32_dpp v%d, v%d, v%d row_half_mirror row_mask:0xf bank_mask:0xf' % (r, r, r))
    KEEP = [vPFP, vPFS, vTB, vRS]
    def ln_block(blk, defer=False):
        X = XR + 36 * blk
        wa = [64, 76][blk & 1]
        for n in range(36):
            if n < 2: V('v_dot2_f32_bf16 v%d, v%d, s%d, 0' % (68 + n, X + n, ONE2), needs=[xl[blk][0]])
            else: V('v_dot2_f32_bf16 v%d, v%d, s%d, v%d' % (68 + n % 2, X + n, ONE2, 68 + n % 2), needs=[xl[blk][n // 4]])
        stamp('sum%d' % blk)
        V('v_add_f32 v68, v68, v69')
        reduce8(68)
        V('v_mul_f32 v68, 0x%x, v68' % f2u(-1.0 / 576))
        wr = []
        LAG = 2
        for n in range(36 + LAG + 1):
            if n < 36:
                t = 80 + 2 * (n % 8)
                V('v_dot2_f32_bf16 v%d, v%d, s%d, v68' % (t, X + n, LO))
                V('v_dot2_f32_bf16 v%d, v%d, s%d, v68' % (t + 1, X + n, HI))
            m = n - LAG
            if 0 <= m < 36:
                t = 80 + 2 * (m % 8)
                V('v_cvt_pk_bf16_f32 v%d, v%d, v%d' % (X + m, t, t + 1))
            m = n - LAG - 1
            if 0 <= m < 36:
                V('v_dot2_f32_bf16 v%d, v%d, v%d, %s' % (KEEP[blk], X + m, X + m, '0' if m == 0 else 'v%d' % KEEP[blk]))
                if m % 4 == 3:
                    w = Ins('ds_write_b128 v%d, %s offset:%d' % (wa, vr(X + m - 3), (m // 4) * 2048)); wr.append(w)
                    if not defer: P(w)
        return wr, list(wr)
    lnfin = []
    for pat in ('quad_perm:[1,0,3,2]', 'quad_perm:[2,3,0,1]', 'row_half_mirror'):
        lnfin += [Ins(f'v_add_f32_dpp v{r}, v{r}, v{r} {pat} row_mask:0xf bank_mask:0xf') for r in KEEP]
    lnfin += II(f'''s_mov_b32 s76, 0xaaaaaaaa
    s_mov_b32 s77, 0xaaaaaaaa
    v_cndmask_b32 v{KEEP[0]}, v{KEEP[0]}, v{KEEP[1]}, s[76:77]
    v_cndmask_b32 v{KEEP[2]}, v{KEEP[2]}, v{KEEP[3]}, s[76:77]
    s_mov_b32 s76, 0xcccccccc
    s_mov_b32 s77, 0xcccccccc
    v_mov_b32 v181, 0x{f2u(1e-5):x}
    v_cndmask_b32 v{KEEP[0]}, v{KEEP[0]}, v{KEEP[2]}, s[76:77]
    v_fmac_f32 v181, 0x{f2u(1.0 / 576):x}, v{KEEP[0]}
    v_rsq_f32 v176, v181
    v_lshlrev_b32 v180, 3, v{vL}
    v_xor_b32 v180, s{XRO}, v180
    v_and_b32 v180, 8, v180
    v_add_u32 v180, v180, v67
    v_and_b32 v181, 2, v{vL}
    v_lshl_add_u32 v180, v181, 4, v180
    v_mov_b32 v177, v176
    v_mov_b32 v178, v176
    v_mov_b32 v179, v176
    v_and_b32 v181, 0x70, v180
    v_mul_u32_u24 v181, 12, v181
    v_lshl_add_u32 v181, v180, 2, v181
    v_add_u32 v181, {RTB}, v181
    v_lshlrev_b32 v193, 2, v180
    v_add_u32 v193, {RTC}, v193
    v_lshlrev_b32 v180, 4, v180
    v_add_u32 v180, {RT4}, v180''')
    lnw = [Ins('ds_write_b128 v180, v[176:179]', cost=2), Ins('ds_write_b32 v181, v176'), Ins('ds_write_b32 v193, v176')]
    lnfin += lnw
    slow = []
    nlab = [0]
    def alt_site(inline, other):
        nlab[0] += 1; n = nlab[0]
        slow.append(f'alt{n}:\n' + ''.join('    %s\n' % t for t in other) + f'    s_branch alt{n}_e\n')
        return [Ins(f's_cbranch_vccz alt{n}')] + inline + [Ins(f'alt{n}_e:')]
    def xn_reads(rho):
        return [Ins('ds_read_b128 %s, v%d offset:%d' % (breg(ks, 2 * rho + t), 65 + (ks & 1), t * 18432 + ks * 1024)) for ks in range(18) for t in range(2)]
    w0, _ = ln_block(0); w1, _ = ln_block(1)
    stamp('ln01')
    P(Ins('s_barrier', needs=w0 + w1))
    r0 = xn_reads(0)
    lq += [r0[n:n + 2] for n in range(0, 36, 2)]; lcnt[1] = 8
    w2, d2 = ln_block(2, defer=True)
    emit_all(lq); lq.clear()
    P(Ins('s_barrier', needs=r0))
    lq += d2; lcnt[1] = 12
    w3, _ = ln_block(3)
    emit_all(lq); lq.clear()
    emit_all([g for g in bg if not isinstance(g, tuple)]); bg.clear()
    stamp('ln23')
    P(Ins('s_barrier', needs=w2 + w3 + slots[0].loads))
    r1 = xn_reads(1)
    stamp('mf0')

    window = {}
    AH = 4; AHM = opt.get('ah', 6)
    def make_reads(fr, sidx, fi):
        w, o = divmod(phys[sidx] * SLOT, 65536)
        out = []
        if window.get(fr.base, 0) != w:
            d = (w - window.get(fr.base, 0)) * 65536
            out.append(Ins('v_add_u32 v%d, 0x%x, v%d' % (fr.base, d & 0xffffffff, fr.base)))
            window[fr.base] = w
        f = FR + 4 * (fi % 8)
        fr.reg = f
        fr.rd = [Ins('ds_read_b64_tr_b16 %s, v%d offset:%d' % (vr(f + 2 * h, 2), fr.base, o + fr.imm[h])) for h in range(2)]
        return [out + [fr.rd[0]], [fr.rd[1]]]
    def segment(s0, s1, fillers, bar_extra, first_loads=(), extra_need=None, hook=None, quiet=(), pre=()):
        frs = []; groups = []
        for s in range(s0, s1):
            for g in slots[s].groups:
                groups.append((s, len(frs), g))
                for f in g: frs.append((s, f))
        nm = sum(4 * len(g) for _, _, g in groups)
        gm = [[] for _ in range(nm)]; ga = [[] for _ in range(nm)]; gz = [[] for _ in range(nm)]
        used = [0] * nm; vmw = [0] * (nm + 16)
        mf = []; issued = 0; slot_start = {}
        ismem = lambda x: x.kind in ('ds', 'vmem')
        def put(k, items, cost=None):
            (gm if len(items) == 1 and ismem(items[0]) else ga)[k].extend(items)
            used[k] += min(2, sum(x.cost for x in items)) if cost is None else cost
        while issued < AH:
            s, f = frs[issued]
            emit_all(make_reads(f, s, issued)); issued += 1
        if callable(pre): pre()
        else: emit_all(list(pre))
        pend = [(-1, list(first_loads), ())]
        barpos = {}; vcand = set(); fv = set()
        for (s, f0, g) in groups:
            a = len(mf)
            slot_start.setdefault(s, a)
            n = 4 * len(g)
            for mt in range(4):
                for f in g: mf.append((s, f, mt, g))
            if a > 0: used[a - 1] += 1
            vcand.update(range(a + 1, a + n, 4))
            items = []
            while issued < min(len(frs), f0 + min(8, len(g) + AHM)) and frs[issued][0] <= s + 1:
                s2, f2 = frs[issued]
                r = make_reads(f2, s2, issued)
                if frs[issued - 1][0] != s2: r[0] = ['BAR', s2] + r[0]
                items += r; issued += 1
            for q, it in enumerate(items):
                k = a + q * n // len(items)
                if it[0] == 'BAR':
                    s2 = it[1]
                    ex = bar_extra.get(s2, ((), ()))
                    b = Ins('s_barrier'); b.needs = ('LAZY', s2, list(ex[0]) + ([x for f in g for x in f.rd] if k == a else []))
                    gz[k - 1].append(b); used[k - 1] += 1 if k == a else 2
                    barpos[s2] = k - 1
                    pend.append((k - 1, list(extra_loads.get(s2, [])) + ([load_at[s2]] if s2 in load_at else []), ex[1]))
                    it = it[2:]
                if len(it) == 2: put(max(k - 1, 0), it[:1]); it = it[1:]
                put(k, it)
        class Chain:
            def __init__(c, items, start): c.q = list(items); c.rel = start; c.last = -1; c.cap = 2
        dl = []; dead = {}
        for (k, lds_, post) in pend:
            dl.append(('ATK', k + 1)); dl += list(post)
            for n in lds_:
                for g in dma_groups(n):
                    for x in g:
                        dl.append(x)
                        if x.kind == 'vmem': dead[id(x)] = (n, barpos.get(n, 10 ** 9 if n < NS else nm + opt.get('wdl', -100))); svc[id(x)] = SV * (2 if sum(len(g_) for g_ in slots[n].groups) == 6 else 1)
        chains = [Chain(dl, 0)] + [Chain(lst, slot_start[s] + off) for (s, off, lst) in fillers if lst]
        leads = {}; slk = {}; lastst = -999
        pfree = 0.0
        def head(c, k):
            while c.q and isinstance(c.q[0], tuple):
                it = c.q[0]
                if c.rel > k: return None
                if opt.get('dbg') and it[0] in ('AT', 'BY'):
                    cs = max(x for x in slot_start if slot_start[x] <= k); print('   marker', it, 'reached at slot', cs, '+', k - slot_start[cs], file=sys.stderr)
                if it[0] == 'AT': c.rel = slot_start[it[1]] + it[2]
                elif it[0] == 'ATK': c.rel = it[1]
                elif it[0] == 'BY': assert k <= slot_start[it[1]], ('filler late', it, k, slot_start[it[1]])
                elif it[0] == 'CAP': c.cap = it[1]
                elif it[0] == 'SKIP': c.rel = k + it[1]
                c.q.pop(0)
            if not c.q or c.rel > k: return None
            return c.q[0]
        for k in range(nm):
            if not gm[k] and used[k] < 2:
                cand = []
                for n_, c in enumerate(chains):
                    x = head(c, k)
                    if x is None or isinstance(x, list) or not ismem(x) or c.last >= k: continue
                    if x.kind == 'ds':
                        if used[k] + x.cost > 2: continue
                    elif id(x) not in loud and pfree - k > opt.get('bl', 1.5): continue
                    pr = 1
                    if n_ == 0: pr = 0 if dead.get(id(x), (0, 0))[1] - k < opt.get('crit', 72) else 2
                    cand.append((pr, n_))
                if cand:
                    c = chains[min(cand)[1]]; x = c.q.pop(0); c.last = k
                    put(k, [x], x.cost if x.kind == 'ds' else 1)
                    if x.kind == 'vmem':
                        pfree = max(pfree, k + svc[id(x)]) if id(x) in loud else max(pfree, k) + svc.get(id(x), opt.get('svst', SV) if 'store' in x.op else SV)
                        if 'store_dwordx4' in x.op: lastst = k
                        if id(x) in dead and dead[id(x)][1] < 10 ** 9:
                            leads[dead[id(x)][0]] = dead[id(x)][1] - k; slk[dead[id(x)][0]] = dead[id(x)][1] - lastst
            for c in chains:
                while True:
                    x = head(c, k)
                    if x is None or (not isinstance(x, list) and ismem(x)): break
                    it = x if isinstance(x, list) else [x]
                    cst = min(2, sum(y.cost for y in it))
                    if used[k] + cst > c.cap: break
                    c.q.pop(0); c.last = k; ga[k].extend(it); used[k] += cst
        left = [(x if isinstance(x, list) else [x]) for c in chains for x in c.q if not isinstance(x, tuple)]
        print('DMA leads:', ' '.join('%d:%d' % x for x in sorted(leads.items())), file=sys.stderr)
        print('store->wait distance < 130:', ' '.join('%d:%d' % x for x in sorted(slk.items()) if x[1] < 130 and x[0] < NS), file=sys.stderr)
        assert min(v for n_, v in leads.items() if n_ < NS) > opt.get("minlead", 30)
        for k, (s, f, mt, g) in enumerate(mf):
            if hook: hook(k, s)
            c = f.acc(mt)
            nd = [x for f_ in g for x in f_.rd] + ([extra_need(f, mt)] if extra_need else [])
            P(Ins('v_mfma_f32_16x16x32_bf16 %s, %s, %s, %s' % (vr(c), vr(f.reg), f.b(mt), '0' if f.first else vr(c)), needs=nd))
            for x in gz[k]: x.needs = list(slots[x.needs[1]].loads) + list(x.needs[2])
            emit_all(gm[k] + ga[k] + gz[k])
        return left

    def mul(d, a_, b_): return Ins('v_mul_f32 v%d, v%d, v%d' % (d, a_, b_))
    def cvt(d, a_, b_): return Ins('v_cvt_pk_bf16_f32 v%d, v%d, v%d' % (d, a_, b_))
    kv_stores = []
    flat0 = lambda l: [y for x in l for y in x]
    def qkv_epi():
        rs = [Ins('ds_read_b128 %s, v%d offset:%d' % (vr(SP + 4 * mt), vRS, 256 * mt)) for mt in range(4)]
        L = list(rs) + [('SKIP', 6)]
        for mp in range(2):
            if mp: L += II(f's_add_u32 s{QM}, s{QM}, s{QM+2}')
            for c in range(2):
                if c: L += II(f's_add_u32 s{T2}, s{QM}, s{QC}')
                for ft in range(2):
                    te = ACCA + ((2 * c + ft) * 4 + 2 * mp) * 4; to = te + 4
                    for r in range(8):
                        x = mul(te + r, te + r, SP + 8 * mp + r); x.needs = [rs[2 * mp + r // 4]]; L.append(x)
                    L += [cvt(te, te, te + 1), cvt(te + 1, te + 2, te + 3), cvt(te + 2, to, to + 1), cvt(te + 3, to + 2, to + 3)]
                    st = Ins(f'buffer_store_dwordx4 {vr(te)}, v{vQS[0]}, {sr(SW)}, s{T2 if c else QM} offen offset:{1024*ft} sc1')
                    L.append(st); kv_stores.append(st)
        return L
    def l1_epi():
        L = II(f's_lshl_b32 s{T3}, s{FH}, 3\ns_add_u32 s{T3}, s{T3}, {HLONE}\nv_add_u32 v{SP+11}, s{T3}, v{vHW}')
        ws_ = []
        for mt in range(4):
            g0 = ACCA + mt * 4; u0 = ACCA + (4 + mt) * 4
            L += [mul(g0 + t, g0 + t, u0 + t) for t in range(4)] + [cvt(u0, g0, g0 + 1), cvt(u0 + 1, g0 + 2, g0 + 3)]
            w = Ins(f'ds_write_b64 v{SP+11}, {vr(u0,2)} offset:{1024*mt}'); ws_.append(w)
            if not opt.get('bw'): L.append(w)
        if opt.get('bw'): L += [('SKIP', 2), list(ws_)] if opt['bw'] == 1 else flat0([[('SKIP', 4), w] for w in ws_])
        L2 = II(f's_lshl_b32 s{T3}, s{FH}, 11\ns_add_u32 s{T3}, s{T3}, {HLONE}\nv_add_u32 v{SP+11}, s{T3}, v{vHW}')
        rd = [Ins(f'ds_read_b128 {vr(ACCA+4*m)}, v{SP+11} offset:{1024*m}') for m in range(2)]
        sts = [Ins(f'buffer_store_dwordx4 {vr(ACCA+4*m)}, v{vL16}, {sr(SW)}, s{HLN} offen offset:{1024*m} sc1', needs=[rd[m]]) for m in range(2)]
        return L, sts, ws_, L2 + rd + [('SKIP', 10)] + sts
    hw = {}
    def pair_epi(acc, q):
        L = II(f's_add_u32 s{ST}, s{HS}, {q*2*8192}\ns_lshl_b32 s{T1}, s{FH}, 13\ns_add_u32 s{T1}, s{T1}, {hphys[q]*SLOT}\nv_add_u32 v{SP+11}, s{T1}, v{vHW}')
        sts = []; hw[q] = []
        for mt in range(4):
            g0 = acc + mt * 4; g1 = acc + (4 + mt) * 4; u0 = acc + (8 + mt) * 4; u1 = acc + (12 + mt) * 4
            L += [mul(g0 + t, g0 + t, u0 + t) for t in range(4)]
            L += [mul(g1 + t, g1 + t, u1 + t) for t in range(4)]
            L += [cvt(u0, g0, g0 + 1), cvt(u0 + 1, g0 + 2, g0 + 3), cvt(u0 + 2, g1, g1 + 1), cvt(u0 + 3, g1 + 2, g1 + 3)]
            st = Ins(f'buffer_store_dwordx4 {vr(u0)}, v{vL16}, {sr(SW)}, s{ST} offen offset:{1024*mt} sc1')
            w = Ins(f'ds_write_b128 v{SP+11}, {vr(u0)} offset:{1024*mt}', cost=2)
            if q < 3 and opt.get('w64', 0):
                w = [Ins(f'ds_write_b64 v{SP+11}, {vr(u0+2*h,2)} offset:{1024*mt+8*h}') for h in range(2)]
                L += [st] + w; hw[q] += w
            else:
                L += [st, w]; hw[q].append(w)
            sts.append(st)
        return L, sts
    def d_epi(acc, q, cs=(0, 1)):
        L = []
        for c in cs:
            L.append(Ins(f's_sub_u32 s{ST}, s{PS}, {(2*q+c)*2*8192}'))
            for mt in range(4):
                t0 = acc + (8 * c + mt) * 4; t1 = acc + (8 * c + 4 + mt) * 4
                if mt == 2: L.append(Ins(f's_xor_b32 s{ST}, s{ST}, 2048'))
                L += [cvt(t0, t0, t0 + 1), cvt(t0 + 1, t0 + 2, t0 + 3), cvt(t0 + 2, t1, t1 + 1), cvt(t0 + 3, t1 + 2, t1 + 3)]
                L.append(Ins(f'buffer_store_dwordx4 {vr(t0)}, v{vL16}, {sr(SW)}, s{ST} offen offset:{1024*(mt&1)} sc1'))
        return L
    def poll_check(name, ld, test):
        g = [Ins(t, needs=[ld] if n == 0 else []) for n, t in enumerate(test)]
        g.append(Ins('s_cbranch_scc0 %s_slow' % name))
        g.append(Ins('%s_ok:' % name))
        S = Prog()
        S.label('%s_slow' % name)
        S('s_mov_b32 s%d, 400000' % SPN)
        S.label('%s_loop' % name)
        S('s_sleep %d' % opt.get('ps', 2))
        S(ld.text)
        S('s_waitcnt vmcnt(0)')
        S('s_sub_u32 s%d, s%d, 1' % (SPN, SPN))
        S('s_cbranch_scc1 %s_ok' % name)
        for t in test: S(t)
        S('s_cbranch_scc0 %s_loop' % name)
        S('s_branch %s_ok' % name)
        slow.append(S.text())
        return g
    def setflag(n, reg):
        return II(f'v_mov_b32 v{reg}, {n}\nbuffer_store_dword v{reg}, v{vFL}, {sr(SW)}, s{MYF} offen sc1')
    def hpoll(n, reg):
        ld = T(f'buffer_load_dword v{reg}, off, {sr(SW)}, s{PF} sc1')
        return ld, poll_check('h%d' % n, ld, [f'v_readfirstlane_b32 s{T2}, v{reg}', f's_cmp_ge_u32 s{T2}, {n}'])

    qe = qkv_epi()
    pe = [pair_epi(PACC[q], q) for q in range(4)]
    le = l1_epi()
    VREG = [ACCA + 4 * n for n in range(16)] + [SP + 4 * n for n in range(4)]
    G0M, G1M = 96, 98
    late = II(f'''s_mov_b32 s{SQ}, s8
    s_mov_b32 s{SQ+1}, s9
    s_mov_b32 s{SQ+2}, 0x{576*1152:x}
    s_mul_i32 s{T1}, s{T0}, {BLK//2}
    s_mul_i32 s{T2}, s{J}, 2304
    s_add_u32 s{T1}, s{T1}, s{T2}
    s_mov_b32 s{G0M}, 0xffff
    s_mov_b32 s{G0M+1}, 0
    s_mov_b32 s{G1M}, 0xffff0000
    s_mov_b32 s{G1M+1}, 0''')
    for a_ in range(5):
        late += II(f's_add_u32 s{KO+a_}, s{T1}, 0x{KOFF + (2*a_-9)*BLK:x}')
        if a_ < 4:
            late.append(II(f's_cmp_ge_u32 s{T0}, {16-4*a_}\ns_cselect_b32 s{KO+a_}, s{KO+a_}, 0x{OOB:x}\ns_cselect_b32 s{KB+a_}, 0, 0xf149'))
    a0, a1, a2, a3 = SP, SP + 1, SP + 2, SP + 3
    vTD_ = QF + 12
    late += II(f'''v_and_b32 v{a0}, 15, v{vL}
    v_lshrrev_b32 v{a1}, 4, v{vL}
    v_mov_b32 v{a3}, 0x{OOB:x}
    s_mul_i32 s{T2}, s{FH}, 1280
    s_add_u32 s{T3}, s{T2}, {BLK+144*256}
    v_add_u32 v{vKM}, s{T3}, v{vL16}
    v_lshlrev_b32 v{a1}, 4, v{a1}
    v_lshl_add_u32 v{a2}, v{a0}, 6, v{a1}
    s_add_u32 s{T3}, s{T2}, {BLK+73728}
    v_add_u32 v{vVM}, s{T3}, v{a2}
    v_and_b32 v{a2}, 1, v{a0}
    v_lshl_add_u32 v{a1}, v{a2}, 6, v{a1}
    s_lshl_b32 s{T2}, s{FH}, 7
    v_add_u32 v{a1}, s{T2}, v{a1}
    v_and_b32 v{a2}, 3, v{a0}
    v_cmp_eq_u32 vcc, 2, v{a2}
    v_mov_b32 v{a2}, 256
    s_mul_i32 s{T2}, s{RG}, {2*VRS}
    s_add_u32 s{T2}, s{T2}, {LVR}
    v_cndmask_b32 v{a1}, v{a1}, v{a2}, vcc
    v_add_u32 v{vVR}, s{T2}, v{a1}
    s_lshl_b32 s{T2}, s{RG}, 9
    s_lshl_b32 s{T3}, s{FH}, 2
    s_add_u32 s{T2}, s{T2}, s{T3}
    s_add_u32 s{T2}, s{T2}, {LKR}
    v_lshlrev_b32 v{a2}, 4, v{a0}
    v_add_u32 v{a2}, s{T2}, v{a2}
    v_subrev_u32 v{a1}, 248, v{a2}
    v_add_u32 v{SP+8}, {LQR-LKR}, v{a2}
    v_cndmask_b32 v{vKR}, v{a2}, v{a1}, {sr(G1M,2)}
    v_lshlrev_b32 v{a1}, 7, v{vL}
    v_cmp_gt_u32 vcc, 41, v{vL}
    s_nop 0
    s_nop 0
    v_cndmask_b32 v{vTD_}, v{a3}, v{a1}, vcc''')
    kvld = T(f'buffer_load_dwordx4 {vr(SP+12)}, off, {sr(SB)}, s{DB} sc1', opt.get('qk', 20))
    kvtest = [f'v_readfirstlane_b32 s{T2}, v{SP+12}', f'v_readfirstlane_b32 s{T3}, v{SP+13}', f'v_readfirstlane_b32 s{T1}, v{SP+14}',
              f's_or_b32 s{T2}, s{T2}, s{N0}', f's_or_b32 s{T3}, s{T3}, s{N1}', f's_and_b32 s{T2}, s{T2}, s{T3}',
              f's_and_b32 s{T2}, s{T2}, s{T1}', f's_cmp_eq_u32 s{T2}, 0xffff']
    kv2pre = II(f'''v_lshlrev_b32 v{SP+9}, 7, v{vL}
    v_cmp_gt_u32 vcc, 48, v{vL}
    s_lshl_b32 s{DB}, s{I}, 11
    s_add_u32 s{DB}, s{DB}, 0x{FOFF-4096:x}
    v_cndmask_b32 v{SP+9}, v{a3}, v{SP+9}, vcc
    s_lshl_b32 s{N1}, s{N1}, 16
    s_or_b32 s{N1}, s{N1}, s{N0}''')
    kv2ld = T(f'buffer_load_dword v{SP+12}, v{SP+9}, {sr(SW)}, s{DB} offen sc1', 32)
    kv2test = [f'v_cmp_le_u32 vcc, 1, v{SP+12}', 's_nop 1', f's_or_b32 s{T2}, vcc_lo, s{N1}', f's_or_b32 s{T3}, vcc_hi, 0xffff0000', f's_and_b32 s{T2}, s{T2}, s{T3}', f's_cmp_eq_u32 s{T2}, -1']
    kvpre = []; kvtouch = []
    kvtouch += [II(f's_getpc_b64 {sr(SB,2)}') + [Ins('K1_pc2:')]] + II(f'''s_mov_b32 s{SB+2}, code_end-K1_pc2
    s_and_b32 s{T2}, s{NN}, 7
    s_lshl_b32 s{T2}, s{T2}, 2
    s_add_u32 s{T2}, s{T2}, s{Wv}
    s_mul_i32 s{T2}, s{T2}, {11*128}
    v_lshlrev_b32 v{SP}, 7, v{vL}
    v_cmp_gt_u32 vcc, 11, v{vL}
    s_nop 0
    s_nop 0
    v_cndmask_b32 v{SP}, v{a3}, v{SP}, vcc''') + [T(f'buffer_load_dword v0, v{SP}, {sr(SB)}, s{T2} offen', 32)]
    RA, RB = SP + 12, SP + 4
    rla = Ins(f'buffer_load_dwordx4 {vr(RA)}, v{a1}, {sr(SW)}, s{T3} offen sc1'); rlb = Ins(f'buffer_load_dwordx4 {vr(RB)}, v{a2}, {sr(SW)}, s{T3} offen sc1')
    rst = II(f'''v_lshrrev_b32 v{a0}, 4, v{vL}
    s_mul_i32 s{T2}, s{Wv}, 3
    v_add_u32 v{a0}, s{T2}, v{a0}
    v_mul_u32_u24 v{a1}, {BLK}, v{a0}
    s_lshl_b32 s{T3}, s{I}, 2
    s_sub_u32 s{T3}, 8, s{T3}
    v_cmp_le_i32 vcc, s{T3}, v{a0}
    v_and_b32 v{SP+9}, 0xf0, v{vL16}
    v_add_u32 v{a1}, v{a1}, v{SP+9}
    v_cndmask_b32 v{a1}, v{a3}, v{a1}, vcc
    v_add_u32 v{a2}, {73728+1024}, v{a1}
    v_add_u32 v{a1}, {148*256}, v{a1}
    s_add_u32 s{T2}, s{Wv}, 8
    s_mul_i32 s{T2}, s{T2}, {BLK}
    s_add_u32 s{T2}, s{T2}, 1024
    v_cmp_gt_u32 vcc, 48, v{vL}
    v_add_u32 v{RA}, s{T2}, v{SP+9}
    s_mul_i32 s{T3}, s{I}, {4*BLK}
    v_cndmask_b32 v{a1}, v{RA}, v{a1}, vcc
    v_cndmask_b32 v{a2}, v{a3}, v{a2}, vcc
    s_mul_i32 s{T2}, s{J}, 2304
    s_add_u32 s{T3}, s{T3}, s{T2}
    s_add_u32 s{T3}, s{T3}, 0x{KOFF-8*BLK:x}''') + [rla, rlb] + II(f'''s_mul_i32 s{T2}, s{Wv}, 768
    s_add_u32 s{T2}, s{T2}, {LKR}
    v_add_u32 v{a1}, s{T2}, v{vL16}
    s_lshl_b32 s{T2}, s{Wv}, 8
    s_add_u32 s{T2}, s{T2}, {LQR}
    v_add_u32 v{a2}, s{T2}, v{SP+9}
    v_cndmask_b32 v{a1}, v{a2}, v{a1}, vcc
    v_mul_u32_u24 v{a2}, {VRS}, v{a0}
    v_add_u32 v{a2}, v{a2}, v{SP+9}
    v_and_b32 v{SP+9}, 15, v{vL}
    v_min_u32 v{SP+9}, 2, v{SP+9}
    v_add_u32 v{a0}, v{a0}, v{SP+9}
    v_mul_u32_u24 v{a0}, {VRS}, v{a0}
    v_add_u32 v{a0}, {(256-3*VRS) & 0xffffffff}, v{a0}
    v_cndmask_b32 v{a2}, v{a0}, v{a2}, vcc
    v_add_u32 v{a2}, {LVR}, v{a2}
    v_mov_b32 v{a0}, 0x3f803f80''')
    nrs = len(rst)
    rst += [Ins(f'v_cndmask_b32 v{RB+r}, v{a0}, v{RB+r}, vcc', needs=[rlb]) for r in range(4)]
    rsw = [Ins(f'ds_write_b128 v{a1}, {vr(RA)}', needs=[rla], cost=2), Ins(f'ds_write_b128 v{a2}, {vr(RB)}', cost=2)]
    rst += rsw
    qld = []; ql = []; qr = []
    for a_ in range(2):
        l0 = Ins(f'buffer_load_dwordx4 {vr(QF+4*a_)}, v{vKM}, {sr(SW)}, s{T3} offen sc1')
        l1 = [Ins(f'ds_read_b32 v{QF+8+2*a_+h}, v{SP+8} offset:{256*a_+8*h}') for h in range(2)]
        ql += [Ins(f's_add_u32 s{T3}, s{KO+4}, {(a_*BLK - 36864) & 0xffffffff}'), l0]; qr += l1; qld += [[l0, l1[0]], [l0, l1[1]]]
    km = []; kr = []; kl = []; vld = []; vl = []
    for b_ in range(11):
        r_ = Ins(f'ds_read_b32 a{6*b_}, v{vKR} offset:{256*b_}'); kr.append(r_)
        kl += [r_]
        lo_, hi_ = b_ // 2, (b_ - 1) // 2
        nm_ = lambda q_: f's{KB+q_}' if 0 <= q_ < 4 else '0'
        if b_ <= 8: kl += II(f's_pack_ll_b32_b16 s{T2}, {nm_(lo_)}, {nm_(hi_)}\nv_accvgpr_write_b32 a{6*b_+1}, s{T2}')
        else: kl += II(f'v_accvgpr_write_b32 a{6*b_+1}, 0')
        if b_ < 10:
            m_ = Ins(f'buffer_load_dwordx4 {ar(6*b_+2)}, v{vKM}, {sr(SW)}, s{T3} offen sc1'); km.append(m_)
            kl += [Ins(f's_add_u32 s{T3}, s{KO+b_//2}, {(b_%2)*BLK}'), m_]
    kld = [[km[u // 2], kr[(u + 1) // 2]] for u in range(20)]
    for v in range(10):
        a_ = Ins(f'buffer_load_dwordx4 {vr(VREG[2*v])}, v{vVM}, {sr(SW)}, s{T3} offen sc1')
        b_ = Ins(f'ds_read_b128 {vr(VREG[2*v+1])}, v{vVR} offset:{VRS*v}')
        vl.append([b_, Ins(f's_add_u32 s{T3}, s{KO+v//2}, {(v%2)*BLK}'), a_]); vld += [a_, b_]
    for x in km + vld[::2]: svc[id(x)] = opt.get('svk', SV)
    def vfix(v): return [Ins(f'v_or_b32 v{VREG[2*v+1]+r}, v{vONES}, v{VREG[2*v+1]+r}', needs=[vld[2 * v + 1]]) for r in range(4)]
    pfd = [T(f'buffer_load_dword v0, v{vTD_}, {sr(SD)}, s{PFD} offen offset:2048' + NT, opt.get('qd', 120))]
    if opt.get('nod') or opt.get('cls'): pfd = []
    pfw = II(f's_mul_i32 s{T2}, s2, {21*128}') + [II(f's_cmp_eq_u32 s{Wv}, 0\ns_cselect_b32 s{T2}, s{T2}, 0x{OOB:x}'), T(f'buffer_load_dword v0, v{vTD_}, {sr(SQ)}, s{T2} offen', 40)]
    if opt.get('nod'): pfw = []
    h1ld, h1chk = hpoll(2, vPFP)
    e_ = opt.get('ev', [8, 0, 26, 29, 38])
    flat = lambda l: [y for x in l for y in x]
    NV1 = opt.get('nv1', 3)
    cls_chain = []
    if opt.get('cls'):
        va, vs_ = QF + 13 - 9, QF + 13 - 8
        cls_chain = II(f'''v_lshrrev_b32 v{va}, 2, v{vL}
        v_mul_u32_u24 v{va}, 9216, v{va}
        v_bfe_u32 v{vs_}, v{vL}, 1, 1
        v_mul_u32_u24 v{vs_}, 1152, v{vs_}
        v_add_u32 v{va}, v{va}, v{vs_}
        v_and_b32 v{vs_}, 1, v{vL}
        v_lshl_add_u32 v{va}, v{vs_}, 10, v{va}
        v_cmp_gt_u32 {sr(DUM,2)}, 36, v{vL}
        v_mov_b32 v{va+2}, 0x{OOB:x}
        v_lshlrev_b32 v{vs_}, 8, v{vs_}
        v_cndmask_b32 v{va}, v{va+2}, v{va}, {sr(DUM,2)}
        v_sub_u32 v{vs_}, 128, v{vs_}
        s_lshr_b32 s{DUM}, s2, 5
        s_lshl_b32 s{DUM}, s{DUM}, 3
        s_and_b32 s{DUM+1}, s2, 7
        s_or_b32 s{DUM}, s{DUM}, s{DUM+1}
        s_mul_i32 s{PFP}, s{DUM}, {9*9216}
        s_mul_i32 s{DUM+1}, s{Wv}, 2304
        s_add_u32 s{PFP}, s{PFP}, s{DUM+1}
        s_and_b32 s{DUM}, s{NN}, 3''')
        sites_ = opt['cls']; qc = opt.get('qc', 24)
        for n, sl in enumerate(sites_):
            if sl: cls_chain += [('AT', sl - 1, 16)]
            if n < 6 and n % 2 == 0: cls_chain += II(f'v_add_u32 v{va}, v{va}, v{vs_}')
            if not sl: continue
            if n < 6:
                cls_chain += [II(f's_cmp_eq_u32 s{DUM}, {n % 4}\ns_cselect_b32 s{PFW}, s{PFP}, 0x{OOB:x}'), ('AT', sl, 0),
                              T(f'buffer_load_dword v0, v{va}, {sr([SG, SU][n % 2])}, s{PFW} offen offset:{2048 * (n % 2)}', qc)]
            else:
                cls_chain += [II(f's_cmp_eq_u32 s{DUM}, {n % 4}\ns_cselect_b32 s{PFW}, s{PFD}, 0x{OOB:x}'), ('AT', sl, 0),
                              T(f'buffer_load_dword v0, v{vTD_}, {sr(SD)}, s{PFW} offen offset:2048', qc)]
    fill1 = [(sl, 0, stamp('slot%d' % sl, True)) for sl in range(NSEG1)] + [
        (0, 0, r1[8:]),
        (1, 0, cls_chain),
        (0, 2, lnfin + late0 + [('BY', 9)] + late0b[:31] + [('AT', 9, 4)] + qe + [('BY', 16)] + late0b[31:] + late + [kvld, ('AT', 18, 4)]
         + pe[0][0] + [('BY', 24), poll_check('kv', kvld, kvtest)] + kv2pre + [('AT', 24, 4)]
         + le[0] + [('BY', 26)] + kvtouch[:-1] + [('AT', e_[2], 0), kv2ld] + kvtouch[-1:] + pfw + [('AT', 27, 0)] + le[3] + [('AT', e_[3] - 1, 8), poll_check('kw', kv2ld, kv2test)] + pfd + rst[:nrs] + [('AT', 33, 4)]
         + pe[1][0] + rst[nrs:] + ql + [('BY', 40), ('AT', 41, 0)] + qr + [('BY', 42), ('AT', 42, 4)]
         + pe[2][0] + [('AT', 44, 0)] + kl + flat(vl[:NV1]) + [('AT', 50, 8), h1ld]),
    ]
    bx1 = {
        3: (r1, []), 6: (lnw, []),
        opt.get('kvf', 17): (kv_stores, setflag(1, SP + 10)),
        27: (le[2], []), 41: (rsw, []),
        opt.get('hf', 49): (pe[0][1] + le[1] + pe[1][1] + pe[2][1], setflag(2, SP + 10)),
    }
    extra_loads[3] = [5, 6, 7, 8, load_at.pop(2)]
    xmap = {}
    for n, x in enumerate(r1):
        ks = n // 2
        for mt in range(4): xmap[breg(ks, mt)] = r1[2 * ks + (mt & 1)] if mt >= 2 else None
    mark = {}
    def hook(k, s):
        if k == 0:
            P(f's_cmp_ge_u32 s{QL}, 18')
            P('s_cbranch_scc1 qkv_v')
            P(f's_cmp_lt_u32 s{QL}, {4 if opt.get("half", 1) else 0}')
            P('s_cbranch_scc1 qkv_k')
            mark['a'] = len(P.out); mark['K'] = P.fork()
        if s == 9 and 'b' not in mark:
            mark['b'] = len(P.out)
            P.label('qkv_e')
    left = segment(0, NSEG1, fill1, bx1, first_loads=list(range(NPRE, 5)), hook=hook, pre=r1[:8], extra_need=lambda f, mt: xmap[f.b(mt)])
    qrd = set(id(x) for n in range(9) for g in slots[n].groups[2:] for f in g for x in f.rd)
    K = mark['K']; K.label('qkv_k'); cp = {}
    for x in P.out[mark['a']:mark['b']]:
        if id(x) in qrd or x.op in ('s_nop', 's_waitcnt'): continue
        if x.kind == 'mfma' and min(x.wr)[1] >= ACCA + 32: continue
        cp[id(x)] = K(Ins(x.text, needs=[cp.get(id(y), y) for y in x.needs if id(y) not in qrd]))
    K('s_waitcnt lgkmcnt(0)'); K('s_nop 4'); K('s_branch qkv_e')
    slow.append(K.text())
    alt = ['qkv_v:']
    for x in P.out[mark['a']:mark['b']]:
        t = x.text
        if x.kind == 'label': alt.append(t.replace('_e:', 'v_e:')); continue
        if x.op == 's_cbranch_scc1': t += 'v'
        if x.kind == 'mfma':
            o = [y.strip() for y in t[len(x.op):].split(',')]
            t = '%s %s, %s, %s, %s' % (x.op, o[0], o[2], o[1], o[3])
        alt.append('    ' + t)
    alt.append('    s_branch qkv_e')
    slow.append('\n'.join(alt) + '\n')
    print('left after seg1:', len(left), file=sys.stderr)
    stamp('g1end')

    SREG = [80] + [ACCB + (tl * 4 + mt) * 4 for mt in range(4) for tl in (0, 1, 3, 2)]
    PR = [84, 88]; OM, OR_ = 96, 100; MF, ML = 104, 108
    noskip = lambda l: [x for x in l if not isinstance(x, tuple)]
    def qbuild(t):
        q = QF + 2 * t
        P(Ins(f'v_mov_b32 v{QW+2}, v{q}', needs=qld[t]))
        P(f'v_mov_b32 v{QW+3}, v{q+1}')
        P(f'v_cndmask_b32 v{QW}, 0, v{QF+8+t}, {sr(G0M,2)}')
        P(f'v_cndmask_b32 v{QW+4}, 0, v{QF+8+t}, {sr(G1M,2)}')
    P('v_mov_b32 v%d, 0x%x' % (vTA, NEG))
    P(f'v_mov_b32 v{QW+1}, 0x3f80')
    P(f'v_mov_b32 v{QW+5}, 0x3f800000')
    qbuild(0)
    pq = list(pe[3][0])
    for r in range(4):
        P('v_cmp_lt_i32 vcc, %d, v%d' % (-r, vDG))
        P(pq.pop(0)); P(pq.pop(0))
        P('v_cndmask_b32 v%d, v%d, 0, vcc' % (MF + r, vTA))
        P('v_cndmask_b32 v%d, 0, v%d, vcc' % (ML + r, vTA))
    P(f's_cmp_eq_u32 s{FH}, 0')
    P('s_cselect_b64 vcc, -1, 0')
    P(f's_xor_b32 s{N0}, s{C}, 0x80000000')
    hld = {}
    def hload(k):
        if isinstance(k, tuple):
            ka, kb = k
            pre = II(f's_mul_i32 s{T2}, s{FH}, {(ka-kb)*8192}\ns_add_u32 s{T2}, s{T2}, s{HL}\ns_add_u32 s{T2}, s{T2}, {(17-ka)*8192}') if ka != kb else II(f's_add_u32 s{T2}, s{HL}, {(17-ka)*8192}')
            tx = lambda kk, mt: f'buffer_load_dwordx4 {breg(hpos[kk], mt)}, v{vL16}, {sr(SW)}, s{T2} offen offset:{1024*mt} sc1'
            ld = [Ins(tx(ka, mt)) for mt in range(4)]
            if not opt.get('ksw'): hld[ka] = [ld[3]] * 4; hld[kb] = [ld[3]] * 4
            if opt.get('ksw'): hld[ka] = list(ld); hld.setdefault(kb, None)
            if ka == kb or opt.get('ksw'): return [pre + ld[:1], ld[1:2], ld[2:3], ld[3:]]
            return [(pre if h == 0 else []) + alt_site(ld[2*h:2*h+2], [tx(kb, 2*h), tx(kb, 2*h+1)]) for h in range(2)]
        base = HLONE if k == 8 else hphys[k // 2] * SLOT + (k & 1) * 8192
        hld[k] = [Ins(f'ds_read_b128 {breg(hpos[k], mt)}, v{vONES} offset:{1024*mt}') for mt in range(4)]
        return [II(f'v_add_u32 v{vONES}, {base}, v{vHW}') + hld[k][:2], hld[k][2:]]
    def qk(t, sg):
        u = t + sg
        c = vr(MF) if sg == 0 else (vr(ML) if sg == 16 else '0')
        return Ins('v_mfma_f32_16x16x32_bf16 %s, %s, %s, %s' % (vr(SREG[sg]), ar(3 * u + (u & 1)), vr(QW + 2 * (u & 1)), c), needs=kld[u])
    def mx(sg, dst):
        s = SREG[sg]
        if sg == 0: return II('v_max3_f32 v%d, v%d, v%d, v%d\nv_max_f32 v%d, v%d, v%d' % (dst, s, s + 1, s + 2, dst, dst, s + 3))
        return II('v_max3_f32 v%d, v%d, v%d, v%d\nv_max3_f32 v%d, v%d, v%d, v%d' % (dst, dst, s, s + 1, dst, dst, s + 2, s + 3))
    lk = [x for x in left if any(y in km or y in kr for y in x)]
    if lk:
        n = left.index(lk[-1]) + 1; emit_all(left[:n]); left = left[n:]
    P(qk(0, 0))
    nq = 1; avail = 1; nmx = 0
    while pq:
        x = pq.pop(0); P(x)
        if x.kind == 'ds': avail += 4
        elif nq < avail and len(pq) % 2 == 0: P(qk(0, nq)); nq += 1
    def bunch(l):
        out = []; cur = []
        for x in l:
            cur += x
            if any(y.kind in ('vmem', 'ds') for y in x): out.append(cur); cur = []
        assert not cur
        return out
    isdma = lambda x: any(' lds' in y.text or f's{OFF},' in y.text.split()[1] or 'm0' in y.text or f's{BD},' in y.text.split()[1] for y in x)
    ldma = bunch([x for x in left if isdma(x)])
    lv = bunch([x for x in left if not isdma(x)] + [[x] for v in range(NV1, 10) for x in noskip(vl[v])])
    while nq < 17:
        P(qk(0, nq)); nq += 1
        emit_all(mx(nmx, vMN)); nmx += 1
    while nmx < 17:
        if len(lv) > 12 and nmx % 2: emit_all(lv.pop(0))
        emit_all(mx(nmx, vMN)); nmx += 1
    while len(lv) > 12: emit_all(lv.pop(0))
    qbuild(1)
    emit_all(h1chk)
    stamp('attk')
    ow = []
    def o_epi(t):
        P('v_rcp_f32 v%d, v%d' % (vTA, OR_ + 2))
        for r in range(4): P(mul(OM + r, OM + r, vTA))
        for r in range(2): P(mul(OR_ + r, OR_ + r, vTA))
        P(cvt(QF + 2 * t, OM, OM + 1)); P(cvt(QF + 2 * t + 1, OM + 2, OM + 3)); P(cvt(QF + 8 + t, OR_, OR_ + 1))
    ofl = II(f'''s_lshl_b32 s{T2}, s{FH}, 3
    s_add_u32 s{T2}, s{T2}, {HLONE}
    v_add_u32 v{vTB}, s{T2}, v{vHW}
    s_lshl_b32 s{T2}, s{RG}, 9
    s_lshl_b32 s{T3}, s{FH}, 2
    s_add_u32 s{T2}, s{T2}, s{T3}
    s_add_u32 s{T2}, s{T2}, {RT4}
    v_lshlrev_b32 v{vTA}, 3, v{vL}
    v_add_u32 v{vMX}, 4096, v{vTA}
    v_cndmask_b32 v{vTA}, v{vMX}, v{vTA}, {sr(G0M,2)}
    v_add_u32 v{vTA}, s{T2}, v{vTA}''')
    for t in range(4):
        ow += [Ins(f'ds_write_b64 v{vTB}, {vr(QF+2*t,2)} offset:{1024*t}'), Ins(f'ds_write_b32 v{vTA}, v{QF+8+t} offset:{128*t}')]
    ofl += ow
    h2ld, h2chk = hpoll(3, vPFP)
    hplan = opt.get('hplan', {0: [0, 1, 2, 3, 4, 5], 1: [(16, 17), (14, 15), (12, 13), (9, 9)], 2: [(17, 16), (15, 14), (13, 12), 8], 3: [(10, 11), (11, 10)]})
    if opt.get('plain', 1): hplan = opt.get('hp', {0: [(16, 16), 0, 1, (17, 17), 2, 3, (14, 14), 4, 5], 1: [(15, 15), (12, 12)], 2: [(13, 13), (9, 9), 8], 3: [(10, 10), (11, 11)]})
    if opt.get('ksw'): hplan = {0: [0, 1, 2, 3, 4, 5], 1: [(16, 17), (14, 15), (12, 13), (9, 9)], 2: [(17, 16), (15, 14), (13, 12), 8], 3: [(10, 11), (11, 10)]}
    for t in range(4):
        stamp('att%d' % t)
        P('v_mov_b32 v%d, v%d' % (vTA, vMN))
        P('v_permlane16_swap_b32 v%d, v%d' % (vTA, vMN))
        P('v_max_f32 v%d, v%d, v%d' % (vMN, vMN, vTA))
        P('v_mov_b32 v%d, v%d' % (vTA, vMN))
        P('v_permlane32_swap_b32 v%d, v%d' % (vTA, vMN))
        P('v_max_f32 v%d, v%d, v%d' % (vMN, vMN, vTA))
        P(f'v_mul_f32 v{vMX}, s{N0}, v{vMN}')
        if t == 1:
            P(Ins('s_barrier', needs=pe[3][1] + hw[3] + [x for k in range(6) for x in hld[k]]))
            ad = bunch(flat([dma_groups(n) for n in att_loads[:sum(opt.get('na', [0, 8, 8, 4])) // 4]]))
            emit_all(setflag(3, vPFS))
        if t == 3:
            P(Ins('s_barrier', needs=slots[NSEG1].loads + hld[8]))
            emit_all(h2chk)
        bq = flat([hload(k) for k in hplan[t]])
        def mix(a_, b_):
            out = []; a_ = list(a_); b_ = list(b_)
            while a_ or b_:
                if a_: out.append(a_.pop(0))
                if b_: out.append(b_.pop(0))
            return out
        if t == 0:
            bq = mix(lv + ldma, bq)
        else:
            na = opt.get('na', [0, 8, 8, 4])[t]
            bq = mix(bq, ad[:na]) if t < 3 or opt.get('plain', 1) else bq[:2] + ad[:na] + bq[2:]
            ad = ad[na:]
        ppv = []; pqk = []; pmx = []
        for b in range(9):
            v = (t >> 1) + b
            sgs = [2 * v - t, 2 * v + 1 - t]
            val = [sg for sg in sgs if 0 <= sg <= 16]
            p = PR[b % 2]
            for sg in val:
                for r in (0, 2):
                    s = SREG[sg] + r
                    P(f'v_pk_fma_f32 {vr(s,2)}, {vr(s,2)}, {sr(C,2)}, {vr(vMX,2)} op_sel_hi:[1,0,0]')
            mfs = ppv + [qk(t + 1, g_) for g_ in pqk]
            nb = (len(bq) + (8 - b)) // (9 - b)
            def withmem(x):
                nonlocal nb
                g = []
                if nb: g = bq.pop(0); nb -= 1
                n0 = 0
                while n0 < len(g) and g[n0].kind in ('salu', 'valu') and not g[n0].op.startswith('s_cbranch'): n0 += 1
                emit_all(g[:n0]); P(x); emit_all(g[n0:])
            for sg in val:
                for r in range(4):
                    P('v_exp_f32 v%d, v%d' % (SREG[sg] + r, SREG[sg] + r))
                    if mfs and (not opt.get('spr') or r % 2 == 0 or len(val) == 1): withmem(mfs.pop(0))
            while mfs: withmem(mfs.pop(0))
            nb += 1
            for g_ in pmx: emit_all(mx(g_, vMN))
            for hh, sg in enumerate(sgs):
                if sg in val:
                    s = SREG[sg]
                    P(cvt(p + 2 * hh, s, s + 1)); P(cvt(p + 2 * hh + 1, s + 2, s + 3))
                else:
                    P('v_mov_b32 v%d, 0' % (p + 2 * hh)); P('v_mov_b32 v%d, 0' % (p + 2 * hh + 1))
            for _ in range(nb - 1): emit_all(bq.pop(0))
            pmx = pqk; pqk = val if t < 3 else []
            ppv = [Ins('v_mfma_f32_16x16x32_bf16 %s, %s, %s, %s' % (vr(OM), vr(VREG[2 * v]), vr(p), '0' if b == 0 else vr(OM)), needs=[vld[2 * v]]),
                   Ins('v_mfma_f32_16x16x32_bf16 %s, %s, %s, %s' % (vr(OR_), vr(VREG[2 * v + 1]), vr(p), '0' if b == 0 else vr(OR_)), needs=[vld[2 * v + 1]])]
            if t == 2 and b == 5: P(h2ld)
        assert not bq
        tail = flat([mx(g_, vMN) for g_ in pmx])
        for x in [qk(t + 1, g_) for g_ in pqk] + ppv:
            P(x)
            if tail: P(tail.pop(0))
        emit_all(tail)
        if t < 2: qbuild(t + 2)
        for g_ in pqk: emit_all(mx(g_, vMN))
        if t < 3: o_epi(t)
    stamp('attend')

    own = flat(flat([hload(k) for k in (6, 7)]))
    bmap = {}
    for k in hld:
        for mt in range(4): bmap[breg(hpos[k], mt)] = hld[k][mt]
    def restage(dst, sbase, stride, T3=T3):
        L = II(f's_lshl_b32 s{T3}, s{FH}, 11\ns_add_u32 s{T3}, s{T3}, {HLONE}\nv_add_u32 v{vTB}, s{T3}, v{vHW}')
        rd = [Ins(f'ds_read_b128 {vr(dst+4*m)}, v{vTB} offset:{1024*m}') for m in range(2)]
        L += rd + II(f's_add_u32 s{T3}, s{sbase}, {stride}') + [('SKIP', 8)]
        L += [Ins(f'buffer_store_dwordx4 {vr(dst+4*m)}, v{vL16}, {sr(SW)}, s{[sbase, T3][m]} offen sc1', needs=[rd[m]]) for m in range(2)]
        return L, rd
    oe, ord_ = restage(QF, OB, 18432)
    rr = Ins(f'ds_read_b128 {vr(QF+8)}, v{vTA}')
    oe += II(f'v_add_u32 v{vTA}, {RT4}, v{vL16}') + [rr] + II(f'v_lshrrev_b32 v{vTA}, 3, v{vL}\nv_mul_u32_u24 v{vTA}, {18432-128}, v{vTA}\nv_add_u32 v{vTA}, v{vTA}, v{vL16}') + [('SKIP', 8)]
    oe += [Ins(f'buffer_store_dwordx4 {vr(QF+8)}, v{vTA}, {sr(SW)}, s{OR} offen sc1', needs=[rr])]
    l2e = II(f's_lshl_b32 s{T3}, s{FH}, 3\ns_add_u32 s{T3}, s{T3}, {HLONE}\nv_add_u32 v{vTB}, s{T3}, v{vHW}'); l2w = []
    for mt in range(4):
        t0 = SP + mt * 4
        w = Ins(f'ds_write_b64 v{vTB}, {vr(t0,2)} offset:{1024*mt}'); l2w.append(w)
        l2e += [cvt(t0, t0, t0 + 1), cvt(t0 + 1, t0 + 2, t0 + 3), w]
    l2s, _ = restage(SP, PLN, 1024, T1)
    TLT, TVT = opt.get('tl', 0x40518732), opt.get('tv', 0x65557777)
    def task_params(second):
        ln = II(f's_lshl_b32 s{T2}, s{Pp}, 2\ns_lshr_b32 s{T1}, {TLT:#x}, s{T2}\ns_and_b32 s{T1}, s{T1}, 15\ns_lshr_b32 s{TV}, {TVT:#x}, s{T2}\ns_and_b32 s{TV}, s{TV}, 15\ns_movk_i32 s{TM}, 0x5555')
        ln += [II(f's_cmp_gt_u32 s{T1}, 4\ns_cselect_b32 s{T2}, 1, 0'), Ins(f's_lshl_b32 s{TM}, s{TM}, s{T2}'), II(f's_cmp_eq_u32 s{T1}, 4\ns_cselect_b32 s{TM}, 0xffff, s{TM}'), Ins(f's_bitset0_b32 s{TM}, s{J}')]
        return ln + II(f'''s_lshl_b32 s{TL}, s{T1}, 7
        s_lshl_b32 s{T2}, s{E}, 2
        s_add_u32 s{T2}, s{T2}, s{Wv}
        s_lshl_b32 s{TP}, s{T2}, 10
        s_lshl_b32 s{T1}, s{T1}, 14
        s_sub_u32 s{TP}, s{TP}, s{T1}
        s_mul_i32 s{T1}, s{I}, {8*18*8192}
        s_add_u32 s{TP}, s{TP}, s{T1}
        s_lshl_b32 s{T1}, s{I}, 3
        s_add_u32 s{T2}, s{T2}, s{T1}
        s_mul_i32 s{OL}, s{T2}, 18432
        s_add_u32 s{TX}, s{OL}, s{TL}
        s_mul_i32 s{T1}, s{Wv}, {36*1152}
        s_add_u32 s{TL}, s{TL}, s{T1}''')
    tsetup = II(f'''s_mov_b32 s{SG}, s8
    s_mov_b32 s{SG+1}, s9
    s_mov_b32 s{SG+2}, 0x{576*1152:x}
    s_mov_b32 s{SU}, s{OUTP}
    s_mov_b32 s{SU+1}, s{OUTP+1}
    s_mov_b32 s{SU+2}, 0x{2048*1152:x}
    s_lshl_b32 s{FB}, s{I}, 11
    s_add_u32 s{FB}, s{FB}, 0x{FOFF:x}
    s_mov_b32 s{LO}, 0x00003f80
    s_mov_b32 s{HI}, 0x3f800000''') + task_params(False)
    for t, row in enumerate((0, 8, 20, 28)): tsetup += II(f'v_add_u32 v{vWD[t]}, {(row*1152 - 1024*t - 2048) & 0xffffffff}, v{vDD[0]}')
    tsetup += II(f'''v_lshrrev_b32 v{vWD2}, 5, v{vL}
    v_mul_u32_u24 v{vWD2}, {32*1152}, v{vWD2}
    v_add_u32 v{vWD2}, v{vWD2}, v{vWD[0]}
    v_add_u32 v{vWD2}, {16*1152}, v{vWD2}
    v_and_b32 v{vWT[0]}, 0xffff, v{vTD[0]}
    s_lshl_b32 s{T2}, s{FH}, 6
    v_xor_b32 v{vWT[0]}, s{T2}, v{vWT[0]}
    v_xor_b32 v{vWT[1]}, 32, v{vWT[0]}
    v_xor_b32 v{vWT[2]}, 64, v{vWT[0]}
    v_xor_b32 v{vWT[3]}, 0x60, v{vWT[0]}
    v_lshlrev_b32 v{vPL}, 3, v{vOR}
    v_and_b32 v{vMX}, 15, v{vL}
    v_mul_u32_u24 v{vDG}, 1152, v{vMX}
    v_bfe_u32 v{vMN}, v{vL}, 4, 1
    v_lshl_add_u32 v{vDG}, v{vMN}, 5, v{vDG}
    v_lshrrev_b32 v{vMN}, 5, v{vL}
    v_lshl_add_u32 v{vDG}, v{vMN}, 4, v{vDG}
    s_lshl_b32 s{T2}, s{E}, 2
    s_add_u32 s{T2}, s{T2}, s{Wv}
    s_lshl_b32 s{T2}, s{T2}, 6
    s_lshr_b32 s{T3}, s{ROT}, 4
    s_xor_b32 s{T2}, s{T2}, s{T3}
    s_add_u32 s{T2}, s{T2}, {RTC}
    v_lshlrev_b32 v{vMX}, 2, v{vMX}
    v_add_u32 v{vMX}, s{T2}, v{vMX}''')
    rrd = Ins(f'ds_read_b32 v{vMX}, v{vMX}')
    tsetup += [rrd, ('SKIP', 8), Ins(f'v_mul_f32 v{vMX}, v{vMX}, v{vMX}', needs=[rrd]), Ins(f'v_mul_f32 v{vMN}, 0x{f2u(-1.4426950408889634):x}, v{vMX}')]
    fl_t = f'buffer_load_dword v{vPFP}, v{vPL}, {sr(SW)}, s{FB} offen sc1'
    o3ld = T(fl_t, 24)
    o3chk = poll_check('o3', o3ld, [f'v_cmp_le_u32 vcc, 4, v{vPFP}', 's_nop 1', 's_cmp_eq_u32 vcc_lo, 0xffff'])
    d5ld = T(fl_t, 8)
    ct3 = [II(f's_getpc_b64 {sr(SB,2)}') + [Ins('K1_pc3:')]] + II(f'''s_mov_b32 s{SB+2}, code_end-K1_pc3
    s_and_b32 s{T2}, s{NN}, 7
    s_lshl_b32 s{T2}, s{T2}, 2
    s_add_u32 s{T2}, s{T2}, s{Wv}
    s_mul_i32 s{T2}, s{T2}, {9*128}
    v_cmp_gt_u32 vcc, 9, v{vL}
    v_mov_b32 v{vTA}, 0x{OOB:x}
    s_nop 0
    v_cndmask_b32 v{vTA}, v{vTA}, v{vPL}, vcc''') + [T(f'buffer_load_dword v0, v{vTA}, {sr(SB)}, s{T2} offen', 24)]
    ct3 += II(f'''v_mul_u32_u24 v{vTA}, 1152, v{vL}
    v_subrev_u32 v{vTB}, {9*1152-128}, v{vTA}
    v_cmp_gt_u32 vcc, 9, v{vL}
    s_and_b32 s{T2}, s{I}, 7
    s_lshl_b32 s{T2}, s{T2}, 1
    v_cndmask_b32 v{vTA}, v{vTB}, v{vTA}, vcc
    s_add_u32 s{T2}, s{T2}, s{E}
    s_mul_i32 s{T2}, s{T2}, {36*1152}
    s_add_u32 s{T2}, s{T2}, s{TL}
    s_mul_i32 s{T3}, s{Wv}, {27*1152}
    s_sub_u32 s{T2}, s{T2}, s{T3}''') + [II(f's_cmp_ge_u32 s{J}, 14\ns_cselect_b32 s{T3}, 18, 9')] + II(f'''v_cmp_gt_u32 vcc, s{T3}, v{vL}
    v_mov_b32 v{vTB}, 0x{OOB:x}
    s_nop 0
    v_cndmask_b32 v{vTA}, v{vTB}, v{vTA}, vcc''') + [T(f'buffer_load_dword v0, v{vTA}, {sr(SG)}, s{T2} offen', 24)]
    if opt.get('nowt', 1): ct3 = ct3[:-17]
    OA = 160
    old = []; ol = II(f'v_lshlrev_b32 v{vTA}, 3, v{vL}')
    for k in range(18):
        if k == 8: ol += [('AT', NSEG1 + 14, 0)]
        if k == 16: ol += [('AT', NSEG1 + 15, 0)]
        if k % 4 == 0: ol += II(f's_add_u32 s{T3}, s{OL}, 0x{OOFF + k*1024:x}')
        if k < 16: x = [Ins(f'buffer_load_dwordx4 {ar(OA+4*k)}, v{vL16}, {sr(SW)}, s{T3} offen offset:{1024*(k%4)} sc1')]
        else: x = [Ins(f'buffer_load_dwordx2 {ar(OA+4*k+2*h,2)}, v{vTA}, {sr(SW)}, s{T3} offen offset:{1024*(k%4)+512*h} sc1') for h in range(2)]
        ol += x; old.append(x[-1])
    XR2 = SP + 8
    xt_ = lambda u: f'buffer_load_dwordx4 {vr(XR2+4*u)}, v{vDG}, {sr(SX)}, s{TX} offen offset:{64*u}'
    xld = [Ins(xt_(u)) for u in range(2)]
    de0 = d_epi(ACCA, 0); st0 = [x for x in de0 if x.kind == 'vmem']; stl = [x for x in l2s if not isinstance(x, tuple) and x.kind == 'vmem']
    ost = [x for x in oe if not isinstance(x, tuple) and x.kind == 'vmem']
    de1a = d_epi(ACCB, 1, (0,)); de1b = d_epi(ACCB, 1, (1,)); st1 = [x for x in de1a + de1b if x.kind == 'vmem']
    for x in st1 + stl: loud.add(id(x)); svc[id(x)] = 3
    fill2 = [(sl, 0, stamp('slot%d' % sl, True)) for sl in range(NSEG1, NS)] + [
        (NSEG1, 0, ofl + [('AT', NSEG1 + 2, 0)] + oe + tsetup + ct3 + [('BY', NSEG1 + 9), ('AT', NSEG1 + 9, 4)] + de0 + [o3ld, ('AT', NSEG1 + 12, 4)] + l2e + [('BY', NSEG1 + 14)]
         + [('AT', NSEG1 + 13, opt.get('o3o', 0)), o3chk] + ol),
        (NS - 1, 19, de1a), (NSEG1 + 15, 0, l2s),
        (NSEG1, 1, own)]
    bx2 = {NSEG1 + 2: (ow, []), NSEG1 + 3: (hld[6] + hld[7], [])}
    bx2[NSEG1 + 7] = (ost, setflag(4, vPFS)); bx2[NSEG1 + 15] = (l2w + st0, setflag(5, vPFS)); bx2[NSEG1 + opt.get('l2f', 20)] = (stl, setflag(6, vPFS))
    left = segment(NSEG1, NS, fill2, bx2, first_loads=att_loads[sum(opt.get('na', [0, 8, 8, 4])) // 4:], extra_need=lambda f, mt: bmap[f.b(mt)], pre=lambda: o_epi(3))
    print('left after seg2:', len(left), file=sys.stderr)
    stamp('g2end')
    tq = flat(left) + de1b + xld
    def wo_gemm(P, acc, need_o, bg_=None, ph=None, nd_=4):
        ph = ph or [phys[n] for n in range(NS, NSX)]
        rds = {}
        wwin = [0]
        def rd(n):
            k, dt = divmod(n, nd_)
            w, o = divmod(ph[k // 4] * SLOT, 65536)
            if w != wwin[0]:
                for d in range(4): P('v_add_u32 v%d, 0x%x, v%d' % (vWT[d], ((w - wwin[0]) * 65536) & 0xffffffff, vWT[d]))
                wwin[0] = w
            f = FR + 4 * (n % 8)
            rds[n] = [P('ds_read_b64_tr_b16 %s, v%d offset:%d' % (vr(f + 2 * h, 2), vWT[dt], o + (k % 4) * 4096 + 2048 * h)) for h in range(2)]
        for n in range(7): rd(n)
        for n in range(18 * nd_):
            k, dt = divmod(n, nd_)
            nd = rds[n] + (rds[n + 1] if n % 2 == 0 else []) + ([old[k]] if need_o else [])
            P(Ins('v_mfma_f32_16x16x32_bf16 %s, %s, %s, %s' % (vr(acc + 4 * dt), vr(FR + 4 * (n % 8)), ar(OA + 4 * k), '0' if k == 0 else vr(acc + 4 * dt)), needs=nd))
            if n + 7 < 18 * nd_: rd(n + 7)
            if bg_: bg_(n)
        for d in range(4):
            if wwin[0]: P('v_add_u32 v%d, 0x%x, v%d' % (vWT[d], (-wwin[0] * 65536) & 0xffffffff, vWT[d]))
    def ploads(P, dst, extra=0):
        pl = []
        for p in range(8):
            for u in range(2):
                P(f's_add_u32 s{T3}, s{TP}, 0x{POFF + (p*18+17-u)*8192 - extra:x}')
                pl.append(P(f'buffer_load_dwordx4 {vr(dst+8*p+4*u)}, v{vL16}, {sr(SW)}, s{T3} offen sc1'))
        return pl
    def fmath(P, acc, src0, pl, xr, xl_, imm, bg_=None, nu=2):
        SUM, TT = FR, FR + 16
        for p in range(8):
            for u in range(nu):
                for q in range(4):
                    src = src0 + 8 * p + 4 * u + q; d = SUM + 8 * u + 2 * q
                    P(Ins(f'v_dot2_f32_bf16 v{d}, v{src}, s{LO}, ' + ('0' if p == 0 else f'v{d}'), needs=[pl[nu * p + u]]))
                    P(f'v_dot2_f32_bf16 v{d+1}, v{src}, s{HI}, ' + ('0' if p == 0 else f'v{d+1}'))
                if bg_: bg_(2 * p + u)
        for r in range(0, 8 * nu, 2): P(f'v_pk_mul_f32 {vr(TT+r,2)}, {vr(SUM+r,2)}, {vr(vMX,2)} op_sel:[0,1] op_sel_hi:[1,1]')
        for r in range(8 * nu): P(f'v_exp_f32 v{TT+r}, v{TT+r}')
        for r in range(0, 8 * nu, 2): P(f'v_pk_mul_f32 {vr(acc+r,2)}, {vr(acc+r,2)}, {vr(SUM+r,2)}')
        for r in range(0, 8 * nu, 2): P(f'v_pk_add_f32 {vr(TT+r,2)}, {vr(TT+r,2)}, 1.0 op_sel_hi:[1,0]')
        for r in range(8 * nu): P(f'v_rcp_f32 v{TT+r}, v{TT+r}')
        for r in range(0, 8 * nu, 2): P(f'v_pk_mul_f32 {vr(acc+r,2)}, {vr(acc+r,2)}, {vr(TT+r,2)}')
        for u in range(nu):
            for r in range(4): P(f'v_permlane16_swap_b32 v{acc+8*u+r}, v{acc+8*u+4+r}')
        for u in range(nu):
            for q in range(4):
                d = acc + 8 * u + 2 * q
                P(Ins(f'v_dot2c_f32_bf16 v{d}, s{LO}, v{xr+4*u+q}', needs=[xl_[u]]))
                P(f'v_dot2c_f32_bf16 v{d+1}, s{HI}, v{xr+4*u+q}')
        for u in range(nu):
            for q in range(4): P(cvt(xr + 4 * u + q, acc + 8 * u + 2 * q, acc + 8 * u + 2 * q + 1))
            P(f'buffer_store_dwordx4 {vr(xr+4*u)}, v{vDG}, {sr(SU)}, s{TX} offen offset:{64*u+imm} ' + opt.get('ost', 'sc1'))
    def scale_s(P, acc, nu=2):
        for r in range(0, 8 * nu, 2): P(f'v_pk_mul_f32 {vr(acc+r,2)}, {vr(acc+r,2)}, {vr(vMX,2)} op_sel_hi:[1,0]')
    ftest = [f'v_cmp_le_u32 vcc, s{TV}, v{vPFP}', 's_nop 1', f's_and_b32 s{T2}, vcc_lo, s{TM}', f's_cmp_eq_u32 s{T2}, s{TM}']
    P(Ins('s_barrier', needs=[x for n in range(NS, NSX) for x in slots[n].loads]))
    while tq and any(x in ol for x in tq): P(tq.pop(0))
    P(f's_and_b32 s{T2}, s{J}, 12')
    P(f's_cmp_eq_u32 s{T2}, 8')
    P('s_cbranch_scc1 dbl')
    S = P.fork(); tq2 = [Ins(x.text) for x in tq]
    st2 = [x for x in st1 if x.cnt is not None] + [x for x in tq2 if 'store' in x.op]
    f1 = Ins(fl_t)
    def bgt(n):
        for _ in range(2):
            if tq: P(tq.pop(0))
        if n == opt.get('nf', 48):
            P(Ins('s_barrier', needs=st1))
            P(f1)
            emit_all(setflag(7, vPFS))
    wo_gemm(P, XT, True, bgt)
    assert not tq
    stamp('wo')
    scale_s(P, XT)
    P(Ins(ftest[0], needs=[f1]))
    P('s_nop 1')
    pl = [None] * 16
    porder = opt.get('porder', [7, 6, 5, 4, 0, 1, 2, 3])
    for p in porder:
        bits = 3 << (2 * p)
        if opt.get('pb'): bits = sum(3 << (2 * y) for y in porder[porder.index(p) // opt['pb'] * opt['pb']:][:opt['pb']])
        chk = [f's_andn2_b32 s{T2}, s{TM}, vcc_lo', f's_and_b32 s{T2}, s{T2}, {bits}']
        for t_ in chk: P(t_)
        P(f's_cbranch_scc1 fp{p}_slow')
        P.label(f'fp{p}_ok')
        Z = Prog(); Z.label(f'fp{p}_slow'); Z(f's_mov_b32 s{SPN}, 400000'); Z.label(f'fp{p}_loop')
        if opt.get('fs'): Z('s_sleep %d' % opt['fs'])
        Z(fl_t); Z('s_waitcnt vmcnt(0)'); Z(ftest[0]); Z(f's_sub_u32 s{SPN}, s{SPN}, 1'); Z(f's_cbranch_scc1 fp{p}_ok')
        for t_ in chk: Z(t_)
        Z(f's_cbranch_scc1 fp{p}_loop'); Z(f's_branch fp{p}_ok'); slow.append(Z.text())
        for u in range(2):
            P(f's_add_u32 s{T3}, s{TP}, 0x{POFF + (p*18+17-u)*8192:x}')
            pl[2 * porder.index(p) + u] = P(f'buffer_load_dwordx4 {vr(ACCA+8*porder.index(p)+4*u)}, v{vL16}, {sr(SW)}, s{T3} offen sc1')
    stamp('poll')
    fmath(P, XT, ACCA, pl, XR2, xld, 0)
    stamp('x1')
    P.label('dbl_e')
    stamp('x2')
    S.label('dbl')
    TP2, TX2, U6 = 96, 97, 98
    S(f'''s_bfe_u32 s{U6}, s{J}, 0x10001
    s_lshl_b32 s{T2}, s{U6}, 9
    s_sub_u32 s{T2}, 640, s{T2}
    s_add_u32 s{TL}, s{TL}, s{T2}
    s_lshl_b32 s{U6}, s{U6}, 6
    s_add_u32 s{T2}, s{T2}, s{U6}
    s_add_u32 s{TX2}, s{TX}, s{T2}
    s_lshl_b32 s{T2}, s{T2}, 7
    s_sub_u32 s{TP2}, s{TP}, s{T2}
    s_mov_b32 s{TM}, 0xffff''')
    ph2 = [x for x in range(9) if x not in [phys[n] for n in range(NS, NSX)]] + [9]
    wq = bunch(flat([slots[NS + n].dma(ph2[n]) for n in range(5)]))
    wl = [x for g in wq for x in g if x.kind == 'vmem']
    def pl_(dst, base, nu): return [II(f's_add_u32 s{T3}, s{base}, 0x{POFF + (p*18+17-u)*8192:x}\nbuffer_load_dwordx4 {vr(dst+8*p+4*u)}, v{vL16}, {sr(SW)}, s{T3} offen sc1') for p in range(8) for u in range(nu)]
    qa = pl_(ACCA, TP, 2); qb = pl_(ACCB, TP2, 1); pa = [g[1] for g in qa]; pb = [g[1] for g in qb]
    x2 = [Ins(f'buffer_load_dwordx4 {vr(SP)}, v{vDG}, {sr(SX)}, s{TX2} offen')]
    mq = wq[:10] + [[d5ld]] + wq[10:] + [x2] + [poll_check('d5', d5ld, ftest) + qa[0]] + qa[1:] + qb
    def pop():
        if mq:
            for x in mq.pop(0):
                if x.kind == 'label': S.out.append(x)
                else: S(x)
    def bgs(n):
        if tq2:
            for _ in range(2):
                if tq2: S(tq2.pop(0))
        elif n % (2 if fdone and len(fdone) > 1 else opt.get('dp', 3)) == 0: pop()
        if n == opt.get('nfd', 28) and not fdone:
            fdone.append(1)
            S(Ins('s_barrier', needs=st2))
            for x in setflag(7, vPFS): S(x)
    fdone = []
    wo_gemm(S, XT, True, bgs)
    for x in flat(stamp('wo', True)): S(x)
    while wl[-1].cnt is None: pop()
    for _ in range(4): pop()
    S(Ins('s_barrier', needs=wl))
    for x in flat(stamp('poll', True)): S(x)
    fdone.append(1)
    for d in range(2): S(f'v_xor_b32 v{vWT[d]}, s{U6}, v{vWT[d]}')
    wo_gemm(S, XT + 16, False, bgs, ph2, 2)
    for x in flat(stamp('x1', True)): S(x)
    scale_s(S, XT)
    fmath(S, XT, ACCA, pa, XR2, [None, None], 0, lambda n: pop())
    assert not mq
    S(f's_mov_b32 s{TX}, s{TX2}')
    scale_s(S, XT + 16, 1)
    fmath(S, XT + 16, ACCB, pb, SP, x2, 0, None, 1)
    S('s_branch dbl_e'); slow.append(S.text())
    if stamps:
      P('s_waitcnt vmcnt(0)')
      stamp('end')
      P('s_waitcnt lgkmcnt(0)')
      P(f's_lshl_b32 s{T2}, s2, 7')
      P(f's_add_u32 s{T2}, s{T2}, 0x{STAMP_OFF:x}')
      if stamps == 'all':
        n = len(ALL)
        P('v_writelane_b32 v%d, s22, %d' % (77 + n // 64, n % 64))
        P(f's_lshl_b32 s{T2}, s2, 9')
        P(f's_add_u32 s{T2}, s{T2}, 0x{STAMP_OFF + (2 << 18):x}')
        P(f's_cmp_eq_u32 s{Wv}, 0')
        P(f's_cselect_b32 s{T2}, s{T2}, 0x{OOB:x}')
        P(f'v_lshlrev_b32 v80, 2, v{vL}')
        P(f'buffer_store_dword v77, v80, {sr(SW)}, s{T2} offen')
        P(f'buffer_store_dword v78, v80, {sr(SW)}, s{T2} offen offset:256')
      else:
        P('s_mov_b32 s%d, s22' % (sTS + len(stamps)))
        P('v_mov_b32 v81, 0')
        for n in range(10):
            P('v_mov_b32 v80, s%d' % (sTS + (n if opt.get('est') else min(n, len(stamps)))))
            P(f'buffer_store_dwordx2 v[80:81], v{vFL}, {sr(SW)}, s{T2} offen offset:{8*n}')
    P.label('K1_end')
    P('s_endpgm')
    print('K1: instrs', len(P.out), 'nops', P.nnop, file=sys.stderr)
    return P.text() + ''.join(reversed(slow))
```

```python
import sys, struct
sys.path.insert(0, 'gen')
from prog import *
from asmlib import STAMP_OFF

HOFF = 0x0000000
POFF = 0
BLK = 110592
KOFF = 0x2400000 + BLK
OOFF = 0x2C00000
ROFF = 0x2F00000
FOFF = 0x2F10000
WSB = 256 << 20
OOB = 0x10000000
NEG = 0xF149F2CA
SCALE = 0.2357022603955158 * 1.4426950408889634
def f2u(x): return struct.unpack('<I', struct.pack('<f', x))[0]

SLOT = 16384
XB = 5 * SLOT
HLONE = 9 * SLOT
RT4 = 155648
RTB = RT4 + 2048
RTC = RT4 + 7680
VRS = 272; LVR = RT4; LKR = LVR + 12 * VRS; LQR = LKR + 3072
NCODE = 84

def vr(b, n=4): return 'v[%d:%d]' % (b, b + n - 1)
def ar(b, n=4): return 'a[%d:%d]' % (b, b + n - 1)
def sr(b, n=4): return 's[%d:%d]' % (b, b + n - 1)
def II(text): return [Ins(l) for l in text.strip().split('\n') if l.strip()]

class Frag:
    def __init__(s, base, imm0, imm1, acc, b, first):
        s.base, s.imm, s.acc, s.b, s.first = base, (imm0, imm1), acc, b, first
class Slot:
    def __init__(s, groups, dma):
        s.groups, s.dma, s.loads = groups, dma, None

def gen_k1(JX=4, stamps=False, opt={}):
    opt = dict(dict(so=5, cls=[0, 0, 8, 8, 26, 26, 30, 30, 38, 38], qc=44, crit=72, svst=2.5, spr=1, nv1=8, hf=47, l2f=18, xs=1, qt=1, gap1=20, svk=5.5), **opt)
    assert JX == 4
    POFF = 0 if opt.get('alias', 1) else 0x1200000
    P = Prog()
    SX, SQ, SG, SU, SD, SW, SB, SL = 24, 28, 32, 36, 40, 44, 48, 52
    I, J, Wv, RG, FH, E, Pp, T0, T1, T2, T3, OFF, ST, SPN = range(56, 70)
    W4096, W3072, BP, BL1, BD, SIG = range(70, 76)
    BL2 = 76
    HS, HLN, HL, PS, PLN = range(79, 84)
    C, N0, N1 = 84, 85, 86
    QM, QC, BQ, ONE2, LO, HI, R2, XRO = 87, 91, 92, 93, 94, 95, 96, 97
    KO, KB = 87, 92
    NN = 101
    SH = 75 + 11
    OB, OR, MYF, PF, PFD, DB = 4, 5, 6, 7, 10, 11
    PFP, PFW, J0, DUM = 20, 21, 90, 18
    OUTP = 0
    QL = 88; SGR = opt.get('sg', 2)
    ROT = 3
    sTS = 12
    vL, vL16 = 1, 2
    vDQ = [3, 4, 5, 6]; vDL2 = 7
    vDP = [8, 9]; vDL1 = 10; vTP = [11, 12]; vTL1 = 13
    vTQ = [14, 15]; vDD = [16, 17, 18, 19]; vTD = [20, 21]; vTL2 = 22
    vQS = [23]; vTB = 24; vRS = 25
    vPFP, vPFS, vHW, vFL, vDG, vOR = 26, 27, 28, 29, 30, 31
    vKM, vKR, vVM, vVR = 3, 4, 5, 6
    QW = 8
    vMX, vMN, vTA, vONES = 14, 15, 23, 25
    XT, QF, FR, ACCA, ACCB, SP = 32, 64, 80, 112, 176, 240
    ALL = ['mf0'] + ['slot%d' % n for n in range(1, 51)] + ['g1end', 'attk', 'att1', 'att2', 'att3', 'attend'] + ['slot%d' % n for n in range(52, 72)] + ['g2end', 'wo', 'poll', 'end']
    JIT = ['setup', 'ln23', 'slot10', 'slot19', 'slot25', 'slot34', 'slot43', 'slot49', 'attk', 'att2', 'slot53', 'slot61', 'slot66', 'slot71', 'g2end']
    def stamp(name, ret=False):
        if opt.get('jit'):
            if name not in JIT: return []
            n = JIT.index(name)
            x = II(f'''s_lshl_b32 s12, s2, 2
            s_add_u32 s12, s12, s{Wv}
            s_lshr_b32 s12, s12, {2 * (n % 2)}
            s_add_u32 s12, s12, {n * 7919 + opt['jit']}
            s_mul_i32 s12, s12, 0x9e3779b1
            s_lshr_b32 s12, s12, 29
            s_sub_u32 s12, s12, 4
            s_cbranch_scc1 jit{n}_e''') + [Ins(f'jit{n}:')] + II(f's_sleep 40\ns_sub_u32 s12, s12, 1\ns_cbranch_scc0 jit{n}') + [Ins(f'jit{n}_e:')]
            if ret: return [x]
            for y in x:
                if y.kind == 'label': P.out.append(y)
                else: P(y)
            return []
        if stamps == 'all':
            if name not in ALL: return []
            n = ALL.index(name)
            x = [Ins('v_writelane_b32 v%d, s22, %d' % (77 + n // 64, n % 64)), Ins('s_memtime s[22:23]')]
            if ret: return [x]
            for y in x: P(y)
            return []
        if stamps and name in stamps:
            n = stamps.index(name)
            x = [Ins('s_mov_b32 s%d, s22' % (sTS + n)), Ins('s_memrealtime s[22:23]')]
            if ret: return [x]
            for y in x: P(y)
        return []
    def breg(pos, mt):
        i = pos * 4 + mt
        return ar(4 * i) if i < 64 else vr(XT + 4 * (i - 64))
    def emit_all(lst):
        for x in lst:
            if isinstance(x, list): emit_all(x)
            elif x.kind == 'label': P.out.append(x)
            else: P(x)
    lg = lambda x: x.bit_length() - 1
    ng = 16 // JX

    P('s_cmp_ge_u32 s2, 256')
    P('s_cbranch_scc1 K1_end')
    P('s_load_dwordx16 s[4:19], s[0:1], 0')
    P('s_load_dwordx4 s[20:23], s[0:1], 64')
    if stamps: P('s_memtime s[84:85]' if stamps == 'all' else 's_memrealtime s[84:85]')
    def code_touch():
        P('s_getpc_b64 %s' % sr(SL, 2))
        P.label('K1_pc')
        P(f'''s_mov_b32 s{SL+2}, code_end-K1_pc
        s_mov_b32 s{SL+3}, 0x00020000
        s_lshr_b32 s{SPN}, s2, 3
        s_and_b32 s{SPN}, s{SPN}, 7
        s_mul_i32 s{SPN}, s{SPN}, {NCODE*128}
        v_lshlrev_b32 v80, 7, v0
        v_mov_b32 v89, 0x{OOB:x}
        v_cmp_gt_u32 vcc, {NCODE}, v0
        v_cndmask_b32 v80, v89, v80, vcc
        buffer_load_dword v79, v80, {sr(SL)}, s{SPN} offen''')
    if opt.get('ct0'):
        P('s_getpc_b64 %s' % sr(SL, 2))
        P(f'''s_mov_b32 s{SL+2}, {opt['ct0']*128}
        s_mov_b32 s{SL+3}, 0x00020000
        v_lshlrev_b32 v80, 7, v0
        buffer_load_dword v79, v80, {sr(SL)}, 0 offen''')
    if not opt.get('ctlate', 0): code_touch()
    P(f'''s_lshr_b32 s{NN}, s2, 3
    v_mov_b32 v89, 0x{OOB:x}
    v_and_b32 v{vL}, 63, v0
    v_lshrrev_b32 v80, 6, v0
    v_readfirstlane_b32 s{Wv}, v80
    s_and_b32 s{T0}, s2, 7
    s_and_b32 s{J}, s{T0}, {ng-1}
    s_lshl_b32 s{J}, s{J}, {lg(JX)}
    s_and_b32 s{T2}, s{NN}, {JX-1}
    s_or_b32 s{J}, s{J}, s{T2}
    s_lshr_b32 s{I}, s{T0}, {lg(ng)}
    s_lshl_b32 s{I}, s{I}, {lg(32//JX)}
    s_lshr_b32 s{T2}, s{NN}, {lg(JX)}
    s_or_b32 s{I}, s{I}, s{T2}
    s_and_b32 s{RG}, s{Wv}, 1
    s_lshr_b32 s{FH}, s{Wv}, 1
    s_and_b32 s{E}, s{J}, 1
    s_lshr_b32 s{Pp}, s{J}, 1
    s_and_b32 s{ROT}, s{J}, {min(JX-1, 3)}
    v_lshrrev_b32 v82, 3, v{vL}
    v_and_b32 v83, 7, v{vL}
    v_mul_u32_u24 v100, 1152, v82
    v_lshl_add_u32 v100, v83, 4, v100
    s_lshl_b32 s{T0}, s{I}, 3
    s_lshl_b32 s{T1}, s{RG}, 2
    s_add_u32 s{T0}, s{T0}, s{T1}
    s_add_u32 s{T1}, s{T0}, s{FH}
    s_mul_i32 s{T1}, s{T1}, {16*1152}''')
    if JX == 2: P(f's_lshl_b32 s{ROT}, s{ROT}, 1')
    def xro(blk):
        P(f'''s_xor_b32 s{T2}, s{ROT}, {blk}
        s_and_b32 s{T3}, s{T2}, 1
        s_lshl_b32 s{T3}, s{T3}, 3
        s_and_b32 s{T2}, s{T2}, 2
        s_lshl_b32 s{T2}, s{T2}, 4
        s_or_b32 s{XRO+blk}, s{T2}, s{T3}''')
    xro(0)
    if opt.get('est'): P('s_memrealtime s[76:77]')
    P('s_waitcnt lgkmcnt(0)')
    if opt.get('est'): P('s_memrealtime s[78:79]')
    def srd(d, b, nbytes, shift=0):
        if shift:
            P('s_sub_u32 s%d, s%d, %d' % (d, b, shift))
            P('s_subb_u32 s%d, s%d, 0' % (d + 1, b + 1))
        else:
            P('s_mov_b32 s%d, s%d' % (d, b))
            P('s_mov_b32 s%d, s%d' % (d + 1, b + 1))
        P('s_mov_b32 s%d, 0x%x' % (d + 2, nbytes + shift))
        P('s_mov_b32 s%d, 0x00020000' % (d + 3))
    srd(SX, 4, 2048 * 1152)
    XR = 112
    xl = []
    def xload(blk):
        ld = [Ins('buffer_load_dwordx4 %s, v100, %s, s%d offen offset:%d' % (vr(XR + 36 * blk + 4 * l), sr(SX), OFF, 128 * l)) for l in range(9)]
        xl.append(ld)
        return [II(f's_mul_i32 s{OFF}, s{XRO+blk}, 1152\ns_add_u32 s{OFF}, s{OFF}, s{T1}')] + [[x] for x in ld]
    if opt.get('xt'):
        P(f'''s_lshl_b32 s{T2}, s{I}, 4
        s_add_u32 s{T2}, s{T2}, s{J}
        s_lshl_b32 s{T2}, s{T2}, 2
        s_add_u32 s{T2}, s{T2}, s{Wv}
        s_mul_i32 s{T2}, s{T2}, 2304
        v_min_u32 v80, 17, v{vL}
        v_lshlrev_b32 v80, 7, v80
        buffer_load_dword v79, v80, {sr(SX)}, s{T2} offen''')
    emit_all(xload(0))
    if opt.get('ctlate', 0): code_touch()
    if opt.get('est'): P('s_memrealtime s[80:81]')
    if opt.get('est') == 2:
        P('s_waitcnt vmcnt(8)')
        P('s_memrealtime s[82:83]')
        P('s_waitcnt vmcnt(0)')
        P('s_memrealtime s[86:87]')
    for blk in range(1, 4): xro(blk)
    srd(SQ, 6, 576 * 3456, shift=2048)
    RS = 36 // JX
    NT = ' nt' if opt.get('nt') else ''
    P(f'''s_and_b32 s{J0}, s{J}, {16-JX}
    s_and_b32 s{SH}, s2, 7
    s_lshr_b32 s{SH}, s{SH}, {lg(ng)}
    s_lshl_b32 s{SH}, s{SH}, 5
    s_add_u32 s{SH}, s{SH}, s{NN}
    v_lshrrev_b32 v86, {lg(2*JX)}, v0
    v_and_b32 v87, {2*JX-1}, v0
    v_mul_u32_u24 v88, 3456, v86
    v_lshl_add_u32 v87, v87, 7, v88
    v_cmp_gt_u32 vcc, {RS}, v86
    v_cndmask_b32 v87, v89, v87, vcc
    s_mul_i32 s{ST}, s{SH}, {RS*3456}
    s_lshl_b32 s{T2}, s{J0}, 8
    s_add_u32 s{BL2}, s{ST}, s{T2}
    v_mov_b32 v104, v87''')
    qtouch = [Ins(f'buffer_load_dword v79, v104, {sr(SQ)}, s{BL2} offen offset:2048' + NT)]

    srd(SG, 12, 576 * 9216)
    srd(SU, 14, 576 * 9216, shift=2048)
    srd(SD, 16, 4608 * 1152, shift=2048)
    srd(SW, 22, WSB)
    srd(SB, 20, 256)
    P(f's_mov_b64 {sr(OUTP,2)}, s[18:19]')
    P(f'''s_cmp_ge_u32 s{Wv}, 2
    s_cselect_b32 s{SL}, s14, s12
    s_cselect_b32 s{SL+1}, s15, s13
    s_mov_b32 s{SL+2}, 0x{576*9216:x}
    s_mov_b32 s{SL+3}, 0x00020000
    s_mul_i32 s{PFP}, s{SH}, {RS*9216}
    s_mul_i32 s{T2}, s{RG}, {1152 if JX == 4 else 9*9216}
    s_add_u32 s{PFP}, s{PFP}, s{T2}
    s_mul_i32 s{T2}, s{J0}, 576
    s_add_u32 s{PFP}, s{PFP}, s{T2}''')
    if stamps: P('s_mov_b64 s[22:23], s[84:85]')
    P(f'''s_lshl_b32 s{W4096}, s{Wv}, 12
    s_lshl_b32 s{QL}, s{J}, 1
    s_add_u32 s{QL}, s{QL}, 4
    s_sub_u32 s{T2}, s{QL}, 8
    s_cmp_ge_u32 s{J}, {4*SGR}
    s_cselect_b32 s{QL}, s{T2}, s{QL}
    s_and_b32 s{T2}, s{J}, 3
    s_cmp_eq_u32 s{J0}, {4*SGR}
    s_cselect_b32 s{QL}, s{T2}, s{QL}
    s_lshl_b32 s{BQ}, s{QL}, 7
    s_mul_i32 s{T2}, s{Wv}, {16*3456}
    s_add_u32 s{BQ}, s{BQ}, s{T2}
    s_mov_b32 s{ONE2}, 0x3f803f80
    s_mov_b32 s{LO}, 0x00003f80
    s_mov_b32 s{HI}, 0x3f800000
    v_lshrrev_b32 v84, 4, v{vL}
    v_and_b32 v85, 15, v{vL}
    v_cmp_eq_u32 vcc, 0, v0
    v_cndmask_b32 v{vFL}, v89, 0, vcc
    v_lshlrev_b32 v86, 1, v82
    v_and_b32 v86, 4, v86
    v_xor_b32 v86, v83, v86
    v_mul_u32_u24 v87, 9216, v82
    v_lshl_add_u32 v{vDP[0]}, v86, 4, v87
    v_mul_u32_u24 v88, 3456, v82
    v_lshl_add_u32 v90, v86, 4, v88
    v_add_u32 v{vDQ[0]}, 2048, v90
    v_add_u32 v{vDQ[2]}, 128, v90
    v_xor_b32 v86, 2, v86
    v_lshl_add_u32 v{vDP[1]}, v86, 4, v87
    v_add_u32 v{vDP[1]}, {8*9216-1024}, v{vDP[1]}
    v_lshl_add_u32 v90, v86, 4, v88
    v_add_u32 v{vDQ[1]}, {8*3456-1024+2048}, v90
    v_add_u32 v{vDQ[3]}, {8*3456-1024+128}, v90
    s_sub_u32 s{T2}, s{QL}, 4
    s_cmp_ge_u32 s{T2}, 22
    s_cselect_b32 s{QC}, 0x{OOB:x}, 0
    v_add_u32 v{vDQ[2]}, s{QC}, v{vDQ[2]}
    v_add_u32 v{vDQ[3]}, s{QC}, v{vDQ[3]}
    s_lshl_b32 s{SIG}, s{E}, 1
    s_sub_u32 s{SIG}, 1, s{SIG}
    s_mul_i32 s{BP}, s{Pp}, 1152
    s_lshl_b32 s{T3}, s{E}, 10
    s_add_u32 s{BP}, s{BP}, s{T3}
    s_mul_i32 s{T3}, s{Wv}, {16*9216}
    s_add_u32 s{BP}, s{BP}, s{T3}
    v_and_b32 v87, 3, v{vL}
    v_lshrrev_b32 v86, 2, v85
    v_and_b32 v88, 1, v84
    v_lshrrev_b32 v92, 1, v84
    v_lshlrev_b32 v90, 12, v92
    v_lshl_add_u32 v90, v88, 10, v90
    v_lshl_add_u32 v90, v86, 7, v90
    v_lshrrev_b32 v91, 1, v86
    v_xor_b32 v91, s{FH}, v91
    v_lshl_add_u32 v90, v91, 6, v90
    v_lshl_add_u32 v90, v88, 5, v90
    v_lshl_add_u32 v{vTQ[0]}, v87, 3, v90
    v_xor_b32 v{vTQ[1]}, 32, v{vTQ[0]}
    s_lshl_b32 s{T2}, s{E}, 6
    v_xor_b32 v{vTP[0]}, s{T2}, v{vTQ[0]}
    v_xor_b32 v{vTP[1]}, s{T2}, v{vTQ[1]}
    s_mul_i32 s{ST}, s{RG}, {2*18432}
    s_add_u32 s{ST}, s{ST}, {XB}
    v_xor_b32 v90, v85, v84
    v_lshlrev_b32 v90, 4, v90
    v_lshl_add_u32 v90, v84, 8, v90
    v_add_u32 v65, s{ST}, v90
    v_xor_b32 v66, 64, v65
    s_mul_i32 s{T2}, s{FH}, 18432
    s_add_u32 s{ST}, s{ST}, s{T2}
    s_and_b32 s{T2}, s{XRO}, 8
    s_lshl_b32 s{T2}, s{T2}, 4
    s_add_u32 s{ST}, s{ST}, s{T2}
    v_xor_b32 v90, v82, v83
    v_lshlrev_b32 v90, 4, v90
    v_lshl_add_u32 v90, v83, 8, v90
    v_add_u32 v64, s{ST}, v90
    v_xor_b32 v76, 128, v64
    s_lshl_b32 s{T2}, s{RG}, 6
    s_lshl_b32 s{T3}, s{FH}, 4
    s_add_u32 s{T2}, s{T2}, s{T3}
    v_add_u32 v67, s{T2}, v82''')
    def G(text): return [II(text)]
    P(f'''s_lshl_b32 s{T2}, s{I}, 4
    s_add_u32 s{T2}, s{T2}, s{J}
    s_lshl_b32 s{MYF}, s{T2}, 7
    s_add_u32 s{MYF}, s{MYF}, 0x{FOFF:x}
    s_lshl_b32 s{DB}, s{I}, 2
    s_lshl_b32 s{T2}, 1, s{J}
    v_mov_b32 v105, s{T2}
    v_mov_b32 v86, 0''')
    freset = P(f'buffer_store_dword v86, v{vFL}, {sr(SW)}, s{MYF} offen sc1')
    fatom = Ins(f'buffer_atomic_or v105, v{vFL}, {sr(SB)}, s{DB} offen offset:8', needs=[freset])
    late0 = II(f'''s_mul_i32 s{W3072}, s{Wv}, 3072
    s_lshl_b32 s{T2}, s{I}, 4
    s_add_u32 s{T2}, s{T2}, s{J}
    v_mov_b32 v207, 0
    s_xor_b32 s{PF}, s{MYF}, 128
    s_mul_i32 s{HS}, s{T2}, {9*8192}
    s_xor_b32 s{T2}, s{T2}, 1
    s_mul_i32 s{HL}, s{T2}, {9*8192}
    s_lshl_b32 s{T2}, s{RG}, 12
    s_add_u32 s{HS}, s{HS}, s{T2}
    s_lshl_b32 s{T3}, s{FH}, 11
    s_add_u32 s{HLN}, s{HS}, s{T3}
    s_add_u32 s{HLN}, s{HLN}, {8*8192}
    s_add_u32 s{HL}, s{HL}, s{T2}
    s_lshl_b32 s{T3}, s{FH}, 13
    s_add_u32 s{HS}, s{HS}, s{T3}
    s_mul_i32 s{BL1}, s{Pp}, 1152
    s_lshl_b32 s{T2}, s{E}, 6
    s_add_u32 s{T2}, s{T2}, 512
    s_add_u32 s{BL1}, s{BL1}, s{T2}
    s_mul_i32 s{T3}, s{RG}, {48*9216}
    s_add_u32 s{BL1}, s{BL1}, s{T3}''')
    late0b = II(f'''s_lshl_b32 s{T2}, s{RG}, 12
    s_lshl_b32 s{T3}, s{I}, 3
    s_add_u32 s{T3}, s{T3}, s{Pp}
    s_mul_i32 s{PS}, s{T3}, {18*8192}
    s_add_u32 s{PS}, s{PS}, s{T2}
    s_add_u32 s{PS}, s{PS}, 0x{POFF:x}
    s_sub_u32 s{T3}, 9, s{E}
    s_lshl_b32 s{T3}, s{T3}, 13
    s_add_u32 s{PLN}, s{PS}, s{T3}
    s_lshl_b32 s{T3}, s{FH}, 11
    s_xor_b32 s{T3}, s{T3}, s{ROT}
    s_add_u32 s{PLN}, s{PLN}, s{T3}
    s_add_u32 s{PS}, s{PS}, s{ROT}
    s_mul_i32 s{T3}, s{E}, 10
    s_add_u32 s{T3}, s{T3}, s{FH}
    s_sub_u32 s{T3}, 17, s{T3}
    s_lshl_b32 s{T3}, s{T3}, 13
    s_add_u32 s{PS}, s{PS}, s{T3}
    s_lshl_b32 s{T2}, s{E}, 6
    s_add_u32 s{T2}, s{T2}, 512
    s_mul_i32 s{T1}, s{Pp}, {576*1152}
    s_mul_i32 s{T3}, s{E}, {17*32*1152}
    s_add_u32 s{T1}, s{T1}, s{T3}
    s_mul_i32 s{BD}, s{E}, 640
    s_add_u32 s{BD}, s{BD}, s{T1}
    s_mul_i32 s{T3}, s{FH}, s{SIG}
    s_mul_i32 s{T3}, s{T3}, {32*1152}
    s_add_u32 s{BD}, s{BD}, s{T3}
    s_mul_i32 s{T3}, s{RG}, {16*1152}
    s_add_u32 s{BD}, s{BD}, s{T3}
    s_add_u32 s{T1}, s{T1}, s{T2}''')
    for t in range(3):
        late0b += II(f'''s_mul_i32 s{T2}, s{Wv}, 3
        s_add_u32 s{T2}, s{T2}, {t}
        s_lshr_b32 s{T3}, s{T2}, 1
        s_mul_i32 s{T3}, s{T3}, s{SIG}
        s_mul_i32 s{T3}, s{T3}, {32*1152}
        s_add_u32 s{BL2+t}, s{T1}, s{T3}
        s_and_b32 s{T2}, s{T2}, 1
        s_mul_i32 s{T2}, s{T2}, {16*1152}
        s_add_u32 s{BL2+t}, s{BL2+t}, s{T2}
        s_add_u32 s{BL2+t}, s{BL2+t}, {2048-1024*t}''')
    late0 += II(f'''s_mul_i32 s{T2}, s{T0}, {BLK//2}
    s_lshl_b32 s{T3}, s{QL}, 12
    s_add_u32 s{T2}, s{T2}, s{T3}
    s_lshl_b32 s{T3}, s{FH}, 11
    s_add_u32 s{T2}, s{T2}, s{T3}
    s_add_u32 s{T2}, s{T2}, 0x{KOFF:x}
    s_and_b32 s{ROT}, s{ROT}, 2
    s_mul_i32 s{T3}, s{ROT}, {BLK//2}
    s_add_u32 s{T2}, s{T2}, s{T3}
    s_sub_u32 s{QM+2}, 1, s{ROT}
    s_mul_i32 s{QM+2}, s{QM+2}, {BLK}
    s_lshl_b32 s{ROT}, s{ROT}, 10
    s_add_u32 s{QC}, s{QC}, 4096
    s_mov_b32 s{QM}, s{T2}''')
    late0b += II(f'''s_lshl_b32 s{T2}, s{FH}, 1
    s_add_u32 s{T2}, s{T2}, s{T0}
    s_mul_i32 s{OB}, s{T2}, 18432
    s_lshl_b32 s{T2}, s{J}, 10
    s_add_u32 s{OB}, s{OB}, s{T2}
    s_add_u32 s{OB}, s{OB}, 0x{OOFF:x}
    s_mul_i32 s{OR}, s{I}, {8*18432}
    s_lshl_b32 s{T2}, s{J}, 7
    s_add_u32 s{OR}, s{OR}, s{T2}
    s_add_u32 s{OR}, s{OR}, 0x{OOFF+16384:x}''')
    late0b += G(f's_cmp_eq_u32 s{Wv}, 0\ns_cselect_b32 s{OR}, s{OR}, 0x{OOB:x}')
    late0b += II(f'''s_mov_b32 s{C}, 0x{f2u(SCALE):x}''')
    late0b += G(f's_cmp_lt_u32 s{I}, 2\ns_cselect_b32 s{N0}, 0xffff, 0') + G(f's_cmp_lt_u32 s{I}, 1\ns_cselect_b32 s{N1}, 0xffff, 0')
    late0 += II(f'''s_mul_i32 s{PFD}, s{J0}, {288*1152}
    s_mul_i32 s{T2}, s{SH}, {162*128}
    s_add_u32 s{PFD}, s{PFD}, s{T2}
    s_mul_i32 s{T2}, s{Wv}, {41*128}
    s_add_u32 s{PFD}, s{PFD}, s{T2}''')
    late0 += II(f'''v_lshlrev_b32 v{vL16}, 4, v{vL}
    v_lshrrev_b32 v182, 3, v{vL}
    v_and_b32 v183, 7, v{vL}
    v_lshrrev_b32 v184, 4, v{vL}
    v_and_b32 v185, 15, v{vL}
    v_and_b32 v186, 6, v182
    v_xor_b32 v186, v183, v186
    v_mul_u32_u24 v187, 1152, v182
    v_lshl_add_u32 v187, v186, 4, v187''')
    for t in range(4):
        late0 += II('v_add_u32 v%d, %d, v187' % (vDD[t], (t & 1) * (8 * 1152 - 1024) + (t >> 1) * (128 - 2048) + 2048))
    late0 += II(f'''v_lshrrev_b32 v186, 2, v{vL}
    v_and_b32 v187, 3, v{vL}
    v_and_b32 v188, 2, v184
    v_xor_b32 v188, v187, v188
    v_mul_u32_u24 v190, 9216, v186
    v_lshl_add_u32 v{vDL1}, v188, 4, v190
    v_and_b32 v188, 1, v184
    v_lshlrev_b32 v188, 1, v188
    v_xor_b32 v188, v187, v188
    v_mul_u32_u24 v190, 1152, v186
    v_lshl_add_u32 v{vDL2}, v188, 4, v190
    v_lshrrev_b32 v186, 2, v185
    v_and_b32 v188, 1, v184
    v_lshrrev_b32 v192, 1, v184
    v_lshl_add_u32 v190, v184, 3, v186
    v_lshlrev_b32 v190, 6, v190
    v_xor_b32 v191, s{FH}, v188
    v_lshl_add_u32 v190, v191, 5, v190
    v_lshl_add_u32 v{vTL1}, v187, 3, v190
    v_lshl_add_u32 v190, v184, 2, v186
    v_lshlrev_b32 v190, 6, v190
    v_lshl_add_u32 v190, v191, 5, v190
    v_lshl_add_u32 v{vTL2}, v187, 3, v190
    v_lshl_add_u32 v190, v188, 2, v186
    v_lshrrev_b32 v191, 1, v190
    s_lshl_b32 s{T2}, s{FH}, 1
    v_xor_b32 v191, s{T2}, v191
    v_lshlrev_b32 v190, 7, v190
    v_lshl_add_u32 v190, v192, 10, v190
    v_lshl_add_u32 v190, v191, 5, v190
    v_lshl_add_u32 v{vTD[0]}, v187, 3, v190
    v_xor_b32 v{vTD[1]}, 32, v{vTD[0]}
    v_mov_b32 v189, 0x{OOB:x}
    v_cmp_eq_u32 vcc, 0, v184
    v_lshlrev_b32 v190, 2, v184
    v_sub_u32 v{vDG}, v190, v185
    v_cndmask_b32 v{vOR}, v189, v{vL16}, vcc
    s_lshl_b32 s{T2}, s{RG}, 12
    v_add_u32 v{vHW}, s{T2}, v{vL16}''')
    late0 += G(f's_cmp_ge_u32 s{QL}, 18\ns_cselect_b64 vcc, -1, 0')
    late0 += II(f'''v_lshlrev_b32 v191, 6, v185
    v_lshl_add_u32 v191, v184, 4, v191
    v_cndmask_b32 v{vQS[0]}, v{vL16}, v191, vcc
    v_lshlrev_b32 v190, 4, v185
    v_add_u32 v190, {RT4}, v190
    v_lshlrev_b32 v191, 4, v184
    v_add_u32 v191, {RTB}, v191
    v_cndmask_b32 v190, v190, v191, vcc
    s_lshl_b32 s{T2}, s{RG}, 10
    v_add_u32 v{vRS}, s{T2}, v190''')

    slots = []
    def dma4(srds, voffs, sbase, add, sadd=0, bump=None, pre=''):
        def f(rp):
            if bump is not None:
                g = [II((bump + '\n' if bump else '') + f's_add_u32 s{OFF}, s{sbase}, {add}\ns_add_u32 m0, s{W4096}, {rp*SLOT}')]
            elif sadd and not add:
                g = [II(pre + f's_mul_i32 s{OFF}, s{SIG}, {sadd}\ns_add_u32 s{OFF}, s{OFF}, s{sbase}\ns_add_u32 m0, s{W4096}, {rp*SLOT}')]
            elif sadd:
                g = [II(f's_mul_i32 s{OFF}, s{SIG}, {sadd}\ns_add_u32 s{OFF}, s{OFF}, s{sbase}'),
                     II(f's_add_u32 s{OFF}, s{OFF}, {add}\ns_add_u32 m0, s{W4096}, {rp*SLOT}')]
            else:
                g = [II(f's_add_u32 s{OFF}, s{sbase}, {add}\ns_add_u32 m0, s{W4096}, {rp*SLOT}')]
            for t in range(4):
                g.append([Ins('buffer_load_dwordx4 v%d, %s, s%d offen offset:%d lds' % (voffs[t], sr(srds[t]), OFF, 1024 * t))])
            return g
        return f
    def dma_l1(s):
        def f(rp):
            g = []
            for t in range(3):
                pre = II(f's_add_u32 s{OFF}, s{BL1}, {s*96*9216 + t*(16*9216-1024)}')
                if t == 0: pre += II(f's_add_u32 m0, s{W3072}, {rp*SLOT}')
                g.append(pre)
                g.append(II(f'buffer_load_dwordx4 v{vDL1}, {sr(SL)}, s{OFF} offen offset:{1024*t} lds'))
            return g
        return f
    def dma_l2(s):
        def f(rp):
            g = [II(f's_add_u32 m0, s{W3072}, {rp*SLOT}')]
            for t in range(3):
                g.append(II(f's_mul_i32 s{OFF}, s{SIG}, {s*192*1152}\ns_add_u32 s{OFF}, s{OFF}, s{BL2+t}'))
                g.append(II(f'buffer_load_dwordx4 v{vDL2}, {sr(SD)}, s{OFF} offen offset:{1024*t} lds'))
            return g
        return f
    def regroup(gs):
        if not opt.get('rg', 1): return gs
        fl = [f for g in gs for f in g]
        return [fl[n:n + 2] for n in range(0, 6, 2)]
    def accf(base, tile): return lambda mt: base + (tile * 4 + mt) * 4
    def bf(pos): return lambda mt: breg(pos, mt)
    def pairlike(vT, acc, s):
        return [[Frag(vT[ft], ks * 8192 + m * 2048, ks * 8192 + m * 2048 + 512, accf(acc, 2 * m + ft), bf(2 * s + ks), s == 0 and ks == 0) for ks in range(2)] for m in range(2) for ft in range(2)]
    for s in range(9):
        slots.append(Slot(pairlike(vTQ, ACCA, s), dma4([SQ] * 4, vDQ, BQ, s * 64 * 3456)))
    PACC = [ACCB, ACCB, ACCA, ACCB]
    def pstep(q):
        for s in range(9):
            slots.append(Slot(pairlike(vTP, PACC[q], s), dma4([SG, SG, SU, SU], [vDP[0], vDP[1], vDP[0], vDP[1]], BP, s * 64 * 9216, bump=(f's_lshl_b32 s{OFF}, s{SIG}, 7\ns_add_u32 s{BP}, s{BP}, s{OFF}' if s == 0 and q else ''))))
    pstep(0)
    for s in range(6):
        gs = [[Frag(vTL1, m * 6144 + ks * 2048, m * 6144 + ks * 2048 + 256, accf(ACCA, m), bf(3 * s + ks), s == 0 and ks == 0) for ks in range(3)] for m in range(2)]
        slots.append(Slot(regroup(gs), dma_l1(s)))
    pstep(1); pstep(2); pstep(3)
    NSEG1 = len(slots)
    hpos = {}
    for n, k in enumerate([6, 7, 11, 10]): hpos[k] = n
    for n, k in enumerate([0, 1, 2, 3, 4, 5, 16, 17, 14, 15, 12, 13, 9, 8]): hpos[k] = 4 + n
    lorder = [8, 7, 6, 0, 1, 2, 4, 3, 5]
    def dstep(q):
        acc = ACCA
        for n, ln in enumerate(lorder):
            gs = [[Frag(vTD[ft], ks * 8192 + c * 2048, ks * 8192 + c * 2048 + 4096, accf(acc, 2 * c + ft), bf(hpos[2 * ln + ks]), n == 0 and ks == 0) for ks in range(2)] for c in range(2) for ft in range(2)]
            slots.append(Slot(gs, dma4([SD] * 4, vDD, BD, 0, ln * 64 * 1152, pre=(f's_add_u32 s{BD}, s{BD}, 256\n' if q and n == 0 else ''))))
    dstep(0)
    for s in range(3):
        gs = [[Frag(vTL2, ks * 2048, ks * 2048 + 1024, accf(SP, 0), bf(hpos[6 * s + ks]), s == 0 and ks == 0) for ks in range(3 * hg, 3 * hg + 3)] for hg in range(2)]
        slots.append(Slot(regroup(gs), dma_l2(s)))
    n0 = len(slots); dstep(1)
    for sl in slots[n0:]:
        for g in sl.groups:
            for f in g: f.acc = (lambda old: (lambda mt: old(mt) + (ACCB - ACCA)))(f.acc)
    NS = len(slots)
    vWD = [3, 4, 5, 6]; vWD2 = 8; vWT = [9, 10, 11, 12]; vPL = 13
    TL, TP, TX, TM, TV, OL, FB = 87, 88, 89, 90, 91, 92, 93
    for s in range(4): slots.append(Slot([], dma4([SG] * 4, vWD, TL, s * 4 * 36 * 1152)))
    def dma_w2(rp):
        return [II(f's_mul_i32 s{OFF}, s{Wv}, {(144-36)*1152}\ns_add_u32 s{OFF}, s{OFF}, s{TL}\ns_lshr_b32 m0, s{W4096}, 1\ns_add_u32 m0, m0, {rp*SLOT}'),
                II(f'buffer_load_dwordx4 v{vWD2}, {sr(SG)}, s{OFF} offen lds'), II(f's_add_u32 s{OFF}, s{OFF}, {72*1152-1024}'),
                II(f'buffer_load_dwordx4 v{vWD2}, {sr(SG)}, s{OFF} offen offset:1024 lds')]
    slots.append(Slot([], dma_w2))
    NSX = len(slots)
    phys = {n: n for n in range(9)}; load_at = {}; hphys = {}
    nxt = 9
    divert = {18: 0, 33: 1, 42: 2, 50: 3}
    for n in range(2, NSEG1):
        if n in divert: hphys[divert[n]] = phys[n - 2]
        else: phys[nxt] = phys[n - 2]; load_at[n] = nxt; nxt += 1
    att_loads = []
    for f in [phys[NSEG1 - 2], phys[NSEG1 - 1], hphys[0], hphys[1], hphys[2]]:
        phys[nxt] = f; att_loads.append(nxt); nxt += 1
    extra_loads = {}
    for n in range(NSEG1 + 2, NS):
        q = n - (NSEG1 + 2)
        if q == 1: phys[nxt] = hphys[3]; extra_loads[n] = [nxt]; nxt += 1
        if nxt < NSX: phys[nxt] = phys[n - 2]; load_at[n] = nxt; nxt += 1
    assert nxt == NSX
    def dma_groups(n):
        g = slots[n].dma(phys[n])
        slots[n].loads = [x for grp in g for x in grp if x.kind == 'vmem']
        return g

    SV = opt.get('sv', 4.75)
    loud = set(); svc = {}
    def T(text, q=56):
        x = Ins(text); loud.add(id(x)); svc[id(x)] = q; return x
    VLS = opt.get('vls', [[0, 8, 4, 1, 7], [2, 6, 3, 5]])
    def pf_gu(VL, t0, msk, q=0):
        nl = len(VL); tab = sum(l << (4 * n) for n, l in enumerate(VL)); a_, b_, c_ = t0, t0 + 1, t0 + 2
        return II(f'''v_mul_u32_u24 v{b_}, {65536//nl+1}, v{vL}
        v_lshrrev_b32 v{b_}, 16, v{b_}
        v_cmp_gt_u32 {msk}, 9, v{b_}
        v_mul_u32_u24 v{a_}, {4*nl}, v{b_}
        v_lshlrev_b32 v{c_}, 2, v{vL}
        v_sub_u32 v{a_}, v{c_}, v{a_}
        v_mov_b32 v{c_}, 0x{tab:x}
        v_bfe_u32 v{a_}, v{c_}, v{a_}, 4
        v_mul_u32_u24 v{b_}, 9216, v{b_}
        v_lshl_add_u32 v{b_}, v{a_}, 7, v{b_}
        v_mov_b32 v{a_}, 0x{OOB:x}
        v_cndmask_b32 v{b_}, v{a_}, v{b_}, {msk}''') + [T(f'buffer_load_dword v0, v{b_}, {sr(SL)}, s{PFP} offen' + NT, q)]
    def walker():
        P('s_mov_b64 exec, 0')
        for w in range(3):
            P(f's_cmp_eq_u32 s{Wv}, {w}')
            P(f's_cbranch_scc1 LAND{w}')
        P('s_branch LAND3')
        P.label('WALK_END')
        P('s_mov_b64 exec, -1')
    if opt.get('walk', 0) == 1: walker()
    emit_all(xload(1))
    stamp('setup')
    if opt.get('est'):
        P('s_waitcnt lgkmcnt(0)')
        for n, r in enumerate((76, 78, 80, 82, 86)): P('s_mov_b32 s%d, s%d' % (sTS + 5 + n, r))

    NPRE = opt.get('npre', 5)
    GU2 = 0
    gA, gB = pf_gu(VLS[0], 106, 's[78:79]'), pf_gu(VLS[1], 106, 's[78:79]')
    if opt.get('tlb'):
        qtouch = qtouch + II(f'''v_lshlrev_b32 v106, 21, v0
        v_min_u32 v107, 24, v0
        v_lshlrev_b32 v107, 21, v107
        buffer_load_dword v0, v107, {sr(SW)}, 0 offen sc1
        buffer_load_dword v79, v106, {sr(SD)}, 0 offen offset:2048
        buffer_load_dword v79, v106, {sr(SG)}, 0 offen
        buffer_load_dword v79, v106, {sr(SU)}, 0 offen offset:2048
        s_mov_b32 s80, s{OUTP}
        s_mov_b32 s81, s{OUTP+1}
        s_mov_b32 s82, 0x{2048*1152:x}
        s_mov_b32 s83, 0x00020000
        buffer_load_dword v79, v106, s[80:83], 0 offen sc1
        s_mov_b32 s80, s8
        s_mov_b32 s81, s9
        s_mov_b32 s82, 0x{576*1152:x}
        buffer_load_dword v79, v106, s[80:83], 0 offen''')
    dm0 = [g for n in range(NPRE) for g in dma_groups(n)]
    if opt.get('so', 0) == 0:
        bg = [('GAP', 30)] + xload(2) + xload(3) + [qtouch, ('GAP', 150)] + dm0 + [gA, gB, [fatom]]
    elif opt.get('so', 0) == 3:
        bg = [('GAP', 30)] + xload(2) + xload(3) + [qtouch, gA, [fatom], ('GAP', opt.get('ga', 330))] + dm0
    elif opt.get('so', 0) == 4:
        bg = [('GAP', 30)] + xload(2) + xload(3) + [qtouch, gA, ('GAP', opt.get('ga', 330))] + dm0 + [gB, [fatom]]
    elif opt.get('so', 0) == 5:
        sp = lambda l: [y for x in l for y in ([x, ('GAP', opt['xs'])] if opt.get('xs') and x[0].kind == 'vmem' else [x])]
        qa_ = lambda n: [qtouch] if opt.get('qt') == n else []
        bg = qa_(0) + [('GAP', opt.get('gap0', 30))] + sp(xload(2)) + qa_(1) + sp(xload(3)) + qa_(2) + [('GAP', opt.get('gap1', 150))] + dm0 + [gA] + ([gB] if opt.get('gb') else []) + [[fatom]]
    elif opt.get('so', 0) == 1:
        bg = [('GAP', opt.get('gap0', 30)), qtouch, gA, ('GAP', opt.get('ga', 200))] + xload(2) + xload(3) + dm0 + [gB, [fatom]]
    else:
        bg = [('GAP', opt.get('gap0', 30))] + xload(2) + [qtouch, gA, ('GAP', opt.get('ga', 300))] + xload(3) + dm0 + [gB, [fatom]]
    cnt = [0]; lq = []; lcnt = [0, 10]
    EVERY = opt.get('every', 8)
    def V(t, needs=()):
        r = P(Ins(t, needs))
        cnt[0] += 1
        if bg and cnt[0] >= EVERY:
            cnt[0] = 0
            while bg:
                g = bg.pop(0)
                if isinstance(g, tuple): cnt[0] = -g[1]; break
                emit_all(g)
                if any(x.kind == 'vmem' for x in g): break
        lcnt[0] += 1
        if lq and lcnt[0] >= lcnt[1]:
            lcnt[0] = 0; emit_all([lq.pop(0)])
        return r
    def reduce8(r):
        V('v_add_f32_dpp v%d, v%d, v%d quad_perm:[1,0,3,2] row_mask:0xf bank_mask:0xf' % (r, r, r))
        V('v_add_f32_dpp v%d, v%d, v%d quad_perm:[2,3,0,1] row_mask:0xf bank_mask:0xf' % (r, r, r))
        V('v_add_f32_dpp v%d, v%d, v%d row_half_mirror row_mask:0xf bank_mask:0xf' % (r, r, r))
    KEEP = [vPFP, vPFS, vTB, vRS]
    def ln_block(blk, defer=False):
        X = XR + 36 * blk
        wa = [64, 76][blk & 1]
        for n in range(36):
            if n < 2: V('v_dot2_f32_bf16 v%d, v%d, s%d, 0' % (68 + n, X + n, ONE2), needs=[xl[blk][0]])
            else: V('v_dot2_f32_bf16 v%d, v%d, s%d, v%d' % (68 + n % 2, X + n, ONE2, 68 + n % 2), needs=[xl[blk][n // 4]])
        stamp('sum%d' % blk)
        V('v_add_f32 v68, v68, v69')
        reduce8(68)
        V('v_mul_f32 v68, 0x%x, v68' % f2u(-1.0 / 576))
        wr = []
        LAG = 2
        for n in range(36 + LAG + 1):
            if n < 36:
                t = 80 + 2 * (n % 8)
                V('v_dot2_f32_bf16 v%d, v%d, s%d, v68' % (t, X + n, LO))
                V('v_dot2_f32_bf16 v%d, v%d, s%d, v68' % (t + 1, X + n, HI))
            m = n - LAG
            if 0 <= m < 36:
                t = 80 + 2 * (m % 8)
                V('v_cvt_pk_bf16_f32 v%d, v%d, v%d' % (X + m, t, t + 1))
            m = n - LAG - 1
            if 0 <= m < 36:
                V('v_dot2_f32_bf16 v%d, v%d, v%d, %s' % (KEEP[blk], X + m, X + m, '0' if m == 0 else 'v%d' % KEEP[blk]))
                if m % 4 == 3:
                    w = Ins('ds_write_b128 v%d, %s offset:%d' % (wa, vr(X + m - 3), (m // 4) * 2048)); wr.append(w)
                    if not defer: P(w)
        return wr, list(wr)
    lnfin = []
    for pat in ('quad_perm:[1,0,3,2]', 'quad_perm:[2,3,0,1]', 'row_half_mirror'):
        lnfin += [Ins(f'v_add_f32_dpp v{r}, v{r}, v{r} {pat} row_mask:0xf bank_mask:0xf') for r in KEEP]
    lnfin += II(f'''s_mov_b32 s76, 0xaaaaaaaa
    s_mov_b32 s77, 0xaaaaaaaa
    v_cndmask_b32 v{KEEP[0]}, v{KEEP[0]}, v{KEEP[1]}, s[76:77]
    v_cndmask_b32 v{KEEP[2]}, v{KEEP[2]}, v{KEEP[3]}, s[76:77]
    s_mov_b32 s76, 0xcccccccc
    s_mov_b32 s77, 0xcccccccc
    v_mov_b32 v181, 0x{f2u(1e-5):x}
    v_cndmask_b32 v{KEEP[0]}, v{KEEP[0]}, v{KEEP[2]}, s[76:77]
    v_fmac_f32 v181, 0x{f2u(1.0 / 576):x}, v{KEEP[0]}
    v_rsq_f32 v176, v181
    v_lshlrev_b32 v180, 3, v{vL}
    v_xor_b32 v180, s{XRO}, v180
    v_and_b32 v180, 8, v180
    v_add_u32 v180, v180, v67
    v_and_b32 v181, 2, v{vL}
    v_lshl_add_u32 v180, v181, 4, v180
    v_mov_b32 v177, v176
    v_mov_b32 v178, v176
    v_mov_b32 v179, v176
    v_and_b32 v181, 0x70, v180
    v_mul_u32_u24 v181, 12, v181
    v_lshl_add_u32 v181, v180, 2, v181
    v_add_u32 v181, {RTB}, v181
    v_lshlrev_b32 v193, 2, v180
    v_add_u32 v193, {RTC}, v193
    v_lshlrev_b32 v180, 4, v180
    v_add_u32 v180, {RT4}, v180''')
    lnw = [Ins('ds_write_b128 v180, v[176:179]', cost=2), Ins('ds_write_b32 v181, v176'), Ins('ds_write_b32 v193, v176')]
    lnfin += lnw
    slow = []
    nlab = [0]
    def alt_site(inline, other):
        nlab[0] += 1; n = nlab[0]
        slow.append(f'alt{n}:\n' + ''.join('    %s\n' % t for t in other) + f'    s_branch alt{n}_e\n')
        return [Ins(f's_cbranch_vccz alt{n}')] + inline + [Ins(f'alt{n}_e:')]
    def xn_reads(rho):
        return [Ins('ds_read_b128 %s, v%d offset:%d' % (breg(ks, 2 * rho + t), 65 + (ks & 1), t * 18432 + ks * 1024)) for ks in range(18) for t in range(2)]
    w0, _ = ln_block(0); w1, _ = ln_block(1)
    if opt.get('walk', 0) == 2: walker()
    stamp('ln01')
    P(Ins('s_barrier', needs=w0 + w1))
    r0 = xn_reads(0)
    lq += [r0[n:n + 2] for n in range(0, 36, 2)]; lcnt[1] = 8
    w2, d2 = ln_block(2, defer=True)
    emit_all(lq); lq.clear()
    P(Ins('s_barrier', needs=r0))
    lq += d2; lcnt[1] = 12
    w3, _ = ln_block(3)
    emit_all(lq); lq.clear()
    emit_all([g for g in bg if not isinstance(g, tuple)]); bg.clear()
    if opt.get('walk', 0) == 3: walker()
    stamp('ln23')
    P(Ins('s_barrier', needs=w2 + w3 + slots[0].loads))
    r1 = xn_reads(1)
    stamp('mf0')

    window = {}
    AH = 4; AHM = opt.get('ah', 6)
    def make_reads(fr, sidx, fi):
        w, o = divmod(phys[sidx] * SLOT, 65536)
        out = []
        if window.get(fr.base, 0) != w:
            d = (w - window.get(fr.base, 0)) * 65536
            out.append(Ins('v_add_u32 v%d, 0x%x, v%d' % (fr.base, d & 0xffffffff, fr.base)))
            window[fr.base] = w
        f = FR + 4 * (fi % 8)
        fr.reg = f
        fr.rd = [Ins('ds_read_b64_tr_b16 %s, v%d offset:%d' % (vr(f + 2 * h, 2), fr.base, o + fr.imm[h])) for h in range(2)]
        return [out + [fr.rd[0]], [fr.rd[1]]]
    def segment(s0, s1, fillers, bar_extra, first_loads=(), extra_need=None, hook=None, quiet=(), pre=()):
        frs = []; groups = []
        for s in range(s0, s1):
            for g in slots[s].groups:
                groups.append((s, len(frs), g))
                for f in g: frs.append((s, f))
        nm = sum(4 * len(g) for _, _, g in groups)
        gm = [[] for _ in range(nm)]; ga = [[] for _ in range(nm)]; gz = [[] for _ in range(nm)]
        used = [0] * nm; vmw = [0] * (nm + 16)
        mf = []; issued = 0; slot_start = {}
        ismem = lambda x: x.kind in ('ds', 'vmem')
        def put(k, items, cost=None):
            (gm if len(items) == 1 and ismem(items[0]) else ga)[k].extend(items)
            used[k] += min(2, sum(x.cost for x in items)) if cost is None else cost
        while issued < AH:
            s, f = frs[issued]
            emit_all(make_reads(f, s, issued)); issued += 1
        if callable(pre): pre()
        else: emit_all(list(pre))
        pend = [(-1, list(first_loads), ())]
        barpos = {}; vcand = set(); fv = set()
        for (s, f0, g) in groups:
            a = len(mf)
            slot_start.setdefault(s, a)
            n = 4 * len(g)
            for mt in range(4):
                for f in g: mf.append((s, f, mt, g))
            if a > 0: used[a - 1] += 1
            vcand.update(range(a + 1, a + n, 4))
            items = []
            while issued < min(len(frs), f0 + min(8, len(g) + AHM)) and frs[issued][0] <= s + 1:
                s2, f2 = frs[issued]
                r = make_reads(f2, s2, issued)
                if frs[issued - 1][0] != s2: r[0] = ['BAR', s2] + r[0]
                items += r; issued += 1
            for q, it in enumerate(items):
                k = a + q * n // len(items)
                if it[0] == 'BAR':
                    s2 = it[1]
                    ex = bar_extra.get(s2, ((), ()))
                    b = Ins('s_barrier'); b.needs = ('LAZY', s2, list(ex[0]) + ([x for f in g for x in f.rd] if k == a else []))
                    gz[k - 1].append(b); used[k - 1] += 1 if k == a else 2
                    barpos[s2] = k - 1
                    pend.append((k - 1, list(extra_loads.get(s2, [])) + ([load_at[s2]] if s2 in load_at else []), ex[1]))
                    it = it[2:]
                if len(it) == 2: put(max(k - 1, 0), it[:1]); it = it[1:]
                put(k, it)
        class Chain:
            def __init__(c, items, start): c.q = list(items); c.rel = start; c.last = -1; c.cap = 2
        dl = []; dead = {}
        for (k, lds_, post) in pend:
            dl.append(('ATK', k + 1)); dl += list(post)
            for n in lds_:
                for g in dma_groups(n):
                    for x in g:
                        dl.append(x)
                        if x.kind == 'vmem': dead[id(x)] = (n, barpos.get(n, 10 ** 9 if n < NS else nm + opt.get('wdl', -100))); svc[id(x)] = SV * (2 if sum(len(g_) for g_ in slots[n].groups) == 6 else 1)
        chains = [Chain(dl, 0)] + [Chain(lst, slot_start[s] + off) for (s, off, lst) in fillers if lst]
        leads = {}; slk = {}; lastst = -999
        pfree = 0.0
        def head(c, k):
            while c.q and isinstance(c.q[0], tuple):
                it = c.q[0]
                if c.rel > k: return None
                if opt.get('dbg') and it[0] in ('AT', 'BY'):
                    cs = max(x for x in slot_start if slot_start[x] <= k); print('   marker', it, 'reached at slot', cs, '+', k - slot_start[cs], file=sys.stderr)
                if it[0] == 'AT': c.rel = slot_start[it[1]] + it[2]
                elif it[0] == 'ATK': c.rel = it[1]
                elif it[0] == 'BY': assert k <= slot_start[it[1]], ('filler late', it, k, slot_start[it[1]])
                elif it[0] == 'CAP': c.cap = it[1]
                elif it[0] == 'SKIP': c.rel = k + it[1]
                c.q.pop(0)
            if not c.q or c.rel > k: return None
            return c.q[0]
        for k in range(nm):
            if not gm[k] and used[k] < 2:
                cand = []
                for n_, c in enumerate(chains):
                    x = head(c, k)
                    if x is None or isinstance(x, list) or not ismem(x) or c.last >= k: continue
                    if x.kind == 'ds':
                        if used[k] + x.cost > 2: continue
                    elif id(x) not in loud and pfree - k > opt.get('bl', 1.5): continue
                    pr = 1
                    if n_ == 0: pr = 0 if dead.get(id(x), (0, 0))[1] - k < opt.get('crit', 72) else 2
                    cand.append((pr, n_))
                if cand:
                    c = chains[min(cand)[1]]; x = c.q.pop(0); c.last = k
                    put(k, [x], x.cost if x.kind == 'ds' else 1)
                    if x.kind == 'vmem':
                        pfree = max(pfree, k + svc[id(x)]) if id(x) in loud else max(pfree, k) + svc.get(id(x), opt.get('svst', SV) if 'store' in x.op else SV)
                        if 'store_dwordx4' in x.op: lastst = k
                        if id(x) in dead and dead[id(x)][1] < 10 ** 9:
                            leads[dead[id(x)][0]] = dead[id(x)][1] - k; slk[dead[id(x)][0]] = dead[id(x)][1] - lastst
            for c in chains:
                while True:
                    x = head(c, k)
                    if x is None or (not isinstance(x, list) and ismem(x)): break
                    it = x if isinstance(x, list) else [x]
                    cst = min(2, sum(y.cost for y in it))
                    if used[k] + cst > c.cap: break
                    c.q.pop(0); c.last = k; ga[k].extend(it); used[k] += cst
        left = [(x if isinstance(x, list) else [x]) for c in chains for x in c.q if not isinstance(x, tuple)]
        print('DMA leads:', ' '.join('%d:%d' % x for x in sorted(leads.items())), file=sys.stderr)
        print('store->wait distance < 130:', ' '.join('%d:%d' % x for x in sorted(slk.items()) if x[1] < 130 and x[0] < NS), file=sys.stderr)
        assert min(v for n_, v in leads.items() if n_ < NS) > opt.get("minlead", 30)
        for k, (s, f, mt, g) in enumerate(mf):
            if hook: hook(k, s)
            c = f.acc(mt)
            nd = [x for f_ in g for x in f_.rd] + ([extra_need(f, mt)] if extra_need else [])
            P(Ins('v_mfma_f32_16x16x32_bf16 %s, %s, %s, %s' % (vr(c), vr(f.reg), f.b(mt), '0' if f.first else vr(c)), needs=nd))
            for x in gz[k]: x.needs = list(slots[x.needs[1]].loads) + list(x.needs[2])
            emit_all(gm[k] + ga[k] + gz[k])
        return left

    def mul(d, a_, b_): return Ins('v_mul_f32 v%d, v%d, v%d' % (d, a_, b_))
    def cvt(d, a_, b_): return Ins('v_cvt_pk_bf16_f32 v%d, v%d, v%d' % (d, a_, b_))
    kv_stores = []
    flat0 = lambda l: [y for x in l for y in x]
    def qkv_epi():
        rs = [Ins('ds_read_b128 %s, v%d offset:%d' % (vr(SP + 4 * mt), vRS, 256 * mt)) for mt in range(4)]
        L = list(rs) + [('SKIP', 6)]
        for mp in range(2):
            if mp: L += II(f's_add_u32 s{QM}, s{QM}, s{QM+2}')
            for c in range(2):
                if c: L += II(f's_add_u32 s{T2}, s{QM}, s{QC}')
                for ft in range(2):
                    te = ACCA + ((2 * c + ft) * 4 + 2 * mp) * 4; to = te + 4
                    for r in range(8):
                        x = mul(te + r, te + r, SP + 8 * mp + r); x.needs = [rs[2 * mp + r // 4]]; L.append(x)
                    L += [cvt(te, te, te + 1), cvt(te + 1, te + 2, te + 3), cvt(te + 2, to, to + 1), cvt(te + 3, to + 2, to + 3)]
                    st = Ins(f'buffer_store_dwordx4 {vr(te)}, v{vQS[0]}, {sr(SW)}, s{T2 if c else QM} offen offset:{1024*ft} sc1')
                    L.append(st); kv_stores.append(st)
        return L
    def l1_epi():
        L = II(f's_lshl_b32 s{T3}, s{FH}, 3\ns_add_u32 s{T3}, s{T3}, {HLONE}\nv_add_u32 v{SP+11}, s{T3}, v{vHW}')
        ws_ = []
        for mt in range(4):
            g0 = ACCA + mt * 4; u0 = ACCA + (4 + mt) * 4
            L += [mul(g0 + t, g0 + t, u0 + t) for t in range(4)] + [cvt(u0, g0, g0 + 1), cvt(u0 + 1, g0 + 2, g0 + 3)]
            w = Ins(f'ds_write_b64 v{SP+11}, {vr(u0,2)} offset:{1024*mt}'); ws_.append(w)
            if not opt.get('bw'): L.append(w)
        if opt.get('bw'): L += [('SKIP', 2), list(ws_)] if opt['bw'] == 1 else flat0([[('SKIP', 4), w] for w in ws_])
        L2 = II(f's_lshl_b32 s{T3}, s{FH}, 11\ns_add_u32 s{T3}, s{T3}, {HLONE}\nv_add_u32 v{SP+11}, s{T3}, v{vHW}')
        rd = [Ins(f'ds_read_b128 {vr(ACCA+4*m)}, v{SP+11} offset:{1024*m}') for m in range(2)]
        sts = [Ins(f'buffer_store_dwordx4 {vr(ACCA+4*m)}, v{vL16}, {sr(SW)}, s{HLN} offen offset:{1024*m} sc1', needs=[rd[m]]) for m in range(2)]
        return L, sts, ws_, L2 + rd + [('SKIP', 10)] + sts
    hw = {}
    def pair_epi(acc, q):
        L = II(f's_add_u32 s{ST}, s{HS}, {q*2*8192}\ns_lshl_b32 s{T1}, s{FH}, 13\ns_add_u32 s{T1}, s{T1}, {hphys[q]*SLOT}\nv_add_u32 v{SP+11}, s{T1}, v{vHW}')
        sts = []; hw[q] = []
        for mt in range(4):
            g0 = acc + mt * 4; g1 = acc + (4 + mt) * 4; u0 = acc + (8 + mt) * 4; u1 = acc + (12 + mt) * 4
            L += [mul(g0 + t, g0 + t, u0 + t) for t in range(4)]
            L += [mul(g1 + t, g1 + t, u1 + t) for t in range(4)]
            L += [cvt(u0, g0, g0 + 1), cvt(u0 + 1, g0 + 2, g0 + 3), cvt(u0 + 2, g1, g1 + 1), cvt(u0 + 3, g1 + 2, g1 + 3)]
            st = Ins(f'buffer_store_dwordx4 {vr(u0)}, v{vL16}, {sr(SW)}, s{ST} offen offset:{1024*mt} sc1')
            w = Ins(f'ds_write_b128 v{SP+11}, {vr(u0)} offset:{1024*mt}', cost=2)
            if q < 3 and opt.get('w64', 0):
                w = [Ins(f'ds_write_b64 v{SP+11}, {vr(u0+2*h,2)} offset:{1024*mt+8*h}') for h in range(2)]
                L += [st] + w; hw[q] += w
            else:
                L += [st, w]; hw[q].append(w)
            sts.append(st)
        return L, sts
    def d_epi(acc, q, cs=(0, 1)):
        L = []
        for c in cs:
            L.append(Ins(f's_sub_u32 s{ST}, s{PS}, {(2*q+c)*2*8192}'))
            for mt in range(4):
                t0 = acc + (8 * c + mt) * 4; t1 = acc + (8 * c + 4 + mt) * 4
                if mt == 2: L.append(Ins(f's_xor_b32 s{ST}, s{ST}, 2048'))
                L += [cvt(t0, t0, t0 + 1), cvt(t0 + 1, t0 + 2, t0 + 3), cvt(t0 + 2, t1, t1 + 1), cvt(t0 + 3, t1 + 2, t1 + 3)]
                L.append(Ins(f'buffer_store_dwordx4 {vr(t0)}, v{vL16}, {sr(SW)}, s{ST} offen offset:{1024*(mt&1)} sc1'))
        return L
    def poll_check(name, ld, test):
        g = [Ins(t, needs=[ld] if n == 0 else []) for n, t in enumerate(test)]
        g.append(Ins('s_cbranch_scc0 %s_slow' % name))
        g.append(Ins('%s_ok:' % name))
        S = Prog()
        S.label('%s_slow' % name)
        S('s_mov_b32 s%d, 400000' % SPN)
        S.label('%s_loop' % name)
        S('s_sleep %d' % opt.get('ps', 2))
        S(ld.text)
        S('s_waitcnt vmcnt(0)')
        S('s_sub_u32 s%d, s%d, 1' % (SPN, SPN))
        S('s_cbranch_scc1 %s_ok' % name)
        for t in test: S(t)
        S('s_cbranch_scc0 %s_loop' % name)
        S('s_branch %s_ok' % name)
        slow.append(S.text())
        return g
    def setflag(n, reg):
        return II(f'v_mov_b32 v{reg}, {n}\nbuffer_store_dword v{reg}, v{vFL}, {sr(SW)}, s{MYF} offen sc1')
    def hpoll(n, reg):
        ld = T(f'buffer_load_dword v{reg}, off, {sr(SW)}, s{PF} sc1')
        return ld, poll_check('h%d' % n, ld, [f'v_readfirstlane_b32 s{T2}, v{reg}', f's_cmp_ge_u32 s{T2}, {n}'])

    qe = qkv_epi()
    pe = [pair_epi(PACC[q], q) for q in range(4)]
    le = l1_epi()
    VREG = [ACCA + 4 * n for n in range(16)] + [SP + 4 * n for n in range(4)]
    G0M, G1M = 96, 98
    late = II(f'''s_mov_b32 s{SQ}, s8
    s_mov_b32 s{SQ+1}, s9
    s_mov_b32 s{SQ+2}, 0x{576*1152:x}
    s_mul_i32 s{T1}, s{T0}, {BLK//2}
    s_mul_i32 s{T2}, s{J}, 2304
    s_add_u32 s{T1}, s{T1}, s{T2}
    s_mov_b32 s{G0M}, 0xffff
    s_mov_b32 s{G0M+1}, 0
    s_mov_b32 s{G1M}, 0xffff0000
    s_mov_b32 s{G1M+1}, 0''')
    for a_ in range(5):
        late += II(f's_add_u32 s{KO+a_}, s{T1}, 0x{KOFF + (2*a_-9)*BLK:x}')
        if a_ < 4:
            late.append(II(f's_cmp_ge_u32 s{T0}, {16-4*a_}\ns_cselect_b32 s{KO+a_}, s{KO+a_}, 0x{OOB:x}\ns_cselect_b32 s{KB+a_}, 0, 0xf149'))
    a0, a1, a2, a3 = SP, SP + 1, SP + 2, SP + 3
    vTD_ = QF + 12
    late += II(f'''v_and_b32 v{a0}, 15, v{vL}
    v_lshrrev_b32 v{a1}, 4, v{vL}
    v_mov_b32 v{a3}, 0x{OOB:x}
    s_mul_i32 s{T2}, s{FH}, 1280
    s_add_u32 s{T3}, s{T2}, {BLK+144*256}
    v_add_u32 v{vKM}, s{T3}, v{vL16}
    v_lshlrev_b32 v{a1}, 4, v{a1}
    v_lshl_add_u32 v{a2}, v{a0}, 6, v{a1}
    s_add_u32 s{T3}, s{T2}, {BLK+73728}
    v_add_u32 v{vVM}, s{T3}, v{a2}
    v_and_b32 v{a2}, 1, v{a0}
    v_lshl_add_u32 v{a1}, v{a2}, 6, v{a1}
    s_lshl_b32 s{T2}, s{FH}, 7
    v_add_u32 v{a1}, s{T2}, v{a1}
    v_and_b32 v{a2}, 3, v{a0}
    v_cmp_eq_u32 vcc, 2, v{a2}
    v_mov_b32 v{a2}, 256
    s_mul_i32 s{T2}, s{RG}, {2*VRS}
    s_add_u32 s{T2}, s{T2}, {LVR}
    v_cndmask_b32 v{a1}, v{a1}, v{a2}, vcc
    v_add_u32 v{vVR}, s{T2}, v{a1}
    s_lshl_b32 s{T2}, s{RG}, 9
    s_lshl_b32 s{T3}, s{FH}, 2
    s_add_u32 s{T2}, s{T2}, s{T3}
    s_add_u32 s{T2}, s{T2}, {LKR}
    v_lshlrev_b32 v{a2}, 4, v{a0}
    v_add_u32 v{a2}, s{T2}, v{a2}
    v_subrev_u32 v{a1}, 248, v{a2}
    v_add_u32 v{SP+8}, {LQR-LKR}, v{a2}
    v_cndmask_b32 v{vKR}, v{a2}, v{a1}, {sr(G1M,2)}
    v_lshlrev_b32 v{a1}, 7, v{vL}
    v_cmp_gt_u32 vcc, 41, v{vL}
    s_nop 0
    s_nop 0
    v_cndmask_b32 v{vTD_}, v{a3}, v{a1}, vcc''')
    kvld = T(f'buffer_load_dwordx4 {vr(SP+12)}, off, {sr(SB)}, s{DB} sc1', opt.get('qk', 20))
    kvtest = [f'v_readfirstlane_b32 s{T2}, v{SP+12}', f'v_readfirstlane_b32 s{T3}, v{SP+13}', f'v_readfirstlane_b32 s{T1}, v{SP+14}',
              f's_or_b32 s{T2}, s{T2}, s{N0}', f's_or_b32 s{T3}, s{T3}, s{N1}', f's_and_b32 s{T2}, s{T2}, s{T3}',
              f's_and_b32 s{T2}, s{T2}, s{T1}', f's_cmp_eq_u32 s{T2}, 0xffff']
    kv2pre = II(f'''v_lshlrev_b32 v{SP+9}, 7, v{vL}
    v_cmp_gt_u32 vcc, 48, v{vL}
    s_lshl_b32 s{DB}, s{I}, 11
    s_add_u32 s{DB}, s{DB}, 0x{FOFF-4096:x}
    v_cndmask_b32 v{SP+9}, v{a3}, v{SP+9}, vcc
    s_lshl_b32 s{N1}, s{N1}, 16
    s_or_b32 s{N1}, s{N1}, s{N0}''')
    kv2ld = T(f'buffer_load_dword v{SP+12}, v{SP+9}, {sr(SW)}, s{DB} offen sc1', 32)
    kv2test = [f'v_cmp_le_u32 vcc, 1, v{SP+12}', 's_nop 1', f's_or_b32 s{T2}, vcc_lo, s{N1}', f's_or_b32 s{T3}, vcc_hi, 0xffff0000', f's_and_b32 s{T2}, s{T2}, s{T3}', f's_cmp_eq_u32 s{T2}, -1']
    kvpre = []; kvtouch = []
    kvtouch += [II(f's_getpc_b64 {sr(SB,2)}') + [Ins('K1_pc2:')]] + II(f'''s_mov_b32 s{SB+2}, code_end-K1_pc2
    s_and_b32 s{T2}, s{NN}, 7
    s_lshl_b32 s{T2}, s{T2}, 2
    s_add_u32 s{T2}, s{T2}, s{Wv}
    s_mul_i32 s{T2}, s{T2}, {11*128}
    v_lshlrev_b32 v{SP}, 7, v{vL}
    v_cmp_gt_u32 vcc, 11, v{vL}
    s_nop 0
    s_nop 0
    v_cndmask_b32 v{SP}, v{a3}, v{SP}, vcc''') + [T(f'buffer_load_dword v0, v{SP}, {sr(SB)}, s{T2} offen', 32)]
    RA, RB = SP + 12, SP + 4
    rla = Ins(f'buffer_load_dwordx4 {vr(RA)}, v{a1}, {sr(SW)}, s{T3} offen sc1'); rlb = Ins(f'buffer_load_dwordx4 {vr(RB)}, v{a2}, {sr(SW)}, s{T3} offen sc1')
    rst = II(f'''v_lshrrev_b32 v{a0}, 4, v{vL}
    s_mul_i32 s{T2}, s{Wv}, 3
    v_add_u32 v{a0}, s{T2}, v{a0}
    v_mul_u32_u24 v{a1}, {BLK}, v{a0}
    s_lshl_b32 s{T3}, s{I}, 2
    s_sub_u32 s{T3}, 8, s{T3}
    v_cmp_le_i32 vcc, s{T3}, v{a0}
    v_and_b32 v{SP+9}, 0xf0, v{vL16}
    v_add_u32 v{a1}, v{a1}, v{SP+9}
    v_cndmask_b32 v{a1}, v{a3}, v{a1}, vcc
    v_add_u32 v{a2}, {73728+1024}, v{a1}
    v_add_u32 v{a1}, {148*256}, v{a1}
    s_add_u32 s{T2}, s{Wv}, 8
    s_mul_i32 s{T2}, s{T2}, {BLK}
    s_add_u32 s{T2}, s{T2}, 1024
    v_cmp_gt_u32 vcc, 48, v{vL}
    v_add_u32 v{RA}, s{T2}, v{SP+9}
    s_mul_i32 s{T3}, s{I}, {4*BLK}
    v_cndmask_b32 v{a1}, v{RA}, v{a1}, vcc
    v_cndmask_b32 v{a2}, v{a3}, v{a2}, vcc
    s_mul_i32 s{T2}, s{J}, 2304
    s_add_u32 s{T3}, s{T3}, s{T2}
    s_add_u32 s{T3}, s{T3}, 0x{KOFF-8*BLK:x}''') + [rla, rlb] + II(f'''s_mul_i32 s{T2}, s{Wv}, 768
    s_add_u32 s{T2}, s{T2}, {LKR}
    v_add_u32 v{a1}, s{T2}, v{vL16}
    s_lshl_b32 s{T2}, s{Wv}, 8
    s_add_u32 s{T2}, s{T2}, {LQR}
    v_add_u32 v{a2}, s{T2}, v{SP+9}
    v_cndmask_b32 v{a1}, v{a2}, v{a1}, vcc
    v_mul_u32_u24 v{a2}, {VRS}, v{a0}
    v_add_u32 v{a2}, v{a2}, v{SP+9}
    v_and_b32 v{SP+9}, 15, v{vL}
    v_min_u32 v{SP+9}, 2, v{SP+9}
    v_add_u32 v{a0}, v{a0}, v{SP+9}
    v_mul_u32_u24 v{a0}, {VRS}, v{a0}
    v_add_u32 v{a0}, {(256-3*VRS) & 0xffffffff}, v{a0}
    v_cndmask_b32 v{a2}, v{a0}, v{a2}, vcc
    v_add_u32 v{a2}, {LVR}, v{a2}
    v_mov_b32 v{a0}, 0x3f803f80''')
    nrs = len(rst)
    rst += [Ins(f'v_cndmask_b32 v{RB+r}, v{a0}, v{RB+r}, vcc', needs=[rlb]) for r in range(4)]
    rsw = [Ins(f'ds_write_b128 v{a1}, {vr(RA)}', needs=[rla], cost=2), Ins(f'ds_write_b128 v{a2}, {vr(RB)}', cost=2)]
    rst += rsw
    qld = []; ql = []; qr = []
    for a_ in range(2):
        l0 = Ins(f'buffer_load_dwordx4 {vr(QF+4*a_)}, v{vKM}, {sr(SW)}, s{T3} offen sc1')
        l1 = [Ins(f'ds_read_b32 v{QF+8+2*a_+h}, v{SP+8} offset:{256*a_+8*h}') for h in range(2)]
        ql += [Ins(f's_add_u32 s{T3}, s{KO+4}, {(a_*BLK - 36864) & 0xffffffff}'), l0]; qr += l1; qld += [[l0, l1[0]], [l0, l1[1]]]
    km = []; kr = []; kl = []; vld = []; vl = []
    for b_ in range(11):
        r_ = Ins(f'ds_read_b32 a{6*b_}, v{vKR} offset:{256*b_}'); kr.append(r_)
        kl += [r_]
        lo_, hi_ = b_ // 2, (b_ - 1) // 2
        nm_ = lambda q_: f's{KB+q_}' if 0 <= q_ < 4 else '0'
        if b_ <= 8: kl += II(f's_pack_ll_b32_b16 s{T2}, {nm_(lo_)}, {nm_(hi_)}\nv_accvgpr_write_b32 a{6*b_+1}, s{T2}')
        else: kl += II(f'v_accvgpr_write_b32 a{6*b_+1}, 0')
        if b_ < 10:
            m_ = Ins(f'buffer_load_dwordx4 {ar(6*b_+2)}, v{vKM}, {sr(SW)}, s{T3} offen sc1'); km.append(m_)
            kl += [Ins(f's_add_u32 s{T3}, s{KO+b_//2}, {(b_%2)*BLK}'), m_]
    kld = [[km[u // 2], kr[(u + 1) // 2]] for u in range(20)]
    for v in range(10):
        a_ = Ins(f'buffer_load_dwordx4 {vr(VREG[2*v])}, v{vVM}, {sr(SW)}, s{T3} offen sc1')
        b_ = Ins(f'ds_read_b128 {vr(VREG[2*v+1])}, v{vVR} offset:{VRS*v}')
        vl.append([b_, Ins(f's_add_u32 s{T3}, s{KO+v//2}, {(v%2)*BLK}'), a_]); vld += [a_, b_]
    for x in km + vld[::2]: svc[id(x)] = opt.get('svk', SV)
    def vfix(v): return [Ins(f'v_or_b32 v{VREG[2*v+1]+r}, v{vONES}, v{VREG[2*v+1]+r}', needs=[vld[2 * v + 1]]) for r in range(4)]
    pfd = [T(f'buffer_load_dword v0, v{vTD_}, {sr(SD)}, s{PFD} offen offset:2048' + NT, opt.get('qd', 120))]
    if opt.get('nod') or opt.get('cls'): pfd = []
    pfw = II(f's_mul_i32 s{T2}, s2, {21*128}') + [II(f's_cmp_eq_u32 s{Wv}, 0\ns_cselect_b32 s{T2}, s{T2}, 0x{OOB:x}'), T(f'buffer_load_dword v0, v{vTD_}, {sr(SQ)}, s{T2} offen', 40)]
    if opt.get('nod'): pfw = []
    h1ld, h1chk = hpoll(2, vPFP)
    e_ = opt.get('ev', [8, 0, 26, 29, 38])
    flat = lambda l: [y for x in l for y in x]
    NV1 = opt.get('nv1', 3)
    cls_chain = []
    if opt.get('cls'):
        va, vs_ = QF + 13 - 9, QF + 13 - 8
        cls_chain = II(f'''v_lshrrev_b32 v{va}, 2, v{vL}
        v_mul_u32_u24 v{va}, 9216, v{va}
        v_bfe_u32 v{vs_}, v{vL}, 1, 1
        v_mul_u32_u24 v{vs_}, 1152, v{vs_}
        v_add_u32 v{va}, v{va}, v{vs_}
        v_and_b32 v{vs_}, 1, v{vL}
        v_lshl_add_u32 v{va}, v{vs_}, 10, v{va}
        v_cmp_gt_u32 {sr(DUM,2)}, 36, v{vL}
        v_mov_b32 v{va+2}, 0x{OOB:x}
        v_lshlrev_b32 v{vs_}, 8, v{vs_}
        v_cndmask_b32 v{va}, v{va+2}, v{va}, {sr(DUM,2)}
        v_sub_u32 v{vs_}, 128, v{vs_}
        s_lshr_b32 s{DUM}, s2, 5
        s_lshl_b32 s{DUM}, s{DUM}, 3
        s_and_b32 s{DUM+1}, s2, 7
        s_or_b32 s{DUM}, s{DUM}, s{DUM+1}
        s_mul_i32 s{PFP}, s{DUM}, {9*9216}
        s_mul_i32 s{DUM+1}, s{Wv}, 2304
        s_add_u32 s{PFP}, s{PFP}, s{DUM+1}
        s_and_b32 s{DUM}, s{NN}, 3''')
        sites_ = opt['cls']; qc = opt.get('qc', 24)
        for n, sl in enumerate(sites_):
            if sl: cls_chain += [('AT', sl - 1, 16)]
            if n < 6 and n % 2 == 0: cls_chain += II(f'v_add_u32 v{va}, v{va}, v{vs_}')
            if not sl: continue
            if n < 6:
                cls_chain += [II(f's_cmp_eq_u32 s{DUM}, {n % 4}\ns_cselect_b32 s{PFW}, s{PFP}, 0x{OOB:x}'), ('AT', sl, 0),
                              T(f'buffer_load_dword v0, v{va}, {sr([SG, SU][n % 2])}, s{PFW} offen offset:{2048 * (n % 2)}', qc)]
            else:
                cls_chain += [II(f's_cmp_eq_u32 s{DUM}, {n % 4}\ns_cselect_b32 s{PFW}, s{PFD}, 0x{OOB:x}'), ('AT', sl, 0),
                              T(f'buffer_load_dword v0, v{vTD_}, {sr(SD)}, s{PFW} offen offset:2048', qc)]
    fill1 = [(sl, 0, stamp('slot%d' % sl, True)) for sl in range(NSEG1)] + [
        (0, 0, r1[8:]),
        (1, 0, cls_chain),
        (0, 2, lnfin + late0 + [('BY', 9)] + late0b[:31] + [('AT', 9, 4)] + qe + [('BY', 16)] + late0b[31:] + late + [kvld, ('AT', 18, 4)]
         + pe[0][0] + [('BY', 24), poll_check('kv', kvld, kvtest)] + kv2pre + [('AT', 24, 4)]
         + le[0] + [('BY', 26)] + kvtouch[:-1] + [('AT', e_[2], 0), kv2ld] + kvtouch[-1:] + pfw + [('AT', 27, 0)] + le[3] + [('AT', e_[3] - 1, 8), poll_check('kw', kv2ld, kv2test)] + pfd + rst[:nrs] + [('AT', 33, 4)]
         + pe[1][0] + rst[nrs:] + ql + [('BY', 40), ('AT', 41, 0)] + qr + [('BY', 42), ('AT', 42, 4)]
         + pe[2][0] + [('AT', 44, 0)] + kl + flat(vl[:NV1]) + [('AT', 50, 8), h1ld]),
    ]
    bx1 = {
        3: (r1, []), 6: (lnw, []),
        opt.get('kvf', 17): (kv_stores, setflag(1, SP + 10)),
        27: (le[2], []), 41: (rsw, []),
        opt.get('hf', 49): (pe[0][1] + le[1] + pe[1][1] + pe[2][1], setflag(2, SP + 10)),
    }
    extra_loads[3] = [5, 6, 7, 8, load_at.pop(2)]
    xmap = {}
    for n, x in enumerate(r1):
        ks = n // 2
        for mt in range(4): xmap[breg(ks, mt)] = r1[2 * ks + (mt & 1)] if mt >= 2 else None
    mark = {}
    def hook(k, s):
        if k == 0:
            P(f's_cmp_ge_u32 s{QL}, 18')
            P('s_cbranch_scc1 qkv_v')
            P(f's_cmp_lt_u32 s{QL}, {4 if opt.get("half", 1) else 0}')
            P('s_cbranch_scc1 qkv_k')
            mark['a'] = len(P.out); mark['K'] = P.fork()
        if s == 9 and 'b' not in mark:
            mark['b'] = len(P.out)
            P.label('qkv_e')
    left = segment(0, NSEG1, fill1, bx1, first_loads=list(range(NPRE, 5)), hook=hook, pre=r1[:8], extra_need=lambda f, mt: xmap[f.b(mt)])
    qrd = set(id(x) for n in range(9) for g in slots[n].groups[2:] for f in g for x in f.rd)
    K = mark['K']; K.label('qkv_k'); cp = {}
    for x in P.out[mark['a']:mark['b']]:
        if id(x) in qrd or x.op in ('s_nop', 's_waitcnt'): continue
        if x.kind == 'mfma' and min(x.wr)[1] >= ACCA + 32: continue
        cp[id(x)] = K(Ins(x.text, needs=[cp.get(id(y), y) for y in x.needs if id(y) not in qrd]))
    K('s_waitcnt lgkmcnt(0)'); K('s_nop 4'); K('s_branch qkv_e')
    slow.append(K.text())
    alt = ['qkv_v:']
    for x in P.out[mark['a']:mark['b']]:
        t = x.text
        if x.kind == 'label': alt.append(t.replace('_e:', 'v_e:')); continue
        if x.op == 's_cbranch_scc1': t += 'v'
        if x.kind == 'mfma':
            o = [y.strip() for y in t[len(x.op):].split(',')]
            t = '%s %s, %s, %s, %s' % (x.op, o[0], o[2], o[1], o[3])
        alt.append('    ' + t)
    alt.append('    s_branch qkv_e')
    slow.append('\n'.join(alt) + '\n')
    print('left after seg1:', len(left), file=sys.stderr)
    stamp('g1end')

    SREG = [80] + [ACCB + (tl * 4 + mt) * 4 for mt in range(4) for tl in (0, 1, 3, 2)]
    PR = [84, 88]; OM, OR_ = 96, 100; MF, ML = 104, 108
    noskip = lambda l: [x for x in l if not isinstance(x, tuple)]
    def qbuild(t):
        q = QF + 2 * t
        P(Ins(f'v_mov_b32 v{QW+2}, v{q}', needs=qld[t]))
        P(f'v_mov_b32 v{QW+3}, v{q+1}')
        P(f'v_cndmask_b32 v{QW}, 0, v{QF+8+t}, {sr(G0M,2)}')
        P(f'v_cndmask_b32 v{QW+4}, 0, v{QF+8+t}, {sr(G1M,2)}')
    P('v_mov_b32 v%d, 0x%x' % (vTA, NEG))
    P(f'v_mov_b32 v{QW+1}, 0x3f80')
    P(f'v_mov_b32 v{QW+5}, 0x3f800000')
    qbuild(0)
    pq = list(pe[3][0])
    for r in range(4):
        P('v_cmp_lt_i32 vcc, %d, v%d' % (-r, vDG))
        P(pq.pop(0)); P(pq.pop(0))
        P('v_cndmask_b32 v%d, v%d, 0, vcc' % (MF + r, vTA))
        P('v_cndmask_b32 v%d, 0, v%d, vcc' % (ML + r, vTA))
    P(f's_cmp_eq_u32 s{FH}, 0')
    P('s_cselect_b64 vcc, -1, 0')
    P(f's_xor_b32 s{N0}, s{C}, 0x80000000')
    hld = {}
    def hload(k):
        if isinstance(k, tuple):
            ka, kb = k
            pre = II(f's_mul_i32 s{T2}, s{FH}, {(ka-kb)*8192}\ns_add_u32 s{T2}, s{T2}, s{HL}\ns_add_u32 s{T2}, s{T2}, {(17-ka)*8192}') if ka != kb else II(f's_add_u32 s{T2}, s{HL}, {(17-ka)*8192}')
            tx = lambda kk, mt: f'buffer_load_dwordx4 {breg(hpos[kk], mt)}, v{vL16}, {sr(SW)}, s{T2} offen offset:{1024*mt} sc1'
            ld = [Ins(tx(ka, mt)) for mt in range(4)]
            if not opt.get('ksw'): hld[ka] = [ld[3]] * 4; hld[kb] = [ld[3]] * 4
            if opt.get('ksw'): hld[ka] = list(ld); hld.setdefault(kb, None)
            if ka == kb or opt.get('ksw'): return [pre + ld[:1], ld[1:2], ld[2:3], ld[3:]]
            return [(pre if h == 0 else []) + alt_site(ld[2*h:2*h+2], [tx(kb, 2*h), tx(kb, 2*h+1)]) for h in range(2)]
        base = HLONE if k == 8 else hphys[k // 2] * SLOT + (k & 1) * 8192
        hld[k] = [Ins(f'ds_read_b128 {breg(hpos[k], mt)}, v{vONES} offset:{1024*mt}') for mt in range(4)]
        return [II(f'v_add_u32 v{vONES}, {base}, v{vHW}') + hld[k][:2], hld[k][2:]]
    def qk(t, sg):
        u = t + sg
        c = vr(MF) if sg == 0 else (vr(ML) if sg == 16 else '0')
        return Ins('v_mfma_f32_16x16x32_bf16 %s, %s, %s, %s' % (vr(SREG[sg]), ar(3 * u + (u & 1)), vr(QW + 2 * (u & 1)), c), needs=kld[u])
    def mx(sg, dst):
        s = SREG[sg]
        if sg == 0: return II('v_max3_f32 v%d, v%d, v%d, v%d\nv_max_f32 v%d, v%d, v%d' % (dst, s, s + 1, s + 2, dst, dst, s + 3))
        return II('v_max3_f32 v%d, v%d, v%d, v%d\nv_max3_f32 v%d, v%d, v%d, v%d' % (dst, dst, s, s + 1, dst, dst, s + 2, s + 3))
    lk = [x for x in left if any(y in km or y in kr for y in x)]
    if lk:
        n = left.index(lk[-1]) + 1; emit_all(left[:n]); left = left[n:]
    P(qk(0, 0))
    nq = 1; avail = 1; nmx = 0
    while pq:
        x = pq.pop(0); P(x)
        if x.kind == 'ds': avail += 4
        elif nq < avail and len(pq) % 2 == 0: P(qk(0, nq)); nq += 1
    def bunch(l):
        out = []; cur = []
        for x in l:
            cur += x
            if any(y.kind in ('vmem', 'ds') for y in x): out.append(cur); cur = []
        assert not cur
        return out
    isdma = lambda x: any(' lds' in y.text or f's{OFF},' in y.text.split()[1] or 'm0' in y.text or f's{BD},' in y.text.split()[1] for y in x)
    ldma = bunch([x for x in left if isdma(x)])
    lv = bunch([x for x in left if not isdma(x)] + [[x] for v in range(NV1, 10) for x in noskip(vl[v])])
    while nq < 17:
        P(qk(0, nq)); nq += 1
        emit_all(mx(nmx, vMN)); nmx += 1
    while nmx < 17:
        if len(lv) > 12 and nmx % 2: emit_all(lv.pop(0))
        emit_all(mx(nmx, vMN)); nmx += 1
    while len(lv) > 12: emit_all(lv.pop(0))
    qbuild(1)
    emit_all(h1chk)
    stamp('attk')
    ow = []
    def o_epi(t):
        P('v_rcp_f32 v%d, v%d' % (vTA, OR_ + 2))
        for r in range(4): P(mul(OM + r, OM + r, vTA))
        for r in range(2): P(mul(OR_ + r, OR_ + r, vTA))
        P(cvt(QF + 2 * t, OM, OM + 1)); P(cvt(QF + 2 * t + 1, OM + 2, OM + 3)); P(cvt(QF + 8 + t, OR_, OR_ + 1))
    ofl = II(f'''s_lshl_b32 s{T2}, s{FH}, 3
    s_add_u32 s{T2}, s{T2}, {HLONE}
    v_add_u32 v{vTB}, s{T2}, v{vHW}
    s_lshl_b32 s{T2}, s{RG}, 9
    s_lshl_b32 s{T3}, s{FH}, 2
    s_add_u32 s{T2}, s{T2}, s{T3}
    s_add_u32 s{T2}, s{T2}, {RT4}
    v_lshlrev_b32 v{vTA}, 3, v{vL}
    v_add_u32 v{vMX}, 4096, v{vTA}
    v_cndmask_b32 v{vTA}, v{vMX}, v{vTA}, {sr(G0M,2)}
    v_add_u32 v{vTA}, s{T2}, v{vTA}''')
    for t in range(4):
        ow += [Ins(f'ds_write_b64 v{vTB}, {vr(QF+2*t,2)} offset:{1024*t}'), Ins(f'ds_write_b32 v{vTA}, v{QF+8+t} offset:{128*t}')]
    ofl += ow
    h2ld, h2chk = hpoll(3, vPFP)
    hplan = opt.get('hplan', {0: [0, 1, 2, 3, 4, 5], 1: [(16, 17), (14, 15), (12, 13), (9, 9)], 2: [(17, 16), (15, 14), (13, 12), 8], 3: [(10, 11), (11, 10)]})
    if opt.get('plain', 1): hplan = opt.get('hp', {0: [(16, 16), 0, 1, (17, 17), 2, 3, (14, 14), 4, 5], 1: [(15, 15), (12, 12)], 2: [(13, 13), (9, 9), 8], 3: [(10, 10), (11, 11)]})
    if opt.get('ksw'): hplan = {0: [0, 1, 2, 3, 4, 5], 1: [(16, 17), (14, 15), (12, 13), (9, 9)], 2: [(17, 16), (15, 14), (13, 12), 8], 3: [(10, 11), (11, 10)]}
    for t in range(4):
        stamp('att%d' % t)
        P('v_mov_b32 v%d, v%d' % (vTA, vMN))
        P('v_permlane16_swap_b32 v%d, v%d' % (vTA, vMN))
        P('v_max_f32 v%d, v%d, v%d' % (vMN, vMN, vTA))
        P('v_mov_b32 v%d, v%d' % (vTA, vMN))
        P('v_permlane32_swap_b32 v%d, v%d' % (vTA, vMN))
        P('v_max_f32 v%d, v%d, v%d' % (vMN, vMN, vTA))
        P(f'v_mul_f32 v{vMX}, s{N0}, v{vMN}')
        if t == 1:
            P(Ins('s_barrier', needs=pe[3][1] + hw[3] + [x for k in range(6) for x in hld[k]]))
            ad = bunch(flat([dma_groups(n) for n in att_loads[:sum(opt.get('na', [0, 8, 8, 4])) // 4]]))
            emit_all(setflag(3, vPFS))
        if t == 3:
            P(Ins('s_barrier', needs=slots[NSEG1].loads + hld[8]))
            emit_all(h2chk)
        bq = flat([hload(k) for k in hplan[t]])
        def mix(a_, b_):
            out = []; a_ = list(a_); b_ = list(b_)
            while a_ or b_:
                if a_: out.append(a_.pop(0))
                if b_: out.append(b_.pop(0))
            return out
        if t == 0:
            bq = mix(lv + ldma, bq)
        else:
            na = opt.get('na', [0, 8, 8, 4])[t]
            bq = mix(bq, ad[:na]) if t < 3 or opt.get('plain', 1) else bq[:2] + ad[:na] + bq[2:]
            ad = ad[na:]
        ppv = []; pqk = []; pmx = []
        for b in range(9):
            v = (t >> 1) + b
            sgs = [2 * v - t, 2 * v + 1 - t]
            val = [sg for sg in sgs if 0 <= sg <= 16]
            p = PR[b % 2]
            for sg in val:
                for r in (0, 2):
                    s = SREG[sg] + r
                    P(f'v_pk_fma_f32 {vr(s,2)}, {vr(s,2)}, {sr(C,2)}, {vr(vMX,2)} op_sel_hi:[1,0,0]')
            mfs = ppv + [qk(t + 1, g_) for g_ in pqk]
            nb = (len(bq) + (8 - b)) // (9 - b)
            def withmem(x):
                nonlocal nb
                g = []
                if nb: g = bq.pop(0); nb -= 1
                n0 = 0
                while n0 < len(g) and g[n0].kind in ('salu', 'valu') and not g[n0].op.startswith('s_cbranch'): n0 += 1
                emit_all(g[:n0]); P(x); emit_all(g[n0:])
            for sg in val:
                for r in range(4):
                    P('v_exp_f32 v%d, v%d' % (SREG[sg] + r, SREG[sg] + r))
                    if mfs and (not opt.get('spr') or r % 2 == 0 or len(val) == 1): withmem(mfs.pop(0))
            while mfs: withmem(mfs.pop(0))
            nb += 1
            for g_ in pmx: emit_all(mx(g_, vMN))
            for hh, sg in enumerate(sgs):
                if sg in val:
                    s = SREG[sg]
                    P(cvt(p + 2 * hh, s, s + 1)); P(cvt(p + 2 * hh + 1, s + 2, s + 3))
                else:
                    P('v_mov_b32 v%d, 0' % (p + 2 * hh)); P('v_mov_b32 v%d, 0' % (p + 2 * hh + 1))
            for _ in range(nb - 1): emit_all(bq.pop(0))
            pmx = pqk; pqk = val if t < 3 else []
            ppv = [Ins('v_mfma_f32_16x16x32_bf16 %s, %s, %s, %s' % (vr(OM), vr(VREG[2 * v]), vr(p), '0' if b == 0 else vr(OM)), needs=[vld[2 * v]]),
                   Ins('v_mfma_f32_16x16x32_bf16 %s, %s, %s, %s' % (vr(OR_), vr(VREG[2 * v + 1]), vr(p), '0' if b == 0 else vr(OR_)), needs=[vld[2 * v + 1]])]
            if t == 2 and b == 5: P(h2ld)
        assert not bq
        tail = flat([mx(g_, vMN) for g_ in pmx])
        for x in [qk(t + 1, g_) for g_ in pqk] + ppv:
            P(x)
            if tail: P(tail.pop(0))
        emit_all(tail)
        if t < 2: qbuild(t + 2)
        for g_ in pqk: emit_all(mx(g_, vMN))
        if t < 3: o_epi(t)
    stamp('attend')

    own = flat(flat([hload(k) for k in (6, 7)]))
    bmap = {}
    for k in hld:
        for mt in range(4): bmap[breg(hpos[k], mt)] = hld[k][mt]
    def restage(dst, sbase, stride, T3=T3):
        L = II(f's_lshl_b32 s{T3}, s{FH}, 11\ns_add_u32 s{T3}, s{T3}, {HLONE}\nv_add_u32 v{vTB}, s{T3}, v{vHW}')
        rd = [Ins(f'ds_read_b128 {vr(dst+4*m)}, v{vTB} offset:{1024*m}') for m in range(2)]
        L += rd + II(f's_add_u32 s{T3}, s{sbase}, {stride}') + [('SKIP', 8)]
        L += [Ins(f'buffer_store_dwordx4 {vr(dst+4*m)}, v{vL16}, {sr(SW)}, s{[sbase, T3][m]} offen sc1', needs=[rd[m]]) for m in range(2)]
        return L, rd
    oe, ord_ = restage(QF, OB, 18432)
    rr = Ins(f'ds_read_b128 {vr(QF+8)}, v{vTA}')
    oe += II(f'v_add_u32 v{vTA}, {RT4}, v{vL16}') + [rr] + II(f'v_lshrrev_b32 v{vTA}, 3, v{vL}\nv_mul_u32_u24 v{vTA}, {18432-128}, v{vTA}\nv_add_u32 v{vTA}, v{vTA}, v{vL16}') + [('SKIP', 8)]
    oe += [Ins(f'buffer_store_dwordx4 {vr(QF+8)}, v{vTA}, {sr(SW)}, s{OR} offen sc1', needs=[rr])]
    l2e = II(f's_lshl_b32 s{T3}, s{FH}, 3\ns_add_u32 s{T3}, s{T3}, {HLONE}\nv_add_u32 v{vTB}, s{T3}, v{vHW}'); l2w = []
    for mt in range(4):
        t0 = SP + mt * 4
        w = Ins(f'ds_write_b64 v{vTB}, {vr(t0,2)} offset:{1024*mt}'); l2w.append(w)
        l2e += [cvt(t0, t0, t0 + 1), cvt(t0 + 1, t0 + 2, t0 + 3), w]
    l2s, _ = restage(SP, PLN, 1024, T1)
    TLT, TVT = opt.get('tl', 0x40518732), opt.get('tv', 0x65557777)
    def task_params(second):
        ln = II(f's_lshl_b32 s{T2}, s{Pp}, 2\ns_lshr_b32 s{T1}, {TLT:#x}, s{T2}\ns_and_b32 s{T1}, s{T1}, 15\ns_lshr_b32 s{TV}, {TVT:#x}, s{T2}\ns_and_b32 s{TV}, s{TV}, 15\ns_movk_i32 s{TM}, 0x5555')
        ln += [II(f's_cmp_gt_u32 s{T1}, 4\ns_cselect_b32 s{T2}, 1, 0'), Ins(f's_lshl_b32 s{TM}, s{TM}, s{T2}'), II(f's_cmp_eq_u32 s{T1}, 4\ns_cselect_b32 s{TM}, 0xffff, s{TM}'), Ins(f's_bitset0_b32 s{TM}, s{J}')]
        return ln + II(f'''s_lshl_b32 s{TL}, s{T1}, 7
        s_lshl_b32 s{T2}, s{E}, 2
        s_add_u32 s{T2}, s{T2}, s{Wv}
        s_lshl_b32 s{TP}, s{T2}, 10
        s_lshl_b32 s{T1}, s{T1}, 14
        s_sub_u32 s{TP}, s{TP}, s{T1}
        s_mul_i32 s{T1}, s{I}, {8*18*8192}
        s_add_u32 s{TP}, s{TP}, s{T1}
        s_lshl_b32 s{T1}, s{I}, 3
        s_add_u32 s{T2}, s{T2}, s{T1}
        s_mul_i32 s{OL}, s{T2}, 18432
        s_add_u32 s{TX}, s{OL}, s{TL}
        s_mul_i32 s{T1}, s{Wv}, {36*1152}
        s_add_u32 s{TL}, s{TL}, s{T1}''')
    tsetup = II(f'''s_mov_b32 s{SG}, s8
    s_mov_b32 s{SG+1}, s9
    s_mov_b32 s{SG+2}, 0x{576*1152:x}
    s_mov_b32 s{SU}, s{OUTP}
    s_mov_b32 s{SU+1}, s{OUTP+1}
    s_mov_b32 s{SU+2}, 0x{2048*1152:x}
    s_lshl_b32 s{FB}, s{I}, 11
    s_add_u32 s{FB}, s{FB}, 0x{FOFF:x}
    s_mov_b32 s{LO}, 0x00003f80
    s_mov_b32 s{HI}, 0x3f800000''') + task_params(False)
    for t, row in enumerate((0, 8, 20, 28)): tsetup += II(f'v_add_u32 v{vWD[t]}, {(row*1152 - 1024*t - 2048) & 0xffffffff}, v{vDD[0]}')
    tsetup += II(f'''v_lshrrev_b32 v{vWD2}, 5, v{vL}
    v_mul_u32_u24 v{vWD2}, {32*1152}, v{vWD2}
    v_add_u32 v{vWD2}, v{vWD2}, v{vWD[0]}
    v_add_u32 v{vWD2}, {16*1152}, v{vWD2}
    v_and_b32 v{vWT[0]}, 0xffff, v{vTD[0]}
    s_lshl_b32 s{T2}, s{FH}, 6
    v_xor_b32 v{vWT[0]}, s{T2}, v{vWT[0]}
    v_xor_b32 v{vWT[1]}, 32, v{vWT[0]}
    v_xor_b32 v{vWT[2]}, 64, v{vWT[0]}
    v_xor_b32 v{vWT[3]}, 0x60, v{vWT[0]}
    v_lshlrev_b32 v{vPL}, 3, v{vOR}
    v_and_b32 v{vMX}, 15, v{vL}
    v_mul_u32_u24 v{vDG}, 1152, v{vMX}
    v_bfe_u32 v{vMN}, v{vL}, 4, 1
    v_lshl_add_u32 v{vDG}, v{vMN}, 5, v{vDG}
    v_lshrrev_b32 v{vMN}, 5, v{vL}
    v_lshl_add_u32 v{vDG}, v{vMN}, 4, v{vDG}
    s_lshl_b32 s{T2}, s{E}, 2
    s_add_u32 s{T2}, s{T2}, s{Wv}
    s_lshl_b32 s{T2}, s{T2}, 6
    s_lshr_b32 s{T3}, s{ROT}, 4
    s_xor_b32 s{T2}, s{T2}, s{T3}
    s_add_u32 s{T2}, s{T2}, {RTC}
    v_lshlrev_b32 v{vMX}, 2, v{vMX}
    v_add_u32 v{vMX}, s{T2}, v{vMX}''')
    rrd = Ins(f'ds_read_b32 v{vMX}, v{vMX}')
    tsetup += [rrd, ('SKIP', 8), Ins(f'v_mul_f32 v{vMX}, v{vMX}, v{vMX}', needs=[rrd]), Ins(f'v_mul_f32 v{vMN}, 0x{f2u(-1.4426950408889634):x}, v{vMX}')]
    fl_t = f'buffer_load_dword v{vPFP}, v{vPL}, {sr(SW)}, s{FB} offen sc1'
    o3ld = T(fl_t, 24)
    o3chk = poll_check('o3', o3ld, [f'v_cmp_le_u32 vcc, 4, v{vPFP}', 's_nop 1', 's_cmp_eq_u32 vcc_lo, 0xffff'])
    d5ld = T(fl_t, 8)
    ct3 = [II(f's_getpc_b64 {sr(SB,2)}') + [Ins('K1_pc3:')]] + II(f'''s_mov_b32 s{SB+2}, code_end-K1_pc3
    s_and_b32 s{T2}, s{NN}, 7
    s_lshl_b32 s{T2}, s{T2}, 2
    s_add_u32 s{T2}, s{T2}, s{Wv}
    s_mul_i32 s{T2}, s{T2}, {9*128}
    v_cmp_gt_u32 vcc, 9, v{vL}
    v_mov_b32 v{vTA}, 0x{OOB:x}
    s_nop 0
    v_cndmask_b32 v{vTA}, v{vTA}, v{vPL}, vcc''') + [T(f'buffer_load_dword v0, v{vTA}, {sr(SB)}, s{T2} offen', 24)]
    ct3 += II(f'''v_mul_u32_u24 v{vTA}, 1152, v{vL}
    v_subrev_u32 v{vTB}, {9*1152-128}, v{vTA}
    v_cmp_gt_u32 vcc, 9, v{vL}
    s_and_b32 s{T2}, s{I}, 7
    s_lshl_b32 s{T2}, s{T2}, 1
    v_cndmask_b32 v{vTA}, v{vTB}, v{vTA}, vcc
    s_add_u32 s{T2}, s{T2}, s{E}
    s_mul_i32 s{T2}, s{T2}, {36*1152}
    s_add_u32 s{T2}, s{T2}, s{TL}
    s_mul_i32 s{T3}, s{Wv}, {27*1152}
    s_sub_u32 s{T2}, s{T2}, s{T3}''') + [II(f's_cmp_ge_u32 s{J}, 14\ns_cselect_b32 s{T3}, 18, 9')] + II(f'''v_cmp_gt_u32 vcc, s{T3}, v{vL}
    v_mov_b32 v{vTB}, 0x{OOB:x}
    s_nop 0
    v_cndmask_b32 v{vTA}, v{vTB}, v{vTA}, vcc''') + [T(f'buffer_load_dword v0, v{vTA}, {sr(SG)}, s{T2} offen', 24)]
    if opt.get('nowt', 1): ct3 = ct3[:-17]
    OA = 160
    old = []; ol = II(f'v_lshlrev_b32 v{vTA}, 3, v{vL}')
    for k in range(18):
        if k == 8: ol += [('AT', NSEG1 + 14, 0)]
        if k == 16: ol += [('AT', NSEG1 + 15, 0)]
        if k % 4 == 0: ol += II(f's_add_u32 s{T3}, s{OL}, 0x{OOFF + k*1024:x}')
        if k < 16: x = [Ins(f'buffer_load_dwordx4 {ar(OA+4*k)}, v{vL16}, {sr(SW)}, s{T3} offen offset:{1024*(k%4)} sc1')]
        else: x = [Ins(f'buffer_load_dwordx2 {ar(OA+4*k+2*h,2)}, v{vTA}, {sr(SW)}, s{T3} offen offset:{1024*(k%4)+512*h} sc1') for h in range(2)]
        ol += x; old.append(x[-1])
    XR2 = SP + 8
    xt_ = lambda u: f'buffer_load_dwordx4 {vr(XR2+4*u)}, v{vDG}, {sr(SX)}, s{TX} offen offset:{64*u}'
    xld = [Ins(xt_(u)) for u in range(2)]
    de0 = d_epi(ACCA, 0); st0 = [x for x in de0 if x.kind == 'vmem']; stl = [x for x in l2s if not isinstance(x, tuple) and x.kind == 'vmem']
    ost = [x for x in oe if not isinstance(x, tuple) and x.kind == 'vmem']
    de1a = d_epi(ACCB, 1, (0,)); de1b = d_epi(ACCB, 1, (1,)); st1 = [x for x in de1a + de1b if x.kind == 'vmem']
    for x in st1 + stl: loud.add(id(x)); svc[id(x)] = 3
    fill2 = [(sl, 0, stamp('slot%d' % sl, True)) for sl in range(NSEG1, NS)] + [
        (NSEG1, 0, ofl + [('AT', NSEG1 + 2, 0)] + oe + tsetup + ct3 + [('BY', NSEG1 + 9), ('AT', NSEG1 + 9, 4)] + de0 + [o3ld, ('AT', NSEG1 + 12, 4)] + l2e + [('BY', NSEG1 + 14)]
         + [('AT', NSEG1 + 13, opt.get('o3o', 0)), o3chk] + ol),
        (NS - 1, 19, de1a), (NSEG1 + 15, 0, l2s),
        (NSEG1, 1, own)]
    bx2 = {NSEG1 + 2: (ow, []), NSEG1 + 3: (hld[6] + hld[7], [])}
    bx2[NSEG1 + 7] = (ost, setflag(4, vPFS)); bx2[NSEG1 + 15] = (l2w + st0, setflag(5, vPFS)); bx2[NSEG1 + opt.get('l2f', 20)] = (stl, setflag(6, vPFS))
    left = segment(NSEG1, NS, fill2, bx2, first_loads=att_loads[sum(opt.get('na', [0, 8, 8, 4])) // 4:], extra_need=lambda f, mt: bmap[f.b(mt)], pre=lambda: o_epi(3))
    print('left after seg2:', len(left), file=sys.stderr)
    stamp('g2end')
    tq = flat(left) + de1b + xld
    def wo_gemm(P, acc, need_o, bg_=None, ph=None, nd_=4):
        ph = ph or [phys[n] for n in range(NS, NSX)]
        rds = {}
        wwin = [0]
        def rd(n):
            k, dt = divmod(n, nd_)
            w, o = divmod(ph[k // 4] * SLOT, 65536)
            if w != wwin[0]:
                for d in range(4): P('v_add_u32 v%d, 0x%x, v%d' % (vWT[d], ((w - wwin[0]) * 65536) & 0xffffffff, vWT[d]))
                wwin[0] = w
            f = FR + 4 * (n % 8)
            rds[n] = [P('ds_read_b64_tr_b16 %s, v%d offset:%d' % (vr(f + 2 * h, 2), vWT[dt], o + (k % 4) * 4096 + 2048 * h)) for h in range(2)]
        for n in range(7): rd(n)
        for n in range(18 * nd_):
            k, dt = divmod(n, nd_)
            nd = rds[n] + (rds[n + 1] if n % 2 == 0 else []) + ([old[k]] if need_o else [])
            P(Ins('v_mfma_f32_16x16x32_bf16 %s, %s, %s, %s' % (vr(acc + 4 * dt), vr(FR + 4 * (n % 8)), ar(OA + 4 * k), '0' if k == 0 else vr(acc + 4 * dt)), needs=nd))
            if n + 7 < 18 * nd_: rd(n + 7)
            if bg_: bg_(n)
        for d in range(4):
            if wwin[0]: P('v_add_u32 v%d, 0x%x, v%d' % (vWT[d], (-wwin[0] * 65536) & 0xffffffff, vWT[d]))
    def ploads(P, dst, extra=0):
        pl = []
        for p in range(8):
            for u in range(2):
                P(f's_add_u32 s{T3}, s{TP}, 0x{POFF + (p*18+17-u)*8192 - extra:x}')
                pl.append(P(f'buffer_load_dwordx4 {vr(dst+8*p+4*u)}, v{vL16}, {sr(SW)}, s{T3} offen sc1'))
        return pl
    def fmath(P, acc, src0, pl, xr, xl_, imm, bg_=None, nu=2):
        SUM, TT = FR, FR + 16
        for p in range(8):
            for u in range(nu):
                for q in range(4):
                    src = src0 + 8 * p + 4 * u + q; d = SUM + 8 * u + 2 * q
                    P(Ins(f'v_dot2_f32_bf16 v{d}, v{src}, s{LO}, ' + ('0' if p == 0 else f'v{d}'), needs=[pl[nu * p + u]]))
                    P(f'v_dot2_f32_bf16 v{d+1}, v{src}, s{HI}, ' + ('0' if p == 0 else f'v{d+1}'))
                if bg_: bg_(2 * p + u)
        for r in range(0, 8 * nu, 2): P(f'v_pk_mul_f32 {vr(TT+r,2)}, {vr(SUM+r,2)}, {vr(vMX,2)} op_sel:[0,1] op_sel_hi:[1,1]')
        for r in range(8 * nu): P(f'v_exp_f32 v{TT+r}, v{TT+r}')
        for r in range(0, 8 * nu, 2): P(f'v_pk_mul_f32 {vr(acc+r,2)}, {vr(acc+r,2)}, {vr(SUM+r,2)}')
        for r in range(0, 8 * nu, 2): P(f'v_pk_add_f32 {vr(TT+r,2)}, {vr(TT+r,2)}, 1.0 op_sel_hi:[1,0]')
        for r in range(8 * nu): P(f'v_rcp_f32 v{TT+r}, v{TT+r}')
        for r in range(0, 8 * nu, 2): P(f'v_pk_mul_f32 {vr(acc+r,2)}, {vr(acc+r,2)}, {vr(TT+r,2)}')
        for u in range(nu):
            for r in range(4): P(f'v_permlane16_swap_b32 v{acc+8*u+r}, v{acc+8*u+4+r}')
        for u in range(nu):
            for q in range(4):
                d = acc + 8 * u + 2 * q
                P(Ins(f'v_dot2c_f32_bf16 v{d}, s{LO}, v{xr+4*u+q}', needs=[xl_[u]]))
                P(f'v_dot2c_f32_bf16 v{d+1}, s{HI}, v{xr+4*u+q}')
        for u in range(nu):
            for q in range(4): P(cvt(xr + 4 * u + q, acc + 8 * u + 2 * q, acc + 8 * u + 2 * q + 1))
            P(f'buffer_store_dwordx4 {vr(xr+4*u)}, v{vDG}, {sr(SU)}, s{TX} offen offset:{64*u+imm} ' + opt.get('ost', 'sc1'))
    def scale_s(P, acc, nu=2):
        for r in range(0, 8 * nu, 2): P(f'v_pk_mul_f32 {vr(acc+r,2)}, {vr(acc+r,2)}, {vr(vMX,2)} op_sel_hi:[1,0]')
    ftest = [f'v_cmp_le_u32 vcc, s{TV}, v{vPFP}', 's_nop 1', f's_and_b32 s{T2}, vcc_lo, s{TM}', f's_cmp_eq_u32 s{T2}, s{TM}']
    P(Ins('s_barrier', needs=[x for n in range(NS, NSX) for x in slots[n].loads]))
    while tq and any(x in ol for x in tq): P(tq.pop(0))
    P(f's_and_b32 s{T2}, s{J}, 12')
    P(f's_cmp_eq_u32 s{T2}, 8')
    P('s_cbranch_scc1 dbl')
    S = P.fork(); tq2 = [Ins(x.text) for x in tq]
    st2 = [x for x in st1 if x.cnt is not None] + [x for x in tq2 if 'store' in x.op]
    f1 = Ins(fl_t)
    def bgt(n):
        for _ in range(2):
            if tq: P(tq.pop(0))
        if n == opt.get('nf', 48):
            P(Ins('s_barrier', needs=st1))
            P(f1)
            emit_all(setflag(7, vPFS))
    wo_gemm(P, XT, True, bgt)
    assert not tq
    stamp('wo')
    scale_s(P, XT)
    P(Ins(ftest[0], needs=[f1]))
    P('s_nop 1')
    pl = [None] * 16
    porder = opt.get('porder', [7, 6, 5, 4, 0, 1, 2, 3])
    for p in porder:
        bits = 3 << (2 * p)
        if opt.get('pb'): bits = sum(3 << (2 * y) for y in porder[porder.index(p) // opt['pb'] * opt['pb']:][:opt['pb']])
        chk = [f's_andn2_b32 s{T2}, s{TM}, vcc_lo', f's_and_b32 s{T2}, s{T2}, {bits}']
        for t_ in chk: P(t_)
        P(f's_cbranch_scc1 fp{p}_slow')
        P.label(f'fp{p}_ok')
        Z = Prog(); Z.label(f'fp{p}_slow'); Z(f's_mov_b32 s{SPN}, 400000'); Z.label(f'fp{p}_loop')
        if opt.get('fs'): Z('s_sleep %d' % opt['fs'])
        Z(fl_t); Z('s_waitcnt vmcnt(0)'); Z(ftest[0]); Z(f's_sub_u32 s{SPN}, s{SPN}, 1'); Z(f's_cbranch_scc1 fp{p}_ok')
        for t_ in chk: Z(t_)
        Z(f's_cbranch_scc1 fp{p}_loop'); Z(f's_branch fp{p}_ok'); slow.append(Z.text())
        for u in range(2):
            P(f's_add_u32 s{T3}, s{TP}, 0x{POFF + (p*18+17-u)*8192:x}')
            pl[2 * porder.index(p) + u] = P(f'buffer_load_dwordx4 {vr(ACCA+8*porder.index(p)+4*u)}, v{vL16}, {sr(SW)}, s{T3} offen sc1')
    stamp('poll')
    fmath(P, XT, ACCA, pl, XR2, xld, 0)
    stamp('x1')
    P.label('dbl_e')
    stamp('x2')
    S.label('dbl')
    TP2, TX2, U6 = 96, 97, 98
    S(f'''s_bfe_u32 s{U6}, s{J}, 0x10001
    s_lshl_b32 s{T2}, s{U6}, 9
    s_sub_u32 s{T2}, 640, s{T2}
    s_add_u32 s{TL}, s{TL}, s{T2}
    s_lshl_b32 s{U6}, s{U6}, 6
    s_add_u32 s{T2}, s{T2}, s{U6}
    s_add_u32 s{TX2}, s{TX}, s{T2}
    s_lshl_b32 s{T2}, s{T2}, 7
    s_sub_u32 s{TP2}, s{TP}, s{T2}
    s_mov_b32 s{TM}, 0xffff''')
    ph2 = [x for x in range(9) if x not in [phys[n] for n in range(NS, NSX)]] + [9]
    wq = bunch(flat([slots[NS + n].dma(ph2[n]) for n in range(5)]))
    wl = [x for g in wq for x in g if x.kind == 'vmem']
    def pl_(dst, base, nu): return [II(f's_add_u32 s{T3}, s{base}, 0x{POFF + (p*18+17-u)*8192:x}\nbuffer_load_dwordx4 {vr(dst+8*p+4*u)}, v{vL16}, {sr(SW)}, s{T3} offen sc1') for p in range(8) for u in range(nu)]
    qa = pl_(ACCA, TP, 2); qb = pl_(ACCB, TP2, 1); pa = [g[1] for g in qa]; pb = [g[1] for g in qb]
    x2 = [Ins(f'buffer_load_dwordx4 {vr(SP)}, v{vDG}, {sr(SX)}, s{TX2} offen')]
    mq = wq[:10] + [[d5ld]] + wq[10:] + [x2] + [poll_check('d5', d5ld, ftest) + qa[0]] + qa[1:] + qb
    def pop():
        if mq:
            for x in mq.pop(0):
                if x.kind == 'label': S.out.append(x)
                else: S(x)
    def bgs(n):
        if tq2:
            for _ in range(2):
                if tq2: S(tq2.pop(0))
        elif n % (2 if fdone and len(fdone) > 1 else opt.get('dp', 3)) == 0: pop()
        if n == opt.get('nfd', 28) and not fdone:
            fdone.append(1)
            S(Ins('s_barrier', needs=st2))
            for x in setflag(7, vPFS): S(x)
    fdone = []
    wo_gemm(S, XT, True, bgs)
    for x in flat(stamp('wo', True)): S(x)
    while wl[-1].cnt is None: pop()
    for _ in range(4): pop()
    S(Ins('s_barrier', needs=wl))
    for x in flat(stamp('poll', True)): S(x)
    fdone.append(1)
    for d in range(2): S(f'v_xor_b32 v{vWT[d]}, s{U6}, v{vWT[d]}')
    wo_gemm(S, XT + 16, False, bgs, ph2, 2)
    for x in flat(stamp('x1', True)): S(x)
    scale_s(S, XT)
    fmath(S, XT, ACCA, pa, XR2, [None, None], 0, lambda n: pop())
    assert not mq
    S(f's_mov_b32 s{TX}, s{TX2}')
    scale_s(S, XT + 16, 1)
    fmath(S, XT + 16, ACCB, pb, SP, x2, 0, None, 1)
    S('s_branch dbl_e'); slow.append(S.text())
    if stamps:
      P('s_waitcnt vmcnt(0)')
      stamp('end')
      P('s_waitcnt lgkmcnt(0)')
      P(f's_lshl_b32 s{T2}, s2, 7')
      P(f's_add_u32 s{T2}, s{T2}, 0x{STAMP_OFF:x}')
      if stamps == 'all':
        n = len(ALL)
        P('v_writelane_b32 v%d, s22, %d' % (77 + n // 64, n % 64))
        P(f's_lshl_b32 s{T2}, s2, 9')
        P(f's_add_u32 s{T2}, s{T2}, 0x{STAMP_OFF + (2 << 18):x}')
        P(f's_cmp_eq_u32 s{Wv}, 0')
        P(f's_cselect_b32 s{T2}, s{T2}, 0x{OOB:x}')
        P(f'v_lshlrev_b32 v80, 2, v{vL}')
        P(f'buffer_store_dword v77, v80, {sr(SW)}, s{T2} offen')
        P(f'buffer_store_dword v78, v80, {sr(SW)}, s{T2} offen offset:256')
      else:
        P('s_mov_b32 s%d, s22' % (sTS + len(stamps)))
        P('v_mov_b32 v81, 0')
        for n in range(10):
            P('v_mov_b32 v80, s%d' % (sTS + (n if opt.get('est') else min(n, len(stamps)))))
            P(f'buffer_store_dwordx2 v[80:81], v{vFL}, {sr(SW)}, s{T2} offen offset:{8*n}')
    P.label('K1_end')
    P('s_endpgm')
    print('K1: instrs', len(P.out), 'nops', P.nnop, file=sys.stderr)
    return P.text() + ''.join(reversed(slow))
```
